```python
import torch

def _softmax(x, axis=-1):
    return torch.softmax(x, dim=axis)
def _gelu(x):
    return torch.nn.functional.gelu(x, approximate="tanh")
def _silu(x):
    return torch.nn.functional.silu(x)
def _sigmoid(x):
    return torch.sigmoid(x)
def _layernorm(x, axis=-1, eps=1e-5):
    m = x.mean(dim=axis, keepdim=True)
    v = x.var(dim=axis, keepdim=True, unbiased=False)
    return (x - m) / torch.sqrt(v + eps)
def _scatter_add(tgt, idx, src, axis=0):
    return tgt.clone().index_add_(axis, idx, src)
def _segment_sum(src, seg, n):
    out = torch.zeros((n,) + src.shape[1:], dtype=src.dtype)
    return out.index_add_(0, seg, src)
def _pad(x, pw):
    flat = tuple(v for pair in reversed(pw) for v in pair)
    return torch.nn.functional.pad(x, flat)

kernel_name = 'parallel_sum__linear_kernel_hedgehog__mixer_token_mlp__prompt'

def setup_inputs():

    _w = (lambda a: (lambda t: t.to(torch.bfloat16) if t.is_floating_point() else t)(torch.as_tensor(a)))
    def _A_setup():
        B, S, D, H = 1, 2048, 640, 32
        Dh = D // H
        return {
            "x": _w((lambda *s: torch.randn(*s, dtype=torch.bfloat16) * 0.05)(B, S, D)),
            "wqkv": _w((lambda *s: torch.randn(*s, dtype=torch.bfloat16) * 0.2)(D, 3 * D)),
            "w_phi": _w((lambda *s: torch.randn(*s, dtype=torch.bfloat16) * 0.2)(H, Dh, Dh) * (Dh ** -0.5)),
            "wo": _w((lambda *s: torch.randn(*s, dtype=torch.bfloat16) * 0.05)(D, D)),
        }
    _A_in = _A_setup()

    def _B_setup():
        B, S, D, F = 1, 2048, 640, 1728
        return {
            "x": _w((lambda *s: torch.randn(*s, dtype=torch.bfloat16) * 0.05)(B, S, D)),
            "w1": _w((lambda *s: torch.randn(*s, dtype=torch.bfloat16) * 0.8)(S, F) * (S ** -0.5)),
            "b1": _w((lambda *s: torch.randn(*s, dtype=torch.bfloat16) * 12.8)(F) * 0.02),
            "w2": _w((lambda *s: torch.randn(*s, dtype=torch.bfloat16) * 0.1)(F, S) * (F ** -0.5)),
            "b2": _w((lambda *s: torch.randn(*s, dtype=torch.bfloat16) * 1.6)(S) * 0.02),
        }
    _B_in = _B_setup()

    return {
        "A_x": _A_in["x"],
        "A_wqkv": _A_in["wqkv"],
        "A_w_phi": _A_in["w_phi"],
        "A_wo": _A_in["wo"],
        "B_x": _B_in["x"],
        "B_w1": _B_in["w1"],
        "B_b1": _B_in["b1"],
        "B_w2": _B_in["w2"],
        "B_b2": _B_in["b2"],
    }

def reference(A_x, A_wqkv, A_w_phi, A_wo, B_x, B_w1, B_b1, B_w2, B_b2):
    def _A_ref(x, wqkv, w_phi, wo):
        B, S, D = x.shape
        H = 32; Dh = D // H
        qkv = (lambda x, *d: x.permute(*d))((x @ wqkv).reshape(B, S, 3, H, Dh), 2, 0, 3, 1, 4)
        q, k, v = qkv[0], qkv[1], qkv[2]
        pq = torch.einsum("bhsd,hdf->bhsf", q, w_phi)
        pk = torch.einsum("bhsd,hdf->bhsf", k, w_phi)
        phi_q = torch.concatenate([_softmax(pq, axis=-1), _softmax(-pq, axis=-1)], axis=-1)
        phi_k = torch.concatenate([_softmax(pk, axis=-1), _softmax(-pk, axis=-1)], axis=-1)
        kv = torch.einsum("bhsf,bhsd->bhfd", phi_k, v)
        z  = torch.einsum("bhsf->bhf", phi_k)
        num = torch.einsum("bhqf,bhfd->bhqd", phi_q, kv)
        den = torch.einsum("bhqf,bhf->bhq", phi_q, z)[..., None] + 1e-6
        o = num / den
        return (lambda x, *d: x.permute(*d))(o, 0, 2, 1, 3).reshape(B, S, D) @ wo

    def _B_ref(x, w1, b1, w2, b2):
        B, S, D = x.shape
        h = _layernorm(x, axis=-1)
        u = torch.einsum("bsd,sf->bdf", h, w1) + b1
        u = _gelu(u)
        y = torch.einsum("bdf,fs->bds", u, w2) + b2
        return (lambda x, *d: x.permute(*d))(y, 0, 2, 1)

    x = A_x
    xn = _layernorm(x, axis=-1)
    return x + _A_ref(xn, A_wqkv, A_w_phi, A_wo) + _B_ref(xn, B_w1, B_b1, B_w2, B_b2)
```

```python
import re

REG_RE = re.compile(r'^(-|abs\()?([vas])(\d+)\)?$')
RNG_RE = re.compile(r'^(-)?([vas])\[(\d+):(\d+)\]$')
TRANS = ('v_exp_f32', 'v_log_f32', 'v_rcp_f32', 'v_rsq_f32', 'v_sqrt_f32', 'v_sin_f32', 'v_cos_f32',
         'v_rcp_iflag_f32')


def parse_reg(tok):
    tok = tok.strip()
    m = REG_RE.match(tok)
    if m:
        return {(m.group(2), int(m.group(3)))}
    m = RNG_RE.match(tok)
    if m:
        return {(m.group(2), k) for k in range(int(m.group(3)), int(m.group(4)) + 1)}
    if tok in ('vcc', 'vcc_lo', 'vcc_hi'):
        return {('s', 'vcc')}
    if tok in ('exec', 'exec_lo', 'exec_hi'):
        return {('s', 'exec')}
    if tok == 'm0':
        return {('s', 'm0')}
    return set()


class Ins:
    __slots__ = ('text', 'op', 'cls', 'defs', 'uses', 'srcA', 'srcB', 'srcC', 'passes', 'states',
                 'wide_store', 'dpp', 'lds_dma')


def split_ops(rest):
    out, depth, cur = [], 0, ''
    for ch in rest:
        if ch in '[(':
            depth += 1
        if ch in '])':
            depth -= 1
        if ch == ',' and depth == 0:
            out.append(cur.strip())
            cur = ''
        else:
            cur += ch
    if cur.strip():
        out.append(cur.strip())
    return out


def analyze(text):
    ins = Ins()
    ins.text = text
    t = text.split(';')[0].strip()
    parts = t.split(None, 1)
    op = parts[0]
    rest = parts[1] if len(parts) > 1 else ''
    ops = split_ops(rest)
    mods = ''
    if ops:
        last = ops[-1].split(None, 1)
        ops[-1] = last[0]
        if len(last) > 1:
            mods = last[1]
    base = op
    for suf in ('_e32', '_e64', '_dpp', '_sdwa'):
        if base.endswith(suf):
            base = base[:-len(suf)]
    ins.op = base
    ins.defs, ins.uses = set(), set()
    ins.srcA = ins.srcB = ins.srcC = set()
    ins.passes = 0
    ins.states = 1
    ins.wide_store = set()
    ins.dpp = op.endswith('_dpp')
    ins.lds_dma = False
    R = [parse_reg(o) for o in ops]
    allr = set().union(*R) if R else set()
    if base.startswith('v_mfma'):
        ins.cls = 'mfma'
        ins.defs = R[0]
        ins.srcA, ins.srcB, ins.srcC = R[1], R[2], R[3]
        ins.uses = R[1] | R[2] | R[3]
        if '16x16x32' in base or '16x16x16' in base:
            ins.passes = 4
        elif '32x32x16' in base or '32x32x8' in base:
            ins.passes = 8
        else:
            raise ValueError('unknown mfma ' + text)
    elif base.startswith('v_'):
        ins.cls = 'valu'
        if base.startswith('v_permlane') and 'swap' in base:
            ins.defs = R[0] | R[1]
            ins.uses = R[0] | R[1]
        elif base in ('v_add_co_u32', 'v_sub_co_u32', 'v_addc_co_u32', 'v_subb_co_u32', 'v_mad_u64_u32'):
            ins.defs = R[0] | R[1]
            ins.uses = set().union(*R[2:])
        elif base == 'v_nop':
            pass
        else:
            ins.defs = R[0]
            ins.uses = set().union(*R[1:]) if len(R) > 1 else set()
            if base in ('v_fmac_f32', 'v_dot2c_f32_bf16', 'v_pk_fmac_f16', 'v_writelane_b32') or ins.dpp:
                ins.uses |= R[0]
            if base.startswith('v_cmpx'):
                raise ValueError('avoid v_cmpx')
    elif base.startswith('ds_'):
        ins.cls = 'ds'
        if base.startswith('ds_read') or base.startswith('ds_bpermute') or base.startswith('ds_swizzle') \
                or base.startswith('ds_permute'):
            ins.defs = R[0]
            ins.uses = set().union(*R[1:])
        else:
            ins.uses = allr
    elif base.startswith('buffer_') or base.startswith('global_'):
        ins.cls = 'vmem'
        ismods = mods.split()
        if base in ('buffer_inv', 'buffer_wbl2'):
            pass
        elif 'load' in base:
            if 'lds' in ismods or '_lds_' in base:
                ins.uses = allr | {('s', 'm0')}
                ins.lds_dma = True
            else:
                ins.defs = R[0]
                ins.uses = set().union(*R[1:])
        else:
            ins.uses = allr
            if 'atomic' in base and 'sc0' in ismods:
                ins.defs = R[0]
            if base.endswith('x4') or base.endswith('x3'):
                ins.wide_store = R[0] if base.startswith('buffer_') else R[1]
    elif base.startswith('s_'):
        ins.cls = 'salu'
        if base == 's_nop':
            ins.states = int(ops[0], 0) + 1
        elif base.startswith('s_load') or base.startswith('s_buffer_load') or base in ('s_memtime', 's_memrealtime'):
            ins.cls = 'smem'
            ins.defs = R[0]
            ins.uses = set().union(*R[1:]) if len(R) > 1 else set()
        elif base.startswith('s_cmp') or base.startswith('s_cbranch') or base in (
                's_branch', 's_waitcnt', 's_barrier', 's_endpgm', 's_sleep', 's_setprio', 's_bitcmp1_b32',
                's_bitcmp0_b32'):
            ins.uses = allr
        else:
            ins.defs = R[0] if R else set()
            ins.uses = set().union(*R[1:]) if len(R) > 1 else set()
            if 'saveexec' in base:
                ins.defs = ins.defs | {('s', 'exec')}
    else:
        raise ValueError('unknown instruction class: ' + text)
    return ins


def vregs(s):
    return {r for r in s if r[0] in 'va'}


def sregs(s):
    return {r for r in s if r[0] == 's'}


def required(p, c):
    need = 0
    if p.cls == 'valu':
        pd_v, pd_s = vregs(p.defs), sregs(p.defs)
        isdot = p.op.startswith('v_dot')
        if c.cls == 'mfma' and pd_v & c.uses:
            need = max(need, 3 if isdot else 2)
        if c.cls == 'valu':
            if pd_v & c.uses:
                if p.op in TRANS:
                    need = max(need, 1)
                if c.op.startswith('v_permlane') or c.dpp:
                    need = max(need, 2)
                if c.op in ('v_readfirstlane_b32', 'v_readlane_b32'):
                    need = max(need, 1)
            if isdot and pd_v & (c.uses | c.defs):
                if c.op == p.op:
                    ops = split_ops(c.text.split(None, 1)[1])
                    ab = parse_reg(ops[1].split()[0]) | parse_reg(ops[2].split()[0])
                    if pd_v & ab:
                        need = max(need, 3)
                else:
                    need = max(need, 3)
            if pd_s & c.uses:
                need = max(need, 4 if c.op in ('v_readlane_b32', 'v_writelane_b32') else 2)
        if c.cls in ('vmem', 'ds'):
            if pd_s & c.uses:
                need = max(need, 5)
            if pd_v & c.uses and (p.op in TRANS):
                need = max(need, 1)
            if pd_v & c.uses and isdot:
                need = max(need, 3)
        if c.cls in ('salu', 'smem') and pd_s & c.uses:
            need = max(need, 1)
    elif p.cls == 'mfma':
        big = {4: 8, 8: 12}[p.passes]
        if c.cls == 'mfma':
            if p.defs & (c.srcA | c.srcB):
                need = max(need, big)
            if p.defs & c.srcC:
                if not (p.defs == c.srcC and p.passes == c.passes):
                    need = max(need, big - 2)
            elif p.defs & c.defs:
                need = max(need, big)
        elif c.cls in ('valu', 'vmem', 'ds'):
            if p.defs & (c.uses | c.defs):
                need = max(need, big)
            if c.cls == 'valu' and p.srcC & c.defs:
                need = max(need, {4: 3, 8: 7}[p.passes])
    elif p.cls == 'salu':
        if ('s', 'm0') in p.defs and c.lds_dma:
            need = max(need, 1)
    elif p.cls == 'vmem':
        if p.wide_store and (p.wide_store & c.defs) and c.cls in ('valu', 'mfma', 'ds', 'vmem'):
            need = max(need, 2)
    return need


class Asm:
    def __init__(self):
        self.out = []
        self.hist = []
        self.vm_issued = 0
        self.vm_done = 0
        self.lg_issued = 0
        self.lg_done = 0
        self.nops = 0
        self.uid = 0
        self.maxv = 0
        self.maxa = -1
        self.maxs = 0

    def raw(self, text):
        self.out.append(text)

    def comment(self, text):
        self.out.append('\t; ' + text)

    def label(self, name):
        self.fence()
        self.out.append(name + ':')

    def newlabel(self, stem):
        self.uid += 1
        return f'L_{stem}_{self.uid}'

    def fence(self):
        dist = 0
        need = 0
        for p in reversed(self.hist):
            if p.cls == 'mfma':
                need = max(need, {4: 8, 8: 12}[p.passes] - dist)
            elif p.cls == 'valu':
                need = max(need, (5 if sregs(p.defs) else 3) - dist)
            elif p.cls == 'vmem' and p.wide_store:
                need = max(need, 2 - dist)
            elif p.cls == 'salu' and ('s', 'm0') in p.defs:
                need = max(need, 1 - dist)
            dist += p.states
            if dist > 16:
                break
        if need > 0:
            self._push(analyze(f's_nop {need - 1}'))
        self.hist = []

    def _push(self, ins):
        self.out.append('\t' + ins.text)
        self.hist.append(ins)
        if len(self.hist) > 24:
            self.hist.pop(0)

    def __call__(self, text):
        ins = analyze(text)
        for f, k in ins.defs | ins.uses:
            if isinstance(k, int):
                if f == 'v':
                    self.maxv = max(self.maxv, k)
                elif f == 'a':
                    self.maxa = max(self.maxa, k)
                else:
                    self.maxs = max(self.maxs, k)
        dist = 0
        need = 0
        for p in reversed(self.hist):
            r = required(p, ins)
            if r - dist > need:
                need = r - dist
            dist += p.states
            if dist > 16:
                break
        if need > 0:
            self.nops += need
            self._push(analyze(f's_nop {need - 1}'))
        if ins.op.startswith('s_cbranch') or ins.op == 's_branch':
            self.fence()
        self._push(ins)
        tok = None
        if ins.cls == 'vmem':
            tok = ('vm', self.vm_issued)
            self.vm_issued += 1
        elif ins.cls == 'ds':
            tok = ('lg', self.lg_issued)
            self.lg_issued += 1
        return tok

    def wait(self, *toks):
        vm = [t[1] for t in toks if t is not None and t[0] == 'vm']
        lg = [t[1] for t in toks if t is not None and t[0] == 'lg']
        parts = []
        if vm and max(vm) >= self.vm_done:
            n = self.vm_issued - 1 - max(vm)
            n = min(n, 63)
            parts.append(f'vmcnt({n})')
            self.vm_done = self.vm_issued - n
        if lg and max(lg) >= self.lg_done:
            n = self.lg_issued - 1 - max(lg)
            n = min(n, 15)
            parts.append(f'lgkmcnt({n})')
            self.lg_done = self.lg_issued - n
        if parts:
            self('s_waitcnt ' + ' '.join(parts))

    def wait_vm0(self):
        self('s_waitcnt vmcnt(0)')
        self.vm_done = self.vm_issued

    def wait_lg0(self):
        self('s_waitcnt lgkmcnt(0)')
        self.lg_done = self.lg_issued

    def wait_all(self):
        self('s_waitcnt vmcnt(0) lgkmcnt(0)')
        self.vm_done = self.vm_issued
        self.lg_done = self.lg_issued

    def reset_counters(self):
        self.vm_done = self.vm_issued
        self.lg_done = self.lg_issued

    def text(self):
        return '\n'.join(self.out) + '\n'


def V(n, cnt=1):
    return f'v{n}' if cnt == 1 else f'v[{n}:{n + cnt - 1}]'


def A(n, cnt=1):
    return f'a{n}' if cnt == 1 else f'a[{n}:{n + cnt - 1}]'


def S(n, cnt=1):
    return f's{n}' if cnt == 1 else f's[{n}:{n + cnt - 1}]'
```

```python
import sys, struct, os
sys.path.insert(0, os.path.dirname(__file__))
from asmdsl import Asm, V, A, S

NAME = 'parallel_sum__linear_kernel_hedgehog__mixer_token_mlp__prompt'
S_, D_, F_ = 2048, 640, 1728

HF_OFF = 0
HF_SZ = 8 * 64 * 5 * 1024
GF_OFF = HF_OFF + HF_SZ
GF_SZ = 8 * 74 * 5 * 1024
OT_OFF = GF_OFF + GF_SZ
OT_SZ = 640 * 2048 * 2
PQ_OFF = OT_OFF + OT_SZ
PQ_SZ = 32 * 5 * 2048 * 16
KV_OFF = PQ_OFF + PQ_SZ
KV_SZ = 32 * 32 * 3360
WS_USED = KV_OFF + KV_SZ + 8192
OOB = 0x40000000

P_X, P_WQKV, P_WPHI, P_WO, P_BX, P_W1, P_B1, P_W2, P_B2, P_OUT, P_DBG, P_WS = range(16, 40, 2)

LOG2E = 1.4426950408889634


def fbits(x):
    return '0x%08x' % struct.unpack('<I', struct.pack('<f', x))[0]


def srd(a, dst, ptr, nbytes, add=0):
    if add:
        a(f's_add_u32 s{dst}, s{ptr}, {add}')
        a(f's_addc_u32 s{dst + 1}, s{ptr + 1}, 0')
        a(f's_and_b32 s{dst + 1}, s{dst + 1}, 0xffff')
    else:
        a(f's_mov_b32 s{dst}, s{ptr}')
        a(f's_and_b32 s{dst + 1}, s{ptr + 1}, 0xffff')
    a(f's_mov_b32 s{dst + 2}, {nbytes}')
    a(f's_mov_b32 s{dst + 3}, 0x20000')


vL, vG, vI, vR, vC = 1, 2, 3, 4, 5
sW = 3


def prologue(a, nwg, exit_label):
    a(f's_cmp_ge_u32 s2, {nwg}')
    a(f's_cbranch_scc1 {exit_label}')
    a('s_load_dwordx16 s[16:31], s[0:1], 0')
    a('s_load_dwordx8 s[32:39], s[0:1], 64')
    a(f'v_and_b32 v{vL}, 63, v0')
    a('v_lshrrev_b32 v6, 6, v0')
    a(f'v_readfirstlane_b32 s{sW}, v6')
    a(f'v_lshrrev_b32 v{vG}, 4, v{vL}')
    a(f'v_and_b32 v{vI}, 15, v{vL}')
    a(f'v_lshrrev_b32 v{vR}, 2, v{vI}')
    a(f'v_and_b32 v{vC}, 3, v{vL}')
    a('s_waitcnt lgkmcnt(0)')


def reduce_g(a, r, t):
    a(f'v_mov_b32 v{t}, v{r}')
    a(f'v_permlane32_swap_b32 v{r}, v{t}')
    a(f'v_add_f32 v{r}, v{r}, v{t}')
    a(f'v_mov_b32 v{t}, v{r}')
    a(f'v_permlane16_swap_b32 v{r}, v{t}')
    a(f'v_add_f32 v{r}, v{r}, v{t}')


def dma160_voffs(a, dst, ninstr, first_expr_s, stride, nsec, secstride, permute, tmp):
    t0, t1, t2, t3 = tmp, tmp + 1, tmp + 2, tmp + 3
    for q in range(ninstr):
        d = dst + q
        a(f's_add_u32 s4, s{first_expr_s}, {q}')
        a('s_lshl_b32 s4, s4, 6')
        a(f'v_add_u32 v{t0}, s4, v{vL}')
        a(f'v_mul_u32_u24 v{t1}, 205, v{t0}')
        a(f'v_lshrrev_b32 v{t1}, 16, v{t1}')
        a(f'v_mul_u32_u24 v{t2}, 320, v{t1}')
        a(f'v_sub_u32 v{t0}, v{t0}, v{t2}')
        a(f'v_mul_u32_u24 v{t2}, 6554, v{t0}')
        a(f'v_lshrrev_b32 v{t2}, 16, v{t2}')
        a(f'v_mul_u32_u24 v{t3}, 10, v{t2}')
        a(f'v_sub_u32 v{t0}, v{t0}, v{t3}')
        if permute:
            a(f'v_bfe_u32 v{t3}, v{t2}, 2, 2')
            a(f'v_lshlrev_b32 v{t3}, 3, v{t3}')
            a(f'v_and_b32 v{d}, 3, v{t2}')
            a(f'v_add_u32 v{t3}, v{t3}, v{d}')
            a(f'v_lshrrev_b32 v{t2}, 4, v{t2}')
            a(f'v_lshl_add_u32 v{t2}, v{t2}, 2, v{t3}')
        a(f'v_mul_u32_u24 v{t2}, {stride}, v{t2}')
        a(f'v_lshl_add_u32 v{t2}, v{t0}, 4, v{t2}')
        a(f'v_mul_u32_u24 v{t3}, {secstride}, v{t1}')
        a(f'v_add_u32 v{t2}, v{t2}, v{t3}')
        a(f'v_subrev_u32 v{d}, {q * 1024}, v{t2}')
        a(f'v_cmp_le_u32 vcc, {nsec}, v{t1}')
        a(f'v_mov_b32 v{t3}, {OOB}')
        a(f'v_cndmask_b32 v{d}, v{d}, v{t3}, vcc')


def softmax_pm(a, P, PH, EP, EN, tmp, sL, sNL):
    p = [P[k // 4] + k % 4 for k in range(20)]
    ep = [EP[k // 4] + k % 4 for k in range(20)]
    en = [EN[k // 4] + k % 4 for k in range(20)]
    mx, mn, sp, sn = tmp, tmp + 2, tmp + 4, tmp + 6
    a(f'v_max3_f32 v{mx}, v{p[0]}, v{p[1]}, v{p[2]}')
    a(f'v_min3_f32 v{mn}, v{p[0]}, v{p[1]}, v{p[2]}')
    for k in range(3, 19, 2):
        a(f'v_max3_f32 v{mx}, v{mx}, v{p[k]}, v{p[k + 1]}')
        a(f'v_min3_f32 v{mn}, v{mn}, v{p[k]}, v{p[k + 1]}')
    a(f'v_max_f32 v{mx}, v{mx}, v{p[19]}')
    a(f'v_min_f32 v{mn}, v{mn}, v{p[19]}')
    a(f'v_mul_f32 v{mx}, s{sNL}, v{mx}')
    a(f'v_mul_f32 v{mn}, s{sL}, v{mn}')
    for k in range(0, 20, 2):
        a(f'v_pk_fma_f32 {V(ep[k], 2)}, {V(p[k], 2)}, {S(sL, 2)}, {V(mx, 2)} op_sel_hi:[1,0,0]')
        a(f'v_pk_fma_f32 {V(en[k], 2)}, {V(p[k], 2)}, {S(sNL, 2)}, {V(mn, 2)} op_sel_hi:[1,0,0]')
    for k in range(20):
        a(f'v_exp_f32 v{ep[k]}, v{ep[k]}')
        a(f'v_exp_f32 v{en[k]}, v{en[k]}')
    a(f'v_pk_add_f32 {V(sp, 2)}, {V(ep[0], 2)}, {V(ep[2], 2)}')
    a(f'v_pk_add_f32 {V(sn, 2)}, {V(en[0], 2)}, {V(en[2], 2)}')
    for k in range(4, 20, 2):
        a(f'v_pk_add_f32 {V(sp, 2)}, {V(sp, 2)}, {V(ep[k], 2)}')
        a(f'v_pk_add_f32 {V(sn, 2)}, {V(sn, 2)}, {V(en[k], 2)}')
    a(f'v_add_f32 v{sp}, v{sp}, v{sp + 1}')
    a(f'v_add_f32 v{sn}, v{sn}, v{sn + 1}')
    a(f'v_rcp_f32 v{sp}, v{sp}')
    a(f'v_rcp_f32 v{sn}, v{sn}')
    for k in range(0, 20, 2):
        a(f'v_pk_mul_f32 {V(ep[k], 2)}, {V(ep[k], 2)}, {V(sp, 2)} op_sel_hi:[1,0]')
        a(f'v_pk_mul_f32 {V(en[k], 2)}, {V(en[k], 2)}, {V(sn, 2)} op_sel_hi:[1,0]')
    allv = ep + en
    for k in range(20):
        a(f'v_cvt_pk_bf16_f32 v{PH[k // 4] + k % 4}, v{allv[2 * k]}, v{allv[2 * k + 1]}')


A_RING = 8
A_WPHI = A_RING * 16384
A_HS = A_WPHI + 4096
A_ZERO = A_HS + 64 * 208
A_LDS = A_ZERO + 1024


def phase_a(a):
    sX, sWQ, sWP, sWS = 40, 44, 48, 52
    sHG, sRB, sROT, sKS, sT = 56, 57, 58, 59, 60
    sL, sNL = 62, 64
    srd(a, sX, P_X, S_ * D_ * 2)
    srd(a, sWQ, P_WQKV, D_ * 3 * D_ * 2)
    srd(a, sWP, P_WPHI, 32 * 800)
    srd(a, sWS, P_WS, WS_USED)
    a('s_and_b32 s4, s2, 7')
    a('s_lshr_b32 s5, s2, 3')
    a('s_and_b32 s6, s4, 1')
    a('s_lshl_b32 s6, s6, 2')
    a('s_and_b32 s7, s5, 3')
    a(f's_add_u32 s{sHG}, s6, s7')
    a('s_lshr_b32 s6, s4, 1')
    a('s_lshl_b32 s6, s6, 3')
    a('s_lshr_b32 s7, s5, 2')
    a(f's_add_u32 s{sRB}, s6, s7')
    a(f's_mul_i32 s{sROT}, s{sHG}, 5')
    a(f's_lshr_b32 s{sROT}, s{sROT}, 1')
    DB = 64

    def XR(s):
        return DB + 8 * s + 4

    def XN(s):
        return DB + 8 * s

    def ACC(k):
        return DB + 8 * k + 4

    vXO, vTOK = 6, 7
    a(f's_lshl_b32 s4, s{sRB}, 6')
    a(f's_lshl_b32 s5, s{sW}, 4')
    a('s_add_u32 s4, s4, s5')
    a(f'v_add_u32 v{vTOK}, s4, v{vI}')
    a(f'v_mul_u32_u24 v{vXO}, 1280, v{vTOK}')
    a(f'v_lshl_add_u32 v{vXO}, v{vG}, 4, v{vXO}')
    a(f's_mov_b32 s{sKS}, s{sROT}')
    xtok = []
    for s in range(20):
        a(f's_lshl_b32 s{sT}, s{sKS}, 6')
        xtok.append(a(f'buffer_load_dwordx4 {V(XR(s), 4)}, v{vXO}, {S(sX, 4)}, s{sT} offen'))
        a(f's_add_u32 s{sKS}, s{sKS}, 1')
        a(f's_cmp_eq_u32 s{sKS}, 20')
        a(f's_cselect_b32 s{sKS}, 0, s{sKS}')
    vT = 8
    a(f's_mul_i32 s4, s{sHG}, 3200')
    a(f's_lshl_b32 s5, s{sW}, 10')
    a('s_add_u32 s4, s4, s5')
    a(f'v_lshl_add_u32 v{vT}, v{vL}, 4, s4')
    a(f's_add_u32 m0, s5, {A_WPHI}')
    a(f'buffer_load_dwordx4 v{vT}, {S(sWP, 4)}, 0 offen lds')
    vWO = 12
    a(f's_lshl_b32 s5, s{sW}, 2')
    dma160_voffs(a, vWO, 4, 5, 3840, 3, 1280, True, 8)
    a(f's_mul_i32 s4, s{sHG}, 160')
    for q in range(4):
        a(f'v_add_u32 v{vWO + q}, s4, v{vWO + q}')
    sM0B = 61
    a(f's_lshl_b32 s{sM0B}, s{sW}, 12')
    a(f's_mov_b32 s{sKS}, s{sROT}')
    wtok = {}

    def issue_w(step):
        a(f's_mul_i32 s{sT}, s{sKS}, {32 * 3840}')
        a(f's_add_u32 m0, s{sM0B}, {(step % A_RING) * 16384}')
        for q in range(4):
            off = f' offset:{q * 1024}' if q else ''
            wtok[step] = a(f'buffer_load_dwordx4 v{vWO + q}, {S(sWQ, 4)}, s{sT} offen{off} lds')
        a(f's_add_u32 s{sKS}, s{sKS}, 1')
        a(f's_cmp_eq_u32 s{sKS}, 20')
        a(f's_cselect_b32 s{sKS}, 0, s{sKS}')

    for step in range(A_RING):
        issue_w(step)
    for k in range(4):
        a(f'v_mov_b32 v{8 + k}, 0')
    a(f'v_lshlrev_b32 v16, 4, v{vL}')
    a(f'v_add_u32 v16, {A_ZERO}, v16')
    a(f'ds_write_b128 v16, v[8:11]')
    a(f's_mov_b32 s{sL}, {fbits(LOG2E)}')
    a(f's_mov_b32 s{sL + 1}, {fbits(LOG2E)}')
    a(f's_mov_b32 s{sNL}, {fbits(-LOG2E)}')
    a(f's_mov_b32 s{sNL + 1}, {fbits(-LOG2E)}')
    vTR, vTR2 = 17, 18
    a(f'v_lshl_add_u32 v{vTR}, v{vG}, 2, v{vR}')
    a(f'v_mov_b32 v19, v{vTR}')
    a(f'v_mul_u32_u24 v{vTR}, 160, v{vTR}')
    a(f'v_mul_u32_u24 v8, 40, v{vC}')
    a(f'v_add_u32 v{vTR}, v{vTR}, v8')
    a(f'v_add_u32 v{vTR2}, 0x10000, v{vTR}')

    vONE, vS = 20, 22
    a(f'v_mov_b32 v{vONE}, 0x3f803f80')
    for k in range(4):
        a(f'v_mov_b32 v{vS + k}, 0')
    for s in range(20):
        a.wait(xtok[s])
        for k in range(4):
            a(f'v_dot2c_f32_bf16 v{vS + k}, v{XR(s) + k}, v{vONE}')
    a(f'v_add_f32 v{vS}, v{vS}, v{vS + 1}')
    a(f'v_add_f32 v{vS + 2}, v{vS + 2}, v{vS + 3}')
    a(f'v_add_f32 v{vS}, v{vS}, v{vS + 2}')
    reduce_g(a, vS, vS + 1)
    vNM = 26
    a(f'v_mul_f32 v{vNM}, {fbits(-1.0 / 640)}, v{vS}')
    vQ = 28
    for k in range(4):
        a(f'v_mov_b32 v{vQ + k}, 0')
    for s in range(20):
        b = DB + 8 * s
        for k in range(4):
            a(f'v_lshlrev_b32 v{b + 2 * k}, 16, v{b + 4 + k}')
            a(f'v_and_b32 v{b + 2 * k + 1}, 0xffff0000, v{b + 4 + k}')
        for k in range(4):
            a(f'v_pk_add_f32 {V(b + 2 * k, 2)}, {V(b + 2 * k, 2)}, {V(vNM, 2)} op_sel_hi:[1,0]')
        for k in range(4):
            q = vQ + 2 * (k & 1)
            a(f'v_pk_fma_f32 {V(q, 2)}, {V(b + 2 * k, 2)}, {V(b + 2 * k, 2)}, {V(q, 2)}')
    a(f'v_pk_add_f32 {V(vQ, 2)}, {V(vQ, 2)}, {V(vQ + 2, 2)}')
    a(f'v_add_f32 v{vQ}, v{vQ}, v{vQ + 1}')
    reduce_g(a, vQ, vQ + 1)
    a(f'v_mov_b32 v{vQ + 1}, {fbits(1e-5)}')
    a(f'v_fmac_f32 v{vQ + 1}, {fbits(1.0 / 640)}, v{vQ}')
    a(f'v_rsq_f32 v{vQ}, v{vQ + 1}')
    for k in range(4):
        a(f'v_mov_b32 v{vS + k}, 0')
    for s in range(20):
        b = DB + 8 * s
        for k in range(4):
            a(f'v_pk_mul_f32 {V(b + 2 * k, 2)}, {V(b + 2 * k, 2)}, {V(vQ, 2)} op_sel_hi:[1,0]')
        for k in range(4):
            a(f'v_cvt_pk_bf16_f32 v{b + k}, v{b + 2 * k}, v{b + 2 * k + 1}')
        for k in range(4):
            a(f'v_dot2c_f32_bf16 v{vS + (k & 1)}, v{b + k}, v{vONE}')
            a(f'v_dot2c_f32_bf16 v{vS + 2 + (k & 1)}, v{b + k}, v{b + k}')
    a(f'v_add_f32 v{vS}, v{vS}, v{vS + 1}')
    a(f'v_add_f32 v{vS + 2}, v{vS + 2}, v{vS + 3}')
    reduce_g(a, vS, vS + 1)
    reduce_g(a, vS + 2, vS + 3)
    a(f'v_mul_f32 v{vNM}, {fbits(-1.0 / 640)}, v{vS}')
    a(f'v_mov_b32 v{vQ + 1}, {fbits(1e-5)}')
    a(f'v_fmac_f32 v{vQ + 1}, {fbits(1.0 / 640)}, v{vS + 2}')
    a(f'v_fma_f32 v{vQ + 1}, -v{vNM}, v{vNM}, v{vQ + 1}')
    a(f'v_rsq_f32 v{vQ}, v{vQ + 1}')
    vHA = 32
    a(f's_lshl_b32 s4, s{sW}, 4')
    a(f'v_add_u32 v{vHA}, s4, v{vI}')
    a(f'v_mul_u32_u24 v{vHA}, 208, v{vHA}')
    a(f'v_lshl_add_u32 v{vHA}, v{vG}, 4, v{vHA}')
    a(f'v_add_u32 v{vHA}, {A_HS}, v{vHA}')
    for s in range(3):
        t = 36
        for k in range(4):
            a(f'v_lshlrev_b32 v{t + 2 * k}, 16, v{XN(s) + k}')
            a(f'v_and_b32 v{t + 2 * k + 1}, 0xffff0000, v{XN(s) + k}')
        for k in range(4):
            a(f'v_pk_add_f32 {V(t + 2 * k, 2)}, {V(t + 2 * k, 2)}, {V(vNM, 2)} op_sel_hi:[1,0]')
        for k in range(4):
            a(f'v_pk_mul_f32 {V(t + 2 * k, 2)}, {V(t + 2 * k, 2)}, {V(vQ, 2)} op_sel_hi:[1,0]')
        for k in range(4):
            a(f'v_cvt_pk_bf16_f32 v{44 + 4 * s + k}, v{t + 2 * k}, v{t + 2 * k + 1}')
        a(f'ds_write_b128 v{vHA}, {V(44 + 4 * s, 4)} offset:{64 * s}')
    for k in range(15):
        for j in range(4):
            a(f'v_mov_b32 v{ACC(k) + j}, 0')
    a.wait(wtok[0])
    a.wait_lg0()
    a('s_barrier')
    vHR, vHO = 32, 33
    a(f'v_mul_u32_u24 v{vHR}, 208, v19')
    a(f'v_mul_u32_u24 v8, 40, v{vC}')
    a(f'v_add_u32 v{vHR}, v{vHR}, v8')
    a(f's_and_b32 s4, s{sHG}, 1')
    a('s_lshl_b32 s4, s4, 5')
    a(f's_add_u32 s4, s4, {A_HS}')
    a(f'v_add_u32 v{vHR}, s4, v{vHR}')
    a(f's_lshl_b32 s4, s{sHG}, 6')
    a(f's_lshl_b32 s5, s{sRB}, 1')
    a('s_add_u32 s4, s4, s5')
    a('s_mul_i32 s4, s4, 5120')
    a(f's_add_u32 s8, s4, {HF_OFF}')
    htok = []
    for m in range(3):
        a(f's_add_u32 s4, s{sW}, {4 * m}')
        a('s_min_u32 s5, s4, 9')
        a('s_cmp_ge_u32 s5, 5')
        a(f's_cselect_b32 s6, {32 * 208 - 40}, 0')
        a('s_lshl_b32 s5, s5, 3')
        a('s_add_u32 s5, s5, s6')
        a(f'v_add_u32 v8, s5, v{vHR}')
        t1 = a(f'ds_read_b64_tr_b16 {V(36 + 4 * m, 2)}, v8')
        t2 = a(f'ds_read_b64_tr_b16 {V(38 + 4 * m, 2)}, v8 offset:{16 * 208}')
        htok.append(t2)
        a('s_lshl_b32 s5, s4, 10')
        a('s_add_u32 s5, s5, s8')
        a('s_cmp_ge_u32 s4, 10')
        a(f's_cselect_b32 s5, {OOB}, s5')
        a(f'v_lshl_add_u32 v{vHO + m}, v{vL}, 4, s5')
    for m in range(3):
        a.wait(htok[m])
        a(f'buffer_store_dwordx4 {V(36 + 4 * m, 4)}, v{vHO + m}, {S(sWS, 4)}, 0 offen')
    WP = 64
    vWA = 8
    a(f'v_mul_u32_u24 v{vWA}, 800, v{vG}')
    a(f'v_mul_u32_u24 v9, 40, v{vR}')
    a(f'v_add_u32 v{vWA}, v{vWA}, v9')
    a(f'v_add_u32 v{vWA}, {A_WPHI}, v{vWA}')
    a(f'v_mov_b32 v9, {A_ZERO}')
    a(f'v_cmp_eq_u32 vcc, v{vG}, v{vC}')
    a(f'v_cndmask_b32 v{vWA}, v9, v{vWA}, vcc')
    for t in range(5):
        for ks in range(3):
            for hf in range(2):
                r = WP + (t * 3 + ks) * 4 + 2 * hf
                d0 = 8 * ks + 4 * hf
                if d0 < 20:
                    a(f'ds_read_b64_tr_b16 {A(r, 2)}, v{vWA} offset:{d0 * 40 + 8 * t}')
                else:
                    a(f'v_accvgpr_write_b32 a{r}, 0')
                    a(f'v_accvgpr_write_b32 a{r + 1}, 0')
        if t == 2:
            a.wait_lg0()
    a.wait_lg0()

    NF = 300
    WIN = 7
    ftok = {}

    def read_frag(n):
        s, k = divmod(n, 15)
        sec, t = divmod(k, 5)
        slot = s % A_RING
        base = vTR if slot < 4 else vTR2
        off = (slot % 4) * 16384 + sec * 5120 + 8 * t
        r = (n % 8) * 4
        a(f'ds_read_b64_tr_b16 {A(r, 2)}, v{base} offset:{off}')
        ftok[n] = a(f'ds_read_b64_tr_b16 {A(r + 2, 2)}, v{base} offset:{off + 2560}')

    for n in range(WIN):
        read_frag(n)
    for n in range(NF):
        nn = n + WIN
        if nn < NF:
            if nn % 15 == 0:
                sn = nn // 15
                a.wait(wtok[sn])
                a('s_barrier')
                if sn >= 2 and sn - 2 + A_RING < 20:
                    issue_w(sn - 2 + A_RING)
            read_frag(nn)
        s, k = divmod(n, 15)
        a.wait(ftok[n])
        a(f'v_mfma_f32_16x16x32_bf16 {V(ACC(k), 4)}, {A((n % 8) * 4, 4)}, {V(XN(s), 4)}, {V(ACC(k), 4)}')

    free = [XN(s) for s in range(20)] + [ACC(k) for k in range(15, 20)]
    PK = [36, 40, 44]
    Pq = free[0:5]
    EP, EN = free[5:10], free[10:15]
    PH = free[15:20]
    VP = free[20:23]

    def featmap(sec):
        for k in range(10):
            t, j = divmod(2 * k, 4)
            a(f'v_cvt_pk_bf16_f32 v{PK[k // 4] + k % 4}, v{ACC(sec * 5 + t) + j}, v{ACC(sec * 5 + t) + j + 1}')
        a(f'v_mov_b32 v{PK[2] + 2}, 0')
        a(f'v_mov_b32 v{PK[2] + 3}, 0')
        for ks in range(3):
            for t in range(5):
                c = '0' if ks == 0 else V(Pq[t], 4)
                a(f'v_mfma_f32_16x16x32_bf16 {V(Pq[t], 4)}, {A(WP + (t * 3 + ks) * 4, 4)}, {V(PK[ks], 4)}, {c}')
        softmax_pm(a, Pq, PH, EP, EN, 48, sL, sNL)

    featmap(1)
    for k in range(10):
        t, j = divmod(2 * k, 4)
        a(f'v_cvt_pk_bf16_f32 v{VP[k // 4] + k % 4}, v{ACC(10 + t) + j}, v{ACC(10 + t) + j + 1}')
    a(f'v_mov_b32 v{VP[2] + 2}, 0x3f80')
    a(f'v_mov_b32 v{VP[2] + 3}, 0')
    vSA = 8
    a(f's_lshl_b32 s4, s{sW}, 4')
    a(f'v_lshl_add_u32 v{vSA}, v{vG}, 6, v{vI}')
    a(f'v_add_u32 v{vSA}, s4, v{vSA}')
    a(f'v_mul_u32_u24 v{vSA}, 144, v{vSA}')
    a('s_barrier')
    for c in range(5):
        a(f'ds_write_b128 v{vSA}, {V(PH[c], 4)} offset:{16 * c}')
    for c in range(3):
        a(f'ds_write_b128 v{vSA}, {V(VP[c], 4)} offset:{80 + 16 * c}')
    a.wait_lg0()
    a('s_barrier')
    vKA = 9
    a(f's_mul_i32 s4, s{sW}, {64 * 144}')
    a(f'v_mul_u32_u24 v{vKA}, 144, v19')
    a(f'v_lshl_add_u32 v{vKA}, v{vC}, 3, v{vKA}')
    a(f'v_add_u32 v{vKA}, s4, v{vKA}')
    ktok = {}
    for kk in range(2):
        for x in range(5):
            col = 32 * x if x < 3 else 80 + 32 * (x - 3)
            r = (kk * 5 + x) * 4
            a(f'ds_read_b64_tr_b16 {A(r, 2)}, v{vKA} offset:{kk * 32 * 144 + col}')
            ktok[kk] = a(f'ds_read_b64_tr_b16 {A(r + 2, 2)}, v{vKA} offset:{kk * 32 * 144 + 16 * 144 + col}')
        if kk == 0:
            pass
    KVA = [ACC(k) for k in range(5, 11)]
    vKO = 10
    a(f's_lshl_b32 s4, s{sHG}, 2')
    a(f's_add_u32 s4, s4, s{sW}')
    a('s_lshl_b32 s4, s4, 5')
    a(f's_add_u32 s4, s4, s{sRB}')
    a('s_mul_i32 s4, s4, 3360')
    a(f's_add_u32 s4, s4, {KV_OFF}')
    a(f'v_mul_u32_u24 v{vKO}, 160, v{vI}')
    a(f'v_lshl_add_u32 v{vKO}, v{vG}, 4, v{vKO}')
    a(f'v_add_u32 v{vKO}, s4, v{vKO}')
    a(f'v_mov_b32 v14, {OOB}')
    a(f'v_cmp_gt_u32 vcc, 2, v{vG}')
    a(f'v_cndmask_b32 v{vKO + 1}, v14, v{vKO}, vcc')
    a(f'v_cmp_gt_u32 vcc, 5, v{vI}')
    a(f'v_cndmask_b32 v{vKO + 2}, v14, v{vKO}, vcc')
    a(f'v_cndmask_b32 v{vKO + 3}, v14, v{vKO + 1}, vcc')
    for kk in range(2):
        a.wait(ktok[kk])
        for ft in range(3):
            for et in range(2):
                d = KVA[ft * 2 + et]
                c = '0' if kk == 0 else V(d, 4)
                a(f'v_mfma_f32_16x16x32_bf16 {V(d, 4)}, {A((kk * 5 + ft) * 4, 4)}, {A((kk * 5 + 3 + et) * 4, 4)}, {c}')
    featmap(0)
    for ft in range(3):
        for et in range(2):
            vo = vKO + (1 if ft == 2 else 0) + (2 if et == 1 else 0)
            a(f'buffer_store_dwordx4 {V(KVA[ft * 2 + et], 4)}, v{vo}, {S(sWS, 4)}, 0 offen offset:{et * 2560 + ft * 64}')
    a(f's_lshl_b32 s4, s{sHG}, 2')
    a(f'v_add_u32 v8, s4, v{vG}')
    a(f'v_mul_u32_u24 v8, {5 * 2048}, v8')
    a(f'v_add_u32 v8, v8, v{vTOK}')
    a('v_lshlrev_b32 v8, 4, v8')
    for c in range(5):
        a(f's_mov_b32 s4, {PQ_OFF + c * 32768}')
        a(f'buffer_store_dwordx4 {V(PH[c], 4)}, v8, {S(sWS, 4)}, s4 offen')


G_P = 6
G_LDS = 4 * G_P * 4096


def gemm_g(a, kind):
    sWS, sM1, sM2, sX, sBI, sO = 40, 44, 48, 52, 56, 60
    sDB, sCB = 10, 11
    srd(a, sWS, P_WS, WS_USED)
    if kind == 'B':
        stride = F_ * 2
        srd(a, sM1, P_W1, S_ * F_ * 2)
        srd(a, sBI, P_B1, F_ * 2)
        segs = [(sM1, 16, 16, 0)]
        fr_off, fr_steps = HF_OFF, 64
    else:
        stride = S_ * 2
        srd(a, sM1, P_W2, F_ * S_ * 2)
        srd(a, sM2, P_WS, OT_SZ, add=OT_OFF)
        srd(a, sX, P_X, S_ * D_ * 2)
        srd(a, sBI, P_B2, S_ * 2)
        srd(a, sO, P_OUT, S_ * D_ * 2)
        segs = [(sM1, 14, 14, 0), (sM2, 5, 5, 54)]
        fr_off, fr_steps = GF_OFF, 74
    steps = []
    for si, (r, n, per, fb) in enumerate(segs):
        steps += [(si, k) for k in range(n)]
    NS = len(steps)
    vD = [[8 + 4 * si + q for q in range(4)] for si in range(len(segs))]
    a(f'v_lshrrev_b32 v6, 3, v{vL}')
    a(f'v_mul_u32_u24 v6, {stride}, v6')
    a(f'v_and_b32 v7, 7, v{vL}')
    a(f'v_lshlrev_b32 v16, 1, v{vG}')
    a('v_xor_b32 v7, v7, v16')
    a('v_lshl_add_u32 v6, v7, 4, v6')
    a(f's_lshl_b32 s4, s{sCB}, 7')
    for si, (r, n, per, fb) in enumerate(segs):
        a(f's_mul_i32 s5, s{sW}, {per * 32 * stride}')
        a('s_add_u32 s5, s5, s4')
        for q in range(4):
            a(f's_add_u32 s6, s5, {8 * q * stride - 1024 * q}')
            a(f'v_add_u32 v{vD[si][q]}, s6, v6')
    vF = 16
    sFS = [12 + si for si in range(len(segs))]
    a(f'v_lshlrev_b32 v{vF}, 4, v{vL}')
    a(f'v_add_u32 v{vF + 1}, 4096, v{vF}')
    for si, (r, n, per, fb) in enumerate(segs):
        a(f's_mul_i32 s4, s{sDB}, {fr_steps}')
        a(f's_mul_i32 s5, s{sW}, {per}')
        a('s_add_u32 s4, s4, s5')
        a(f's_add_u32 s4, s4, {fb}')
        a('s_mul_i32 s4, s4, 5120')
        a(f's_add_u32 s{sFS[si]}, s4, {fr_off}')
    sM0 = 14
    a(f's_mul_i32 s{sM0}, s{sW}, {G_P * 4096}')
    ACC = lambda t, nt: 64 + (nt * 5 + t) * 4
    AF = lambda j, t: (j % G_P) * 20 + 4 * t
    TF = lambda j, nt: 160 + (j % 2) * 16 + 4 * nt
    dtok, ftok, ttok = {}, {}, {}

    def issue(j):
        si, k = steps[j]
        a(f's_add_u32 m0, s{sM0}, {(j % G_P) * 4096}')
        for q in range(4):
            off = f' offset:{q * 1024}' if q else ''
            dtok[j] = a(f'buffer_load_dwordx4 v{vD[si][q]}, {S(segs[si][0], 4)}, 0 offen{off} lds')
        for q in range(4):
            a(f'v_add_u32 v{vD[si][q]}, {32 * stride}, v{vD[si][q]}')
        for t in range(5):
            vo, off = (vF, t * 1024) if t < 4 else (vF + 1, 0)
            offs = f' offset:{off}' if off else ''
            ftok[j] = a(f'buffer_load_dwordx4 {A(AF(j, t), 4)}, v{vo}, {S(sWS, 4)}, s{sFS[si]} offen{offs}')
        a(f's_add_u32 s{sFS[si]}, s{sFS[si]}, 5120')

    for j in range(G_P):
        issue(j)
    vT = 20
    a(f'v_lshl_add_u32 v6, v{vG}, 2, v{vR}')
    a('v_bfe_u32 v7, v6, 1, 2')
    a(f'v_xor_b32 v7, s{sW}, v7')
    a('v_lshlrev_b32 v6, 7, v6')
    a(f'v_lshl_add_u32 v6, v{vC}, 3, v6')
    a(f'v_add_u32 v6, s{sM0}, v6')
    for nt in range(4):
        a(f'v_xor_b32 v18, {nt}, v7')
        a(f'v_lshl_add_u32 v{vT + nt}, v18, 5, v6')
    if kind == 'B':
        a(f's_lshl_b32 s4, s{sCB}, 7')
        a(f's_lshl_b32 s5, s{sW}, 5')
        a('s_add_u32 s4, s4, s5')
        a(f'v_lshl_add_u32 v6, v{vG}, 3, s4')
        btok = a(f'buffer_load_dwordx2 v[24:25], v6, {S(sBI, 4)}, 0 offen')
    else:
        a(f's_lshl_b32 s4, s{sCB}, 6')
        a(f's_lshl_b32 s5, s{sW}, 4')
        a('s_add_u32 s4, s4, s5')
        a(f'v_add_u32 v6, s4, v{vI}')
        a('v_lshlrev_b32 v7, 1, v6')
        a(f'buffer_load_ushort v24, v7, {S(sBI, 4)}, 0 offen')
        a('v_mul_u32_u24 v19, 1280, v6')
        a(f'v_mul_u32_u24 v7, 40, v{vG}')
        a('v_add_u32 v19, v19, v7')
        a(f's_mul_i32 s4, s{sDB}, 160')
        a('v_add_u32 v19, s4, v19')
        for t in range(5):
            btok = a(f'buffer_load_dwordx2 {V(26 + 2 * t, 2)}, v19, {S(sX, 4)}, 0 offen offset:{8 * t}')

    def trread(j):
        for nt in range(4):
            off = (j % G_P) * 4096
            a(f'ds_read_b64_tr_b16 {A(TF(j, nt), 2)}, v{vT + nt} offset:{off}')
            ttok[j] = a(f'ds_read_b64_tr_b16 {A(TF(j, nt) + 2, 2)}, v{vT + nt} offset:{off + 2048}')

    a.wait(dtok[0])
    trread(0)
    for j in range(NS):
        if j + 1 < NS:
            a.wait(dtok[j + 1])
            trread(j + 1)
        a.wait(ftok[j], ttok[j])
        for nt in range(4):
            for t in range(5):
                c = '0' if j == 0 else V(ACC(t, nt), 4)
                if kind == 'B':
                    a(f'v_mfma_f32_16x16x32_bf16 {V(ACC(t, nt), 4)}, {A(TF(j, nt), 4)}, {A(AF(j, t), 4)}, {c}')
                else:
                    a(f'v_mfma_f32_16x16x32_bf16 {V(ACC(t, nt), 4)}, {A(AF(j, t), 4)}, {A(TF(j, nt), 4)}, {c}')
        if j + G_P < NS:
            issue(j + G_P)
    a('s_barrier')
    a(f'v_lshlrev_b32 v6, 4, v{vL}')
    for nt in range(1, 4):
        a(f's_xor_b32 s4, s{sW}, {nt}')
        a('s_mul_i32 s4, s4, 15360')
        a(f's_add_u32 s4, s4, {(nt - 1) * 5120}')
        a('v_add_u32 v7, s4, v6')
        for t in range(5):
            a(f'ds_write_b128 v7, {V(ACC(t, nt), 4)} offset:{t * 1024}')
    a.wait_lg0()
    a('s_barrier')
    a(f's_mul_i32 s4, s{sW}, 15360')
    a('v_add_u32 v7, s4, v6')
    rtok = {}
    for nt in range(1, 4):
        for t in range(5):
            rtok[(nt, t)] = a(f'ds_read_b128 {V(ACC(t, nt), 4)}, v7 offset:{(nt - 1) * 5120 + t * 1024}')
    for nt in range(1, 4):
        for t in range(5):
            a.wait(rtok[(nt, t)])
            for h in range(2):
                a(f'v_pk_add_f32 {V(ACC(t, 0) + 2 * h, 2)}, {V(ACC(t, 0) + 2 * h, 2)}, {V(ACC(t, nt) + 2 * h, 2)}')
    a.wait(btok)
    R = lambda t, j: ACC(t, 0) + j
    if kind == 'B':
        a('v_lshlrev_b32 v26, 16, v24')
        a('v_and_b32 v27, 0xffff0000, v24')
        a('v_lshlrev_b32 v28, 16, v25')
        a('v_and_b32 v29, 0xffff0000, v25')
        c0 = 0.7978845608028654
        k1 = -2.0 * c0 * LOG2E
        k2 = k1 * 0.044715
        a(f's_mov_b32 s4, {fbits(k2)}')
        a(f's_mov_b32 s5, {fbits(k2)}')
        a(f'v_mov_b32 v30, {fbits(k1)}')
        a('v_mov_b32 v32, 1.0')
        T = lambda t, j: ACC(t, 1) + j
        for t in range(5):
            for h in range(2):
                a(f'v_pk_add_f32 {V(R(t, 2 * h), 2)}, {V(R(t, 2 * h), 2)}, {V(26 + 2 * h, 2)}')
        for t in range(5):
            for h in range(2):
                a(f'v_pk_mul_f32 {V(T(t, 2 * h), 2)}, {V(R(t, 2 * h), 2)}, {V(R(t, 2 * h), 2)}')
        for t in range(5):
            for h in range(2):
                a(f'v_pk_fma_f32 {V(T(t, 2 * h), 2)}, {V(T(t, 2 * h), 2)}, s[4:5], v[30:31] op_sel_hi:[1,0,0]')
        for t in range(5):
            for h in range(2):
                a(f'v_pk_mul_f32 {V(T(t, 2 * h), 2)}, {V(T(t, 2 * h), 2)}, {V(R(t, 2 * h), 2)}')
        for t in range(5):
            for j in range(4):
                a(f'v_exp_f32 v{T(t, j)}, v{T(t, j)}')
        for t in range(5):
            for h in range(2):
                a(f'v_pk_add_f32 {V(T(t, 2 * h), 2)}, {V(T(t, 2 * h), 2)}, v[32:33] op_sel_hi:[1,0]')
        for t in range(5):
            for j in range(4):
                a(f'v_rcp_f32 v{T(t, j)}, v{T(t, j)}')
        for t in range(5):
            for h in range(2):
                a(f'v_pk_mul_f32 {V(T(t, 2 * h), 2)}, {V(T(t, 2 * h), 2)}, {V(R(t, 2 * h), 2)}')
        a(f's_mul_i32 s4, s{sDB}, 74')
        a(f's_lshl_b32 s5, s{sCB}, 1')
        a('s_add_u32 s4, s4, s5')
        a(f's_lshr_b32 s5, s{sW}, 1')
        a('s_add_u32 s4, s4, s5')
        a('s_mul_i32 s4, s4, 5120')
        a(f's_and_b32 s5, s{sW}, 1')
        a('s_lshl_b32 s5, s5, 3')
        a('s_add_u32 s4, s4, s5')
        a(f's_add_u32 s4, s4, {GF_OFF}')
        for t in range(5):
            a(f'v_cvt_pk_bf16_f32 v{R(t, 0)}, v{T(t, 0)}, v{T(t, 1)}')
            a(f'v_cvt_pk_bf16_f32 v{R(t, 1)}, v{T(t, 2)}, v{T(t, 3)}')
            vo, off = (vF, t * 1024) if t < 4 else (vF + 1, 0)
            a(f'buffer_store_dwordx2 {V(R(t, 0), 2)}, v{vo}, {S(sWS, 4)}, s4 offen offset:{off}')
    else:
        a('v_lshlrev_b32 v24, 16, v24')
        T = lambda t, j: ACC(t, 1) + j
        for t in range(5):
            for h in range(2):
                a(f'v_lshlrev_b32 v{T(t, 2 * h)}, 16, v{26 + 2 * t + h}')
                a(f'v_and_b32 v{T(t, 2 * h + 1)}, 0xffff0000, v{26 + 2 * t + h}')
                a(f'v_pk_add_f32 {V(R(t, 2 * h), 2)}, {V(R(t, 2 * h), 2)}, v[24:25] op_sel_hi:[1,0]')
                a(f'v_pk_add_f32 {V(R(t, 2 * h), 2)}, {V(R(t, 2 * h), 2)}, {V(T(t, 2 * h), 2)}')
            a(f'v_cvt_pk_bf16_f32 v{R(t, 0)}, v{R(t, 0)}, v{R(t, 1)}')
            a(f'v_cvt_pk_bf16_f32 v{R(t, 1)}, v{R(t, 2)}, v{R(t, 3)}')
            a(f'buffer_store_dwordx2 {V(R(t, 0), 2)}, v19, {S(sO, 4)}, 0 offen offset:{8 * t}')


def role_o(a):
    sWS = 40
    sH = 10
    srd(a, sWS, P_WS, WS_USED)
    a(f's_mul_i32 s4, s{sH}, {32 * 3360}')
    a(f's_add_u32 s4, s4, {KV_OFF}')
    a('v_lshlrev_b32 v6, 4, v0')
    stok = []
    for rb in range(32):
        stok.append(a(f'buffer_load_dwordx4 {V(64 + 4 * rb, 4)}, v6, {S(sWS, 4)}, s4 offen'))
        a('s_add_u32 s4, s4, 3360')
    a(f'v_lshl_add_u32 v7, v{vR}, 4, v{vC}')
    a(f's_lshl_b32 s5, s{sW}, 9')
    a('v_add_u32 v7, s5, v7')
    a('v_lshlrev_b32 v7, 4, v7')
    a(f's_mul_i32 s5, s{sH}, {5 * 32768}')
    a(f's_add_u32 s5, s5, {PQ_OFF}')
    a('v_add_u32 v7, s5, v7')
    a(f'v_add_u32 v9, {4 * 32768}, v7')
    a(f'v_lshl_add_u32 v8, v{vG}, 15, v7')
    ptok = {}

    def loadblk(blk):
        a(f's_mov_b32 s6, {blk * 1024}')
        for tt in range(4):
            r = blk * 32 + tt * 8
            a(f'buffer_load_dwordx4 {A(r, 4)}, v8, {S(sWS, 4)}, s6 offen offset:{tt * 64}')
            ptok[blk] = a(f'buffer_load_dwordx4 {A(r + 4, 4)}, v9, {S(sWS, 4)}, s6 offen offset:{tt * 64}')

    for blk in range(3):
        loadblk(blk)
    for rb in range(1, 32):
        a.wait(stok[rb])
        for h in range(2):
            a(f'v_pk_add_f32 {V(64 + 2 * h, 2)}, {V(64 + 2 * h, 2)}, {V(64 + 4 * rb + 2 * h, 2)}')
    for blk in range(3, 7):
        loadblk(blk)
    a('v_cvt_pk_bf16_f32 v10, v64, v65')
    a('v_cvt_pk_bf16_f32 v11, v66, v67')
    a('v_lshlrev_b32 v6, 3, v0')
    a('ds_write_b64 v6, v[10:11]')
    a.wait_lg0()
    a('s_barrier')
    BF = lambda tile, ks: 16 + (tile * 2 + ks) * 4
    a(f'v_mul_u32_u24 v12, 80, v{vI}')
    a(f'v_mul_u32_u24 v13, 80, v{vC}')
    a(f'v_add_u32 v13, {16 * 80}, v13')
    a(f'v_mov_b32 v14, {20 * 80}')
    for tile in range(3):
        a(f'ds_read_b128 {V(BF(tile, 1), 4)}, v{12 + tile} offset:64')
        a(f'v_lshl_add_u32 v{12 + tile}, v{vG}, 4, v{12 + tile}')
        a(f'ds_read_b128 {V(BF(tile, 0), 4)}, v{12 + tile}')
    a.wait_lg0()
    a(f'v_cmp_eq_u32 vcc, 0, v{vG}')
    for tile in range(3):
        for k in range(4):
            a(f'v_cndmask_b32 v{BF(tile, 1) + k}, 0, v{BF(tile, 1) + k}, vcc')
    a(f's_mul_i32 s4, s{sH}, {20 * 4096}')
    a(f's_lshl_b32 s5, s{sW}, 10')
    a('s_add_u32 s4, s4, s5')
    a(f's_add_u32 s4, s4, {OT_OFF}')
    a(f'v_lshlrev_b32 v12, 12, v{vI}')
    a(f'v_lshl_add_u32 v12, v{vG}, 5, v12')
    a('v_add_u32 v12, s4, v12')
    a(f'v_add_u32 v13, {16 * 4096}, v12')
    a(f'v_mov_b32 v14, {OOB}')
    a(f'v_cmp_gt_u32 vcc, 4, v{vI}')
    a('v_cndmask_b32 v13, v14, v13, vcc')
    a(f'v_mov_b32 v40, {fbits(1e-6)}')
    loadblk(7)
    for blk in range(8):
        base = 64 + (blk % 2) * 64
        C = lambda tile, tt: base + (tile * 4 + tt) * 4
        a.wait(ptok[blk])
        for ks in range(2):
            for tile in (2, 0, 1):
                for tt in range(4):
                    c = '0' if ks == 0 else V(C(tile, tt), 4)
                    a(f'v_mfma_f32_16x16x32_bf16 {V(C(tile, tt), 4)}, {A(blk * 32 + tt * 8 + 4 * ks, 4)}, {V(BF(tile, ks), 4)}, {c}')
        for tt in range(4):
            for h in range(2):
                a(f'v_pk_add_f32 {V(C(2, tt) + 2 * h, 2)}, {V(C(2, tt) + 2 * h, 2)}, v[40:41] op_sel_hi:[1,0]')
        for tt in range(4):
            for j in range(4):
                a(f'v_rcp_f32 v{C(2, tt) + j}, v{C(2, tt) + j}')
        O = base + 48
        for tile in range(2):
            for tt in range(4):
                for h in range(2):
                    a(f'v_pk_mul_f32 {V(C(tile, tt) + 2 * h, 2)}, {V(C(tile, tt) + 2 * h, 2)}, {V(C(2, tt) + 2 * h, 2)}')
            for tt in range(4):
                for h in range(2):
                    a(f'v_cvt_pk_bf16_f32 v{O + tile * 8 + tt * 2 + h}, v{C(tile, tt) + 2 * h}, v{C(tile, tt) + 2 * h + 1}')
            for h in range(2):
                a(f'buffer_store_dwordx4 {V(O + tile * 8 + 4 * h, 4)}, v{12 + tile}, {S(sWS, 4)}, 0 offen offset:{blk * 128 + 16 * h}')


def role_wot(a):
    sWS, sWO = 40, 44
    srd(a, sWS, P_WS, WS_USED)
    srd(a, sWO, P_WO, D_ * D_ * 2)
    vO = 12
    a('s_mov_b32 s5, 0')
    dma160_voffs(a, vO, 4, 5, 1280, 1, 0, False, 8)
    a('s_mov_b32 s5, 4')
    dma160_voffs(a, vO + 4, 1, 5, 1280, 1, 0, False, 8)
    a('s_mul_i32 s4, s10, 160')
    a(f's_mul_i32 s5, s{sW}, {5 * 32 * 1280}')
    a('s_add_u32 s4, s4, s5')
    a(f's_mul_i32 s6, s{sW}, {5 * 5120}')
    tok = {}
    for k in range(5):
        a(f's_add_u32 m0, s6, {k * 5120}')
        for q in range(4):
            off = f' offset:{q * 1024}' if q else ''
            a(f'buffer_load_dwordx4 v{vO + q}, {S(sWO, 4)}, s4 offen{off} lds')
        a(f's_add_u32 m0, s6, {k * 5120 + 4096}')
        tok[k] = a(f'buffer_load_dwordx4 v{vO + 4}, {S(sWO, 4)}, s4 offen lds')
        a(f's_add_u32 s4, s4, {32 * 1280}')
    a(f'v_lshl_add_u32 v6, v{vG}, 2, v{vR}')
    a('v_mul_u32_u24 v6, 160, v6')
    a(f'v_mul_u32_u24 v7, 40, v{vC}')
    a('v_add_u32 v6, v6, v7')
    a('v_add_u32 v6, s6, v6')
    a(f'v_lshlrev_b32 v7, 4, v{vL}')
    a('v_add_u32 v8, 4096, v7')
    a('s_mul_i32 s4, s10, 74')
    a(f's_mul_i32 s5, s{sW}, 5')
    a('s_add_u32 s4, s4, s5')
    a('s_add_u32 s4, s4, 54')
    a('s_mul_i32 s4, s4, 5120')
    a(f's_add_u32 s4, s4, {GF_OFF}')
    for k in range(5):
        a.wait(tok[k])
        rt = {}
        for t in range(5):
            r = 64 + (k * 5 + t) * 4
            a(f'ds_read_b64_tr_b16 {V(r, 2)}, v6 offset:{k * 5120 + 8 * t}')
            rt[t] = a(f'ds_read_b64_tr_b16 {V(r + 2, 2)}, v6 offset:{k * 5120 + 8 * t + 2560}')
        for t in range(5):
            r = 64 + (k * 5 + t) * 4
            a.wait(rt[t])
            vo, off = (7, t * 1024) if t < 4 else (8, 0)
            a(f'buffer_store_dwordx4 {V(r, 4)}, v{vo}, {S(sWS, 4)}, s4 offen offset:{off}')
        a('s_add_u32 s4, s4, 5120')


def kernel_begin(a, name):
    a.raw(f'.globl {name}')
    a.raw('.p2align 8')
    a.raw(f'.type {name},@function')
    a.raw(f'{name}:')
    a.hist = []
    a.reset_counters()


def descriptor(name, nvgpr=512, accum=256, nsgpr=96):
    return f'''.p2align 6
.amdhsa_kernel {name}
  .amdhsa_next_free_vgpr {nvgpr}
  .amdhsa_next_free_sgpr {nsgpr}
  .amdhsa_accum_offset {accum}
  .amdhsa_group_segment_fixed_size 0
  .amdhsa_kernarg_size 96
  .amdhsa_user_sgpr_count 2
  .amdhsa_user_sgpr_kernarg_segment_ptr 1
  .amdhsa_system_sgpr_workgroup_id_x 1
.end_amdhsa_kernel
'''


def build_multi():
    a = Asm()
    hdr = open(os.path.join(os.path.dirname(__file__), '..', 'cdna_kernels', NAME + '.s.ref')).read().split('\n')
    for line in hdr:
        if line.startswith(';') and '@launch' not in line and 'Override launch' not in line and 'grid=ceil' not in line:
            a.raw(line)
    ldsb = max(G_LDS, 61440, 4 * 5 * 5120)
    a.raw(f'; @launch kernel=ka_kernel grid=(256,1,1) block=(256,1,1) lds={A_LDS}')
    a.raw(f'; @launch kernel=kb_kernel grid=(256,1,1) block=(256,1,1) lds={ldsb}')
    a.raw(f'; @launch kernel=kc_kernel grid=(256,1,1) block=(256,1,1) lds={ldsb}')
    a.raw('.amdgcn_target "amdgcn-amd-amdhsa--gfx950"')
    a.raw('.text')
    kernel_begin(a, 'ka_kernel')
    prologue(a, 256, 'L_ka_end')
    phase_a(a)
    a.label('L_ka_end')
    a('s_endpgm')
    kernel_begin(a, 'kb_kernel')
    prologue(a, 256, 'L_kb_end')
    a('s_and_b32 s4, s2, 7')
    a('s_lshr_b32 s5, s2, 3')
    a('s_cmp_ge_u32 s5, 27')
    a('s_cbranch_scc1 L_kb_other')
    a('s_mul_i32 s6, s4, 27')
    a('s_add_u32 s6, s6, s5')
    a('s_cmp_ge_u32 s6, 108')
    a('s_cselect_b32 s7, 108, 0')
    a('s_cselect_b32 s8, 4, 0')
    a('s_sub_u32 s6, s6, s7')
    a('s_lshr_b32 s11, s6, 2')
    a('s_and_b32 s6, s6, 3')
    a('s_add_u32 s10, s6, s8')
    gemm_g(a, 'B')
    a('s_endpgm')
    a.label('L_kb_other')
    a.reset_counters()
    a('s_cmp_ge_u32 s5, 31')
    a('s_cbranch_scc1 L_kb_wot')
    a('s_sub_u32 s5, s5, 27')
    a('s_lshl_b32 s5, s5, 3')
    a('s_add_u32 s10, s5, s4')
    role_o(a)
    a('s_endpgm')
    a.label('L_kb_wot')
    a.reset_counters()
    a('s_mov_b32 s10, s4')
    role_wot(a)
    a.label('L_kb_end')
    a('s_endpgm')
    kernel_begin(a, 'kc_kernel')
    prologue(a, 256, 'L_kc_end')
    a('s_and_b32 s4, s2, 7')
    a('s_lshr_b32 s5, s2, 3')
    a('s_and_b32 s6, s4, 1')
    a('s_lshl_b32 s6, s6, 2')
    a('s_and_b32 s7, s5, 3')
    a('s_add_u32 s10, s6, s7')
    a('s_lshr_b32 s6, s4, 1')
    a('s_lshl_b32 s6, s6, 3')
    a('s_lshr_b32 s7, s5, 2')
    a('s_add_u32 s11, s6, s7')
    gemm_g(a, 'G2')
    a.label('L_kc_end')
    a('s_endpgm')
    a.raw('.section .rodata,"a"')
    for k in ('ka_kernel', 'kb_kernel', 'kc_kernel'):
        a.raw(descriptor(k))
    sys.stderr.write(f'maxv={a.maxv} maxa={a.maxa} maxs={a.maxs} nops={a.nops}\n')
    return a.text()


if __name__ == '__main__':
    out = sys.argv[1] if len(sys.argv) > 1 else os.path.join(os.path.dirname(__file__), '..', 'cdna_kernels', NAME + '.s')
    open(out, 'w').write(build_multi())
```

```python
import re

REG_RE = re.compile(r'^(-|abs\()?([vas])(\d+)\)?$')
RNG_RE = re.compile(r'^(-)?([vas])\[(\d+):(\d+)\]$')
TRANS = ('v_exp_f32', 'v_log_f32', 'v_rcp_f32', 'v_rsq_f32', 'v_sqrt_f32', 'v_sin_f32', 'v_cos_f32',
         'v_rcp_iflag_f32')


def parse_reg(tok):
    tok = tok.strip()
    m = REG_RE.match(tok)
    if m:
        return {(m.group(2), int(m.group(3)))}
    m = RNG_RE.match(tok)
    if m:
        return {(m.group(2), k) for k in range(int(m.group(3)), int(m.group(4)) + 1)}
    if tok in ('vcc', 'vcc_lo', 'vcc_hi'):
        return {('s', 'vcc')}
    if tok in ('exec', 'exec_lo', 'exec_hi'):
        return {('s', 'exec')}
    if tok == 'm0':
        return {('s', 'm0')}
    return set()


class Ins:
    __slots__ = ('text', 'op', 'cls', 'defs', 'uses', 'srcA', 'srcB', 'srcC', 'passes', 'states',
                 'wide_store', 'dpp', 'lds_dma')


def split_ops(rest):
    out, depth, cur = [], 0, ''
    for ch in rest:
        if ch in '[(':
            depth += 1
        if ch in '])':
            depth -= 1
        if ch == ',' and depth == 0:
            out.append(cur.strip())
            cur = ''
        else:
            cur += ch
    if cur.strip():
        out.append(cur.strip())
    return out


def analyze(text):
    ins = Ins()
    ins.text = text
    t = text.split(';')[0].strip()
    parts = t.split(None, 1)
    op = parts[0]
    rest = parts[1] if len(parts) > 1 else ''
    ops = split_ops(rest)
    mods = ''
    if ops:
        last = ops[-1].split(None, 1)
        ops[-1] = last[0]
        if len(last) > 1:
            mods = last[1]
    base = op
    for suf in ('_e32', '_e64', '_dpp', '_sdwa'):
        if base.endswith(suf):
            base = base[:-len(suf)]
    ins.op = base
    ins.defs, ins.uses = set(), set()
    ins.srcA = ins.srcB = ins.srcC = set()
    ins.passes = 0
    ins.states = 1
    ins.wide_store = set()
    ins.dpp = op.endswith('_dpp')
    ins.lds_dma = False
    R = [parse_reg(o) for o in ops]
    allr = set().union(*R) if R else set()
    if base.startswith('v_mfma'):
        ins.cls = 'mfma'
        ins.defs = R[0]
        ins.srcA, ins.srcB, ins.srcC = R[1], R[2], R[3]
        ins.uses = R[1] | R[2] | R[3]
        if '16x16x32' in base or '16x16x16' in base:
            ins.passes = 4
        elif '32x32x16' in base or '32x32x8' in base:
            ins.passes = 8
        else:
            raise ValueError('unknown mfma ' + text)
    elif base.startswith('v_'):
        ins.cls = 'valu'
        if base.startswith('v_permlane') and 'swap' in base:
            ins.defs = R[0] | R[1]
            ins.uses = R[0] | R[1]
        elif base in ('v_add_co_u32', 'v_sub_co_u32', 'v_addc_co_u32', 'v_subb_co_u32', 'v_mad_u64_u32'):
            ins.defs = R[0] | R[1]
            ins.uses = set().union(*R[2:])
        elif base == 'v_nop':
            pass
        else:
            ins.defs = R[0]
            ins.uses = set().union(*R[1:]) if len(R) > 1 else set()
            if base in ('v_fmac_f32', 'v_dot2c_f32_bf16', 'v_pk_fmac_f16', 'v_writelane_b32') or ins.dpp:
                ins.uses |= R[0]
            if base.startswith('v_cmpx'):
                raise ValueError('avoid v_cmpx')
    elif base.startswith('ds_'):
        ins.cls = 'ds'
        if base.startswith('ds_read') or '_rtn_' in base or base.startswith('ds_bpermute') or base.startswith('ds_swizzle') \
                or base.startswith('ds_permute'):
            ins.defs = R[0]
            ins.uses = set().union(*R[1:])
        else:
            ins.uses = allr
    elif base.startswith('buffer_') or base.startswith('global_'):
        ins.cls = 'vmem'
        ismods = mods.split()
        if base in ('buffer_inv', 'buffer_wbl2'):
            pass
        elif 'load' in base:
            if 'lds' in ismods or '_lds_' in base:
                ins.uses = allr | {('s', 'm0')}
                ins.lds_dma = True
            else:
                ins.defs = R[0]
                ins.uses = set().union(*R[1:])
        else:
            ins.uses = allr
            if 'atomic' in base and 'sc0' in ismods:
                ins.defs = R[0]
            if base.endswith('x4') or base.endswith('x3'):
                ins.wide_store = R[0] if base.startswith('buffer_') else R[1]
    elif base.startswith('s_'):
        ins.cls = 'salu'
        if base == 's_nop':
            ins.states = int(ops[0], 0) + 1
        elif base.startswith('s_load') or base.startswith('s_buffer_load') or base in ('s_memtime', 's_memrealtime'):
            ins.cls = 'smem'
            ins.defs = R[0]
            ins.uses = set().union(*R[1:]) if len(R) > 1 else set()
        elif base.startswith('s_cmp') or base.startswith('s_cbranch') or base in (
                's_branch', 's_waitcnt', 's_barrier', 's_endpgm', 's_sleep', 's_setprio', 's_bitcmp1_b32',
                's_bitcmp0_b32'):
            ins.uses = allr
        else:
            ins.defs = R[0] if R else set()
            ins.uses = set().union(*R[1:]) if len(R) > 1 else set()
            if 'saveexec' in base:
                ins.defs = ins.defs | {('s', 'exec')}
    else:
        raise ValueError('unknown instruction class: ' + text)
    return ins


def vregs(s):
    return {r for r in s if r[0] in 'va'}


def sregs(s):
    return {r for r in s if r[0] == 's'}


def required(p, c):
    need = 0
    if p.cls == 'valu':
        pd_v, pd_s = vregs(p.defs), sregs(p.defs)
        isdot = p.op.startswith('v_dot')
        if c.cls == 'mfma' and pd_v & c.uses:
            need = max(need, 3 if isdot else 2)
        if c.cls == 'valu':
            if pd_v & c.uses:
                if p.op in TRANS:
                    need = max(need, 1)
                if c.op.startswith('v_permlane') or c.dpp:
                    need = max(need, 2)
                if c.op in ('v_readfirstlane_b32', 'v_readlane_b32'):
                    need = max(need, 1)
            if isdot and pd_v & (c.uses | c.defs):
                if c.op == p.op:
                    ops = split_ops(c.text.split(None, 1)[1])
                    ab = parse_reg(ops[1].split()[0]) | parse_reg(ops[2].split()[0])
                    if pd_v & ab:
                        need = max(need, 3)
                else:
                    need = max(need, 3)
            if pd_s & c.uses:
                need = max(need, 4 if c.op in ('v_readlane_b32', 'v_writelane_b32') else 2)
        if c.cls in ('vmem', 'ds'):
            if pd_s & c.uses:
                need = max(need, 5)
            if pd_v & c.uses and (p.op in TRANS):
                need = max(need, 1)
            if pd_v & c.uses and isdot:
                need = max(need, 3)
        if c.cls in ('salu', 'smem') and pd_s & c.uses:
            need = max(need, 1)
    elif p.cls == 'mfma':
        big = {4: 8, 8: 12}[p.passes]
        if c.cls == 'mfma':
            if p.defs & (c.srcA | c.srcB):
                need = max(need, big)
            if p.defs & c.srcC:
                if not (p.defs == c.srcC and p.passes == c.passes):
                    need = max(need, big - 2)
            elif p.defs & c.defs:
                need = max(need, big)
        elif c.cls in ('valu', 'vmem', 'ds'):
            if p.defs & (c.uses | c.defs):
                need = max(need, big)
            if c.cls == 'valu' and p.srcC & c.defs:
                need = max(need, {4: 3, 8: 7}[p.passes])
    elif p.cls == 'salu':
        if ('s', 'm0') in p.defs and c.lds_dma:
            need = max(need, 1)
    elif p.cls == 'vmem':
        if p.wide_store and (p.wide_store & c.defs) and c.cls in ('valu', 'mfma', 'ds', 'vmem'):
            need = max(need, 2)
    return need


class Asm:
    def __init__(self):
        self.out = []
        self.hist = []
        self.vm_issued = 0
        self.vm_done = 0
        self.lg_issued = 0
        self.lg_done = 0
        self.nops = 0
        self.uid = 0
        self.maxv = 0
        self.maxa = -1
        self.maxs = 0

    def raw(self, text):
        self.out.append(text)

    def comment(self, text):
        self.out.append('\t; ' + text)

    def label(self, name):
        self.fence()
        self.out.append(name + ':')

    def newlabel(self, stem):
        self.uid += 1
        return f'L_{stem}_{self.uid}'

    def fence(self):
        dist = 0
        need = 0
        for p in reversed(self.hist):
            if p.cls == 'mfma':
                need = max(need, {4: 8, 8: 12}[p.passes] - dist)
            elif p.cls == 'valu':
                need = max(need, (5 if sregs(p.defs) else 3) - dist)
            elif p.cls == 'vmem' and p.wide_store:
                need = max(need, 2 - dist)
            elif p.cls == 'salu' and ('s', 'm0') in p.defs:
                need = max(need, 1 - dist)
            dist += p.states
            if dist > 16:
                break
        if need > 0:
            self._push(analyze(f's_nop {need - 1}'))
        self.hist = []

    def _push(self, ins):
        self.out.append('\t' + ins.text)
        self.hist.append(ins)
        if len(self.hist) > 24:
            self.hist.pop(0)

    def __call__(self, text):
        ins = analyze(text)
        for f, k in ins.defs | ins.uses:
            if isinstance(k, int):
                if f == 'v':
                    self.maxv = max(self.maxv, k)
                elif f == 'a':
                    self.maxa = max(self.maxa, k)
                else:
                    self.maxs = max(self.maxs, k)
        dist = 0
        need = 0
        for p in reversed(self.hist):
            r = required(p, ins)
            if r - dist > need:
                need = r - dist
            dist += p.states
            if dist > 16:
                break
        if need > 0:
            self.nops += need
            self._push(analyze(f's_nop {need - 1}'))
        if ins.op.startswith('s_cbranch') or ins.op == 's_branch':
            self.fence()
        self._push(ins)
        tok = None
        if ins.cls == 'vmem':
            tok = ('vm', self.vm_issued)
            self.vm_issued += 1
        elif ins.cls == 'ds':
            tok = ('lg', self.lg_issued)
            self.lg_issued += 1
        return tok

    def wait(self, *toks):
        toks = [t.val if hasattr(t, 'val') else t for t in toks]
        vm = [t[1] for t in toks if t is not None and t[0] == 'vm']
        lg = [t[1] for t in toks if t is not None and t[0] == 'lg']
        parts = []
        if vm and max(vm) >= self.vm_done:
            n = self.vm_issued - 1 - max(vm)
            n = min(n, 63)
            parts.append(f'vmcnt({n})')
            self.vm_done = self.vm_issued - n
        if lg and max(lg) >= self.lg_done:
            n = self.lg_issued - 1 - max(lg)
            n = min(n, 15)
            parts.append(f'lgkmcnt({n})')
            self.lg_done = self.lg_issued - n
        if parts:
            self('s_waitcnt ' + ' '.join(parts))

    def wait_vm0(self):
        self('s_waitcnt vmcnt(0)')
        self.vm_done = self.vm_issued

    def wait_lg0(self):
        self('s_waitcnt lgkmcnt(0)')
        self.lg_done = self.lg_issued

    def wait_all(self):
        self('s_waitcnt vmcnt(0) lgkmcnt(0)')
        self.vm_done = self.vm_issued
        self.lg_done = self.lg_issued

    def reset_counters(self):
        self.vm_done = self.vm_issued
        self.lg_done = self.lg_issued

    def save(self):
        return (self.vm_issued, self.vm_done, self.lg_issued, self.lg_done)

    def restore(self, st):
        self.vm_issued, self.vm_done, self.lg_issued, self.lg_done = st

    def text(self):
        return '\n'.join(self.out) + '\n'


def V(n, cnt=1):
    return f'v{n}' if cnt == 1 else f'v[{n}:{n + cnt - 1}]'


def A(n, cnt=1):
    return f'a{n}' if cnt == 1 else f'a[{n}:{n + cnt - 1}]'


def S(n, cnt=1):
    return f's{n}' if cnt == 1 else f's[{n}:{n + cnt - 1}]'


class Box:
    __slots__ = ('val',)

    def __init__(self):
        self.val = None


def unbox(t):
    return t.val if isinstance(t, Box) else t


class Rec:
    def __init__(self, a):
        self.a = a
        self.groups = []
        self.depth = 0

    def _add(self, fn):
        if self.depth and self.open_:
            self.groups[-1].append(fn)
        else:
            self.groups.append([fn])
            self.open_ = bool(self.depth)

    def atomic(self):
        rec = self

        class Ctx:
            def __enter__(s):
                if rec.depth == 0:
                    rec.open_ = False
                rec.depth += 1

            def __exit__(s, *e):
                rec.depth -= 1
        return Ctx()

    def __call__(self, text):
        b = Box()

        def f():
            b.val = self.a(text)
        self._add(f)
        return b

    def wait(self, *toks):
        self._add(lambda: self.a.wait(*[unbox(t) for t in toks]))

    def call(self, fn):
        self._add(lambda: fn(self.a))

    def items(self):
        def mk(g):
            def f():
                for fn in g:
                    fn()
            return f
        return [mk(g) for g in self.groups]
```

```python
import sys, struct, os
sys.path.insert(0, os.path.dirname(__file__))
from asmdsl import Asm, Rec, V, A, S

NAME = 'parallel_sum__linear_kernel_hedgehog__mixer_token_mlp__prompt'
S_, D_, F_ = 2048, 640, 1728

HF_OFF = 0
HF_SZ = 8 * 64 * 5 * 1024
GF_OFF = HF_OFF + HF_SZ
GF_SZ = 8 * 74 * 5 * 1024
OF_OFF = GF_OFF + GF_SZ
OF_SZ = 32 * 20 * 4 * 1024
KV_OFF = OF_OFF + OF_SZ
KV_SZ = 32 * 32 * 6144
KB_OFF = KV_OFF + KV_SZ + 4096
KB_SZ = 32 * 2048
FL_OFF = KB_OFF + KB_SZ + 4096
FSH = int(os.environ.get('FSH', '6'))
FH_OFF = FL_OFF
FK_OFF = FH_OFF + (1024 << FSH)
FR_OFF = FK_OFF + (1024 << FSH)
FG_OFF = FR_OFF + (128 << FSH)
FO_OFF = FG_OFF + (1024 << FSH)
FW_OFF = FO_OFF + (1024 << FSH)
EP_OFF = FW_OFF + (128 << FSH)
WS_USED = EP_OFF + 512
STAMP_OFF = WS_USED
WS_USED += 8 * 256 * 64
STAMPS = bool(int(os.environ.get('STAMPS', '0')))
EXP = os.environ.get('EXP', '').split(',')
OOB = 0x40000000

P_X, P_WQKV, P_WPHI, P_WO, P_BX, P_W1, P_B1, P_W2, P_B2, P_OUT, P_DBG, P_WS = range(16, 40, 2)
LOG2E = 1.4426950408889634

sW = 3
sWS, sX, sWQ, sW1, sW2, sAUX, sOUT = 40, 44, 48, 52, 56, 60, 64
sHG, sRB, sHB, sROT, sKS, sT, sM0B, sTAG = 68, 69, 70, 71, 72, 73, 74, 75
sL, sNL = 76, 78
sBDB, sBCB, sFS, sGM0, sSPIN, sLIM = 80, 81, 82, 83, 84, 85
vL, vG, vI, vR, vC = 1, 2, 3, 4, 5
vTOK, vGR = 6, 7
DB = 64
XN = lambda s: DB + 8 * s
UP = lambda k: DB + 8 * k + 4
WPF = lambda t, ks: (80 + 8 * t + 4 * ks) if ks < 2 else (120 + 2 * t)

KV_SLOTS = 7
L_WPHI = KV_SLOTS * 20480
L_HS = L_WPHI + 4096
L_ZERO = L_HS + 64 * 208
L_STAGE = 106496
L_WQ = 61440
L_KB = 49152
L_KZ = L_KB + 8192
LDS_BYTES = 163840
G_P = 5
G_PF = 6


def kb_pos(f, t):
    if f < 32:
        return (f >> 4) * 512 + (t * 16 + (f & 15)) * 8 if t < 4 else 1024 + ((f >> 4) * 32 + (t - 4) * 16 + (f & 15)) * 8
    return 1536 + (t * 8 + f - 32) * 8


def fbits(x):
    return '0x%08x' % struct.unpack('<I', struct.pack('<f', x))[0]


def srd(a, dst, ptr, nbytes):
    a(f's_mov_b32 s{dst}, s{ptr}')
    a(f's_and_b32 s{dst + 1}, s{ptr + 1}, 0xffff')
    a(f's_mov_b32 s{dst + 2}, {nbytes}')
    a(f's_mov_b32 s{dst + 3}, 0x20000')


STAMP_NAMES = []
vST = 223


def stamp(a, name):
    if not STAMPS:
        return
    name = str(name)
    if name not in STAMP_NAMES:
        STAMP_NAMES.append(name)
    idx = STAMP_NAMES.index(name)
    a('s_memrealtime s[98:99]')
    a.wait_lg0()
    if idx < 3:
        a(f's_mov_b32 s{86 + idx}, s98')
    else:
        if idx == 3:
            a(f'v_mov_b32 v{vST}, 0')
            for k in range(3):
                a(f'v_writelane_b32 v{vST}, s{86 + k}, {k}')
        a(f'v_writelane_b32 v{vST}, s98, {idx}')


def stamp_flush(a, n):
    if not STAMPS:
        return
    a.wait_vm0()
    stamp(a, n)
    lab = a.newlabel('st')
    a(f's_cmp_lg_u32 s{sW}, {int(os.environ.get("STW", "0"))}')
    a(f's_cbranch_scc1 {lab}')
    a('s_lshl_b32 s4, s2, 8')
    a(f's_add_u32 s4, s4, {STAMP_OFF}')
    a(f'v_lshl_add_u32 v8, v{vL}, 2, s4')
    a(f'buffer_store_dword v{vST}, v8, {S(sWS, 4)}, 0 offen')
    a.label(lab)
    a.raw('; STAMPS ' + ' '.join(STAMP_NAMES))


def reduce_g(a, r, t):
    a(f'v_mov_b32 v{t}, v{r}')
    a(f'v_permlane32_swap_b32 v{r}, v{t}')
    a(f'v_add_f32 v{r}, v{r}, v{t}')
    a(f'v_mov_b32 v{t}, v{r}')
    a(f'v_permlane16_swap_b32 v{r}, v{t}')
    a(f'v_add_f32 v{r}, v{r}, v{t}')


def dma160_voffs(a, dst, stride, permute, tmp):
    t0, t2, t3 = tmp, tmp + 1, tmp + 2
    for q in range(5):
        d = dst + q
        a(f'v_add_u32 v{t0}, {q * 64}, v{vL}')
        a(f'v_mul_u32_u24 v{t2}, 6554, v{t0}')
        a(f'v_lshrrev_b32 v{t2}, 16, v{t2}')
        a(f'v_mul_u32_u24 v{t3}, 10, v{t2}')
        a(f'v_sub_u32 v{t0}, v{t0}, v{t3}')
        if permute:
            a(f'v_bfe_u32 v{t3}, v{t2}, 2, 2')
            a(f'v_lshlrev_b32 v{t3}, 3, v{t3}')
            a(f'v_and_b32 v{d}, 3, v{t2}')
            a(f'v_add_u32 v{t3}, v{t3}, v{d}')
            a(f'v_lshrrev_b32 v{t2}, 4, v{t2}')
            a(f'v_lshl_add_u32 v{t2}, v{t2}, 2, v{t3}')
        a(f'v_mul_u32_u24 v{t2}, {stride}, v{t2}')
        a(f'v_lshl_add_u32 v{d}, v{t0}, 4, v{t2}')
        if 0 < q < 4:
            a(f'v_subrev_u32 v{d}, {q * 1024}, v{d}')


def dma160(a, vo, ssrd, soff, m0_s, m0_add):
    a(f's_add_u32 m0, s{m0_s}, {m0_add}')
    for q in range(4):
        off = f' offset:{q * 1024}' if q else ''
        a(f'buffer_load_dwordx4 v{vo + q}, {S(ssrd, 4)}, s{soff} offen{off} lds')
    a(f's_add_u32 m0, s{m0_s}, {m0_add + 4096}')
    return a(f'buffer_load_dwordx4 v{vo + 4}, {S(ssrd, 4)}, s{soff} offen lds')


class Hooks:
    def __init__(self, items=()):
        self.items = list(items)

    def run(self, n=1):
        for _ in range(n):
            if self.items:
                self.items.pop(0)()

    def flush(self):
        self.run(len(self.items))


def softmax_pm(a, P, PH, EP, EN, tmp):
    p = [P[k // 4] + k % 4 for k in range(20)]
    ep = [EP[k // 4] + k % 4 for k in range(20)]
    en = [EN[k // 4] + k % 4 for k in range(20)]
    mx, mn, sp, sn = tmp, tmp + 2, tmp + 4, tmp + 6
    a(f'v_max3_f32 v{mx}, v{p[0]}, v{p[1]}, v{p[2]}')
    a(f'v_min3_f32 v{mn}, v{p[0]}, v{p[1]}, v{p[2]}')
    for k in range(3, 19, 2):
        a(f'v_max3_f32 v{mx}, v{mx}, v{p[k]}, v{p[k + 1]}')
        a(f'v_min3_f32 v{mn}, v{mn}, v{p[k]}, v{p[k + 1]}')
    a(f'v_max_f32 v{mx}, v{mx}, v{p[19]}')
    a(f'v_min_f32 v{mn}, v{mn}, v{p[19]}')
    a(f'v_mul_f32 v{mx}, s{sNL}, v{mx}')
    a(f'v_mul_f32 v{mn}, s{sL}, v{mn}')
    for k in range(0, 20, 2):
        a(f'v_pk_fma_f32 {V(ep[k], 2)}, {V(p[k], 2)}, {S(sL, 2)}, {V(mx, 2)} op_sel_hi:[1,0,0]')
        a(f'v_pk_fma_f32 {V(en[k], 2)}, {V(p[k], 2)}, {S(sNL, 2)}, {V(mn, 2)} op_sel_hi:[1,0,0]')
    for k in range(20):
        a(f'v_exp_f32 v{ep[k]}, v{ep[k]}')
        a(f'v_exp_f32 v{en[k]}, v{en[k]}')
    a(f'v_pk_add_f32 {V(sp, 2)}, {V(ep[0], 2)}, {V(ep[2], 2)}')
    a(f'v_pk_add_f32 {V(sn, 2)}, {V(en[0], 2)}, {V(en[2], 2)}')
    for k in range(4, 20, 2):
        a(f'v_pk_add_f32 {V(sp, 2)}, {V(sp, 2)}, {V(ep[k], 2)}')
        a(f'v_pk_add_f32 {V(sn, 2)}, {V(sn, 2)}, {V(en[k], 2)}')
    a(f'v_add_f32 v{sp}, v{sp}, v{sp + 1}')
    a(f'v_add_f32 v{sn}, v{sn}, v{sn + 1}')
    a(f'v_rcp_f32 v{sp}, v{sp}')
    a(f'v_rcp_f32 v{sn}, v{sn}')
    for k in range(0, 20, 2):
        a(f'v_pk_mul_f32 {V(ep[k], 2)}, {V(ep[k], 2)}, {V(sp, 2)} op_sel_hi:[1,0]')
        a(f'v_pk_mul_f32 {V(en[k], 2)}, {V(en[k], 2)}, {V(sn, 2)} op_sel_hi:[1,0]')
    allv = ep + en
    for k in range(20):
        a(f'v_cvt_pk_bf16_f32 v{PH[k // 4] + k % 4}, v{allv[2 * k]}, v{allv[2 * k + 1]}')


PK = [36, 40, 44]
PQ5 = [UP(k) for k in range(10, 15)]
EP5 = [UP(k) for k in range(0, 5)]
EN5 = [UP(k) for k in range(5, 10)]


def featmap(a):
    for k in range(10):
        t, j = divmod(2 * k, 4)
        a(f'v_cvt_pk_bf16_f32 v{PK[k // 4] + k % 4}, v{UP(t) + j}, v{UP(t) + j + 1}')
    for ks in range(3):
        for t in range(5):
            d = V(PQ5[t], 4)
            if ks < 2:
                a(f'v_mfma_f32_16x16x32_bf16 {d}, {A(WPF(t, ks), 4)}, {V(PK[ks], 4)}, {"0" if ks == 0 else d}')
            else:
                a(f'v_mfma_f32_16x16x16_bf16 {d}, {A(WPF(t, ks), 2)}, {V(PK[ks], 2)}, {d}')
    softmax_pm(a, PQ5, PQ5, EP5, EN5, 48)


def flag_set(a, s_off):
    a(f'v_lshl_add_u32 v62, v{vL}, 2, s{s_off}')
    a(f'v_mov_b32 v63, s{sTAG}')
    a(f's_mov_b64 exec, {hex((1 << (1 << (FSH - 2))) - 1)}')
    a(f'buffer_store_dword v63, v62, {S(sWS, 4)}, 0 offen sc1')
    a('s_mov_b64 exec, -1')


def flag_issue(a, vaddr, vdst):
    return a(f'buffer_load_dword v{vdst}, v{vaddr}, {S(sWS, 4)}, 0 offen sc1')


def flag_check(a, tok, vaddr, vdst):
    ok = a.newlabel('ok')
    lp = a.newlabel('poll')
    a.wait(tok)
    a(f'v_cmp_ne_u32 vcc, s{sTAG}, v{vdst}')
    a(f's_cbranch_vccz {ok}')
    a(f's_mov_b32 s{sSPIN}, 0')
    a.label(lp)
    a('s_sleep 1')
    a.raw(f'\tbuffer_load_dword v{vdst}, v{vaddr}, {S(sWS, 4)}, 0 offen sc1')
    a('s_waitcnt vmcnt(0)')
    a(f'v_cmp_ne_u32 vcc, s{sTAG}, v{vdst}')
    a(f's_cbranch_vccz {ok}')
    a(f's_add_u32 s{sSPIN}, s{sSPIN}, 1')
    a(f's_cmp_lt_u32 s{sSPIN}, 0x8000')
    a(f's_cbranch_scc1 {lp}')
    a.label(ok)


RQ = [UP(k) for k in range(15)] + [224 + 4 * k for k in range(5)]


class GGemm:
    def __init__(self, a, kind):
        self.a, self.kind = a, kind
        if kind == 'B':
            self.stride, self.srdm, self.n, self.fr_off, self.fr_steps = F_ * 2, sW1, 16, HF_OFF, 64
            self.sdb, self.scb = sBDB, sBCB
            self.slots = [0, 16384, 32768, 49152, 65536]
        else:
            self.stride, self.srdm, self.n, self.fr_off, self.fr_steps = S_ * 2, sW2, 14, GF_OFF, 74
            self.sdb, self.scb = sHG, sRB
            self.slots = [0, 16384, 32768, 65536, 81920]
        self.vD, self.vF, self.vT, self.vT2 = 8, 12, 14, UP(18)
        self.vFL, self.vFD = 18, 19
        self.dtok, self.ftok, self.ttok = {}, {}, {}
        self.ACC = lambda t, nt: (nt * 5 + t) * 4
        self.AF = lambda j, t: 132 + (j % G_PF) * 20 + 4 * t
        self.TF = lambda j, nt: 224 + (j % 2) * 16 + 4 * nt

    def setup(self):
        a, st = self.a, self.stride
        a(f'v_lshrrev_b32 v20, 3, v{vL}')
        a(f'v_mul_u32_u24 v20, {st}, v20')
        a(f'v_and_b32 v21, 7, v{vL}')
        a(f'v_lshlrev_b32 v22, 1, v{vG}')
        a('v_xor_b32 v21, v21, v22')
        a('v_lshl_add_u32 v20, v21, 4, v20')
        a(f's_lshl_b32 s4, s{self.scb}, 7')
        a(f's_mul_i32 s5, s{sW}, {self.n * 32 * st}')
        a('s_add_u32 s5, s5, s4')
        for q in range(4):
            a(f's_add_u32 s6, s5, {8 * q * st - 1024 * q}')
            a(f'v_add_u32 v{self.vD + q}, s6, v20')
        a(f's_mul_i32 s4, s{self.sdb}, {self.fr_steps}')
        a(f's_mul_i32 s5, s{sW}, {self.n}')
        a('s_add_u32 s4, s4, s5')
        a('s_mul_i32 s4, s4, 5120')
        a(f's_add_u32 s{sFS}, s4, {self.fr_off}')
        if self.kind == 'B':
            a(f'v_lshlrev_b32 v{self.vF}, 4, v{vL}')
            a(f'v_add_u32 v{self.vF + 1}, 4096, v{self.vF}')
            a(f's_lshl_b32 s{sGM0}, s{sW}, 12')
            a(f'v_bfe_u32 v21, v{vGR}, 1, 2')
            a(f'v_xor_b32 v21, s{sW}, v21')
            a(f'v_lshlrev_b32 v20, 7, v{vGR}')
            a(f'v_lshl_add_u32 v20, v{vC}, 3, v20')
            a(f'v_add_u32 v20, s{sGM0}, v20')
            for nt in range(4):
                a(f'v_xor_b32 v22, {nt}, v21')
                a(f'v_lshl_add_u32 v{self.vT + nt}, v22, 5, v20')
                a(f'v_add_u32 v{self.vT2 + nt}, 0x10000, v{self.vT + nt}')
            a(f's_lshl_b32 s4, s{self.sdb}, {7 + FSH}')
            a(f's_lshl_b32 s5, s{sW}, {5 + FSH}')
            a('s_add_u32 s4, s4, s5')
            a(f's_add_u32 s4, s4, {FH_OFF}')
            a(f'v_and_b32 v20, 31, v{vL}')
        else:
            a(f's_lshl_b32 s4, s{self.sdb}, {7 + FSH}')
            a(f's_mul_i32 s5, s{sW}, {28 << FSH}')
            a('s_add_u32 s4, s4, s5')
            a(f's_add_u32 s4, s4, {FG_OFF}')
            a(f's_mul_i32 s5, s{self.sdb}, {74 * 5120}')
            a(f's_add_u32 s{sLIM}, s5, {GF_OFF + 53 * 5120}')
            a(f's_cmp_eq_u32 s{sW}, 3')
            a('s_cselect_b32 s5, 23, 27')
            a(f'v_min_u32 v20, s5, v{vL}')
        a(f'v_lshl_add_u32 v{self.vFL}, v20, {FSH}, s4')

    def dma_items(self, j):
        a = self.a

        def one(q):
            def f():
                if q == 0:
                    a(f's_add_u32 m0, s{sGM0}, {self.slots[j % G_P]}')
                off = f' offset:{q * 1024}' if q else ''
                self.dtok[j] = a(f'buffer_load_dwordx4 v{self.vD + q}, {S(self.srdm, 4)}, 0 offen{off} lds')
                a(f'v_add_u32 v{self.vD + q}, {32 * self.stride}, v{self.vD + q}')
            return f
        return [one(q) for q in range(4)]

    def frag_items(self, j):
        a = self.a

        def one(t):
            def f():
                vo, off = (self.vF, t * 1024) if t < 4 else (self.vF + 1, 0)
                offs = f' offset:{off}' if off else ''
                self.ftok[j] = a(f'buffer_load_dwordx4 {A(self.AF(j, t), 4)}, v{vo}, {S(sWS, 4)}, s{sFS} offen{offs}{"" if "nosc1" in EXP else " sc1"}')
                if t == 4:
                    a(f's_add_u32 s{sFS}, s{sFS}, 5120')
                    if self.kind == 'G2' and j < 14:
                        a(f's_min_u32 s{sFS}, s{sFS}, s{sLIM}')
            return f
        return [one(t) for t in range(5)]

    def tr_items(self, j):
        a = self.a

        def one(nt):
            def f():
                off = self.slots[j % G_P]
                base = self.vT
                if off >= 65536:
                    off -= 65536
                    base = self.vT2
                a(f'ds_read_b64_tr_b16 {V(self.TF(j, nt), 2)}, v{base + nt} offset:{off}')
                self.ttok[j] = a(f'ds_read_b64_tr_b16 {V(self.TF(j, nt) + 2, 2)}, v{base + nt} offset:{off + 2048}')
            return f
        return [one(nt) for nt in range(4)]

    def mfmas(self, j, first, hk, side, rate, bop=None):
        a = self.a
        k = 0
        for nt in range(4):
            for t in range(5):
                acc = A(self.ACC(t, nt), 4)
                c = '0' if first else acc
                fr = A(self.AF(j, t), 4)
                tf = V(self.TF(j, nt), 4) if bop is None else bop(nt)
                if self.kind == 'B':
                    a(f'v_mfma_f32_16x16x32_bf16 {acc}, {tf}, {fr}, {c}')
                else:
                    a(f'v_mfma_f32_16x16x32_bf16 {acc}, {fr}, {tf}, {c}')
                k += 1
                if k % 4 != 0:
                    hk.run()
                side.run(rate)
        hk.flush()

    def mainloop(self, extra, side, rate, nfr=None):
        a, n = self.a, self.n
        nfr = nfr or n
        a.wait(self.dtok[0])
        Hooks(self.tr_items(0)).flush()
        for j in range(n):
            items = []
            if j + 1 < n:
                a.wait(self.dtok[j + 1])
            a.wait(self.ftok[j], self.ttok[j])
            if j % 2 == 0:
                stamp(a, f'{self.kind}{j}')
            if j + 1 < n:
                items += self.tr_items(j + 1)
            if j + G_P < n:
                items += self.dma_items(j + G_P)
            if j + G_PF - 1 < nfr:
                items += self.pre_frag(j + G_PF - 1) + self.frag_items(j + G_PF - 1)
            items += extra(j)
            self.mfmas(j, j == 0, Hooks(items), side, rate)

    def pre_frag(self, j):
        return []

    def reduce(self, hk):
        a = self.a
        a('s_barrier')
        for nt in range(1, 4):
            a(f's_xor_b32 s4, s{sW}, {nt}')
            a('s_mul_i32 s4, s4, 15360')
            a(f's_add_u32 s4, s4, {(nt - 1) * 5120}')
            a(f'v_add_u32 v20, s4, v{self.vF}')
            for t in range(5):
                a(f'ds_write_b128 v20, {A(self.ACC(t, nt), 4)} offset:{t * 1024}')
            hk.run()
        for t in range(5):
            for j in range(4):
                a(f'v_accvgpr_read_b32 v{RQ[t] + j}, a{self.ACC(t, 0) + j}')
        a(f's_mul_i32 s4, s{sW}, 15360')
        a(f'v_add_u32 v20, s4, v{self.vF}')
        a.wait_lg0()
        a('s_barrier')
        rtok = {}
        for nt in range(1, 4):
            for t in range(5):
                rtok[(nt, t)] = a(f'ds_read_b128 {V(RQ[nt * 5 + t], 4)}, v20 offset:{(nt - 1) * 5120 + t * 1024}')
        hk.flush()
        for nt in range(1, 4):
            for t in range(5):
                a.wait(rtok[(nt, t)])
                for h in range(2):
                    d = V(RQ[t] + 2 * h, 2)
                    a(f'v_pk_add_f32 {d}, {d}, {V(RQ[nt * 5 + t] + 2 * h, 2)}')


def kv_epilogue(a):
    r = Rec(a)
    VP = [UP(15), UP(16), UP(17)]
    for k in range(10):
        t, j = divmod(2 * k, 4)
        r(f'v_cvt_pk_bf16_f32 v{VP[k // 4] + k % 4}, v{UP(5 + t) + j}, v{UP(5 + t) + j + 1}')
    r(f'v_mov_b32 v{VP[2] + 2}, 0x3f803f80')
    r(f'v_mov_b32 v{VP[2] + 3}, 0x3f803f80')
    featmap(r)
    vSA, vKA, vKO = 32, 33, 56
    r(f's_lshl_b32 s12, s{sW}, 4')
    r(f'v_lshl_add_u32 v{vSA}, v{vG}, 6, v{vI}')
    r(f'v_add_u32 v{vSA}, s12, v{vSA}')
    r(f'v_mul_u32_u24 v{vSA}, 144, v{vSA}')
    r(f'v_add_u32 v{vSA}, {L_STAGE}, v{vSA}')
    r('s_barrier')
    for c in range(5):
        r(f'ds_write_b128 v{vSA}, {V(PQ5[c], 4)} offset:{16 * c}')
    for c in range(3):
        wt = r(f'ds_write_b128 v{vSA}, {V(VP[c], 4)} offset:{80 + 16 * c}')
    r(f's_mul_i32 s12, s{sW}, {64 * 144}')
    r(f's_add_u32 s12, s12, {L_STAGE}')
    r(f'v_mul_u32_u24 v{vKA}, 144, v{vGR}')
    r(f'v_lshl_add_u32 v{vKA}, v{vC}, 3, v{vKA}')
    r(f'v_add_u32 v{vKA}, s12, v{vKA}')
    r(f's_lshl_b32 s12, s{sHG}, 2')
    r(f's_add_u32 s12, s12, s{sW}')
    r('s_lshl_b32 s12, s12, 5')
    r(f's_add_u32 s13, s12, s{sRB}')
    r('s_mul_i32 s12, s13, 6144')
    r(f's_add_u32 s12, s12, {KV_OFF}')
    r(f'v_lshl_add_u32 v{vKO}, v{vL}, 4, s12')
    r('s_movk_i32 s12, 0x1000')
    r(f'v_mov_b32 v34, {OOB}')
    with r.atomic():
        r(f'v_cmp_gt_u32 vcc, 8, v{vI}')
        r(f'v_cndmask_b32 v{vKO + 1}, v34, v{vKO}, vcc')
    with r.atomic():
        r(f'v_cmp_gt_u32 vcc, 2, v{vG}')
        r(f'v_cndmask_b32 v{vKO + 2}, v34, v{vKO}, vcc')
        r(f'v_cndmask_b32 v{vKO + 3}, v34, v{vKO + 1}, vcc')
    r(f's_lshl_b32 s13, s13, {FSH}')
    r(f's_add_u32 s13, s13, {FK_OFF}')
    with r.atomic():
        r.wait(wt)
        r('s_barrier')
    ktok = {}
    OPQ = lambda kk, x: UP(kk * 5 + x)
    for kk in range(2):
        for x in range(5):
            col = 32 * x if x < 3 else 80 + 32 * (x - 3)
            r(f'ds_read_b64_tr_b16 {V(OPQ(kk, x), 2)}, v{vKA} offset:{kk * 32 * 144 + col}')
            ktok[kk] = r(f'ds_read_b64_tr_b16 {V(OPQ(kk, x) + 2, 2)}, v{vKA} offset:{kk * 32 * 144 + 16 * 144 + col}')
    KVA = [UP(10 + k) for k in range(6)]
    for kk in range(2):
        r.wait(ktok[kk])
        for ft in range(3):
            for et in range(2):
                d = V(KVA[ft * 2 + et], 4)
                r(f'v_mfma_f32_16x16x32_bf16 {d}, {V(OPQ(kk, 3 + et), 4)}, {V(OPQ(kk, ft), 4)}, {"0" if kk == 0 else d}')
    r('s_barrier')
    for ft in range(3):
        for et in range(2):
            vo = vKO + (1 if ft == 2 else 0) + (2 if et == 1 else 0)
            so = 's12' if ft == 2 else '0'
            kst = r(f'buffer_store_dwordx4 {V(KVA[ft * 2 + et], 4)}, v{vo}, {S(sWS, 4)}, {so} offen offset:{(ft % 2) * 2048 + et * 1024} sc1')
    return r, kst


def q_epilogue(a, vF):
    r = Rec(a)
    r(f'v_lshlrev_b32 v32, 11, v{vG}')
    r(f'v_lshl_add_u32 v32, v{vR}, 3, v32')
    r(f'v_add_u32 v32, {L_KB}, v32')
    r(f'v_mov_b32 v33, {L_KZ}')
    with r.atomic():
        r(f'v_cmp_eq_u32 vcc, v{vG}, v{vC}')
        r('v_cndmask_b32 v32, v33, v32, vcc')
    featmap(r)
    OA = [UP(k) for k in range(6)]
    KF = lambda ks, t: XN((ks % 3) * 6 + t)
    otok = {}

    def o_read(ks):
        for t in range(6):
            r(f'ds_read_b64_tr_b16 {V(KF(ks, t), 2)}, v32 offset:{kb_pos(8 * ks, t)}')
            otok[ks] = r(f'ds_read_b64_tr_b16 {V(KF(ks, t) + 2, 2)}, v32 offset:{kb_pos(8 * ks + 4, t)}')

    o_read(0)
    o_read(1)
    for ks in range(5):
        r.wait(otok[ks])
        for t in range(6):
            d = V(OA[t], 4)
            r(f'v_mfma_f32_16x16x32_bf16 {d}, {V(KF(ks, t), 4)}, {V(PQ5[ks], 4)}, {"0" if ks == 0 else d}')
        if ks + 2 < 5:
            o_read(ks + 2)
    r(f's_lshr_b32 s12, s{sHG}, 1')
    r('s_mul_i32 s12, s12, 5')
    r(f's_mul_i32 s13, s{sRB}, 20')
    r('s_add_u32 s12, s12, s13')
    r('s_lshl_b32 s12, s12, 2')
    r(f's_add_u32 s12, s12, s{sW}')
    r('s_lshl_b32 s12, s12, 10')
    r(f's_add_u32 s12, s12, {OF_OFF}')
    r(f's_and_b32 s13, s{sHG}, 1')
    r(f's_mul_i32 s14, s13, {3 * 4096}')
    r('s_add_u32 s14, s14, s12')
    r('s_lshl_b32 s13, s13, 9')
    r('s_add_u32 s12, s12, s13')
    r(f's_add_u32 s12, s12, {2 * 4096}')
    r(f'v_lshlrev_b32 v33, 3, v{vL}')
    r(f'v_add_f32 v{OA[5]}, {fbits(1e-6)}, v{OA[5]}')
    r(f'v_rcp_f32 v{OA[5]}, v{OA[5]}')
    for t in range(5):
        for h in range(2):
            r(f'v_pk_mul_f32 {V(OA[t] + 2 * h, 2)}, {V(OA[t] + 2 * h, 2)}, {V(OA[5], 2)} op_sel_hi:[1,0]')
    for k in range(10):
        t, j = divmod(2 * k, 4)
        r(f'v_cvt_pk_bf16_f32 v{PK[k // 4] + k % 4}, v{OA[t] + j}, v{OA[t] + j + 1}')
    r(f'buffer_store_dwordx4 {V(PK[0], 4)}, v{vF}, {S(sWS, 4)}, s14 offen sc1')
    r(f'buffer_store_dwordx4 {V(PK[1], 4)}, v{vF + 1}, {S(sWS, 4)}, s14 offen sc1')
    ost = r(f'buffer_store_dwordx2 {V(PK[2], 2)}, v33, {S(sWS, 4)}, s12 offen sc1')
    r(f's_lshl_b32 s13, s{sRB}, 3')
    r(f's_add_u32 s13, s13, s{sHG}')
    r('s_lshl_b32 s13, s13, 2')
    r(f's_add_u32 s13, s13, s{sW}')
    r(f's_lshl_b32 s13, s13, {FSH}')
    r(f's_add_u32 s13, s13, {FO_OFF}')
    return r, ost


def build():
    a = Asm()
    hdr = open(os.path.join(os.path.dirname(__file__), '..', 'cdna_kernels', NAME + '.s.ref')).read().split('\n')
    for line in hdr:
        if line.startswith(';') and '@launch' not in line:
            a.raw(line)
    a.raw(f'; @launch grid=(256,1,1) block=(256,1,1) lds={LDS_BYTES}')
    a.raw('.amdgcn_target "amdgcn-amd-amdhsa--gfx950"')
    a.raw('.text')
    K = NAME + '_kernel'
    a.raw(f'.globl {K}')
    a.raw('.p2align 8')
    a.raw(f'.type {K},@function')
    a.raw(f'{K}:')
    a('s_cmp_ge_u32 s2, 256')
    a('s_cbranch_scc1 L_end')
    a('s_load_dwordx16 s[16:31], s[0:1], 0')
    a('s_load_dwordx8 s[32:39], s[0:1], 64')
    a(f'v_and_b32 v{vL}, 63, v0')
    a('v_lshrrev_b32 v6, 6, v0')
    a(f'v_readfirstlane_b32 s{sW}, v6')
    a(f'v_lshrrev_b32 v{vG}, 4, v{vL}')
    a(f'v_and_b32 v{vI}, 15, v{vL}')
    a(f'v_lshrrev_b32 v{vR}, 2, v{vI}')
    a(f'v_and_b32 v{vC}, 3, v{vL}')
    a(f'v_lshl_add_u32 v{vGR}, v{vG}, 2, v{vR}')
    a('s_and_b32 s4, s2, 7')
    a('s_lshr_b32 s5, s2, 3')
    a('s_and_b32 s6, s4, 1')
    a('s_lshl_b32 s6, s6, 2')
    a('s_and_b32 s7, s5, 3')
    a(f's_add_u32 s{sHG}, s6, s7')
    a('s_lshr_b32 s6, s4, 1')
    a('s_lshl_b32 s6, s6, 3')
    a('s_lshr_b32 s7, s5, 2')
    a(f's_add_u32 s{sRB}, s6, s7')
    a('s_min_u32 s5, s5, 26')
    a('s_mul_i32 s6, s4, 27')
    a('s_add_u32 s6, s6, s5')
    a('s_cmp_ge_u32 s6, 108')
    a('s_cselect_b32 s7, 108, 0')
    a('s_cselect_b32 s8, 4, 0')
    a('s_sub_u32 s6, s6, s7')
    a(f's_lshr_b32 s{sBCB}, s6, 2')
    a('s_and_b32 s6, s6, 3')
    a(f's_add_u32 s{sBDB}, s6, s8')
    a(f's_add_u32 s{sHB}, s{sHG}, s{sRB}')
    a(f's_and_b32 s{sHB}, s{sHB}, 7')
    a(f's_mul_i32 s{sROT}, s{sHB}, 5')
    a(f's_lshr_b32 s{sROT}, s{sROT}, 1')
    a(f's_lshl_b32 s4, s{sRB}, 6')
    a(f's_lshl_b32 s5, s{sW}, 4')
    a('s_add_u32 s4, s4, s5')
    a(f'v_add_u32 v{vTOK}, s4, v{vI}')
    vXO = 8
    a(f'v_mul_u32_u24 v{vXO}, 1280, v{vTOK}')
    a(f'v_lshl_add_u32 v{vXO}, v{vG}, 4, v{vXO}')
    a('s_waitcnt lgkmcnt(0)')
    stamp(a, 0)
    srd(a, sX, P_X, S_ * D_ * 2)
    a(f's_mov_b32 s{sKS}, s{sROT}')
    xtok = []
    for s in range(20):
        a(f's_lshl_b32 s{sT}, s{sKS}, 6')
        xtok.append(a(f'buffer_load_dwordx4 {V(UP(s), 4)}, v{vXO}, {S(sX, 4)}, s{sT} offen'))
        a(f's_add_u32 s{sKS}, s{sKS}, 1')
        a(f's_cmp_eq_u32 s{sKS}, 20')
        a(f's_cselect_b32 s{sKS}, 0, s{sKS}')
    a(f's_add_u32 s4, s{P_WS}, {EP_OFF}')
    a(f's_addc_u32 s5, s{P_WS + 1}, 0')
    a(f's_load_dword s{sTAG}, s[4:5], 0')
    srd(a, sWQ, P_WQKV, D_ * 3 * D_ * 2)
    srd(a, sWS, P_WS, WS_USED)
    srd(a, sW1, P_W1, S_ * F_ * 2)
    srd(a, sW2, P_W2, F_ * S_ * 2)
    srd(a, sAUX, P_WPHI, 32 * 800)
    srd(a, sOUT, P_OUT, S_ * D_ * 2)
    vWO = 24
    dma160_voffs(a, vWO, 3840, True, 9)
    a(f's_mul_i32 s6, s{sHG}, 160')
    for q in range(5):
        a(f'v_add_u32 v{vWO + q}, s6, v{vWO + q}')
    a(f's_mul_i32 s{sM0B}, s{sW}, 5120')
    a(f's_lshr_b32 s6, s{sW}, 1')
    a(f's_add_u32 s{sKS}, s{sROT}, s6')
    a(f's_and_b32 s9, s{sW}, 1')
    a('s_add_u32 s9, s9, 1')
    a('s_mul_i32 s9, s9, 1280')
    slot_of = lambda d: KV_SLOTS - 1 - (d % KV_SLOTS)
    wtok = {}

    def issue_w(d):
        a(f's_mul_i32 s{sT}, s{sKS}, {32 * 3840}')
        a(f's_add_u32 s{sT}, s{sT}, s9')
        wtok[d] = dma160(a, vWO, sWQ, sT, sM0B, slot_of(d) * 20480)
        a(f's_add_u32 s{sKS}, s{sKS}, 2')
        a(f's_sub_u32 s{sT}, s{sKS}, 20')
        a(f's_min_u32 s{sKS}, s{sKS}, s{sT}')

    a(f's_mul_i32 s6, s{sHG}, 3200')
    a(f's_lshl_b32 s7, s{sW}, 10')
    a('s_add_u32 s6, s6, s7')
    a(f'v_lshl_add_u32 v9, v{vL}, 4, s6')
    a(f's_add_u32 m0, s7, {L_WPHI}')
    a(f'buffer_load_dwordx4 v9, {S(sAUX, 4)}, 0 offen lds')
    NUP = int(os.environ.get('NUP', '2'))
    for d in range(NUP):
        issue_w(d)

    def prefetch():
        a(f's_and_b32 s4, s{sBDB}, 3')
        a('s_lshl_b32 s4, s4, 2')
        a(f's_add_u32 s4, s4, s{sW}')
        a(f's_mul_i32 s4, s4, {128 * F_ * 2}')
        a(f's_lshl_b32 s5, s{sBCB}, 7')
        a('s_add_u32 s4, s4, s5')
        a(f'v_mul_u32_u24 v60, {F_ * 2}, v{vL}')
        a('v_add_u32 v60, s4, v60')
        a(f'buffer_load_dword v61, v60, {S(sW1, 4)}, 0 offen sc1')
        a(f'v_add_u32 v60, {64 * F_ * 2}, v60')
        a(f'buffer_load_dword v61, v60, {S(sW1, 4)}, 0 offen sc1')

    def prefetch2():
        a('s_lshr_b32 s4, s2, 3')
        a('s_lshl_b32 s4, s4, 2')
        a(f's_add_u32 s4, s4, s{sW}')
        a('s_and_b32 s6, s2, 1')
        a(f's_mul_i32 s5, s4, {5 * 3840}')
        a('s_mul_i32 s7, s6, 640')
        a('s_add_u32 s5, s5, s7')
        a(f'v_lshrrev_b32 v20, 3, v{vL}')
        a(f'v_and_b32 v21, 7, v{vL}')
        a('v_min_u32 v22, 4, v20')
        a('v_mul_u32_u24 v22, 3840, v22')
        a('v_min_u32 v60, 4, v21')
        a('v_lshl_add_u32 v60, v60, 7, v22')
        a('v_add_u32 v60, s5, v60')
        a(f'buffer_load_dword v61, v60, {S(sWQ, 4)}, 0 offen sc1')
        a('s_mul_i32 s5, s4, 7')
        a('s_mul_i32 s7, s6, 864')
        a('s_add_u32 s5, s5, s7')
        a('s_lshl_b32 s5, s5, 12')
        a('s_and_b32 s7, s2, 6')
        a('s_lshl_b32 s7, s7, 9')
        a('s_add_u32 s5, s5, s7')
        a('v_min_u32 v22, 6, v20')
        a('v_lshlrev_b32 v22, 12, v22')
        a('v_lshl_add_u32 v60, v21, 7, v22')
        a('v_add_u32 v60, s5, v60')
        a(f'buffer_load_dword v61, v60, {S(sW2, 4)}, 0 offen sc1')

    PFAT = os.environ.get('PFAT', 'ln')
    hk = Hooks([(lambda d=d: issue_w(d)) for d in range(NUP, KV_SLOTS)] + ([prefetch] if PFAT == 'ln' else []))
    if PFAT == 'pre':
        prefetch()
    a('s_waitcnt lgkmcnt(0)')
    a(f's_add_u32 s{sTAG}, s{sTAG}, 1')
    for k in range(4):
        a(f'v_mov_b32 v{12 + k}, 0')
    a(f'v_lshlrev_b32 v16, 4, v{vL}')
    a(f'v_add_u32 v16, {L_ZERO}, v16')
    a('ds_write_b128 v16, v[12:15]')
    a(f's_mov_b32 s{sL}, {fbits(LOG2E)}')
    a(f's_mov_b32 s{sL + 1}, {fbits(LOG2E)}')
    a(f's_mov_b32 s{sNL}, {fbits(-LOG2E)}')
    a(f's_mov_b32 s{sNL + 1}, {fbits(-LOG2E)}')
    vTR = 29
    a(f'v_mul_u32_u24 v{vTR}, 160, v{vGR}')
    a(f'v_mul_u32_u24 v9, 40, v{vC}')
    a(f'v_add_u32 v{vTR}, v{vTR}, v9')
    a(f'v_add_u32 v{vTR + 1}, 61440, v{vTR}')
    a(f'v_add_u32 v{vTR + 2}, {2 * 61440}, v{vTR}')
    vHA = 32
    a(f's_lshl_b32 s4, s{sW}, 4')
    a(f'v_add_u32 v{vHA}, s4, v{vI}')
    a(f'v_mul_u32_u24 v{vHA}, 208, v{vHA}')
    a(f'v_lshl_add_u32 v{vHA}, v{vG}, 4, v{vHA}')
    a(f'v_add_u32 v{vHA}, {L_HS}, v{vHA}')

    vONE, vS, vRS, vNB, vR2 = 10, 12, 16, 18, 20
    a(f'v_mov_b32 v{vONE}, 0x3f803f80')
    for s in range(20):
        a.wait(xtok[s])
        for k in range(4):
            a(f'v_dot2c_f32_bf16 v{vS + (k & 1)}, v{UP(s) + k}, v{vONE}')
            a(f'v_dot2c_f32_bf16 v{vS + 2 + (k & 1)}, v{UP(s) + k}, v{UP(s) + k}')
    stamp(a, 1)
    a(f'v_add_f32 v{vS}, v{vS}, v{vS + 1}')
    a(f'v_add_f32 v{vS + 2}, v{vS + 2}, v{vS + 3}')
    reduce_g(a, vS, vS + 1)
    reduce_g(a, vS + 2, vS + 3)
    a(f'v_mul_f32 v{vS}, {fbits(1.0 / 640)}, v{vS}')
    a(f'v_mul_f32 v{vS + 2}, {fbits(1.0 / 640)}, v{vS + 2}')
    a(f'v_fma_f32 v{vS + 2}, -v{vS}, v{vS}, v{vS + 2}')
    a(f'v_max_f32 v{vS + 2}, 0, v{vS + 2}')
    a(f'v_add_f32 v{vS + 1}, {fbits(1e-5)}, v{vS + 2}')
    a(f'v_rsq_f32 v{vRS}, v{vS + 1}')
    a(f'v_mul_f32 v{vNB}, v{vS}, v{vRS}')
    a(f'v_sub_f32 v{vNB}, 0, v{vNB}')
    a(f'v_mul_f32 v{vS + 1}, v{vRS}, v{vRS}')
    a(f'v_mov_b32 v{vS + 3}, {fbits(1e-5)}')
    a(f'v_fmac_f32 v{vS + 3}, v{vS + 1}, v{vS + 2}')
    a(f'v_rsq_f32 v{vR2}, v{vS + 3}')
    for s in range(20):
        b = DB + 8 * s
        for k in range(4):
            a(f'v_lshlrev_b32 v{b + 2 * k}, 16, v{b + 4 + k}')
            a(f'v_and_b32 v{b + 2 * k + 1}, 0xffff0000, v{b + 4 + k}')
        for k in range(4):
            a(f'v_pk_fma_f32 {V(b + 2 * k, 2)}, {V(b + 2 * k, 2)}, {V(vRS, 2)}, {V(vNB, 2)} op_sel_hi:[1,0,0]')
        if s < 3:
            for k in range(4):
                a(f'v_pk_mul_f32 {V(36 + 2 * k, 2)}, {V(b + 2 * k, 2)}, {V(vR2, 2)} op_sel_hi:[1,0]')
            for k in range(4):
                a(f'v_cvt_pk_bf16_f32 v{44 + 4 * s + k}, v{36 + 2 * k}, v{36 + 2 * k + 1}')
            a(f'ds_write_b128 v{vHA}, {V(44 + 4 * s, 4)} offset:{64 * s}')
        for k in range(4):
            a(f'v_cvt_pk_bf16_f32 v{b + k}, v{b + 2 * k}, v{b + 2 * k + 1}')
        if s % 4 == 1:
            hk.run()
    hk.flush()
    stamp(a, 2)
    a.wait(wtok[0])
    a.wait_lg0()
    a('s_barrier')
    vHR, vHO = 32, 33
    a(f'v_mul_u32_u24 v{vHR}, 208, v{vGR}')
    a(f'v_add_u32 v{vHR}, v{vHR}, v9')
    a(f's_and_b32 s4, s{sHB}, 1')
    a('s_lshl_b32 s4, s4, 5')
    a(f's_add_u32 s4, s4, {L_HS}')
    a(f'v_add_u32 v{vHR}, s4, v{vHR}')
    a(f's_lshl_b32 s4, s{sHB}, 6')
    a(f's_lshl_b32 s5, s{sRB}, 1')
    a('s_add_u32 s4, s4, s5')
    a('s_mul_i32 s4, s4, 5120')
    a(f's_add_u32 s8, s4, {HF_OFF}')
    htok = []
    for m in range(3):
        a(f's_add_u32 s4, s{sW}, {4 * m}')
        a('s_min_u32 s5, s4, 9')
        a('s_cmp_ge_u32 s5, 5')
        a(f's_cselect_b32 s6, {32 * 208 - 40}, 0')
        a('s_lshl_b32 s5, s5, 3')
        a('s_add_u32 s5, s5, s6')
        a(f'v_add_u32 v8, s5, v{vHR}')
        a(f'ds_read_b64_tr_b16 {V(36 + 4 * m, 2)}, v8')
        htok.append(a(f'ds_read_b64_tr_b16 {V(38 + 4 * m, 2)}, v8 offset:{16 * 208}'))
        a('s_lshl_b32 s5, s4, 10')
        a('s_add_u32 s5, s5, s8')
        a('s_cmp_ge_u32 s4, 10')
        a(f's_cselect_b32 s5, {OOB}, s5')
        a(f'v_lshl_add_u32 v{vHO + m}, v{vL}, 4, s5')
    for m in range(3):
        a.wait(htok[m])
        hst = a(f'buffer_store_dwordx4 {V(36 + 4 * m, 4)}, v{vHO + m}, {S(sWS, 4)}, 0 offen sc1')
    stamp(a, 3)

    def wphi_frags():
        a(f'v_mul_u32_u24 v20, 800, v{vG}')
        a(f'v_mul_u32_u24 v21, 40, v{vR}')
        a('v_add_u32 v20, v20, v21')
        a(f'v_add_u32 v20, {L_WPHI}, v20')
        a(f'v_mov_b32 v21, {L_ZERO}')
        a(f'v_cmp_eq_u32 vcc, v{vG}, v{vC}')
        a('v_cndmask_b32 v20, v21, v20, vcc')
        for t in range(5):
            for d4 in range(5):
                a(f'ds_read_b64_tr_b16 {A(WPF(t, d4 // 2) + 2 * (d4 % 2), 2)}, v20 offset:{4 * d4 * 40 + 8 * t}')

    gB = GGemm(a, 'B')
    WIN = 7
    fl = {}

    def qkv_loop(NF, per, addr, xstep, boundary, hk):
        ftok = {}

        def read_frag(n):
            base, off = addr(n)
            r = (n % 8) * 4
            a(f'ds_read_b64_tr_b16 {A(r, 2)}, v{base} offset:{off}')
            ftok[n] = a(f'ds_read_b64_tr_b16 {A(r + 2, 2)}, v{base} offset:{off + 2560}')

        for n in range(WIN):
            read_frag(n)
        for n in range(NF):
            nn = n + WIN
            if nn < NF:
                boundary(nn)
                read_frag(nn)
            s, k = divmod(n, per)
            if n % 2 == 0:
                a.wait(ftok[min(n + 1, NF - 1)])
            c = '0' if s == 0 else V(UP(k), 4)
            a(f'v_mfma_f32_16x16x32_bf16 {V(UP(k), 4)}, {A((n % 8) * 4, 4)}, {V(XN(xstep(s)), 4)}, {c}')
            hk.run()
        hk.flush()

    def kv_addr(n):
        s, k = divmod(n, 10)
        sec, t = divmod(k, 5)
        slot = slot_of(s // 2)
        return vTR + slot // 3, (slot % 3) * 20480 + (s % 2) * 10240 + sec * 5120 + 8 * t

    hk = Hooks()

    def kv_boundary(nn):
        if nn % 20 == 0:
            d = nn // 20
            stamp(a, f'kv{d}a')
            a.wait(wtok[d])
            a('s_barrier')
            stamp(a, f'kv{d}b')
            if d >= 2 and d - 2 + KV_SLOTS < 10:
                issue_w(d - 2 + KV_SLOTS)
            if d == int(os.environ.get('HPUB', '4')):
                a.wait(hst)
                a(f's_lshl_b32 s4, s{sHB}, 5')
                a(f's_add_u32 s4, s4, s{sRB}')
                a('s_lshl_b32 s4, s4, 2')
                a(f's_add_u32 s4, s4, s{sW}')
                a(f's_lshl_b32 s4, s4, {FSH}')
                a(f's_add_u32 s4, s4, {FH_OFF}')
                flag_set(a, 4)
                stamp(a, 'hpub')
            if PFAT == f'd{d}':
                prefetch()
            if d == 5:
                if 'nopf2' not in EXP:
                    prefetch2()
                wphi_frags()
            if d == 6:
                gB.setup()
            if d == 8:
                fl['h'] = flag_issue(a, gB.vFL, gB.vFD)
                for j in range(G_P):
                    hk.items += gB.dma_items(j)
            if d == 9:
                hk.items.append(lambda: (flag_check(a, fl['h'], gB.vFL, gB.vFD), stamp(a, 'hok')))
                for j in range(G_PF - 1):
                    hk.items += gB.frag_items(j)

    qkv_loop(200, 10, kv_addr, lambda s: s, kv_boundary, hk)
    stamp(a, 4)
    wq = {}

    def issue_wq(m):
        a(f's_add_u32 s{sKS}, s{sROT}, s{sW}')
        a(f's_add_u32 s{sKS}, s{sKS}, {4 * m}')
        a(f's_sub_u32 s{sT}, s{sKS}, 20')
        a(f's_min_u32 s{sKS}, s{sKS}, s{sT}')
        a(f's_mul_i32 s{sT}, s{sKS}, {32 * 3840}')
        wq[m] = dma160(a, vWO, sWQ, sT, sM0B, L_WQ + m * 20480)

    a('s_cmp_ge_u32 s2, 216')
    a('s_cbranch_scc1 L_spare')
    at_fork = a.save()
    srd(a, sAUX, P_B1, F_ * 2)
    bt = {}
    rec, kst = kv_epilogue(a)
    side = Hooks(rec.items())
    sys.stderr.write(f'kv epilogue pieces: {len(side.items)}\n')

    def b_extra(j):
        it = []
        if j == int(os.environ.get('KPUB', '5')):
            def pub():
                side.flush()
                a.wait(kst)
                flag_set(a, 13)
            it.append(pub)
        if j == 10:
            def bias():
                a(f's_lshl_b32 s4, s{sBCB}, 7')
                a(f's_lshl_b32 s5, s{sW}, 5')
                a('s_add_u32 s4, s4, s5')
                a(f'v_lshl_add_u32 v20, v{vG}, 3, s4')
                bt['b'] = a(f'buffer_load_dwordx2 {V(UP(19), 2)}, v20, {S(sAUX, 4)}, 0 offen')
            it.append(bias)
        if j >= 12:
            it.append(lambda m=j - 11: issue_wq(m))
        return it

    gB.mainloop(b_extra, side, int(os.environ.get('RATE_B', '4')))
    stamp(a, 5)
    gB.reduce(Hooks([lambda: issue_wq(0)]))
    a.wait(bt['b'])
    R = lambda t, j: RQ[t] + j
    T = lambda t, j: RQ[5 + t] + j
    a(f'v_lshlrev_b32 v36, 16, v{UP(19)}')
    a(f'v_and_b32 v37, 0xffff0000, v{UP(19)}')
    a(f'v_lshlrev_b32 v38, 16, v{UP(19) + 1}')
    a(f'v_and_b32 v39, 0xffff0000, v{UP(19) + 1}')
    c0 = 0.7978845608028654
    k1 = -2.0 * c0 * LOG2E
    k2 = k1 * 0.044715
    a(f's_mov_b32 s4, {fbits(k2)}')
    a(f's_mov_b32 s5, {fbits(k2)}')
    a(f'v_mov_b32 v40, {fbits(k1)}')
    a('v_mov_b32 v42, 1.0')
    th = [(t, h) for t in range(5) for h in range(2)]
    tj = [(t, j) for t in range(5) for j in range(4)]
    for t, h in th:
        a(f'v_pk_add_f32 {V(R(t, 2 * h), 2)}, {V(R(t, 2 * h), 2)}, {V(36 + 2 * h, 2)}')
    for t, h in th:
        a(f'v_pk_mul_f32 {V(T(t, 2 * h), 2)}, {V(R(t, 2 * h), 2)}, {V(R(t, 2 * h), 2)}')
    for t, h in th:
        a(f'v_pk_fma_f32 {V(T(t, 2 * h), 2)}, {V(T(t, 2 * h), 2)}, s[4:5], v[40:41] op_sel_hi:[1,0,0]')
    for t, h in th:
        a(f'v_pk_mul_f32 {V(T(t, 2 * h), 2)}, {V(T(t, 2 * h), 2)}, {V(R(t, 2 * h), 2)}')
    for t, j in tj:
        a(f'v_exp_f32 v{T(t, j)}, v{T(t, j)}')
    for t, h in th:
        a(f'v_pk_add_f32 {V(T(t, 2 * h), 2)}, {V(T(t, 2 * h), 2)}, v[42:43] op_sel_hi:[1,0]')
    for t, j in tj:
        a(f'v_rcp_f32 v{T(t, j)}, v{T(t, j)}')
    for t, h in th:
        a(f'v_pk_mul_f32 {V(T(t, 2 * h), 2)}, {V(T(t, 2 * h), 2)}, {V(R(t, 2 * h), 2)}')
    a(f's_mul_i32 s4, s{sW}, 15360')
    a(f'v_lshl_add_u32 v20, v{vL}, 3, s4')
    for t in range(5):
        a(f'v_cvt_pk_bf16_f32 v{RQ[10 + t]}, v{T(t, 0)}, v{T(t, 1)}')
        a(f'v_cvt_pk_bf16_f32 v{RQ[10 + t] + 1}, v{T(t, 2)}, v{T(t, 3)}')
        a(f'ds_write_b64 v20, {V(RQ[10 + t], 2)} offset:{t * 512}')
    a(f's_mul_i32 s4, s{sBDB}, 74')
    a(f's_lshl_b32 s5, s{sBCB}, 1')
    a('s_add_u32 s4, s4, s5')
    a('s_mul_i32 s4, s4, 5120')
    a(f's_add_u32 s15, s4, {GF_OFF}')
    a(f's_lshl_b32 s4, s{sBDB}, 5')
    a(f's_add_u32 s4, s4, s{sBCB}')
    a('s_lshl_b32 s4, s4, 2')
    a(f's_add_u32 s4, s4, s{sW}')
    a(f's_lshl_b32 s4, s4, {FSH}')
    a(f's_add_u32 s10, s4, {FG_OFF}')
    a('s_branch L_join')
    at_join = a.save()
    wq_b = dict(wq)

    a.label('L_spare')
    a.restore(at_fork)
    rec, kst = kv_epilogue(a)
    Hooks(rec.items()).flush()
    a.wait_all()
    flag_set(a, 13)
    a('s_barrier')
    a('s_cmp_ge_u32 s2, 248')
    a('s_cbranch_scc1 L_wot')
    a('s_sub_u32 s11, s2, 216')
    a(f's_lshl_b32 s4, s11, {5 + FSH}')
    a(f's_add_u32 s4, s4, {FK_OFF}')
    a(f'v_and_b32 v20, 31, v{vL}')
    a(f'v_lshl_add_u32 v20, v20, {FSH}, s4')
    for m in range(5):
        issue_wq(m)
    stamp(a, 'B0')
    flag_check(a, flag_issue(a, 20, 21), 20, 21)
    stamp(a, 'B2')
    a(f's_mul_i32 s4, s11, {32 * 6144}')
    a(f's_add_u32 s4, s4, {KV_OFF}')
    a(f's_lshl_b32 s5, s{sW}, 11')
    a(f'v_lshl_add_u32 v20, v{vL}, 4, s5')
    a(f'v_lshrrev_b32 v21, 5, v{vL}')
    a(f'v_and_b32 v22, 31, v{vL}')
    a('v_lshlrev_b32 v22, 4, v22')
    a('v_lshl_add_u32 v21, v21, 11, v22')
    a('v_add_u32 v21, 1024, v21')
    a(f's_cmp_eq_u32 s{sW}, 2')
    a('s_cselect_b64 vcc, -1, 0')
    a('v_cndmask_b32 v20, v20, v21, vcc')
    a(f'v_lshrrev_b32 v21, 3, v{vL}')
    a(f'v_and_b32 v22, 7, v{vL}')
    a('v_lshlrev_b32 v22, 4, v22')
    a('v_lshl_add_u32 v21, v21, 8, v22')
    a('v_add_u32 v21, 4096, v21')
    a(f's_cmp_eq_u32 s{sW}, 3')
    a('s_cselect_b64 vcc, -1, 0')
    a('v_cndmask_b32 v20, v20, v21, vcc')
    stok = []
    RR = lambda rb: 132 + 4 * rb if rb < 30 else 4 * (rb - 30)
    for rb in range(32):
        stok.append(a(f'buffer_load_dwordx4 {A(RR(rb), 4)}, v20, {S(sWS, 4)}, s4 offen sc1'))
        a('s_add_u32 s4, s4, 6144')
    for rb in range(32):
        a.wait(stok[rb])
        for k in range(4):
            a(f'v_accvgpr_read_b32 v{(36 if rb == 0 else 40) + k}, a{RR(rb) + k}')
        if rb:
            for h in range(2):
                a(f'v_pk_add_f32 {V(36 + 2 * h, 2)}, {V(36 + 2 * h, 2)}, {V(40 + 2 * h, 2)}')
    stamp(a, 'B4')
    a('v_cvt_pk_bf16_f32 v36, v36, v37')
    a('v_cvt_pk_bf16_f32 v37, v38, v39')
    a('s_lshl_b32 s4, s11, 11')
    a(f's_add_u32 s4, s4, {KB_OFF}')
    a('v_lshl_add_u32 v20, v0, 3, s4')
    a(f'buffer_store_dwordx2 v[36:37], v20, {S(sWS, 4)}, 0 offen sc1')
    a('s_lshl_b32 s4, s11, 2')
    a(f's_add_u32 s4, s4, s{sW}')
    a(f's_lshl_b32 s4, s4, {FSH}')
    a(f's_add_u32 s10, s4, {FR_OFF}')
    a('s_branch L_spare_done')
    a.label('L_wot')
    srd(a, sAUX, P_WO, D_ * D_ * 2)
    a('s_sub_u32 s11, s2, 248')
    dma160_voffs(a, 36, 1280, False, 20)
    a('s_mul_i32 s4, s11, 160')
    a(f's_mul_i32 s5, s{sW}, {160 * 1280}')
    a('s_add_u32 s4, s4, s5')
    a(f's_mul_i32 s6, s{sW}, 25600')
    for k in range(5):
        tok = dma160(a, 36, sAUX, 4, 6, L_WQ + k * 5120)
        a(f's_add_u32 s4, s4, {32 * 1280}')
    a(f'v_mul_u32_u24 v20, 20, v{vG}')
    a(f'v_add_u32 v20, v20, v{vR}')
    a('v_mul_u32_u24 v20, 160, v20')
    a(f'v_mul_u32_u24 v21, 40, v{vC}')
    a('v_add_u32 v20, v20, v21')
    a(f's_add_u32 s6, s6, {L_WQ}')
    a('v_add_u32 v20, s6, v20')
    a('s_mul_i32 s4, s11, 74')
    a(f's_mul_i32 s5, s{sW}, 5')
    a('s_add_u32 s4, s4, s5')
    a('s_add_u32 s4, s4, 54')
    a('s_mul_i32 s4, s4, 5120')
    a(f's_add_u32 s4, s4, {GF_OFF}')
    stamp(a, 'B0')
    a.wait_vm0()
    stamp(a, 'B2')
    rows = [(0, 4), (8, 12), (16, 96), (80, 84), (88, 92)]
    for u in range(5):
        rt = {}
        for t in range(5):
            r = 132 + (u * 5 + t) * 4
            a(f'ds_read_b64_tr_b16 {A(r, 2)}, v20 offset:{rows[u][0] * 160 + 8 * t}')
            rt[t] = a(f'ds_read_b64_tr_b16 {A(r + 2, 2)}, v20 offset:{rows[u][1] * 160 + 8 * t}')
        for t in range(5):
            r = 132 + (u * 5 + t) * 4
            a.wait(rt[t])
            vo, off = (gB.vF, t * 1024) if t < 4 else (gB.vF + 1, 0)
            a(f'buffer_store_dwordx4 {A(r, 4)}, v{vo}, {S(sWS, 4)}, s4 offen offset:{off} sc1')
        a('s_add_u32 s4, s4, 5120')
    a('s_lshl_b32 s4, s11, 2')
    a(f's_add_u32 s4, s4, s{sW}')
    a(f's_lshl_b32 s4, s4, {FSH}')
    a(f's_add_u32 s10, s4, {FW_OFF}')
    stamp(a, 'B4')
    a('s_barrier')
    for m in range(5):
        issue_wq(m)
    a.label('L_spare_done')
    a(f's_mov_b32 s15, {OOB}')
    a.wait_all()
    flag_set(a, 10)
    if STAMPS:
        stamp(a, 5)

    a.label('L_join')
    a.restore(at_join)
    wq = wq_b
    stamp(a, 6)
    g2 = GGemm(a, 'G2')
    a(f's_lshl_b32 s4, s{sHG}, {4 + FSH}')
    a(f's_add_u32 s4, s4, {FR_OFF}')
    a(f'v_lshl_add_u32 v34, v{vI}, {FSH}, s4')
    fl['r'] = flag_issue(a, 34, 35)
    g2.setup()
    a.wait(wq[4])
    a.wait_lg0()
    a('s_barrier')
    stamp(a, 'wq')
    gt = []
    for m in range(3):
        a(f's_add_u32 s4, s{sW}, {4 * m}')
        a('s_min_u32 s5, s4, 9')
        a('s_cmp_ge_u32 s5, 5')
        a(f's_cselect_b32 s6, {2 * 15360 - 5 * 512}, 0')
        a('s_lshl_b32 s5, s5, 9')
        a('s_add_u32 s5, s5, s6')
        a(f'v_lshl_add_u32 v20, v{vL}, 3, s5')
        a(f'ds_read_b64 {V(UP(10 + m), 2)}, v20')
        gt.append(a(f'ds_read_b64 {V(UP(10 + m) + 2, 2)}, v20 offset:15360'))
        a('s_lshl_b32 s5, s4, 10')
        a('s_add_u32 s5, s5, s15')
        a('s_cmp_ge_u32 s4, 10')
        a(f's_cselect_b32 s5, {OOB}, s5')
        a(f'v_lshl_add_u32 v{21 + m}, v{vL}, 4, s5')
    for m in range(3):
        a.wait(gt[m])
        gst = a(f'buffer_store_dwordx4 {V(UP(10 + m), 4)}, v{21 + m}, {S(sWS, 4)}, 0 offen sc1')
    kb = {}

    def kb_load():
        stamp(a, 'ra')
        flag_check(a, fl['r'], 34, 35)
        stamp(a, 'rb')
        a(f's_lshl_b32 s4, s{sHG}, 13')
        a(f's_add_u32 s4, s4, {KB_OFF}')
        a('v_lshlrev_b32 v22, 4, v0')
        a('v_add_u32 v23, 4096, v22')
        a(f'buffer_load_dwordx4 v[36:39], v22, {S(sWS, 4)}, s4 offen sc1')
        kb[0] = a(f'buffer_load_dwordx4 v[40:43], v23, {S(sWS, 4)}, s4 offen sc1')
        a(f'v_add_u32 v22, {L_KB}, v22')
        for k in range(4):
            a(f'v_mov_b32 v{44 + k}, 0')
        a('ds_write_b128 v22, v[44:47] offset:8192')

    def kb_store():
        a.wait(kb[0])
        a('ds_write_b128 v22, v[36:39]')
        kb[1] = a('ds_write_b128 v22, v[40:43] offset:4096')

    def g_pub():
        stamp(a, 'ga')
        a.wait(gst)
        stamp(a, 'gb')
        flag_set(a, 10)

    def g_issue():
        fl['g'] = flag_issue(a, g2.vFL, g2.vFD)

    qorder = list(range(4, 20)) + list(range(4))

    def q_addr(n):
        s, t = divmod(n, 5)
        off = L_WQ + qorder[s] * 5120 + 8 * t
        b = off // 61440
        return vTR + b, off - b * 61440

    def q_boundary(nn):
        if nn == 12:
            a('s_barrier')
        if nn == 80:
            a.wait(wq[0])
            a('s_barrier')

    nop = lambda: None
    items = [nop] * 100
    QG = int(os.environ.get('QG', '35'))
    items[QG] = g_pub
    pos = 6
    for j in range(3):
        for it in g2.dma_items(j):
            items[pos] = it
            pos += 1
    items[40] = kb_load
    items[72] = kb_store
    items[80] = g_issue
    qkv_loop(100, 5, q_addr, lambda s: qorder[s], q_boundary, Hooks(items))
    a('s_barrier')
    stamp(a, 7)
    for j in range(3, G_P):
        Hooks(g2.dma_items(j)).flush()
    flag_check(a, fl['g'], g2.vFL, g2.vFD)
    stamp(a, 8)
    rec, ost = q_epilogue(a, g2.vF)
    side = Hooks(rec.items())
    sys.stderr.write(f'q epilogue pieces: {len(side.items)}\n')
    for j in range(G_PF - 1):
        for it in g2.frag_items(j):
            it()
            side.run(4)

    srd(a, sAUX, P_B2, S_ * 2)
    vOF, vXA, vBA = 20, 60, 61
    ot = {}

    def g2_pre(j):
        if j != 14:
            return []

        def f():
            stamp(a, 'oa')
            flag_check(a, fl['o'], 34, 35)
            stamp(a, 'ob')
            a(f's_mul_i32 s4, s{sHG}, 74')
            a(f's_mul_i32 s5, s{sW}, 5')
            a('s_add_u32 s4, s4, s5')
            a('s_add_u32 s4, s4, 54')
            a('s_mul_i32 s4, s4, 5120')
            a(f's_add_u32 s{sFS}, s4, {GF_OFF}')
        return [f]

    g2.pre_frag = g2_pre

    def o_items(u):
        def one(nt):
            def f():
                if u == 2:
                    a(f'v_lshlrev_b32 v33, 3, v{vL}')
                    a(f'v_sub_u32 v33, v{vOF + nt}, v33')
                    a(f'buffer_load_dwordx2 {V(XN(u * 4 + nt), 2)}, v33, {S(sWS, 4)}, s11 offen sc1')
                    ot[u] = a(f'buffer_load_dwordx2 {V(XN(u * 4 + nt) + 2, 2)}, v33, {S(sWS, 4)}, s11 offen offset:512 sc1')
                else:
                    ot[u] = a(f'buffer_load_dwordx4 {V(XN(u * 4 + nt), 4)}, v{vOF + nt}, {S(sWS, 4)}, s11 offen sc1')
                if nt == 3:
                    a('s_add_u32 s11, s11, 4096')
            return f
        return [one(nt) for nt in range(4)]

    JPUB = int(os.environ.get('JPUB', '5'))

    def g2_extra(j):
        it = []
        if j == JPUB:
            def pub():
                side.flush()
                a.wait(ost)
                flag_set(a, 13)
            it.append(pub)
        if j == 2:
            def prep():
                a(f's_lshl_b32 s4, s{sRB}, {5 + FSH}')
                a(f's_lshl_b32 s5, s{sW}, {3 + FSH}')
                a('s_add_u32 s4, s4, s5')
                a(f's_add_u32 s4, s4, {FO_OFF}')
                a(f'v_and_b32 v34, 7, v{vL}')
                a(f'v_lshl_add_u32 v34, v34, {FSH}, s4')
                a(f's_lshl_b32 s4, s{sHG}, 2')
                a(f's_add_u32 s4, s4, s{sW}')
                a(f's_lshl_b32 s4, s4, {FSH}')
                a(f's_add_u32 s4, s4, {FW_OFF}')
                a('v_mov_b32 v35, s4')
                a(f'v_cmp_gt_u32 vcc, 32, v{vL}')
                a('v_cndmask_b32 v34, v35, v34, vcc')
                for nt in range(4):
                    a(f's_xor_b32 s4, s{sW}, {nt}')
                    a('s_lshl_b32 s4, s4, 10')
                    a(f'v_add_u32 v{vOF + nt}, s4, v{g2.vF}')
                a(f's_mul_i32 s4, s{sRB}, 20')
                a(f's_mul_i32 s5, s{sW}, 5')
                a('s_add_u32 s4, s4, s5')
                a('s_lshl_b32 s4, s4, 12')
                a(f's_add_u32 s11, s4, {OF_OFF}')
                a(f'v_mul_u32_u24 v{vXA}, 1280, v{vTOK}')
                a(f'v_mul_u32_u24 v{vBA}, 40, v{vG}')
                a(f'v_add_u32 v{vXA}, v{vXA}, v{vBA}')
                a(f's_mul_i32 s4, s{sHG}, 160')
                a(f'v_add_u32 v{vXA}, s4, v{vXA}')
                a(f'v_lshlrev_b32 v{vBA}, 1, v{vTOK}')
            it.append(prep)
        if j == 8:
            def fo():
                fl['o'] = flag_issue(a, 34, 35)
            it.append(fo)
        if j >= 9:
            it += o_items(j - 9)
        return it

    g2.mainloop(g2_extra, side, int(os.environ.get('RATE_G', '3')), nfr=19)
    for u in range(5):
        j = 14 + u
        items = []
        if u == 0:
            def resid():
                a(f'buffer_load_ushort v48, v{vBA}, {S(sAUX, 4)}, 0 offen')
                for t in range(5):
                    bt['x'] = a(f'buffer_load_dwordx2 {V(36 + 2 * t, 2)}, v{vXA}, {S(sX, 4)}, 0 offen offset:{8 * t}')
            items.append(resid)
        a.wait(g2.ftok[j], ot[u])
        g2.mfmas(j, False, Hooks(items), Hooks(), 0, bop=lambda nt, u=u: V(XN(u * 4 + nt), 4))
    stamp(a, 9)
    g2.reduce(Hooks())
    a.wait(bt['x'])
    a('v_lshlrev_b32 v48, 16, v48')
    for t in range(5):
        for h in range(2):
            a(f'v_lshlrev_b32 v{T(t, 2 * h)}, 16, v{36 + 2 * t + h}')
            a(f'v_and_b32 v{T(t, 2 * h + 1)}, 0xffff0000, v{36 + 2 * t + h}')
            a(f'v_pk_add_f32 {V(R(t, 2 * h), 2)}, {V(R(t, 2 * h), 2)}, v[48:49] op_sel_hi:[1,0]')
            a(f'v_pk_add_f32 {V(R(t, 2 * h), 2)}, {V(R(t, 2 * h), 2)}, {V(T(t, 2 * h), 2)}')
        a(f'v_cvt_pk_bf16_f32 v{R(t, 0)}, v{R(t, 0)}, v{R(t, 1)}')
        a(f'v_cvt_pk_bf16_f32 v{R(t, 1)}, v{R(t, 2)}, v{R(t, 3)}')
        a(f'buffer_store_dwordx2 {V(R(t, 0), 2)}, v{vXA}, {S(sOUT, 4)}, 0 offen offset:{8 * t}')
    a(f's_or_b32 s4, s2, s{sW}')
    a('s_cmp_lg_u32 s4, 0')
    a('s_cbranch_scc1 L_noepoch')
    a(f's_mov_b32 s10, {EP_OFF}')
    flag_set(a, 10)
    a.label('L_noepoch')
    stamp_flush(a, 10)
    a.label('L_end')
    a('s_endpgm')
    a.raw('.section .rodata,"a"')
    a.raw(f'''.p2align 6
.amdhsa_kernel {K}
  .amdhsa_next_free_vgpr 512
  .amdhsa_next_free_sgpr 102
  .amdhsa_accum_offset 256
  .amdhsa_group_segment_fixed_size 0
  .amdhsa_kernarg_size 96
  .amdhsa_user_sgpr_count 2
  .amdhsa_user_sgpr_kernarg_segment_ptr 1
  .amdhsa_system_sgpr_workgroup_id_x 1
.end_amdhsa_kernel''')
    sys.stderr.write(f'maxv={a.maxv} maxa={a.maxa} maxs={a.maxs} nops={a.nops} lines={len(a.out)}\n')
    return a.text()


if __name__ == '__main__':
    out = sys.argv[1] if len(sys.argv) > 1 else os.path.join(os.path.dirname(__file__), '..', 'cdna_kernels', NAME + '.s')
    open(out, 'w').write(build())
```

```python
import sys, struct, os
sys.path.insert(0, os.path.dirname(__file__))
from asmdsl import Asm, Rec, V, A, S

NAME = 'parallel_sum__linear_kernel_hedgehog__mixer_token_mlp__prompt'
S_, D_, F_ = 2048, 640, 1728

HF_OFF = 0
HF_SZ = 8 * 64 * 5 * 1024
GF_OFF = HF_OFF + HF_SZ
GF_SZ = 8 * 74 * 5 * 1024
OF_OFF = GF_OFF + GF_SZ
OF_SZ = 32 * 20 * 4 * 1024
KV_OFF = OF_OFF + OF_SZ
KV_SZ = 32 * 32 * 6144
KB_OFF = KV_OFF + KV_SZ + 4096
KB_SZ = 32 * 2048
FL_OFF = KB_OFF + KB_SZ + 4096
FSH = int(os.environ.get('FSH', '6'))
FH_OFF = FL_OFF
FK_OFF = FH_OFF + (1024 << FSH)
FR_OFF = FK_OFF + (1024 << FSH)
FG_OFF = FR_OFF + (128 << FSH)
FO_OFF = FG_OFF + (1024 << FSH)
FW_OFF = FO_OFF + (1024 << FSH)
EP_OFF = FW_OFF + (128 << FSH)
WS_USED = EP_OFF + 512
STAMP_OFF = WS_USED
WS_USED += 8 * 256 * 64
STAMPS = bool(int(os.environ.get('STAMPS', '0')))
EXP = os.environ.get('EXP', '').split(',')
OOB = 0x40000000

P_X, P_WQKV, P_WPHI, P_WO, P_BX, P_W1, P_B1, P_W2, P_B2, P_OUT, P_DBG, P_WS = range(16, 40, 2)
LOG2E = 1.4426950408889634

sW = 3
sWS, sX, sWQ, sW1, sW2, sAUX, sOUT = 40, 44, 48, 52, 56, 60, 64
sHG, sRB, sHB, sROT, sKS, sT, sM0B, sTAG = 68, 69, 70, 71, 72, 73, 74, 75
sL, sNL = 76, 78
sBDB, sBCB, sFS, sGM0, sSPIN, sLIM = 80, 81, 82, 83, 84, 85
vL, vG, vI, vR, vC = 1, 2, 3, 4, 5
vTOK, vGR = 6, 7
DB = 64
XN = lambda s: DB + 8 * s
UP = lambda k: DB + 8 * k + 4
WPF = lambda t, ks: (80 + 8 * t + 4 * ks) if ks < 2 else (120 + 2 * t)

KV_SLOTS = 7
L_WPHI = KV_SLOTS * 20480
L_HS = L_WPHI + 4096
L_ZERO = L_HS + 64 * 208
L_STAGE = 106496
L_WQ = 61440
L_KB = 49152
L_KZ = L_KB + 8192
LDS_BYTES = 163840
G_P = 5
G_PF = 6


def kb_pos(f, t):
    if f < 32:
        return (f >> 4) * 512 + (t * 16 + (f & 15)) * 8 if t < 4 else 1024 + ((f >> 4) * 32 + (t - 4) * 16 + (f & 15)) * 8
    return 1536 + (t * 8 + f - 32) * 8


def fbits(x):
    return '0x%08x' % struct.unpack('<I', struct.pack('<f', x))[0]


def srd(a, dst, ptr, nbytes):
    a(f's_mov_b32 s{dst}, s{ptr}')
    a(f's_and_b32 s{dst + 1}, s{ptr + 1}, 0xffff')
    a(f's_mov_b32 s{dst + 2}, {nbytes}')
    a(f's_mov_b32 s{dst + 3}, 0x20000')


STAMP_NAMES = []
vST = 223


def stamp(a, name):
    if not STAMPS:
        return
    name = str(name)
    if name not in STAMP_NAMES:
        STAMP_NAMES.append(name)
    idx = STAMP_NAMES.index(name)
    a('s_memrealtime s[98:99]')
    a.wait_lg0()
    if idx < 3:
        a(f's_mov_b32 s{86 + idx}, s98')
    else:
        if idx == 3:
            a(f'v_mov_b32 v{vST}, 0')
            for k in range(3):
                a(f'v_writelane_b32 v{vST}, s{86 + k}, {k}')
        a(f'v_writelane_b32 v{vST}, s98, {idx}')


def stamp_flush(a, n):
    if not STAMPS:
        return
    a.wait_vm0()
    stamp(a, n)
    lab = a.newlabel('st')
    a(f's_cmp_lg_u32 s{sW}, {int(os.environ.get("STW", "0"))}')
    a(f's_cbranch_scc1 {lab}')
    a('s_lshl_b32 s4, s2, 8')
    a(f's_add_u32 s4, s4, {STAMP_OFF}')
    a(f'v_lshl_add_u32 v8, v{vL}, 2, s4')
    a(f'buffer_store_dword v{vST}, v8, {S(sWS, 4)}, 0 offen')
    a.label(lab)
    a.raw('; STAMPS ' + ' '.join(STAMP_NAMES))


def reduce_g(a, r, t):
    a(f'v_mov_b32 v{t}, v{r}')
    a(f'v_permlane32_swap_b32 v{r}, v{t}')
    a(f'v_add_f32 v{r}, v{r}, v{t}')
    a(f'v_mov_b32 v{t}, v{r}')
    a(f'v_permlane16_swap_b32 v{r}, v{t}')
    a(f'v_add_f32 v{r}, v{r}, v{t}')


def dma160_voffs(a, dst, stride, permute, tmp):
    t0, t2, t3 = tmp, tmp + 1, tmp + 2
    for q in range(5):
        d = dst + q
        a(f'v_add_u32 v{t0}, {q * 64}, v{vL}')
        a(f'v_mul_u32_u24 v{t2}, 6554, v{t0}')
        a(f'v_lshrrev_b32 v{t2}, 16, v{t2}')
        a(f'v_mul_u32_u24 v{t3}, 10, v{t2}')
        a(f'v_sub_u32 v{t0}, v{t0}, v{t3}')
        if permute:
            a(f'v_bfe_u32 v{t3}, v{t2}, 2, 2')
            a(f'v_lshlrev_b32 v{t3}, 3, v{t3}')
            a(f'v_and_b32 v{d}, 3, v{t2}')
            a(f'v_add_u32 v{t3}, v{t3}, v{d}')
            a(f'v_lshrrev_b32 v{t2}, 4, v{t2}')
            a(f'v_lshl_add_u32 v{t2}, v{t2}, 2, v{t3}')
        a(f'v_mul_u32_u24 v{t2}, {stride}, v{t2}')
        a(f'v_lshl_add_u32 v{d}, v{t0}, 4, v{t2}')
        if 0 < q < 4:
            a(f'v_subrev_u32 v{d}, {q * 1024}, v{d}')


def dma160(a, vo, ssrd, soff, m0_s, m0_add):
    a(f's_add_u32 m0, s{m0_s}, {m0_add}')
    for q in range(4):
        off = f' offset:{q * 1024}' if q else ''
        a(f'buffer_load_dwordx4 v{vo + q}, {S(ssrd, 4)}, s{soff} offen{off} lds')
    a(f's_add_u32 m0, s{m0_s}, {m0_add + 4096}')
    return a(f'buffer_load_dwordx4 v{vo + 4}, {S(ssrd, 4)}, s{soff} offen lds')


class Hooks:
    def __init__(self, items=()):
        self.items = list(items)

    def run(self, n=1):
        for _ in range(n):
            if self.items:
                self.items.pop(0)()

    def flush(self):
        self.run(len(self.items))


def softmax_pm(a, P, PH, EP, EN, tmp):
    p = [P[k // 4] + k % 4 for k in range(20)]
    ep = [EP[k // 4] + k % 4 for k in range(20)]
    en = [EN[k // 4] + k % 4 for k in range(20)]
    mx, mn, sp, sn = tmp, tmp + 2, tmp + 4, tmp + 6
    a(f'v_max3_f32 v{mx}, v{p[0]}, v{p[1]}, v{p[2]}')
    a(f'v_min3_f32 v{mn}, v{p[0]}, v{p[1]}, v{p[2]}')
    for k in range(3, 19, 2):
        a(f'v_max3_f32 v{mx}, v{mx}, v{p[k]}, v{p[k + 1]}')
        a(f'v_min3_f32 v{mn}, v{mn}, v{p[k]}, v{p[k + 1]}')
    a(f'v_max_f32 v{mx}, v{mx}, v{p[19]}')
    a(f'v_min_f32 v{mn}, v{mn}, v{p[19]}')
    a(f'v_mul_f32 v{mx}, s{sNL}, v{mx}')
    a(f'v_mul_f32 v{mn}, s{sL}, v{mn}')
    for k in range(0, 20, 2):
        a(f'v_pk_fma_f32 {V(ep[k], 2)}, {V(p[k], 2)}, {S(sL, 2)}, {V(mx, 2)} op_sel_hi:[1,0,0]')
        a(f'v_pk_fma_f32 {V(en[k], 2)}, {V(p[k], 2)}, {S(sNL, 2)}, {V(mn, 2)} op_sel_hi:[1,0,0]')
    for k in range(20):
        a(f'v_exp_f32 v{ep[k]}, v{ep[k]}')
        a(f'v_exp_f32 v{en[k]}, v{en[k]}')
    a(f'v_pk_add_f32 {V(sp, 2)}, {V(ep[0], 2)}, {V(ep[2], 2)}')
    a(f'v_pk_add_f32 {V(sn, 2)}, {V(en[0], 2)}, {V(en[2], 2)}')
    for k in range(4, 20, 2):
        a(f'v_pk_add_f32 {V(sp, 2)}, {V(sp, 2)}, {V(ep[k], 2)}')
        a(f'v_pk_add_f32 {V(sn, 2)}, {V(sn, 2)}, {V(en[k], 2)}')
    a(f'v_add_f32 v{sp}, v{sp}, v{sp + 1}')
    a(f'v_add_f32 v{sn}, v{sn}, v{sn + 1}')
    a(f'v_rcp_f32 v{sp}, v{sp}')
    a(f'v_rcp_f32 v{sn}, v{sn}')
    for k in range(0, 20, 2):
        a(f'v_pk_mul_f32 {V(ep[k], 2)}, {V(ep[k], 2)}, {V(sp, 2)} op_sel_hi:[1,0]')
        a(f'v_pk_mul_f32 {V(en[k], 2)}, {V(en[k], 2)}, {V(sn, 2)} op_sel_hi:[1,0]')
    allv = ep + en
    for k in range(20):
        a(f'v_cvt_pk_bf16_f32 v{PH[k // 4] + k % 4}, v{allv[2 * k]}, v{allv[2 * k + 1]}')


PK = [36, 40, 44]
PQ5 = [UP(k) for k in range(10, 15)]
EP5 = [UP(k) for k in range(0, 5)]
EN5 = [UP(k) for k in range(5, 10)]


def featmap(a):
    for k in range(10):
        t, j = divmod(2 * k, 4)
        a(f'v_cvt_pk_bf16_f32 v{PK[k // 4] + k % 4}, v{UP(t) + j}, v{UP(t) + j + 1}')
    for ks in range(3):
        for t in range(5):
            d = V(PQ5[t], 4)
            if ks < 2:
                a(f'v_mfma_f32_16x16x32_bf16 {d}, {A(WPF(t, ks), 4)}, {V(PK[ks], 4)}, {"0" if ks == 0 else d}')
            else:
                a(f'v_mfma_f32_16x16x16_bf16 {d}, {A(WPF(t, ks), 2)}, {V(PK[ks], 2)}, {d}')
    softmax_pm(a, PQ5, PQ5, EP5, EN5, 48)


def flag_set(a, s_off):
    a(f'v_lshl_add_u32 v62, v{vL}, 2, s{s_off}')
    a(f'v_mov_b32 v63, s{sTAG}')
    a(f's_mov_b64 exec, {hex((1 << (1 << (FSH - 2))) - 1)}')
    a(f'buffer_store_dword v63, v62, {S(sWS, 4)}, 0 offen sc1')
    a('s_mov_b64 exec, -1')


def flag_issue(a, vaddr, vdst):
    return a(f'buffer_load_dword v{vdst}, v{vaddr}, {S(sWS, 4)}, 0 offen sc1')


def flag_check(a, tok, vaddr, vdst):
    ok = a.newlabel('ok')
    lp = a.newlabel('poll')
    a.wait(tok)
    a(f'v_cmp_ne_u32 vcc, s{sTAG}, v{vdst}')
    a(f's_cbranch_vccz {ok}')
    a(f's_mov_b32 s{sSPIN}, 0')
    a.label(lp)
    a('s_sleep 1')
    a.raw(f'\tbuffer_load_dword v{vdst}, v{vaddr}, {S(sWS, 4)}, 0 offen sc1')
    a('s_waitcnt vmcnt(0)')
    a(f'v_cmp_ne_u32 vcc, s{sTAG}, v{vdst}')
    a(f's_cbranch_vccz {ok}')
    a(f's_add_u32 s{sSPIN}, s{sSPIN}, 1')
    a(f's_cmp_lt_u32 s{sSPIN}, 0x8000')
    a(f's_cbranch_scc1 {lp}')
    a.label(ok)


RQ = [UP(k) for k in range(15)] + [224 + 4 * k for k in range(5)]


class GGemm:
    def __init__(self, a, kind):
        self.a, self.kind = a, kind
        if kind == 'B':
            self.stride, self.srdm, self.n, self.fr_off, self.fr_steps = F_ * 2, sW1, 16, HF_OFF, 64
            self.sdb, self.scb = sBDB, sBCB
            self.slots = [0, 16384, 32768, 49152, 65536]
        else:
            self.stride, self.srdm, self.n, self.fr_off, self.fr_steps = S_ * 2, sW2, 14, GF_OFF, 74
            self.sdb, self.scb = sHG, sRB
            self.slots = [0, 16384, 32768, 65536, 81920]
        self.vD, self.vF, self.vT, self.vT2 = 8, 12, 14, UP(18)
        self.vFL, self.vFD = 18, 19
        self.dtok, self.ftok, self.ttok = {}, {}, {}
        self.ACC = lambda t, nt: (nt * 5 + t) * 4
        self.AF = lambda j, t: 132 + (j % G_PF) * 20 + 4 * t
        self.TF = lambda j, nt: 224 + (j % 2) * 16 + 4 * nt

    def setup(self):
        a, st = self.a, self.stride
        a(f'v_lshrrev_b32 v20, 3, v{vL}')
        a(f'v_mul_u32_u24 v20, {st}, v20')
        a(f'v_and_b32 v21, 7, v{vL}')
        a(f'v_lshlrev_b32 v22, 1, v{vG}')
        a('v_xor_b32 v21, v21, v22')
        a('v_lshl_add_u32 v20, v21, 4, v20')
        a(f's_lshl_b32 s4, s{self.scb}, 7')
        a(f's_mul_i32 s5, s{sW}, {self.n * 32 * st}')
        a('s_add_u32 s5, s5, s4')
        for q in range(4):
            a(f's_add_u32 s6, s5, {8 * q * st - 1024 * q}')
            a(f'v_add_u32 v{self.vD + q}, s6, v20')
        a(f's_mul_i32 s4, s{self.sdb}, {self.fr_steps}')
        a(f's_mul_i32 s5, s{sW}, {self.n}')
        a('s_add_u32 s4, s4, s5')
        a('s_mul_i32 s4, s4, 5120')
        a(f's_add_u32 s{sFS}, s4, {self.fr_off}')
        if self.kind == 'B':
            a(f'v_lshlrev_b32 v{self.vF}, 4, v{vL}')
            a(f'v_add_u32 v{self.vF + 1}, 4096, v{self.vF}')
            a(f's_lshl_b32 s{sGM0}, s{sW}, 12')
            a(f'v_bfe_u32 v21, v{vGR}, 1, 2')
            a(f'v_xor_b32 v21, s{sW}, v21')
            a(f'v_lshlrev_b32 v20, 7, v{vGR}')
            a(f'v_lshl_add_u32 v20, v{vC}, 3, v20')
            a(f'v_add_u32 v20, s{sGM0}, v20')
            for nt in range(4):
                a(f'v_xor_b32 v22, {nt}, v21')
                a(f'v_lshl_add_u32 v{self.vT + nt}, v22, 5, v20')
                a(f'v_add_u32 v{self.vT2 + nt}, 0x10000, v{self.vT + nt}')
            a(f's_lshl_b32 s4, s{self.sdb}, {7 + FSH}')
            a(f's_lshl_b32 s5, s{sW}, {5 + FSH}')
            a('s_add_u32 s4, s4, s5')
            a(f's_add_u32 s4, s4, {FH_OFF}')
            a(f'v_and_b32 v20, 31, v{vL}')
        else:
            a(f's_lshl_b32 s4, s{self.sdb}, {7 + FSH}')
            a(f's_mul_i32 s5, s{sW}, {28 << FSH}')
            a('s_add_u32 s4, s4, s5')
            a(f's_add_u32 s4, s4, {FG_OFF}')
            a(f's_mul_i32 s5, s{self.sdb}, {74 * 5120}')
            a(f's_add_u32 s{sLIM}, s5, {GF_OFF + 53 * 5120}')
            a(f's_cmp_eq_u32 s{sW}, 3')
            a('s_cselect_b32 s5, 23, 27')
            a(f'v_min_u32 v20, s5, v{vL}')
        a(f'v_lshl_add_u32 v{self.vFL}, v20, {FSH}, s4')

    def dma_items(self, j):
        a = self.a

        def one(q):
            def f():
                if q == 0:
                    a(f's_add_u32 m0, s{sGM0}, {self.slots[j % G_P]}')
                off = f' offset:{q * 1024}' if q else ''
                self.dtok[j] = a(f'buffer_load_dwordx4 v{self.vD + q}, {S(self.srdm, 4)}, 0 offen{off} lds')
                a(f'v_add_u32 v{self.vD + q}, {32 * self.stride}, v{self.vD + q}')
            return f
        return [one(q) for q in range(4)]

    def frag_items(self, j):
        a = self.a

        def one(t):
            def f():
                vo, off = (self.vF, t * 1024) if t < 4 else (self.vF + 1, 0)
                offs = f' offset:{off}' if off else ''
                self.ftok[j] = a(f'buffer_load_dwordx4 {A(self.AF(j, t), 4)}, v{vo}, {S(sWS, 4)}, s{sFS} offen{offs}{"" if "nosc1" in EXP else " sc1"}')
                if t == 4:
                    a(f's_add_u32 s{sFS}, s{sFS}, 5120')
                    if self.kind == 'G2' and j < 14:
                        a(f's_min_u32 s{sFS}, s{sFS}, s{sLIM}')
            return f
        return [one(t) for t in range(5)]

    def tr_items(self, j):
        a = self.a

        def one(nt):
            def f():
                off = self.slots[j % G_P]
                base = self.vT
                if off >= 65536:
                    off -= 65536
                    base = self.vT2
                a(f'ds_read_b64_tr_b16 {V(self.TF(j, nt), 2)}, v{base + nt} offset:{off}')
                self.ttok[j] = a(f'ds_read_b64_tr_b16 {V(self.TF(j, nt) + 2, 2)}, v{base + nt} offset:{off + 2048}')
            return f
        return [one(nt) for nt in range(4)]

    def mfmas(self, j, first, hk, side, rate, bop=None):
        a = self.a
        k = 0
        for nt in range(4):
            for t in range(5):
                acc = A(self.ACC(t, nt), 4)
                c = '0' if first else acc
                fr = A(self.AF(j, t), 4)
                tf = V(self.TF(j, nt), 4) if bop is None else bop(nt)
                if self.kind == 'B':
                    a(f'v_mfma_f32_16x16x32_bf16 {acc}, {tf}, {fr}, {c}')
                else:
                    a(f'v_mfma_f32_16x16x32_bf16 {acc}, {fr}, {tf}, {c}')
                k += 1
                if k % 4 != 0:
                    hk.run()
                side.run(rate)
        hk.flush()

    def mainloop(self, extra, side, rate, nfr=None):
        a, n = self.a, self.n
        nfr = nfr or n
        a.wait(self.dtok[0])
        Hooks(self.tr_items(0)).flush()
        for j in range(n):
            items = []
            if j + 1 < n:
                a.wait(self.dtok[j + 1])
            a.wait(self.ftok[j], self.ttok[j])
            if j % 2 == 0:
                stamp(a, f'{self.kind}{j}')
            if j + 1 < n:
                items += self.tr_items(j + 1)
            if j + G_P < n:
                items += self.dma_items(j + G_P)
            if j + G_PF - 1 < nfr:
                items += self.pre_frag(j + G_PF - 1) + self.frag_items(j + G_PF - 1)
            items += extra(j)
            self.mfmas(j, j == 0, Hooks(items), side, rate)

    def pre_frag(self, j):
        return []

    def reduce(self, hk):
        a = self.a
        a('s_barrier')
        for nt in range(1, 4):
            a(f's_xor_b32 s4, s{sW}, {nt}')
            a('s_mul_i32 s4, s4, 15360')
            a(f's_add_u32 s4, s4, {(nt - 1) * 5120}')
            a(f'v_add_u32 v20, s4, v{self.vF}')
            for t in range(5):
                a(f'ds_write_b128 v20, {A(self.ACC(t, nt), 4)} offset:{t * 1024}')
            hk.run()
        for t in range(5):
            for j in range(4):
                a(f'v_accvgpr_read_b32 v{RQ[t] + j}, a{self.ACC(t, 0) + j}')
        a(f's_mul_i32 s4, s{sW}, 15360')
        a(f'v_add_u32 v20, s4, v{self.vF}')
        a.wait_lg0()
        a('s_barrier')
        rtok = {}
        for nt in range(1, 4):
            for t in range(5):
                rtok[(nt, t)] = a(f'ds_read_b128 {V(RQ[nt * 5 + t], 4)}, v20 offset:{(nt - 1) * 5120 + t * 1024}')
        hk.flush()
        for nt in range(1, 4):
            for t in range(5):
                a.wait(rtok[(nt, t)])
                for h in range(2):
                    d = V(RQ[t] + 2 * h, 2)
                    a(f'v_pk_add_f32 {d}, {d}, {V(RQ[nt * 5 + t] + 2 * h, 2)}')


def kv_epilogue(a):
    r = Rec(a)
    VP = [UP(15), UP(16), UP(17)]
    for k in range(10):
        t, j = divmod(2 * k, 4)
        r(f'v_cvt_pk_bf16_f32 v{VP[k // 4] + k % 4}, v{UP(5 + t) + j}, v{UP(5 + t) + j + 1}')
    r(f'v_mov_b32 v{VP[2] + 2}, 0x3f803f80')
    r(f'v_mov_b32 v{VP[2] + 3}, 0x3f803f80')
    featmap(r)
    vSA, vKA, vKO = 32, 33, 56
    r(f's_lshl_b32 s12, s{sW}, 4')
    r(f'v_lshl_add_u32 v{vSA}, v{vG}, 6, v{vI}')
    r(f'v_add_u32 v{vSA}, s12, v{vSA}')
    r(f'v_mul_u32_u24 v{vSA}, 144, v{vSA}')
    r(f'v_add_u32 v{vSA}, {L_STAGE}, v{vSA}')
    r('s_barrier')
    for c in range(5):
        r(f'ds_write_b128 v{vSA}, {V(PQ5[c], 4)} offset:{16 * c}')
    for c in range(3):
        wt = r(f'ds_write_b128 v{vSA}, {V(VP[c], 4)} offset:{80 + 16 * c}')
    r(f's_mul_i32 s12, s{sW}, {64 * 144}')
    r(f's_add_u32 s12, s12, {L_STAGE}')
    r(f'v_mul_u32_u24 v{vKA}, 144, v{vGR}')
    r(f'v_lshl_add_u32 v{vKA}, v{vC}, 3, v{vKA}')
    r(f'v_add_u32 v{vKA}, s12, v{vKA}')
    r(f's_lshl_b32 s12, s{sHG}, 2')
    r(f's_add_u32 s12, s12, s{sW}')
    r('s_lshl_b32 s12, s12, 5')
    r(f's_add_u32 s13, s12, s{sRB}')
    r('s_mul_i32 s12, s13, 6144')
    r(f's_add_u32 s12, s12, {KV_OFF}')
    r(f'v_lshl_add_u32 v{vKO}, v{vL}, 4, s12')
    r('s_movk_i32 s12, 0x1000')
    r(f'v_mov_b32 v34, {OOB}')
    with r.atomic():
        r(f'v_cmp_gt_u32 vcc, 8, v{vI}')
        r(f'v_cndmask_b32 v{vKO + 1}, v34, v{vKO}, vcc')
    with r.atomic():
        r(f'v_cmp_gt_u32 vcc, 2, v{vG}')
        r(f'v_cndmask_b32 v{vKO + 2}, v34, v{vKO}, vcc')
        r(f'v_cndmask_b32 v{vKO + 3}, v34, v{vKO + 1}, vcc')
    r(f's_lshl_b32 s13, s13, {FSH}')
    r(f's_add_u32 s13, s13, {FK_OFF}')
    with r.atomic():
        r.wait(wt)
        r('s_barrier')
    ktok = {}
    OPQ = lambda kk, x: UP(kk * 5 + x)
    for kk in range(2):
        for x in range(5):
            col = 32 * x if x < 3 else 80 + 32 * (x - 3)
            r(f'ds_read_b64_tr_b16 {V(OPQ(kk, x), 2)}, v{vKA} offset:{kk * 32 * 144 + col}')
            ktok[kk] = r(f'ds_read_b64_tr_b16 {V(OPQ(kk, x) + 2, 2)}, v{vKA} offset:{kk * 32 * 144 + 16 * 144 + col}')
    KVA = [UP(10 + k) for k in range(6)]
    for kk in range(2):
        r.wait(ktok[kk])
        for ft in range(3):
            for et in range(2):
                d = V(KVA[ft * 2 + et], 4)
                r(f'v_mfma_f32_16x16x32_bf16 {d}, {V(OPQ(kk, 3 + et), 4)}, {V(OPQ(kk, ft), 4)}, {"0" if kk == 0 else d}')
    r('s_barrier')
    for ft in range(3):
        for et in range(2):
            vo = vKO + (1 if ft == 2 else 0) + (2 if et == 1 else 0)
            so = 's12' if ft == 2 else '0'
            kst = r(f'buffer_store_dwordx4 {V(KVA[ft * 2 + et], 4)}, v{vo}, {S(sWS, 4)}, {so} offen offset:{(ft % 2) * 2048 + et * 1024} sc1')
    return r, kst


def q_epilogue(a, vF):
    r = Rec(a)
    r(f'v_lshlrev_b32 v32, 11, v{vG}')
    r(f'v_lshl_add_u32 v32, v{vR}, 3, v32')
    r(f'v_add_u32 v32, {L_KB}, v32')
    r(f'v_mov_b32 v33, {L_KZ}')
    with r.atomic():
        r(f'v_cmp_eq_u32 vcc, v{vG}, v{vC}')
        r('v_cndmask_b32 v32, v33, v32, vcc')
    featmap(r)
    OA = [UP(k) for k in range(6)]
    KF = lambda ks, t: XN((ks % 3) * 6 + t)
    otok = {}

    def o_read(ks):
        for t in range(6):
            r(f'ds_read_b64_tr_b16 {V(KF(ks, t), 2)}, v32 offset:{kb_pos(8 * ks, t)}')
            otok[ks] = r(f'ds_read_b64_tr_b16 {V(KF(ks, t) + 2, 2)}, v32 offset:{kb_pos(8 * ks + 4, t)}')

    o_read(0)
    o_read(1)
    for ks in range(5):
        r.wait(otok[ks])
        for t in range(6):
            d = V(OA[t], 4)
            r(f'v_mfma_f32_16x16x32_bf16 {d}, {V(KF(ks, t), 4)}, {V(PQ5[ks], 4)}, {"0" if ks == 0 else d}')
        if ks + 2 < 5:
            o_read(ks + 2)
    r(f's_lshr_b32 s12, s{sHG}, 1')
    r('s_mul_i32 s12, s12, 5')
    r(f's_mul_i32 s13, s{sRB}, 20')
    r('s_add_u32 s12, s12, s13')
    r('s_lshl_b32 s12, s12, 2')
    r(f's_add_u32 s12, s12, s{sW}')
    r('s_lshl_b32 s12, s12, 10')
    r(f's_add_u32 s12, s12, {OF_OFF}')
    r(f's_and_b32 s13, s{sHG}, 1')
    r(f's_mul_i32 s14, s13, {3 * 4096}')
    r('s_add_u32 s14, s14, s12')
    r('s_lshl_b32 s13, s13, 9')
    r('s_add_u32 s12, s12, s13')
    r(f's_add_u32 s12, s12, {2 * 4096}')
    r(f'v_lshlrev_b32 v33, 3, v{vL}')
    r(f'v_add_f32 v{OA[5]}, {fbits(1e-6)}, v{OA[5]}')
    r(f'v_rcp_f32 v{OA[5]}, v{OA[5]}')
    for t in range(5):
        for h in range(2):
            r(f'v_pk_mul_f32 {V(OA[t] + 2 * h, 2)}, {V(OA[t] + 2 * h, 2)}, {V(OA[5], 2)} op_sel_hi:[1,0]')
    for k in range(10):
        t, j = divmod(2 * k, 4)
        r(f'v_cvt_pk_bf16_f32 v{PK[k // 4] + k % 4}, v{OA[t] + j}, v{OA[t] + j + 1}')
    r(f'buffer_store_dwordx4 {V(PK[0], 4)}, v{vF}, {S(sWS, 4)}, s14 offen sc1')
    r(f'buffer_store_dwordx4 {V(PK[1], 4)}, v{vF + 1}, {S(sWS, 4)}, s14 offen sc1')
    ost = r(f'buffer_store_dwordx2 {V(PK[2], 2)}, v33, {S(sWS, 4)}, s12 offen sc1')
    r(f's_lshl_b32 s13, s{sRB}, 3')
    r(f's_add_u32 s13, s13, s{sHG}')
    r('s_lshl_b32 s13, s13, 2')
    r(f's_add_u32 s13, s13, s{sW}')
    r(f's_lshl_b32 s13, s13, {FSH}')
    r(f's_add_u32 s13, s13, {FO_OFF}')
    return r, ost


def build():
    a = Asm()
    hdr = open(os.path.join(os.path.dirname(__file__), '..', 'cdna_kernels', NAME + '.s.ref')).read().split('\n')
    for line in hdr:
        if line.startswith(';') and '@launch' not in line:
            a.raw(line)
    a.raw(f'; @launch grid=(256,1,1) block=(256,1,1) lds={LDS_BYTES}')
    a.raw('.amdgcn_target "amdgcn-amd-amdhsa--gfx950"')
    a.raw('.text')
    K = NAME + '_kernel'
    a.raw(f'.globl {K}')
    a.raw('.p2align 8')
    a.raw(f'.type {K},@function')
    a.raw(f'{K}:')
    a('s_cmp_ge_u32 s2, 256')
    a('s_cbranch_scc1 L_end')
    a('s_load_dwordx16 s[16:31], s[0:1], 0')
    a('s_load_dwordx8 s[32:39], s[0:1], 64')
    a(f'v_and_b32 v{vL}, 63, v0')
    a('v_lshrrev_b32 v6, 6, v0')
    a(f'v_readfirstlane_b32 s{sW}, v6')
    a(f'v_lshrrev_b32 v{vG}, 4, v{vL}')
    a(f'v_and_b32 v{vI}, 15, v{vL}')
    a(f'v_lshrrev_b32 v{vR}, 2, v{vI}')
    a(f'v_and_b32 v{vC}, 3, v{vL}')
    a(f'v_lshl_add_u32 v{vGR}, v{vG}, 2, v{vR}')
    a('s_and_b32 s4, s2, 7')
    a('s_lshr_b32 s5, s2, 3')
    a('s_and_b32 s6, s4, 1')
    a('s_lshl_b32 s6, s6, 2')
    a('s_and_b32 s7, s5, 3')
    a(f's_add_u32 s{sHG}, s6, s7')
    a('s_lshr_b32 s6, s4, 1')
    a('s_lshl_b32 s6, s6, 3')
    a('s_lshr_b32 s7, s5, 2')
    a(f's_add_u32 s{sRB}, s6, s7')
    a('s_min_u32 s5, s5, 26')
    a('s_mul_i32 s6, s4, 27')
    a('s_add_u32 s6, s6, s5')
    a('s_cmp_ge_u32 s6, 108')
    a('s_cselect_b32 s7, 108, 0')
    a('s_cselect_b32 s8, 4, 0')
    a('s_sub_u32 s6, s6, s7')
    a(f's_lshr_b32 s{sBCB}, s6, 2')
    a('s_and_b32 s6, s6, 3')
    a(f's_add_u32 s{sBDB}, s6, s8')
    a(f's_add_u32 s{sHB}, s{sHG}, s{sRB}')
    a(f's_and_b32 s{sHB}, s{sHB}, 7')
    a(f's_mul_i32 s{sROT}, s{sHB}, 5')
    a(f's_lshr_b32 s{sROT}, s{sROT}, 1')
    a(f's_lshl_b32 s4, s{sRB}, 6')
    a(f's_lshl_b32 s5, s{sW}, 4')
    a('s_add_u32 s4, s4, s5')
    a(f'v_add_u32 v{vTOK}, s4, v{vI}')
    vXO = 8
    a(f'v_mul_u32_u24 v{vXO}, 1280, v{vTOK}')
    a(f'v_lshl_add_u32 v{vXO}, v{vG}, 4, v{vXO}')
    a('s_waitcnt lgkmcnt(0)')
    stamp(a, 0)
    srd(a, sX, P_X, S_ * D_ * 2)
    a(f's_mov_b32 s{sKS}, s{sROT}')
    xtok = []
    for s in range(20):
        a(f's_lshl_b32 s{sT}, s{sKS}, 6')
        xtok.append(a(f'buffer_load_dwordx4 {V(UP(s), 4)}, v{vXO}, {S(sX, 4)}, s{sT} offen'))
        a(f's_add_u32 s{sKS}, s{sKS}, 1')
        a(f's_cmp_eq_u32 s{sKS}, 20')
        a(f's_cselect_b32 s{sKS}, 0, s{sKS}')
    if 'nocpf' not in EXP:
        a('s_getpc_b64 s[6:7]')
        a.raw('L_pc:')
        a(f's_mov_b32 s{sAUX}, s6')
        a(f's_and_b32 s{sAUX + 1}, s7, 0xffff')
        a(f's_mov_b32 s{sAUX + 2}, L_end - L_pc')
        a(f's_mov_b32 s{sAUX + 3}, 0x20000')
        a('s_lshr_b32 s6, s2, 3')
        a('s_lshl_b32 s6, s6, 2')
        a(f's_add_u32 s6, s6, s{sW}')
        a('s_lshl_b32 s6, s6, 13')
        a(f'v_lshl_add_u32 v60, v{vL}, 7, s6')
        a(f'buffer_load_dword v61, v60, {S(sAUX, 4)}, 0 offen')
    a(f's_add_u32 s4, s{P_WS}, {EP_OFF}')
    a(f's_addc_u32 s5, s{P_WS + 1}, 0')
    a(f's_load_dword s{sTAG}, s[4:5], 0')
    srd(a, sWQ, P_WQKV, D_ * 3 * D_ * 2)
    srd(a, sWS, P_WS, WS_USED)
    srd(a, sW1, P_W1, S_ * F_ * 2)
    srd(a, sW2, P_W2, F_ * S_ * 2)
    srd(a, sAUX, P_WPHI, 32 * 800)
    srd(a, sOUT, P_OUT, S_ * D_ * 2)
    vWO = 24
    dma160_voffs(a, vWO, 3840, True, 9)
    a(f's_mul_i32 s6, s{sHG}, 160')
    for q in range(5):
        a(f'v_add_u32 v{vWO + q}, s6, v{vWO + q}')
    a(f's_mul_i32 s{sM0B}, s{sW}, 5120')
    a(f's_lshr_b32 s6, s{sW}, 1')
    a(f's_add_u32 s{sKS}, s{sROT}, s6')
    a(f's_and_b32 s9, s{sW}, 1')
    a('s_add_u32 s9, s9, 1')
    a('s_mul_i32 s9, s9, 1280')
    slot_of = lambda d: KV_SLOTS - 1 - (d % KV_SLOTS)
    wtok = {}

    def issue_w(d):
        a(f's_mul_i32 s{sT}, s{sKS}, {32 * 3840}')
        a(f's_add_u32 s{sT}, s{sT}, s9')
        wtok[d] = dma160(a, vWO, sWQ, sT, sM0B, slot_of(d) * 20480)
        a(f's_add_u32 s{sKS}, s{sKS}, 2')
        a(f's_sub_u32 s{sT}, s{sKS}, 20')
        a(f's_min_u32 s{sKS}, s{sKS}, s{sT}')

    a(f's_mul_i32 s6, s{sHG}, 3200')
    a(f's_lshl_b32 s7, s{sW}, 10')
    a('s_add_u32 s6, s6, s7')
    a(f'v_lshl_add_u32 v9, v{vL}, 4, s6')
    a(f's_add_u32 m0, s7, {L_WPHI}')
    a(f'buffer_load_dwordx4 v9, {S(sAUX, 4)}, 0 offen lds')
    NUP = int(os.environ.get('NUP', '2'))
    for d in range(NUP):
        issue_w(d)

    def prefetch():
        a(f's_and_b32 s4, s{sBDB}, 3')
        a('s_lshl_b32 s4, s4, 2')
        a(f's_add_u32 s4, s4, s{sW}')
        a(f's_mul_i32 s4, s4, {128 * F_ * 2}')
        a(f's_lshl_b32 s5, s{sBCB}, 7')
        a('s_add_u32 s4, s4, s5')
        a(f'v_mul_u32_u24 v60, {F_ * 2}, v{vL}')
        a('v_add_u32 v60, s4, v60')
        a(f'buffer_load_dword v61, v60, {S(sW1, 4)}, 0 offen sc1')
        a(f'v_add_u32 v60, {64 * F_ * 2}, v60')
        a(f'buffer_load_dword v61, v60, {S(sW1, 4)}, 0 offen sc1')

    def prefetch2():
        a('s_lshr_b32 s4, s2, 3')
        a('s_lshl_b32 s4, s4, 2')
        a(f's_add_u32 s4, s4, s{sW}')
        a('s_and_b32 s6, s2, 1')
        a(f's_mul_i32 s5, s4, {5 * 3840}')
        a('s_mul_i32 s7, s6, 640')
        a('s_add_u32 s5, s5, s7')
        a(f'v_lshrrev_b32 v20, 3, v{vL}')
        a(f'v_and_b32 v21, 7, v{vL}')
        a('v_min_u32 v22, 4, v20')
        a('v_mul_u32_u24 v22, 3840, v22')
        a('v_min_u32 v60, 4, v21')
        a('v_lshl_add_u32 v60, v60, 7, v22')
        a('v_add_u32 v60, s5, v60')
        a(f'buffer_load_dword v61, v60, {S(sWQ, 4)}, 0 offen sc1')
        a('s_mul_i32 s5, s4, 7')
        a('s_mul_i32 s7, s6, 864')
        a('s_add_u32 s5, s5, s7')
        a('s_lshl_b32 s5, s5, 12')
        a('s_and_b32 s7, s2, 6')
        a('s_lshl_b32 s7, s7, 9')
        a('s_add_u32 s5, s5, s7')
        a('v_min_u32 v22, 6, v20')
        a('v_lshlrev_b32 v22, 12, v22')
        a('v_lshl_add_u32 v60, v21, 7, v22')
        a('v_add_u32 v60, s5, v60')
        a(f'buffer_load_dword v61, v60, {S(sW2, 4)}, 0 offen sc1')

    PFAT = os.environ.get('PFAT', 'ln')
    hk = Hooks([(lambda d=d: issue_w(d)) for d in range(NUP, KV_SLOTS)] + ([prefetch] if PFAT == 'ln' else []))
    if PFAT == 'pre':
        prefetch()
    a('s_waitcnt lgkmcnt(0)')
    a(f's_add_u32 s{sTAG}, s{sTAG}, 1')
    for k in range(4):
        a(f'v_mov_b32 v{12 + k}, 0')
    a(f'v_lshlrev_b32 v16, 4, v{vL}')
    a(f'v_add_u32 v16, {L_ZERO}, v16')
    a('ds_write_b128 v16, v[12:15]')
    a(f's_mov_b32 s{sL}, {fbits(LOG2E)}')
    a(f's_mov_b32 s{sL + 1}, {fbits(LOG2E)}')
    a(f's_mov_b32 s{sNL}, {fbits(-LOG2E)}')
    a(f's_mov_b32 s{sNL + 1}, {fbits(-LOG2E)}')
    vTR = 29
    a(f'v_mul_u32_u24 v{vTR}, 160, v{vGR}')
    a(f'v_mul_u32_u24 v9, 40, v{vC}')
    a(f'v_add_u32 v{vTR}, v{vTR}, v9')
    a(f'v_add_u32 v{vTR + 1}, 61440, v{vTR}')
    a(f'v_add_u32 v{vTR + 2}, {2 * 61440}, v{vTR}')
    vHA = 32
    a(f's_lshl_b32 s4, s{sW}, 4')
    a(f'v_add_u32 v{vHA}, s4, v{vI}')
    a(f'v_mul_u32_u24 v{vHA}, 208, v{vHA}')
    a(f'v_lshl_add_u32 v{vHA}, v{vG}, 4, v{vHA}')
    a(f'v_add_u32 v{vHA}, {L_HS}, v{vHA}')

    vONE, vS, vRS, vNB, vR2 = 10, 12, 16, 18, 20
    a(f'v_mov_b32 v{vONE}, 0x3f803f80')
    for s in range(20):
        a.wait(xtok[s])
        for k in range(4):
            a(f'v_dot2c_f32_bf16 v{vS + (k & 1)}, v{UP(s) + k}, v{vONE}')
            a(f'v_dot2c_f32_bf16 v{vS + 2 + (k & 1)}, v{UP(s) + k}, v{UP(s) + k}')
    stamp(a, 1)
    a(f'v_add_f32 v{vS}, v{vS}, v{vS + 1}')
    a(f'v_add_f32 v{vS + 2}, v{vS + 2}, v{vS + 3}')
    reduce_g(a, vS, vS + 1)
    reduce_g(a, vS + 2, vS + 3)
    a(f'v_mul_f32 v{vS}, {fbits(1.0 / 640)}, v{vS}')
    a(f'v_mul_f32 v{vS + 2}, {fbits(1.0 / 640)}, v{vS + 2}')
    a(f'v_fma_f32 v{vS + 2}, -v{vS}, v{vS}, v{vS + 2}')
    a(f'v_max_f32 v{vS + 2}, 0, v{vS + 2}')
    a(f'v_add_f32 v{vS + 1}, {fbits(1e-5)}, v{vS + 2}')
    a(f'v_rsq_f32 v{vRS}, v{vS + 1}')
    a(f'v_mul_f32 v{vNB}, v{vS}, v{vRS}')
    a(f'v_sub_f32 v{vNB}, 0, v{vNB}')
    a(f'v_mul_f32 v{vS + 1}, v{vRS}, v{vRS}')
    a(f'v_mov_b32 v{vS + 3}, {fbits(1e-5)}')
    a(f'v_fmac_f32 v{vS + 3}, v{vS + 1}, v{vS + 2}')
    a(f'v_rsq_f32 v{vR2}, v{vS + 3}')
    for s in range(20):
        b = DB + 8 * s
        for k in range(4):
            a(f'v_lshlrev_b32 v{b + 2 * k}, 16, v{b + 4 + k}')
            a(f'v_and_b32 v{b + 2 * k + 1}, 0xffff0000, v{b + 4 + k}')
        for k in range(4):
            a(f'v_pk_fma_f32 {V(b + 2 * k, 2)}, {V(b + 2 * k, 2)}, {V(vRS, 2)}, {V(vNB, 2)} op_sel_hi:[1,0,0]')
        if s < 3:
            for k in range(4):
                a(f'v_pk_mul_f32 {V(36 + 2 * k, 2)}, {V(b + 2 * k, 2)}, {V(vR2, 2)} op_sel_hi:[1,0]')
            for k in range(4):
                a(f'v_cvt_pk_bf16_f32 v{44 + 4 * s + k}, v{36 + 2 * k}, v{36 + 2 * k + 1}')
            a(f'ds_write_b128 v{vHA}, {V(44 + 4 * s, 4)} offset:{64 * s}')
        for k in range(4):
            a(f'v_cvt_pk_bf16_f32 v{b + k}, v{b + 2 * k}, v{b + 2 * k + 1}')
        if s % 4 == 1:
            hk.run()
    hk.flush()
    stamp(a, 2)
    a.wait(wtok[0])
    a.wait_lg0()
    a('s_barrier')
    vHR, vHO = 32, 33
    a(f'v_mul_u32_u24 v{vHR}, 208, v{vGR}')
    a(f'v_add_u32 v{vHR}, v{vHR}, v9')
    a(f's_and_b32 s4, s{sHB}, 1')
    a('s_lshl_b32 s4, s4, 5')
    a(f's_add_u32 s4, s4, {L_HS}')
    a(f'v_add_u32 v{vHR}, s4, v{vHR}')
    a(f's_lshl_b32 s4, s{sHB}, 6')
    a(f's_lshl_b32 s5, s{sRB}, 1')
    a('s_add_u32 s4, s4, s5')
    a('s_mul_i32 s4, s4, 5120')
    a(f's_add_u32 s8, s4, {HF_OFF}')
    htok = []
    for m in range(3):
        a(f's_add_u32 s4, s{sW}, {4 * m}')
        a('s_min_u32 s5, s4, 9')
        a('s_cmp_ge_u32 s5, 5')
        a(f's_cselect_b32 s6, {32 * 208 - 40}, 0')
        a('s_lshl_b32 s5, s5, 3')
        a('s_add_u32 s5, s5, s6')
        a(f'v_add_u32 v8, s5, v{vHR}')
        a(f'ds_read_b64_tr_b16 {V(36 + 4 * m, 2)}, v8')
        htok.append(a(f'ds_read_b64_tr_b16 {V(38 + 4 * m, 2)}, v8 offset:{16 * 208}'))
        a('s_lshl_b32 s5, s4, 10')
        a('s_add_u32 s5, s5, s8')
        a('s_cmp_ge_u32 s4, 10')
        a(f's_cselect_b32 s5, {OOB}, s5')
        a(f'v_lshl_add_u32 v{vHO + m}, v{vL}, 4, s5')
    for m in range(3):
        a.wait(htok[m])
        hst = a(f'buffer_store_dwordx4 {V(36 + 4 * m, 4)}, v{vHO + m}, {S(sWS, 4)}, 0 offen sc1')
    stamp(a, 3)

    def wphi_frags():
        a(f'v_mul_u32_u24 v20, 800, v{vG}')
        a(f'v_mul_u32_u24 v21, 40, v{vR}')
        a('v_add_u32 v20, v20, v21')
        a(f'v_add_u32 v20, {L_WPHI}, v20')
        a(f'v_mov_b32 v21, {L_ZERO}')
        a(f'v_cmp_eq_u32 vcc, v{vG}, v{vC}')
        a('v_cndmask_b32 v20, v21, v20, vcc')
        for t in range(5):
            for d4 in range(5):
                a(f'ds_read_b64_tr_b16 {A(WPF(t, d4 // 2) + 2 * (d4 % 2), 2)}, v20 offset:{4 * d4 * 40 + 8 * t}')

    gB = GGemm(a, 'B')
    WIN = 7
    fl = {}

    def qkv_loop(NF, per, addr, xstep, boundary, hk):
        ftok = {}

        def read_frag(n):
            base, off = addr(n)
            r = (n % 8) * 4
            a(f'ds_read_b64_tr_b16 {A(r, 2)}, v{base} offset:{off}')
            ftok[n] = a(f'ds_read_b64_tr_b16 {A(r + 2, 2)}, v{base} offset:{off + 2560}')

        for n in range(WIN):
            read_frag(n)
        for n in range(NF):
            nn = n + WIN
            if nn < NF:
                boundary(nn)
                read_frag(nn)
            s, k = divmod(n, per)
            if n % 2 == 0:
                a.wait(ftok[min(n + 1, NF - 1)])
            c = '0' if s == 0 else V(UP(k), 4)
            a(f'v_mfma_f32_16x16x32_bf16 {V(UP(k), 4)}, {A((n % 8) * 4, 4)}, {V(XN(xstep(s)), 4)}, {c}')
            hk.run()
        hk.flush()

    def kv_addr(n):
        s, k = divmod(n, 10)
        sec, t = divmod(k, 5)
        slot = slot_of(s // 2)
        return vTR + slot // 3, (slot % 3) * 20480 + (s % 2) * 10240 + sec * 5120 + 8 * t

    hk = Hooks()

    def kv_boundary(nn):
        if nn % 20 == 0:
            d = nn // 20
            stamp(a, f'kv{d}a')
            a.wait(wtok[d])
            a('s_barrier')
            stamp(a, f'kv{d}b')
            if d >= 2 and d - 2 + KV_SLOTS < 10:
                issue_w(d - 2 + KV_SLOTS)
            if d == int(os.environ.get('HPUB', '4')):
                a.wait(hst)
                a(f's_lshl_b32 s4, s{sHB}, 5')
                a(f's_add_u32 s4, s4, s{sRB}')
                a('s_lshl_b32 s4, s4, 2')
                a(f's_add_u32 s4, s4, s{sW}')
                a(f's_lshl_b32 s4, s4, {FSH}')
                a(f's_add_u32 s4, s4, {FH_OFF}')
                flag_set(a, 4)
                stamp(a, 'hpub')
            if PFAT == f'd{d}':
                prefetch()
            if d == 5:
                if 'nopf2' not in EXP:
                    prefetch2()
                wphi_frags()
            if d == 6:
                gB.setup()
            if d == 8:
                fl['h'] = flag_issue(a, gB.vFL, gB.vFD)
                for j in range(G_P):
                    hk.items += gB.dma_items(j)
            if d == 9:
                hk.items.append(lambda: (flag_check(a, fl['h'], gB.vFL, gB.vFD), stamp(a, 'hok')))
                for j in range(G_PF - 1):
                    hk.items += gB.frag_items(j)

    qkv_loop(200, 10, kv_addr, lambda s: s, kv_boundary, hk)
    stamp(a, 4)
    wq = {}

    def issue_wq(m):
        a(f's_add_u32 s{sKS}, s{sROT}, s{sW}')
        a(f's_add_u32 s{sKS}, s{sKS}, {4 * m}')
        a(f's_sub_u32 s{sT}, s{sKS}, 20')
        a(f's_min_u32 s{sKS}, s{sKS}, s{sT}')
        a(f's_mul_i32 s{sT}, s{sKS}, {32 * 3840}')
        wq[m] = dma160(a, vWO, sWQ, sT, sM0B, L_WQ + m * 20480)

    a('s_cmp_ge_u32 s2, 216')
    a('s_cbranch_scc1 L_spare')
    at_fork = a.save()
    srd(a, sAUX, P_B1, F_ * 2)
    bt = {}
    rec, kst = kv_epilogue(a)
    side = Hooks(rec.items())
    sys.stderr.write(f'kv epilogue pieces: {len(side.items)}\n')

    def b_extra(j):
        it = []
        if j == int(os.environ.get('KPUB', '5')):
            def pub():
                side.flush()
                a.wait(kst)
                flag_set(a, 13)
            it.append(pub)
        if j == 10:
            def bias():
                a(f's_lshl_b32 s4, s{sBCB}, 7')
                a(f's_lshl_b32 s5, s{sW}, 5')
                a('s_add_u32 s4, s4, s5')
                a(f'v_lshl_add_u32 v20, v{vG}, 3, s4')
                bt['b'] = a(f'buffer_load_dwordx2 {V(UP(19), 2)}, v20, {S(sAUX, 4)}, 0 offen')
            it.append(bias)
        if j >= 12:
            it.append(lambda m=j - 11: issue_wq(m))
        return it

    gB.mainloop(b_extra, side, int(os.environ.get('RATE_B', '4')))
    stamp(a, 5)
    gB.reduce(Hooks([lambda: issue_wq(0)]))
    a.wait(bt['b'])
    R = lambda t, j: RQ[t] + j
    T = lambda t, j: RQ[5 + t] + j
    a(f'v_lshlrev_b32 v36, 16, v{UP(19)}')
    a(f'v_and_b32 v37, 0xffff0000, v{UP(19)}')
    a(f'v_lshlrev_b32 v38, 16, v{UP(19) + 1}')
    a(f'v_and_b32 v39, 0xffff0000, v{UP(19) + 1}')
    c0 = 0.7978845608028654
    k1 = -2.0 * c0 * LOG2E
    k2 = k1 * 0.044715
    a(f's_mov_b32 s4, {fbits(k2)}')
    a(f's_mov_b32 s5, {fbits(k2)}')
    a(f'v_mov_b32 v40, {fbits(k1)}')
    a('v_mov_b32 v42, 1.0')
    th = [(t, h) for t in range(5) for h in range(2)]
    tj = [(t, j) for t in range(5) for j in range(4)]
    for t, h in th:
        a(f'v_pk_add_f32 {V(R(t, 2 * h), 2)}, {V(R(t, 2 * h), 2)}, {V(36 + 2 * h, 2)}')
    for t, h in th:
        a(f'v_pk_mul_f32 {V(T(t, 2 * h), 2)}, {V(R(t, 2 * h), 2)}, {V(R(t, 2 * h), 2)}')
    for t, h in th:
        a(f'v_pk_fma_f32 {V(T(t, 2 * h), 2)}, {V(T(t, 2 * h), 2)}, s[4:5], v[40:41] op_sel_hi:[1,0,0]')
    for t, h in th:
        a(f'v_pk_mul_f32 {V(T(t, 2 * h), 2)}, {V(T(t, 2 * h), 2)}, {V(R(t, 2 * h), 2)}')
    for t, j in tj:
        a(f'v_exp_f32 v{T(t, j)}, v{T(t, j)}')
    for t, h in th:
        a(f'v_pk_add_f32 {V(T(t, 2 * h), 2)}, {V(T(t, 2 * h), 2)}, v[42:43] op_sel_hi:[1,0]')
    for t, j in tj:
        a(f'v_rcp_f32 v{T(t, j)}, v{T(t, j)}')
    for t, h in th:
        a(f'v_pk_mul_f32 {V(T(t, 2 * h), 2)}, {V(T(t, 2 * h), 2)}, {V(R(t, 2 * h), 2)}')
    a(f's_mul_i32 s4, s{sW}, 15360')
    a(f'v_lshl_add_u32 v20, v{vL}, 3, s4')
    for t in range(5):
        a(f'v_cvt_pk_bf16_f32 v{RQ[10 + t]}, v{T(t, 0)}, v{T(t, 1)}')
        a(f'v_cvt_pk_bf16_f32 v{RQ[10 + t] + 1}, v{T(t, 2)}, v{T(t, 3)}')
        a(f'ds_write_b64 v20, {V(RQ[10 + t], 2)} offset:{t * 512}')
    a(f's_mul_i32 s4, s{sBDB}, 74')
    a(f's_lshl_b32 s5, s{sBCB}, 1')
    a('s_add_u32 s4, s4, s5')
    a('s_mul_i32 s4, s4, 5120')
    a(f's_add_u32 s15, s4, {GF_OFF}')
    a(f's_lshl_b32 s4, s{sBDB}, 5')
    a(f's_add_u32 s4, s4, s{sBCB}')
    a('s_lshl_b32 s4, s4, 2')
    a(f's_add_u32 s4, s4, s{sW}')
    a(f's_lshl_b32 s4, s4, {FSH}')
    a(f's_add_u32 s10, s4, {FG_OFF}')
    a('s_branch L_join')
    at_join = a.save()
    wq_b = dict(wq)

    a.label('L_spare')
    a.restore(at_fork)
    rec, kst = kv_epilogue(a)
    Hooks(rec.items()).flush()
    a.wait_all()
    flag_set(a, 13)
    a('s_barrier')
    a('s_cmp_ge_u32 s2, 248')
    a('s_cbranch_scc1 L_wot')
    a('s_sub_u32 s11, s2, 216')
    a(f's_lshl_b32 s4, s11, {5 + FSH}')
    a(f's_add_u32 s4, s4, {FK_OFF}')
    a(f'v_and_b32 v20, 31, v{vL}')
    a(f'v_lshl_add_u32 v20, v20, {FSH}, s4')
    for m in range(5):
        issue_wq(m)
    stamp(a, 'B0')
    flag_check(a, flag_issue(a, 20, 21), 20, 21)
    stamp(a, 'B2')
    a(f's_mul_i32 s4, s11, {32 * 6144}')
    a(f's_add_u32 s4, s4, {KV_OFF}')
    a(f's_lshl_b32 s5, s{sW}, 11')
    a(f'v_lshl_add_u32 v20, v{vL}, 4, s5')
    a(f'v_lshrrev_b32 v21, 5, v{vL}')
    a(f'v_and_b32 v22, 31, v{vL}')
    a('v_lshlrev_b32 v22, 4, v22')
    a('v_lshl_add_u32 v21, v21, 11, v22')
    a('v_add_u32 v21, 1024, v21')
    a(f's_cmp_eq_u32 s{sW}, 2')
    a('s_cselect_b64 vcc, -1, 0')
    a('v_cndmask_b32 v20, v20, v21, vcc')
    a(f'v_lshrrev_b32 v21, 3, v{vL}')
    a(f'v_and_b32 v22, 7, v{vL}')
    a('v_lshlrev_b32 v22, 4, v22')
    a('v_lshl_add_u32 v21, v21, 8, v22')
    a('v_add_u32 v21, 4096, v21')
    a(f's_cmp_eq_u32 s{sW}, 3')
    a('s_cselect_b64 vcc, -1, 0')
    a('v_cndmask_b32 v20, v20, v21, vcc')
    stok = []
    RR = lambda rb: 132 + 4 * rb if rb < 30 else 4 * (rb - 30)
    for rb in range(32):
        stok.append(a(f'buffer_load_dwordx4 {A(RR(rb), 4)}, v20, {S(sWS, 4)}, s4 offen sc1'))
        a('s_add_u32 s4, s4, 6144')
    for rb in range(32):
        a.wait(stok[rb])
        for k in range(4):
            a(f'v_accvgpr_read_b32 v{(36 if rb == 0 else 40) + k}, a{RR(rb) + k}')
        if rb:
            for h in range(2):
                a(f'v_pk_add_f32 {V(36 + 2 * h, 2)}, {V(36 + 2 * h, 2)}, {V(40 + 2 * h, 2)}')
    stamp(a, 'B4')
    a('v_cvt_pk_bf16_f32 v36, v36, v37')
    a('v_cvt_pk_bf16_f32 v37, v38, v39')
    a('s_lshl_b32 s4, s11, 11')
    a(f's_add_u32 s4, s4, {KB_OFF}')
    a('v_lshl_add_u32 v20, v0, 3, s4')
    a(f'buffer_store_dwordx2 v[36:37], v20, {S(sWS, 4)}, 0 offen sc1')
    a('s_lshl_b32 s4, s11, 2')
    a(f's_add_u32 s4, s4, s{sW}')
    a(f's_lshl_b32 s4, s4, {FSH}')
    a(f's_add_u32 s10, s4, {FR_OFF}')
    a('s_branch L_spare_done')
    a.label('L_wot')
    srd(a, sAUX, P_WO, D_ * D_ * 2)
    a('s_sub_u32 s11, s2, 248')
    dma160_voffs(a, 36, 1280, False, 20)
    a('s_mul_i32 s4, s11, 160')
    a(f's_mul_i32 s5, s{sW}, {160 * 1280}')
    a('s_add_u32 s4, s4, s5')
    a(f's_mul_i32 s6, s{sW}, 25600')
    for k in range(5):
        tok = dma160(a, 36, sAUX, 4, 6, L_WQ + k * 5120)
        a(f's_add_u32 s4, s4, {32 * 1280}')
    a(f'v_mul_u32_u24 v20, 20, v{vG}')
    a(f'v_add_u32 v20, v20, v{vR}')
    a('v_mul_u32_u24 v20, 160, v20')
    a(f'v_mul_u32_u24 v21, 40, v{vC}')
    a('v_add_u32 v20, v20, v21')
    a(f's_add_u32 s6, s6, {L_WQ}')
    a('v_add_u32 v20, s6, v20')
    a('s_mul_i32 s4, s11, 74')
    a(f's_mul_i32 s5, s{sW}, 5')
    a('s_add_u32 s4, s4, s5')
    a('s_add_u32 s4, s4, 54')
    a('s_mul_i32 s4, s4, 5120')
    a(f's_add_u32 s4, s4, {GF_OFF}')
    stamp(a, 'B0')
    a.wait_vm0()
    stamp(a, 'B2')
    rows = [(0, 4), (8, 12), (16, 96), (80, 84), (88, 92)]
    for u in range(5):
        rt = {}
        for t in range(5):
            r = 132 + (u * 5 + t) * 4
            a(f'ds_read_b64_tr_b16 {A(r, 2)}, v20 offset:{rows[u][0] * 160 + 8 * t}')
            rt[t] = a(f'ds_read_b64_tr_b16 {A(r + 2, 2)}, v20 offset:{rows[u][1] * 160 + 8 * t}')
        for t in range(5):
            r = 132 + (u * 5 + t) * 4
            a.wait(rt[t])
            vo, off = (gB.vF, t * 1024) if t < 4 else (gB.vF + 1, 0)
            a(f'buffer_store_dwordx4 {A(r, 4)}, v{vo}, {S(sWS, 4)}, s4 offen offset:{off} sc1')
        a('s_add_u32 s4, s4, 5120')
    a('s_lshl_b32 s4, s11, 2')
    a(f's_add_u32 s4, s4, s{sW}')
    a(f's_lshl_b32 s4, s4, {FSH}')
    a(f's_add_u32 s10, s4, {FW_OFF}')
    stamp(a, 'B4')
    a('s_barrier')
    for m in range(5):
        issue_wq(m)
    a.label('L_spare_done')
    a(f's_mov_b32 s15, {OOB}')
    a.wait_all()
    flag_set(a, 10)
    if STAMPS:
        stamp(a, 5)

    a.label('L_join')
    a.restore(at_join)
    wq = wq_b
    stamp(a, 6)
    g2 = GGemm(a, 'G2')
    a(f's_lshl_b32 s4, s{sHG}, {4 + FSH}')
    a(f's_add_u32 s4, s4, {FR_OFF}')
    a(f'v_lshl_add_u32 v34, v{vI}, {FSH}, s4')
    fl['r'] = flag_issue(a, 34, 35)
    g2.setup()
    a.wait(wq[4])
    a.wait_lg0()
    a('s_barrier')
    stamp(a, 'wq')
    gt = []
    for m in range(3):
        a(f's_add_u32 s4, s{sW}, {4 * m}')
        a('s_min_u32 s5, s4, 9')
        a('s_cmp_ge_u32 s5, 5')
        a(f's_cselect_b32 s6, {2 * 15360 - 5 * 512}, 0')
        a('s_lshl_b32 s5, s5, 9')
        a('s_add_u32 s5, s5, s6')
        a(f'v_lshl_add_u32 v20, v{vL}, 3, s5')
        a(f'ds_read_b64 {V(UP(10 + m), 2)}, v20')
        gt.append(a(f'ds_read_b64 {V(UP(10 + m) + 2, 2)}, v20 offset:15360'))
        a('s_lshl_b32 s5, s4, 10')
        a('s_add_u32 s5, s5, s15')
        a('s_cmp_ge_u32 s4, 10')
        a(f's_cselect_b32 s5, {OOB}, s5')
        a(f'v_lshl_add_u32 v{21 + m}, v{vL}, 4, s5')
    for m in range(3):
        a.wait(gt[m])
        gst = a(f'buffer_store_dwordx4 {V(UP(10 + m), 4)}, v{21 + m}, {S(sWS, 4)}, 0 offen sc1')
    kb = {}

    def kb_load():
        stamp(a, 'ra')
        flag_check(a, fl['r'], 34, 35)
        stamp(a, 'rb')
        a(f's_lshl_b32 s4, s{sHG}, 13')
        a(f's_add_u32 s4, s4, {KB_OFF}')
        a('v_lshlrev_b32 v22, 4, v0')
        a('v_add_u32 v23, 4096, v22')
        a(f'buffer_load_dwordx4 v[36:39], v22, {S(sWS, 4)}, s4 offen sc1')
        kb[0] = a(f'buffer_load_dwordx4 v[40:43], v23, {S(sWS, 4)}, s4 offen sc1')
        a(f'v_add_u32 v22, {L_KB}, v22')
        for k in range(4):
            a(f'v_mov_b32 v{44 + k}, 0')
        a('ds_write_b128 v22, v[44:47] offset:8192')

    def kb_store():
        a.wait(kb[0])
        a('ds_write_b128 v22, v[36:39]')
        kb[1] = a('ds_write_b128 v22, v[40:43] offset:4096')

    def g_pub():
        stamp(a, 'ga')
        a.wait(gst)
        stamp(a, 'gb')
        flag_set(a, 10)

    def g_issue():
        fl['g'] = flag_issue(a, g2.vFL, g2.vFD)

    qorder = list(range(4, 20)) + list(range(4))

    def q_addr(n):
        s, t = divmod(n, 5)
        off = L_WQ + qorder[s] * 5120 + 8 * t
        b = off // 61440
        return vTR + b, off - b * 61440

    def q_boundary(nn):
        if nn == 12:
            a('s_barrier')
        if nn == 80:
            a.wait(wq[0])
            a('s_barrier')

    nop = lambda: None
    items = [nop] * 100
    QG = int(os.environ.get('QG', '35'))
    items[QG] = g_pub
    pos = 6
    for j in range(3):
        for it in g2.dma_items(j):
            items[pos] = it
            pos += 1
    items[40] = kb_load
    items[72] = kb_store
    items[80] = g_issue
    qkv_loop(100, 5, q_addr, lambda s: qorder[s], q_boundary, Hooks(items))
    a('s_barrier')
    stamp(a, 7)
    for j in range(3, G_P):
        Hooks(g2.dma_items(j)).flush()
    flag_check(a, fl['g'], g2.vFL, g2.vFD)
    stamp(a, 8)
    rec, ost = q_epilogue(a, g2.vF)
    side = Hooks(rec.items())
    sys.stderr.write(f'q epilogue pieces: {len(side.items)}\n')
    for j in range(G_PF - 1):
        for it in g2.frag_items(j):
            it()
            side.run(4)

    srd(a, sAUX, P_B2, S_ * 2)
    vOF, vXA, vBA = 20, 60, 61
    ot = {}

    def g2_pre(j):
        if j != 14:
            return []

        def f():
            stamp(a, 'oa')
            flag_check(a, fl['o'], 34, 35)
            stamp(a, 'ob')
            a(f's_mul_i32 s4, s{sHG}, 74')
            a(f's_mul_i32 s5, s{sW}, 5')
            a('s_add_u32 s4, s4, s5')
            a('s_add_u32 s4, s4, 54')
            a('s_mul_i32 s4, s4, 5120')
            a(f's_add_u32 s{sFS}, s4, {GF_OFF}')
        return [f]

    g2.pre_frag = g2_pre

    def o_items(u):
        def one(nt):
            def f():
                if u == 2:
                    a(f'v_lshlrev_b32 v33, 3, v{vL}')
                    a(f'v_sub_u32 v33, v{vOF + nt}, v33')
                    a(f'buffer_load_dwordx2 {V(XN(u * 4 + nt), 2)}, v33, {S(sWS, 4)}, s11 offen sc1')
                    ot[u] = a(f'buffer_load_dwordx2 {V(XN(u * 4 + nt) + 2, 2)}, v33, {S(sWS, 4)}, s11 offen offset:512 sc1')
                else:
                    ot[u] = a(f'buffer_load_dwordx4 {V(XN(u * 4 + nt), 4)}, v{vOF + nt}, {S(sWS, 4)}, s11 offen sc1')
                if nt == 3:
                    a('s_add_u32 s11, s11, 4096')
            return f
        return [one(nt) for nt in range(4)]

    JPUB = int(os.environ.get('JPUB', '5'))

    def g2_extra(j):
        it = []
        if j == JPUB:
            def pub():
                side.flush()
                a.wait(ost)
                flag_set(a, 13)
            it.append(pub)
        if j == 2:
            def prep():
                a(f's_lshl_b32 s4, s{sRB}, {5 + FSH}')
                a(f's_lshl_b32 s5, s{sW}, {3 + FSH}')
                a('s_add_u32 s4, s4, s5')
                a(f's_add_u32 s4, s4, {FO_OFF}')
                a(f'v_and_b32 v34, 7, v{vL}')
                a(f'v_lshl_add_u32 v34, v34, {FSH}, s4')
                a(f's_lshl_b32 s4, s{sHG}, 2')
                a(f's_add_u32 s4, s4, s{sW}')
                a(f's_lshl_b32 s4, s4, {FSH}')
                a(f's_add_u32 s4, s4, {FW_OFF}')
                a('v_mov_b32 v35, s4')
                a(f'v_cmp_gt_u32 vcc, 32, v{vL}')
                a('v_cndmask_b32 v34, v35, v34, vcc')
                for nt in range(4):
                    a(f's_xor_b32 s4, s{sW}, {nt}')
                    a('s_lshl_b32 s4, s4, 10')
                    a(f'v_add_u32 v{vOF + nt}, s4, v{g2.vF}')
                a(f's_mul_i32 s4, s{sRB}, 20')
                a(f's_mul_i32 s5, s{sW}, 5')
                a('s_add_u32 s4, s4, s5')
                a('s_lshl_b32 s4, s4, 12')
                a(f's_add_u32 s11, s4, {OF_OFF}')
                a(f'v_mul_u32_u24 v{vXA}, 1280, v{vTOK}')
                a(f'v_mul_u32_u24 v{vBA}, 40, v{vG}')
                a(f'v_add_u32 v{vXA}, v{vXA}, v{vBA}')
                a(f's_mul_i32 s4, s{sHG}, 160')
                a(f'v_add_u32 v{vXA}, s4, v{vXA}')
                a(f'v_lshlrev_b32 v{vBA}, 1, v{vTOK}')
            it.append(prep)
        if j == 8:
            def fo():
                fl['o'] = flag_issue(a, 34, 35)
            it.append(fo)
        if j >= 9:
            it += o_items(j - 9)
        return it

    g2.mainloop(g2_extra, side, int(os.environ.get('RATE_G', '3')), nfr=19)
    for u in range(5):
        j = 14 + u
        items = []
        if u == 0:
            def resid():
                a(f'buffer_load_ushort v48, v{vBA}, {S(sAUX, 4)}, 0 offen')
                for t in range(5):
                    bt['x'] = a(f'buffer_load_dwordx2 {V(36 + 2 * t, 2)}, v{vXA}, {S(sX, 4)}, 0 offen offset:{8 * t}')
            items.append(resid)
        a.wait(g2.ftok[j], ot[u])
        g2.mfmas(j, False, Hooks(items), Hooks(), 0, bop=lambda nt, u=u: V(XN(u * 4 + nt), 4))
    stamp(a, 9)
    g2.reduce(Hooks())
    a.wait(bt['x'])
    a('v_lshlrev_b32 v48, 16, v48')
    for t in range(5):
        for h in range(2):
            a(f'v_lshlrev_b32 v{T(t, 2 * h)}, 16, v{36 + 2 * t + h}')
            a(f'v_and_b32 v{T(t, 2 * h + 1)}, 0xffff0000, v{36 + 2 * t + h}')
            a(f'v_pk_add_f32 {V(R(t, 2 * h), 2)}, {V(R(t, 2 * h), 2)}, v[48:49] op_sel_hi:[1,0]')
            a(f'v_pk_add_f32 {V(R(t, 2 * h), 2)}, {V(R(t, 2 * h), 2)}, {V(T(t, 2 * h), 2)}')
        a(f'v_cvt_pk_bf16_f32 v{R(t, 0)}, v{R(t, 0)}, v{R(t, 1)}')
        a(f'v_cvt_pk_bf16_f32 v{R(t, 1)}, v{R(t, 2)}, v{R(t, 3)}')
        a(f'buffer_store_dwordx2 {V(R(t, 0), 2)}, v{vXA}, {S(sOUT, 4)}, 0 offen offset:{8 * t}')
    a(f's_or_b32 s4, s2, s{sW}')
    a('s_cmp_lg_u32 s4, 0')
    a('s_cbranch_scc1 L_noepoch')
    a(f's_mov_b32 s10, {EP_OFF}')
    flag_set(a, 10)
    a.label('L_noepoch')
    stamp_flush(a, 10)
    a.label('L_end')
    a('s_endpgm')
    a.raw('.section .rodata,"a"')
    a.raw(f'''.p2align 6
.amdhsa_kernel {K}
  .amdhsa_next_free_vgpr 512
  .amdhsa_next_free_sgpr 102
  .amdhsa_accum_offset 256
  .amdhsa_group_segment_fixed_size 0
  .amdhsa_kernarg_size 96
  .amdhsa_user_sgpr_count 2
  .amdhsa_user_sgpr_kernarg_segment_ptr 1
  .amdhsa_system_sgpr_workgroup_id_x 1
.end_amdhsa_kernel''')
    sys.stderr.write(f'maxv={a.maxv} maxa={a.maxa} maxs={a.maxs} nops={a.nops} lines={len(a.out)}\n')
    return a.text()


if __name__ == '__main__':
    out = sys.argv[1] if len(sys.argv) > 1 else os.path.join(os.path.dirname(__file__), '..', 'cdna_kernels', NAME + '.s')
    open(out, 'w').write(build())
```

```python
import sys, struct, os
sys.path.insert(0, os.path.dirname(__file__))
from asmdsl import Asm, Rec, V, A, S

NAME = 'parallel_sum__linear_kernel_hedgehog__mixer_token_mlp__prompt'
S_, D_, F_ = 2048, 640, 1728

HF_OFF = 0
HF_SZ = 8 * 64 * 5 * 1024
GF_OFF = HF_OFF + HF_SZ
GF_SZ = 8 * 74 * 5 * 1024
OF_OFF = GF_OFF + GF_SZ
OF_SZ = 32 * 20 * 4 * 1024
XF_OFF = OF_OFF + OF_SZ
XF_SZ = 128 * 20480
WF_OFF = XF_OFF + XF_SZ
WF_SZ = 480 * 5120 + 4096
KV_OFF = WF_OFF + WF_SZ
KV_SZ = 32 * 32 * 6144
KB_OFF = KV_OFF + KV_SZ + 4096
KB_SZ = 32 * 2048
FL_OFF = KB_OFF + KB_SZ + 4096
FSH = int(os.environ.get('FSH', '6'))
FH_OFF = FL_OFF
FK_OFF = FH_OFF + (1024 << FSH)
FR_OFF = FK_OFF + (1024 << FSH)
FG_OFF = FR_OFF + (128 << FSH)
FO_OFF = FG_OFF + (1024 << FSH)
FW_OFF = FO_OFF + (1024 << FSH)
FU_OFF = FW_OFF + (128 << FSH)
EP_OFF = FU_OFF + (512 << FSH)
WS_USED = EP_OFF + 512
STAMP_OFF = WS_USED
WS_USED += 512 * 256
STAMPS = bool(int(os.environ.get('STAMPS', '0')))
EXP = os.environ.get('EXP', '').split(',') + ['map4', 'ntb']
OOB = 0x40000000

P_X, P_WQKV, P_WPHI, P_WO, P_BX, P_W1, P_B1, P_W2, P_B2, P_OUT, P_DBG, P_WS = range(16, 40, 2)
LOG2E = 1.4426950408889634

sW = 3
sW8, sWH = 90, 91
sWS, sX, sWQ, sW1, sW2, sAUX, sOUT = 40, 44, 48, 52, 56, 60, 64
sHG, sRB, sID, sROT, sKS, sT, sM0B, sTAG = 68, 69, 70, 71, 72, 73, 74, 75
sL, sNL = 76, 78
sBDB, sBCB, sFS, sGM0, sSPIN, sLIM = 80, 81, 82, 83, 84, 85
vL, vG, vI, vR, vC = 1, 2, 3, 4, 5
vTOK, vGR = 6, 7
vFS = 42
DB = 64
XN = lambda s: DB + 8 * s
UP = lambda k: DB + 8 * k + 4

LDS_BYTES = 163840
A_SLOTS = 4
L_WQ = 0
L_RING = 102400
L_ZERO = 122880
L_WPHI = 126976
L_CNT = 131072
B_P = 10
G2_P = 5
ILV = os.environ.get('ILV', 'burst')


def kb_pos(f, t):
    if f < 32:
        return (f >> 4) * 512 + (t * 16 + (f & 15)) * 8 if t < 4 else 1024 + ((f >> 4) * 32 + (t - 4) * 16 + (f & 15)) * 8
    return 1536 + (t * 8 + f - 32) * 8


def fbits(x):
    return '0x%08x' % struct.unpack('<I', struct.pack('<f', x))[0]


def srd(a, dst, ptr, nbytes):
    a(f's_mov_b32 s{dst}, s{ptr}')
    a(f's_and_b32 s{dst + 1}, s{ptr + 1}, 0xffff')
    a(f's_mov_b32 s{dst + 2}, {nbytes}')
    a(f's_mov_b32 s{dst + 3}, 0x20000')


STAMP_NAMES = []
vST = 41


def stamp(a, name):
    if not STAMPS:
        return
    name = str(name)
    if name not in STAMP_NAMES:
        STAMP_NAMES.append(name)
    idx = STAMP_NAMES.index(name)
    a('s_memrealtime s[98:99]')
    a.wait_lg0()
    if idx == 0:
        a(f'v_mov_b32 v{vST}, 0')
        a('s_getreg_b32 s97, hwreg(HW_REG_HW_ID)')
        a(f'v_writelane_b32 v{vST}, s97, 63')
    a(f'v_writelane_b32 v{vST}, s98, {idx}')


def stamp_flush(a, n):
    if not STAMPS:
        return
    a.wait_vm0()
    stamp(a, n)
    lab = a.newlabel('st')
    a(f's_cmp_lg_u32 s{sW}, 0')
    a(f's_cbranch_scc1 {lab}')
    a(f's_lshl_b32 s4, s{sWH}, 8')
    a('s_add_u32 s4, s4, s2')
    a('s_lshl_b32 s4, s4, 8')
    a(f's_add_u32 s4, s4, {STAMP_OFF}')
    a(f'v_lshl_add_u32 v8, v{vL}, 2, s4')
    a(f'buffer_store_dword v{vST}, v8, {S(sWS, 4)}, 0 offen')
    a.label(lab)


def reduce_g(a, r, t):
    a(f'v_mov_b32 v{t}, v{r}')
    a(f'v_permlane32_swap_b32 v{r}, v{t}')
    a(f'v_add_f32 v{r}, v{r}, v{t}')
    a(f'v_mov_b32 v{t}, v{r}')
    a(f'v_permlane16_swap_b32 v{r}, v{t}')
    a(f'v_add_f32 v{r}, v{r}, v{t}')


def dma160_voffs(a, dst, stride, permute, tmp):
    t0, t2, t3 = tmp, tmp + 1, tmp + 2
    for q in range(5):
        d = dst + q
        a(f'v_add_u32 v{t0}, {q * 64}, v{vL}')
        a(f'v_mul_u32_u24 v{t2}, 6554, v{t0}')
        a(f'v_lshrrev_b32 v{t2}, 16, v{t2}')
        a(f'v_mul_u32_u24 v{t3}, 10, v{t2}')
        a(f'v_sub_u32 v{t0}, v{t0}, v{t3}')
        if permute:
            a(f'v_bfe_u32 v{t3}, v{t2}, 2, 2')
            a(f'v_lshlrev_b32 v{t3}, 3, v{t3}')
            a(f'v_and_b32 v{d}, 3, v{t2}')
            a(f'v_add_u32 v{t3}, v{t3}, v{d}')
            a(f'v_lshrrev_b32 v{t2}, 4, v{t2}')
            a(f'v_lshl_add_u32 v{t2}, v{t2}, 2, v{t3}')
        a(f'v_mul_u32_u24 v{t2}, {stride}, v{t2}')
        a(f'v_lshl_add_u32 v{d}, v{t0}, 4, v{t2}')
        if 0 < q < 4:
            a(f'v_subrev_u32 v{d}, {q * 1024}, v{d}')


def dma160(a, vo, ssrd, soff, m0_s, m0_add, nt=''):
    a(f's_add_u32 m0, s{m0_s}, {m0_add}')
    for q in range(4):
        off = f' offset:{q * 1024}' if q else ''
        a(f'buffer_load_dwordx4 v{vo + q}, {S(ssrd, 4)}, s{soff} offen{off}{nt} lds')
    a(f's_add_u32 m0, s{m0_s}, {m0_add + 4096}')
    return a(f'buffer_load_dwordx4 v{vo + 4}, {S(ssrd, 4)}, s{soff} offen{nt} lds')


class Hooks:
    def __init__(self, items=()):
        self.items = list(items)

    def run(self, n=1):
        for _ in range(n):
            if self.items:
                self.items.pop(0)()

    def flush(self):
        self.run(len(self.items))


def softmax_pm(a, P, PH, EP, EN, tmp):
    p = [P[k // 4] + k % 4 for k in range(20)]
    ep = [EP[k // 4] + k % 4 for k in range(20)]
    en = [EN[k // 4] + k % 4 for k in range(20)]
    mx, mn, sp, sn = tmp, tmp + 2, tmp + 4, tmp + 6
    a(f'v_max3_f32 v{mx}, v{p[0]}, v{p[1]}, v{p[2]}')
    a(f'v_min3_f32 v{mn}, v{p[0]}, v{p[1]}, v{p[2]}')
    for k in range(3, 19, 2):
        a(f'v_max3_f32 v{mx}, v{mx}, v{p[k]}, v{p[k + 1]}')
        a(f'v_min3_f32 v{mn}, v{mn}, v{p[k]}, v{p[k + 1]}')
    a(f'v_max_f32 v{mx}, v{mx}, v{p[19]}')
    a(f'v_min_f32 v{mn}, v{mn}, v{p[19]}')
    a(f'v_mul_f32 v{mx}, s{sNL}, v{mx}')
    a(f'v_mul_f32 v{mn}, s{sL}, v{mn}')
    for k in range(0, 20, 2):
        a(f'v_pk_fma_f32 {V(ep[k], 2)}, {V(p[k], 2)}, {S(sL, 2)}, {V(mx, 2)} op_sel_hi:[1,0,0]')
        a(f'v_pk_fma_f32 {V(en[k], 2)}, {V(p[k], 2)}, {S(sNL, 2)}, {V(mn, 2)} op_sel_hi:[1,0,0]')
    for k in range(20):
        a(f'v_exp_f32 v{ep[k]}, v{ep[k]}')
        a(f'v_exp_f32 v{en[k]}, v{en[k]}')
    a(f'v_pk_add_f32 {V(sp, 2)}, {V(ep[0], 2)}, {V(ep[2], 2)}')
    a(f'v_pk_add_f32 {V(sn, 2)}, {V(en[0], 2)}, {V(en[2], 2)}')
    for k in range(4, 20, 2):
        a(f'v_pk_add_f32 {V(sp, 2)}, {V(sp, 2)}, {V(ep[k], 2)}')
        a(f'v_pk_add_f32 {V(sn, 2)}, {V(sn, 2)}, {V(en[k], 2)}')
    a(f'v_add_f32 v{sp}, v{sp}, v{sp + 1}')
    a(f'v_add_f32 v{sn}, v{sn}, v{sn + 1}')
    a(f'v_rcp_f32 v{sp}, v{sp}')
    a(f'v_rcp_f32 v{sn}, v{sn}')
    for k in range(0, 20, 2):
        a(f'v_pk_mul_f32 {V(ep[k], 2)}, {V(ep[k], 2)}, {V(sp, 2)} op_sel_hi:[1,0]')
        a(f'v_pk_mul_f32 {V(en[k], 2)}, {V(en[k], 2)}, {V(sn, 2)} op_sel_hi:[1,0]')
    allv = ep + en
    for k in range(20):
        a(f'v_cvt_pk_bf16_f32 v{PH[k // 4] + k % 4}, v{allv[2 * k]}, v{allv[2 * k + 1]}')


def flag_set(a, s_off):
    a(f'v_lshl_add_u32 v{vFS}, v{vL}, 2, s{s_off}')
    a(f'v_mov_b32 v{vFS + 1}, s{sTAG}')
    a(f's_mov_b64 exec, {hex((1 << (1 << (FSH - 2))) - 1)}')
    a(f'buffer_store_dword v{vFS + 1}, v{vFS}, {S(sWS, 4)}, 0 offen sc1')
    a('s_mov_b64 exec, -1')


def flag_issue(a, vaddr, vdst):
    return a(f'buffer_load_dword v{vdst}, v{vaddr}, {S(sWS, 4)}, 0 offen sc1')


def flag_check(a, tok, vaddr, vdst, sleep=2):
    ok = a.newlabel('ok')
    lp = a.newlabel('poll')
    a.wait(tok)
    a(f'v_cmp_ne_u32 vcc, s{sTAG}, v{vdst}')
    a(f's_cbranch_vccz {ok}')
    a(f's_mov_b32 s{sSPIN}, 0')
    a.label(lp)
    a(f's_sleep {sleep}')
    a.raw(f'\tbuffer_load_dword v{vdst}, v{vaddr}, {S(sWS, 4)}, 0 offen sc1')
    a('s_waitcnt vmcnt(0)')
    a(f'v_cmp_ne_u32 vcc, s{sTAG}, v{vdst}')
    a(f's_cbranch_vccz {ok}')
    a(f's_add_u32 s{sSPIN}, s{sSPIN}, 1')
    a(f's_cmp_lt_u32 s{sSPIN}, 0x8000')
    a(f's_cbranch_scc1 {lp}')
    a.label(ok)


def featmap(a, ACC5, PK, WPF, P5, EP5, EN5, tmp):
    for k in range(10):
        t, j = divmod(2 * k, 4)
        a(f'v_cvt_pk_bf16_f32 v{PK[k // 4] + k % 4}, v{ACC5[t] + j}, v{ACC5[t] + j + 1}')
    for ks in range(3):
        for t in range(5):
            d = V(P5[t], 4)
            if ks < 2:
                a(f'v_mfma_f32_16x16x32_bf16 {d}, {V(WPF(t, ks), 4)}, {V(PK[ks], 4)}, {"0" if ks == 0 else d}')
            else:
                a(f'v_mfma_f32_16x16x16_bf16 {d}, {V(WPF(t, ks), 2)}, {V(PK[ks], 2)}, {d}')
    softmax_pm(a, P5, P5, EP5, EN5, tmp)


def xcd_tile(a):
    a(f's_and_b32 s4, s{sID}, 7')
    a(f's_lshr_b32 s5, s{sID}, 3')
    a('s_and_b32 s6, s4, 1')
    a('s_lshl_b32 s6, s6, 2')
    a('s_and_b32 s7, s5, 3')
    a(f's_add_u32 s{sHG}, s6, s7')
    a('s_lshr_b32 s6, s4, 1')
    a('s_lshl_b32 s6, s6, 3')
    a('s_lshr_b32 s7, s5, 2')
    a(f's_add_u32 s{sRB}, s6, s7')
    a(f's_lshl_b32 s4, s{sRB}, 6')
    a(f's_lshl_b32 s5, s{sW}, 4')
    a('s_add_u32 s4, s4, s5')
    a(f'v_add_u32 v{vTOK}, s4, v{vI}')


def ln_scales(a, vS, vRS, vNB):
    a(f'v_mul_f32 v{vS}, {fbits(1.0 / 640)}, v{vS}')
    a(f'v_mul_f32 v{vS + 2}, {fbits(1.0 / 640)}, v{vS + 2}')
    a(f'v_fma_f32 v{vS + 2}, -v{vS}, v{vS}, v{vS + 2}')
    a(f'v_max_f32 v{vS + 2}, 0, v{vS + 2}')
    a(f'v_add_f32 v{vS + 1}, {fbits(1e-5)}, v{vS + 2}')
    a(f'v_rsq_f32 v{vRS}, v{vS + 1}')
    a(f'v_mul_f32 v{vNB}, v{vS}, v{vRS}')
    a(f'v_sub_f32 v{vNB}, 0, v{vNB}')


vD, vF, vT, vT2, vFL, vFD, vOF, vXA, vBA = 8, 12, 14, 18, 22, 23, 28, 32, 33
ACC = lambda t, nt: 44 + (nt * 5 + t) * 4
TF = lambda j, nt: 124 + (j % 2) * 16 + 4 * nt
POOL = [156 + 4 * k for k in range(25)]


class GGemm:
    def __init__(self, a, kind):
        self.a, self.kind = a, kind
        if kind == 'B':
            self.stride, self.srdm, self.n, self.fr_off, self.fr_steps = F_ * 2, sW1, 16, HF_OFF, 64
            self.sdb, self.scb, self.ntot, self.P = sBDB, sBCB, 16, B_P
        else:
            self.stride, self.srdm, self.n, self.fr_off, self.fr_steps = S_ * 2, sW2, 14, GF_OFF, 74
            self.sdb, self.scb, self.ntot, self.P = sHG, sRB, 19, G2_P
        self.dtok, self.ftok, self.ttok = {}, {}, {}
        self.free = list(POOL)
        self.reg = {}
        self.pending = []
        order = [(j, 'a') for j in range(self.n)]
        if kind == 'G2':
            order += [(j, k) for j in range(14, 19) for k in 'ab']
        for j, k in order:
            self.pending += [(j, k, x) for x in range(5 if k == 'a' else 4)]
        self.gate = lambda: None
        self.gate2 = lambda: None
        self.nq = 2 if kind == 'B' else 4

    def setup(self):
        a, st = self.a, self.stride
        a(f'v_lshrrev_b32 v24, 3, v{vL}')
        if self.kind == 'B':
            a('v_lshrrev_b32 v25, 2, v24')
            a('v_and_b32 v24, 3, v24')
            a('v_lshl_add_u32 v24, v25, 3, v24')
        a(f'v_mul_u32_u24 v24, {st}, v24')
        a(f'v_and_b32 v25, 7, v{vL}')
        a(f'v_lshlrev_b32 v26, 1, v{vG}')
        a('v_xor_b32 v25, v25, v26')
        a('v_lshl_add_u32 v24, v25, 4, v24')
        a(f's_lshl_b32 s4, s{self.scb}, 7')
        a(f's_mul_i32 s5, s{sW}, {self.n * 32 * st}')
        a('s_add_u32 s5, s5, s4')
        if self.kind == 'B':
            a(f's_mul_i32 s6, s{sWH}, {4 * st}')
            a('s_add_u32 s5, s5, s6')
            a(f's_lshl_b32 s6, s{sWH}, 11')
            a(f's_add_u32 s{sM0B}, s{sGM0}, s6')
        else:
            a(f's_mov_b32 s{sM0B}, s{sGM0}')
        for q in range(self.nq):
            row = 8 * q if self.kind != 'B' else q * 16
            a(f's_add_u32 s6, s5, {row * st - 1024 * q}')
            a(f'v_add_u32 v{vD + q}, s6, v24')
        a(f's_mul_i32 s4, s{self.sdb}, {self.fr_steps}')
        a(f's_mul_i32 s5, s{sW}, {self.n}')
        a('s_add_u32 s4, s4, s5')
        a('s_mul_i32 s4, s4, 5120')
        a(f's_add_u32 s{sFS}, s4, {self.fr_off}')
        if self.kind == 'B':
            a(f's_lshl_b32 s4, s{sW}, {6 + FSH}')
            a(f's_add_u32 s4, s4, {FH_OFF}')
            a(f'v_lshl_add_u32 v{vFL}, v{vL}, {FSH}, s4')
        else:
            a(f's_lshl_b32 s4, s{self.sdb}, {7 + FSH}')
            a(f's_mul_i32 s5, s{sW}, {28 << FSH}')
            a('s_add_u32 s4, s4, s5')
            a(f's_add_u32 s4, s4, {FG_OFF}')
            a(f's_mul_i32 s5, s{self.sdb}, {74 * 5120}')
            a(f's_add_u32 s{sLIM}, s5, {GF_OFF + 53 * 5120}')
            a(f's_cmp_eq_u32 s{sW}, 3')
            a('s_cselect_b32 s5, 23, 27')
            a(f'v_min_u32 v24, s5, v{vL}')
            a(f'v_lshl_add_u32 v{vFL}, v24, {FSH}, s4')

    def dma_items(self, j):
        a = self.a

        def one(q):
            def f():
                if q == 0:
                    a(f's_add_u32 m0, s{sM0B}, {(j % self.P) * 16384}')
                off = f' offset:{q * 1024}' if q else ''
                nt = ' nt' if ('ntb' in EXP and self.kind == 'B' and j < self.P) else ''
                self.dtok[j] = a(f'buffer_load_dwordx4 v{vD + q}, {S(self.srdm, 4)}, 0 offen{off}{nt} lds')
                if not ('hotw' in EXP):
                    a(f'v_add_u32 v{vD + q}, {32 * self.stride}, v{vD + q}')
            return f
        return [one(q) for q in range(self.nq)]

    def frag_items(self, lim=99):
        a = self.a
        out = []
        while self.free and self.pending and len(out) < lim:
            key = self.pending.pop(0)
            r = self.free.pop(0)
            self.reg[key] = r

            def f(key=key, r=r):
                j, kind, x = key
                if key == (self.n, 'a', 0):
                    self.gate()
                if key == (self.n, 'b', 0):
                    self.gate2()
                if kind == 'a':
                    vo, off = (vF, x * 1024) if x < 4 else (vF + 1, 0)
                    offs = f' offset:{off}' if off else ''
                    self.ftok[j] = a(f'buffer_load_dwordx4 {V(r, 4)}, v{vo}, {S(sWS, 4)}, s{sFS} offen{offs} sc1')
                    if x == 4 and 'hotf' not in EXP:
                        a(f's_add_u32 s{sFS}, s{sFS}, 5120')
                        if self.kind == 'G2' and j < 14:
                            a(f's_min_u32 s{sFS}, s{sFS}, s{sLIM}')
                else:
                    if j - self.n == 2:
                        a(f'v_lshlrev_b32 v24, 3, v{vL}')
                        a(f'v_sub_u32 v24, v{vOF + x}, v24')
                        a(f'buffer_load_dwordx2 {V(r, 2)}, v24, {S(sWS, 4)}, s11 offen sc1')
                        self.ftok[j] = a(f'buffer_load_dwordx2 {V(r + 2, 2)}, v24, {S(sWS, 4)}, s11 offen offset:512 sc1')
                    else:
                        self.ftok[j] = a(f'buffer_load_dwordx4 {V(r, 4)}, v{vOF + x}, {S(sWS, 4)}, s11 offen sc1')
                    if x == 3:
                        a('s_add_u32 s11, s11, 4096')
            out.append(f)
        return out

    def tr_items(self, j):
        a = self.a

        def one(nt):
            def f():
                off = (j % self.P) * 16384
                base = vT
                if off >= 65536:
                    if off % 65536 == 0:
                        a(f'v_add_u32 v{vT2 + nt}, {off}, v{vT + nt}')
                    off %= 65536
                    base = vT2
                a(f'ds_read_b64_tr_b16 {V(TF(j, nt), 2)}, v{base + nt} offset:{off}')
                self.ttok[j] = a(f'ds_read_b64_tr_b16 {V(TF(j, nt) + 2, 2)}, v{base + nt} offset:{off + 2048}')
            return f
        return [one(nt) for nt in range(4)]

    def mainloop(self, extra):
        a, n = self.a, self.n
        a.wait(self.dtok[0])
        Hooks(self.tr_items(0)).flush()
        for j in range(self.ntot):
            items = []
            if j + 1 < n:
                a.wait(self.dtok[j + 1])
            a.wait(self.ftok[j], self.ttok.get(j))
            if self.kind == 'B' and j + 1 < n and (j + self.P < n or j + 1 >= int(os.environ.get('BPRE', '10'))):
                a('s_barrier')
            if j % 3 == 0:
                stamp(a, f'{self.kind}_{j}')
                if STAMPS and j in (3, 9):
                    a('s_memtime s[98:99]')
                    a.wait_lg0()
                    a(f'v_writelane_b32 v{vST}, s98, {56 + (j // 9) + (2 if self.kind == "G2" else 0)}')
            if j + 1 < n:
                items += self.tr_items(j + 1)
            if j + self.P < n:
                items += self.dma_items(j + self.P)
            items += extra(j)
            items += self.frag_items(10)
            last = j == self.ntot - 1
            if self.kind == 'G2' and j == 16:
                a('s_barrier')
            if last:
                a(f's_mul_i32 s7, s{sWH}, 102400')
                for nt in range(1, 4):
                    a(f's_xor_b32 s4, s{sW}, {nt}')
                    a('s_mul_i32 s4, s4, 15360')
                    a(f's_add_u32 s4, s4, {(nt - 1) * 5120}')
                    a('s_add_u32 s4, s4, s7')
                    a(f'v_add_u32 v{24 + nt}, s4, v{vF}')
                wr = [(nt, t) for nt in (1, 2, 3) for t in range(5)]
            hk = Hooks(items)
            k = 0
            ILV = os.environ.get('ILVB', 'fine') if self.kind == 'B' else os.environ.get('ILVG', 'burst')
            for nt in (1, 2, 3, 0):
                for t in range(5):
                    acc = V(ACC(t, nt), 4)
                    c = '0' if j == 0 else acc
                    fr = V(self.reg[(j, 'a', t)], 4)
                    tf = V(TF(j, nt) if j < n else self.reg[(j, 'b', nt)], 4)
                    if self.kind == 'B':
                        a(f'v_mfma_f32_16x16x32_bf16 {acc}, {tf}, {fr}, {c}')
                    else:
                        a(f'v_mfma_f32_16x16x32_bf16 {acc}, {fr}, {tf}, {c}')
                    k += 1
                    if last and k > 5:
                        wn, wt = wr.pop(0)
                        a(f'ds_write_b128 v{24 + wn}, {V(ACC(wt, wn), 4)} offset:{wt * 1024}')
                    if ILV == 'fine':
                        if k % 4 != 0:
                            hk.run()
                    elif ILV == 'burst':
                        if k <= 4 and j + 1 < n:
                            hk.run()
                    elif ILV == 'two':
                        if k <= 4 and j + 1 < n:
                            hk.run()
                        if k == 10:
                            hk.run(4)
                    elif ILV == 'pre':
                        if k == 1:
                            hk.flush()
            hk.flush()
            self.free += [r for key, r in self.reg.items() if key[0] == j]
            if n - 2 <= j < n:
                self.free += [TF(j, nt) for nt in range(4)]

    def reduce(self):
        a = self.a
        a(f's_mul_i32 s4, s{sW}, 15360')
        a('s_add_u32 s4, s4, s7')
        a(f'v_add_u32 v24, s4, v{vF}')
        a.wait_lg0()
        a('s_barrier')
        rtok = {}
        for nt in range(1, 4):
            for t in range(5):
                rtok[(nt, t)] = a(f'ds_read_b128 {V(ACC(t, nt), 4)}, v24 offset:{(nt - 1) * 5120 + t * 1024}')
        for nt in range(1, 4):
            for t in range(5):
                a.wait(rtok[(nt, t)])
                for h in range(2):
                    d = V(ACC(t, 0) + 2 * h, 2)
                    a(f'v_pk_add_f32 {d}, {d}, {V(ACC(t, nt) + 2 * h, 2)}')


def frag10_addr(a, m, hi_add, step, base_s, vrd, vrd_base, vst):
    a(f's_add_u32 s4, s{sW}, {4 * m}')
    a('s_min_u32 s5, s4, 9')
    a('s_cmp_ge_u32 s5, 5')
    a(f's_cselect_b32 s6, {hi_add}, 0')
    a(f's_mul_i32 s5, s5, {step}')
    a('s_add_u32 s5, s5, s6')
    a(f'v_add_u32 v{vrd}, s5, v{vrd_base}')
    a('s_lshl_b32 s5, s4, 10')
    a(f's_add_u32 s5, s5, s{base_s}')
    a('s_cmp_ge_u32 s4, 10')
    a(f's_cselect_b32 s5, {OOB}, s5')
    a(f'v_lshl_add_u32 v{vst}, v{vL}, 4, s5')


NTP = ' nt' if 'ntp' in EXP else ''
FIRST = int(os.environ.get('FIRST', '10'))
vTH = 40


def g_common(a):
    a(f'v_lshlrev_b32 v{vF}, 4, v{vL}')
    a(f'v_add_u32 v{vF + 1}, 4096, v{vF}')
    a(f's_lshl_b32 s{sGM0}, s{sW}, 12')
    a(f'v_bfe_u32 v25, v{vGR}, 1, 2')
    a(f'v_xor_b32 v25, s{sW}, v25')
    a(f'v_lshlrev_b32 v26, 7, v{vGR}')
    a(f'v_lshl_add_u32 v26, v{vC}, 3, v26')
    a(f'v_add_u32 v26, s{sGM0}, v26')
    for nt in range(4):
        a(f'v_xor_b32 v27, {nt}, v25')
        a(f'v_lshl_add_u32 v{vT + nt}, v27, 5, v26')


def tag_ready(a):
    a('s_waitcnt lgkmcnt(0)')
    a(f's_add_u32 s{sTAG}, s{sTAG}, 1')


def role_a(a):
    a(f's_and_b32 s4, s{sID}, 7')
    a(f's_lshr_b32 s5, s{sID}, 3')
    a('s_and_b32 s6, s4, 1')
    a('s_lshl_b32 s6, s6, 2')
    a('s_and_b32 s7, s5, 3')
    a(f's_add_u32 s{sHG}, s6, s7')
    a('s_lshr_b32 s6, s4, 1')
    a('s_lshl_b32 s6, s6, 2')
    a('s_lshr_b32 s7, s5, 2')
    a('s_add_u32 s6, s6, s7')
    a(f's_mov_b32 s{sRB}, s6')
    a('s_lshl_b32 s6, s6, 3')
    a(f's_add_u32 s15, s6, s{sHG}')
    a('s_lshl_b32 s12, s15, 1')
    a(f's_add_u32 s12, s12, s{sWH}')
    X = 156
    a('s_lshl_b32 s4, s12, 2')
    a(f's_add_u32 s4, s4, s{sW}')
    a('s_mul_i32 s4, s4, 2560')
    a(f'v_mul_u32_u24 v24, 40, v{vL}')
    xt = []
    for k in range(5):
        xt.append(a(f'buffer_load_dwordx2 {V(X + 2 * k, 2)}, v24, {S(sX, 4)}, s4 offen offset:{8 * k}{NTP}'))
    srd(a, sWQ, P_WQKV, D_ * 3 * D_ * 2)
    vLN = 8
    a(f'v_lshlrev_b32 v{vLN}, 4, v{vL}')
    a(f'v_add_u32 v{vLN + 1}, 4096, v{vLN}')
    a(f's_mul_i32 s{sM0B}, s{sW8}, 5120')
    a('s_lshl_b32 s10, s15, 2')
    a(f's_add_u32 s10, s10, s{sW}')
    a('s_mul_i32 s4, s10, 1093')
    a('s_lshr_b32 s4, s4, 16')
    a('s_mul_i32 s5, s4, 60')
    a('s_sub_u32 s5, s10, s5')
    a('s_lshr_b32 s6, s5, 1')
    a('s_and_b32 s7, s5, 1')
    a('s_add_u32 s7, s7, 1')
    a('s_sub_u32 s8, s5, 40')
    a('s_cmp_ge_u32 s5, 40')
    a('s_cselect_b32 s6, s8, s6')
    a('s_cselect_b32 s7, 0, s7')
    a(f's_mul_i32 s6, s6, {32 * 3840}')
    a('s_mul_i32 s7, s7, 1280')
    a('s_mul_i32 s4, s4, 160')
    a('s_add_u32 s6, s6, s7')
    a('s_add_u32 s6, s6, s4')
    a(f's_cmp_eq_u32 s{sWH}, 0')
    a('s_cselect_b32 s10, 480, s10')
    dma160_voffs(a, 12, 3840, True, 18)
    a('s_cmp_ge_u32 s10, 480')
    a(f's_cselect_b32 s7, {OOB}, 0')
    for q in range(5):
        a(f'v_add_u32 v{12 + q}, s7, v{12 + q}')
    utok = dma160(a, 12, sWQ, 6, sM0B, 0, NTP)
    a(f's_mul_i32 s13, s{sWH}, 24576')
    a('s_add_u32 s13, s13, 65536')
    a('s_add_u32 s14, s13, 12288')
    srd(a, sAUX, P_WPHI, 32 * 800)
    a(f's_mul_i32 s6, s{sHG}, 3200')
    a(f's_lshl_b32 s7, s{sW}, 10')
    a('s_add_u32 s6, s6, s7')
    a(f'v_lshl_add_u32 v10, v{vL}, 4, s6')
    a(f's_add_u32 m0, s7, {L_WPHI}')
    a(f'buffer_load_dwordx4 v10, {S(sAUX, 4)}, 0 offen lds')
    for k in range(4):
        a(f'v_mov_b32 v{44 + k}, 0')
    a(f'v_lshlrev_b32 v18, 4, v{vTH}')
    a(f'v_add_u32 v18, {L_ZERO}, v18')
    a('ds_write_b128 v18, v[44:47]')
    a(f'v_mov_b32 v10, {L_CNT}')
    a('v_mov_b32 v11, 0')
    a('ds_write2_b32 v10, v11, v11 offset0:0 offset1:1')
    vONE, vS, vRS, vNB = 34, 36, 168, 170
    a(f'v_mov_b32 v{vONE}, 0x3f803f80')
    for k in range(4):
        a(f'v_mov_b32 v{vS + k}, 0')
    a('s_waitcnt lgkmcnt(0)')
    a(f's_add_u32 s{sTAG}, s{sTAG}, 1')
    a.wait(xt[4])
    stamp(a, 'x')
    for k in range(10):
        a(f'v_dot2c_f32_bf16 v{vS + (k & 1)}, v{X + k}, v{vONE}')
        a(f'v_dot2c_f32_bf16 v{vS + 2 + (k & 1)}, v{X + k}, v{X + k}')
    a(f'v_add_f32 v{vS}, v{vS}, v{vS + 1}')
    a(f'v_add_f32 v{vS + 2}, v{vS + 2}, v{vS + 3}')
    for sh in (8, 4, 2, 1):
        for r in (vS, vS + 2):
            a(f'v_add_f32_dpp v{r}, v{r}, v{r} row_ror:{sh} row_mask:0xf bank_mask:0xf')
    for r in (vS, vS + 2):
        a(f'v_mov_b32 v{r + 1}, v{r}')
        a(f'v_permlane16_swap_b32 v{r}, v{r + 1}')
        a(f'v_add_f32 v{r}, v{r}, v{r + 1}')
    ln_scales(a, vS, vRS, vNB)
    a(f'v_mul_f32 v{vS + 1}, v{vRS}, v{vRS}')
    a(f'v_mov_b32 v{vS + 3}, {fbits(1e-5)}')
    a(f'v_fmac_f32 v{vS + 3}, v{vS + 1}, v{vS + 2}')
    a(f'v_rsq_f32 v{vS + 2}, v{vS + 3}')
    U = 172
    for k in range(10):
        a(f'v_lshlrev_b32 v{U + 2 * k}, 16, v{X + k}')
        a(f'v_and_b32 v{U + 2 * k + 1}, 0xffff0000, v{X + k}')
    for k in range(10):
        a(f'v_pk_fma_f32 {V(U + 2 * k, 2)}, {V(U + 2 * k, 2)}, {V(vRS, 2)}, {V(vNB, 2)} op_sel_hi:[1,0,0]')
    XQ = 192
    for k in range(10):
        a(f'v_cvt_pk_bf16_f32 v{XQ + k}, v{U + 2 * k}, v{U + 2 * k + 1}')
    for k in range(10):
        a(f'v_pk_mul_f32 {V(U + 2 * k, 2)}, {V(U + 2 * k, 2)}, {V(vS + 2, 2)} op_sel_hi:[1,0]')
    for k in range(10):
        a(f'v_cvt_pk_bf16_f32 v{X + k}, v{U + 2 * k}, v{U + 2 * k + 1}')
    a(f's_mul_i32 s4, s{sW}, {2 * 1296}')
    a('s_add_u32 s4, s4, s13')
    a(f'v_mul_u32_u24 v24, 40, v{vL}')
    a(f'v_lshrrev_b32 v25, 5, v{vL}')
    a('v_lshl_add_u32 v24, v25, 4, v24')
    a('v_add_u32 v24, s4, v24')
    for k in range(5):
        a(f'ds_write_b64 v24, {V(XQ + 2 * k, 2)} offset:{8 * k}')
    a(f'v_and_b32 v25, 7, v{vTH}')
    a(f'v_lshrrev_b32 v26, 3, v{vTH}')
    a('v_mul_u32_u24 v28, 1296, v25')
    a('v_lshl_add_u32 v28, v26, 4, v28')
    a('v_add_u32 v28, s13, v28')
    a('v_lshlrev_b32 v29, 8, v26')
    a('v_lshl_add_u32 v29, v25, 4, v29')
    a(f's_lshr_b32 s4, s12, 1')
    a('s_mul_i32 s4, s4, 20480')
    a(f's_and_b32 s5, s12, 1')
    a('s_lshl_b32 s5, s5, 7')
    a('s_add_u32 s4, s4, s5')
    a(f's_add_u32 s4, s4, {XF_OFF}')
    a('v_add_u32 v29, s4, v29')
    a('v_add_u32 v30, 8192, v29')
    a(f's_cmp_ge_u32 s{sW}, 2')
    a(f's_cselect_b32 s4, {OOB}, 16384')
    a('v_add_u32 v31, s4, v29')
    a(f's_mul_i32 s4, s{sW}, 2560')
    a('s_add_u32 s4, s4, s14')
    a(f'v_mul_u32_u24 v24, 40, v{vL}')
    a('v_add_u32 v24, s4, v24')
    for k in range(5):
        a(f'ds_write_b64 v24, {V(X + 2 * k, 2)} offset:{8 * k}')
    a(f'v_mul_u32_u24 v24, 1280, v{vR}')
    a(f'v_mul_u32_u24 v25, 160, v{vG}')
    a('v_add_u32 v24, v24, v25')
    a(f'v_mul_u32_u24 v25, 40, v{vC}')
    a('v_add_u32 v24, v24, v25')
    a('v_add_u32 v24, s14, v24')
    a(f'v_mul_u32_u24 v25, {64 * 5120}, v{vG}')
    a(f'v_lshl_add_u32 v25, v{vI}, 4, v25')
    a(f's_lshr_b32 s4, s12, 2')
    a('s_mul_i32 s4, s4, 5120')
    a(f's_and_b32 s5, s12, 3')
    a('s_lshl_b32 s5, s5, 8')
    a('s_add_u32 s4, s4, s5')
    a(f's_add_u32 s8, s4, {HF_OFF}')
    a.wait_lg0()
    a('s_barrier')
    ht = []
    for m in range(3):
        ht.append(a(f'ds_read_b128 {V(XQ + 4 * m, 4)}, v28 offset:{512 * m}'))
    for m in range(3):
        a.wait(ht[m])
        a(f'buffer_store_dwordx4 {V(XQ + 4 * m, 4)}, v{29 + m}, {S(sWS, 4)}, 0 offen sc1')
    ht = []
    for m in range(3):
        a(f's_add_u32 s4, s{sW}, {4 * m}')
        a('s_min_u32 s5, s4, 9')
        a('s_cmp_ge_u32 s5, 5')
        a(f's_cselect_b32 s6, {640 - 40}, 0')
        a(f's_cselect_b32 s7, {4 * 64 * 5120 - 5120}, 0')
        a('s_lshl_b32 s5, s5, 3')
        a('s_add_u32 s5, s5, s6')
        a('v_add_u32 v26, s5, v24')
        a(f'ds_read_b64_tr_b16 {V(U + 4 * m, 2)}, v26')
        ht.append(a(f'ds_read_b64_tr_b16 {V(U + 4 * m + 2, 2)}, v26 offset:{4 * 1280}'))
        a('s_lshl_b32 s5, s4, 10')
        a('s_add_u32 s5, s5, s7')
        a('s_add_u32 s5, s5, s8')
        a('s_cmp_ge_u32 s4, 10')
        a(f's_cselect_b32 s5, {OOB}, s5')
        a(f'v_add_u32 v{34 + m}, s5, v25')
    for m in range(3):
        a.wait(ht[m])
        a(f'buffer_store_dwordx4 {V(U + 4 * m, 4)}, v{34 + m}, {S(sWS, 4)}, 0 offen sc1')
    hst = ('vm', a.vm_issued - 1)
    a(f'v_mul_u32_u24 v29, 160, v{vGR}')
    a(f'v_mul_u32_u24 v24, 40, v{vC}')
    a('v_add_u32 v29, v29, v24')
    a(f'v_add_u32 v29, s{sM0B}, v29')
    a('s_mul_i32 s4, s10, 5120')
    a(f's_add_u32 s4, s4, {WF_OFF}')
    a('s_cmp_ge_u32 s10, 480')
    a(f's_cselect_b32 s4, {OOB}, s4')
    a(f'v_add_u32 v24, s4, v{vLN}')
    a(f'v_add_u32 v25, s4, v{vLN + 1}')
    a(f's_lshl_b32 s5, s10, {FSH}')
    a(f's_add_u32 s5, s5, {FU_OFF}')
    a('s_cmp_ge_u32 s10, 480')
    a(f's_cselect_b32 s10, {OOB}, s5')
    a.wait(utok)
    ut = []
    for t in range(5):
        a(f'ds_read_b64_tr_b16 {V(UP(t), 2)}, v29 offset:{8 * t}')
        ut.append(a(f'ds_read_b64_tr_b16 {V(UP(t) + 2, 2)}, v29 offset:{8 * t + 2560}'))
    for t in range(5):
        a.wait(ut[t])
        vo, off = (24, t * 1024) if t < 4 else (25, 0)
        a(f'buffer_store_dwordx4 {V(UP(t), 4)}, v{vo}, {S(sWS, 4)}, 0 offen offset:{off} sc1')
    a(f's_lshl_b32 s4, s{sWH}, 2')
    a(f's_add_u32 s4, s4, {L_CNT}')
    a('v_mov_b32 v10, s4')
    a('v_mov_b32 v11, 1')
    a.wait(hst)
    a('s_mov_b64 exec, 1')
    a('ds_add_rtn_u32 v11, v10, v11')
    a('s_mov_b64 exec, -1')
    a.wait_lg0()
    a('v_readfirstlane_b32 s5, v11')
    a(f's_lshl_b32 s4, s12, {FSH}')
    a(f's_add_u32 s4, s4, {FH_OFF}')
    a('s_cmp_lg_u32 s5, 3')
    a('s_cbranch_scc1 L_nofh')
    flag_set(a, 4)
    a.label('L_nofh')
    a.wait_vm0()
    flag_set(a, 10)
    stamp(a, 'prep')
    a(f's_mov_b32 s{sL}, {fbits(LOG2E)}')
    a(f's_mov_b32 s{sL + 1}, {fbits(LOG2E)}')
    a(f's_mov_b32 s{sNL}, {fbits(-LOG2E)}')
    a(f's_mov_b32 s{sNL + 1}, {fbits(-LOG2E)}')
    a(f's_mul_i32 s10, s{sHG}, 60')
    a(f's_lshl_b32 s4, s10, {FSH}')
    a(f's_add_u32 s4, s4, {FU_OFF}')
    a(f'v_lshl_add_u32 v20, v{vL}, {FSH}, s4')
    a(f's_lshl_b32 s11, s{sRB}, 2')
    a(f's_add_u32 s11, s11, s{sW}')
    a(f's_lshl_b32 s4, s11, {FSH + 2}')
    a(f's_add_u32 s4, s4, {FH_OFF}')
    a(f'v_lshl_add_u32 v21, v{vC}, {FSH}, s4')
    a(f'v_cmp_gt_u32 vcc, 60, v{vL}')
    a('v_cndmask_b32 v20, v21, v20, vcc')
    a(f's_add_u32 s10, s10, s{sW}')
    a('s_mul_i32 s10, s10, 5120')
    a(f's_add_u32 s10, s10, {WF_OFF}')
    a(f's_add_u32 s9, s10, {40 * 5120}')
    a(f's_mul_i32 s{sM0B}, s{sW}, 5120')
    a('s_mul_i32 s11, s11, 40960')
    a(f's_add_u32 s11, s11, {XF_OFF}')
    a(f'v_add_u32 v10, 20480, v{vLN}')
    a(f'v_add_u32 v26, {L_RING}, v{vLN}')
    a(f'v_add_u32 v27, 61440, v{vLN}')

    def wphi_frags(WPF, wbase, zbase):
        a(f'v_mul_u32_u24 v22, 800, v{vG}')
        a(f'v_mul_u32_u24 v23, 40, v{vR}')
        a('v_add_u32 v22, v22, v23')
        a(f'v_add_u32 v22, {wbase}, v22')
        a(f'v_mov_b32 v23, {zbase}')
        a(f'v_cmp_eq_u32 vcc, v{vG}, v{vC}')
        a('v_cndmask_b32 v22, v23, v22, vcc')
        for t in range(5):
            for d4 in range(5):
                a(f'ds_read_b64_tr_b16 {V(WPF(t, d4 // 2) + 2 * (d4 % 2), 2)}, v22 offset:{4 * d4 * 40 + 8 * t}')

    Q = lambda k: 48 + 4 * k
    WPF = lambda t, ks: Q(2 * t + ks) if ks < 2 else Q(10 + t // 2) + 2 * (t % 2)
    a('s_barrier')
    wphi_frags(WPF, L_WPHI, L_ZERO)
    a.wait_lg0()
    a('s_barrier')
    flag_check(a, flag_issue(a, 20, 21), 20, 21)
    stamp(a, 'go')

    def xload(dst, ks, z):
        off = f' offset:{(ks % 4) * 1024}' if ks % 4 else ''
        t = a(f'buffer_load_dwordx4 {V(dst, 4)}, v{vLN if z == 0 else 10}, {S(sWS, 4)}, s11 offen{off} sc1')
        if ks % 4 == 3 and z == 1:
            a('s_add_u32 s11, s11, 4096')
        return t

    a(f's_cmp_lg_u32 s{sWH}, 0')
    a('s_cbranch_scc1 L_a_upper')
    at_split = a.save()
    a('s_setprio 2')
    AC = lambda k, z: Q(13 + 2 * k + z)
    XR = lambda ks, z: Q(33 + (ks % 6) * 2 + z)
    FW = lambda n: Q(45 + n % 7)
    xtok = {}
    for ks in range(5):
        for z in range(2):
            xtok[ks] = xload(XR(ks, z), ks, z)
    a('s_barrier')
    stamp(a, 'a0')
    WIN, NF = 6, 200
    ftok = {}

    def read_frag(n):
        d, r = divmod(n, 20)
        ftok[n] = a(f'ds_read_b128 {V(FW(n), 4)}, v26 offset:{(d % 3) * 20480 + r * 1024}')

    for n in range(WIN):
        read_frag(n)
    for n in range(NF):
        nn = n + WIN
        if nn < NF:
            if nn % 20 == 0:
                a.wait_lg0()
                a('s_barrier')
                if (nn // 20) % 3 == 0:
                    stamp(a, f'a{nn // 20}')
            read_frag(nn)
        ks, k = divmod(n, 10)
        a.wait(ftok[n], xtok[ks])
        for z in range(2):
            c = '0' if ks == 0 else V(AC(k, z), 4)
            a(f'v_mfma_f32_16x16x32_bf16 {V(AC(k, z), 4)}, {V(FW(n), 4)}, {V(XR(ks, z), 4)}, {c}')
        if k in (2, 6) and ks + 5 < 20:
            xtok[ks + 5] = xload(XR(ks + 5, k // 4), ks + 5, k // 4)
    a('s_barrier')
    stamp(a, 'aend')
    vSA, vKA, vKO = 8, 9, 12
    a(f's_lshl_b32 s4, s{sW}, 5')
    a(f'v_lshl_add_u32 v{vSA}, v{vG}, 7, v{vI}')
    a(f'v_add_u32 v{vSA}, s4, v{vSA}')
    a(f'v_mul_u32_u24 v{vSA}, 120, v{vSA}')
    a(f'v_add_u32 v{vSA}, {L_RING}, v{vSA}')
    for z in range(2):
        for t in range(5):
            r = AC(5 + t, z)
            a(f'v_cvt_pk_bf16_f32 v{r}, v{r}, v{r + 1}')
            a(f'v_cvt_pk_bf16_f32 v{r + 1}, v{r + 2}, v{r + 3}')
            a(f'ds_write_b64 v{vSA}, {V(r, 2)} offset:{z * 16 * 120 + 80 + 8 * t}')
    PK = [Q(33), Q(34), Q(35)]
    EN5 = [Q(36 + c) for c in range(5)]
    for z in range(2):
        E5 = [AC(t, z) for t in range(5)]
        P5 = [Q(41 + 5 * z + c) for c in range(5)]
        featmap(a, E5, PK, WPF, P5, E5, EN5, 32)
        for c in range(10):
            a(f'ds_write_b64 v{vSA}, {V(P5[c // 2] + 2 * (c % 2), 2)} offset:{z * 16 * 120 + 8 * c}')
    stamp(a, 'fm')
    a(f's_mul_i32 s4, s{sW}, {128 * 120}')
    a(f's_add_u32 s4, s4, {L_RING}')
    a(f'v_mul_u32_u24 v{vKA}, 120, v{vGR}')
    a(f'v_lshl_add_u32 v{vKA}, v{vC}, 3, v{vKA}')
    a(f'v_add_u32 v{vKA}, s4, v{vKA}')
    a(f's_lshl_b32 s4, s{sHG}, 2')
    a(f's_add_u32 s4, s4, s{sW}')
    a('s_lshl_b32 s4, s4, 4')
    a(f's_add_u32 s13, s4, s{sRB}')
    a('s_mul_i32 s4, s13, 6144')
    a(f's_add_u32 s4, s4, {KV_OFF}')
    a(f'v_lshl_add_u32 v{vKO}, v{vL}, 4, s4')
    a('s_movk_i32 s12, 0x1000')
    a(f'v_mov_b32 v11, {OOB}')
    a(f'v_cmp_gt_u32 vcc, 8, v{vI}')
    a(f'v_cndmask_b32 v{vKO + 1}, v11, v{vKO}, vcc')
    a(f'v_cmp_gt_u32 vcc, 2, v{vG}')
    a(f'v_cndmask_b32 v{vKO + 2}, v11, v{vKO}, vcc')
    a(f'v_cndmask_b32 v{vKO + 3}, v11, v{vKO + 1}, vcc')
    a(f's_lshl_b32 s13, s13, {FSH}')
    a(f's_add_u32 s10, s13, {FK_OFF}')
    a('v_mov_b32 v11, 0x3f803f80')
    a(f'v_cmp_eq_u32 vcc, 1, v{vR}')
    a.wait_lg0()
    a('s_barrier')
    ktok = {}
    OPQ = lambda kk, x: Q(13 + kk * 5 + x)
    KVA = [Q(k) for k in range(6)]

    def kv_read(kk):
        for x in range(5):
            col = 32 * x if x < 3 else 80 + 32 * (x - 3)
            a(f'ds_read_b64_tr_b16 {V(OPQ(kk, x), 2)}, v{vKA} offset:{kk * 32 * 120 + col}')
            ktok[kk] = a(f'ds_read_b64_tr_b16 {V(OPQ(kk, x) + 2, 2)}, v{vKA} offset:{kk * 32 * 120 + 16 * 120 + col}')

    kv_read(0)
    for kk in range(4):
        if kk + 1 < 4:
            kv_read(kk + 1)
        a.wait(ktok[kk])
        for j in range(4):
            a(f'v_cndmask_b32 v{OPQ(kk, 4) + j}, v{OPQ(kk, 4) + j}, v11, vcc')
        for et in range(2):
            for ft in range(3):
                d = V(KVA[ft * 2 + et], 4)
                a(f'v_mfma_f32_16x16x32_bf16 {d}, {V(OPQ(kk, 3 + et), 4)}, {V(OPQ(kk, ft), 4)}, {"0" if kk == 0 else d}')
    for ft in range(3):
        for et in range(2):
            vo = vKO + (1 if ft == 2 else 0) + (2 if et == 1 else 0)
            so = 's12' if ft == 2 else '0'
            a(f'buffer_store_dwordx4 {V(KVA[ft * 2 + et], 4)}, v{vo}, {S(sWS, 4)}, {so} offen offset:{(ft % 2) * 2048 + et * 1024} sc1')
    a.wait_vm0()
    flag_set(a, 10)
    a(f's_mov_b32 s10, {OOB}')
    a('s_barrier')
    a('s_branch L_join')

    a.label('L_a_upper')
    a.restore(at_split)
    wtok = {}

    def dma5(so, lds):
        a(f's_add_u32 m0, s{sM0B}, {lds}')
        for q in range(4):
            off = f' offset:{q * 1024}' if q else ''
            a(f'buffer_load_dwordx4 v{vLN}, {S(sWS, 4)}, s{so} offen{off} sc1 lds')
        a(f's_add_u32 m0, s{sM0B}, {lds + 4096}')
        t = a(f'buffer_load_dwordx4 v{vLN + 1}, {S(sWS, 4)}, s{so} offen sc1 lds')
        a(f's_add_u32 s{so}, s{so}, 20480')
        return t

    NXR = 12
    XQ_ = lambda ks, z: Q(13 + (ks % NXR) * 2 + z)
    AQ = lambda t, z: Q(37 + 2 * t + z)
    FQ = lambda n: Q(47 + n % 5)
    xtok = {}
    for d in range(3):
        wtok[d] = dma5(10, L_RING + d * 20480)
    for d in range(10):
        a.wait(wtok[d])
        a('s_barrier')
        if 1 <= d and d + 2 < 10:
            wtok[d + 2] = dma5(10, L_RING + ((d + 2) % 3) * 20480)
        if d < 5:
            qtok = dma5(9, L_WQ + d * 20480)
        if 4 <= d < 10:
            for ks in (2 * (d - 4), 2 * (d - 4) + 1):
                for z in range(2):
                    xtok[ks] = xload(XQ_(ks, z), ks, z)
    a.wait(qtok)
    a('s_barrier')
    ftok = {}

    def read_q(n):
        off = n * 1024
        ftok[n] = a(f'ds_read_b128 {V(FQ(n), 4)}, v{vLN if off < 61440 else 27} offset:{off % 61440}')

    QBAR = int(os.environ.get('QBAR', '-1'))
    if QBAR < 0:
        a('s_barrier')
    for n in range(4):
        read_q(n)
    for n in range(100):
        if n + 4 < 100:
            read_q(n + 4)
        ks, t = divmod(n, 5)
        a.wait(ftok[n], xtok[ks])
        for z in range(2):
            c = '0' if ks == 0 else V(AQ(t, z), 4)
            a(f'v_mfma_f32_16x16x32_bf16 {V(AQ(t, z), 4)}, {V(FQ(n), 4)}, {V(XQ_(ks, z), 4)}, {c}')
        if t in (1, 3) and ks >= 1 and ks - 1 + NXR < 20:
            xtok[ks - 1 + NXR] = xload(XQ_(ks - 1 + NXR, t // 2), ks - 1 + NXR, t // 2)
        if n == QBAR:
            a('s_barrier')
    a('s_barrier')
    stamp(a, 'aend')
    PK = [Q(13), Q(14), Q(15)]
    EN5 = [Q(16 + c) for c in range(5)]
    PP = [[Q(21 + 5 * z + c) for c in range(5)] for z in range(2)]
    for z in range(2):
        E5 = [AQ(t, z) for t in range(5)]
        featmap(a, E5, PK, WPF, PP[z], E5, EN5, 32)
    stamp(a, 'fm')
    a('s_setprio 3')
    a(f's_mul_i32 s6, s{sW}, 10240')
    a(f's_add_u32 s6, s6, {L_RING}')
    a(f'v_lshlrev_b32 v31, 11, v{vG}')
    a(f'v_lshl_add_u32 v31, v{vR}, 3, v31')
    a('v_mov_b32 v21, 8192')
    a(f'v_cmp_eq_u32 vcc, v{vG}, v{vC}')
    a('v_cndmask_b32 v31, v21, v31, vcc')
    a('v_add_u32 v31, s6, v31')
    for k in range(4):
        a(f'v_mov_b32 v{44 + k}, 0')
    a(f'v_add_u32 v21, s6, v{vLN}')
    a('ds_write_b128 v21, v[44:47] offset:8192')
    a('ds_write_b128 v21, v[44:47] offset:9216')
    a(f's_lshl_b32 s4, s{sHG}, {4 + FSH}')
    a(f's_add_u32 s4, s4, {FR_OFF}')
    a(f'v_lshl_add_u32 v20, v{vI}, {FSH}, s4')
    a(f'v_lshlrev_b32 v8, 4, v{vL}')
    a('v_add_u32 v9, 4096, v8')
    a(f'v_lshlrev_b32 v10, 3, v{vL}')
    a(f's_lshl_b32 s5, s{sHG}, 13')
    a(f's_add_u32 s5, s5, {KB_OFF}')
    a(f's_lshl_b32 s7, s{sRB}, 1')
    a(f's_lshr_b32 s8, s{sW}, 1')
    a('s_add_u32 s7, s7, s8')
    a(f's_and_b32 s8, s{sW}, 1')
    a('s_lshl_b32 s8, s8, 1')
    a(f's_lshr_b32 s12, s{sHG}, 1')
    a('s_mul_i32 s12, s12, 5')
    a('s_mul_i32 s13, s7, 20')
    a('s_add_u32 s12, s12, s13')
    a('s_lshl_b32 s12, s12, 2')
    a('s_add_u32 s12, s12, s8')
    a('s_lshl_b32 s12, s12, 10')
    a(f's_add_u32 s12, s12, {OF_OFF}')
    a(f's_and_b32 s13, s{sHG}, 1')
    a(f's_mul_i32 s14, s13, {3 * 4096}')
    a('s_add_u32 s14, s14, s12')
    a('s_lshl_b32 s13, s13, 9')
    a('s_add_u32 s12, s12, s13')
    a(f's_add_u32 s12, s12, {2 * 4096}')
    a('s_lshl_b32 s13, s7, 3')
    a(f's_add_u32 s13, s13, s{sHG}')
    a('s_lshl_b32 s13, s13, 2')
    a('s_add_u32 s13, s13, s8')
    a(f's_lshl_b32 s13, s13, {FSH}')
    a(f's_add_u32 s13, s13, {FO_OFF}')
    flag_check(a, flag_issue(a, 20, 21), 20, 21, int(os.environ.get('RSLEEP', '8')))
    stamp(a, 'rok')
    for hh in range(2):
        a(f's_add_u32 m0, s6, {4096 * hh}')
        for q in range(4):
            off = f' offset:{q * 1024}' if q else ''
            a(f'buffer_load_dwordx4 v{8 + hh}, {S(sWS, 4)}, s5 offen{off} sc1 lds')
    a.wait_all()
    OA = [[Q(31 + k) for k in range(6)], [Q(37 + k) for k in range(6)]]
    KF = lambda ks, t: Q((ks % 2) * 6 + t)
    otok = {}

    def o_read(ks):
        for t in range(6):
            a(f'ds_read_b64_tr_b16 {V(KF(ks, t), 2)}, v31 offset:{kb_pos(8 * ks, t)}')
            otok[ks] = a(f'ds_read_b64_tr_b16 {V(KF(ks, t) + 2, 2)}, v31 offset:{kb_pos(8 * ks + 4, t)}')

    o_read(0)
    for ks in range(5):
        if ks + 1 < 5:
            o_read(ks + 1)
        a.wait(otok[ks])
        for z in range(2):
            for t in range(6):
                d = V(OA[z][t], 4)
                a(f'v_mfma_f32_16x16x32_bf16 {d}, {V(KF(ks, t), 4)}, {V(PP[z][ks], 4)}, {"0" if ks == 0 else d}')
    for z in range(2):
        O = OA[z]
        PO = PK if z == 0 else [Q(16), Q(17), Q(18)]
        a(f'v_add_f32 v{O[5]}, {fbits(1e-6)}, v{O[5]}')
        a(f'v_rcp_f32 v{O[5]}, v{O[5]}')
        for t in range(5):
            for h in range(2):
                a(f'v_pk_mul_f32 {V(O[t] + 2 * h, 2)}, {V(O[t] + 2 * h, 2)}, {V(O[5], 2)} op_sel_hi:[1,0]')
        for k in range(10):
            t, j = divmod(2 * k, 4)
            a(f'v_cvt_pk_bf16_f32 v{PO[k // 4] + k % 4}, v{O[t] + j}, v{O[t] + j + 1}')
        off = f' offset:{1024 * z}' if z else ''
        a(f'buffer_store_dwordx4 {V(PO[0], 4)}, v8, {S(sWS, 4)}, s14 offen{off} sc1')
        a(f'buffer_store_dwordx4 {V(PO[1], 4)}, v9, {S(sWS, 4)}, s14 offen{off} sc1')
        a(f'buffer_store_dwordx2 {V(PO[2], 2)}, v10, {S(sWS, 4)}, s12 offen{off} sc1')
    a.wait_vm0()
    flag_set(a, 13)
    a(f's_cmp_lg_u32 s{sID}, 0')
    a('s_cbranch_scc1 L_a_done')
    a(f's_cmp_lg_u32 s{sW}, 3')
    a('s_cbranch_scc1 L_a_done')
    a(f'v_and_b32 v20, 31, v{vL}')
    a('v_min_u32 v20, 26, v20')
    a(f'v_and_b32 v21, 32, v{vL}')
    a('v_add_u32 v20, v20, v21')
    a(f'v_lshlrev_b32 v20, {FSH + 2}, v20')
    for k in range(4):
        a(f'v_add_u32 v22, {FG_OFF + (k * 256 << FSH)}, v20')
        flag_check(a, flag_issue(a, 22, 21), 22, 21, 12)
    a(f'v_lshlrev_b32 v20, {FSH}, v{vL}')
    for base in (FR_OFF, FR_OFF + (64 << FSH)):
        a(f'v_add_u32 v22, {base}, v20')
        flag_check(a, flag_issue(a, 22, 21), 22, 21, 12)
    a(f'v_and_b32 v20, 31, v{vL}')
    a(f'v_lshlrev_b32 v20, {FSH}, v20')
    a(f'v_add_u32 v22, {FW_OFF}, v20')
    flag_check(a, flag_issue(a, 22, 21), 22, 21, 12)
    a(f's_mov_b32 s10, {EP_OFF}')
    flag_set(a, 10)
    a.label('L_a_done')
    stamp_flush(a, 'end')
    a('s_endpgm')


def role_b(a):
    if 'map4' in EXP:
        a(f's_lshr_b32 s{sBCB}, s6, 2')
        a('s_and_b32 s9, s6, 3')
        a('s_lshl_b32 s6, s9, 1')
    else:
        a('s_cmp_ge_u32 s6, 54')
        a('s_cselect_b32 s7, 54, 0')
        a('s_cselect_b32 s8, 4, 0')
        a('s_sub_u32 s6, s6, s7')
        a(f's_lshr_b32 s{sBCB}, s6, 1')
        a('s_and_b32 s9, s6, 1')
        a('s_lshl_b32 s6, s9, 1')
        a('s_add_u32 s6, s6, s8')
    PR = 24 if 'map4' in EXP else 48
    a(f's_add_u32 s{sBDB}, s6, s{sWH}')
    srd(a, sW1, P_W1, S_ * F_ * 2)
    g_common(a)
    gB = GGemm(a, 'B')
    gB.setup()
    BPRE = int(os.environ.get('BPRE', '10'))
    for j in range(BPRE):
        Hooks(gB.dma_items(j)).flush()

    def b_extra(j):
        return []

    a('s_lshl_b32 s4, s9, 1')
    a(f's_add_u32 s4, s4, s{sWH}')
    a(f's_mul_i32 s4, s4, {PR}')
    a(f's_lshl_b32 s5, s{sW}, 9')
    a('s_add_u32 s4, s4, s5')
    a(f's_add_u32 s4, s4, {32 * B_P}')
    a(f's_mul_i32 s4, s4, {F_ * 2}')
    a(f's_lshl_b32 s5, s{sBCB}, 7')
    a('s_add_u32 s4, s4, s5')
    a(f'v_min_u32 v24, {PR - 1}, v{vL}')
    a(f'v_mul_u32_u24 v24, {F_ * 2}, v24')
    a('v_add_u32 v24, s4, v24')
    a(f'buffer_load_dword v37, v24, {S(sW1, 4)}, 0 offen')
    srd(a, sAUX, P_B1, F_ * 2)
    a(f's_lshl_b32 s4, s{sBCB}, 7')
    a(f's_lshl_b32 s5, s{sW}, 5')
    a('s_add_u32 s4, s4, s5')
    a(f'v_lshl_add_u32 v24, v{vG}, 3, s4')
    a(f'buffer_load_dwordx2 v[38:39], v24, {S(sAUX, 4)}, 0 offen')
    tag_ready(a)
    a('s_barrier')
    stamp(a, 'prep')
    a(f's_cmp_lg_u32 s{sWH}, 0')
    a('s_cbranch_scc1 L_b_go')
    flag_check(a, flag_issue(a, vFL, vFD), vFL, vFD, 3)
    a.label('L_b_go')
    a.wait_vm0()
    a('s_barrier')
    stamp(a, 'go')
    Hooks(gB.frag_items(FIRST)).flush()
    for j in range(BPRE, B_P):
        Hooks(gB.dma_items(j)).flush()

    gB.mainloop(b_extra)
    stamp(a, 'Bend')
    gB.reduce()
    R = lambda t, j: ACC(t, 0) + j
    T = lambda t, j: ACC(t, 1) + j
    a('v_lshlrev_b32 v34, 16, v38')
    a('v_and_b32 v35, 0xffff0000, v38')
    a('v_lshlrev_b32 v36, 16, v39')
    a('v_and_b32 v37, 0xffff0000, v39')
    c0 = 0.7978845608028654
    k1 = -2.0 * c0 * LOG2E
    k2 = k1 * 0.044715
    a(f's_mov_b32 s4, {fbits(k2)}')
    a(f's_mov_b32 s5, {fbits(k2)}')
    a(f'v_mov_b32 v24, {fbits(k1)}')
    a('v_mov_b32 v26, 1.0')
    th = [(t, h) for t in range(5) for h in range(2)]
    tj = [(t, j) for t in range(5) for j in range(4)]
    for t, h in th:
        a(f'v_pk_add_f32 {V(R(t, 2 * h), 2)}, {V(R(t, 2 * h), 2)}, {V(34 + 2 * h, 2)}')
    for t, h in th:
        a(f'v_pk_mul_f32 {V(T(t, 2 * h), 2)}, {V(R(t, 2 * h), 2)}, {V(R(t, 2 * h), 2)}')
    for t, h in th:
        a(f'v_pk_fma_f32 {V(T(t, 2 * h), 2)}, {V(T(t, 2 * h), 2)}, s[4:5], v[24:25] op_sel_hi:[1,0,0]')
    for t, h in th:
        a(f'v_pk_mul_f32 {V(T(t, 2 * h), 2)}, {V(T(t, 2 * h), 2)}, {V(R(t, 2 * h), 2)}')
    for t, j in tj:
        a(f'v_exp_f32 v{T(t, j)}, v{T(t, j)}')
    for t, h in th:
        a(f'v_pk_add_f32 {V(T(t, 2 * h), 2)}, {V(T(t, 2 * h), 2)}, v[26:27] op_sel_hi:[1,0]')
    for t, j in tj:
        a(f'v_rcp_f32 v{T(t, j)}, v{T(t, j)}')
    for t, h in th:
        a(f'v_pk_mul_f32 {V(T(t, 2 * h), 2)}, {V(T(t, 2 * h), 2)}, {V(R(t, 2 * h), 2)}')
    a(f's_mul_i32 s4, s{sW8}, 2560')
    a('s_add_u32 s4, s4, 81920')
    a(f'v_lshl_add_u32 v24, v{vL}, 3, s4')
    for t in range(5):
        a(f'v_cvt_pk_bf16_f32 v{R(t, 0)}, v{T(t, 0)}, v{T(t, 1)}')
        a(f'v_cvt_pk_bf16_f32 v{R(t, 1)}, v{T(t, 2)}, v{T(t, 3)}')
        a(f'ds_write_b64 v24, {V(R(t, 0), 2)} offset:{t * 512}')
    a(f's_mul_i32 s4, s{sBDB}, 74')
    a(f's_lshl_b32 s5, s{sBCB}, 1')
    a('s_add_u32 s4, s4, s5')
    a('s_mul_i32 s4, s4, 5120')
    a(f's_add_u32 s15, s4, {GF_OFF}')
    a(f's_mul_i32 s4, s{sWH}, 10240')
    a('s_add_u32 s4, s4, 81920')
    a(f'v_lshl_add_u32 v25, v{vL}, 3, s4')
    a.wait_lg0()
    a('s_barrier')
    gt = []
    for m in range(3):
        frag10_addr(a, m, 2 * 2560 - 5 * 512, 512, 15, 24, 25, 34 + m)
        a(f'ds_read_b64 {V(ACC(m, 2), 2)}, v24')
        gt.append(a(f'ds_read_b64 {V(ACC(m, 2) + 2, 2)}, v24 offset:2560'))
    for m in range(3):
        a.wait(gt[m])
        a(f'buffer_store_dwordx4 {V(ACC(m, 2), 4)}, v{34 + m}, {S(sWS, 4)}, 0 offen sc1')
    a(f's_lshl_b32 s4, s{sBDB}, 5')
    a(f's_add_u32 s4, s4, s{sBCB}')
    a('s_lshl_b32 s4, s4, 2')
    a(f's_add_u32 s4, s4, s{sW}')
    a(f's_lshl_b32 s4, s4, {FSH}')
    a(f's_add_u32 s10, s4, {FG_OFF}')
    a('s_branch L_join')


def role_r(a):
    a('s_lshl_b32 s11, s6, 1')
    a(f's_add_u32 s11, s11, s{sWH}')
    a('s_lshr_b32 s8, s6, 3')
    a('s_lshl_b32 s8, s8, 3')
    a(f's_add_u32 s8, s8, s{sW8}')
    a('s_getpc_b64 s[6:7]')
    a.raw('L_pc:')
    a(f's_sub_u32 s{sAUX}, s6, L_pc - L_start')
    a('s_subb_u32 s7, s7, 0')
    a(f's_and_b32 s{sAUX + 1}, s7, 0xffff')
    a(f's_mov_b32 s{sAUX + 2}, L_end - L_start')
    a(f's_mov_b32 s{sAUX + 3}, 0x20000')
    a('s_lshl_b32 s6, s8, 13')
    a(f'v_lshl_add_u32 v25, v{vL}, 7, s6')
    a(f'buffer_load_dword v37, v25, {S(sAUX, 4)}, 0 offen')
    a('s_mul_i32 s5, s8, 54')
    a(f's_and_b32 s7, s{sID}, 1')
    a('s_mul_i32 s7, s7, 864')
    a('s_add_u32 s5, s5, s7')
    a('s_lshl_b32 s5, s5, 12')
    a(f's_and_b32 s7, s{sID}, 6')
    a('s_lshl_b32 s7, s7, 9')
    a('s_add_u32 s5, s5, s7')
    a(f'v_lshrrev_b32 v24, 3, v{vL}')
    a(f'v_and_b32 v25, 7, v{vL}')
    a('v_lshlrev_b32 v24, 12, v24')
    a('v_lshl_add_u32 v24, v25, 7, v24')
    a('v_add_u32 v24, s5, v24')
    tag_ready(a)
    a(f'v_mov_b32 v{vFL}, {FH_OFF}')
    flag_check(a, flag_issue(a, vFL, vFD), vFL, vFD, 16)
    PFA = int(os.environ.get('PFA', '7'))
    a('v_mov_b32 v36, v24')
    for k in range(PFA):
        a(f'buffer_load_dword v37, v36, {S(sW2, 4)}, 0 offen')
        a(f'v_add_u32 v36, {8 * 4096}, v36')
        if k % 2 == 1:
            a.wait_vm0()
    stamp(a, 'prep')
    a('s_setprio 3')
    a(f's_lshl_b32 s4, s11, {4 + FSH}')
    a(f's_add_u32 s4, s4, {FK_OFF}')
    a(f'v_lshl_add_u32 v{vFL}, v{vI}, {FSH}, s4')
    a(f's_lshl_b32 s5, s{sW}, 11')
    a(f'v_lshl_add_u32 v24, v{vL}, 4, s5')
    a(f'v_lshrrev_b32 v25, 5, v{vL}')
    a(f'v_and_b32 v26, 31, v{vL}')
    a('v_lshlrev_b32 v26, 4, v26')
    a('v_lshl_add_u32 v25, v25, 11, v26')
    a('v_add_u32 v25, 1024, v25')
    a(f's_cmp_eq_u32 s{sW}, 2')
    a('s_cselect_b64 vcc, -1, 0')
    a('v_cndmask_b32 v24, v24, v25, vcc')
    a(f'v_lshrrev_b32 v25, 3, v{vL}')
    a(f'v_and_b32 v26, 7, v{vL}')
    a('v_lshlrev_b32 v26, 4, v26')
    a('v_lshl_add_u32 v25, v25, 8, v26')
    a('v_add_u32 v25, 4096, v25')
    a(f's_cmp_eq_u32 s{sW}, 3')
    a('s_cselect_b64 vcc, -1, 0')
    a('v_cndmask_b32 v24, v24, v25, vcc')
    a(f's_mul_i32 s4, s11, {16 * 6144}')
    a(f's_add_u32 s4, s4, {KV_OFF}')
    flag_check(a, flag_issue(a, vFL, vFD), vFL, vFD, 4)
    stamp(a, 'hok')
    stok = []
    for rb in range(16):
        stok.append(a(f'buffer_load_dwordx4 {V(128 + 4 * rb, 4)}, v24, {S(sWS, 4)}, s4 offen sc1'))
        a('s_add_u32 s4, s4, 6144')
    for rb in range(1, 16):
        a.wait(stok[rb])
        for h in range(2):
            a(f'v_pk_add_f32 {V(128 + 2 * h, 2)}, {V(128 + 2 * h, 2)}, {V(128 + 4 * rb + 2 * h, 2)}')
    stamp(a, 'rsum')
    a('v_cvt_pk_bf16_f32 v34, v128, v129')
    a('v_cvt_pk_bf16_f32 v35, v130, v131')
    a('s_lshl_b32 s4, s11, 11')
    a(f's_add_u32 s4, s4, {KB_OFF}')
    a(f'v_lshl_add_u32 v24, v{vTH}, 3, s4')
    a(f'buffer_store_dwordx2 v[34:35], v24, {S(sWS, 4)}, 0 offen sc1')
    a('s_lshl_b32 s4, s11, 2')
    a(f's_add_u32 s4, s4, s{sW}')
    a(f's_lshl_b32 s4, s4, {FSH}')
    a(f's_add_u32 s10, s4, {FR_OFF}')
    a.wait_vm0()
    flag_set(a, 10)
    a(f's_mov_b32 s10, {OOB}')
    stamp(a, 'rpub')
    a('s_barrier')
    for k in range(PFA, 7):
        a(f'buffer_load_dword v37, v36, {S(sW2, 4)}, 0 offen')
        a(f'v_add_u32 v36, {8 * 4096}, v36')
    a('s_branch L_join')


def role_wot(a):
    a('s_lshl_b32 s11, s6, 1')
    a(f's_add_u32 s11, s11, s{sWH}')
    srd(a, sAUX, P_WO, D_ * D_ * 2)
    a(f'v_lshlrev_b32 v{vF}, 4, v{vL}')
    a(f'v_add_u32 v{vF + 1}, 4096, v{vF}')
    tag_ready(a)
    dma160_voffs(a, 34, 1280, False, 24)
    a('s_mul_i32 s4, s11, 160')
    a(f's_mul_i32 s5, s{sW}, {160 * 1280}')
    a('s_add_u32 s7, s4, s5')
    a(f's_mul_i32 s6, s{sW8}, 20480')
    a(f'v_mul_u32_u24 v24, 20, v{vG}')
    a(f'v_add_u32 v24, v24, v{vR}')
    a('v_mul_u32_u24 v24, 160, v24')
    a(f'v_mul_u32_u24 v25, 40, v{vC}')
    a('v_add_u32 v24, v24, v25')
    a('v_add_u32 v24, s6, v24')
    a('s_mul_i32 s4, s11, 74')
    a(f's_mul_i32 s5, s{sW}, 5')
    a('s_add_u32 s4, s4, s5')
    a('s_add_u32 s4, s4, 54')
    a('s_mul_i32 s4, s4, 5120')
    a(f's_add_u32 s4, s4, {GF_OFF}')
    rounds = [[(0, 0, 0), (0, 1, 4), (1, 0, 8), (1, 1, 12), (2, 0, 16)],
              [(2, 1, 16), (3, 0, 0), (3, 1, 4), (4, 0, 8), (4, 1, 12)]]
    for rd in range(2):
        for k in range(3):
            a(f's_add_u32 s8, s7, {(rd * 80 + k * 32) * 1280}')
            dma160(a, 34, sAUX, 8, 6, k * 5120)
        a.wait_vm0()
        for u, hf, row in rounds[rd]:
            for t in range(5):
                a(f'ds_read_b64_tr_b16 {V(156 + (u * 5 + t) * 4 + 2 * hf, 2)}, v24 offset:{row * 160 + 8 * t}')
            a.wait_lg0()
    for u in range(5):
        for t in range(5):
            vo, off = (vF, t * 1024) if t < 4 else (vF + 1, 0)
            a(f'buffer_store_dwordx4 {V(156 + (u * 5 + t) * 4, 4)}, v{vo}, {S(sWS, 4)}, s4 offen offset:{off} sc1')
        a('s_add_u32 s4, s4, 5120')
    a('s_lshl_b32 s4, s11, 2')
    a(f's_add_u32 s4, s4, s{sW}')
    a(f's_lshl_b32 s4, s4, {FSH}')
    a(f's_add_u32 s10, s4, {FW_OFF}')
    a('s_barrier')


def final_gemm(a):
    a.wait_all()
    flag_set(a, 10)
    stamp(a, 'pub')
    a('s_setprio 0')
    a(f's_cmp_lg_u32 s{sWH}, 0')
    a('s_cbranch_scc1 L_fin')
    xcd_tile(a)
    g_common(a)
    g2 = GGemm(a, 'G2')
    g2.setup()
    for j in range(G2_P):
        Hooks(g2.dma_items(j)).flush()
    srd(a, sOUT, P_OUT, S_ * D_ * 2)
    R = lambda t, j: ACC(t, 0) + j
    T = lambda t, j: ACC(t, 1) + j
    srd(a, sAUX, P_B2, S_ * 2)
    a(f's_lshl_b32 s4, s{sRB}, {5 + FSH}')
    a(f's_lshl_b32 s5, s{sW}, {3 + FSH}')
    a('s_add_u32 s4, s4, s5')
    a(f's_add_u32 s4, s4, {FO_OFF}')
    a(f'v_lshl_add_u32 v34, v{vC}, {FSH + 1}, s4')
    a(f's_lshl_b32 s4, s{sHG}, 2')
    a(f's_add_u32 s4, s4, s{sW}')
    a(f's_lshl_b32 s4, s4, {FSH}')
    a(f's_add_u32 s4, s4, {FW_OFF}')
    a('v_mov_b32 v35, s4')
    a(f'v_cmp_gt_u32 vcc, 63, v{vL}')
    a(f'v_cndmask_b32 v{vFL}, v35, v{vFL}, vcc')
    for nt in range(4):
        a(f's_xor_b32 s4, s{sW}, {nt}')
        a('s_lshl_b32 s4, s4, 10')
        a(f'v_add_u32 v{vOF + nt}, s4, v{vF}')
    a(f's_mul_i32 s4, s{sRB}, 20')
    a(f's_mul_i32 s5, s{sW}, 5')
    a('s_add_u32 s4, s4, s5')
    a('s_lshl_b32 s4, s4, 12')
    a(f's_add_u32 s11, s4, {OF_OFF}')
    a(f'v_mul_u32_u24 v{vXA}, 1280, v{vTOK}')
    a(f'v_mul_u32_u24 v{vBA}, 40, v{vG}')
    a(f'v_add_u32 v{vXA}, v{vXA}, v{vBA}')
    a(f's_mul_i32 s4, s{sHG}, 160')
    a(f'v_add_u32 v{vXA}, s4, v{vXA}')
    a(f'v_lshlrev_b32 v{vBA}, 1, v{vTOK}')
    flag_check(a, flag_issue(a, vFL, vFD), vFL, vFD)
    stamp(a, 'gok')
    fl = {}

    def gate():
        a(f's_mul_i32 s4, s{sHG}, 74')
        a(f's_mul_i32 s5, s{sW}, 5')
        a('s_add_u32 s4, s4, s5')
        a('s_add_u32 s4, s4, 54')
        a('s_mul_i32 s4, s4, 5120')
        a(f's_add_u32 s{sFS}, s4, {GF_OFF}')

    def gate2():
        stamp(a, 'oa')
        flag_check(a, fl['o'], 34, 35)
        stamp(a, 'ob')

    g2.gate = gate
    g2.gate2 = gate2
    XR = [8, 10, 14, 16, 18]

    def g2_extra(j):
        it = []
        if j == 9:
            def fo():
                fl['o'] = flag_issue(a, 34, 35)
            it.append(fo)
        if j == 16:
            def resid():
                a(f'buffer_load_ushort v36, v{vBA}, {S(sAUX, 4)}, 0 offen')
                for t in range(5):
                    fl['x'] = a(f'buffer_load_dwordx2 {V(XR[t], 2)}, v{vXA}, {S(sX, 4)}, 0 offen offset:{8 * t}')
            it.append(resid)
        return it

    Hooks(g2.frag_items(FIRST)).flush()
    g2.mainloop(g2_extra)
    stamp(a, 'Gend')
    g2.reduce()
    a.wait(fl['x'])
    a('v_lshlrev_b32 v36, 16, v36')
    for t in range(5):
        for h in range(2):
            a(f'v_lshlrev_b32 v{T(t, 2 * h)}, 16, v{XR[t] + h}')
            a(f'v_and_b32 v{T(t, 2 * h + 1)}, 0xffff0000, v{XR[t] + h}')
            a(f'v_pk_add_f32 {V(R(t, 2 * h), 2)}, {V(R(t, 2 * h), 2)}, v[36:37] op_sel_hi:[1,0]')
            a(f'v_pk_add_f32 {V(R(t, 2 * h), 2)}, {V(R(t, 2 * h), 2)}, {V(T(t, 2 * h), 2)}')
        a(f'v_cvt_pk_bf16_f32 v{R(t, 0)}, v{R(t, 0)}, v{R(t, 1)}')
        a(f'v_cvt_pk_bf16_f32 v{R(t, 1)}, v{R(t, 2)}, v{R(t, 3)}')
        a(f'buffer_store_dwordx2 {V(R(t, 0), 2)}, v{vXA}, {S(sOUT, 4)}, 0 offen offset:{8 * t}')
    a.label('L_fin')
    stamp_flush(a, 'end')


def build():
    a = Asm()
    hdr = open(os.path.join(os.path.dirname(__file__), '..', 'cdna_kernels', NAME + '.s.ref')).read().split('\n')
    for line in hdr:
        if line.startswith(';') and '@launch' not in line:
            a.raw(line)
    a.raw(f'; @launch grid=(256,1,1) block=(512,1,1) lds={LDS_BYTES}')
    a.raw('.amdgcn_target "amdgcn-amd-amdhsa--gfx950"')
    a.raw('.text')
    K = NAME + '_kernel'
    a.raw(f'.globl {K}')
    a.raw('.p2align 8')
    a.raw(f'.type {K},@function')
    a.raw(f'{K}:')
    a.raw('L_start:')
    a('s_cmp_ge_u32 s2, 256')
    a('s_cbranch_scc1 L_end')
    a('s_load_dwordx16 s[16:31], s[0:1], 0')
    a('s_load_dwordx8 s[32:39], s[0:1], 64')
    a(f'v_and_b32 v{vL}, 63, v0')
    a('v_lshrrev_b32 v6, 6, v0')
    a(f'v_readfirstlane_b32 s{sW8}, v6')
    a(f'v_lshrrev_b32 v{vG}, 4, v{vL}')
    a(f'v_and_b32 v{vI}, 15, v{vL}')
    a(f'v_lshrrev_b32 v{vR}, 2, v{vI}')
    a(f'v_and_b32 v{vC}, 3, v{vL}')
    a(f'v_lshl_add_u32 v{vGR}, v{vG}, 2, v{vR}')
    a(f'v_and_b32 v{vTH}, 255, v0')
    a(f's_and_b32 s{sW}, s{sW8}, 3')
    a(f's_lshr_b32 s{sWH}, s{sW8}, 2')
    a(f's_mov_b32 s{sID}, s2')
    a('s_waitcnt lgkmcnt(0)')
    a(f's_add_u32 s4, s{P_WS}, {EP_OFF}')
    a(f's_addc_u32 s5, s{P_WS + 1}, 0')
    a(f's_load_dword s{sTAG}, s[4:5], 0')
    srd(a, sX, P_X, S_ * D_ * 2)
    srd(a, sWS, P_WS, WS_USED)
    srd(a, sW2, P_W2, F_ * S_ * 2)
    stamp(a, 'start')
    if os.environ.get('UPRIO', '1') != '0':
        a(f's_cmp_eq_u32 s{sWH}, 0')
        a('s_cbranch_scc1 L_prio')
        a(f's_setprio {os.environ.get("UPRIO", "1")}')
        a.label('L_prio')
    a('s_cmp_ge_u32 s2, 128')
    a('s_cbranch_scc1 L_not_a')
    role_a(a)
    a.label('L_not_a')
    a.reset_counters()
    a('s_and_b32 s4, s2, 7')
    a('s_lshr_b32 s5, s2, 3')
    a('s_sub_u32 s5, s5, 16')
    a('s_cmp_ge_u32 s5, 14')
    a('s_cbranch_scc1 L_role_r')
    a('s_and_b32 s7, s4, 1')
    a('s_add_u32 s7, s7, 13')
    a('s_cmp_ge_u32 s5, s7')
    a('s_cbranch_scc1 L_role_wot')
    a('s_mul_i32 s6, s4, 27')
    a('s_lshr_b32 s6, s6, 1')
    a('s_add_u32 s6, s6, s5')
    role_b(a)
    a.label('L_role_r')
    a.reset_counters()
    a('s_sub_u32 s6, s2, 240')
    role_r(a)
    a.label('L_role_wot')
    a.reset_counters()
    a('s_lshr_b32 s6, s4, 1')
    role_wot(a)
    a.label('L_join')
    final_gemm(a)
    a.label('L_end')
    a('s_endpgm')
    if STAMPS:
        a.raw('; STAMPS ' + ' '.join(STAMP_NAMES))
    a.raw('.section .rodata,"a"')
    a.raw(f""".p2align 6
.amdhsa_kernel {K}
  .amdhsa_next_free_vgpr 256
  .amdhsa_next_free_sgpr 102
  .amdhsa_accum_offset 256
  .amdhsa_group_segment_fixed_size 0
  .amdhsa_kernarg_size 96
  .amdhsa_user_sgpr_count 2
  .amdhsa_user_sgpr_kernarg_segment_ptr 1
  .amdhsa_system_sgpr_workgroup_id_x 1
.end_amdhsa_kernel""")
    sys.stderr.write(f'maxv={a.maxv} maxa={a.maxa} maxs={a.maxs} nops={a.nops} lines={len(a.out)}\n')
    return a.text()


if __name__ == '__main__':
    out = sys.argv[1] if len(sys.argv) > 1 else os.path.join(os.path.dirname(__file__), '..', 'cdna_kernels', NAME + '.s')
    open(out, 'w').write(build())
```

```python
import sys, struct, os
sys.path.insert(0, os.path.dirname(__file__))
from asmdsl import Asm, Rec, V, A, S

NAME = 'parallel_sum__linear_kernel_hedgehog__mixer_token_mlp__prompt'
S_, D_, F_ = 2048, 640, 1728

HF_OFF = 0
HF_SZ = 8 * 64 * 5 * 1024
GF_OFF = HF_OFF + HF_SZ
GF_SZ = 8 * 74 * 5 * 1024
OF_OFF = GF_OFF + GF_SZ
OF_SZ = 32 * 20 * 4 * 1024
XF_OFF = OF_OFF + OF_SZ
XF_SZ = 128 * 20480
WF_OFF = XF_OFF + XF_SZ
WF_SZ = 480 * 5120 + 4096
KV_OFF = WF_OFF + WF_SZ
KV_SZ = 32 * 32 * 6144
KB_OFF = KV_OFF + KV_SZ + 4096
KB_SZ = 32 * 2048
FL_OFF = KB_OFF + KB_SZ + 4096
FSH = int(os.environ.get('FSH', '6'))
FH_OFF = FL_OFF
FK_OFF = FH_OFF + (1024 << FSH)
FR_OFF = FK_OFF + (1024 << FSH)
FG_OFF = FR_OFF + (128 << FSH)
FO_OFF = FG_OFF + (1024 << FSH)
FW_OFF = FO_OFF + (1024 << FSH)
FU_OFF = FW_OFF + (128 << FSH)
EP_OFF = FU_OFF + (512 << FSH)
WS_USED = EP_OFF + 512
STAMP_OFF = WS_USED
WS_USED += 512 * 256
STAMPS = bool(int(os.environ.get('STAMPS', '0')))
EXP = os.environ.get('EXP', '').split(',') + ['map4', 'ntb']
OOB = 0x40000000

P_X, P_WQKV, P_WPHI, P_WO, P_BX, P_W1, P_B1, P_W2, P_B2, P_OUT, P_DBG, P_WS = range(16, 40, 2)
LOG2E = 1.4426950408889634

sW = 3
sW8, sWH = 90, 91
sWS, sX, sWQ, sW1, sW2, sAUX, sOUT = 40, 44, 48, 52, 56, 60, 64
sHG, sRB, sID, sROT, sKS, sT, sM0B, sTAG = 68, 69, 70, 71, 72, 73, 74, 75
sL, sNL = 76, 78
sBDB, sBCB, sFS, sGM0, sSPIN, sLIM = 80, 81, 82, 83, 84, 85
vL, vG, vI, vR, vC = 1, 2, 3, 4, 5
vTOK, vGR = 6, 7
vFS = 42
DB = 64
XN = lambda s: DB + 8 * s
UP = lambda k: DB + 8 * k + 4

LDS_BYTES = 163840
A_SLOTS = 4
L_WQ = 0
L_RING = 102400
L_ZERO = 122880
L_WPHI = 126976
L_CNT = 131072
B_P = 10
G2_P = 5
ILV = os.environ.get('ILV', 'burst')


def kb_pos(f, t):
    if f < 32:
        return (f >> 4) * 512 + (t * 16 + (f & 15)) * 8 if t < 4 else 1024 + ((f >> 4) * 32 + (t - 4) * 16 + (f & 15)) * 8
    return 1536 + (t * 8 + f - 32) * 8


def fbits(x):
    return '0x%08x' % struct.unpack('<I', struct.pack('<f', x))[0]


def srd(a, dst, ptr, nbytes):
    a(f's_mov_b32 s{dst}, s{ptr}')
    a(f's_and_b32 s{dst + 1}, s{ptr + 1}, 0xffff')
    a(f's_mov_b32 s{dst + 2}, {nbytes}')
    a(f's_mov_b32 s{dst + 3}, 0x20000')


STAMP_NAMES = []
vST = 41


def stamp(a, name):
    if not STAMPS:
        return
    name = str(name)
    if name not in STAMP_NAMES:
        STAMP_NAMES.append(name)
    idx = STAMP_NAMES.index(name)
    a('s_memrealtime s[98:99]')
    a.wait_lg0()
    if idx == 0:
        a(f'v_mov_b32 v{vST}, 0')
        a('s_getreg_b32 s97, hwreg(HW_REG_HW_ID)')
        a(f'v_writelane_b32 v{vST}, s97, 63')
    a(f'v_writelane_b32 v{vST}, s98, {idx}')


def stamp_flush(a, n):
    if not STAMPS:
        return
    a.wait_vm0()
    stamp(a, n)
    lab = a.newlabel('st')
    a(f's_cmp_lg_u32 s{sW}, 0')
    a(f's_cbranch_scc1 {lab}')
    a(f's_lshl_b32 s4, s{sWH}, 8')
    a('s_add_u32 s4, s4, s2')
    a('s_lshl_b32 s4, s4, 8')
    a(f's_add_u32 s4, s4, {STAMP_OFF}')
    a(f'v_lshl_add_u32 v8, v{vL}, 2, s4')
    a(f'buffer_store_dword v{vST}, v8, {S(sWS, 4)}, 0 offen')
    a.label(lab)


def reduce_g(a, r, t):
    a(f'v_mov_b32 v{t}, v{r}')
    a(f'v_permlane32_swap_b32 v{r}, v{t}')
    a(f'v_add_f32 v{r}, v{r}, v{t}')
    a(f'v_mov_b32 v{t}, v{r}')
    a(f'v_permlane16_swap_b32 v{r}, v{t}')
    a(f'v_add_f32 v{r}, v{r}, v{t}')


def dma160_voffs(a, dst, stride, permute, tmp):
    t0, t2, t3 = tmp, tmp + 1, tmp + 2
    for q in range(5):
        d = dst + q
        a(f'v_add_u32 v{t0}, {q * 64}, v{vL}')
        a(f'v_mul_u32_u24 v{t2}, 6554, v{t0}')
        a(f'v_lshrrev_b32 v{t2}, 16, v{t2}')
        a(f'v_mul_u32_u24 v{t3}, 10, v{t2}')
        a(f'v_sub_u32 v{t0}, v{t0}, v{t3}')
        if permute:
            a(f'v_bfe_u32 v{t3}, v{t2}, 2, 2')
            a(f'v_lshlrev_b32 v{t3}, 3, v{t3}')
            a(f'v_and_b32 v{d}, 3, v{t2}')
            a(f'v_add_u32 v{t3}, v{t3}, v{d}')
            a(f'v_lshrrev_b32 v{t2}, 4, v{t2}')
            a(f'v_lshl_add_u32 v{t2}, v{t2}, 2, v{t3}')
        a(f'v_mul_u32_u24 v{t2}, {stride}, v{t2}')
        a(f'v_lshl_add_u32 v{d}, v{t0}, 4, v{t2}')
        if 0 < q < 4:
            a(f'v_subrev_u32 v{d}, {q * 1024}, v{d}')


def dma160(a, vo, ssrd, soff, m0_s, m0_add, nt=''):
    a(f's_add_u32 m0, s{m0_s}, {m0_add}')
    for q in range(4):
        off = f' offset:{q * 1024}' if q else ''
        a(f'buffer_load_dwordx4 v{vo + q}, {S(ssrd, 4)}, s{soff} offen{off}{nt} lds')
    a(f's_add_u32 m0, s{m0_s}, {m0_add + 4096}')
    return a(f'buffer_load_dwordx4 v{vo + 4}, {S(ssrd, 4)}, s{soff} offen{nt} lds')


class Hooks:
    def __init__(self, items=()):
        self.items = list(items)

    def run(self, n=1):
        for _ in range(n):
            if self.items:
                self.items.pop(0)()

    def flush(self):
        self.run(len(self.items))


def softmax_pm(a, P, PH, EP, EN, tmp):
    p = [P[k // 4] + k % 4 for k in range(20)]
    ep = [EP[k // 4] + k % 4 for k in range(20)]
    en = [EN[k // 4] + k % 4 for k in range(20)]
    mx, mn, sp, sn = tmp, tmp + 2, tmp + 4, tmp + 6
    a(f'v_max3_f32 v{mx}, v{p[0]}, v{p[1]}, v{p[2]}')
    a(f'v_min3_f32 v{mn}, v{p[0]}, v{p[1]}, v{p[2]}')
    for k in range(3, 19, 2):
        a(f'v_max3_f32 v{mx}, v{mx}, v{p[k]}, v{p[k + 1]}')
        a(f'v_min3_f32 v{mn}, v{mn}, v{p[k]}, v{p[k + 1]}')
    a(f'v_max_f32 v{mx}, v{mx}, v{p[19]}')
    a(f'v_min_f32 v{mn}, v{mn}, v{p[19]}')
    a(f'v_mul_f32 v{mx}, s{sNL}, v{mx}')
    a(f'v_mul_f32 v{mn}, s{sL}, v{mn}')
    for k in range(0, 20, 2):
        a(f'v_pk_fma_f32 {V(ep[k], 2)}, {V(p[k], 2)}, {S(sL, 2)}, {V(mx, 2)} op_sel_hi:[1,0,0]')
        a(f'v_pk_fma_f32 {V(en[k], 2)}, {V(p[k], 2)}, {S(sNL, 2)}, {V(mn, 2)} op_sel_hi:[1,0,0]')
    for k in range(20):
        a(f'v_exp_f32 v{ep[k]}, v{ep[k]}')
        a(f'v_exp_f32 v{en[k]}, v{en[k]}')
    a(f'v_pk_add_f32 {V(sp, 2)}, {V(ep[0], 2)}, {V(ep[2], 2)}')
    a(f'v_pk_add_f32 {V(sn, 2)}, {V(en[0], 2)}, {V(en[2], 2)}')
    for k in range(4, 20, 2):
        a(f'v_pk_add_f32 {V(sp, 2)}, {V(sp, 2)}, {V(ep[k], 2)}')
        a(f'v_pk_add_f32 {V(sn, 2)}, {V(sn, 2)}, {V(en[k], 2)}')
    a(f'v_add_f32 v{sp}, v{sp}, v{sp + 1}')
    a(f'v_add_f32 v{sn}, v{sn}, v{sn + 1}')
    a(f'v_rcp_f32 v{sp}, v{sp}')
    a(f'v_rcp_f32 v{sn}, v{sn}')
    for k in range(0, 20, 2):
        a(f'v_pk_mul_f32 {V(ep[k], 2)}, {V(ep[k], 2)}, {V(sp, 2)} op_sel_hi:[1,0]')
        a(f'v_pk_mul_f32 {V(en[k], 2)}, {V(en[k], 2)}, {V(sn, 2)} op_sel_hi:[1,0]')
    allv = ep + en
    for k in range(20):
        a(f'v_cvt_pk_bf16_f32 v{PH[k // 4] + k % 4}, v{allv[2 * k]}, v{allv[2 * k + 1]}')


def flag_set(a, s_off):
    a(f'v_lshl_add_u32 v{vFS}, v{vL}, 2, s{s_off}')
    a(f'v_mov_b32 v{vFS + 1}, s{sTAG}')
    a(f's_mov_b64 exec, {hex((1 << (1 << (FSH - 2))) - 1)}')
    a(f'buffer_store_dword v{vFS + 1}, v{vFS}, {S(sWS, 4)}, 0 offen sc1')
    a('s_mov_b64 exec, -1')


def flag_issue(a, vaddr, vdst):
    return a(f'buffer_load_dword v{vdst}, v{vaddr}, {S(sWS, 4)}, 0 offen sc1')


def flag_check(a, tok, vaddr, vdst, sleep=2):
    ok = a.newlabel('ok')
    lp = a.newlabel('poll')
    a.wait(tok)
    a(f'v_cmp_ne_u32 vcc, s{sTAG}, v{vdst}')
    a(f's_cbranch_vccz {ok}')
    a(f's_mov_b32 s{sSPIN}, 0')
    a.label(lp)
    a(f's_sleep {sleep}')
    a.raw(f'\tbuffer_load_dword v{vdst}, v{vaddr}, {S(sWS, 4)}, 0 offen sc1')
    a('s_waitcnt vmcnt(0)')
    a(f'v_cmp_ne_u32 vcc, s{sTAG}, v{vdst}')
    a(f's_cbranch_vccz {ok}')
    a(f's_add_u32 s{sSPIN}, s{sSPIN}, 1')
    a(f's_cmp_lt_u32 s{sSPIN}, 0x8000')
    a(f's_cbranch_scc1 {lp}')
    a.label(ok)


def featmap(a, ACC5, PK, WPF, P5, EP5, EN5, tmp):
    for k in range(10):
        t, j = divmod(2 * k, 4)
        a(f'v_cvt_pk_bf16_f32 v{PK[k // 4] + k % 4}, v{ACC5[t] + j}, v{ACC5[t] + j + 1}')
    for ks in range(3):
        for t in range(5):
            d = V(P5[t], 4)
            if ks < 2:
                a(f'v_mfma_f32_16x16x32_bf16 {d}, {V(WPF(t, ks), 4)}, {V(PK[ks], 4)}, {"0" if ks == 0 else d}')
            else:
                a(f'v_mfma_f32_16x16x16_bf16 {d}, {V(WPF(t, ks), 2)}, {V(PK[ks], 2)}, {d}')
    softmax_pm(a, P5, P5, EP5, EN5, tmp)


def xcd_tile(a):
    a(f's_and_b32 s4, s{sID}, 7')
    a(f's_lshr_b32 s5, s{sID}, 3')
    a('s_and_b32 s6, s4, 1')
    a('s_lshl_b32 s6, s6, 2')
    a('s_and_b32 s7, s5, 3')
    a(f's_add_u32 s{sHG}, s6, s7')
    a('s_lshr_b32 s6, s4, 1')
    a('s_lshl_b32 s6, s6, 3')
    a('s_lshr_b32 s7, s5, 2')
    a(f's_add_u32 s{sRB}, s6, s7')
    a(f's_lshl_b32 s4, s{sRB}, 6')
    a(f's_lshl_b32 s5, s{sW}, 4')
    a('s_add_u32 s4, s4, s5')
    a(f'v_add_u32 v{vTOK}, s4, v{vI}')


def ln_scales(a, vS, vRS, vNB):
    a(f'v_mul_f32 v{vS}, {fbits(1.0 / 640)}, v{vS}')
    a(f'v_mul_f32 v{vS + 2}, {fbits(1.0 / 640)}, v{vS + 2}')
    a(f'v_fma_f32 v{vS + 2}, -v{vS}, v{vS}, v{vS + 2}')
    a(f'v_max_f32 v{vS + 2}, 0, v{vS + 2}')
    a(f'v_add_f32 v{vS + 1}, {fbits(1e-5)}, v{vS + 2}')
    a(f'v_rsq_f32 v{vRS}, v{vS + 1}')
    a(f'v_mul_f32 v{vNB}, v{vS}, v{vRS}')
    a(f'v_sub_f32 v{vNB}, 0, v{vNB}')


vD, vF, vT, vT2, vFL, vFD, vOF, vXA, vBA = 8, 12, 14, 18, 22, 23, 28, 32, 33
ACC = lambda t, nt: 44 + (nt * 5 + t) * 4
TF = lambda j, nt: 124 + (j % 2) * 16 + 4 * nt
POOL = [156 + 4 * k for k in range(25)]


class GGemm:
    def __init__(self, a, kind):
        self.a, self.kind = a, kind
        if kind == 'B':
            self.stride, self.srdm, self.n, self.fr_off, self.fr_steps = F_ * 2, sW1, 16, HF_OFF, 64
            self.sdb, self.scb, self.ntot, self.P = sBDB, sBCB, 16, B_P
        else:
            self.stride, self.srdm, self.n, self.fr_off, self.fr_steps = S_ * 2, sW2, 14, GF_OFF, 74
            self.sdb, self.scb, self.ntot, self.P = sHG, sRB, 19, G2_P
        self.dtok, self.ftok, self.ttok = {}, {}, {}
        self.free = list(POOL)
        self.reg = {}
        self.pending = []
        order = [(j, 'a') for j in range(self.n)]
        if kind == 'G2':
            order += [(14, 'a'), (15, 'a'), (14, 'b'), (15, 'b'), (16, 'a'), (16, 'b'), (17, 'a'), (17, 'b'), (18, 'a'), (18, 'b')]
        for j, k in order:
            self.pending += [(j, k, x) for x in range(5 if k == 'a' else 4)]
        self.gate = lambda: None
        self.gate2 = lambda: None
        self.nq = 2 if kind == 'B' else 4

    def setup(self):
        a, st = self.a, self.stride
        a(f'v_lshrrev_b32 v24, 3, v{vL}')
        if self.kind == 'B':
            a('v_lshrrev_b32 v25, 2, v24')
            a('v_and_b32 v24, 3, v24')
            a('v_lshl_add_u32 v24, v25, 3, v24')
        a(f'v_mul_u32_u24 v24, {st}, v24')
        a(f'v_and_b32 v25, 7, v{vL}')
        a(f'v_lshlrev_b32 v26, 1, v{vG}')
        a('v_xor_b32 v25, v25, v26')
        a('v_lshl_add_u32 v24, v25, 4, v24')
        a(f's_lshl_b32 s4, s{self.scb}, 7')
        a(f's_mul_i32 s5, s{sW}, {self.n * 32 * st}')
        a('s_add_u32 s5, s5, s4')
        if self.kind == 'B':
            a(f's_mul_i32 s6, s{sWH}, {4 * st}')
            a('s_add_u32 s5, s5, s6')
            a(f's_lshl_b32 s6, s{sWH}, 11')
            a(f's_add_u32 s{sM0B}, s{sGM0}, s6')
        else:
            a(f's_mov_b32 s{sM0B}, s{sGM0}')
        for q in range(self.nq):
            row = 8 * q if self.kind != 'B' else q * 16
            a(f's_add_u32 s6, s5, {row * st - 1024 * q}')
            a(f'v_add_u32 v{vD + q}, s6, v24')
        a(f's_mul_i32 s4, s{self.sdb}, {self.fr_steps}')
        a(f's_mul_i32 s5, s{sW}, {self.n}')
        a('s_add_u32 s4, s4, s5')
        a('s_mul_i32 s4, s4, 5120')
        a(f's_add_u32 s{sFS}, s4, {self.fr_off}')
        if self.kind == 'B':
            a(f's_lshl_b32 s4, s{sW}, {6 + FSH}')
            a(f's_add_u32 s4, s4, {FH_OFF}')
            a(f'v_lshl_add_u32 v{vFL}, v{vL}, {FSH}, s4')
        else:
            a(f's_lshl_b32 s4, s{self.sdb}, {7 + FSH}')
            a(f's_mul_i32 s5, s{sW}, {28 << FSH}')
            a('s_add_u32 s4, s4, s5')
            a(f's_add_u32 s4, s4, {FG_OFF}')
            a(f's_mul_i32 s5, s{self.sdb}, {74 * 5120}')
            a(f's_add_u32 s{sLIM}, s5, {GF_OFF + 53 * 5120}')
            a(f's_cmp_eq_u32 s{sW}, 3')
            a('s_cselect_b32 s5, 23, 27')
            a(f'v_min_u32 v24, s5, v{vL}')
            a(f'v_lshl_add_u32 v{vFL}, v24, {FSH}, s4')

    def dma_items(self, j):
        a = self.a

        def one(q):
            def f():
                if q == 0:
                    a(f's_add_u32 m0, s{sM0B}, {(j % self.P) * 16384}')
                off = f' offset:{q * 1024}' if q else ''
                nt = ' nt' if ('ntb' in EXP and self.kind == 'B' and j < self.P) else ''
                self.dtok[j] = a(f'buffer_load_dwordx4 v{vD + q}, {S(self.srdm, 4)}, 0 offen{off}{nt} lds')
                if not ('hotw' in EXP):
                    a(f'v_add_u32 v{vD + q}, {32 * self.stride}, v{vD + q}')
            return f
        return [one(q) for q in range(self.nq)]

    def frag_items(self):
        a = self.a
        out = []
        while self.free and self.pending:
            key = self.pending.pop(0)
            r = self.free.pop(0)
            self.reg[key] = r

            def f(key=key, r=r):
                j, kind, x = key
                if key == (self.n, 'a', 0):
                    self.gate()
                if key == (self.n, 'b', 0):
                    self.gate2()
                if kind == 'a':
                    vo, off = (vF, x * 1024) if x < 4 else (vF + 1, 0)
                    offs = f' offset:{off}' if off else ''
                    self.ftok[j] = a(f'buffer_load_dwordx4 {V(r, 4)}, v{vo}, {S(sWS, 4)}, s{sFS} offen{offs} sc1')
                    if x == 4 and 'hotf' not in EXP:
                        a(f's_add_u32 s{sFS}, s{sFS}, 5120')
                        if self.kind == 'G2' and j < 14:
                            a(f's_min_u32 s{sFS}, s{sFS}, s{sLIM}')
                else:
                    if j - self.n == 2:
                        a(f'v_lshlrev_b32 v24, 3, v{vL}')
                        a(f'v_sub_u32 v24, v{vOF + x}, v24')
                        a(f'buffer_load_dwordx2 {V(r, 2)}, v24, {S(sWS, 4)}, s11 offen sc1')
                        self.ftok[j] = a(f'buffer_load_dwordx2 {V(r + 2, 2)}, v24, {S(sWS, 4)}, s11 offen offset:512 sc1')
                    else:
                        self.ftok[j] = a(f'buffer_load_dwordx4 {V(r, 4)}, v{vOF + x}, {S(sWS, 4)}, s11 offen sc1')
                    if x == 3:
                        a('s_add_u32 s11, s11, 4096')
            out.append(f)
        return out

    def tr_items(self, j):
        a = self.a

        def one(nt):
            def f():
                off = (j % self.P) * 16384
                base = vT
                if off >= 65536:
                    if off % 65536 == 0:
                        a(f'v_add_u32 v{vT2 + nt}, {off}, v{vT + nt}')
                    off %= 65536
                    base = vT2
                a(f'ds_read_b64_tr_b16 {V(TF(j, nt), 2)}, v{base + nt} offset:{off}')
                self.ttok[j] = a(f'ds_read_b64_tr_b16 {V(TF(j, nt) + 2, 2)}, v{base + nt} offset:{off + 2048}')
            return f
        return [one(nt) for nt in range(4)]

    def mainloop(self, extra):
        a, n = self.a, self.n
        a.wait(self.dtok[0])
        Hooks(self.tr_items(0)).flush()
        for j in range(self.ntot):
            items = []
            if j + 1 < n:
                a.wait(self.dtok[j + 1])
            a.wait(self.ftok[j], self.ttok.get(j))
            if self.kind == 'B' and j + 1 < n and (j + self.P < n or j + 1 >= self.P):
                a('s_barrier')
            if j % 3 == 0:
                stamp(a, f'{self.kind}_{j}')
            if j + 1 < n:
                items += self.tr_items(j + 1)
            if j + self.P < n:
                items += self.dma_items(j + self.P)
            items += extra(j)
            items += self.frag_items()
            last = j == self.ntot - 1
            if self.kind == 'G2' and j == 16:
                a('s_barrier')
            if last:
                a(f's_mul_i32 s7, s{sWH}, 102400')
                for nt in range(1, 4):
                    a(f's_xor_b32 s4, s{sW}, {nt}')
                    a('s_mul_i32 s4, s4, 15360')
                    a(f's_add_u32 s4, s4, {(nt - 1) * 5120}')
                    a('s_add_u32 s4, s4, s7')
                    a(f'v_add_u32 v{24 + nt}, s4, v{vF}')
                wr = [(nt, t) for nt in (1, 2, 3) for t in range(5)]
            hk = Hooks(items)
            k = 0
            ILV = os.environ.get('ILVB', 'fine') if self.kind == 'B' else os.environ.get('ILVG', 'burst')
            for nt in (1, 2, 3, 0):
                for t in range(5):
                    acc = V(ACC(t, nt), 4)
                    c = '0' if j == 0 else acc
                    fr = V(self.reg[(j, 'a', t)], 4)
                    tf = V(TF(j, nt) if j < n else self.reg[(j, 'b', nt)], 4)
                    if self.kind == 'B':
                        a(f'v_mfma_f32_16x16x32_bf16 {acc}, {tf}, {fr}, {c}')
                    else:
                        a(f'v_mfma_f32_16x16x32_bf16 {acc}, {fr}, {tf}, {c}')
                    k += 1
                    if last and k > 5:
                        wn, wt = wr.pop(0)
                        a(f'ds_write_b128 v{24 + wn}, {V(ACC(wt, wn), 4)} offset:{wt * 1024}')
                    if ILV == 'fine':
                        if k % 4 != 0:
                            hk.run()
                    elif ILV == 'burst':
                        if k <= 4 and j + 1 < n:
                            hk.run()
                    elif ILV == 'two':
                        if k <= 4 and j + 1 < n:
                            hk.run()
                        if k == 10:
                            hk.run(4)
                    elif ILV == 'pre':
                        if k == 1:
                            hk.flush()
            hk.flush()
            self.free += [r for key, r in self.reg.items() if key[0] == j]
            if n - 2 <= j < n:
                self.free += [TF(j, nt) for nt in range(4)]

    def reduce(self):
        a = self.a
        a(f's_mul_i32 s4, s{sW}, 15360')
        a('s_add_u32 s4, s4, s7')
        a(f'v_add_u32 v24, s4, v{vF}')
        a.wait_lg0()
        a('s_barrier')
        rtok = {}
        for nt in range(1, 4):
            for t in range(5):
                rtok[(nt, t)] = a(f'ds_read_b128 {V(ACC(t, nt), 4)}, v24 offset:{(nt - 1) * 5120 + t * 1024}')
        for nt in range(1, 4):
            for t in range(5):
                a.wait(rtok[(nt, t)])
                for h in range(2):
                    d = V(ACC(t, 0) + 2 * h, 2)
                    a(f'v_pk_add_f32 {d}, {d}, {V(ACC(t, nt) + 2 * h, 2)}')


def frag10_addr(a, m, hi_add, step, base_s, vrd, vrd_base, vst):
    a(f's_add_u32 s4, s{sW}, {4 * m}')
    a('s_min_u32 s5, s4, 9')
    a('s_cmp_ge_u32 s5, 5')
    a(f's_cselect_b32 s6, {hi_add}, 0')
    a(f's_mul_i32 s5, s5, {step}')
    a('s_add_u32 s5, s5, s6')
    a(f'v_add_u32 v{vrd}, s5, v{vrd_base}')
    a('s_lshl_b32 s5, s4, 10')
    a(f's_add_u32 s5, s5, s{base_s}')
    a('s_cmp_ge_u32 s4, 10')
    a(f's_cselect_b32 s5, {OOB}, s5')
    a(f'v_lshl_add_u32 v{vst}, v{vL}, 4, s5')


NTP = ' nt' if 'ntp' in EXP else ''
vTH = 40


def g_common(a):
    a(f'v_lshlrev_b32 v{vF}, 4, v{vL}')
    a(f'v_add_u32 v{vF + 1}, 4096, v{vF}')
    a(f's_lshl_b32 s{sGM0}, s{sW}, 12')
    a(f'v_bfe_u32 v25, v{vGR}, 1, 2')
    a(f'v_xor_b32 v25, s{sW}, v25')
    a(f'v_lshlrev_b32 v26, 7, v{vGR}')
    a(f'v_lshl_add_u32 v26, v{vC}, 3, v26')
    a(f'v_add_u32 v26, s{sGM0}, v26')
    for nt in range(4):
        a(f'v_xor_b32 v27, {nt}, v25')
        a(f'v_lshl_add_u32 v{vT + nt}, v27, 5, v26')


def tag_ready(a):
    a('s_waitcnt lgkmcnt(0)')
    a(f's_add_u32 s{sTAG}, s{sTAG}, 1')


def role_a(a):
    a(f's_and_b32 s4, s{sID}, 7')
    a(f's_lshr_b32 s5, s{sID}, 3')
    a('s_and_b32 s6, s4, 1')
    a('s_lshl_b32 s6, s6, 2')
    a('s_and_b32 s7, s5, 3')
    a(f's_add_u32 s{sHG}, s6, s7')
    a('s_lshr_b32 s6, s4, 1')
    a('s_lshl_b32 s6, s6, 2')
    a('s_lshr_b32 s7, s5, 2')
    a('s_add_u32 s6, s6, s7')
    a(f's_mov_b32 s{sRB}, s6')
    a('s_lshl_b32 s6, s6, 3')
    a(f's_add_u32 s15, s6, s{sHG}')
    a('s_lshl_b32 s12, s15, 1')
    a(f's_add_u32 s12, s12, s{sWH}')
    X = 156
    a('s_lshl_b32 s4, s12, 2')
    a(f's_add_u32 s4, s4, s{sW}')
    a('s_mul_i32 s4, s4, 2560')
    a(f'v_mul_u32_u24 v24, 40, v{vL}')
    xt = []
    for k in range(5):
        xt.append(a(f'buffer_load_dwordx2 {V(X + 2 * k, 2)}, v24, {S(sX, 4)}, s4 offen offset:{8 * k}{NTP}'))
    srd(a, sWQ, P_WQKV, D_ * 3 * D_ * 2)
    vLN = 8
    a(f'v_lshlrev_b32 v{vLN}, 4, v{vL}')
    a(f'v_add_u32 v{vLN + 1}, 4096, v{vLN}')
    a(f's_mul_i32 s{sM0B}, s{sW8}, 5120')
    a('s_lshl_b32 s10, s15, 2')
    a(f's_add_u32 s10, s10, s{sW}')
    a('s_mul_i32 s4, s10, 1093')
    a('s_lshr_b32 s4, s4, 16')
    a('s_mul_i32 s5, s4, 60')
    a('s_sub_u32 s5, s10, s5')
    a('s_lshr_b32 s6, s5, 1')
    a('s_and_b32 s7, s5, 1')
    a('s_add_u32 s7, s7, 1')
    a('s_sub_u32 s8, s5, 40')
    a('s_cmp_ge_u32 s5, 40')
    a('s_cselect_b32 s6, s8, s6')
    a('s_cselect_b32 s7, 0, s7')
    a(f's_mul_i32 s6, s6, {32 * 3840}')
    a('s_mul_i32 s7, s7, 1280')
    a('s_mul_i32 s4, s4, 160')
    a('s_add_u32 s6, s6, s7')
    a('s_add_u32 s6, s6, s4')
    a(f's_cmp_eq_u32 s{sWH}, 0')
    a('s_cselect_b32 s10, 480, s10')
    dma160_voffs(a, 12, 3840, True, 18)
    a('s_cmp_ge_u32 s10, 480')
    a(f's_cselect_b32 s7, {OOB}, 0')
    for q in range(5):
        a(f'v_add_u32 v{12 + q}, s7, v{12 + q}')
    utok = dma160(a, 12, sWQ, 6, sM0B, 0, NTP)
    a(f's_mul_i32 s13, s{sWH}, 24576')
    a('s_add_u32 s13, s13, 65536')
    a('s_add_u32 s14, s13, 12288')
    srd(a, sAUX, P_WPHI, 32 * 800)
    a(f's_mul_i32 s6, s{sHG}, 3200')
    a(f's_lshl_b32 s7, s{sW}, 10')
    a('s_add_u32 s6, s6, s7')
    a(f'v_lshl_add_u32 v10, v{vL}, 4, s6')
    a(f's_add_u32 m0, s7, {L_WPHI}')
    a(f'buffer_load_dwordx4 v10, {S(sAUX, 4)}, 0 offen lds')
    for k in range(4):
        a(f'v_mov_b32 v{44 + k}, 0')
    a(f'v_lshlrev_b32 v18, 4, v{vTH}')
    a(f'v_add_u32 v18, {L_ZERO}, v18')
    a('ds_write_b128 v18, v[44:47]')
    a(f'v_mov_b32 v10, {L_CNT}')
    a('v_mov_b32 v11, 0')
    a('ds_write2_b32 v10, v11, v11 offset0:0 offset1:1')
    vONE, vS, vRS, vNB = 34, 36, 168, 170
    a(f'v_mov_b32 v{vONE}, 0x3f803f80')
    for k in range(4):
        a(f'v_mov_b32 v{vS + k}, 0')
    a('s_waitcnt lgkmcnt(0)')
    a(f's_add_u32 s{sTAG}, s{sTAG}, 1')
    a.wait(xt[4])
    stamp(a, 'x')
    for k in range(10):
        a(f'v_dot2c_f32_bf16 v{vS + (k & 1)}, v{X + k}, v{vONE}')
        a(f'v_dot2c_f32_bf16 v{vS + 2 + (k & 1)}, v{X + k}, v{X + k}')
    a(f'v_add_f32 v{vS}, v{vS}, v{vS + 1}')
    a(f'v_add_f32 v{vS + 2}, v{vS + 2}, v{vS + 3}')
    for sh in (8, 4, 2, 1):
        for r in (vS, vS + 2):
            a(f'v_add_f32_dpp v{r}, v{r}, v{r} row_ror:{sh} row_mask:0xf bank_mask:0xf')
    for r in (vS, vS + 2):
        a(f'v_mov_b32 v{r + 1}, v{r}')
        a(f'v_permlane16_swap_b32 v{r}, v{r + 1}')
        a(f'v_add_f32 v{r}, v{r}, v{r + 1}')
    ln_scales(a, vS, vRS, vNB)
    a(f'v_mul_f32 v{vS + 1}, v{vRS}, v{vRS}')
    a(f'v_mov_b32 v{vS + 3}, {fbits(1e-5)}')
    a(f'v_fmac_f32 v{vS + 3}, v{vS + 1}, v{vS + 2}')
    a(f'v_rsq_f32 v{vS + 2}, v{vS + 3}')
    U = 172
    for k in range(10):
        a(f'v_lshlrev_b32 v{U + 2 * k}, 16, v{X + k}')
        a(f'v_and_b32 v{U + 2 * k + 1}, 0xffff0000, v{X + k}')
    for k in range(10):
        a(f'v_pk_fma_f32 {V(U + 2 * k, 2)}, {V(U + 2 * k, 2)}, {V(vRS, 2)}, {V(vNB, 2)} op_sel_hi:[1,0,0]')
    XQ = 192
    for k in range(10):
        a(f'v_cvt_pk_bf16_f32 v{XQ + k}, v{U + 2 * k}, v{U + 2 * k + 1}')
    for k in range(10):
        a(f'v_pk_mul_f32 {V(U + 2 * k, 2)}, {V(U + 2 * k, 2)}, {V(vS + 2, 2)} op_sel_hi:[1,0]')
    for k in range(10):
        a(f'v_cvt_pk_bf16_f32 v{X + k}, v{U + 2 * k}, v{U + 2 * k + 1}')
    a(f's_mul_i32 s4, s{sW}, {2 * 1296}')
    a('s_add_u32 s4, s4, s13')
    a(f'v_mul_u32_u24 v24, 40, v{vL}')
    a(f'v_lshrrev_b32 v25, 5, v{vL}')
    a('v_lshl_add_u32 v24, v25, 4, v24')
    a('v_add_u32 v24, s4, v24')
    for k in range(5):
        a(f'ds_write_b64 v24, {V(XQ + 2 * k, 2)} offset:{8 * k}')
    a(f'v_and_b32 v25, 7, v{vTH}')
    a(f'v_lshrrev_b32 v26, 3, v{vTH}')
    a('v_mul_u32_u24 v28, 1296, v25')
    a('v_lshl_add_u32 v28, v26, 4, v28')
    a('v_add_u32 v28, s13, v28')
    a('v_lshlrev_b32 v29, 8, v26')
    a('v_lshl_add_u32 v29, v25, 4, v29')
    a(f's_lshr_b32 s4, s12, 1')
    a('s_mul_i32 s4, s4, 20480')
    a(f's_and_b32 s5, s12, 1')
    a('s_lshl_b32 s5, s5, 7')
    a('s_add_u32 s4, s4, s5')
    a(f's_add_u32 s4, s4, {XF_OFF}')
    a('v_add_u32 v29, s4, v29')
    a('v_add_u32 v30, 8192, v29')
    a(f's_cmp_ge_u32 s{sW}, 2')
    a(f's_cselect_b32 s4, {OOB}, 16384')
    a('v_add_u32 v31, s4, v29')
    a(f's_mul_i32 s4, s{sW}, 2560')
    a('s_add_u32 s4, s4, s14')
    a(f'v_mul_u32_u24 v24, 40, v{vL}')
    a('v_add_u32 v24, s4, v24')
    for k in range(5):
        a(f'ds_write_b64 v24, {V(X + 2 * k, 2)} offset:{8 * k}')
    a(f'v_mul_u32_u24 v24, 1280, v{vR}')
    a(f'v_mul_u32_u24 v25, 160, v{vG}')
    a('v_add_u32 v24, v24, v25')
    a(f'v_mul_u32_u24 v25, 40, v{vC}')
    a('v_add_u32 v24, v24, v25')
    a('v_add_u32 v24, s14, v24')
    a(f'v_mul_u32_u24 v25, {64 * 5120}, v{vG}')
    a(f'v_lshl_add_u32 v25, v{vI}, 4, v25')
    a(f's_lshr_b32 s4, s12, 2')
    a('s_mul_i32 s4, s4, 5120')
    a(f's_and_b32 s5, s12, 3')
    a('s_lshl_b32 s5, s5, 8')
    a('s_add_u32 s4, s4, s5')
    a(f's_add_u32 s8, s4, {HF_OFF}')
    a.wait_lg0()
    a('s_barrier')
    ht = []
    for m in range(3):
        ht.append(a(f'ds_read_b128 {V(XQ + 4 * m, 4)}, v28 offset:{512 * m}'))
    for m in range(3):
        a.wait(ht[m])
        a(f'buffer_store_dwordx4 {V(XQ + 4 * m, 4)}, v{29 + m}, {S(sWS, 4)}, 0 offen sc1')
    ht = []
    for m in range(3):
        a(f's_add_u32 s4, s{sW}, {4 * m}')
        a('s_min_u32 s5, s4, 9')
        a('s_cmp_ge_u32 s5, 5')
        a(f's_cselect_b32 s6, {640 - 40}, 0')
        a(f's_cselect_b32 s7, {4 * 64 * 5120 - 5120}, 0')
        a('s_lshl_b32 s5, s5, 3')
        a('s_add_u32 s5, s5, s6')
        a('v_add_u32 v26, s5, v24')
        a(f'ds_read_b64_tr_b16 {V(U + 4 * m, 2)}, v26')
        ht.append(a(f'ds_read_b64_tr_b16 {V(U + 4 * m + 2, 2)}, v26 offset:{4 * 1280}'))
        a('s_lshl_b32 s5, s4, 10')
        a('s_add_u32 s5, s5, s7')
        a('s_add_u32 s5, s5, s8')
        a('s_cmp_ge_u32 s4, 10')
        a(f's_cselect_b32 s5, {OOB}, s5')
        a(f'v_add_u32 v{34 + m}, s5, v25')
    for m in range(3):
        a.wait(ht[m])
        a(f'buffer_store_dwordx4 {V(U + 4 * m, 4)}, v{34 + m}, {S(sWS, 4)}, 0 offen sc1')
    hst = ('vm', a.vm_issued - 1)
    a(f'v_mul_u32_u24 v29, 160, v{vGR}')
    a(f'v_mul_u32_u24 v24, 40, v{vC}')
    a('v_add_u32 v29, v29, v24')
    a(f'v_add_u32 v29, s{sM0B}, v29')
    a('s_mul_i32 s4, s10, 5120')
    a(f's_add_u32 s4, s4, {WF_OFF}')
    a('s_cmp_ge_u32 s10, 480')
    a(f's_cselect_b32 s4, {OOB}, s4')
    a(f'v_add_u32 v24, s4, v{vLN}')
    a(f'v_add_u32 v25, s4, v{vLN + 1}')
    a(f's_lshl_b32 s5, s10, {FSH}')
    a(f's_add_u32 s5, s5, {FU_OFF}')
    a('s_cmp_ge_u32 s10, 480')
    a(f's_cselect_b32 s10, {OOB}, s5')
    a.wait(utok)
    ut = []
    for t in range(5):
        a(f'ds_read_b64_tr_b16 {V(UP(t), 2)}, v29 offset:{8 * t}')
        ut.append(a(f'ds_read_b64_tr_b16 {V(UP(t) + 2, 2)}, v29 offset:{8 * t + 2560}'))
    for t in range(5):
        a.wait(ut[t])
        vo, off = (24, t * 1024) if t < 4 else (25, 0)
        a(f'buffer_store_dwordx4 {V(UP(t), 4)}, v{vo}, {S(sWS, 4)}, 0 offen offset:{off} sc1')
    a(f's_lshl_b32 s4, s{sWH}, 2')
    a(f's_add_u32 s4, s4, {L_CNT}')
    a('v_mov_b32 v10, s4')
    a('v_mov_b32 v11, 1')
    a.wait(hst)
    a('s_mov_b64 exec, 1')
    a('ds_add_rtn_u32 v11, v10, v11')
    a('s_mov_b64 exec, -1')
    a.wait_lg0()
    a('v_readfirstlane_b32 s5, v11')
    a(f's_lshl_b32 s4, s12, {FSH}')
    a(f's_add_u32 s4, s4, {FH_OFF}')
    a('s_cmp_lg_u32 s5, 3')
    a('s_cbranch_scc1 L_nofh')
    flag_set(a, 4)
    a.label('L_nofh')
    a.wait_vm0()
    flag_set(a, 10)
    stamp(a, 'prep')
    a(f's_mov_b32 s{sL}, {fbits(LOG2E)}')
    a(f's_mov_b32 s{sL + 1}, {fbits(LOG2E)}')
    a(f's_mov_b32 s{sNL}, {fbits(-LOG2E)}')
    a(f's_mov_b32 s{sNL + 1}, {fbits(-LOG2E)}')
    a(f's_mul_i32 s10, s{sHG}, 60')
    a(f's_lshl_b32 s4, s10, {FSH}')
    a(f's_add_u32 s4, s4, {FU_OFF}')
    a(f'v_lshl_add_u32 v20, v{vL}, {FSH}, s4')
    a(f's_lshl_b32 s11, s{sRB}, 2')
    a(f's_add_u32 s11, s11, s{sW}')
    a(f's_lshl_b32 s4, s11, {FSH + 2}')
    a(f's_add_u32 s4, s4, {FH_OFF}')
    a(f'v_lshl_add_u32 v21, v{vC}, {FSH}, s4')
    a(f'v_cmp_gt_u32 vcc, 60, v{vL}')
    a('v_cndmask_b32 v20, v21, v20, vcc')
    a(f's_add_u32 s10, s10, s{sW}')
    a('s_mul_i32 s10, s10, 5120')
    a(f's_add_u32 s10, s10, {WF_OFF}')
    a(f's_add_u32 s9, s10, {40 * 5120}')
    a(f's_mul_i32 s{sM0B}, s{sW}, 5120')
    a('s_mul_i32 s11, s11, 40960')
    a(f's_add_u32 s11, s11, {XF_OFF}')
    a(f'v_add_u32 v10, 20480, v{vLN}')
    a(f'v_add_u32 v26, {L_RING}, v{vLN}')
    a(f'v_add_u32 v27, 61440, v{vLN}')

    def wphi_frags(WPF, wbase, zbase):
        a(f'v_mul_u32_u24 v22, 800, v{vG}')
        a(f'v_mul_u32_u24 v23, 40, v{vR}')
        a('v_add_u32 v22, v22, v23')
        a(f'v_add_u32 v22, {wbase}, v22')
        a(f'v_mov_b32 v23, {zbase}')
        a(f'v_cmp_eq_u32 vcc, v{vG}, v{vC}')
        a('v_cndmask_b32 v22, v23, v22, vcc')
        for t in range(5):
            for d4 in range(5):
                a(f'ds_read_b64_tr_b16 {V(WPF(t, d4 // 2) + 2 * (d4 % 2), 2)}, v22 offset:{4 * d4 * 40 + 8 * t}')

    Q = lambda k: 48 + 4 * k
    WPF = lambda t, ks: Q(2 * t + ks) if ks < 2 else Q(10 + t // 2) + 2 * (t % 2)
    a('s_barrier')
    wphi_frags(WPF, L_WPHI, L_ZERO)
    a.wait_lg0()
    a('s_barrier')
    flag_check(a, flag_issue(a, 20, 21), 20, 21)
    stamp(a, 'go')

    def xload(dst, ks, z):
        off = f' offset:{(ks % 4) * 1024}' if ks % 4 else ''
        t = a(f'buffer_load_dwordx4 {V(dst, 4)}, v{vLN if z == 0 else 10}, {S(sWS, 4)}, s11 offen{off} sc1')
        if ks % 4 == 3 and z == 1:
            a('s_add_u32 s11, s11, 4096')
        return t

    a(f's_cmp_lg_u32 s{sWH}, 0')
    a('s_cbranch_scc1 L_a_upper')
    at_split = a.save()
    a('s_setprio 2')
    AC = lambda k, z: Q(13 + 2 * k + z)
    XR = lambda ks, z: Q(33 + (ks % 6) * 2 + z)
    FW = lambda n: Q(45 + n % 7)
    xtok = {}
    for ks in range(5):
        for z in range(2):
            xtok[ks] = xload(XR(ks, z), ks, z)
    a('s_barrier')
    stamp(a, 'a0')
    WIN, NF = 6, 200
    ftok = {}

    def read_frag(n):
        d, r = divmod(n, 20)
        ftok[n] = a(f'ds_read_b128 {V(FW(n), 4)}, v26 offset:{(d % 3) * 20480 + r * 1024}')

    for n in range(WIN):
        read_frag(n)
    for n in range(NF):
        nn = n + WIN
        if nn < NF:
            if nn % 20 == 0:
                a.wait_lg0()
                a('s_barrier')
                if (nn // 20) % 3 == 0:
                    stamp(a, f'a{nn // 20}')
            read_frag(nn)
        ks, k = divmod(n, 10)
        a.wait(ftok[n], xtok[ks])
        for z in range(2):
            c = '0' if ks == 0 else V(AC(k, z), 4)
            a(f'v_mfma_f32_16x16x32_bf16 {V(AC(k, z), 4)}, {V(FW(n), 4)}, {V(XR(ks, z), 4)}, {c}')
        if k in (2, 6) and ks + 5 < 20:
            xtok[ks + 5] = xload(XR(ks + 5, k // 4), ks + 5, k // 4)
    a('s_barrier')
    stamp(a, 'aend')
    vSA, vKA, vKO = 8, 9, 12
    a(f's_lshl_b32 s4, s{sW}, 5')
    a(f'v_lshl_add_u32 v{vSA}, v{vG}, 7, v{vI}')
    a(f'v_add_u32 v{vSA}, s4, v{vSA}')
    a(f'v_mul_u32_u24 v{vSA}, 120, v{vSA}')
    a(f'v_add_u32 v{vSA}, {L_RING}, v{vSA}')
    for z in range(2):
        for t in range(5):
            r = AC(5 + t, z)
            a(f'v_cvt_pk_bf16_f32 v{r}, v{r}, v{r + 1}')
            a(f'v_cvt_pk_bf16_f32 v{r + 1}, v{r + 2}, v{r + 3}')
            a(f'ds_write_b64 v{vSA}, {V(r, 2)} offset:{z * 16 * 120 + 80 + 8 * t}')
    PK = [Q(33), Q(34), Q(35)]
    EN5 = [Q(36 + c) for c in range(5)]
    for z in range(2):
        E5 = [AC(t, z) for t in range(5)]
        P5 = [Q(41 + 5 * z + c) for c in range(5)]
        featmap(a, E5, PK, WPF, P5, E5, EN5, 32)
        for c in range(10):
            a(f'ds_write_b64 v{vSA}, {V(P5[c // 2] + 2 * (c % 2), 2)} offset:{z * 16 * 120 + 8 * c}')
    stamp(a, 'fm')
    a(f's_mul_i32 s4, s{sW}, {128 * 120}')
    a(f's_add_u32 s4, s4, {L_RING}')
    a(f'v_mul_u32_u24 v{vKA}, 120, v{vGR}')
    a(f'v_lshl_add_u32 v{vKA}, v{vC}, 3, v{vKA}')
    a(f'v_add_u32 v{vKA}, s4, v{vKA}')
    a(f's_lshl_b32 s4, s{sHG}, 2')
    a(f's_add_u32 s4, s4, s{sW}')
    a('s_lshl_b32 s4, s4, 4')
    a(f's_add_u32 s13, s4, s{sRB}')
    a('s_mul_i32 s4, s13, 6144')
    a(f's_add_u32 s4, s4, {KV_OFF}')
    a(f'v_lshl_add_u32 v{vKO}, v{vL}, 4, s4')
    a('s_movk_i32 s12, 0x1000')
    a(f'v_mov_b32 v11, {OOB}')
    a(f'v_cmp_gt_u32 vcc, 8, v{vI}')
    a(f'v_cndmask_b32 v{vKO + 1}, v11, v{vKO}, vcc')
    a(f'v_cmp_gt_u32 vcc, 2, v{vG}')
    a(f'v_cndmask_b32 v{vKO + 2}, v11, v{vKO}, vcc')
    a(f'v_cndmask_b32 v{vKO + 3}, v11, v{vKO + 1}, vcc')
    a(f's_lshl_b32 s13, s13, {FSH}')
    a(f's_add_u32 s10, s13, {FK_OFF}')
    a('v_mov_b32 v11, 0x3f803f80')
    a(f'v_cmp_eq_u32 vcc, 1, v{vR}')
    a.wait_lg0()
    a('s_barrier')
    ktok = {}
    OPQ = lambda kk, x: Q(13 + kk * 5 + x)
    KVA = [Q(k) for k in range(6)]

    def kv_read(kk):
        for x in range(5):
            col = 32 * x if x < 3 else 80 + 32 * (x - 3)
            a(f'ds_read_b64_tr_b16 {V(OPQ(kk, x), 2)}, v{vKA} offset:{kk * 32 * 120 + col}')
            ktok[kk] = a(f'ds_read_b64_tr_b16 {V(OPQ(kk, x) + 2, 2)}, v{vKA} offset:{kk * 32 * 120 + 16 * 120 + col}')

    kv_read(0)
    for kk in range(4):
        if kk + 1 < 4:
            kv_read(kk + 1)
        a.wait(ktok[kk])
        for j in range(4):
            a(f'v_cndmask_b32 v{OPQ(kk, 4) + j}, v{OPQ(kk, 4) + j}, v11, vcc')
        for et in range(2):
            for ft in range(3):
                d = V(KVA[ft * 2 + et], 4)
                a(f'v_mfma_f32_16x16x32_bf16 {d}, {V(OPQ(kk, 3 + et), 4)}, {V(OPQ(kk, ft), 4)}, {"0" if kk == 0 else d}')
    for ft in range(3):
        for et in range(2):
            vo = vKO + (1 if ft == 2 else 0) + (2 if et == 1 else 0)
            so = 's12' if ft == 2 else '0'
            a(f'buffer_store_dwordx4 {V(KVA[ft * 2 + et], 4)}, v{vo}, {S(sWS, 4)}, {so} offen offset:{(ft % 2) * 2048 + et * 1024} sc1')
    a.wait_vm0()
    flag_set(a, 10)
    a(f's_mov_b32 s10, {OOB}')
    a('s_barrier')
    a('s_branch L_join')

    a.label('L_a_upper')
    a.restore(at_split)
    wtok = {}

    def dma5(so, lds):
        a(f's_add_u32 m0, s{sM0B}, {lds}')
        for q in range(4):
            off = f' offset:{q * 1024}' if q else ''
            a(f'buffer_load_dwordx4 v{vLN}, {S(sWS, 4)}, s{so} offen{off} sc1 lds')
        a(f's_add_u32 m0, s{sM0B}, {lds + 4096}')
        t = a(f'buffer_load_dwordx4 v{vLN + 1}, {S(sWS, 4)}, s{so} offen sc1 lds')
        a(f's_add_u32 s{so}, s{so}, 20480')
        return t

    NXR = 12
    XQ_ = lambda ks, z: Q(13 + (ks % NXR) * 2 + z)
    AQ = lambda t, z: Q(37 + 2 * t + z)
    FQ = lambda n: Q(47 + n % 5)
    xtok = {}
    for d in range(3):
        wtok[d] = dma5(10, L_RING + d * 20480)
    for d in range(10):
        a.wait(wtok[d])
        a('s_barrier')
        if 1 <= d and d + 2 < 10:
            wtok[d + 2] = dma5(10, L_RING + ((d + 2) % 3) * 20480)
        if d < 5:
            qtok = dma5(9, L_WQ + d * 20480)
        if 4 <= d < 10:
            for ks in (2 * (d - 4), 2 * (d - 4) + 1):
                for z in range(2):
                    xtok[ks] = xload(XQ_(ks, z), ks, z)
    a.wait(qtok)
    a('s_barrier')
    ftok = {}

    def read_q(n):
        off = n * 1024
        ftok[n] = a(f'ds_read_b128 {V(FQ(n), 4)}, v{vLN if off < 61440 else 27} offset:{off % 61440}')

    QBAR = int(os.environ.get('QBAR', '-1'))
    if QBAR < 0:
        a('s_barrier')
    for n in range(4):
        read_q(n)
    for n in range(100):
        if n + 4 < 100:
            read_q(n + 4)
        ks, t = divmod(n, 5)
        a.wait(ftok[n], xtok[ks])
        for z in range(2):
            c = '0' if ks == 0 else V(AQ(t, z), 4)
            a(f'v_mfma_f32_16x16x32_bf16 {V(AQ(t, z), 4)}, {V(FQ(n), 4)}, {V(XQ_(ks, z), 4)}, {c}')
        if t in (1, 3) and ks >= 1 and ks - 1 + NXR < 20:
            xtok[ks - 1 + NXR] = xload(XQ_(ks - 1 + NXR, t // 2), ks - 1 + NXR, t // 2)
        if n == QBAR:
            a('s_barrier')
    a('s_barrier')
    stamp(a, 'aend')
    PK = [Q(13), Q(14), Q(15)]
    EN5 = [Q(16 + c) for c in range(5)]
    PP = [[Q(21 + 5 * z + c) for c in range(5)] for z in range(2)]
    for z in range(2):
        E5 = [AQ(t, z) for t in range(5)]
        featmap(a, E5, PK, WPF, PP[z], E5, EN5, 32)
    stamp(a, 'fm')
    a('s_setprio 3')
    a(f's_mul_i32 s6, s{sW}, 10240')
    a(f's_add_u32 s6, s6, {L_RING}')
    a(f'v_lshlrev_b32 v31, 11, v{vG}')
    a(f'v_lshl_add_u32 v31, v{vR}, 3, v31')
    a('v_mov_b32 v21, 8192')
    a(f'v_cmp_eq_u32 vcc, v{vG}, v{vC}')
    a('v_cndmask_b32 v31, v21, v31, vcc')
    a('v_add_u32 v31, s6, v31')
    for k in range(4):
        a(f'v_mov_b32 v{44 + k}, 0')
    a(f'v_add_u32 v21, s6, v{vLN}')
    a('ds_write_b128 v21, v[44:47] offset:8192')
    a('ds_write_b128 v21, v[44:47] offset:9216')
    a(f's_lshl_b32 s4, s{sHG}, {4 + FSH}')
    a(f's_add_u32 s4, s4, {FR_OFF}')
    a(f'v_lshl_add_u32 v20, v{vI}, {FSH}, s4')
    a(f'v_lshlrev_b32 v8, 4, v{vL}')
    a('v_add_u32 v9, 4096, v8')
    a(f'v_lshlrev_b32 v10, 3, v{vL}')
    a(f's_lshl_b32 s5, s{sHG}, 13')
    a(f's_add_u32 s5, s5, {KB_OFF}')
    a(f's_lshl_b32 s7, s{sRB}, 1')
    a(f's_lshr_b32 s8, s{sW}, 1')
    a('s_add_u32 s7, s7, s8')
    a(f's_and_b32 s8, s{sW}, 1')
    a('s_lshl_b32 s8, s8, 1')
    a(f's_lshr_b32 s12, s{sHG}, 1')
    a('s_mul_i32 s12, s12, 5')
    a('s_mul_i32 s13, s7, 20')
    a('s_add_u32 s12, s12, s13')
    a('s_lshl_b32 s12, s12, 2')
    a('s_add_u32 s12, s12, s8')
    a('s_lshl_b32 s12, s12, 10')
    a(f's_add_u32 s12, s12, {OF_OFF}')
    a(f's_and_b32 s13, s{sHG}, 1')
    a(f's_mul_i32 s14, s13, {3 * 4096}')
    a('s_add_u32 s14, s14, s12')
    a('s_lshl_b32 s13, s13, 9')
    a('s_add_u32 s12, s12, s13')
    a(f's_add_u32 s12, s12, {2 * 4096}')
    a('s_lshl_b32 s13, s7, 3')
    a(f's_add_u32 s13, s13, s{sHG}')
    a('s_lshl_b32 s13, s13, 2')
    a('s_add_u32 s13, s13, s8')
    a(f's_lshl_b32 s13, s13, {FSH}')
    a(f's_add_u32 s13, s13, {FO_OFF}')
    flag_check(a, flag_issue(a, 20, 21), 20, 21, int(os.environ.get('RSLEEP', '8')))
    stamp(a, 'rok')
    for hh in range(2):
        a(f's_add_u32 m0, s6, {4096 * hh}')
        for q in range(4):
            off = f' offset:{q * 1024}' if q else ''
            a(f'buffer_load_dwordx4 v{8 + hh}, {S(sWS, 4)}, s5 offen{off} sc1 lds')
    a.wait_all()
    OA = [[Q(31 + k) for k in range(6)], [Q(37 + k) for k in range(6)]]
    KF = lambda ks, t: Q((ks % 2) * 6 + t)
    otok = {}

    def o_read(ks):
        for t in range(6):
            a(f'ds_read_b64_tr_b16 {V(KF(ks, t), 2)}, v31 offset:{kb_pos(8 * ks, t)}')
            otok[ks] = a(f'ds_read_b64_tr_b16 {V(KF(ks, t) + 2, 2)}, v31 offset:{kb_pos(8 * ks + 4, t)}')

    o_read(0)
    for ks in range(5):
        if ks + 1 < 5:
            o_read(ks + 1)
        a.wait(otok[ks])
        for z in range(2):
            for t in range(6):
                d = V(OA[z][t], 4)
                a(f'v_mfma_f32_16x16x32_bf16 {d}, {V(KF(ks, t), 4)}, {V(PP[z][ks], 4)}, {"0" if ks == 0 else d}')
    for z in range(2):
        O = OA[z]
        PO = PK if z == 0 else [Q(16), Q(17), Q(18)]
        a(f'v_add_f32 v{O[5]}, {fbits(1e-6)}, v{O[5]}')
        a(f'v_rcp_f32 v{O[5]}, v{O[5]}')
        for t in range(5):
            for h in range(2):
                a(f'v_pk_mul_f32 {V(O[t] + 2 * h, 2)}, {V(O[t] + 2 * h, 2)}, {V(O[5], 2)} op_sel_hi:[1,0]')
        for k in range(10):
            t, j = divmod(2 * k, 4)
            a(f'v_cvt_pk_bf16_f32 v{PO[k // 4] + k % 4}, v{O[t] + j}, v{O[t] + j + 1}')
        off = f' offset:{1024 * z}' if z else ''
        a(f'buffer_store_dwordx4 {V(PO[0], 4)}, v8, {S(sWS, 4)}, s14 offen{off} sc1')
        a(f'buffer_store_dwordx4 {V(PO[1], 4)}, v9, {S(sWS, 4)}, s14 offen{off} sc1')
        a(f'buffer_store_dwordx2 {V(PO[2], 2)}, v10, {S(sWS, 4)}, s12 offen{off} sc1')
    a.wait_vm0()
    flag_set(a, 13)
    a(f's_cmp_lg_u32 s{sID}, 0')
    a('s_cbranch_scc1 L_a_done')
    a(f's_cmp_lg_u32 s{sW}, 3')
    a('s_cbranch_scc1 L_a_done')
    a(f'v_and_b32 v20, 31, v{vL}')
    a('v_min_u32 v20, 26, v20')
    a(f'v_and_b32 v21, 32, v{vL}')
    a('v_add_u32 v20, v20, v21')
    a(f'v_lshlrev_b32 v20, {FSH + 2}, v20')
    for k in range(4):
        a(f'v_add_u32 v22, {FG_OFF + (k * 256 << FSH)}, v20')
        flag_check(a, flag_issue(a, 22, 21), 22, 21, 12)
    a(f'v_lshlrev_b32 v20, {FSH}, v{vL}')
    for base in (FR_OFF, FR_OFF + (64 << FSH)):
        a(f'v_add_u32 v22, {base}, v20')
        flag_check(a, flag_issue(a, 22, 21), 22, 21, 12)
    a(f'v_and_b32 v20, 31, v{vL}')
    a(f'v_lshlrev_b32 v20, {FSH}, v20')
    a(f'v_add_u32 v22, {FW_OFF}, v20')
    flag_check(a, flag_issue(a, 22, 21), 22, 21, 12)
    a(f's_mov_b32 s10, {EP_OFF}')
    flag_set(a, 10)
    a.label('L_a_done')
    stamp_flush(a, 'end')
    a('s_endpgm')


def role_b(a):
    if 'map4' in EXP:
        a(f's_lshr_b32 s{sBCB}, s6, 2')
        a('s_and_b32 s9, s6, 3')
        a('s_lshl_b32 s6, s9, 1')
    else:
        a('s_cmp_ge_u32 s6, 54')
        a('s_cselect_b32 s7, 54, 0')
        a('s_cselect_b32 s8, 4, 0')
        a('s_sub_u32 s6, s6, s7')
        a(f's_lshr_b32 s{sBCB}, s6, 1')
        a('s_and_b32 s9, s6, 1')
        a('s_lshl_b32 s6, s9, 1')
        a('s_add_u32 s6, s6, s8')
    PR = 24 if 'map4' in EXP else 48
    a(f's_add_u32 s{sBDB}, s6, s{sWH}')
    srd(a, sW1, P_W1, S_ * F_ * 2)
    g_common(a)
    gB = GGemm(a, 'B')
    gB.setup()
    for j in range(B_P):
        Hooks(gB.dma_items(j)).flush()
    a('s_lshl_b32 s4, s9, 1')
    a(f's_add_u32 s4, s4, s{sWH}')
    a(f's_mul_i32 s4, s4, {PR}')
    a(f's_lshl_b32 s5, s{sW}, 9')
    a('s_add_u32 s4, s4, s5')
    a(f's_add_u32 s4, s4, {32 * B_P}')
    a(f's_mul_i32 s4, s4, {F_ * 2}')
    a(f's_lshl_b32 s5, s{sBCB}, 7')
    a('s_add_u32 s4, s4, s5')
    a(f'v_min_u32 v24, {PR - 1}, v{vL}')
    a(f'v_mul_u32_u24 v24, {F_ * 2}, v24')
    a('v_add_u32 v24, s4, v24')
    a(f'buffer_load_dword v37, v24, {S(sW1, 4)}, 0 offen')
    srd(a, sAUX, P_B1, F_ * 2)
    a(f's_lshl_b32 s4, s{sBCB}, 7')
    a(f's_lshl_b32 s5, s{sW}, 5')
    a('s_add_u32 s4, s4, s5')
    a(f'v_lshl_add_u32 v24, v{vG}, 3, s4')
    a(f'buffer_load_dwordx2 v[38:39], v24, {S(sAUX, 4)}, 0 offen')
    tag_ready(a)
    a('s_barrier')
    stamp(a, 'prep')
    a(f's_cmp_lg_u32 s{sWH}, 0')
    a('s_cbranch_scc1 L_b_go')
    flag_check(a, flag_issue(a, vFL, vFD), vFL, vFD, 3)
    a.label('L_b_go')
    a.wait_vm0()
    a('s_barrier')
    stamp(a, 'go')
    Hooks(gB.frag_items()).flush()
    gB.mainloop(lambda j: [])
    stamp(a, 'Bend')
    gB.reduce()
    R = lambda t, j: ACC(t, 0) + j
    T = lambda t, j: ACC(t, 1) + j
    a('v_lshlrev_b32 v34, 16, v38')
    a('v_and_b32 v35, 0xffff0000, v38')
    a('v_lshlrev_b32 v36, 16, v39')
    a('v_and_b32 v37, 0xffff0000, v39')
    c0 = 0.7978845608028654
    k1 = -2.0 * c0 * LOG2E
    k2 = k1 * 0.044715
    a(f's_mov_b32 s4, {fbits(k2)}')
    a(f's_mov_b32 s5, {fbits(k2)}')
    a(f'v_mov_b32 v24, {fbits(k1)}')
    a('v_mov_b32 v26, 1.0')
    th = [(t, h) for t in range(5) for h in range(2)]
    tj = [(t, j) for t in range(5) for j in range(4)]
    for t, h in th:
        a(f'v_pk_add_f32 {V(R(t, 2 * h), 2)}, {V(R(t, 2 * h), 2)}, {V(34 + 2 * h, 2)}')
    for t, h in th:
        a(f'v_pk_mul_f32 {V(T(t, 2 * h), 2)}, {V(R(t, 2 * h), 2)}, {V(R(t, 2 * h), 2)}')
    for t, h in th:
        a(f'v_pk_fma_f32 {V(T(t, 2 * h), 2)}, {V(T(t, 2 * h), 2)}, s[4:5], v[24:25] op_sel_hi:[1,0,0]')
    for t, h in th:
        a(f'v_pk_mul_f32 {V(T(t, 2 * h), 2)}, {V(T(t, 2 * h), 2)}, {V(R(t, 2 * h), 2)}')
    for t, j in tj:
        a(f'v_exp_f32 v{T(t, j)}, v{T(t, j)}')
    for t, h in th:
        a(f'v_pk_add_f32 {V(T(t, 2 * h), 2)}, {V(T(t, 2 * h), 2)}, v[26:27] op_sel_hi:[1,0]')
    for t, j in tj:
        a(f'v_rcp_f32 v{T(t, j)}, v{T(t, j)}')
    for t, h in th:
        a(f'v_pk_mul_f32 {V(T(t, 2 * h), 2)}, {V(T(t, 2 * h), 2)}, {V(R(t, 2 * h), 2)}')
    a(f's_mul_i32 s4, s{sW8}, 2560')
    a('s_add_u32 s4, s4, 81920')
    a(f'v_lshl_add_u32 v24, v{vL}, 3, s4')
    for t in range(5):
        a(f'v_cvt_pk_bf16_f32 v{R(t, 0)}, v{T(t, 0)}, v{T(t, 1)}')
        a(f'v_cvt_pk_bf16_f32 v{R(t, 1)}, v{T(t, 2)}, v{T(t, 3)}')
        a(f'ds_write_b64 v24, {V(R(t, 0), 2)} offset:{t * 512}')
    a(f's_mul_i32 s4, s{sBDB}, 74')
    a(f's_lshl_b32 s5, s{sBCB}, 1')
    a('s_add_u32 s4, s4, s5')
    a('s_mul_i32 s4, s4, 5120')
    a(f's_add_u32 s15, s4, {GF_OFF}')
    a(f's_mul_i32 s4, s{sWH}, 10240')
    a('s_add_u32 s4, s4, 81920')
    a(f'v_lshl_add_u32 v25, v{vL}, 3, s4')
    a.wait_lg0()
    a('s_barrier')
    gt = []
    for m in range(3):
        frag10_addr(a, m, 2 * 2560 - 5 * 512, 512, 15, 24, 25, 34 + m)
        a(f'ds_read_b64 {V(ACC(m, 2), 2)}, v24')
        gt.append(a(f'ds_read_b64 {V(ACC(m, 2) + 2, 2)}, v24 offset:2560'))
    for m in range(3):
        a.wait(gt[m])
        a(f'buffer_store_dwordx4 {V(ACC(m, 2), 4)}, v{34 + m}, {S(sWS, 4)}, 0 offen sc1')
    a(f's_lshl_b32 s4, s{sBDB}, 5')
    a(f's_add_u32 s4, s4, s{sBCB}')
    a('s_lshl_b32 s4, s4, 2')
    a(f's_add_u32 s4, s4, s{sW}')
    a(f's_lshl_b32 s4, s4, {FSH}')
    a(f's_add_u32 s10, s4, {FG_OFF}')
    a('s_branch L_join')


def role_r(a):
    a('s_lshl_b32 s11, s6, 1')
    a(f's_add_u32 s11, s11, s{sWH}')
    a('s_lshr_b32 s8, s6, 3')
    a('s_lshl_b32 s8, s8, 3')
    a(f's_add_u32 s8, s8, s{sW8}')
    a('s_getpc_b64 s[6:7]')
    a.raw('L_pc:')
    a(f's_sub_u32 s{sAUX}, s6, L_pc - L_start')
    a('s_subb_u32 s7, s7, 0')
    a(f's_and_b32 s{sAUX + 1}, s7, 0xffff')
    a(f's_mov_b32 s{sAUX + 2}, L_end - L_start')
    a(f's_mov_b32 s{sAUX + 3}, 0x20000')
    a('s_lshl_b32 s6, s8, 13')
    a(f'v_lshl_add_u32 v25, v{vL}, 7, s6')
    a(f'buffer_load_dword v37, v25, {S(sAUX, 4)}, 0 offen')
    a('s_mul_i32 s5, s8, 54')
    a(f's_and_b32 s7, s{sID}, 1')
    a('s_mul_i32 s7, s7, 864')
    a('s_add_u32 s5, s5, s7')
    a('s_lshl_b32 s5, s5, 12')
    a(f's_and_b32 s7, s{sID}, 6')
    a('s_lshl_b32 s7, s7, 9')
    a('s_add_u32 s5, s5, s7')
    a(f'v_lshrrev_b32 v24, 3, v{vL}')
    a(f'v_and_b32 v25, 7, v{vL}')
    a('v_lshlrev_b32 v24, 12, v24')
    a('v_lshl_add_u32 v24, v25, 7, v24')
    a('v_add_u32 v24, s5, v24')
    tag_ready(a)
    a(f'v_mov_b32 v{vFL}, {FH_OFF}')
    flag_check(a, flag_issue(a, vFL, vFD), vFL, vFD, 16)
    PFA = int(os.environ.get('PFA', '4'))
    a('v_mov_b32 v36, v24')
    for k in range(PFA):
        a(f'buffer_load_dword v37, v36, {S(sW2, 4)}, 0 offen')
        a(f'v_add_u32 v36, {8 * 4096}, v36')
        if k % 2 == 1:
            a.wait_vm0()
    stamp(a, 'prep')
    a('s_setprio 3')
    a(f's_lshl_b32 s4, s11, {4 + FSH}')
    a(f's_add_u32 s4, s4, {FK_OFF}')
    a(f'v_lshl_add_u32 v{vFL}, v{vI}, {FSH}, s4')
    a(f's_lshl_b32 s5, s{sW}, 11')
    a(f'v_lshl_add_u32 v24, v{vL}, 4, s5')
    a(f'v_lshrrev_b32 v25, 5, v{vL}')
    a(f'v_and_b32 v26, 31, v{vL}')
    a('v_lshlrev_b32 v26, 4, v26')
    a('v_lshl_add_u32 v25, v25, 11, v26')
    a('v_add_u32 v25, 1024, v25')
    a(f's_cmp_eq_u32 s{sW}, 2')
    a('s_cselect_b64 vcc, -1, 0')
    a('v_cndmask_b32 v24, v24, v25, vcc')
    a(f'v_lshrrev_b32 v25, 3, v{vL}')
    a(f'v_and_b32 v26, 7, v{vL}')
    a('v_lshlrev_b32 v26, 4, v26')
    a('v_lshl_add_u32 v25, v25, 8, v26')
    a('v_add_u32 v25, 4096, v25')
    a(f's_cmp_eq_u32 s{sW}, 3')
    a('s_cselect_b64 vcc, -1, 0')
    a('v_cndmask_b32 v24, v24, v25, vcc')
    a(f's_mul_i32 s4, s11, {16 * 6144}')
    a(f's_add_u32 s4, s4, {KV_OFF}')
    flag_check(a, flag_issue(a, vFL, vFD), vFL, vFD, 4)
    stamp(a, 'hok')
    stok = []
    for rb in range(16):
        stok.append(a(f'buffer_load_dwordx4 {V(128 + 4 * rb, 4)}, v24, {S(sWS, 4)}, s4 offen sc1'))
        a('s_add_u32 s4, s4, 6144')
    for rb in range(1, 16):
        a.wait(stok[rb])
        for h in range(2):
            a(f'v_pk_add_f32 {V(128 + 2 * h, 2)}, {V(128 + 2 * h, 2)}, {V(128 + 4 * rb + 2 * h, 2)}')
    stamp(a, 'rsum')
    a('v_cvt_pk_bf16_f32 v34, v128, v129')
    a('v_cvt_pk_bf16_f32 v35, v130, v131')
    a('s_lshl_b32 s4, s11, 11')
    a(f's_add_u32 s4, s4, {KB_OFF}')
    a(f'v_lshl_add_u32 v24, v{vTH}, 3, s4')
    a(f'buffer_store_dwordx2 v[34:35], v24, {S(sWS, 4)}, 0 offen sc1')
    a('s_lshl_b32 s4, s11, 2')
    a(f's_add_u32 s4, s4, s{sW}')
    a(f's_lshl_b32 s4, s4, {FSH}')
    a(f's_add_u32 s10, s4, {FR_OFF}')
    a.wait_vm0()
    flag_set(a, 10)
    a(f's_mov_b32 s10, {OOB}')
    stamp(a, 'rpub')
    a('s_barrier')
    for k in range(PFA, 7):
        a(f'buffer_load_dword v37, v36, {S(sW2, 4)}, 0 offen')
        a(f'v_add_u32 v36, {8 * 4096}, v36')
    a('s_branch L_join')


def role_wot(a):
    a('s_lshl_b32 s11, s6, 1')
    a(f's_add_u32 s11, s11, s{sWH}')
    srd(a, sAUX, P_WO, D_ * D_ * 2)
    a(f'v_lshlrev_b32 v{vF}, 4, v{vL}')
    a(f'v_add_u32 v{vF + 1}, 4096, v{vF}')
    tag_ready(a)
    dma160_voffs(a, 34, 1280, False, 24)
    a('s_mul_i32 s4, s11, 160')
    a(f's_mul_i32 s5, s{sW}, {160 * 1280}')
    a('s_add_u32 s7, s4, s5')
    a(f's_mul_i32 s6, s{sW8}, 20480')
    a(f'v_mul_u32_u24 v24, 20, v{vG}')
    a(f'v_add_u32 v24, v24, v{vR}')
    a('v_mul_u32_u24 v24, 160, v24')
    a(f'v_mul_u32_u24 v25, 40, v{vC}')
    a('v_add_u32 v24, v24, v25')
    a('v_add_u32 v24, s6, v24')
    a('s_mul_i32 s4, s11, 74')
    a(f's_mul_i32 s5, s{sW}, 5')
    a('s_add_u32 s4, s4, s5')
    a('s_add_u32 s4, s4, 54')
    a('s_mul_i32 s4, s4, 5120')
    a(f's_add_u32 s4, s4, {GF_OFF}')
    rounds = [[(0, 0, 0), (0, 1, 4), (1, 0, 8), (1, 1, 12), (2, 0, 16)],
              [(2, 1, 16), (3, 0, 0), (3, 1, 4), (4, 0, 8), (4, 1, 12)]]
    for rd in range(2):
        for k in range(3):
            a(f's_add_u32 s8, s7, {(rd * 80 + k * 32) * 1280}')
            dma160(a, 34, sAUX, 8, 6, k * 5120)
        a.wait_vm0()
        for u, hf, row in rounds[rd]:
            for t in range(5):
                a(f'ds_read_b64_tr_b16 {V(156 + (u * 5 + t) * 4 + 2 * hf, 2)}, v24 offset:{row * 160 + 8 * t}')
            a.wait_lg0()
    for u in range(5):
        for t in range(5):
            vo, off = (vF, t * 1024) if t < 4 else (vF + 1, 0)
            a(f'buffer_store_dwordx4 {V(156 + (u * 5 + t) * 4, 4)}, v{vo}, {S(sWS, 4)}, s4 offen offset:{off} sc1')
        a('s_add_u32 s4, s4, 5120')
    a('s_lshl_b32 s4, s11, 2')
    a(f's_add_u32 s4, s4, s{sW}')
    a(f's_lshl_b32 s4, s4, {FSH}')
    a(f's_add_u32 s10, s4, {FW_OFF}')
    a('s_barrier')


def final_gemm(a):
    a.wait_all()
    flag_set(a, 10)
    stamp(a, 'pub')
    a('s_setprio 0')
    a(f's_cmp_lg_u32 s{sWH}, 0')
    a('s_cbranch_scc1 L_fin')
    xcd_tile(a)
    g_common(a)
    g2 = GGemm(a, 'G2')
    g2.setup()
    for j in range(G2_P):
        Hooks(g2.dma_items(j)).flush()
    srd(a, sOUT, P_OUT, S_ * D_ * 2)
    R = lambda t, j: ACC(t, 0) + j
    T = lambda t, j: ACC(t, 1) + j
    srd(a, sAUX, P_B2, S_ * 2)
    a(f's_lshl_b32 s4, s{sRB}, {5 + FSH}')
    a(f's_lshl_b32 s5, s{sW}, {3 + FSH}')
    a('s_add_u32 s4, s4, s5')
    a(f's_add_u32 s4, s4, {FO_OFF}')
    a(f'v_lshl_add_u32 v34, v{vC}, {FSH + 1}, s4')
    a(f's_lshl_b32 s4, s{sHG}, 2')
    a(f's_add_u32 s4, s4, s{sW}')
    a(f's_lshl_b32 s4, s4, {FSH}')
    a(f's_add_u32 s4, s4, {FW_OFF}')
    a('v_mov_b32 v35, s4')
    a(f'v_cmp_gt_u32 vcc, 63, v{vL}')
    a(f'v_cndmask_b32 v{vFL}, v35, v{vFL}, vcc')
    for nt in range(4):
        a(f's_xor_b32 s4, s{sW}, {nt}')
        a('s_lshl_b32 s4, s4, 10')
        a(f'v_add_u32 v{vOF + nt}, s4, v{vF}')
    a(f's_mul_i32 s4, s{sRB}, 20')
    a(f's_mul_i32 s5, s{sW}, 5')
    a('s_add_u32 s4, s4, s5')
    a('s_lshl_b32 s4, s4, 12')
    a(f's_add_u32 s11, s4, {OF_OFF}')
    a(f'v_mul_u32_u24 v{vXA}, 1280, v{vTOK}')
    a(f'v_mul_u32_u24 v{vBA}, 40, v{vG}')
    a(f'v_add_u32 v{vXA}, v{vXA}, v{vBA}')
    a(f's_mul_i32 s4, s{sHG}, 160')
    a(f'v_add_u32 v{vXA}, s4, v{vXA}')
    a(f'v_lshlrev_b32 v{vBA}, 1, v{vTOK}')
    flag_check(a, flag_issue(a, vFL, vFD), vFL, vFD)
    stamp(a, 'gok')
    fl = {}

    def gate():
        a(f's_mul_i32 s4, s{sHG}, 74')
        a(f's_mul_i32 s5, s{sW}, 5')
        a('s_add_u32 s4, s4, s5')
        a('s_add_u32 s4, s4, 54')
        a('s_mul_i32 s4, s4, 5120')
        a(f's_add_u32 s{sFS}, s4, {GF_OFF}')

    def gate2():
        stamp(a, 'oa')
        flag_check(a, fl['o'], 34, 35)
        stamp(a, 'ob')

    g2.gate = gate
    g2.gate2 = gate2
    XR = [8, 10, 14, 16, 18]

    def g2_extra(j):
        it = []
        if j == 10:
            def fo():
                fl['o'] = flag_issue(a, 34, 35)
            it.append(fo)
        if j == 16:
            def resid():
                a(f'buffer_load_ushort v36, v{vBA}, {S(sAUX, 4)}, 0 offen')
                for t in range(5):
                    fl['x'] = a(f'buffer_load_dwordx2 {V(XR[t], 2)}, v{vXA}, {S(sX, 4)}, 0 offen offset:{8 * t}')
            it.append(resid)
        return it

    Hooks(g2.frag_items()).flush()
    g2.mainloop(g2_extra)
    stamp(a, 'Gend')
    g2.reduce()
    a.wait(fl['x'])
    a('v_lshlrev_b32 v36, 16, v36')
    for t in range(5):
        for h in range(2):
            a(f'v_lshlrev_b32 v{T(t, 2 * h)}, 16, v{XR[t] + h}')
            a(f'v_and_b32 v{T(t, 2 * h + 1)}, 0xffff0000, v{XR[t] + h}')
            a(f'v_pk_add_f32 {V(R(t, 2 * h), 2)}, {V(R(t, 2 * h), 2)}, v[36:37] op_sel_hi:[1,0]')
            a(f'v_pk_add_f32 {V(R(t, 2 * h), 2)}, {V(R(t, 2 * h), 2)}, {V(T(t, 2 * h), 2)}')
        a(f'v_cvt_pk_bf16_f32 v{R(t, 0)}, v{R(t, 0)}, v{R(t, 1)}')
        a(f'v_cvt_pk_bf16_f32 v{R(t, 1)}, v{R(t, 2)}, v{R(t, 3)}')
        a(f'buffer_store_dwordx2 {V(R(t, 0), 2)}, v{vXA}, {S(sOUT, 4)}, 0 offen offset:{8 * t}')
    a.label('L_fin')
    stamp_flush(a, 'end')


def build():
    a = Asm()
    hdr = open(os.path.join(os.path.dirname(__file__), '..', 'cdna_kernels', NAME + '.s.ref')).read().split('\n')
    for line in hdr:
        if line.startswith(';') and '@launch' not in line:
            a.raw(line)
    a.raw(f'; @launch grid=(256,1,1) block=(512,1,1) lds={LDS_BYTES}')
    a.raw('.amdgcn_target "amdgcn-amd-amdhsa--gfx950"')
    a.raw('.text')
    K = NAME + '_kernel'
    a.raw(f'.globl {K}')
    a.raw('.p2align 8')
    a.raw(f'.type {K},@function')
    a.raw(f'{K}:')
    a.raw('L_start:')
    a('s_cmp_ge_u32 s2, 256')
    a('s_cbranch_scc1 L_end')
    a('s_load_dwordx16 s[16:31], s[0:1], 0')
    a('s_load_dwordx8 s[32:39], s[0:1], 64')
    a(f'v_and_b32 v{vL}, 63, v0')
    a('v_lshrrev_b32 v6, 6, v0')
    a(f'v_readfirstlane_b32 s{sW8}, v6')
    a(f'v_lshrrev_b32 v{vG}, 4, v{vL}')
    a(f'v_and_b32 v{vI}, 15, v{vL}')
    a(f'v_lshrrev_b32 v{vR}, 2, v{vI}')
    a(f'v_and_b32 v{vC}, 3, v{vL}')
    a(f'v_lshl_add_u32 v{vGR}, v{vG}, 2, v{vR}')
    a(f'v_and_b32 v{vTH}, 255, v0')
    a(f's_and_b32 s{sW}, s{sW8}, 3')
    a(f's_lshr_b32 s{sWH}, s{sW8}, 2')
    a(f's_mov_b32 s{sID}, s2')
    a('s_waitcnt lgkmcnt(0)')
    a(f's_add_u32 s4, s{P_WS}, {EP_OFF}')
    a(f's_addc_u32 s5, s{P_WS + 1}, 0')
    a(f's_load_dword s{sTAG}, s[4:5], 0')
    srd(a, sX, P_X, S_ * D_ * 2)
    srd(a, sWS, P_WS, WS_USED)
    srd(a, sW2, P_W2, F_ * S_ * 2)
    stamp(a, 'start')
    if os.environ.get('UPRIO', '1') != '0':
        a(f's_cmp_eq_u32 s{sWH}, 0')
        a('s_cbranch_scc1 L_prio')
        a(f's_setprio {os.environ.get("UPRIO", "1")}')
        a.label('L_prio')
    a('s_cmp_ge_u32 s2, 128')
    a('s_cbranch_scc1 L_not_a')
    role_a(a)
    a.label('L_not_a')
    a.reset_counters()
    a('s_and_b32 s4, s2, 7')
    a('s_lshr_b32 s5, s2, 3')
    a('s_sub_u32 s5, s5, 16')
    a('s_cmp_ge_u32 s5, 14')
    a('s_cbranch_scc1 L_role_r')
    a('s_and_b32 s7, s4, 1')
    a('s_add_u32 s7, s7, 13')
    a('s_cmp_ge_u32 s5, s7')
    a('s_cbranch_scc1 L_role_wot')
    a('s_mul_i32 s6, s4, 27')
    a('s_lshr_b32 s6, s6, 1')
    a('s_add_u32 s6, s6, s5')
    role_b(a)
    a.label('L_role_r')
    a.reset_counters()
    a('s_sub_u32 s6, s2, 240')
    role_r(a)
    a.label('L_role_wot')
    a.reset_counters()
    a('s_lshr_b32 s6, s4, 1')
    role_wot(a)
    a.label('L_join')
    final_gemm(a)
    a.label('L_end')
    a('s_endpgm')
    if STAMPS:
        a.raw('; STAMPS ' + ' '.join(STAMP_NAMES))
    a.raw('.section .rodata,"a"')
    a.raw(f""".p2align 6
.amdhsa_kernel {K}
  .amdhsa_next_free_vgpr 256
  .amdhsa_next_free_sgpr 102
  .amdhsa_accum_offset 256
  .amdhsa_group_segment_fixed_size 0
  .amdhsa_kernarg_size 96
  .amdhsa_user_sgpr_count 2
  .amdhsa_user_sgpr_kernarg_segment_ptr 1
  .amdhsa_system_sgpr_workgroup_id_x 1
.end_amdhsa_kernel""")
    sys.stderr.write(f'maxv={a.maxv} maxa={a.maxa} maxs={a.maxs} nops={a.nops} lines={len(a.out)}\n')
    return a.text()


if __name__ == '__main__':
    out = sys.argv[1] if len(sys.argv) > 1 else os.path.join(os.path.dirname(__file__), '..', 'cdna_kernels', NAME + '.s')
    open(out, 'w').write(build())
```

```python
import sys, struct, os
sys.path.insert(0, os.path.dirname(__file__))
from asmdsl import Asm, Rec, V, A, S

NAME = 'parallel_sum__linear_kernel_hedgehog__mixer_token_mlp__prompt'
S_, D_, F_ = 2048, 640, 1728

HF_OFF = 0
HF_SZ = 8 * 64 * 5 * 1024
GF_OFF = HF_OFF + HF_SZ
GF_SZ = 8 * 74 * 5 * 1024
OF_OFF = GF_OFF + GF_SZ
OF_SZ = 32 * 20 * 4 * 1024
XF_OFF = OF_OFF + OF_SZ
XF_SZ = 128 * 20480
WF_OFF = XF_OFF + XF_SZ
WF_SZ = 480 * 5120 + 4096
KV_OFF = WF_OFF + WF_SZ
KV_SZ = 32 * 32 * 6144
KB_OFF = KV_OFF + KV_SZ + 4096
KB_SZ = 32 * 2048
FL_OFF = KB_OFF + KB_SZ + 4096
FSH = int(os.environ.get('FSH', '6'))
FH_OFF = FL_OFF
FK_OFF = FH_OFF + (1024 << FSH)
FR_OFF = FK_OFF + (1024 << FSH)
FG_OFF = FR_OFF + (128 << FSH)
FO_OFF = FG_OFF + (1024 << FSH)
FW_OFF = FO_OFF + (1024 << FSH)
FU_OFF = FW_OFF + (128 << FSH)
EP_OFF = FU_OFF + (512 << FSH)
WS_USED = EP_OFF + 512
STAMP_OFF = WS_USED
WS_USED += 512 * 256
STAMPS = bool(int(os.environ.get('STAMPS', '0')))
EXP = os.environ.get('EXP', '').split(',') + ['map4', 'ntb']
OOB = 0x40000000

P_X, P_WQKV, P_WPHI, P_WO, P_BX, P_W1, P_B1, P_W2, P_B2, P_OUT, P_DBG, P_WS = range(16, 40, 2)
LOG2E = 1.4426950408889634

sW = 3
sW8, sWH = 90, 91
sWS, sX, sWQ, sW1, sW2, sAUX, sOUT = 40, 44, 48, 52, 56, 60, 64
sHG, sRB, sID, sROT, sKS, sT, sM0B, sTAG = 68, 69, 70, 71, 72, 73, 74, 75
sL, sNL = 76, 78
sBDB, sBCB, sFS, sGM0, sSPIN, sLIM = 80, 81, 82, 83, 84, 85
vL, vG, vI, vR, vC = 1, 2, 3, 4, 5
vTOK, vGR = 6, 7
vFS = 42
DB = 64
XN = lambda s: DB + 8 * s
UP = lambda k: DB + 8 * k + 4

LDS_BYTES = 163840
A_SLOTS = 4
L_WQ = 0
L_RING = 102400
L_ZERO = 122880
L_WPHI = 126976
L_CNT = 131072
B_P = 10
G2_P = 5
ILV = os.environ.get('ILV', 'burst')


def kb_pos(f, t):
    if f < 32:
        return (f >> 4) * 512 + (t * 16 + (f & 15)) * 8 if t < 4 else 1024 + ((f >> 4) * 32 + (t - 4) * 16 + (f & 15)) * 8
    return 1536 + (t * 8 + f - 32) * 8


def fbits(x):
    return '0x%08x' % struct.unpack('<I', struct.pack('<f', x))[0]


def srd(a, dst, ptr, nbytes):
    a(f's_mov_b32 s{dst}, s{ptr}')
    a(f's_and_b32 s{dst + 1}, s{ptr + 1}, 0xffff')
    a(f's_mov_b32 s{dst + 2}, {nbytes}')
    a(f's_mov_b32 s{dst + 3}, 0x20000')


STAMP_NAMES = []
vST = 41


def stamp(a, name):
    if not STAMPS:
        return
    name = str(name)
    if name not in STAMP_NAMES:
        STAMP_NAMES.append(name)
    idx = STAMP_NAMES.index(name)
    a('s_memrealtime s[98:99]')
    a.wait_lg0()
    if idx == 0:
        a(f'v_mov_b32 v{vST}, 0')
        a('s_getreg_b32 s97, hwreg(HW_REG_HW_ID)')
        a(f'v_writelane_b32 v{vST}, s97, 63')
    a(f'v_writelane_b32 v{vST}, s98, {idx}')


def stamp_flush(a, n):
    if not STAMPS:
        return
    a.wait_vm0()
    stamp(a, n)
    lab = a.newlabel('st')
    a(f's_cmp_lg_u32 s{sW}, 0')
    a(f's_cbranch_scc1 {lab}')
    a(f's_lshl_b32 s4, s{sWH}, 8')
    a(f's_add_u32 s4, s4, s{sID}')
    a('s_lshl_b32 s4, s4, 8')
    a(f's_add_u32 s4, s4, {STAMP_OFF}')
    a(f'v_lshl_add_u32 v8, v{vL}, 2, s4')
    a(f'buffer_store_dword v{vST}, v8, {S(sWS, 4)}, 0 offen')
    a.label(lab)


def reduce_g(a, r, t):
    a(f'v_mov_b32 v{t}, v{r}')
    a(f'v_permlane32_swap_b32 v{r}, v{t}')
    a(f'v_add_f32 v{r}, v{r}, v{t}')
    a(f'v_mov_b32 v{t}, v{r}')
    a(f'v_permlane16_swap_b32 v{r}, v{t}')
    a(f'v_add_f32 v{r}, v{r}, v{t}')


def dma160_voffs(a, dst, stride, permute, tmp):
    t0, t2, t3 = tmp, tmp + 1, tmp + 2
    for q in range(5):
        d = dst + q
        a(f'v_add_u32 v{t0}, {q * 64}, v{vL}')
        a(f'v_mul_u32_u24 v{t2}, 6554, v{t0}')
        a(f'v_lshrrev_b32 v{t2}, 16, v{t2}')
        a(f'v_mul_u32_u24 v{t3}, 10, v{t2}')
        a(f'v_sub_u32 v{t0}, v{t0}, v{t3}')
        if permute:
            a(f'v_bfe_u32 v{t3}, v{t2}, 2, 2')
            a(f'v_lshlrev_b32 v{t3}, 3, v{t3}')
            a(f'v_and_b32 v{d}, 3, v{t2}')
            a(f'v_add_u32 v{t3}, v{t3}, v{d}')
            a(f'v_lshrrev_b32 v{t2}, 4, v{t2}')
            a(f'v_lshl_add_u32 v{t2}, v{t2}, 2, v{t3}')
        a(f'v_mul_u32_u24 v{t2}, {stride}, v{t2}')
        a(f'v_lshl_add_u32 v{d}, v{t0}, 4, v{t2}')
        if 0 < q < 4:
            a(f'v_subrev_u32 v{d}, {q * 1024}, v{d}')


def dma160(a, vo, ssrd, soff, m0_s, m0_add, nt=''):
    a(f's_add_u32 m0, s{m0_s}, {m0_add}')
    for q in range(4):
        off = f' offset:{q * 1024}' if q else ''
        a(f'buffer_load_dwordx4 v{vo + q}, {S(ssrd, 4)}, s{soff} offen{off}{nt} lds')
    a(f's_add_u32 m0, s{m0_s}, {m0_add + 4096}')
    return a(f'buffer_load_dwordx4 v{vo + 4}, {S(ssrd, 4)}, s{soff} offen{nt} lds')


class Hooks:
    def __init__(self, items=()):
        self.items = list(items)

    def run(self, n=1):
        for _ in range(n):
            if self.items:
                self.items.pop(0)()

    def flush(self):
        self.run(len(self.items))


def softmax_pm(a, P, PH, EP, EN, tmp):
    p = [P[k // 4] + k % 4 for k in range(20)]
    ep = [EP[k // 4] + k % 4 for k in range(20)]
    en = [EN[k // 4] + k % 4 for k in range(20)]
    mx, mn, sp, sn = tmp, tmp + 2, tmp + 4, tmp + 6
    a(f'v_max3_f32 v{mx}, v{p[0]}, v{p[1]}, v{p[2]}')
    a(f'v_min3_f32 v{mn}, v{p[0]}, v{p[1]}, v{p[2]}')
    for k in range(3, 19, 2):
        a(f'v_max3_f32 v{mx}, v{mx}, v{p[k]}, v{p[k + 1]}')
        a(f'v_min3_f32 v{mn}, v{mn}, v{p[k]}, v{p[k + 1]}')
    a(f'v_max_f32 v{mx}, v{mx}, v{p[19]}')
    a(f'v_min_f32 v{mn}, v{mn}, v{p[19]}')
    a(f'v_mul_f32 v{mx}, s{sNL}, v{mx}')
    a(f'v_mul_f32 v{mn}, s{sL}, v{mn}')
    for k in range(0, 20, 2):
        a(f'v_pk_fma_f32 {V(ep[k], 2)}, {V(p[k], 2)}, {S(sL, 2)}, {V(mx, 2)} op_sel_hi:[1,0,0]')
        a(f'v_pk_fma_f32 {V(en[k], 2)}, {V(p[k], 2)}, {S(sNL, 2)}, {V(mn, 2)} op_sel_hi:[1,0,0]')
    for k in range(20):
        a(f'v_exp_f32 v{ep[k]}, v{ep[k]}')
        a(f'v_exp_f32 v{en[k]}, v{en[k]}')
    a(f'v_pk_add_f32 {V(sp, 2)}, {V(ep[0], 2)}, {V(ep[2], 2)}')
    a(f'v_pk_add_f32 {V(sn, 2)}, {V(en[0], 2)}, {V(en[2], 2)}')
    for k in range(4, 20, 2):
        a(f'v_pk_add_f32 {V(sp, 2)}, {V(sp, 2)}, {V(ep[k], 2)}')
        a(f'v_pk_add_f32 {V(sn, 2)}, {V(sn, 2)}, {V(en[k], 2)}')
    a(f'v_add_f32 v{sp}, v{sp}, v{sp + 1}')
    a(f'v_add_f32 v{sn}, v{sn}, v{sn + 1}')
    a(f'v_rcp_f32 v{sp}, v{sp}')
    a(f'v_rcp_f32 v{sn}, v{sn}')
    for k in range(0, 20, 2):
        a(f'v_pk_mul_f32 {V(ep[k], 2)}, {V(ep[k], 2)}, {V(sp, 2)} op_sel_hi:[1,0]')
        a(f'v_pk_mul_f32 {V(en[k], 2)}, {V(en[k], 2)}, {V(sn, 2)} op_sel_hi:[1,0]')
    allv = ep + en
    for k in range(20):
        a(f'v_cvt_pk_bf16_f32 v{PH[k // 4] + k % 4}, v{allv[2 * k]}, v{allv[2 * k + 1]}')


def flag_set(a, s_off):
    a(f'v_lshl_add_u32 v{vFS}, v{vL}, 2, s{s_off}')
    a(f'v_mov_b32 v{vFS + 1}, s{sTAG}')
    a(f's_mov_b64 exec, {hex((1 << (1 << (FSH - 2))) - 1)}')
    a(f'buffer_store_dword v{vFS + 1}, v{vFS}, {S(sWS, 4)}, 0 offen sc1')
    a('s_mov_b64 exec, -1')


def flag_issue(a, vaddr, vdst):
    return a(f'buffer_load_dword v{vdst}, v{vaddr}, {S(sWS, 4)}, 0 offen sc1')


def flag_check(a, tok, vaddr, vdst, sleep=2):
    ok = a.newlabel('ok')
    lp = a.newlabel('poll')
    a.wait(tok)
    a(f'v_cmp_ne_u32 vcc, s{sTAG}, v{vdst}')
    a(f's_cbranch_vccz {ok}')
    a(f's_mov_b32 s{sSPIN}, 0')
    a.label(lp)
    a(f's_sleep {sleep}')
    a.raw(f'\tbuffer_load_dword v{vdst}, v{vaddr}, {S(sWS, 4)}, 0 offen sc1')
    a('s_waitcnt vmcnt(0)')
    a(f'v_cmp_ne_u32 vcc, s{sTAG}, v{vdst}')
    a(f's_cbranch_vccz {ok}')
    a(f's_add_u32 s{sSPIN}, s{sSPIN}, 1')
    a(f's_cmp_lt_u32 s{sSPIN}, 0x8000')
    a(f's_cbranch_scc1 {lp}')
    a.label(ok)


def featmap(a, ACC5, PK, WPF, P5, EP5, EN5, tmp):
    for k in range(10):
        t, j = divmod(2 * k, 4)
        a(f'v_cvt_pk_bf16_f32 v{PK[k // 4] + k % 4}, v{ACC5[t] + j}, v{ACC5[t] + j + 1}')
    for ks in range(3):
        for t in range(5):
            d = V(P5[t], 4)
            if ks < 2:
                a(f'v_mfma_f32_16x16x32_bf16 {d}, {V(WPF(t, ks), 4)}, {V(PK[ks], 4)}, {"0" if ks == 0 else d}')
            else:
                a(f'v_mfma_f32_16x16x16_bf16 {d}, {V(WPF(t, ks), 2)}, {V(PK[ks], 2)}, {d}')
    softmax_pm(a, P5, P5, EP5, EN5, tmp)


def xcd_tile(a):
    a(f's_and_b32 s4, s{sID}, 7')
    a(f's_lshr_b32 s5, s{sID}, 3')
    a('s_and_b32 s6, s4, 1')
    a('s_lshl_b32 s6, s6, 2')
    a('s_and_b32 s7, s5, 3')
    a(f's_add_u32 s{sHG}, s6, s7')
    a('s_lshr_b32 s6, s4, 1')
    a('s_lshl_b32 s6, s6, 3')
    a('s_lshr_b32 s7, s5, 2')
    a(f's_add_u32 s{sRB}, s6, s7')
    a(f's_lshl_b32 s4, s{sRB}, 6')
    a(f's_lshl_b32 s5, s{sW}, 4')
    a('s_add_u32 s4, s4, s5')
    a(f'v_add_u32 v{vTOK}, s4, v{vI}')


def ln_scales(a, vS, vRS, vNB):
    a(f'v_mul_f32 v{vS}, {fbits(1.0 / 640)}, v{vS}')
    a(f'v_mul_f32 v{vS + 2}, {fbits(1.0 / 640)}, v{vS + 2}')
    a(f'v_fma_f32 v{vS + 2}, -v{vS}, v{vS}, v{vS + 2}')
    a(f'v_max_f32 v{vS + 2}, 0, v{vS + 2}')
    a(f'v_add_f32 v{vS + 1}, {fbits(1e-5)}, v{vS + 2}')
    a(f'v_rsq_f32 v{vRS}, v{vS + 1}')
    a(f'v_mul_f32 v{vNB}, v{vS}, v{vRS}')
    a(f'v_sub_f32 v{vNB}, 0, v{vNB}')


vD, vF, vT, vT2, vFL, vFD, vOF, vXA, vBA = 8, 12, 14, 18, 22, 23, 28, 32, 33
ACC = lambda t, nt: 44 + (nt * 5 + t) * 4
TF = lambda j, nt: 124 + (j % 2) * 16 + 4 * nt
POOL = [156 + 4 * k for k in range(25)]


class GGemm:
    def __init__(self, a, kind):
        self.a, self.kind = a, kind
        if kind == 'B':
            self.stride, self.srdm, self.n, self.fr_off, self.fr_steps = F_ * 2, sW1, 16, HF_OFF, 64
            self.sdb, self.scb, self.ntot, self.P = sBDB, sBCB, 16, B_P
        else:
            self.stride, self.srdm, self.n, self.fr_off, self.fr_steps = S_ * 2, sW2, 14, GF_OFF, 74
            self.sdb, self.scb, self.ntot, self.P = sHG, sRB, 19, G2_P
        self.dtok, self.ftok, self.ttok = {}, {}, {}
        self.free = list(POOL)
        self.reg = {}
        self.pending = []
        order = [(j, 'a') for j in range(self.n)]
        if kind == 'G2':
            order += [(j, k) for j in range(14, 19) for k in 'ab']
        for j, k in order:
            self.pending += [(j, k, x) for x in range(5 if k == 'a' else 4)]
        self.gate = lambda: None
        self.gate2 = lambda: None
        self.nq = 2 if kind == 'B' else 4

    def setup(self):
        a, st = self.a, self.stride
        a(f'v_lshrrev_b32 v24, 3, v{vL}')
        if self.kind == 'B':
            a('v_lshrrev_b32 v25, 2, v24')
            a('v_and_b32 v24, 3, v24')
            a('v_lshl_add_u32 v24, v25, 3, v24')
        a(f'v_mul_u32_u24 v24, {st}, v24')
        a(f'v_and_b32 v25, 7, v{vL}')
        a(f'v_lshlrev_b32 v26, 1, v{vG}')
        a('v_xor_b32 v25, v25, v26')
        a('v_lshl_add_u32 v24, v25, 4, v24')
        a(f's_lshl_b32 s4, s{self.scb}, 7')
        a(f's_mul_i32 s5, s{sW}, {self.n * 32 * st}')
        a('s_add_u32 s5, s5, s4')
        if self.kind == 'B':
            a(f's_mul_i32 s6, s{sWH}, {4 * st}')
            a('s_add_u32 s5, s5, s6')
            a(f's_lshl_b32 s6, s{sWH}, 11')
            a(f's_add_u32 s{sM0B}, s{sGM0}, s6')
        else:
            a(f's_mov_b32 s{sM0B}, s{sGM0}')
        for q in range(self.nq):
            row = 8 * q if self.kind != 'B' else q * 16
            a(f's_add_u32 s6, s5, {row * st - 1024 * q}')
            a(f'v_add_u32 v{vD + q}, s6, v24')
        a(f's_mul_i32 s4, s{self.sdb}, {self.fr_steps}')
        a(f's_mul_i32 s5, s{sW}, {self.n}')
        a('s_add_u32 s4, s4, s5')
        a('s_mul_i32 s4, s4, 5120')
        a(f's_add_u32 s{sFS}, s4, {self.fr_off}')
        if self.kind == 'B':
            a(f's_lshl_b32 s4, s{sW}, {6 + FSH}')
            a(f's_add_u32 s4, s4, {FH_OFF}')
            a(f'v_lshl_add_u32 v{vFL}, v{vL}, {FSH}, s4')
        else:
            a(f's_lshl_b32 s4, s{self.sdb}, {7 + FSH}')
            a(f's_mul_i32 s5, s{sW}, {28 << FSH}')
            a('s_add_u32 s4, s4, s5')
            a(f's_add_u32 s4, s4, {FG_OFF}')
            a(f's_mul_i32 s5, s{self.sdb}, {74 * 5120}')
            a(f's_add_u32 s{sLIM}, s5, {GF_OFF + 53 * 5120}')
            a(f's_cmp_eq_u32 s{sW}, 3')
            a('s_cselect_b32 s5, 23, 27')
            a(f'v_min_u32 v24, s5, v{vL}')
            a(f'v_lshl_add_u32 v{vFL}, v24, {FSH}, s4')

    def dma_items(self, j):
        a = self.a

        def one(q):
            def f():
                if q == 0:
                    a(f's_add_u32 m0, s{sM0B}, {(j % self.P) * 16384}')
                off = f' offset:{q * 1024}' if q else ''
                nt = ' nt' if ('ntb' in EXP and self.kind == 'B' and j < self.P) else ''
                self.dtok[j] = a(f'buffer_load_dwordx4 v{vD + q}, {S(self.srdm, 4)}, 0 offen{off}{nt} lds')
                if not ('hotw' in EXP):
                    a(f'v_add_u32 v{vD + q}, {32 * self.stride}, v{vD + q}')
            return f
        return [one(q) for q in range(self.nq)]

    def frag_items(self, lim=99):
        a = self.a
        out = []
        while self.free and self.pending and len(out) < lim:
            key = self.pending.pop(0)
            r = self.free.pop(0)
            self.reg[key] = r

            def f(key=key, r=r):
                j, kind, x = key
                if key == (self.n, 'a', 0):
                    self.gate()
                if key == (self.n, 'b', 0):
                    self.gate2()
                if kind == 'a':
                    vo, off = (vF, x * 1024) if x < 4 else (vF + 1, 0)
                    offs = f' offset:{off}' if off else ''
                    self.ftok[j] = a(f'buffer_load_dwordx4 {V(r, 4)}, v{vo}, {S(sWS, 4)}, s{sFS} offen{offs} sc1')
                    if x == 4 and 'hotf' not in EXP:
                        a(f's_add_u32 s{sFS}, s{sFS}, 5120')
                        if self.kind == 'G2' and j < 14:
                            a(f's_min_u32 s{sFS}, s{sFS}, s{sLIM}')
                else:
                    if j - self.n == 2:
                        a(f'v_lshlrev_b32 v24, 3, v{vL}')
                        a(f'v_sub_u32 v24, v{vOF + x}, v24')
                        a(f'buffer_load_dwordx2 {V(r, 2)}, v24, {S(sWS, 4)}, s11 offen sc1')
                        self.ftok[j] = a(f'buffer_load_dwordx2 {V(r + 2, 2)}, v24, {S(sWS, 4)}, s11 offen offset:512 sc1')
                    else:
                        self.ftok[j] = a(f'buffer_load_dwordx4 {V(r, 4)}, v{vOF + x}, {S(sWS, 4)}, s11 offen sc1')
                    if x == 3:
                        a('s_add_u32 s11, s11, 4096')
            out.append(f)
        return out

    def tr_items(self, j):
        a = self.a

        def one(nt):
            def f():
                off = (j % self.P) * 16384
                base = vT
                if off >= 65536:
                    if off % 65536 == 0:
                        a(f'v_add_u32 v{vT2 + nt}, {off}, v{vT + nt}')
                    off %= 65536
                    base = vT2
                a(f'ds_read_b64_tr_b16 {V(TF(j, nt), 2)}, v{base + nt} offset:{off}')
                self.ttok[j] = a(f'ds_read_b64_tr_b16 {V(TF(j, nt) + 2, 2)}, v{base + nt} offset:{off + 2048}')
            return f
        return [one(nt) for nt in range(4)]

    def mainloop(self, extra):
        a, n = self.a, self.n
        a.wait(self.dtok[0])
        Hooks(self.tr_items(0)).flush()
        for j in range(self.ntot):
            items = []
            if j + 1 < n:
                a.wait(self.dtok[j + 1])
            a.wait(self.ftok[j], self.ttok.get(j))
            if self.kind == 'B' and j + 1 < n and (j + self.P < n or j + 1 >= int(os.environ.get('BPRE', '10'))):
                a('s_barrier')
            if j % 3 == 0:
                stamp(a, f'{self.kind}_{j}')
                if STAMPS and j in (3, 9):
                    a('s_memtime s[98:99]')
                    a.wait_lg0()
                    a(f'v_writelane_b32 v{vST}, s98, {56 + (j // 9) + (2 if self.kind == "G2" else 0)}')
            if j + 1 < n:
                items += self.tr_items(j + 1)
            if j + self.P < n:
                items += self.dma_items(j + self.P)
            items += extra(j)
            items += self.frag_items(10)
            last = j == self.ntot - 1
            if self.kind == 'G2' and j == 16:
                a('s_barrier')
            if last:
                a(f's_mul_i32 s7, s{sWH}, 102400')
                for nt in range(1, 4):
                    a(f's_xor_b32 s4, s{sW}, {nt}')
                    a('s_mul_i32 s4, s4, 15360')
                    a(f's_add_u32 s4, s4, {(nt - 1) * 5120}')
                    a('s_add_u32 s4, s4, s7')
                    a(f'v_add_u32 v{24 + nt}, s4, v{vF}')
                wr = [(nt, t) for nt in (1, 2, 3) for t in range(5)]
            hk = Hooks(items)
            k = 0
            ILV = os.environ.get('ILVB', 'fine') if self.kind == 'B' else os.environ.get('ILVG', 'burst')
            for nt in (1, 2, 3, 0):
                for t in range(5):
                    acc = V(ACC(t, nt), 4)
                    c = '0' if j == 0 else acc
                    fr = V(self.reg[(j, 'a', t)], 4)
                    tf = V(TF(j, nt) if j < n else self.reg[(j, 'b', nt)], 4)
                    if self.kind == 'B':
                        a(f'v_mfma_f32_16x16x32_bf16 {acc}, {tf}, {fr}, {c}')
                    else:
                        a(f'v_mfma_f32_16x16x32_bf16 {acc}, {fr}, {tf}, {c}')
                    k += 1
                    if last and k > 5:
                        wn, wt = wr.pop(0)
                        a(f'ds_write_b128 v{24 + wn}, {V(ACC(wt, wn), 4)} offset:{wt * 1024}')
                    if ILV == 'fine':
                        if k % 4 != 0:
                            hk.run()
                    elif ILV == 'burst':
                        if k <= 4 and j + 1 < n:
                            hk.run()
                    elif ILV == 'two':
                        if k <= 4 and j + 1 < n:
                            hk.run()
                        if k == 10:
                            hk.run(4)
                    elif ILV == 'pre':
                        if k == 1:
                            hk.flush()
            hk.flush()
            self.free += [r for key, r in self.reg.items() if key[0] == j]
            if n - 2 <= j < n:
                self.free += [TF(j, nt) for nt in range(4)]

    def reduce(self):
        a = self.a
        a(f's_mul_i32 s4, s{sW}, 15360')
        a('s_add_u32 s4, s4, s7')
        a(f'v_add_u32 v24, s4, v{vF}')
        a.wait_lg0()
        a('s_barrier')
        rtok = {}
        for nt in range(1, 4):
            for t in range(5):
                rtok[(nt, t)] = a(f'ds_read_b128 {V(ACC(t, nt), 4)}, v24 offset:{(nt - 1) * 5120 + t * 1024}')
        for nt in range(1, 4):
            for t in range(5):
                a.wait(rtok[(nt, t)])
                for h in range(2):
                    d = V(ACC(t, 0) + 2 * h, 2)
                    a(f'v_pk_add_f32 {d}, {d}, {V(ACC(t, nt) + 2 * h, 2)}')


def frag10_addr(a, m, hi_add, step, base_s, vrd, vrd_base, vst):
    a(f's_add_u32 s4, s{sW}, {4 * m}')
    a('s_min_u32 s5, s4, 9')
    a('s_cmp_ge_u32 s5, 5')
    a(f's_cselect_b32 s6, {hi_add}, 0')
    a(f's_mul_i32 s5, s5, {step}')
    a('s_add_u32 s5, s5, s6')
    a(f'v_add_u32 v{vrd}, s5, v{vrd_base}')
    a('s_lshl_b32 s5, s4, 10')
    a(f's_add_u32 s5, s5, s{base_s}')
    a('s_cmp_ge_u32 s4, 10')
    a(f's_cselect_b32 s5, {OOB}, s5')
    a(f'v_lshl_add_u32 v{vst}, v{vL}, 4, s5')


NTP = ' nt' if 'ntp' in EXP else ''
FIRST = int(os.environ.get('FIRST', '25'))
vTH = 40


def g_common(a):
    a(f'v_lshlrev_b32 v{vF}, 4, v{vL}')
    a(f'v_add_u32 v{vF + 1}, 4096, v{vF}')
    a(f's_lshl_b32 s{sGM0}, s{sW}, 12')
    a(f'v_bfe_u32 v25, v{vGR}, 1, 2')
    a(f'v_xor_b32 v25, s{sW}, v25')
    a(f'v_lshlrev_b32 v26, 7, v{vGR}')
    a(f'v_lshl_add_u32 v26, v{vC}, 3, v26')
    a(f'v_add_u32 v26, s{sGM0}, v26')
    for nt in range(4):
        a(f'v_xor_b32 v27, {nt}, v25')
        a(f'v_lshl_add_u32 v{vT + nt}, v27, 5, v26')


def tag_ready(a):
    a('s_waitcnt lgkmcnt(0)')
    a(f's_add_u32 s{sTAG}, s{sTAG}, 1')


def role_a(a):
    a(f's_and_b32 s4, s{sID}, 7')
    a(f's_lshr_b32 s5, s{sID}, 3')
    a('s_and_b32 s6, s4, 1')
    a('s_lshl_b32 s6, s6, 2')
    a('s_and_b32 s7, s5, 3')
    a(f's_add_u32 s{sHG}, s6, s7')
    a('s_lshr_b32 s6, s4, 1')
    a('s_lshl_b32 s6, s6, 2')
    a('s_lshr_b32 s7, s5, 2')
    a('s_add_u32 s6, s6, s7')
    a(f's_mov_b32 s{sRB}, s6')
    a('s_lshl_b32 s6, s6, 3')
    a(f's_add_u32 s15, s6, s{sHG}')
    a('s_lshl_b32 s12, s15, 1')
    a(f's_add_u32 s12, s12, s{sWH}')
    X = 156
    a('s_lshl_b32 s4, s12, 2')
    a(f's_add_u32 s4, s4, s{sW}')
    a('s_mul_i32 s4, s4, 2560')
    a(f'v_mul_u32_u24 v24, 40, v{vL}')
    xt = []
    for k in range(5):
        xt.append(a(f'buffer_load_dwordx2 {V(X + 2 * k, 2)}, v24, {S(sX, 4)}, s4 offen offset:{8 * k}{NTP}'))
    srd(a, sWQ, P_WQKV, D_ * 3 * D_ * 2)
    vLN = 8
    a(f'v_lshlrev_b32 v{vLN}, 4, v{vL}')
    a(f'v_add_u32 v{vLN + 1}, 4096, v{vLN}')
    a(f's_mul_i32 s{sM0B}, s{sW8}, 5120')
    a('s_lshl_b32 s10, s15, 2')
    a(f's_add_u32 s10, s10, s{sW}')
    a('s_mul_i32 s4, s10, 1093')
    a('s_lshr_b32 s4, s4, 16')
    a('s_mul_i32 s5, s4, 60')
    a('s_sub_u32 s5, s10, s5')
    a('s_lshr_b32 s6, s5, 1')
    a('s_and_b32 s7, s5, 1')
    a('s_add_u32 s7, s7, 1')
    a('s_sub_u32 s8, s5, 40')
    a('s_cmp_ge_u32 s5, 40')
    a('s_cselect_b32 s6, s8, s6')
    a('s_cselect_b32 s7, 0, s7')
    a(f's_mul_i32 s6, s6, {32 * 3840}')
    a('s_mul_i32 s7, s7, 1280')
    a('s_mul_i32 s4, s4, 160')
    a('s_add_u32 s6, s6, s7')
    a('s_add_u32 s6, s6, s4')
    a(f's_cmp_eq_u32 s{sWH}, 0')
    a('s_cselect_b32 s10, 480, s10')
    dma160_voffs(a, 12, 3840, True, 18)
    a('s_cmp_ge_u32 s10, 480')
    a(f's_cselect_b32 s7, {OOB}, 0')
    for q in range(5):
        a(f'v_add_u32 v{12 + q}, s7, v{12 + q}')
    utok = dma160(a, 12, sWQ, 6, sM0B, 0, NTP)
    a(f's_mul_i32 s13, s{sWH}, 24576')
    a('s_add_u32 s13, s13, 65536')
    a('s_add_u32 s14, s13, 12288')
    srd(a, sAUX, P_WPHI, 32 * 800)
    a(f's_mul_i32 s6, s{sHG}, 3200')
    a(f's_lshl_b32 s7, s{sW}, 10')
    a('s_add_u32 s6, s6, s7')
    a(f'v_lshl_add_u32 v10, v{vL}, 4, s6')
    a(f's_add_u32 m0, s7, {L_WPHI}')
    a(f'buffer_load_dwordx4 v10, {S(sAUX, 4)}, 0 offen lds')
    for k in range(4):
        a(f'v_mov_b32 v{44 + k}, 0')
    a(f'v_lshlrev_b32 v18, 4, v{vTH}')
    a(f'v_add_u32 v18, {L_ZERO}, v18')
    a('ds_write_b128 v18, v[44:47]')
    a(f'v_mov_b32 v10, {L_CNT}')
    a('v_mov_b32 v11, 0')
    a('ds_write2_b32 v10, v11, v11 offset0:0 offset1:1')
    vONE, vS, vRS, vNB = 34, 36, 168, 170
    a(f'v_mov_b32 v{vONE}, 0x3f803f80')
    for k in range(4):
        a(f'v_mov_b32 v{vS + k}, 0')
    a('s_waitcnt lgkmcnt(0)')
    a(f's_add_u32 s{sTAG}, s{sTAG}, 1')
    a.wait(xt[4])
    stamp(a, 'x')
    for k in range(10):
        a(f'v_dot2c_f32_bf16 v{vS + (k & 1)}, v{X + k}, v{vONE}')
        a(f'v_dot2c_f32_bf16 v{vS + 2 + (k & 1)}, v{X + k}, v{X + k}')
    a(f'v_add_f32 v{vS}, v{vS}, v{vS + 1}')
    a(f'v_add_f32 v{vS + 2}, v{vS + 2}, v{vS + 3}')
    for sh in (8, 4, 2, 1):
        for r in (vS, vS + 2):
            a(f'v_add_f32_dpp v{r}, v{r}, v{r} row_ror:{sh} row_mask:0xf bank_mask:0xf')
    for r in (vS, vS + 2):
        a(f'v_mov_b32 v{r + 1}, v{r}')
        a(f'v_permlane16_swap_b32 v{r}, v{r + 1}')
        a(f'v_add_f32 v{r}, v{r}, v{r + 1}')
    ln_scales(a, vS, vRS, vNB)
    a(f'v_mul_f32 v{vS + 1}, v{vRS}, v{vRS}')
    a(f'v_mov_b32 v{vS + 3}, {fbits(1e-5)}')
    a(f'v_fmac_f32 v{vS + 3}, v{vS + 1}, v{vS + 2}')
    a(f'v_rsq_f32 v{vS + 2}, v{vS + 3}')
    U = 172
    for k in range(10):
        a(f'v_lshlrev_b32 v{U + 2 * k}, 16, v{X + k}')
        a(f'v_and_b32 v{U + 2 * k + 1}, 0xffff0000, v{X + k}')
    for k in range(10):
        a(f'v_pk_fma_f32 {V(U + 2 * k, 2)}, {V(U + 2 * k, 2)}, {V(vRS, 2)}, {V(vNB, 2)} op_sel_hi:[1,0,0]')
    XQ = 192
    for k in range(10):
        a(f'v_cvt_pk_bf16_f32 v{XQ + k}, v{U + 2 * k}, v{U + 2 * k + 1}')
    for k in range(10):
        a(f'v_pk_mul_f32 {V(U + 2 * k, 2)}, {V(U + 2 * k, 2)}, {V(vS + 2, 2)} op_sel_hi:[1,0]')
    for k in range(10):
        a(f'v_cvt_pk_bf16_f32 v{X + k}, v{U + 2 * k}, v{U + 2 * k + 1}')
    a(f's_mul_i32 s4, s{sW}, {2 * 1296}')
    a('s_add_u32 s4, s4, s13')
    a(f'v_mul_u32_u24 v24, 40, v{vL}')
    a(f'v_lshrrev_b32 v25, 5, v{vL}')
    a('v_lshl_add_u32 v24, v25, 4, v24')
    a('v_add_u32 v24, s4, v24')
    for k in range(5):
        a(f'ds_write_b64 v24, {V(XQ + 2 * k, 2)} offset:{8 * k}')
    a(f'v_and_b32 v25, 7, v{vTH}')
    a(f'v_lshrrev_b32 v26, 3, v{vTH}')
    a('v_mul_u32_u24 v28, 1296, v25')
    a('v_lshl_add_u32 v28, v26, 4, v28')
    a('v_add_u32 v28, s13, v28')
    a('v_lshlrev_b32 v29, 8, v26')
    a('v_lshl_add_u32 v29, v25, 4, v29')
    a(f's_lshr_b32 s4, s12, 1')
    a('s_mul_i32 s4, s4, 20480')
    a(f's_and_b32 s5, s12, 1')
    a('s_lshl_b32 s5, s5, 7')
    a('s_add_u32 s4, s4, s5')
    a(f's_add_u32 s4, s4, {XF_OFF}')
    a('v_add_u32 v29, s4, v29')
    a('v_add_u32 v30, 8192, v29')
    a(f's_cmp_ge_u32 s{sW}, 2')
    a(f's_cselect_b32 s4, {OOB}, 16384')
    a('v_add_u32 v31, s4, v29')
    a(f's_mul_i32 s4, s{sW}, 2560')
    a('s_add_u32 s4, s4, s14')
    a(f'v_mul_u32_u24 v24, 40, v{vL}')
    a('v_add_u32 v24, s4, v24')
    for k in range(5):
        a(f'ds_write_b64 v24, {V(X + 2 * k, 2)} offset:{8 * k}')
    a(f'v_mul_u32_u24 v24, 1280, v{vR}')
    a(f'v_mul_u32_u24 v25, 160, v{vG}')
    a('v_add_u32 v24, v24, v25')
    a(f'v_mul_u32_u24 v25, 40, v{vC}')
    a('v_add_u32 v24, v24, v25')
    a('v_add_u32 v24, s14, v24')
    a(f'v_mul_u32_u24 v25, {64 * 5120}, v{vG}')
    a(f'v_lshl_add_u32 v25, v{vI}, 4, v25')
    a(f's_lshr_b32 s4, s12, 2')
    a('s_mul_i32 s4, s4, 5120')
    a(f's_and_b32 s5, s12, 3')
    a('s_lshl_b32 s5, s5, 8')
    a('s_add_u32 s4, s4, s5')
    a(f's_add_u32 s8, s4, {HF_OFF}')
    a.wait_lg0()
    a('s_barrier')
    ht = []
    for m in range(3):
        ht.append(a(f'ds_read_b128 {V(XQ + 4 * m, 4)}, v28 offset:{512 * m}'))
    for m in range(3):
        a.wait(ht[m])
        a(f'buffer_store_dwordx4 {V(XQ + 4 * m, 4)}, v{29 + m}, {S(sWS, 4)}, 0 offen sc1')
    ht = []
    for m in range(3):
        a(f's_add_u32 s4, s{sW}, {4 * m}')
        a('s_min_u32 s5, s4, 9')
        a('s_cmp_ge_u32 s5, 5')
        a(f's_cselect_b32 s6, {640 - 40}, 0')
        a(f's_cselect_b32 s7, {4 * 64 * 5120 - 5120}, 0')
        a('s_lshl_b32 s5, s5, 3')
        a('s_add_u32 s5, s5, s6')
        a('v_add_u32 v26, s5, v24')
        a(f'ds_read_b64_tr_b16 {V(U + 4 * m, 2)}, v26')
        ht.append(a(f'ds_read_b64_tr_b16 {V(U + 4 * m + 2, 2)}, v26 offset:{4 * 1280}'))
        a('s_lshl_b32 s5, s4, 10')
        a('s_add_u32 s5, s5, s7')
        a('s_add_u32 s5, s5, s8')
        a('s_cmp_ge_u32 s4, 10')
        a(f's_cselect_b32 s5, {OOB}, s5')
        a(f'v_add_u32 v{34 + m}, s5, v25')
    for m in range(3):
        a.wait(ht[m])
        a(f'buffer_store_dwordx4 {V(U + 4 * m, 4)}, v{34 + m}, {S(sWS, 4)}, 0 offen sc1')
    hst = ('vm', a.vm_issued - 1)
    a(f'v_mul_u32_u24 v29, 160, v{vGR}')
    a(f'v_mul_u32_u24 v24, 40, v{vC}')
    a('v_add_u32 v29, v29, v24')
    a(f'v_add_u32 v29, s{sM0B}, v29')
    a('s_mul_i32 s4, s10, 5120')
    a(f's_add_u32 s4, s4, {WF_OFF}')
    a('s_cmp_ge_u32 s10, 480')
    a(f's_cselect_b32 s4, {OOB}, s4')
    a(f'v_add_u32 v24, s4, v{vLN}')
    a(f'v_add_u32 v25, s4, v{vLN + 1}')
    a(f's_lshl_b32 s5, s10, {FSH}')
    a(f's_add_u32 s5, s5, {FU_OFF}')
    a('s_cmp_ge_u32 s10, 480')
    a(f's_cselect_b32 s10, {OOB}, s5')
    a.wait(utok)
    ut = []
    for t in range(5):
        a(f'ds_read_b64_tr_b16 {V(UP(t), 2)}, v29 offset:{8 * t}')
        ut.append(a(f'ds_read_b64_tr_b16 {V(UP(t) + 2, 2)}, v29 offset:{8 * t + 2560}'))
    for t in range(5):
        a.wait(ut[t])
        vo, off = (24, t * 1024) if t < 4 else (25, 0)
        a(f'buffer_store_dwordx4 {V(UP(t), 4)}, v{vo}, {S(sWS, 4)}, 0 offen offset:{off} sc1')
    a(f's_lshl_b32 s4, s{sWH}, 2')
    a(f's_add_u32 s4, s4, {L_CNT}')
    a('v_mov_b32 v10, s4')
    a('v_mov_b32 v11, 1')
    a.wait(hst)
    a('s_mov_b64 exec, 1')
    a('ds_add_rtn_u32 v11, v10, v11')
    a('s_mov_b64 exec, -1')
    a.wait_lg0()
    a('v_readfirstlane_b32 s5, v11')
    a(f's_lshl_b32 s4, s12, {FSH}')
    a(f's_add_u32 s4, s4, {FH_OFF}')
    a('s_cmp_lg_u32 s5, 3')
    a('s_cbranch_scc1 L_nofh')
    flag_set(a, 4)
    a.label('L_nofh')
    a.wait_vm0()
    flag_set(a, 10)
    stamp(a, 'prep')
    a(f's_mov_b32 s{sL}, {fbits(LOG2E)}')
    a(f's_mov_b32 s{sL + 1}, {fbits(LOG2E)}')
    a(f's_mov_b32 s{sNL}, {fbits(-LOG2E)}')
    a(f's_mov_b32 s{sNL + 1}, {fbits(-LOG2E)}')
    a(f's_mul_i32 s10, s{sHG}, 60')
    a(f's_lshl_b32 s4, s10, {FSH}')
    a(f's_add_u32 s4, s4, {FU_OFF}')
    a(f'v_lshl_add_u32 v20, v{vL}, {FSH}, s4')
    a(f's_lshl_b32 s11, s{sRB}, 2')
    a(f's_add_u32 s11, s11, s{sW}')
    a(f's_lshl_b32 s4, s11, {FSH + 2}')
    a(f's_add_u32 s4, s4, {FH_OFF}')
    a(f'v_lshl_add_u32 v21, v{vC}, {FSH}, s4')
    a(f'v_cmp_gt_u32 vcc, 60, v{vL}')
    a('v_cndmask_b32 v20, v21, v20, vcc')
    a(f's_add_u32 s10, s10, s{sW}')
    a('s_mul_i32 s10, s10, 5120')
    a(f's_add_u32 s10, s10, {WF_OFF}')
    a(f's_add_u32 s9, s10, {40 * 5120}')
    a(f's_mul_i32 s{sM0B}, s{sW}, 5120')
    a('s_mul_i32 s11, s11, 40960')
    a(f's_add_u32 s11, s11, {XF_OFF}')
    a(f'v_add_u32 v10, 20480, v{vLN}')
    a(f'v_add_u32 v26, {L_RING}, v{vLN}')
    a(f'v_add_u32 v27, 61440, v{vLN}')

    def wphi_frags(WPF, wbase, zbase):
        a(f'v_mul_u32_u24 v22, 800, v{vG}')
        a(f'v_mul_u32_u24 v23, 40, v{vR}')
        a('v_add_u32 v22, v22, v23')
        a(f'v_add_u32 v22, {wbase}, v22')
        a(f'v_mov_b32 v23, {zbase}')
        a(f'v_cmp_eq_u32 vcc, v{vG}, v{vC}')
        a('v_cndmask_b32 v22, v23, v22, vcc')
        for t in range(5):
            for d4 in range(5):
                a(f'ds_read_b64_tr_b16 {V(WPF(t, d4 // 2) + 2 * (d4 % 2), 2)}, v22 offset:{4 * d4 * 40 + 8 * t}')

    Q = lambda k: 48 + 4 * k
    WPF = lambda t, ks: Q(2 * t + ks) if ks < 2 else Q(10 + t // 2) + 2 * (t % 2)
    a('s_barrier')
    wphi_frags(WPF, L_WPHI, L_ZERO)
    a.wait_lg0()
    a('s_barrier')
    flag_check(a, flag_issue(a, 20, 21), 20, 21)
    stamp(a, 'go')

    def xload(dst, ks, z):
        off = f' offset:{(ks % 4) * 1024}' if ks % 4 else ''
        t = a(f'buffer_load_dwordx4 {V(dst, 4)}, v{vLN if z == 0 else 10}, {S(sWS, 4)}, s11 offen{off} sc1')
        if ks % 4 == 3 and z == 1:
            a('s_add_u32 s11, s11, 4096')
        return t

    a(f's_cmp_lg_u32 s{sWH}, 0')
    a('s_cbranch_scc1 L_a_upper')
    at_split = a.save()
    a('s_setprio 2')
    AC = lambda k, z: Q(13 + 2 * k + z)
    XR = lambda ks, z: Q(33 + (ks % 6) * 2 + z)
    FW = lambda n: Q(45 + n % 7)
    xtok = {}
    for ks in range(5):
        for z in range(2):
            xtok[ks] = xload(XR(ks, z), ks, z)
    a('s_barrier')
    stamp(a, 'a0')
    WIN, NF = 6, 200
    ftok = {}

    def read_frag(n):
        d, r = divmod(n, 20)
        ftok[n] = a(f'ds_read_b128 {V(FW(n), 4)}, v26 offset:{(d % 3) * 20480 + r * 1024}')

    for n in range(WIN):
        read_frag(n)
    for n in range(NF):
        nn = n + WIN
        if nn < NF:
            if nn % 20 == 0:
                a.wait_lg0()
                a('s_barrier')
                if (nn // 20) % 3 == 0:
                    stamp(a, f'a{nn // 20}')
            read_frag(nn)
        ks, k = divmod(n, 10)
        a.wait(ftok[n], xtok[ks])
        for z in range(2):
            c = '0' if ks == 0 else V(AC(k, z), 4)
            a(f'v_mfma_f32_16x16x32_bf16 {V(AC(k, z), 4)}, {V(FW(n), 4)}, {V(XR(ks, z), 4)}, {c}')
        if k in (2, 6) and ks + 5 < 20:
            xtok[ks + 5] = xload(XR(ks + 5, k // 4), ks + 5, k // 4)
    a('s_barrier')
    stamp(a, 'aend')
    vSA, vKA, vKO = 8, 9, 12
    a(f's_lshl_b32 s4, s{sW}, 5')
    a(f'v_lshl_add_u32 v{vSA}, v{vG}, 7, v{vI}')
    a(f'v_add_u32 v{vSA}, s4, v{vSA}')
    a(f'v_mul_u32_u24 v{vSA}, 120, v{vSA}')
    a(f'v_add_u32 v{vSA}, {L_RING}, v{vSA}')
    for z in range(2):
        for t in range(5):
            r = AC(5 + t, z)
            a(f'v_cvt_pk_bf16_f32 v{r}, v{r}, v{r + 1}')
            a(f'v_cvt_pk_bf16_f32 v{r + 1}, v{r + 2}, v{r + 3}')
            a(f'ds_write_b64 v{vSA}, {V(r, 2)} offset:{z * 16 * 120 + 80 + 8 * t}')
    PK = [Q(33), Q(34), Q(35)]
    EN5 = [Q(36 + c) for c in range(5)]
    for z in range(2):
        E5 = [AC(t, z) for t in range(5)]
        P5 = [Q(41 + 5 * z + c) for c in range(5)]
        featmap(a, E5, PK, WPF, P5, E5, EN5, 32)
        for c in range(10):
            a(f'ds_write_b64 v{vSA}, {V(P5[c // 2] + 2 * (c % 2), 2)} offset:{z * 16 * 120 + 8 * c}')
    stamp(a, 'fm')
    a(f's_mul_i32 s4, s{sW}, {128 * 120}')
    a(f's_add_u32 s4, s4, {L_RING}')
    a(f'v_mul_u32_u24 v{vKA}, 120, v{vGR}')
    a(f'v_lshl_add_u32 v{vKA}, v{vC}, 3, v{vKA}')
    a(f'v_add_u32 v{vKA}, s4, v{vKA}')
    a(f's_lshl_b32 s4, s{sHG}, 2')
    a(f's_add_u32 s4, s4, s{sW}')
    a('s_lshl_b32 s4, s4, 4')
    a(f's_add_u32 s13, s4, s{sRB}')
    a('s_mul_i32 s4, s13, 6144')
    a(f's_add_u32 s4, s4, {KV_OFF}')
    a(f'v_lshl_add_u32 v{vKO}, v{vL}, 4, s4')
    a('s_movk_i32 s12, 0x1000')
    a(f'v_mov_b32 v11, {OOB}')
    a(f'v_cmp_gt_u32 vcc, 8, v{vI}')
    a(f'v_cndmask_b32 v{vKO + 1}, v11, v{vKO}, vcc')
    a(f'v_cmp_gt_u32 vcc, 2, v{vG}')
    a(f'v_cndmask_b32 v{vKO + 2}, v11, v{vKO}, vcc')
    a(f'v_cndmask_b32 v{vKO + 3}, v11, v{vKO + 1}, vcc')
    a(f's_lshl_b32 s13, s13, {FSH}')
    a(f's_add_u32 s10, s13, {FK_OFF}')
    a('v_mov_b32 v11, 0x3f803f80')
    a(f'v_cmp_eq_u32 vcc, 1, v{vR}')
    a.wait_lg0()
    a('s_barrier')
    ktok = {}
    OPQ = lambda kk, x: Q(13 + kk * 5 + x)
    KVA = [Q(k) for k in range(6)]

    def kv_read(kk):
        for x in range(5):
            col = 32 * x if x < 3 else 80 + 32 * (x - 3)
            a(f'ds_read_b64_tr_b16 {V(OPQ(kk, x), 2)}, v{vKA} offset:{kk * 32 * 120 + col}')
            ktok[kk] = a(f'ds_read_b64_tr_b16 {V(OPQ(kk, x) + 2, 2)}, v{vKA} offset:{kk * 32 * 120 + 16 * 120 + col}')

    kv_read(0)
    for kk in range(4):
        if kk + 1 < 4:
            kv_read(kk + 1)
        a.wait(ktok[kk])
        for j in range(4):
            a(f'v_cndmask_b32 v{OPQ(kk, 4) + j}, v{OPQ(kk, 4) + j}, v11, vcc')
        for et in range(2):
            for ft in range(3):
                d = V(KVA[ft * 2 + et], 4)
                a(f'v_mfma_f32_16x16x32_bf16 {d}, {V(OPQ(kk, 3 + et), 4)}, {V(OPQ(kk, ft), 4)}, {"0" if kk == 0 else d}')
    for ft in range(3):
        for et in range(2):
            vo = vKO + (1 if ft == 2 else 0) + (2 if et == 1 else 0)
            so = 's12' if ft == 2 else '0'
            a(f'buffer_store_dwordx4 {V(KVA[ft * 2 + et], 4)}, v{vo}, {S(sWS, 4)}, {so} offen offset:{(ft % 2) * 2048 + et * 1024} sc1')
    a.wait_vm0()
    flag_set(a, 10)
    a(f's_mov_b32 s10, {OOB}')
    a('s_barrier')
    a('s_branch L_join')

    a.label('L_a_upper')
    a.restore(at_split)
    wtok = {}

    def dma5(so, lds):
        a(f's_add_u32 m0, s{sM0B}, {lds}')
        for q in range(4):
            off = f' offset:{q * 1024}' if q else ''
            a(f'buffer_load_dwordx4 v{vLN}, {S(sWS, 4)}, s{so} offen{off} sc1 lds')
        a(f's_add_u32 m0, s{sM0B}, {lds + 4096}')
        t = a(f'buffer_load_dwordx4 v{vLN + 1}, {S(sWS, 4)}, s{so} offen sc1 lds')
        a(f's_add_u32 s{so}, s{so}, 20480')
        return t

    NXR = 12
    XQ_ = lambda ks, z: Q(13 + (ks % NXR) * 2 + z)
    AQ = lambda t, z: Q(37 + 2 * t + z)
    FQ = lambda n: Q(47 + n % 5)
    xtok = {}
    for d in range(3):
        wtok[d] = dma5(10, L_RING + d * 20480)
    for d in range(10):
        a.wait(wtok[d])
        a('s_barrier')
        if 1 <= d and d + 2 < 10:
            wtok[d + 2] = dma5(10, L_RING + ((d + 2) % 3) * 20480)
        if d < 5:
            qtok = dma5(9, L_WQ + d * 20480)
        if 4 <= d < 10:
            for ks in (2 * (d - 4), 2 * (d - 4) + 1):
                for z in range(2):
                    xtok[ks] = xload(XQ_(ks, z), ks, z)
    a.wait(qtok)
    a('s_barrier')
    ftok = {}

    def read_q(n):
        off = n * 1024
        ftok[n] = a(f'ds_read_b128 {V(FQ(n), 4)}, v{vLN if off < 61440 else 27} offset:{off % 61440}')

    QBAR = int(os.environ.get('QBAR', '-1'))
    if QBAR < 0:
        a('s_barrier')
    for n in range(4):
        read_q(n)
    for n in range(100):
        if n + 4 < 100:
            read_q(n + 4)
        ks, t = divmod(n, 5)
        a.wait(ftok[n], xtok[ks])
        for z in range(2):
            c = '0' if ks == 0 else V(AQ(t, z), 4)
            a(f'v_mfma_f32_16x16x32_bf16 {V(AQ(t, z), 4)}, {V(FQ(n), 4)}, {V(XQ_(ks, z), 4)}, {c}')
        if t in (1, 3) and ks >= 1 and ks - 1 + NXR < 20:
            xtok[ks - 1 + NXR] = xload(XQ_(ks - 1 + NXR, t // 2), ks - 1 + NXR, t // 2)
        if n == QBAR:
            a('s_barrier')
    a('s_barrier')
    stamp(a, 'aend')
    PK = [Q(13), Q(14), Q(15)]
    EN5 = [Q(16 + c) for c in range(5)]
    PP = [[Q(21 + 5 * z + c) for c in range(5)] for z in range(2)]
    for z in range(2):
        E5 = [AQ(t, z) for t in range(5)]
        featmap(a, E5, PK, WPF, PP[z], E5, EN5, 32)
    stamp(a, 'fm')
    a('s_setprio 3')
    a(f's_mul_i32 s6, s{sW}, 10240')
    a(f's_add_u32 s6, s6, {L_RING}')
    a(f'v_lshlrev_b32 v31, 11, v{vG}')
    a(f'v_lshl_add_u32 v31, v{vR}, 3, v31')
    a('v_mov_b32 v21, 8192')
    a(f'v_cmp_eq_u32 vcc, v{vG}, v{vC}')
    a('v_cndmask_b32 v31, v21, v31, vcc')
    a('v_add_u32 v31, s6, v31')
    for k in range(4):
        a(f'v_mov_b32 v{44 + k}, 0')
    a(f'v_add_u32 v21, s6, v{vLN}')
    a('ds_write_b128 v21, v[44:47] offset:8192')
    a('ds_write_b128 v21, v[44:47] offset:9216')
    a(f's_lshl_b32 s4, s{sHG}, {4 + FSH}')
    a(f's_add_u32 s4, s4, {FR_OFF}')
    a(f'v_lshl_add_u32 v20, v{vI}, {FSH}, s4')
    a(f'v_lshlrev_b32 v8, 4, v{vL}')
    a('v_add_u32 v9, 4096, v8')
    a(f'v_lshlrev_b32 v10, 3, v{vL}')
    a(f's_lshl_b32 s5, s{sHG}, 13')
    a(f's_add_u32 s5, s5, {KB_OFF}')
    a(f's_lshl_b32 s7, s{sRB}, 1')
    a(f's_lshr_b32 s8, s{sW}, 1')
    a('s_add_u32 s7, s7, s8')
    a(f's_and_b32 s8, s{sW}, 1')
    a('s_lshl_b32 s8, s8, 1')
    a(f's_lshr_b32 s12, s{sHG}, 1')
    a('s_mul_i32 s12, s12, 5')
    a('s_mul_i32 s13, s7, 20')
    a('s_add_u32 s12, s12, s13')
    a('s_lshl_b32 s12, s12, 2')
    a('s_add_u32 s12, s12, s8')
    a('s_lshl_b32 s12, s12, 10')
    a(f's_add_u32 s12, s12, {OF_OFF}')
    a(f's_and_b32 s13, s{sHG}, 1')
    a(f's_mul_i32 s14, s13, {3 * 4096}')
    a('s_add_u32 s14, s14, s12')
    a('s_lshl_b32 s13, s13, 9')
    a('s_add_u32 s12, s12, s13')
    a(f's_add_u32 s12, s12, {2 * 4096}')
    a('s_lshl_b32 s13, s7, 3')
    a(f's_add_u32 s13, s13, s{sHG}')
    a('s_lshl_b32 s13, s13, 2')
    a('s_add_u32 s13, s13, s8')
    a(f's_lshl_b32 s13, s13, {FSH}')
    a(f's_add_u32 s13, s13, {FO_OFF}')
    flag_check(a, flag_issue(a, 20, 21), 20, 21, int(os.environ.get('RSLEEP', '8')))
    stamp(a, 'rok')
    for hh in range(2):
        a(f's_add_u32 m0, s6, {4096 * hh}')
        for q in range(4):
            off = f' offset:{q * 1024}' if q else ''
            a(f'buffer_load_dwordx4 v{8 + hh}, {S(sWS, 4)}, s5 offen{off} sc1 lds')
    a.wait_all()
    OA = [[Q(31 + k) for k in range(6)], [Q(37 + k) for k in range(6)]]
    KF = lambda ks, t: Q((ks % 2) * 6 + t)
    otok = {}

    def o_read(ks):
        for t in range(6):
            a(f'ds_read_b64_tr_b16 {V(KF(ks, t), 2)}, v31 offset:{kb_pos(8 * ks, t)}')
            otok[ks] = a(f'ds_read_b64_tr_b16 {V(KF(ks, t) + 2, 2)}, v31 offset:{kb_pos(8 * ks + 4, t)}')

    o_read(0)
    for ks in range(5):
        if ks + 1 < 5:
            o_read(ks + 1)
        a.wait(otok[ks])
        for z in range(2):
            for t in range(6):
                d = V(OA[z][t], 4)
                a(f'v_mfma_f32_16x16x32_bf16 {d}, {V(KF(ks, t), 4)}, {V(PP[z][ks], 4)}, {"0" if ks == 0 else d}')
    for z in range(2):
        O = OA[z]
        PO = PK if z == 0 else [Q(16), Q(17), Q(18)]
        a(f'v_add_f32 v{O[5]}, {fbits(1e-6)}, v{O[5]}')
        a(f'v_rcp_f32 v{O[5]}, v{O[5]}')
        for t in range(5):
            for h in range(2):
                a(f'v_pk_mul_f32 {V(O[t] + 2 * h, 2)}, {V(O[t] + 2 * h, 2)}, {V(O[5], 2)} op_sel_hi:[1,0]')
        for k in range(10):
            t, j = divmod(2 * k, 4)
            a(f'v_cvt_pk_bf16_f32 v{PO[k // 4] + k % 4}, v{O[t] + j}, v{O[t] + j + 1}')
        off = f' offset:{1024 * z}' if z else ''
        a(f'buffer_store_dwordx4 {V(PO[0], 4)}, v8, {S(sWS, 4)}, s14 offen{off} sc1')
        a(f'buffer_store_dwordx4 {V(PO[1], 4)}, v9, {S(sWS, 4)}, s14 offen{off} sc1')
        a(f'buffer_store_dwordx2 {V(PO[2], 2)}, v10, {S(sWS, 4)}, s12 offen{off} sc1')
    a.wait_vm0()
    flag_set(a, 13)
    a(f's_cmp_lg_u32 s{sID}, 0')
    a('s_cbranch_scc1 L_a_done')
    a(f's_cmp_lg_u32 s{sW}, 3')
    a('s_cbranch_scc1 L_a_done')
    a(f'v_and_b32 v20, 31, v{vL}')
    a('v_min_u32 v20, 26, v20')
    a(f'v_and_b32 v21, 32, v{vL}')
    a('v_add_u32 v20, v20, v21')
    a(f'v_lshlrev_b32 v20, {FSH + 2}, v20')
    for k in range(4):
        a(f'v_add_u32 v22, {FG_OFF + (k * 256 << FSH)}, v20')
        flag_check(a, flag_issue(a, 22, 21), 22, 21, 12)
    a(f'v_lshlrev_b32 v20, {FSH}, v{vL}')
    for base in (FR_OFF, FR_OFF + (64 << FSH)):
        a(f'v_add_u32 v22, {base}, v20')
        flag_check(a, flag_issue(a, 22, 21), 22, 21, 12)
    a(f'v_and_b32 v20, 31, v{vL}')
    a(f'v_lshlrev_b32 v20, {FSH}, v20')
    a(f'v_add_u32 v22, {FW_OFF}, v20')
    flag_check(a, flag_issue(a, 22, 21), 22, 21, 12)
    a(f's_mov_b32 s10, {EP_OFF}')
    flag_set(a, 10)
    a.label('L_a_done')
    stamp_flush(a, 'end')
    a('s_endpgm')


def role_b(a):
    if 'map4' in EXP:
        a(f's_lshr_b32 s{sBCB}, s6, 2')
        a('s_and_b32 s9, s6, 3')
        a('s_lshl_b32 s6, s9, 1')
    else:
        a('s_cmp_ge_u32 s6, 54')
        a('s_cselect_b32 s7, 54, 0')
        a('s_cselect_b32 s8, 4, 0')
        a('s_sub_u32 s6, s6, s7')
        a(f's_lshr_b32 s{sBCB}, s6, 1')
        a('s_and_b32 s9, s6, 1')
        a('s_lshl_b32 s6, s9, 1')
        a('s_add_u32 s6, s6, s8')
    PR = 24 if 'map4' in EXP else 48
    a(f's_add_u32 s{sBDB}, s6, s{sWH}')
    srd(a, sW1, P_W1, S_ * F_ * 2)
    g_common(a)
    gB = GGemm(a, 'B')
    gB.setup()
    BPRE = int(os.environ.get('BPRE', '10'))
    for j in range(BPRE):
        Hooks(gB.dma_items(j)).flush()

    def b_extra(j):
        return []

    a('s_lshl_b32 s4, s9, 1')
    a(f's_add_u32 s4, s4, s{sWH}')
    a(f's_mul_i32 s4, s4, {PR}')
    a(f's_lshl_b32 s5, s{sW}, 9')
    a('s_add_u32 s4, s4, s5')
    a(f's_add_u32 s4, s4, {32 * B_P}')
    a(f's_mul_i32 s4, s4, {F_ * 2}')
    a(f's_lshl_b32 s5, s{sBCB}, 7')
    a('s_add_u32 s4, s4, s5')
    a(f'v_min_u32 v24, {PR - 1}, v{vL}')
    a(f'v_mul_u32_u24 v24, {F_ * 2}, v24')
    a('v_add_u32 v24, s4, v24')
    a(f'buffer_load_dword v37, v24, {S(sW1, 4)}, 0 offen')
    srd(a, sAUX, P_B1, F_ * 2)
    a(f's_lshl_b32 s4, s{sBCB}, 7')
    a(f's_lshl_b32 s5, s{sW}, 5')
    a('s_add_u32 s4, s4, s5')
    a(f'v_lshl_add_u32 v24, v{vG}, 3, s4')
    a(f'buffer_load_dwordx2 v[38:39], v24, {S(sAUX, 4)}, 0 offen')
    tag_ready(a)
    a('s_barrier')
    stamp(a, 'prep')
    a(f's_cmp_lg_u32 s{sWH}, 0')
    a('s_cbranch_scc1 L_b_go')
    flag_check(a, flag_issue(a, vFL, vFD), vFL, vFD, 3)
    a.label('L_b_go')
    a.wait_vm0()
    a('s_barrier')
    stamp(a, 'go')
    Hooks(gB.frag_items(FIRST)).flush()
    for j in range(BPRE, B_P):
        Hooks(gB.dma_items(j)).flush()

    gB.mainloop(b_extra)
    stamp(a, 'Bend')
    gB.reduce()
    R = lambda t, j: ACC(t, 0) + j
    T = lambda t, j: ACC(t, 1) + j
    a('v_lshlrev_b32 v34, 16, v38')
    a('v_and_b32 v35, 0xffff0000, v38')
    a('v_lshlrev_b32 v36, 16, v39')
    a('v_and_b32 v37, 0xffff0000, v39')
    c0 = 0.7978845608028654
    k1 = -2.0 * c0 * LOG2E
    k2 = k1 * 0.044715
    a(f's_mov_b32 s4, {fbits(k2)}')
    a(f's_mov_b32 s5, {fbits(k2)}')
    a(f'v_mov_b32 v24, {fbits(k1)}')
    a('v_mov_b32 v26, 1.0')
    th = [(t, h) for t in range(5) for h in range(2)]
    tj = [(t, j) for t in range(5) for j in range(4)]
    for t, h in th:
        a(f'v_pk_add_f32 {V(R(t, 2 * h), 2)}, {V(R(t, 2 * h), 2)}, {V(34 + 2 * h, 2)}')
    for t, h in th:
        a(f'v_pk_mul_f32 {V(T(t, 2 * h), 2)}, {V(R(t, 2 * h), 2)}, {V(R(t, 2 * h), 2)}')
    for t, h in th:
        a(f'v_pk_fma_f32 {V(T(t, 2 * h), 2)}, {V(T(t, 2 * h), 2)}, s[4:5], v[24:25] op_sel_hi:[1,0,0]')
    for t, h in th:
        a(f'v_pk_mul_f32 {V(T(t, 2 * h), 2)}, {V(T(t, 2 * h), 2)}, {V(R(t, 2 * h), 2)}')
    for t, j in tj:
        a(f'v_exp_f32 v{T(t, j)}, v{T(t, j)}')
    for t, h in th:
        a(f'v_pk_add_f32 {V(T(t, 2 * h), 2)}, {V(T(t, 2 * h), 2)}, v[26:27] op_sel_hi:[1,0]')
    for t, j in tj:
        a(f'v_rcp_f32 v{T(t, j)}, v{T(t, j)}')
    for t, h in th:
        a(f'v_pk_mul_f32 {V(T(t, 2 * h), 2)}, {V(T(t, 2 * h), 2)}, {V(R(t, 2 * h), 2)}')
    a(f's_mul_i32 s4, s{sW8}, 2560')
    a('s_add_u32 s4, s4, 81920')
    a(f'v_lshl_add_u32 v24, v{vL}, 3, s4')
    for t in range(5):
        a(f'v_cvt_pk_bf16_f32 v{R(t, 0)}, v{T(t, 0)}, v{T(t, 1)}')
        a(f'v_cvt_pk_bf16_f32 v{R(t, 1)}, v{T(t, 2)}, v{T(t, 3)}')
        a(f'ds_write_b64 v24, {V(R(t, 0), 2)} offset:{t * 512}')
    a(f's_mul_i32 s4, s{sBDB}, 74')
    a(f's_lshl_b32 s5, s{sBCB}, 1')
    a('s_add_u32 s4, s4, s5')
    a('s_mul_i32 s4, s4, 5120')
    a(f's_add_u32 s15, s4, {GF_OFF}')
    a(f's_mul_i32 s4, s{sWH}, 10240')
    a('s_add_u32 s4, s4, 81920')
    a(f'v_lshl_add_u32 v25, v{vL}, 3, s4')
    a.wait_lg0()
    a('s_barrier')
    gt = []
    for m in range(3):
        frag10_addr(a, m, 2 * 2560 - 5 * 512, 512, 15, 24, 25, 34 + m)
        a(f'ds_read_b64 {V(ACC(m, 2), 2)}, v24')
        gt.append(a(f'ds_read_b64 {V(ACC(m, 2) + 2, 2)}, v24 offset:2560'))
    for m in range(3):
        a.wait(gt[m])
        a(f'buffer_store_dwordx4 {V(ACC(m, 2), 4)}, v{34 + m}, {S(sWS, 4)}, 0 offen sc1')
    a(f's_lshl_b32 s4, s{sBDB}, 5')
    a(f's_add_u32 s4, s4, s{sBCB}')
    a('s_lshl_b32 s4, s4, 2')
    a(f's_add_u32 s4, s4, s{sW}')
    a(f's_lshl_b32 s4, s4, {FSH}')
    a(f's_add_u32 s10, s4, {FG_OFF}')
    a('s_branch L_join')


def role_r(a):
    a('s_lshl_b32 s11, s6, 1')
    a(f's_add_u32 s11, s11, s{sWH}')
    a('s_lshr_b32 s8, s6, 3')
    a('s_lshl_b32 s8, s8, 3')
    a(f's_add_u32 s8, s8, s{sW8}')
    a('s_getpc_b64 s[6:7]')
    a.raw('L_pc:')
    a(f's_sub_u32 s{sAUX}, s6, L_pc - L_start')
    a('s_subb_u32 s7, s7, 0')
    a(f's_and_b32 s{sAUX + 1}, s7, 0xffff')
    a(f's_mov_b32 s{sAUX + 2}, L_end - L_start')
    a(f's_mov_b32 s{sAUX + 3}, 0x20000')
    a('s_lshl_b32 s6, s8, 13')
    a(f'v_lshl_add_u32 v25, v{vL}, 7, s6')
    a(f'buffer_load_dword v37, v25, {S(sAUX, 4)}, 0 offen')
    a('s_mul_i32 s5, s8, 54')
    a(f's_and_b32 s7, s{sID}, 1')
    a('s_mul_i32 s7, s7, 864')
    a('s_add_u32 s5, s5, s7')
    a('s_lshl_b32 s5, s5, 12')
    a(f's_and_b32 s7, s{sID}, 6')
    a('s_lshl_b32 s7, s7, 9')
    a('s_add_u32 s5, s5, s7')
    a(f'v_lshrrev_b32 v24, 3, v{vL}')
    a(f'v_and_b32 v25, 7, v{vL}')
    a('v_lshlrev_b32 v24, 12, v24')
    a('v_lshl_add_u32 v24, v25, 7, v24')
    a('v_add_u32 v24, s5, v24')
    tag_ready(a)
    a(f'v_mov_b32 v{vFL}, {FH_OFF}')
    flag_check(a, flag_issue(a, vFL, vFD), vFL, vFD, 16)
    PFA = int(os.environ.get('PFA', '7'))
    a('v_mov_b32 v36, v24')
    for k in range(PFA):
        a(f'buffer_load_dword v37, v36, {S(sW2, 4)}, 0 offen')
        a(f'v_add_u32 v36, {8 * 4096}, v36')
        if k % 2 == 1:
            a.wait_vm0()
    stamp(a, 'prep')
    a('s_setprio 3')
    a(f's_lshl_b32 s4, s11, {4 + FSH}')
    a(f's_add_u32 s4, s4, {FK_OFF}')
    a(f'v_lshl_add_u32 v{vFL}, v{vI}, {FSH}, s4')
    a(f's_lshl_b32 s5, s{sW}, 11')
    a(f'v_lshl_add_u32 v24, v{vL}, 4, s5')
    a(f'v_lshrrev_b32 v25, 5, v{vL}')
    a(f'v_and_b32 v26, 31, v{vL}')
    a('v_lshlrev_b32 v26, 4, v26')
    a('v_lshl_add_u32 v25, v25, 11, v26')
    a('v_add_u32 v25, 1024, v25')
    a(f's_cmp_eq_u32 s{sW}, 2')
    a('s_cselect_b64 vcc, -1, 0')
    a('v_cndmask_b32 v24, v24, v25, vcc')
    a(f'v_lshrrev_b32 v25, 3, v{vL}')
    a(f'v_and_b32 v26, 7, v{vL}')
    a('v_lshlrev_b32 v26, 4, v26')
    a('v_lshl_add_u32 v25, v25, 8, v26')
    a('v_add_u32 v25, 4096, v25')
    a(f's_cmp_eq_u32 s{sW}, 3')
    a('s_cselect_b64 vcc, -1, 0')
    a('v_cndmask_b32 v24, v24, v25, vcc')
    a(f's_mul_i32 s4, s11, {16 * 6144}')
    a(f's_add_u32 s4, s4, {KV_OFF}')
    flag_check(a, flag_issue(a, vFL, vFD), vFL, vFD, 4)
    stamp(a, 'hok')
    stok = []
    for rb in range(16):
        stok.append(a(f'buffer_load_dwordx4 {V(128 + 4 * rb, 4)}, v24, {S(sWS, 4)}, s4 offen sc1'))
        a('s_add_u32 s4, s4, 6144')
    for rb in range(1, 16):
        a.wait(stok[rb])
        for h in range(2):
            a(f'v_pk_add_f32 {V(128 + 2 * h, 2)}, {V(128 + 2 * h, 2)}, {V(128 + 4 * rb + 2 * h, 2)}')
    stamp(a, 'rsum')
    a('v_cvt_pk_bf16_f32 v34, v128, v129')
    a('v_cvt_pk_bf16_f32 v35, v130, v131')
    a('s_lshl_b32 s4, s11, 11')
    a(f's_add_u32 s4, s4, {KB_OFF}')
    a(f'v_lshl_add_u32 v24, v{vTH}, 3, s4')
    a(f'buffer_store_dwordx2 v[34:35], v24, {S(sWS, 4)}, 0 offen sc1')
    a('s_lshl_b32 s4, s11, 2')
    a(f's_add_u32 s4, s4, s{sW}')
    a(f's_lshl_b32 s4, s4, {FSH}')
    a(f's_add_u32 s10, s4, {FR_OFF}')
    a.wait_vm0()
    flag_set(a, 10)
    a(f's_mov_b32 s10, {OOB}')
    stamp(a, 'rpub')
    a('s_barrier')
    for k in range(PFA, 7):
        a(f'buffer_load_dword v37, v36, {S(sW2, 4)}, 0 offen')
        a(f'v_add_u32 v36, {8 * 4096}, v36')
    a('s_branch L_join')


def role_wot(a):
    a('s_lshl_b32 s11, s6, 1')
    a(f's_add_u32 s11, s11, s{sWH}')
    srd(a, sAUX, P_WO, D_ * D_ * 2)
    a(f'v_lshlrev_b32 v{vF}, 4, v{vL}')
    a(f'v_add_u32 v{vF + 1}, 4096, v{vF}')
    tag_ready(a)
    dma160_voffs(a, 34, 1280, False, 24)
    a('s_mul_i32 s4, s11, 160')
    a(f's_mul_i32 s5, s{sW}, {160 * 1280}')
    a('s_add_u32 s7, s4, s5')
    a(f's_mul_i32 s6, s{sW8}, 20480')
    a(f'v_mul_u32_u24 v24, 20, v{vG}')
    a(f'v_add_u32 v24, v24, v{vR}')
    a('v_mul_u32_u24 v24, 160, v24')
    a(f'v_mul_u32_u24 v25, 40, v{vC}')
    a('v_add_u32 v24, v24, v25')
    a('v_add_u32 v24, s6, v24')
    a('s_mul_i32 s4, s11, 74')
    a(f's_mul_i32 s5, s{sW}, 5')
    a('s_add_u32 s4, s4, s5')
    a('s_add_u32 s4, s4, 54')
    a('s_mul_i32 s4, s4, 5120')
    a(f's_add_u32 s4, s4, {GF_OFF}')
    rounds = [[(0, 0, 0), (0, 1, 4), (1, 0, 8), (1, 1, 12), (2, 0, 16)],
              [(2, 1, 16), (3, 0, 0), (3, 1, 4), (4, 0, 8), (4, 1, 12)]]
    for rd in range(2):
        for k in range(3):
            a(f's_add_u32 s8, s7, {(rd * 80 + k * 32) * 1280}')
            dma160(a, 34, sAUX, 8, 6, k * 5120)
        a.wait_vm0()
        for u, hf, row in rounds[rd]:
            for t in range(5):
                a(f'ds_read_b64_tr_b16 {V(156 + (u * 5 + t) * 4 + 2 * hf, 2)}, v24 offset:{row * 160 + 8 * t}')
            a.wait_lg0()
    for u in range(5):
        for t in range(5):
            vo, off = (vF, t * 1024) if t < 4 else (vF + 1, 0)
            a(f'buffer_store_dwordx4 {V(156 + (u * 5 + t) * 4, 4)}, v{vo}, {S(sWS, 4)}, s4 offen offset:{off} sc1')
        a('s_add_u32 s4, s4, 5120')
    a('s_lshl_b32 s4, s11, 2')
    a(f's_add_u32 s4, s4, s{sW}')
    a(f's_lshl_b32 s4, s4, {FSH}')
    a(f's_add_u32 s10, s4, {FW_OFF}')
    a('s_barrier')


def final_gemm(a):
    a.wait_all()
    flag_set(a, 10)
    stamp(a, 'pub')
    a('s_setprio 0')
    a(f's_cmp_lg_u32 s{sWH}, 0')
    a('s_cbranch_scc1 L_fin')
    xcd_tile(a)
    g_common(a)
    g2 = GGemm(a, 'G2')
    g2.setup()
    for j in range(G2_P):
        Hooks(g2.dma_items(j)).flush()
    srd(a, sOUT, P_OUT, S_ * D_ * 2)
    R = lambda t, j: ACC(t, 0) + j
    T = lambda t, j: ACC(t, 1) + j
    srd(a, sAUX, P_B2, S_ * 2)
    a(f's_lshl_b32 s4, s{sRB}, {5 + FSH}')
    a(f's_lshl_b32 s5, s{sW}, {3 + FSH}')
    a('s_add_u32 s4, s4, s5')
    a(f's_add_u32 s4, s4, {FO_OFF}')
    a(f'v_lshl_add_u32 v34, v{vC}, {FSH + 1}, s4')
    a(f's_lshl_b32 s4, s{sHG}, 2')
    a(f's_add_u32 s4, s4, s{sW}')
    a(f's_lshl_b32 s4, s4, {FSH}')
    a(f's_add_u32 s4, s4, {FW_OFF}')
    a('v_mov_b32 v35, s4')
    a(f'v_cmp_gt_u32 vcc, 63, v{vL}')
    a(f'v_cndmask_b32 v{vFL}, v35, v{vFL}, vcc')
    for nt in range(4):
        a(f's_xor_b32 s4, s{sW}, {nt}')
        a('s_lshl_b32 s4, s4, 10')
        a(f'v_add_u32 v{vOF + nt}, s4, v{vF}')
    a(f's_mul_i32 s4, s{sRB}, 20')
    a(f's_mul_i32 s5, s{sW}, 5')
    a('s_add_u32 s4, s4, s5')
    a('s_lshl_b32 s4, s4, 12')
    a(f's_add_u32 s11, s4, {OF_OFF}')
    a(f'v_mul_u32_u24 v{vXA}, 1280, v{vTOK}')
    a(f'v_mul_u32_u24 v{vBA}, 40, v{vG}')
    a(f'v_add_u32 v{vXA}, v{vXA}, v{vBA}')
    a(f's_mul_i32 s4, s{sHG}, 160')
    a(f'v_add_u32 v{vXA}, s4, v{vXA}')
    a(f'v_lshlrev_b32 v{vBA}, 1, v{vTOK}')
    flag_check(a, flag_issue(a, vFL, vFD), vFL, vFD)
    stamp(a, 'gok')
    fl = {}

    def gate():
        a(f's_mul_i32 s4, s{sHG}, 74')
        a(f's_mul_i32 s5, s{sW}, 5')
        a('s_add_u32 s4, s4, s5')
        a('s_add_u32 s4, s4, 54')
        a('s_mul_i32 s4, s4, 5120')
        a(f's_add_u32 s{sFS}, s4, {GF_OFF}')

    def gate2():
        stamp(a, 'oa')
        flag_check(a, fl['o'], 34, 35)
        stamp(a, 'ob')

    g2.gate = gate
    g2.gate2 = gate2
    XR = [8, 10, 14, 16, 18]

    def g2_extra(j):
        it = []
        if j == 9:
            def fo():
                fl['o'] = flag_issue(a, 34, 35)
            it.append(fo)
        if j == 16:
            def resid():
                a(f'buffer_load_ushort v36, v{vBA}, {S(sAUX, 4)}, 0 offen')
                for t in range(5):
                    fl['x'] = a(f'buffer_load_dwordx2 {V(XR[t], 2)}, v{vXA}, {S(sX, 4)}, 0 offen offset:{8 * t}')
            it.append(resid)
        return it

    Hooks(g2.frag_items(FIRST)).flush()
    g2.mainloop(g2_extra)
    stamp(a, 'Gend')
    g2.reduce()
    a.wait(fl['x'])
    a('v_lshlrev_b32 v36, 16, v36')
    for t in range(5):
        for h in range(2):
            a(f'v_lshlrev_b32 v{T(t, 2 * h)}, 16, v{XR[t] + h}')
            a(f'v_and_b32 v{T(t, 2 * h + 1)}, 0xffff0000, v{XR[t] + h}')
            a(f'v_pk_add_f32 {V(R(t, 2 * h), 2)}, {V(R(t, 2 * h), 2)}, v[36:37] op_sel_hi:[1,0]')
            a(f'v_pk_add_f32 {V(R(t, 2 * h), 2)}, {V(R(t, 2 * h), 2)}, {V(T(t, 2 * h), 2)}')
        a(f'v_cvt_pk_bf16_f32 v{R(t, 0)}, v{R(t, 0)}, v{R(t, 1)}')
        a(f'v_cvt_pk_bf16_f32 v{R(t, 1)}, v{R(t, 2)}, v{R(t, 3)}')
        a(f'buffer_store_dwordx2 {V(R(t, 0), 2)}, v{vXA}, {S(sOUT, 4)}, 0 offen offset:{8 * t}')
    a.label('L_fin')
    stamp_flush(a, 'end')


def build():
    a = Asm()
    hdr = open(os.path.join(os.path.dirname(__file__), '..', 'cdna_kernels', NAME + '.s.ref')).read().split('\n')
    for line in hdr:
        if line.startswith(';') and '@launch' not in line:
            a.raw(line)
    a.raw(f'; @launch grid=(256,1,1) block=(512,1,1) lds={LDS_BYTES}')
    a.raw('.amdgcn_target "amdgcn-amd-amdhsa--gfx950"')
    a.raw('.text')
    K = NAME + '_kernel'
    a.raw(f'.globl {K}')
    a.raw('.p2align 8')
    a.raw(f'.type {K},@function')
    a.raw(f'{K}:')
    a.raw('L_start:')
    a('s_cmp_ge_u32 s2, 256')
    a('s_cbranch_scc1 L_end')
    a('s_load_dwordx16 s[16:31], s[0:1], 0')
    a('s_load_dwordx8 s[32:39], s[0:1], 64')
    a(f'v_and_b32 v{vL}, 63, v0')
    a('v_lshrrev_b32 v6, 6, v0')
    a(f'v_readfirstlane_b32 s{sW8}, v6')
    a(f'v_lshrrev_b32 v{vG}, 4, v{vL}')
    a(f'v_and_b32 v{vI}, 15, v{vL}')
    a(f'v_lshrrev_b32 v{vR}, 2, v{vI}')
    a(f'v_and_b32 v{vC}, 3, v{vL}')
    a(f'v_lshl_add_u32 v{vGR}, v{vG}, 2, v{vR}')
    a(f'v_and_b32 v{vTH}, 255, v0')
    a(f's_and_b32 s{sW}, s{sW8}, 3')
    a(f's_lshr_b32 s{sWH}, s{sW8}, 2')
    a(f's_mov_b32 s{sID}, s2')
    a('s_waitcnt lgkmcnt(0)')
    a(f's_add_u32 s4, s{P_WS}, {EP_OFF}')
    a(f's_addc_u32 s5, s{P_WS + 1}, 0')
    a(f's_load_dword s{sTAG}, s[4:5], 0')
    srd(a, sX, P_X, S_ * D_ * 2)
    srd(a, sWS, P_WS, WS_USED)
    srd(a, sW2, P_W2, F_ * S_ * 2)
    stamp(a, 'start')
    if 'noticket' not in EXP:
        srd(a, sAUX, P_DBG, 256)
        a(f'v_mov_b32 v8, {L_CNT + 16}')
        a(f's_cmp_lg_u32 s{sW8}, 0')
        a('s_cbranch_scc1 L_ticket_done')
        a('s_getreg_b32 s4, hwreg(HW_REG_XCC_ID)')
        a('s_mov_b32 s6, 0')
        a('s_mov_b64 exec, 1')
        a.label('L_ticket')
        a('s_and_b32 s4, s4, 7')
        a('s_lshl_b32 s5, s4, 5')
        a('v_mov_b32 v9, s5')
        a('v_mov_b32 v10, 1')
        a(f'buffer_atomic_add v10, v9, {S(sAUX, 4)}, 0 offen sc0 sc1')
        a.wait_vm0()
        a('v_readfirstlane_b32 s5, v10')
        a('s_cmp_lt_u32 s5, 32')
        a('s_cbranch_scc1 L_ticket_ok')
        a('s_add_u32 s4, s4, 1')
        a('s_add_u32 s6, s6, 1')
        a('s_cmp_lt_u32 s6, 8')
        a('s_cbranch_scc1 L_ticket')
        a.label('L_ticket_ok')
        a('s_lshl_b32 s5, s5, 3')
        a('s_add_u32 s5, s5, s4')
        a('v_mov_b32 v9, s5')
        a('ds_write_b32 v8, v9')
        a('s_mov_b64 exec, -1')
        a('s_waitcnt lgkmcnt(0)')
        a.label('L_ticket_done')
        a('s_barrier')
        a('ds_read_b32 v9, v8')
        a('s_waitcnt lgkmcnt(0)')
        a('s_barrier')
        a(f'v_readfirstlane_b32 s{sID}, v9')
        a(f's_and_b32 s{sID}, s{sID}, 255')
        a.reset_counters()
        stamp(a, 'tick')
    if os.environ.get('UPRIO', '1') != '0':
        a(f's_cmp_eq_u32 s{sWH}, 0')
        a('s_cbranch_scc1 L_prio')
        a(f's_setprio {os.environ.get("UPRIO", "1")}')
        a.label('L_prio')
    a(f's_cmp_ge_u32 s{sID}, 128')
    a('s_cbranch_scc1 L_not_a')
    role_a(a)
    a.label('L_not_a')
    a.reset_counters()
    a(f's_and_b32 s4, s{sID}, 7')
    a(f's_lshr_b32 s5, s{sID}, 3')
    a('s_sub_u32 s5, s5, 16')
    a('s_cmp_ge_u32 s5, 14')
    a('s_cbranch_scc1 L_role_r')
    a('s_and_b32 s7, s4, 1')
    a('s_add_u32 s7, s7, 13')
    a('s_cmp_ge_u32 s5, s7')
    a('s_cbranch_scc1 L_role_wot')
    a('s_mul_i32 s6, s4, 27')
    a('s_lshr_b32 s6, s6, 1')
    a('s_add_u32 s6, s6, s5')
    role_b(a)
    a.label('L_role_r')
    a.reset_counters()
    a(f's_sub_u32 s6, s{sID}, 240')
    role_r(a)
    a.label('L_role_wot')
    a.reset_counters()
    a('s_lshr_b32 s6, s4, 1')
    role_wot(a)
    a.label('L_join')
    final_gemm(a)
    a.label('L_end')
    a('s_endpgm')
    if STAMPS:
        a.raw('; STAMPS ' + ' '.join(STAMP_NAMES))
    a.raw('.section .rodata,"a"')
    a.raw(f""".p2align 6
.amdhsa_kernel {K}
  .amdhsa_next_free_vgpr 256
  .amdhsa_next_free_sgpr 102
  .amdhsa_accum_offset 256
  .amdhsa_group_segment_fixed_size 0
  .amdhsa_kernarg_size 96
  .amdhsa_user_sgpr_count 2
  .amdhsa_user_sgpr_kernarg_segment_ptr 1
  .amdhsa_system_sgpr_workgroup_id_x 1
.end_amdhsa_kernel""")
    sys.stderr.write(f'maxv={a.maxv} maxa={a.maxa} maxs={a.maxs} nops={a.nops} lines={len(a.out)}\n')
    return a.text()


if __name__ == '__main__':
    out = sys.argv[1] if len(sys.argv) > 1 else os.path.join(os.path.dirname(__file__), '..', 'cdna_kernels', NAME + '.s')
    open(out, 'w').write(build())
```

```python
import sys, struct, os
sys.path.insert(0, os.path.dirname(__file__))
from asmdsl import Asm, Rec, V, A, S

NAME = 'parallel_sum__linear_kernel_hedgehog__mixer_token_mlp__prompt'
S_, D_, F_ = 2048, 640, 1728

HF_OFF = 0
HF_SZ = 8 * 64 * 5 * 1024
GF_OFF = HF_OFF + HF_SZ
GF_SZ = 8 * 74 * 5 * 1024
OF_OFF = GF_OFF + GF_SZ
OF_SZ = 32 * 20 * 4 * 1024
XF_OFF = OF_OFF + OF_SZ
XF_SZ = 128 * 20480
WF_OFF = XF_OFF + XF_SZ
WF_SZ = 480 * 5120 + 4096
KV_OFF = WF_OFF + WF_SZ
KV_SZ = 32 * 32 * 6144
KB_OFF = KV_OFF + KV_SZ + 4096
KB_SZ = 32 * 2048
FL_OFF = KB_OFF + KB_SZ + 4096
FSH = int(os.environ.get('FSH', '6'))
FH_OFF = FL_OFF
FK_OFF = FH_OFF + (1024 << FSH)
FR_OFF = FK_OFF + (1024 << FSH)
FG_OFF = FR_OFF + (128 << FSH)
FO_OFF = FG_OFF + (1024 << FSH)
FW_OFF = FO_OFF + (1024 << FSH)
FU_OFF = FW_OFF + (128 << FSH)
EP_OFF = FU_OFF + (512 << FSH)
WS_USED = EP_OFF + 512
STAMP_OFF = WS_USED
WS_USED += 512 * 256
STAMPS = bool(int(os.environ.get('STAMPS', '0')))
EXP = os.environ.get('EXP', '').split(',') + ['map4', 'ntb', 'noticket']
OOB = 0x40000000

P_X, P_WQKV, P_WPHI, P_WO, P_BX, P_W1, P_B1, P_W2, P_B2, P_OUT, P_DBG, P_WS = range(16, 40, 2)
LOG2E = 1.4426950408889634

sW = 3
sW8, sWH = 90, 91
sWS, sX, sWQ, sW1, sW2, sAUX, sOUT = 40, 44, 48, 52, 56, 60, 64
sHG, sRB, sID, sROT, sKS, sT, sM0B, sTAG = 68, 69, 70, 71, 72, 73, 74, 75
sL, sNL = 76, 78
sBDB, sBCB, sFS, sGM0, sSPIN, sLIM = 80, 81, 82, 83, 84, 85
vL, vG, vI, vR, vC = 1, 2, 3, 4, 5
vTOK, vGR = 6, 7
vFS = 42
DB = 64
XN = lambda s: DB + 8 * s
UP = lambda k: DB + 8 * k + 4

LDS_BYTES = 163840
A_SLOTS = 4
L_WQ = 0
L_RING = 102400
L_ZERO = 122880
L_WPHI = 126976
L_CNT = 131072
B_P = 10
G2_P = 5
ILV = os.environ.get('ILV', 'burst')


def kb_pos(f, t):
    if f < 32:
        return (f >> 4) * 512 + (t * 16 + (f & 15)) * 8 if t < 4 else 1024 + ((f >> 4) * 32 + (t - 4) * 16 + (f & 15)) * 8
    return 1536 + (t * 8 + f - 32) * 8


def fbits(x):
    return '0x%08x' % struct.unpack('<I', struct.pack('<f', x))[0]


def srd(a, dst, ptr, nbytes):
    a(f's_mov_b32 s{dst}, s{ptr}')
    a(f's_and_b32 s{dst + 1}, s{ptr + 1}, 0xffff')
    a(f's_mov_b32 s{dst + 2}, {nbytes}')
    a(f's_mov_b32 s{dst + 3}, 0x20000')


STAMP_NAMES = []
vST = 41


def stamp(a, name):
    if not STAMPS:
        return
    name = str(name)
    if name not in STAMP_NAMES:
        STAMP_NAMES.append(name)
    idx = STAMP_NAMES.index(name)
    a('s_memrealtime s[98:99]')
    a.wait_lg0()
    if idx == 0:
        a(f'v_mov_b32 v{vST}, 0')
        a('s_getreg_b32 s97, hwreg(HW_REG_HW_ID)')
        a(f'v_writelane_b32 v{vST}, s97, 63')
    a(f'v_writelane_b32 v{vST}, s98, {idx}')


def stamp_flush(a, n):
    if not STAMPS:
        return
    a.wait_vm0()
    stamp(a, n)
    lab = a.newlabel('st')
    a(f's_cmp_lg_u32 s{sW}, 0')
    a(f's_cbranch_scc1 {lab}')
    a(f's_lshl_b32 s4, s{sWH}, 8')
    a(f's_add_u32 s4, s4, s{sID}')
    a('s_lshl_b32 s4, s4, 8')
    a(f's_add_u32 s4, s4, {STAMP_OFF}')
    a(f'v_lshl_add_u32 v8, v{vL}, 2, s4')
    a(f'buffer_store_dword v{vST}, v8, {S(sWS, 4)}, 0 offen')
    if 'dbgmax' in EXP:
        srd(a, sAUX, P_DBG, 256)
        sel = os.environ.get('DBGSEL', 'start,x,prep,go,a0,aend,fm,rok,B_0,Bend,pub,gok,G2_0,Gend,end').split(',')
        a(f'v_readlane_b32 s4, v{vST}, 0')
        a('s_not_b32 s4, s4')
        a(f'v_writelane_b32 v{vST}, s4, 62')
        a('s_mov_b64 exec, 1')
        for k, nm in enumerate(['neg'] + sel):
            if nm != 'neg' and nm not in STAMP_NAMES:
                STAMP_NAMES.append(nm)
            lane = 62 if nm == 'neg' else STAMP_NAMES.index(nm)
            a(f'v_readlane_b32 s4, v{vST}, {lane}')
            a('v_mov_b32 v9, s4')
            a('v_mov_b32 v8, 0')
            a(f'buffer_atomic_umax v9, v8, {S(sAUX, 4)}, 0 offen offset:{4 * k} sc1')
        a('s_mov_b64 exec, -1')
    a.label(lab)


def reduce_g(a, r, t):
    a(f'v_mov_b32 v{t}, v{r}')
    a(f'v_permlane32_swap_b32 v{r}, v{t}')
    a(f'v_add_f32 v{r}, v{r}, v{t}')
    a(f'v_mov_b32 v{t}, v{r}')
    a(f'v_permlane16_swap_b32 v{r}, v{t}')
    a(f'v_add_f32 v{r}, v{r}, v{t}')


def dma160_voffs(a, dst, stride, permute, tmp):
    t0, t2, t3 = tmp, tmp + 1, tmp + 2
    for q in range(5):
        d = dst + q
        a(f'v_add_u32 v{t0}, {q * 64}, v{vL}')
        a(f'v_mul_u32_u24 v{t2}, 6554, v{t0}')
        a(f'v_lshrrev_b32 v{t2}, 16, v{t2}')
        a(f'v_mul_u32_u24 v{t3}, 10, v{t2}')
        a(f'v_sub_u32 v{t0}, v{t0}, v{t3}')
        if permute:
            a(f'v_bfe_u32 v{t3}, v{t2}, 2, 2')
            a(f'v_lshlrev_b32 v{t3}, 3, v{t3}')
            a(f'v_and_b32 v{d}, 3, v{t2}')
            a(f'v_add_u32 v{t3}, v{t3}, v{d}')
            a(f'v_lshrrev_b32 v{t2}, 4, v{t2}')
            a(f'v_lshl_add_u32 v{t2}, v{t2}, 2, v{t3}')
        a(f'v_mul_u32_u24 v{t2}, {stride}, v{t2}')
        a(f'v_lshl_add_u32 v{d}, v{t0}, 4, v{t2}')
        if 0 < q < 4:
            a(f'v_subrev_u32 v{d}, {q * 1024}, v{d}')


def dma160(a, vo, ssrd, soff, m0_s, m0_add, nt=''):
    a(f's_add_u32 m0, s{m0_s}, {m0_add}')
    for q in range(4):
        off = f' offset:{q * 1024}' if q else ''
        a(f'buffer_load_dwordx4 v{vo + q}, {S(ssrd, 4)}, s{soff} offen{off}{nt} lds')
    a(f's_add_u32 m0, s{m0_s}, {m0_add + 4096}')
    return a(f'buffer_load_dwordx4 v{vo + 4}, {S(ssrd, 4)}, s{soff} offen{nt} lds')


class Hooks:
    def __init__(self, items=()):
        self.items = list(items)

    def run(self, n=1):
        for _ in range(n):
            if self.items:
                self.items.pop(0)()

    def flush(self):
        self.run(len(self.items))


def softmax_pm(a, P, PH, EP, EN, tmp):
    p = [P[k // 4] + k % 4 for k in range(20)]
    ep = [EP[k // 4] + k % 4 for k in range(20)]
    en = [EN[k // 4] + k % 4 for k in range(20)]
    mx, mn, sp, sn = tmp, tmp + 2, tmp + 4, tmp + 6
    a(f'v_max3_f32 v{mx}, v{p[0]}, v{p[1]}, v{p[2]}')
    a(f'v_min3_f32 v{mn}, v{p[0]}, v{p[1]}, v{p[2]}')
    for k in range(3, 19, 2):
        a(f'v_max3_f32 v{mx}, v{mx}, v{p[k]}, v{p[k + 1]}')
        a(f'v_min3_f32 v{mn}, v{mn}, v{p[k]}, v{p[k + 1]}')
    a(f'v_max_f32 v{mx}, v{mx}, v{p[19]}')
    a(f'v_min_f32 v{mn}, v{mn}, v{p[19]}')
    a(f'v_mul_f32 v{mx}, s{sNL}, v{mx}')
    a(f'v_mul_f32 v{mn}, s{sL}, v{mn}')
    for k in range(0, 20, 2):
        a(f'v_pk_fma_f32 {V(ep[k], 2)}, {V(p[k], 2)}, {S(sL, 2)}, {V(mx, 2)} op_sel_hi:[1,0,0]')
        a(f'v_pk_fma_f32 {V(en[k], 2)}, {V(p[k], 2)}, {S(sNL, 2)}, {V(mn, 2)} op_sel_hi:[1,0,0]')
    for k in range(20):
        a(f'v_exp_f32 v{ep[k]}, v{ep[k]}')
        a(f'v_exp_f32 v{en[k]}, v{en[k]}')
    a(f'v_pk_add_f32 {V(sp, 2)}, {V(ep[0], 2)}, {V(ep[2], 2)}')
    a(f'v_pk_add_f32 {V(sn, 2)}, {V(en[0], 2)}, {V(en[2], 2)}')
    for k in range(4, 20, 2):
        a(f'v_pk_add_f32 {V(sp, 2)}, {V(sp, 2)}, {V(ep[k], 2)}')
        a(f'v_pk_add_f32 {V(sn, 2)}, {V(sn, 2)}, {V(en[k], 2)}')
    a(f'v_add_f32 v{sp}, v{sp}, v{sp + 1}')
    a(f'v_add_f32 v{sn}, v{sn}, v{sn + 1}')
    a(f'v_rcp_f32 v{sp}, v{sp}')
    a(f'v_rcp_f32 v{sn}, v{sn}')
    for k in range(0, 20, 2):
        a(f'v_pk_mul_f32 {V(ep[k], 2)}, {V(ep[k], 2)}, {V(sp, 2)} op_sel_hi:[1,0]')
        a(f'v_pk_mul_f32 {V(en[k], 2)}, {V(en[k], 2)}, {V(sn, 2)} op_sel_hi:[1,0]')
    allv = ep + en
    for k in range(20):
        a(f'v_cvt_pk_bf16_f32 v{PH[k // 4] + k % 4}, v{allv[2 * k]}, v{allv[2 * k + 1]}')


def flag_set(a, s_off):
    a(f'v_lshl_add_u32 v{vFS}, v{vL}, 2, s{s_off}')
    a(f'v_mov_b32 v{vFS + 1}, s{sTAG}')
    a(f's_mov_b64 exec, {hex((1 << (1 << (FSH - 2))) - 1)}')
    a(f'buffer_store_dword v{vFS + 1}, v{vFS}, {S(sWS, 4)}, 0 offen sc1')
    a('s_mov_b64 exec, -1')


def flag_issue(a, vaddr, vdst):
    return a(f'buffer_load_dword v{vdst}, v{vaddr}, {S(sWS, 4)}, 0 offen sc1')


def flag_check(a, tok, vaddr, vdst, sleep=2):
    ok = a.newlabel('ok')
    lp = a.newlabel('poll')
    a.wait(tok)
    a(f'v_cmp_ne_u32 vcc, s{sTAG}, v{vdst}')
    a(f's_cbranch_vccz {ok}')
    a(f's_mov_b32 s{sSPIN}, 0')
    a.label(lp)
    a(f's_sleep {sleep}')
    a.raw(f'\tbuffer_load_dword v{vdst}, v{vaddr}, {S(sWS, 4)}, 0 offen sc1')
    a('s_waitcnt vmcnt(0)')
    a(f'v_cmp_ne_u32 vcc, s{sTAG}, v{vdst}')
    a(f's_cbranch_vccz {ok}')
    a(f's_add_u32 s{sSPIN}, s{sSPIN}, 1')
    a(f's_cmp_lt_u32 s{sSPIN}, 0x8000')
    a(f's_cbranch_scc1 {lp}')
    a.label(ok)


def featmap(a, ACC5, PK, WPF, P5, EP5, EN5, tmp):
    for k in range(10):
        t, j = divmod(2 * k, 4)
        a(f'v_cvt_pk_bf16_f32 v{PK[k // 4] + k % 4}, v{ACC5[t] + j}, v{ACC5[t] + j + 1}')
    for ks in range(3):
        for t in range(5):
            d = V(P5[t], 4)
            if ks < 2:
                a(f'v_mfma_f32_16x16x32_bf16 {d}, {V(WPF(t, ks), 4)}, {V(PK[ks], 4)}, {"0" if ks == 0 else d}')
            else:
                a(f'v_mfma_f32_16x16x16_bf16 {d}, {V(WPF(t, ks), 2)}, {V(PK[ks], 2)}, {d}')
    softmax_pm(a, P5, P5, EP5, EN5, tmp)


def xcd_tile(a):
    a(f's_and_b32 s4, s{sID}, 7')
    a(f's_lshr_b32 s5, s{sID}, 3')
    a('s_and_b32 s6, s4, 1')
    a('s_lshl_b32 s6, s6, 2')
    a('s_and_b32 s7, s5, 3')
    a(f's_add_u32 s{sHG}, s6, s7')
    a('s_lshr_b32 s6, s4, 1')
    a('s_lshl_b32 s6, s6, 3')
    a('s_lshr_b32 s7, s5, 2')
    a(f's_add_u32 s{sRB}, s6, s7')
    a(f's_lshl_b32 s4, s{sRB}, 6')
    a(f's_lshl_b32 s5, s{sW}, 4')
    a('s_add_u32 s4, s4, s5')
    a(f'v_add_u32 v{vTOK}, s4, v{vI}')


def ln_scales(a, vS, vRS, vNB):
    a(f'v_mul_f32 v{vS}, {fbits(1.0 / 640)}, v{vS}')
    a(f'v_mul_f32 v{vS + 2}, {fbits(1.0 / 640)}, v{vS + 2}')
    a(f'v_fma_f32 v{vS + 2}, -v{vS}, v{vS}, v{vS + 2}')
    a(f'v_max_f32 v{vS + 2}, 0, v{vS + 2}')
    a(f'v_add_f32 v{vS + 1}, {fbits(1e-5)}, v{vS + 2}')
    a(f'v_rsq_f32 v{vRS}, v{vS + 1}')
    a(f'v_mul_f32 v{vNB}, v{vS}, v{vRS}')
    a(f'v_sub_f32 v{vNB}, 0, v{vNB}')


vD, vF, vT, vT2, vFL, vFD, vOF, vXA, vBA = 8, 12, 14, 18, 22, 23, 28, 32, 33
ACC = lambda t, nt: 44 + (nt * 5 + t) * 4
TF = lambda j, nt: 124 + (j % 2) * 16 + 4 * nt
POOL = [156 + 4 * k for k in range(25)]


class GGemm:
    def __init__(self, a, kind):
        self.a, self.kind = a, kind
        if kind == 'B':
            self.stride, self.srdm, self.n, self.fr_off, self.fr_steps = F_ * 2, sW1, 16, HF_OFF, 64
            self.sdb, self.scb, self.ntot, self.P = sBDB, sBCB, 16, B_P
        else:
            self.stride, self.srdm, self.n, self.fr_off, self.fr_steps = S_ * 2, sW2, 14, GF_OFF, 74
            self.sdb, self.scb, self.ntot, self.P = sHG, sRB, 19, G2_P
        self.dtok, self.ftok, self.ttok = {}, {}, {}
        self.free = list(POOL)
        self.reg = {}
        self.pending = []
        order = [(j, 'a') for j in range(self.n)]
        if kind == 'G2':
            order += [(j, k) for j in range(14, 19) for k in 'ab']
        for j, k in order:
            self.pending += [(j, k, x) for x in range(5 if k == 'a' else 4)]
        self.gate = lambda: None
        self.gate2 = lambda: None
        self.nq = 2 if kind == 'B' else 4

    def setup(self):
        a, st = self.a, self.stride
        a(f'v_lshrrev_b32 v24, 3, v{vL}')
        if self.kind == 'B':
            a('v_lshrrev_b32 v25, 2, v24')
            a('v_and_b32 v24, 3, v24')
            a('v_lshl_add_u32 v24, v25, 3, v24')
        a(f'v_mul_u32_u24 v24, {st}, v24')
        a(f'v_and_b32 v25, 7, v{vL}')
        a(f'v_lshlrev_b32 v26, 1, v{vG}')
        a('v_xor_b32 v25, v25, v26')
        a('v_lshl_add_u32 v24, v25, 4, v24')
        a(f's_lshl_b32 s4, s{self.scb}, 7')
        a(f's_mul_i32 s5, s{sW}, {self.n * 32 * st}')
        a('s_add_u32 s5, s5, s4')
        if self.kind == 'B':
            a(f's_mul_i32 s6, s{sWH}, {4 * st}')
            a('s_add_u32 s5, s5, s6')
            a(f's_lshl_b32 s6, s{sWH}, 11')
            a(f's_add_u32 s{sM0B}, s{sGM0}, s6')
        else:
            a(f's_mov_b32 s{sM0B}, s{sGM0}')
        for q in range(self.nq):
            row = 8 * q if self.kind != 'B' else q * 16
            a(f's_add_u32 s6, s5, {row * st - 1024 * q}')
            a(f'v_add_u32 v{vD + q}, s6, v24')
        a(f's_mul_i32 s4, s{self.sdb}, {self.fr_steps}')
        a(f's_mul_i32 s5, s{sW}, {self.n}')
        a('s_add_u32 s4, s4, s5')
        a('s_mul_i32 s4, s4, 5120')
        a(f's_add_u32 s{sFS}, s4, {self.fr_off}')
        if self.kind == 'B':
            a(f's_lshl_b32 s4, s{sW}, {6 + FSH}')
            a(f's_add_u32 s4, s4, {FH_OFF}')
            a(f'v_lshl_add_u32 v{vFL}, v{vL}, {FSH}, s4')
        else:
            a(f's_lshl_b32 s4, s{self.sdb}, {7 + FSH}')
            a(f's_mul_i32 s5, s{sW}, {28 << FSH}')
            a('s_add_u32 s4, s4, s5')
            a(f's_add_u32 s4, s4, {FG_OFF}')
            a(f's_mul_i32 s5, s{self.sdb}, {74 * 5120}')
            a(f's_add_u32 s{sLIM}, s5, {GF_OFF + 53 * 5120}')
            a(f's_cmp_eq_u32 s{sW}, 3')
            a('s_cselect_b32 s5, 23, 27')
            a(f'v_min_u32 v24, s5, v{vL}')
            a(f'v_lshl_add_u32 v{vFL}, v24, {FSH}, s4')

    def dma_items(self, j):
        a = self.a

        def one(q):
            def f():
                if q == 0:
                    a(f's_add_u32 m0, s{sM0B}, {(j % self.P) * 16384}')
                off = f' offset:{q * 1024}' if q else ''
                nt = ' nt' if ('ntb' in EXP and self.kind == 'B' and j < self.P) else ''
                self.dtok[j] = a(f'buffer_load_dwordx4 v{vD + q}, {S(self.srdm, 4)}, 0 offen{off}{nt} lds')
                if not ('hotw' in EXP):
                    a(f'v_add_u32 v{vD + q}, {32 * self.stride}, v{vD + q}')
            return f
        return [one(q) for q in range(self.nq)]

    def frag_items(self, lim=99):
        a = self.a
        out = []
        while self.free and self.pending and len(out) < lim:
            key = self.pending.pop(0)
            r = self.free.pop(0)
            self.reg[key] = r

            def f(key=key, r=r):
                j, kind, x = key
                if key == (self.n, 'a', 0):
                    self.gate()
                if key == (self.n, 'b', 0):
                    self.gate2()
                if kind == 'a':
                    vo, off = (vF, x * 1024) if x < 4 else (vF + 1, 0)
                    offs = f' offset:{off}' if off else ''
                    self.ftok[j] = a(f'buffer_load_dwordx4 {V(r, 4)}, v{vo}, {S(sWS, 4)}, s{sFS} offen{offs} sc1')
                    if x == 4 and 'hotf' not in EXP:
                        a(f's_add_u32 s{sFS}, s{sFS}, 5120')
                        if self.kind == 'G2' and j < 14:
                            a(f's_min_u32 s{sFS}, s{sFS}, s{sLIM}')
                else:
                    if j - self.n == 2:
                        a(f'v_lshlrev_b32 v24, 3, v{vL}')
                        a(f'v_sub_u32 v24, v{vOF + x}, v24')
                        a(f'buffer_load_dwordx2 {V(r, 2)}, v24, {S(sWS, 4)}, s11 offen sc1')
                        self.ftok[j] = a(f'buffer_load_dwordx2 {V(r + 2, 2)}, v24, {S(sWS, 4)}, s11 offen offset:512 sc1')
                    else:
                        self.ftok[j] = a(f'buffer_load_dwordx4 {V(r, 4)}, v{vOF + x}, {S(sWS, 4)}, s11 offen sc1')
                    if x == 3:
                        a('s_add_u32 s11, s11, 4096')
            out.append(f)
        return out

    def tr_items(self, j):
        a = self.a

        def one(nt):
            def f():
                off = (j % self.P) * 16384
                base = vT
                if off >= 65536:
                    if off % 65536 == 0:
                        a(f'v_add_u32 v{vT2 + nt}, {off}, v{vT + nt}')
                    off %= 65536
                    base = vT2
                a(f'ds_read_b64_tr_b16 {V(TF(j, nt), 2)}, v{base + nt} offset:{off}')
                self.ttok[j] = a(f'ds_read_b64_tr_b16 {V(TF(j, nt) + 2, 2)}, v{base + nt} offset:{off + 2048}')
            return f
        return [one(nt) for nt in range(4)]

    def mainloop(self, extra):
        a, n = self.a, self.n
        a.wait(self.dtok[0])
        Hooks(self.tr_items(0)).flush()
        for j in range(self.ntot):
            items = []
            if j + 1 < n:
                a.wait(self.dtok[j + 1])
            a.wait(self.ftok[j], self.ttok.get(j))
            if self.kind == 'B' and j + 1 < n and (j + self.P < n or j + 1 >= int(os.environ.get('BPRE', '10'))):
                a('s_barrier')
            if j % 3 == 0:
                stamp(a, f'{self.kind}_{j}')
                if STAMPS and j in (3, 9):
                    a('s_memtime s[98:99]')
                    a.wait_lg0()
                    a(f'v_writelane_b32 v{vST}, s98, {56 + (j // 9) + (2 if self.kind == "G2" else 0)}')
            if j + 1 < n:
                items += self.tr_items(j + 1)
            if j + self.P < n:
                items += self.dma_items(j + self.P)
            items += extra(j)
            items += self.frag_items(10)
            last = j == self.ntot - 1
            if self.kind == 'G2' and j == 16:
                a('s_barrier')
            if last:
                a(f's_mul_i32 s7, s{sWH}, 102400')
                for nt in range(1, 4):
                    a(f's_xor_b32 s4, s{sW}, {nt}')
                    a('s_mul_i32 s4, s4, 15360')
                    a(f's_add_u32 s4, s4, {(nt - 1) * 5120}')
                    a('s_add_u32 s4, s4, s7')
                    a(f'v_add_u32 v{24 + nt}, s4, v{vF}')
                wr = [(nt, t) for nt in (1, 2, 3) for t in range(5)]
            hk = Hooks(items)
            k = 0
            ILV = os.environ.get('ILVB', 'fine') if self.kind == 'B' else os.environ.get('ILVG', 'burst')
            for nt in (1, 2, 3, 0):
                for t in range(5):
                    acc = V(ACC(t, nt), 4)
                    c = '0' if j == 0 else acc
                    fr = V(self.reg[(j, 'a', t)], 4)
                    tf = V(TF(j, nt) if j < n else self.reg[(j, 'b', nt)], 4)
                    if self.kind == 'B':
                        a(f'v_mfma_f32_16x16x32_bf16 {acc}, {tf}, {fr}, {c}')
                    else:
                        a(f'v_mfma_f32_16x16x32_bf16 {acc}, {fr}, {tf}, {c}')
                    k += 1
                    if last and k > 5:
                        wn, wt = wr.pop(0)
                        a(f'ds_write_b128 v{24 + wn}, {V(ACC(wt, wn), 4)} offset:{wt * 1024}')
                    if ILV == 'fine':
                        if k % 4 != 0:
                            hk.run()
                    elif ILV == 'burst':
                        if k <= 4 and j + 1 < n:
                            hk.run()
                    elif ILV == 'two':
                        if k <= 4 and j + 1 < n:
                            hk.run()
                        if k == 10:
                            hk.run(4)
                    elif ILV == 'pre':
                        if k == 1:
                            hk.flush()
            hk.flush()
            self.free += [r for key, r in self.reg.items() if key[0] == j]
            if n - 2 <= j < n:
                self.free += [TF(j, nt) for nt in range(4)]

    def reduce(self):
        a = self.a
        a(f's_mul_i32 s4, s{sW}, 15360')
        a('s_add_u32 s4, s4, s7')
        a(f'v_add_u32 v24, s4, v{vF}')
        a.wait_lg0()
        a('s_barrier')
        rtok = {}
        for nt in range(1, 4):
            for t in range(5):
                rtok[(nt, t)] = a(f'ds_read_b128 {V(ACC(t, nt), 4)}, v24 offset:{(nt - 1) * 5120 + t * 1024}')
        for nt in range(1, 4):
            for t in range(5):
                a.wait(rtok[(nt, t)])
                for h in range(2):
                    d = V(ACC(t, 0) + 2 * h, 2)
                    a(f'v_pk_add_f32 {d}, {d}, {V(ACC(t, nt) + 2 * h, 2)}')


def frag10_addr(a, m, hi_add, step, base_s, vrd, vrd_base, vst):
    a(f's_add_u32 s4, s{sW}, {4 * m}')
    a('s_min_u32 s5, s4, 9')
    a('s_cmp_ge_u32 s5, 5')
    a(f's_cselect_b32 s6, {hi_add}, 0')
    a(f's_mul_i32 s5, s5, {step}')
    a('s_add_u32 s5, s5, s6')
    a(f'v_add_u32 v{vrd}, s5, v{vrd_base}')
    a('s_lshl_b32 s5, s4, 10')
    a(f's_add_u32 s5, s5, s{base_s}')
    a('s_cmp_ge_u32 s4, 10')
    a(f's_cselect_b32 s5, {OOB}, s5')
    a(f'v_lshl_add_u32 v{vst}, v{vL}, 4, s5')


NTP = ' nt' if 'ntp' in EXP else ''
FIRST = int(os.environ.get('FIRST', '25'))
vTH = 40


def g_common(a):
    a(f'v_lshlrev_b32 v{vF}, 4, v{vL}')
    a(f'v_add_u32 v{vF + 1}, 4096, v{vF}')
    a(f's_lshl_b32 s{sGM0}, s{sW}, 12')
    a(f'v_bfe_u32 v25, v{vGR}, 1, 2')
    a(f'v_xor_b32 v25, s{sW}, v25')
    a(f'v_lshlrev_b32 v26, 7, v{vGR}')
    a(f'v_lshl_add_u32 v26, v{vC}, 3, v26')
    a(f'v_add_u32 v26, s{sGM0}, v26')
    for nt in range(4):
        a(f'v_xor_b32 v27, {nt}, v25')
        a(f'v_lshl_add_u32 v{vT + nt}, v27, 5, v26')


def tag_ready(a):
    a('s_waitcnt lgkmcnt(0)')
    a(f's_add_u32 s{sTAG}, s{sTAG}, 1')


def role_a(a):
    a(f's_and_b32 s4, s{sID}, 7')
    a(f's_lshr_b32 s5, s{sID}, 3')
    a('s_and_b32 s6, s4, 1')
    a('s_lshl_b32 s6, s6, 2')
    a('s_and_b32 s7, s5, 3')
    a(f's_add_u32 s{sHG}, s6, s7')
    a('s_lshr_b32 s6, s4, 1')
    a('s_lshl_b32 s6, s6, 2')
    a('s_lshr_b32 s7, s5, 2')
    a('s_add_u32 s6, s6, s7')
    a(f's_mov_b32 s{sRB}, s6')
    a('s_lshl_b32 s6, s6, 3')
    a(f's_add_u32 s15, s6, s{sHG}')
    a('s_lshl_b32 s12, s15, 1')
    a(f's_add_u32 s12, s12, s{sWH}')
    X = 156
    a('s_lshl_b32 s4, s12, 2')
    a(f's_add_u32 s4, s4, s{sW}')
    a('s_mul_i32 s4, s4, 2560')
    a(f'v_mul_u32_u24 v24, 40, v{vL}')
    xt = []
    for k in range(5):
        xt.append(a(f'buffer_load_dwordx2 {V(X + 2 * k, 2)}, v24, {S(sX, 4)}, s4 offen offset:{8 * k}{NTP}'))
    srd(a, sWQ, P_WQKV, D_ * 3 * D_ * 2)
    vLN = 8
    a(f'v_lshlrev_b32 v{vLN}, 4, v{vL}')
    a(f'v_add_u32 v{vLN + 1}, 4096, v{vLN}')
    a(f's_mul_i32 s{sM0B}, s{sW8}, 5120')
    a('s_lshl_b32 s10, s15, 2')
    a(f's_add_u32 s10, s10, s{sW}')
    a('s_mul_i32 s4, s10, 1093')
    a('s_lshr_b32 s4, s4, 16')
    a('s_mul_i32 s5, s4, 60')
    a('s_sub_u32 s5, s10, s5')
    a('s_lshr_b32 s6, s5, 1')
    a('s_and_b32 s7, s5, 1')
    a('s_add_u32 s7, s7, 1')
    a('s_sub_u32 s8, s5, 40')
    a('s_cmp_ge_u32 s5, 40')
    a('s_cselect_b32 s6, s8, s6')
    a('s_cselect_b32 s7, 0, s7')
    a(f's_mul_i32 s6, s6, {32 * 3840}')
    a('s_mul_i32 s7, s7, 1280')
    a('s_mul_i32 s4, s4, 160')
    a('s_add_u32 s6, s6, s7')
    a('s_add_u32 s6, s6, s4')
    a(f's_cmp_eq_u32 s{sWH}, 0')
    a('s_cselect_b32 s10, 480, s10')
    dma160_voffs(a, 12, 3840, True, 18)
    a('s_cmp_ge_u32 s10, 480')
    a(f's_cselect_b32 s7, {OOB}, 0')
    for q in range(5):
        a(f'v_add_u32 v{12 + q}, s7, v{12 + q}')
    utok = dma160(a, 12, sWQ, 6, sM0B, 0, NTP)
    a(f's_mul_i32 s13, s{sWH}, 24576')
    a('s_add_u32 s13, s13, 65536')
    a('s_add_u32 s14, s13, 12288')
    srd(a, sAUX, P_WPHI, 32 * 800)
    a(f's_mul_i32 s6, s{sHG}, 3200')
    a(f's_lshl_b32 s7, s{sW}, 10')
    a('s_add_u32 s6, s6, s7')
    a(f'v_lshl_add_u32 v10, v{vL}, 4, s6')
    a(f's_add_u32 m0, s7, {L_WPHI}')
    a(f'buffer_load_dwordx4 v10, {S(sAUX, 4)}, 0 offen lds')
    for k in range(4):
        a(f'v_mov_b32 v{44 + k}, 0')
    a(f'v_lshlrev_b32 v18, 4, v{vTH}')
    a(f'v_add_u32 v18, {L_ZERO}, v18')
    a('ds_write_b128 v18, v[44:47]')
    a(f'v_mov_b32 v10, {L_CNT}')
    a('v_mov_b32 v11, 0')
    a('ds_write2_b32 v10, v11, v11 offset0:0 offset1:1')
    vONE, vS, vRS, vNB = 34, 36, 168, 170
    a(f'v_mov_b32 v{vONE}, 0x3f803f80')
    for k in range(4):
        a(f'v_mov_b32 v{vS + k}, 0')
    a('s_waitcnt lgkmcnt(0)')
    a(f's_add_u32 s{sTAG}, s{sTAG}, 1')
    a.wait(xt[4])
    stamp(a, 'x')
    for k in range(10):
        a(f'v_dot2c_f32_bf16 v{vS + (k & 1)}, v{X + k}, v{vONE}')
        a(f'v_dot2c_f32_bf16 v{vS + 2 + (k & 1)}, v{X + k}, v{X + k}')
    a(f'v_add_f32 v{vS}, v{vS}, v{vS + 1}')
    a(f'v_add_f32 v{vS + 2}, v{vS + 2}, v{vS + 3}')
    for sh in (8, 4, 2, 1):
        for r in (vS, vS + 2):
            a(f'v_add_f32_dpp v{r}, v{r}, v{r} row_ror:{sh} row_mask:0xf bank_mask:0xf')
    for r in (vS, vS + 2):
        a(f'v_mov_b32 v{r + 1}, v{r}')
        a(f'v_permlane16_swap_b32 v{r}, v{r + 1}')
        a(f'v_add_f32 v{r}, v{r}, v{r + 1}')
    ln_scales(a, vS, vRS, vNB)
    a(f'v_mul_f32 v{vS + 1}, v{vRS}, v{vRS}')
    a(f'v_mov_b32 v{vS + 3}, {fbits(1e-5)}')
    a(f'v_fmac_f32 v{vS + 3}, v{vS + 1}, v{vS + 2}')
    a(f'v_rsq_f32 v{vS + 2}, v{vS + 3}')
    U = 172
    for k in range(10):
        a(f'v_lshlrev_b32 v{U + 2 * k}, 16, v{X + k}')
        a(f'v_and_b32 v{U + 2 * k + 1}, 0xffff0000, v{X + k}')
    for k in range(10):
        a(f'v_pk_fma_f32 {V(U + 2 * k, 2)}, {V(U + 2 * k, 2)}, {V(vRS, 2)}, {V(vNB, 2)} op_sel_hi:[1,0,0]')
    XQ = 192
    for k in range(10):
        a(f'v_cvt_pk_bf16_f32 v{XQ + k}, v{U + 2 * k}, v{U + 2 * k + 1}')
    for k in range(10):
        a(f'v_pk_mul_f32 {V(U + 2 * k, 2)}, {V(U + 2 * k, 2)}, {V(vS + 2, 2)} op_sel_hi:[1,0]')
    for k in range(10):
        a(f'v_cvt_pk_bf16_f32 v{X + k}, v{U + 2 * k}, v{U + 2 * k + 1}')
    a(f's_mul_i32 s4, s{sW}, {2 * 1296}')
    a('s_add_u32 s4, s4, s13')
    a(f'v_mul_u32_u24 v24, 40, v{vL}')
    a(f'v_lshrrev_b32 v25, 5, v{vL}')
    a('v_lshl_add_u32 v24, v25, 4, v24')
    a('v_add_u32 v24, s4, v24')
    for k in range(5):
        a(f'ds_write_b64 v24, {V(XQ + 2 * k, 2)} offset:{8 * k}')
    a(f'v_and_b32 v25, 7, v{vTH}')
    a(f'v_lshrrev_b32 v26, 3, v{vTH}')
    a('v_mul_u32_u24 v28, 1296, v25')
    a('v_lshl_add_u32 v28, v26, 4, v28')
    a('v_add_u32 v28, s13, v28')
    a('v_lshlrev_b32 v29, 8, v26')
    a('v_lshl_add_u32 v29, v25, 4, v29')
    a(f's_lshr_b32 s4, s12, 1')
    a('s_mul_i32 s4, s4, 20480')
    a(f's_and_b32 s5, s12, 1')
    a('s_lshl_b32 s5, s5, 7')
    a('s_add_u32 s4, s4, s5')
    a(f's_add_u32 s4, s4, {XF_OFF}')
    a('v_add_u32 v29, s4, v29')
    a('v_add_u32 v30, 8192, v29')
    a(f's_cmp_ge_u32 s{sW}, 2')
    a(f's_cselect_b32 s4, {OOB}, 16384')
    a('v_add_u32 v31, s4, v29')
    a(f's_mul_i32 s4, s{sW}, 2560')
    a('s_add_u32 s4, s4, s14')
    a(f'v_mul_u32_u24 v24, 40, v{vL}')
    a('v_add_u32 v24, s4, v24')
    for k in range(5):
        a(f'ds_write_b64 v24, {V(X + 2 * k, 2)} offset:{8 * k}')
    a(f'v_mul_u32_u24 v24, 1280, v{vR}')
    a(f'v_mul_u32_u24 v25, 160, v{vG}')
    a('v_add_u32 v24, v24, v25')
    a(f'v_mul_u32_u24 v25, 40, v{vC}')
    a('v_add_u32 v24, v24, v25')
    a('v_add_u32 v24, s14, v24')
    a(f'v_mul_u32_u24 v25, {64 * 5120}, v{vG}')
    a(f'v_lshl_add_u32 v25, v{vI}, 4, v25')
    a(f's_lshr_b32 s4, s12, 2')
    a('s_mul_i32 s4, s4, 5120')
    a(f's_and_b32 s5, s12, 3')
    a('s_lshl_b32 s5, s5, 8')
    a('s_add_u32 s4, s4, s5')
    a(f's_add_u32 s8, s4, {HF_OFF}')
    a.wait_lg0()
    a('s_barrier')
    ht = []
    for m in range(3):
        ht.append(a(f'ds_read_b128 {V(XQ + 4 * m, 4)}, v28 offset:{512 * m}'))
    for m in range(3):
        a.wait(ht[m])
        a(f'buffer_store_dwordx4 {V(XQ + 4 * m, 4)}, v{29 + m}, {S(sWS, 4)}, 0 offen sc1')
    ht = []
    for m in range(3):
        a(f's_add_u32 s4, s{sW}, {4 * m}')
        a('s_min_u32 s5, s4, 9')
        a('s_cmp_ge_u32 s5, 5')
        a(f's_cselect_b32 s6, {640 - 40}, 0')
        a(f's_cselect_b32 s7, {4 * 64 * 5120 - 5120}, 0')
        a('s_lshl_b32 s5, s5, 3')
        a('s_add_u32 s5, s5, s6')
        a('v_add_u32 v26, s5, v24')
        a(f'ds_read_b64_tr_b16 {V(U + 4 * m, 2)}, v26')
        ht.append(a(f'ds_read_b64_tr_b16 {V(U + 4 * m + 2, 2)}, v26 offset:{4 * 1280}'))
        a('s_lshl_b32 s5, s4, 10')
        a('s_add_u32 s5, s5, s7')
        a('s_add_u32 s5, s5, s8')
        a('s_cmp_ge_u32 s4, 10')
        a(f's_cselect_b32 s5, {OOB}, s5')
        a(f'v_add_u32 v{34 + m}, s5, v25')
    for m in range(3):
        a.wait(ht[m])
        a(f'buffer_store_dwordx4 {V(U + 4 * m, 4)}, v{34 + m}, {S(sWS, 4)}, 0 offen sc1')
    hst = ('vm', a.vm_issued - 1)
    a(f'v_mul_u32_u24 v29, 160, v{vGR}')
    a(f'v_mul_u32_u24 v24, 40, v{vC}')
    a('v_add_u32 v29, v29, v24')
    a(f'v_add_u32 v29, s{sM0B}, v29')
    a('s_mul_i32 s4, s10, 5120')
    a(f's_add_u32 s4, s4, {WF_OFF}')
    a('s_cmp_ge_u32 s10, 480')
    a(f's_cselect_b32 s4, {OOB}, s4')
    a(f'v_add_u32 v24, s4, v{vLN}')
    a(f'v_add_u32 v25, s4, v{vLN + 1}')
    a(f's_lshl_b32 s5, s10, {FSH}')
    a(f's_add_u32 s5, s5, {FU_OFF}')
    a('s_cmp_ge_u32 s10, 480')
    a(f's_cselect_b32 s10, {OOB}, s5')
    a.wait(utok)
    ut = []
    for t in range(5):
        a(f'ds_read_b64_tr_b16 {V(UP(t), 2)}, v29 offset:{8 * t}')
        ut.append(a(f'ds_read_b64_tr_b16 {V(UP(t) + 2, 2)}, v29 offset:{8 * t + 2560}'))
    for t in range(5):
        a.wait(ut[t])
        vo, off = (24, t * 1024) if t < 4 else (25, 0)
        a(f'buffer_store_dwordx4 {V(UP(t), 4)}, v{vo}, {S(sWS, 4)}, 0 offen offset:{off} sc1')
    a(f's_lshl_b32 s4, s{sWH}, 2')
    a(f's_add_u32 s4, s4, {L_CNT}')
    a('v_mov_b32 v10, s4')
    a('v_mov_b32 v11, 1')
    a.wait(hst)
    a('s_mov_b64 exec, 1')
    a('ds_add_rtn_u32 v11, v10, v11')
    a('s_mov_b64 exec, -1')
    a.wait_lg0()
    a('v_readfirstlane_b32 s5, v11')
    a(f's_lshl_b32 s4, s12, {FSH}')
    a(f's_add_u32 s4, s4, {FH_OFF}')
    a('s_cmp_lg_u32 s5, 3')
    a('s_cbranch_scc1 L_nofh')
    flag_set(a, 4)
    a.label('L_nofh')
    a.wait_vm0()
    flag_set(a, 10)
    stamp(a, 'prep')
    a(f's_mov_b32 s{sL}, {fbits(LOG2E)}')
    a(f's_mov_b32 s{sL + 1}, {fbits(LOG2E)}')
    a(f's_mov_b32 s{sNL}, {fbits(-LOG2E)}')
    a(f's_mov_b32 s{sNL + 1}, {fbits(-LOG2E)}')
    a(f's_mul_i32 s10, s{sHG}, 60')
    a(f's_lshl_b32 s4, s10, {FSH}')
    a(f's_add_u32 s4, s4, {FU_OFF}')
    a(f'v_lshl_add_u32 v20, v{vL}, {FSH}, s4')
    a(f's_lshl_b32 s11, s{sRB}, 2')
    a(f's_add_u32 s11, s11, s{sW}')
    a(f's_lshl_b32 s4, s11, {FSH + 2}')
    a(f's_add_u32 s4, s4, {FH_OFF}')
    a(f'v_lshl_add_u32 v21, v{vC}, {FSH}, s4')
    a(f'v_cmp_gt_u32 vcc, 60, v{vL}')
    a('v_cndmask_b32 v20, v21, v20, vcc')
    a(f's_add_u32 s10, s10, s{sW}')
    a('s_mul_i32 s10, s10, 5120')
    a(f's_add_u32 s10, s10, {WF_OFF}')
    a(f's_add_u32 s9, s10, {40 * 5120}')
    a(f's_mul_i32 s{sM0B}, s{sW}, 5120')
    a('s_mul_i32 s11, s11, 40960')
    a(f's_add_u32 s11, s11, {XF_OFF}')
    a(f'v_add_u32 v10, 20480, v{vLN}')
    a(f'v_add_u32 v26, {L_RING}, v{vLN}')
    a(f'v_add_u32 v27, 61440, v{vLN}')

    def wphi_frags(WPF, wbase, zbase):
        a(f'v_mul_u32_u24 v22, 800, v{vG}')
        a(f'v_mul_u32_u24 v23, 40, v{vR}')
        a('v_add_u32 v22, v22, v23')
        a(f'v_add_u32 v22, {wbase}, v22')
        a(f'v_mov_b32 v23, {zbase}')
        a(f'v_cmp_eq_u32 vcc, v{vG}, v{vC}')
        a('v_cndmask_b32 v22, v23, v22, vcc')
        for t in range(5):
            for d4 in range(5):
                a(f'ds_read_b64_tr_b16 {V(WPF(t, d4 // 2) + 2 * (d4 % 2), 2)}, v22 offset:{4 * d4 * 40 + 8 * t}')

    Q = lambda k: 48 + 4 * k
    WPF = lambda t, ks: Q(2 * t + ks) if ks < 2 else Q(10 + t // 2) + 2 * (t % 2)
    a('s_barrier')
    wphi_frags(WPF, L_WPHI, L_ZERO)
    a.wait_lg0()
    a('s_barrier')
    flag_check(a, flag_issue(a, 20, 21), 20, 21)
    stamp(a, 'go')

    def xload(dst, ks, z):
        off = f' offset:{(ks % 4) * 1024}' if ks % 4 else ''
        t = a(f'buffer_load_dwordx4 {V(dst, 4)}, v{vLN if z == 0 else 10}, {S(sWS, 4)}, s11 offen{off} sc1')
        if ks % 4 == 3 and z == 1:
            a('s_add_u32 s11, s11, 4096')
        return t

    a(f's_cmp_lg_u32 s{sWH}, 0')
    a('s_cbranch_scc1 L_a_upper')
    at_split = a.save()
    a('s_setprio 2')
    AC = lambda k, z: Q(13 + 2 * k + z)
    XR = lambda ks, z: Q(33 + (ks % 6) * 2 + z)
    FW = lambda n: Q(45 + n % 7)
    xtok = {}
    for ks in range(5):
        for z in range(2):
            xtok[ks] = xload(XR(ks, z), ks, z)
    a('s_barrier')
    stamp(a, 'a0')
    WIN, NF = 6, 200
    ftok = {}

    def read_frag(n):
        d, r = divmod(n, 20)
        ftok[n] = a(f'ds_read_b128 {V(FW(n), 4)}, v26 offset:{(d % 3) * 20480 + r * 1024}')

    for n in range(WIN):
        read_frag(n)
    for n in range(NF):
        nn = n + WIN
        if nn < NF:
            if nn % 20 == 0:
                a.wait_lg0()
                a('s_barrier')
                if (nn // 20) % 3 == 0:
                    stamp(a, f'a{nn // 20}')
            read_frag(nn)
        ks, k = divmod(n, 10)
        a.wait(ftok[n], xtok[ks])
        for z in range(2):
            c = '0' if ks == 0 else V(AC(k, z), 4)
            a(f'v_mfma_f32_16x16x32_bf16 {V(AC(k, z), 4)}, {V(FW(n), 4)}, {V(XR(ks, z), 4)}, {c}')
        if k in (2, 6) and ks + 5 < 20:
            xtok[ks + 5] = xload(XR(ks + 5, k // 4), ks + 5, k // 4)
    a('s_barrier')
    stamp(a, 'aend')
    vSA, vKA, vKO = 8, 9, 12
    a(f's_lshl_b32 s4, s{sW}, 5')
    a(f'v_lshl_add_u32 v{vSA}, v{vG}, 7, v{vI}')
    a(f'v_add_u32 v{vSA}, s4, v{vSA}')
    a(f'v_mul_u32_u24 v{vSA}, 120, v{vSA}')
    a(f'v_add_u32 v{vSA}, {L_RING}, v{vSA}')
    for z in range(2):
        for t in range(5):
            r = AC(5 + t, z)
            a(f'v_cvt_pk_bf16_f32 v{r}, v{r}, v{r + 1}')
            a(f'v_cvt_pk_bf16_f32 v{r + 1}, v{r + 2}, v{r + 3}')
            a(f'ds_write_b64 v{vSA}, {V(r, 2)} offset:{z * 16 * 120 + 80 + 8 * t}')
    PK = [Q(33), Q(34), Q(35)]
    EN5 = [Q(36 + c) for c in range(5)]
    for z in range(2):
        E5 = [AC(t, z) for t in range(5)]
        P5 = [Q(41 + 5 * z + c) for c in range(5)]
        featmap(a, E5, PK, WPF, P5, E5, EN5, 32)
        for c in range(10):
            a(f'ds_write_b64 v{vSA}, {V(P5[c // 2] + 2 * (c % 2), 2)} offset:{z * 16 * 120 + 8 * c}')
    stamp(a, 'fm')
    a(f's_mul_i32 s4, s{sW}, {128 * 120}')
    a(f's_add_u32 s4, s4, {L_RING}')
    a(f'v_mul_u32_u24 v{vKA}, 120, v{vGR}')
    a(f'v_lshl_add_u32 v{vKA}, v{vC}, 3, v{vKA}')
    a(f'v_add_u32 v{vKA}, s4, v{vKA}')
    a(f's_lshl_b32 s4, s{sHG}, 2')
    a(f's_add_u32 s4, s4, s{sW}')
    a('s_lshl_b32 s4, s4, 4')
    a(f's_add_u32 s13, s4, s{sRB}')
    a('s_mul_i32 s4, s13, 6144')
    a(f's_add_u32 s4, s4, {KV_OFF}')
    a(f'v_lshl_add_u32 v{vKO}, v{vL}, 4, s4')
    a('s_movk_i32 s12, 0x1000')
    a(f'v_mov_b32 v11, {OOB}')
    a(f'v_cmp_gt_u32 vcc, 8, v{vI}')
    a(f'v_cndmask_b32 v{vKO + 1}, v11, v{vKO}, vcc')
    a(f'v_cmp_gt_u32 vcc, 2, v{vG}')
    a(f'v_cndmask_b32 v{vKO + 2}, v11, v{vKO}, vcc')
    a(f'v_cndmask_b32 v{vKO + 3}, v11, v{vKO + 1}, vcc')
    a(f's_lshl_b32 s13, s13, {FSH}')
    a(f's_add_u32 s10, s13, {FK_OFF}')
    a('v_mov_b32 v11, 0x3f803f80')
    a(f'v_cmp_eq_u32 vcc, 1, v{vR}')
    a.wait_lg0()
    a('s_barrier')
    ktok = {}
    OPQ = lambda kk, x: Q(13 + kk * 5 + x)
    KVA = [Q(k) for k in range(6)]

    def kv_read(kk):
        for x in range(5):
            col = 32 * x if x < 3 else 80 + 32 * (x - 3)
            a(f'ds_read_b64_tr_b16 {V(OPQ(kk, x), 2)}, v{vKA} offset:{kk * 32 * 120 + col}')
            ktok[kk] = a(f'ds_read_b64_tr_b16 {V(OPQ(kk, x) + 2, 2)}, v{vKA} offset:{kk * 32 * 120 + 16 * 120 + col}')

    kv_read(0)
    for kk in range(4):
        if kk + 1 < 4:
            kv_read(kk + 1)
        a.wait(ktok[kk])
        for j in range(4):
            a(f'v_cndmask_b32 v{OPQ(kk, 4) + j}, v{OPQ(kk, 4) + j}, v11, vcc')
        for et in range(2):
            for ft in range(3):
                d = V(KVA[ft * 2 + et], 4)
                a(f'v_mfma_f32_16x16x32_bf16 {d}, {V(OPQ(kk, 3 + et), 4)}, {V(OPQ(kk, ft), 4)}, {"0" if kk == 0 else d}')
    for ft in range(3):
        for et in range(2):
            vo = vKO + (1 if ft == 2 else 0) + (2 if et == 1 else 0)
            so = 's12' if ft == 2 else '0'
            a(f'buffer_store_dwordx4 {V(KVA[ft * 2 + et], 4)}, v{vo}, {S(sWS, 4)}, {so} offen offset:{(ft % 2) * 2048 + et * 1024} sc1')
    a.wait_vm0()
    flag_set(a, 10)
    a(f's_mov_b32 s10, {OOB}')
    a('s_barrier')
    a('s_branch L_join')

    a.label('L_a_upper')
    a.restore(at_split)
    wtok = {}

    def dma5(so, lds):
        a(f's_add_u32 m0, s{sM0B}, {lds}')
        for q in range(4):
            off = f' offset:{q * 1024}' if q else ''
            a(f'buffer_load_dwordx4 v{vLN}, {S(sWS, 4)}, s{so} offen{off} sc1 lds')
        a(f's_add_u32 m0, s{sM0B}, {lds + 4096}')
        t = a(f'buffer_load_dwordx4 v{vLN + 1}, {S(sWS, 4)}, s{so} offen sc1 lds')
        a(f's_add_u32 s{so}, s{so}, 20480')
        return t

    NXR = 12
    XQ_ = lambda ks, z: Q(13 + (ks % NXR) * 2 + z)
    AQ = lambda t, z: Q(37 + 2 * t + z)
    FQ = lambda n: Q(47 + n % 5)
    xtok = {}
    for d in range(3):
        wtok[d] = dma5(10, L_RING + d * 20480)
    for d in range(10):
        a.wait(wtok[d])
        a('s_barrier')
        if 1 <= d and d + 2 < 10:
            wtok[d + 2] = dma5(10, L_RING + ((d + 2) % 3) * 20480)
        if d < 5:
            qtok = dma5(9, L_WQ + d * 20480)
        if 4 <= d < 10:
            for ks in (2 * (d - 4), 2 * (d - 4) + 1):
                for z in range(2):
                    xtok[ks] = xload(XQ_(ks, z), ks, z)
    a.wait(qtok)
    a('s_barrier')
    ftok = {}

    def read_q(n):
        off = n * 1024
        ftok[n] = a(f'ds_read_b128 {V(FQ(n), 4)}, v{vLN if off < 61440 else 27} offset:{off % 61440}')

    QBAR = int(os.environ.get('QBAR', '-1'))
    if QBAR < 0:
        a('s_barrier')
    for n in range(4):
        read_q(n)
    for n in range(100):
        if n + 4 < 100:
            read_q(n + 4)
        ks, t = divmod(n, 5)
        a.wait(ftok[n], xtok[ks])
        for z in range(2):
            c = '0' if ks == 0 else V(AQ(t, z), 4)
            a(f'v_mfma_f32_16x16x32_bf16 {V(AQ(t, z), 4)}, {V(FQ(n), 4)}, {V(XQ_(ks, z), 4)}, {c}')
        if t in (1, 3) and ks >= 1 and ks - 1 + NXR < 20:
            xtok[ks - 1 + NXR] = xload(XQ_(ks - 1 + NXR, t // 2), ks - 1 + NXR, t // 2)
        if n == QBAR:
            a('s_barrier')
    a('s_barrier')
    stamp(a, 'aend')
    PK = [Q(13), Q(14), Q(15)]
    EN5 = [Q(16 + c) for c in range(5)]
    PP = [[Q(21 + 5 * z + c) for c in range(5)] for z in range(2)]
    for z in range(2):
        E5 = [AQ(t, z) for t in range(5)]
        featmap(a, E5, PK, WPF, PP[z], E5, EN5, 32)
    stamp(a, 'fm')
    a('s_setprio 3')
    a(f's_mul_i32 s6, s{sW}, 10240')
    a(f's_add_u32 s6, s6, {L_RING}')
    a(f'v_lshlrev_b32 v31, 11, v{vG}')
    a(f'v_lshl_add_u32 v31, v{vR}, 3, v31')
    a('v_mov_b32 v21, 8192')
    a(f'v_cmp_eq_u32 vcc, v{vG}, v{vC}')
    a('v_cndmask_b32 v31, v21, v31, vcc')
    a('v_add_u32 v31, s6, v31')
    for k in range(4):
        a(f'v_mov_b32 v{44 + k}, 0')
    a(f'v_add_u32 v21, s6, v{vLN}')
    a('ds_write_b128 v21, v[44:47] offset:8192')
    a('ds_write_b128 v21, v[44:47] offset:9216')
    a(f's_lshl_b32 s4, s{sHG}, {4 + FSH}')
    a(f's_add_u32 s4, s4, {FR_OFF}')
    a(f'v_lshl_add_u32 v20, v{vI}, {FSH}, s4')
    a(f'v_lshlrev_b32 v8, 4, v{vL}')
    a('v_add_u32 v9, 4096, v8')
    a(f'v_lshlrev_b32 v10, 3, v{vL}')
    a(f's_lshl_b32 s5, s{sHG}, 13')
    a(f's_add_u32 s5, s5, {KB_OFF}')
    a(f's_lshl_b32 s7, s{sRB}, 1')
    a(f's_lshr_b32 s8, s{sW}, 1')
    a('s_add_u32 s7, s7, s8')
    a(f's_and_b32 s8, s{sW}, 1')
    a('s_lshl_b32 s8, s8, 1')
    a(f's_lshr_b32 s12, s{sHG}, 1')
    a('s_mul_i32 s12, s12, 5')
    a('s_mul_i32 s13, s7, 20')
    a('s_add_u32 s12, s12, s13')
    a('s_lshl_b32 s12, s12, 2')
    a('s_add_u32 s12, s12, s8')
    a('s_lshl_b32 s12, s12, 10')
    a(f's_add_u32 s12, s12, {OF_OFF}')
    a(f's_and_b32 s13, s{sHG}, 1')
    a(f's_mul_i32 s14, s13, {3 * 4096}')
    a('s_add_u32 s14, s14, s12')
    a('s_lshl_b32 s13, s13, 9')
    a('s_add_u32 s12, s12, s13')
    a(f's_add_u32 s12, s12, {2 * 4096}')
    a('s_lshl_b32 s13, s7, 3')
    a(f's_add_u32 s13, s13, s{sHG}')
    a('s_lshl_b32 s13, s13, 2')
    a('s_add_u32 s13, s13, s8')
    a(f's_lshl_b32 s13, s13, {FSH}')
    a(f's_add_u32 s13, s13, {FO_OFF}')
    flag_check(a, flag_issue(a, 20, 21), 20, 21, int(os.environ.get('RSLEEP', '8')))
    stamp(a, 'rok')
    for hh in range(2):
        a(f's_add_u32 m0, s6, {4096 * hh}')
        for q in range(4):
            off = f' offset:{q * 1024}' if q else ''
            a(f'buffer_load_dwordx4 v{8 + hh}, {S(sWS, 4)}, s5 offen{off} sc1 lds')
    a.wait_all()
    OA = [[Q(31 + k) for k in range(6)], [Q(37 + k) for k in range(6)]]
    KF = lambda ks, t: Q((ks % 2) * 6 + t)
    otok = {}

    def o_read(ks):
        for t in range(6):
            a(f'ds_read_b64_tr_b16 {V(KF(ks, t), 2)}, v31 offset:{kb_pos(8 * ks, t)}')
            otok[ks] = a(f'ds_read_b64_tr_b16 {V(KF(ks, t) + 2, 2)}, v31 offset:{kb_pos(8 * ks + 4, t)}')

    o_read(0)
    for ks in range(5):
        if ks + 1 < 5:
            o_read(ks + 1)
        a.wait(otok[ks])
        for z in range(2):
            for t in range(6):
                d = V(OA[z][t], 4)
                a(f'v_mfma_f32_16x16x32_bf16 {d}, {V(KF(ks, t), 4)}, {V(PP[z][ks], 4)}, {"0" if ks == 0 else d}')
    for z in range(2):
        O = OA[z]
        PO = PK if z == 0 else [Q(16), Q(17), Q(18)]
        a(f'v_add_f32 v{O[5]}, {fbits(1e-6)}, v{O[5]}')
        a(f'v_rcp_f32 v{O[5]}, v{O[5]}')
        for t in range(5):
            for h in range(2):
                a(f'v_pk_mul_f32 {V(O[t] + 2 * h, 2)}, {V(O[t] + 2 * h, 2)}, {V(O[5], 2)} op_sel_hi:[1,0]')
        for k in range(10):
            t, j = divmod(2 * k, 4)
            a(f'v_cvt_pk_bf16_f32 v{PO[k // 4] + k % 4}, v{O[t] + j}, v{O[t] + j + 1}')
        off = f' offset:{1024 * z}' if z else ''
        a(f'buffer_store_dwordx4 {V(PO[0], 4)}, v8, {S(sWS, 4)}, s14 offen{off} sc1')
        a(f'buffer_store_dwordx4 {V(PO[1], 4)}, v9, {S(sWS, 4)}, s14 offen{off} sc1')
        a(f'buffer_store_dwordx2 {V(PO[2], 2)}, v10, {S(sWS, 4)}, s12 offen{off} sc1')
    a.wait_vm0()
    flag_set(a, 13)
    a(f's_cmp_lg_u32 s{sID}, 0')
    a('s_cbranch_scc1 L_a_done')
    a(f's_cmp_lg_u32 s{sW}, 3')
    a('s_cbranch_scc1 L_a_done')
    a(f'v_and_b32 v20, 31, v{vL}')
    a('v_min_u32 v20, 26, v20')
    a(f'v_and_b32 v21, 32, v{vL}')
    a('v_add_u32 v20, v20, v21')
    a(f'v_lshlrev_b32 v20, {FSH + 2}, v20')
    for k in range(4):
        a(f'v_add_u32 v22, {FG_OFF + (k * 256 << FSH)}, v20')
        flag_check(a, flag_issue(a, 22, 21), 22, 21, 12)
    a(f'v_lshlrev_b32 v20, {FSH}, v{vL}')
    for base in (FR_OFF, FR_OFF + (64 << FSH)):
        a(f'v_add_u32 v22, {base}, v20')
        flag_check(a, flag_issue(a, 22, 21), 22, 21, 12)
    a(f'v_and_b32 v20, 31, v{vL}')
    a(f'v_lshlrev_b32 v20, {FSH}, v20')
    a(f'v_add_u32 v22, {FW_OFF}, v20')
    flag_check(a, flag_issue(a, 22, 21), 22, 21, 12)
    a(f's_mov_b32 s10, {EP_OFF}')
    flag_set(a, 10)
    a.label('L_a_done')
    stamp_flush(a, 'end')
    a('s_endpgm')


def role_b(a):
    if 'map4' in EXP:
        a(f's_lshr_b32 s{sBCB}, s6, 2')
        a('s_and_b32 s9, s6, 3')
        a('s_lshl_b32 s6, s9, 1')
    else:
        a('s_cmp_ge_u32 s6, 54')
        a('s_cselect_b32 s7, 54, 0')
        a('s_cselect_b32 s8, 4, 0')
        a('s_sub_u32 s6, s6, s7')
        a(f's_lshr_b32 s{sBCB}, s6, 1')
        a('s_and_b32 s9, s6, 1')
        a('s_lshl_b32 s6, s9, 1')
        a('s_add_u32 s6, s6, s8')
    PR = 24 if 'map4' in EXP else 48
    a(f's_add_u32 s{sBDB}, s6, s{sWH}')
    srd(a, sW1, P_W1, S_ * F_ * 2)
    g_common(a)
    gB = GGemm(a, 'B')
    gB.setup()
    BPRE = int(os.environ.get('BPRE', '10'))
    for j in range(BPRE):
        Hooks(gB.dma_items(j)).flush()

    def b_extra(j):
        return []

    a('s_lshl_b32 s4, s9, 1')
    a(f's_add_u32 s4, s4, s{sWH}')
    a(f's_mul_i32 s4, s4, {PR}')
    a(f's_lshl_b32 s5, s{sW}, 9')
    a('s_add_u32 s4, s4, s5')
    a(f's_add_u32 s4, s4, {32 * B_P}')
    a(f's_mul_i32 s4, s4, {F_ * 2}')
    a(f's_lshl_b32 s5, s{sBCB}, 7')
    a('s_add_u32 s4, s4, s5')
    a(f'v_min_u32 v24, {PR - 1}, v{vL}')
    a(f'v_mul_u32_u24 v24, {F_ * 2}, v24')
    a('v_add_u32 v24, s4, v24')
    a(f'buffer_load_dword v37, v24, {S(sW1, 4)}, 0 offen')
    srd(a, sAUX, P_B1, F_ * 2)
    a(f's_lshl_b32 s4, s{sBCB}, 7')
    a(f's_lshl_b32 s5, s{sW}, 5')
    a('s_add_u32 s4, s4, s5')
    a(f'v_lshl_add_u32 v24, v{vG}, 3, s4')
    a(f'buffer_load_dwordx2 v[38:39], v24, {S(sAUX, 4)}, 0 offen')
    tag_ready(a)
    a('s_barrier')
    stamp(a, 'prep')
    a(f's_cmp_lg_u32 s{sWH}, 0')
    a('s_cbranch_scc1 L_b_go')
    flag_check(a, flag_issue(a, vFL, vFD), vFL, vFD, 3)
    a.label('L_b_go')
    a.wait_vm0()
    a('s_barrier')
    stamp(a, 'go')
    Hooks(gB.frag_items(FIRST)).flush()
    for j in range(BPRE, B_P):
        Hooks(gB.dma_items(j)).flush()

    gB.mainloop(b_extra)
    stamp(a, 'Bend')
    gB.reduce()
    R = lambda t, j: ACC(t, 0) + j
    T = lambda t, j: ACC(t, 1) + j
    a('v_lshlrev_b32 v34, 16, v38')
    a('v_and_b32 v35, 0xffff0000, v38')
    a('v_lshlrev_b32 v36, 16, v39')
    a('v_and_b32 v37, 0xffff0000, v39')
    c0 = 0.7978845608028654
    k1 = -2.0 * c0 * LOG2E
    k2 = k1 * 0.044715
    a(f's_mov_b32 s4, {fbits(k2)}')
    a(f's_mov_b32 s5, {fbits(k2)}')
    a(f'v_mov_b32 v24, {fbits(k1)}')
    a('v_mov_b32 v26, 1.0')
    th = [(t, h) for t in range(5) for h in range(2)]
    tj = [(t, j) for t in range(5) for j in range(4)]
    for t, h in th:
        a(f'v_pk_add_f32 {V(R(t, 2 * h), 2)}, {V(R(t, 2 * h), 2)}, {V(34 + 2 * h, 2)}')
    for t, h in th:
        a(f'v_pk_mul_f32 {V(T(t, 2 * h), 2)}, {V(R(t, 2 * h), 2)}, {V(R(t, 2 * h), 2)}')
    for t, h in th:
        a(f'v_pk_fma_f32 {V(T(t, 2 * h), 2)}, {V(T(t, 2 * h), 2)}, s[4:5], v[24:25] op_sel_hi:[1,0,0]')
    for t, h in th:
        a(f'v_pk_mul_f32 {V(T(t, 2 * h), 2)}, {V(T(t, 2 * h), 2)}, {V(R(t, 2 * h), 2)}')
    for t, j in tj:
        a(f'v_exp_f32 v{T(t, j)}, v{T(t, j)}')
    for t, h in th:
        a(f'v_pk_add_f32 {V(T(t, 2 * h), 2)}, {V(T(t, 2 * h), 2)}, v[26:27] op_sel_hi:[1,0]')
    for t, j in tj:
        a(f'v_rcp_f32 v{T(t, j)}, v{T(t, j)}')
    for t, h in th:
        a(f'v_pk_mul_f32 {V(T(t, 2 * h), 2)}, {V(T(t, 2 * h), 2)}, {V(R(t, 2 * h), 2)}')
    a(f's_mul_i32 s4, s{sW8}, 2560')
    a('s_add_u32 s4, s4, 81920')
    a(f'v_lshl_add_u32 v24, v{vL}, 3, s4')
    for t in range(5):
        a(f'v_cvt_pk_bf16_f32 v{R(t, 0)}, v{T(t, 0)}, v{T(t, 1)}')
        a(f'v_cvt_pk_bf16_f32 v{R(t, 1)}, v{T(t, 2)}, v{T(t, 3)}')
        a(f'ds_write_b64 v24, {V(R(t, 0), 2)} offset:{t * 512}')
    a(f's_mul_i32 s4, s{sBDB}, 74')
    a(f's_lshl_b32 s5, s{sBCB}, 1')
    a('s_add_u32 s4, s4, s5')
    a('s_mul_i32 s4, s4, 5120')
    a(f's_add_u32 s15, s4, {GF_OFF}')
    a(f's_mul_i32 s4, s{sWH}, 10240')
    a('s_add_u32 s4, s4, 81920')
    a(f'v_lshl_add_u32 v25, v{vL}, 3, s4')
    a.wait_lg0()
    a('s_barrier')
    gt = []
    for m in range(3):
        frag10_addr(a, m, 2 * 2560 - 5 * 512, 512, 15, 24, 25, 34 + m)
        a(f'ds_read_b64 {V(ACC(m, 2), 2)}, v24')
        gt.append(a(f'ds_read_b64 {V(ACC(m, 2) + 2, 2)}, v24 offset:2560'))
    for m in range(3):
        a.wait(gt[m])
        a(f'buffer_store_dwordx4 {V(ACC(m, 2), 4)}, v{34 + m}, {S(sWS, 4)}, 0 offen sc1')
    a(f's_lshl_b32 s4, s{sBDB}, 5')
    a(f's_add_u32 s4, s4, s{sBCB}')
    a('s_lshl_b32 s4, s4, 2')
    a(f's_add_u32 s4, s4, s{sW}')
    a(f's_lshl_b32 s4, s4, {FSH}')
    a(f's_add_u32 s10, s4, {FG_OFF}')
    a('s_branch L_join')


def role_r(a):
    a('s_lshl_b32 s11, s6, 1')
    a(f's_add_u32 s11, s11, s{sWH}')
    a('s_lshr_b32 s8, s6, 3')
    a('s_lshl_b32 s8, s8, 3')
    a(f's_add_u32 s8, s8, s{sW8}')
    a('s_getpc_b64 s[6:7]')
    a.raw('L_pc:')
    a(f's_sub_u32 s{sAUX}, s6, L_pc - L_start')
    a('s_subb_u32 s7, s7, 0')
    a(f's_and_b32 s{sAUX + 1}, s7, 0xffff')
    a(f's_mov_b32 s{sAUX + 2}, L_end - L_start')
    a(f's_mov_b32 s{sAUX + 3}, 0x20000')
    a('s_lshl_b32 s6, s8, 13')
    a(f'v_lshl_add_u32 v25, v{vL}, 7, s6')
    a(f'buffer_load_dword v37, v25, {S(sAUX, 4)}, 0 offen')
    a('s_mul_i32 s5, s8, 54')
    a(f's_and_b32 s7, s{sID}, 1')
    a('s_mul_i32 s7, s7, 864')
    a('s_add_u32 s5, s5, s7')
    a('s_lshl_b32 s5, s5, 12')
    a(f's_and_b32 s7, s{sID}, 6')
    a('s_lshl_b32 s7, s7, 9')
    a('s_add_u32 s5, s5, s7')
    a(f'v_lshrrev_b32 v24, 3, v{vL}')
    a(f'v_and_b32 v25, 7, v{vL}')
    a('v_lshlrev_b32 v24, 12, v24')
    a('v_lshl_add_u32 v24, v25, 7, v24')
    a('v_add_u32 v24, s5, v24')
    tag_ready(a)
    a(f'v_mov_b32 v{vFL}, {FH_OFF}')
    flag_check(a, flag_issue(a, vFL, vFD), vFL, vFD, 16)
    PFA = int(os.environ.get('PFA', '7'))
    a('v_mov_b32 v36, v24')
    for k in range(PFA):
        a(f'buffer_load_dword v37, v36, {S(sW2, 4)}, 0 offen')
        a(f'v_add_u32 v36, {8 * 4096}, v36')
        if k % 2 == 1:
            a.wait_vm0()
    stamp(a, 'prep')
    a('s_setprio 3')
    a(f's_lshl_b32 s4, s11, {4 + FSH}')
    a(f's_add_u32 s4, s4, {FK_OFF}')
    a(f'v_lshl_add_u32 v{vFL}, v{vI}, {FSH}, s4')
    a(f's_lshl_b32 s5, s{sW}, 11')
    a(f'v_lshl_add_u32 v24, v{vL}, 4, s5')
    a(f'v_lshrrev_b32 v25, 5, v{vL}')
    a(f'v_and_b32 v26, 31, v{vL}')
    a('v_lshlrev_b32 v26, 4, v26')
    a('v_lshl_add_u32 v25, v25, 11, v26')
    a('v_add_u32 v25, 1024, v25')
    a(f's_cmp_eq_u32 s{sW}, 2')
    a('s_cselect_b64 vcc, -1, 0')
    a('v_cndmask_b32 v24, v24, v25, vcc')
    a(f'v_lshrrev_b32 v25, 3, v{vL}')
    a(f'v_and_b32 v26, 7, v{vL}')
    a('v_lshlrev_b32 v26, 4, v26')
    a('v_lshl_add_u32 v25, v25, 8, v26')
    a('v_add_u32 v25, 4096, v25')
    a(f's_cmp_eq_u32 s{sW}, 3')
    a('s_cselect_b64 vcc, -1, 0')
    a('v_cndmask_b32 v24, v24, v25, vcc')
    a(f's_mul_i32 s4, s11, {16 * 6144}')
    a(f's_add_u32 s4, s4, {KV_OFF}')
    flag_check(a, flag_issue(a, vFL, vFD), vFL, vFD, 4)
    stamp(a, 'hok')
    stok = []
    for rb in range(16):
        stok.append(a(f'buffer_load_dwordx4 {V(128 + 4 * rb, 4)}, v24, {S(sWS, 4)}, s4 offen sc1'))
        a('s_add_u32 s4, s4, 6144')
    for rb in range(1, 16):
        a.wait(stok[rb])
        for h in range(2):
            a(f'v_pk_add_f32 {V(128 + 2 * h, 2)}, {V(128 + 2 * h, 2)}, {V(128 + 4 * rb + 2 * h, 2)}')
    stamp(a, 'rsum')
    a('v_cvt_pk_bf16_f32 v34, v128, v129')
    a('v_cvt_pk_bf16_f32 v35, v130, v131')
    a('s_lshl_b32 s4, s11, 11')
    a(f's_add_u32 s4, s4, {KB_OFF}')
    a(f'v_lshl_add_u32 v24, v{vTH}, 3, s4')
    a(f'buffer_store_dwordx2 v[34:35], v24, {S(sWS, 4)}, 0 offen sc1')
    a('s_lshl_b32 s4, s11, 2')
    a(f's_add_u32 s4, s4, s{sW}')
    a(f's_lshl_b32 s4, s4, {FSH}')
    a(f's_add_u32 s10, s4, {FR_OFF}')
    a.wait_vm0()
    flag_set(a, 10)
    a(f's_mov_b32 s10, {OOB}')
    stamp(a, 'rpub')
    a('s_barrier')
    for k in range(PFA, 7):
        a(f'buffer_load_dword v37, v36, {S(sW2, 4)}, 0 offen')
        a(f'v_add_u32 v36, {8 * 4096}, v36')
    a('s_branch L_join')


def role_wot(a):
    a('s_lshl_b32 s11, s6, 1')
    a(f's_add_u32 s11, s11, s{sWH}')
    srd(a, sAUX, P_WO, D_ * D_ * 2)
    a(f'v_lshlrev_b32 v{vF}, 4, v{vL}')
    a(f'v_add_u32 v{vF + 1}, 4096, v{vF}')
    tag_ready(a)
    dma160_voffs(a, 34, 1280, False, 24)
    a('s_mul_i32 s4, s11, 160')
    a(f's_mul_i32 s5, s{sW}, {160 * 1280}')
    a('s_add_u32 s7, s4, s5')
    a(f's_mul_i32 s6, s{sW8}, 20480')
    a(f'v_mul_u32_u24 v24, 20, v{vG}')
    a(f'v_add_u32 v24, v24, v{vR}')
    a('v_mul_u32_u24 v24, 160, v24')
    a(f'v_mul_u32_u24 v25, 40, v{vC}')
    a('v_add_u32 v24, v24, v25')
    a('v_add_u32 v24, s6, v24')
    a('s_mul_i32 s4, s11, 74')
    a(f's_mul_i32 s5, s{sW}, 5')
    a('s_add_u32 s4, s4, s5')
    a('s_add_u32 s4, s4, 54')
    a('s_mul_i32 s4, s4, 5120')
    a(f's_add_u32 s4, s4, {GF_OFF}')
    rounds = [[(0, 0, 0), (0, 1, 4), (1, 0, 8), (1, 1, 12), (2, 0, 16)],
              [(2, 1, 16), (3, 0, 0), (3, 1, 4), (4, 0, 8), (4, 1, 12)]]
    for rd in range(2):
        for k in range(3):
            a(f's_add_u32 s8, s7, {(rd * 80 + k * 32) * 1280}')
            dma160(a, 34, sAUX, 8, 6, k * 5120)
        a.wait_vm0()
        for u, hf, row in rounds[rd]:
            for t in range(5):
                a(f'ds_read_b64_tr_b16 {V(156 + (u * 5 + t) * 4 + 2 * hf, 2)}, v24 offset:{row * 160 + 8 * t}')
            a.wait_lg0()
    for u in range(5):
        for t in range(5):
            vo, off = (vF, t * 1024) if t < 4 else (vF + 1, 0)
            a(f'buffer_store_dwordx4 {V(156 + (u * 5 + t) * 4, 4)}, v{vo}, {S(sWS, 4)}, s4 offen offset:{off} sc1')
        a('s_add_u32 s4, s4, 5120')
    a('s_lshl_b32 s4, s11, 2')
    a(f's_add_u32 s4, s4, s{sW}')
    a(f's_lshl_b32 s4, s4, {FSH}')
    a(f's_add_u32 s10, s4, {FW_OFF}')
    a('s_barrier')


def final_gemm(a):
    a.wait_all()
    flag_set(a, 10)
    stamp(a, 'pub')
    a('s_setprio 0')
    a(f's_cmp_lg_u32 s{sWH}, 0')
    a('s_cbranch_scc1 L_fin')
    xcd_tile(a)
    g_common(a)
    g2 = GGemm(a, 'G2')
    g2.setup()
    for j in range(G2_P):
        Hooks(g2.dma_items(j)).flush()
    srd(a, sOUT, P_OUT, S_ * D_ * 2)
    R = lambda t, j: ACC(t, 0) + j
    T = lambda t, j: ACC(t, 1) + j
    srd(a, sAUX, P_B2, S_ * 2)
    a(f's_lshl_b32 s4, s{sRB}, {5 + FSH}')
    a(f's_lshl_b32 s5, s{sW}, {3 + FSH}')
    a('s_add_u32 s4, s4, s5')
    a(f's_add_u32 s4, s4, {FO_OFF}')
    a(f'v_lshl_add_u32 v34, v{vC}, {FSH + 1}, s4')
    a(f's_lshl_b32 s4, s{sHG}, 2')
    a(f's_add_u32 s4, s4, s{sW}')
    a(f's_lshl_b32 s4, s4, {FSH}')
    a(f's_add_u32 s4, s4, {FW_OFF}')
    a('v_mov_b32 v35, s4')
    a(f'v_cmp_gt_u32 vcc, 63, v{vL}')
    a(f'v_cndmask_b32 v{vFL}, v35, v{vFL}, vcc')
    for nt in range(4):
        a(f's_xor_b32 s4, s{sW}, {nt}')
        a('s_lshl_b32 s4, s4, 10')
        a(f'v_add_u32 v{vOF + nt}, s4, v{vF}')
    a(f's_mul_i32 s4, s{sRB}, 20')
    a(f's_mul_i32 s5, s{sW}, 5')
    a('s_add_u32 s4, s4, s5')
    a('s_lshl_b32 s4, s4, 12')
    a(f's_add_u32 s11, s4, {OF_OFF}')
    a(f'v_mul_u32_u24 v{vXA}, 1280, v{vTOK}')
    a(f'v_mul_u32_u24 v{vBA}, 40, v{vG}')
    a(f'v_add_u32 v{vXA}, v{vXA}, v{vBA}')
    a(f's_mul_i32 s4, s{sHG}, 160')
    a(f'v_add_u32 v{vXA}, s4, v{vXA}')
    a(f'v_lshlrev_b32 v{vBA}, 1, v{vTOK}')
    flag_check(a, flag_issue(a, vFL, vFD), vFL, vFD)
    stamp(a, 'gok')
    fl = {}

    def gate():
        a(f's_mul_i32 s4, s{sHG}, 74')
        a(f's_mul_i32 s5, s{sW}, 5')
        a('s_add_u32 s4, s4, s5')
        a('s_add_u32 s4, s4, 54')
        a('s_mul_i32 s4, s4, 5120')
        a(f's_add_u32 s{sFS}, s4, {GF_OFF}')

    def gate2():
        stamp(a, 'oa')
        flag_check(a, fl['o'], 34, 35)
        stamp(a, 'ob')

    g2.gate = gate
    g2.gate2 = gate2
    XR = [8, 10, 14, 16, 18]

    def g2_extra(j):
        it = []
        if j == 9:
            def fo():
                fl['o'] = flag_issue(a, 34, 35)
            it.append(fo)
        if j == 16:
            def resid():
                a(f'buffer_load_ushort v36, v{vBA}, {S(sAUX, 4)}, 0 offen')
                for t in range(5):
                    fl['x'] = a(f'buffer_load_dwordx2 {V(XR[t], 2)}, v{vXA}, {S(sX, 4)}, 0 offen offset:{8 * t}')
            it.append(resid)
        return it

    Hooks(g2.frag_items(FIRST)).flush()
    g2.mainloop(g2_extra)
    stamp(a, 'Gend')
    g2.reduce()
    a.wait(fl['x'])
    a('v_lshlrev_b32 v36, 16, v36')
    for t in range(5):
        for h in range(2):
            a(f'v_lshlrev_b32 v{T(t, 2 * h)}, 16, v{XR[t] + h}')
            a(f'v_and_b32 v{T(t, 2 * h + 1)}, 0xffff0000, v{XR[t] + h}')
            a(f'v_pk_add_f32 {V(R(t, 2 * h), 2)}, {V(R(t, 2 * h), 2)}, v[36:37] op_sel_hi:[1,0]')
            a(f'v_pk_add_f32 {V(R(t, 2 * h), 2)}, {V(R(t, 2 * h), 2)}, {V(T(t, 2 * h), 2)}')
        a(f'v_cvt_pk_bf16_f32 v{R(t, 0)}, v{R(t, 0)}, v{R(t, 1)}')
        a(f'v_cvt_pk_bf16_f32 v{R(t, 1)}, v{R(t, 2)}, v{R(t, 3)}')
        a(f'buffer_store_dwordx2 {V(R(t, 0), 2)}, v{vXA}, {S(sOUT, 4)}, 0 offen offset:{8 * t}')
    a.label('L_fin')
    stamp_flush(a, 'end')


def build():
    a = Asm()
    hdr = open(os.path.join(os.path.dirname(__file__), '..', 'cdna_kernels', NAME + '.s.ref')).read().split('\n')
    for line in hdr:
        if line.startswith(';') and '@launch' not in line:
            a.raw(line)
    a.raw(f'; @launch grid=(256,1,1) block=(512,1,1) lds={LDS_BYTES}')
    a.raw('.amdgcn_target "amdgcn-amd-amdhsa--gfx950"')
    a.raw('.text')
    K = NAME + '_kernel'
    a.raw(f'.globl {K}')
    a.raw('.p2align 8')
    a.raw(f'.type {K},@function')
    a.raw(f'{K}:')
    a.raw('L_start:')
    a('s_cmp_ge_u32 s2, 256')
    a('s_cbranch_scc1 L_end')
    a('s_load_dwordx16 s[16:31], s[0:1], 0')
    a('s_load_dwordx8 s[32:39], s[0:1], 64')
    a(f'v_and_b32 v{vL}, 63, v0')
    a('v_lshrrev_b32 v6, 6, v0')
    a(f'v_readfirstlane_b32 s{sW8}, v6')
    a(f'v_lshrrev_b32 v{vG}, 4, v{vL}')
    a(f'v_and_b32 v{vI}, 15, v{vL}')
    a(f'v_lshrrev_b32 v{vR}, 2, v{vI}')
    a(f'v_and_b32 v{vC}, 3, v{vL}')
    a(f'v_lshl_add_u32 v{vGR}, v{vG}, 2, v{vR}')
    a(f'v_and_b32 v{vTH}, 255, v0')
    a(f's_and_b32 s{sW}, s{sW8}, 3')
    a(f's_lshr_b32 s{sWH}, s{sW8}, 2')
    a(f's_mov_b32 s{sID}, s2')
    a('s_waitcnt lgkmcnt(0)')
    a(f's_add_u32 s4, s{P_WS}, {EP_OFF}')
    a(f's_addc_u32 s5, s{P_WS + 1}, 0')
    a(f's_load_dword s{sTAG}, s[4:5], 0')
    srd(a, sX, P_X, S_ * D_ * 2)
    srd(a, sWS, P_WS, WS_USED)
    srd(a, sW2, P_W2, F_ * S_ * 2)
    stamp(a, 'start')
    if 'noticket' not in EXP:
        srd(a, sAUX, P_DBG, 256)
        a(f'v_mov_b32 v8, {L_CNT + 16}')
        a(f's_cmp_lg_u32 s{sW8}, 0')
        a('s_cbranch_scc1 L_ticket_done')
        a('s_getreg_b32 s4, hwreg(HW_REG_XCC_ID)')
        a('s_mov_b32 s6, 0')
        a('s_mov_b64 exec, 1')
        a.label('L_ticket')
        a('s_and_b32 s4, s4, 7')
        a('s_lshl_b32 s5, s4, 5')
        a('v_mov_b32 v9, s5')
        a('v_mov_b32 v10, 1')
        a(f'buffer_atomic_add v10, v9, {S(sAUX, 4)}, 0 offen sc0 sc1')
        a.wait_vm0()
        a('v_readfirstlane_b32 s5, v10')
        a('s_cmp_lt_u32 s5, 32')
        a('s_cbranch_scc1 L_ticket_ok')
        a('s_add_u32 s4, s4, 1')
        a('s_add_u32 s6, s6, 1')
        a('s_cmp_lt_u32 s6, 8')
        a('s_cbranch_scc1 L_ticket')
        a.label('L_ticket_ok')
        a('s_lshl_b32 s5, s5, 3')
        a('s_add_u32 s5, s5, s4')
        a('v_mov_b32 v9, s5')
        a('ds_write_b32 v8, v9')
        a('s_mov_b64 exec, -1')
        a('s_waitcnt lgkmcnt(0)')
        a.label('L_ticket_done')
        a('s_barrier')
        a('ds_read_b32 v9, v8')
        a('s_waitcnt lgkmcnt(0)')
        a('s_barrier')
        a(f'v_readfirstlane_b32 s{sID}, v9')
        a(f's_and_b32 s{sID}, s{sID}, 255')
        a.reset_counters()
        stamp(a, 'tick')
    if os.environ.get('UPRIO', '1') != '0':
        a(f's_cmp_eq_u32 s{sWH}, 0')
        a('s_cbranch_scc1 L_prio')
        a(f's_setprio {os.environ.get("UPRIO", "1")}')
        a.label('L_prio')
    a(f's_cmp_ge_u32 s{sID}, 128')
    a('s_cbranch_scc1 L_not_a')
    role_a(a)
    a.label('L_not_a')
    a.reset_counters()
    a(f's_and_b32 s4, s{sID}, 7')
    a(f's_lshr_b32 s5, s{sID}, 3')
    a('s_sub_u32 s5, s5, 16')
    a('s_cmp_ge_u32 s5, 14')
    a('s_cbranch_scc1 L_role_r')
    a('s_and_b32 s7, s4, 1')
    a('s_add_u32 s7, s7, 13')
    a('s_cmp_ge_u32 s5, s7')
    a('s_cbranch_scc1 L_role_wot')
    a('s_mul_i32 s6, s4, 27')
    a('s_lshr_b32 s6, s6, 1')
    a('s_add_u32 s6, s6, s5')
    role_b(a)
    a.label('L_role_r')
    a.reset_counters()
    a(f's_sub_u32 s6, s{sID}, 240')
    role_r(a)
    a.label('L_role_wot')
    a.reset_counters()
    a('s_lshr_b32 s6, s4, 1')
    role_wot(a)
    a.label('L_join')
    final_gemm(a)
    a.label('L_end')
    a('s_endpgm')
    if STAMPS:
        a.raw('; STAMPS ' + ' '.join(STAMP_NAMES))
    a.raw('.section .rodata,"a"')
    a.raw(f""".p2align 6
.amdhsa_kernel {K}
  .amdhsa_next_free_vgpr 256
  .amdhsa_next_free_sgpr 102
  .amdhsa_accum_offset 256
  .amdhsa_group_segment_fixed_size 0
  .amdhsa_kernarg_size 96
  .amdhsa_user_sgpr_count 2
  .amdhsa_user_sgpr_kernarg_segment_ptr 1
  .amdhsa_system_sgpr_workgroup_id_x 1
.end_amdhsa_kernel""")
    sys.stderr.write(f'maxv={a.maxv} maxa={a.maxa} maxs={a.maxs} nops={a.nops} lines={len(a.out)}\n')
    return a.text()


if __name__ == '__main__':
    out = sys.argv[1] if len(sys.argv) > 1 else os.path.join(os.path.dirname(__file__), '..', 'cdna_kernels', NAME + '.s')
    open(out, 'w').write(build())
```

```python
import sys, struct, os
sys.path.insert(0, os.path.dirname(__file__))
from asmdsl import Asm, Rec, V, A, S

NAME = 'parallel_sum__linear_kernel_hedgehog__mixer_token_mlp__prompt'
S_, D_, F_ = 2048, 640, 1728

HF_OFF = 0
HF_SZ = 8 * 64 * 5 * 1024
GF_OFF = HF_OFF + HF_SZ
GF_SZ = 8 * 74 * 5 * 1024
OF_OFF = GF_OFF + GF_SZ
OF_SZ = 32 * 20 * 4 * 1024
XF_OFF = OF_OFF + OF_SZ
XF_SZ = 128 * 20480
WF_OFF = XF_OFF + XF_SZ
WF_SZ = 480 * 5120 + 4096
KV_OFF = WF_OFF + WF_SZ
KV_SZ = 32 * 32 * 6144
KB_OFF = KV_OFF + KV_SZ + 4096
KB_SZ = 32 * 2048
FL_OFF = KB_OFF + KB_SZ + 4096
FSH = int(os.environ.get('FSH', '6'))
FH_OFF = FL_OFF
FK_OFF = FH_OFF + (1024 << FSH)
FR_OFF = FK_OFF + (1024 << FSH)
FG_OFF = FR_OFF + (128 << FSH)
FO_OFF = FG_OFF + (1024 << FSH)
FW_OFF = FO_OFF + (1024 << FSH)
FU_OFF = FW_OFF + (128 << FSH)
EP_OFF = FU_OFF + (512 << FSH)
WS_USED = EP_OFF + 512
STAMP_OFF = WS_USED
WS_USED += 512 * 256
STAMPS = bool(int(os.environ.get('STAMPS', '0')))
EXP = os.environ.get('EXP', '').split(',') + [e for e in ['map4', 'ntb', 'noticket', 'notlb'] if e not in os.environ.get('OFF', '').split(',')]
OOB = 0x40000000

P_X, P_WQKV, P_WPHI, P_WO, P_BX, P_W1, P_B1, P_W2, P_B2, P_OUT, P_DBG, P_WS = range(16, 40, 2)
LOG2E = 1.4426950408889634

sW = 3
sW8, sWH = 90, 91
sWS, sX, sWQ, sW1, sW2, sAUX, sOUT = 40, 44, 48, 52, 56, 60, 64
sHG, sRB, sID, sROT, sKS, sT, sM0B, sTAG = 68, 69, 70, 71, 72, 73, 74, 75
sL, sNL = 76, 78
sBDB, sBCB, sFS, sGM0, sSPIN, sLIM = 80, 81, 82, 83, 84, 85
vL, vG, vI, vR, vC = 1, 2, 3, 4, 5
vTOK, vGR = 6, 7
vFS = 42
DB = 64
XN = lambda s: DB + 8 * s
UP = lambda k: DB + 8 * k + 4

LDS_BYTES = 163840
A_SLOTS = 4
L_WQ = 0
L_RING = 102400
L_ZERO = 122880
L_WPHI = 126976
L_CNT = 131072
B_P = 10
G2_P = 5
ILV = os.environ.get('ILV', 'burst')


def kb_pos(f, t):
    if f < 32:
        return (f >> 4) * 512 + (t * 16 + (f & 15)) * 8 if t < 4 else 1024 + ((f >> 4) * 32 + (t - 4) * 16 + (f & 15)) * 8
    return 1536 + (t * 8 + f - 32) * 8


def fbits(x):
    return '0x%08x' % struct.unpack('<I', struct.pack('<f', x))[0]


def srd(a, dst, ptr, nbytes):
    a(f's_mov_b32 s{dst}, s{ptr}')
    a(f's_and_b32 s{dst + 1}, s{ptr + 1}, 0xffff')
    a(f's_mov_b32 s{dst + 2}, {nbytes}')
    a(f's_mov_b32 s{dst + 3}, 0x20000')


STAMP_NAMES = []
vST = 41


def stamp(a, name):
    if not STAMPS:
        return
    name = str(name)
    if name not in STAMP_NAMES:
        STAMP_NAMES.append(name)
    idx = STAMP_NAMES.index(name)
    a('s_memrealtime s[98:99]')
    a.wait_lg0()
    if idx == 0:
        a(f'v_mov_b32 v{vST}, 0')
        a('s_getreg_b32 s97, hwreg(HW_REG_HW_ID)')
        a(f'v_writelane_b32 v{vST}, s97, 63')
    a(f'v_writelane_b32 v{vST}, s98, {idx}')


def stamp_flush(a, n):
    if not STAMPS:
        return
    a.wait_vm0()
    stamp(a, n)
    lab = a.newlabel('st')
    a(f's_cmp_lg_u32 s{sW}, 0')
    a(f's_cbranch_scc1 {lab}')
    a(f's_lshl_b32 s4, s{sWH}, 8')
    a(f's_add_u32 s4, s4, s{sID}')
    a('s_lshl_b32 s4, s4, 8')
    a(f's_add_u32 s4, s4, {STAMP_OFF}')
    a(f'v_lshl_add_u32 v8, v{vL}, 2, s4')
    a(f'buffer_store_dword v{vST}, v8, {S(sWS, 4)}, 0 offen')
    if 'dbgmax' in EXP:
        srd(a, sAUX, P_DBG, 256)
        sel = os.environ.get('DBGSEL', 'start,x,prep,go,a0,aend,fm,rok,B_0,Bend,pub,gok,G2_0,Gend,end').split(',')
        a(f'v_readlane_b32 s4, v{vST}, 0')
        a('s_not_b32 s4, s4')
        a(f'v_writelane_b32 v{vST}, s4, 62')
        a('s_mov_b64 exec, 1')
        for k, nm in enumerate(['neg'] + sel):
            if nm != 'neg' and nm not in STAMP_NAMES:
                STAMP_NAMES.append(nm)
            lane = 62 if nm == 'neg' else STAMP_NAMES.index(nm)
            a(f'v_readlane_b32 s4, v{vST}, {lane}')
            a('v_mov_b32 v9, s4')
            a('v_mov_b32 v8, 0')
            a(f'buffer_atomic_umax v9, v8, {S(sAUX, 4)}, 0 offen offset:{4 * k} sc1')
        a('s_mov_b64 exec, -1')
    a.label(lab)


def reduce_g(a, r, t):
    a(f'v_mov_b32 v{t}, v{r}')
    a(f'v_permlane32_swap_b32 v{r}, v{t}')
    a(f'v_add_f32 v{r}, v{r}, v{t}')
    a(f'v_mov_b32 v{t}, v{r}')
    a(f'v_permlane16_swap_b32 v{r}, v{t}')
    a(f'v_add_f32 v{r}, v{r}, v{t}')


def dma160_voffs(a, dst, stride, permute, tmp):
    t0, t2, t3 = tmp, tmp + 1, tmp + 2
    for q in range(5):
        d = dst + q
        a(f'v_add_u32 v{t0}, {q * 64}, v{vL}')
        a(f'v_mul_u32_u24 v{t2}, 6554, v{t0}')
        a(f'v_lshrrev_b32 v{t2}, 16, v{t2}')
        a(f'v_mul_u32_u24 v{t3}, 10, v{t2}')
        a(f'v_sub_u32 v{t0}, v{t0}, v{t3}')
        if permute:
            a(f'v_bfe_u32 v{t3}, v{t2}, 2, 2')
            a(f'v_lshlrev_b32 v{t3}, 3, v{t3}')
            a(f'v_and_b32 v{d}, 3, v{t2}')
            a(f'v_add_u32 v{t3}, v{t3}, v{d}')
            a(f'v_lshrrev_b32 v{t2}, 4, v{t2}')
            a(f'v_lshl_add_u32 v{t2}, v{t2}, 2, v{t3}')
        a(f'v_mul_u32_u24 v{t2}, {stride}, v{t2}')
        a(f'v_lshl_add_u32 v{d}, v{t0}, 4, v{t2}')
        if 0 < q < 4:
            a(f'v_subrev_u32 v{d}, {q * 1024}, v{d}')


def dma160(a, vo, ssrd, soff, m0_s, m0_add, nt=''):
    a(f's_add_u32 m0, s{m0_s}, {m0_add}')
    for q in range(4):
        off = f' offset:{q * 1024}' if q else ''
        a(f'buffer_load_dwordx4 v{vo + q}, {S(ssrd, 4)}, s{soff} offen{off}{nt} lds')
    a(f's_add_u32 m0, s{m0_s}, {m0_add + 4096}')
    return a(f'buffer_load_dwordx4 v{vo + 4}, {S(ssrd, 4)}, s{soff} offen{nt} lds')


class Hooks:
    def __init__(self, items=()):
        self.items = list(items)

    def run(self, n=1):
        for _ in range(n):
            if self.items:
                self.items.pop(0)()

    def flush(self):
        self.run(len(self.items))


def softmax_pm(a, P, PH, EP, EN, tmp):
    p = [P[k // 4] + k % 4 for k in range(20)]
    ep = [EP[k // 4] + k % 4 for k in range(20)]
    en = [EN[k // 4] + k % 4 for k in range(20)]
    mx, mn, sp, sn = tmp, tmp + 2, tmp + 4, tmp + 6
    a(f'v_max3_f32 v{mx}, v{p[0]}, v{p[1]}, v{p[2]}')
    a(f'v_min3_f32 v{mn}, v{p[0]}, v{p[1]}, v{p[2]}')
    for k in range(3, 19, 2):
        a(f'v_max3_f32 v{mx}, v{mx}, v{p[k]}, v{p[k + 1]}')
        a(f'v_min3_f32 v{mn}, v{mn}, v{p[k]}, v{p[k + 1]}')
    a(f'v_max_f32 v{mx}, v{mx}, v{p[19]}')
    a(f'v_min_f32 v{mn}, v{mn}, v{p[19]}')
    a(f'v_mul_f32 v{mx}, s{sNL}, v{mx}')
    a(f'v_mul_f32 v{mn}, s{sL}, v{mn}')
    for k in range(0, 20, 2):
        a(f'v_pk_fma_f32 {V(ep[k], 2)}, {V(p[k], 2)}, {S(sL, 2)}, {V(mx, 2)} op_sel_hi:[1,0,0]')
        a(f'v_pk_fma_f32 {V(en[k], 2)}, {V(p[k], 2)}, {S(sNL, 2)}, {V(mn, 2)} op_sel_hi:[1,0,0]')
    for k in range(20):
        a(f'v_exp_f32 v{ep[k]}, v{ep[k]}')
        a(f'v_exp_f32 v{en[k]}, v{en[k]}')
    a(f'v_pk_add_f32 {V(sp, 2)}, {V(ep[0], 2)}, {V(ep[2], 2)}')
    a(f'v_pk_add_f32 {V(sn, 2)}, {V(en[0], 2)}, {V(en[2], 2)}')
    for k in range(4, 20, 2):
        a(f'v_pk_add_f32 {V(sp, 2)}, {V(sp, 2)}, {V(ep[k], 2)}')
        a(f'v_pk_add_f32 {V(sn, 2)}, {V(sn, 2)}, {V(en[k], 2)}')
    a(f'v_add_f32 v{sp}, v{sp}, v{sp + 1}')
    a(f'v_add_f32 v{sn}, v{sn}, v{sn + 1}')
    a(f'v_rcp_f32 v{sp}, v{sp}')
    a(f'v_rcp_f32 v{sn}, v{sn}')
    for k in range(0, 20, 2):
        a(f'v_pk_mul_f32 {V(ep[k], 2)}, {V(ep[k], 2)}, {V(sp, 2)} op_sel_hi:[1,0]')
        a(f'v_pk_mul_f32 {V(en[k], 2)}, {V(en[k], 2)}, {V(sn, 2)} op_sel_hi:[1,0]')
    allv = ep + en
    for k in range(20):
        a(f'v_cvt_pk_bf16_f32 v{PH[k // 4] + k % 4}, v{allv[2 * k]}, v{allv[2 * k + 1]}')


def flag_set(a, s_off):
    a(f'v_lshl_add_u32 v{vFS}, v{vL}, 2, s{s_off}')
    a(f'v_mov_b32 v{vFS + 1}, s{sTAG}')
    a(f's_mov_b64 exec, {hex((1 << (1 << (FSH - 2))) - 1)}')
    a(f'buffer_store_dword v{vFS + 1}, v{vFS}, {S(sWS, 4)}, 0 offen sc1')
    a('s_mov_b64 exec, -1')


def flag_issue(a, vaddr, vdst):
    return a(f'buffer_load_dword v{vdst}, v{vaddr}, {S(sWS, 4)}, 0 offen sc1')


def flag_check(a, tok, vaddr, vdst, sleep=2):
    ok = a.newlabel('ok')
    lp = a.newlabel('poll')
    a.wait(tok)
    a(f'v_cmp_ne_u32 vcc, s{sTAG}, v{vdst}')
    a(f's_cbranch_vccz {ok}')
    a(f's_mov_b32 s{sSPIN}, 0')
    a.label(lp)
    a(f's_sleep {sleep}')
    a.raw(f'\tbuffer_load_dword v{vdst}, v{vaddr}, {S(sWS, 4)}, 0 offen sc1')
    a('s_waitcnt vmcnt(0)')
    a(f'v_cmp_ne_u32 vcc, s{sTAG}, v{vdst}')
    a(f's_cbranch_vccz {ok}')
    a(f's_add_u32 s{sSPIN}, s{sSPIN}, 1')
    a(f's_cmp_lt_u32 s{sSPIN}, 0x8000')
    a(f's_cbranch_scc1 {lp}')
    a.label(ok)


def featmap(a, ACC5, PK, WPF, P5, EP5, EN5, tmp):
    for k in range(10):
        t, j = divmod(2 * k, 4)
        a(f'v_cvt_pk_bf16_f32 v{PK[k // 4] + k % 4}, v{ACC5[t] + j}, v{ACC5[t] + j + 1}')
    for ks in range(3):
        for t in range(5):
            d = V(P5[t], 4)
            if ks < 2:
                a(f'v_mfma_f32_16x16x32_bf16 {d}, {V(WPF(t, ks), 4)}, {V(PK[ks], 4)}, {"0" if ks == 0 else d}')
            else:
                a(f'v_mfma_f32_16x16x16_bf16 {d}, {V(WPF(t, ks), 2)}, {V(PK[ks], 2)}, {d}')
    softmax_pm(a, P5, P5, EP5, EN5, tmp)


def xcd_tile(a):
    a(f's_and_b32 s4, s{sID}, 7')
    a(f's_lshr_b32 s5, s{sID}, 3')
    a('s_and_b32 s6, s4, 1')
    a('s_lshl_b32 s6, s6, 2')
    a('s_and_b32 s7, s5, 3')
    a(f's_add_u32 s{sHG}, s6, s7')
    a('s_lshr_b32 s6, s4, 1')
    a('s_lshl_b32 s6, s6, 3')
    a('s_lshr_b32 s7, s5, 2')
    a(f's_add_u32 s{sRB}, s6, s7')
    a(f's_lshl_b32 s4, s{sRB}, 6')
    a(f's_lshl_b32 s5, s{sW}, 4')
    a('s_add_u32 s4, s4, s5')
    a(f'v_add_u32 v{vTOK}, s4, v{vI}')


def ln_scales(a, vS, vRS, vNB):
    a(f'v_mul_f32 v{vS}, {fbits(1.0 / 640)}, v{vS}')
    a(f'v_mul_f32 v{vS + 2}, {fbits(1.0 / 640)}, v{vS + 2}')
    a(f'v_fma_f32 v{vS + 2}, -v{vS}, v{vS}, v{vS + 2}')
    a(f'v_max_f32 v{vS + 2}, 0, v{vS + 2}')
    a(f'v_add_f32 v{vS + 1}, {fbits(1e-5)}, v{vS + 2}')
    a(f'v_rsq_f32 v{vRS}, v{vS + 1}')
    a(f'v_mul_f32 v{vNB}, v{vS}, v{vRS}')
    a(f'v_sub_f32 v{vNB}, 0, v{vNB}')


vD, vF, vT, vT2, vFL, vFD, vOF, vXA, vBA = 8, 12, 14, 18, 22, 23, 28, 32, 33
ACC = lambda t, nt: 44 + (nt * 5 + t) * 4
TF = lambda j, nt: 124 + (j % 2) * 16 + 4 * nt
POOL = [156 + 4 * k for k in range(25)]


class GGemm:
    def __init__(self, a, kind):
        self.a, self.kind = a, kind
        if kind == 'B':
            self.stride, self.srdm, self.n, self.fr_off, self.fr_steps = F_ * 2, sW1, 16, HF_OFF, 64
            self.sdb, self.scb, self.ntot, self.P = sBDB, sBCB, 16, B_P
        else:
            self.stride, self.srdm, self.n, self.fr_off, self.fr_steps = S_ * 2, sW2, 14, GF_OFF, 74
            self.sdb, self.scb, self.ntot, self.P = sHG, sRB, 19, G2_P
        self.dtok, self.ftok, self.ttok = {}, {}, {}
        self.free = list(POOL)
        self.reg = {}
        self.pending = []
        order = [(j, 'a') for j in range(self.n)]
        if kind == 'G2':
            order += [(j, k) for j in range(14, 19) for k in 'ab']
        for j, k in order:
            self.pending += [(j, k, x) for x in range(5 if k == 'a' else 4)]
        self.gate = lambda: None
        self.gate2 = lambda: None
        self.nq = 2 if kind == 'B' else 4

    def setup(self):
        a, st = self.a, self.stride
        a(f'v_lshrrev_b32 v24, 3, v{vL}')
        if self.kind == 'B':
            a('v_lshrrev_b32 v25, 2, v24')
            a('v_and_b32 v24, 3, v24')
            a('v_lshl_add_u32 v24, v25, 3, v24')
        a(f'v_mul_u32_u24 v24, {st}, v24')
        a(f'v_and_b32 v25, 7, v{vL}')
        a(f'v_lshlrev_b32 v26, 1, v{vG}')
        a('v_xor_b32 v25, v25, v26')
        a('v_lshl_add_u32 v24, v25, 4, v24')
        a(f's_lshl_b32 s4, s{self.scb}, 7')
        a(f's_mul_i32 s5, s{sW}, {self.n * 32 * st}')
        a('s_add_u32 s5, s5, s4')
        if self.kind == 'B':
            a(f's_mul_i32 s6, s{sWH}, {4 * st}')
            a('s_add_u32 s5, s5, s6')
            a(f's_lshl_b32 s6, s{sWH}, 11')
            a(f's_add_u32 s{sM0B}, s{sGM0}, s6')
        else:
            a(f's_mov_b32 s{sM0B}, s{sGM0}')
        for q in range(self.nq):
            row = 8 * q if self.kind != 'B' else q * 16
            a(f's_add_u32 s6, s5, {row * st - 1024 * q}')
            a(f'v_add_u32 v{vD + q}, s6, v24')
        a(f's_mul_i32 s4, s{self.sdb}, {self.fr_steps}')
        a(f's_mul_i32 s5, s{sW}, {self.n}')
        a('s_add_u32 s4, s4, s5')
        a('s_mul_i32 s4, s4, 5120')
        a(f's_add_u32 s{sFS}, s4, {self.fr_off}')
        if self.kind == 'B':
            a(f's_lshl_b32 s4, s{sW}, {6 + FSH}')
            a(f's_add_u32 s4, s4, {FH_OFF}')
            a(f'v_lshl_add_u32 v{vFL}, v{vL}, {FSH}, s4')
        else:
            a(f's_lshl_b32 s4, s{self.sdb}, {7 + FSH}')
            a(f's_mul_i32 s5, s{sW}, {28 << FSH}')
            a('s_add_u32 s4, s4, s5')
            a(f's_add_u32 s4, s4, {FG_OFF}')
            a(f's_mul_i32 s5, s{self.sdb}, {74 * 5120}')
            a(f's_add_u32 s{sLIM}, s5, {GF_OFF + 53 * 5120}')
            a(f's_cmp_eq_u32 s{sW}, 3')
            a('s_cselect_b32 s5, 23, 27')
            a(f'v_min_u32 v24, s5, v{vL}')
            a(f'v_lshl_add_u32 v{vFL}, v24, {FSH}, s4')

    def dma_items(self, j):
        a = self.a

        def one(q):
            def f():
                if q == 0:
                    a(f's_add_u32 m0, s{sM0B}, {(j % self.P) * 16384}')
                off = f' offset:{q * 1024}' if q else ''
                nt = ' nt' if ('ntb' in EXP and self.kind == 'B' and j < self.P) else ''
                self.dtok[j] = a(f'buffer_load_dwordx4 v{vD + q}, {S(self.srdm, 4)}, 0 offen{off}{nt} lds')
                if not ('hotw' in EXP):
                    a(f'v_add_u32 v{vD + q}, {32 * self.stride}, v{vD + q}')
            return f
        return [one(q) for q in range(self.nq)]

    def frag_items(self, lim=99):
        a = self.a
        out = []
        while self.free and self.pending and len(out) < lim:
            key = self.pending.pop(0)
            r = self.free.pop(0)
            self.reg[key] = r

            def f(key=key, r=r):
                j, kind, x = key
                if key == (self.n, 'a', 0):
                    self.gate()
                if key == (self.n, 'b', 0):
                    self.gate2()
                if kind == 'a':
                    vo, off = (vF, x * 1024) if x < 4 else (vF + 1, 0)
                    offs = f' offset:{off}' if off else ''
                    self.ftok[j] = a(f'buffer_load_dwordx4 {V(r, 4)}, v{vo}, {S(sWS, 4)}, s{sFS} offen{offs} sc1')
                    if x == 4 and 'hotf' not in EXP:
                        a(f's_add_u32 s{sFS}, s{sFS}, 5120')
                        if self.kind == 'G2' and j < 14:
                            a(f's_min_u32 s{sFS}, s{sFS}, s{sLIM}')
                else:
                    if j - self.n == 2:
                        a(f'v_lshlrev_b32 v24, 3, v{vL}')
                        a(f'v_sub_u32 v24, v{vOF + x}, v24')
                        a(f'buffer_load_dwordx2 {V(r, 2)}, v24, {S(sWS, 4)}, s11 offen sc1')
                        self.ftok[j] = a(f'buffer_load_dwordx2 {V(r + 2, 2)}, v24, {S(sWS, 4)}, s11 offen offset:512 sc1')
                    else:
                        self.ftok[j] = a(f'buffer_load_dwordx4 {V(r, 4)}, v{vOF + x}, {S(sWS, 4)}, s11 offen sc1')
                    if x == 3:
                        a('s_add_u32 s11, s11, 4096')
            out.append(f)
        return out

    def tr_items(self, j):
        a = self.a

        def one(nt):
            def f():
                off = (j % self.P) * 16384
                base = vT
                if off >= 65536:
                    if off % 65536 == 0:
                        a(f'v_add_u32 v{vT2 + nt}, {off}, v{vT + nt}')
                    off %= 65536
                    base = vT2
                a(f'ds_read_b64_tr_b16 {V(TF(j, nt), 2)}, v{base + nt} offset:{off}')
                self.ttok[j] = a(f'ds_read_b64_tr_b16 {V(TF(j, nt) + 2, 2)}, v{base + nt} offset:{off + 2048}')
            return f
        return [one(nt) for nt in range(4)]

    def mainloop(self, extra):
        a, n = self.a, self.n
        a.wait(self.dtok[0])
        Hooks(self.tr_items(0)).flush()
        for j in range(self.ntot):
            items = []
            if j + 1 < n:
                a.wait(self.dtok[j + 1])
            a.wait(self.ftok[j], self.ttok.get(j))
            if self.kind == 'B' and j + 1 < n and (j + self.P < n or j + 1 >= int(os.environ.get('BPRE', '10'))):
                a('s_barrier')
            if j % 3 == 0:
                stamp(a, f'{self.kind}_{j}')
                if STAMPS and j in (3, 9):
                    a('s_memtime s[98:99]')
                    a.wait_lg0()
                    a(f'v_writelane_b32 v{vST}, s98, {56 + (j // 9) + (2 if self.kind == "G2" else 0)}')
            if j + 1 < n:
                items += self.tr_items(j + 1)
            if j + self.P < n:
                items += self.dma_items(j + self.P)
            items += extra(j)
            items += self.frag_items(10)
            last = j == self.ntot - 1
            if self.kind == 'G2' and j == 16:
                a('s_barrier')
            if last:
                a(f's_mul_i32 s7, s{sWH}, 102400')
                for nt in range(1, 4):
                    a(f's_xor_b32 s4, s{sW}, {nt}')
                    a('s_mul_i32 s4, s4, 15360')
                    a(f's_add_u32 s4, s4, {(nt - 1) * 5120}')
                    a('s_add_u32 s4, s4, s7')
                    a(f'v_add_u32 v{24 + nt}, s4, v{vF}')
                wr = [(nt, t) for nt in (1, 2, 3) for t in range(5)]
            hk = Hooks(items)
            k = 0
            ILV = os.environ.get('ILVB', 'fine') if self.kind == 'B' else os.environ.get('ILVG', 'burst')
            for nt in (1, 2, 3, 0):
                for t in range(5):
                    acc = V(ACC(t, nt), 4)
                    c = '0' if j == 0 else acc
                    fr = V(self.reg[(j, 'a', t)], 4)
                    tf = V(TF(j, nt) if j < n else self.reg[(j, 'b', nt)], 4)
                    if self.kind == 'B':
                        a(f'v_mfma_f32_16x16x32_bf16 {acc}, {tf}, {fr}, {c}')
                    else:
                        a(f'v_mfma_f32_16x16x32_bf16 {acc}, {fr}, {tf}, {c}')
                    k += 1
                    if last and k > 5:
                        wn, wt = wr.pop(0)
                        a(f'ds_write_b128 v{24 + wn}, {V(ACC(wt, wn), 4)} offset:{wt * 1024}')
                    if ILV == 'fine':
                        if k % 4 != 0:
                            hk.run()
                    elif ILV == 'burst':
                        if k <= 4 and j + 1 < n:
                            hk.run()
                    elif ILV == 'two':
                        if k <= 4 and j + 1 < n:
                            hk.run()
                        if k == 10:
                            hk.run(4)
                    elif ILV == 'pre':
                        if k == 1:
                            hk.flush()
            hk.flush()
            self.free += [r for key, r in self.reg.items() if key[0] == j]
            if n - 2 <= j < n:
                self.free += [TF(j, nt) for nt in range(4)]

    def reduce(self):
        a = self.a
        a(f's_mul_i32 s4, s{sW}, 15360')
        a('s_add_u32 s4, s4, s7')
        a(f'v_add_u32 v24, s4, v{vF}')
        a.wait_lg0()
        a('s_barrier')
        rtok = {}
        for nt in range(1, 4):
            for t in range(5):
                rtok[(nt, t)] = a(f'ds_read_b128 {V(ACC(t, nt), 4)}, v24 offset:{(nt - 1) * 5120 + t * 1024}')
        for nt in range(1, 4):
            for t in range(5):
                a.wait(rtok[(nt, t)])
                for h in range(2):
                    d = V(ACC(t, 0) + 2 * h, 2)
                    a(f'v_pk_add_f32 {d}, {d}, {V(ACC(t, nt) + 2 * h, 2)}')


def frag10_addr(a, m, hi_add, step, base_s, vrd, vrd_base, vst):
    a(f's_add_u32 s4, s{sW}, {4 * m}')
    a('s_min_u32 s5, s4, 9')
    a('s_cmp_ge_u32 s5, 5')
    a(f's_cselect_b32 s6, {hi_add}, 0')
    a(f's_mul_i32 s5, s5, {step}')
    a('s_add_u32 s5, s5, s6')
    a(f'v_add_u32 v{vrd}, s5, v{vrd_base}')
    a('s_lshl_b32 s5, s4, 10')
    a(f's_add_u32 s5, s5, s{base_s}')
    a('s_cmp_ge_u32 s4, 10')
    a(f's_cselect_b32 s5, {OOB}, s5')
    a(f'v_lshl_add_u32 v{vst}, v{vL}, 4, s5')


NTP = ' nt' if 'ntp' in EXP else ''
FIRST = int(os.environ.get('FIRST', '25'))
vTH = 40


def g_common(a):
    a(f'v_lshlrev_b32 v{vF}, 4, v{vL}')
    a(f'v_add_u32 v{vF + 1}, 4096, v{vF}')
    a(f's_lshl_b32 s{sGM0}, s{sW}, 12')
    a(f'v_bfe_u32 v25, v{vGR}, 1, 2')
    a(f'v_xor_b32 v25, s{sW}, v25')
    a(f'v_lshlrev_b32 v26, 7, v{vGR}')
    a(f'v_lshl_add_u32 v26, v{vC}, 3, v26')
    a(f'v_add_u32 v26, s{sGM0}, v26')
    for nt in range(4):
        a(f'v_xor_b32 v27, {nt}, v25')
        a(f'v_lshl_add_u32 v{vT + nt}, v27, 5, v26')


def tag_ready(a):
    a('s_waitcnt lgkmcnt(0)')
    a(f's_add_u32 s{sTAG}, s{sTAG}, 1')


def role_a(a):
    a(f's_and_b32 s4, s{sID}, 7')
    a(f's_lshr_b32 s5, s{sID}, 3')
    a('s_and_b32 s6, s4, 1')
    a('s_lshl_b32 s6, s6, 2')
    a('s_and_b32 s7, s5, 3')
    a(f's_add_u32 s{sHG}, s6, s7')
    a('s_lshr_b32 s6, s4, 1')
    a('s_lshl_b32 s6, s6, 2')
    a('s_lshr_b32 s7, s5, 2')
    a('s_add_u32 s6, s6, s7')
    a(f's_mov_b32 s{sRB}, s6')
    a('s_lshl_b32 s6, s6, 3')
    a(f's_add_u32 s15, s6, s{sHG}')
    a('s_lshl_b32 s12, s15, 1')
    a(f's_add_u32 s12, s12, s{sWH}')
    X = 156
    a('s_lshl_b32 s4, s12, 2')
    a(f's_add_u32 s4, s4, s{sW}')
    a('s_mul_i32 s4, s4, 2560')
    a(f'v_mul_u32_u24 v24, 40, v{vL}')
    xt = []
    for k in range(5):
        xt.append(a(f'buffer_load_dwordx2 {V(X + 2 * k, 2)}, v24, {S(sX, 4)}, s4 offen offset:{8 * k}{NTP}'))
    srd(a, sWQ, P_WQKV, D_ * 3 * D_ * 2)
    vLN = 8
    a(f'v_lshlrev_b32 v{vLN}, 4, v{vL}')
    a(f'v_add_u32 v{vLN + 1}, 4096, v{vLN}')
    a(f's_mul_i32 s{sM0B}, s{sW8}, 5120')
    a('s_lshl_b32 s10, s15, 2')
    a(f's_add_u32 s10, s10, s{sW}')
    a('s_mul_i32 s4, s10, 1093')
    a('s_lshr_b32 s4, s4, 16')
    a('s_mul_i32 s5, s4, 60')
    a('s_sub_u32 s5, s10, s5')
    a('s_lshr_b32 s6, s5, 1')
    a('s_and_b32 s7, s5, 1')
    a('s_add_u32 s7, s7, 1')
    a('s_sub_u32 s8, s5, 40')
    a('s_cmp_ge_u32 s5, 40')
    a('s_cselect_b32 s6, s8, s6')
    a('s_cselect_b32 s7, 0, s7')
    a(f's_mul_i32 s6, s6, {32 * 3840}')
    a('s_mul_i32 s7, s7, 1280')
    a('s_mul_i32 s4, s4, 160')
    a('s_add_u32 s6, s6, s7')
    a('s_add_u32 s6, s6, s4')
    a(f's_cmp_eq_u32 s{sWH}, 0')
    a('s_cselect_b32 s10, 480, s10')
    dma160_voffs(a, 12, 3840, True, 18)
    a('s_cmp_ge_u32 s10, 480')
    a(f's_cselect_b32 s7, {OOB}, 0')
    for q in range(5):
        a(f'v_add_u32 v{12 + q}, s7, v{12 + q}')
    utok = dma160(a, 12, sWQ, 6, sM0B, 0, NTP)
    a(f's_mul_i32 s13, s{sWH}, 24576')
    a('s_add_u32 s13, s13, 65536')
    a('s_add_u32 s14, s13, 12288')
    srd(a, sAUX, P_WPHI, 32 * 800)
    a(f's_mul_i32 s6, s{sHG}, 3200')
    a(f's_lshl_b32 s7, s{sW}, 10')
    a('s_add_u32 s6, s6, s7')
    a(f'v_lshl_add_u32 v10, v{vL}, 4, s6')
    a(f's_add_u32 m0, s7, {L_WPHI}')
    a(f'buffer_load_dwordx4 v10, {S(sAUX, 4)}, 0 offen lds')
    for k in range(4):
        a(f'v_mov_b32 v{44 + k}, 0')
    a(f'v_lshlrev_b32 v18, 4, v{vTH}')
    a(f'v_add_u32 v18, {L_ZERO}, v18')
    a('ds_write_b128 v18, v[44:47]')
    a(f'v_mov_b32 v10, {L_CNT}')
    a('v_mov_b32 v11, 0')
    a('ds_write2_b32 v10, v11, v11 offset0:0 offset1:1')
    vONE, vS, vRS, vNB = 34, 36, 168, 170
    a(f'v_mov_b32 v{vONE}, 0x3f803f80')
    for k in range(4):
        a(f'v_mov_b32 v{vS + k}, 0')
    a('s_waitcnt lgkmcnt(0)')
    a(f's_add_u32 s{sTAG}, s{sTAG}, 1')
    a.wait(xt[4])
    stamp(a, 'x')
    for k in range(10):
        a(f'v_dot2c_f32_bf16 v{vS + (k & 1)}, v{X + k}, v{vONE}')
        a(f'v_dot2c_f32_bf16 v{vS + 2 + (k & 1)}, v{X + k}, v{X + k}')
    a(f'v_add_f32 v{vS}, v{vS}, v{vS + 1}')
    a(f'v_add_f32 v{vS + 2}, v{vS + 2}, v{vS + 3}')
    for sh in (8, 4, 2, 1):
        for r in (vS, vS + 2):
            a(f'v_add_f32_dpp v{r}, v{r}, v{r} row_ror:{sh} row_mask:0xf bank_mask:0xf')
    for r in (vS, vS + 2):
        a(f'v_mov_b32 v{r + 1}, v{r}')
        a(f'v_permlane16_swap_b32 v{r}, v{r + 1}')
        a(f'v_add_f32 v{r}, v{r}, v{r + 1}')
    ln_scales(a, vS, vRS, vNB)
    a(f'v_mul_f32 v{vS + 1}, v{vRS}, v{vRS}')
    a(f'v_mov_b32 v{vS + 3}, {fbits(1e-5)}')
    a(f'v_fmac_f32 v{vS + 3}, v{vS + 1}, v{vS + 2}')
    a(f'v_rsq_f32 v{vS + 2}, v{vS + 3}')
    U = 172
    for k in range(10):
        a(f'v_lshlrev_b32 v{U + 2 * k}, 16, v{X + k}')
        a(f'v_and_b32 v{U + 2 * k + 1}, 0xffff0000, v{X + k}')
    for k in range(10):
        a(f'v_pk_fma_f32 {V(U + 2 * k, 2)}, {V(U + 2 * k, 2)}, {V(vRS, 2)}, {V(vNB, 2)} op_sel_hi:[1,0,0]')
    XQ = 192
    for k in range(10):
        a(f'v_cvt_pk_bf16_f32 v{XQ + k}, v{U + 2 * k}, v{U + 2 * k + 1}')
    for k in range(10):
        a(f'v_pk_mul_f32 {V(U + 2 * k, 2)}, {V(U + 2 * k, 2)}, {V(vS + 2, 2)} op_sel_hi:[1,0]')
    for k in range(10):
        a(f'v_cvt_pk_bf16_f32 v{X + k}, v{U + 2 * k}, v{U + 2 * k + 1}')
    a(f's_mul_i32 s4, s{sW}, {2 * 1296}')
    a('s_add_u32 s4, s4, s13')
    a(f'v_mul_u32_u24 v24, 40, v{vL}')
    a(f'v_lshrrev_b32 v25, 5, v{vL}')
    a('v_lshl_add_u32 v24, v25, 4, v24')
    a('v_add_u32 v24, s4, v24')
    for k in range(5):
        a(f'ds_write_b64 v24, {V(XQ + 2 * k, 2)} offset:{8 * k}')
    a(f'v_and_b32 v25, 7, v{vTH}')
    a(f'v_lshrrev_b32 v26, 3, v{vTH}')
    a('v_mul_u32_u24 v28, 1296, v25')
    a('v_lshl_add_u32 v28, v26, 4, v28')
    a('v_add_u32 v28, s13, v28')
    a('v_lshlrev_b32 v29, 8, v26')
    a('v_lshl_add_u32 v29, v25, 4, v29')
    a(f's_lshr_b32 s4, s12, 1')
    a('s_mul_i32 s4, s4, 20480')
    a(f's_and_b32 s5, s12, 1')
    a('s_lshl_b32 s5, s5, 7')
    a('s_add_u32 s4, s4, s5')
    a(f's_add_u32 s4, s4, {XF_OFF}')
    a('v_add_u32 v29, s4, v29')
    a('v_add_u32 v30, 8192, v29')
    a(f's_cmp_ge_u32 s{sW}, 2')
    a(f's_cselect_b32 s4, {OOB}, 16384')
    a('v_add_u32 v31, s4, v29')
    a(f's_mul_i32 s4, s{sW}, 2560')
    a('s_add_u32 s4, s4, s14')
    a(f'v_mul_u32_u24 v24, 40, v{vL}')
    a('v_add_u32 v24, s4, v24')
    for k in range(5):
        a(f'ds_write_b64 v24, {V(X + 2 * k, 2)} offset:{8 * k}')
    a(f'v_mul_u32_u24 v24, 1280, v{vR}')
    a(f'v_mul_u32_u24 v25, 160, v{vG}')
    a('v_add_u32 v24, v24, v25')
    a(f'v_mul_u32_u24 v25, 40, v{vC}')
    a('v_add_u32 v24, v24, v25')
    a('v_add_u32 v24, s14, v24')
    a(f'v_mul_u32_u24 v25, {64 * 5120}, v{vG}')
    a(f'v_lshl_add_u32 v25, v{vI}, 4, v25')
    a(f's_lshr_b32 s4, s12, 2')
    a('s_mul_i32 s4, s4, 5120')
    a(f's_and_b32 s5, s12, 3')
    a('s_lshl_b32 s5, s5, 8')
    a('s_add_u32 s4, s4, s5')
    a(f's_add_u32 s8, s4, {HF_OFF}')
    a.wait_lg0()
    a('s_barrier')
    ht = []
    for m in range(3):
        ht.append(a(f'ds_read_b128 {V(XQ + 4 * m, 4)}, v28 offset:{512 * m}'))
    for m in range(3):
        a.wait(ht[m])
        a(f'buffer_store_dwordx4 {V(XQ + 4 * m, 4)}, v{29 + m}, {S(sWS, 4)}, 0 offen sc1')
    ht = []
    for m in range(3):
        a(f's_add_u32 s4, s{sW}, {4 * m}')
        a('s_min_u32 s5, s4, 9')
        a('s_cmp_ge_u32 s5, 5')
        a(f's_cselect_b32 s6, {640 - 40}, 0')
        a(f's_cselect_b32 s7, {4 * 64 * 5120 - 5120}, 0')
        a('s_lshl_b32 s5, s5, 3')
        a('s_add_u32 s5, s5, s6')
        a('v_add_u32 v26, s5, v24')
        a(f'ds_read_b64_tr_b16 {V(U + 4 * m, 2)}, v26')
        ht.append(a(f'ds_read_b64_tr_b16 {V(U + 4 * m + 2, 2)}, v26 offset:{4 * 1280}'))
        a('s_lshl_b32 s5, s4, 10')
        a('s_add_u32 s5, s5, s7')
        a('s_add_u32 s5, s5, s8')
        a('s_cmp_ge_u32 s4, 10')
        a(f's_cselect_b32 s5, {OOB}, s5')
        a(f'v_add_u32 v{34 + m}, s5, v25')
    for m in range(3):
        a.wait(ht[m])
        a(f'buffer_store_dwordx4 {V(U + 4 * m, 4)}, v{34 + m}, {S(sWS, 4)}, 0 offen sc1')
    hst = ('vm', a.vm_issued - 1)
    a(f'v_mul_u32_u24 v29, 160, v{vGR}')
    a(f'v_mul_u32_u24 v24, 40, v{vC}')
    a('v_add_u32 v29, v29, v24')
    a(f'v_add_u32 v29, s{sM0B}, v29')
    a('s_mul_i32 s4, s10, 5120')
    a(f's_add_u32 s4, s4, {WF_OFF}')
    a('s_cmp_ge_u32 s10, 480')
    a(f's_cselect_b32 s4, {OOB}, s4')
    a(f'v_add_u32 v24, s4, v{vLN}')
    a(f'v_add_u32 v25, s4, v{vLN + 1}')
    a(f's_lshl_b32 s5, s10, {FSH}')
    a(f's_add_u32 s5, s5, {FU_OFF}')
    a('s_cmp_ge_u32 s10, 480')
    a(f's_cselect_b32 s10, {OOB}, s5')
    a.wait(utok)
    ut = []
    for t in range(5):
        a(f'ds_read_b64_tr_b16 {V(UP(t), 2)}, v29 offset:{8 * t}')
        ut.append(a(f'ds_read_b64_tr_b16 {V(UP(t) + 2, 2)}, v29 offset:{8 * t + 2560}'))
    for t in range(5):
        a.wait(ut[t])
        vo, off = (24, t * 1024) if t < 4 else (25, 0)
        a(f'buffer_store_dwordx4 {V(UP(t), 4)}, v{vo}, {S(sWS, 4)}, 0 offen offset:{off} sc1')
    a(f's_lshl_b32 s4, s{sWH}, 2')
    a(f's_add_u32 s4, s4, {L_CNT}')
    a('v_mov_b32 v10, s4')
    a('v_mov_b32 v11, 1')
    a.wait(hst)
    a('s_mov_b64 exec, 1')
    a('ds_add_rtn_u32 v11, v10, v11')
    a('s_mov_b64 exec, -1')
    a.wait_lg0()
    a('v_readfirstlane_b32 s5, v11')
    a(f's_lshl_b32 s4, s12, {FSH}')
    a(f's_add_u32 s4, s4, {FH_OFF}')
    a('s_cmp_lg_u32 s5, 3')
    a('s_cbranch_scc1 L_nofh')
    flag_set(a, 4)
    a.label('L_nofh')
    a.wait_vm0()
    flag_set(a, 10)
    stamp(a, 'prep')
    a(f's_mov_b32 s{sL}, {fbits(LOG2E)}')
    a(f's_mov_b32 s{sL + 1}, {fbits(LOG2E)}')
    a(f's_mov_b32 s{sNL}, {fbits(-LOG2E)}')
    a(f's_mov_b32 s{sNL + 1}, {fbits(-LOG2E)}')
    a(f's_mul_i32 s10, s{sHG}, 60')
    a(f's_lshl_b32 s4, s10, {FSH}')
    a(f's_add_u32 s4, s4, {FU_OFF}')
    a(f'v_lshl_add_u32 v20, v{vL}, {FSH}, s4')
    a(f's_lshl_b32 s11, s{sRB}, 2')
    a(f's_add_u32 s11, s11, s{sW}')
    a(f's_lshl_b32 s4, s11, {FSH + 2}')
    a(f's_add_u32 s4, s4, {FH_OFF}')
    a(f'v_lshl_add_u32 v21, v{vC}, {FSH}, s4')
    a(f'v_cmp_gt_u32 vcc, 60, v{vL}')
    a('v_cndmask_b32 v20, v21, v20, vcc')
    a(f's_add_u32 s10, s10, s{sW}')
    a('s_mul_i32 s10, s10, 5120')
    a(f's_add_u32 s10, s10, {WF_OFF}')
    a(f's_add_u32 s9, s10, {40 * 5120}')
    a(f's_mul_i32 s{sM0B}, s{sW}, 5120')
    a('s_mul_i32 s11, s11, 40960')
    a(f's_add_u32 s11, s11, {XF_OFF}')
    a(f'v_add_u32 v10, 20480, v{vLN}')
    a(f'v_add_u32 v26, {L_RING}, v{vLN}')
    a(f'v_add_u32 v27, 61440, v{vLN}')

    def wphi_frags(WPF, wbase, zbase):
        a(f'v_mul_u32_u24 v22, 800, v{vG}')
        a(f'v_mul_u32_u24 v23, 40, v{vR}')
        a('v_add_u32 v22, v22, v23')
        a(f'v_add_u32 v22, {wbase}, v22')
        a(f'v_mov_b32 v23, {zbase}')
        a(f'v_cmp_eq_u32 vcc, v{vG}, v{vC}')
        a('v_cndmask_b32 v22, v23, v22, vcc')
        for t in range(5):
            for d4 in range(5):
                a(f'ds_read_b64_tr_b16 {V(WPF(t, d4 // 2) + 2 * (d4 % 2), 2)}, v22 offset:{4 * d4 * 40 + 8 * t}')

    Q = lambda k: 48 + 4 * k
    WPF = lambda t, ks: Q(2 * t + ks) if ks < 2 else Q(10 + t // 2) + 2 * (t % 2)
    a('s_barrier')
    wphi_frags(WPF, L_WPHI, L_ZERO)
    a.wait_lg0()
    a('s_barrier')
    flag_check(a, flag_issue(a, 20, 21), 20, 21)
    stamp(a, 'go')

    def xload(dst, ks, z):
        off = f' offset:{(ks % 4) * 1024}' if ks % 4 else ''
        t = a(f'buffer_load_dwordx4 {V(dst, 4)}, v{vLN if z == 0 else 10}, {S(sWS, 4)}, s11 offen{off} sc1')
        if ks % 4 == 3 and z == 1:
            a('s_add_u32 s11, s11, 4096')
        return t

    a(f's_cmp_lg_u32 s{sWH}, 0')
    a('s_cbranch_scc1 L_a_upper')
    at_split = a.save()
    a('s_setprio 2')
    AC = lambda k, z: Q(13 + 2 * k + z)
    XR = lambda ks, z: Q(33 + (ks % 6) * 2 + z)
    FW = lambda n: Q(45 + n % 7)
    xtok = {}
    for ks in range(5):
        for z in range(2):
            xtok[ks] = xload(XR(ks, z), ks, z)
    a('s_barrier')
    stamp(a, 'a0')
    WIN, NF = 6, 200
    ftok = {}

    def read_frag(n):
        d, r = divmod(n, 20)
        ftok[n] = a(f'ds_read_b128 {V(FW(n), 4)}, v26 offset:{(d % 3) * 20480 + r * 1024}')

    for n in range(WIN):
        read_frag(n)
    for n in range(NF):
        nn = n + WIN
        if nn < NF:
            if nn % 20 == 0:
                a.wait_lg0()
                a('s_barrier')
                if (nn // 20) % 3 == 0:
                    stamp(a, f'a{nn // 20}')
            read_frag(nn)
        ks, k = divmod(n, 10)
        a.wait(ftok[n], xtok[ks])
        for z in range(2):
            c = '0' if ks == 0 else V(AC(k, z), 4)
            a(f'v_mfma_f32_16x16x32_bf16 {V(AC(k, z), 4)}, {V(FW(n), 4)}, {V(XR(ks, z), 4)}, {c}')
        if k in (2, 6) and ks + 5 < 20:
            xtok[ks + 5] = xload(XR(ks + 5, k // 4), ks + 5, k // 4)
    a('s_barrier')
    stamp(a, 'aend')
    vSA, vKA, vKO = 8, 9, 12
    a(f's_lshl_b32 s4, s{sW}, 5')
    a(f'v_lshl_add_u32 v{vSA}, v{vG}, 7, v{vI}')
    a(f'v_add_u32 v{vSA}, s4, v{vSA}')
    a(f'v_mul_u32_u24 v{vSA}, 120, v{vSA}')
    a(f'v_add_u32 v{vSA}, {L_RING}, v{vSA}')
    for z in range(2):
        for t in range(5):
            r = AC(5 + t, z)
            a(f'v_cvt_pk_bf16_f32 v{r}, v{r}, v{r + 1}')
            a(f'v_cvt_pk_bf16_f32 v{r + 1}, v{r + 2}, v{r + 3}')
            a(f'ds_write_b64 v{vSA}, {V(r, 2)} offset:{z * 16 * 120 + 80 + 8 * t}')
    PK = [Q(33), Q(34), Q(35)]
    EN5 = [Q(36 + c) for c in range(5)]
    for z in range(2):
        E5 = [AC(t, z) for t in range(5)]
        P5 = [Q(41 + 5 * z + c) for c in range(5)]
        featmap(a, E5, PK, WPF, P5, E5, EN5, 32)
        for c in range(10):
            a(f'ds_write_b64 v{vSA}, {V(P5[c // 2] + 2 * (c % 2), 2)} offset:{z * 16 * 120 + 8 * c}')
    stamp(a, 'fm')
    a(f's_mul_i32 s4, s{sW}, {128 * 120}')
    a(f's_add_u32 s4, s4, {L_RING}')
    a(f'v_mul_u32_u24 v{vKA}, 120, v{vGR}')
    a(f'v_lshl_add_u32 v{vKA}, v{vC}, 3, v{vKA}')
    a(f'v_add_u32 v{vKA}, s4, v{vKA}')
    a(f's_lshl_b32 s4, s{sHG}, 2')
    a(f's_add_u32 s4, s4, s{sW}')
    a('s_lshl_b32 s4, s4, 4')
    a(f's_add_u32 s13, s4, s{sRB}')
    a('s_mul_i32 s4, s13, 6144')
    a(f's_add_u32 s4, s4, {KV_OFF}')
    a(f'v_lshl_add_u32 v{vKO}, v{vL}, 4, s4')
    a('s_movk_i32 s12, 0x1000')
    a(f'v_mov_b32 v11, {OOB}')
    a(f'v_cmp_gt_u32 vcc, 8, v{vI}')
    a(f'v_cndmask_b32 v{vKO + 1}, v11, v{vKO}, vcc')
    a(f'v_cmp_gt_u32 vcc, 2, v{vG}')
    a(f'v_cndmask_b32 v{vKO + 2}, v11, v{vKO}, vcc')
    a(f'v_cndmask_b32 v{vKO + 3}, v11, v{vKO + 1}, vcc')
    a(f's_lshl_b32 s13, s13, {FSH}')
    a(f's_add_u32 s10, s13, {FK_OFF}')
    a('v_mov_b32 v11, 0x3f803f80')
    a(f'v_cmp_eq_u32 vcc, 1, v{vR}')
    a.wait_lg0()
    a('s_barrier')
    ktok = {}
    OPQ = lambda kk, x: Q(13 + kk * 5 + x)
    KVA = [Q(k) for k in range(6)]

    def kv_read(kk):
        for x in range(5):
            col = 32 * x if x < 3 else 80 + 32 * (x - 3)
            a(f'ds_read_b64_tr_b16 {V(OPQ(kk, x), 2)}, v{vKA} offset:{kk * 32 * 120 + col}')
            ktok[kk] = a(f'ds_read_b64_tr_b16 {V(OPQ(kk, x) + 2, 2)}, v{vKA} offset:{kk * 32 * 120 + 16 * 120 + col}')

    kv_read(0)
    for kk in range(4):
        if kk + 1 < 4:
            kv_read(kk + 1)
        a.wait(ktok[kk])
        for j in range(4):
            a(f'v_cndmask_b32 v{OPQ(kk, 4) + j}, v{OPQ(kk, 4) + j}, v11, vcc')
        for et in range(2):
            for ft in range(3):
                d = V(KVA[ft * 2 + et], 4)
                a(f'v_mfma_f32_16x16x32_bf16 {d}, {V(OPQ(kk, 3 + et), 4)}, {V(OPQ(kk, ft), 4)}, {"0" if kk == 0 else d}')
    for ft in range(3):
        for et in range(2):
            vo = vKO + (1 if ft == 2 else 0) + (2 if et == 1 else 0)
            so = 's12' if ft == 2 else '0'
            a(f'buffer_store_dwordx4 {V(KVA[ft * 2 + et], 4)}, v{vo}, {S(sWS, 4)}, {so} offen offset:{(ft % 2) * 2048 + et * 1024} sc1')
    a.wait_vm0()
    flag_set(a, 10)
    a(f's_mov_b32 s10, {OOB}')
    a('s_barrier')
    a('s_branch L_join')

    a.label('L_a_upper')
    a.restore(at_split)
    wtok = {}

    def dma5(so, lds):
        a(f's_add_u32 m0, s{sM0B}, {lds}')
        for q in range(4):
            off = f' offset:{q * 1024}' if q else ''
            a(f'buffer_load_dwordx4 v{vLN}, {S(sWS, 4)}, s{so} offen{off} sc1 lds')
        a(f's_add_u32 m0, s{sM0B}, {lds + 4096}')
        t = a(f'buffer_load_dwordx4 v{vLN + 1}, {S(sWS, 4)}, s{so} offen sc1 lds')
        a(f's_add_u32 s{so}, s{so}, 20480')
        return t

    NXR = 12
    XQ_ = lambda ks, z: Q(13 + (ks % NXR) * 2 + z)
    AQ = lambda t, z: Q(37 + 2 * t + z)
    FQ = lambda n: Q(47 + n % 5)
    xtok = {}
    for d in range(3):
        wtok[d] = dma5(10, L_RING + d * 20480)
    for d in range(10):
        a.wait(wtok[d])
        a('s_barrier')
        if 1 <= d and d + 2 < 10:
            wtok[d + 2] = dma5(10, L_RING + ((d + 2) % 3) * 20480)
        if d < 5:
            qtok = dma5(9, L_WQ + d * 20480)
        if 4 <= d < 10:
            for ks in (2 * (d - 4), 2 * (d - 4) + 1):
                for z in range(2):
                    xtok[ks] = xload(XQ_(ks, z), ks, z)
    a.wait(qtok)
    a('s_barrier')
    ftok = {}

    def read_q(n):
        off = n * 1024
        ftok[n] = a(f'ds_read_b128 {V(FQ(n), 4)}, v{vLN if off < 61440 else 27} offset:{off % 61440}')

    QBAR = int(os.environ.get('QBAR', '-1'))
    if QBAR < 0:
        a('s_barrier')
    for n in range(4):
        read_q(n)
    for n in range(100):
        if n + 4 < 100:
            read_q(n + 4)
        ks, t = divmod(n, 5)
        a.wait(ftok[n], xtok[ks])
        for z in range(2):
            c = '0' if ks == 0 else V(AQ(t, z), 4)
            a(f'v_mfma_f32_16x16x32_bf16 {V(AQ(t, z), 4)}, {V(FQ(n), 4)}, {V(XQ_(ks, z), 4)}, {c}')
        if t in (1, 3) and ks >= 1 and ks - 1 + NXR < 20:
            xtok[ks - 1 + NXR] = xload(XQ_(ks - 1 + NXR, t // 2), ks - 1 + NXR, t // 2)
        if n == QBAR:
            a('s_barrier')
    a('s_barrier')
    stamp(a, 'aend')
    PK = [Q(13), Q(14), Q(15)]
    EN5 = [Q(16 + c) for c in range(5)]
    PP = [[Q(21 + 5 * z + c) for c in range(5)] for z in range(2)]
    for z in range(2):
        E5 = [AQ(t, z) for t in range(5)]
        featmap(a, E5, PK, WPF, PP[z], E5, EN5, 32)
    stamp(a, 'fm')
    a('s_setprio 3')
    a(f's_mul_i32 s6, s{sW}, 10240')
    a(f's_add_u32 s6, s6, {L_RING}')
    a(f'v_lshlrev_b32 v31, 11, v{vG}')
    a(f'v_lshl_add_u32 v31, v{vR}, 3, v31')
    a('v_mov_b32 v21, 8192')
    a(f'v_cmp_eq_u32 vcc, v{vG}, v{vC}')
    a('v_cndmask_b32 v31, v21, v31, vcc')
    a('v_add_u32 v31, s6, v31')
    for k in range(4):
        a(f'v_mov_b32 v{44 + k}, 0')
    a(f'v_add_u32 v21, s6, v{vLN}')
    a('ds_write_b128 v21, v[44:47] offset:8192')
    a('ds_write_b128 v21, v[44:47] offset:9216')
    a(f's_lshl_b32 s4, s{sHG}, {4 + FSH}')
    a(f's_add_u32 s4, s4, {FR_OFF}')
    a(f'v_lshl_add_u32 v20, v{vI}, {FSH}, s4')
    a(f'v_lshlrev_b32 v8, 4, v{vL}')
    a('v_add_u32 v9, 4096, v8')
    a(f'v_lshlrev_b32 v10, 3, v{vL}')
    a(f's_lshl_b32 s5, s{sHG}, 13')
    a(f's_add_u32 s5, s5, {KB_OFF}')
    a(f's_lshl_b32 s7, s{sRB}, 1')
    a(f's_lshr_b32 s8, s{sW}, 1')
    a('s_add_u32 s7, s7, s8')
    a(f's_and_b32 s8, s{sW}, 1')
    a('s_lshl_b32 s8, s8, 1')
    a(f's_lshr_b32 s12, s{sHG}, 1')
    a('s_mul_i32 s12, s12, 5')
    a('s_mul_i32 s13, s7, 20')
    a('s_add_u32 s12, s12, s13')
    a('s_lshl_b32 s12, s12, 2')
    a('s_add_u32 s12, s12, s8')
    a('s_lshl_b32 s12, s12, 10')
    a(f's_add_u32 s12, s12, {OF_OFF}')
    a(f's_and_b32 s13, s{sHG}, 1')
    a(f's_mul_i32 s14, s13, {3 * 4096}')
    a('s_add_u32 s14, s14, s12')
    a('s_lshl_b32 s13, s13, 9')
    a('s_add_u32 s12, s12, s13')
    a(f's_add_u32 s12, s12, {2 * 4096}')
    a('s_lshl_b32 s13, s7, 3')
    a(f's_add_u32 s13, s13, s{sHG}')
    a('s_lshl_b32 s13, s13, 2')
    a('s_add_u32 s13, s13, s8')
    a(f's_lshl_b32 s13, s13, {FSH}')
    a(f's_add_u32 s13, s13, {FO_OFF}')
    flag_check(a, flag_issue(a, 20, 21), 20, 21, int(os.environ.get('RSLEEP', '8')))
    stamp(a, 'rok')
    for hh in range(2):
        a(f's_add_u32 m0, s6, {4096 * hh}')
        for q in range(4):
            off = f' offset:{q * 1024}' if q else ''
            a(f'buffer_load_dwordx4 v{8 + hh}, {S(sWS, 4)}, s5 offen{off} sc1 lds')
    a.wait_all()
    OA = [[Q(31 + k) for k in range(6)], [Q(37 + k) for k in range(6)]]
    KF = lambda ks, t: Q((ks % 2) * 6 + t)
    otok = {}

    def o_read(ks):
        for t in range(6):
            a(f'ds_read_b64_tr_b16 {V(KF(ks, t), 2)}, v31 offset:{kb_pos(8 * ks, t)}')
            otok[ks] = a(f'ds_read_b64_tr_b16 {V(KF(ks, t) + 2, 2)}, v31 offset:{kb_pos(8 * ks + 4, t)}')

    o_read(0)
    for ks in range(5):
        if ks + 1 < 5:
            o_read(ks + 1)
        a.wait(otok[ks])
        for z in range(2):
            for t in range(6):
                d = V(OA[z][t], 4)
                a(f'v_mfma_f32_16x16x32_bf16 {d}, {V(KF(ks, t), 4)}, {V(PP[z][ks], 4)}, {"0" if ks == 0 else d}')
    for z in range(2):
        O = OA[z]
        PO = PK if z == 0 else [Q(16), Q(17), Q(18)]
        a(f'v_add_f32 v{O[5]}, {fbits(1e-6)}, v{O[5]}')
        a(f'v_rcp_f32 v{O[5]}, v{O[5]}')
        for t in range(5):
            for h in range(2):
                a(f'v_pk_mul_f32 {V(O[t] + 2 * h, 2)}, {V(O[t] + 2 * h, 2)}, {V(O[5], 2)} op_sel_hi:[1,0]')
        for k in range(10):
            t, j = divmod(2 * k, 4)
            a(f'v_cvt_pk_bf16_f32 v{PO[k // 4] + k % 4}, v{O[t] + j}, v{O[t] + j + 1}')
        off = f' offset:{1024 * z}' if z else ''
        a(f'buffer_store_dwordx4 {V(PO[0], 4)}, v8, {S(sWS, 4)}, s14 offen{off} sc1')
        a(f'buffer_store_dwordx4 {V(PO[1], 4)}, v9, {S(sWS, 4)}, s14 offen{off} sc1')
        a(f'buffer_store_dwordx2 {V(PO[2], 2)}, v10, {S(sWS, 4)}, s12 offen{off} sc1')
    a.wait_vm0()
    flag_set(a, 13)
    a(f's_cmp_lg_u32 s{sID}, 0')
    a('s_cbranch_scc1 L_a_done')
    a(f's_cmp_lg_u32 s{sW}, 3')
    a('s_cbranch_scc1 L_a_done')
    a(f'v_and_b32 v20, 31, v{vL}')
    a('v_min_u32 v20, 26, v20')
    a(f'v_and_b32 v21, 32, v{vL}')
    a('v_add_u32 v20, v20, v21')
    a(f'v_lshlrev_b32 v20, {FSH + 2}, v20')
    for k in range(4):
        a(f'v_add_u32 v22, {FG_OFF + (k * 256 << FSH)}, v20')
        flag_check(a, flag_issue(a, 22, 21), 22, 21, 12)
    a(f'v_lshlrev_b32 v20, {FSH}, v{vL}')
    for base in (FR_OFF, FR_OFF + (64 << FSH)):
        a(f'v_add_u32 v22, {base}, v20')
        flag_check(a, flag_issue(a, 22, 21), 22, 21, 12)
    a(f'v_and_b32 v20, 31, v{vL}')
    a(f'v_lshlrev_b32 v20, {FSH}, v20')
    a(f'v_add_u32 v22, {FW_OFF}, v20')
    flag_check(a, flag_issue(a, 22, 21), 22, 21, 12)
    a(f's_mov_b32 s10, {EP_OFF}')
    flag_set(a, 10)
    a.label('L_a_done')
    stamp_flush(a, 'end')
    a('s_endpgm')


def role_b(a):
    if 'map4' in EXP:
        a(f's_lshr_b32 s{sBCB}, s6, 2')
        a('s_and_b32 s9, s6, 3')
        a('s_lshl_b32 s6, s9, 1')
    else:
        a('s_cmp_ge_u32 s6, 54')
        a('s_cselect_b32 s7, 54, 0')
        a('s_cselect_b32 s8, 4, 0')
        a('s_sub_u32 s6, s6, s7')
        a(f's_lshr_b32 s{sBCB}, s6, 1')
        a('s_and_b32 s9, s6, 1')
        a('s_lshl_b32 s6, s9, 1')
        a('s_add_u32 s6, s6, s8')
    PR = 24 if 'map4' in EXP else 48
    a(f's_add_u32 s{sBDB}, s6, s{sWH}')
    srd(a, sW1, P_W1, S_ * F_ * 2)
    g_common(a)
    gB = GGemm(a, 'B')
    gB.setup()
    BPRE = int(os.environ.get('BPRE', '10'))
    for j in range(BPRE):
        Hooks(gB.dma_items(j)).flush()

    def b_extra(j):
        return []

    a('s_lshl_b32 s4, s9, 1')
    a(f's_add_u32 s4, s4, s{sWH}')
    a(f's_mul_i32 s4, s4, {PR}')
    a(f's_lshl_b32 s5, s{sW}, 9')
    a('s_add_u32 s4, s4, s5')
    a(f's_add_u32 s4, s4, {32 * B_P}')
    a(f's_mul_i32 s4, s4, {F_ * 2}')
    a(f's_lshl_b32 s5, s{sBCB}, 7')
    a('s_add_u32 s4, s4, s5')
    a(f'v_min_u32 v24, {PR - 1}, v{vL}')
    a(f'v_mul_u32_u24 v24, {F_ * 2}, v24')
    a('v_add_u32 v24, s4, v24')
    a(f'buffer_load_dword v37, v24, {S(sW1, 4)}, 0 offen')
    srd(a, sAUX, P_B1, F_ * 2)
    a(f's_lshl_b32 s4, s{sBCB}, 7')
    a(f's_lshl_b32 s5, s{sW}, 5')
    a('s_add_u32 s4, s4, s5')
    a(f'v_lshl_add_u32 v24, v{vG}, 3, s4')
    a(f'buffer_load_dwordx2 v[38:39], v24, {S(sAUX, 4)}, 0 offen')
    tag_ready(a)
    a('s_barrier')
    stamp(a, 'prep')
    a(f's_cmp_lg_u32 s{sWH}, 0')
    a('s_cbranch_scc1 L_b_go')
    flag_check(a, flag_issue(a, vFL, vFD), vFL, vFD, 3)
    a.label('L_b_go')
    a.wait_vm0()
    a('s_barrier')
    stamp(a, 'go')
    Hooks(gB.frag_items(FIRST)).flush()
    for j in range(BPRE, B_P):
        Hooks(gB.dma_items(j)).flush()

    gB.mainloop(b_extra)
    stamp(a, 'Bend')
    gB.reduce()
    R = lambda t, j: ACC(t, 0) + j
    T = lambda t, j: ACC(t, 1) + j
    a('v_lshlrev_b32 v34, 16, v38')
    a('v_and_b32 v35, 0xffff0000, v38')
    a('v_lshlrev_b32 v36, 16, v39')
    a('v_and_b32 v37, 0xffff0000, v39')
    c0 = 0.7978845608028654
    k1 = -2.0 * c0 * LOG2E
    k2 = k1 * 0.044715
    a(f's_mov_b32 s4, {fbits(k2)}')
    a(f's_mov_b32 s5, {fbits(k2)}')
    a(f'v_mov_b32 v24, {fbits(k1)}')
    a('v_mov_b32 v26, 1.0')
    th = [(t, h) for t in range(5) for h in range(2)]
    tj = [(t, j) for t in range(5) for j in range(4)]
    for t, h in th:
        a(f'v_pk_add_f32 {V(R(t, 2 * h), 2)}, {V(R(t, 2 * h), 2)}, {V(34 + 2 * h, 2)}')
    for t, h in th:
        a(f'v_pk_mul_f32 {V(T(t, 2 * h), 2)}, {V(R(t, 2 * h), 2)}, {V(R(t, 2 * h), 2)}')
    for t, h in th:
        a(f'v_pk_fma_f32 {V(T(t, 2 * h), 2)}, {V(T(t, 2 * h), 2)}, s[4:5], v[24:25] op_sel_hi:[1,0,0]')
    for t, h in th:
        a(f'v_pk_mul_f32 {V(T(t, 2 * h), 2)}, {V(T(t, 2 * h), 2)}, {V(R(t, 2 * h), 2)}')
    for t, j in tj:
        a(f'v_exp_f32 v{T(t, j)}, v{T(t, j)}')
    for t, h in th:
        a(f'v_pk_add_f32 {V(T(t, 2 * h), 2)}, {V(T(t, 2 * h), 2)}, v[26:27] op_sel_hi:[1,0]')
    for t, j in tj:
        a(f'v_rcp_f32 v{T(t, j)}, v{T(t, j)}')
    for t, h in th:
        a(f'v_pk_mul_f32 {V(T(t, 2 * h), 2)}, {V(T(t, 2 * h), 2)}, {V(R(t, 2 * h), 2)}')
    a(f's_mul_i32 s4, s{sW8}, 2560')
    a('s_add_u32 s4, s4, 81920')
    a(f'v_lshl_add_u32 v24, v{vL}, 3, s4')
    for t in range(5):
        a(f'v_cvt_pk_bf16_f32 v{R(t, 0)}, v{T(t, 0)}, v{T(t, 1)}')
        a(f'v_cvt_pk_bf16_f32 v{R(t, 1)}, v{T(t, 2)}, v{T(t, 3)}')
        a(f'ds_write_b64 v24, {V(R(t, 0), 2)} offset:{t * 512}')
    a(f's_mul_i32 s4, s{sBDB}, 74')
    a(f's_lshl_b32 s5, s{sBCB}, 1')
    a('s_add_u32 s4, s4, s5')
    a('s_mul_i32 s4, s4, 5120')
    a(f's_add_u32 s15, s4, {GF_OFF}')
    a(f's_mul_i32 s4, s{sWH}, 10240')
    a('s_add_u32 s4, s4, 81920')
    a(f'v_lshl_add_u32 v25, v{vL}, 3, s4')
    a.wait_lg0()
    a('s_barrier')
    gt = []
    for m in range(3):
        frag10_addr(a, m, 2 * 2560 - 5 * 512, 512, 15, 24, 25, 34 + m)
        a(f'ds_read_b64 {V(ACC(m, 2), 2)}, v24')
        gt.append(a(f'ds_read_b64 {V(ACC(m, 2) + 2, 2)}, v24 offset:2560'))
    for m in range(3):
        a.wait(gt[m])
        a(f'buffer_store_dwordx4 {V(ACC(m, 2), 4)}, v{34 + m}, {S(sWS, 4)}, 0 offen sc1')
    a(f's_lshl_b32 s4, s{sBDB}, 5')
    a(f's_add_u32 s4, s4, s{sBCB}')
    a('s_lshl_b32 s4, s4, 2')
    a(f's_add_u32 s4, s4, s{sW}')
    a(f's_lshl_b32 s4, s4, {FSH}')
    a(f's_add_u32 s10, s4, {FG_OFF}')
    a('s_branch L_join')


def role_r(a):
    a('s_lshl_b32 s11, s6, 1')
    a(f's_add_u32 s11, s11, s{sWH}')
    a('s_lshr_b32 s8, s6, 3')
    a('s_lshl_b32 s8, s8, 3')
    a(f's_add_u32 s8, s8, s{sW8}')
    a('s_getpc_b64 s[6:7]')
    a.raw('L_pc:')
    a(f's_sub_u32 s{sAUX}, s6, L_pc - L_start')
    a('s_subb_u32 s7, s7, 0')
    a(f's_and_b32 s{sAUX + 1}, s7, 0xffff')
    a(f's_mov_b32 s{sAUX + 2}, L_end - L_start')
    a(f's_mov_b32 s{sAUX + 3}, 0x20000')
    a('s_lshl_b32 s6, s8, 13')
    a(f'v_lshl_add_u32 v25, v{vL}, 7, s6')
    if 'nocpf' not in EXP:
        a(f'buffer_load_dword v37, v25, {S(sAUX, 4)}, 0 offen')
    if 'notlb' not in EXP:
        a(f's_lshl_b32 s5, s8, 6')
        a(f'v_add_u32 v26, s5, v{vL}')
        a(f'v_mul_u32_u24 v27, {(WS_USED // 1024 + 127) // 128 * 128}, v26')
        a(f'buffer_load_dword v37, v27, {S(sWS, 4)}, 0 offen sc1')
        a('v_lshlrev_b32 v27, 13, v26')
        a(f'buffer_load_dword v37, v27, {S(sW2, 4)}, 0 offen')
        srd(a, sOUT, P_OUT, S_ * D_ * 2)
        a('v_lshlrev_b32 v27, 12, v26')
        a(f'buffer_load_dword v37, v27, {S(sOUT, 4)}, 0 offen sc1')
        srd(a, sAUX, P_B2, S_ * 2)
        a(f'buffer_load_dword v37, v27, {S(sAUX, 4)}, 0 offen')
    a('s_mul_i32 s5, s8, 54')
    a(f's_and_b32 s7, s{sID}, 1')
    a('s_mul_i32 s7, s7, 864')
    a('s_add_u32 s5, s5, s7')
    a('s_lshl_b32 s5, s5, 12')
    a(f's_and_b32 s7, s{sID}, 6')
    a('s_lshl_b32 s7, s7, 9')
    a('s_add_u32 s5, s5, s7')
    a(f'v_lshrrev_b32 v24, 3, v{vL}')
    a(f'v_and_b32 v25, 7, v{vL}')
    a('v_lshlrev_b32 v24, 12, v24')
    a('v_lshl_add_u32 v24, v25, 7, v24')
    a('v_add_u32 v24, s5, v24')
    tag_ready(a)
    a(f'v_mov_b32 v{vFL}, {FH_OFF}')
    flag_check(a, flag_issue(a, vFL, vFD), vFL, vFD, 16)
    PFA = int(os.environ.get('PFA', '7'))
    a('v_mov_b32 v36, v24')
    for k in range(PFA):
        a(f'buffer_load_dword v37, v36, {S(sW2, 4)}, 0 offen')
        a(f'v_add_u32 v36, {8 * 4096}, v36')
        if k % 2 == 1:
            a.wait_vm0()
    stamp(a, 'prep')
    a('s_setprio 3')
    a(f's_lshl_b32 s4, s11, {4 + FSH}')
    a(f's_add_u32 s4, s4, {FK_OFF}')
    a(f'v_lshl_add_u32 v{vFL}, v{vI}, {FSH}, s4')
    a(f's_lshl_b32 s5, s{sW}, 11')
    a(f'v_lshl_add_u32 v24, v{vL}, 4, s5')
    a(f'v_lshrrev_b32 v25, 5, v{vL}')
    a(f'v_and_b32 v26, 31, v{vL}')
    a('v_lshlrev_b32 v26, 4, v26')
    a('v_lshl_add_u32 v25, v25, 11, v26')
    a('v_add_u32 v25, 1024, v25')
    a(f's_cmp_eq_u32 s{sW}, 2')
    a('s_cselect_b64 vcc, -1, 0')
    a('v_cndmask_b32 v24, v24, v25, vcc')
    a(f'v_lshrrev_b32 v25, 3, v{vL}')
    a(f'v_and_b32 v26, 7, v{vL}')
    a('v_lshlrev_b32 v26, 4, v26')
    a('v_lshl_add_u32 v25, v25, 8, v26')
    a('v_add_u32 v25, 4096, v25')
    a(f's_cmp_eq_u32 s{sW}, 3')
    a('s_cselect_b64 vcc, -1, 0')
    a('v_cndmask_b32 v24, v24, v25, vcc')
    a(f's_mul_i32 s4, s11, {16 * 6144}')
    a(f's_add_u32 s4, s4, {KV_OFF}')
    flag_check(a, flag_issue(a, vFL, vFD), vFL, vFD, 4)
    stamp(a, 'hok')
    stok = []
    for rb in range(16):
        stok.append(a(f'buffer_load_dwordx4 {V(128 + 4 * rb, 4)}, v24, {S(sWS, 4)}, s4 offen sc1'))
        a('s_add_u32 s4, s4, 6144')
    for rb in range(1, 16):
        a.wait(stok[rb])
        for h in range(2):
            a(f'v_pk_add_f32 {V(128 + 2 * h, 2)}, {V(128 + 2 * h, 2)}, {V(128 + 4 * rb + 2 * h, 2)}')
    stamp(a, 'rsum')
    a('v_cvt_pk_bf16_f32 v34, v128, v129')
    a('v_cvt_pk_bf16_f32 v35, v130, v131')
    a('s_lshl_b32 s4, s11, 11')
    a(f's_add_u32 s4, s4, {KB_OFF}')
    a(f'v_lshl_add_u32 v24, v{vTH}, 3, s4')
    a(f'buffer_store_dwordx2 v[34:35], v24, {S(sWS, 4)}, 0 offen sc1')
    a('s_lshl_b32 s4, s11, 2')
    a(f's_add_u32 s4, s4, s{sW}')
    a(f's_lshl_b32 s4, s4, {FSH}')
    a(f's_add_u32 s10, s4, {FR_OFF}')
    a.wait_vm0()
    flag_set(a, 10)
    a(f's_mov_b32 s10, {OOB}')
    stamp(a, 'rpub')
    a('s_barrier')
    for k in range(PFA, 0 if 'nopf2' in EXP else 7):
        a(f'buffer_load_dword v37, v36, {S(sW2, 4)}, 0 offen')
        a(f'v_add_u32 v36, {8 * 4096}, v36')
    a('s_branch L_join')


def role_wot(a):
    a('s_lshl_b32 s11, s6, 1')
    a(f's_add_u32 s11, s11, s{sWH}')
    srd(a, sAUX, P_WO, D_ * D_ * 2)
    a(f'v_lshlrev_b32 v{vF}, 4, v{vL}')
    a(f'v_add_u32 v{vF + 1}, 4096, v{vF}')
    tag_ready(a)
    dma160_voffs(a, 34, 1280, False, 24)
    a('s_mul_i32 s4, s11, 160')
    a(f's_mul_i32 s5, s{sW}, {160 * 1280}')
    a('s_add_u32 s7, s4, s5')
    a(f's_mul_i32 s6, s{sW8}, 20480')
    a(f'v_mul_u32_u24 v24, 20, v{vG}')
    a(f'v_add_u32 v24, v24, v{vR}')
    a('v_mul_u32_u24 v24, 160, v24')
    a(f'v_mul_u32_u24 v25, 40, v{vC}')
    a('v_add_u32 v24, v24, v25')
    a('v_add_u32 v24, s6, v24')
    a('s_mul_i32 s4, s11, 74')
    a(f's_mul_i32 s5, s{sW}, 5')
    a('s_add_u32 s4, s4, s5')
    a('s_add_u32 s4, s4, 54')
    a('s_mul_i32 s4, s4, 5120')
    a(f's_add_u32 s4, s4, {GF_OFF}')
    rounds = [[(0, 0, 0), (0, 1, 4), (1, 0, 8), (1, 1, 12), (2, 0, 16)],
              [(2, 1, 16), (3, 0, 0), (3, 1, 4), (4, 0, 8), (4, 1, 12)]]
    for rd in range(2):
        for k in range(3):
            a(f's_add_u32 s8, s7, {(rd * 80 + k * 32) * 1280}')
            dma160(a, 34, sAUX, 8, 6, k * 5120)
        a.wait_vm0()
        for u, hf, row in rounds[rd]:
            for t in range(5):
                a(f'ds_read_b64_tr_b16 {V(156 + (u * 5 + t) * 4 + 2 * hf, 2)}, v24 offset:{row * 160 + 8 * t}')
            a.wait_lg0()
    for u in range(5):
        for t in range(5):
            vo, off = (vF, t * 1024) if t < 4 else (vF + 1, 0)
            a(f'buffer_store_dwordx4 {V(156 + (u * 5 + t) * 4, 4)}, v{vo}, {S(sWS, 4)}, s4 offen offset:{off} sc1')
        a('s_add_u32 s4, s4, 5120')
    a('s_lshl_b32 s4, s11, 2')
    a(f's_add_u32 s4, s4, s{sW}')
    a(f's_lshl_b32 s4, s4, {FSH}')
    a(f's_add_u32 s10, s4, {FW_OFF}')
    a('s_barrier')


def final_gemm(a):
    a.wait_all()
    flag_set(a, 10)
    stamp(a, 'pub')
    a('s_setprio 0')
    a(f's_cmp_lg_u32 s{sWH}, 0')
    a('s_cbranch_scc1 L_fin')
    xcd_tile(a)
    g_common(a)
    g2 = GGemm(a, 'G2')
    g2.setup()
    for j in range(G2_P):
        Hooks(g2.dma_items(j)).flush()
    srd(a, sOUT, P_OUT, S_ * D_ * 2)
    R = lambda t, j: ACC(t, 0) + j
    T = lambda t, j: ACC(t, 1) + j
    srd(a, sAUX, P_B2, S_ * 2)
    a(f's_lshl_b32 s4, s{sRB}, {5 + FSH}')
    a(f's_lshl_b32 s5, s{sW}, {3 + FSH}')
    a('s_add_u32 s4, s4, s5')
    a(f's_add_u32 s4, s4, {FO_OFF}')
    a(f'v_lshl_add_u32 v34, v{vC}, {FSH + 1}, s4')
    a(f's_lshl_b32 s4, s{sHG}, 2')
    a(f's_add_u32 s4, s4, s{sW}')
    a(f's_lshl_b32 s4, s4, {FSH}')
    a(f's_add_u32 s4, s4, {FW_OFF}')
    a('v_mov_b32 v35, s4')
    a(f'v_cmp_gt_u32 vcc, 63, v{vL}')
    a(f'v_cndmask_b32 v{vFL}, v35, v{vFL}, vcc')
    for nt in range(4):
        a(f's_xor_b32 s4, s{sW}, {nt}')
        a('s_lshl_b32 s4, s4, 10')
        a(f'v_add_u32 v{vOF + nt}, s4, v{vF}')
    a(f's_mul_i32 s4, s{sRB}, 20')
    a(f's_mul_i32 s5, s{sW}, 5')
    a('s_add_u32 s4, s4, s5')
    a('s_lshl_b32 s4, s4, 12')
    a(f's_add_u32 s11, s4, {OF_OFF}')
    a(f'v_mul_u32_u24 v{vXA}, 1280, v{vTOK}')
    a(f'v_mul_u32_u24 v{vBA}, 40, v{vG}')
    a(f'v_add_u32 v{vXA}, v{vXA}, v{vBA}')
    a(f's_mul_i32 s4, s{sHG}, 160')
    a(f'v_add_u32 v{vXA}, s4, v{vXA}')
    a(f'v_lshlrev_b32 v{vBA}, 1, v{vTOK}')
    flag_check(a, flag_issue(a, vFL, vFD), vFL, vFD)
    stamp(a, 'gok')
    fl = {}

    def gate():
        a(f's_mul_i32 s4, s{sHG}, 74')
        a(f's_mul_i32 s5, s{sW}, 5')
        a('s_add_u32 s4, s4, s5')
        a('s_add_u32 s4, s4, 54')
        a('s_mul_i32 s4, s4, 5120')
        a(f's_add_u32 s{sFS}, s4, {GF_OFF}')

    def gate2():
        stamp(a, 'oa')
        flag_check(a, fl['o'], 34, 35)
        stamp(a, 'ob')

    g2.gate = gate
    g2.gate2 = gate2
    XR = [8, 10, 14, 16, 18]

    def g2_extra(j):
        it = []
        if j == 9:
            def fo():
                fl['o'] = flag_issue(a, 34, 35)
            it.append(fo)
        if j == 16:
            def resid():
                a(f'buffer_load_ushort v36, v{vBA}, {S(sAUX, 4)}, 0 offen')
                for t in range(5):
                    fl['x'] = a(f'buffer_load_dwordx2 {V(XR[t], 2)}, v{vXA}, {S(sX, 4)}, 0 offen offset:{8 * t}')
            it.append(resid)
        return it

    Hooks(g2.frag_items(FIRST)).flush()
    g2.mainloop(g2_extra)
    stamp(a, 'Gend')
    g2.reduce()
    a.wait(fl['x'])
    a('v_lshlrev_b32 v36, 16, v36')
    for t in range(5):
        for h in range(2):
            a(f'v_lshlrev_b32 v{T(t, 2 * h)}, 16, v{XR[t] + h}')
            a(f'v_and_b32 v{T(t, 2 * h + 1)}, 0xffff0000, v{XR[t] + h}')
            a(f'v_pk_add_f32 {V(R(t, 2 * h), 2)}, {V(R(t, 2 * h), 2)}, v[36:37] op_sel_hi:[1,0]')
            a(f'v_pk_add_f32 {V(R(t, 2 * h), 2)}, {V(R(t, 2 * h), 2)}, {V(T(t, 2 * h), 2)}')
        a(f'v_cvt_pk_bf16_f32 v{R(t, 0)}, v{R(t, 0)}, v{R(t, 1)}')
        a(f'v_cvt_pk_bf16_f32 v{R(t, 1)}, v{R(t, 2)}, v{R(t, 3)}')
        a(f'buffer_store_dwordx2 {V(R(t, 0), 2)}, v{vXA}, {S(sOUT, 4)}, 0 offen offset:{8 * t}')
    a.label('L_fin')
    stamp_flush(a, 'end')


def build():
    a = Asm()
    hdr = open(os.path.join(os.path.dirname(__file__), '..', 'cdna_kernels', NAME + '.s.ref')).read().split('\n')
    for line in hdr:
        if line.startswith(';') and '@launch' not in line:
            a.raw(line)
    a.raw(f'; @launch grid=(256,1,1) block=(512,1,1) lds={LDS_BYTES}')
    a.raw('.amdgcn_target "amdgcn-amd-amdhsa--gfx950"')
    a.raw('.text')
    K = NAME + '_kernel'
    a.raw(f'.globl {K}')
    a.raw('.p2align 8')
    a.raw(f'.type {K},@function')
    a.raw(f'{K}:')
    a.raw('L_start:')
    a('s_cmp_ge_u32 s2, 256')
    a('s_cbranch_scc1 L_end')
    a('s_load_dwordx16 s[16:31], s[0:1], 0')
    a('s_load_dwordx8 s[32:39], s[0:1], 64')
    a(f'v_and_b32 v{vL}, 63, v0')
    a('v_lshrrev_b32 v6, 6, v0')
    a(f'v_readfirstlane_b32 s{sW8}, v6')
    a(f'v_lshrrev_b32 v{vG}, 4, v{vL}')
    a(f'v_and_b32 v{vI}, 15, v{vL}')
    a(f'v_lshrrev_b32 v{vR}, 2, v{vI}')
    a(f'v_and_b32 v{vC}, 3, v{vL}')
    a(f'v_lshl_add_u32 v{vGR}, v{vG}, 2, v{vR}')
    a(f'v_and_b32 v{vTH}, 255, v0')
    a(f's_and_b32 s{sW}, s{sW8}, 3')
    a(f's_lshr_b32 s{sWH}, s{sW8}, 2')
    a(f's_mov_b32 s{sID}, s2')
    a('s_waitcnt lgkmcnt(0)')
    a(f's_add_u32 s4, s{P_WS}, {EP_OFF}')
    a(f's_addc_u32 s5, s{P_WS + 1}, 0')
    a(f's_load_dword s{sTAG}, s[4:5], 0')
    srd(a, sX, P_X, S_ * D_ * 2)
    srd(a, sWS, P_WS, WS_USED)
    srd(a, sW2, P_W2, F_ * S_ * 2)
    stamp(a, 'start')
    if 'noticket' not in EXP:
        srd(a, sAUX, P_DBG, 256)
        a(f'v_mov_b32 v8, {L_CNT + 16}')
        a(f's_cmp_lg_u32 s{sW8}, 0')
        a('s_cbranch_scc1 L_ticket_done')
        a('s_getreg_b32 s4, hwreg(HW_REG_XCC_ID)')
        a('s_mov_b32 s6, 0')
        a('s_mov_b64 exec, 1')
        a.label('L_ticket')
        a('s_and_b32 s4, s4, 7')
        a('s_lshl_b32 s5, s4, 5')
        a('v_mov_b32 v9, s5')
        a('v_mov_b32 v10, 1')
        a(f'buffer_atomic_add v10, v9, {S(sAUX, 4)}, 0 offen sc0 sc1')
        a.wait_vm0()
        a('v_readfirstlane_b32 s5, v10')
        a('s_cmp_lt_u32 s5, 32')
        a('s_cbranch_scc1 L_ticket_ok')
        a('s_add_u32 s4, s4, 1')
        a('s_add_u32 s6, s6, 1')
        a('s_cmp_lt_u32 s6, 8')
        a('s_cbranch_scc1 L_ticket')
        a.label('L_ticket_ok')
        a('s_lshl_b32 s5, s5, 3')
        a('s_add_u32 s5, s5, s4')
        a('v_mov_b32 v9, s5')
        a('ds_write_b32 v8, v9')
        a('s_mov_b64 exec, -1')
        a('s_waitcnt lgkmcnt(0)')
        a.label('L_ticket_done')
        a('s_barrier')
        a('ds_read_b32 v9, v8')
        a('s_waitcnt lgkmcnt(0)')
        a('s_barrier')
        a(f'v_readfirstlane_b32 s{sID}, v9')
        a(f's_and_b32 s{sID}, s{sID}, 255')
        a.reset_counters()
        stamp(a, 'tick')
    if os.environ.get('UPRIO', '1') != '0':
        a(f's_cmp_eq_u32 s{sWH}, 0')
        a('s_cbranch_scc1 L_prio')
        a(f's_setprio {os.environ.get("UPRIO", "1")}')
        a.label('L_prio')
    a(f's_cmp_ge_u32 s{sID}, 128')
    a('s_cbranch_scc1 L_not_a')
    role_a(a)
    a.label('L_not_a')
    a.reset_counters()
    a(f's_and_b32 s4, s{sID}, 7')
    a(f's_lshr_b32 s5, s{sID}, 3')
    a('s_sub_u32 s5, s5, 16')
    a('s_cmp_ge_u32 s5, 14')
    a('s_cbranch_scc1 L_role_r')
    a('s_and_b32 s7, s4, 1')
    a('s_add_u32 s7, s7, 13')
    a('s_cmp_ge_u32 s5, s7')
    a('s_cbranch_scc1 L_role_wot')
    a('s_mul_i32 s6, s4, 27')
    a('s_lshr_b32 s6, s6, 1')
    a('s_add_u32 s6, s6, s5')
    role_b(a)
    a.label('L_role_r')
    a.reset_counters()
    a(f's_sub_u32 s6, s{sID}, 240')
    role_r(a)
    a.label('L_role_wot')
    a.reset_counters()
    a('s_lshr_b32 s6, s4, 1')
    role_wot(a)
    a.label('L_join')
    final_gemm(a)
    a.label('L_end')
    a('s_endpgm')
    if STAMPS:
        a.raw('; STAMPS ' + ' '.join(STAMP_NAMES))
    a.raw('.section .rodata,"a"')
    a.raw(f""".p2align 6
.amdhsa_kernel {K}
  .amdhsa_next_free_vgpr 256
  .amdhsa_next_free_sgpr 102
  .amdhsa_accum_offset 256
  .amdhsa_group_segment_fixed_size 0
  .amdhsa_kernarg_size 96
  .amdhsa_user_sgpr_count 2
  .amdhsa_user_sgpr_kernarg_segment_ptr 1
  .amdhsa_system_sgpr_workgroup_id_x 1
.end_amdhsa_kernel""")
    sys.stderr.write(f'maxv={a.maxv} maxa={a.maxa} maxs={a.maxs} nops={a.nops} lines={len(a.out)}\n')
    return a.text()


if __name__ == '__main__':
    out = sys.argv[1] if len(sys.argv) > 1 else os.path.join(os.path.dirname(__file__), '..', 'cdna_kernels', NAME + '.s')
    open(out, 'w').write(build())
```

```python
import sys, struct, os
sys.path.insert(0, os.path.dirname(__file__))
from asmdsl import Asm, Rec, V, A, S

NAME = 'parallel_sum__linear_kernel_hedgehog__mixer_token_mlp__prompt'
S_, D_, F_ = 2048, 640, 1728

HF_OFF = 0
HF_SZ = 8 * 64 * 5 * 1024
GF_OFF = HF_OFF + HF_SZ
GF_SZ = 8 * 74 * 5 * 1024
OF_OFF = GF_OFF + GF_SZ
OF_SZ = 32 * 20 * 4 * 1024
XF_OFF = OF_OFF + OF_SZ
XF_SZ = 128 * 20480
WF_OFF = XF_OFF + XF_SZ
WF_SZ = 480 * 5120 + 4096
KV_OFF = WF_OFF + WF_SZ
KV_SZ = 32 * 32 * 6144
KB_OFF = KV_OFF + KV_SZ + 4096
KB_SZ = 32 * 2048
FL_OFF = KB_OFF + KB_SZ + 4096
FSH = int(os.environ.get('FSH', '6'))
FH_OFF = FL_OFF
FK_OFF = FH_OFF + (1024 << FSH)
FR_OFF = FK_OFF + (1024 << FSH)
FG_OFF = FR_OFF + (128 << FSH)
FO_OFF = FG_OFF + (1024 << FSH)
FW_OFF = FO_OFF + (1024 << FSH)
FU_OFF = FW_OFF + (128 << FSH)
EP_OFF = FU_OFF + (512 << FSH)
WS_USED = EP_OFF + 512
STAMP_OFF = WS_USED
WS_USED += 512 * 256
STAMPS = bool(int(os.environ.get('STAMPS', '0')))
EXP = os.environ.get('EXP', '').split(',') + [e for e in ['map4', 'noticket', 'notlb'] if e not in os.environ.get('OFF', '').split(',')]
OOB = 0x40000000

P_X, P_WQKV, P_WPHI, P_WO, P_BX, P_W1, P_B1, P_W2, P_B2, P_OUT, P_DBG, P_WS = range(16, 40, 2)
LOG2E = 1.4426950408889634

sW = 3
sW8, sWH = 90, 91
sWS, sX, sWQ, sW1, sW2, sAUX, sOUT = 40, 44, 48, 52, 56, 60, 64
sHG, sRB, sID, sROT, sKS, sT, sM0B, sTAG = 68, 69, 70, 71, 72, 73, 74, 75
sL, sNL = 76, 78
sBDB, sBCB, sFS, sGM0, sSPIN, sLIM = 80, 81, 82, 83, 84, 85
vL, vG, vI, vR, vC = 1, 2, 3, 4, 5
vTOK, vGR = 6, 7
vFS = 42
DB = 64
XN = lambda s: DB + 8 * s
UP = lambda k: DB + 8 * k + 4

LDS_BYTES = 163840
A_SLOTS = 4
L_WQ = 0
L_RING = 102400
L_ZERO = 122880
L_WPHI = 126976
L_CNT = 131072
B_P = 10
G2_P = 5
ILV = os.environ.get('ILV', 'burst')


def kb_pos(f, t):
    if f < 32:
        return (f >> 4) * 512 + (t * 16 + (f & 15)) * 8 if t < 4 else 1024 + ((f >> 4) * 32 + (t - 4) * 16 + (f & 15)) * 8
    return 1536 + (t * 8 + f - 32) * 8


def fbits(x):
    return '0x%08x' % struct.unpack('<I', struct.pack('<f', x))[0]


def srd(a, dst, ptr, nbytes):
    a(f's_mov_b32 s{dst}, s{ptr}')
    a(f's_and_b32 s{dst + 1}, s{ptr + 1}, 0xffff')
    a(f's_mov_b32 s{dst + 2}, {nbytes}')
    a(f's_mov_b32 s{dst + 3}, 0x20000')


STAMP_NAMES = []
vST = 41


def stamp(a, name):
    if not STAMPS:
        return
    name = str(name)
    if name not in STAMP_NAMES:
        STAMP_NAMES.append(name)
    idx = STAMP_NAMES.index(name)
    a('s_memrealtime s[98:99]')
    a.wait_lg0()
    if idx == 0:
        a(f'v_mov_b32 v{vST}, 0')
        a('s_getreg_b32 s97, hwreg(HW_REG_HW_ID)')
        a(f'v_writelane_b32 v{vST}, s97, 63')
    a(f'v_writelane_b32 v{vST}, s98, {idx}')


def stamp_flush(a, n):
    if not STAMPS:
        return
    a.wait_vm0()
    stamp(a, n)
    lab = a.newlabel('st')
    a(f's_cmp_lg_u32 s{sW}, 0')
    a(f's_cbranch_scc1 {lab}')
    a(f's_lshl_b32 s4, s{sWH}, 8')
    a(f's_add_u32 s4, s4, s{sID}')
    a('s_lshl_b32 s4, s4, 8')
    a(f's_add_u32 s4, s4, {STAMP_OFF}')
    a(f'v_lshl_add_u32 v8, v{vL}, 2, s4')
    a(f'buffer_store_dword v{vST}, v8, {S(sWS, 4)}, 0 offen')
    if 'dbgmax' in EXP:
        srd(a, sAUX, P_DBG, 256)
        sel = os.environ.get('DBGSEL', 'start,x,prep,go,a0,aend,fm,rok,B_0,Bend,pub,gok,G2_0,Gend,end').split(',')
        a(f'v_readlane_b32 s4, v{vST}, 0')
        a('s_not_b32 s4, s4')
        a(f'v_writelane_b32 v{vST}, s4, 62')
        a('s_mov_b64 exec, 1')
        for k, nm in enumerate(['neg'] + sel):
            if nm != 'neg' and nm not in STAMP_NAMES:
                STAMP_NAMES.append(nm)
            lane = 62 if nm == 'neg' else STAMP_NAMES.index(nm)
            a(f'v_readlane_b32 s4, v{vST}, {lane}')
            a('v_mov_b32 v9, s4')
            a('v_mov_b32 v8, 0')
            a(f'buffer_atomic_umax v9, v8, {S(sAUX, 4)}, 0 offen offset:{4 * k} sc1')
        a('s_mov_b64 exec, -1')
    a.label(lab)


def reduce_g(a, r, t):
    a(f'v_mov_b32 v{t}, v{r}')
    a(f'v_permlane32_swap_b32 v{r}, v{t}')
    a(f'v_add_f32 v{r}, v{r}, v{t}')
    a(f'v_mov_b32 v{t}, v{r}')
    a(f'v_permlane16_swap_b32 v{r}, v{t}')
    a(f'v_add_f32 v{r}, v{r}, v{t}')


def dma160_voffs(a, dst, stride, permute, tmp):
    t0, t2, t3 = tmp, tmp + 1, tmp + 2
    for q in range(5):
        d = dst + q
        a(f'v_add_u32 v{t0}, {q * 64}, v{vL}')
        a(f'v_mul_u32_u24 v{t2}, 6554, v{t0}')
        a(f'v_lshrrev_b32 v{t2}, 16, v{t2}')
        a(f'v_mul_u32_u24 v{t3}, 10, v{t2}')
        a(f'v_sub_u32 v{t0}, v{t0}, v{t3}')
        if permute:
            a(f'v_bfe_u32 v{t3}, v{t2}, 2, 2')
            a(f'v_lshlrev_b32 v{t3}, 3, v{t3}')
            a(f'v_and_b32 v{d}, 3, v{t2}')
            a(f'v_add_u32 v{t3}, v{t3}, v{d}')
            a(f'v_lshrrev_b32 v{t2}, 4, v{t2}')
            a(f'v_lshl_add_u32 v{t2}, v{t2}, 2, v{t3}')
        a(f'v_mul_u32_u24 v{t2}, {stride}, v{t2}')
        a(f'v_lshl_add_u32 v{d}, v{t0}, 4, v{t2}')
        if 0 < q < 4:
            a(f'v_subrev_u32 v{d}, {q * 1024}, v{d}')


def dma160(a, vo, ssrd, soff, m0_s, m0_add, nt=''):
    a(f's_add_u32 m0, s{m0_s}, {m0_add}')
    for q in range(4):
        off = f' offset:{q * 1024}' if q else ''
        a(f'buffer_load_dwordx4 v{vo + q}, {S(ssrd, 4)}, s{soff} offen{off}{nt} lds')
    a(f's_add_u32 m0, s{m0_s}, {m0_add + 4096}')
    return a(f'buffer_load_dwordx4 v{vo + 4}, {S(ssrd, 4)}, s{soff} offen{nt} lds')


class Hooks:
    def __init__(self, items=()):
        self.items = list(items)

    def run(self, n=1):
        for _ in range(n):
            if self.items:
                self.items.pop(0)()

    def flush(self):
        self.run(len(self.items))


def softmax_pm(a, P, PH, EP, EN, tmp):
    p = [P[k // 4] + k % 4 for k in range(20)]
    ep = [EP[k // 4] + k % 4 for k in range(20)]
    en = [EN[k // 4] + k % 4 for k in range(20)]
    mx, mn, sp, sn = tmp, tmp + 2, tmp + 4, tmp + 6
    a(f'v_max3_f32 v{mx}, v{p[0]}, v{p[1]}, v{p[2]}')
    a(f'v_min3_f32 v{mn}, v{p[0]}, v{p[1]}, v{p[2]}')
    for k in range(3, 19, 2):
        a(f'v_max3_f32 v{mx}, v{mx}, v{p[k]}, v{p[k + 1]}')
        a(f'v_min3_f32 v{mn}, v{mn}, v{p[k]}, v{p[k + 1]}')
    a(f'v_max_f32 v{mx}, v{mx}, v{p[19]}')
    a(f'v_min_f32 v{mn}, v{mn}, v{p[19]}')
    a(f'v_mul_f32 v{mx}, s{sNL}, v{mx}')
    a(f'v_mul_f32 v{mn}, s{sL}, v{mn}')
    for k in range(0, 20, 2):
        a(f'v_pk_fma_f32 {V(ep[k], 2)}, {V(p[k], 2)}, {S(sL, 2)}, {V(mx, 2)} op_sel_hi:[1,0,0]')
        a(f'v_pk_fma_f32 {V(en[k], 2)}, {V(p[k], 2)}, {S(sNL, 2)}, {V(mn, 2)} op_sel_hi:[1,0,0]')
    for k in range(20):
        a(f'v_exp_f32 v{ep[k]}, v{ep[k]}')
        a(f'v_exp_f32 v{en[k]}, v{en[k]}')
    a(f'v_pk_add_f32 {V(sp, 2)}, {V(ep[0], 2)}, {V(ep[2], 2)}')
    a(f'v_pk_add_f32 {V(sn, 2)}, {V(en[0], 2)}, {V(en[2], 2)}')
    for k in range(4, 20, 2):
        a(f'v_pk_add_f32 {V(sp, 2)}, {V(sp, 2)}, {V(ep[k], 2)}')
        a(f'v_pk_add_f32 {V(sn, 2)}, {V(sn, 2)}, {V(en[k], 2)}')
    a(f'v_add_f32 v{sp}, v{sp}, v{sp + 1}')
    a(f'v_add_f32 v{sn}, v{sn}, v{sn + 1}')
    a(f'v_rcp_f32 v{sp}, v{sp}')
    a(f'v_rcp_f32 v{sn}, v{sn}')
    for k in range(0, 20, 2):
        a(f'v_pk_mul_f32 {V(ep[k], 2)}, {V(ep[k], 2)}, {V(sp, 2)} op_sel_hi:[1,0]')
        a(f'v_pk_mul_f32 {V(en[k], 2)}, {V(en[k], 2)}, {V(sn, 2)} op_sel_hi:[1,0]')
    allv = ep + en
    for k in range(20):
        a(f'v_cvt_pk_bf16_f32 v{PH[k // 4] + k % 4}, v{allv[2 * k]}, v{allv[2 * k + 1]}')


def flag_set(a, s_off):
    a(f'v_lshl_add_u32 v{vFS}, v{vL}, 2, s{s_off}')
    a(f'v_mov_b32 v{vFS + 1}, s{sTAG}')
    a(f's_mov_b64 exec, {hex((1 << (1 << (FSH - 2))) - 1)}')
    a(f'buffer_store_dword v{vFS + 1}, v{vFS}, {S(sWS, 4)}, 0 offen sc1')
    a('s_mov_b64 exec, -1')


def flag_issue(a, vaddr, vdst):
    return a(f'buffer_load_dword v{vdst}, v{vaddr}, {S(sWS, 4)}, 0 offen sc1')


def flag_check(a, tok, vaddr, vdst, sleep=2):
    ok = a.newlabel('ok')
    lp = a.newlabel('poll')
    a.wait(tok)
    a(f'v_cmp_ne_u32 vcc, s{sTAG}, v{vdst}')
    a(f's_cbranch_vccz {ok}')
    a(f's_mov_b32 s{sSPIN}, 0')
    a.label(lp)
    a(f's_sleep {sleep}')
    a.raw(f'\tbuffer_load_dword v{vdst}, v{vaddr}, {S(sWS, 4)}, 0 offen sc1')
    a('s_waitcnt vmcnt(0)')
    a(f'v_cmp_ne_u32 vcc, s{sTAG}, v{vdst}')
    a(f's_cbranch_vccz {ok}')
    a(f's_add_u32 s{sSPIN}, s{sSPIN}, 1')
    a(f's_cmp_lt_u32 s{sSPIN}, 0x8000')
    a(f's_cbranch_scc1 {lp}')
    a.label(ok)


def featmap(a, ACC5, PK, WPF, P5, EP5, EN5, tmp):
    for k in range(10):
        t, j = divmod(2 * k, 4)
        a(f'v_cvt_pk_bf16_f32 v{PK[k // 4] + k % 4}, v{ACC5[t] + j}, v{ACC5[t] + j + 1}')
    for ks in range(3):
        for t in range(5):
            d = V(P5[t], 4)
            if ks < 2:
                a(f'v_mfma_f32_16x16x32_bf16 {d}, {V(WPF(t, ks), 4)}, {V(PK[ks], 4)}, {"0" if ks == 0 else d}')
            else:
                a(f'v_mfma_f32_16x16x16_bf16 {d}, {V(WPF(t, ks), 2)}, {V(PK[ks], 2)}, {d}')
    softmax_pm(a, P5, P5, EP5, EN5, tmp)


def xcd_tile(a):
    a(f's_and_b32 s4, s{sID}, 7')
    a(f's_lshr_b32 s5, s{sID}, 3')
    a('s_and_b32 s6, s4, 1')
    a('s_lshl_b32 s6, s6, 2')
    a('s_and_b32 s7, s5, 3')
    a(f's_add_u32 s{sHG}, s6, s7')
    a('s_lshr_b32 s6, s4, 1')
    a('s_lshl_b32 s6, s6, 3')
    a('s_lshr_b32 s7, s5, 2')
    a(f's_add_u32 s{sRB}, s6, s7')
    a(f's_lshl_b32 s4, s{sRB}, 6')
    a(f's_lshl_b32 s5, s{sW}, 4')
    a('s_add_u32 s4, s4, s5')
    a(f'v_add_u32 v{vTOK}, s4, v{vI}')


def ln_scales(a, vS, vRS, vNB):
    a(f'v_mul_f32 v{vS}, {fbits(1.0 / 640)}, v{vS}')
    a(f'v_mul_f32 v{vS + 2}, {fbits(1.0 / 640)}, v{vS + 2}')
    a(f'v_fma_f32 v{vS + 2}, -v{vS}, v{vS}, v{vS + 2}')
    a(f'v_max_f32 v{vS + 2}, 0, v{vS + 2}')
    a(f'v_add_f32 v{vS + 1}, {fbits(1e-5)}, v{vS + 2}')
    a(f'v_rsq_f32 v{vRS}, v{vS + 1}')
    a(f'v_mul_f32 v{vNB}, v{vS}, v{vRS}')
    a(f'v_sub_f32 v{vNB}, 0, v{vNB}')


vD, vF, vT, vT2, vFL, vFD, vOF, vXA, vBA = 8, 12, 14, 18, 22, 23, 28, 32, 33
ACC = lambda t, nt: 44 + (nt * 5 + t) * 4
TF = lambda j, nt: 124 + (j % 2) * 16 + 4 * nt
POOL = [156 + 4 * k for k in range(25)]


class GGemm:
    def __init__(self, a, kind):
        self.a, self.kind = a, kind
        if kind == 'B':
            self.stride, self.srdm, self.n, self.fr_off, self.fr_steps = F_ * 2, sW1, 16, HF_OFF, 64
            self.sdb, self.scb, self.ntot, self.P = sBDB, sBCB, 16, B_P
        else:
            self.stride, self.srdm, self.n, self.fr_off, self.fr_steps = S_ * 2, sW2, 14, GF_OFF, 74
            self.sdb, self.scb, self.ntot, self.P = sHG, sRB, 19, G2_P
        self.dtok, self.ftok, self.ttok = {}, {}, {}
        self.free = list(POOL)
        self.reg = {}
        self.pending = []
        order = [(j, 'a') for j in range(self.n)]
        if kind == 'G2':
            order += [(j, k) for j in range(14, 19) for k in 'ab']
        for j, k in order:
            self.pending += [(j, k, x) for x in range(5 if k == 'a' else 4)]
        self.gate = lambda: None
        self.gate2 = lambda: None
        self.nq = 2 if kind == 'B' else 4

    def setup(self):
        a, st = self.a, self.stride
        a(f'v_lshrrev_b32 v24, 3, v{vL}')
        if self.kind == 'B':
            a('v_lshrrev_b32 v25, 2, v24')
            a('v_and_b32 v24, 3, v24')
            a('v_lshl_add_u32 v24, v25, 3, v24')
        a(f'v_mul_u32_u24 v24, {st}, v24')
        a(f'v_and_b32 v25, 7, v{vL}')
        a(f'v_lshlrev_b32 v26, 1, v{vG}')
        a('v_xor_b32 v25, v25, v26')
        a('v_lshl_add_u32 v24, v25, 4, v24')
        a(f's_lshl_b32 s4, s{self.scb}, 7')
        a(f's_mul_i32 s5, s{sW}, {self.n * 32 * st}')
        a('s_add_u32 s5, s5, s4')
        if self.kind == 'B':
            a(f's_mul_i32 s6, s{sWH}, {4 * st}')
            a('s_add_u32 s5, s5, s6')
            a(f's_lshl_b32 s6, s{sWH}, 11')
            a(f's_add_u32 s{sM0B}, s{sGM0}, s6')
        else:
            a(f's_mov_b32 s{sM0B}, s{sGM0}')
        for q in range(self.nq):
            row = 8 * q if self.kind != 'B' else q * 16
            a(f's_add_u32 s6, s5, {row * st - 1024 * q}')
            a(f'v_add_u32 v{vD + q}, s6, v24')
        a(f's_mul_i32 s4, s{self.sdb}, {self.fr_steps}')
        a(f's_mul_i32 s5, s{sW}, {self.n}')
        a('s_add_u32 s4, s4, s5')
        a('s_mul_i32 s4, s4, 5120')
        a(f's_add_u32 s{sFS}, s4, {self.fr_off}')
        if self.kind == 'B':
            a(f's_lshl_b32 s4, s{sW}, {6 + FSH}')
            a(f's_add_u32 s4, s4, {FH_OFF}')
            a(f'v_lshl_add_u32 v{vFL}, v{vL}, {FSH}, s4')
        else:
            a(f's_lshl_b32 s4, s{self.sdb}, {7 + FSH}')
            a(f's_mul_i32 s5, s{sW}, {28 << FSH}')
            a('s_add_u32 s4, s4, s5')
            a(f's_add_u32 s4, s4, {FG_OFF}')
            a(f's_mul_i32 s5, s{self.sdb}, {74 * 5120}')
            a(f's_add_u32 s{sLIM}, s5, {GF_OFF + 53 * 5120}')
            a(f's_cmp_eq_u32 s{sW}, 3')
            a('s_cselect_b32 s5, 23, 27')
            a(f'v_min_u32 v24, s5, v{vL}')
            a(f'v_lshl_add_u32 v{vFL}, v24, {FSH}, s4')

    def dma_items(self, j):
        a = self.a

        def one(q):
            def f():
                if q == 0:
                    a(f's_add_u32 m0, s{sM0B}, {(j % self.P) * 16384}')
                off = f' offset:{q * 1024}' if q else ''
                nt = ' nt' if ('ntb' in EXP and self.kind == 'B' and j < self.P) else ''
                self.dtok[j] = a(f'buffer_load_dwordx4 v{vD + q}, {S(self.srdm, 4)}, 0 offen{off}{nt} lds')
                if not ('hotw' in EXP):
                    a(f'v_add_u32 v{vD + q}, {32 * self.stride}, v{vD + q}')
            return f
        return [one(q) for q in range(self.nq)]

    def frag_items(self, lim=99):
        a = self.a
        out = []
        while self.free and self.pending and len(out) < lim:
            key = self.pending.pop(0)
            r = self.free.pop(0)
            self.reg[key] = r

            def f(key=key, r=r):
                j, kind, x = key
                if key == (self.n, 'a', 0):
                    self.gate()
                if key == (self.n, 'b', 0):
                    self.gate2()
                if kind == 'a':
                    vo, off = (vF, x * 1024) if x < 4 else (vF + 1, 0)
                    offs = f' offset:{off}' if off else ''
                    self.ftok[j] = a(f'buffer_load_dwordx4 {V(r, 4)}, v{vo}, {S(sWS, 4)}, s{sFS} offen{offs} sc1')
                    if x == 4 and 'hotf' not in EXP:
                        a(f's_add_u32 s{sFS}, s{sFS}, 5120')
                        if self.kind == 'G2' and j < 14:
                            a(f's_min_u32 s{sFS}, s{sFS}, s{sLIM}')
                else:
                    if j - self.n == 2:
                        a(f'v_lshlrev_b32 v24, 3, v{vL}')
                        a(f'v_sub_u32 v24, v{vOF + x}, v24')
                        a(f'buffer_load_dwordx2 {V(r, 2)}, v24, {S(sWS, 4)}, s11 offen sc1')
                        self.ftok[j] = a(f'buffer_load_dwordx2 {V(r + 2, 2)}, v24, {S(sWS, 4)}, s11 offen offset:512 sc1')
                    else:
                        self.ftok[j] = a(f'buffer_load_dwordx4 {V(r, 4)}, v{vOF + x}, {S(sWS, 4)}, s11 offen sc1')
                    if x == 3:
                        a('s_add_u32 s11, s11, 4096')
            out.append(f)
        return out

    def tr_items(self, j):
        a = self.a

        def one(nt):
            def f():
                off = (j % self.P) * 16384
                base = vT
                if off >= 65536:
                    if off % 65536 == 0:
                        a(f'v_add_u32 v{vT2 + nt}, {off}, v{vT + nt}')
                    off %= 65536
                    base = vT2
                a(f'ds_read_b64_tr_b16 {V(TF(j, nt), 2)}, v{base + nt} offset:{off}')
                self.ttok[j] = a(f'ds_read_b64_tr_b16 {V(TF(j, nt) + 2, 2)}, v{base + nt} offset:{off + 2048}')
            return f
        return [one(nt) for nt in range(4)]

    def mainloop(self, extra):
        a, n = self.a, self.n
        a.wait(self.dtok[0])
        Hooks(self.tr_items(0)).flush()
        for j in range(self.ntot):
            items = []
            if j + 1 < n:
                a.wait(self.dtok[j + 1])
            a.wait(self.ftok[j], self.ttok.get(j))
            if self.kind == 'B' and j + 1 < n and (j + self.P < n or j + 1 >= int(os.environ.get('BPRE', '10'))):
                a('s_barrier')
            if j % 3 == 0:
                stamp(a, f'{self.kind}_{j}')
                if STAMPS and j in (3, 9):
                    a('s_memtime s[98:99]')
                    a.wait_lg0()
                    a(f'v_writelane_b32 v{vST}, s98, {56 + (j // 9) + (2 if self.kind == "G2" else 0)}')
            if j + 1 < n:
                items += self.tr_items(j + 1)
            if j + self.P < n:
                items += self.dma_items(j + self.P)
            items += extra(j)
            items += self.frag_items(10)
            last = j == self.ntot - 1
            if self.kind == 'G2' and j == 16:
                a('s_barrier')
            if last:
                a(f's_mul_i32 s7, s{sWH}, 102400')
                for nt in range(1, 4):
                    a(f's_xor_b32 s4, s{sW}, {nt}')
                    a('s_mul_i32 s4, s4, 15360')
                    a(f's_add_u32 s4, s4, {(nt - 1) * 5120}')
                    a('s_add_u32 s4, s4, s7')
                    a(f'v_add_u32 v{24 + nt}, s4, v{vF}')
                wr = [(nt, t) for nt in (1, 2, 3) for t in range(5)]
            hk = Hooks(items)
            k = 0
            ILV = os.environ.get('ILVB', 'fine') if self.kind == 'B' else os.environ.get('ILVG', 'burst')
            for nt in (1, 2, 3, 0):
                for t in range(5):
                    acc = V(ACC(t, nt), 4)
                    c = '0' if j == 0 else acc
                    fr = V(self.reg[(j, 'a', t)], 4)
                    tf = V(TF(j, nt) if j < n else self.reg[(j, 'b', nt)], 4)
                    if self.kind == 'B':
                        a(f'v_mfma_f32_16x16x32_bf16 {acc}, {tf}, {fr}, {c}')
                    else:
                        a(f'v_mfma_f32_16x16x32_bf16 {acc}, {fr}, {tf}, {c}')
                    k += 1
                    if last and k > 5:
                        wn, wt = wr.pop(0)
                        a(f'ds_write_b128 v{24 + wn}, {V(ACC(wt, wn), 4)} offset:{wt * 1024}')
                    if ILV == 'fine':
                        if k % 4 != 0:
                            hk.run()
                    elif ILV == 'burst':
                        if k <= 4 and j + 1 < n:
                            hk.run()
                    elif ILV == 'two':
                        if k <= 4 and j + 1 < n:
                            hk.run()
                        if k == 10:
                            hk.run(4)
                    elif ILV == 'pre':
                        if k == 1:
                            hk.flush()
            hk.flush()
            self.free += [r for key, r in self.reg.items() if key[0] == j]
            if n - 2 <= j < n:
                self.free += [TF(j, nt) for nt in range(4)]

    def reduce(self):
        a = self.a
        a(f's_mul_i32 s4, s{sW}, 15360')
        a('s_add_u32 s4, s4, s7')
        a(f'v_add_u32 v24, s4, v{vF}')
        a.wait_lg0()
        a('s_barrier')
        rtok = {}
        for nt in range(1, 4):
            for t in range(5):
                rtok[(nt, t)] = a(f'ds_read_b128 {V(ACC(t, nt), 4)}, v24 offset:{(nt - 1) * 5120 + t * 1024}')
        for nt in range(1, 4):
            for t in range(5):
                a.wait(rtok[(nt, t)])
                for h in range(2):
                    d = V(ACC(t, 0) + 2 * h, 2)
                    a(f'v_pk_add_f32 {d}, {d}, {V(ACC(t, nt) + 2 * h, 2)}')


def frag10_addr(a, m, hi_add, step, base_s, vrd, vrd_base, vst):
    a(f's_add_u32 s4, s{sW}, {4 * m}')
    a('s_min_u32 s5, s4, 9')
    a('s_cmp_ge_u32 s5, 5')
    a(f's_cselect_b32 s6, {hi_add}, 0')
    a(f's_mul_i32 s5, s5, {step}')
    a('s_add_u32 s5, s5, s6')
    a(f'v_add_u32 v{vrd}, s5, v{vrd_base}')
    a('s_lshl_b32 s5, s4, 10')
    a(f's_add_u32 s5, s5, s{base_s}')
    a('s_cmp_ge_u32 s4, 10')
    a(f's_cselect_b32 s5, {OOB}, s5')
    a(f'v_lshl_add_u32 v{vst}, v{vL}, 4, s5')


NTP = ' nt' if 'ntp' in EXP else ''
FIRST = int(os.environ.get('FIRST', '25'))
vTH = 40


def g_common(a):
    a(f'v_lshlrev_b32 v{vF}, 4, v{vL}')
    a(f'v_add_u32 v{vF + 1}, 4096, v{vF}')
    a(f's_lshl_b32 s{sGM0}, s{sW}, 12')
    a(f'v_bfe_u32 v25, v{vGR}, 1, 2')
    a(f'v_xor_b32 v25, s{sW}, v25')
    a(f'v_lshlrev_b32 v26, 7, v{vGR}')
    a(f'v_lshl_add_u32 v26, v{vC}, 3, v26')
    a(f'v_add_u32 v26, s{sGM0}, v26')
    for nt in range(4):
        a(f'v_xor_b32 v27, {nt}, v25')
        a(f'v_lshl_add_u32 v{vT + nt}, v27, 5, v26')


def tag_ready(a):
    a('s_waitcnt lgkmcnt(0)')
    a(f's_add_u32 s{sTAG}, s{sTAG}, 1')


def role_a(a):
    a(f's_and_b32 s4, s{sID}, 7')
    a(f's_lshr_b32 s5, s{sID}, 3')
    a('s_and_b32 s6, s4, 1')
    a('s_lshl_b32 s6, s6, 2')
    a('s_and_b32 s7, s5, 3')
    a(f's_add_u32 s{sHG}, s6, s7')
    a('s_lshr_b32 s6, s4, 1')
    a('s_lshl_b32 s6, s6, 2')
    a('s_lshr_b32 s7, s5, 2')
    a('s_add_u32 s6, s6, s7')
    a(f's_mov_b32 s{sRB}, s6')
    a('s_lshl_b32 s6, s6, 3')
    a(f's_add_u32 s15, s6, s{sHG}')
    a('s_lshl_b32 s12, s15, 1')
    a(f's_add_u32 s12, s12, s{sWH}')
    X = 156
    a('s_lshl_b32 s4, s12, 2')
    a(f's_add_u32 s4, s4, s{sW}')
    a('s_mul_i32 s4, s4, 2560')
    a(f'v_mul_u32_u24 v24, 40, v{vL}')
    xt = []
    for k in range(5):
        xt.append(a(f'buffer_load_dwordx2 {V(X + 2 * k, 2)}, v24, {S(sX, 4)}, s4 offen offset:{8 * k}{NTP}'))
    srd(a, sWQ, P_WQKV, D_ * 3 * D_ * 2)
    vLN = 8
    a(f'v_lshlrev_b32 v{vLN}, 4, v{vL}')
    a(f'v_add_u32 v{vLN + 1}, 4096, v{vLN}')
    a(f's_mul_i32 s{sM0B}, s{sW8}, 5120')
    a('s_lshl_b32 s10, s15, 2')
    a(f's_add_u32 s10, s10, s{sW}')
    a('s_mul_i32 s4, s10, 1093')
    a('s_lshr_b32 s4, s4, 16')
    a('s_mul_i32 s5, s4, 60')
    a('s_sub_u32 s5, s10, s5')
    a('s_lshr_b32 s6, s5, 1')
    a('s_and_b32 s7, s5, 1')
    a('s_add_u32 s7, s7, 1')
    a('s_sub_u32 s8, s5, 40')
    a('s_cmp_ge_u32 s5, 40')
    a('s_cselect_b32 s6, s8, s6')
    a('s_cselect_b32 s7, 0, s7')
    a(f's_mul_i32 s6, s6, {32 * 3840}')
    a('s_mul_i32 s7, s7, 1280')
    a('s_mul_i32 s4, s4, 160')
    a('s_add_u32 s6, s6, s7')
    a('s_add_u32 s6, s6, s4')
    a(f's_cmp_eq_u32 s{sWH}, 0')
    a('s_cselect_b32 s10, 480, s10')
    dma160_voffs(a, 12, 3840, True, 18)
    a('s_cmp_ge_u32 s10, 480')
    a(f's_cselect_b32 s7, {OOB}, 0')
    for q in range(5):
        a(f'v_add_u32 v{12 + q}, s7, v{12 + q}')
    utok = dma160(a, 12, sWQ, 6, sM0B, 0, NTP)
    a(f's_mul_i32 s13, s{sWH}, 24576')
    a('s_add_u32 s13, s13, 65536')
    a('s_add_u32 s14, s13, 12288')
    srd(a, sAUX, P_WPHI, 32 * 800)
    a(f's_mul_i32 s6, s{sHG}, 3200')
    a(f's_lshl_b32 s7, s{sW}, 10')
    a('s_add_u32 s6, s6, s7')
    a(f'v_lshl_add_u32 v10, v{vL}, 4, s6')
    a(f's_add_u32 m0, s7, {L_WPHI}')
    a(f'buffer_load_dwordx4 v10, {S(sAUX, 4)}, 0 offen lds')
    for k in range(4):
        a(f'v_mov_b32 v{44 + k}, 0')
    a(f'v_lshlrev_b32 v18, 4, v{vTH}')
    a(f'v_add_u32 v18, {L_ZERO}, v18')
    a('ds_write_b128 v18, v[44:47]')
    a(f'v_mov_b32 v10, {L_CNT}')
    a('v_mov_b32 v11, 0')
    a('ds_write2_b32 v10, v11, v11 offset0:0 offset1:1')
    vONE, vS, vRS, vNB = 34, 36, 168, 170
    a(f'v_mov_b32 v{vONE}, 0x3f803f80')
    for k in range(4):
        a(f'v_mov_b32 v{vS + k}, 0')
    a('s_waitcnt lgkmcnt(0)')
    a(f's_add_u32 s{sTAG}, s{sTAG}, 1')
    a.wait(xt[4])
    stamp(a, 'x')
    for k in range(10):
        a(f'v_dot2c_f32_bf16 v{vS + (k & 1)}, v{X + k}, v{vONE}')
        a(f'v_dot2c_f32_bf16 v{vS + 2 + (k & 1)}, v{X + k}, v{X + k}')
    a(f'v_add_f32 v{vS}, v{vS}, v{vS + 1}')
    a(f'v_add_f32 v{vS + 2}, v{vS + 2}, v{vS + 3}')
    for sh in (8, 4, 2, 1):
        for r in (vS, vS + 2):
            a(f'v_add_f32_dpp v{r}, v{r}, v{r} row_ror:{sh} row_mask:0xf bank_mask:0xf')
    for r in (vS, vS + 2):
        a(f'v_mov_b32 v{r + 1}, v{r}')
        a(f'v_permlane16_swap_b32 v{r}, v{r + 1}')
        a(f'v_add_f32 v{r}, v{r}, v{r + 1}')
    ln_scales(a, vS, vRS, vNB)
    a(f'v_mul_f32 v{vS + 1}, v{vRS}, v{vRS}')
    a(f'v_mov_b32 v{vS + 3}, {fbits(1e-5)}')
    a(f'v_fmac_f32 v{vS + 3}, v{vS + 1}, v{vS + 2}')
    a(f'v_rsq_f32 v{vS + 2}, v{vS + 3}')
    U = 172
    for k in range(10):
        a(f'v_lshlrev_b32 v{U + 2 * k}, 16, v{X + k}')
        a(f'v_and_b32 v{U + 2 * k + 1}, 0xffff0000, v{X + k}')
    for k in range(10):
        a(f'v_pk_fma_f32 {V(U + 2 * k, 2)}, {V(U + 2 * k, 2)}, {V(vRS, 2)}, {V(vNB, 2)} op_sel_hi:[1,0,0]')
    XQ = 192
    for k in range(10):
        a(f'v_cvt_pk_bf16_f32 v{XQ + k}, v{U + 2 * k}, v{U + 2 * k + 1}')
    for k in range(10):
        a(f'v_pk_mul_f32 {V(U + 2 * k, 2)}, {V(U + 2 * k, 2)}, {V(vS + 2, 2)} op_sel_hi:[1,0]')
    for k in range(10):
        a(f'v_cvt_pk_bf16_f32 v{X + k}, v{U + 2 * k}, v{U + 2 * k + 1}')
    a(f's_mul_i32 s4, s{sW}, {2 * 1296}')
    a('s_add_u32 s4, s4, s13')
    a(f'v_mul_u32_u24 v24, 40, v{vL}')
    a(f'v_lshrrev_b32 v25, 5, v{vL}')
    a('v_lshl_add_u32 v24, v25, 4, v24')
    a('v_add_u32 v24, s4, v24')
    for k in range(5):
        a(f'ds_write_b64 v24, {V(XQ + 2 * k, 2)} offset:{8 * k}')
    a(f'v_and_b32 v25, 7, v{vTH}')
    a(f'v_lshrrev_b32 v26, 3, v{vTH}')
    a('v_mul_u32_u24 v28, 1296, v25')
    a('v_lshl_add_u32 v28, v26, 4, v28')
    a('v_add_u32 v28, s13, v28')
    a('v_lshlrev_b32 v29, 8, v26')
    a('v_lshl_add_u32 v29, v25, 4, v29')
    a(f's_lshr_b32 s4, s12, 1')
    a('s_mul_i32 s4, s4, 20480')
    a(f's_and_b32 s5, s12, 1')
    a('s_lshl_b32 s5, s5, 7')
    a('s_add_u32 s4, s4, s5')
    a(f's_add_u32 s4, s4, {XF_OFF}')
    a('v_add_u32 v29, s4, v29')
    a('v_add_u32 v30, 8192, v29')
    a(f's_cmp_ge_u32 s{sW}, 2')
    a(f's_cselect_b32 s4, {OOB}, 16384')
    a('v_add_u32 v31, s4, v29')
    a(f's_mul_i32 s4, s{sW}, 2560')
    a('s_add_u32 s4, s4, s14')
    a(f'v_mul_u32_u24 v24, 40, v{vL}')
    a('v_add_u32 v24, s4, v24')
    for k in range(5):
        a(f'ds_write_b64 v24, {V(X + 2 * k, 2)} offset:{8 * k}')
    a(f'v_mul_u32_u24 v24, 1280, v{vR}')
    a(f'v_mul_u32_u24 v25, 160, v{vG}')
    a('v_add_u32 v24, v24, v25')
    a(f'v_mul_u32_u24 v25, 40, v{vC}')
    a('v_add_u32 v24, v24, v25')
    a('v_add_u32 v24, s14, v24')
    a(f'v_mul_u32_u24 v25, {64 * 5120}, v{vG}')
    a(f'v_lshl_add_u32 v25, v{vI}, 4, v25')
    a(f's_lshr_b32 s4, s12, 2')
    a('s_mul_i32 s4, s4, 5120')
    a(f's_and_b32 s5, s12, 3')
    a('s_lshl_b32 s5, s5, 8')
    a('s_add_u32 s4, s4, s5')
    a(f's_add_u32 s8, s4, {HF_OFF}')
    a.wait_lg0()
    a('s_barrier')
    ht = []
    for m in range(3):
        ht.append(a(f'ds_read_b128 {V(XQ + 4 * m, 4)}, v28 offset:{512 * m}'))
    for m in range(3):
        a.wait(ht[m])
        a(f'buffer_store_dwordx4 {V(XQ + 4 * m, 4)}, v{29 + m}, {S(sWS, 4)}, 0 offen sc1')
    ht = []
    for m in range(3):
        a(f's_add_u32 s4, s{sW}, {4 * m}')
        a('s_min_u32 s5, s4, 9')
        a('s_cmp_ge_u32 s5, 5')
        a(f's_cselect_b32 s6, {640 - 40}, 0')
        a(f's_cselect_b32 s7, {4 * 64 * 5120 - 5120}, 0')
        a('s_lshl_b32 s5, s5, 3')
        a('s_add_u32 s5, s5, s6')
        a('v_add_u32 v26, s5, v24')
        a(f'ds_read_b64_tr_b16 {V(U + 4 * m, 2)}, v26')
        ht.append(a(f'ds_read_b64_tr_b16 {V(U + 4 * m + 2, 2)}, v26 offset:{4 * 1280}'))
        a('s_lshl_b32 s5, s4, 10')
        a('s_add_u32 s5, s5, s7')
        a('s_add_u32 s5, s5, s8')
        a('s_cmp_ge_u32 s4, 10')
        a(f's_cselect_b32 s5, {OOB}, s5')
        a(f'v_add_u32 v{34 + m}, s5, v25')
    for m in range(3):
        a.wait(ht[m])
        a(f'buffer_store_dwordx4 {V(U + 4 * m, 4)}, v{34 + m}, {S(sWS, 4)}, 0 offen sc1')
    hst = ('vm', a.vm_issued - 1)
    a(f'v_mul_u32_u24 v29, 160, v{vGR}')
    a(f'v_mul_u32_u24 v24, 40, v{vC}')
    a('v_add_u32 v29, v29, v24')
    a(f'v_add_u32 v29, s{sM0B}, v29')
    a('s_mul_i32 s4, s10, 5120')
    a(f's_add_u32 s4, s4, {WF_OFF}')
    a('s_cmp_ge_u32 s10, 480')
    a(f's_cselect_b32 s4, {OOB}, s4')
    a(f'v_add_u32 v24, s4, v{vLN}')
    a(f'v_add_u32 v25, s4, v{vLN + 1}')
    a(f's_lshl_b32 s5, s10, {FSH}')
    a(f's_add_u32 s5, s5, {FU_OFF}')
    a('s_cmp_ge_u32 s10, 480')
    a(f's_cselect_b32 s10, {OOB}, s5')
    a.wait(utok)
    ut = []
    for t in range(5):
        a(f'ds_read_b64_tr_b16 {V(UP(t), 2)}, v29 offset:{8 * t}')
        ut.append(a(f'ds_read_b64_tr_b16 {V(UP(t) + 2, 2)}, v29 offset:{8 * t + 2560}'))
    for t in range(5):
        a.wait(ut[t])
        vo, off = (24, t * 1024) if t < 4 else (25, 0)
        a(f'buffer_store_dwordx4 {V(UP(t), 4)}, v{vo}, {S(sWS, 4)}, 0 offen offset:{off} sc1')
    a(f's_lshl_b32 s4, s{sWH}, 2')
    a(f's_add_u32 s4, s4, {L_CNT}')
    a('v_mov_b32 v10, s4')
    a('v_mov_b32 v11, 1')
    a.wait(hst)
    a('s_mov_b64 exec, 1')
    a('ds_add_rtn_u32 v11, v10, v11')
    a('s_mov_b64 exec, -1')
    a.wait_lg0()
    a('v_readfirstlane_b32 s5, v11')
    a(f's_lshl_b32 s4, s12, {FSH}')
    a(f's_add_u32 s4, s4, {FH_OFF}')
    a('s_cmp_lg_u32 s5, 3')
    a('s_cbranch_scc1 L_nofh')
    flag_set(a, 4)
    a.label('L_nofh')
    a.wait_vm0()
    flag_set(a, 10)
    stamp(a, 'prep')
    a(f's_mov_b32 s{sL}, {fbits(LOG2E)}')
    a(f's_mov_b32 s{sL + 1}, {fbits(LOG2E)}')
    a(f's_mov_b32 s{sNL}, {fbits(-LOG2E)}')
    a(f's_mov_b32 s{sNL + 1}, {fbits(-LOG2E)}')
    a(f's_mul_i32 s10, s{sHG}, 60')
    a(f's_lshl_b32 s4, s10, {FSH}')
    a(f's_add_u32 s4, s4, {FU_OFF}')
    a(f'v_lshl_add_u32 v20, v{vL}, {FSH}, s4')
    a(f's_lshl_b32 s11, s{sRB}, 2')
    a(f's_add_u32 s11, s11, s{sW}')
    a(f's_lshl_b32 s4, s11, {FSH + 2}')
    a(f's_add_u32 s4, s4, {FH_OFF}')
    a(f'v_lshl_add_u32 v21, v{vC}, {FSH}, s4')
    a(f'v_cmp_gt_u32 vcc, 60, v{vL}')
    a('v_cndmask_b32 v20, v21, v20, vcc')
    a(f's_add_u32 s10, s10, s{sW}')
    a('s_mul_i32 s10, s10, 5120')
    a(f's_add_u32 s10, s10, {WF_OFF}')
    a(f's_add_u32 s9, s10, {40 * 5120}')
    a(f's_mul_i32 s{sM0B}, s{sW}, 5120')
    a('s_mul_i32 s11, s11, 40960')
    a(f's_add_u32 s11, s11, {XF_OFF}')
    a(f'v_add_u32 v10, 20480, v{vLN}')
    a(f'v_add_u32 v26, {L_RING}, v{vLN}')
    a(f'v_add_u32 v27, 61440, v{vLN}')

    def wphi_frags(WPF, wbase, zbase):
        a(f'v_mul_u32_u24 v22, 800, v{vG}')
        a(f'v_mul_u32_u24 v23, 40, v{vR}')
        a('v_add_u32 v22, v22, v23')
        a(f'v_add_u32 v22, {wbase}, v22')
        a(f'v_mov_b32 v23, {zbase}')
        a(f'v_cmp_eq_u32 vcc, v{vG}, v{vC}')
        a('v_cndmask_b32 v22, v23, v22, vcc')
        for t in range(5):
            for d4 in range(5):
                a(f'ds_read_b64_tr_b16 {V(WPF(t, d4 // 2) + 2 * (d4 % 2), 2)}, v22 offset:{4 * d4 * 40 + 8 * t}')

    Q = lambda k: 48 + 4 * k
    WPF = lambda t, ks: Q(2 * t + ks) if ks < 2 else Q(10 + t // 2) + 2 * (t % 2)
    a('s_barrier')
    wphi_frags(WPF, L_WPHI, L_ZERO)
    a.wait_lg0()
    a('s_barrier')
    flag_check(a, flag_issue(a, 20, 21), 20, 21)
    stamp(a, 'go')

    def xload(dst, ks, z):
        off = f' offset:{(ks % 4) * 1024}' if ks % 4 else ''
        t = a(f'buffer_load_dwordx4 {V(dst, 4)}, v{vLN if z == 0 else 10}, {S(sWS, 4)}, s11 offen{off} sc1')
        if ks % 4 == 3 and z == 1:
            a('s_add_u32 s11, s11, 4096')
        return t

    a(f's_cmp_lg_u32 s{sWH}, 0')
    a('s_cbranch_scc1 L_a_upper')
    at_split = a.save()
    a('s_setprio 2')
    AC = lambda k, z: Q(13 + 2 * k + z)
    XR = lambda ks, z: Q(33 + (ks % 6) * 2 + z)
    FW = lambda n: Q(45 + n % 7)
    xtok = {}
    for ks in range(5):
        for z in range(2):
            xtok[ks] = xload(XR(ks, z), ks, z)
    a('s_barrier')
    stamp(a, 'a0')
    WIN, NF = 6, 200
    ftok = {}

    def read_frag(n):
        d, r = divmod(n, 20)
        ftok[n] = a(f'ds_read_b128 {V(FW(n), 4)}, v26 offset:{(d % 3) * 20480 + r * 1024}')

    for n in range(WIN):
        read_frag(n)
    for n in range(NF):
        nn = n + WIN
        if nn < NF:
            if nn % 20 == 0:
                a.wait_lg0()
                a('s_barrier')
                if (nn // 20) % 3 == 0:
                    stamp(a, f'a{nn // 20}')
            read_frag(nn)
        ks, k = divmod(n, 10)
        a.wait(ftok[n], xtok[ks])
        for z in range(2):
            c = '0' if ks == 0 else V(AC(k, z), 4)
            a(f'v_mfma_f32_16x16x32_bf16 {V(AC(k, z), 4)}, {V(FW(n), 4)}, {V(XR(ks, z), 4)}, {c}')
        if k in (2, 6) and ks + 5 < 20:
            xtok[ks + 5] = xload(XR(ks + 5, k // 4), ks + 5, k // 4)
    a('s_barrier')
    stamp(a, 'aend')
    vSA, vKA, vKO = 8, 9, 12
    a(f's_lshl_b32 s4, s{sW}, 5')
    a(f'v_lshl_add_u32 v{vSA}, v{vG}, 7, v{vI}')
    a(f'v_add_u32 v{vSA}, s4, v{vSA}')
    a(f'v_mul_u32_u24 v{vSA}, 120, v{vSA}')
    a(f'v_add_u32 v{vSA}, {L_RING}, v{vSA}')
    for z in range(2):
        for t in range(5):
            r = AC(5 + t, z)
            a(f'v_cvt_pk_bf16_f32 v{r}, v{r}, v{r + 1}')
            a(f'v_cvt_pk_bf16_f32 v{r + 1}, v{r + 2}, v{r + 3}')
            a(f'ds_write_b64 v{vSA}, {V(r, 2)} offset:{z * 16 * 120 + 80 + 8 * t}')
    PK = [Q(33), Q(34), Q(35)]
    EN5 = [Q(36 + c) for c in range(5)]
    for z in range(2):
        E5 = [AC(t, z) for t in range(5)]
        P5 = [Q(41 + 5 * z + c) for c in range(5)]
        featmap(a, E5, PK, WPF, P5, E5, EN5, 32)
        for c in range(10):
            a(f'ds_write_b64 v{vSA}, {V(P5[c // 2] + 2 * (c % 2), 2)} offset:{z * 16 * 120 + 8 * c}')
    stamp(a, 'fm')
    a(f's_mul_i32 s4, s{sW}, {128 * 120}')
    a(f's_add_u32 s4, s4, {L_RING}')
    a(f'v_mul_u32_u24 v{vKA}, 120, v{vGR}')
    a(f'v_lshl_add_u32 v{vKA}, v{vC}, 3, v{vKA}')
    a(f'v_add_u32 v{vKA}, s4, v{vKA}')
    a(f's_lshl_b32 s4, s{sHG}, 2')
    a(f's_add_u32 s4, s4, s{sW}')
    a('s_lshl_b32 s4, s4, 4')
    a(f's_add_u32 s13, s4, s{sRB}')
    a('s_mul_i32 s4, s13, 6144')
    a(f's_add_u32 s4, s4, {KV_OFF}')
    a(f'v_lshl_add_u32 v{vKO}, v{vL}, 4, s4')
    a('s_movk_i32 s12, 0x1000')
    a(f'v_mov_b32 v11, {OOB}')
    a(f'v_cmp_gt_u32 vcc, 8, v{vI}')
    a(f'v_cndmask_b32 v{vKO + 1}, v11, v{vKO}, vcc')
    a(f'v_cmp_gt_u32 vcc, 2, v{vG}')
    a(f'v_cndmask_b32 v{vKO + 2}, v11, v{vKO}, vcc')
    a(f'v_cndmask_b32 v{vKO + 3}, v11, v{vKO + 1}, vcc')
    a(f's_lshl_b32 s13, s13, {FSH}')
    a(f's_add_u32 s10, s13, {FK_OFF}')
    a('v_mov_b32 v11, 0x3f803f80')
    a(f'v_cmp_eq_u32 vcc, 1, v{vR}')
    a.wait_lg0()
    a('s_barrier')
    ktok = {}
    OPQ = lambda kk, x: Q(13 + kk * 5 + x)
    KVA = [Q(k) for k in range(6)]

    def kv_read(kk):
        for x in range(5):
            col = 32 * x if x < 3 else 80 + 32 * (x - 3)
            a(f'ds_read_b64_tr_b16 {V(OPQ(kk, x), 2)}, v{vKA} offset:{kk * 32 * 120 + col}')
            ktok[kk] = a(f'ds_read_b64_tr_b16 {V(OPQ(kk, x) + 2, 2)}, v{vKA} offset:{kk * 32 * 120 + 16 * 120 + col}')

    kv_read(0)
    for kk in range(4):
        if kk + 1 < 4:
            kv_read(kk + 1)
        a.wait(ktok[kk])
        for j in range(4):
            a(f'v_cndmask_b32 v{OPQ(kk, 4) + j}, v{OPQ(kk, 4) + j}, v11, vcc')
        for et in range(2):
            for ft in range(3):
                d = V(KVA[ft * 2 + et], 4)
                a(f'v_mfma_f32_16x16x32_bf16 {d}, {V(OPQ(kk, 3 + et), 4)}, {V(OPQ(kk, ft), 4)}, {"0" if kk == 0 else d}')
    for ft in range(3):
        for et in range(2):
            vo = vKO + (1 if ft == 2 else 0) + (2 if et == 1 else 0)
            so = 's12' if ft == 2 else '0'
            a(f'buffer_store_dwordx4 {V(KVA[ft * 2 + et], 4)}, v{vo}, {S(sWS, 4)}, {so} offen offset:{(ft % 2) * 2048 + et * 1024} sc1')
    a.wait_vm0()
    flag_set(a, 10)
    a(f's_mov_b32 s10, {OOB}')
    a('s_barrier')
    a('s_branch L_join')

    a.label('L_a_upper')
    a.restore(at_split)
    wtok = {}

    def dma5(so, lds):
        a(f's_add_u32 m0, s{sM0B}, {lds}')
        for q in range(4):
            off = f' offset:{q * 1024}' if q else ''
            a(f'buffer_load_dwordx4 v{vLN}, {S(sWS, 4)}, s{so} offen{off} sc1 lds')
        a(f's_add_u32 m0, s{sM0B}, {lds + 4096}')
        t = a(f'buffer_load_dwordx4 v{vLN + 1}, {S(sWS, 4)}, s{so} offen sc1 lds')
        a(f's_add_u32 s{so}, s{so}, 20480')
        return t

    NXR = 12
    XQ_ = lambda ks, z: Q(13 + (ks % NXR) * 2 + z)
    AQ = lambda t, z: Q(37 + 2 * t + z)
    FQ = lambda n: Q(47 + n % 5)
    xtok = {}
    for d in range(3):
        wtok[d] = dma5(10, L_RING + d * 20480)
    for d in range(10):
        a.wait(wtok[d])
        a('s_barrier')
        if 1 <= d and d + 2 < 10:
            wtok[d + 2] = dma5(10, L_RING + ((d + 2) % 3) * 20480)
        if d < 5:
            qtok = dma5(9, L_WQ + d * 20480)
        if 4 <= d < 10:
            for ks in (2 * (d - 4), 2 * (d - 4) + 1):
                for z in range(2):
                    xtok[ks] = xload(XQ_(ks, z), ks, z)
    a.wait(qtok)
    a('s_barrier')
    ftok = {}

    def read_q(n):
        off = n * 1024
        ftok[n] = a(f'ds_read_b128 {V(FQ(n), 4)}, v{vLN if off < 61440 else 27} offset:{off % 61440}')

    QBAR = int(os.environ.get('QBAR', '-1'))
    if QBAR < 0:
        a('s_barrier')
    for n in range(4):
        read_q(n)
    for n in range(100):
        if n + 4 < 100:
            read_q(n + 4)
        ks, t = divmod(n, 5)
        a.wait(ftok[n], xtok[ks])
        for z in range(2):
            c = '0' if ks == 0 else V(AQ(t, z), 4)
            a(f'v_mfma_f32_16x16x32_bf16 {V(AQ(t, z), 4)}, {V(FQ(n), 4)}, {V(XQ_(ks, z), 4)}, {c}')
        if t in (1, 3) and ks >= 1 and ks - 1 + NXR < 20:
            xtok[ks - 1 + NXR] = xload(XQ_(ks - 1 + NXR, t // 2), ks - 1 + NXR, t // 2)
        if n == QBAR:
            a('s_barrier')
    a('s_barrier')
    stamp(a, 'aend')
    PK = [Q(13), Q(14), Q(15)]
    EN5 = [Q(16 + c) for c in range(5)]
    PP = [[Q(21 + 5 * z + c) for c in range(5)] for z in range(2)]
    for z in range(2):
        E5 = [AQ(t, z) for t in range(5)]
        featmap(a, E5, PK, WPF, PP[z], E5, EN5, 32)
    stamp(a, 'fm')
    a('s_setprio 3')
    a(f's_mul_i32 s6, s{sW}, 10240')
    a(f's_add_u32 s6, s6, {L_RING}')
    a(f'v_lshlrev_b32 v31, 11, v{vG}')
    a(f'v_lshl_add_u32 v31, v{vR}, 3, v31')
    a('v_mov_b32 v21, 8192')
    a(f'v_cmp_eq_u32 vcc, v{vG}, v{vC}')
    a('v_cndmask_b32 v31, v21, v31, vcc')
    a('v_add_u32 v31, s6, v31')
    for k in range(4):
        a(f'v_mov_b32 v{44 + k}, 0')
    a(f'v_add_u32 v21, s6, v{vLN}')
    a('ds_write_b128 v21, v[44:47] offset:8192')
    a('ds_write_b128 v21, v[44:47] offset:9216')
    a(f's_lshl_b32 s4, s{sHG}, {4 + FSH}')
    a(f's_add_u32 s4, s4, {FR_OFF}')
    a(f'v_lshl_add_u32 v20, v{vI}, {FSH}, s4')
    a(f'v_lshlrev_b32 v8, 4, v{vL}')
    a('v_add_u32 v9, 4096, v8')
    a(f'v_lshlrev_b32 v10, 3, v{vL}')
    a(f's_lshl_b32 s5, s{sHG}, 13')
    a(f's_add_u32 s5, s5, {KB_OFF}')
    a(f's_lshl_b32 s7, s{sRB}, 1')
    a(f's_lshr_b32 s8, s{sW}, 1')
    a('s_add_u32 s7, s7, s8')
    a(f's_and_b32 s8, s{sW}, 1')
    a('s_lshl_b32 s8, s8, 1')
    a(f's_lshr_b32 s12, s{sHG}, 1')
    a('s_mul_i32 s12, s12, 5')
    a('s_mul_i32 s13, s7, 20')
    a('s_add_u32 s12, s12, s13')
    a('s_lshl_b32 s12, s12, 2')
    a('s_add_u32 s12, s12, s8')
    a('s_lshl_b32 s12, s12, 10')
    a(f's_add_u32 s12, s12, {OF_OFF}')
    a(f's_and_b32 s13, s{sHG}, 1')
    a(f's_mul_i32 s14, s13, {3 * 4096}')
    a('s_add_u32 s14, s14, s12')
    a('s_lshl_b32 s13, s13, 9')
    a('s_add_u32 s12, s12, s13')
    a(f's_add_u32 s12, s12, {2 * 4096}')
    a('s_lshl_b32 s13, s7, 3')
    a(f's_add_u32 s13, s13, s{sHG}')
    a('s_lshl_b32 s13, s13, 2')
    a('s_add_u32 s13, s13, s8')
    a(f's_lshl_b32 s13, s13, {FSH}')
    a(f's_add_u32 s13, s13, {FO_OFF}')
    flag_check(a, flag_issue(a, 20, 21), 20, 21, int(os.environ.get('RSLEEP', '8')))
    stamp(a, 'rok')
    for hh in range(2):
        a(f's_add_u32 m0, s6, {4096 * hh}')
        for q in range(4):
            off = f' offset:{q * 1024}' if q else ''
            a(f'buffer_load_dwordx4 v{8 + hh}, {S(sWS, 4)}, s5 offen{off} sc1 lds')
    a.wait_all()
    OA = [[Q(31 + k) for k in range(6)], [Q(37 + k) for k in range(6)]]
    KF = lambda ks, t: Q((ks % 2) * 6 + t)
    otok = {}

    def o_read(ks):
        for t in range(6):
            a(f'ds_read_b64_tr_b16 {V(KF(ks, t), 2)}, v31 offset:{kb_pos(8 * ks, t)}')
            otok[ks] = a(f'ds_read_b64_tr_b16 {V(KF(ks, t) + 2, 2)}, v31 offset:{kb_pos(8 * ks + 4, t)}')

    o_read(0)
    for ks in range(5):
        if ks + 1 < 5:
            o_read(ks + 1)
        a.wait(otok[ks])
        for z in range(2):
            for t in range(6):
                d = V(OA[z][t], 4)
                a(f'v_mfma_f32_16x16x32_bf16 {d}, {V(KF(ks, t), 4)}, {V(PP[z][ks], 4)}, {"0" if ks == 0 else d}')
    for z in range(2):
        O = OA[z]
        PO = PK if z == 0 else [Q(16), Q(17), Q(18)]
        a(f'v_add_f32 v{O[5]}, {fbits(1e-6)}, v{O[5]}')
        a(f'v_rcp_f32 v{O[5]}, v{O[5]}')
        for t in range(5):
            for h in range(2):
                a(f'v_pk_mul_f32 {V(O[t] + 2 * h, 2)}, {V(O[t] + 2 * h, 2)}, {V(O[5], 2)} op_sel_hi:[1,0]')
        for k in range(10):
            t, j = divmod(2 * k, 4)
            a(f'v_cvt_pk_bf16_f32 v{PO[k // 4] + k % 4}, v{O[t] + j}, v{O[t] + j + 1}')
        off = f' offset:{1024 * z}' if z else ''
        a(f'buffer_store_dwordx4 {V(PO[0], 4)}, v8, {S(sWS, 4)}, s14 offen{off} sc1')
        a(f'buffer_store_dwordx4 {V(PO[1], 4)}, v9, {S(sWS, 4)}, s14 offen{off} sc1')
        a(f'buffer_store_dwordx2 {V(PO[2], 2)}, v10, {S(sWS, 4)}, s12 offen{off} sc1')
    a.wait_vm0()
    flag_set(a, 13)
    a(f's_cmp_lg_u32 s{sID}, 0')
    a('s_cbranch_scc1 L_a_done')
    a(f's_cmp_lg_u32 s{sW}, 3')
    a('s_cbranch_scc1 L_a_done')
    a(f'v_and_b32 v20, 31, v{vL}')
    a('v_min_u32 v20, 26, v20')
    a(f'v_and_b32 v21, 32, v{vL}')
    a('v_add_u32 v20, v20, v21')
    a(f'v_lshlrev_b32 v20, {FSH + 2}, v20')
    for k in range(4):
        a(f'v_add_u32 v22, {FG_OFF + (k * 256 << FSH)}, v20')
        flag_check(a, flag_issue(a, 22, 21), 22, 21, 12)
    a(f'v_lshlrev_b32 v20, {FSH}, v{vL}')
    for base in (FR_OFF, FR_OFF + (64 << FSH)):
        a(f'v_add_u32 v22, {base}, v20')
        flag_check(a, flag_issue(a, 22, 21), 22, 21, 12)
    a(f'v_and_b32 v20, 31, v{vL}')
    a(f'v_lshlrev_b32 v20, {FSH}, v20')
    a(f'v_add_u32 v22, {FW_OFF}, v20')
    flag_check(a, flag_issue(a, 22, 21), 22, 21, 12)
    a(f's_mov_b32 s10, {EP_OFF}')
    flag_set(a, 10)
    a.label('L_a_done')
    stamp_flush(a, 'end')
    a('s_endpgm')


def role_b(a):
    if 'map4' in EXP:
        a(f's_lshr_b32 s{sBCB}, s6, 2')
        a('s_and_b32 s9, s6, 3')
        a('s_lshl_b32 s6, s9, 1')
    else:
        a('s_cmp_ge_u32 s6, 54')
        a('s_cselect_b32 s7, 54, 0')
        a('s_cselect_b32 s8, 4, 0')
        a('s_sub_u32 s6, s6, s7')
        a(f's_lshr_b32 s{sBCB}, s6, 1')
        a('s_and_b32 s9, s6, 1')
        a('s_lshl_b32 s6, s9, 1')
        a('s_add_u32 s6, s6, s8')
    PR = 24 if 'map4' in EXP else 48
    a(f's_add_u32 s{sBDB}, s6, s{sWH}')
    srd(a, sW1, P_W1, S_ * F_ * 2)
    g_common(a)
    gB = GGemm(a, 'B')
    gB.setup()
    BPRE = int(os.environ.get('BPRE', '10'))
    if 'g1first' in EXP:
        a('s_lshl_b32 s4, s9, 1')
        a(f's_add_u32 s4, s4, s{sWH}')
        a(f's_lshl_b32 s5, s{sW}, 9')
        a('s_add_u32 s4, s4, s5')
        a(f's_mul_i32 s4, s4, {F_ * 2}')
        a(f's_lshl_b32 s5, s{sBCB}, 7')
        a('s_add_u32 s4, s4, s5')
        a(f'v_mul_u32_u24 v24, {8 * F_ * 2}, v{vL}')
        a('v_add_u32 v24, s4, v24')
        a(f'buffer_load_dword v37, v24, {S(sW1, 4)}, 0 offen')
    for j in range(BPRE):
        Hooks(gB.dma_items(j)).flush()

    def b_extra(j):
        return []

    a('s_lshl_b32 s4, s9, 1')
    a(f's_add_u32 s4, s4, s{sWH}')
    a(f's_mul_i32 s4, s4, {PR}')
    a(f's_lshl_b32 s5, s{sW}, 9')
    a('s_add_u32 s4, s4, s5')
    a(f's_add_u32 s4, s4, {32 * B_P}')
    a(f's_mul_i32 s4, s4, {F_ * 2}')
    a(f's_lshl_b32 s5, s{sBCB}, 7')
    a('s_add_u32 s4, s4, s5')
    a(f'v_min_u32 v24, {PR - 1}, v{vL}')
    a(f'v_mul_u32_u24 v24, {F_ * 2}, v24')
    a('v_add_u32 v24, s4, v24')
    if 'g1first' not in EXP:
        a(f'buffer_load_dword v37, v24, {S(sW1, 4)}, 0 offen')
    srd(a, sAUX, P_B1, F_ * 2)
    a(f's_lshl_b32 s4, s{sBCB}, 7')
    a(f's_lshl_b32 s5, s{sW}, 5')
    a('s_add_u32 s4, s4, s5')
    a(f'v_lshl_add_u32 v24, v{vG}, 3, s4')
    a(f'buffer_load_dwordx2 v[38:39], v24, {S(sAUX, 4)}, 0 offen')
    tag_ready(a)
    a('s_barrier')
    stamp(a, 'prep')
    a(f's_cmp_lg_u32 s{sWH}, 0')
    a('s_cbranch_scc1 L_b_go')
    flag_check(a, flag_issue(a, vFL, vFD), vFL, vFD, 3)
    a.label('L_b_go')
    a.wait_vm0()
    a('s_barrier')
    stamp(a, 'go')
    Hooks(gB.frag_items(FIRST)).flush()
    for j in range(BPRE, B_P):
        Hooks(gB.dma_items(j)).flush()

    gB.mainloop(b_extra)
    stamp(a, 'Bend')
    gB.reduce()
    R = lambda t, j: ACC(t, 0) + j
    T = lambda t, j: ACC(t, 1) + j
    a('v_lshlrev_b32 v34, 16, v38')
    a('v_and_b32 v35, 0xffff0000, v38')
    a('v_lshlrev_b32 v36, 16, v39')
    a('v_and_b32 v37, 0xffff0000, v39')
    c0 = 0.7978845608028654
    k1 = -2.0 * c0 * LOG2E
    k2 = k1 * 0.044715
    a(f's_mov_b32 s4, {fbits(k2)}')
    a(f's_mov_b32 s5, {fbits(k2)}')
    a(f'v_mov_b32 v24, {fbits(k1)}')
    a('v_mov_b32 v26, 1.0')
    th = [(t, h) for t in range(5) for h in range(2)]
    tj = [(t, j) for t in range(5) for j in range(4)]
    for t, h in th:
        a(f'v_pk_add_f32 {V(R(t, 2 * h), 2)}, {V(R(t, 2 * h), 2)}, {V(34 + 2 * h, 2)}')
    for t, h in th:
        a(f'v_pk_mul_f32 {V(T(t, 2 * h), 2)}, {V(R(t, 2 * h), 2)}, {V(R(t, 2 * h), 2)}')
    for t, h in th:
        a(f'v_pk_fma_f32 {V(T(t, 2 * h), 2)}, {V(T(t, 2 * h), 2)}, s[4:5], v[24:25] op_sel_hi:[1,0,0]')
    for t, h in th:
        a(f'v_pk_mul_f32 {V(T(t, 2 * h), 2)}, {V(T(t, 2 * h), 2)}, {V(R(t, 2 * h), 2)}')
    for t, j in tj:
        a(f'v_exp_f32 v{T(t, j)}, v{T(t, j)}')
    for t, h in th:
        a(f'v_pk_add_f32 {V(T(t, 2 * h), 2)}, {V(T(t, 2 * h), 2)}, v[26:27] op_sel_hi:[1,0]')
    for t, j in tj:
        a(f'v_rcp_f32 v{T(t, j)}, v{T(t, j)}')
    for t, h in th:
        a(f'v_pk_mul_f32 {V(T(t, 2 * h), 2)}, {V(T(t, 2 * h), 2)}, {V(R(t, 2 * h), 2)}')
    a(f's_mul_i32 s4, s{sW8}, 2560')
    a('s_add_u32 s4, s4, 81920')
    a(f'v_lshl_add_u32 v24, v{vL}, 3, s4')
    for t in range(5):
        a(f'v_cvt_pk_bf16_f32 v{R(t, 0)}, v{T(t, 0)}, v{T(t, 1)}')
        a(f'v_cvt_pk_bf16_f32 v{R(t, 1)}, v{T(t, 2)}, v{T(t, 3)}')
        a(f'ds_write_b64 v24, {V(R(t, 0), 2)} offset:{t * 512}')
    a(f's_mul_i32 s4, s{sBDB}, 74')
    a(f's_lshl_b32 s5, s{sBCB}, 1')
    a('s_add_u32 s4, s4, s5')
    a('s_mul_i32 s4, s4, 5120')
    a(f's_add_u32 s15, s4, {GF_OFF}')
    a(f's_mul_i32 s4, s{sWH}, 10240')
    a('s_add_u32 s4, s4, 81920')
    a(f'v_lshl_add_u32 v25, v{vL}, 3, s4')
    a.wait_lg0()
    a('s_barrier')
    gt = []
    for m in range(3):
        frag10_addr(a, m, 2 * 2560 - 5 * 512, 512, 15, 24, 25, 34 + m)
        a(f'ds_read_b64 {V(ACC(m, 2), 2)}, v24')
        gt.append(a(f'ds_read_b64 {V(ACC(m, 2) + 2, 2)}, v24 offset:2560'))
    for m in range(3):
        a.wait(gt[m])
        a(f'buffer_store_dwordx4 {V(ACC(m, 2), 4)}, v{34 + m}, {S(sWS, 4)}, 0 offen sc1')
    a(f's_lshl_b32 s4, s{sBDB}, 5')
    a(f's_add_u32 s4, s4, s{sBCB}')
    a('s_lshl_b32 s4, s4, 2')
    a(f's_add_u32 s4, s4, s{sW}')
    a(f's_lshl_b32 s4, s4, {FSH}')
    a(f's_add_u32 s10, s4, {FG_OFF}')
    a('s_branch L_join')


def role_r(a):
    a('s_lshl_b32 s11, s6, 1')
    a(f's_add_u32 s11, s11, s{sWH}')
    a('s_lshr_b32 s8, s6, 3')
    a('s_lshl_b32 s8, s8, 3')
    a(f's_add_u32 s8, s8, s{sW8}')
    a('s_getpc_b64 s[6:7]')
    a.raw('L_pc:')
    a(f's_sub_u32 s{sAUX}, s6, L_pc - L_start')
    a('s_subb_u32 s7, s7, 0')
    a(f's_and_b32 s{sAUX + 1}, s7, 0xffff')
    a(f's_mov_b32 s{sAUX + 2}, L_end - L_start')
    a(f's_mov_b32 s{sAUX + 3}, 0x20000')
    a('s_lshl_b32 s6, s8, 13')
    a(f'v_lshl_add_u32 v25, v{vL}, 7, s6')
    if 'nocpf' not in EXP:
        a(f'buffer_load_dword v37, v25, {S(sAUX, 4)}, 0 offen')
    if 'notlb' not in EXP:
        a(f's_lshl_b32 s5, s8, 6')
        a(f'v_add_u32 v26, s5, v{vL}')
        a(f'v_mul_u32_u24 v27, {(WS_USED // 1024 + 127) // 128 * 128}, v26')
        a(f'buffer_load_dword v37, v27, {S(sWS, 4)}, 0 offen sc1')
        a('v_lshlrev_b32 v27, 13, v26')
        a(f'buffer_load_dword v37, v27, {S(sW2, 4)}, 0 offen')
        srd(a, sOUT, P_OUT, S_ * D_ * 2)
        a('v_lshlrev_b32 v27, 12, v26')
        a(f'buffer_load_dword v37, v27, {S(sOUT, 4)}, 0 offen sc1')
        srd(a, sAUX, P_B2, S_ * 2)
        a(f'buffer_load_dword v37, v27, {S(sAUX, 4)}, 0 offen')
    a('s_mul_i32 s5, s8, 54')
    a(f's_and_b32 s7, s{sID}, 1')
    a('s_mul_i32 s7, s7, 864')
    a('s_add_u32 s5, s5, s7')
    a('s_lshl_b32 s5, s5, 12')
    a(f's_and_b32 s7, s{sID}, 6')
    a('s_lshl_b32 s7, s7, 9')
    a('s_add_u32 s5, s5, s7')
    a(f'v_lshrrev_b32 v24, 3, v{vL}')
    a(f'v_and_b32 v25, 7, v{vL}')
    a('v_lshlrev_b32 v24, 12, v24')
    a('v_lshl_add_u32 v24, v25, 7, v24')
    a('v_add_u32 v24, s5, v24')
    tag_ready(a)
    a(f'v_mov_b32 v{vFL}, {FH_OFF}')
    if 'pf2now' not in EXP:
        flag_check(a, flag_issue(a, vFL, vFD), vFL, vFD, 16)
    PFA = int(os.environ.get('PFA', '7'))
    a('v_mov_b32 v36, v24')
    for k in range(PFA):
        a(f'buffer_load_dword v37, v36, {S(sW2, 4)}, 0 offen')
        a(f'v_add_u32 v36, {8 * 4096}, v36')
        if k % 2 == 1 and 'pf2fast' not in EXP:
            a.wait_vm0()
    stamp(a, 'prep')
    a('s_setprio 3')
    a(f's_lshl_b32 s4, s11, {4 + FSH}')
    a(f's_add_u32 s4, s4, {FK_OFF}')
    a(f'v_lshl_add_u32 v{vFL}, v{vI}, {FSH}, s4')
    a(f's_lshl_b32 s5, s{sW}, 11')
    a(f'v_lshl_add_u32 v24, v{vL}, 4, s5')
    a(f'v_lshrrev_b32 v25, 5, v{vL}')
    a(f'v_and_b32 v26, 31, v{vL}')
    a('v_lshlrev_b32 v26, 4, v26')
    a('v_lshl_add_u32 v25, v25, 11, v26')
    a('v_add_u32 v25, 1024, v25')
    a(f's_cmp_eq_u32 s{sW}, 2')
    a('s_cselect_b64 vcc, -1, 0')
    a('v_cndmask_b32 v24, v24, v25, vcc')
    a(f'v_lshrrev_b32 v25, 3, v{vL}')
    a(f'v_and_b32 v26, 7, v{vL}')
    a('v_lshlrev_b32 v26, 4, v26')
    a('v_lshl_add_u32 v25, v25, 8, v26')
    a('v_add_u32 v25, 4096, v25')
    a(f's_cmp_eq_u32 s{sW}, 3')
    a('s_cselect_b64 vcc, -1, 0')
    a('v_cndmask_b32 v24, v24, v25, vcc')
    a(f's_mul_i32 s4, s11, {16 * 6144}')
    a(f's_add_u32 s4, s4, {KV_OFF}')
    flag_check(a, flag_issue(a, vFL, vFD), vFL, vFD, 4)
    stamp(a, 'hok')
    stok = []
    for rb in range(16):
        stok.append(a(f'buffer_load_dwordx4 {V(128 + 4 * rb, 4)}, v24, {S(sWS, 4)}, s4 offen sc1'))
        a('s_add_u32 s4, s4, 6144')
    for rb in range(1, 16):
        a.wait(stok[rb])
        for h in range(2):
            a(f'v_pk_add_f32 {V(128 + 2 * h, 2)}, {V(128 + 2 * h, 2)}, {V(128 + 4 * rb + 2 * h, 2)}')
    stamp(a, 'rsum')
    a('v_cvt_pk_bf16_f32 v34, v128, v129')
    a('v_cvt_pk_bf16_f32 v35, v130, v131')
    a('s_lshl_b32 s4, s11, 11')
    a(f's_add_u32 s4, s4, {KB_OFF}')
    a(f'v_lshl_add_u32 v24, v{vTH}, 3, s4')
    a(f'buffer_store_dwordx2 v[34:35], v24, {S(sWS, 4)}, 0 offen sc1')
    a('s_lshl_b32 s4, s11, 2')
    a(f's_add_u32 s4, s4, s{sW}')
    a(f's_lshl_b32 s4, s4, {FSH}')
    a(f's_add_u32 s10, s4, {FR_OFF}')
    a.wait_vm0()
    flag_set(a, 10)
    a(f's_mov_b32 s10, {OOB}')
    stamp(a, 'rpub')
    a('s_barrier')
    for k in range(PFA, 0 if 'nopf2' in EXP else 7):
        a(f'buffer_load_dword v37, v36, {S(sW2, 4)}, 0 offen')
        a(f'v_add_u32 v36, {8 * 4096}, v36')
    a('s_branch L_join')


def role_wot(a):
    a('s_lshl_b32 s11, s6, 1')
    a(f's_add_u32 s11, s11, s{sWH}')
    srd(a, sAUX, P_WO, D_ * D_ * 2)
    a(f'v_lshlrev_b32 v{vF}, 4, v{vL}')
    a(f'v_add_u32 v{vF + 1}, 4096, v{vF}')
    tag_ready(a)
    dma160_voffs(a, 34, 1280, False, 24)
    a('s_mul_i32 s4, s11, 160')
    a(f's_mul_i32 s5, s{sW}, {160 * 1280}')
    a('s_add_u32 s7, s4, s5')
    a(f's_mul_i32 s6, s{sW8}, 20480')
    a(f'v_mul_u32_u24 v24, 20, v{vG}')
    a(f'v_add_u32 v24, v24, v{vR}')
    a('v_mul_u32_u24 v24, 160, v24')
    a(f'v_mul_u32_u24 v25, 40, v{vC}')
    a('v_add_u32 v24, v24, v25')
    a('v_add_u32 v24, s6, v24')
    a('s_mul_i32 s4, s11, 74')
    a(f's_mul_i32 s5, s{sW}, 5')
    a('s_add_u32 s4, s4, s5')
    a('s_add_u32 s4, s4, 54')
    a('s_mul_i32 s4, s4, 5120')
    a(f's_add_u32 s4, s4, {GF_OFF}')
    rounds = [[(0, 0, 0), (0, 1, 4), (1, 0, 8), (1, 1, 12), (2, 0, 16)],
              [(2, 1, 16), (3, 0, 0), (3, 1, 4), (4, 0, 8), (4, 1, 12)]]
    for rd in range(2):
        for k in range(3):
            a(f's_add_u32 s8, s7, {(rd * 80 + k * 32) * 1280}')
            dma160(a, 34, sAUX, 8, 6, k * 5120)
        a.wait_vm0()
        for u, hf, row in rounds[rd]:
            for t in range(5):
                a(f'ds_read_b64_tr_b16 {V(156 + (u * 5 + t) * 4 + 2 * hf, 2)}, v24 offset:{row * 160 + 8 * t}')
            a.wait_lg0()
    for u in range(5):
        for t in range(5):
            vo, off = (vF, t * 1024) if t < 4 else (vF + 1, 0)
            a(f'buffer_store_dwordx4 {V(156 + (u * 5 + t) * 4, 4)}, v{vo}, {S(sWS, 4)}, s4 offen offset:{off} sc1')
        a('s_add_u32 s4, s4, 5120')
    a('s_lshl_b32 s4, s11, 2')
    a(f's_add_u32 s4, s4, s{sW}')
    a(f's_lshl_b32 s4, s4, {FSH}')
    a(f's_add_u32 s10, s4, {FW_OFF}')
    a('s_barrier')


def final_gemm(a):
    a.wait_all()
    flag_set(a, 10)
    stamp(a, 'pub')
    a('s_setprio 0')
    a(f's_cmp_lg_u32 s{sWH}, 0')
    a('s_cbranch_scc1 L_fin')
    xcd_tile(a)
    g_common(a)
    g2 = GGemm(a, 'G2')
    g2.setup()
    for j in range(G2_P):
        Hooks(g2.dma_items(j)).flush()
    srd(a, sOUT, P_OUT, S_ * D_ * 2)
    R = lambda t, j: ACC(t, 0) + j
    T = lambda t, j: ACC(t, 1) + j
    srd(a, sAUX, P_B2, S_ * 2)
    a(f's_lshl_b32 s4, s{sRB}, {5 + FSH}')
    a(f's_lshl_b32 s5, s{sW}, {3 + FSH}')
    a('s_add_u32 s4, s4, s5')
    a(f's_add_u32 s4, s4, {FO_OFF}')
    a(f'v_lshl_add_u32 v34, v{vC}, {FSH + 1}, s4')
    a(f's_lshl_b32 s4, s{sHG}, 2')
    a(f's_add_u32 s4, s4, s{sW}')
    a(f's_lshl_b32 s4, s4, {FSH}')
    a(f's_add_u32 s4, s4, {FW_OFF}')
    a('v_mov_b32 v35, s4')
    a(f'v_cmp_gt_u32 vcc, 63, v{vL}')
    a(f'v_cndmask_b32 v{vFL}, v35, v{vFL}, vcc')
    for nt in range(4):
        a(f's_xor_b32 s4, s{sW}, {nt}')
        a('s_lshl_b32 s4, s4, 10')
        a(f'v_add_u32 v{vOF + nt}, s4, v{vF}')
    a(f's_mul_i32 s4, s{sRB}, 20')
    a(f's_mul_i32 s5, s{sW}, 5')
    a('s_add_u32 s4, s4, s5')
    a('s_lshl_b32 s4, s4, 12')
    a(f's_add_u32 s11, s4, {OF_OFF}')
    a(f'v_mul_u32_u24 v{vXA}, 1280, v{vTOK}')
    a(f'v_mul_u32_u24 v{vBA}, 40, v{vG}')
    a(f'v_add_u32 v{vXA}, v{vXA}, v{vBA}')
    a(f's_mul_i32 s4, s{sHG}, 160')
    a(f'v_add_u32 v{vXA}, s4, v{vXA}')
    a(f'v_lshlrev_b32 v{vBA}, 1, v{vTOK}')
    flag_check(a, flag_issue(a, vFL, vFD), vFL, vFD)
    stamp(a, 'gok')
    fl = {}

    def gate():
        a(f's_mul_i32 s4, s{sHG}, 74')
        a(f's_mul_i32 s5, s{sW}, 5')
        a('s_add_u32 s4, s4, s5')
        a('s_add_u32 s4, s4, 54')
        a('s_mul_i32 s4, s4, 5120')
        a(f's_add_u32 s{sFS}, s4, {GF_OFF}')

    def gate2():
        stamp(a, 'oa')
        flag_check(a, fl['o'], 34, 35)
        stamp(a, 'ob')

    g2.gate = gate
    g2.gate2 = gate2
    XR = [8, 10, 14, 16, 18]

    def g2_extra(j):
        it = []
        if j == 9:
            def fo():
                fl['o'] = flag_issue(a, 34, 35)
            it.append(fo)
        if j == 16:
            def resid():
                a(f'buffer_load_ushort v36, v{vBA}, {S(sAUX, 4)}, 0 offen')
                for t in range(5):
                    fl['x'] = a(f'buffer_load_dwordx2 {V(XR[t], 2)}, v{vXA}, {S(sX, 4)}, 0 offen offset:{8 * t}')
            it.append(resid)
        return it

    Hooks(g2.frag_items(FIRST)).flush()
    g2.mainloop(g2_extra)
    stamp(a, 'Gend')
    g2.reduce()
    a.wait(fl['x'])
    a('v_lshlrev_b32 v36, 16, v36')
    for t in range(5):
        for h in range(2):
            a(f'v_lshlrev_b32 v{T(t, 2 * h)}, 16, v{XR[t] + h}')
            a(f'v_and_b32 v{T(t, 2 * h + 1)}, 0xffff0000, v{XR[t] + h}')
            a(f'v_pk_add_f32 {V(R(t, 2 * h), 2)}, {V(R(t, 2 * h), 2)}, v[36:37] op_sel_hi:[1,0]')
            a(f'v_pk_add_f32 {V(R(t, 2 * h), 2)}, {V(R(t, 2 * h), 2)}, {V(T(t, 2 * h), 2)}')
        a(f'v_cvt_pk_bf16_f32 v{R(t, 0)}, v{R(t, 0)}, v{R(t, 1)}')
        a(f'v_cvt_pk_bf16_f32 v{R(t, 1)}, v{R(t, 2)}, v{R(t, 3)}')
        a(f'buffer_store_dwordx2 {V(R(t, 0), 2)}, v{vXA}, {S(sOUT, 4)}, 0 offen offset:{8 * t}')
    a.label('L_fin')
    stamp_flush(a, 'end')


def build():
    a = Asm()
    hdr = open(os.path.join(os.path.dirname(__file__), '..', 'cdna_kernels', NAME + '.s.ref')).read().split('\n')
    for line in hdr:
        if line.startswith(';') and '@launch' not in line:
            a.raw(line)
    a.raw(f'; @launch grid=(256,1,1) block=(512,1,1) lds={LDS_BYTES}')
    a.raw('.amdgcn_target "amdgcn-amd-amdhsa--gfx950"')
    a.raw('.text')
    K = NAME + '_kernel'
    a.raw(f'.globl {K}')
    a.raw('.p2align 8')
    a.raw(f'.type {K},@function')
    a.raw(f'{K}:')
    a.raw('L_start:')
    a('s_cmp_ge_u32 s2, 256')
    a('s_cbranch_scc1 L_end')
    a('s_load_dwordx16 s[16:31], s[0:1], 0')
    a('s_load_dwordx8 s[32:39], s[0:1], 64')
    a(f'v_and_b32 v{vL}, 63, v0')
    a('v_lshrrev_b32 v6, 6, v0')
    a(f'v_readfirstlane_b32 s{sW8}, v6')
    a(f'v_lshrrev_b32 v{vG}, 4, v{vL}')
    a(f'v_and_b32 v{vI}, 15, v{vL}')
    a(f'v_lshrrev_b32 v{vR}, 2, v{vI}')
    a(f'v_and_b32 v{vC}, 3, v{vL}')
    a(f'v_lshl_add_u32 v{vGR}, v{vG}, 2, v{vR}')
    a(f'v_and_b32 v{vTH}, 255, v0')
    a(f's_and_b32 s{sW}, s{sW8}, 3')
    a(f's_lshr_b32 s{sWH}, s{sW8}, 2')
    a(f's_mov_b32 s{sID}, s2')
    a('s_waitcnt lgkmcnt(0)')
    a(f's_add_u32 s4, s{P_WS}, {EP_OFF}')
    a(f's_addc_u32 s5, s{P_WS + 1}, 0')
    a(f's_load_dword s{sTAG}, s[4:5], 0')
    srd(a, sX, P_X, S_ * D_ * 2)
    srd(a, sWS, P_WS, WS_USED)
    srd(a, sW2, P_W2, F_ * S_ * 2)
    stamp(a, 'start')
    if 'noticket' not in EXP:
        srd(a, sAUX, P_DBG, 256)
        a(f'v_mov_b32 v8, {L_CNT + 16}')
        a(f's_cmp_lg_u32 s{sW8}, 0')
        a('s_cbranch_scc1 L_ticket_done')
        a('s_getreg_b32 s4, hwreg(HW_REG_XCC_ID)')
        a('s_mov_b32 s6, 0')
        a('s_mov_b64 exec, 1')
        a.label('L_ticket')
        a('s_and_b32 s4, s4, 7')
        a('s_lshl_b32 s5, s4, 5')
        a('v_mov_b32 v9, s5')
        a('v_mov_b32 v10, 1')
        a(f'buffer_atomic_add v10, v9, {S(sAUX, 4)}, 0 offen sc0 sc1')
        a.wait_vm0()
        a('v_readfirstlane_b32 s5, v10')
        a('s_cmp_lt_u32 s5, 32')
        a('s_cbranch_scc1 L_ticket_ok')
        a('s_add_u32 s4, s4, 1')
        a('s_add_u32 s6, s6, 1')
        a('s_cmp_lt_u32 s6, 8')
        a('s_cbranch_scc1 L_ticket')
        a.label('L_ticket_ok')
        a('s_lshl_b32 s5, s5, 3')
        a('s_add_u32 s5, s5, s4')
        a('v_mov_b32 v9, s5')
        a('ds_write_b32 v8, v9')
        a('s_mov_b64 exec, -1')
        a('s_waitcnt lgkmcnt(0)')
        a.label('L_ticket_done')
        a('s_barrier')
        a('ds_read_b32 v9, v8')
        a('s_waitcnt lgkmcnt(0)')
        a('s_barrier')
        a(f'v_readfirstlane_b32 s{sID}, v9')
        a(f's_and_b32 s{sID}, s{sID}, 255')
        a.reset_counters()
        stamp(a, 'tick')
    if os.environ.get('UPRIO', '1') != '0':
        a(f's_cmp_eq_u32 s{sWH}, 0')
        a('s_cbranch_scc1 L_prio')
        a(f's_setprio {os.environ.get("UPRIO", "1")}')
        a.label('L_prio')
    a(f's_cmp_ge_u32 s{sID}, 128')
    a('s_cbranch_scc1 L_not_a')
    role_a(a)
    a.label('L_not_a')
    a.reset_counters()
    a(f's_and_b32 s4, s{sID}, 7')
    a(f's_lshr_b32 s5, s{sID}, 3')
    a('s_sub_u32 s5, s5, 16')
    a('s_cmp_ge_u32 s5, 14')
    a('s_cbranch_scc1 L_role_r')
    a('s_and_b32 s7, s4, 1')
    a('s_add_u32 s7, s7, 13')
    a('s_cmp_ge_u32 s5, s7')
    a('s_cbranch_scc1 L_role_wot')
    a('s_mul_i32 s6, s4, 27')
    a('s_lshr_b32 s6, s6, 1')
    a('s_add_u32 s6, s6, s5')
    role_b(a)
    a.label('L_role_r')
    a.reset_counters()
    a(f's_sub_u32 s6, s{sID}, 240')
    role_r(a)
    a.label('L_role_wot')
    a.reset_counters()
    a('s_lshr_b32 s6, s4, 1')
    role_wot(a)
    a.label('L_join')
    final_gemm(a)
    a.label('L_end')
    a('s_endpgm')
    if STAMPS:
        a.raw('; STAMPS ' + ' '.join(STAMP_NAMES))
    a.raw('.section .rodata,"a"')
    a.raw(f""".p2align 6
.amdhsa_kernel {K}
  .amdhsa_next_free_vgpr 256
  .amdhsa_next_free_sgpr 102
  .amdhsa_accum_offset 256
  .amdhsa_group_segment_fixed_size 0
  .amdhsa_kernarg_size 96
  .amdhsa_user_sgpr_count 2
  .amdhsa_user_sgpr_kernarg_segment_ptr 1
  .amdhsa_system_sgpr_workgroup_id_x 1
.end_amdhsa_kernel""")
    sys.stderr.write(f'maxv={a.maxv} maxa={a.maxa} maxs={a.maxs} nops={a.nops} lines={len(a.out)}\n')
    return a.text()


if __name__ == '__main__':
    out = sys.argv[1] if len(sys.argv) > 1 else os.path.join(os.path.dirname(__file__), '..', 'cdna_kernels', NAME + '.s')
    open(out, 'w').write(build())
```

```python
import sys, struct, os
sys.path.insert(0, os.path.dirname(__file__))
from asmdsl import Asm, Rec, V, A, S

NAME = 'parallel_sum__linear_kernel_hedgehog__mixer_token_mlp__prompt'
S_, D_, F_ = 2048, 640, 1728

HF_OFF = 0
HF_SZ = 8 * 64 * 5 * 1024
GF_OFF = HF_OFF + HF_SZ
GF_SZ = 8 * 74 * 5 * 1024
OF_OFF = GF_OFF + GF_SZ
OF_SZ = 32 * 20 * 4 * 1024
XF_OFF = OF_OFF + OF_SZ
XF_SZ = 128 * 20480
WF_OFF = XF_OFF + XF_SZ
WF_SZ = 480 * 5120 + 4096
KV_OFF = WF_OFF + WF_SZ
KV_SZ = 32 * 32 * 6144
KB_OFF = KV_OFF + KV_SZ + 4096
KB_SZ = 32 * 2048
FL_OFF = KB_OFF + KB_SZ + 4096
FSH = int(os.environ.get('FSH', '6'))
FH_OFF = FL_OFF
FK_OFF = FH_OFF + (1024 << FSH)
FR_OFF = FK_OFF + (1024 << FSH)
FG_OFF = FR_OFF + (128 << FSH)
FO_OFF = FG_OFF + (1024 << FSH)
FW_OFF = FO_OFF + (1024 << FSH)
FU_OFF = FW_OFF + (128 << FSH)
EP_OFF = FU_OFF + (512 << FSH)
WS_USED = EP_OFF + 512
STAMP_OFF = WS_USED
WS_USED += 512 * 256
STAMPS = bool(int(os.environ.get('STAMPS', '0')))
EXP = os.environ.get('EXP', '').split(',') + [e for e in ['map4', 'noticket', 'notlb'] if e not in os.environ.get('OFF', '').split(',')]
OOB = 0x40000000

P_X, P_WQKV, P_WPHI, P_WO, P_BX, P_W1, P_B1, P_W2, P_B2, P_OUT, P_DBG, P_WS = range(16, 40, 2)
LOG2E = 1.4426950408889634

sW = 3
sW8, sWH = 90, 91
sWS, sX, sWQ, sW1, sW2, sAUX, sOUT = 40, 44, 48, 52, 56, 60, 64
sHG, sRB, sID, sROT, sKS, sT, sM0B, sTAG = 68, 69, 70, 71, 72, 73, 74, 75
sL, sNL = 76, 78
sBDB, sBCB, sFS, sGM0, sSPIN, sLIM = 80, 81, 82, 83, 84, 85
vL, vG, vI, vR, vC = 1, 2, 3, 4, 5
vTOK, vGR = 6, 7
vFS = 42
DB = 64
XN = lambda s: DB + 8 * s
UP = lambda k: DB + 8 * k + 4

LDS_BYTES = 163840
A_SLOTS = 4
L_WQ = 0
L_RING = 102400
L_ZERO = 122880
L_WPHI = 126976
L_CNT = 131072
B_P = 10
G2_P = 5
ILV = os.environ.get('ILV', 'burst')


def kb_pos(f, t):
    if f < 32:
        return (f >> 4) * 512 + (t * 16 + (f & 15)) * 8 if t < 4 else 1024 + ((f >> 4) * 32 + (t - 4) * 16 + (f & 15)) * 8
    return 1536 + (t * 8 + f - 32) * 8


def fbits(x):
    return '0x%08x' % struct.unpack('<I', struct.pack('<f', x))[0]


def srd(a, dst, ptr, nbytes):
    a(f's_mov_b32 s{dst}, s{ptr}')
    a(f's_and_b32 s{dst + 1}, s{ptr + 1}, 0xffff')
    a(f's_mov_b32 s{dst + 2}, {nbytes}')
    a(f's_mov_b32 s{dst + 3}, 0x20000')


STAMP_NAMES = []
vST = 41


def stamp(a, name):
    if not STAMPS:
        return
    name = str(name)
    if name not in STAMP_NAMES:
        STAMP_NAMES.append(name)
    idx = STAMP_NAMES.index(name)
    a('s_memrealtime s[98:99]')
    a.wait_lg0()
    if idx == 0:
        a(f'v_mov_b32 v{vST}, 0')
        a('s_getreg_b32 s97, hwreg(HW_REG_HW_ID)')
        a(f'v_writelane_b32 v{vST}, s97, 63')
    a(f'v_writelane_b32 v{vST}, s98, {idx}')


def stamp_flush(a, n):
    if not STAMPS:
        return
    a.wait_vm0()
    stamp(a, n)
    lab = a.newlabel('st')
    a(f's_cmp_lg_u32 s{sW}, 0')
    a(f's_cbranch_scc1 {lab}')
    a(f's_lshl_b32 s4, s{sWH}, 8')
    a(f's_add_u32 s4, s4, s{sID}')
    a('s_lshl_b32 s4, s4, 8')
    a(f's_add_u32 s4, s4, {STAMP_OFF}')
    a(f'v_lshl_add_u32 v8, v{vL}, 2, s4')
    a(f'buffer_store_dword v{vST}, v8, {S(sWS, 4)}, 0 offen')
    if 'dbgmax' in EXP:
        srd(a, sAUX, P_DBG, 256)
        sel = os.environ.get('DBGSEL', 'start,x,prep,go,a0,aend,fm,rok,B_0,Bend,pub,gok,G2_0,Gend,end').split(',')
        a(f'v_readlane_b32 s4, v{vST}, 0')
        a('s_not_b32 s4, s4')
        a(f'v_writelane_b32 v{vST}, s4, 62')
        a('s_mov_b64 exec, 1')
        for k, nm in enumerate(['neg'] + sel):
            if nm != 'neg' and nm not in STAMP_NAMES:
                STAMP_NAMES.append(nm)
            lane = 62 if nm == 'neg' else STAMP_NAMES.index(nm)
            a(f'v_readlane_b32 s4, v{vST}, {lane}')
            a('v_mov_b32 v9, s4')
            a('v_mov_b32 v8, 0')
            a(f'buffer_atomic_umax v9, v8, {S(sAUX, 4)}, 0 offen offset:{4 * k} sc1')
        a('s_mov_b64 exec, -1')
    a.label(lab)


def reduce_g(a, r, t):
    a(f'v_mov_b32 v{t}, v{r}')
    a(f'v_permlane32_swap_b32 v{r}, v{t}')
    a(f'v_add_f32 v{r}, v{r}, v{t}')
    a(f'v_mov_b32 v{t}, v{r}')
    a(f'v_permlane16_swap_b32 v{r}, v{t}')
    a(f'v_add_f32 v{r}, v{r}, v{t}')


def dma160_voffs(a, dst, stride, permute, tmp):
    t0, t2, t3 = tmp, tmp + 1, tmp + 2
    for q in range(5):
        d = dst + q
        a(f'v_add_u32 v{t0}, {q * 64}, v{vL}')
        a(f'v_mul_u32_u24 v{t2}, 6554, v{t0}')
        a(f'v_lshrrev_b32 v{t2}, 16, v{t2}')
        a(f'v_mul_u32_u24 v{t3}, 10, v{t2}')
        a(f'v_sub_u32 v{t0}, v{t0}, v{t3}')
        if permute:
            a(f'v_bfe_u32 v{t3}, v{t2}, 2, 2')
            a(f'v_lshlrev_b32 v{t3}, 3, v{t3}')
            a(f'v_and_b32 v{d}, 3, v{t2}')
            a(f'v_add_u32 v{t3}, v{t3}, v{d}')
            a(f'v_lshrrev_b32 v{t2}, 4, v{t2}')
            a(f'v_lshl_add_u32 v{t2}, v{t2}, 2, v{t3}')
        a(f'v_mul_u32_u24 v{t2}, {stride}, v{t2}')
        a(f'v_lshl_add_u32 v{d}, v{t0}, 4, v{t2}')
        if 0 < q < 4:
            a(f'v_subrev_u32 v{d}, {q * 1024}, v{d}')


def dma160(a, vo, ssrd, soff, m0_s, m0_add, nt=''):
    a(f's_add_u32 m0, s{m0_s}, {m0_add}')
    for q in range(4):
        off = f' offset:{q * 1024}' if q else ''
        a(f'buffer_load_dwordx4 v{vo + q}, {S(ssrd, 4)}, s{soff} offen{off}{nt} lds')
    a(f's_add_u32 m0, s{m0_s}, {m0_add + 4096}')
    return a(f'buffer_load_dwordx4 v{vo + 4}, {S(ssrd, 4)}, s{soff} offen{nt} lds')


class Hooks:
    def __init__(self, items=()):
        self.items = list(items)

    def run(self, n=1):
        for _ in range(n):
            if self.items:
                self.items.pop(0)()

    def flush(self):
        self.run(len(self.items))


def softmax_pm(a, P, PH, EP, EN, tmp):
    p = [P[k // 4] + k % 4 for k in range(20)]
    ep = [EP[k // 4] + k % 4 for k in range(20)]
    en = [EN[k // 4] + k % 4 for k in range(20)]
    mx, mn, sp, sn = tmp, tmp + 2, tmp + 4, tmp + 6
    a(f'v_max3_f32 v{mx}, v{p[0]}, v{p[1]}, v{p[2]}')
    a(f'v_min3_f32 v{mn}, v{p[0]}, v{p[1]}, v{p[2]}')
    for k in range(3, 19, 2):
        a(f'v_max3_f32 v{mx}, v{mx}, v{p[k]}, v{p[k + 1]}')
        a(f'v_min3_f32 v{mn}, v{mn}, v{p[k]}, v{p[k + 1]}')
    a(f'v_max_f32 v{mx}, v{mx}, v{p[19]}')
    a(f'v_min_f32 v{mn}, v{mn}, v{p[19]}')
    a(f'v_mul_f32 v{mx}, s{sNL}, v{mx}')
    a(f'v_mul_f32 v{mn}, s{sL}, v{mn}')
    for k in range(0, 20, 2):
        a(f'v_pk_fma_f32 {V(ep[k], 2)}, {V(p[k], 2)}, {S(sL, 2)}, {V(mx, 2)} op_sel_hi:[1,0,0]')
        a(f'v_pk_fma_f32 {V(en[k], 2)}, {V(p[k], 2)}, {S(sNL, 2)}, {V(mn, 2)} op_sel_hi:[1,0,0]')
    for k in range(20):
        a(f'v_exp_f32 v{ep[k]}, v{ep[k]}')
        a(f'v_exp_f32 v{en[k]}, v{en[k]}')
    a(f'v_pk_add_f32 {V(sp, 2)}, {V(ep[0], 2)}, {V(ep[2], 2)}')
    a(f'v_pk_add_f32 {V(sn, 2)}, {V(en[0], 2)}, {V(en[2], 2)}')
    for k in range(4, 20, 2):
        a(f'v_pk_add_f32 {V(sp, 2)}, {V(sp, 2)}, {V(ep[k], 2)}')
        a(f'v_pk_add_f32 {V(sn, 2)}, {V(sn, 2)}, {V(en[k], 2)}')
    a(f'v_add_f32 v{sp}, v{sp}, v{sp + 1}')
    a(f'v_add_f32 v{sn}, v{sn}, v{sn + 1}')
    a(f'v_rcp_f32 v{sp}, v{sp}')
    a(f'v_rcp_f32 v{sn}, v{sn}')
    for k in range(0, 20, 2):
        a(f'v_pk_mul_f32 {V(ep[k], 2)}, {V(ep[k], 2)}, {V(sp, 2)} op_sel_hi:[1,0]')
        a(f'v_pk_mul_f32 {V(en[k], 2)}, {V(en[k], 2)}, {V(sn, 2)} op_sel_hi:[1,0]')
    allv = ep + en
    for k in range(20):
        a(f'v_cvt_pk_bf16_f32 v{PH[k // 4] + k % 4}, v{allv[2 * k]}, v{allv[2 * k + 1]}')


def flag_set(a, s_off):
    a(f'v_lshl_add_u32 v{vFS}, v{vL}, 2, s{s_off}')
    a(f'v_mov_b32 v{vFS + 1}, s{sTAG}')
    a(f's_mov_b64 exec, {hex((1 << (1 << (FSH - 2))) - 1)}')
    a(f'buffer_store_dword v{vFS + 1}, v{vFS}, {S(sWS, 4)}, 0 offen sc1')
    a('s_mov_b64 exec, -1')


def flag_issue(a, vaddr, vdst):
    return a(f'buffer_load_dword v{vdst}, v{vaddr}, {S(sWS, 4)}, 0 offen sc1')


def flag_check(a, tok, vaddr, vdst, sleep=2):
    ok = a.newlabel('ok')
    lp = a.newlabel('poll')
    a.wait(tok)
    a(f'v_cmp_ne_u32 vcc, s{sTAG}, v{vdst}')
    a(f's_cbranch_vccz {ok}')
    a(f's_mov_b32 s{sSPIN}, 0')
    a.label(lp)
    a(f's_sleep {sleep}')
    a.raw(f'\tbuffer_load_dword v{vdst}, v{vaddr}, {S(sWS, 4)}, 0 offen sc1')
    a('s_waitcnt vmcnt(0)')
    a(f'v_cmp_ne_u32 vcc, s{sTAG}, v{vdst}')
    a(f's_cbranch_vccz {ok}')
    a(f's_add_u32 s{sSPIN}, s{sSPIN}, 1')
    a(f's_cmp_lt_u32 s{sSPIN}, 0x8000')
    a(f's_cbranch_scc1 {lp}')
    a.label(ok)


def featmap(a, ACC5, PK, WPF, P5, EP5, EN5, tmp):
    for k in range(10):
        t, j = divmod(2 * k, 4)
        a(f'v_cvt_pk_bf16_f32 v{PK[k // 4] + k % 4}, v{ACC5[t] + j}, v{ACC5[t] + j + 1}')
    for ks in range(3):
        for t in range(5):
            d = V(P5[t], 4)
            if ks < 2:
                a(f'v_mfma_f32_16x16x32_bf16 {d}, {V(WPF(t, ks), 4)}, {V(PK[ks], 4)}, {"0" if ks == 0 else d}')
            else:
                a(f'v_mfma_f32_16x16x16_bf16 {d}, {V(WPF(t, ks), 2)}, {V(PK[ks], 2)}, {d}')
    softmax_pm(a, P5, P5, EP5, EN5, tmp)


def xcd_tile(a):
    a(f's_and_b32 s4, s{sID}, 7')
    a(f's_lshr_b32 s5, s{sID}, 3')
    a('s_and_b32 s6, s4, 1')
    a('s_lshl_b32 s6, s6, 2')
    a('s_and_b32 s7, s5, 3')
    a(f's_add_u32 s{sHG}, s6, s7')
    a('s_lshr_b32 s6, s4, 1')
    a('s_lshl_b32 s6, s6, 3')
    a('s_lshr_b32 s7, s5, 2')
    a(f's_add_u32 s{sRB}, s6, s7')
    a(f's_lshl_b32 s4, s{sRB}, 6')
    a(f's_lshl_b32 s5, s{sW}, 4')
    a('s_add_u32 s4, s4, s5')
    a(f'v_add_u32 v{vTOK}, s4, v{vI}')


def ln_scales(a, vS, vRS, vNB):
    a(f'v_mul_f32 v{vS}, {fbits(1.0 / 640)}, v{vS}')
    a(f'v_mul_f32 v{vS + 2}, {fbits(1.0 / 640)}, v{vS + 2}')
    a(f'v_fma_f32 v{vS + 2}, -v{vS}, v{vS}, v{vS + 2}')
    a(f'v_max_f32 v{vS + 2}, 0, v{vS + 2}')
    a(f'v_add_f32 v{vS + 1}, {fbits(1e-5)}, v{vS + 2}')
    a(f'v_rsq_f32 v{vRS}, v{vS + 1}')
    a(f'v_mul_f32 v{vNB}, v{vS}, v{vRS}')
    a(f'v_sub_f32 v{vNB}, 0, v{vNB}')


vD, vF, vT, vT2, vFL, vFD, vOF, vXA, vBA = 8, 12, 14, 18, 22, 23, 28, 32, 33
ACC = lambda t, nt: 44 + (nt * 5 + t) * 4
TF = lambda j, nt: 124 + (j % 2) * 16 + 4 * nt
POOL = [156 + 4 * k for k in range(25)]


class GGemm:
    def __init__(self, a, kind):
        self.a, self.kind = a, kind
        if kind == 'B':
            self.stride, self.srdm, self.n, self.fr_off, self.fr_steps = F_ * 2, sW1, 16, HF_OFF, 64
            self.sdb, self.scb, self.ntot, self.P = sBDB, sBCB, 16, B_P
        else:
            self.stride, self.srdm, self.n, self.fr_off, self.fr_steps = S_ * 2, sW2, 14, GF_OFF, 74
            self.sdb, self.scb, self.ntot, self.P = sHG, sRB, 19, G2_P
        self.dtok, self.ftok, self.ttok = {}, {}, {}
        self.free = list(POOL)
        self.reg = {}
        self.pending = []
        order = [(j, 'a') for j in range(self.n)]
        if kind == 'G2':
            order += [(j, k) for j in range(14, 19) for k in 'ab']
        for j, k in order:
            self.pending += [(j, k, x) for x in range(5 if k == 'a' else 4)]
        self.gate = lambda: None
        self.gate2 = lambda: None
        self.nq = 2 if kind == 'B' else 4

    def setup(self):
        a, st = self.a, self.stride
        a(f'v_lshrrev_b32 v24, 3, v{vL}')
        if self.kind == 'B':
            a('v_lshrrev_b32 v25, 2, v24')
            a('v_and_b32 v24, 3, v24')
            a('v_lshl_add_u32 v24, v25, 3, v24')
        a(f'v_mul_u32_u24 v24, {st}, v24')
        a(f'v_and_b32 v25, 7, v{vL}')
        a(f'v_lshlrev_b32 v26, 1, v{vG}')
        a('v_xor_b32 v25, v25, v26')
        a('v_lshl_add_u32 v24, v25, 4, v24')
        a(f's_lshl_b32 s4, s{self.scb}, 7')
        a(f's_mul_i32 s5, s{sW}, {self.n * 32 * st}')
        a('s_add_u32 s5, s5, s4')
        if self.kind == 'B':
            a(f's_mul_i32 s6, s{sWH}, {4 * st}')
            a('s_add_u32 s5, s5, s6')
            a(f's_lshl_b32 s6, s{sWH}, 11')
            a(f's_add_u32 s{sM0B}, s{sGM0}, s6')
        else:
            a(f's_mov_b32 s{sM0B}, s{sGM0}')
        for q in range(self.nq):
            row = 8 * q if self.kind != 'B' else q * 16
            a(f's_add_u32 s6, s5, {row * st - 1024 * q}')
            a(f'v_add_u32 v{vD + q}, s6, v24')
        a(f's_mul_i32 s4, s{self.sdb}, {self.fr_steps}')
        a(f's_mul_i32 s5, s{sW}, {self.n}')
        a('s_add_u32 s4, s4, s5')
        a('s_mul_i32 s4, s4, 5120')
        a(f's_add_u32 s{sFS}, s4, {self.fr_off}')
        if self.kind == 'B':
            a(f's_lshl_b32 s4, s{sW}, {6 + FSH}')
            a(f's_add_u32 s4, s4, {FH_OFF}')
            a(f'v_lshl_add_u32 v{vFL}, v{vL}, {FSH}, s4')
        else:
            a(f's_lshl_b32 s4, s{self.sdb}, {7 + FSH}')
            a(f's_mul_i32 s5, s{sW}, {28 << FSH}')
            a('s_add_u32 s4, s4, s5')
            a(f's_add_u32 s4, s4, {FG_OFF}')
            a(f's_mul_i32 s5, s{self.sdb}, {74 * 5120}')
            a(f's_add_u32 s{sLIM}, s5, {GF_OFF + 53 * 5120}')
            a(f's_cmp_eq_u32 s{sW}, 3')
            a('s_cselect_b32 s5, 23, 27')
            a(f'v_min_u32 v24, s5, v{vL}')
            a(f'v_lshl_add_u32 v{vFL}, v24, {FSH}, s4')

    def dma_items(self, j):
        a = self.a

        def one(q):
            def f():
                if q == 0:
                    a(f's_add_u32 m0, s{sM0B}, {(j % self.P) * 16384}')
                off = f' offset:{q * 1024}' if q else ''
                nt = ' nt' if ('ntb' in EXP and self.kind == 'B' and j < self.P) else ''
                self.dtok[j] = a(f'buffer_load_dwordx4 v{vD + q}, {S(self.srdm, 4)}, 0 offen{off}{nt} lds')
                if not ('hotw' in EXP):
                    a(f'v_add_u32 v{vD + q}, {32 * self.stride}, v{vD + q}')
            return f
        return [one(q) for q in range(self.nq)]

    def frag_items(self, lim=99):
        a = self.a
        out = []
        while self.free and self.pending and len(out) < lim:
            key = self.pending.pop(0)
            r = self.free.pop(0)
            self.reg[key] = r

            def f(key=key, r=r):
                j, kind, x = key
                if key == (self.n, 'a', 0):
                    self.gate()
                if key == (self.n, 'b', 0):
                    self.gate2()
                if kind == 'a':
                    vo, off = (vF, x * 1024) if x < 4 else (vF + 1, 0)
                    offs = f' offset:{off}' if off else ''
                    self.ftok[j] = a(f'buffer_load_dwordx4 {V(r, 4)}, v{vo}, {S(sWS, 4)}, s{sFS} offen{offs} sc1')
                    if x == 4 and 'hotf' not in EXP:
                        a(f's_add_u32 s{sFS}, s{sFS}, 5120')
                        if self.kind == 'G2' and j < 14:
                            a(f's_min_u32 s{sFS}, s{sFS}, s{sLIM}')
                else:
                    if j - self.n == 2:
                        a(f'v_lshlrev_b32 v24, 3, v{vL}')
                        a(f'v_sub_u32 v24, v{vOF + x}, v24')
                        a(f'buffer_load_dwordx2 {V(r, 2)}, v24, {S(sWS, 4)}, s11 offen sc1')
                        self.ftok[j] = a(f'buffer_load_dwordx2 {V(r + 2, 2)}, v24, {S(sWS, 4)}, s11 offen offset:512 sc1')
                    else:
                        self.ftok[j] = a(f'buffer_load_dwordx4 {V(r, 4)}, v{vOF + x}, {S(sWS, 4)}, s11 offen sc1')
                    if x == 3:
                        a('s_add_u32 s11, s11, 4096')
            out.append(f)
        return out

    def tr_items(self, j):
        a = self.a

        def one(nt):
            def f():
                off = (j % self.P) * 16384
                base = vT
                if off >= 65536:
                    if off % 65536 == 0:
                        a(f'v_add_u32 v{vT2 + nt}, {off}, v{vT + nt}')
                    off %= 65536
                    base = vT2
                a(f'ds_read_b64_tr_b16 {V(TF(j, nt), 2)}, v{base + nt} offset:{off}')
                self.ttok[j] = a(f'ds_read_b64_tr_b16 {V(TF(j, nt) + 2, 2)}, v{base + nt} offset:{off + 2048}')
            return f
        return [one(nt) for nt in range(4)]

    def mainloop(self, extra):
        a, n = self.a, self.n
        a.wait(self.dtok[0])
        Hooks(self.tr_items(0)).flush()
        for j in range(self.ntot):
            items = []
            if j + 1 < n:
                a.wait(self.dtok[j + 1])
            a.wait(self.ftok[j], self.ttok.get(j))
            if self.kind == 'B' and j + 1 < n and (j + self.P < n or j + 1 >= int(os.environ.get('BPRE', '10'))):
                a('s_barrier')
            if j % 3 == 0:
                stamp(a, f'{self.kind}_{j}')
                if STAMPS and j in (3, 9):
                    a('s_memtime s[98:99]')
                    a.wait_lg0()
                    a(f'v_writelane_b32 v{vST}, s98, {56 + (j // 9) + (2 if self.kind == "G2" else 0)}')
            if j + 1 < n:
                items += self.tr_items(j + 1)
            if j + self.P < n:
                items += self.dma_items(j + self.P)
            items += extra(j)
            items += self.frag_items(10)
            last = j == self.ntot - 1
            if self.kind == 'G2' and j == 16:
                a('s_barrier')
            if last:
                a(f's_mul_i32 s7, s{sWH}, 102400')
                for nt in range(1, 4):
                    a(f's_xor_b32 s4, s{sW}, {nt}')
                    a('s_mul_i32 s4, s4, 15360')
                    a(f's_add_u32 s4, s4, {(nt - 1) * 5120}')
                    a('s_add_u32 s4, s4, s7')
                    a(f'v_add_u32 v{24 + nt}, s4, v{vF}')
                wr = [(nt, t) for nt in (1, 2, 3) for t in range(5)]
            hk = Hooks(items)
            k = 0
            ILV = os.environ.get('ILVB', 'fine') if self.kind == 'B' else os.environ.get('ILVG', 'burst')
            for nt in (1, 2, 3, 0):
                for t in range(5):
                    acc = V(ACC(t, nt), 4)
                    c = '0' if j == 0 else acc
                    fr = V(self.reg[(j, 'a', t)], 4)
                    tf = V(TF(j, nt) if j < n else self.reg[(j, 'b', nt)], 4)
                    if self.kind == 'B':
                        a(f'v_mfma_f32_16x16x32_bf16 {acc}, {tf}, {fr}, {c}')
                    else:
                        a(f'v_mfma_f32_16x16x32_bf16 {acc}, {fr}, {tf}, {c}')
                    k += 1
                    if last and k > 5:
                        wn, wt = wr.pop(0)
                        a(f'ds_write_b128 v{24 + wn}, {V(ACC(wt, wn), 4)} offset:{wt * 1024}')
                    if ILV == 'fine':
                        if k % 4 != 0:
                            hk.run()
                    elif ILV == 'burst':
                        if k <= 4 and j + 1 < n:
                            hk.run()
                    elif ILV == 'two':
                        if k <= 4 and j + 1 < n:
                            hk.run()
                        if k == 10:
                            hk.run(4)
                    elif ILV == 'pre':
                        if k == 1:
                            hk.flush()
            hk.flush()
            self.free += [r for key, r in self.reg.items() if key[0] == j]
            if n - 2 <= j < n:
                self.free += [TF(j, nt) for nt in range(4)]

    def reduce(self):
        a = self.a
        a(f's_mul_i32 s4, s{sW}, 15360')
        a('s_add_u32 s4, s4, s7')
        a(f'v_add_u32 v24, s4, v{vF}')
        a.wait_lg0()
        a('s_barrier')
        rtok = {}
        for nt in range(1, 4):
            for t in range(5):
                rtok[(nt, t)] = a(f'ds_read_b128 {V(ACC(t, nt), 4)}, v24 offset:{(nt - 1) * 5120 + t * 1024}')
        for nt in range(1, 4):
            for t in range(5):
                a.wait(rtok[(nt, t)])
                for h in range(2):
                    d = V(ACC(t, 0) + 2 * h, 2)
                    a(f'v_pk_add_f32 {d}, {d}, {V(ACC(t, nt) + 2 * h, 2)}')


def frag10_addr(a, m, hi_add, step, base_s, vrd, vrd_base, vst):
    a(f's_add_u32 s4, s{sW}, {4 * m}')
    a('s_min_u32 s5, s4, 9')
    a('s_cmp_ge_u32 s5, 5')
    a(f's_cselect_b32 s6, {hi_add}, 0')
    a(f's_mul_i32 s5, s5, {step}')
    a('s_add_u32 s5, s5, s6')
    a(f'v_add_u32 v{vrd}, s5, v{vrd_base}')
    a('s_lshl_b32 s5, s4, 10')
    a(f's_add_u32 s5, s5, s{base_s}')
    a('s_cmp_ge_u32 s4, 10')
    a(f's_cselect_b32 s5, {OOB}, s5')
    a(f'v_lshl_add_u32 v{vst}, v{vL}, 4, s5')


NTP = ' nt' if 'ntp' in EXP else ''
FIRST = int(os.environ.get('FIRST', '25'))
vTH = 40


def g_common(a):
    a(f'v_lshlrev_b32 v{vF}, 4, v{vL}')
    a(f'v_add_u32 v{vF + 1}, 4096, v{vF}')
    a(f's_lshl_b32 s{sGM0}, s{sW}, 12')
    a(f'v_bfe_u32 v25, v{vGR}, 1, 2')
    a(f'v_xor_b32 v25, s{sW}, v25')
    a(f'v_lshlrev_b32 v26, 7, v{vGR}')
    a(f'v_lshl_add_u32 v26, v{vC}, 3, v26')
    a(f'v_add_u32 v26, s{sGM0}, v26')
    for nt in range(4):
        a(f'v_xor_b32 v27, {nt}, v25')
        a(f'v_lshl_add_u32 v{vT + nt}, v27, 5, v26')


def tag_ready(a):
    a('s_waitcnt lgkmcnt(0)')
    a(f's_add_u32 s{sTAG}, s{sTAG}, 1')


def role_a(a):
    a(f's_and_b32 s4, s{sID}, 7')
    a(f's_lshr_b32 s5, s{sID}, 3')
    a('s_and_b32 s6, s4, 1')
    a('s_lshl_b32 s6, s6, 2')
    a('s_and_b32 s7, s5, 3')
    a(f's_add_u32 s{sHG}, s6, s7')
    a('s_lshr_b32 s6, s4, 1')
    a('s_lshl_b32 s6, s6, 2')
    a('s_lshr_b32 s7, s5, 2')
    a('s_add_u32 s6, s6, s7')
    a(f's_mov_b32 s{sRB}, s6')
    a('s_lshl_b32 s6, s6, 3')
    a(f's_add_u32 s15, s6, s{sHG}')
    a('s_lshl_b32 s12, s15, 1')
    a(f's_add_u32 s12, s12, s{sWH}')
    X = 156
    a('s_lshl_b32 s4, s12, 2')
    a(f's_add_u32 s4, s4, s{sW}')
    a('s_mul_i32 s4, s4, 2560')
    a(f'v_mul_u32_u24 v24, 40, v{vL}')
    xt = []
    for k in range(5):
        xt.append(a(f'buffer_load_dwordx2 {V(X + 2 * k, 2)}, v24, {S(sX, 4)}, s4 offen offset:{8 * k}{NTP}'))
    srd(a, sWQ, P_WQKV, D_ * 3 * D_ * 2)
    vLN = 8
    a(f'v_lshlrev_b32 v{vLN}, 4, v{vL}')
    a(f'v_add_u32 v{vLN + 1}, 4096, v{vLN}')
    a(f's_mul_i32 s{sM0B}, s{sW8}, 5120')
    a('s_lshl_b32 s10, s15, 2')
    a(f's_add_u32 s10, s10, s{sW}')
    a('s_mul_i32 s4, s10, 1093')
    a('s_lshr_b32 s4, s4, 16')
    a('s_mul_i32 s5, s4, 60')
    a('s_sub_u32 s5, s10, s5')
    a('s_lshr_b32 s6, s5, 1')
    a('s_and_b32 s7, s5, 1')
    a('s_add_u32 s7, s7, 1')
    a('s_sub_u32 s8, s5, 40')
    a('s_cmp_ge_u32 s5, 40')
    a('s_cselect_b32 s6, s8, s6')
    a('s_cselect_b32 s7, 0, s7')
    a(f's_mul_i32 s6, s6, {32 * 3840}')
    a('s_mul_i32 s7, s7, 1280')
    a('s_mul_i32 s4, s4, 160')
    a('s_add_u32 s6, s6, s7')
    a('s_add_u32 s6, s6, s4')
    a(f's_cmp_eq_u32 s{sWH}, 0')
    a('s_cselect_b32 s10, 480, s10')
    dma160_voffs(a, 12, 3840, True, 18)
    a('s_cmp_ge_u32 s10, 480')
    a(f's_cselect_b32 s7, {OOB}, 0')
    for q in range(5):
        a(f'v_add_u32 v{12 + q}, s7, v{12 + q}')
    utok = dma160(a, 12, sWQ, 6, sM0B, 0, NTP)
    a(f's_mul_i32 s13, s{sWH}, 24576')
    a('s_add_u32 s13, s13, 65536')
    a('s_add_u32 s14, s13, 12288')
    srd(a, sAUX, P_WPHI, 32 * 800)
    a(f's_mul_i32 s6, s{sHG}, 3200')
    a(f's_lshl_b32 s7, s{sW}, 10')
    a('s_add_u32 s6, s6, s7')
    a(f'v_lshl_add_u32 v10, v{vL}, 4, s6')
    a(f's_add_u32 m0, s7, {L_WPHI}')
    a(f'buffer_load_dwordx4 v10, {S(sAUX, 4)}, 0 offen lds')
    for k in range(4):
        a(f'v_mov_b32 v{44 + k}, 0')
    a(f'v_lshlrev_b32 v18, 4, v{vTH}')
    a(f'v_add_u32 v18, {L_ZERO}, v18')
    a('ds_write_b128 v18, v[44:47]')
    a(f'v_mov_b32 v10, {L_CNT}')
    a('v_mov_b32 v11, 0')
    a('ds_write2_b32 v10, v11, v11 offset0:0 offset1:1')
    vONE, vS, vRS, vNB = 34, 36, 168, 170
    a(f'v_mov_b32 v{vONE}, 0x3f803f80')
    for k in range(4):
        a(f'v_mov_b32 v{vS + k}, 0')
    a('s_waitcnt lgkmcnt(0)')
    a(f's_add_u32 s{sTAG}, s{sTAG}, 1')
    a.wait(xt[4])
    stamp(a, 'x')
    for k in range(10):
        a(f'v_dot2c_f32_bf16 v{vS + (k & 1)}, v{X + k}, v{vONE}')
        a(f'v_dot2c_f32_bf16 v{vS + 2 + (k & 1)}, v{X + k}, v{X + k}')
    a(f'v_add_f32 v{vS}, v{vS}, v{vS + 1}')
    a(f'v_add_f32 v{vS + 2}, v{vS + 2}, v{vS + 3}')
    for sh in (8, 4, 2, 1):
        for r in (vS, vS + 2):
            a(f'v_add_f32_dpp v{r}, v{r}, v{r} row_ror:{sh} row_mask:0xf bank_mask:0xf')
    for r in (vS, vS + 2):
        a(f'v_mov_b32 v{r + 1}, v{r}')
        a(f'v_permlane16_swap_b32 v{r}, v{r + 1}')
        a(f'v_add_f32 v{r}, v{r}, v{r + 1}')
    ln_scales(a, vS, vRS, vNB)
    a(f'v_mul_f32 v{vS + 1}, v{vRS}, v{vRS}')
    a(f'v_mov_b32 v{vS + 3}, {fbits(1e-5)}')
    a(f'v_fmac_f32 v{vS + 3}, v{vS + 1}, v{vS + 2}')
    a(f'v_rsq_f32 v{vS + 2}, v{vS + 3}')
    U = 172
    for k in range(10):
        a(f'v_lshlrev_b32 v{U + 2 * k}, 16, v{X + k}')
        a(f'v_and_b32 v{U + 2 * k + 1}, 0xffff0000, v{X + k}')
    for k in range(10):
        a(f'v_pk_fma_f32 {V(U + 2 * k, 2)}, {V(U + 2 * k, 2)}, {V(vRS, 2)}, {V(vNB, 2)} op_sel_hi:[1,0,0]')
    XQ = 192
    for k in range(10):
        a(f'v_cvt_pk_bf16_f32 v{XQ + k}, v{U + 2 * k}, v{U + 2 * k + 1}')
    for k in range(10):
        a(f'v_pk_mul_f32 {V(U + 2 * k, 2)}, {V(U + 2 * k, 2)}, {V(vS + 2, 2)} op_sel_hi:[1,0]')
    for k in range(10):
        a(f'v_cvt_pk_bf16_f32 v{X + k}, v{U + 2 * k}, v{U + 2 * k + 1}')
    a(f's_mul_i32 s4, s{sW}, {2 * 1296}')
    a('s_add_u32 s4, s4, s13')
    a(f'v_mul_u32_u24 v24, 40, v{vL}')
    a(f'v_lshrrev_b32 v25, 5, v{vL}')
    a('v_lshl_add_u32 v24, v25, 4, v24')
    a('v_add_u32 v24, s4, v24')
    for k in range(5):
        a(f'ds_write_b64 v24, {V(XQ + 2 * k, 2)} offset:{8 * k}')
    a(f'v_and_b32 v25, 7, v{vTH}')
    a(f'v_lshrrev_b32 v26, 3, v{vTH}')
    a('v_mul_u32_u24 v28, 1296, v25')
    a('v_lshl_add_u32 v28, v26, 4, v28')
    a('v_add_u32 v28, s13, v28')
    a('v_lshlrev_b32 v29, 8, v26')
    a('v_lshl_add_u32 v29, v25, 4, v29')
    a(f's_lshr_b32 s4, s12, 1')
    a('s_mul_i32 s4, s4, 20480')
    a(f's_and_b32 s5, s12, 1')
    a('s_lshl_b32 s5, s5, 7')
    a('s_add_u32 s4, s4, s5')
    a(f's_add_u32 s4, s4, {XF_OFF}')
    a('v_add_u32 v29, s4, v29')
    a('v_add_u32 v30, 8192, v29')
    a(f's_cmp_ge_u32 s{sW}, 2')
    a(f's_cselect_b32 s4, {OOB}, 16384')
    a('v_add_u32 v31, s4, v29')
    a(f's_mul_i32 s4, s{sW}, 2560')
    a('s_add_u32 s4, s4, s14')
    a(f'v_mul_u32_u24 v24, 40, v{vL}')
    a('v_add_u32 v24, s4, v24')
    for k in range(5):
        a(f'ds_write_b64 v24, {V(X + 2 * k, 2)} offset:{8 * k}')
    a(f'v_mul_u32_u24 v24, 1280, v{vR}')
    a(f'v_mul_u32_u24 v25, 160, v{vG}')
    a('v_add_u32 v24, v24, v25')
    a(f'v_mul_u32_u24 v25, 40, v{vC}')
    a('v_add_u32 v24, v24, v25')
    a('v_add_u32 v24, s14, v24')
    a(f'v_mul_u32_u24 v25, {64 * 5120}, v{vG}')
    a(f'v_lshl_add_u32 v25, v{vI}, 4, v25')
    a(f's_lshr_b32 s4, s12, 2')
    a('s_mul_i32 s4, s4, 5120')
    a(f's_and_b32 s5, s12, 3')
    a('s_lshl_b32 s5, s5, 8')
    a('s_add_u32 s4, s4, s5')
    a(f's_add_u32 s8, s4, {HF_OFF}')
    a.wait_lg0()
    a('s_barrier')
    ht = []
    for m in range(3):
        ht.append(a(f'ds_read_b128 {V(XQ + 4 * m, 4)}, v28 offset:{512 * m}'))
    for m in range(3):
        a.wait(ht[m])
        a(f'buffer_store_dwordx4 {V(XQ + 4 * m, 4)}, v{29 + m}, {S(sWS, 4)}, 0 offen sc1')
    ht = []
    for m in range(3):
        a(f's_add_u32 s4, s{sW}, {4 * m}')
        a('s_min_u32 s5, s4, 9')
        a('s_cmp_ge_u32 s5, 5')
        a(f's_cselect_b32 s6, {640 - 40}, 0')
        a(f's_cselect_b32 s7, {4 * 64 * 5120 - 5120}, 0')
        a('s_lshl_b32 s5, s5, 3')
        a('s_add_u32 s5, s5, s6')
        a('v_add_u32 v26, s5, v24')
        a(f'ds_read_b64_tr_b16 {V(U + 4 * m, 2)}, v26')
        ht.append(a(f'ds_read_b64_tr_b16 {V(U + 4 * m + 2, 2)}, v26 offset:{4 * 1280}'))
        a('s_lshl_b32 s5, s4, 10')
        a('s_add_u32 s5, s5, s7')
        a('s_add_u32 s5, s5, s8')
        a('s_cmp_ge_u32 s4, 10')
        a(f's_cselect_b32 s5, {OOB}, s5')
        a(f'v_add_u32 v{34 + m}, s5, v25')
    for m in range(3):
        a.wait(ht[m])
        a(f'buffer_store_dwordx4 {V(U + 4 * m, 4)}, v{34 + m}, {S(sWS, 4)}, 0 offen sc1')
    hst = ('vm', a.vm_issued - 1)
    a(f'v_mul_u32_u24 v29, 160, v{vGR}')
    a(f'v_mul_u32_u24 v24, 40, v{vC}')
    a('v_add_u32 v29, v29, v24')
    a(f'v_add_u32 v29, s{sM0B}, v29')
    a('s_mul_i32 s4, s10, 5120')
    a(f's_add_u32 s4, s4, {WF_OFF}')
    a('s_cmp_ge_u32 s10, 480')
    a(f's_cselect_b32 s4, {OOB}, s4')
    a(f'v_add_u32 v24, s4, v{vLN}')
    a(f'v_add_u32 v25, s4, v{vLN + 1}')
    a(f's_lshl_b32 s5, s10, {FSH}')
    a(f's_add_u32 s5, s5, {FU_OFF}')
    a('s_cmp_ge_u32 s10, 480')
    a(f's_cselect_b32 s10, {OOB}, s5')
    a.wait(utok)
    ut = []
    for t in range(5):
        a(f'ds_read_b64_tr_b16 {V(UP(t), 2)}, v29 offset:{8 * t}')
        ut.append(a(f'ds_read_b64_tr_b16 {V(UP(t) + 2, 2)}, v29 offset:{8 * t + 2560}'))
    for t in range(5):
        a.wait(ut[t])
        vo, off = (24, t * 1024) if t < 4 else (25, 0)
        a(f'buffer_store_dwordx4 {V(UP(t), 4)}, v{vo}, {S(sWS, 4)}, 0 offen offset:{off} sc1')
    a(f's_lshl_b32 s4, s{sWH}, 2')
    a(f's_add_u32 s4, s4, {L_CNT}')
    a('v_mov_b32 v10, s4')
    a('v_mov_b32 v11, 1')
    a.wait(hst)
    a('s_mov_b64 exec, 1')
    a('ds_add_rtn_u32 v11, v10, v11')
    a('s_mov_b64 exec, -1')
    a.wait_lg0()
    a('v_readfirstlane_b32 s5, v11')
    a(f's_lshl_b32 s4, s12, {FSH}')
    a(f's_add_u32 s4, s4, {FH_OFF}')
    a('s_cmp_lg_u32 s5, 3')
    a('s_cbranch_scc1 L_nofh')
    flag_set(a, 4)
    a.label('L_nofh')
    a.wait_vm0()
    flag_set(a, 10)
    stamp(a, 'prep')
    a(f's_mov_b32 s{sL}, {fbits(LOG2E)}')
    a(f's_mov_b32 s{sL + 1}, {fbits(LOG2E)}')
    a(f's_mov_b32 s{sNL}, {fbits(-LOG2E)}')
    a(f's_mov_b32 s{sNL + 1}, {fbits(-LOG2E)}')
    a(f's_mul_i32 s10, s{sHG}, 60')
    a(f's_lshl_b32 s4, s10, {FSH}')
    a(f's_add_u32 s4, s4, {FU_OFF}')
    a(f'v_lshl_add_u32 v20, v{vL}, {FSH}, s4')
    a(f's_lshl_b32 s11, s{sRB}, 2')
    a(f's_add_u32 s11, s11, s{sW}')
    a(f's_lshl_b32 s4, s11, {FSH + 2}')
    a(f's_add_u32 s4, s4, {FH_OFF}')
    a(f'v_lshl_add_u32 v21, v{vC}, {FSH}, s4')
    a(f'v_cmp_gt_u32 vcc, 60, v{vL}')
    a('v_cndmask_b32 v20, v21, v20, vcc')
    a(f's_add_u32 s10, s10, s{sW}')
    a('s_mul_i32 s10, s10, 5120')
    a(f's_add_u32 s10, s10, {WF_OFF}')
    a(f's_add_u32 s9, s10, {40 * 5120}')
    a(f's_mul_i32 s{sM0B}, s{sW}, 5120')
    a('s_mul_i32 s11, s11, 40960')
    a(f's_add_u32 s11, s11, {XF_OFF}')
    a(f'v_add_u32 v10, 20480, v{vLN}')
    a(f'v_add_u32 v26, {L_RING}, v{vLN}')
    a(f'v_add_u32 v27, 61440, v{vLN}')

    def wphi_frags(WPF, wbase, zbase):
        a(f'v_mul_u32_u24 v22, 800, v{vG}')
        a(f'v_mul_u32_u24 v23, 40, v{vR}')
        a('v_add_u32 v22, v22, v23')
        a(f'v_add_u32 v22, {wbase}, v22')
        a(f'v_mov_b32 v23, {zbase}')
        a(f'v_cmp_eq_u32 vcc, v{vG}, v{vC}')
        a('v_cndmask_b32 v22, v23, v22, vcc')
        for t in range(5):
            for d4 in range(5):
                a(f'ds_read_b64_tr_b16 {V(WPF(t, d4 // 2) + 2 * (d4 % 2), 2)}, v22 offset:{4 * d4 * 40 + 8 * t}')

    Q = lambda k: 48 + 4 * k
    WPF = lambda t, ks: Q(2 * t + ks) if ks < 2 else Q(10 + t // 2) + 2 * (t % 2)
    a('s_barrier')
    wphi_frags(WPF, L_WPHI, L_ZERO)
    a.wait_lg0()
    a('s_barrier')
    flag_check(a, flag_issue(a, 20, 21), 20, 21)
    stamp(a, 'go')

    def xload(dst, ks, z):
        off = f' offset:{(ks % 4) * 1024}' if ks % 4 else ''
        t = a(f'buffer_load_dwordx4 {V(dst, 4)}, v{vLN if z == 0 else 10}, {S(sWS, 4)}, s11 offen{off} sc1')
        if ks % 4 == 3 and z == 1:
            a('s_add_u32 s11, s11, 4096')
        return t

    a(f's_cmp_lg_u32 s{sWH}, 0')
    a('s_cbranch_scc1 L_a_upper')
    at_split = a.save()
    a('s_setprio 2')
    AC = lambda k, z: Q(13 + 2 * k + z)
    XR = lambda ks, z: Q(33 + (ks % 6) * 2 + z)
    FW = lambda n: Q(45 + n % 7)
    xtok = {}
    for ks in range(5):
        for z in range(2):
            xtok[ks] = xload(XR(ks, z), ks, z)
    a('s_barrier')
    stamp(a, 'a0')
    WIN, NF = 6, 200
    ftok = {}

    def read_frag(n):
        d, r = divmod(n, 20)
        ftok[n] = a(f'ds_read_b128 {V(FW(n), 4)}, v26 offset:{(d % 3) * 20480 + r * 1024}')

    for n in range(WIN):
        read_frag(n)
    for n in range(NF):
        nn = n + WIN
        if nn < NF:
            if nn % 20 == 0:
                a.wait_lg0()
                a('s_barrier')
                if (nn // 20) % 3 == 0:
                    stamp(a, f'a{nn // 20}')
            read_frag(nn)
        ks, k = divmod(n, 10)
        a.wait(ftok[n], xtok[ks])
        for z in range(2):
            c = '0' if ks == 0 else V(AC(k, z), 4)
            a(f'v_mfma_f32_16x16x32_bf16 {V(AC(k, z), 4)}, {V(FW(n), 4)}, {V(XR(ks, z), 4)}, {c}')
        if k in (2, 6) and ks + 5 < 20:
            xtok[ks + 5] = xload(XR(ks + 5, k // 4), ks + 5, k // 4)
    a('s_barrier')
    stamp(a, 'aend')
    vSA, vKA, vKO = 8, 9, 12
    a(f's_lshl_b32 s4, s{sW}, 5')
    a(f'v_lshl_add_u32 v{vSA}, v{vG}, 7, v{vI}')
    a(f'v_add_u32 v{vSA}, s4, v{vSA}')
    a(f'v_mul_u32_u24 v{vSA}, 120, v{vSA}')
    a(f'v_add_u32 v{vSA}, {L_RING}, v{vSA}')
    for z in range(2):
        for t in range(5):
            r = AC(5 + t, z)
            a(f'v_cvt_pk_bf16_f32 v{r}, v{r}, v{r + 1}')
            a(f'v_cvt_pk_bf16_f32 v{r + 1}, v{r + 2}, v{r + 3}')
            a(f'ds_write_b64 v{vSA}, {V(r, 2)} offset:{z * 16 * 120 + 80 + 8 * t}')
    PK = [Q(33), Q(34), Q(35)]
    EN5 = [Q(36 + c) for c in range(5)]
    for z in range(2):
        E5 = [AC(t, z) for t in range(5)]
        P5 = [Q(41 + 5 * z + c) for c in range(5)]
        featmap(a, E5, PK, WPF, P5, E5, EN5, 32)
        for c in range(10):
            a(f'ds_write_b64 v{vSA}, {V(P5[c // 2] + 2 * (c % 2), 2)} offset:{z * 16 * 120 + 8 * c}')
    stamp(a, 'fm')
    a(f's_mul_i32 s4, s{sW}, {128 * 120}')
    a(f's_add_u32 s4, s4, {L_RING}')
    a(f'v_mul_u32_u24 v{vKA}, 120, v{vGR}')
    a(f'v_lshl_add_u32 v{vKA}, v{vC}, 3, v{vKA}')
    a(f'v_add_u32 v{vKA}, s4, v{vKA}')
    a(f's_lshl_b32 s4, s{sHG}, 2')
    a(f's_add_u32 s4, s4, s{sW}')
    a('s_lshl_b32 s4, s4, 4')
    a(f's_add_u32 s13, s4, s{sRB}')
    a('s_mul_i32 s4, s13, 6144')
    a(f's_add_u32 s4, s4, {KV_OFF}')
    a(f'v_lshl_add_u32 v{vKO}, v{vL}, 4, s4')
    a('s_movk_i32 s12, 0x1000')
    a(f'v_mov_b32 v11, {OOB}')
    a(f'v_cmp_gt_u32 vcc, 8, v{vI}')
    a(f'v_cndmask_b32 v{vKO + 1}, v11, v{vKO}, vcc')
    a(f'v_cmp_gt_u32 vcc, 2, v{vG}')
    a(f'v_cndmask_b32 v{vKO + 2}, v11, v{vKO}, vcc')
    a(f'v_cndmask_b32 v{vKO + 3}, v11, v{vKO + 1}, vcc')
    a(f's_lshl_b32 s13, s13, {FSH}')
    a(f's_add_u32 s10, s13, {FK_OFF}')
    a('v_mov_b32 v11, 0x3f803f80')
    a(f'v_cmp_eq_u32 vcc, 1, v{vR}')
    a.wait_lg0()
    a('s_barrier')
    ktok = {}
    OPQ = lambda kk, x: Q(13 + kk * 5 + x)
    KVA = [Q(k) for k in range(6)]

    def kv_read(kk):
        for x in range(5):
            col = 32 * x if x < 3 else 80 + 32 * (x - 3)
            a(f'ds_read_b64_tr_b16 {V(OPQ(kk, x), 2)}, v{vKA} offset:{kk * 32 * 120 + col}')
            ktok[kk] = a(f'ds_read_b64_tr_b16 {V(OPQ(kk, x) + 2, 2)}, v{vKA} offset:{kk * 32 * 120 + 16 * 120 + col}')

    kv_read(0)
    for kk in range(4):
        if kk + 1 < 4:
            kv_read(kk + 1)
        a.wait(ktok[kk])
        for j in range(4):
            a(f'v_cndmask_b32 v{OPQ(kk, 4) + j}, v{OPQ(kk, 4) + j}, v11, vcc')
        for et in range(2):
            for ft in range(3):
                d = V(KVA[ft * 2 + et], 4)
                a(f'v_mfma_f32_16x16x32_bf16 {d}, {V(OPQ(kk, 3 + et), 4)}, {V(OPQ(kk, ft), 4)}, {"0" if kk == 0 else d}')
    for ft in range(3):
        for et in range(2):
            vo = vKO + (1 if ft == 2 else 0) + (2 if et == 1 else 0)
            so = 's12' if ft == 2 else '0'
            a(f'buffer_store_dwordx4 {V(KVA[ft * 2 + et], 4)}, v{vo}, {S(sWS, 4)}, {so} offen offset:{(ft % 2) * 2048 + et * 1024} sc1')
    a.wait_vm0()
    flag_set(a, 10)
    a(f's_mov_b32 s10, {OOB}')
    a('s_barrier')
    a('s_branch L_join')

    a.label('L_a_upper')
    a.restore(at_split)
    wtok = {}

    def dma5(so, lds):
        a(f's_add_u32 m0, s{sM0B}, {lds}')
        for q in range(4):
            off = f' offset:{q * 1024}' if q else ''
            a(f'buffer_load_dwordx4 v{vLN}, {S(sWS, 4)}, s{so} offen{off} sc1 lds')
        a(f's_add_u32 m0, s{sM0B}, {lds + 4096}')
        t = a(f'buffer_load_dwordx4 v{vLN + 1}, {S(sWS, 4)}, s{so} offen sc1 lds')
        a(f's_add_u32 s{so}, s{so}, 20480')
        return t

    NXR = 12
    XQ_ = lambda ks, z: Q(13 + (ks % NXR) * 2 + z)
    AQ = lambda t, z: Q(37 + 2 * t + z)
    FQ = lambda n: Q(47 + n % 5)
    xtok = {}
    for d in range(3):
        wtok[d] = dma5(10, L_RING + d * 20480)
    for d in range(10):
        a.wait(wtok[d])
        a('s_barrier')
        if 1 <= d and d + 2 < 10:
            wtok[d + 2] = dma5(10, L_RING + ((d + 2) % 3) * 20480)
        if d < 5:
            qtok = dma5(9, L_WQ + d * 20480)
        if 4 <= d < 10:
            for ks in (2 * (d - 4), 2 * (d - 4) + 1):
                for z in range(2):
                    xtok[ks] = xload(XQ_(ks, z), ks, z)
    a.wait(qtok)
    a('s_barrier')
    ftok = {}

    def read_q(n):
        off = n * 1024
        ftok[n] = a(f'ds_read_b128 {V(FQ(n), 4)}, v{vLN if off < 61440 else 27} offset:{off % 61440}')

    QBAR = int(os.environ.get('QBAR', '-1'))
    if QBAR < 0:
        a('s_barrier')
    for n in range(4):
        read_q(n)
    for n in range(100):
        if n + 4 < 100:
            read_q(n + 4)
        ks, t = divmod(n, 5)
        a.wait(ftok[n], xtok[ks])
        for z in range(2):
            c = '0' if ks == 0 else V(AQ(t, z), 4)
            a(f'v_mfma_f32_16x16x32_bf16 {V(AQ(t, z), 4)}, {V(FQ(n), 4)}, {V(XQ_(ks, z), 4)}, {c}')
        if t in (1, 3) and ks >= 1 and ks - 1 + NXR < 20:
            xtok[ks - 1 + NXR] = xload(XQ_(ks - 1 + NXR, t // 2), ks - 1 + NXR, t // 2)
        if n == QBAR:
            a('s_barrier')
    a('s_barrier')
    stamp(a, 'aend')
    PK = [Q(13), Q(14), Q(15)]
    EN5 = [Q(16 + c) for c in range(5)]
    PP = [[Q(21 + 5 * z + c) for c in range(5)] for z in range(2)]
    for z in range(2):
        E5 = [AQ(t, z) for t in range(5)]
        featmap(a, E5, PK, WPF, PP[z], E5, EN5, 32)
    stamp(a, 'fm')
    a('s_setprio 3')
    a(f's_mul_i32 s6, s{sW}, 10240')
    a(f's_add_u32 s6, s6, {L_RING}')
    a(f'v_lshlrev_b32 v31, 11, v{vG}')
    a(f'v_lshl_add_u32 v31, v{vR}, 3, v31')
    a('v_mov_b32 v21, 8192')
    a(f'v_cmp_eq_u32 vcc, v{vG}, v{vC}')
    a('v_cndmask_b32 v31, v21, v31, vcc')
    a('v_add_u32 v31, s6, v31')
    for k in range(4):
        a(f'v_mov_b32 v{44 + k}, 0')
    a(f'v_add_u32 v21, s6, v{vLN}')
    a('ds_write_b128 v21, v[44:47] offset:8192')
    a('ds_write_b128 v21, v[44:47] offset:9216')
    a(f's_lshl_b32 s4, s{sHG}, {4 + FSH}')
    a(f's_add_u32 s4, s4, {FR_OFF}')
    a(f'v_lshl_add_u32 v20, v{vI}, {FSH}, s4')
    a(f'v_lshlrev_b32 v8, 4, v{vL}')
    a('v_add_u32 v9, 4096, v8')
    a(f'v_lshlrev_b32 v10, 3, v{vL}')
    a(f's_lshl_b32 s5, s{sHG}, 13')
    a(f's_add_u32 s5, s5, {KB_OFF}')
    a(f's_lshl_b32 s7, s{sRB}, 1')
    a(f's_lshr_b32 s8, s{sW}, 1')
    a('s_add_u32 s7, s7, s8')
    a(f's_and_b32 s8, s{sW}, 1')
    a('s_lshl_b32 s8, s8, 1')
    a(f's_lshr_b32 s12, s{sHG}, 1')
    a('s_mul_i32 s12, s12, 5')
    a('s_mul_i32 s13, s7, 20')
    a('s_add_u32 s12, s12, s13')
    a('s_lshl_b32 s12, s12, 2')
    a('s_add_u32 s12, s12, s8')
    a('s_lshl_b32 s12, s12, 10')
    a(f's_add_u32 s12, s12, {OF_OFF}')
    a(f's_and_b32 s13, s{sHG}, 1')
    a(f's_mul_i32 s14, s13, {3 * 4096}')
    a('s_add_u32 s14, s14, s12')
    a('s_lshl_b32 s13, s13, 9')
    a('s_add_u32 s12, s12, s13')
    a(f's_add_u32 s12, s12, {2 * 4096}')
    a('s_lshl_b32 s13, s7, 3')
    a(f's_add_u32 s13, s13, s{sHG}')
    a('s_lshl_b32 s13, s13, 2')
    a('s_add_u32 s13, s13, s8')
    a(f's_lshl_b32 s13, s13, {FSH}')
    a(f's_add_u32 s13, s13, {FO_OFF}')
    flag_check(a, flag_issue(a, 20, 21), 20, 21, int(os.environ.get('RSLEEP', '8')))
    stamp(a, 'rok')
    for hh in range(2):
        a(f's_add_u32 m0, s6, {4096 * hh}')
        for q in range(4):
            off = f' offset:{q * 1024}' if q else ''
            a(f'buffer_load_dwordx4 v{8 + hh}, {S(sWS, 4)}, s5 offen{off} sc1 lds')
    a.wait_all()
    OA = [[Q(31 + k) for k in range(6)], [Q(37 + k) for k in range(6)]]
    KF = lambda ks, t: Q((ks % 2) * 6 + t)
    otok = {}

    def o_read(ks):
        for t in range(6):
            a(f'ds_read_b64_tr_b16 {V(KF(ks, t), 2)}, v31 offset:{kb_pos(8 * ks, t)}')
            otok[ks] = a(f'ds_read_b64_tr_b16 {V(KF(ks, t) + 2, 2)}, v31 offset:{kb_pos(8 * ks + 4, t)}')

    o_read(0)
    for ks in range(5):
        if ks + 1 < 5:
            o_read(ks + 1)
        a.wait(otok[ks])
        for z in range(2):
            for t in range(6):
                d = V(OA[z][t], 4)
                a(f'v_mfma_f32_16x16x32_bf16 {d}, {V(KF(ks, t), 4)}, {V(PP[z][ks], 4)}, {"0" if ks == 0 else d}')
    for z in range(2):
        O = OA[z]
        PO = PK if z == 0 else [Q(16), Q(17), Q(18)]
        a(f'v_add_f32 v{O[5]}, {fbits(1e-6)}, v{O[5]}')
        a(f'v_rcp_f32 v{O[5]}, v{O[5]}')
        for t in range(5):
            for h in range(2):
                a(f'v_pk_mul_f32 {V(O[t] + 2 * h, 2)}, {V(O[t] + 2 * h, 2)}, {V(O[5], 2)} op_sel_hi:[1,0]')
        for k in range(10):
            t, j = divmod(2 * k, 4)
            a(f'v_cvt_pk_bf16_f32 v{PO[k // 4] + k % 4}, v{O[t] + j}, v{O[t] + j + 1}')
        off = f' offset:{1024 * z}' if z else ''
        a(f'buffer_store_dwordx4 {V(PO[0], 4)}, v8, {S(sWS, 4)}, s14 offen{off} sc1')
        a(f'buffer_store_dwordx4 {V(PO[1], 4)}, v9, {S(sWS, 4)}, s14 offen{off} sc1')
        a(f'buffer_store_dwordx2 {V(PO[2], 2)}, v10, {S(sWS, 4)}, s12 offen{off} sc1')
    a.wait_vm0()
    flag_set(a, 13)
    a(f's_cmp_lg_u32 s{sID}, 0')
    a('s_cbranch_scc1 L_a_done')
    a(f's_cmp_lg_u32 s{sW}, 3')
    a('s_cbranch_scc1 L_a_done')
    a(f'v_and_b32 v20, 31, v{vL}')
    a('v_min_u32 v20, 26, v20')
    a(f'v_and_b32 v21, 32, v{vL}')
    a('v_add_u32 v20, v20, v21')
    a(f'v_lshlrev_b32 v20, {FSH + 2}, v20')
    for k in range(4):
        a(f'v_add_u32 v22, {FG_OFF + (k * 256 << FSH)}, v20')
        flag_check(a, flag_issue(a, 22, 21), 22, 21, 12)
    a(f'v_lshlrev_b32 v20, {FSH}, v{vL}')
    for base in (FR_OFF, FR_OFF + (64 << FSH)):
        a(f'v_add_u32 v22, {base}, v20')
        flag_check(a, flag_issue(a, 22, 21), 22, 21, 12)
    a(f'v_and_b32 v20, 31, v{vL}')
    a(f'v_lshlrev_b32 v20, {FSH}, v20')
    a(f'v_add_u32 v22, {FW_OFF}, v20')
    flag_check(a, flag_issue(a, 22, 21), 22, 21, 12)
    a(f's_mov_b32 s10, {EP_OFF}')
    flag_set(a, 10)
    a.label('L_a_done')
    stamp_flush(a, 'end')
    a('s_endpgm')


def role_b(a):
    if 'map4' in EXP:
        a(f's_lshr_b32 s{sBCB}, s6, 2')
        a('s_and_b32 s9, s6, 3')
        a('s_lshl_b32 s6, s9, 1')
    else:
        a('s_cmp_ge_u32 s6, 54')
        a('s_cselect_b32 s7, 54, 0')
        a('s_cselect_b32 s8, 4, 0')
        a('s_sub_u32 s6, s6, s7')
        a(f's_lshr_b32 s{sBCB}, s6, 1')
        a('s_and_b32 s9, s6, 1')
        a('s_lshl_b32 s6, s9, 1')
        a('s_add_u32 s6, s6, s8')
    PR = 24 if 'map4' in EXP else 48
    a(f's_add_u32 s{sBDB}, s6, s{sWH}')
    srd(a, sW1, P_W1, S_ * F_ * 2)
    g_common(a)
    gB = GGemm(a, 'B')
    gB.setup()
    BPRE = int(os.environ.get('BPRE', '10'))
    if 'g1lin' in EXP:
        a(f's_lshl_b32 s4, s{sBCB}, 2')
        a('s_add_u32 s4, s4, s9')
        a('s_lshl_b32 s4, s4, 3')
        a(f's_add_u32 s4, s4, s{sW8}')
        a('s_lshl_b32 s4, s4, 13')
        a(f'v_lshl_add_u32 v24, v{vL}, 7, s4')
        a(f'buffer_load_dword v37, v24, {S(sW1, 4)}, 0 offen')
        if 'g1wait' in EXP:
            a.wait_vm0()
    if 'g1first' in EXP:
        a('s_lshl_b32 s4, s9, 1')
        a(f's_add_u32 s4, s4, s{sWH}')
        a(f's_lshl_b32 s5, s{sW}, 9')
        a('s_add_u32 s4, s4, s5')
        a(f's_mul_i32 s4, s4, {F_ * 2}')
        a(f's_lshl_b32 s5, s{sBCB}, 7')
        a('s_add_u32 s4, s4, s5')
        a(f'v_mul_u32_u24 v24, {8 * F_ * 2}, v{vL}')
        a('v_add_u32 v24, s4, v24')
        a(f'buffer_load_dword v37, v24, {S(sW1, 4)}, 0 offen')
    for j in range(BPRE):
        Hooks(gB.dma_items(j)).flush()

    def b_extra(j):
        return []

    a('s_lshl_b32 s4, s9, 1')
    a(f's_add_u32 s4, s4, s{sWH}')
    a(f's_mul_i32 s4, s4, {PR}')
    a(f's_lshl_b32 s5, s{sW}, 9')
    a('s_add_u32 s4, s4, s5')
    a(f's_add_u32 s4, s4, {32 * B_P}')
    a(f's_mul_i32 s4, s4, {F_ * 2}')
    a(f's_lshl_b32 s5, s{sBCB}, 7')
    a('s_add_u32 s4, s4, s5')
    a(f'v_min_u32 v24, {PR - 1}, v{vL}')
    a(f'v_mul_u32_u24 v24, {F_ * 2}, v24')
    a('v_add_u32 v24, s4, v24')
    if 'g1first' not in EXP:
        a(f'buffer_load_dword v37, v24, {S(sW1, 4)}, 0 offen')
    srd(a, sAUX, P_B1, F_ * 2)
    a(f's_lshl_b32 s4, s{sBCB}, 7')
    a(f's_lshl_b32 s5, s{sW}, 5')
    a('s_add_u32 s4, s4, s5')
    a(f'v_lshl_add_u32 v24, v{vG}, 3, s4')
    a(f'buffer_load_dwordx2 v[38:39], v24, {S(sAUX, 4)}, 0 offen')
    tag_ready(a)
    a('s_barrier')
    stamp(a, 'prep')
    a(f's_cmp_lg_u32 s{sWH}, 0')
    a('s_cbranch_scc1 L_b_go')
    flag_check(a, flag_issue(a, vFL, vFD), vFL, vFD, 3)
    a.label('L_b_go')
    a.wait_vm0()
    a('s_barrier')
    stamp(a, 'go')
    Hooks(gB.frag_items(FIRST)).flush()
    for j in range(BPRE, B_P):
        Hooks(gB.dma_items(j)).flush()

    gB.mainloop(b_extra)
    stamp(a, 'Bend')
    gB.reduce()
    R = lambda t, j: ACC(t, 0) + j
    T = lambda t, j: ACC(t, 1) + j
    a('v_lshlrev_b32 v34, 16, v38')
    a('v_and_b32 v35, 0xffff0000, v38')
    a('v_lshlrev_b32 v36, 16, v39')
    a('v_and_b32 v37, 0xffff0000, v39')
    c0 = 0.7978845608028654
    k1 = -2.0 * c0 * LOG2E
    k2 = k1 * 0.044715
    a(f's_mov_b32 s4, {fbits(k2)}')
    a(f's_mov_b32 s5, {fbits(k2)}')
    a(f'v_mov_b32 v24, {fbits(k1)}')
    a('v_mov_b32 v26, 1.0')
    th = [(t, h) for t in range(5) for h in range(2)]
    tj = [(t, j) for t in range(5) for j in range(4)]
    for t, h in th:
        a(f'v_pk_add_f32 {V(R(t, 2 * h), 2)}, {V(R(t, 2 * h), 2)}, {V(34 + 2 * h, 2)}')
    for t, h in th:
        a(f'v_pk_mul_f32 {V(T(t, 2 * h), 2)}, {V(R(t, 2 * h), 2)}, {V(R(t, 2 * h), 2)}')
    for t, h in th:
        a(f'v_pk_fma_f32 {V(T(t, 2 * h), 2)}, {V(T(t, 2 * h), 2)}, s[4:5], v[24:25] op_sel_hi:[1,0,0]')
    for t, h in th:
        a(f'v_pk_mul_f32 {V(T(t, 2 * h), 2)}, {V(T(t, 2 * h), 2)}, {V(R(t, 2 * h), 2)}')
    for t, j in tj:
        a(f'v_exp_f32 v{T(t, j)}, v{T(t, j)}')
    for t, h in th:
        a(f'v_pk_add_f32 {V(T(t, 2 * h), 2)}, {V(T(t, 2 * h), 2)}, v[26:27] op_sel_hi:[1,0]')
    for t, j in tj:
        a(f'v_rcp_f32 v{T(t, j)}, v{T(t, j)}')
    for t, h in th:
        a(f'v_pk_mul_f32 {V(T(t, 2 * h), 2)}, {V(T(t, 2 * h), 2)}, {V(R(t, 2 * h), 2)}')
    a(f's_mul_i32 s4, s{sW8}, 2560')
    a('s_add_u32 s4, s4, 81920')
    a(f'v_lshl_add_u32 v24, v{vL}, 3, s4')
    for t in range(5):
        a(f'v_cvt_pk_bf16_f32 v{R(t, 0)}, v{T(t, 0)}, v{T(t, 1)}')
        a(f'v_cvt_pk_bf16_f32 v{R(t, 1)}, v{T(t, 2)}, v{T(t, 3)}')
        a(f'ds_write_b64 v24, {V(R(t, 0), 2)} offset:{t * 512}')
    a(f's_mul_i32 s4, s{sBDB}, 74')
    a(f's_lshl_b32 s5, s{sBCB}, 1')
    a('s_add_u32 s4, s4, s5')
    a('s_mul_i32 s4, s4, 5120')
    a(f's_add_u32 s15, s4, {GF_OFF}')
    a(f's_mul_i32 s4, s{sWH}, 10240')
    a('s_add_u32 s4, s4, 81920')
    a(f'v_lshl_add_u32 v25, v{vL}, 3, s4')
    a.wait_lg0()
    a('s_barrier')
    gt = []
    for m in range(3):
        frag10_addr(a, m, 2 * 2560 - 5 * 512, 512, 15, 24, 25, 34 + m)
        a(f'ds_read_b64 {V(ACC(m, 2), 2)}, v24')
        gt.append(a(f'ds_read_b64 {V(ACC(m, 2) + 2, 2)}, v24 offset:2560'))
    for m in range(3):
        a.wait(gt[m])
        a(f'buffer_store_dwordx4 {V(ACC(m, 2), 4)}, v{34 + m}, {S(sWS, 4)}, 0 offen sc1')
    a(f's_lshl_b32 s4, s{sBDB}, 5')
    a(f's_add_u32 s4, s4, s{sBCB}')
    a('s_lshl_b32 s4, s4, 2')
    a(f's_add_u32 s4, s4, s{sW}')
    a(f's_lshl_b32 s4, s4, {FSH}')
    a(f's_add_u32 s10, s4, {FG_OFF}')
    a('s_branch L_join')


def role_r(a):
    a('s_lshl_b32 s11, s6, 1')
    a(f's_add_u32 s11, s11, s{sWH}')
    a('s_lshr_b32 s8, s6, 3')
    a('s_lshl_b32 s8, s8, 3')
    a(f's_add_u32 s8, s8, s{sW8}')
    a('s_getpc_b64 s[6:7]')
    a.raw('L_pc:')
    a(f's_sub_u32 s{sAUX}, s6, L_pc - L_start')
    a('s_subb_u32 s7, s7, 0')
    a(f's_and_b32 s{sAUX + 1}, s7, 0xffff')
    a(f's_mov_b32 s{sAUX + 2}, L_end - L_start')
    a(f's_mov_b32 s{sAUX + 3}, 0x20000')
    a('s_lshl_b32 s6, s8, 13')
    a(f'v_lshl_add_u32 v25, v{vL}, 7, s6')
    if 'nocpf' not in EXP:
        a(f'buffer_load_dword v37, v25, {S(sAUX, 4)}, 0 offen')
    if 'notlb' not in EXP:
        a(f's_lshl_b32 s5, s8, 6')
        a(f'v_add_u32 v26, s5, v{vL}')
        a(f'v_mul_u32_u24 v27, {(WS_USED // 1024 + 127) // 128 * 128}, v26')
        a(f'buffer_load_dword v37, v27, {S(sWS, 4)}, 0 offen sc1')
        a('v_lshlrev_b32 v27, 13, v26')
        a(f'buffer_load_dword v37, v27, {S(sW2, 4)}, 0 offen')
        srd(a, sOUT, P_OUT, S_ * D_ * 2)
        a('v_lshlrev_b32 v27, 12, v26')
        a(f'buffer_load_dword v37, v27, {S(sOUT, 4)}, 0 offen sc1')
        srd(a, sAUX, P_B2, S_ * 2)
        a(f'buffer_load_dword v37, v27, {S(sAUX, 4)}, 0 offen')
    if 'wqlin' in EXP:
        srd(a, sWQ, P_WQKV, D_ * 3 * D_ * 2)
        a(f's_sub_u32 s5, s{sID}, 240')
        a('s_lshl_b32 s5, s5, 3')
        a(f's_add_u32 s5, s5, s{sW8}')
        a('s_mul_i32 s5, s5, 24576')
        a(f'v_lshl_add_u32 v26, v{vL}, 7, s5')
        for k in range(3):
            a(f'buffer_load_dword v37, v26, {S(sWQ, 4)}, 0 offen')
            a('v_add_u32 v26, 8192, v26')
    if 'w2lin' in EXP:
        a(f's_sub_u32 s5, s{sID}, 240')
        a('s_lshl_b32 s5, s5, 3')
        a(f's_add_u32 s5, s5, s{sW8}')
        a('s_lshl_b32 s5, s5, 13')
        a(f'v_lshl_add_u32 v38, v{vL}, 7, s5')
    a('s_mul_i32 s5, s8, 54')
    a(f's_and_b32 s7, s{sID}, 1')
    a('s_mul_i32 s7, s7, 864')
    a('s_add_u32 s5, s5, s7')
    a('s_lshl_b32 s5, s5, 12')
    a(f's_and_b32 s7, s{sID}, 6')
    a('s_lshl_b32 s7, s7, 9')
    a('s_add_u32 s5, s5, s7')
    a(f'v_lshrrev_b32 v24, 3, v{vL}')
    a(f'v_and_b32 v25, 7, v{vL}')
    a('v_lshlrev_b32 v24, 12, v24')
    a('v_lshl_add_u32 v24, v25, 7, v24')
    a('v_add_u32 v24, s5, v24')
    tag_ready(a)
    a(f'v_mov_b32 v{vFL}, {FH_OFF}')
    if 'pf2now' not in EXP:
        flag_check(a, flag_issue(a, vFL, vFD), vFL, vFD, 16)
    PFA = int(os.environ.get('PFA', '7'))
    a('v_mov_b32 v36, v38' if 'w2lin' in EXP else 'v_mov_b32 v36, v24')
    for k in range(PFA):
        a(f'buffer_load_dword v37, v36, {S(sW2, 4)}, 0 offen')
        a(f'v_add_u32 v36, {128 * 8192 if "w2lin" in EXP else 8 * 4096}, v36')
        if k % 2 == 1 and 'pf2fast' not in EXP:
            a.wait_vm0()
    stamp(a, 'prep')
    a('s_setprio 3')
    a(f's_lshl_b32 s4, s11, {4 + FSH}')
    a(f's_add_u32 s4, s4, {FK_OFF}')
    a(f'v_lshl_add_u32 v{vFL}, v{vI}, {FSH}, s4')
    a(f's_lshl_b32 s5, s{sW}, 11')
    a(f'v_lshl_add_u32 v24, v{vL}, 4, s5')
    a(f'v_lshrrev_b32 v25, 5, v{vL}')
    a(f'v_and_b32 v26, 31, v{vL}')
    a('v_lshlrev_b32 v26, 4, v26')
    a('v_lshl_add_u32 v25, v25, 11, v26')
    a('v_add_u32 v25, 1024, v25')
    a(f's_cmp_eq_u32 s{sW}, 2')
    a('s_cselect_b64 vcc, -1, 0')
    a('v_cndmask_b32 v24, v24, v25, vcc')
    a(f'v_lshrrev_b32 v25, 3, v{vL}')
    a(f'v_and_b32 v26, 7, v{vL}')
    a('v_lshlrev_b32 v26, 4, v26')
    a('v_lshl_add_u32 v25, v25, 8, v26')
    a('v_add_u32 v25, 4096, v25')
    a(f's_cmp_eq_u32 s{sW}, 3')
    a('s_cselect_b64 vcc, -1, 0')
    a('v_cndmask_b32 v24, v24, v25, vcc')
    a(f's_mul_i32 s4, s11, {16 * 6144}')
    a(f's_add_u32 s4, s4, {KV_OFF}')
    flag_check(a, flag_issue(a, vFL, vFD), vFL, vFD, 4)
    stamp(a, 'hok')
    stok = []
    for rb in range(16):
        stok.append(a(f'buffer_load_dwordx4 {V(128 + 4 * rb, 4)}, v24, {S(sWS, 4)}, s4 offen sc1'))
        a('s_add_u32 s4, s4, 6144')
    for rb in range(1, 16):
        a.wait(stok[rb])
        for h in range(2):
            a(f'v_pk_add_f32 {V(128 + 2 * h, 2)}, {V(128 + 2 * h, 2)}, {V(128 + 4 * rb + 2 * h, 2)}')
    stamp(a, 'rsum')
    a('v_cvt_pk_bf16_f32 v34, v128, v129')
    a('v_cvt_pk_bf16_f32 v35, v130, v131')
    a('s_lshl_b32 s4, s11, 11')
    a(f's_add_u32 s4, s4, {KB_OFF}')
    a(f'v_lshl_add_u32 v24, v{vTH}, 3, s4')
    a(f'buffer_store_dwordx2 v[34:35], v24, {S(sWS, 4)}, 0 offen sc1')
    a('s_lshl_b32 s4, s11, 2')
    a(f's_add_u32 s4, s4, s{sW}')
    a(f's_lshl_b32 s4, s4, {FSH}')
    a(f's_add_u32 s10, s4, {FR_OFF}')
    a.wait_vm0()
    flag_set(a, 10)
    a(f's_mov_b32 s10, {OOB}')
    stamp(a, 'rpub')
    a('s_barrier')
    for k in range(PFA, 0 if 'nopf2' in EXP else 7):
        a(f'buffer_load_dword v37, v36, {S(sW2, 4)}, 0 offen')
        a(f'v_add_u32 v36, {8 * 4096}, v36')
    a('s_branch L_join')


def role_wot(a):
    a('s_lshl_b32 s11, s6, 1')
    a(f's_add_u32 s11, s11, s{sWH}')
    srd(a, sAUX, P_WO, D_ * D_ * 2)
    a(f'v_lshlrev_b32 v{vF}, 4, v{vL}')
    a(f'v_add_u32 v{vF + 1}, 4096, v{vF}')
    tag_ready(a)
    dma160_voffs(a, 34, 1280, False, 24)
    a('s_mul_i32 s4, s11, 160')
    a(f's_mul_i32 s5, s{sW}, {160 * 1280}')
    a('s_add_u32 s7, s4, s5')
    a(f's_mul_i32 s6, s{sW8}, 20480')
    a(f'v_mul_u32_u24 v24, 20, v{vG}')
    a(f'v_add_u32 v24, v24, v{vR}')
    a('v_mul_u32_u24 v24, 160, v24')
    a(f'v_mul_u32_u24 v25, 40, v{vC}')
    a('v_add_u32 v24, v24, v25')
    a('v_add_u32 v24, s6, v24')
    a('s_mul_i32 s4, s11, 74')
    a(f's_mul_i32 s5, s{sW}, 5')
    a('s_add_u32 s4, s4, s5')
    a('s_add_u32 s4, s4, 54')
    a('s_mul_i32 s4, s4, 5120')
    a(f's_add_u32 s4, s4, {GF_OFF}')
    rounds = [[(0, 0, 0), (0, 1, 4), (1, 0, 8), (1, 1, 12), (2, 0, 16)],
              [(2, 1, 16), (3, 0, 0), (3, 1, 4), (4, 0, 8), (4, 1, 12)]]
    for rd in range(2):
        for k in range(3):
            a(f's_add_u32 s8, s7, {(rd * 80 + k * 32) * 1280}')
            dma160(a, 34, sAUX, 8, 6, k * 5120)
        a.wait_vm0()
        for u, hf, row in rounds[rd]:
            for t in range(5):
                a(f'ds_read_b64_tr_b16 {V(156 + (u * 5 + t) * 4 + 2 * hf, 2)}, v24 offset:{row * 160 + 8 * t}')
            a.wait_lg0()
    for u in range(5):
        for t in range(5):
            vo, off = (vF, t * 1024) if t < 4 else (vF + 1, 0)
            a(f'buffer_store_dwordx4 {V(156 + (u * 5 + t) * 4, 4)}, v{vo}, {S(sWS, 4)}, s4 offen offset:{off} sc1')
        a('s_add_u32 s4, s4, 5120')
    a('s_lshl_b32 s4, s11, 2')
    a(f's_add_u32 s4, s4, s{sW}')
    a(f's_lshl_b32 s4, s4, {FSH}')
    a(f's_add_u32 s10, s4, {FW_OFF}')
    a('s_barrier')


def final_gemm(a):
    a.wait_all()
    flag_set(a, 10)
    stamp(a, 'pub')
    a('s_setprio 0')
    a(f's_cmp_lg_u32 s{sWH}, 0')
    a('s_cbranch_scc1 L_fin')
    xcd_tile(a)
    g_common(a)
    g2 = GGemm(a, 'G2')
    g2.setup()
    for j in range(G2_P):
        Hooks(g2.dma_items(j)).flush()
    srd(a, sOUT, P_OUT, S_ * D_ * 2)
    R = lambda t, j: ACC(t, 0) + j
    T = lambda t, j: ACC(t, 1) + j
    srd(a, sAUX, P_B2, S_ * 2)
    a(f's_lshl_b32 s4, s{sRB}, {5 + FSH}')
    a(f's_lshl_b32 s5, s{sW}, {3 + FSH}')
    a('s_add_u32 s4, s4, s5')
    a(f's_add_u32 s4, s4, {FO_OFF}')
    a(f'v_lshl_add_u32 v34, v{vC}, {FSH + 1}, s4')
    a(f's_lshl_b32 s4, s{sHG}, 2')
    a(f's_add_u32 s4, s4, s{sW}')
    a(f's_lshl_b32 s4, s4, {FSH}')
    a(f's_add_u32 s4, s4, {FW_OFF}')
    a('v_mov_b32 v35, s4')
    a(f'v_cmp_gt_u32 vcc, 63, v{vL}')
    a(f'v_cndmask_b32 v{vFL}, v35, v{vFL}, vcc')
    for nt in range(4):
        a(f's_xor_b32 s4, s{sW}, {nt}')
        a('s_lshl_b32 s4, s4, 10')
        a(f'v_add_u32 v{vOF + nt}, s4, v{vF}')
    a(f's_mul_i32 s4, s{sRB}, 20')
    a(f's_mul_i32 s5, s{sW}, 5')
    a('s_add_u32 s4, s4, s5')
    a('s_lshl_b32 s4, s4, 12')
    a(f's_add_u32 s11, s4, {OF_OFF}')
    a(f'v_mul_u32_u24 v{vXA}, 1280, v{vTOK}')
    a(f'v_mul_u32_u24 v{vBA}, 40, v{vG}')
    a(f'v_add_u32 v{vXA}, v{vXA}, v{vBA}')
    a(f's_mul_i32 s4, s{sHG}, 160')
    a(f'v_add_u32 v{vXA}, s4, v{vXA}')
    a(f'v_lshlrev_b32 v{vBA}, 1, v{vTOK}')
    flag_check(a, flag_issue(a, vFL, vFD), vFL, vFD)
    stamp(a, 'gok')
    fl = {}

    def gate():
        a(f's_mul_i32 s4, s{sHG}, 74')
        a(f's_mul_i32 s5, s{sW}, 5')
        a('s_add_u32 s4, s4, s5')
        a('s_add_u32 s4, s4, 54')
        a('s_mul_i32 s4, s4, 5120')
        a(f's_add_u32 s{sFS}, s4, {GF_OFF}')

    def gate2():
        stamp(a, 'oa')
        flag_check(a, fl['o'], 34, 35)
        stamp(a, 'ob')

    g2.gate = gate
    g2.gate2 = gate2
    XR = [8, 10, 14, 16, 18]

    def g2_extra(j):
        it = []
        if j == 9:
            def fo():
                fl['o'] = flag_issue(a, 34, 35)
            it.append(fo)
        if j == 16:
            def resid():
                a(f'buffer_load_ushort v36, v{vBA}, {S(sAUX, 4)}, 0 offen')
                for t in range(5):
                    fl['x'] = a(f'buffer_load_dwordx2 {V(XR[t], 2)}, v{vXA}, {S(sX, 4)}, 0 offen offset:{8 * t}')
            it.append(resid)
        return it

    Hooks(g2.frag_items(FIRST)).flush()
    g2.mainloop(g2_extra)
    stamp(a, 'Gend')
    g2.reduce()
    a.wait(fl['x'])
    a('v_lshlrev_b32 v36, 16, v36')
    for t in range(5):
        for h in range(2):
            a(f'v_lshlrev_b32 v{T(t, 2 * h)}, 16, v{XR[t] + h}')
            a(f'v_and_b32 v{T(t, 2 * h + 1)}, 0xffff0000, v{XR[t] + h}')
            a(f'v_pk_add_f32 {V(R(t, 2 * h), 2)}, {V(R(t, 2 * h), 2)}, v[36:37] op_sel_hi:[1,0]')
            a(f'v_pk_add_f32 {V(R(t, 2 * h), 2)}, {V(R(t, 2 * h), 2)}, {V(T(t, 2 * h), 2)}')
        a(f'v_cvt_pk_bf16_f32 v{R(t, 0)}, v{R(t, 0)}, v{R(t, 1)}')
        a(f'v_cvt_pk_bf16_f32 v{R(t, 1)}, v{R(t, 2)}, v{R(t, 3)}')
        a(f'buffer_store_dwordx2 {V(R(t, 0), 2)}, v{vXA}, {S(sOUT, 4)}, 0 offen offset:{8 * t}')
    a.label('L_fin')
    stamp_flush(a, 'end')


def build():
    a = Asm()
    hdr = open(os.path.join(os.path.dirname(__file__), '..', 'cdna_kernels', NAME + '.s.ref')).read().split('\n')
    for line in hdr:
        if line.startswith(';') and '@launch' not in line:
            a.raw(line)
    a.raw(f'; @launch grid=(256,1,1) block=(512,1,1) lds={LDS_BYTES}')
    a.raw('.amdgcn_target "amdgcn-amd-amdhsa--gfx950"')
    a.raw('.text')
    K = NAME + '_kernel'
    a.raw(f'.globl {K}')
    a.raw('.p2align 8')
    a.raw(f'.type {K},@function')
    a.raw(f'{K}:')
    a.raw('L_start:')
    a('s_cmp_ge_u32 s2, 256')
    a('s_cbranch_scc1 L_end')
    a('s_load_dwordx16 s[16:31], s[0:1], 0')
    a('s_load_dwordx8 s[32:39], s[0:1], 64')
    a(f'v_and_b32 v{vL}, 63, v0')
    a('v_lshrrev_b32 v6, 6, v0')
    a(f'v_readfirstlane_b32 s{sW8}, v6')
    a(f'v_lshrrev_b32 v{vG}, 4, v{vL}')
    a(f'v_and_b32 v{vI}, 15, v{vL}')
    a(f'v_lshrrev_b32 v{vR}, 2, v{vI}')
    a(f'v_and_b32 v{vC}, 3, v{vL}')
    a(f'v_lshl_add_u32 v{vGR}, v{vG}, 2, v{vR}')
    a(f'v_and_b32 v{vTH}, 255, v0')
    a(f's_and_b32 s{sW}, s{sW8}, 3')
    a(f's_lshr_b32 s{sWH}, s{sW8}, 2')
    a(f's_mov_b32 s{sID}, s2')
    a('s_waitcnt lgkmcnt(0)')
    a(f's_add_u32 s4, s{P_WS}, {EP_OFF}')
    a(f's_addc_u32 s5, s{P_WS + 1}, 0')
    a(f's_load_dword s{sTAG}, s[4:5], 0')
    srd(a, sX, P_X, S_ * D_ * 2)
    srd(a, sWS, P_WS, WS_USED)
    srd(a, sW2, P_W2, F_ * S_ * 2)
    stamp(a, 'start')
    if 'noticket' not in EXP:
        srd(a, sAUX, P_DBG, 256)
        a(f'v_mov_b32 v8, {L_CNT + 16}')
        a(f's_cmp_lg_u32 s{sW8}, 0')
        a('s_cbranch_scc1 L_ticket_done')
        a('s_getreg_b32 s4, hwreg(HW_REG_XCC_ID)')
        a('s_mov_b32 s6, 0')
        a('s_mov_b64 exec, 1')
        a.label('L_ticket')
        a('s_and_b32 s4, s4, 7')
        a('s_lshl_b32 s5, s4, 5')
        a('v_mov_b32 v9, s5')
        a('v_mov_b32 v10, 1')
        a(f'buffer_atomic_add v10, v9, {S(sAUX, 4)}, 0 offen sc0 sc1')
        a.wait_vm0()
        a('v_readfirstlane_b32 s5, v10')
        a('s_cmp_lt_u32 s5, 32')
        a('s_cbranch_scc1 L_ticket_ok')
        a('s_add_u32 s4, s4, 1')
        a('s_add_u32 s6, s6, 1')
        a('s_cmp_lt_u32 s6, 8')
        a('s_cbranch_scc1 L_ticket')
        a.label('L_ticket_ok')
        a('s_lshl_b32 s5, s5, 3')
        a('s_add_u32 s5, s5, s4')
        a('v_mov_b32 v9, s5')
        a('ds_write_b32 v8, v9')
        a('s_mov_b64 exec, -1')
        a('s_waitcnt lgkmcnt(0)')
        a.label('L_ticket_done')
        a('s_barrier')
        a('ds_read_b32 v9, v8')
        a('s_waitcnt lgkmcnt(0)')
        a('s_barrier')
        a(f'v_readfirstlane_b32 s{sID}, v9')
        a(f's_and_b32 s{sID}, s{sID}, 255')
        a.reset_counters()
        stamp(a, 'tick')
    if os.environ.get('UPRIO', '1') != '0':
        a(f's_cmp_eq_u32 s{sWH}, 0')
        a('s_cbranch_scc1 L_prio')
        a(f's_setprio {os.environ.get("UPRIO", "1")}')
        a.label('L_prio')
    a(f's_cmp_ge_u32 s{sID}, 128')
    a('s_cbranch_scc1 L_not_a')
    role_a(a)
    a.label('L_not_a')
    a.reset_counters()
    a(f's_and_b32 s4, s{sID}, 7')
    a(f's_lshr_b32 s5, s{sID}, 3')
    a('s_sub_u32 s5, s5, 16')
    a('s_cmp_ge_u32 s5, 14')
    a('s_cbranch_scc1 L_role_r')
    a('s_and_b32 s7, s4, 1')
    a('s_add_u32 s7, s7, 13')
    a('s_cmp_ge_u32 s5, s7')
    a('s_cbranch_scc1 L_role_wot')
    a('s_mul_i32 s6, s4, 27')
    a('s_lshr_b32 s6, s6, 1')
    a('s_add_u32 s6, s6, s5')
    role_b(a)
    a.label('L_role_r')
    a.reset_counters()
    a(f's_sub_u32 s6, s{sID}, 240')
    role_r(a)
    a.label('L_role_wot')
    a.reset_counters()
    a('s_lshr_b32 s6, s4, 1')
    role_wot(a)
    a.label('L_join')
    final_gemm(a)
    a.label('L_end')
    a('s_endpgm')
    if STAMPS:
        a.raw('; STAMPS ' + ' '.join(STAMP_NAMES))
    a.raw('.section .rodata,"a"')
    a.raw(f""".p2align 6
.amdhsa_kernel {K}
  .amdhsa_next_free_vgpr 256
  .amdhsa_next_free_sgpr 102
  .amdhsa_accum_offset 256
  .amdhsa_group_segment_fixed_size 0
  .amdhsa_kernarg_size 96
  .amdhsa_user_sgpr_count 2
  .amdhsa_user_sgpr_kernarg_segment_ptr 1
  .amdhsa_system_sgpr_workgroup_id_x 1
.end_amdhsa_kernel""")
    sys.stderr.write(f'maxv={a.maxv} maxa={a.maxa} maxs={a.maxs} nops={a.nops} lines={len(a.out)}\n')
    return a.text()


if __name__ == '__main__':
    out = sys.argv[1] if len(sys.argv) > 1 else os.path.join(os.path.dirname(__file__), '..', 'cdna_kernels', NAME + '.s')
    open(out, 'w').write(build())
```

```python
import sys, struct, os
sys.path.insert(0, os.path.dirname(__file__))
from asmdsl import Asm, Rec, V, A, S

NAME = 'parallel_sum__linear_kernel_hedgehog__mixer_token_mlp__prompt'
S_, D_, F_ = 2048, 640, 1728

HF_OFF = 0
HF_SZ = 8 * 64 * 5 * 1024
GF_OFF = HF_OFF + HF_SZ
GF_SZ = 8 * 74 * 5 * 1024
OF_OFF = GF_OFF + GF_SZ
OF_SZ = 32 * 20 * 4 * 1024
XF_OFF = OF_OFF + OF_SZ
XF_SZ = 128 * 20480
WF_OFF = XF_OFF + XF_SZ
WF_SZ = 480 * 5120 + 4096
KV_OFF = WF_OFF + WF_SZ
KV_SZ = 32 * 32 * 6144
KB_OFF = KV_OFF + KV_SZ + 4096
KB_SZ = 32 * 2048
FL_OFF = KB_OFF + KB_SZ + 4096
FSH = int(os.environ.get('FSH', '6'))
FH_OFF = FL_OFF
FK_OFF = FH_OFF + (1024 << FSH)
FR_OFF = FK_OFF + (1024 << FSH)
FG_OFF = FR_OFF + (128 << FSH)
FO_OFF = FG_OFF + (1024 << FSH)
FW_OFF = FO_OFF + (1024 << FSH)
FU_OFF = FW_OFF + (128 << FSH)
EP_OFF = FU_OFF + (512 << FSH)
WS_USED = EP_OFF + 512
STAMP_OFF = WS_USED
WS_USED += 512 * 256
STAMPS = bool(int(os.environ.get('STAMPS', '0')))
EXP = os.environ.get('EXP', '').split(',') + [e for e in ['map4', 'noticket', 'notlb'] if e not in os.environ.get('OFF', '').split(',')]
OOB = 0x40000000

P_X, P_WQKV, P_WPHI, P_WO, P_BX, P_W1, P_B1, P_W2, P_B2, P_OUT, P_DBG, P_WS = range(16, 40, 2)
LOG2E = 1.4426950408889634

sW = 3
sW8, sWH = 90, 91
sWS, sX, sWQ, sW1, sW2, sAUX, sOUT = 40, 44, 48, 52, 56, 60, 64
sHG, sRB, sID, sROT, sKS, sT, sM0B, sTAG = 68, 69, 70, 71, 72, 73, 74, 75
sL, sNL = 76, 78
sBDB, sBCB, sFS, sGM0, sSPIN, sLIM = 80, 81, 82, 83, 84, 85
vL, vG, vI, vR, vC = 1, 2, 3, 4, 5
vTOK, vGR = 6, 7
vFS = 42
DB = 64
XN = lambda s: DB + 8 * s
UP = lambda k: DB + 8 * k + 4

LDS_BYTES = 163840
A_SLOTS = 4
L_WQ = 0
L_RING = 102400
L_ZERO = 122880
L_WPHI = 126976
L_CNT = 131072
B_P = 10
G2_P = 5
ILV = os.environ.get('ILV', 'burst')


def kb_pos(f, t):
    if f < 32:
        return (f >> 4) * 512 + (t * 16 + (f & 15)) * 8 if t < 4 else 1024 + ((f >> 4) * 32 + (t - 4) * 16 + (f & 15)) * 8
    return 1536 + (t * 8 + f - 32) * 8


def fbits(x):
    return '0x%08x' % struct.unpack('<I', struct.pack('<f', x))[0]


def srd(a, dst, ptr, nbytes):
    a(f's_mov_b32 s{dst}, s{ptr}')
    a(f's_and_b32 s{dst + 1}, s{ptr + 1}, 0xffff')
    a(f's_mov_b32 s{dst + 2}, {nbytes}')
    a(f's_mov_b32 s{dst + 3}, 0x20000')


STAMP_NAMES = []
vST = 41


def stamp(a, name):
    if not STAMPS:
        return
    name = str(name)
    if name not in STAMP_NAMES:
        STAMP_NAMES.append(name)
    idx = STAMP_NAMES.index(name)
    a('s_memrealtime s[98:99]')
    a.wait_lg0()
    if idx == 0:
        a(f'v_mov_b32 v{vST}, 0')
        a('s_getreg_b32 s97, hwreg(HW_REG_HW_ID)')
        a(f'v_writelane_b32 v{vST}, s97, 63')
    a(f'v_writelane_b32 v{vST}, s98, {idx}')


def stamp_flush(a, n):
    if not STAMPS:
        return
    a.wait_vm0()
    stamp(a, n)
    lab = a.newlabel('st')
    a(f's_cmp_lg_u32 s{sW}, 0')
    a(f's_cbranch_scc1 {lab}')
    a(f's_lshl_b32 s4, s{sWH}, 8')
    a(f's_add_u32 s4, s4, s{sID}')
    a('s_lshl_b32 s4, s4, 8')
    a(f's_add_u32 s4, s4, {STAMP_OFF}')
    a(f'v_lshl_add_u32 v8, v{vL}, 2, s4')
    a(f'buffer_store_dword v{vST}, v8, {S(sWS, 4)}, 0 offen')
    if 'dbgmax' in EXP:
        srd(a, sAUX, P_DBG, 256)
        sel = os.environ.get('DBGSEL', 'start,x,prep,go,a0,aend,fm,rok,B_0,Bend,pub,gok,G2_0,Gend,end').split(',')
        a(f'v_readlane_b32 s4, v{vST}, 0')
        a('s_not_b32 s4, s4')
        a(f'v_writelane_b32 v{vST}, s4, 62')
        a('s_mov_b64 exec, 1')
        for k, nm in enumerate(['neg'] + sel):
            if nm != 'neg' and nm not in STAMP_NAMES:
                STAMP_NAMES.append(nm)
            lane = 62 if nm == 'neg' else STAMP_NAMES.index(nm)
            a(f'v_readlane_b32 s4, v{vST}, {lane}')
            a('v_mov_b32 v9, s4')
            a('v_mov_b32 v8, 0')
            a(f'buffer_atomic_umax v9, v8, {S(sAUX, 4)}, 0 offen offset:{4 * k} sc1')
        a('s_mov_b64 exec, -1')
    a.label(lab)


def reduce_g(a, r, t):
    a(f'v_mov_b32 v{t}, v{r}')
    a(f'v_permlane32_swap_b32 v{r}, v{t}')
    a(f'v_add_f32 v{r}, v{r}, v{t}')
    a(f'v_mov_b32 v{t}, v{r}')
    a(f'v_permlane16_swap_b32 v{r}, v{t}')
    a(f'v_add_f32 v{r}, v{r}, v{t}')


def dma160_voffs(a, dst, stride, permute, tmp):
    t0, t2, t3 = tmp, tmp + 1, tmp + 2
    for q in range(5):
        d = dst + q
        a(f'v_add_u32 v{t0}, {q * 64}, v{vL}')
        a(f'v_mul_u32_u24 v{t2}, 6554, v{t0}')
        a(f'v_lshrrev_b32 v{t2}, 16, v{t2}')
        a(f'v_mul_u32_u24 v{t3}, 10, v{t2}')
        a(f'v_sub_u32 v{t0}, v{t0}, v{t3}')
        if permute:
            a(f'v_bfe_u32 v{t3}, v{t2}, 2, 2')
            a(f'v_lshlrev_b32 v{t3}, 3, v{t3}')
            a(f'v_and_b32 v{d}, 3, v{t2}')
            a(f'v_add_u32 v{t3}, v{t3}, v{d}')
            a(f'v_lshrrev_b32 v{t2}, 4, v{t2}')
            a(f'v_lshl_add_u32 v{t2}, v{t2}, 2, v{t3}')
        a(f'v_mul_u32_u24 v{t2}, {stride}, v{t2}')
        a(f'v_lshl_add_u32 v{d}, v{t0}, 4, v{t2}')
        if 0 < q < 4:
            a(f'v_subrev_u32 v{d}, {q * 1024}, v{d}')


def dma160(a, vo, ssrd, soff, m0_s, m0_add, nt=''):
    a(f's_add_u32 m0, s{m0_s}, {m0_add}')
    for q in range(4):
        off = f' offset:{q * 1024}' if q else ''
        a(f'buffer_load_dwordx4 v{vo + q}, {S(ssrd, 4)}, s{soff} offen{off}{nt} lds')
    a(f's_add_u32 m0, s{m0_s}, {m0_add + 4096}')
    return a(f'buffer_load_dwordx4 v{vo + 4}, {S(ssrd, 4)}, s{soff} offen{nt} lds')


class Hooks:
    def __init__(self, items=()):
        self.items = list(items)

    def run(self, n=1):
        for _ in range(n):
            if self.items:
                self.items.pop(0)()

    def flush(self):
        self.run(len(self.items))


def softmax_pm(a, P, PH, EP, EN, tmp):
    p = [P[k // 4] + k % 4 for k in range(20)]
    ep = [EP[k // 4] + k % 4 for k in range(20)]
    en = [EN[k // 4] + k % 4 for k in range(20)]
    mx, mn, sp, sn = tmp, tmp + 2, tmp + 4, tmp + 6
    a(f'v_max3_f32 v{mx}, v{p[0]}, v{p[1]}, v{p[2]}')
    a(f'v_min3_f32 v{mn}, v{p[0]}, v{p[1]}, v{p[2]}')
    for k in range(3, 19, 2):
        a(f'v_max3_f32 v{mx}, v{mx}, v{p[k]}, v{p[k + 1]}')
        a(f'v_min3_f32 v{mn}, v{mn}, v{p[k]}, v{p[k + 1]}')
    a(f'v_max_f32 v{mx}, v{mx}, v{p[19]}')
    a(f'v_min_f32 v{mn}, v{mn}, v{p[19]}')
    a(f'v_mul_f32 v{mx}, s{sNL}, v{mx}')
    a(f'v_mul_f32 v{mn}, s{sL}, v{mn}')
    for k in range(0, 20, 2):
        a(f'v_pk_fma_f32 {V(ep[k], 2)}, {V(p[k], 2)}, {S(sL, 2)}, {V(mx, 2)} op_sel_hi:[1,0,0]')
        a(f'v_pk_fma_f32 {V(en[k], 2)}, {V(p[k], 2)}, {S(sNL, 2)}, {V(mn, 2)} op_sel_hi:[1,0,0]')
    for k in range(20):
        a(f'v_exp_f32 v{ep[k]}, v{ep[k]}')
        a(f'v_exp_f32 v{en[k]}, v{en[k]}')
    a(f'v_pk_add_f32 {V(sp, 2)}, {V(ep[0], 2)}, {V(ep[2], 2)}')
    a(f'v_pk_add_f32 {V(sn, 2)}, {V(en[0], 2)}, {V(en[2], 2)}')
    for k in range(4, 20, 2):
        a(f'v_pk_add_f32 {V(sp, 2)}, {V(sp, 2)}, {V(ep[k], 2)}')
        a(f'v_pk_add_f32 {V(sn, 2)}, {V(sn, 2)}, {V(en[k], 2)}')
    a(f'v_add_f32 v{sp}, v{sp}, v{sp + 1}')
    a(f'v_add_f32 v{sn}, v{sn}, v{sn + 1}')
    a(f'v_rcp_f32 v{sp}, v{sp}')
    a(f'v_rcp_f32 v{sn}, v{sn}')
    for k in range(0, 20, 2):
        a(f'v_pk_mul_f32 {V(ep[k], 2)}, {V(ep[k], 2)}, {V(sp, 2)} op_sel_hi:[1,0]')
        a(f'v_pk_mul_f32 {V(en[k], 2)}, {V(en[k], 2)}, {V(sn, 2)} op_sel_hi:[1,0]')
    allv = ep + en
    for k in range(20):
        a(f'v_cvt_pk_bf16_f32 v{PH[k // 4] + k % 4}, v{allv[2 * k]}, v{allv[2 * k + 1]}')


def flag_set(a, s_off):
    a(f'v_lshl_add_u32 v{vFS}, v{vL}, 2, s{s_off}')
    a(f'v_mov_b32 v{vFS + 1}, s{sTAG}')
    a(f's_mov_b64 exec, {hex((1 << (1 << (FSH - 2))) - 1)}')
    a(f'buffer_store_dword v{vFS + 1}, v{vFS}, {S(sWS, 4)}, 0 offen sc1')
    a('s_mov_b64 exec, -1')


def flag_issue(a, vaddr, vdst):
    return a(f'buffer_load_dword v{vdst}, v{vaddr}, {S(sWS, 4)}, 0 offen sc1')


def flag_check(a, tok, vaddr, vdst, sleep=2):
    ok = a.newlabel('ok')
    lp = a.newlabel('poll')
    a.wait(tok)
    a(f'v_cmp_ne_u32 vcc, s{sTAG}, v{vdst}')
    a(f's_cbranch_vccz {ok}')
    a(f's_mov_b32 s{sSPIN}, 0')
    a.label(lp)
    a(f's_sleep {sleep}')
    a.raw(f'\tbuffer_load_dword v{vdst}, v{vaddr}, {S(sWS, 4)}, 0 offen sc1')
    a('s_waitcnt vmcnt(0)')
    a(f'v_cmp_ne_u32 vcc, s{sTAG}, v{vdst}')
    a(f's_cbranch_vccz {ok}')
    a(f's_add_u32 s{sSPIN}, s{sSPIN}, 1')
    a(f's_cmp_lt_u32 s{sSPIN}, 0x8000')
    a(f's_cbranch_scc1 {lp}')
    a.label(ok)


def featmap(a, ACC5, PK, WPF, P5, EP5, EN5, tmp):
    for k in range(10):
        t, j = divmod(2 * k, 4)
        a(f'v_cvt_pk_bf16_f32 v{PK[k // 4] + k % 4}, v{ACC5[t] + j}, v{ACC5[t] + j + 1}')
    for ks in range(3):
        for t in range(5):
            d = V(P5[t], 4)
            if ks < 2:
                a(f'v_mfma_f32_16x16x32_bf16 {d}, {V(WPF(t, ks), 4)}, {V(PK[ks], 4)}, {"0" if ks == 0 else d}')
            else:
                a(f'v_mfma_f32_16x16x16_bf16 {d}, {V(WPF(t, ks), 2)}, {V(PK[ks], 2)}, {d}')
    softmax_pm(a, P5, P5, EP5, EN5, tmp)


def xcd_tile(a):
    a(f's_and_b32 s4, s{sID}, 7')
    a(f's_lshr_b32 s5, s{sID}, 3')
    if 'g2map8' in EXP:
        a(f's_and_b32 s{sHG}, s5, 7')
        a('s_lshl_b32 s6, s4, 2')
        a('s_lshr_b32 s7, s5, 3')
        a(f's_add_u32 s{sRB}, s6, s7')
    else:
        a('s_and_b32 s6, s4, 1')
        a('s_lshl_b32 s6, s6, 2')
        a('s_and_b32 s7, s5, 3')
        a(f's_add_u32 s{sHG}, s6, s7')
        a('s_lshr_b32 s6, s4, 1')
        a('s_lshl_b32 s6, s6, 3')
        a('s_lshr_b32 s7, s5, 2')
        a(f's_add_u32 s{sRB}, s6, s7')
    a(f's_lshl_b32 s4, s{sRB}, 6')
    a(f's_lshl_b32 s5, s{sW}, 4')
    a('s_add_u32 s4, s4, s5')
    a(f'v_add_u32 v{vTOK}, s4, v{vI}')


def ln_scales(a, vS, vRS, vNB):
    a(f'v_mul_f32 v{vS}, {fbits(1.0 / 640)}, v{vS}')
    a(f'v_mul_f32 v{vS + 2}, {fbits(1.0 / 640)}, v{vS + 2}')
    a(f'v_fma_f32 v{vS + 2}, -v{vS}, v{vS}, v{vS + 2}')
    a(f'v_max_f32 v{vS + 2}, 0, v{vS + 2}')
    a(f'v_add_f32 v{vS + 1}, {fbits(1e-5)}, v{vS + 2}')
    a(f'v_rsq_f32 v{vRS}, v{vS + 1}')
    a(f'v_mul_f32 v{vNB}, v{vS}, v{vRS}')
    a(f'v_sub_f32 v{vNB}, 0, v{vNB}')


vD, vF, vT, vT2, vFL, vFD, vOF, vXA, vBA = 8, 12, 14, 18, 22, 23, 28, 32, 33
ACC = lambda t, nt: 44 + (nt * 5 + t) * 4
TF = lambda j, nt: 124 + (j % 2) * 16 + 4 * nt
POOL = [156 + 4 * k for k in range(25)]


class GGemm:
    def __init__(self, a, kind):
        self.a, self.kind = a, kind
        if kind == 'B':
            self.stride, self.srdm, self.n, self.fr_off, self.fr_steps = F_ * 2, sW1, 16, HF_OFF, 64
            self.sdb, self.scb, self.ntot, self.P = sBDB, sBCB, 16, B_P
        else:
            self.stride, self.srdm, self.n, self.fr_off, self.fr_steps = S_ * 2, sW2, 14, GF_OFF, 74
            self.sdb, self.scb, self.ntot, self.P = sHG, sRB, 19, G2_P
        self.dtok, self.ftok, self.ttok = {}, {}, {}
        self.free = list(POOL)
        self.reg = {}
        self.pending = []
        order = [(j, 'a') for j in range(self.n)]
        if kind == 'G2':
            order += [(j, k) for j in range(14, 19) for k in 'ab']
        for j, k in order:
            self.pending += [(j, k, x) for x in range(5 if k == 'a' else 4)]
        self.gate = lambda: None
        self.gate2 = lambda: None
        self.nq = 2 if kind == 'B' else 4

    def setup(self):
        a, st = self.a, self.stride
        a(f'v_lshrrev_b32 v24, 3, v{vL}')
        if self.kind == 'B':
            a('v_lshrrev_b32 v25, 2, v24')
            a('v_and_b32 v24, 3, v24')
            a('v_lshl_add_u32 v24, v25, 3, v24')
        a(f'v_mul_u32_u24 v24, {st}, v24')
        a(f'v_and_b32 v25, 7, v{vL}')
        a(f'v_lshlrev_b32 v26, 1, v{vG}')
        a('v_xor_b32 v25, v25, v26')
        a('v_lshl_add_u32 v24, v25, 4, v24')
        a(f's_lshl_b32 s4, s{self.scb}, 7')
        a(f's_mul_i32 s5, s{sW}, {self.n * 32 * st}')
        a('s_add_u32 s5, s5, s4')
        if self.kind == 'B':
            a(f's_mul_i32 s6, s{sWH}, {4 * st}')
            a('s_add_u32 s5, s5, s6')
            a(f's_lshl_b32 s6, s{sWH}, 11')
            a(f's_add_u32 s{sM0B}, s{sGM0}, s6')
        else:
            a(f's_mov_b32 s{sM0B}, s{sGM0}')
        for q in range(self.nq):
            row = 8 * q if self.kind != 'B' else q * 16
            a(f's_add_u32 s6, s5, {row * st - 1024 * q}')
            a(f'v_add_u32 v{vD + q}, s6, v24')
        a(f's_mul_i32 s4, s{self.sdb}, {self.fr_steps}')
        a(f's_mul_i32 s5, s{sW}, {self.n}')
        a('s_add_u32 s4, s4, s5')
        a('s_mul_i32 s4, s4, 5120')
        a(f's_add_u32 s{sFS}, s4, {self.fr_off}')
        if self.kind == 'B':
            a(f's_lshl_b32 s4, s{sW}, {6 + FSH}')
            a(f's_add_u32 s4, s4, {FH_OFF}')
            a(f'v_lshl_add_u32 v{vFL}, v{vL}, {FSH}, s4')
        else:
            a(f's_lshl_b32 s4, s{self.sdb}, {7 + FSH}')
            a(f's_mul_i32 s5, s{sW}, {28 << FSH}')
            a('s_add_u32 s4, s4, s5')
            a(f's_add_u32 s4, s4, {FG_OFF}')
            a(f's_mul_i32 s5, s{self.sdb}, {74 * 5120}')
            a(f's_add_u32 s{sLIM}, s5, {GF_OFF + 53 * 5120}')
            a(f's_cmp_eq_u32 s{sW}, 3')
            a('s_cselect_b32 s5, 23, 27')
            a(f'v_min_u32 v24, s5, v{vL}')
            a(f'v_lshl_add_u32 v{vFL}, v24, {FSH}, s4')

    def dma_items(self, j):
        a = self.a

        def one(q):
            def f():
                if q == 0:
                    a(f's_add_u32 m0, s{sM0B}, {(j % self.P) * 16384}')
                off = f' offset:{q * 1024}' if q else ''
                nt = ' nt' if ('ntb' in EXP and self.kind == 'B' and j < self.P) else ''
                self.dtok[j] = a(f'buffer_load_dwordx4 v{vD + q}, {S(self.srdm, 4)}, 0 offen{off}{nt} lds')
                if not ('hotw' in EXP):
                    a(f'v_add_u32 v{vD + q}, {32 * self.stride}, v{vD + q}')
            return f
        return [one(q) for q in range(self.nq)]

    def frag_items(self, lim=99):
        a = self.a
        out = []
        while self.free and self.pending and len(out) < lim:
            key = self.pending.pop(0)
            r = self.free.pop(0)
            self.reg[key] = r

            def f(key=key, r=r):
                j, kind, x = key
                if key == (self.n, 'a', 0):
                    self.gate()
                if key == (self.n, 'b', 0):
                    self.gate2()
                if kind == 'a':
                    vo, off = (vF, x * 1024) if x < 4 else (vF + 1, 0)
                    offs = f' offset:{off}' if off else ''
                    self.ftok[j] = a(f'buffer_load_dwordx4 {V(r, 4)}, v{vo}, {S(sWS, 4)}, s{sFS} offen{offs} sc1')
                    if x == 4 and 'hotf' not in EXP:
                        a(f's_add_u32 s{sFS}, s{sFS}, 5120')
                        if self.kind == 'G2' and j < 14:
                            a(f's_min_u32 s{sFS}, s{sFS}, s{sLIM}')
                else:
                    if j - self.n == 2:
                        a(f'v_lshlrev_b32 v24, 3, v{vL}')
                        a(f'v_sub_u32 v24, v{vOF + x}, v24')
                        a(f'buffer_load_dwordx2 {V(r, 2)}, v24, {S(sWS, 4)}, s11 offen sc1')
                        self.ftok[j] = a(f'buffer_load_dwordx2 {V(r + 2, 2)}, v24, {S(sWS, 4)}, s11 offen offset:512 sc1')
                    else:
                        self.ftok[j] = a(f'buffer_load_dwordx4 {V(r, 4)}, v{vOF + x}, {S(sWS, 4)}, s11 offen sc1')
                    if x == 3:
                        a('s_add_u32 s11, s11, 4096')
            out.append(f)
        return out

    def tr_items(self, j):
        a = self.a

        def one(nt):
            def f():
                off = (j % self.P) * 16384
                base = vT
                if off >= 65536:
                    if off % 65536 == 0:
                        a(f'v_add_u32 v{vT2 + nt}, {off}, v{vT + nt}')
                    off %= 65536
                    base = vT2
                a(f'ds_read_b64_tr_b16 {V(TF(j, nt), 2)}, v{base + nt} offset:{off}')
                self.ttok[j] = a(f'ds_read_b64_tr_b16 {V(TF(j, nt) + 2, 2)}, v{base + nt} offset:{off + 2048}')
            return f
        return [one(nt) for nt in range(4)]

    def mainloop(self, extra):
        a, n = self.a, self.n
        a.wait(self.dtok[0])
        Hooks(self.tr_items(0)).flush()
        for j in range(self.ntot):
            items = []
            if j + 1 < n:
                a.wait(self.dtok[j + 1])
            a.wait(self.ftok[j], self.ttok.get(j))
            if self.kind == 'B' and j + 1 < n and (j + self.P < n or j + 1 >= int(os.environ.get('BPRE', '10'))):
                a('s_barrier')
            if j % 3 == 0:
                stamp(a, f'{self.kind}_{j}')
                if STAMPS and j in (3, 9):
                    a('s_memtime s[98:99]')
                    a.wait_lg0()
                    a(f'v_writelane_b32 v{vST}, s98, {56 + (j // 9) + (2 if self.kind == "G2" else 0)}')
            if j + 1 < n:
                items += self.tr_items(j + 1)
            if j + self.P < n:
                items += self.dma_items(j + self.P)
            items += extra(j)
            items += self.frag_items(10)
            last = j == self.ntot - 1
            if self.kind == 'G2' and j == 16:
                a('s_barrier')
            if last:
                a(f's_mul_i32 s7, s{sWH}, 102400')
                for nt in range(1, 4):
                    a(f's_xor_b32 s4, s{sW}, {nt}')
                    a('s_mul_i32 s4, s4, 15360')
                    a(f's_add_u32 s4, s4, {(nt - 1) * 5120}')
                    a('s_add_u32 s4, s4, s7')
                    a(f'v_add_u32 v{24 + nt}, s4, v{vF}')
                wr = [(nt, t) for nt in (1, 2, 3) for t in range(5)]
            hk = Hooks(items)
            k = 0
            ILV = os.environ.get('ILVB', 'fine') if self.kind == 'B' else os.environ.get('ILVG', 'burst')
            for nt in (1, 2, 3, 0):
                for t in range(5):
                    acc = V(ACC(t, nt), 4)
                    c = '0' if j == 0 else acc
                    fr = V(self.reg[(j, 'a', t)], 4)
                    tf = V(TF(j, nt) if j < n else self.reg[(j, 'b', nt)], 4)
                    if self.kind == 'B':
                        a(f'v_mfma_f32_16x16x32_bf16 {acc}, {tf}, {fr}, {c}')
                    else:
                        a(f'v_mfma_f32_16x16x32_bf16 {acc}, {fr}, {tf}, {c}')
                    k += 1
                    if last and k > 5:
                        wn, wt = wr.pop(0)
                        a(f'ds_write_b128 v{24 + wn}, {V(ACC(wt, wn), 4)} offset:{wt * 1024}')
                    if ILV == 'fine':
                        if k % 4 != 0:
                            hk.run()
                    elif ILV == 'burst':
                        if k <= 4 and j + 1 < n:
                            hk.run()
                    elif ILV == 'two':
                        if k <= 4 and j + 1 < n:
                            hk.run()
                        if k == 10:
                            hk.run(4)
                    elif ILV == 'pre':
                        if k == 1:
                            hk.flush()
            hk.flush()
            self.free += [r for key, r in self.reg.items() if key[0] == j]
            if n - 2 <= j < n:
                self.free += [TF(j, nt) for nt in range(4)]

    def reduce(self):
        a = self.a
        a(f's_mul_i32 s4, s{sW}, 15360')
        a('s_add_u32 s4, s4, s7')
        a(f'v_add_u32 v24, s4, v{vF}')
        a.wait_lg0()
        a('s_barrier')
        rtok = {}
        for nt in range(1, 4):
            for t in range(5):
                rtok[(nt, t)] = a(f'ds_read_b128 {V(ACC(t, nt), 4)}, v24 offset:{(nt - 1) * 5120 + t * 1024}')
        for nt in range(1, 4):
            for t in range(5):
                a.wait(rtok[(nt, t)])
                for h in range(2):
                    d = V(ACC(t, 0) + 2 * h, 2)
                    a(f'v_pk_add_f32 {d}, {d}, {V(ACC(t, nt) + 2 * h, 2)}')


def frag10_addr(a, m, hi_add, step, base_s, vrd, vrd_base, vst):
    a(f's_add_u32 s4, s{sW}, {4 * m}')
    a('s_min_u32 s5, s4, 9')
    a('s_cmp_ge_u32 s5, 5')
    a(f's_cselect_b32 s6, {hi_add}, 0')
    a(f's_mul_i32 s5, s5, {step}')
    a('s_add_u32 s5, s5, s6')
    a(f'v_add_u32 v{vrd}, s5, v{vrd_base}')
    a('s_lshl_b32 s5, s4, 10')
    a(f's_add_u32 s5, s5, s{base_s}')
    a('s_cmp_ge_u32 s4, 10')
    a(f's_cselect_b32 s5, {OOB}, s5')
    a(f'v_lshl_add_u32 v{vst}, v{vL}, 4, s5')


NTP = ' nt' if 'ntp' in EXP else ''
FIRST = int(os.environ.get('FIRST', '25'))
vTH = 40


def g_common(a):
    a(f'v_lshlrev_b32 v{vF}, 4, v{vL}')
    a(f'v_add_u32 v{vF + 1}, 4096, v{vF}')
    a(f's_lshl_b32 s{sGM0}, s{sW}, 12')
    a(f'v_bfe_u32 v25, v{vGR}, 1, 2')
    a(f'v_xor_b32 v25, s{sW}, v25')
    a(f'v_lshlrev_b32 v26, 7, v{vGR}')
    a(f'v_lshl_add_u32 v26, v{vC}, 3, v26')
    a(f'v_add_u32 v26, s{sGM0}, v26')
    for nt in range(4):
        a(f'v_xor_b32 v27, {nt}, v25')
        a(f'v_lshl_add_u32 v{vT + nt}, v27, 5, v26')


def tag_ready(a):
    a('s_waitcnt lgkmcnt(0)')
    a(f's_add_u32 s{sTAG}, s{sTAG}, 1')


def role_a(a):
    a(f's_and_b32 s4, s{sID}, 7')
    a(f's_lshr_b32 s5, s{sID}, 3')
    a('s_and_b32 s6, s4, 1')
    a('s_lshl_b32 s6, s6, 2')
    a('s_and_b32 s7, s5, 3')
    a(f's_add_u32 s{sHG}, s6, s7')
    a('s_lshr_b32 s6, s4, 1')
    a('s_lshl_b32 s6, s6, 2')
    a('s_lshr_b32 s7, s5, 2')
    a('s_add_u32 s6, s6, s7')
    a(f's_mov_b32 s{sRB}, s6')
    a('s_lshl_b32 s6, s6, 3')
    a(f's_add_u32 s15, s6, s{sHG}')
    a('s_lshl_b32 s12, s15, 1')
    a(f's_add_u32 s12, s12, s{sWH}')
    X = 156
    a('s_lshl_b32 s4, s12, 2')
    a(f's_add_u32 s4, s4, s{sW}')
    a('s_mul_i32 s4, s4, 2560')
    a(f'v_mul_u32_u24 v24, 40, v{vL}')
    xt = []
    for k in range(5):
        xt.append(a(f'buffer_load_dwordx2 {V(X + 2 * k, 2)}, v24, {S(sX, 4)}, s4 offen offset:{8 * k}{NTP}'))
    srd(a, sWQ, P_WQKV, D_ * 3 * D_ * 2)
    vLN = 8
    a(f'v_lshlrev_b32 v{vLN}, 4, v{vL}')
    a(f'v_add_u32 v{vLN + 1}, 4096, v{vLN}')
    a(f's_mul_i32 s{sM0B}, s{sW8}, 5120')
    a('s_lshl_b32 s10, s15, 2')
    a(f's_add_u32 s10, s10, s{sW}')
    a('s_mul_i32 s4, s10, 1093')
    a('s_lshr_b32 s4, s4, 16')
    a('s_mul_i32 s5, s4, 60')
    a('s_sub_u32 s5, s10, s5')
    a('s_lshr_b32 s6, s5, 1')
    a('s_and_b32 s7, s5, 1')
    a('s_add_u32 s7, s7, 1')
    a('s_sub_u32 s8, s5, 40')
    a('s_cmp_ge_u32 s5, 40')
    a('s_cselect_b32 s6, s8, s6')
    a('s_cselect_b32 s7, 0, s7')
    a(f's_mul_i32 s6, s6, {32 * 3840}')
    a('s_mul_i32 s7, s7, 1280')
    a('s_mul_i32 s4, s4, 160')
    a('s_add_u32 s6, s6, s7')
    a('s_add_u32 s6, s6, s4')
    a(f's_cmp_eq_u32 s{sWH}, 0')
    a('s_cselect_b32 s10, 480, s10')
    dma160_voffs(a, 12, 3840, True, 18)
    a('s_cmp_ge_u32 s10, 480')
    a(f's_cselect_b32 s7, {OOB}, 0')
    for q in range(5):
        a(f'v_add_u32 v{12 + q}, s7, v{12 + q}')
    utok = dma160(a, 12, sWQ, 6, sM0B, 0, NTP)
    a(f's_mul_i32 s13, s{sWH}, 24576')
    a('s_add_u32 s13, s13, 65536')
    a('s_add_u32 s14, s13, 12288')
    srd(a, sAUX, P_WPHI, 32 * 800)
    a(f's_mul_i32 s6, s{sHG}, 3200')
    a(f's_lshl_b32 s7, s{sW}, 10')
    a('s_add_u32 s6, s6, s7')
    a(f'v_lshl_add_u32 v10, v{vL}, 4, s6')
    a(f's_add_u32 m0, s7, {L_WPHI}')
    a(f'buffer_load_dwordx4 v10, {S(sAUX, 4)}, 0 offen lds')
    for k in range(4):
        a(f'v_mov_b32 v{44 + k}, 0')
    a(f'v_lshlrev_b32 v18, 4, v{vTH}')
    a(f'v_add_u32 v18, {L_ZERO}, v18')
    a('ds_write_b128 v18, v[44:47]')
    a(f'v_mov_b32 v10, {L_CNT}')
    a('v_mov_b32 v11, 0')
    a('ds_write2_b32 v10, v11, v11 offset0:0 offset1:1')
    vONE, vS, vRS, vNB = 34, 36, 168, 170
    a(f'v_mov_b32 v{vONE}, 0x3f803f80')
    for k in range(4):
        a(f'v_mov_b32 v{vS + k}, 0')
    a('s_waitcnt lgkmcnt(0)')
    a(f's_add_u32 s{sTAG}, s{sTAG}, 1')
    a.wait(xt[4])
    stamp(a, 'x')
    for k in range(10):
        a(f'v_dot2c_f32_bf16 v{vS + (k & 1)}, v{X + k}, v{vONE}')
        a(f'v_dot2c_f32_bf16 v{vS + 2 + (k & 1)}, v{X + k}, v{X + k}')
    a(f'v_add_f32 v{vS}, v{vS}, v{vS + 1}')
    a(f'v_add_f32 v{vS + 2}, v{vS + 2}, v{vS + 3}')
    for sh in (8, 4, 2, 1):
        for r in (vS, vS + 2):
            a(f'v_add_f32_dpp v{r}, v{r}, v{r} row_ror:{sh} row_mask:0xf bank_mask:0xf')
    for r in (vS, vS + 2):
        a(f'v_mov_b32 v{r + 1}, v{r}')
        a(f'v_permlane16_swap_b32 v{r}, v{r + 1}')
        a(f'v_add_f32 v{r}, v{r}, v{r + 1}')
    ln_scales(a, vS, vRS, vNB)
    a(f'v_mul_f32 v{vS + 1}, v{vRS}, v{vRS}')
    a(f'v_mov_b32 v{vS + 3}, {fbits(1e-5)}')
    a(f'v_fmac_f32 v{vS + 3}, v{vS + 1}, v{vS + 2}')
    a(f'v_rsq_f32 v{vS + 2}, v{vS + 3}')
    U = 172
    for k in range(10):
        a(f'v_lshlrev_b32 v{U + 2 * k}, 16, v{X + k}')
        a(f'v_and_b32 v{U + 2 * k + 1}, 0xffff0000, v{X + k}')
    for k in range(10):
        a(f'v_pk_fma_f32 {V(U + 2 * k, 2)}, {V(U + 2 * k, 2)}, {V(vRS, 2)}, {V(vNB, 2)} op_sel_hi:[1,0,0]')
    XQ = 192
    for k in range(10):
        a(f'v_cvt_pk_bf16_f32 v{XQ + k}, v{U + 2 * k}, v{U + 2 * k + 1}')
    for k in range(10):
        a(f'v_pk_mul_f32 {V(U + 2 * k, 2)}, {V(U + 2 * k, 2)}, {V(vS + 2, 2)} op_sel_hi:[1,0]')
    for k in range(10):
        a(f'v_cvt_pk_bf16_f32 v{X + k}, v{U + 2 * k}, v{U + 2 * k + 1}')
    a(f's_mul_i32 s4, s{sW}, {2 * 1296}')
    a('s_add_u32 s4, s4, s13')
    a(f'v_mul_u32_u24 v24, 40, v{vL}')
    a(f'v_lshrrev_b32 v25, 5, v{vL}')
    a('v_lshl_add_u32 v24, v25, 4, v24')
    a('v_add_u32 v24, s4, v24')
    for k in range(5):
        a(f'ds_write_b64 v24, {V(XQ + 2 * k, 2)} offset:{8 * k}')
    a(f'v_and_b32 v25, 7, v{vTH}')
    a(f'v_lshrrev_b32 v26, 3, v{vTH}')
    a('v_mul_u32_u24 v28, 1296, v25')
    a('v_lshl_add_u32 v28, v26, 4, v28')
    a('v_add_u32 v28, s13, v28')
    a('v_lshlrev_b32 v29, 8, v26')
    a('v_lshl_add_u32 v29, v25, 4, v29')
    a(f's_lshr_b32 s4, s12, 1')
    a('s_mul_i32 s4, s4, 20480')
    a(f's_and_b32 s5, s12, 1')
    a('s_lshl_b32 s5, s5, 7')
    a('s_add_u32 s4, s4, s5')
    a(f's_add_u32 s4, s4, {XF_OFF}')
    a('v_add_u32 v29, s4, v29')
    a('v_add_u32 v30, 8192, v29')
    a(f's_cmp_ge_u32 s{sW}, 2')
    a(f's_cselect_b32 s4, {OOB}, 16384')
    a('v_add_u32 v31, s4, v29')
    a(f's_mul_i32 s4, s{sW}, 2560')
    a('s_add_u32 s4, s4, s14')
    a(f'v_mul_u32_u24 v24, 40, v{vL}')
    a('v_add_u32 v24, s4, v24')
    for k in range(5):
        a(f'ds_write_b64 v24, {V(X + 2 * k, 2)} offset:{8 * k}')
    a(f'v_mul_u32_u24 v24, 1280, v{vR}')
    a(f'v_mul_u32_u24 v25, 160, v{vG}')
    a('v_add_u32 v24, v24, v25')
    a(f'v_mul_u32_u24 v25, 40, v{vC}')
    a('v_add_u32 v24, v24, v25')
    a('v_add_u32 v24, s14, v24')
    a(f'v_mul_u32_u24 v25, {64 * 5120}, v{vG}')
    a(f'v_lshl_add_u32 v25, v{vI}, 4, v25')
    a(f's_lshr_b32 s4, s12, 2')
    a('s_mul_i32 s4, s4, 5120')
    a(f's_and_b32 s5, s12, 3')
    a('s_lshl_b32 s5, s5, 8')
    a('s_add_u32 s4, s4, s5')
    a(f's_add_u32 s8, s4, {HF_OFF}')
    a.wait_lg0()
    a('s_barrier')
    ht = []
    for m in range(3):
        ht.append(a(f'ds_read_b128 {V(XQ + 4 * m, 4)}, v28 offset:{512 * m}'))
    for m in range(3):
        a.wait(ht[m])
        a(f'buffer_store_dwordx4 {V(XQ + 4 * m, 4)}, v{29 + m}, {S(sWS, 4)}, 0 offen sc1')
    ht = []
    for m in range(3):
        a(f's_add_u32 s4, s{sW}, {4 * m}')
        a('s_min_u32 s5, s4, 9')
        a('s_cmp_ge_u32 s5, 5')
        a(f's_cselect_b32 s6, {640 - 40}, 0')
        a(f's_cselect_b32 s7, {4 * 64 * 5120 - 5120}, 0')
        a('s_lshl_b32 s5, s5, 3')
        a('s_add_u32 s5, s5, s6')
        a('v_add_u32 v26, s5, v24')
        a(f'ds_read_b64_tr_b16 {V(U + 4 * m, 2)}, v26')
        ht.append(a(f'ds_read_b64_tr_b16 {V(U + 4 * m + 2, 2)}, v26 offset:{4 * 1280}'))
        a('s_lshl_b32 s5, s4, 10')
        a('s_add_u32 s5, s5, s7')
        a('s_add_u32 s5, s5, s8')
        a('s_cmp_ge_u32 s4, 10')
        a(f's_cselect_b32 s5, {OOB}, s5')
        a(f'v_add_u32 v{34 + m}, s5, v25')
    for m in range(3):
        a.wait(ht[m])
        a(f'buffer_store_dwordx4 {V(U + 4 * m, 4)}, v{34 + m}, {S(sWS, 4)}, 0 offen sc1')
    hst = ('vm', a.vm_issued - 1)
    a(f'v_mul_u32_u24 v29, 160, v{vGR}')
    a(f'v_mul_u32_u24 v24, 40, v{vC}')
    a('v_add_u32 v29, v29, v24')
    a(f'v_add_u32 v29, s{sM0B}, v29')
    a('s_mul_i32 s4, s10, 5120')
    a(f's_add_u32 s4, s4, {WF_OFF}')
    a('s_cmp_ge_u32 s10, 480')
    a(f's_cselect_b32 s4, {OOB}, s4')
    a(f'v_add_u32 v24, s4, v{vLN}')
    a(f'v_add_u32 v25, s4, v{vLN + 1}')
    a(f's_lshl_b32 s5, s10, {FSH}')
    a(f's_add_u32 s5, s5, {FU_OFF}')
    a('s_cmp_ge_u32 s10, 480')
    a(f's_cselect_b32 s10, {OOB}, s5')
    a.wait(utok)
    ut = []
    for t in range(5):
        a(f'ds_read_b64_tr_b16 {V(UP(t), 2)}, v29 offset:{8 * t}')
        ut.append(a(f'ds_read_b64_tr_b16 {V(UP(t) + 2, 2)}, v29 offset:{8 * t + 2560}'))
    for t in range(5):
        a.wait(ut[t])
        vo, off = (24, t * 1024) if t < 4 else (25, 0)
        a(f'buffer_store_dwordx4 {V(UP(t), 4)}, v{vo}, {S(sWS, 4)}, 0 offen offset:{off} sc1')
    a(f's_lshl_b32 s4, s{sWH}, 2')
    a(f's_add_u32 s4, s4, {L_CNT}')
    a('v_mov_b32 v10, s4')
    a('v_mov_b32 v11, 1')
    a.wait(hst)
    a('s_mov_b64 exec, 1')
    a('ds_add_rtn_u32 v11, v10, v11')
    a('s_mov_b64 exec, -1')
    a.wait_lg0()
    a('v_readfirstlane_b32 s5, v11')
    a(f's_lshl_b32 s4, s12, {FSH}')
    a(f's_add_u32 s4, s4, {FH_OFF}')
    a('s_cmp_lg_u32 s5, 3')
    a('s_cbranch_scc1 L_nofh')
    flag_set(a, 4)
    a.label('L_nofh')
    a.wait_vm0()
    flag_set(a, 10)
    stamp(a, 'prep')
    a(f's_mov_b32 s{sL}, {fbits(LOG2E)}')
    a(f's_mov_b32 s{sL + 1}, {fbits(LOG2E)}')
    a(f's_mov_b32 s{sNL}, {fbits(-LOG2E)}')
    a(f's_mov_b32 s{sNL + 1}, {fbits(-LOG2E)}')
    a(f's_mul_i32 s10, s{sHG}, 60')
    a(f's_lshl_b32 s4, s10, {FSH}')
    a(f's_add_u32 s4, s4, {FU_OFF}')
    a(f'v_lshl_add_u32 v20, v{vL}, {FSH}, s4')
    a(f's_lshl_b32 s11, s{sRB}, 2')
    a(f's_add_u32 s11, s11, s{sW}')
    a(f's_lshl_b32 s4, s11, {FSH + 2}')
    a(f's_add_u32 s4, s4, {FH_OFF}')
    a(f'v_lshl_add_u32 v21, v{vC}, {FSH}, s4')
    a(f'v_cmp_gt_u32 vcc, 60, v{vL}')
    a('v_cndmask_b32 v20, v21, v20, vcc')
    a(f's_add_u32 s10, s10, s{sW}')
    a('s_mul_i32 s10, s10, 5120')
    a(f's_add_u32 s10, s10, {WF_OFF}')
    a(f's_add_u32 s9, s10, {40 * 5120}')
    a(f's_mul_i32 s{sM0B}, s{sW}, 5120')
    a('s_mul_i32 s11, s11, 40960')
    a(f's_add_u32 s11, s11, {XF_OFF}')
    a(f'v_add_u32 v10, 20480, v{vLN}')
    a(f'v_add_u32 v26, {L_RING}, v{vLN}')
    a(f'v_add_u32 v27, 61440, v{vLN}')

    def wphi_frags(WPF, wbase, zbase):
        a(f'v_mul_u32_u24 v22, 800, v{vG}')
        a(f'v_mul_u32_u24 v23, 40, v{vR}')
        a('v_add_u32 v22, v22, v23')
        a(f'v_add_u32 v22, {wbase}, v22')
        a(f'v_mov_b32 v23, {zbase}')
        a(f'v_cmp_eq_u32 vcc, v{vG}, v{vC}')
        a('v_cndmask_b32 v22, v23, v22, vcc')
        for t in range(5):
            for d4 in range(5):
                a(f'ds_read_b64_tr_b16 {V(WPF(t, d4 // 2) + 2 * (d4 % 2), 2)}, v22 offset:{4 * d4 * 40 + 8 * t}')

    Q = lambda k: 48 + 4 * k
    WPF = lambda t, ks: Q(2 * t + ks) if ks < 2 else Q(10 + t // 2) + 2 * (t % 2)
    a('s_barrier')
    wphi_frags(WPF, L_WPHI, L_ZERO)
    a.wait_lg0()
    a('s_barrier')
    flag_check(a, flag_issue(a, 20, 21), 20, 21)
    stamp(a, 'go')

    def xload(dst, ks, z):
        off = f' offset:{(ks % 4) * 1024}' if ks % 4 else ''
        t = a(f'buffer_load_dwordx4 {V(dst, 4)}, v{vLN if z == 0 else 10}, {S(sWS, 4)}, s11 offen{off} sc1')
        if ks % 4 == 3 and z == 1:
            a('s_add_u32 s11, s11, 4096')
        return t

    a(f's_cmp_lg_u32 s{sWH}, 0')
    a('s_cbranch_scc1 L_a_upper')
    at_split = a.save()
    a('s_setprio 2')
    AC = lambda k, z: Q(13 + 2 * k + z)
    XR = lambda ks, z: Q(33 + (ks % 6) * 2 + z)
    FW = lambda n: Q(45 + n % 7)
    xtok = {}
    for ks in range(5):
        for z in range(2):
            xtok[ks] = xload(XR(ks, z), ks, z)
    a('s_barrier')
    stamp(a, 'a0')
    WIN, NF = 6, 200
    ftok = {}

    def read_frag(n):
        d, r = divmod(n, 20)
        ftok[n] = a(f'ds_read_b128 {V(FW(n), 4)}, v26 offset:{(d % 3) * 20480 + r * 1024}')

    for n in range(WIN):
        read_frag(n)
    for n in range(NF):
        nn = n + WIN
        if nn < NF:
            if nn % 20 == 0:
                a.wait_lg0()
                a('s_barrier')
                if (nn // 20) % 3 == 0:
                    stamp(a, f'a{nn // 20}')
            read_frag(nn)
        ks, k = divmod(n, 10)
        a.wait(ftok[n], xtok[ks])
        for z in range(2):
            c = '0' if ks == 0 else V(AC(k, z), 4)
            a(f'v_mfma_f32_16x16x32_bf16 {V(AC(k, z), 4)}, {V(FW(n), 4)}, {V(XR(ks, z), 4)}, {c}')
        if k in (2, 6) and ks + 5 < 20:
            xtok[ks + 5] = xload(XR(ks + 5, k // 4), ks + 5, k // 4)
    a('s_barrier')
    stamp(a, 'aend')
    vSA, vKA, vKO = 8, 9, 12
    a(f's_lshl_b32 s4, s{sW}, 5')
    a(f'v_lshl_add_u32 v{vSA}, v{vG}, 7, v{vI}')
    a(f'v_add_u32 v{vSA}, s4, v{vSA}')
    a(f'v_mul_u32_u24 v{vSA}, 120, v{vSA}')
    a(f'v_add_u32 v{vSA}, {L_RING}, v{vSA}')
    for z in range(2):
        for t in range(5):
            r = AC(5 + t, z)
            a(f'v_cvt_pk_bf16_f32 v{r}, v{r}, v{r + 1}')
            a(f'v_cvt_pk_bf16_f32 v{r + 1}, v{r + 2}, v{r + 3}')
            a(f'ds_write_b64 v{vSA}, {V(r, 2)} offset:{z * 16 * 120 + 80 + 8 * t}')
    PK = [Q(33), Q(34), Q(35)]
    EN5 = [Q(36 + c) for c in range(5)]
    for z in range(2):
        E5 = [AC(t, z) for t in range(5)]
        P5 = [Q(41 + 5 * z + c) for c in range(5)]
        featmap(a, E5, PK, WPF, P5, E5, EN5, 32)
        for c in range(10):
            a(f'ds_write_b64 v{vSA}, {V(P5[c // 2] + 2 * (c % 2), 2)} offset:{z * 16 * 120 + 8 * c}')
    stamp(a, 'fm')
    a(f's_mul_i32 s4, s{sW}, {128 * 120}')
    a(f's_add_u32 s4, s4, {L_RING}')
    a(f'v_mul_u32_u24 v{vKA}, 120, v{vGR}')
    a(f'v_lshl_add_u32 v{vKA}, v{vC}, 3, v{vKA}')
    a(f'v_add_u32 v{vKA}, s4, v{vKA}')
    a(f's_lshl_b32 s4, s{sHG}, 2')
    a(f's_add_u32 s4, s4, s{sW}')
    a('s_lshl_b32 s4, s4, 4')
    a(f's_add_u32 s13, s4, s{sRB}')
    a('s_mul_i32 s4, s13, 6144')
    a(f's_add_u32 s4, s4, {KV_OFF}')
    a(f'v_lshl_add_u32 v{vKO}, v{vL}, 4, s4')
    a('s_movk_i32 s12, 0x1000')
    a(f'v_mov_b32 v11, {OOB}')
    a(f'v_cmp_gt_u32 vcc, 8, v{vI}')
    a(f'v_cndmask_b32 v{vKO + 1}, v11, v{vKO}, vcc')
    a(f'v_cmp_gt_u32 vcc, 2, v{vG}')
    a(f'v_cndmask_b32 v{vKO + 2}, v11, v{vKO}, vcc')
    a(f'v_cndmask_b32 v{vKO + 3}, v11, v{vKO + 1}, vcc')
    a(f's_lshl_b32 s13, s13, {FSH}')
    a(f's_add_u32 s10, s13, {FK_OFF}')
    a('v_mov_b32 v11, 0x3f803f80')
    a(f'v_cmp_eq_u32 vcc, 1, v{vR}')
    a.wait_lg0()
    a('s_barrier')
    ktok = {}
    OPQ = lambda kk, x: Q(13 + kk * 5 + x)
    KVA = [Q(k) for k in range(6)]

    def kv_read(kk):
        for x in range(5):
            col = 32 * x if x < 3 else 80 + 32 * (x - 3)
            a(f'ds_read_b64_tr_b16 {V(OPQ(kk, x), 2)}, v{vKA} offset:{kk * 32 * 120 + col}')
            ktok[kk] = a(f'ds_read_b64_tr_b16 {V(OPQ(kk, x) + 2, 2)}, v{vKA} offset:{kk * 32 * 120 + 16 * 120 + col}')

    kv_read(0)
    for kk in range(4):
        if kk + 1 < 4:
            kv_read(kk + 1)
        a.wait(ktok[kk])
        for j in range(4):
            a(f'v_cndmask_b32 v{OPQ(kk, 4) + j}, v{OPQ(kk, 4) + j}, v11, vcc')
        for et in range(2):
            for ft in range(3):
                d = V(KVA[ft * 2 + et], 4)
                a(f'v_mfma_f32_16x16x32_bf16 {d}, {V(OPQ(kk, 3 + et), 4)}, {V(OPQ(kk, ft), 4)}, {"0" if kk == 0 else d}')
    for ft in range(3):
        for et in range(2):
            vo = vKO + (1 if ft == 2 else 0) + (2 if et == 1 else 0)
            so = 's12' if ft == 2 else '0'
            a(f'buffer_store_dwordx4 {V(KVA[ft * 2 + et], 4)}, v{vo}, {S(sWS, 4)}, {so} offen offset:{(ft % 2) * 2048 + et * 1024} sc1')
    a.wait_vm0()
    flag_set(a, 10)
    a(f's_mov_b32 s10, {OOB}')
    a('s_barrier')
    a('s_branch L_join')

    a.label('L_a_upper')
    a.restore(at_split)
    wtok = {}

    def dma5(so, lds):
        a(f's_add_u32 m0, s{sM0B}, {lds}')
        for q in range(4):
            off = f' offset:{q * 1024}' if q else ''
            a(f'buffer_load_dwordx4 v{vLN}, {S(sWS, 4)}, s{so} offen{off} sc1 lds')
        a(f's_add_u32 m0, s{sM0B}, {lds + 4096}')
        t = a(f'buffer_load_dwordx4 v{vLN + 1}, {S(sWS, 4)}, s{so} offen sc1 lds')
        a(f's_add_u32 s{so}, s{so}, 20480')
        return t

    NXR = 12
    XQ_ = lambda ks, z: Q(13 + (ks % NXR) * 2 + z)
    AQ = lambda t, z: Q(37 + 2 * t + z)
    FQ = lambda n: Q(47 + n % 5)
    xtok = {}
    for d in range(3):
        wtok[d] = dma5(10, L_RING + d * 20480)
    for d in range(10):
        a.wait(wtok[d])
        a('s_barrier')
        if 1 <= d and d + 2 < 10:
            wtok[d + 2] = dma5(10, L_RING + ((d + 2) % 3) * 20480)
        if d < 5:
            qtok = dma5(9, L_WQ + d * 20480)
        if 4 <= d < 10:
            for ks in (2 * (d - 4), 2 * (d - 4) + 1):
                for z in range(2):
                    xtok[ks] = xload(XQ_(ks, z), ks, z)
    a.wait(qtok)
    a('s_barrier')
    ftok = {}

    def read_q(n):
        off = n * 1024
        ftok[n] = a(f'ds_read_b128 {V(FQ(n), 4)}, v{vLN if off < 61440 else 27} offset:{off % 61440}')

    QBAR = int(os.environ.get('QBAR', '-1'))
    if QBAR < 0:
        a('s_barrier')
    for n in range(4):
        read_q(n)
    for n in range(100):
        if n + 4 < 100:
            read_q(n + 4)
        ks, t = divmod(n, 5)
        a.wait(ftok[n], xtok[ks])
        for z in range(2):
            c = '0' if ks == 0 else V(AQ(t, z), 4)
            a(f'v_mfma_f32_16x16x32_bf16 {V(AQ(t, z), 4)}, {V(FQ(n), 4)}, {V(XQ_(ks, z), 4)}, {c}')
        if t in (1, 3) and ks >= 1 and ks - 1 + NXR < 20:
            xtok[ks - 1 + NXR] = xload(XQ_(ks - 1 + NXR, t // 2), ks - 1 + NXR, t // 2)
        if n == QBAR:
            a('s_barrier')
    a('s_barrier')
    stamp(a, 'aend')
    PK = [Q(13), Q(14), Q(15)]
    EN5 = [Q(16 + c) for c in range(5)]
    PP = [[Q(21 + 5 * z + c) for c in range(5)] for z in range(2)]
    for z in range(2):
        E5 = [AQ(t, z) for t in range(5)]
        featmap(a, E5, PK, WPF, PP[z], E5, EN5, 32)
    stamp(a, 'fm')
    a('s_setprio 3')
    a(f's_mul_i32 s6, s{sW}, 10240')
    a(f's_add_u32 s6, s6, {L_RING}')
    a(f'v_lshlrev_b32 v31, 11, v{vG}')
    a(f'v_lshl_add_u32 v31, v{vR}, 3, v31')
    a('v_mov_b32 v21, 8192')
    a(f'v_cmp_eq_u32 vcc, v{vG}, v{vC}')
    a('v_cndmask_b32 v31, v21, v31, vcc')
    a('v_add_u32 v31, s6, v31')
    for k in range(4):
        a(f'v_mov_b32 v{44 + k}, 0')
    a(f'v_add_u32 v21, s6, v{vLN}')
    a('ds_write_b128 v21, v[44:47] offset:8192')
    a('ds_write_b128 v21, v[44:47] offset:9216')
    a(f's_lshl_b32 s4, s{sHG}, {4 + FSH}')
    a(f's_add_u32 s4, s4, {FR_OFF}')
    a(f'v_lshl_add_u32 v20, v{vI}, {FSH}, s4')
    a(f'v_lshlrev_b32 v8, 4, v{vL}')
    a('v_add_u32 v9, 4096, v8')
    a(f'v_lshlrev_b32 v10, 3, v{vL}')
    a(f's_lshl_b32 s5, s{sHG}, 13')
    a(f's_add_u32 s5, s5, {KB_OFF}')
    a(f's_lshl_b32 s7, s{sRB}, 1')
    a(f's_lshr_b32 s8, s{sW}, 1')
    a('s_add_u32 s7, s7, s8')
    a(f's_and_b32 s8, s{sW}, 1')
    a('s_lshl_b32 s8, s8, 1')
    a(f's_lshr_b32 s12, s{sHG}, 1')
    a('s_mul_i32 s12, s12, 5')
    a('s_mul_i32 s13, s7, 20')
    a('s_add_u32 s12, s12, s13')
    a('s_lshl_b32 s12, s12, 2')
    a('s_add_u32 s12, s12, s8')
    a('s_lshl_b32 s12, s12, 10')
    a(f's_add_u32 s12, s12, {OF_OFF}')
    a(f's_and_b32 s13, s{sHG}, 1')
    a(f's_mul_i32 s14, s13, {3 * 4096}')
    a('s_add_u32 s14, s14, s12')
    a('s_lshl_b32 s13, s13, 9')
    a('s_add_u32 s12, s12, s13')
    a(f's_add_u32 s12, s12, {2 * 4096}')
    a('s_lshl_b32 s13, s7, 3')
    a(f's_add_u32 s13, s13, s{sHG}')
    a('s_lshl_b32 s13, s13, 2')
    a('s_add_u32 s13, s13, s8')
    a(f's_lshl_b32 s13, s13, {FSH}')
    a(f's_add_u32 s13, s13, {FO_OFF}')
    flag_check(a, flag_issue(a, 20, 21), 20, 21, int(os.environ.get('RSLEEP', '8')))
    stamp(a, 'rok')
    for hh in range(2):
        a(f's_add_u32 m0, s6, {4096 * hh}')
        for q in range(4):
            off = f' offset:{q * 1024}' if q else ''
            a(f'buffer_load_dwordx4 v{8 + hh}, {S(sWS, 4)}, s5 offen{off} sc1 lds')
    a.wait_all()
    OA = [[Q(31 + k) for k in range(6)], [Q(37 + k) for k in range(6)]]
    KF = lambda ks, t: Q((ks % 2) * 6 + t)
    otok = {}

    def o_read(ks):
        for t in range(6):
            a(f'ds_read_b64_tr_b16 {V(KF(ks, t), 2)}, v31 offset:{kb_pos(8 * ks, t)}')
            otok[ks] = a(f'ds_read_b64_tr_b16 {V(KF(ks, t) + 2, 2)}, v31 offset:{kb_pos(8 * ks + 4, t)}')

    o_read(0)
    for ks in range(5):
        if ks + 1 < 5:
            o_read(ks + 1)
        a.wait(otok[ks])
        for z in range(2):
            for t in range(6):
                d = V(OA[z][t], 4)
                a(f'v_mfma_f32_16x16x32_bf16 {d}, {V(KF(ks, t), 4)}, {V(PP[z][ks], 4)}, {"0" if ks == 0 else d}')
    for z in range(2):
        O = OA[z]
        PO = PK if z == 0 else [Q(16), Q(17), Q(18)]
        a(f'v_add_f32 v{O[5]}, {fbits(1e-6)}, v{O[5]}')
        a(f'v_rcp_f32 v{O[5]}, v{O[5]}')
        for t in range(5):
            for h in range(2):
                a(f'v_pk_mul_f32 {V(O[t] + 2 * h, 2)}, {V(O[t] + 2 * h, 2)}, {V(O[5], 2)} op_sel_hi:[1,0]')
        for k in range(10):
            t, j = divmod(2 * k, 4)
            a(f'v_cvt_pk_bf16_f32 v{PO[k // 4] + k % 4}, v{O[t] + j}, v{O[t] + j + 1}')
        off = f' offset:{1024 * z}' if z else ''
        a(f'buffer_store_dwordx4 {V(PO[0], 4)}, v8, {S(sWS, 4)}, s14 offen{off} sc1')
        a(f'buffer_store_dwordx4 {V(PO[1], 4)}, v9, {S(sWS, 4)}, s14 offen{off} sc1')
        a(f'buffer_store_dwordx2 {V(PO[2], 2)}, v10, {S(sWS, 4)}, s12 offen{off} sc1')
    a.wait_vm0()
    flag_set(a, 13)
    a(f's_cmp_lg_u32 s{sID}, 0')
    a('s_cbranch_scc1 L_a_done')
    a(f's_cmp_lg_u32 s{sW}, 3')
    a('s_cbranch_scc1 L_a_done')
    a(f'v_and_b32 v20, 31, v{vL}')
    a('v_min_u32 v20, 26, v20')
    a(f'v_and_b32 v21, 32, v{vL}')
    a('v_add_u32 v20, v20, v21')
    a(f'v_lshlrev_b32 v20, {FSH + 2}, v20')
    for k in range(4):
        a(f'v_add_u32 v22, {FG_OFF + (k * 256 << FSH)}, v20')
        flag_check(a, flag_issue(a, 22, 21), 22, 21, 12)
    a(f'v_lshlrev_b32 v20, {FSH}, v{vL}')
    for base in (FR_OFF, FR_OFF + (64 << FSH)):
        a(f'v_add_u32 v22, {base}, v20')
        flag_check(a, flag_issue(a, 22, 21), 22, 21, 12)
    a(f'v_and_b32 v20, 31, v{vL}')
    a(f'v_lshlrev_b32 v20, {FSH}, v20')
    a(f'v_add_u32 v22, {FW_OFF}, v20')
    flag_check(a, flag_issue(a, 22, 21), 22, 21, 12)
    a(f's_mov_b32 s10, {EP_OFF}')
    flag_set(a, 10)
    a.label('L_a_done')
    stamp_flush(a, 'end')
    a('s_endpgm')


def role_b(a):
    if 'map4' in EXP:
        a(f's_lshr_b32 s{sBCB}, s6, 2')
        a('s_and_b32 s9, s6, 3')
        a('s_lshl_b32 s6, s9, 1')
    else:
        a('s_cmp_ge_u32 s6, 54')
        a('s_cselect_b32 s7, 54, 0')
        a('s_cselect_b32 s8, 4, 0')
        a('s_sub_u32 s6, s6, s7')
        a(f's_lshr_b32 s{sBCB}, s6, 1')
        a('s_and_b32 s9, s6, 1')
        a('s_lshl_b32 s6, s9, 1')
        a('s_add_u32 s6, s6, s8')
    PR = 24 if 'map4' in EXP else 48
    a(f's_add_u32 s{sBDB}, s6, s{sWH}')
    srd(a, sW1, P_W1, S_ * F_ * 2)
    g_common(a)
    gB = GGemm(a, 'B')
    gB.setup()
    BPRE = int(os.environ.get('BPRE', '10'))
    if 'g1lin' in EXP:
        a(f's_lshl_b32 s4, s{sBCB}, 2')
        a('s_add_u32 s4, s4, s9')
        a('s_lshl_b32 s4, s4, 3')
        a(f's_add_u32 s4, s4, s{sW8}')
        a('s_lshl_b32 s4, s4, 13')
        a(f'v_lshl_add_u32 v24, v{vL}, 7, s4')
        a(f'buffer_load_dword v37, v24, {S(sW1, 4)}, 0 offen')
        if 'g1wait' in EXP:
            a.wait_vm0()
    if 'g1first' in EXP:
        a('s_lshl_b32 s4, s9, 1')
        a(f's_add_u32 s4, s4, s{sWH}')
        a(f's_lshl_b32 s5, s{sW}, 9')
        a('s_add_u32 s4, s4, s5')
        a(f's_mul_i32 s4, s4, {F_ * 2}')
        a(f's_lshl_b32 s5, s{sBCB}, 7')
        a('s_add_u32 s4, s4, s5')
        a(f'v_mul_u32_u24 v24, {8 * F_ * 2}, v{vL}')
        a('v_add_u32 v24, s4, v24')
        a(f'buffer_load_dword v37, v24, {S(sW1, 4)}, 0 offen')
    for j in range(BPRE):
        Hooks(gB.dma_items(j)).flush()

    def b_extra(j):
        return []

    a('s_lshl_b32 s4, s9, 1')
    a(f's_add_u32 s4, s4, s{sWH}')
    a(f's_mul_i32 s4, s4, {PR}')
    a(f's_lshl_b32 s5, s{sW}, 9')
    a('s_add_u32 s4, s4, s5')
    a(f's_add_u32 s4, s4, {32 * B_P}')
    a(f's_mul_i32 s4, s4, {F_ * 2}')
    a(f's_lshl_b32 s5, s{sBCB}, 7')
    a('s_add_u32 s4, s4, s5')
    a(f'v_min_u32 v24, {PR - 1}, v{vL}')
    a(f'v_mul_u32_u24 v24, {F_ * 2}, v24')
    a('v_add_u32 v24, s4, v24')
    if 'g1first' not in EXP:
        a(f'buffer_load_dword v37, v24, {S(sW1, 4)}, 0 offen')
    srd(a, sAUX, P_B1, F_ * 2)
    a(f's_lshl_b32 s4, s{sBCB}, 7')
    a(f's_lshl_b32 s5, s{sW}, 5')
    a('s_add_u32 s4, s4, s5')
    a(f'v_lshl_add_u32 v24, v{vG}, 3, s4')
    a(f'buffer_load_dwordx2 v[38:39], v24, {S(sAUX, 4)}, 0 offen')
    tag_ready(a)
    a('s_barrier')
    stamp(a, 'prep')
    a(f's_cmp_lg_u32 s{sWH}, 0')
    a('s_cbranch_scc1 L_b_go')
    flag_check(a, flag_issue(a, vFL, vFD), vFL, vFD, 3)
    a.label('L_b_go')
    a.wait_vm0()
    a('s_barrier')
    stamp(a, 'go')
    Hooks(gB.frag_items(FIRST)).flush()
    for j in range(BPRE, B_P):
        Hooks(gB.dma_items(j)).flush()

    gB.mainloop(b_extra)
    stamp(a, 'Bend')
    gB.reduce()
    R = lambda t, j: ACC(t, 0) + j
    T = lambda t, j: ACC(t, 1) + j
    a('v_lshlrev_b32 v34, 16, v38')
    a('v_and_b32 v35, 0xffff0000, v38')
    a('v_lshlrev_b32 v36, 16, v39')
    a('v_and_b32 v37, 0xffff0000, v39')
    c0 = 0.7978845608028654
    k1 = -2.0 * c0 * LOG2E
    k2 = k1 * 0.044715
    a(f's_mov_b32 s4, {fbits(k2)}')
    a(f's_mov_b32 s5, {fbits(k2)}')
    a(f'v_mov_b32 v24, {fbits(k1)}')
    a('v_mov_b32 v26, 1.0')
    th = [(t, h) for t in range(5) for h in range(2)]
    tj = [(t, j) for t in range(5) for j in range(4)]
    for t, h in th:
        a(f'v_pk_add_f32 {V(R(t, 2 * h), 2)}, {V(R(t, 2 * h), 2)}, {V(34 + 2 * h, 2)}')
    for t, h in th:
        a(f'v_pk_mul_f32 {V(T(t, 2 * h), 2)}, {V(R(t, 2 * h), 2)}, {V(R(t, 2 * h), 2)}')
    for t, h in th:
        a(f'v_pk_fma_f32 {V(T(t, 2 * h), 2)}, {V(T(t, 2 * h), 2)}, s[4:5], v[24:25] op_sel_hi:[1,0,0]')
    for t, h in th:
        a(f'v_pk_mul_f32 {V(T(t, 2 * h), 2)}, {V(T(t, 2 * h), 2)}, {V(R(t, 2 * h), 2)}')
    for t, j in tj:
        a(f'v_exp_f32 v{T(t, j)}, v{T(t, j)}')
    for t, h in th:
        a(f'v_pk_add_f32 {V(T(t, 2 * h), 2)}, {V(T(t, 2 * h), 2)}, v[26:27] op_sel_hi:[1,0]')
    for t, j in tj:
        a(f'v_rcp_f32 v{T(t, j)}, v{T(t, j)}')
    for t, h in th:
        a(f'v_pk_mul_f32 {V(T(t, 2 * h), 2)}, {V(T(t, 2 * h), 2)}, {V(R(t, 2 * h), 2)}')
    a(f's_mul_i32 s4, s{sW8}, 2560')
    a('s_add_u32 s4, s4, 81920')
    a(f'v_lshl_add_u32 v24, v{vL}, 3, s4')
    for t in range(5):
        a(f'v_cvt_pk_bf16_f32 v{R(t, 0)}, v{T(t, 0)}, v{T(t, 1)}')
        a(f'v_cvt_pk_bf16_f32 v{R(t, 1)}, v{T(t, 2)}, v{T(t, 3)}')
        a(f'ds_write_b64 v24, {V(R(t, 0), 2)} offset:{t * 512}')
    a(f's_mul_i32 s4, s{sBDB}, 74')
    a(f's_lshl_b32 s5, s{sBCB}, 1')
    a('s_add_u32 s4, s4, s5')
    a('s_mul_i32 s4, s4, 5120')
    a(f's_add_u32 s15, s4, {GF_OFF}')
    a(f's_mul_i32 s4, s{sWH}, 10240')
    a('s_add_u32 s4, s4, 81920')
    a(f'v_lshl_add_u32 v25, v{vL}, 3, s4')
    a.wait_lg0()
    a('s_barrier')
    gt = []
    for m in range(3):
        frag10_addr(a, m, 2 * 2560 - 5 * 512, 512, 15, 24, 25, 34 + m)
        a(f'ds_read_b64 {V(ACC(m, 2), 2)}, v24')
        gt.append(a(f'ds_read_b64 {V(ACC(m, 2) + 2, 2)}, v24 offset:2560'))
    for m in range(3):
        a.wait(gt[m])
        a(f'buffer_store_dwordx4 {V(ACC(m, 2), 4)}, v{34 + m}, {S(sWS, 4)}, 0 offen sc1')
    a(f's_lshl_b32 s4, s{sBDB}, 5')
    a(f's_add_u32 s4, s4, s{sBCB}')
    a('s_lshl_b32 s4, s4, 2')
    a(f's_add_u32 s4, s4, s{sW}')
    a(f's_lshl_b32 s4, s4, {FSH}')
    a(f's_add_u32 s10, s4, {FG_OFF}')
    a('s_branch L_join')


def role_r(a):
    a('s_lshl_b32 s11, s6, 1')
    a(f's_add_u32 s11, s11, s{sWH}')
    a('s_lshr_b32 s8, s6, 3')
    a('s_lshl_b32 s8, s8, 3')
    a(f's_add_u32 s8, s8, s{sW8}')
    a('s_getpc_b64 s[6:7]')
    a.raw('L_pc:')
    a(f's_sub_u32 s{sAUX}, s6, L_pc - L_start')
    a('s_subb_u32 s7, s7, 0')
    a(f's_and_b32 s{sAUX + 1}, s7, 0xffff')
    a(f's_mov_b32 s{sAUX + 2}, L_end - L_start')
    a(f's_mov_b32 s{sAUX + 3}, 0x20000')
    a('s_lshl_b32 s6, s8, 13')
    a(f'v_lshl_add_u32 v25, v{vL}, 7, s6')
    if 'nocpf' not in EXP:
        a(f'buffer_load_dword v37, v25, {S(sAUX, 4)}, 0 offen')
    if 'notlb' not in EXP:
        a(f's_lshl_b32 s5, s8, 6')
        a(f'v_add_u32 v26, s5, v{vL}')
        a(f'v_mul_u32_u24 v27, {(WS_USED // 1024 + 127) // 128 * 128}, v26')
        a(f'buffer_load_dword v37, v27, {S(sWS, 4)}, 0 offen sc1')
        a('v_lshlrev_b32 v27, 13, v26')
        a(f'buffer_load_dword v37, v27, {S(sW2, 4)}, 0 offen')
        srd(a, sOUT, P_OUT, S_ * D_ * 2)
        a('v_lshlrev_b32 v27, 12, v26')
        a(f'buffer_load_dword v37, v27, {S(sOUT, 4)}, 0 offen sc1')
        srd(a, sAUX, P_B2, S_ * 2)
        a(f'buffer_load_dword v37, v27, {S(sAUX, 4)}, 0 offen')
    if 'wqlin' in EXP:
        srd(a, sWQ, P_WQKV, D_ * 3 * D_ * 2)
        a(f's_sub_u32 s5, s{sID}, 240')
        a('s_lshl_b32 s5, s5, 3')
        a(f's_add_u32 s5, s5, s{sW8}')
        a('s_mul_i32 s5, s5, 24576')
        a(f'v_lshl_add_u32 v26, v{vL}, 7, s5')
        for k in range(3):
            a(f'buffer_load_dword v37, v26, {S(sWQ, 4)}, 0 offen')
            a('v_add_u32 v26, 8192, v26')
    if 'w2lin' in EXP:
        a(f's_sub_u32 s5, s{sID}, 240')
        a('s_lshl_b32 s5, s5, 3')
        a(f's_add_u32 s5, s5, s{sW8}')
        a('s_lshl_b32 s5, s5, 13')
        a(f'v_lshl_add_u32 v38, v{vL}, 7, s5')
    if 'g2map8' in EXP:
        a(f's_mul_i32 s5, s8, {108 * 4096}')
        a(f's_and_b32 s7, s{sID}, 7')
        a('s_lshl_b32 s7, s7, 9')
        a('s_add_u32 s5, s5, s7')
        a(f'v_lshrrev_b32 v24, 2, v{vL}')
        a('v_lshlrev_b32 v24, 12, v24')
        a(f'v_lshl_add_u32 v24, v{vC}, 7, v24')
        a('v_add_u32 v24, s5, v24')
    else:
        a('s_mul_i32 s5, s8, 54')
        a(f's_and_b32 s7, s{sID}, 1')
        a('s_mul_i32 s7, s7, 864')
        a('s_add_u32 s5, s5, s7')
        a('s_lshl_b32 s5, s5, 12')
        a(f's_and_b32 s7, s{sID}, 6')
        a('s_lshl_b32 s7, s7, 9')
        a('s_add_u32 s5, s5, s7')
        a(f'v_lshrrev_b32 v24, 3, v{vL}')
        a(f'v_and_b32 v25, 7, v{vL}')
        a('v_lshlrev_b32 v24, 12, v24')
        a('v_lshl_add_u32 v24, v25, 7, v24')
        a('v_add_u32 v24, s5, v24')
    tag_ready(a)
    a(f'v_mov_b32 v{vFL}, {FH_OFF}')
    if 'pf2now' not in EXP:
        flag_check(a, flag_issue(a, vFL, vFD), vFL, vFD, 16)
    PFA = int(os.environ.get('PFA', '7'))
    a('v_mov_b32 v36, v38' if 'w2lin' in EXP else 'v_mov_b32 v36, v24')
    for k in range(PFA):
        a(f'buffer_load_dword v37, v36, {S(sW2, 4)}, 0 offen')
        a(f'v_add_u32 v36, {(16 if "g2map8" in EXP else 8) * 4096}, v36')
        if k % 2 == 1 and 'pf2fast' not in EXP:
            a.wait_vm0()
    stamp(a, 'prep')
    a('s_setprio 3')
    a(f's_lshl_b32 s4, s11, {4 + FSH}')
    a(f's_add_u32 s4, s4, {FK_OFF}')
    a(f'v_lshl_add_u32 v{vFL}, v{vI}, {FSH}, s4')
    a(f's_lshl_b32 s5, s{sW}, 11')
    a(f'v_lshl_add_u32 v24, v{vL}, 4, s5')
    a(f'v_lshrrev_b32 v25, 5, v{vL}')
    a(f'v_and_b32 v26, 31, v{vL}')
    a('v_lshlrev_b32 v26, 4, v26')
    a('v_lshl_add_u32 v25, v25, 11, v26')
    a('v_add_u32 v25, 1024, v25')
    a(f's_cmp_eq_u32 s{sW}, 2')
    a('s_cselect_b64 vcc, -1, 0')
    a('v_cndmask_b32 v24, v24, v25, vcc')
    a(f'v_lshrrev_b32 v25, 3, v{vL}')
    a(f'v_and_b32 v26, 7, v{vL}')
    a('v_lshlrev_b32 v26, 4, v26')
    a('v_lshl_add_u32 v25, v25, 8, v26')
    a('v_add_u32 v25, 4096, v25')
    a(f's_cmp_eq_u32 s{sW}, 3')
    a('s_cselect_b64 vcc, -1, 0')
    a('v_cndmask_b32 v24, v24, v25, vcc')
    a(f's_mul_i32 s4, s11, {16 * 6144}')
    a(f's_add_u32 s4, s4, {KV_OFF}')
    flag_check(a, flag_issue(a, vFL, vFD), vFL, vFD, 4)
    stamp(a, 'hok')
    stok = []
    for rb in range(16):
        stok.append(a(f'buffer_load_dwordx4 {V(128 + 4 * rb, 4)}, v24, {S(sWS, 4)}, s4 offen sc1'))
        a('s_add_u32 s4, s4, 6144')
    for rb in range(1, 16):
        a.wait(stok[rb])
        for h in range(2):
            a(f'v_pk_add_f32 {V(128 + 2 * h, 2)}, {V(128 + 2 * h, 2)}, {V(128 + 4 * rb + 2 * h, 2)}')
    stamp(a, 'rsum')
    a('v_cvt_pk_bf16_f32 v34, v128, v129')
    a('v_cvt_pk_bf16_f32 v35, v130, v131')
    a('s_lshl_b32 s4, s11, 11')
    a(f's_add_u32 s4, s4, {KB_OFF}')
    a(f'v_lshl_add_u32 v24, v{vTH}, 3, s4')
    a(f'buffer_store_dwordx2 v[34:35], v24, {S(sWS, 4)}, 0 offen sc1')
    a('s_lshl_b32 s4, s11, 2')
    a(f's_add_u32 s4, s4, s{sW}')
    a(f's_lshl_b32 s4, s4, {FSH}')
    a(f's_add_u32 s10, s4, {FR_OFF}')
    a.wait_vm0()
    flag_set(a, 10)
    a(f's_mov_b32 s10, {OOB}')
    stamp(a, 'rpub')
    a('s_barrier')
    for k in range(PFA, 0 if 'nopf2' in EXP else 7):
        a(f'buffer_load_dword v37, v36, {S(sW2, 4)}, 0 offen')
        a(f'v_add_u32 v36, {8 * 4096}, v36')
    a('s_branch L_join')


def role_wot(a):
    a('s_lshl_b32 s11, s6, 1')
    a(f's_add_u32 s11, s11, s{sWH}')
    srd(a, sAUX, P_WO, D_ * D_ * 2)
    a(f'v_lshlrev_b32 v{vF}, 4, v{vL}')
    a(f'v_add_u32 v{vF + 1}, 4096, v{vF}')
    tag_ready(a)
    dma160_voffs(a, 34, 1280, False, 24)
    a('s_mul_i32 s4, s11, 160')
    a(f's_mul_i32 s5, s{sW}, {160 * 1280}')
    a('s_add_u32 s7, s4, s5')
    a(f's_mul_i32 s6, s{sW8}, 20480')
    a(f'v_mul_u32_u24 v24, 20, v{vG}')
    a(f'v_add_u32 v24, v24, v{vR}')
    a('v_mul_u32_u24 v24, 160, v24')
    a(f'v_mul_u32_u24 v25, 40, v{vC}')
    a('v_add_u32 v24, v24, v25')
    a('v_add_u32 v24, s6, v24')
    a('s_mul_i32 s4, s11, 74')
    a(f's_mul_i32 s5, s{sW}, 5')
    a('s_add_u32 s4, s4, s5')
    a('s_add_u32 s4, s4, 54')
    a('s_mul_i32 s4, s4, 5120')
    a(f's_add_u32 s4, s4, {GF_OFF}')
    rounds = [[(0, 0, 0), (0, 1, 4), (1, 0, 8), (1, 1, 12), (2, 0, 16)],
              [(2, 1, 16), (3, 0, 0), (3, 1, 4), (4, 0, 8), (4, 1, 12)]]
    for rd in range(2):
        for k in range(3):
            a(f's_add_u32 s8, s7, {(rd * 80 + k * 32) * 1280}')
            dma160(a, 34, sAUX, 8, 6, k * 5120)
        a.wait_vm0()
        for u, hf, row in rounds[rd]:
            for t in range(5):
                a(f'ds_read_b64_tr_b16 {V(156 + (u * 5 + t) * 4 + 2 * hf, 2)}, v24 offset:{row * 160 + 8 * t}')
            a.wait_lg0()
    for u in range(5):
        for t in range(5):
            vo, off = (vF, t * 1024) if t < 4 else (vF + 1, 0)
            a(f'buffer_store_dwordx4 {V(156 + (u * 5 + t) * 4, 4)}, v{vo}, {S(sWS, 4)}, s4 offen offset:{off} sc1')
        a('s_add_u32 s4, s4, 5120')
    a('s_lshl_b32 s4, s11, 2')
    a(f's_add_u32 s4, s4, s{sW}')
    a(f's_lshl_b32 s4, s4, {FSH}')
    a(f's_add_u32 s10, s4, {FW_OFF}')
    a('s_barrier')


def final_gemm(a):
    a.wait_all()
    flag_set(a, 10)
    stamp(a, 'pub')
    a('s_setprio 0')
    a(f's_cmp_lg_u32 s{sWH}, 0')
    a('s_cbranch_scc1 L_fin')
    xcd_tile(a)
    g_common(a)
    g2 = GGemm(a, 'G2')
    g2.setup()
    for j in range(G2_P):
        Hooks(g2.dma_items(j)).flush()
    srd(a, sOUT, P_OUT, S_ * D_ * 2)
    R = lambda t, j: ACC(t, 0) + j
    T = lambda t, j: ACC(t, 1) + j
    srd(a, sAUX, P_B2, S_ * 2)
    a(f's_lshl_b32 s4, s{sRB}, {5 + FSH}')
    a(f's_lshl_b32 s5, s{sW}, {3 + FSH}')
    a('s_add_u32 s4, s4, s5')
    a(f's_add_u32 s4, s4, {FO_OFF}')
    a(f'v_lshl_add_u32 v34, v{vC}, {FSH + 1}, s4')
    a(f's_lshl_b32 s4, s{sHG}, 2')
    a(f's_add_u32 s4, s4, s{sW}')
    a(f's_lshl_b32 s4, s4, {FSH}')
    a(f's_add_u32 s4, s4, {FW_OFF}')
    a('v_mov_b32 v35, s4')
    a(f'v_cmp_gt_u32 vcc, 63, v{vL}')
    a(f'v_cndmask_b32 v{vFL}, v35, v{vFL}, vcc')
    for nt in range(4):
        a(f's_xor_b32 s4, s{sW}, {nt}')
        a('s_lshl_b32 s4, s4, 10')
        a(f'v_add_u32 v{vOF + nt}, s4, v{vF}')
    a(f's_mul_i32 s4, s{sRB}, 20')
    a(f's_mul_i32 s5, s{sW}, 5')
    a('s_add_u32 s4, s4, s5')
    a('s_lshl_b32 s4, s4, 12')
    a(f's_add_u32 s11, s4, {OF_OFF}')
    a(f'v_mul_u32_u24 v{vXA}, 1280, v{vTOK}')
    a(f'v_mul_u32_u24 v{vBA}, 40, v{vG}')
    a(f'v_add_u32 v{vXA}, v{vXA}, v{vBA}')
    a(f's_mul_i32 s4, s{sHG}, 160')
    a(f'v_add_u32 v{vXA}, s4, v{vXA}')
    a(f'v_lshlrev_b32 v{vBA}, 1, v{vTOK}')
    flag_check(a, flag_issue(a, vFL, vFD), vFL, vFD)
    stamp(a, 'gok')
    fl = {}

    def gate():
        a(f's_mul_i32 s4, s{sHG}, 74')
        a(f's_mul_i32 s5, s{sW}, 5')
        a('s_add_u32 s4, s4, s5')
        a('s_add_u32 s4, s4, 54')
        a('s_mul_i32 s4, s4, 5120')
        a(f's_add_u32 s{sFS}, s4, {GF_OFF}')

    def gate2():
        stamp(a, 'oa')
        flag_check(a, fl['o'], 34, 35)
        stamp(a, 'ob')

    g2.gate = gate
    g2.gate2 = gate2
    XR = [8, 10, 14, 16, 18]

    def g2_extra(j):
        it = []
        if j == 9:
            def fo():
                fl['o'] = flag_issue(a, 34, 35)
            it.append(fo)
        if j == int(os.environ.get('JRES', '16')):
            def resid():
                a(f'buffer_load_ushort v36, v{vBA}, {S(sAUX, 4)}, 0 offen')
                for t in range(5):
                    fl['x'] = a(f'buffer_load_dwordx2 {V(XR[t], 2)}, v{vXA}, {S(sX, 4)}, 0 offen offset:{8 * t}')
            it.append(resid)
        return it

    Hooks(g2.frag_items(FIRST)).flush()
    g2.mainloop(g2_extra)
    stamp(a, 'Gend')
    g2.reduce()
    a.wait(fl['x'])
    a('v_lshlrev_b32 v36, 16, v36')
    for t in range(5):
        for h in range(2):
            a(f'v_lshlrev_b32 v{T(t, 2 * h)}, 16, v{XR[t] + h}')
            a(f'v_and_b32 v{T(t, 2 * h + 1)}, 0xffff0000, v{XR[t] + h}')
            a(f'v_pk_add_f32 {V(R(t, 2 * h), 2)}, {V(R(t, 2 * h), 2)}, v[36:37] op_sel_hi:[1,0]')
            a(f'v_pk_add_f32 {V(R(t, 2 * h), 2)}, {V(R(t, 2 * h), 2)}, {V(T(t, 2 * h), 2)}')
        a(f'v_cvt_pk_bf16_f32 v{R(t, 0)}, v{R(t, 0)}, v{R(t, 1)}')
        a(f'v_cvt_pk_bf16_f32 v{R(t, 1)}, v{R(t, 2)}, v{R(t, 3)}')
        a(f'buffer_store_dwordx2 {V(R(t, 0), 2)}, v{vXA}, {S(sOUT, 4)}, 0 offen offset:{8 * t}')
    a.label('L_fin')
    stamp_flush(a, 'end')


def build():
    a = Asm()
    hdr = open(os.path.join(os.path.dirname(__file__), '..', 'cdna_kernels', NAME + '.s.ref')).read().split('\n')
    for line in hdr:
        if line.startswith(';') and '@launch' not in line:
            a.raw(line)
    a.raw(f'; @launch grid=(256,1,1) block=(512,1,1) lds={LDS_BYTES}')
    a.raw('.amdgcn_target "amdgcn-amd-amdhsa--gfx950"')
    a.raw('.text')
    K = NAME + '_kernel'
    a.raw(f'.globl {K}')
    a.raw('.p2align 8')
    a.raw(f'.type {K},@function')
    a.raw(f'{K}:')
    a.raw('L_start:')
    a('s_cmp_ge_u32 s2, 256')
    a('s_cbranch_scc1 L_end')
    a('s_load_dwordx16 s[16:31], s[0:1], 0')
    a('s_load_dwordx8 s[32:39], s[0:1], 64')
    a(f'v_and_b32 v{vL}, 63, v0')
    a('v_lshrrev_b32 v6, 6, v0')
    a(f'v_readfirstlane_b32 s{sW8}, v6')
    a(f'v_lshrrev_b32 v{vG}, 4, v{vL}')
    a(f'v_and_b32 v{vI}, 15, v{vL}')
    a(f'v_lshrrev_b32 v{vR}, 2, v{vI}')
    a(f'v_and_b32 v{vC}, 3, v{vL}')
    a(f'v_lshl_add_u32 v{vGR}, v{vG}, 2, v{vR}')
    a(f'v_and_b32 v{vTH}, 255, v0')
    a(f's_and_b32 s{sW}, s{sW8}, 3')
    a(f's_lshr_b32 s{sWH}, s{sW8}, 2')
    a(f's_mov_b32 s{sID}, s2')
    a('s_waitcnt lgkmcnt(0)')
    a(f's_add_u32 s4, s{P_WS}, {EP_OFF}')
    a(f's_addc_u32 s5, s{P_WS + 1}, 0')
    a(f's_load_dword s{sTAG}, s[4:5], 0')
    srd(a, sX, P_X, S_ * D_ * 2)
    srd(a, sWS, P_WS, WS_USED)
    srd(a, sW2, P_W2, F_ * S_ * 2)
    stamp(a, 'start')
    if 'noticket' not in EXP:
        srd(a, sAUX, P_DBG, 256)
        a(f'v_mov_b32 v8, {L_CNT + 16}')
        a(f's_cmp_lg_u32 s{sW8}, 0')
        a('s_cbranch_scc1 L_ticket_done')
        a('s_getreg_b32 s4, hwreg(HW_REG_XCC_ID)')
        a('s_mov_b32 s6, 0')
        a('s_mov_b64 exec, 1')
        a.label('L_ticket')
        a('s_and_b32 s4, s4, 7')
        a('s_lshl_b32 s5, s4, 5')
        a('v_mov_b32 v9, s5')
        a('v_mov_b32 v10, 1')
        a(f'buffer_atomic_add v10, v9, {S(sAUX, 4)}, 0 offen sc0 sc1')
        a.wait_vm0()
        a('v_readfirstlane_b32 s5, v10')
        a('s_cmp_lt_u32 s5, 32')
        a('s_cbranch_scc1 L_ticket_ok')
        a('s_add_u32 s4, s4, 1')
        a('s_add_u32 s6, s6, 1')
        a('s_cmp_lt_u32 s6, 8')
        a('s_cbranch_scc1 L_ticket')
        a.label('L_ticket_ok')
        a('s_lshl_b32 s5, s5, 3')
        a('s_add_u32 s5, s5, s4')
        a('v_mov_b32 v9, s5')
        a('ds_write_b32 v8, v9')
        a('s_mov_b64 exec, -1')
        a('s_waitcnt lgkmcnt(0)')
        a.label('L_ticket_done')
        a('s_barrier')
        a('ds_read_b32 v9, v8')
        a('s_waitcnt lgkmcnt(0)')
        a('s_barrier')
        a(f'v_readfirstlane_b32 s{sID}, v9')
        a(f's_and_b32 s{sID}, s{sID}, 255')
        a.reset_counters()
        stamp(a, 'tick')
    if os.environ.get('UPRIO', '1') != '0':
        a(f's_cmp_eq_u32 s{sWH}, 0')
        a('s_cbranch_scc1 L_prio')
        a(f's_setprio {os.environ.get("UPRIO", "1")}')
        a.label('L_prio')
    a(f's_cmp_ge_u32 s{sID}, 128')
    a('s_cbranch_scc1 L_not_a')
    role_a(a)
    a.label('L_not_a')
    a.reset_counters()
    a(f's_and_b32 s4, s{sID}, 7')
    a(f's_lshr_b32 s5, s{sID}, 3')
    a('s_sub_u32 s5, s5, 16')
    a('s_cmp_ge_u32 s5, 14')
    a('s_cbranch_scc1 L_role_r')
    a('s_and_b32 s7, s4, 1')
    a('s_add_u32 s7, s7, 13')
    a('s_cmp_ge_u32 s5, s7')
    a('s_cbranch_scc1 L_role_wot')
    a('s_mul_i32 s6, s4, 27')
    a('s_lshr_b32 s6, s6, 1')
    a('s_add_u32 s6, s6, s5')
    role_b(a)
    a.label('L_role_r')
    a.reset_counters()
    a(f's_sub_u32 s6, s{sID}, 240')
    role_r(a)
    a.label('L_role_wot')
    a.reset_counters()
    a('s_lshr_b32 s6, s4, 1')
    role_wot(a)
    a.label('L_join')
    final_gemm(a)
    a.label('L_end')
    a('s_endpgm')
    if STAMPS:
        a.raw('; STAMPS ' + ' '.join(STAMP_NAMES))
    a.raw('.section .rodata,"a"')
    a.raw(f""".p2align 6
.amdhsa_kernel {K}
  .amdhsa_next_free_vgpr 256
  .amdhsa_next_free_sgpr 102
  .amdhsa_accum_offset 256
  .amdhsa_group_segment_fixed_size 0
  .amdhsa_kernarg_size 96
  .amdhsa_user_sgpr_count 2
  .amdhsa_user_sgpr_kernarg_segment_ptr 1
  .amdhsa_system_sgpr_workgroup_id_x 1
.end_amdhsa_kernel""")
    sys.stderr.write(f'maxv={a.maxv} maxa={a.maxa} maxs={a.maxs} nops={a.nops} lines={len(a.out)}\n')
    return a.text()


if __name__ == '__main__':
    out = sys.argv[1] if len(sys.argv) > 1 else os.path.join(os.path.dirname(__file__), '..', 'cdna_kernels', NAME + '.s')
    open(out, 'w').write(build())
```

```python
import sys, struct, os
sys.path.insert(0, os.path.dirname(__file__))
from asmdsl import Asm, Rec, V, A, S

NAME = 'parallel_sum__linear_kernel_hedgehog__mixer_token_mlp__prompt'
S_, D_, F_ = 2048, 640, 1728

HF_OFF = 0
HF_SZ = 8 * 64 * 5 * 1024
GF_OFF = HF_OFF + HF_SZ
GF_SZ = 8 * 74 * 5 * 1024
OF_OFF = GF_OFF + GF_SZ
OF_SZ = 32 * 20 * 4 * 1024
XF_OFF = OF_OFF + OF_SZ
XF_SZ = 128 * 20480
WF_OFF = XF_OFF + XF_SZ
WF_SZ = 480 * 5120 + 4096
KV_OFF = WF_OFF + WF_SZ
KV_SZ = 32 * 32 * 6144
KB_OFF = KV_OFF + KV_SZ + 4096
KB_SZ = 32 * 2048
FL_OFF = KB_OFF + KB_SZ + 4096
FSH = int(os.environ.get('FSH', '6'))
FH_OFF = FL_OFF
FK_OFF = FH_OFF + (1024 << FSH)
FR_OFF = FK_OFF + (1024 << FSH)
FG_OFF = FR_OFF + (128 << FSH)
FO_OFF = FG_OFF + (1024 << FSH)
FW_OFF = FO_OFF + (1024 << FSH)
FU_OFF = FW_OFF + (128 << FSH)
EP_OFF = FU_OFF + (512 << FSH)
WS_USED = EP_OFF + 512
STAMP_OFF = WS_USED
WS_USED += 512 * 256
STAMPS = bool(int(os.environ.get('STAMPS', '0')))
EXP = os.environ.get('EXP', '').split(',') + [e for e in ['map4', 'noticket', 'notlb', 'g2map8'] if e not in os.environ.get('OFF', '').split(',')]
OOB = 0x40000000

P_X, P_WQKV, P_WPHI, P_WO, P_BX, P_W1, P_B1, P_W2, P_B2, P_OUT, P_DBG, P_WS = range(16, 40, 2)
LOG2E = 1.4426950408889634

sW = 3
sW8, sWH = 90, 91
sWS, sX, sWQ, sW1, sW2, sAUX, sOUT = 40, 44, 48, 52, 56, 60, 64
sHG, sRB, sID, sROT, sKS, sT, sM0B, sTAG = 68, 69, 70, 71, 72, 73, 74, 75
sL, sNL = 76, 78
sBDB, sBCB, sFS, sGM0, sSPIN, sLIM = 80, 81, 82, 83, 84, 85
vL, vG, vI, vR, vC = 1, 2, 3, 4, 5
vTOK, vGR = 6, 7
vFS = 42
DB = 64
XN = lambda s: DB + 8 * s
UP = lambda k: DB + 8 * k + 4

LDS_BYTES = 163840
A_SLOTS = 4
L_WQ = 0
L_RING = 102400
L_ZERO = 122880
L_WPHI = 126976
L_CNT = 131072
B_P = 10
G2_P = 5
ILV = os.environ.get('ILV', 'burst')


def kb_pos(f, t):
    if f < 32:
        return (f >> 4) * 512 + (t * 16 + (f & 15)) * 8 if t < 4 else 1024 + ((f >> 4) * 32 + (t - 4) * 16 + (f & 15)) * 8
    return 1536 + (t * 8 + f - 32) * 8


def fbits(x):
    return '0x%08x' % struct.unpack('<I', struct.pack('<f', x))[0]


def srd(a, dst, ptr, nbytes):
    a(f's_mov_b32 s{dst}, s{ptr}')
    a(f's_and_b32 s{dst + 1}, s{ptr + 1}, 0xffff')
    a(f's_mov_b32 s{dst + 2}, {nbytes}')
    a(f's_mov_b32 s{dst + 3}, 0x20000')


STAMP_NAMES = []
vST = 41


def stamp(a, name):
    if not STAMPS:
        return
    name = str(name)
    if name not in STAMP_NAMES:
        STAMP_NAMES.append(name)
    idx = STAMP_NAMES.index(name)
    a('s_memrealtime s[98:99]')
    a.wait_lg0()
    if idx == 0:
        a(f'v_mov_b32 v{vST}, 0')
        a('s_getreg_b32 s97, hwreg(HW_REG_HW_ID)')
        a(f'v_writelane_b32 v{vST}, s97, 63')
    a(f'v_writelane_b32 v{vST}, s98, {idx}')


def stamp_flush(a, n):
    if not STAMPS:
        return
    a.wait_vm0()
    stamp(a, n)
    lab = a.newlabel('st')
    a(f's_cmp_lg_u32 s{sW}, 0')
    a(f's_cbranch_scc1 {lab}')
    a(f's_lshl_b32 s4, s{sWH}, 8')
    a(f's_add_u32 s4, s4, s{sID}')
    a('s_lshl_b32 s4, s4, 8')
    a(f's_add_u32 s4, s4, {STAMP_OFF}')
    a(f'v_lshl_add_u32 v8, v{vL}, 2, s4')
    a(f'buffer_store_dword v{vST}, v8, {S(sWS, 4)}, 0 offen')
    if 'dbg1' in EXP:
        srd(a, sAUX, P_DBG, 256)
        for wg, base, sel in ((136, 0, 'start,prep,go,B_0,Bend,pub,gok,G2_0,Gend,end'), (8, 10, 'start,x,prep,go,aend,G2_9')):
            l2 = a.newlabel('dbg')
            a(f's_lshl_b32 s4, s{sWH}, 8')
            a(f's_add_u32 s4, s4, s{sID}')
            a(f's_cmp_lg_u32 s4, {wg}')
            a(f's_cbranch_scc1 {l2}')
            for k, nm in enumerate(sel.split(',')):
                if nm not in STAMP_NAMES:
                    STAMP_NAMES.append(nm)
                a(f'v_readlane_b32 s4, v{vST}, {STAMP_NAMES.index(nm)}')
                a('v_mov_b32 v9, s4')
                a('v_mov_b32 v8, 0')
                a(f'buffer_store_dword v9, v8, {S(sAUX, 4)}, 0 offen offset:{4 * (base + k)}')
            a.label(l2)
    a.label(lab)


def reduce_g(a, r, t):
    a(f'v_mov_b32 v{t}, v{r}')
    a(f'v_permlane32_swap_b32 v{r}, v{t}')
    a(f'v_add_f32 v{r}, v{r}, v{t}')
    a(f'v_mov_b32 v{t}, v{r}')
    a(f'v_permlane16_swap_b32 v{r}, v{t}')
    a(f'v_add_f32 v{r}, v{r}, v{t}')


def dma160_voffs(a, dst, stride, permute, tmp):
    t0, t2, t3 = tmp, tmp + 1, tmp + 2
    for q in range(5):
        d = dst + q
        a(f'v_add_u32 v{t0}, {q * 64}, v{vL}')
        a(f'v_mul_u32_u24 v{t2}, 6554, v{t0}')
        a(f'v_lshrrev_b32 v{t2}, 16, v{t2}')
        a(f'v_mul_u32_u24 v{t3}, 10, v{t2}')
        a(f'v_sub_u32 v{t0}, v{t0}, v{t3}')
        if permute:
            a(f'v_bfe_u32 v{t3}, v{t2}, 2, 2')
            a(f'v_lshlrev_b32 v{t3}, 3, v{t3}')
            a(f'v_and_b32 v{d}, 3, v{t2}')
            a(f'v_add_u32 v{t3}, v{t3}, v{d}')
            a(f'v_lshrrev_b32 v{t2}, 4, v{t2}')
            a(f'v_lshl_add_u32 v{t2}, v{t2}, 2, v{t3}')
        a(f'v_mul_u32_u24 v{t2}, {stride}, v{t2}')
        a(f'v_lshl_add_u32 v{d}, v{t0}, 4, v{t2}')
        if 0 < q < 4:
            a(f'v_subrev_u32 v{d}, {q * 1024}, v{d}')


def dma160(a, vo, ssrd, soff, m0_s, m0_add, nt=''):
    a(f's_add_u32 m0, s{m0_s}, {m0_add}')
    for q in range(4):
        off = f' offset:{q * 1024}' if q else ''
        a(f'buffer_load_dwordx4 v{vo + q}, {S(ssrd, 4)}, s{soff} offen{off}{nt} lds')
    a(f's_add_u32 m0, s{m0_s}, {m0_add + 4096}')
    return a(f'buffer_load_dwordx4 v{vo + 4}, {S(ssrd, 4)}, s{soff} offen{nt} lds')


class Hooks:
    def __init__(self, items=()):
        self.items = list(items)

    def run(self, n=1):
        for _ in range(n):
            if self.items:
                self.items.pop(0)()

    def flush(self):
        self.run(len(self.items))


def softmax_pm(a, P, PH, EP, EN, tmp):
    p = [P[k // 4] + k % 4 for k in range(20)]
    ep = [EP[k // 4] + k % 4 for k in range(20)]
    en = [EN[k // 4] + k % 4 for k in range(20)]
    mx, mn, sp, sn = tmp, tmp + 2, tmp + 4, tmp + 6
    a(f'v_max3_f32 v{mx}, v{p[0]}, v{p[1]}, v{p[2]}')
    a(f'v_min3_f32 v{mn}, v{p[0]}, v{p[1]}, v{p[2]}')
    for k in range(3, 19, 2):
        a(f'v_max3_f32 v{mx}, v{mx}, v{p[k]}, v{p[k + 1]}')
        a(f'v_min3_f32 v{mn}, v{mn}, v{p[k]}, v{p[k + 1]}')
    a(f'v_max_f32 v{mx}, v{mx}, v{p[19]}')
    a(f'v_min_f32 v{mn}, v{mn}, v{p[19]}')
    a(f'v_mul_f32 v{mx}, s{sNL}, v{mx}')
    a(f'v_mul_f32 v{mn}, s{sL}, v{mn}')
    for k in range(0, 20, 2):
        a(f'v_pk_fma_f32 {V(ep[k], 2)}, {V(p[k], 2)}, {S(sL, 2)}, {V(mx, 2)} op_sel_hi:[1,0,0]')
        a(f'v_pk_fma_f32 {V(en[k], 2)}, {V(p[k], 2)}, {S(sNL, 2)}, {V(mn, 2)} op_sel_hi:[1,0,0]')
    for k in range(20):
        a(f'v_exp_f32 v{ep[k]}, v{ep[k]}')
        a(f'v_exp_f32 v{en[k]}, v{en[k]}')
    a(f'v_pk_add_f32 {V(sp, 2)}, {V(ep[0], 2)}, {V(ep[2], 2)}')
    a(f'v_pk_add_f32 {V(sn, 2)}, {V(en[0], 2)}, {V(en[2], 2)}')
    for k in range(4, 20, 2):
        a(f'v_pk_add_f32 {V(sp, 2)}, {V(sp, 2)}, {V(ep[k], 2)}')
        a(f'v_pk_add_f32 {V(sn, 2)}, {V(sn, 2)}, {V(en[k], 2)}')
    a(f'v_add_f32 v{sp}, v{sp}, v{sp + 1}')
    a(f'v_add_f32 v{sn}, v{sn}, v{sn + 1}')
    a(f'v_rcp_f32 v{sp}, v{sp}')
    a(f'v_rcp_f32 v{sn}, v{sn}')
    for k in range(0, 20, 2):
        a(f'v_pk_mul_f32 {V(ep[k], 2)}, {V(ep[k], 2)}, {V(sp, 2)} op_sel_hi:[1,0]')
        a(f'v_pk_mul_f32 {V(en[k], 2)}, {V(en[k], 2)}, {V(sn, 2)} op_sel_hi:[1,0]')
    allv = ep + en
    for k in range(20):
        a(f'v_cvt_pk_bf16_f32 v{PH[k // 4] + k % 4}, v{allv[2 * k]}, v{allv[2 * k + 1]}')


def flag_set(a, s_off):
    a(f'v_lshl_add_u32 v{vFS}, v{vL}, 2, s{s_off}')
    a(f'v_mov_b32 v{vFS + 1}, s{sTAG}')
    a(f's_mov_b64 exec, {hex((1 << (1 << (FSH - 2))) - 1)}')
    a(f'buffer_store_dword v{vFS + 1}, v{vFS}, {S(sWS, 4)}, 0 offen sc1')
    a('s_mov_b64 exec, -1')


def flag_issue(a, vaddr, vdst):
    return a(f'buffer_load_dword v{vdst}, v{vaddr}, {S(sWS, 4)}, 0 offen sc1')


def flag_check(a, tok, vaddr, vdst, sleep=2):
    ok = a.newlabel('ok')
    lp = a.newlabel('poll')
    a.wait(tok)
    a(f'v_cmp_ne_u32 vcc, s{sTAG}, v{vdst}')
    a(f's_cbranch_vccz {ok}')
    a(f's_mov_b32 s{sSPIN}, 0')
    a.label(lp)
    a(f's_sleep {sleep}')
    a.raw(f'\tbuffer_load_dword v{vdst}, v{vaddr}, {S(sWS, 4)}, 0 offen sc1')
    a('s_waitcnt vmcnt(0)')
    a(f'v_cmp_ne_u32 vcc, s{sTAG}, v{vdst}')
    a(f's_cbranch_vccz {ok}')
    a(f's_add_u32 s{sSPIN}, s{sSPIN}, 1')
    a(f's_cmp_lt_u32 s{sSPIN}, 0x8000')
    a(f's_cbranch_scc1 {lp}')
    a.label(ok)


def featmap(a, ACC5, PK, WPF, P5, EP5, EN5, tmp):
    for k in range(10):
        t, j = divmod(2 * k, 4)
        a(f'v_cvt_pk_bf16_f32 v{PK[k // 4] + k % 4}, v{ACC5[t] + j}, v{ACC5[t] + j + 1}')
    for ks in range(3):
        for t in range(5):
            d = V(P5[t], 4)
            if ks < 2:
                a(f'v_mfma_f32_16x16x32_bf16 {d}, {V(WPF(t, ks), 4)}, {V(PK[ks], 4)}, {"0" if ks == 0 else d}')
            else:
                a(f'v_mfma_f32_16x16x16_bf16 {d}, {V(WPF(t, ks), 2)}, {V(PK[ks], 2)}, {d}')
    softmax_pm(a, P5, P5, EP5, EN5, tmp)


def xcd_tile(a):
    a(f's_and_b32 s4, s{sID}, 7')
    a(f's_lshr_b32 s5, s{sID}, 3')
    if 'g2map8' in EXP:
        a(f's_and_b32 s{sHG}, s5, 7')
        a('s_lshl_b32 s6, s4, 2')
        a('s_lshr_b32 s7, s5, 3')
        a(f's_add_u32 s{sRB}, s6, s7')
    else:
        a('s_and_b32 s6, s4, 1')
        a('s_lshl_b32 s6, s6, 2')
        a('s_and_b32 s7, s5, 3')
        a(f's_add_u32 s{sHG}, s6, s7')
        a('s_lshr_b32 s6, s4, 1')
        a('s_lshl_b32 s6, s6, 3')
        a('s_lshr_b32 s7, s5, 2')
        a(f's_add_u32 s{sRB}, s6, s7')
    a(f's_lshl_b32 s4, s{sRB}, 6')
    a(f's_lshl_b32 s5, s{sW}, 4')
    a('s_add_u32 s4, s4, s5')
    a(f'v_add_u32 v{vTOK}, s4, v{vI}')


def ln_scales(a, vS, vRS, vNB):
    a(f'v_mul_f32 v{vS}, {fbits(1.0 / 640)}, v{vS}')
    a(f'v_mul_f32 v{vS + 2}, {fbits(1.0 / 640)}, v{vS + 2}')
    a(f'v_fma_f32 v{vS + 2}, -v{vS}, v{vS}, v{vS + 2}')
    a(f'v_max_f32 v{vS + 2}, 0, v{vS + 2}')
    a(f'v_add_f32 v{vS + 1}, {fbits(1e-5)}, v{vS + 2}')
    a(f'v_rsq_f32 v{vRS}, v{vS + 1}')
    a(f'v_mul_f32 v{vNB}, v{vS}, v{vRS}')
    a(f'v_sub_f32 v{vNB}, 0, v{vNB}')


vD, vF, vT, vT2, vFL, vFD, vOF, vXA, vBA = 8, 12, 14, 18, 22, 23, 28, 32, 33
ACC = lambda t, nt: 44 + (nt * 5 + t) * 4
TF = lambda j, nt: 124 + (j % 2) * 16 + 4 * nt
POOL = [156 + 4 * k for k in range(25)]


class GGemm:
    def __init__(self, a, kind):
        self.a, self.kind = a, kind
        if kind == 'B':
            self.stride, self.srdm, self.n, self.fr_off, self.fr_steps = F_ * 2, sW1, 16, HF_OFF, 64
            self.sdb, self.scb, self.ntot, self.P = sBDB, sBCB, 16, B_P
        else:
            self.stride, self.srdm, self.n, self.fr_off, self.fr_steps = S_ * 2, sW2, 14, GF_OFF, 74
            self.sdb, self.scb, self.ntot, self.P = sHG, sRB, 19, G2_P
        self.dtok, self.ftok, self.ttok = {}, {}, {}
        self.free = list(POOL)
        self.reg = {}
        self.pending = []
        order = [(j, 'a') for j in range(self.n)]
        if kind == 'G2':
            order += [(j, k) for j in range(14, 19) for k in 'ab']
        for j, k in order:
            self.pending += [(j, k, x) for x in range(5 if k == 'a' else 4)]
        self.gate = lambda: None
        self.gate2 = lambda: None
        self.nq = 2 if kind == 'B' else 4

    def setup(self):
        a, st = self.a, self.stride
        a(f'v_lshrrev_b32 v24, 3, v{vL}')
        if self.kind == 'B':
            a('v_lshrrev_b32 v25, 2, v24')
            a('v_and_b32 v24, 3, v24')
            a('v_lshl_add_u32 v24, v25, 3, v24')
        a(f'v_mul_u32_u24 v24, {st}, v24')
        a(f'v_and_b32 v25, 7, v{vL}')
        a(f'v_lshlrev_b32 v26, 1, v{vG}')
        a('v_xor_b32 v25, v25, v26')
        a('v_lshl_add_u32 v24, v25, 4, v24')
        a(f's_lshl_b32 s4, s{self.scb}, 7')
        a(f's_mul_i32 s5, s{sW}, {self.n * 32 * st}')
        a('s_add_u32 s5, s5, s4')
        if self.kind == 'B':
            a(f's_mul_i32 s6, s{sWH}, {4 * st}')
            a('s_add_u32 s5, s5, s6')
            a(f's_lshl_b32 s6, s{sWH}, 11')
            a(f's_add_u32 s{sM0B}, s{sGM0}, s6')
        else:
            a(f's_mov_b32 s{sM0B}, s{sGM0}')
        for q in range(self.nq):
            row = 8 * q if self.kind != 'B' else q * 16
            a(f's_add_u32 s6, s5, {row * st - 1024 * q}')
            a(f'v_add_u32 v{vD + q}, s6, v24')
        a(f's_mul_i32 s4, s{self.sdb}, {self.fr_steps}')
        a(f's_mul_i32 s5, s{sW}, {self.n}')
        a('s_add_u32 s4, s4, s5')
        a('s_mul_i32 s4, s4, 5120')
        a(f's_add_u32 s{sFS}, s4, {self.fr_off}')
        if self.kind == 'B':
            a(f's_lshl_b32 s4, s{sW}, {6 + FSH}')
            a(f's_add_u32 s4, s4, {FH_OFF}')
            a(f'v_lshl_add_u32 v{vFL}, v{vL}, {FSH}, s4')
        else:
            a(f's_lshl_b32 s4, s{self.sdb}, {7 + FSH}')
            a(f's_mul_i32 s5, s{sW}, {28 << FSH}')
            a('s_add_u32 s4, s4, s5')
            a(f's_add_u32 s4, s4, {FG_OFF}')
            a(f's_mul_i32 s5, s{self.sdb}, {74 * 5120}')
            a(f's_add_u32 s{sLIM}, s5, {GF_OFF + 53 * 5120}')
            a(f's_cmp_eq_u32 s{sW}, 3')
            a('s_cselect_b32 s5, 23, 27')
            a(f'v_min_u32 v24, s5, v{vL}')
            a(f'v_lshl_add_u32 v{vFL}, v24, {FSH}, s4')

    def dma_items(self, j):
        a = self.a

        def one(q):
            def f():
                if q == 0:
                    a(f's_add_u32 m0, s{sM0B}, {(j % self.P) * 16384}')
                off = f' offset:{q * 1024}' if q else ''
                nt = ' nt' if ('ntb' in EXP and self.kind == 'B' and j < self.P) else ''
                self.dtok[j] = a(f'buffer_load_dwordx4 v{vD + q}, {S(self.srdm, 4)}, 0 offen{off}{nt} lds')
                if not ('hotw' in EXP):
                    a(f'v_add_u32 v{vD + q}, {32 * self.stride}, v{vD + q}')
            return f
        return [one(q) for q in range(self.nq)]

    def frag_items(self, lim=99):
        a = self.a
        out = []
        while self.free and self.pending and len(out) < lim:
            key = self.pending.pop(0)
            r = self.free.pop(0)
            self.reg[key] = r

            def f(key=key, r=r):
                j, kind, x = key
                if key == (self.n, 'a', 0):
                    self.gate()
                if key == (self.n, 'b', 0):
                    self.gate2()
                if kind == 'a':
                    vo, off = (vF, x * 1024) if x < 4 else (vF + 1, 0)
                    offs = f' offset:{off}' if off else ''
                    self.ftok[j] = a(f'buffer_load_dwordx4 {V(r, 4)}, v{vo}, {S(sWS, 4)}, s{sFS} offen{offs} sc1')
                    if x == 4 and 'hotf' not in EXP:
                        a(f's_add_u32 s{sFS}, s{sFS}, 5120')
                        if self.kind == 'G2' and j < 14:
                            a(f's_min_u32 s{sFS}, s{sFS}, s{sLIM}')
                else:
                    if j - self.n == 2:
                        a(f'v_lshlrev_b32 v24, 3, v{vL}')
                        a(f'v_sub_u32 v24, v{vOF + x}, v24')
                        a(f'buffer_load_dwordx2 {V(r, 2)}, v24, {S(sWS, 4)}, s11 offen sc1')
                        self.ftok[j] = a(f'buffer_load_dwordx2 {V(r + 2, 2)}, v24, {S(sWS, 4)}, s11 offen offset:512 sc1')
                    else:
                        self.ftok[j] = a(f'buffer_load_dwordx4 {V(r, 4)}, v{vOF + x}, {S(sWS, 4)}, s11 offen sc1')
                    if x == 3:
                        a('s_add_u32 s11, s11, 4096')
            out.append(f)
        return out

    def tr_items(self, j):
        a = self.a

        def one(nt):
            def f():
                off = (j % self.P) * 16384
                base = vT
                if off >= 65536:
                    if off % 65536 == 0:
                        a(f'v_add_u32 v{vT2 + nt}, {off}, v{vT + nt}')
                    off %= 65536
                    base = vT2
                a(f'ds_read_b64_tr_b16 {V(TF(j, nt), 2)}, v{base + nt} offset:{off}')
                self.ttok[j] = a(f'ds_read_b64_tr_b16 {V(TF(j, nt) + 2, 2)}, v{base + nt} offset:{off + 2048}')
            return f
        return [one(nt) for nt in range(4)]

    def mainloop(self, extra):
        a, n = self.a, self.n
        a.wait(self.dtok[0])
        Hooks(self.tr_items(0)).flush()
        for j in range(self.ntot):
            items = []
            if j + 1 < n:
                a.wait(self.dtok[j + 1])
            a.wait(self.ftok[j], self.ttok.get(j))
            if self.kind == 'B' and j + 1 < n and (j + self.P < n or j + 1 >= int(os.environ.get('BPRE', '10'))):
                a('s_barrier')
            if j % 3 == 0:
                stamp(a, f'{self.kind}_{j}')
                if STAMPS and j in (3, 9):
                    a('s_memtime s[98:99]')
                    a.wait_lg0()
                    a(f'v_writelane_b32 v{vST}, s98, {56 + (j // 9) + (2 if self.kind == "G2" else 0)}')
            if j + 1 < n:
                items += self.tr_items(j + 1)
            if j + self.P < n:
                items += self.dma_items(j + self.P)
            items += extra(j)
            items += self.frag_items(10)
            last = j == self.ntot - 1
            if self.kind == 'G2' and j == 16:
                a('s_barrier')
            if last:
                a(f's_mul_i32 s7, s{sWH}, 102400')
                for nt in range(1, 4):
                    a(f's_xor_b32 s4, s{sW}, {nt}')
                    a('s_mul_i32 s4, s4, 15360')
                    a(f's_add_u32 s4, s4, {(nt - 1) * 5120}')
                    a('s_add_u32 s4, s4, s7')
                    a(f'v_add_u32 v{24 + nt}, s4, v{vF}')
                wr = [(nt, t) for nt in (1, 2, 3) for t in range(5)]
            hk = Hooks(items)
            k = 0
            ILV = os.environ.get('ILVB', 'fine') if self.kind == 'B' else os.environ.get('ILVG', 'burst')
            for nt in (1, 2, 3, 0):
                for t in range(5):
                    acc = V(ACC(t, nt), 4)
                    c = '0' if j == 0 else acc
                    fr = V(self.reg[(j, 'a', t)], 4)
                    tf = V(TF(j, nt) if j < n else self.reg[(j, 'b', nt)], 4)
                    if self.kind == 'B':
                        a(f'v_mfma_f32_16x16x32_bf16 {acc}, {tf}, {fr}, {c}')
                    else:
                        a(f'v_mfma_f32_16x16x32_bf16 {acc}, {fr}, {tf}, {c}')
                    k += 1
                    if last and k > 5:
                        wn, wt = wr.pop(0)
                        a(f'ds_write_b128 v{24 + wn}, {V(ACC(wt, wn), 4)} offset:{wt * 1024}')
                    if ILV == 'fine':
                        if k % 4 != 0:
                            hk.run()
                    elif ILV == 'burst':
                        if k <= 4 and j + 1 < n:
                            hk.run()
                    elif ILV == 'two':
                        if k <= 4 and j + 1 < n:
                            hk.run()
                        if k == 10:
                            hk.run(4)
                    elif ILV == 'pre':
                        if k == 1:
                            hk.flush()
            hk.flush()
            self.free += [r for key, r in self.reg.items() if key[0] == j]
            if n - 2 <= j < n:
                self.free += [TF(j, nt) for nt in range(4)]

    def reduce(self):
        a = self.a
        a(f's_mul_i32 s4, s{sW}, 15360')
        a('s_add_u32 s4, s4, s7')
        a(f'v_add_u32 v24, s4, v{vF}')
        a.wait_lg0()
        a('s_barrier')
        rtok = {}
        for nt in range(1, 4):
            for t in range(5):
                rtok[(nt, t)] = a(f'ds_read_b128 {V(ACC(t, nt), 4)}, v24 offset:{(nt - 1) * 5120 + t * 1024}')
        for nt in range(1, 4):
            for t in range(5):
                a.wait(rtok[(nt, t)])
                for h in range(2):
                    d = V(ACC(t, 0) + 2 * h, 2)
                    a(f'v_pk_add_f32 {d}, {d}, {V(ACC(t, nt) + 2 * h, 2)}')


def frag10_addr(a, m, hi_add, step, base_s, vrd, vrd_base, vst):
    a(f's_add_u32 s4, s{sW}, {4 * m}')
    a('s_min_u32 s5, s4, 9')
    a('s_cmp_ge_u32 s5, 5')
    a(f's_cselect_b32 s6, {hi_add}, 0')
    a(f's_mul_i32 s5, s5, {step}')
    a('s_add_u32 s5, s5, s6')
    a(f'v_add_u32 v{vrd}, s5, v{vrd_base}')
    a('s_lshl_b32 s5, s4, 10')
    a(f's_add_u32 s5, s5, s{base_s}')
    a('s_cmp_ge_u32 s4, 10')
    a(f's_cselect_b32 s5, {OOB}, s5')
    a(f'v_lshl_add_u32 v{vst}, v{vL}, 4, s5')


NTP = ' nt' if 'ntp' in EXP else ''
FIRST = int(os.environ.get('FIRST', '25'))
vTH = 40


def g_common(a):
    a(f'v_lshlrev_b32 v{vF}, 4, v{vL}')
    a(f'v_add_u32 v{vF + 1}, 4096, v{vF}')
    a(f's_lshl_b32 s{sGM0}, s{sW}, 12')
    a(f'v_bfe_u32 v25, v{vGR}, 1, 2')
    a(f'v_xor_b32 v25, s{sW}, v25')
    a(f'v_lshlrev_b32 v26, 7, v{vGR}')
    a(f'v_lshl_add_u32 v26, v{vC}, 3, v26')
    a(f'v_add_u32 v26, s{sGM0}, v26')
    for nt in range(4):
        a(f'v_xor_b32 v27, {nt}, v25')
        a(f'v_lshl_add_u32 v{vT + nt}, v27, 5, v26')


def tag_ready(a):
    a('s_waitcnt lgkmcnt(0)')
    a(f's_add_u32 s{sTAG}, s{sTAG}, 1')


def role_a(a):
    a(f's_and_b32 s4, s{sID}, 7')
    a(f's_lshr_b32 s5, s{sID}, 3')
    a('s_and_b32 s6, s4, 1')
    a('s_lshl_b32 s6, s6, 2')
    a('s_and_b32 s7, s5, 3')
    a(f's_add_u32 s{sHG}, s6, s7')
    a('s_lshr_b32 s6, s4, 1')
    a('s_lshl_b32 s6, s6, 2')
    a('s_lshr_b32 s7, s5, 2')
    a('s_add_u32 s6, s6, s7')
    a(f's_mov_b32 s{sRB}, s6')
    a('s_lshl_b32 s6, s6, 3')
    a(f's_add_u32 s15, s6, s{sHG}')
    a('s_lshl_b32 s12, s15, 1')
    a(f's_add_u32 s12, s12, s{sWH}')
    X = 156
    a('s_lshl_b32 s4, s12, 2')
    a(f's_add_u32 s4, s4, s{sW}')
    a('s_mul_i32 s4, s4, 2560')
    a(f'v_mul_u32_u24 v24, 40, v{vL}')
    xt = []
    for k in range(5):
        xt.append(a(f'buffer_load_dwordx2 {V(X + 2 * k, 2)}, v24, {S(sX, 4)}, s4 offen offset:{8 * k}{NTP}'))
    srd(a, sWQ, P_WQKV, D_ * 3 * D_ * 2)
    vLN = 8
    a(f'v_lshlrev_b32 v{vLN}, 4, v{vL}')
    a(f'v_add_u32 v{vLN + 1}, 4096, v{vLN}')
    a(f's_mul_i32 s{sM0B}, s{sW8}, 5120')
    a('s_lshl_b32 s10, s15, 2')
    a(f's_add_u32 s10, s10, s{sW}')
    a('s_mul_i32 s4, s10, 1093')
    a('s_lshr_b32 s4, s4, 16')
    a('s_mul_i32 s5, s4, 60')
    a('s_sub_u32 s5, s10, s5')
    a('s_lshr_b32 s6, s5, 1')
    a('s_and_b32 s7, s5, 1')
    a('s_add_u32 s7, s7, 1')
    a('s_sub_u32 s8, s5, 40')
    a('s_cmp_ge_u32 s5, 40')
    a('s_cselect_b32 s6, s8, s6')
    a('s_cselect_b32 s7, 0, s7')
    a(f's_mul_i32 s6, s6, {32 * 3840}')
    a('s_mul_i32 s7, s7, 1280')
    a('s_mul_i32 s4, s4, 160')
    a('s_add_u32 s6, s6, s7')
    a('s_add_u32 s6, s6, s4')
    a(f's_cmp_eq_u32 s{sWH}, 0')
    a('s_cselect_b32 s10, 480, s10')
    dma160_voffs(a, 12, 3840, True, 18)
    a('s_cmp_ge_u32 s10, 480')
    a(f's_cselect_b32 s7, {OOB}, 0')
    for q in range(5):
        a(f'v_add_u32 v{12 + q}, s7, v{12 + q}')
    utok = dma160(a, 12, sWQ, 6, sM0B, 0, NTP)
    a(f's_mul_i32 s13, s{sWH}, 24576')
    a('s_add_u32 s13, s13, 65536')
    a('s_add_u32 s14, s13, 12288')
    srd(a, sAUX, P_WPHI, 32 * 800)
    a(f's_mul_i32 s6, s{sHG}, 3200')
    a(f's_lshl_b32 s7, s{sW}, 10')
    a('s_add_u32 s6, s6, s7')
    a(f'v_lshl_add_u32 v10, v{vL}, 4, s6')
    a(f's_add_u32 m0, s7, {L_WPHI}')
    a(f'buffer_load_dwordx4 v10, {S(sAUX, 4)}, 0 offen lds')
    for k in range(4):
        a(f'v_mov_b32 v{44 + k}, 0')
    a(f'v_lshlrev_b32 v18, 4, v{vTH}')
    a(f'v_add_u32 v18, {L_ZERO}, v18')
    a('ds_write_b128 v18, v[44:47]')
    a(f'v_mov_b32 v10, {L_CNT}')
    a('v_mov_b32 v11, 0')
    a('ds_write2_b32 v10, v11, v11 offset0:0 offset1:1')
    vONE, vS, vRS, vNB = 34, 36, 168, 170
    a(f'v_mov_b32 v{vONE}, 0x3f803f80')
    for k in range(4):
        a(f'v_mov_b32 v{vS + k}, 0')
    a('s_waitcnt lgkmcnt(0)')
    a(f's_add_u32 s{sTAG}, s{sTAG}, 1')
    a.wait(xt[4])
    stamp(a, 'x')
    for k in range(10):
        a(f'v_dot2c_f32_bf16 v{vS + (k & 1)}, v{X + k}, v{vONE}')
        a(f'v_dot2c_f32_bf16 v{vS + 2 + (k & 1)}, v{X + k}, v{X + k}')
    a(f'v_add_f32 v{vS}, v{vS}, v{vS + 1}')
    a(f'v_add_f32 v{vS + 2}, v{vS + 2}, v{vS + 3}')
    for sh in (8, 4, 2, 1):
        for r in (vS, vS + 2):
            a(f'v_add_f32_dpp v{r}, v{r}, v{r} row_ror:{sh} row_mask:0xf bank_mask:0xf')
    for r in (vS, vS + 2):
        a(f'v_mov_b32 v{r + 1}, v{r}')
        a(f'v_permlane16_swap_b32 v{r}, v{r + 1}')
        a(f'v_add_f32 v{r}, v{r}, v{r + 1}')
    ln_scales(a, vS, vRS, vNB)
    a(f'v_mul_f32 v{vS + 1}, v{vRS}, v{vRS}')
    a(f'v_mov_b32 v{vS + 3}, {fbits(1e-5)}')
    a(f'v_fmac_f32 v{vS + 3}, v{vS + 1}, v{vS + 2}')
    a(f'v_rsq_f32 v{vS + 2}, v{vS + 3}')
    U = 172
    for k in range(10):
        a(f'v_lshlrev_b32 v{U + 2 * k}, 16, v{X + k}')
        a(f'v_and_b32 v{U + 2 * k + 1}, 0xffff0000, v{X + k}')
    for k in range(10):
        a(f'v_pk_fma_f32 {V(U + 2 * k, 2)}, {V(U + 2 * k, 2)}, {V(vRS, 2)}, {V(vNB, 2)} op_sel_hi:[1,0,0]')
    XQ = 192
    for k in range(10):
        a(f'v_cvt_pk_bf16_f32 v{XQ + k}, v{U + 2 * k}, v{U + 2 * k + 1}')
    for k in range(10):
        a(f'v_pk_mul_f32 {V(U + 2 * k, 2)}, {V(U + 2 * k, 2)}, {V(vS + 2, 2)} op_sel_hi:[1,0]')
    for k in range(10):
        a(f'v_cvt_pk_bf16_f32 v{X + k}, v{U + 2 * k}, v{U + 2 * k + 1}')
    a(f's_mul_i32 s4, s{sW}, {2 * 1296}')
    a('s_add_u32 s4, s4, s13')
    a(f'v_mul_u32_u24 v24, 40, v{vL}')
    a(f'v_lshrrev_b32 v25, 5, v{vL}')
    a('v_lshl_add_u32 v24, v25, 4, v24')
    a('v_add_u32 v24, s4, v24')
    for k in range(5):
        a(f'ds_write_b64 v24, {V(XQ + 2 * k, 2)} offset:{8 * k}')
    a(f'v_and_b32 v25, 7, v{vTH}')
    a(f'v_lshrrev_b32 v26, 3, v{vTH}')
    a('v_mul_u32_u24 v28, 1296, v25')
    a('v_lshl_add_u32 v28, v26, 4, v28')
    a('v_add_u32 v28, s13, v28')
    a('v_lshlrev_b32 v29, 8, v26')
    a('v_lshl_add_u32 v29, v25, 4, v29')
    a(f's_lshr_b32 s4, s12, 1')
    a('s_mul_i32 s4, s4, 20480')
    a(f's_and_b32 s5, s12, 1')
    a('s_lshl_b32 s5, s5, 7')
    a('s_add_u32 s4, s4, s5')
    a(f's_add_u32 s4, s4, {XF_OFF}')
    a('v_add_u32 v29, s4, v29')
    a('v_add_u32 v30, 8192, v29')
    a(f's_cmp_ge_u32 s{sW}, 2')
    a(f's_cselect_b32 s4, {OOB}, 16384')
    a('v_add_u32 v31, s4, v29')
    a(f's_mul_i32 s4, s{sW}, 2560')
    a('s_add_u32 s4, s4, s14')
    a(f'v_mul_u32_u24 v24, 40, v{vL}')
    a('v_add_u32 v24, s4, v24')
    for k in range(5):
        a(f'ds_write_b64 v24, {V(X + 2 * k, 2)} offset:{8 * k}')
    a(f'v_mul_u32_u24 v24, 1280, v{vR}')
    a(f'v_mul_u32_u24 v25, 160, v{vG}')
    a('v_add_u32 v24, v24, v25')
    a(f'v_mul_u32_u24 v25, 40, v{vC}')
    a('v_add_u32 v24, v24, v25')
    a('v_add_u32 v24, s14, v24')
    a(f'v_mul_u32_u24 v25, {64 * 5120}, v{vG}')
    a(f'v_lshl_add_u32 v25, v{vI}, 4, v25')
    a(f's_lshr_b32 s4, s12, 2')
    a('s_mul_i32 s4, s4, 5120')
    a(f's_and_b32 s5, s12, 3')
    a('s_lshl_b32 s5, s5, 8')
    a('s_add_u32 s4, s4, s5')
    a(f's_add_u32 s8, s4, {HF_OFF}')
    a.wait_lg0()
    a('s_barrier')
    ht = []
    for m in range(3):
        ht.append(a(f'ds_read_b128 {V(XQ + 4 * m, 4)}, v28 offset:{512 * m}'))
    for m in range(3):
        a.wait(ht[m])
        a(f'buffer_store_dwordx4 {V(XQ + 4 * m, 4)}, v{29 + m}, {S(sWS, 4)}, 0 offen sc1')
    ht = []
    for m in range(3):
        a(f's_add_u32 s4, s{sW}, {4 * m}')
        a('s_min_u32 s5, s4, 9')
        a('s_cmp_ge_u32 s5, 5')
        a(f's_cselect_b32 s6, {640 - 40}, 0')
        a(f's_cselect_b32 s7, {4 * 64 * 5120 - 5120}, 0')
        a('s_lshl_b32 s5, s5, 3')
        a('s_add_u32 s5, s5, s6')
        a('v_add_u32 v26, s5, v24')
        a(f'ds_read_b64_tr_b16 {V(U + 4 * m, 2)}, v26')
        ht.append(a(f'ds_read_b64_tr_b16 {V(U + 4 * m + 2, 2)}, v26 offset:{4 * 1280}'))
        a('s_lshl_b32 s5, s4, 10')
        a('s_add_u32 s5, s5, s7')
        a('s_add_u32 s5, s5, s8')
        a('s_cmp_ge_u32 s4, 10')
        a(f's_cselect_b32 s5, {OOB}, s5')
        a(f'v_add_u32 v{34 + m}, s5, v25')
    for m in range(3):
        a.wait(ht[m])
        a(f'buffer_store_dwordx4 {V(U + 4 * m, 4)}, v{34 + m}, {S(sWS, 4)}, 0 offen sc1')
    hst = ('vm', a.vm_issued - 1)
    a(f'v_mul_u32_u24 v29, 160, v{vGR}')
    a(f'v_mul_u32_u24 v24, 40, v{vC}')
    a('v_add_u32 v29, v29, v24')
    a(f'v_add_u32 v29, s{sM0B}, v29')
    a('s_mul_i32 s4, s10, 5120')
    a(f's_add_u32 s4, s4, {WF_OFF}')
    a('s_cmp_ge_u32 s10, 480')
    a(f's_cselect_b32 s4, {OOB}, s4')
    a(f'v_add_u32 v24, s4, v{vLN}')
    a(f'v_add_u32 v25, s4, v{vLN + 1}')
    a(f's_lshl_b32 s5, s10, {FSH}')
    a(f's_add_u32 s5, s5, {FU_OFF}')
    a('s_cmp_ge_u32 s10, 480')
    a(f's_cselect_b32 s10, {OOB}, s5')
    a.wait(utok)
    ut = []
    for t in range(5):
        a(f'ds_read_b64_tr_b16 {V(UP(t), 2)}, v29 offset:{8 * t}')
        ut.append(a(f'ds_read_b64_tr_b16 {V(UP(t) + 2, 2)}, v29 offset:{8 * t + 2560}'))
    for t in range(5):
        a.wait(ut[t])
        vo, off = (24, t * 1024) if t < 4 else (25, 0)
        a(f'buffer_store_dwordx4 {V(UP(t), 4)}, v{vo}, {S(sWS, 4)}, 0 offen offset:{off} sc1')
    a(f's_lshl_b32 s4, s{sWH}, 2')
    a(f's_add_u32 s4, s4, {L_CNT}')
    a('v_mov_b32 v10, s4')
    a('v_mov_b32 v11, 1')
    a.wait(hst)
    a('s_mov_b64 exec, 1')
    a('ds_add_rtn_u32 v11, v10, v11')
    a('s_mov_b64 exec, -1')
    a.wait_lg0()
    a('v_readfirstlane_b32 s5, v11')
    a(f's_lshl_b32 s4, s12, {FSH}')
    a(f's_add_u32 s4, s4, {FH_OFF}')
    a('s_cmp_lg_u32 s5, 3')
    a('s_cbranch_scc1 L_nofh')
    flag_set(a, 4)
    a.label('L_nofh')
    a.wait_vm0()
    flag_set(a, 10)
    stamp(a, 'prep')
    a(f's_mov_b32 s{sL}, {fbits(LOG2E)}')
    a(f's_mov_b32 s{sL + 1}, {fbits(LOG2E)}')
    a(f's_mov_b32 s{sNL}, {fbits(-LOG2E)}')
    a(f's_mov_b32 s{sNL + 1}, {fbits(-LOG2E)}')
    a(f's_mul_i32 s10, s{sHG}, 60')
    a(f's_lshl_b32 s4, s10, {FSH}')
    a(f's_add_u32 s4, s4, {FU_OFF}')
    a(f'v_lshl_add_u32 v20, v{vL}, {FSH}, s4')
    a(f's_lshl_b32 s11, s{sRB}, 2')
    a(f's_add_u32 s11, s11, s{sW}')
    a(f's_lshl_b32 s4, s11, {FSH + 2}')
    a(f's_add_u32 s4, s4, {FH_OFF}')
    a(f'v_lshl_add_u32 v21, v{vC}, {FSH}, s4')
    a(f'v_cmp_gt_u32 vcc, 60, v{vL}')
    a('v_cndmask_b32 v20, v21, v20, vcc')
    a(f's_add_u32 s10, s10, s{sW}')
    a('s_mul_i32 s10, s10, 5120')
    a(f's_add_u32 s10, s10, {WF_OFF}')
    a(f's_add_u32 s9, s10, {40 * 5120}')
    a(f's_mul_i32 s{sM0B}, s{sW}, 5120')
    a('s_mul_i32 s11, s11, 40960')
    a(f's_add_u32 s11, s11, {XF_OFF}')
    a(f'v_add_u32 v10, 20480, v{vLN}')
    a(f'v_add_u32 v26, {L_RING}, v{vLN}')
    a(f'v_add_u32 v27, 61440, v{vLN}')

    def wphi_frags(WPF, wbase, zbase):
        a(f'v_mul_u32_u24 v22, 800, v{vG}')
        a(f'v_mul_u32_u24 v23, 40, v{vR}')
        a('v_add_u32 v22, v22, v23')
        a(f'v_add_u32 v22, {wbase}, v22')
        a(f'v_mov_b32 v23, {zbase}')
        a(f'v_cmp_eq_u32 vcc, v{vG}, v{vC}')
        a('v_cndmask_b32 v22, v23, v22, vcc')
        for t in range(5):
            for d4 in range(5):
                a(f'ds_read_b64_tr_b16 {V(WPF(t, d4 // 2) + 2 * (d4 % 2), 2)}, v22 offset:{4 * d4 * 40 + 8 * t}')

    Q = lambda k: 48 + 4 * k
    WPF = lambda t, ks: Q(2 * t + ks) if ks < 2 else Q(10 + t // 2) + 2 * (t % 2)
    a('s_barrier')
    wphi_frags(WPF, L_WPHI, L_ZERO)
    a.wait_lg0()
    a('s_barrier')
    flag_check(a, flag_issue(a, 20, 21), 20, 21)
    stamp(a, 'go')

    def xload(dst, ks, z):
        off = f' offset:{(ks % 4) * 1024}' if ks % 4 else ''
        t = a(f'buffer_load_dwordx4 {V(dst, 4)}, v{vLN if z == 0 else 10}, {S(sWS, 4)}, s11 offen{off} sc1')
        if ks % 4 == 3 and z == 1:
            a('s_add_u32 s11, s11, 4096')
        return t

    a(f's_cmp_lg_u32 s{sWH}, 0')
    a('s_cbranch_scc1 L_a_upper')
    at_split = a.save()
    a('s_setprio 2')
    AC = lambda k, z: Q(13 + 2 * k + z)
    XR = lambda ks, z: Q(33 + (ks % 6) * 2 + z)
    FW = lambda n: Q(45 + n % 7)
    xtok = {}
    for ks in range(5):
        for z in range(2):
            xtok[ks] = xload(XR(ks, z), ks, z)
    a('s_barrier')
    stamp(a, 'a0')
    WIN, NF = 6, 200
    ftok = {}

    def read_frag(n):
        d, r = divmod(n, 20)
        ftok[n] = a(f'ds_read_b128 {V(FW(n), 4)}, v26 offset:{(d % 3) * 20480 + r * 1024}')

    for n in range(WIN):
        read_frag(n)
    for n in range(NF):
        nn = n + WIN
        if nn < NF:
            if nn % 20 == 0:
                a.wait_lg0()
                a('s_barrier')
                if (nn // 20) % 3 == 0:
                    stamp(a, f'a{nn // 20}')
            read_frag(nn)
        ks, k = divmod(n, 10)
        a.wait(ftok[n], xtok[ks])
        for z in range(2):
            c = '0' if ks == 0 else V(AC(k, z), 4)
            a(f'v_mfma_f32_16x16x32_bf16 {V(AC(k, z), 4)}, {V(FW(n), 4)}, {V(XR(ks, z), 4)}, {c}')
        if k in (2, 6) and ks + 5 < 20:
            xtok[ks + 5] = xload(XR(ks + 5, k // 4), ks + 5, k // 4)
    a('s_barrier')
    stamp(a, 'aend')
    vSA, vKA, vKO = 8, 9, 12
    a(f's_lshl_b32 s4, s{sW}, 5')
    a(f'v_lshl_add_u32 v{vSA}, v{vG}, 7, v{vI}')
    a(f'v_add_u32 v{vSA}, s4, v{vSA}')
    a(f'v_mul_u32_u24 v{vSA}, 120, v{vSA}')
    a(f'v_add_u32 v{vSA}, {L_RING}, v{vSA}')
    for z in range(2):
        for t in range(5):
            r = AC(5 + t, z)
            a(f'v_cvt_pk_bf16_f32 v{r}, v{r}, v{r + 1}')
            a(f'v_cvt_pk_bf16_f32 v{r + 1}, v{r + 2}, v{r + 3}')
            a(f'ds_write_b64 v{vSA}, {V(r, 2)} offset:{z * 16 * 120 + 80 + 8 * t}')
    PK = [Q(33), Q(34), Q(35)]
    EN5 = [Q(36 + c) for c in range(5)]
    for z in range(2):
        E5 = [AC(t, z) for t in range(5)]
        P5 = [Q(41 + 5 * z + c) for c in range(5)]
        featmap(a, E5, PK, WPF, P5, E5, EN5, 32)
        for c in range(10):
            a(f'ds_write_b64 v{vSA}, {V(P5[c // 2] + 2 * (c % 2), 2)} offset:{z * 16 * 120 + 8 * c}')
    stamp(a, 'fm')
    a(f's_mul_i32 s4, s{sW}, {128 * 120}')
    a(f's_add_u32 s4, s4, {L_RING}')
    a(f'v_mul_u32_u24 v{vKA}, 120, v{vGR}')
    a(f'v_lshl_add_u32 v{vKA}, v{vC}, 3, v{vKA}')
    a(f'v_add_u32 v{vKA}, s4, v{vKA}')
    a(f's_lshl_b32 s4, s{sHG}, 2')
    a(f's_add_u32 s4, s4, s{sW}')
    a('s_lshl_b32 s4, s4, 4')
    a(f's_add_u32 s13, s4, s{sRB}')
    a('s_mul_i32 s4, s13, 6144')
    a(f's_add_u32 s4, s4, {KV_OFF}')
    a(f'v_lshl_add_u32 v{vKO}, v{vL}, 4, s4')
    a('s_movk_i32 s12, 0x1000')
    a(f'v_mov_b32 v11, {OOB}')
    a(f'v_cmp_gt_u32 vcc, 8, v{vI}')
    a(f'v_cndmask_b32 v{vKO + 1}, v11, v{vKO}, vcc')
    a(f'v_cmp_gt_u32 vcc, 2, v{vG}')
    a(f'v_cndmask_b32 v{vKO + 2}, v11, v{vKO}, vcc')
    a(f'v_cndmask_b32 v{vKO + 3}, v11, v{vKO + 1}, vcc')
    a(f's_lshl_b32 s13, s13, {FSH}')
    a(f's_add_u32 s10, s13, {FK_OFF}')
    a('v_mov_b32 v11, 0x3f803f80')
    a(f'v_cmp_eq_u32 vcc, 1, v{vR}')
    a.wait_lg0()
    a('s_barrier')
    ktok = {}
    OPQ = lambda kk, x: Q(13 + kk * 5 + x)
    KVA = [Q(k) for k in range(6)]

    def kv_read(kk):
        for x in range(5):
            col = 32 * x if x < 3 else 80 + 32 * (x - 3)
            a(f'ds_read_b64_tr_b16 {V(OPQ(kk, x), 2)}, v{vKA} offset:{kk * 32 * 120 + col}')
            ktok[kk] = a(f'ds_read_b64_tr_b16 {V(OPQ(kk, x) + 2, 2)}, v{vKA} offset:{kk * 32 * 120 + 16 * 120 + col}')

    kv_read(0)
    for kk in range(4):
        if kk + 1 < 4:
            kv_read(kk + 1)
        a.wait(ktok[kk])
        for j in range(4):
            a(f'v_cndmask_b32 v{OPQ(kk, 4) + j}, v{OPQ(kk, 4) + j}, v11, vcc')
        for et in range(2):
            for ft in range(3):
                d = V(KVA[ft * 2 + et], 4)
                a(f'v_mfma_f32_16x16x32_bf16 {d}, {V(OPQ(kk, 3 + et), 4)}, {V(OPQ(kk, ft), 4)}, {"0" if kk == 0 else d}')
    for ft in range(3):
        for et in range(2):
            vo = vKO + (1 if ft == 2 else 0) + (2 if et == 1 else 0)
            so = 's12' if ft == 2 else '0'
            a(f'buffer_store_dwordx4 {V(KVA[ft * 2 + et], 4)}, v{vo}, {S(sWS, 4)}, {so} offen offset:{(ft % 2) * 2048 + et * 1024} sc1')
    a.wait_vm0()
    flag_set(a, 10)
    a(f's_mov_b32 s10, {OOB}')
    a('s_barrier')
    a('s_branch L_join')

    a.label('L_a_upper')
    a.restore(at_split)
    wtok = {}

    def dma5(so, lds):
        a(f's_add_u32 m0, s{sM0B}, {lds}')
        for q in range(4):
            off = f' offset:{q * 1024}' if q else ''
            a(f'buffer_load_dwordx4 v{vLN}, {S(sWS, 4)}, s{so} offen{off} sc1 lds')
        a(f's_add_u32 m0, s{sM0B}, {lds + 4096}')
        t = a(f'buffer_load_dwordx4 v{vLN + 1}, {S(sWS, 4)}, s{so} offen sc1 lds')
        a(f's_add_u32 s{so}, s{so}, 20480')
        return t

    NXR = 12
    XQ_ = lambda ks, z: Q(13 + (ks % NXR) * 2 + z)
    AQ = lambda t, z: Q(37 + 2 * t + z)
    FQ = lambda n: Q(47 + n % 5)
    xtok = {}
    for d in range(3):
        wtok[d] = dma5(10, L_RING + d * 20480)
    for d in range(10):
        a.wait(wtok[d])
        a('s_barrier')
        if 1 <= d and d + 2 < 10:
            wtok[d + 2] = dma5(10, L_RING + ((d + 2) % 3) * 20480)
        if d < 5:
            qtok = dma5(9, L_WQ + d * 20480)
        if 4 <= d < 10:
            for ks in (2 * (d - 4), 2 * (d - 4) + 1):
                for z in range(2):
                    xtok[ks] = xload(XQ_(ks, z), ks, z)
    a.wait(qtok)
    a('s_barrier')
    ftok = {}

    def read_q(n):
        off = n * 1024
        ftok[n] = a(f'ds_read_b128 {V(FQ(n), 4)}, v{vLN if off < 61440 else 27} offset:{off % 61440}')

    QBAR = int(os.environ.get('QBAR', '-1'))
    if QBAR < 0:
        a('s_barrier')
    for n in range(4):
        read_q(n)
    for n in range(100):
        if n + 4 < 100:
            read_q(n + 4)
        ks, t = divmod(n, 5)
        a.wait(ftok[n], xtok[ks])
        for z in range(2):
            c = '0' if ks == 0 else V(AQ(t, z), 4)
            a(f'v_mfma_f32_16x16x32_bf16 {V(AQ(t, z), 4)}, {V(FQ(n), 4)}, {V(XQ_(ks, z), 4)}, {c}')
        if t in (1, 3) and ks >= 1 and ks - 1 + NXR < 20:
            xtok[ks - 1 + NXR] = xload(XQ_(ks - 1 + NXR, t // 2), ks - 1 + NXR, t // 2)
        if n == QBAR:
            a('s_barrier')
    a('s_barrier')
    stamp(a, 'aend')
    PK = [Q(13), Q(14), Q(15)]
    EN5 = [Q(16 + c) for c in range(5)]
    PP = [[Q(21 + 5 * z + c) for c in range(5)] for z in range(2)]
    for z in range(2):
        E5 = [AQ(t, z) for t in range(5)]
        featmap(a, E5, PK, WPF, PP[z], E5, EN5, 32)
    stamp(a, 'fm')
    a('s_setprio 3')
    a(f's_mul_i32 s6, s{sW}, 10240')
    a(f's_add_u32 s6, s6, {L_RING}')
    a(f'v_lshlrev_b32 v31, 11, v{vG}')
    a(f'v_lshl_add_u32 v31, v{vR}, 3, v31')
    a('v_mov_b32 v21, 8192')
    a(f'v_cmp_eq_u32 vcc, v{vG}, v{vC}')
    a('v_cndmask_b32 v31, v21, v31, vcc')
    a('v_add_u32 v31, s6, v31')
    for k in range(4):
        a(f'v_mov_b32 v{44 + k}, 0')
    a(f'v_add_u32 v21, s6, v{vLN}')
    a('ds_write_b128 v21, v[44:47] offset:8192')
    a('ds_write_b128 v21, v[44:47] offset:9216')
    a(f's_lshl_b32 s4, s{sHG}, {4 + FSH}')
    a(f's_add_u32 s4, s4, {FR_OFF}')
    a(f'v_lshl_add_u32 v20, v{vI}, {FSH}, s4')
    a(f'v_lshlrev_b32 v8, 4, v{vL}')
    a('v_add_u32 v9, 4096, v8')
    a(f'v_lshlrev_b32 v10, 3, v{vL}')
    a(f's_lshl_b32 s5, s{sHG}, 13')
    a(f's_add_u32 s5, s5, {KB_OFF}')
    a(f's_lshl_b32 s7, s{sRB}, 1')
    a(f's_lshr_b32 s8, s{sW}, 1')
    a('s_add_u32 s7, s7, s8')
    a(f's_and_b32 s8, s{sW}, 1')
    a('s_lshl_b32 s8, s8, 1')
    a(f's_lshr_b32 s12, s{sHG}, 1')
    a('s_mul_i32 s12, s12, 5')
    a('s_mul_i32 s13, s7, 20')
    a('s_add_u32 s12, s12, s13')
    a('s_lshl_b32 s12, s12, 2')
    a('s_add_u32 s12, s12, s8')
    a('s_lshl_b32 s12, s12, 10')
    a(f's_add_u32 s12, s12, {OF_OFF}')
    a(f's_and_b32 s13, s{sHG}, 1')
    a(f's_mul_i32 s14, s13, {3 * 4096}')
    a('s_add_u32 s14, s14, s12')
    a('s_lshl_b32 s13, s13, 9')
    a('s_add_u32 s12, s12, s13')
    a(f's_add_u32 s12, s12, {2 * 4096}')
    a('s_lshl_b32 s13, s7, 3')
    a(f's_add_u32 s13, s13, s{sHG}')
    a('s_lshl_b32 s13, s13, 2')
    a('s_add_u32 s13, s13, s8')
    a(f's_lshl_b32 s13, s13, {FSH}')
    a(f's_add_u32 s13, s13, {FO_OFF}')
    flag_check(a, flag_issue(a, 20, 21), 20, 21, int(os.environ.get('RSLEEP', '8')))
    stamp(a, 'rok')
    for hh in range(2):
        a(f's_add_u32 m0, s6, {4096 * hh}')
        for q in range(4):
            off = f' offset:{q * 1024}' if q else ''
            a(f'buffer_load_dwordx4 v{8 + hh}, {S(sWS, 4)}, s5 offen{off} sc1 lds')
    a.wait_all()
    OA = [[Q(31 + k) for k in range(6)], [Q(37 + k) for k in range(6)]]
    KF = lambda ks, t: Q((ks % 2) * 6 + t)
    otok = {}

    def o_read(ks):
        for t in range(6):
            a(f'ds_read_b64_tr_b16 {V(KF(ks, t), 2)}, v31 offset:{kb_pos(8 * ks, t)}')
            otok[ks] = a(f'ds_read_b64_tr_b16 {V(KF(ks, t) + 2, 2)}, v31 offset:{kb_pos(8 * ks + 4, t)}')

    o_read(0)
    for ks in range(5):
        if ks + 1 < 5:
            o_read(ks + 1)
        a.wait(otok[ks])
        for z in range(2):
            for t in range(6):
                d = V(OA[z][t], 4)
                a(f'v_mfma_f32_16x16x32_bf16 {d}, {V(KF(ks, t), 4)}, {V(PP[z][ks], 4)}, {"0" if ks == 0 else d}')
    for z in range(2):
        O = OA[z]
        PO = PK if z == 0 else [Q(16), Q(17), Q(18)]
        a(f'v_add_f32 v{O[5]}, {fbits(1e-6)}, v{O[5]}')
        a(f'v_rcp_f32 v{O[5]}, v{O[5]}')
        for t in range(5):
            for h in range(2):
                a(f'v_pk_mul_f32 {V(O[t] + 2 * h, 2)}, {V(O[t] + 2 * h, 2)}, {V(O[5], 2)} op_sel_hi:[1,0]')
        for k in range(10):
            t, j = divmod(2 * k, 4)
            a(f'v_cvt_pk_bf16_f32 v{PO[k // 4] + k % 4}, v{O[t] + j}, v{O[t] + j + 1}')
        off = f' offset:{1024 * z}' if z else ''
        a(f'buffer_store_dwordx4 {V(PO[0], 4)}, v8, {S(sWS, 4)}, s14 offen{off} sc1')
        a(f'buffer_store_dwordx4 {V(PO[1], 4)}, v9, {S(sWS, 4)}, s14 offen{off} sc1')
        a(f'buffer_store_dwordx2 {V(PO[2], 2)}, v10, {S(sWS, 4)}, s12 offen{off} sc1')
    a.wait_vm0()
    flag_set(a, 13)
    a(f's_cmp_lg_u32 s{sID}, 0')
    a('s_cbranch_scc1 L_a_done')
    a(f's_cmp_lg_u32 s{sW}, 3')
    a('s_cbranch_scc1 L_a_done')
    a(f'v_and_b32 v20, 31, v{vL}')
    a('v_min_u32 v20, 26, v20')
    a(f'v_and_b32 v21, 32, v{vL}')
    a('v_add_u32 v20, v20, v21')
    a(f'v_lshlrev_b32 v20, {FSH + 2}, v20')
    for k in range(4):
        a(f'v_add_u32 v22, {FG_OFF + (k * 256 << FSH)}, v20')
        flag_check(a, flag_issue(a, 22, 21), 22, 21, 12)
    a(f'v_lshlrev_b32 v20, {FSH}, v{vL}')
    for base in (FR_OFF, FR_OFF + (64 << FSH)):
        a(f'v_add_u32 v22, {base}, v20')
        flag_check(a, flag_issue(a, 22, 21), 22, 21, 12)
    a(f'v_and_b32 v20, 31, v{vL}')
    a(f'v_lshlrev_b32 v20, {FSH}, v20')
    a(f'v_add_u32 v22, {FW_OFF}, v20')
    flag_check(a, flag_issue(a, 22, 21), 22, 21, 12)
    a(f's_mov_b32 s10, {EP_OFF}')
    flag_set(a, 10)
    a.label('L_a_done')
    stamp_flush(a, 'end')
    a('s_endpgm')


def role_b(a):
    if 'map4' in EXP:
        a(f's_lshr_b32 s{sBCB}, s6, 2')
        a('s_and_b32 s9, s6, 3')
        a('s_lshl_b32 s6, s9, 1')
    else:
        a('s_cmp_ge_u32 s6, 54')
        a('s_cselect_b32 s7, 54, 0')
        a('s_cselect_b32 s8, 4, 0')
        a('s_sub_u32 s6, s6, s7')
        a(f's_lshr_b32 s{sBCB}, s6, 1')
        a('s_and_b32 s9, s6, 1')
        a('s_lshl_b32 s6, s9, 1')
        a('s_add_u32 s6, s6, s8')
    PR = 24 if 'map4' in EXP else 48
    a(f's_add_u32 s{sBDB}, s6, s{sWH}')
    srd(a, sW1, P_W1, S_ * F_ * 2)
    g_common(a)
    gB = GGemm(a, 'B')
    gB.setup()
    BPRE = int(os.environ.get('BPRE', '10'))
    if 'g1lin' in EXP:
        a(f's_lshl_b32 s4, s{sBCB}, 2')
        a('s_add_u32 s4, s4, s9')
        a('s_lshl_b32 s4, s4, 3')
        a(f's_add_u32 s4, s4, s{sW8}')
        a('s_lshl_b32 s4, s4, 13')
        a(f'v_lshl_add_u32 v24, v{vL}, 7, s4')
        a(f'buffer_load_dword v37, v24, {S(sW1, 4)}, 0 offen')
        if 'g1wait' in EXP:
            a.wait_vm0()
    if 'g1first' in EXP:
        a('s_lshl_b32 s4, s9, 1')
        a(f's_add_u32 s4, s4, s{sWH}')
        a(f's_lshl_b32 s5, s{sW}, 9')
        a('s_add_u32 s4, s4, s5')
        a(f's_mul_i32 s4, s4, {F_ * 2}')
        a(f's_lshl_b32 s5, s{sBCB}, 7')
        a('s_add_u32 s4, s4, s5')
        a(f'v_mul_u32_u24 v24, {8 * F_ * 2}, v{vL}')
        a('v_add_u32 v24, s4, v24')
        a(f'buffer_load_dword v37, v24, {S(sW1, 4)}, 0 offen')
    for j in range(BPRE):
        Hooks(gB.dma_items(j)).flush()

    def b_extra(j):
        return []

    a('s_lshl_b32 s4, s9, 1')
    a(f's_add_u32 s4, s4, s{sWH}')
    a(f's_mul_i32 s4, s4, {PR}')
    a(f's_lshl_b32 s5, s{sW}, 9')
    a('s_add_u32 s4, s4, s5')
    a(f's_add_u32 s4, s4, {32 * B_P}')
    a(f's_mul_i32 s4, s4, {F_ * 2}')
    a(f's_lshl_b32 s5, s{sBCB}, 7')
    a('s_add_u32 s4, s4, s5')
    a(f'v_min_u32 v24, {PR - 1}, v{vL}')
    a(f'v_mul_u32_u24 v24, {F_ * 2}, v24')
    a('v_add_u32 v24, s4, v24')
    if 'g1first' not in EXP:
        a(f'buffer_load_dword v37, v24, {S(sW1, 4)}, 0 offen')
    srd(a, sAUX, P_B1, F_ * 2)
    a(f's_lshl_b32 s4, s{sBCB}, 7')
    a(f's_lshl_b32 s5, s{sW}, 5')
    a('s_add_u32 s4, s4, s5')
    a(f'v_lshl_add_u32 v24, v{vG}, 3, s4')
    a(f'buffer_load_dwordx2 v[38:39], v24, {S(sAUX, 4)}, 0 offen')
    tag_ready(a)
    a('s_barrier')
    stamp(a, 'prep')
    a(f's_cmp_lg_u32 s{sWH}, 0')
    a('s_cbranch_scc1 L_b_go')
    flag_check(a, flag_issue(a, vFL, vFD), vFL, vFD, 3)
    a.label('L_b_go')
    a.wait_vm0()
    a('s_barrier')
    stamp(a, 'go')
    Hooks(gB.frag_items(FIRST)).flush()
    for j in range(BPRE, B_P):
        Hooks(gB.dma_items(j)).flush()

    gB.mainloop(b_extra)
    stamp(a, 'Bend')
    gB.reduce()
    R = lambda t, j: ACC(t, 0) + j
    T = lambda t, j: ACC(t, 1) + j
    a('v_lshlrev_b32 v34, 16, v38')
    a('v_and_b32 v35, 0xffff0000, v38')
    a('v_lshlrev_b32 v36, 16, v39')
    a('v_and_b32 v37, 0xffff0000, v39')
    c0 = 0.7978845608028654
    k1 = -2.0 * c0 * LOG2E
    k2 = k1 * 0.044715
    a(f's_mov_b32 s4, {fbits(k2)}')
    a(f's_mov_b32 s5, {fbits(k2)}')
    a(f'v_mov_b32 v24, {fbits(k1)}')
    a('v_mov_b32 v26, 1.0')
    th = [(t, h) for t in range(5) for h in range(2)]
    tj = [(t, j) for t in range(5) for j in range(4)]
    for t, h in th:
        a(f'v_pk_add_f32 {V(R(t, 2 * h), 2)}, {V(R(t, 2 * h), 2)}, {V(34 + 2 * h, 2)}')
    for t, h in th:
        a(f'v_pk_mul_f32 {V(T(t, 2 * h), 2)}, {V(R(t, 2 * h), 2)}, {V(R(t, 2 * h), 2)}')
    for t, h in th:
        a(f'v_pk_fma_f32 {V(T(t, 2 * h), 2)}, {V(T(t, 2 * h), 2)}, s[4:5], v[24:25] op_sel_hi:[1,0,0]')
    for t, h in th:
        a(f'v_pk_mul_f32 {V(T(t, 2 * h), 2)}, {V(T(t, 2 * h), 2)}, {V(R(t, 2 * h), 2)}')
    for t, j in tj:
        a(f'v_exp_f32 v{T(t, j)}, v{T(t, j)}')
    for t, h in th:
        a(f'v_pk_add_f32 {V(T(t, 2 * h), 2)}, {V(T(t, 2 * h), 2)}, v[26:27] op_sel_hi:[1,0]')
    for t, j in tj:
        a(f'v_rcp_f32 v{T(t, j)}, v{T(t, j)}')
    for t, h in th:
        a(f'v_pk_mul_f32 {V(T(t, 2 * h), 2)}, {V(T(t, 2 * h), 2)}, {V(R(t, 2 * h), 2)}')
    a(f's_mul_i32 s4, s{sW8}, 2560')
    a('s_add_u32 s4, s4, 81920')
    a(f'v_lshl_add_u32 v24, v{vL}, 3, s4')
    for t in range(5):
        a(f'v_cvt_pk_bf16_f32 v{R(t, 0)}, v{T(t, 0)}, v{T(t, 1)}')
        a(f'v_cvt_pk_bf16_f32 v{R(t, 1)}, v{T(t, 2)}, v{T(t, 3)}')
        a(f'ds_write_b64 v24, {V(R(t, 0), 2)} offset:{t * 512}')
    a(f's_mul_i32 s4, s{sBDB}, 74')
    a(f's_lshl_b32 s5, s{sBCB}, 1')
    a('s_add_u32 s4, s4, s5')
    a('s_mul_i32 s4, s4, 5120')
    a(f's_add_u32 s15, s4, {GF_OFF}')
    a(f's_mul_i32 s4, s{sWH}, 10240')
    a('s_add_u32 s4, s4, 81920')
    a(f'v_lshl_add_u32 v25, v{vL}, 3, s4')
    a.wait_lg0()
    a('s_barrier')
    gt = []
    for m in range(3):
        frag10_addr(a, m, 2 * 2560 - 5 * 512, 512, 15, 24, 25, 34 + m)
        a(f'ds_read_b64 {V(ACC(m, 2), 2)}, v24')
        gt.append(a(f'ds_read_b64 {V(ACC(m, 2) + 2, 2)}, v24 offset:2560'))
    for m in range(3):
        a.wait(gt[m])
        a(f'buffer_store_dwordx4 {V(ACC(m, 2), 4)}, v{34 + m}, {S(sWS, 4)}, 0 offen sc1')
    a(f's_lshl_b32 s4, s{sBDB}, 5')
    a(f's_add_u32 s4, s4, s{sBCB}')
    a('s_lshl_b32 s4, s4, 2')
    a(f's_add_u32 s4, s4, s{sW}')
    a(f's_lshl_b32 s4, s4, {FSH}')
    a(f's_add_u32 s10, s4, {FG_OFF}')
    a('s_branch L_join')


def role_r(a):
    a('s_lshl_b32 s11, s6, 1')
    a(f's_add_u32 s11, s11, s{sWH}')
    a('s_lshr_b32 s8, s6, 3')
    a('s_lshl_b32 s8, s8, 3')
    a(f's_add_u32 s8, s8, s{sW8}')
    a('s_getpc_b64 s[6:7]')
    a.raw('L_pc:')
    a(f's_sub_u32 s{sAUX}, s6, L_pc - L_start')
    a('s_subb_u32 s7, s7, 0')
    a(f's_and_b32 s{sAUX + 1}, s7, 0xffff')
    a(f's_mov_b32 s{sAUX + 2}, L_end - L_start')
    a(f's_mov_b32 s{sAUX + 3}, 0x20000')
    a('s_lshl_b32 s6, s8, 13')
    a(f'v_lshl_add_u32 v25, v{vL}, 7, s6')
    if 'nocpf' not in EXP:
        a(f'buffer_load_dword v37, v25, {S(sAUX, 4)}, 0 offen')
    if 'notlb' not in EXP:
        a(f's_lshl_b32 s5, s8, 6')
        a(f'v_add_u32 v26, s5, v{vL}')
        a(f'v_mul_u32_u24 v27, {(WS_USED // 1024 + 127) // 128 * 128}, v26')
        a(f'buffer_load_dword v37, v27, {S(sWS, 4)}, 0 offen sc1')
        a('v_lshlrev_b32 v27, 13, v26')
        a(f'buffer_load_dword v37, v27, {S(sW2, 4)}, 0 offen')
        srd(a, sOUT, P_OUT, S_ * D_ * 2)
        a('v_lshlrev_b32 v27, 12, v26')
        a(f'buffer_load_dword v37, v27, {S(sOUT, 4)}, 0 offen sc1')
        srd(a, sAUX, P_B2, S_ * 2)
        a(f'buffer_load_dword v37, v27, {S(sAUX, 4)}, 0 offen')
    if 'wqlin' in EXP:
        srd(a, sWQ, P_WQKV, D_ * 3 * D_ * 2)
        a(f's_sub_u32 s5, s{sID}, 240')
        a('s_lshl_b32 s5, s5, 3')
        a(f's_add_u32 s5, s5, s{sW8}')
        a('s_mul_i32 s5, s5, 24576')
        a(f'v_lshl_add_u32 v26, v{vL}, 7, s5')
        for k in range(3):
            a(f'buffer_load_dword v37, v26, {S(sWQ, 4)}, 0 offen')
            a('v_add_u32 v26, 8192, v26')
    if 'w2lin' in EXP:
        a(f's_sub_u32 s5, s{sID}, 240')
        a('s_lshl_b32 s5, s5, 3')
        a(f's_add_u32 s5, s5, s{sW8}')
        a('s_lshl_b32 s5, s5, 13')
        a(f'v_lshl_add_u32 v38, v{vL}, 7, s5')
    if 'g2map8' in EXP:
        a(f's_mul_i32 s5, s8, {108 * 4096}')
        a(f's_and_b32 s7, s{sID}, 7')
        a('s_lshl_b32 s7, s7, 9')
        a('s_add_u32 s5, s5, s7')
        a(f'v_lshrrev_b32 v24, 2, v{vL}')
        a('v_lshlrev_b32 v24, 12, v24')
        a(f'v_lshl_add_u32 v24, v{vC}, 7, v24')
        a('v_add_u32 v24, s5, v24')
    else:
        a('s_mul_i32 s5, s8, 54')
        a(f's_and_b32 s7, s{sID}, 1')
        a('s_mul_i32 s7, s7, 864')
        a('s_add_u32 s5, s5, s7')
        a('s_lshl_b32 s5, s5, 12')
        a(f's_and_b32 s7, s{sID}, 6')
        a('s_lshl_b32 s7, s7, 9')
        a('s_add_u32 s5, s5, s7')
        a(f'v_lshrrev_b32 v24, 3, v{vL}')
        a(f'v_and_b32 v25, 7, v{vL}')
        a('v_lshlrev_b32 v24, 12, v24')
        a('v_lshl_add_u32 v24, v25, 7, v24')
        a('v_add_u32 v24, s5, v24')
    tag_ready(a)
    a(f'v_mov_b32 v{vFL}, {FH_OFF}')
    if 'pf2now' not in EXP:
        flag_check(a, flag_issue(a, vFL, vFD), vFL, vFD, 16)
    PFA = int(os.environ.get('PFA', '7'))
    a('v_mov_b32 v36, v38' if 'w2lin' in EXP else 'v_mov_b32 v36, v24')
    for k in range(PFA):
        a(f'buffer_load_dword v37, v36, {S(sW2, 4)}, 0 offen')
        a(f'v_add_u32 v36, {(16 if "g2map8" in EXP else 8) * 4096}, v36')
        if k % 2 == 1 and 'pf2fast' not in EXP:
            a.wait_vm0()
    stamp(a, 'prep')
    a('s_setprio 3')
    a(f's_lshl_b32 s4, s11, {4 + FSH}')
    a(f's_add_u32 s4, s4, {FK_OFF}')
    a(f'v_lshl_add_u32 v{vFL}, v{vI}, {FSH}, s4')
    a(f's_lshl_b32 s5, s{sW}, 11')
    a(f'v_lshl_add_u32 v24, v{vL}, 4, s5')
    a(f'v_lshrrev_b32 v25, 5, v{vL}')
    a(f'v_and_b32 v26, 31, v{vL}')
    a('v_lshlrev_b32 v26, 4, v26')
    a('v_lshl_add_u32 v25, v25, 11, v26')
    a('v_add_u32 v25, 1024, v25')
    a(f's_cmp_eq_u32 s{sW}, 2')
    a('s_cselect_b64 vcc, -1, 0')
    a('v_cndmask_b32 v24, v24, v25, vcc')
    a(f'v_lshrrev_b32 v25, 3, v{vL}')
    a(f'v_and_b32 v26, 7, v{vL}')
    a('v_lshlrev_b32 v26, 4, v26')
    a('v_lshl_add_u32 v25, v25, 8, v26')
    a('v_add_u32 v25, 4096, v25')
    a(f's_cmp_eq_u32 s{sW}, 3')
    a('s_cselect_b64 vcc, -1, 0')
    a('v_cndmask_b32 v24, v24, v25, vcc')
    a(f's_mul_i32 s4, s11, {16 * 6144}')
    a(f's_add_u32 s4, s4, {KV_OFF}')
    flag_check(a, flag_issue(a, vFL, vFD), vFL, vFD, 4)
    stamp(a, 'hok')
    stok = []
    for rb in range(16):
        stok.append(a(f'buffer_load_dwordx4 {V(128 + 4 * rb, 4)}, v24, {S(sWS, 4)}, s4 offen sc1'))
        a('s_add_u32 s4, s4, 6144')
    for rb in range(1, 16):
        a.wait(stok[rb])
        for h in range(2):
            a(f'v_pk_add_f32 {V(128 + 2 * h, 2)}, {V(128 + 2 * h, 2)}, {V(128 + 4 * rb + 2 * h, 2)}')
    stamp(a, 'rsum')
    a('v_cvt_pk_bf16_f32 v34, v128, v129')
    a('v_cvt_pk_bf16_f32 v35, v130, v131')
    a('s_lshl_b32 s4, s11, 11')
    a(f's_add_u32 s4, s4, {KB_OFF}')
    a(f'v_lshl_add_u32 v24, v{vTH}, 3, s4')
    a(f'buffer_store_dwordx2 v[34:35], v24, {S(sWS, 4)}, 0 offen sc1')
    a('s_lshl_b32 s4, s11, 2')
    a(f's_add_u32 s4, s4, s{sW}')
    a(f's_lshl_b32 s4, s4, {FSH}')
    a(f's_add_u32 s10, s4, {FR_OFF}')
    a.wait_vm0()
    flag_set(a, 10)
    a(f's_mov_b32 s10, {OOB}')
    stamp(a, 'rpub')
    a('s_barrier')
    for k in range(PFA, 0 if 'nopf2' in EXP else 7):
        a(f'buffer_load_dword v37, v36, {S(sW2, 4)}, 0 offen')
        a(f'v_add_u32 v36, {8 * 4096}, v36')
    a('s_branch L_join')


def role_wot(a):
    a('s_lshl_b32 s11, s6, 1')
    a(f's_add_u32 s11, s11, s{sWH}')
    srd(a, sAUX, P_WO, D_ * D_ * 2)
    a(f'v_lshlrev_b32 v{vF}, 4, v{vL}')
    a(f'v_add_u32 v{vF + 1}, 4096, v{vF}')
    tag_ready(a)
    dma160_voffs(a, 34, 1280, False, 24)
    a('s_mul_i32 s4, s11, 160')
    a(f's_mul_i32 s5, s{sW}, {160 * 1280}')
    a('s_add_u32 s7, s4, s5')
    a(f's_mul_i32 s6, s{sW8}, 20480')
    a(f'v_mul_u32_u24 v24, 20, v{vG}')
    a(f'v_add_u32 v24, v24, v{vR}')
    a('v_mul_u32_u24 v24, 160, v24')
    a(f'v_mul_u32_u24 v25, 40, v{vC}')
    a('v_add_u32 v24, v24, v25')
    a('v_add_u32 v24, s6, v24')
    a('s_mul_i32 s4, s11, 74')
    a(f's_mul_i32 s5, s{sW}, 5')
    a('s_add_u32 s4, s4, s5')
    a('s_add_u32 s4, s4, 54')
    a('s_mul_i32 s4, s4, 5120')
    a(f's_add_u32 s4, s4, {GF_OFF}')
    rounds = [[(0, 0, 0), (0, 1, 4), (1, 0, 8), (1, 1, 12), (2, 0, 16)],
              [(2, 1, 16), (3, 0, 0), (3, 1, 4), (4, 0, 8), (4, 1, 12)]]
    for rd in range(2):
        for k in range(3):
            a(f's_add_u32 s8, s7, {(rd * 80 + k * 32) * 1280}')
            dma160(a, 34, sAUX, 8, 6, k * 5120)
        a.wait_vm0()
        for u, hf, row in rounds[rd]:
            for t in range(5):
                a(f'ds_read_b64_tr_b16 {V(156 + (u * 5 + t) * 4 + 2 * hf, 2)}, v24 offset:{row * 160 + 8 * t}')
            a.wait_lg0()
    for u in range(5):
        for t in range(5):
            vo, off = (vF, t * 1024) if t < 4 else (vF + 1, 0)
            a(f'buffer_store_dwordx4 {V(156 + (u * 5 + t) * 4, 4)}, v{vo}, {S(sWS, 4)}, s4 offen offset:{off} sc1')
        a('s_add_u32 s4, s4, 5120')
    a('s_lshl_b32 s4, s11, 2')
    a(f's_add_u32 s4, s4, s{sW}')
    a(f's_lshl_b32 s4, s4, {FSH}')
    a(f's_add_u32 s10, s4, {FW_OFF}')
    a('s_barrier')


def final_gemm(a):
    a.wait_all()
    flag_set(a, 10)
    stamp(a, 'pub')
    a('s_setprio 0')
    a(f's_cmp_lg_u32 s{sWH}, 0')
    a('s_cbranch_scc1 L_fin')
    xcd_tile(a)
    g_common(a)
    g2 = GGemm(a, 'G2')
    g2.setup()
    for j in range(G2_P):
        Hooks(g2.dma_items(j)).flush()
    srd(a, sOUT, P_OUT, S_ * D_ * 2)
    R = lambda t, j: ACC(t, 0) + j
    T = lambda t, j: ACC(t, 1) + j
    srd(a, sAUX, P_B2, S_ * 2)
    a(f's_lshl_b32 s4, s{sRB}, {5 + FSH}')
    a(f's_lshl_b32 s5, s{sW}, {3 + FSH}')
    a('s_add_u32 s4, s4, s5')
    a(f's_add_u32 s4, s4, {FO_OFF}')
    a(f'v_lshl_add_u32 v34, v{vC}, {FSH + 1}, s4')
    a(f's_lshl_b32 s4, s{sHG}, 2')
    a(f's_add_u32 s4, s4, s{sW}')
    a(f's_lshl_b32 s4, s4, {FSH}')
    a(f's_add_u32 s4, s4, {FW_OFF}')
    a('v_mov_b32 v35, s4')
    a(f'v_cmp_gt_u32 vcc, 63, v{vL}')
    a(f'v_cndmask_b32 v{vFL}, v35, v{vFL}, vcc')
    for nt in range(4):
        a(f's_xor_b32 s4, s{sW}, {nt}')
        a('s_lshl_b32 s4, s4, 10')
        a(f'v_add_u32 v{vOF + nt}, s4, v{vF}')
    a(f's_mul_i32 s4, s{sRB}, 20')
    a(f's_mul_i32 s5, s{sW}, 5')
    a('s_add_u32 s4, s4, s5')
    a('s_lshl_b32 s4, s4, 12')
    a(f's_add_u32 s11, s4, {OF_OFF}')
    a(f'v_mul_u32_u24 v{vXA}, 1280, v{vTOK}')
    a(f'v_mul_u32_u24 v{vBA}, 40, v{vG}')
    a(f'v_add_u32 v{vXA}, v{vXA}, v{vBA}')
    a(f's_mul_i32 s4, s{sHG}, 160')
    a(f'v_add_u32 v{vXA}, s4, v{vXA}')
    a(f'v_lshlrev_b32 v{vBA}, 1, v{vTOK}')
    flag_check(a, flag_issue(a, vFL, vFD), vFL, vFD)
    stamp(a, 'gok')
    fl = {}

    def gate():
        a(f's_mul_i32 s4, s{sHG}, 74')
        a(f's_mul_i32 s5, s{sW}, 5')
        a('s_add_u32 s4, s4, s5')
        a('s_add_u32 s4, s4, 54')
        a('s_mul_i32 s4, s4, 5120')
        a(f's_add_u32 s{sFS}, s4, {GF_OFF}')

    def gate2():
        stamp(a, 'oa')
        flag_check(a, fl['o'], 34, 35)
        stamp(a, 'ob')

    g2.gate = gate
    g2.gate2 = gate2
    XR = [8, 10, 14, 16, 18]

    def g2_extra(j):
        it = []
        if j == 9:
            def fo():
                fl['o'] = flag_issue(a, 34, 35)
            it.append(fo)
        if j == int(os.environ.get('JRES', '16')):
            def resid():
                a(f'buffer_load_ushort v36, v{vBA}, {S(sAUX, 4)}, 0 offen')
                for t in range(5):
                    fl['x'] = a(f'buffer_load_dwordx2 {V(XR[t], 2)}, v{vXA}, {S(sX, 4)}, 0 offen offset:{8 * t}')
            it.append(resid)
        return it

    Hooks(g2.frag_items(FIRST)).flush()
    g2.mainloop(g2_extra)
    stamp(a, 'Gend')
    g2.reduce()
    a.wait(fl['x'])
    a('v_lshlrev_b32 v36, 16, v36')
    for t in range(5):
        for h in range(2):
            a(f'v_lshlrev_b32 v{T(t, 2 * h)}, 16, v{XR[t] + h}')
            a(f'v_and_b32 v{T(t, 2 * h + 1)}, 0xffff0000, v{XR[t] + h}')
            a(f'v_pk_add_f32 {V(R(t, 2 * h), 2)}, {V(R(t, 2 * h), 2)}, v[36:37] op_sel_hi:[1,0]')
            a(f'v_pk_add_f32 {V(R(t, 2 * h), 2)}, {V(R(t, 2 * h), 2)}, {V(T(t, 2 * h), 2)}')
        a(f'v_cvt_pk_bf16_f32 v{R(t, 0)}, v{R(t, 0)}, v{R(t, 1)}')
        a(f'v_cvt_pk_bf16_f32 v{R(t, 1)}, v{R(t, 2)}, v{R(t, 3)}')
        a(f'buffer_store_dwordx2 {V(R(t, 0), 2)}, v{vXA}, {S(sOUT, 4)}, 0 offen offset:{8 * t}')
    a.label('L_fin')
    stamp_flush(a, 'end')


def build():
    a = Asm()
    hdr = open(os.path.join(os.path.dirname(__file__), '..', 'cdna_kernels', NAME + '.s.ref')).read().split('\n')
    for line in hdr:
        if line.startswith(';') and '@launch' not in line:
            a.raw(line)
    a.raw(f'; @launch grid=(256,1,1) block=(512,1,1) lds={LDS_BYTES}')
    a.raw('.amdgcn_target "amdgcn-amd-amdhsa--gfx950"')
    a.raw('.text')
    K = NAME + '_kernel'
    a.raw(f'.globl {K}')
    a.raw('.p2align 8')
    a.raw(f'.type {K},@function')
    a.raw(f'{K}:')
    a.raw('L_start:')
    a('s_cmp_ge_u32 s2, 256')
    a('s_cbranch_scc1 L_end')
    a('s_load_dwordx16 s[16:31], s[0:1], 0')
    a('s_load_dwordx8 s[32:39], s[0:1], 64')
    a(f'v_and_b32 v{vL}, 63, v0')
    a('v_lshrrev_b32 v6, 6, v0')
    a(f'v_readfirstlane_b32 s{sW8}, v6')
    a(f'v_lshrrev_b32 v{vG}, 4, v{vL}')
    a(f'v_and_b32 v{vI}, 15, v{vL}')
    a(f'v_lshrrev_b32 v{vR}, 2, v{vI}')
    a(f'v_and_b32 v{vC}, 3, v{vL}')
    a(f'v_lshl_add_u32 v{vGR}, v{vG}, 2, v{vR}')
    a(f'v_and_b32 v{vTH}, 255, v0')
    a(f's_and_b32 s{sW}, s{sW8}, 3')
    a(f's_lshr_b32 s{sWH}, s{sW8}, 2')
    a(f's_mov_b32 s{sID}, s2')
    a('s_waitcnt lgkmcnt(0)')
    a(f's_add_u32 s4, s{P_WS}, {EP_OFF}')
    a(f's_addc_u32 s5, s{P_WS + 1}, 0')
    a(f's_load_dword s{sTAG}, s[4:5], 0')
    srd(a, sX, P_X, S_ * D_ * 2)
    srd(a, sWS, P_WS, WS_USED)
    srd(a, sW2, P_W2, F_ * S_ * 2)
    stamp(a, 'start')
    if 'noticket' not in EXP:
        srd(a, sAUX, P_DBG, 256)
        a(f'v_mov_b32 v8, {L_CNT + 16}')
        a(f's_cmp_lg_u32 s{sW8}, 0')
        a('s_cbranch_scc1 L_ticket_done')
        a('s_getreg_b32 s4, hwreg(HW_REG_XCC_ID)')
        a('s_mov_b32 s6, 0')
        a('s_mov_b64 exec, 1')
        a.label('L_ticket')
        a('s_and_b32 s4, s4, 7')
        a('s_lshl_b32 s5, s4, 5')
        a('v_mov_b32 v9, s5')
        a('v_mov_b32 v10, 1')
        a(f'buffer_atomic_add v10, v9, {S(sAUX, 4)}, 0 offen sc0 sc1')
        a.wait_vm0()
        a('v_readfirstlane_b32 s5, v10')
        a('s_cmp_lt_u32 s5, 32')
        a('s_cbranch_scc1 L_ticket_ok')
        a('s_add_u32 s4, s4, 1')
        a('s_add_u32 s6, s6, 1')
        a('s_cmp_lt_u32 s6, 8')
        a('s_cbranch_scc1 L_ticket')
        a.label('L_ticket_ok')
        a('s_lshl_b32 s5, s5, 3')
        a('s_add_u32 s5, s5, s4')
        a('v_mov_b32 v9, s5')
        a('ds_write_b32 v8, v9')
        a('s_mov_b64 exec, -1')
        a('s_waitcnt lgkmcnt(0)')
        a.label('L_ticket_done')
        a('s_barrier')
        a('ds_read_b32 v9, v8')
        a('s_waitcnt lgkmcnt(0)')
        a('s_barrier')
        a(f'v_readfirstlane_b32 s{sID}, v9')
        a(f's_and_b32 s{sID}, s{sID}, 255')
        a.reset_counters()
        stamp(a, 'tick')
    if os.environ.get('UPRIO', '1') != '0':
        a(f's_cmp_eq_u32 s{sWH}, 0')
        a('s_cbranch_scc1 L_prio')
        a(f's_setprio {os.environ.get("UPRIO", "1")}')
        a.label('L_prio')
    a(f's_cmp_ge_u32 s{sID}, 128')
    a('s_cbranch_scc1 L_not_a')
    role_a(a)
    a.label('L_not_a')
    a.reset_counters()
    a(f's_and_b32 s4, s{sID}, 7')
    a(f's_lshr_b32 s5, s{sID}, 3')
    a('s_sub_u32 s5, s5, 16')
    a('s_cmp_ge_u32 s5, 14')
    a('s_cbranch_scc1 L_role_r')
    a('s_and_b32 s7, s4, 1')
    a('s_add_u32 s7, s7, 13')
    a('s_cmp_ge_u32 s5, s7')
    a('s_cbranch_scc1 L_role_wot')
    a('s_mul_i32 s6, s4, 27')
    a('s_lshr_b32 s6, s6, 1')
    a('s_add_u32 s6, s6, s5')
    role_b(a)
    a.label('L_role_r')
    a.reset_counters()
    a(f's_sub_u32 s6, s{sID}, 240')
    role_r(a)
    a.label('L_role_wot')
    a.reset_counters()
    a('s_lshr_b32 s6, s4, 1')
    role_wot(a)
    a.label('L_join')
    final_gemm(a)
    a.label('L_end')
    a('s_endpgm')
    if STAMPS:
        a.raw('; STAMPS ' + ' '.join(STAMP_NAMES))
    a.raw('.section .rodata,"a"')
    a.raw(f""".p2align 6
.amdhsa_kernel {K}
  .amdhsa_next_free_vgpr 256
  .amdhsa_next_free_sgpr 102
  .amdhsa_accum_offset 256
  .amdhsa_group_segment_fixed_size 0
  .amdhsa_kernarg_size 96
  .amdhsa_user_sgpr_count 2
  .amdhsa_user_sgpr_kernarg_segment_ptr 1
  .amdhsa_system_sgpr_workgroup_id_x 1
.end_amdhsa_kernel""")
    sys.stderr.write(f'maxv={a.maxv} maxa={a.maxa} maxs={a.maxs} nops={a.nops} lines={len(a.out)}\n')
    return a.text()


if __name__ == '__main__':
    out = sys.argv[1] if len(sys.argv) > 1 else os.path.join(os.path.dirname(__file__), '..', 'cdna_kernels', NAME + '.s')
    open(out, 'w').write(build())
```

```python
import sys, struct, os
sys.path.insert(0, os.path.dirname(__file__))
from asmdsl import Asm, Rec, V, A, S

NAME = 'parallel_sum__linear_kernel_hedgehog__mixer_token_mlp__prompt'
S_, D_, F_ = 2048, 640, 1728

HF_OFF = 0
HF_SZ = 8 * 64 * 5 * 1024
GF_OFF = HF_OFF + HF_SZ
GF_SZ = 8 * 74 * 5 * 1024
OF_OFF = GF_OFF + GF_SZ
OF_SZ = 32 * 20 * 4 * 1024
XF_OFF = OF_OFF + OF_SZ
XF_SZ = 128 * 20480
WF_OFF = XF_OFF + XF_SZ
WF_SZ = 480 * 5120 + 4096
KV_OFF = WF_OFF + WF_SZ
KV_SZ = 32 * 32 * 6144
KB_OFF = KV_OFF + KV_SZ + 4096
KB_SZ = 32 * 2048
FL_OFF = KB_OFF + KB_SZ + 4096
FSH = int(os.environ.get('FSH', '6'))
FH_OFF = FL_OFF
FK_OFF = FH_OFF + (1024 << FSH)
FR_OFF = FK_OFF + (1024 << FSH)
FG_OFF = FR_OFF + (128 << FSH)
FO_OFF = FG_OFF + (1024 << FSH)
FW_OFF = FO_OFF + (1024 << FSH)
FU_OFF = FW_OFF + (128 << FSH)
EP_OFF = FU_OFF + (512 << FSH)
WS_USED = EP_OFF + 512
STAMP_OFF = WS_USED
WS_USED += 512 * 256
STAMPS = bool(int(os.environ.get('STAMPS', '0')))
EXP = os.environ.get('EXP', '').split(',') + [e for e in ['map4', 'noticket', 'notlb', 'g2map8'] if e not in os.environ.get('OFF', '').split(',')]
OOB = 0x40000000

P_X, P_WQKV, P_WPHI, P_WO, P_BX, P_W1, P_B1, P_W2, P_B2, P_OUT, P_DBG, P_WS = range(16, 40, 2)
LOG2E = 1.4426950408889634

sW = 3
sW8, sWH = 90, 91
sWS, sX, sWQ, sW1, sW2, sAUX, sOUT = 40, 44, 48, 52, 56, 60, 64
sHG, sRB, sID, sROT, sKS, sT, sM0B, sTAG = 68, 69, 70, 71, 72, 73, 74, 75
sL, sNL = 76, 78
sBDB, sBCB, sFS, sGM0, sSPIN, sLIM = 80, 81, 82, 83, 84, 85
vL, vG, vI, vR, vC = 1, 2, 3, 4, 5
vTOK, vGR = 6, 7
vFS = 42
DB = 64
XN = lambda s: DB + 8 * s
UP = lambda k: DB + 8 * k + 4

LDS_BYTES = 163840
A_SLOTS = 4
L_WQ = 0
L_RING = 102400
L_ZERO = 122880
L_WPHI = 126976
L_CNT = 131072
B_P = 10
G2_P = 5
ILV = os.environ.get('ILV', 'burst')


def kb_pos(f, t):
    if f < 32:
        return (f >> 4) * 512 + (t * 16 + (f & 15)) * 8 if t < 4 else 1024 + ((f >> 4) * 32 + (t - 4) * 16 + (f & 15)) * 8
    return 1536 + (t * 8 + f - 32) * 8


def fbits(x):
    return '0x%08x' % struct.unpack('<I', struct.pack('<f', x))[0]


def srd(a, dst, ptr, nbytes):
    a(f's_mov_b32 s{dst}, s{ptr}')
    a(f's_and_b32 s{dst + 1}, s{ptr + 1}, 0xffff')
    a(f's_mov_b32 s{dst + 2}, {nbytes}')
    a(f's_mov_b32 s{dst + 3}, 0x20000')


STAMP_NAMES = []
vST = 41


def stamp(a, name):
    if not STAMPS:
        return
    name = str(name)
    if name not in STAMP_NAMES:
        STAMP_NAMES.append(name)
    idx = STAMP_NAMES.index(name)
    a('s_memrealtime s[98:99]')
    a.wait_lg0()
    if idx == 0:
        a(f'v_mov_b32 v{vST}, 0')
        a('s_getreg_b32 s97, hwreg(HW_REG_HW_ID)')
        a(f'v_writelane_b32 v{vST}, s97, 63')
    a(f'v_writelane_b32 v{vST}, s98, {idx}')


def stamp_flush(a, n):
    if not STAMPS:
        return
    a.wait_vm0()
    stamp(a, n)
    lab = a.newlabel('st')
    a(f's_cmp_lg_u32 s{sW}, 0')
    a(f's_cbranch_scc1 {lab}')
    a(f's_lshl_b32 s4, s{sWH}, 8')
    a(f's_add_u32 s4, s4, s{sID}')
    a('s_lshl_b32 s4, s4, 8')
    a(f's_add_u32 s4, s4, {STAMP_OFF}')
    a(f'v_lshl_add_u32 v8, v{vL}, 2, s4')
    a(f'buffer_store_dword v{vST}, v8, {S(sWS, 4)}, 0 offen')
    if 'dbg1' in EXP:
        srd(a, sAUX, P_DBG, 256)
        for wg, base, sel in ((136, 0, 'start,prep,go,B_0,Bend,pub,gok,G2_0,Gend,end'), (8, 10, 'start,x,prep,go,aend,G2_9')):
            l2 = a.newlabel('dbg')
            a(f's_lshl_b32 s4, s{sWH}, 8')
            a(f's_add_u32 s4, s4, s{sID}')
            a(f's_cmp_lg_u32 s4, {wg}')
            a(f's_cbranch_scc1 {l2}')
            for k, nm in enumerate(sel.split(',')):
                if nm not in STAMP_NAMES:
                    STAMP_NAMES.append(nm)
                a(f'v_readlane_b32 s4, v{vST}, {STAMP_NAMES.index(nm)}')
                a('v_mov_b32 v9, s4')
                a('v_mov_b32 v8, 0')
                a(f'buffer_store_dword v9, v8, {S(sAUX, 4)}, 0 offen offset:{4 * (base + k)}')
            a.label(l2)
    a.label(lab)


def reduce_g(a, r, t):
    a(f'v_mov_b32 v{t}, v{r}')
    a(f'v_permlane32_swap_b32 v{r}, v{t}')
    a(f'v_add_f32 v{r}, v{r}, v{t}')
    a(f'v_mov_b32 v{t}, v{r}')
    a(f'v_permlane16_swap_b32 v{r}, v{t}')
    a(f'v_add_f32 v{r}, v{r}, v{t}')


def dma160_voffs(a, dst, stride, permute, tmp):
    t0, t2, t3 = tmp, tmp + 1, tmp + 2
    for q in range(5):
        d = dst + q
        a(f'v_add_u32 v{t0}, {q * 64}, v{vL}')
        a(f'v_mul_u32_u24 v{t2}, 6554, v{t0}')
        a(f'v_lshrrev_b32 v{t2}, 16, v{t2}')
        a(f'v_mul_u32_u24 v{t3}, 10, v{t2}')
        a(f'v_sub_u32 v{t0}, v{t0}, v{t3}')
        if permute:
            a(f'v_bfe_u32 v{t3}, v{t2}, 2, 2')
            a(f'v_lshlrev_b32 v{t3}, 3, v{t3}')
            a(f'v_and_b32 v{d}, 3, v{t2}')
            a(f'v_add_u32 v{t3}, v{t3}, v{d}')
            a(f'v_lshrrev_b32 v{t2}, 4, v{t2}')
            a(f'v_lshl_add_u32 v{t2}, v{t2}, 2, v{t3}')
        a(f'v_mul_u32_u24 v{t2}, {stride}, v{t2}')
        a(f'v_lshl_add_u32 v{d}, v{t0}, 4, v{t2}')
        if 0 < q < 4:
            a(f'v_subrev_u32 v{d}, {q * 1024}, v{d}')


def dma160(a, vo, ssrd, soff, m0_s, m0_add, nt=''):
    a(f's_add_u32 m0, s{m0_s}, {m0_add}')
    for q in range(4):
        off = f' offset:{q * 1024}' if q else ''
        a(f'buffer_load_dwordx4 v{vo + q}, {S(ssrd, 4)}, s{soff} offen{off}{nt} lds')
    a(f's_add_u32 m0, s{m0_s}, {m0_add + 4096}')
    return a(f'buffer_load_dwordx4 v{vo + 4}, {S(ssrd, 4)}, s{soff} offen{nt} lds')


class Hooks:
    def __init__(self, items=()):
        self.items = list(items)

    def run(self, n=1):
        for _ in range(n):
            if self.items:
                self.items.pop(0)()

    def flush(self):
        self.run(len(self.items))


def softmax_pm(a, P, PH, EP, EN, tmp):
    p = [P[k // 4] + k % 4 for k in range(20)]
    ep = [EP[k // 4] + k % 4 for k in range(20)]
    en = [EN[k // 4] + k % 4 for k in range(20)]
    mx, mn, sp, sn = tmp, tmp + 2, tmp + 4, tmp + 6
    a(f'v_max3_f32 v{mx}, v{p[0]}, v{p[1]}, v{p[2]}')
    a(f'v_min3_f32 v{mn}, v{p[0]}, v{p[1]}, v{p[2]}')
    for k in range(3, 19, 2):
        a(f'v_max3_f32 v{mx}, v{mx}, v{p[k]}, v{p[k + 1]}')
        a(f'v_min3_f32 v{mn}, v{mn}, v{p[k]}, v{p[k + 1]}')
    a(f'v_max_f32 v{mx}, v{mx}, v{p[19]}')
    a(f'v_min_f32 v{mn}, v{mn}, v{p[19]}')
    a(f'v_mul_f32 v{mx}, s{sNL}, v{mx}')
    a(f'v_mul_f32 v{mn}, s{sL}, v{mn}')
    for k in range(0, 20, 2):
        a(f'v_pk_fma_f32 {V(ep[k], 2)}, {V(p[k], 2)}, {S(sL, 2)}, {V(mx, 2)} op_sel_hi:[1,0,0]')
        a(f'v_pk_fma_f32 {V(en[k], 2)}, {V(p[k], 2)}, {S(sNL, 2)}, {V(mn, 2)} op_sel_hi:[1,0,0]')
    for k in range(20):
        a(f'v_exp_f32 v{ep[k]}, v{ep[k]}')
        a(f'v_exp_f32 v{en[k]}, v{en[k]}')
    a(f'v_pk_add_f32 {V(sp, 2)}, {V(ep[0], 2)}, {V(ep[2], 2)}')
    a(f'v_pk_add_f32 {V(sn, 2)}, {V(en[0], 2)}, {V(en[2], 2)}')
    for k in range(4, 20, 2):
        a(f'v_pk_add_f32 {V(sp, 2)}, {V(sp, 2)}, {V(ep[k], 2)}')
        a(f'v_pk_add_f32 {V(sn, 2)}, {V(sn, 2)}, {V(en[k], 2)}')
    a(f'v_add_f32 v{sp}, v{sp}, v{sp + 1}')
    a(f'v_add_f32 v{sn}, v{sn}, v{sn + 1}')
    a(f'v_rcp_f32 v{sp}, v{sp}')
    a(f'v_rcp_f32 v{sn}, v{sn}')
    for k in range(0, 20, 2):
        a(f'v_pk_mul_f32 {V(ep[k], 2)}, {V(ep[k], 2)}, {V(sp, 2)} op_sel_hi:[1,0]')
        a(f'v_pk_mul_f32 {V(en[k], 2)}, {V(en[k], 2)}, {V(sn, 2)} op_sel_hi:[1,0]')
    allv = ep + en
    for k in range(20):
        a(f'v_cvt_pk_bf16_f32 v{PH[k // 4] + k % 4}, v{allv[2 * k]}, v{allv[2 * k + 1]}')


def flag_set(a, s_off):
    a(f'v_lshl_add_u32 v{vFS}, v{vL}, 2, s{s_off}')
    a(f'v_mov_b32 v{vFS + 1}, s{sTAG}')
    a(f's_mov_b64 exec, {hex((1 << (1 << (FSH - 2))) - 1)}')
    a(f'buffer_store_dword v{vFS + 1}, v{vFS}, {S(sWS, 4)}, 0 offen sc1')
    a('s_mov_b64 exec, -1')


def flag_issue(a, vaddr, vdst):
    return a(f'buffer_load_dword v{vdst}, v{vaddr}, {S(sWS, 4)}, 0 offen sc1')


def flag_check(a, tok, vaddr, vdst, sleep=2):
    ok = a.newlabel('ok')
    lp = a.newlabel('poll')
    a.wait(tok)
    a(f'v_cmp_ne_u32 vcc, s{sTAG}, v{vdst}')
    a(f's_cbranch_vccz {ok}')
    a(f's_mov_b32 s{sSPIN}, 0')
    a.label(lp)
    a(f's_sleep {sleep}')
    a.raw(f'\tbuffer_load_dword v{vdst}, v{vaddr}, {S(sWS, 4)}, 0 offen sc1')
    a('s_waitcnt vmcnt(0)')
    a(f'v_cmp_ne_u32 vcc, s{sTAG}, v{vdst}')
    a(f's_cbranch_vccz {ok}')
    a(f's_add_u32 s{sSPIN}, s{sSPIN}, 1')
    a(f's_cmp_lt_u32 s{sSPIN}, 0x8000')
    a(f's_cbranch_scc1 {lp}')
    a.label(ok)


def featmap(a, ACC5, PK, WPF, P5, EP5, EN5, tmp):
    for k in range(10):
        t, j = divmod(2 * k, 4)
        a(f'v_cvt_pk_bf16_f32 v{PK[k // 4] + k % 4}, v{ACC5[t] + j}, v{ACC5[t] + j + 1}')
    for ks in range(3):
        for t in range(5):
            d = V(P5[t], 4)
            if ks < 2:
                a(f'v_mfma_f32_16x16x32_bf16 {d}, {V(WPF(t, ks), 4)}, {V(PK[ks], 4)}, {"0" if ks == 0 else d}')
            else:
                a(f'v_mfma_f32_16x16x16_bf16 {d}, {V(WPF(t, ks), 2)}, {V(PK[ks], 2)}, {d}')
    softmax_pm(a, P5, P5, EP5, EN5, tmp)


def xcd_tile(a):
    a(f's_and_b32 s4, s{sID}, 7')
    a(f's_lshr_b32 s5, s{sID}, 3')
    if 'g2map8' in EXP:
        a(f's_and_b32 s{sHG}, s5, 7')
        a('s_lshl_b32 s6, s4, 2')
        a('s_lshr_b32 s7, s5, 3')
        a(f's_add_u32 s{sRB}, s6, s7')
    else:
        a('s_and_b32 s6, s4, 1')
        a('s_lshl_b32 s6, s6, 2')
        a('s_and_b32 s7, s5, 3')
        a(f's_add_u32 s{sHG}, s6, s7')
        a('s_lshr_b32 s6, s4, 1')
        a('s_lshl_b32 s6, s6, 3')
        a('s_lshr_b32 s7, s5, 2')
        a(f's_add_u32 s{sRB}, s6, s7')
    a(f's_lshl_b32 s4, s{sRB}, 6')
    a(f's_lshl_b32 s5, s{sW}, 4')
    a('s_add_u32 s4, s4, s5')
    a(f'v_add_u32 v{vTOK}, s4, v{vI}')


def ln_scales(a, vS, vRS, vNB):
    a(f'v_mul_f32 v{vS}, {fbits(1.0 / 640)}, v{vS}')
    a(f'v_mul_f32 v{vS + 2}, {fbits(1.0 / 640)}, v{vS + 2}')
    a(f'v_fma_f32 v{vS + 2}, -v{vS}, v{vS}, v{vS + 2}')
    a(f'v_max_f32 v{vS + 2}, 0, v{vS + 2}')
    a(f'v_add_f32 v{vS + 1}, {fbits(1e-5)}, v{vS + 2}')
    a(f'v_rsq_f32 v{vRS}, v{vS + 1}')
    a(f'v_mul_f32 v{vNB}, v{vS}, v{vRS}')
    a(f'v_sub_f32 v{vNB}, 0, v{vNB}')


vD, vF, vT, vT2, vFL, vFD, vOF, vXA, vBA = 8, 12, 14, 18, 22, 23, 28, 32, 33
ACC = lambda t, nt: 44 + (nt * 5 + t) * 4
TF = lambda j, nt: 124 + (j % 2) * 16 + 4 * nt
POOL = [156 + 4 * k for k in range(25)]


class GGemm:
    def __init__(self, a, kind):
        self.a, self.kind = a, kind
        if kind == 'B':
            self.stride, self.srdm, self.n, self.fr_off, self.fr_steps = F_ * 2, sW1, 16, HF_OFF, 64
            self.sdb, self.scb, self.ntot, self.P = sBDB, sBCB, 16, B_P
        else:
            self.stride, self.srdm, self.n, self.fr_off, self.fr_steps = S_ * 2, sW2, 14, GF_OFF, 74
            self.sdb, self.scb, self.ntot, self.P = sHG, sRB, 19, G2_P
        self.dtok, self.ftok, self.ttok = {}, {}, {}
        self.free = list(POOL)
        self.reg = {}
        self.pending = []
        order = [(j, 'a') for j in range(self.n)]
        if kind == 'G2':
            order += [(j, k) for j in range(14, 19) for k in 'ab']
        for j, k in order:
            self.pending += [(j, k, x) for x in range(5 if k == 'a' else 4)]
        self.gate = lambda: None
        self.gate2 = lambda: None
        self.nq = 2 if kind == 'B' else 4

    def setup(self):
        a, st = self.a, self.stride
        a(f'v_lshrrev_b32 v24, 3, v{vL}')
        if self.kind == 'B':
            a('v_lshrrev_b32 v25, 2, v24')
            a('v_and_b32 v24, 3, v24')
            a('v_lshl_add_u32 v24, v25, 3, v24')
        a(f'v_mul_u32_u24 v24, {st}, v24')
        a(f'v_and_b32 v25, 7, v{vL}')
        a(f'v_lshlrev_b32 v26, 1, v{vG}')
        a('v_xor_b32 v25, v25, v26')
        a('v_lshl_add_u32 v24, v25, 4, v24')
        a(f's_lshl_b32 s4, s{self.scb}, 7')
        a(f's_mul_i32 s5, s{sW}, {self.n * 32 * st}')
        a('s_add_u32 s5, s5, s4')
        if self.kind == 'B':
            a(f's_mul_i32 s6, s{sWH}, {4 * st}')
            a('s_add_u32 s5, s5, s6')
            a(f's_lshl_b32 s6, s{sWH}, 11')
            a(f's_add_u32 s{sM0B}, s{sGM0}, s6')
        else:
            a(f's_mov_b32 s{sM0B}, s{sGM0}')
        for q in range(self.nq):
            row = 8 * q if self.kind != 'B' else q * 16
            a(f's_add_u32 s6, s5, {row * st - 1024 * q}')
            a(f'v_add_u32 v{vD + q}, s6, v24')
        a(f's_mul_i32 s4, s{self.sdb}, {self.fr_steps}')
        a(f's_mul_i32 s5, s{sW}, {self.n}')
        a('s_add_u32 s4, s4, s5')
        a('s_mul_i32 s4, s4, 5120')
        a(f's_add_u32 s{sFS}, s4, {self.fr_off}')
        if self.kind == 'B':
            a(f's_lshl_b32 s4, s{sW}, {6 + FSH}')
            a(f's_add_u32 s4, s4, {FH_OFF}')
            a(f'v_lshl_add_u32 v{vFL}, v{vL}, {FSH}, s4')
        else:
            a(f's_lshl_b32 s4, s{self.sdb}, {7 + FSH}')
            a(f's_mul_i32 s5, s{sW}, {28 << FSH}')
            a('s_add_u32 s4, s4, s5')
            a(f's_add_u32 s4, s4, {FG_OFF}')
            a(f's_mul_i32 s5, s{self.sdb}, {74 * 5120}')
            a(f's_add_u32 s{sLIM}, s5, {GF_OFF + 53 * 5120}')
            a(f's_cmp_eq_u32 s{sW}, 3')
            a('s_cselect_b32 s5, 23, 27')
            a(f'v_min_u32 v24, s5, v{vL}')
            a(f'v_lshl_add_u32 v{vFL}, v24, {FSH}, s4')

    def dma_items(self, j):
        a = self.a

        def one(q):
            def f():
                if q == 0:
                    a(f's_add_u32 m0, s{sM0B}, {(j % self.P) * 16384}')
                off = f' offset:{q * 1024}' if q else ''
                nt = ' nt' if ('ntb' in EXP and self.kind == 'B' and j < self.P) else ''
                self.dtok[j] = a(f'buffer_load_dwordx4 v{vD + q}, {S(self.srdm, 4)}, 0 offen{off}{nt} lds')
                if not ('hotw' in EXP):
                    a(f'v_add_u32 v{vD + q}, {32 * self.stride}, v{vD + q}')
            return f
        return [one(q) for q in range(self.nq)]

    def frag_items(self, lim=99):
        a = self.a
        out = []
        while self.free and self.pending and len(out) < lim:
            key = self.pending.pop(0)
            r = self.free.pop(0)
            self.reg[key] = r

            def f(key=key, r=r):
                j, kind, x = key
                if key == (self.n, 'a', 0):
                    self.gate()
                if key == (self.n, 'b', 0):
                    self.gate2()
                if kind == 'a' and 'b_nof' in EXP and self.kind == 'B' and j >= 5 and x > 0:
                    pass
                elif kind == 'a':
                    vo, off = (vF, x * 1024) if x < 4 else (vF + 1, 0)
                    offs = f' offset:{off}' if off else ''
                    self.ftok[j] = a(f'buffer_load_dwordx4 {V(r, 4)}, v{vo}, {S(sWS, 4)}, s{sFS} offen{offs} sc1')
                    if x == 4 and 'hotf' not in EXP:
                        a(f's_add_u32 s{sFS}, s{sFS}, 5120')
                        if self.kind == 'G2' and j < 14:
                            a(f's_min_u32 s{sFS}, s{sFS}, s{sLIM}')
                else:
                    if j - self.n == 2:
                        a(f'v_lshlrev_b32 v24, 3, v{vL}')
                        a(f'v_sub_u32 v24, v{vOF + x}, v24')
                        a(f'buffer_load_dwordx2 {V(r, 2)}, v24, {S(sWS, 4)}, s11 offen sc1')
                        self.ftok[j] = a(f'buffer_load_dwordx2 {V(r + 2, 2)}, v24, {S(sWS, 4)}, s11 offen offset:512 sc1')
                    else:
                        self.ftok[j] = a(f'buffer_load_dwordx4 {V(r, 4)}, v{vOF + x}, {S(sWS, 4)}, s11 offen sc1')
                    if x == 3:
                        a('s_add_u32 s11, s11, 4096')
            out.append(f)
        return out

    def tr_items(self, j):
        a = self.a

        def one(nt):
            def f():
                off = (j % self.P) * 16384
                base = vT
                if off >= 65536:
                    if off % 65536 == 0:
                        a(f'v_add_u32 v{vT2 + nt}, {off}, v{vT + nt}')
                    off %= 65536
                    base = vT2
                if 'b_nods' in EXP and self.kind == 'B' and j > 1 and nt > 0:
                    return
                a(f'ds_read_b64_tr_b16 {V(TF(j, nt), 2)}, v{base + nt} offset:{off}')
                self.ttok[j] = a(f'ds_read_b64_tr_b16 {V(TF(j, nt) + 2, 2)}, v{base + nt} offset:{off + 2048}')
            return f
        return [one(nt) for nt in range(4)]

    def mainloop(self, extra):
        a, n = self.a, self.n
        a.wait(self.dtok[0])
        Hooks(self.tr_items(0)).flush()
        for j in range(self.ntot):
            items = []
            if j + 1 < n:
                a.wait(self.dtok[j + 1])
            a.wait(self.ftok[j], self.ttok.get(j))
            if self.kind == 'B' and 'b_nobar' not in EXP and j + 1 < n and (j + self.P < n or j + 1 >= int(os.environ.get('BPRE', '10'))):
                a('s_barrier')
            if j % 3 == 0:
                stamp(a, f'{self.kind}_{j}')
                if STAMPS and j in (3, 9):
                    a('s_memtime s[98:99]')
                    a.wait_lg0()
                    a(f'v_writelane_b32 v{vST}, s98, {56 + (j // 9) + (2 if self.kind == "G2" else 0)}')
            if j + 1 < n:
                items += self.tr_items(j + 1)
            if j + self.P < n:
                items += self.dma_items(j + self.P)
            items += extra(j)
            lim = int(os.environ.get('LIMB' if self.kind == 'B' else 'LIMG', '10'))
            items += self.frag_items(lim if (self.kind == 'B' or j < int(os.environ.get('LIMJ', '9'))) else 10)
            last = j == self.ntot - 1
            if self.kind == 'G2' and j == 16:
                a('s_barrier')
            if last:
                a(f's_mul_i32 s7, s{sWH}, 102400')
                for nt in range(1, 4):
                    a(f's_xor_b32 s4, s{sW}, {nt}')
                    a('s_mul_i32 s4, s4, 15360')
                    a(f's_add_u32 s4, s4, {(nt - 1) * 5120}')
                    a('s_add_u32 s4, s4, s7')
                    a(f'v_add_u32 v{24 + nt}, s4, v{vF}')
                wr = [(nt, t) for nt in (1, 2, 3) for t in range(5)]
            hk = Hooks(items)
            k = 0
            ILV = os.environ.get('ILVB', 'fine') if self.kind == 'B' else os.environ.get('ILVG', 'burst')
            for nt in (1, 2, 3, 0):
                for t in range(5):
                    acc = V(ACC(t, nt), 4)
                    c = '0' if j == 0 else acc
                    fr = V(self.reg[(j, 'a', t)], 4)
                    tf = V(TF(j, nt) if j < n else self.reg[(j, 'b', nt)], 4)
                    if self.kind == 'B':
                        a(f'v_mfma_f32_16x16x32_bf16 {acc}, {tf}, {fr}, {c}')
                    else:
                        a(f'v_mfma_f32_16x16x32_bf16 {acc}, {fr}, {tf}, {c}')
                    k += 1
                    if last and k > 5:
                        wn, wt = wr.pop(0)
                        a(f'ds_write_b128 v{24 + wn}, {V(ACC(wt, wn), 4)} offset:{wt * 1024}')
                    if ILV == 'fine':
                        if k % 4 != 0:
                            hk.run()
                    elif ILV == 'burst':
                        if k <= 4 and j + 1 < n:
                            hk.run()
                    elif ILV == 'two':
                        if k <= 4 and j + 1 < n:
                            hk.run()
                        if k == 10:
                            hk.run(4)
                    elif ILV == 'pre':
                        if k == 1:
                            hk.flush()
            hk.flush()
            self.free += [r for key, r in self.reg.items() if key[0] == j]
            if n - 2 <= j < n:
                self.free += [TF(j, nt) for nt in range(4)]

    def reduce(self):
        a = self.a
        a(f's_mul_i32 s4, s{sW}, 15360')
        a('s_add_u32 s4, s4, s7')
        a(f'v_add_u32 v24, s4, v{vF}')
        a.wait_lg0()
        a('s_barrier')
        rtok = {}
        for nt in range(1, 4):
            for t in range(5):
                rtok[(nt, t)] = a(f'ds_read_b128 {V(ACC(t, nt), 4)}, v24 offset:{(nt - 1) * 5120 + t * 1024}')
        for nt in range(1, 4):
            for t in range(5):
                a.wait(rtok[(nt, t)])
                for h in range(2):
                    d = V(ACC(t, 0) + 2 * h, 2)
                    a(f'v_pk_add_f32 {d}, {d}, {V(ACC(t, nt) + 2 * h, 2)}')


def frag10_addr(a, m, hi_add, step, base_s, vrd, vrd_base, vst):
    a(f's_add_u32 s4, s{sW}, {4 * m}')
    a('s_min_u32 s5, s4, 9')
    a('s_cmp_ge_u32 s5, 5')
    a(f's_cselect_b32 s6, {hi_add}, 0')
    a(f's_mul_i32 s5, s5, {step}')
    a('s_add_u32 s5, s5, s6')
    a(f'v_add_u32 v{vrd}, s5, v{vrd_base}')
    a('s_lshl_b32 s5, s4, 10')
    a(f's_add_u32 s5, s5, s{base_s}')
    a('s_cmp_ge_u32 s4, 10')
    a(f's_cselect_b32 s5, {OOB}, s5')
    a(f'v_lshl_add_u32 v{vst}, v{vL}, 4, s5')


NTP = ' nt' if 'ntp' in EXP else ''
FIRST = int(os.environ.get('FIRST', '25'))
vTH = 40


def g_common(a):
    a(f'v_lshlrev_b32 v{vF}, 4, v{vL}')
    a(f'v_add_u32 v{vF + 1}, 4096, v{vF}')
    a(f's_lshl_b32 s{sGM0}, s{sW}, 12')
    a(f'v_bfe_u32 v25, v{vGR}, 1, 2')
    a(f'v_xor_b32 v25, s{sW}, v25')
    a(f'v_lshlrev_b32 v26, 7, v{vGR}')
    a(f'v_lshl_add_u32 v26, v{vC}, 3, v26')
    a(f'v_add_u32 v26, s{sGM0}, v26')
    for nt in range(4):
        a(f'v_xor_b32 v27, {nt}, v25')
        a(f'v_lshl_add_u32 v{vT + nt}, v27, 5, v26')


def tag_ready(a):
    a('s_waitcnt lgkmcnt(0)')
    a(f's_add_u32 s{sTAG}, s{sTAG}, 1')


def role_a(a):
    a(f's_and_b32 s4, s{sID}, 7')
    a(f's_lshr_b32 s5, s{sID}, 3')
    a('s_and_b32 s6, s4, 1')
    a('s_lshl_b32 s6, s6, 2')
    a('s_and_b32 s7, s5, 3')
    a(f's_add_u32 s{sHG}, s6, s7')
    a('s_lshr_b32 s6, s4, 1')
    a('s_lshl_b32 s6, s6, 2')
    a('s_lshr_b32 s7, s5, 2')
    a('s_add_u32 s6, s6, s7')
    a(f's_mov_b32 s{sRB}, s6')
    a('s_lshl_b32 s6, s6, 3')
    a(f's_add_u32 s15, s6, s{sHG}')
    a('s_lshl_b32 s12, s15, 1')
    a(f's_add_u32 s12, s12, s{sWH}')
    X = 156
    a('s_lshl_b32 s4, s12, 2')
    a(f's_add_u32 s4, s4, s{sW}')
    a('s_mul_i32 s4, s4, 2560')
    a(f'v_mul_u32_u24 v24, 40, v{vL}')
    xt = []
    for k in range(5):
        xt.append(a(f'buffer_load_dwordx2 {V(X + 2 * k, 2)}, v24, {S(sX, 4)}, s4 offen offset:{8 * k}{NTP}'))
    srd(a, sWQ, P_WQKV, D_ * 3 * D_ * 2)
    vLN = 8
    a(f'v_lshlrev_b32 v{vLN}, 4, v{vL}')
    a(f'v_add_u32 v{vLN + 1}, 4096, v{vLN}')
    a(f's_mul_i32 s{sM0B}, s{sW8}, 5120')
    a('s_lshl_b32 s10, s15, 2')
    a(f's_add_u32 s10, s10, s{sW}')
    a('s_mul_i32 s4, s10, 1093')
    a('s_lshr_b32 s4, s4, 16')
    a('s_mul_i32 s5, s4, 60')
    a('s_sub_u32 s5, s10, s5')
    a('s_lshr_b32 s6, s5, 1')
    a('s_and_b32 s7, s5, 1')
    a('s_add_u32 s7, s7, 1')
    a('s_sub_u32 s8, s5, 40')
    a('s_cmp_ge_u32 s5, 40')
    a('s_cselect_b32 s6, s8, s6')
    a('s_cselect_b32 s7, 0, s7')
    a(f's_mul_i32 s6, s6, {32 * 3840}')
    a('s_mul_i32 s7, s7, 1280')
    a('s_mul_i32 s4, s4, 160')
    a('s_add_u32 s6, s6, s7')
    a('s_add_u32 s6, s6, s4')
    a(f's_cmp_eq_u32 s{sWH}, 0')
    a('s_cselect_b32 s10, 480, s10')
    dma160_voffs(a, 12, 3840, True, 18)
    a('s_cmp_ge_u32 s10, 480')
    a(f's_cselect_b32 s7, {OOB}, 0')
    for q in range(5):
        a(f'v_add_u32 v{12 + q}, s7, v{12 + q}')
    utok = dma160(a, 12, sWQ, 6, sM0B, 0, NTP)
    a(f's_mul_i32 s13, s{sWH}, 24576')
    a('s_add_u32 s13, s13, 65536')
    a('s_add_u32 s14, s13, 12288')
    srd(a, sAUX, P_WPHI, 32 * 800)
    a(f's_mul_i32 s6, s{sHG}, 3200')
    a(f's_lshl_b32 s7, s{sW}, 10')
    a('s_add_u32 s6, s6, s7')
    a(f'v_lshl_add_u32 v10, v{vL}, 4, s6')
    a(f's_add_u32 m0, s7, {L_WPHI}')
    a(f'buffer_load_dwordx4 v10, {S(sAUX, 4)}, 0 offen lds')
    for k in range(4):
        a(f'v_mov_b32 v{44 + k}, 0')
    a(f'v_lshlrev_b32 v18, 4, v{vTH}')
    a(f'v_add_u32 v18, {L_ZERO}, v18')
    a('ds_write_b128 v18, v[44:47]')
    a(f'v_mov_b32 v10, {L_CNT}')
    a('v_mov_b32 v11, 0')
    a('ds_write2_b32 v10, v11, v11 offset0:0 offset1:1')
    vONE, vS, vRS, vNB = 34, 36, 168, 170
    a(f'v_mov_b32 v{vONE}, 0x3f803f80')
    for k in range(4):
        a(f'v_mov_b32 v{vS + k}, 0')
    a('s_waitcnt lgkmcnt(0)')
    a(f's_add_u32 s{sTAG}, s{sTAG}, 1')
    a.wait(xt[4])
    stamp(a, 'x')
    for k in range(10):
        a(f'v_dot2c_f32_bf16 v{vS + (k & 1)}, v{X + k}, v{vONE}')
        a(f'v_dot2c_f32_bf16 v{vS + 2 + (k & 1)}, v{X + k}, v{X + k}')
    a(f'v_add_f32 v{vS}, v{vS}, v{vS + 1}')
    a(f'v_add_f32 v{vS + 2}, v{vS + 2}, v{vS + 3}')
    for sh in (8, 4, 2, 1):
        for r in (vS, vS + 2):
            a(f'v_add_f32_dpp v{r}, v{r}, v{r} row_ror:{sh} row_mask:0xf bank_mask:0xf')
    for r in (vS, vS + 2):
        a(f'v_mov_b32 v{r + 1}, v{r}')
        a(f'v_permlane16_swap_b32 v{r}, v{r + 1}')
        a(f'v_add_f32 v{r}, v{r}, v{r + 1}')
    ln_scales(a, vS, vRS, vNB)
    a(f'v_mul_f32 v{vS + 1}, v{vRS}, v{vRS}')
    a(f'v_mov_b32 v{vS + 3}, {fbits(1e-5)}')
    a(f'v_fmac_f32 v{vS + 3}, v{vS + 1}, v{vS + 2}')
    a(f'v_rsq_f32 v{vS + 2}, v{vS + 3}')
    U = 172
    for k in range(10):
        a(f'v_lshlrev_b32 v{U + 2 * k}, 16, v{X + k}')
        a(f'v_and_b32 v{U + 2 * k + 1}, 0xffff0000, v{X + k}')
    for k in range(10):
        a(f'v_pk_fma_f32 {V(U + 2 * k, 2)}, {V(U + 2 * k, 2)}, {V(vRS, 2)}, {V(vNB, 2)} op_sel_hi:[1,0,0]')
    XQ = 192
    for k in range(10):
        a(f'v_cvt_pk_bf16_f32 v{XQ + k}, v{U + 2 * k}, v{U + 2 * k + 1}')
    for k in range(10):
        a(f'v_pk_mul_f32 {V(U + 2 * k, 2)}, {V(U + 2 * k, 2)}, {V(vS + 2, 2)} op_sel_hi:[1,0]')
    for k in range(10):
        a(f'v_cvt_pk_bf16_f32 v{X + k}, v{U + 2 * k}, v{U + 2 * k + 1}')
    a(f's_mul_i32 s4, s{sW}, {2 * 1296}')
    a('s_add_u32 s4, s4, s13')
    a(f'v_mul_u32_u24 v24, 40, v{vL}')
    a(f'v_lshrrev_b32 v25, 5, v{vL}')
    a('v_lshl_add_u32 v24, v25, 4, v24')
    a('v_add_u32 v24, s4, v24')
    for k in range(5):
        a(f'ds_write_b64 v24, {V(XQ + 2 * k, 2)} offset:{8 * k}')
    a(f'v_and_b32 v25, 7, v{vTH}')
    a(f'v_lshrrev_b32 v26, 3, v{vTH}')
    a('v_mul_u32_u24 v28, 1296, v25')
    a('v_lshl_add_u32 v28, v26, 4, v28')
    a('v_add_u32 v28, s13, v28')
    a('v_lshlrev_b32 v29, 8, v26')
    a('v_lshl_add_u32 v29, v25, 4, v29')
    a(f's_lshr_b32 s4, s12, 1')
    a('s_mul_i32 s4, s4, 20480')
    a(f's_and_b32 s5, s12, 1')
    a('s_lshl_b32 s5, s5, 7')
    a('s_add_u32 s4, s4, s5')
    a(f's_add_u32 s4, s4, {XF_OFF}')
    a('v_add_u32 v29, s4, v29')
    a('v_add_u32 v30, 8192, v29')
    a(f's_cmp_ge_u32 s{sW}, 2')
    a(f's_cselect_b32 s4, {OOB}, 16384')
    a('v_add_u32 v31, s4, v29')
    a(f's_mul_i32 s4, s{sW}, 2560')
    a('s_add_u32 s4, s4, s14')
    a(f'v_mul_u32_u24 v24, 40, v{vL}')
    a('v_add_u32 v24, s4, v24')
    for k in range(5):
        a(f'ds_write_b64 v24, {V(X + 2 * k, 2)} offset:{8 * k}')
    a(f'v_mul_u32_u24 v24, 1280, v{vR}')
    a(f'v_mul_u32_u24 v25, 160, v{vG}')
    a('v_add_u32 v24, v24, v25')
    a(f'v_mul_u32_u24 v25, 40, v{vC}')
    a('v_add_u32 v24, v24, v25')
    a('v_add_u32 v24, s14, v24')
    a(f'v_mul_u32_u24 v25, {64 * 5120}, v{vG}')
    a(f'v_lshl_add_u32 v25, v{vI}, 4, v25')
    a(f's_lshr_b32 s4, s12, 2')
    a('s_mul_i32 s4, s4, 5120')
    a(f's_and_b32 s5, s12, 3')
    a('s_lshl_b32 s5, s5, 8')
    a('s_add_u32 s4, s4, s5')
    a(f's_add_u32 s8, s4, {HF_OFF}')
    a.wait_lg0()
    a('s_barrier')
    ht = []
    for m in range(3):
        ht.append(a(f'ds_read_b128 {V(XQ + 4 * m, 4)}, v28 offset:{512 * m}'))
    for m in range(3):
        a.wait(ht[m])
        a(f'buffer_store_dwordx4 {V(XQ + 4 * m, 4)}, v{29 + m}, {S(sWS, 4)}, 0 offen sc1')
    ht = []
    for m in range(3):
        a(f's_add_u32 s4, s{sW}, {4 * m}')
        a('s_min_u32 s5, s4, 9')
        a('s_cmp_ge_u32 s5, 5')
        a(f's_cselect_b32 s6, {640 - 40}, 0')
        a(f's_cselect_b32 s7, {4 * 64 * 5120 - 5120}, 0')
        a('s_lshl_b32 s5, s5, 3')
        a('s_add_u32 s5, s5, s6')
        a('v_add_u32 v26, s5, v24')
        a(f'ds_read_b64_tr_b16 {V(U + 4 * m, 2)}, v26')
        ht.append(a(f'ds_read_b64_tr_b16 {V(U + 4 * m + 2, 2)}, v26 offset:{4 * 1280}'))
        a('s_lshl_b32 s5, s4, 10')
        a('s_add_u32 s5, s5, s7')
        a('s_add_u32 s5, s5, s8')
        a('s_cmp_ge_u32 s4, 10')
        a(f's_cselect_b32 s5, {OOB}, s5')
        a(f'v_add_u32 v{34 + m}, s5, v25')
    for m in range(3):
        a.wait(ht[m])
        a(f'buffer_store_dwordx4 {V(U + 4 * m, 4)}, v{34 + m}, {S(sWS, 4)}, 0 offen sc1')
    hst = ('vm', a.vm_issued - 1)
    a(f'v_mul_u32_u24 v29, 160, v{vGR}')
    a(f'v_mul_u32_u24 v24, 40, v{vC}')
    a('v_add_u32 v29, v29, v24')
    a(f'v_add_u32 v29, s{sM0B}, v29')
    a('s_mul_i32 s4, s10, 5120')
    a(f's_add_u32 s4, s4, {WF_OFF}')
    a('s_cmp_ge_u32 s10, 480')
    a(f's_cselect_b32 s4, {OOB}, s4')
    a(f'v_add_u32 v24, s4, v{vLN}')
    a(f'v_add_u32 v25, s4, v{vLN + 1}')
    a(f's_lshl_b32 s5, s10, {FSH}')
    a(f's_add_u32 s5, s5, {FU_OFF}')
    a('s_cmp_ge_u32 s10, 480')
    a(f's_cselect_b32 s10, {OOB}, s5')
    a.wait(utok)
    ut = []
    for t in range(5):
        a(f'ds_read_b64_tr_b16 {V(UP(t), 2)}, v29 offset:{8 * t}')
        ut.append(a(f'ds_read_b64_tr_b16 {V(UP(t) + 2, 2)}, v29 offset:{8 * t + 2560}'))
    for t in range(5):
        a.wait(ut[t])
        vo, off = (24, t * 1024) if t < 4 else (25, 0)
        a(f'buffer_store_dwordx4 {V(UP(t), 4)}, v{vo}, {S(sWS, 4)}, 0 offen offset:{off} sc1')
    a(f's_lshl_b32 s4, s{sWH}, 2')
    a(f's_add_u32 s4, s4, {L_CNT}')
    a('v_mov_b32 v10, s4')
    a('v_mov_b32 v11, 1')
    a.wait(hst)
    a('s_mov_b64 exec, 1')
    a('ds_add_rtn_u32 v11, v10, v11')
    a('s_mov_b64 exec, -1')
    a.wait_lg0()
    a('v_readfirstlane_b32 s5, v11')
    a(f's_lshl_b32 s4, s12, {FSH}')
    a(f's_add_u32 s4, s4, {FH_OFF}')
    a('s_cmp_lg_u32 s5, 3')
    a('s_cbranch_scc1 L_nofh')
    flag_set(a, 4)
    a.label('L_nofh')
    a.wait_vm0()
    flag_set(a, 10)
    stamp(a, 'prep')
    a(f's_mov_b32 s{sL}, {fbits(LOG2E)}')
    a(f's_mov_b32 s{sL + 1}, {fbits(LOG2E)}')
    a(f's_mov_b32 s{sNL}, {fbits(-LOG2E)}')
    a(f's_mov_b32 s{sNL + 1}, {fbits(-LOG2E)}')
    a(f's_mul_i32 s10, s{sHG}, 60')
    a(f's_lshl_b32 s4, s10, {FSH}')
    a(f's_add_u32 s4, s4, {FU_OFF}')
    a(f'v_lshl_add_u32 v20, v{vL}, {FSH}, s4')
    a(f's_lshl_b32 s11, s{sRB}, 2')
    a(f's_add_u32 s11, s11, s{sW}')
    a(f's_lshl_b32 s4, s11, {FSH + 2}')
    a(f's_add_u32 s4, s4, {FH_OFF}')
    a(f'v_lshl_add_u32 v21, v{vC}, {FSH}, s4')
    a(f'v_cmp_gt_u32 vcc, 60, v{vL}')
    a('v_cndmask_b32 v20, v21, v20, vcc')
    a(f's_add_u32 s10, s10, s{sW}')
    a('s_mul_i32 s10, s10, 5120')
    a(f's_add_u32 s10, s10, {WF_OFF}')
    a(f's_add_u32 s9, s10, {40 * 5120}')
    a(f's_mul_i32 s{sM0B}, s{sW}, 5120')
    a('s_mul_i32 s11, s11, 40960')
    a(f's_add_u32 s11, s11, {XF_OFF}')
    a(f'v_add_u32 v10, 20480, v{vLN}')
    a(f'v_add_u32 v26, {L_RING}, v{vLN}')
    a(f'v_add_u32 v27, 61440, v{vLN}')

    def wphi_frags(WPF, wbase, zbase):
        a(f'v_mul_u32_u24 v22, 800, v{vG}')
        a(f'v_mul_u32_u24 v23, 40, v{vR}')
        a('v_add_u32 v22, v22, v23')
        a(f'v_add_u32 v22, {wbase}, v22')
        a(f'v_mov_b32 v23, {zbase}')
        a(f'v_cmp_eq_u32 vcc, v{vG}, v{vC}')
        a('v_cndmask_b32 v22, v23, v22, vcc')
        for t in range(5):
            for d4 in range(5):
                a(f'ds_read_b64_tr_b16 {V(WPF(t, d4 // 2) + 2 * (d4 % 2), 2)}, v22 offset:{4 * d4 * 40 + 8 * t}')

    Q = lambda k: 48 + 4 * k
    WPF = lambda t, ks: Q(2 * t + ks) if ks < 2 else Q(10 + t // 2) + 2 * (t % 2)
    a('s_barrier')
    wphi_frags(WPF, L_WPHI, L_ZERO)
    a.wait_lg0()
    a('s_barrier')
    flag_check(a, flag_issue(a, 20, 21), 20, 21)
    stamp(a, 'go')

    def xload(dst, ks, z):
        off = f' offset:{(ks % 4) * 1024}' if ks % 4 else ''
        t = a(f'buffer_load_dwordx4 {V(dst, 4)}, v{vLN if z == 0 else 10}, {S(sWS, 4)}, s11 offen{off} sc1')
        if ks % 4 == 3 and z == 1:
            a('s_add_u32 s11, s11, 4096')
        return t

    a(f's_cmp_lg_u32 s{sWH}, 0')
    a('s_cbranch_scc1 L_a_upper')
    at_split = a.save()
    a('s_setprio 2')
    AC = lambda k, z: Q(13 + 2 * k + z)
    XR = lambda ks, z: Q(33 + (ks % 6) * 2 + z)
    FW = lambda n: Q(45 + n % 7)
    xtok = {}
    for ks in range(5):
        for z in range(2):
            xtok[ks] = xload(XR(ks, z), ks, z)
    a('s_barrier')
    stamp(a, 'a0')
    WIN, NF = 6, 200
    ftok = {}

    def read_frag(n):
        d, r = divmod(n, 20)
        ftok[n] = a(f'ds_read_b128 {V(FW(n), 4)}, v26 offset:{(d % 3) * 20480 + r * 1024}')

    for n in range(WIN):
        read_frag(n)
    for n in range(NF):
        nn = n + WIN
        if nn < NF:
            if nn % 20 == 0:
                a.wait_lg0()
                a('s_barrier')
                if (nn // 20) % 3 == 0:
                    stamp(a, f'a{nn // 20}')
            read_frag(nn)
        ks, k = divmod(n, 10)
        a.wait(ftok[n], xtok[ks])
        for z in range(2):
            c = '0' if ks == 0 else V(AC(k, z), 4)
            a(f'v_mfma_f32_16x16x32_bf16 {V(AC(k, z), 4)}, {V(FW(n), 4)}, {V(XR(ks, z), 4)}, {c}')
        if k in (2, 6) and ks + 5 < 20:
            xtok[ks + 5] = xload(XR(ks + 5, k // 4), ks + 5, k // 4)
    a('s_barrier')
    stamp(a, 'aend')
    vSA, vKA, vKO = 8, 9, 12
    a(f's_lshl_b32 s4, s{sW}, 5')
    a(f'v_lshl_add_u32 v{vSA}, v{vG}, 7, v{vI}')
    a(f'v_add_u32 v{vSA}, s4, v{vSA}')
    a(f'v_mul_u32_u24 v{vSA}, 120, v{vSA}')
    a(f'v_add_u32 v{vSA}, {L_RING}, v{vSA}')
    for z in range(2):
        for t in range(5):
            r = AC(5 + t, z)
            a(f'v_cvt_pk_bf16_f32 v{r}, v{r}, v{r + 1}')
            a(f'v_cvt_pk_bf16_f32 v{r + 1}, v{r + 2}, v{r + 3}')
            a(f'ds_write_b64 v{vSA}, {V(r, 2)} offset:{z * 16 * 120 + 80 + 8 * t}')
    PK = [Q(33), Q(34), Q(35)]
    EN5 = [Q(36 + c) for c in range(5)]
    for z in range(2):
        E5 = [AC(t, z) for t in range(5)]
        P5 = [Q(41 + 5 * z + c) for c in range(5)]
        featmap(a, E5, PK, WPF, P5, E5, EN5, 32)
        for c in range(10):
            a(f'ds_write_b64 v{vSA}, {V(P5[c // 2] + 2 * (c % 2), 2)} offset:{z * 16 * 120 + 8 * c}')
    stamp(a, 'fm')
    a(f's_mul_i32 s4, s{sW}, {128 * 120}')
    a(f's_add_u32 s4, s4, {L_RING}')
    a(f'v_mul_u32_u24 v{vKA}, 120, v{vGR}')
    a(f'v_lshl_add_u32 v{vKA}, v{vC}, 3, v{vKA}')
    a(f'v_add_u32 v{vKA}, s4, v{vKA}')
    a(f's_lshl_b32 s4, s{sHG}, 2')
    a(f's_add_u32 s4, s4, s{sW}')
    a('s_lshl_b32 s4, s4, 4')
    a(f's_add_u32 s13, s4, s{sRB}')
    a('s_mul_i32 s4, s13, 6144')
    a(f's_add_u32 s4, s4, {KV_OFF}')
    a(f'v_lshl_add_u32 v{vKO}, v{vL}, 4, s4')
    a('s_movk_i32 s12, 0x1000')
    a(f'v_mov_b32 v11, {OOB}')
    a(f'v_cmp_gt_u32 vcc, 8, v{vI}')
    a(f'v_cndmask_b32 v{vKO + 1}, v11, v{vKO}, vcc')
    a(f'v_cmp_gt_u32 vcc, 2, v{vG}')
    a(f'v_cndmask_b32 v{vKO + 2}, v11, v{vKO}, vcc')
    a(f'v_cndmask_b32 v{vKO + 3}, v11, v{vKO + 1}, vcc')
    a(f's_lshl_b32 s13, s13, {FSH}')
    a(f's_add_u32 s10, s13, {FK_OFF}')
    a('v_mov_b32 v11, 0x3f803f80')
    a(f'v_cmp_eq_u32 vcc, 1, v{vR}')
    a.wait_lg0()
    a('s_barrier')
    ktok = {}
    OPQ = lambda kk, x: Q(13 + kk * 5 + x)
    KVA = [Q(k) for k in range(6)]

    def kv_read(kk):
        for x in range(5):
            col = 32 * x if x < 3 else 80 + 32 * (x - 3)
            a(f'ds_read_b64_tr_b16 {V(OPQ(kk, x), 2)}, v{vKA} offset:{kk * 32 * 120 + col}')
            ktok[kk] = a(f'ds_read_b64_tr_b16 {V(OPQ(kk, x) + 2, 2)}, v{vKA} offset:{kk * 32 * 120 + 16 * 120 + col}')

    kv_read(0)
    for kk in range(4):
        if kk + 1 < 4:
            kv_read(kk + 1)
        a.wait(ktok[kk])
        for j in range(4):
            a(f'v_cndmask_b32 v{OPQ(kk, 4) + j}, v{OPQ(kk, 4) + j}, v11, vcc')
        for et in range(2):
            for ft in range(3):
                d = V(KVA[ft * 2 + et], 4)
                a(f'v_mfma_f32_16x16x32_bf16 {d}, {V(OPQ(kk, 3 + et), 4)}, {V(OPQ(kk, ft), 4)}, {"0" if kk == 0 else d}')
    for ft in range(3):
        for et in range(2):
            vo = vKO + (1 if ft == 2 else 0) + (2 if et == 1 else 0)
            so = 's12' if ft == 2 else '0'
            a(f'buffer_store_dwordx4 {V(KVA[ft * 2 + et], 4)}, v{vo}, {S(sWS, 4)}, {so} offen offset:{(ft % 2) * 2048 + et * 1024} sc1')
    a.wait_vm0()
    flag_set(a, 10)
    a(f's_mov_b32 s10, {OOB}')
    a('s_barrier')
    a('s_branch L_join')

    a.label('L_a_upper')
    a.restore(at_split)
    wtok = {}

    def dma5(so, lds):
        a(f's_add_u32 m0, s{sM0B}, {lds}')
        for q in range(4):
            off = f' offset:{q * 1024}' if q else ''
            a(f'buffer_load_dwordx4 v{vLN}, {S(sWS, 4)}, s{so} offen{off} sc1 lds')
        a(f's_add_u32 m0, s{sM0B}, {lds + 4096}')
        t = a(f'buffer_load_dwordx4 v{vLN + 1}, {S(sWS, 4)}, s{so} offen sc1 lds')
        a(f's_add_u32 s{so}, s{so}, 20480')
        return t

    NXR = 12
    XQ_ = lambda ks, z: Q(13 + (ks % NXR) * 2 + z)
    AQ = lambda t, z: Q(37 + 2 * t + z)
    FQ = lambda n: Q(47 + n % 5)
    xtok = {}
    for d in range(3):
        wtok[d] = dma5(10, L_RING + d * 20480)
    for d in range(10):
        a.wait(wtok[d])
        a('s_barrier')
        if 1 <= d and d + 2 < 10:
            wtok[d + 2] = dma5(10, L_RING + ((d + 2) % 3) * 20480)
        if d < 5:
            qtok = dma5(9, L_WQ + d * 20480)
        if 4 <= d < 10:
            for ks in (2 * (d - 4), 2 * (d - 4) + 1):
                for z in range(2):
                    xtok[ks] = xload(XQ_(ks, z), ks, z)
    a.wait(qtok)
    a('s_barrier')
    ftok = {}

    def read_q(n):
        off = n * 1024
        ftok[n] = a(f'ds_read_b128 {V(FQ(n), 4)}, v{vLN if off < 61440 else 27} offset:{off % 61440}')

    QBAR = int(os.environ.get('QBAR', '-1'))
    if QBAR < 0:
        a('s_barrier')
    for n in range(4):
        read_q(n)
    for n in range(100):
        if n + 4 < 100:
            read_q(n + 4)
        ks, t = divmod(n, 5)
        a.wait(ftok[n], xtok[ks])
        for z in range(2):
            c = '0' if ks == 0 else V(AQ(t, z), 4)
            a(f'v_mfma_f32_16x16x32_bf16 {V(AQ(t, z), 4)}, {V(FQ(n), 4)}, {V(XQ_(ks, z), 4)}, {c}')
        if t in (1, 3) and ks >= 1 and ks - 1 + NXR < 20:
            xtok[ks - 1 + NXR] = xload(XQ_(ks - 1 + NXR, t // 2), ks - 1 + NXR, t // 2)
        if n == QBAR:
            a('s_barrier')
    a('s_barrier')
    stamp(a, 'aend')
    PK = [Q(13), Q(14), Q(15)]
    EN5 = [Q(16 + c) for c in range(5)]
    PP = [[Q(21 + 5 * z + c) for c in range(5)] for z in range(2)]
    for z in range(2):
        E5 = [AQ(t, z) for t in range(5)]
        featmap(a, E5, PK, WPF, PP[z], E5, EN5, 32)
    stamp(a, 'fm')
    a('s_setprio 3')
    a(f's_mul_i32 s6, s{sW}, 10240')
    a(f's_add_u32 s6, s6, {L_RING}')
    a(f'v_lshlrev_b32 v31, 11, v{vG}')
    a(f'v_lshl_add_u32 v31, v{vR}, 3, v31')
    a('v_mov_b32 v21, 8192')
    a(f'v_cmp_eq_u32 vcc, v{vG}, v{vC}')
    a('v_cndmask_b32 v31, v21, v31, vcc')
    a('v_add_u32 v31, s6, v31')
    for k in range(4):
        a(f'v_mov_b32 v{44 + k}, 0')
    a(f'v_add_u32 v21, s6, v{vLN}')
    a('ds_write_b128 v21, v[44:47] offset:8192')
    a('ds_write_b128 v21, v[44:47] offset:9216')
    a(f's_lshl_b32 s4, s{sHG}, {4 + FSH}')
    a(f's_add_u32 s4, s4, {FR_OFF}')
    a(f'v_lshl_add_u32 v20, v{vI}, {FSH}, s4')
    a(f'v_lshlrev_b32 v8, 4, v{vL}')
    a('v_add_u32 v9, 4096, v8')
    a(f'v_lshlrev_b32 v10, 3, v{vL}')
    a(f's_lshl_b32 s5, s{sHG}, 13')
    a(f's_add_u32 s5, s5, {KB_OFF}')
    a(f's_lshl_b32 s7, s{sRB}, 1')
    a(f's_lshr_b32 s8, s{sW}, 1')
    a('s_add_u32 s7, s7, s8')
    a(f's_and_b32 s8, s{sW}, 1')
    a('s_lshl_b32 s8, s8, 1')
    a(f's_lshr_b32 s12, s{sHG}, 1')
    a('s_mul_i32 s12, s12, 5')
    a('s_mul_i32 s13, s7, 20')
    a('s_add_u32 s12, s12, s13')
    a('s_lshl_b32 s12, s12, 2')
    a('s_add_u32 s12, s12, s8')
    a('s_lshl_b32 s12, s12, 10')
    a(f's_add_u32 s12, s12, {OF_OFF}')
    a(f's_and_b32 s13, s{sHG}, 1')
    a(f's_mul_i32 s14, s13, {3 * 4096}')
    a('s_add_u32 s14, s14, s12')
    a('s_lshl_b32 s13, s13, 9')
    a('s_add_u32 s12, s12, s13')
    a(f's_add_u32 s12, s12, {2 * 4096}')
    a('s_lshl_b32 s13, s7, 3')
    a(f's_add_u32 s13, s13, s{sHG}')
    a('s_lshl_b32 s13, s13, 2')
    a('s_add_u32 s13, s13, s8')
    a(f's_lshl_b32 s13, s13, {FSH}')
    a(f's_add_u32 s13, s13, {FO_OFF}')
    flag_check(a, flag_issue(a, 20, 21), 20, 21, int(os.environ.get('RSLEEP', '8')))
    stamp(a, 'rok')
    for hh in range(2):
        a(f's_add_u32 m0, s6, {4096 * hh}')
        for q in range(4):
            off = f' offset:{q * 1024}' if q else ''
            a(f'buffer_load_dwordx4 v{8 + hh}, {S(sWS, 4)}, s5 offen{off} sc1 lds')
    a.wait_all()
    OA = [[Q(31 + k) for k in range(6)], [Q(37 + k) for k in range(6)]]
    KF = lambda ks, t: Q((ks % 2) * 6 + t)
    otok = {}

    def o_read(ks):
        for t in range(6):
            a(f'ds_read_b64_tr_b16 {V(KF(ks, t), 2)}, v31 offset:{kb_pos(8 * ks, t)}')
            otok[ks] = a(f'ds_read_b64_tr_b16 {V(KF(ks, t) + 2, 2)}, v31 offset:{kb_pos(8 * ks + 4, t)}')

    o_read(0)
    for ks in range(5):
        if ks + 1 < 5:
            o_read(ks + 1)
        a.wait(otok[ks])
        for z in range(2):
            for t in range(6):
                d = V(OA[z][t], 4)
                a(f'v_mfma_f32_16x16x32_bf16 {d}, {V(KF(ks, t), 4)}, {V(PP[z][ks], 4)}, {"0" if ks == 0 else d}')
    for z in range(2):
        O = OA[z]
        PO = PK if z == 0 else [Q(16), Q(17), Q(18)]
        a(f'v_add_f32 v{O[5]}, {fbits(1e-6)}, v{O[5]}')
        a(f'v_rcp_f32 v{O[5]}, v{O[5]}')
        for t in range(5):
            for h in range(2):
                a(f'v_pk_mul_f32 {V(O[t] + 2 * h, 2)}, {V(O[t] + 2 * h, 2)}, {V(O[5], 2)} op_sel_hi:[1,0]')
        for k in range(10):
            t, j = divmod(2 * k, 4)
            a(f'v_cvt_pk_bf16_f32 v{PO[k // 4] + k % 4}, v{O[t] + j}, v{O[t] + j + 1}')
        off = f' offset:{1024 * z}' if z else ''
        a(f'buffer_store_dwordx4 {V(PO[0], 4)}, v8, {S(sWS, 4)}, s14 offen{off} sc1')
        a(f'buffer_store_dwordx4 {V(PO[1], 4)}, v9, {S(sWS, 4)}, s14 offen{off} sc1')
        a(f'buffer_store_dwordx2 {V(PO[2], 2)}, v10, {S(sWS, 4)}, s12 offen{off} sc1')
    a.wait_vm0()
    flag_set(a, 13)
    a(f's_cmp_lg_u32 s{sID}, 0')
    a('s_cbranch_scc1 L_a_done')
    a(f's_cmp_lg_u32 s{sW}, 3')
    a('s_cbranch_scc1 L_a_done')
    a(f'v_and_b32 v20, 31, v{vL}')
    a('v_min_u32 v20, 26, v20')
    a(f'v_and_b32 v21, 32, v{vL}')
    a('v_add_u32 v20, v20, v21')
    a(f'v_lshlrev_b32 v20, {FSH + 2}, v20')
    for k in range(4):
        a(f'v_add_u32 v22, {FG_OFF + (k * 256 << FSH)}, v20')
        flag_check(a, flag_issue(a, 22, 21), 22, 21, 12)
    a(f'v_lshlrev_b32 v20, {FSH}, v{vL}')
    for base in (FR_OFF, FR_OFF + (64 << FSH)):
        a(f'v_add_u32 v22, {base}, v20')
        flag_check(a, flag_issue(a, 22, 21), 22, 21, 12)
    a(f'v_and_b32 v20, 31, v{vL}')
    a(f'v_lshlrev_b32 v20, {FSH}, v20')
    a(f'v_add_u32 v22, {FW_OFF}, v20')
    flag_check(a, flag_issue(a, 22, 21), 22, 21, 12)
    a(f's_mov_b32 s10, {EP_OFF}')
    flag_set(a, 10)
    a.label('L_a_done')
    stamp_flush(a, 'end')
    a('s_endpgm')


def role_b(a):
    if 'map4' in EXP:
        a(f's_lshr_b32 s{sBCB}, s6, 2')
        a('s_and_b32 s9, s6, 3')
        a('s_lshl_b32 s6, s9, 1')
    else:
        a('s_cmp_ge_u32 s6, 54')
        a('s_cselect_b32 s7, 54, 0')
        a('s_cselect_b32 s8, 4, 0')
        a('s_sub_u32 s6, s6, s7')
        a(f's_lshr_b32 s{sBCB}, s6, 1')
        a('s_and_b32 s9, s6, 1')
        a('s_lshl_b32 s6, s9, 1')
        a('s_add_u32 s6, s6, s8')
    PR = 24 if 'map4' in EXP else 48
    a(f's_add_u32 s{sBDB}, s6, s{sWH}')
    srd(a, sW1, P_W1, S_ * F_ * 2)
    g_common(a)
    gB = GGemm(a, 'B')
    gB.setup()
    BPRE = int(os.environ.get('BPRE', '10'))
    if 'g1lin' in EXP:
        a(f's_lshl_b32 s4, s{sBCB}, 2')
        a('s_add_u32 s4, s4, s9')
        a('s_lshl_b32 s4, s4, 3')
        a(f's_add_u32 s4, s4, s{sW8}')
        a('s_lshl_b32 s4, s4, 13')
        a(f'v_lshl_add_u32 v24, v{vL}, 7, s4')
        a(f'buffer_load_dword v37, v24, {S(sW1, 4)}, 0 offen')
        if 'g1wait' in EXP:
            a.wait_vm0()
    if 'g1first' in EXP:
        a('s_lshl_b32 s4, s9, 1')
        a(f's_add_u32 s4, s4, s{sWH}')
        a(f's_lshl_b32 s5, s{sW}, 9')
        a('s_add_u32 s4, s4, s5')
        a(f's_mul_i32 s4, s4, {F_ * 2}')
        a(f's_lshl_b32 s5, s{sBCB}, 7')
        a('s_add_u32 s4, s4, s5')
        a(f'v_mul_u32_u24 v24, {8 * F_ * 2}, v{vL}')
        a('v_add_u32 v24, s4, v24')
        a(f'buffer_load_dword v37, v24, {S(sW1, 4)}, 0 offen')
    for j in range(BPRE):
        Hooks(gB.dma_items(j)).flush()

    def b_extra(j):
        return []

    a('s_lshl_b32 s4, s9, 1')
    a(f's_add_u32 s4, s4, s{sWH}')
    a(f's_mul_i32 s4, s4, {PR}')
    a(f's_lshl_b32 s5, s{sW}, 9')
    a('s_add_u32 s4, s4, s5')
    a(f's_add_u32 s4, s4, {32 * B_P}')
    a(f's_mul_i32 s4, s4, {F_ * 2}')
    a(f's_lshl_b32 s5, s{sBCB}, 7')
    a('s_add_u32 s4, s4, s5')
    a(f'v_min_u32 v24, {PR - 1}, v{vL}')
    a(f'v_mul_u32_u24 v24, {F_ * 2}, v24')
    a('v_add_u32 v24, s4, v24')
    if 'g1first' not in EXP:
        a(f'buffer_load_dword v37, v24, {S(sW1, 4)}, 0 offen')
    srd(a, sAUX, P_B1, F_ * 2)
    a(f's_lshl_b32 s4, s{sBCB}, 7')
    a(f's_lshl_b32 s5, s{sW}, 5')
    a('s_add_u32 s4, s4, s5')
    a(f'v_lshl_add_u32 v24, v{vG}, 3, s4')
    a(f'buffer_load_dwordx2 v[38:39], v24, {S(sAUX, 4)}, 0 offen')
    tag_ready(a)
    a('s_barrier')
    stamp(a, 'prep')
    a(f's_cmp_lg_u32 s{sWH}, 0')
    a('s_cbranch_scc1 L_b_go')
    flag_check(a, flag_issue(a, vFL, vFD), vFL, vFD, 3)
    a.label('L_b_go')
    a.wait_vm0()
    a('s_barrier')
    stamp(a, 'go')
    Hooks(gB.frag_items(int(os.environ.get('FIRSTB', '25')))).flush()
    for j in range(BPRE, B_P):
        Hooks(gB.dma_items(j)).flush()

    gB.mainloop(b_extra)
    stamp(a, 'Bend')
    gB.reduce()
    R = lambda t, j: ACC(t, 0) + j
    T = lambda t, j: ACC(t, 1) + j
    a('v_lshlrev_b32 v34, 16, v38')
    a('v_and_b32 v35, 0xffff0000, v38')
    a('v_lshlrev_b32 v36, 16, v39')
    a('v_and_b32 v37, 0xffff0000, v39')
    c0 = 0.7978845608028654
    k1 = -2.0 * c0 * LOG2E
    k2 = k1 * 0.044715
    a(f's_mov_b32 s4, {fbits(k2)}')
    a(f's_mov_b32 s5, {fbits(k2)}')
    a(f'v_mov_b32 v24, {fbits(k1)}')
    a('v_mov_b32 v26, 1.0')
    th = [(t, h) for t in range(5) for h in range(2)]
    tj = [(t, j) for t in range(5) for j in range(4)]
    for t, h in th:
        a(f'v_pk_add_f32 {V(R(t, 2 * h), 2)}, {V(R(t, 2 * h), 2)}, {V(34 + 2 * h, 2)}')
    for t, h in th:
        a(f'v_pk_mul_f32 {V(T(t, 2 * h), 2)}, {V(R(t, 2 * h), 2)}, {V(R(t, 2 * h), 2)}')
    for t, h in th:
        a(f'v_pk_fma_f32 {V(T(t, 2 * h), 2)}, {V(T(t, 2 * h), 2)}, s[4:5], v[24:25] op_sel_hi:[1,0,0]')
    for t, h in th:
        a(f'v_pk_mul_f32 {V(T(t, 2 * h), 2)}, {V(T(t, 2 * h), 2)}, {V(R(t, 2 * h), 2)}')
    for t, j in tj:
        a(f'v_exp_f32 v{T(t, j)}, v{T(t, j)}')
    for t, h in th:
        a(f'v_pk_add_f32 {V(T(t, 2 * h), 2)}, {V(T(t, 2 * h), 2)}, v[26:27] op_sel_hi:[1,0]')
    for t, j in tj:
        a(f'v_rcp_f32 v{T(t, j)}, v{T(t, j)}')
    for t, h in th:
        a(f'v_pk_mul_f32 {V(T(t, 2 * h), 2)}, {V(T(t, 2 * h), 2)}, {V(R(t, 2 * h), 2)}')
    a(f's_mul_i32 s4, s{sW8}, 2560')
    a('s_add_u32 s4, s4, 81920')
    a(f'v_lshl_add_u32 v24, v{vL}, 3, s4')
    for t in range(5):
        a(f'v_cvt_pk_bf16_f32 v{R(t, 0)}, v{T(t, 0)}, v{T(t, 1)}')
        a(f'v_cvt_pk_bf16_f32 v{R(t, 1)}, v{T(t, 2)}, v{T(t, 3)}')
        a(f'ds_write_b64 v24, {V(R(t, 0), 2)} offset:{t * 512}')
    a(f's_mul_i32 s4, s{sBDB}, 74')
    a(f's_lshl_b32 s5, s{sBCB}, 1')
    a('s_add_u32 s4, s4, s5')
    a('s_mul_i32 s4, s4, 5120')
    a(f's_add_u32 s15, s4, {GF_OFF}')
    a(f's_mul_i32 s4, s{sWH}, 10240')
    a('s_add_u32 s4, s4, 81920')
    a(f'v_lshl_add_u32 v25, v{vL}, 3, s4')
    a.wait_lg0()
    a('s_barrier')
    gt = []
    for m in range(3):
        frag10_addr(a, m, 2 * 2560 - 5 * 512, 512, 15, 24, 25, 34 + m)
        a(f'ds_read_b64 {V(ACC(m, 2), 2)}, v24')
        gt.append(a(f'ds_read_b64 {V(ACC(m, 2) + 2, 2)}, v24 offset:2560'))
    for m in range(3):
        a.wait(gt[m])
        a(f'buffer_store_dwordx4 {V(ACC(m, 2), 4)}, v{34 + m}, {S(sWS, 4)}, 0 offen sc1')
    a(f's_lshl_b32 s4, s{sBDB}, 5')
    a(f's_add_u32 s4, s4, s{sBCB}')
    a('s_lshl_b32 s4, s4, 2')
    a(f's_add_u32 s4, s4, s{sW}')
    a(f's_lshl_b32 s4, s4, {FSH}')
    a(f's_add_u32 s10, s4, {FG_OFF}')
    a('s_branch L_join')


def role_r(a):
    a('s_lshl_b32 s11, s6, 1')
    a(f's_add_u32 s11, s11, s{sWH}')
    a('s_lshr_b32 s8, s6, 3')
    a('s_lshl_b32 s8, s8, 3')
    a(f's_add_u32 s8, s8, s{sW8}')
    a('s_getpc_b64 s[6:7]')
    a.raw('L_pc:')
    a(f's_sub_u32 s{sAUX}, s6, L_pc - L_start')
    a('s_subb_u32 s7, s7, 0')
    a(f's_and_b32 s{sAUX + 1}, s7, 0xffff')
    a(f's_mov_b32 s{sAUX + 2}, L_end - L_start')
    a(f's_mov_b32 s{sAUX + 3}, 0x20000')
    a('s_lshl_b32 s6, s8, 13')
    a(f'v_lshl_add_u32 v25, v{vL}, 7, s6')
    if 'nocpf' not in EXP:
        a(f'buffer_load_dword v37, v25, {S(sAUX, 4)}, 0 offen')
    if 'notlb' not in EXP:
        a(f's_lshl_b32 s5, s8, 6')
        a(f'v_add_u32 v26, s5, v{vL}')
        a(f'v_mul_u32_u24 v27, {(WS_USED // 1024 + 127) // 128 * 128}, v26')
        a(f'buffer_load_dword v37, v27, {S(sWS, 4)}, 0 offen sc1')
        a('v_lshlrev_b32 v27, 13, v26')
        a(f'buffer_load_dword v37, v27, {S(sW2, 4)}, 0 offen')
        srd(a, sOUT, P_OUT, S_ * D_ * 2)
        a('v_lshlrev_b32 v27, 12, v26')
        a(f'buffer_load_dword v37, v27, {S(sOUT, 4)}, 0 offen sc1')
        srd(a, sAUX, P_B2, S_ * 2)
        a(f'buffer_load_dword v37, v27, {S(sAUX, 4)}, 0 offen')
    if 'wqlin' in EXP:
        srd(a, sWQ, P_WQKV, D_ * 3 * D_ * 2)
        a(f's_sub_u32 s5, s{sID}, 240')
        a('s_lshl_b32 s5, s5, 3')
        a(f's_add_u32 s5, s5, s{sW8}')
        a('s_mul_i32 s5, s5, 24576')
        a(f'v_lshl_add_u32 v26, v{vL}, 7, s5')
        for k in range(3):
            a(f'buffer_load_dword v37, v26, {S(sWQ, 4)}, 0 offen')
            a('v_add_u32 v26, 8192, v26')
    if 'w2lin' in EXP:
        a(f's_sub_u32 s5, s{sID}, 240')
        a('s_lshl_b32 s5, s5, 3')
        a(f's_add_u32 s5, s5, s{sW8}')
        a('s_lshl_b32 s5, s5, 13')
        a(f'v_lshl_add_u32 v38, v{vL}, 7, s5')
    if 'g2map8' in EXP:
        a(f's_mul_i32 s5, s8, {108 * 4096}')
        a(f's_and_b32 s7, s{sID}, 7')
        a('s_lshl_b32 s7, s7, 9')
        a('s_add_u32 s5, s5, s7')
        a(f'v_lshrrev_b32 v24, 2, v{vL}')
        a('v_lshlrev_b32 v24, 12, v24')
        a(f'v_lshl_add_u32 v24, v{vC}, 7, v24')
        a('v_add_u32 v24, s5, v24')
    else:
        a('s_mul_i32 s5, s8, 54')
        a(f's_and_b32 s7, s{sID}, 1')
        a('s_mul_i32 s7, s7, 864')
        a('s_add_u32 s5, s5, s7')
        a('s_lshl_b32 s5, s5, 12')
        a(f's_and_b32 s7, s{sID}, 6')
        a('s_lshl_b32 s7, s7, 9')
        a('s_add_u32 s5, s5, s7')
        a(f'v_lshrrev_b32 v24, 3, v{vL}')
        a(f'v_and_b32 v25, 7, v{vL}')
        a('v_lshlrev_b32 v24, 12, v24')
        a('v_lshl_add_u32 v24, v25, 7, v24')
        a('v_add_u32 v24, s5, v24')
    tag_ready(a)
    a(f'v_mov_b32 v{vFL}, {FH_OFF}')
    if 'pf2now' not in EXP:
        flag_check(a, flag_issue(a, vFL, vFD), vFL, vFD, 16)
    PFA = int(os.environ.get('PFA', '7'))
    a('v_mov_b32 v36, v38' if 'w2lin' in EXP else 'v_mov_b32 v36, v24')
    for k in range(PFA):
        a(f'buffer_load_dword v37, v36, {S(sW2, 4)}, 0 offen')
        a(f'v_add_u32 v36, {(16 if "g2map8" in EXP else 8) * 4096}, v36')
        if k % 2 == 1 and 'pf2fast' not in EXP:
            a.wait_vm0()
    stamp(a, 'prep')
    a('s_setprio 3')
    a(f's_lshl_b32 s4, s11, {4 + FSH}')
    a(f's_add_u32 s4, s4, {FK_OFF}')
    a(f'v_lshl_add_u32 v{vFL}, v{vI}, {FSH}, s4')
    a(f's_lshl_b32 s5, s{sW}, 11')
    a(f'v_lshl_add_u32 v24, v{vL}, 4, s5')
    a(f'v_lshrrev_b32 v25, 5, v{vL}')
    a(f'v_and_b32 v26, 31, v{vL}')
    a('v_lshlrev_b32 v26, 4, v26')
    a('v_lshl_add_u32 v25, v25, 11, v26')
    a('v_add_u32 v25, 1024, v25')
    a(f's_cmp_eq_u32 s{sW}, 2')
    a('s_cselect_b64 vcc, -1, 0')
    a('v_cndmask_b32 v24, v24, v25, vcc')
    a(f'v_lshrrev_b32 v25, 3, v{vL}')
    a(f'v_and_b32 v26, 7, v{vL}')
    a('v_lshlrev_b32 v26, 4, v26')
    a('v_lshl_add_u32 v25, v25, 8, v26')
    a('v_add_u32 v25, 4096, v25')
    a(f's_cmp_eq_u32 s{sW}, 3')
    a('s_cselect_b64 vcc, -1, 0')
    a('v_cndmask_b32 v24, v24, v25, vcc')
    a(f's_mul_i32 s4, s11, {16 * 6144}')
    a(f's_add_u32 s4, s4, {KV_OFF}')
    flag_check(a, flag_issue(a, vFL, vFD), vFL, vFD, 4)
    stamp(a, 'hok')
    stok = []
    for rb in range(16):
        stok.append(a(f'buffer_load_dwordx4 {V(128 + 4 * rb, 4)}, v24, {S(sWS, 4)}, s4 offen sc1'))
        a('s_add_u32 s4, s4, 6144')
    for rb in range(1, 16):
        a.wait(stok[rb])
        for h in range(2):
            a(f'v_pk_add_f32 {V(128 + 2 * h, 2)}, {V(128 + 2 * h, 2)}, {V(128 + 4 * rb + 2 * h, 2)}')
    stamp(a, 'rsum')
    a('v_cvt_pk_bf16_f32 v34, v128, v129')
    a('v_cvt_pk_bf16_f32 v35, v130, v131')
    a('s_lshl_b32 s4, s11, 11')
    a(f's_add_u32 s4, s4, {KB_OFF}')
    a(f'v_lshl_add_u32 v24, v{vTH}, 3, s4')
    a(f'buffer_store_dwordx2 v[34:35], v24, {S(sWS, 4)}, 0 offen sc1')
    a('s_lshl_b32 s4, s11, 2')
    a(f's_add_u32 s4, s4, s{sW}')
    a(f's_lshl_b32 s4, s4, {FSH}')
    a(f's_add_u32 s10, s4, {FR_OFF}')
    a.wait_vm0()
    flag_set(a, 10)
    a(f's_mov_b32 s10, {OOB}')
    stamp(a, 'rpub')
    a('s_barrier')
    for k in range(PFA, 0 if 'nopf2' in EXP else 7):
        a(f'buffer_load_dword v37, v36, {S(sW2, 4)}, 0 offen')
        a(f'v_add_u32 v36, {8 * 4096}, v36')
    a('s_branch L_join')


def role_wot(a):
    a('s_lshl_b32 s11, s6, 1')
    a(f's_add_u32 s11, s11, s{sWH}')
    srd(a, sAUX, P_WO, D_ * D_ * 2)
    a(f'v_lshlrev_b32 v{vF}, 4, v{vL}')
    a(f'v_add_u32 v{vF + 1}, 4096, v{vF}')
    tag_ready(a)
    dma160_voffs(a, 34, 1280, False, 24)
    a('s_mul_i32 s4, s11, 160')
    a(f's_mul_i32 s5, s{sW}, {160 * 1280}')
    a('s_add_u32 s7, s4, s5')
    a(f's_mul_i32 s6, s{sW8}, 20480')
    a(f'v_mul_u32_u24 v24, 20, v{vG}')
    a(f'v_add_u32 v24, v24, v{vR}')
    a('v_mul_u32_u24 v24, 160, v24')
    a(f'v_mul_u32_u24 v25, 40, v{vC}')
    a('v_add_u32 v24, v24, v25')
    a('v_add_u32 v24, s6, v24')
    a('s_mul_i32 s4, s11, 74')
    a(f's_mul_i32 s5, s{sW}, 5')
    a('s_add_u32 s4, s4, s5')
    a('s_add_u32 s4, s4, 54')
    a('s_mul_i32 s4, s4, 5120')
    a(f's_add_u32 s4, s4, {GF_OFF}')
    rounds = [[(0, 0, 0), (0, 1, 4), (1, 0, 8), (1, 1, 12), (2, 0, 16)],
              [(2, 1, 16), (3, 0, 0), (3, 1, 4), (4, 0, 8), (4, 1, 12)]]
    for rd in range(2):
        for k in range(3):
            a(f's_add_u32 s8, s7, {(rd * 80 + k * 32) * 1280}')
            dma160(a, 34, sAUX, 8, 6, k * 5120)
        a.wait_vm0()
        for u, hf, row in rounds[rd]:
            for t in range(5):
                a(f'ds_read_b64_tr_b16 {V(156 + (u * 5 + t) * 4 + 2 * hf, 2)}, v24 offset:{row * 160 + 8 * t}')
            a.wait_lg0()
    for u in range(5):
        for t in range(5):
            vo, off = (vF, t * 1024) if t < 4 else (vF + 1, 0)
            a(f'buffer_store_dwordx4 {V(156 + (u * 5 + t) * 4, 4)}, v{vo}, {S(sWS, 4)}, s4 offen offset:{off} sc1')
        a('s_add_u32 s4, s4, 5120')
    a('s_lshl_b32 s4, s11, 2')
    a(f's_add_u32 s4, s4, s{sW}')
    a(f's_lshl_b32 s4, s4, {FSH}')
    a(f's_add_u32 s10, s4, {FW_OFF}')
    a('s_barrier')


def final_gemm(a):
    a.wait_all()
    flag_set(a, 10)
    stamp(a, 'pub')
    a('s_setprio 0')
    a(f's_cmp_lg_u32 s{sWH}, 0')
    a('s_cbranch_scc1 L_fin')
    xcd_tile(a)
    g_common(a)
    g2 = GGemm(a, 'G2')
    g2.setup()
    for j in range(G2_P):
        Hooks(g2.dma_items(j)).flush()
    srd(a, sOUT, P_OUT, S_ * D_ * 2)
    R = lambda t, j: ACC(t, 0) + j
    T = lambda t, j: ACC(t, 1) + j
    srd(a, sAUX, P_B2, S_ * 2)
    a(f's_lshl_b32 s4, s{sRB}, {5 + FSH}')
    a(f's_lshl_b32 s5, s{sW}, {3 + FSH}')
    a('s_add_u32 s4, s4, s5')
    a(f's_add_u32 s4, s4, {FO_OFF}')
    a(f'v_lshl_add_u32 v34, v{vC}, {FSH + 1}, s4')
    a(f's_lshl_b32 s4, s{sHG}, 2')
    a(f's_add_u32 s4, s4, s{sW}')
    a(f's_lshl_b32 s4, s4, {FSH}')
    a(f's_add_u32 s4, s4, {FW_OFF}')
    a('v_mov_b32 v35, s4')
    a(f'v_cmp_gt_u32 vcc, 63, v{vL}')
    a(f'v_cndmask_b32 v{vFL}, v35, v{vFL}, vcc')
    for nt in range(4):
        a(f's_xor_b32 s4, s{sW}, {nt}')
        a('s_lshl_b32 s4, s4, 10')
        a(f'v_add_u32 v{vOF + nt}, s4, v{vF}')
    a(f's_mul_i32 s4, s{sRB}, 20')
    a(f's_mul_i32 s5, s{sW}, 5')
    a('s_add_u32 s4, s4, s5')
    a('s_lshl_b32 s4, s4, 12')
    a(f's_add_u32 s11, s4, {OF_OFF}')
    a(f'v_mul_u32_u24 v{vXA}, 1280, v{vTOK}')
    a(f'v_mul_u32_u24 v{vBA}, 40, v{vG}')
    a(f'v_add_u32 v{vXA}, v{vXA}, v{vBA}')
    a(f's_mul_i32 s4, s{sHG}, 160')
    a(f'v_add_u32 v{vXA}, s4, v{vXA}')
    a(f'v_lshlrev_b32 v{vBA}, 1, v{vTOK}')
    flag_check(a, flag_issue(a, vFL, vFD), vFL, vFD)
    stamp(a, 'gok')
    fl = {}

    def gate():
        a(f's_mul_i32 s4, s{sHG}, 74')
        a(f's_mul_i32 s5, s{sW}, 5')
        a('s_add_u32 s4, s4, s5')
        a('s_add_u32 s4, s4, 54')
        a('s_mul_i32 s4, s4, 5120')
        a(f's_add_u32 s{sFS}, s4, {GF_OFF}')

    def gate2():
        stamp(a, 'oa')
        flag_check(a, fl['o'], 34, 35)
        stamp(a, 'ob')

    g2.gate = gate
    g2.gate2 = gate2
    XR = [8, 10, 14, 16, 18]

    def g2_extra(j):
        it = []
        if j == 9:
            def fo():
                fl['o'] = flag_issue(a, 34, 35)
            it.append(fo)
        if j == int(os.environ.get('JRES', '16')):
            def resid():
                a(f'buffer_load_ushort v36, v{vBA}, {S(sAUX, 4)}, 0 offen')
                for t in range(5):
                    fl['x'] = a(f'buffer_load_dwordx2 {V(XR[t], 2)}, v{vXA}, {S(sX, 4)}, 0 offen offset:{8 * t}')
            it.append(resid)
        return it

    Hooks(g2.frag_items(int(os.environ.get('FIRSTG', '25')))).flush()
    g2.mainloop(g2_extra)
    stamp(a, 'Gend')
    g2.reduce()
    a.wait(fl['x'])
    a('v_lshlrev_b32 v36, 16, v36')
    for t in range(5):
        for h in range(2):
            a(f'v_lshlrev_b32 v{T(t, 2 * h)}, 16, v{XR[t] + h}')
            a(f'v_and_b32 v{T(t, 2 * h + 1)}, 0xffff0000, v{XR[t] + h}')
            a(f'v_pk_add_f32 {V(R(t, 2 * h), 2)}, {V(R(t, 2 * h), 2)}, v[36:37] op_sel_hi:[1,0]')
            a(f'v_pk_add_f32 {V(R(t, 2 * h), 2)}, {V(R(t, 2 * h), 2)}, {V(T(t, 2 * h), 2)}')
        a(f'v_cvt_pk_bf16_f32 v{R(t, 0)}, v{R(t, 0)}, v{R(t, 1)}')
        a(f'v_cvt_pk_bf16_f32 v{R(t, 1)}, v{R(t, 2)}, v{R(t, 3)}')
        a(f'buffer_store_dwordx2 {V(R(t, 0), 2)}, v{vXA}, {S(sOUT, 4)}, 0 offen offset:{8 * t}')
    a.label('L_fin')
    stamp_flush(a, 'end')


def build():
    a = Asm()
    hdr = open(os.path.join(os.path.dirname(__file__), '..', 'cdna_kernels', NAME + '.s.ref')).read().split('\n')
    for line in hdr:
        if line.startswith(';') and '@launch' not in line:
            a.raw(line)
    a.raw(f'; @launch grid=(256,1,1) block=(512,1,1) lds={LDS_BYTES}')
    a.raw('.amdgcn_target "amdgcn-amd-amdhsa--gfx950"')
    a.raw('.text')
    K = NAME + '_kernel'
    a.raw(f'.globl {K}')
    a.raw('.p2align 8')
    a.raw(f'.type {K},@function')
    a.raw(f'{K}:')
    a.raw('L_start:')
    a('s_cmp_ge_u32 s2, 256')
    a('s_cbranch_scc1 L_end')
    a('s_load_dwordx16 s[16:31], s[0:1], 0')
    a('s_load_dwordx8 s[32:39], s[0:1], 64')
    a(f'v_and_b32 v{vL}, 63, v0')
    a('v_lshrrev_b32 v6, 6, v0')
    a(f'v_readfirstlane_b32 s{sW8}, v6')
    a(f'v_lshrrev_b32 v{vG}, 4, v{vL}')
    a(f'v_and_b32 v{vI}, 15, v{vL}')
    a(f'v_lshrrev_b32 v{vR}, 2, v{vI}')
    a(f'v_and_b32 v{vC}, 3, v{vL}')
    a(f'v_lshl_add_u32 v{vGR}, v{vG}, 2, v{vR}')
    a(f'v_and_b32 v{vTH}, 255, v0')
    a(f's_and_b32 s{sW}, s{sW8}, 3')
    a(f's_lshr_b32 s{sWH}, s{sW8}, 2')
    a(f's_mov_b32 s{sID}, s2')
    a('s_waitcnt lgkmcnt(0)')
    a(f's_add_u32 s4, s{P_WS}, {EP_OFF}')
    a(f's_addc_u32 s5, s{P_WS + 1}, 0')
    a(f's_load_dword s{sTAG}, s[4:5], 0')
    srd(a, sX, P_X, S_ * D_ * 2)
    srd(a, sWS, P_WS, WS_USED)
    srd(a, sW2, P_W2, F_ * S_ * 2)
    stamp(a, 'start')
    if 'noticket' not in EXP:
        srd(a, sAUX, P_DBG, 256)
        a(f'v_mov_b32 v8, {L_CNT + 16}')
        a(f's_cmp_lg_u32 s{sW8}, 0')
        a('s_cbranch_scc1 L_ticket_done')
        a('s_getreg_b32 s4, hwreg(HW_REG_XCC_ID)')
        a('s_mov_b32 s6, 0')
        a('s_mov_b64 exec, 1')
        a.label('L_ticket')
        a('s_and_b32 s4, s4, 7')
        a('s_lshl_b32 s5, s4, 5')
        a('v_mov_b32 v9, s5')
        a('v_mov_b32 v10, 1')
        a(f'buffer_atomic_add v10, v9, {S(sAUX, 4)}, 0 offen sc0 sc1')
        a.wait_vm0()
        a('v_readfirstlane_b32 s5, v10')
        a('s_cmp_lt_u32 s5, 32')
        a('s_cbranch_scc1 L_ticket_ok')
        a('s_add_u32 s4, s4, 1')
        a('s_add_u32 s6, s6, 1')
        a('s_cmp_lt_u32 s6, 8')
        a('s_cbranch_scc1 L_ticket')
        a.label('L_ticket_ok')
        a('s_lshl_b32 s5, s5, 3')
        a('s_add_u32 s5, s5, s4')
        a('v_mov_b32 v9, s5')
        a('ds_write_b32 v8, v9')
        a('s_mov_b64 exec, -1')
        a('s_waitcnt lgkmcnt(0)')
        a.label('L_ticket_done')
        a('s_barrier')
        a('ds_read_b32 v9, v8')
        a('s_waitcnt lgkmcnt(0)')
        a('s_barrier')
        a(f'v_readfirstlane_b32 s{sID}, v9')
        a(f's_and_b32 s{sID}, s{sID}, 255')
        a.reset_counters()
        stamp(a, 'tick')
    if os.environ.get('UPRIO', '1') != '0':
        a(f's_cmp_eq_u32 s{sWH}, 0')
        a('s_cbranch_scc1 L_prio')
        a(f's_setprio {os.environ.get("UPRIO", "1")}')
        a.label('L_prio')
    a(f's_cmp_ge_u32 s{sID}, 128')
    a('s_cbranch_scc1 L_not_a')
    role_a(a)
    a.label('L_not_a')
    a.reset_counters()
    a(f's_and_b32 s4, s{sID}, 7')
    a(f's_lshr_b32 s5, s{sID}, 3')
    a('s_sub_u32 s5, s5, 16')
    a('s_cmp_ge_u32 s5, 14')
    a('s_cbranch_scc1 L_role_r')
    a('s_and_b32 s7, s4, 1')
    a('s_add_u32 s7, s7, 13')
    a('s_cmp_ge_u32 s5, s7')
    a('s_cbranch_scc1 L_role_wot')
    a('s_mul_i32 s6, s4, 27')
    a('s_lshr_b32 s6, s6, 1')
    a('s_add_u32 s6, s6, s5')
    role_b(a)
    a.label('L_role_r')
    a.reset_counters()
    a(f's_sub_u32 s6, s{sID}, 240')
    role_r(a)
    a.label('L_role_wot')
    a.reset_counters()
    a('s_lshr_b32 s6, s4, 1')
    role_wot(a)
    a.label('L_join')
    final_gemm(a)
    a.label('L_end')
    a('s_endpgm')
    if STAMPS:
        a.raw('; STAMPS ' + ' '.join(STAMP_NAMES))
    a.raw('.section .rodata,"a"')
    a.raw(f""".p2align 6
.amdhsa_kernel {K}
  .amdhsa_next_free_vgpr 256
  .amdhsa_next_free_sgpr 102
  .amdhsa_accum_offset 256
  .amdhsa_group_segment_fixed_size 0
  .amdhsa_kernarg_size 96
  .amdhsa_user_sgpr_count 2
  .amdhsa_user_sgpr_kernarg_segment_ptr 1
  .amdhsa_system_sgpr_workgroup_id_x 1
.end_amdhsa_kernel""")
    sys.stderr.write(f'maxv={a.maxv} maxa={a.maxa} maxs={a.maxs} nops={a.nops} lines={len(a.out)}\n')
    return a.text()


if __name__ == '__main__':
    out = sys.argv[1] if len(sys.argv) > 1 else os.path.join(os.path.dirname(__file__), '..', 'cdna_kernels', NAME + '.s')
    open(out, 'w').write(build())
```

```python
import sys, struct, os
sys.path.insert(0, os.path.dirname(__file__))
from asmdsl import Asm, Rec, V, A, S

NAME = 'parallel_sum__linear_kernel_hedgehog__mixer_token_mlp__prompt'
S_, D_, F_ = 2048, 640, 1728

HF_OFF = 0
HF_SZ = 8 * 64 * 5 * 1024
GF_OFF = HF_OFF + HF_SZ
GF_SZ = 8 * 74 * 5 * 1024
OF_OFF = GF_OFF + GF_SZ
OF_SZ = 32 * 20 * 4 * 1024
XF_OFF = OF_OFF + OF_SZ
XF_SZ = 128 * 20480
WF_OFF = XF_OFF + XF_SZ
WF_SZ = 480 * 5120 + 4096
KV_OFF = WF_OFF + WF_SZ
KV_SZ = 32 * 32 * 6144
KB_OFF = KV_OFF + KV_SZ + 4096
KB_SZ = 32 * 2048
FL_OFF = KB_OFF + KB_SZ + 4096
FSH = int(os.environ.get('FSH', '6'))
FH_OFF = FL_OFF
FK_OFF = FH_OFF + (1024 << FSH)
FR_OFF = FK_OFF + (1024 << FSH)
FG_OFF = FR_OFF + (128 << FSH)
FO_OFF = FG_OFF + (1024 << FSH)
FW_OFF = FO_OFF + (1024 << FSH)
FU_OFF = FW_OFF + (128 << FSH)
EP_OFF = FU_OFF + (512 << FSH)
WS_USED = EP_OFF + 512
STAMP_OFF = WS_USED
WS_USED += 512 * 256
STAMPS = bool(int(os.environ.get('STAMPS', '0')))
EXP = os.environ.get('EXP', '').split(',') + [e for e in ['map4', 'noticket', 'notlb', 'g2map8'] if e not in os.environ.get('OFF', '').split(',')]
OOB = 0x40000000

P_X, P_WQKV, P_WPHI, P_WO, P_BX, P_W1, P_B1, P_W2, P_B2, P_OUT, P_DBG, P_WS = range(16, 40, 2)
LOG2E = 1.4426950408889634

sW = 3
sW8, sWH = 90, 91
sWS, sX, sWQ, sW1, sW2, sAUX, sOUT = 40, 44, 48, 52, 56, 60, 64
sHG, sRB, sID, sROT, sKS, sT, sM0B, sTAG = 68, 69, 70, 71, 72, 73, 74, 75
sL, sNL = 76, 78
sBDB, sBCB, sFS, sGM0, sSPIN, sLIM = 80, 81, 82, 83, 84, 85
vL, vG, vI, vR, vC = 1, 2, 3, 4, 5
vTOK, vGR = 6, 7
vFS = 42
DB = 64
XN = lambda s: DB + 8 * s
UP = lambda k: DB + 8 * k + 4

LDS_BYTES = 163840
A_SLOTS = 4
L_WQ = 0
L_RING = 102400
L_ZERO = 122880
L_WPHI = 126976
L_CNT = 131072
B_P = 10
G2_P = 5
ILV = os.environ.get('ILV', 'burst')


def kb_pos(f, t):
    if f < 32:
        return (f >> 4) * 512 + (t * 16 + (f & 15)) * 8 if t < 4 else 1024 + ((f >> 4) * 32 + (t - 4) * 16 + (f & 15)) * 8
    return 1536 + (t * 8 + f - 32) * 8


def fbits(x):
    return '0x%08x' % struct.unpack('<I', struct.pack('<f', x))[0]


def srd(a, dst, ptr, nbytes):
    a(f's_mov_b32 s{dst}, s{ptr}')
    a(f's_and_b32 s{dst + 1}, s{ptr + 1}, 0xffff')
    a(f's_mov_b32 s{dst + 2}, {nbytes}')
    a(f's_mov_b32 s{dst + 3}, 0x20000')


STAMP_NAMES = []
vST = 41


def stamp(a, name):
    if not STAMPS:
        return
    name = str(name)
    if name not in STAMP_NAMES:
        STAMP_NAMES.append(name)
    idx = STAMP_NAMES.index(name)
    a('s_memrealtime s[98:99]')
    a.wait_lg0()
    if idx == 0:
        a(f'v_mov_b32 v{vST}, 0')
        a('s_getreg_b32 s97, hwreg(HW_REG_HW_ID)')
        a(f'v_writelane_b32 v{vST}, s97, 63')
    a(f'v_writelane_b32 v{vST}, s98, {idx}')


def stamp_flush(a, n):
    if not STAMPS:
        return
    a.wait_vm0()
    stamp(a, n)
    lab = a.newlabel('st')
    a(f's_cmp_lg_u32 s{sW}, 0')
    a(f's_cbranch_scc1 {lab}')
    a(f's_lshl_b32 s4, s{sWH}, 8')
    a(f's_add_u32 s4, s4, s{sID}')
    a('s_lshl_b32 s4, s4, 8')
    a(f's_add_u32 s4, s4, {STAMP_OFF}')
    a(f'v_lshl_add_u32 v8, v{vL}, 2, s4')
    a(f'buffer_store_dword v{vST}, v8, {S(sWS, 4)}, 0 offen')
    if 'dbg1' in EXP:
        srd(a, sAUX, P_DBG, 256)
        for wg, base, sel in ((136, 0, 'start,prep,go,B_0,Bend,pub,gok,G2_0,Gend,end'), (8, 10, 'start,x,prep,go,aend,G2_9')):
            l2 = a.newlabel('dbg')
            a(f's_lshl_b32 s4, s{sWH}, 8')
            a(f's_add_u32 s4, s4, s{sID}')
            a(f's_cmp_lg_u32 s4, {wg}')
            a(f's_cbranch_scc1 {l2}')
            for k, nm in enumerate(sel.split(',')):
                if nm not in STAMP_NAMES:
                    STAMP_NAMES.append(nm)
                a(f'v_readlane_b32 s4, v{vST}, {STAMP_NAMES.index(nm)}')
                a('v_mov_b32 v9, s4')
                a('v_mov_b32 v8, 0')
                a(f'buffer_store_dword v9, v8, {S(sAUX, 4)}, 0 offen offset:{4 * (base + k)}')
            a.label(l2)
    a.label(lab)


def reduce_g(a, r, t):
    a(f'v_mov_b32 v{t}, v{r}')
    a(f'v_permlane32_swap_b32 v{r}, v{t}')
    a(f'v_add_f32 v{r}, v{r}, v{t}')
    a(f'v_mov_b32 v{t}, v{r}')
    a(f'v_permlane16_swap_b32 v{r}, v{t}')
    a(f'v_add_f32 v{r}, v{r}, v{t}')


def dma160_voffs(a, dst, stride, permute, tmp):
    t0, t2, t3 = tmp, tmp + 1, tmp + 2
    for q in range(5):
        d = dst + q
        a(f'v_add_u32 v{t0}, {q * 64}, v{vL}')
        a(f'v_mul_u32_u24 v{t2}, 6554, v{t0}')
        a(f'v_lshrrev_b32 v{t2}, 16, v{t2}')
        a(f'v_mul_u32_u24 v{t3}, 10, v{t2}')
        a(f'v_sub_u32 v{t0}, v{t0}, v{t3}')
        if permute:
            a(f'v_bfe_u32 v{t3}, v{t2}, 2, 2')
            a(f'v_lshlrev_b32 v{t3}, 3, v{t3}')
            a(f'v_and_b32 v{d}, 3, v{t2}')
            a(f'v_add_u32 v{t3}, v{t3}, v{d}')
            a(f'v_lshrrev_b32 v{t2}, 4, v{t2}')
            a(f'v_lshl_add_u32 v{t2}, v{t2}, 2, v{t3}')
        a(f'v_mul_u32_u24 v{t2}, {stride}, v{t2}')
        a(f'v_lshl_add_u32 v{d}, v{t0}, 4, v{t2}')
        if 0 < q < 4:
            a(f'v_subrev_u32 v{d}, {q * 1024}, v{d}')


def dma160(a, vo, ssrd, soff, m0_s, m0_add, nt=''):
    a(f's_add_u32 m0, s{m0_s}, {m0_add}')
    for q in range(4):
        off = f' offset:{q * 1024}' if q else ''
        a(f'buffer_load_dwordx4 v{vo + q}, {S(ssrd, 4)}, s{soff} offen{off}{nt} lds')
    a(f's_add_u32 m0, s{m0_s}, {m0_add + 4096}')
    return a(f'buffer_load_dwordx4 v{vo + 4}, {S(ssrd, 4)}, s{soff} offen{nt} lds')


class Hooks:
    def __init__(self, items=()):
        self.items = list(items)

    def run(self, n=1):
        for _ in range(n):
            if self.items:
                self.items.pop(0)()

    def flush(self):
        self.run(len(self.items))


def softmax_pm(a, P, PH, EP, EN, tmp):
    p = [P[k // 4] + k % 4 for k in range(20)]
    ep = [EP[k // 4] + k % 4 for k in range(20)]
    en = [EN[k // 4] + k % 4 for k in range(20)]
    mx, mn, sp, sn = tmp, tmp + 2, tmp + 4, tmp + 6
    a(f'v_max3_f32 v{mx}, v{p[0]}, v{p[1]}, v{p[2]}')
    a(f'v_min3_f32 v{mn}, v{p[0]}, v{p[1]}, v{p[2]}')
    for k in range(3, 19, 2):
        a(f'v_max3_f32 v{mx}, v{mx}, v{p[k]}, v{p[k + 1]}')
        a(f'v_min3_f32 v{mn}, v{mn}, v{p[k]}, v{p[k + 1]}')
    a(f'v_max_f32 v{mx}, v{mx}, v{p[19]}')
    a(f'v_min_f32 v{mn}, v{mn}, v{p[19]}')
    a(f'v_mul_f32 v{mx}, s{sNL}, v{mx}')
    a(f'v_mul_f32 v{mn}, s{sL}, v{mn}')
    for k in range(0, 20, 2):
        a(f'v_pk_fma_f32 {V(ep[k], 2)}, {V(p[k], 2)}, {S(sL, 2)}, {V(mx, 2)} op_sel_hi:[1,0,0]')
        a(f'v_pk_fma_f32 {V(en[k], 2)}, {V(p[k], 2)}, {S(sNL, 2)}, {V(mn, 2)} op_sel_hi:[1,0,0]')
    for k in range(20):
        a(f'v_exp_f32 v{ep[k]}, v{ep[k]}')
        a(f'v_exp_f32 v{en[k]}, v{en[k]}')
    a(f'v_pk_add_f32 {V(sp, 2)}, {V(ep[0], 2)}, {V(ep[2], 2)}')
    a(f'v_pk_add_f32 {V(sn, 2)}, {V(en[0], 2)}, {V(en[2], 2)}')
    for k in range(4, 20, 2):
        a(f'v_pk_add_f32 {V(sp, 2)}, {V(sp, 2)}, {V(ep[k], 2)}')
        a(f'v_pk_add_f32 {V(sn, 2)}, {V(sn, 2)}, {V(en[k], 2)}')
    a(f'v_add_f32 v{sp}, v{sp}, v{sp + 1}')
    a(f'v_add_f32 v{sn}, v{sn}, v{sn + 1}')
    a(f'v_rcp_f32 v{sp}, v{sp}')
    a(f'v_rcp_f32 v{sn}, v{sn}')
    for k in range(0, 20, 2):
        a(f'v_pk_mul_f32 {V(ep[k], 2)}, {V(ep[k], 2)}, {V(sp, 2)} op_sel_hi:[1,0]')
        a(f'v_pk_mul_f32 {V(en[k], 2)}, {V(en[k], 2)}, {V(sn, 2)} op_sel_hi:[1,0]')
    allv = ep + en
    for k in range(20):
        a(f'v_cvt_pk_bf16_f32 v{PH[k // 4] + k % 4}, v{allv[2 * k]}, v{allv[2 * k + 1]}')


def flag_set(a, s_off):
    a(f'v_lshl_add_u32 v{vFS}, v{vL}, 2, s{s_off}')
    a(f'v_mov_b32 v{vFS + 1}, s{sTAG}')
    a(f's_mov_b64 exec, {hex((1 << (1 << (FSH - 2))) - 1)}')
    a(f'buffer_store_dword v{vFS + 1}, v{vFS}, {S(sWS, 4)}, 0 offen sc1')
    a('s_mov_b64 exec, -1')


def flag_issue(a, vaddr, vdst):
    return a(f'buffer_load_dword v{vdst}, v{vaddr}, {S(sWS, 4)}, 0 offen sc1')


def flag_check(a, tok, vaddr, vdst, sleep=2):
    ok = a.newlabel('ok')
    lp = a.newlabel('poll')
    a.wait(tok)
    a(f'v_cmp_ne_u32 vcc, s{sTAG}, v{vdst}')
    a(f's_cbranch_vccz {ok}')
    a(f's_mov_b32 s{sSPIN}, 0')
    a.label(lp)
    a(f's_sleep {sleep}')
    a.raw(f'\tbuffer_load_dword v{vdst}, v{vaddr}, {S(sWS, 4)}, 0 offen sc1')
    a('s_waitcnt vmcnt(0)')
    a(f'v_cmp_ne_u32 vcc, s{sTAG}, v{vdst}')
    a(f's_cbranch_vccz {ok}')
    a(f's_add_u32 s{sSPIN}, s{sSPIN}, 1')
    a(f's_cmp_lt_u32 s{sSPIN}, 0x8000')
    a(f's_cbranch_scc1 {lp}')
    a.label(ok)


def featmap(a, ACC5, PK, WPF, P5, EP5, EN5, tmp):
    for k in range(10):
        t, j = divmod(2 * k, 4)
        a(f'v_cvt_pk_bf16_f32 v{PK[k // 4] + k % 4}, v{ACC5[t] + j}, v{ACC5[t] + j + 1}')
    for ks in range(3):
        for t in range(5):
            d = V(P5[t], 4)
            if ks < 2:
                a(f'v_mfma_f32_16x16x32_bf16 {d}, {V(WPF(t, ks), 4)}, {V(PK[ks], 4)}, {"0" if ks == 0 else d}')
            else:
                a(f'v_mfma_f32_16x16x16_bf16 {d}, {V(WPF(t, ks), 2)}, {V(PK[ks], 2)}, {d}')
    softmax_pm(a, P5, P5, EP5, EN5, tmp)


def xcd_tile(a):
    a(f's_and_b32 s4, s{sID}, 7')
    a(f's_lshr_b32 s5, s{sID}, 3')
    if 'g2map8' in EXP:
        a(f's_and_b32 s{sHG}, s5, 7')
        a('s_lshl_b32 s6, s4, 2')
        a('s_lshr_b32 s7, s5, 3')
        a(f's_add_u32 s{sRB}, s6, s7')
    else:
        a('s_and_b32 s6, s4, 1')
        a('s_lshl_b32 s6, s6, 2')
        a('s_and_b32 s7, s5, 3')
        a(f's_add_u32 s{sHG}, s6, s7')
        a('s_lshr_b32 s6, s4, 1')
        a('s_lshl_b32 s6, s6, 3')
        a('s_lshr_b32 s7, s5, 2')
        a(f's_add_u32 s{sRB}, s6, s7')
    a(f's_lshl_b32 s4, s{sRB}, 6')
    a(f's_lshl_b32 s5, s{sW}, 4')
    a('s_add_u32 s4, s4, s5')
    a(f'v_add_u32 v{vTOK}, s4, v{vI}')


def ln_scales(a, vS, vRS, vNB):
    a(f'v_mul_f32 v{vS}, {fbits(1.0 / 640)}, v{vS}')
    a(f'v_mul_f32 v{vS + 2}, {fbits(1.0 / 640)}, v{vS + 2}')
    a(f'v_fma_f32 v{vS + 2}, -v{vS}, v{vS}, v{vS + 2}')
    a(f'v_max_f32 v{vS + 2}, 0, v{vS + 2}')
    a(f'v_add_f32 v{vS + 1}, {fbits(1e-5)}, v{vS + 2}')
    a(f'v_rsq_f32 v{vRS}, v{vS + 1}')
    a(f'v_mul_f32 v{vNB}, v{vS}, v{vRS}')
    a(f'v_sub_f32 v{vNB}, 0, v{vNB}')


vD, vF, vT, vT2, vFL, vFD, vOF, vXA, vBA = 8, 12, 14, 18, 22, 23, 28, 32, 33
ACC = lambda t, nt: 44 + (nt * 5 + t) * 4
TF = lambda j, nt: 124 + (j % 2) * 16 + 4 * nt
POOL = [156 + 4 * k for k in range(25)]


class GGemm:
    def __init__(self, a, kind):
        self.a, self.kind = a, kind
        if kind == 'B':
            self.stride, self.srdm, self.n, self.fr_off, self.fr_steps = F_ * 2, sW1, 16, HF_OFF, 64
            self.sdb, self.scb, self.ntot, self.P = sBDB, sBCB, 16, B_P
        else:
            self.stride, self.srdm, self.n, self.fr_off, self.fr_steps = S_ * 2, sW2, 14, GF_OFF, 74
            self.sdb, self.scb, self.ntot, self.P = sHG, sRB, 19, G2_P
        self.dtok, self.ftok, self.ttok = {}, {}, {}
        self.free = list(POOL)
        self.reg = {}
        self.pending = []
        order = [(j, 'a') for j in range(self.n)]
        if kind == 'G2':
            order += [(j, k) for j in range(14, 19) for k in 'ab']
        for j, k in order:
            self.pending += [(j, k, x) for x in range(5 if k == 'a' else 4)]
        self.gate = lambda: None
        self.gate2 = lambda: None
        self.nq = 2 if kind == 'B' else 4

    def setup(self):
        a, st = self.a, self.stride
        a(f'v_lshrrev_b32 v24, 3, v{vL}')
        if self.kind == 'B':
            a('v_lshrrev_b32 v25, 2, v24')
            a('v_and_b32 v24, 3, v24')
            a('v_lshl_add_u32 v24, v25, 3, v24')
        a(f'v_mul_u32_u24 v24, {st}, v24')
        a(f'v_and_b32 v25, 7, v{vL}')
        a(f'v_lshlrev_b32 v26, 1, v{vG}')
        a('v_xor_b32 v25, v25, v26')
        a('v_lshl_add_u32 v24, v25, 4, v24')
        a(f's_lshl_b32 s4, s{self.scb}, 7')
        a(f's_mul_i32 s5, s{sW}, {self.n * 32 * st}')
        a('s_add_u32 s5, s5, s4')
        if self.kind == 'B':
            a(f's_mul_i32 s6, s{sWH}, {4 * st}')
            a('s_add_u32 s5, s5, s6')
            a(f's_lshl_b32 s6, s{sWH}, 11')
            a(f's_add_u32 s{sM0B}, s{sGM0}, s6')
        else:
            a(f's_mov_b32 s{sM0B}, s{sGM0}')
        for q in range(self.nq):
            row = 8 * q if self.kind != 'B' else q * 16
            a(f's_add_u32 s6, s5, {row * st - 1024 * q}')
            a(f'v_add_u32 v{vD + q}, s6, v24')
        a(f's_mul_i32 s4, s{self.sdb}, {self.fr_steps}')
        a(f's_mul_i32 s5, s{sW}, {self.n}')
        a('s_add_u32 s4, s4, s5')
        a('s_mul_i32 s4, s4, 5120')
        a(f's_add_u32 s{sFS}, s4, {self.fr_off}')
        if self.kind == 'B':
            a(f's_lshl_b32 s4, s{sW}, {6 + FSH}')
            a(f's_add_u32 s4, s4, {FH_OFF}')
            a(f'v_lshl_add_u32 v{vFL}, v{vL}, {FSH}, s4')
        else:
            a(f's_lshl_b32 s4, s{self.sdb}, {7 + FSH}')
            a(f's_mul_i32 s5, s{sW}, {28 << FSH}')
            a('s_add_u32 s4, s4, s5')
            a(f's_add_u32 s4, s4, {FG_OFF}')
            a(f's_mul_i32 s5, s{self.sdb}, {74 * 5120}')
            a(f's_add_u32 s{sLIM}, s5, {GF_OFF + 53 * 5120}')
            a(f's_cmp_eq_u32 s{sW}, 3')
            a('s_cselect_b32 s5, 23, 27')
            a(f'v_min_u32 v24, s5, v{vL}')
            a(f'v_lshl_add_u32 v{vFL}, v24, {FSH}, s4')

    def dma_items(self, j):
        a = self.a

        def one(q):
            def f():
                if q == 0:
                    a(f's_add_u32 m0, s{sM0B}, {(j % self.P) * 16384}')
                off = f' offset:{q * 1024}' if q else ''
                nt = ' nt' if ('ntb' in EXP and self.kind == 'B' and j < self.P) else ''
                self.dtok[j] = a(f'buffer_load_dwordx4 v{vD + q}, {S(self.srdm, 4)}, 0 offen{off}{nt} lds')
                if not ('hotw' in EXP):
                    a(f'v_add_u32 v{vD + q}, {32 * self.stride}, v{vD + q}')
            return f
        return [one(q) for q in range(self.nq)]

    def frag_items(self, lim=99):
        a = self.a
        out = []
        while self.free and self.pending and len(out) < lim:
            key = self.pending.pop(0)
            r = self.free.pop(0)
            self.reg[key] = r

            def f(key=key, r=r):
                j, kind, x = key
                if key == (self.n, 'a', 0):
                    self.gate()
                if key == (self.n, 'b', 0):
                    self.gate2()
                if kind == 'a' and 'b_nof' in EXP and self.kind == 'B' and j >= 5 and x > 0:
                    pass
                elif kind == 'a':
                    vo, off = (vF, x * 1024) if x < 4 else (vF + 1, 0)
                    offs = f' offset:{off}' if off else ''
                    self.ftok[j] = a(f'buffer_load_dwordx4 {V(r, 4)}, v{vo}, {S(sWS, 4)}, s{sFS} offen{offs} sc1')
                    if x == 4 and 'hotf' not in EXP:
                        a(f's_add_u32 s{sFS}, s{sFS}, 5120')
                        if self.kind == 'G2' and j < 14:
                            a(f's_min_u32 s{sFS}, s{sFS}, s{sLIM}')
                else:
                    if j - self.n == 2:
                        a(f'v_lshlrev_b32 v24, 3, v{vL}')
                        a(f'v_sub_u32 v24, v{vOF + x}, v24')
                        a(f'buffer_load_dwordx2 {V(r, 2)}, v24, {S(sWS, 4)}, s11 offen sc1')
                        self.ftok[j] = a(f'buffer_load_dwordx2 {V(r + 2, 2)}, v24, {S(sWS, 4)}, s11 offen offset:512 sc1')
                    else:
                        self.ftok[j] = a(f'buffer_load_dwordx4 {V(r, 4)}, v{vOF + x}, {S(sWS, 4)}, s11 offen sc1')
                    if x == 3:
                        a('s_add_u32 s11, s11, 4096')
            out.append(f)
        return out

    def tr_items(self, j):
        a = self.a

        def one(nt):
            def f():
                off = (j % self.P) * 16384
                base = vT
                if off >= 65536:
                    if off % 65536 == 0:
                        a(f'v_add_u32 v{vT2 + nt}, {off}, v{vT + nt}')
                    off %= 65536
                    base = vT2
                if 'b_nods' in EXP and self.kind == 'B' and j > 1 and nt > 0:
                    return
                a(f'ds_read_b64_tr_b16 {V(TF(j, nt), 2)}, v{base + nt} offset:{off}')
                self.ttok[j] = a(f'ds_read_b64_tr_b16 {V(TF(j, nt) + 2, 2)}, v{base + nt} offset:{off + 2048}')
            return f
        return [one(nt) for nt in range(4)]

    def mainloop(self, extra):
        a, n = self.a, self.n
        a.wait(self.dtok[0])
        Hooks(self.tr_items(0)).flush()
        for j in range(self.ntot):
            items = []
            if j + 1 < n:
                a.wait(self.dtok[j + 1])
            a.wait(self.ftok[j], self.ttok.get(j))
            if self.kind == 'B' and 'b_nobar' not in EXP and j + 1 < n and (j + self.P < n or j + 1 >= int(os.environ.get('BPRE', '10'))):
                a('s_barrier')
            if j % 3 == 0:
                stamp(a, f'{self.kind}_{j}')
                if STAMPS and j in (3, 9):
                    a('s_memtime s[98:99]')
                    a.wait_lg0()
                    a(f'v_writelane_b32 v{vST}, s98, {56 + (j // 9) + (2 if self.kind == "G2" else 0)}')
            if j + 1 < n:
                items += self.tr_items(j + 1)
            if j + self.P < n:
                items += self.dma_items(j + self.P)
            items += extra(j)
            lim = int(os.environ.get('LIMB' if self.kind == 'B' else 'LIMG', '10'))
            items += self.frag_items(lim if (self.kind == 'B' or j < int(os.environ.get('LIMJ', '9'))) else 10)
            last = j == self.ntot - 1
            if self.kind == 'G2' and j == 16:
                a('s_barrier')
            if last:
                a(f's_mul_i32 s7, s{sWH}, 102400')
                for nt in range(1, 4):
                    a(f's_xor_b32 s4, s{sW}, {nt}')
                    a('s_mul_i32 s4, s4, 15360')
                    a(f's_add_u32 s4, s4, {(nt - 1) * 5120}')
                    a('s_add_u32 s4, s4, s7')
                    a(f'v_add_u32 v{24 + nt}, s4, v{vF}')
                wr = [(nt, t) for nt in (1, 2, 3) for t in range(5)]
            hk = Hooks(items)
            k = 0
            ILV = os.environ.get('ILVB', 'fine') if self.kind == 'B' else os.environ.get('ILVG', 'burst')
            for nt in (1, 2, 3, 0):
                for t in range(5):
                    acc = V(ACC(t, nt), 4)
                    c = '0' if j == 0 else acc
                    fr = V(self.reg[(j, 'a', t)], 4)
                    tf = V(TF(j, nt) if j < n else self.reg[(j, 'b', nt)], 4)
                    if self.kind == 'B':
                        a(f'v_mfma_f32_16x16x32_bf16 {acc}, {tf}, {fr}, {c}')
                    else:
                        a(f'v_mfma_f32_16x16x32_bf16 {acc}, {fr}, {tf}, {c}')
                    k += 1
                    if last and k > 5:
                        wn, wt = wr.pop(0)
                        a(f'ds_write_b128 v{24 + wn}, {V(ACC(wt, wn), 4)} offset:{wt * 1024}')
                    if ILV == 'fine':
                        if k % 4 != 0:
                            hk.run()
                    elif ILV == 'burst':
                        if k <= 4 and j + 1 < n:
                            hk.run()
                    elif ILV == 'two':
                        if k <= 4 and j + 1 < n:
                            hk.run()
                        if k == 10:
                            hk.run(4)
                    elif ILV == 'pre':
                        if k == 1:
                            hk.flush()
            hk.flush()
            self.free += [r for key, r in self.reg.items() if key[0] == j]
            if n - 2 <= j < n:
                self.free += [TF(j, nt) for nt in range(4)]

    def reduce(self):
        a = self.a
        a(f's_mul_i32 s4, s{sW}, 15360')
        a('s_add_u32 s4, s4, s7')
        a(f'v_add_u32 v24, s4, v{vF}')
        a.wait_lg0()
        a('s_barrier')
        rtok = {}
        for nt in range(1, 4):
            for t in range(5):
                rtok[(nt, t)] = a(f'ds_read_b128 {V(ACC(t, nt), 4)}, v24 offset:{(nt - 1) * 5120 + t * 1024}')
        for nt in range(1, 4):
            for t in range(5):
                a.wait(rtok[(nt, t)])
                for h in range(2):
                    d = V(ACC(t, 0) + 2 * h, 2)
                    a(f'v_pk_add_f32 {d}, {d}, {V(ACC(t, nt) + 2 * h, 2)}')


def frag10_addr(a, m, hi_add, step, base_s, vrd, vrd_base, vst):
    a(f's_add_u32 s4, s{sW}, {4 * m}')
    a('s_min_u32 s5, s4, 9')
    a('s_cmp_ge_u32 s5, 5')
    a(f's_cselect_b32 s6, {hi_add}, 0')
    a(f's_mul_i32 s5, s5, {step}')
    a('s_add_u32 s5, s5, s6')
    a(f'v_add_u32 v{vrd}, s5, v{vrd_base}')
    a('s_lshl_b32 s5, s4, 10')
    a(f's_add_u32 s5, s5, s{base_s}')
    a('s_cmp_ge_u32 s4, 10')
    a(f's_cselect_b32 s5, {OOB}, s5')
    a(f'v_lshl_add_u32 v{vst}, v{vL}, 4, s5')


NTP = ' nt' if 'ntp' in EXP else ''
FIRST = int(os.environ.get('FIRST', '25'))
vTH = 40


def g_common(a):
    a(f'v_lshlrev_b32 v{vF}, 4, v{vL}')
    a(f'v_add_u32 v{vF + 1}, 4096, v{vF}')
    a(f's_lshl_b32 s{sGM0}, s{sW}, 12')
    a(f'v_bfe_u32 v25, v{vGR}, 1, 2')
    a(f'v_xor_b32 v25, s{sW}, v25')
    a(f'v_lshlrev_b32 v26, 7, v{vGR}')
    a(f'v_lshl_add_u32 v26, v{vC}, 3, v26')
    a(f'v_add_u32 v26, s{sGM0}, v26')
    for nt in range(4):
        a(f'v_xor_b32 v27, {nt}, v25')
        a(f'v_lshl_add_u32 v{vT + nt}, v27, 5, v26')


def tag_ready(a):
    a('s_waitcnt lgkmcnt(0)')
    a(f's_add_u32 s{sTAG}, s{sTAG}, 1')


def role_a(a):
    a(f's_and_b32 s4, s{sID}, 7')
    a(f's_lshr_b32 s5, s{sID}, 3')
    a('s_and_b32 s6, s4, 1')
    a('s_lshl_b32 s6, s6, 2')
    a('s_and_b32 s7, s5, 3')
    a(f's_add_u32 s{sHG}, s6, s7')
    a('s_lshr_b32 s6, s4, 1')
    a('s_lshl_b32 s6, s6, 2')
    a('s_lshr_b32 s7, s5, 2')
    a('s_add_u32 s6, s6, s7')
    a(f's_mov_b32 s{sRB}, s6')
    a('s_lshl_b32 s6, s6, 3')
    a(f's_add_u32 s15, s6, s{sHG}')
    a('s_lshl_b32 s12, s15, 1')
    a(f's_add_u32 s12, s12, s{sWH}')
    X = 156
    a('s_lshl_b32 s4, s12, 2')
    a(f's_add_u32 s4, s4, s{sW}')
    a('s_mul_i32 s4, s4, 2560')
    a(f'v_mul_u32_u24 v24, 40, v{vL}')
    xt = []
    for k in range(5):
        xt.append(a(f'buffer_load_dwordx2 {V(X + 2 * k, 2)}, v24, {S(sX, 4)}, s4 offen offset:{8 * k}{NTP}'))
    srd(a, sWQ, P_WQKV, D_ * 3 * D_ * 2)
    vLN = 8
    a(f'v_lshlrev_b32 v{vLN}, 4, v{vL}')
    a(f'v_add_u32 v{vLN + 1}, 4096, v{vLN}')
    a(f's_mul_i32 s{sM0B}, s{sW8}, 5120')
    a('s_lshl_b32 s10, s15, 2')
    a(f's_add_u32 s10, s10, s{sW}')
    a('s_mul_i32 s4, s10, 1093')
    a('s_lshr_b32 s4, s4, 16')
    a('s_mul_i32 s5, s4, 60')
    a('s_sub_u32 s5, s10, s5')
    a('s_lshr_b32 s6, s5, 1')
    a('s_and_b32 s7, s5, 1')
    a('s_add_u32 s7, s7, 1')
    a('s_sub_u32 s8, s5, 40')
    a('s_cmp_ge_u32 s5, 40')
    a('s_cselect_b32 s6, s8, s6')
    a('s_cselect_b32 s7, 0, s7')
    a(f's_mul_i32 s6, s6, {32 * 3840}')
    a('s_mul_i32 s7, s7, 1280')
    a('s_mul_i32 s4, s4, 160')
    a('s_add_u32 s6, s6, s7')
    a('s_add_u32 s6, s6, s4')
    a(f's_cmp_eq_u32 s{sWH}, 0')
    a('s_cselect_b32 s10, 480, s10')
    dma160_voffs(a, 12, 3840, True, 18)
    a('s_cmp_ge_u32 s10, 480')
    a(f's_cselect_b32 s7, {OOB}, 0')
    for q in range(5):
        a(f'v_add_u32 v{12 + q}, s7, v{12 + q}')
    utok = dma160(a, 12, sWQ, 6, sM0B, 0, NTP)
    a(f's_mul_i32 s13, s{sWH}, 24576')
    a('s_add_u32 s13, s13, 65536')
    a('s_add_u32 s14, s13, 12288')
    srd(a, sAUX, P_WPHI, 32 * 800)
    a(f's_mul_i32 s6, s{sHG}, 3200')
    a(f's_lshl_b32 s7, s{sW}, 10')
    a('s_add_u32 s6, s6, s7')
    a(f'v_lshl_add_u32 v10, v{vL}, 4, s6')
    a(f's_add_u32 m0, s7, {L_WPHI}')
    a(f'buffer_load_dwordx4 v10, {S(sAUX, 4)}, 0 offen lds')
    for k in range(4):
        a(f'v_mov_b32 v{44 + k}, 0')
    a(f'v_lshlrev_b32 v18, 4, v{vTH}')
    a(f'v_add_u32 v18, {L_ZERO}, v18')
    a('ds_write_b128 v18, v[44:47]')
    a(f'v_mov_b32 v10, {L_CNT}')
    a('v_mov_b32 v11, 0')
    a('ds_write2_b32 v10, v11, v11 offset0:0 offset1:1')
    vONE, vS, vRS, vNB = 34, 36, 168, 170
    a(f'v_mov_b32 v{vONE}, 0x3f803f80')
    for k in range(4):
        a(f'v_mov_b32 v{vS + k}, 0')
    a('s_waitcnt lgkmcnt(0)')
    a(f's_add_u32 s{sTAG}, s{sTAG}, 1')
    a.wait(xt[4])
    stamp(a, 'x')
    for k in range(10):
        a(f'v_dot2c_f32_bf16 v{vS + (k & 1)}, v{X + k}, v{vONE}')
        a(f'v_dot2c_f32_bf16 v{vS + 2 + (k & 1)}, v{X + k}, v{X + k}')
    a(f'v_add_f32 v{vS}, v{vS}, v{vS + 1}')
    a(f'v_add_f32 v{vS + 2}, v{vS + 2}, v{vS + 3}')
    for sh in (8, 4, 2, 1):
        for r in (vS, vS + 2):
            a(f'v_add_f32_dpp v{r}, v{r}, v{r} row_ror:{sh} row_mask:0xf bank_mask:0xf')
    for r in (vS, vS + 2):
        a(f'v_mov_b32 v{r + 1}, v{r}')
        a(f'v_permlane16_swap_b32 v{r}, v{r + 1}')
        a(f'v_add_f32 v{r}, v{r}, v{r + 1}')
    ln_scales(a, vS, vRS, vNB)
    a(f'v_mul_f32 v{vS + 1}, v{vRS}, v{vRS}')
    a(f'v_mov_b32 v{vS + 3}, {fbits(1e-5)}')
    a(f'v_fmac_f32 v{vS + 3}, v{vS + 1}, v{vS + 2}')
    a(f'v_rsq_f32 v{vS + 2}, v{vS + 3}')
    U = 172
    for k in range(10):
        a(f'v_lshlrev_b32 v{U + 2 * k}, 16, v{X + k}')
        a(f'v_and_b32 v{U + 2 * k + 1}, 0xffff0000, v{X + k}')
    for k in range(10):
        a(f'v_pk_fma_f32 {V(U + 2 * k, 2)}, {V(U + 2 * k, 2)}, {V(vRS, 2)}, {V(vNB, 2)} op_sel_hi:[1,0,0]')
    XQ = 192
    for k in range(10):
        a(f'v_cvt_pk_bf16_f32 v{XQ + k}, v{U + 2 * k}, v{U + 2 * k + 1}')
    for k in range(10):
        a(f'v_pk_mul_f32 {V(U + 2 * k, 2)}, {V(U + 2 * k, 2)}, {V(vS + 2, 2)} op_sel_hi:[1,0]')
    for k in range(10):
        a(f'v_cvt_pk_bf16_f32 v{X + k}, v{U + 2 * k}, v{U + 2 * k + 1}')
    a(f's_mul_i32 s4, s{sW}, {2 * 1296}')
    a('s_add_u32 s4, s4, s13')
    a(f'v_mul_u32_u24 v24, 40, v{vL}')
    a(f'v_lshrrev_b32 v25, 5, v{vL}')
    a('v_lshl_add_u32 v24, v25, 4, v24')
    a('v_add_u32 v24, s4, v24')
    for k in range(5):
        a(f'ds_write_b64 v24, {V(XQ + 2 * k, 2)} offset:{8 * k}')
    a(f'v_and_b32 v25, 7, v{vTH}')
    a(f'v_lshrrev_b32 v26, 3, v{vTH}')
    a('v_mul_u32_u24 v28, 1296, v25')
    a('v_lshl_add_u32 v28, v26, 4, v28')
    a('v_add_u32 v28, s13, v28')
    a('v_lshlrev_b32 v29, 8, v26')
    a('v_lshl_add_u32 v29, v25, 4, v29')
    a(f's_lshr_b32 s4, s12, 1')
    a('s_mul_i32 s4, s4, 20480')
    a(f's_and_b32 s5, s12, 1')
    a('s_lshl_b32 s5, s5, 7')
    a('s_add_u32 s4, s4, s5')
    a(f's_add_u32 s4, s4, {XF_OFF}')
    a('v_add_u32 v29, s4, v29')
    a('v_add_u32 v30, 8192, v29')
    a(f's_cmp_ge_u32 s{sW}, 2')
    a(f's_cselect_b32 s4, {OOB}, 16384')
    a('v_add_u32 v31, s4, v29')
    a(f's_mul_i32 s4, s{sW}, 2560')
    a('s_add_u32 s4, s4, s14')
    a(f'v_mul_u32_u24 v24, 40, v{vL}')
    a('v_add_u32 v24, s4, v24')
    for k in range(5):
        a(f'ds_write_b64 v24, {V(X + 2 * k, 2)} offset:{8 * k}')
    a(f'v_mul_u32_u24 v24, 1280, v{vR}')
    a(f'v_mul_u32_u24 v25, 160, v{vG}')
    a('v_add_u32 v24, v24, v25')
    a(f'v_mul_u32_u24 v25, 40, v{vC}')
    a('v_add_u32 v24, v24, v25')
    a('v_add_u32 v24, s14, v24')
    a(f'v_mul_u32_u24 v25, {64 * 5120}, v{vG}')
    a(f'v_lshl_add_u32 v25, v{vI}, 4, v25')
    a(f's_lshr_b32 s4, s12, 2')
    a('s_mul_i32 s4, s4, 5120')
    a(f's_and_b32 s5, s12, 3')
    a('s_lshl_b32 s5, s5, 8')
    a('s_add_u32 s4, s4, s5')
    a(f's_add_u32 s8, s4, {HF_OFF}')
    a.wait_lg0()
    a('s_barrier')
    ht = []
    for m in range(3):
        ht.append(a(f'ds_read_b128 {V(XQ + 4 * m, 4)}, v28 offset:{512 * m}'))
    for m in range(3):
        a.wait(ht[m])
        a(f'buffer_store_dwordx4 {V(XQ + 4 * m, 4)}, v{29 + m}, {S(sWS, 4)}, 0 offen sc1')
    ht = []
    for m in range(3):
        a(f's_add_u32 s4, s{sW}, {4 * m}')
        a('s_min_u32 s5, s4, 9')
        a('s_cmp_ge_u32 s5, 5')
        a(f's_cselect_b32 s6, {640 - 40}, 0')
        a(f's_cselect_b32 s7, {4 * 64 * 5120 - 5120}, 0')
        a('s_lshl_b32 s5, s5, 3')
        a('s_add_u32 s5, s5, s6')
        a('v_add_u32 v26, s5, v24')
        a(f'ds_read_b64_tr_b16 {V(U + 4 * m, 2)}, v26')
        ht.append(a(f'ds_read_b64_tr_b16 {V(U + 4 * m + 2, 2)}, v26 offset:{4 * 1280}'))
        a('s_lshl_b32 s5, s4, 10')
        a('s_add_u32 s5, s5, s7')
        a('s_add_u32 s5, s5, s8')
        a('s_cmp_ge_u32 s4, 10')
        a(f's_cselect_b32 s5, {OOB}, s5')
        a(f'v_add_u32 v{34 + m}, s5, v25')
    for m in range(3):
        a.wait(ht[m])
        a(f'buffer_store_dwordx4 {V(U + 4 * m, 4)}, v{34 + m}, {S(sWS, 4)}, 0 offen sc1')
    hst = ('vm', a.vm_issued - 1)
    a(f'v_mul_u32_u24 v29, 160, v{vGR}')
    a(f'v_mul_u32_u24 v24, 40, v{vC}')
    a('v_add_u32 v29, v29, v24')
    a(f'v_add_u32 v29, s{sM0B}, v29')
    a('s_mul_i32 s4, s10, 5120')
    a(f's_add_u32 s4, s4, {WF_OFF}')
    a('s_cmp_ge_u32 s10, 480')
    a(f's_cselect_b32 s4, {OOB}, s4')
    a(f'v_add_u32 v24, s4, v{vLN}')
    a(f'v_add_u32 v25, s4, v{vLN + 1}')
    a(f's_lshl_b32 s5, s10, {FSH}')
    a(f's_add_u32 s5, s5, {FU_OFF}')
    a('s_cmp_ge_u32 s10, 480')
    a(f's_cselect_b32 s10, {OOB}, s5')
    a.wait(utok)
    ut = []
    for t in range(5):
        a(f'ds_read_b64_tr_b16 {V(UP(t), 2)}, v29 offset:{8 * t}')
        ut.append(a(f'ds_read_b64_tr_b16 {V(UP(t) + 2, 2)}, v29 offset:{8 * t + 2560}'))
    for t in range(5):
        a.wait(ut[t])
        vo, off = (24, t * 1024) if t < 4 else (25, 0)
        a(f'buffer_store_dwordx4 {V(UP(t), 4)}, v{vo}, {S(sWS, 4)}, 0 offen offset:{off} sc1')
    a(f's_lshl_b32 s4, s{sWH}, 2')
    a(f's_add_u32 s4, s4, {L_CNT}')
    a('v_mov_b32 v10, s4')
    a('v_mov_b32 v11, 1')
    a.wait(hst)
    a('s_mov_b64 exec, 1')
    a('ds_add_rtn_u32 v11, v10, v11')
    a('s_mov_b64 exec, -1')
    a.wait_lg0()
    a('v_readfirstlane_b32 s5, v11')
    a(f's_lshl_b32 s4, s12, {FSH}')
    a(f's_add_u32 s4, s4, {FH_OFF}')
    a('s_cmp_lg_u32 s5, 3')
    a('s_cbranch_scc1 L_nofh')
    flag_set(a, 4)
    a.label('L_nofh')
    a.wait_vm0()
    flag_set(a, 10)
    stamp(a, 'prep')
    a(f's_mov_b32 s{sL}, {fbits(LOG2E)}')
    a(f's_mov_b32 s{sL + 1}, {fbits(LOG2E)}')
    a(f's_mov_b32 s{sNL}, {fbits(-LOG2E)}')
    a(f's_mov_b32 s{sNL + 1}, {fbits(-LOG2E)}')
    a(f's_mul_i32 s10, s{sHG}, 60')
    a(f's_lshl_b32 s4, s10, {FSH}')
    a(f's_add_u32 s4, s4, {FU_OFF}')
    a(f'v_lshl_add_u32 v20, v{vL}, {FSH}, s4')
    a(f's_lshl_b32 s11, s{sRB}, 2')
    a(f's_add_u32 s11, s11, s{sW}')
    a(f's_lshl_b32 s4, s11, {FSH + 2}')
    a(f's_add_u32 s4, s4, {FH_OFF}')
    a(f'v_lshl_add_u32 v21, v{vC}, {FSH}, s4')
    a(f'v_cmp_gt_u32 vcc, 60, v{vL}')
    a('v_cndmask_b32 v20, v21, v20, vcc')
    a(f's_add_u32 s10, s10, s{sW}')
    a('s_mul_i32 s10, s10, 5120')
    a(f's_add_u32 s10, s10, {WF_OFF}')
    a(f's_add_u32 s9, s10, {40 * 5120}')
    a(f's_mul_i32 s{sM0B}, s{sW}, 5120')
    a('s_mul_i32 s11, s11, 40960')
    a(f's_add_u32 s11, s11, {XF_OFF}')
    a(f'v_add_u32 v10, 20480, v{vLN}')
    a(f'v_add_u32 v26, {L_RING}, v{vLN}')
    a(f'v_add_u32 v27, 61440, v{vLN}')

    def wphi_frags(WPF, wbase, zbase):
        a(f'v_mul_u32_u24 v22, 800, v{vG}')
        a(f'v_mul_u32_u24 v23, 40, v{vR}')
        a('v_add_u32 v22, v22, v23')
        a(f'v_add_u32 v22, {wbase}, v22')
        a(f'v_mov_b32 v23, {zbase}')
        a(f'v_cmp_eq_u32 vcc, v{vG}, v{vC}')
        a('v_cndmask_b32 v22, v23, v22, vcc')
        for t in range(5):
            for d4 in range(5):
                a(f'ds_read_b64_tr_b16 {V(WPF(t, d4 // 2) + 2 * (d4 % 2), 2)}, v22 offset:{4 * d4 * 40 + 8 * t}')

    Q = lambda k: 48 + 4 * k
    WPF = lambda t, ks: Q(2 * t + ks) if ks < 2 else Q(10 + t // 2) + 2 * (t % 2)
    a('s_barrier')
    wphi_frags(WPF, L_WPHI, L_ZERO)
    a.wait_lg0()
    a('s_barrier')
    flag_check(a, flag_issue(a, 20, 21), 20, 21)
    stamp(a, 'go')

    def xload(dst, ks, z):
        off = f' offset:{(ks % 4) * 1024}' if ks % 4 else ''
        t = a(f'buffer_load_dwordx4 {V(dst, 4)}, v{vLN if z == 0 else 10}, {S(sWS, 4)}, s11 offen{off} sc1')
        if ks % 4 == 3 and z == 1:
            a('s_add_u32 s11, s11, 4096')
        return t

    a(f's_cmp_lg_u32 s{sWH}, 0')
    a('s_cbranch_scc1 L_a_upper')
    at_split = a.save()
    a('s_setprio 2')
    AC = lambda k, z: Q(13 + 2 * k + z)
    XR = lambda ks, z: Q(33 + (ks % 6) * 2 + z)
    FW = lambda n: Q(45 + n % 7)
    xtok = {}
    for ks in range(5):
        for z in range(2):
            xtok[ks] = xload(XR(ks, z), ks, z)
    a('s_barrier')
    stamp(a, 'a0')
    WIN, NF = 6, 200
    ftok = {}

    def read_frag(n):
        d, r = divmod(n, 20)
        ftok[n] = a(f'ds_read_b128 {V(FW(n), 4)}, v26 offset:{(d % 3) * 20480 + r * 1024}')

    for n in range(WIN):
        read_frag(n)
    for n in range(NF):
        nn = n + WIN
        if nn < NF:
            if nn % 20 == 0:
                a.wait_lg0()
                a('s_barrier')
                if (nn // 20) % 3 == 0:
                    stamp(a, f'a{nn // 20}')
            read_frag(nn)
        ks, k = divmod(n, 10)
        a.wait(ftok[n], xtok[ks])
        for z in range(2):
            c = '0' if ks == 0 else V(AC(k, z), 4)
            a(f'v_mfma_f32_16x16x32_bf16 {V(AC(k, z), 4)}, {V(FW(n), 4)}, {V(XR(ks, z), 4)}, {c}')
        if k in (2, 6) and ks + 5 < 20:
            xtok[ks + 5] = xload(XR(ks + 5, k // 4), ks + 5, k // 4)
    a('s_barrier')
    stamp(a, 'aend')
    vSA, vKA, vKO = 8, 9, 12
    a(f's_lshl_b32 s4, s{sW}, 5')
    a(f'v_lshl_add_u32 v{vSA}, v{vG}, 7, v{vI}')
    a(f'v_add_u32 v{vSA}, s4, v{vSA}')
    a(f'v_mul_u32_u24 v{vSA}, 120, v{vSA}')
    a(f'v_add_u32 v{vSA}, {L_RING}, v{vSA}')
    for z in range(2):
        for t in range(5):
            r = AC(5 + t, z)
            a(f'v_cvt_pk_bf16_f32 v{r}, v{r}, v{r + 1}')
            a(f'v_cvt_pk_bf16_f32 v{r + 1}, v{r + 2}, v{r + 3}')
            a(f'ds_write_b64 v{vSA}, {V(r, 2)} offset:{z * 16 * 120 + 80 + 8 * t}')
    PK = [Q(33), Q(34), Q(35)]
    EN5 = [Q(36 + c) for c in range(5)]
    for z in range(2):
        E5 = [AC(t, z) for t in range(5)]
        P5 = [Q(41 + 5 * z + c) for c in range(5)]
        featmap(a, E5, PK, WPF, P5, E5, EN5, 32)
        for c in range(10):
            a(f'ds_write_b64 v{vSA}, {V(P5[c // 2] + 2 * (c % 2), 2)} offset:{z * 16 * 120 + 8 * c}')
    stamp(a, 'fm')
    a(f's_mul_i32 s4, s{sW}, {128 * 120}')
    a(f's_add_u32 s4, s4, {L_RING}')
    a(f'v_mul_u32_u24 v{vKA}, 120, v{vGR}')
    a(f'v_lshl_add_u32 v{vKA}, v{vC}, 3, v{vKA}')
    a(f'v_add_u32 v{vKA}, s4, v{vKA}')
    a(f's_lshl_b32 s4, s{sHG}, 2')
    a(f's_add_u32 s4, s4, s{sW}')
    a('s_lshl_b32 s4, s4, 4')
    a(f's_add_u32 s13, s4, s{sRB}')
    a('s_mul_i32 s4, s13, 6144')
    a(f's_add_u32 s4, s4, {KV_OFF}')
    a(f'v_lshl_add_u32 v{vKO}, v{vL}, 4, s4')
    a('s_movk_i32 s12, 0x1000')
    a(f'v_mov_b32 v11, {OOB}')
    a(f'v_cmp_gt_u32 vcc, 8, v{vI}')
    a(f'v_cndmask_b32 v{vKO + 1}, v11, v{vKO}, vcc')
    a(f'v_cmp_gt_u32 vcc, 2, v{vG}')
    a(f'v_cndmask_b32 v{vKO + 2}, v11, v{vKO}, vcc')
    a(f'v_cndmask_b32 v{vKO + 3}, v11, v{vKO + 1}, vcc')
    a(f's_lshl_b32 s13, s13, {FSH}')
    a(f's_add_u32 s10, s13, {FK_OFF}')
    a('v_mov_b32 v11, 0x3f803f80')
    a(f'v_cmp_eq_u32 vcc, 1, v{vR}')
    a.wait_lg0()
    a('s_barrier')
    ktok = {}
    OPQ = lambda kk, x: Q(13 + kk * 5 + x)
    KVA = [Q(k) for k in range(6)]

    def kv_read(kk):
        for x in range(5):
            col = 32 * x if x < 3 else 80 + 32 * (x - 3)
            a(f'ds_read_b64_tr_b16 {V(OPQ(kk, x), 2)}, v{vKA} offset:{kk * 32 * 120 + col}')
            ktok[kk] = a(f'ds_read_b64_tr_b16 {V(OPQ(kk, x) + 2, 2)}, v{vKA} offset:{kk * 32 * 120 + 16 * 120 + col}')

    kv_read(0)
    for kk in range(4):
        if kk + 1 < 4:
            kv_read(kk + 1)
        a.wait(ktok[kk])
        for j in range(4):
            a(f'v_cndmask_b32 v{OPQ(kk, 4) + j}, v{OPQ(kk, 4) + j}, v11, vcc')
        for et in range(2):
            for ft in range(3):
                d = V(KVA[ft * 2 + et], 4)
                a(f'v_mfma_f32_16x16x32_bf16 {d}, {V(OPQ(kk, 3 + et), 4)}, {V(OPQ(kk, ft), 4)}, {"0" if kk == 0 else d}')
    for ft in range(3):
        for et in range(2):
            vo = vKO + (1 if ft == 2 else 0) + (2 if et == 1 else 0)
            so = 's12' if ft == 2 else '0'
            a(f'buffer_store_dwordx4 {V(KVA[ft * 2 + et], 4)}, v{vo}, {S(sWS, 4)}, {so} offen offset:{(ft % 2) * 2048 + et * 1024} sc1')
    a.wait_vm0()
    flag_set(a, 10)
    a(f's_mov_b32 s10, {OOB}')
    if 'pfa' in EXP:
        a(f's_lshr_b32 s4, s{sID}, 3')
        a('s_lshl_b32 s4, s4, 2')
        a(f's_add_u32 s4, s4, s{sW}')
        a(f's_mul_i32 s5, s4, {27 * 4096}')
        a(f's_and_b32 s7, s{sID}, 7')
        a('s_lshl_b32 s7, s7, 9')
        a('s_add_u32 s5, s5, s7')
        a(f'v_lshrrev_b32 v24, 2, v{vL}')
        a('v_min_u32 v24, 13, v24')
        a('v_lshlrev_b32 v24, 12, v24')
        a(f'v_lshl_add_u32 v24, v{vC}, 7, v24')
        a('v_add_u32 v24, s5, v24')
        a(f'buffer_load_dword v37, v24, {S(sW2, 4)}, 0 offen')
        a(f'v_add_u32 v24, {13 * 4096}, v24')
        a(f'buffer_load_dword v37, v24, {S(sW2, 4)}, 0 offen')
    a('s_barrier')
    a('s_branch L_join')

    a.label('L_a_upper')
    a.restore(at_split)
    wtok = {}

    def dma5(so, lds):
        a(f's_add_u32 m0, s{sM0B}, {lds}')
        for q in range(4):
            off = f' offset:{q * 1024}' if q else ''
            a(f'buffer_load_dwordx4 v{vLN}, {S(sWS, 4)}, s{so} offen{off} sc1 lds')
        a(f's_add_u32 m0, s{sM0B}, {lds + 4096}')
        t = a(f'buffer_load_dwordx4 v{vLN + 1}, {S(sWS, 4)}, s{so} offen sc1 lds')
        a(f's_add_u32 s{so}, s{so}, 20480')
        return t

    NXR = 12
    XQ_ = lambda ks, z: Q(13 + (ks % NXR) * 2 + z)
    AQ = lambda t, z: Q(37 + 2 * t + z)
    FQ = lambda n: Q(47 + n % 5)
    xtok = {}
    for d in range(3):
        wtok[d] = dma5(10, L_RING + d * 20480)
    for d in range(10):
        a.wait(wtok[d])
        a('s_barrier')
        if 1 <= d and d + 2 < 10:
            wtok[d + 2] = dma5(10, L_RING + ((d + 2) % 3) * 20480)
        if d < 5:
            qtok = dma5(9, L_WQ + d * 20480)
        if 4 <= d < 10:
            for ks in (2 * (d - 4), 2 * (d - 4) + 1):
                for z in range(2):
                    xtok[ks] = xload(XQ_(ks, z), ks, z)
    a.wait(qtok)
    a('s_barrier')
    ftok = {}

    def read_q(n):
        off = n * 1024
        ftok[n] = a(f'ds_read_b128 {V(FQ(n), 4)}, v{vLN if off < 61440 else 27} offset:{off % 61440}')

    QBAR = int(os.environ.get('QBAR', '-1'))
    if QBAR < 0:
        a('s_barrier')
    for n in range(4):
        read_q(n)
    for n in range(100):
        if n + 4 < 100:
            read_q(n + 4)
        ks, t = divmod(n, 5)
        a.wait(ftok[n], xtok[ks])
        for z in range(2):
            c = '0' if ks == 0 else V(AQ(t, z), 4)
            a(f'v_mfma_f32_16x16x32_bf16 {V(AQ(t, z), 4)}, {V(FQ(n), 4)}, {V(XQ_(ks, z), 4)}, {c}')
        if t in (1, 3) and ks >= 1 and ks - 1 + NXR < 20:
            xtok[ks - 1 + NXR] = xload(XQ_(ks - 1 + NXR, t // 2), ks - 1 + NXR, t // 2)
        if n == QBAR:
            a('s_barrier')
    a('s_barrier')
    stamp(a, 'aend')
    PK = [Q(13), Q(14), Q(15)]
    EN5 = [Q(16 + c) for c in range(5)]
    PP = [[Q(21 + 5 * z + c) for c in range(5)] for z in range(2)]
    for z in range(2):
        E5 = [AQ(t, z) for t in range(5)]
        featmap(a, E5, PK, WPF, PP[z], E5, EN5, 32)
    stamp(a, 'fm')
    a('s_setprio 3')
    a(f's_mul_i32 s6, s{sW}, 10240')
    a(f's_add_u32 s6, s6, {L_RING}')
    a(f'v_lshlrev_b32 v31, 11, v{vG}')
    a(f'v_lshl_add_u32 v31, v{vR}, 3, v31')
    a('v_mov_b32 v21, 8192')
    a(f'v_cmp_eq_u32 vcc, v{vG}, v{vC}')
    a('v_cndmask_b32 v31, v21, v31, vcc')
    a('v_add_u32 v31, s6, v31')
    for k in range(4):
        a(f'v_mov_b32 v{44 + k}, 0')
    a(f'v_add_u32 v21, s6, v{vLN}')
    a('ds_write_b128 v21, v[44:47] offset:8192')
    a('ds_write_b128 v21, v[44:47] offset:9216')
    a(f's_lshl_b32 s4, s{sHG}, {4 + FSH}')
    a(f's_add_u32 s4, s4, {FR_OFF}')
    a(f'v_lshl_add_u32 v20, v{vI}, {FSH}, s4')
    a(f'v_lshlrev_b32 v8, 4, v{vL}')
    a('v_add_u32 v9, 4096, v8')
    a(f'v_lshlrev_b32 v10, 3, v{vL}')
    a(f's_lshl_b32 s5, s{sHG}, 13')
    a(f's_add_u32 s5, s5, {KB_OFF}')
    a(f's_lshl_b32 s7, s{sRB}, 1')
    a(f's_lshr_b32 s8, s{sW}, 1')
    a('s_add_u32 s7, s7, s8')
    a(f's_and_b32 s8, s{sW}, 1')
    a('s_lshl_b32 s8, s8, 1')
    a(f's_lshr_b32 s12, s{sHG}, 1')
    a('s_mul_i32 s12, s12, 5')
    a('s_mul_i32 s13, s7, 20')
    a('s_add_u32 s12, s12, s13')
    a('s_lshl_b32 s12, s12, 2')
    a('s_add_u32 s12, s12, s8')
    a('s_lshl_b32 s12, s12, 10')
    a(f's_add_u32 s12, s12, {OF_OFF}')
    a(f's_and_b32 s13, s{sHG}, 1')
    a(f's_mul_i32 s14, s13, {3 * 4096}')
    a('s_add_u32 s14, s14, s12')
    a('s_lshl_b32 s13, s13, 9')
    a('s_add_u32 s12, s12, s13')
    a(f's_add_u32 s12, s12, {2 * 4096}')
    a('s_lshl_b32 s13, s7, 3')
    a(f's_add_u32 s13, s13, s{sHG}')
    a('s_lshl_b32 s13, s13, 2')
    a('s_add_u32 s13, s13, s8')
    a(f's_lshl_b32 s13, s13, {FSH}')
    a(f's_add_u32 s13, s13, {FO_OFF}')
    flag_check(a, flag_issue(a, 20, 21), 20, 21, int(os.environ.get('RSLEEP', '8')))
    stamp(a, 'rok')
    for hh in range(2):
        a(f's_add_u32 m0, s6, {4096 * hh}')
        for q in range(4):
            off = f' offset:{q * 1024}' if q else ''
            a(f'buffer_load_dwordx4 v{8 + hh}, {S(sWS, 4)}, s5 offen{off} sc1 lds')
    a.wait_all()
    OA = [[Q(31 + k) for k in range(6)], [Q(37 + k) for k in range(6)]]
    KF = lambda ks, t: Q((ks % 2) * 6 + t)
    otok = {}

    def o_read(ks):
        for t in range(6):
            a(f'ds_read_b64_tr_b16 {V(KF(ks, t), 2)}, v31 offset:{kb_pos(8 * ks, t)}')
            otok[ks] = a(f'ds_read_b64_tr_b16 {V(KF(ks, t) + 2, 2)}, v31 offset:{kb_pos(8 * ks + 4, t)}')

    o_read(0)
    for ks in range(5):
        if ks + 1 < 5:
            o_read(ks + 1)
        a.wait(otok[ks])
        for z in range(2):
            for t in range(6):
                d = V(OA[z][t], 4)
                a(f'v_mfma_f32_16x16x32_bf16 {d}, {V(KF(ks, t), 4)}, {V(PP[z][ks], 4)}, {"0" if ks == 0 else d}')
    for z in range(2):
        O = OA[z]
        PO = PK if z == 0 else [Q(16), Q(17), Q(18)]
        a(f'v_add_f32 v{O[5]}, {fbits(1e-6)}, v{O[5]}')
        a(f'v_rcp_f32 v{O[5]}, v{O[5]}')
        for t in range(5):
            for h in range(2):
                a(f'v_pk_mul_f32 {V(O[t] + 2 * h, 2)}, {V(O[t] + 2 * h, 2)}, {V(O[5], 2)} op_sel_hi:[1,0]')
        for k in range(10):
            t, j = divmod(2 * k, 4)
            a(f'v_cvt_pk_bf16_f32 v{PO[k // 4] + k % 4}, v{O[t] + j}, v{O[t] + j + 1}')
        off = f' offset:{1024 * z}' if z else ''
        a(f'buffer_store_dwordx4 {V(PO[0], 4)}, v8, {S(sWS, 4)}, s14 offen{off} sc1')
        a(f'buffer_store_dwordx4 {V(PO[1], 4)}, v9, {S(sWS, 4)}, s14 offen{off} sc1')
        a(f'buffer_store_dwordx2 {V(PO[2], 2)}, v10, {S(sWS, 4)}, s12 offen{off} sc1')
    a.wait_vm0()
    flag_set(a, 13)
    a(f's_cmp_lg_u32 s{sID}, 0')
    a('s_cbranch_scc1 L_a_done')
    a(f's_cmp_lg_u32 s{sW}, 3')
    a('s_cbranch_scc1 L_a_done')
    a(f'v_and_b32 v20, 31, v{vL}')
    a('v_min_u32 v20, 26, v20')
    a(f'v_and_b32 v21, 32, v{vL}')
    a('v_add_u32 v20, v20, v21')
    a(f'v_lshlrev_b32 v20, {FSH + 2}, v20')
    for k in range(4):
        a(f'v_add_u32 v22, {FG_OFF + (k * 256 << FSH)}, v20')
        flag_check(a, flag_issue(a, 22, 21), 22, 21, 12)
    a(f'v_lshlrev_b32 v20, {FSH}, v{vL}')
    for base in (FR_OFF, FR_OFF + (64 << FSH)):
        a(f'v_add_u32 v22, {base}, v20')
        flag_check(a, flag_issue(a, 22, 21), 22, 21, 12)
    a(f'v_and_b32 v20, 31, v{vL}')
    a(f'v_lshlrev_b32 v20, {FSH}, v20')
    a(f'v_add_u32 v22, {FW_OFF}, v20')
    flag_check(a, flag_issue(a, 22, 21), 22, 21, 12)
    a(f's_mov_b32 s10, {EP_OFF}')
    flag_set(a, 10)
    a.label('L_a_done')
    stamp_flush(a, 'end')
    a('s_endpgm')


def role_b(a):
    if 'map4' in EXP:
        a(f's_lshr_b32 s{sBCB}, s6, 2')
        a('s_and_b32 s9, s6, 3')
        a('s_lshl_b32 s6, s9, 1')
    else:
        a('s_cmp_ge_u32 s6, 54')
        a('s_cselect_b32 s7, 54, 0')
        a('s_cselect_b32 s8, 4, 0')
        a('s_sub_u32 s6, s6, s7')
        a(f's_lshr_b32 s{sBCB}, s6, 1')
        a('s_and_b32 s9, s6, 1')
        a('s_lshl_b32 s6, s9, 1')
        a('s_add_u32 s6, s6, s8')
    PR = 24 if 'map4' in EXP else 48
    a(f's_add_u32 s{sBDB}, s6, s{sWH}')
    srd(a, sW1, P_W1, S_ * F_ * 2)
    g_common(a)
    gB = GGemm(a, 'B')
    gB.setup()
    BPRE = int(os.environ.get('BPRE', '10'))
    if 'g1lin' in EXP:
        a(f's_lshl_b32 s4, s{sBCB}, 2')
        a('s_add_u32 s4, s4, s9')
        a('s_lshl_b32 s4, s4, 3')
        a(f's_add_u32 s4, s4, s{sW8}')
        a('s_lshl_b32 s4, s4, 13')
        a(f'v_lshl_add_u32 v24, v{vL}, 7, s4')
        a(f'buffer_load_dword v37, v24, {S(sW1, 4)}, 0 offen')
        if 'g1wait' in EXP:
            a.wait_vm0()
    if 'g1first' in EXP:
        a('s_lshl_b32 s4, s9, 1')
        a(f's_add_u32 s4, s4, s{sWH}')
        a(f's_lshl_b32 s5, s{sW}, 9')
        a('s_add_u32 s4, s4, s5')
        a(f's_mul_i32 s4, s4, {F_ * 2}')
        a(f's_lshl_b32 s5, s{sBCB}, 7')
        a('s_add_u32 s4, s4, s5')
        a(f'v_mul_u32_u24 v24, {8 * F_ * 2}, v{vL}')
        a('v_add_u32 v24, s4, v24')
        a(f'buffer_load_dword v37, v24, {S(sW1, 4)}, 0 offen')
    for j in range(BPRE):
        Hooks(gB.dma_items(j)).flush()

    def b_extra(j):
        return []

    a('s_lshl_b32 s4, s9, 1')
    a(f's_add_u32 s4, s4, s{sWH}')
    a(f's_mul_i32 s4, s4, {PR}')
    a(f's_lshl_b32 s5, s{sW}, 9')
    a('s_add_u32 s4, s4, s5')
    a(f's_add_u32 s4, s4, {32 * B_P}')
    a(f's_mul_i32 s4, s4, {F_ * 2}')
    a(f's_lshl_b32 s5, s{sBCB}, 7')
    a('s_add_u32 s4, s4, s5')
    a(f'v_min_u32 v24, {PR - 1}, v{vL}')
    a(f'v_mul_u32_u24 v24, {F_ * 2}, v24')
    a('v_add_u32 v24, s4, v24')
    if 'g1first' not in EXP:
        a(f'buffer_load_dword v37, v24, {S(sW1, 4)}, 0 offen')
    srd(a, sAUX, P_B1, F_ * 2)
    a(f's_lshl_b32 s4, s{sBCB}, 7')
    a(f's_lshl_b32 s5, s{sW}, 5')
    a('s_add_u32 s4, s4, s5')
    a(f'v_lshl_add_u32 v24, v{vG}, 3, s4')
    a(f'buffer_load_dwordx2 v[38:39], v24, {S(sAUX, 4)}, 0 offen')
    tag_ready(a)
    a('s_barrier')
    stamp(a, 'prep')
    a(f's_cmp_lg_u32 s{sWH}, 0')
    a('s_cbranch_scc1 L_b_go')
    flag_check(a, flag_issue(a, vFL, vFD), vFL, vFD, 3)
    a.label('L_b_go')
    a.wait_vm0()
    a('s_barrier')
    stamp(a, 'go')
    Hooks(gB.frag_items(int(os.environ.get('FIRSTB', '25')))).flush()
    for j in range(BPRE, B_P):
        Hooks(gB.dma_items(j)).flush()

    gB.mainloop(b_extra)
    stamp(a, 'Bend')
    gB.reduce()
    R = lambda t, j: ACC(t, 0) + j
    T = lambda t, j: ACC(t, 1) + j
    a('v_lshlrev_b32 v34, 16, v38')
    a('v_and_b32 v35, 0xffff0000, v38')
    a('v_lshlrev_b32 v36, 16, v39')
    a('v_and_b32 v37, 0xffff0000, v39')
    c0 = 0.7978845608028654
    k1 = -2.0 * c0 * LOG2E
    k2 = k1 * 0.044715
    a(f's_mov_b32 s4, {fbits(k2)}')
    a(f's_mov_b32 s5, {fbits(k2)}')
    a(f'v_mov_b32 v24, {fbits(k1)}')
    a('v_mov_b32 v26, 1.0')
    th = [(t, h) for t in range(5) for h in range(2)]
    tj = [(t, j) for t in range(5) for j in range(4)]
    for t, h in th:
        a(f'v_pk_add_f32 {V(R(t, 2 * h), 2)}, {V(R(t, 2 * h), 2)}, {V(34 + 2 * h, 2)}')
    for t, h in th:
        a(f'v_pk_mul_f32 {V(T(t, 2 * h), 2)}, {V(R(t, 2 * h), 2)}, {V(R(t, 2 * h), 2)}')
    for t, h in th:
        a(f'v_pk_fma_f32 {V(T(t, 2 * h), 2)}, {V(T(t, 2 * h), 2)}, s[4:5], v[24:25] op_sel_hi:[1,0,0]')
    for t, h in th:
        a(f'v_pk_mul_f32 {V(T(t, 2 * h), 2)}, {V(T(t, 2 * h), 2)}, {V(R(t, 2 * h), 2)}')
    for t, j in tj:
        a(f'v_exp_f32 v{T(t, j)}, v{T(t, j)}')
    for t, h in th:
        a(f'v_pk_add_f32 {V(T(t, 2 * h), 2)}, {V(T(t, 2 * h), 2)}, v[26:27] op_sel_hi:[1,0]')
    for t, j in tj:
        a(f'v_rcp_f32 v{T(t, j)}, v{T(t, j)}')
    for t, h in th:
        a(f'v_pk_mul_f32 {V(T(t, 2 * h), 2)}, {V(T(t, 2 * h), 2)}, {V(R(t, 2 * h), 2)}')
    a(f's_mul_i32 s4, s{sW8}, 2560')
    a('s_add_u32 s4, s4, 81920')
    a(f'v_lshl_add_u32 v24, v{vL}, 3, s4')
    for t in range(5):
        a(f'v_cvt_pk_bf16_f32 v{R(t, 0)}, v{T(t, 0)}, v{T(t, 1)}')
        a(f'v_cvt_pk_bf16_f32 v{R(t, 1)}, v{T(t, 2)}, v{T(t, 3)}')
        a(f'ds_write_b64 v24, {V(R(t, 0), 2)} offset:{t * 512}')
    a(f's_mul_i32 s4, s{sBDB}, 74')
    a(f's_lshl_b32 s5, s{sBCB}, 1')
    a('s_add_u32 s4, s4, s5')
    a('s_mul_i32 s4, s4, 5120')
    a(f's_add_u32 s15, s4, {GF_OFF}')
    a(f's_mul_i32 s4, s{sWH}, 10240')
    a('s_add_u32 s4, s4, 81920')
    a(f'v_lshl_add_u32 v25, v{vL}, 3, s4')
    a.wait_lg0()
    a('s_barrier')
    gt = []
    for m in range(3):
        frag10_addr(a, m, 2 * 2560 - 5 * 512, 512, 15, 24, 25, 34 + m)
        a(f'ds_read_b64 {V(ACC(m, 2), 2)}, v24')
        gt.append(a(f'ds_read_b64 {V(ACC(m, 2) + 2, 2)}, v24 offset:2560'))
    for m in range(3):
        a.wait(gt[m])
        a(f'buffer_store_dwordx4 {V(ACC(m, 2), 4)}, v{34 + m}, {S(sWS, 4)}, 0 offen sc1')
    a(f's_lshl_b32 s4, s{sBDB}, 5')
    a(f's_add_u32 s4, s4, s{sBCB}')
    a('s_lshl_b32 s4, s4, 2')
    a(f's_add_u32 s4, s4, s{sW}')
    a(f's_lshl_b32 s4, s4, {FSH}')
    a(f's_add_u32 s10, s4, {FG_OFF}')
    a('s_branch L_join')


def role_r(a):
    a('s_lshl_b32 s11, s6, 1')
    a(f's_add_u32 s11, s11, s{sWH}')
    a('s_lshr_b32 s8, s6, 3')
    a('s_lshl_b32 s8, s8, 3')
    a(f's_add_u32 s8, s8, s{sW8}')
    a('s_getpc_b64 s[6:7]')
    a.raw('L_pc:')
    a(f's_sub_u32 s{sAUX}, s6, L_pc - L_start')
    a('s_subb_u32 s7, s7, 0')
    a(f's_and_b32 s{sAUX + 1}, s7, 0xffff')
    a(f's_mov_b32 s{sAUX + 2}, L_end - L_start')
    a(f's_mov_b32 s{sAUX + 3}, 0x20000')
    a('s_lshl_b32 s6, s8, 13')
    a(f'v_lshl_add_u32 v25, v{vL}, 7, s6')
    if 'nocpf' not in EXP:
        a(f'buffer_load_dword v37, v25, {S(sAUX, 4)}, 0 offen')
    if 'notlb' not in EXP:
        a(f's_lshl_b32 s5, s8, 6')
        a(f'v_add_u32 v26, s5, v{vL}')
        a(f'v_mul_u32_u24 v27, {(WS_USED // 1024 + 127) // 128 * 128}, v26')
        a(f'buffer_load_dword v37, v27, {S(sWS, 4)}, 0 offen sc1')
        a('v_lshlrev_b32 v27, 13, v26')
        a(f'buffer_load_dword v37, v27, {S(sW2, 4)}, 0 offen')
        srd(a, sOUT, P_OUT, S_ * D_ * 2)
        a('v_lshlrev_b32 v27, 12, v26')
        a(f'buffer_load_dword v37, v27, {S(sOUT, 4)}, 0 offen sc1')
        srd(a, sAUX, P_B2, S_ * 2)
        a(f'buffer_load_dword v37, v27, {S(sAUX, 4)}, 0 offen')
    if 'wqlin' in EXP:
        srd(a, sWQ, P_WQKV, D_ * 3 * D_ * 2)
        a(f's_sub_u32 s5, s{sID}, 240')
        a('s_lshl_b32 s5, s5, 3')
        a(f's_add_u32 s5, s5, s{sW8}')
        a('s_mul_i32 s5, s5, 24576')
        a(f'v_lshl_add_u32 v26, v{vL}, 7, s5')
        for k in range(3):
            a(f'buffer_load_dword v37, v26, {S(sWQ, 4)}, 0 offen')
            a('v_add_u32 v26, 8192, v26')
    if 'w2lin' in EXP:
        a(f's_sub_u32 s5, s{sID}, 240')
        a('s_lshl_b32 s5, s5, 3')
        a(f's_add_u32 s5, s5, s{sW8}')
        a('s_lshl_b32 s5, s5, 13')
        a(f'v_lshl_add_u32 v38, v{vL}, 7, s5')
    if 'g2map8' in EXP:
        a(f's_mul_i32 s5, s8, {108 * 4096}')
        a(f's_and_b32 s7, s{sID}, 7')
        a('s_lshl_b32 s7, s7, 9')
        a('s_add_u32 s5, s5, s7')
        a(f'v_lshrrev_b32 v24, 2, v{vL}')
        a('v_lshlrev_b32 v24, 12, v24')
        a(f'v_lshl_add_u32 v24, v{vC}, 7, v24')
        a('v_add_u32 v24, s5, v24')
    else:
        a('s_mul_i32 s5, s8, 54')
        a(f's_and_b32 s7, s{sID}, 1')
        a('s_mul_i32 s7, s7, 864')
        a('s_add_u32 s5, s5, s7')
        a('s_lshl_b32 s5, s5, 12')
        a(f's_and_b32 s7, s{sID}, 6')
        a('s_lshl_b32 s7, s7, 9')
        a('s_add_u32 s5, s5, s7')
        a(f'v_lshrrev_b32 v24, 3, v{vL}')
        a(f'v_and_b32 v25, 7, v{vL}')
        a('v_lshlrev_b32 v24, 12, v24')
        a('v_lshl_add_u32 v24, v25, 7, v24')
        a('v_add_u32 v24, s5, v24')
    tag_ready(a)
    a(f'v_mov_b32 v{vFL}, {FH_OFF}')
    if 'pf2now' not in EXP:
        flag_check(a, flag_issue(a, vFL, vFD), vFL, vFD, 16)
    PFA = int(os.environ.get('PFA', '7'))
    a('v_mov_b32 v36, v38' if 'w2lin' in EXP else 'v_mov_b32 v36, v24')
    for k in range(PFA):
        a(f'buffer_load_dword v37, v36, {S(sW2, 4)}, 0 offen')
        a(f'v_add_u32 v36, {(16 if "g2map8" in EXP else 8) * 4096}, v36')
        if k % 2 == 1 and 'pf2fast' not in EXP:
            a.wait_vm0()
    stamp(a, 'prep')
    a('s_setprio 3')
    a(f's_lshl_b32 s4, s11, {4 + FSH}')
    a(f's_add_u32 s4, s4, {FK_OFF}')
    a(f'v_lshl_add_u32 v{vFL}, v{vI}, {FSH}, s4')
    a(f's_lshl_b32 s5, s{sW}, 11')
    a(f'v_lshl_add_u32 v24, v{vL}, 4, s5')
    a(f'v_lshrrev_b32 v25, 5, v{vL}')
    a(f'v_and_b32 v26, 31, v{vL}')
    a('v_lshlrev_b32 v26, 4, v26')
    a('v_lshl_add_u32 v25, v25, 11, v26')
    a('v_add_u32 v25, 1024, v25')
    a(f's_cmp_eq_u32 s{sW}, 2')
    a('s_cselect_b64 vcc, -1, 0')
    a('v_cndmask_b32 v24, v24, v25, vcc')
    a(f'v_lshrrev_b32 v25, 3, v{vL}')
    a(f'v_and_b32 v26, 7, v{vL}')
    a('v_lshlrev_b32 v26, 4, v26')
    a('v_lshl_add_u32 v25, v25, 8, v26')
    a('v_add_u32 v25, 4096, v25')
    a(f's_cmp_eq_u32 s{sW}, 3')
    a('s_cselect_b64 vcc, -1, 0')
    a('v_cndmask_b32 v24, v24, v25, vcc')
    a(f's_mul_i32 s4, s11, {16 * 6144}')
    a(f's_add_u32 s4, s4, {KV_OFF}')
    flag_check(a, flag_issue(a, vFL, vFD), vFL, vFD, 4)
    stamp(a, 'hok')
    stok = []
    for rb in range(16):
        stok.append(a(f'buffer_load_dwordx4 {V(128 + 4 * rb, 4)}, v24, {S(sWS, 4)}, s4 offen sc1'))
        a('s_add_u32 s4, s4, 6144')
    for rb in range(1, 16):
        a.wait(stok[rb])
        for h in range(2):
            a(f'v_pk_add_f32 {V(128 + 2 * h, 2)}, {V(128 + 2 * h, 2)}, {V(128 + 4 * rb + 2 * h, 2)}')
    stamp(a, 'rsum')
    a('v_cvt_pk_bf16_f32 v34, v128, v129')
    a('v_cvt_pk_bf16_f32 v35, v130, v131')
    a('s_lshl_b32 s4, s11, 11')
    a(f's_add_u32 s4, s4, {KB_OFF}')
    a(f'v_lshl_add_u32 v24, v{vTH}, 3, s4')
    a(f'buffer_store_dwordx2 v[34:35], v24, {S(sWS, 4)}, 0 offen sc1')
    a('s_lshl_b32 s4, s11, 2')
    a(f's_add_u32 s4, s4, s{sW}')
    a(f's_lshl_b32 s4, s4, {FSH}')
    a(f's_add_u32 s10, s4, {FR_OFF}')
    a.wait_vm0()
    flag_set(a, 10)
    a(f's_mov_b32 s10, {OOB}')
    stamp(a, 'rpub')
    a('s_barrier')
    for k in range(PFA, 0 if 'nopf2' in EXP else 7):
        a(f'buffer_load_dword v37, v36, {S(sW2, 4)}, 0 offen')
        a(f'v_add_u32 v36, {8 * 4096}, v36')
    a('s_branch L_join')


def role_wot(a):
    a('s_lshl_b32 s11, s6, 1')
    a(f's_add_u32 s11, s11, s{sWH}')
    srd(a, sAUX, P_WO, D_ * D_ * 2)
    a(f'v_lshlrev_b32 v{vF}, 4, v{vL}')
    a(f'v_add_u32 v{vF + 1}, 4096, v{vF}')
    tag_ready(a)
    dma160_voffs(a, 34, 1280, False, 24)
    a('s_mul_i32 s4, s11, 160')
    a(f's_mul_i32 s5, s{sW}, {160 * 1280}')
    a('s_add_u32 s7, s4, s5')
    a(f's_mul_i32 s6, s{sW8}, 20480')
    a(f'v_mul_u32_u24 v24, 20, v{vG}')
    a(f'v_add_u32 v24, v24, v{vR}')
    a('v_mul_u32_u24 v24, 160, v24')
    a(f'v_mul_u32_u24 v25, 40, v{vC}')
    a('v_add_u32 v24, v24, v25')
    a('v_add_u32 v24, s6, v24')
    a('s_mul_i32 s4, s11, 74')
    a(f's_mul_i32 s5, s{sW}, 5')
    a('s_add_u32 s4, s4, s5')
    a('s_add_u32 s4, s4, 54')
    a('s_mul_i32 s4, s4, 5120')
    a(f's_add_u32 s4, s4, {GF_OFF}')
    rounds = [[(0, 0, 0), (0, 1, 4), (1, 0, 8), (1, 1, 12), (2, 0, 16)],
              [(2, 1, 16), (3, 0, 0), (3, 1, 4), (4, 0, 8), (4, 1, 12)]]
    for rd in range(2):
        for k in range(3):
            a(f's_add_u32 s8, s7, {(rd * 80 + k * 32) * 1280}')
            dma160(a, 34, sAUX, 8, 6, k * 5120)
        a.wait_vm0()
        for u, hf, row in rounds[rd]:
            for t in range(5):
                a(f'ds_read_b64_tr_b16 {V(156 + (u * 5 + t) * 4 + 2 * hf, 2)}, v24 offset:{row * 160 + 8 * t}')
            a.wait_lg0()
    for u in range(5):
        for t in range(5):
            vo, off = (vF, t * 1024) if t < 4 else (vF + 1, 0)
            a(f'buffer_store_dwordx4 {V(156 + (u * 5 + t) * 4, 4)}, v{vo}, {S(sWS, 4)}, s4 offen offset:{off} sc1')
        a('s_add_u32 s4, s4, 5120')
    a('s_lshl_b32 s4, s11, 2')
    a(f's_add_u32 s4, s4, s{sW}')
    a(f's_lshl_b32 s4, s4, {FSH}')
    a(f's_add_u32 s10, s4, {FW_OFF}')
    a('s_barrier')


def final_gemm(a):
    a.wait_all()
    flag_set(a, 10)
    stamp(a, 'pub')
    a('s_setprio 0')
    a(f's_cmp_lg_u32 s{sWH}, 0')
    a('s_cbranch_scc1 L_fin')
    xcd_tile(a)
    g_common(a)
    g2 = GGemm(a, 'G2')
    g2.setup()
    for j in range(G2_P):
        Hooks(g2.dma_items(j)).flush()
    srd(a, sOUT, P_OUT, S_ * D_ * 2)
    R = lambda t, j: ACC(t, 0) + j
    T = lambda t, j: ACC(t, 1) + j
    srd(a, sAUX, P_B2, S_ * 2)
    a(f's_lshl_b32 s4, s{sRB}, {5 + FSH}')
    a(f's_lshl_b32 s5, s{sW}, {3 + FSH}')
    a('s_add_u32 s4, s4, s5')
    a(f's_add_u32 s4, s4, {FO_OFF}')
    a(f'v_lshl_add_u32 v34, v{vC}, {FSH + 1}, s4')
    a(f's_lshl_b32 s4, s{sHG}, 2')
    a(f's_add_u32 s4, s4, s{sW}')
    a(f's_lshl_b32 s4, s4, {FSH}')
    a(f's_add_u32 s4, s4, {FW_OFF}')
    a('v_mov_b32 v35, s4')
    a(f'v_cmp_gt_u32 vcc, 63, v{vL}')
    a(f'v_cndmask_b32 v{vFL}, v35, v{vFL}, vcc')
    for nt in range(4):
        a(f's_xor_b32 s4, s{sW}, {nt}')
        a('s_lshl_b32 s4, s4, 10')
        a(f'v_add_u32 v{vOF + nt}, s4, v{vF}')
    a(f's_mul_i32 s4, s{sRB}, 20')
    a(f's_mul_i32 s5, s{sW}, 5')
    a('s_add_u32 s4, s4, s5')
    a('s_lshl_b32 s4, s4, 12')
    a(f's_add_u32 s11, s4, {OF_OFF}')
    a(f'v_mul_u32_u24 v{vXA}, 1280, v{vTOK}')
    a(f'v_mul_u32_u24 v{vBA}, 40, v{vG}')
    a(f'v_add_u32 v{vXA}, v{vXA}, v{vBA}')
    a(f's_mul_i32 s4, s{sHG}, 160')
    a(f'v_add_u32 v{vXA}, s4, v{vXA}')
    a(f'v_lshlrev_b32 v{vBA}, 1, v{vTOK}')
    flag_check(a, flag_issue(a, vFL, vFD), vFL, vFD)
    stamp(a, 'gok')
    fl = {}

    def gate():
        a(f's_mul_i32 s4, s{sHG}, 74')
        a(f's_mul_i32 s5, s{sW}, 5')
        a('s_add_u32 s4, s4, s5')
        a('s_add_u32 s4, s4, 54')
        a('s_mul_i32 s4, s4, 5120')
        a(f's_add_u32 s{sFS}, s4, {GF_OFF}')

    def gate2():
        stamp(a, 'oa')
        flag_check(a, fl['o'], 34, 35)
        stamp(a, 'ob')

    g2.gate = gate
    g2.gate2 = gate2
    XR = [8, 10, 14, 16, 18]

    def g2_extra(j):
        it = []
        if j == 9:
            def fo():
                fl['o'] = flag_issue(a, 34, 35)
            it.append(fo)
        if j == int(os.environ.get('JRES', '16')):
            def resid():
                a(f'buffer_load_ushort v36, v{vBA}, {S(sAUX, 4)}, 0 offen')
                for t in range(5):
                    fl['x'] = a(f'buffer_load_dwordx2 {V(XR[t], 2)}, v{vXA}, {S(sX, 4)}, 0 offen offset:{8 * t}')
            it.append(resid)
        return it

    Hooks(g2.frag_items(int(os.environ.get('FIRSTG', '25')))).flush()
    g2.mainloop(g2_extra)
    stamp(a, 'Gend')
    g2.reduce()
    a.wait(fl['x'])
    a('v_lshlrev_b32 v36, 16, v36')
    for t in range(5):
        for h in range(2):
            a(f'v_lshlrev_b32 v{T(t, 2 * h)}, 16, v{XR[t] + h}')
            a(f'v_and_b32 v{T(t, 2 * h + 1)}, 0xffff0000, v{XR[t] + h}')
            a(f'v_pk_add_f32 {V(R(t, 2 * h), 2)}, {V(R(t, 2 * h), 2)}, v[36:37] op_sel_hi:[1,0]')
            a(f'v_pk_add_f32 {V(R(t, 2 * h), 2)}, {V(R(t, 2 * h), 2)}, {V(T(t, 2 * h), 2)}')
        a(f'v_cvt_pk_bf16_f32 v{R(t, 0)}, v{R(t, 0)}, v{R(t, 1)}')
        a(f'v_cvt_pk_bf16_f32 v{R(t, 1)}, v{R(t, 2)}, v{R(t, 3)}')
        a(f'buffer_store_dwordx2 {V(R(t, 0), 2)}, v{vXA}, {S(sOUT, 4)}, 0 offen offset:{8 * t}')
    a.label('L_fin')
    stamp_flush(a, 'end')


def build():
    a = Asm()
    hdr = open(os.path.join(os.path.dirname(__file__), '..', 'cdna_kernels', NAME + '.s.ref')).read().split('\n')
    for line in hdr:
        if line.startswith(';') and '@launch' not in line:
            a.raw(line)
    a.raw(f'; @launch grid=(256,1,1) block=(512,1,1) lds={LDS_BYTES}')
    a.raw('.amdgcn_target "amdgcn-amd-amdhsa--gfx950"')
    a.raw('.text')
    K = NAME + '_kernel'
    a.raw(f'.globl {K}')
    a.raw('.p2align 8')
    a.raw(f'.type {K},@function')
    a.raw(f'{K}:')
    a.raw('L_start:')
    a('s_cmp_ge_u32 s2, 256')
    a('s_cbranch_scc1 L_end')
    a('s_load_dwordx16 s[16:31], s[0:1], 0')
    a('s_load_dwordx8 s[32:39], s[0:1], 64')
    a(f'v_and_b32 v{vL}, 63, v0')
    a('v_lshrrev_b32 v6, 6, v0')
    a(f'v_readfirstlane_b32 s{sW8}, v6')
    a(f'v_lshrrev_b32 v{vG}, 4, v{vL}')
    a(f'v_and_b32 v{vI}, 15, v{vL}')
    a(f'v_lshrrev_b32 v{vR}, 2, v{vI}')
    a(f'v_and_b32 v{vC}, 3, v{vL}')
    a(f'v_lshl_add_u32 v{vGR}, v{vG}, 2, v{vR}')
    a(f'v_and_b32 v{vTH}, 255, v0')
    a(f's_and_b32 s{sW}, s{sW8}, 3')
    a(f's_lshr_b32 s{sWH}, s{sW8}, 2')
    a(f's_mov_b32 s{sID}, s2')
    a('s_waitcnt lgkmcnt(0)')
    a(f's_add_u32 s4, s{P_WS}, {EP_OFF}')
    a(f's_addc_u32 s5, s{P_WS + 1}, 0')
    a(f's_load_dword s{sTAG}, s[4:5], 0')
    srd(a, sX, P_X, S_ * D_ * 2)
    srd(a, sWS, P_WS, WS_USED)
    srd(a, sW2, P_W2, F_ * S_ * 2)
    stamp(a, 'start')
    if 'noticket' not in EXP:
        srd(a, sAUX, P_DBG, 256)
        a(f'v_mov_b32 v8, {L_CNT + 16}')
        a(f's_cmp_lg_u32 s{sW8}, 0')
        a('s_cbranch_scc1 L_ticket_done')
        a('s_getreg_b32 s4, hwreg(HW_REG_XCC_ID)')
        a('s_mov_b32 s6, 0')
        a('s_mov_b64 exec, 1')
        a.label('L_ticket')
        a('s_and_b32 s4, s4, 7')
        a('s_lshl_b32 s5, s4, 5')
        a('v_mov_b32 v9, s5')
        a('v_mov_b32 v10, 1')
        a(f'buffer_atomic_add v10, v9, {S(sAUX, 4)}, 0 offen sc0 sc1')
        a.wait_vm0()
        a('v_readfirstlane_b32 s5, v10')
        a('s_cmp_lt_u32 s5, 32')
        a('s_cbranch_scc1 L_ticket_ok')
        a('s_add_u32 s4, s4, 1')
        a('s_add_u32 s6, s6, 1')
        a('s_cmp_lt_u32 s6, 8')
        a('s_cbranch_scc1 L_ticket')
        a.label('L_ticket_ok')
        a('s_lshl_b32 s5, s5, 3')
        a('s_add_u32 s5, s5, s4')
        a('v_mov_b32 v9, s5')
        a('ds_write_b32 v8, v9')
        a('s_mov_b64 exec, -1')
        a('s_waitcnt lgkmcnt(0)')
        a.label('L_ticket_done')
        a('s_barrier')
        a('ds_read_b32 v9, v8')
        a('s_waitcnt lgkmcnt(0)')
        a('s_barrier')
        a(f'v_readfirstlane_b32 s{sID}, v9')
        a(f's_and_b32 s{sID}, s{sID}, 255')
        a.reset_counters()
        stamp(a, 'tick')
    if os.environ.get('UPRIO', '1') != '0':
        a(f's_cmp_eq_u32 s{sWH}, 0')
        a('s_cbranch_scc1 L_prio')
        a(f's_setprio {os.environ.get("UPRIO", "1")}')
        a.label('L_prio')
    a(f's_cmp_ge_u32 s{sID}, 128')
    a('s_cbranch_scc1 L_not_a')
    role_a(a)
    a.label('L_not_a')
    a.reset_counters()
    a(f's_and_b32 s4, s{sID}, 7')
    a(f's_lshr_b32 s5, s{sID}, 3')
    a('s_sub_u32 s5, s5, 16')
    a('s_cmp_ge_u32 s5, 14')
    a('s_cbranch_scc1 L_role_r')
    a('s_and_b32 s7, s4, 1')
    a('s_add_u32 s7, s7, 13')
    a('s_cmp_ge_u32 s5, s7')
    a('s_cbranch_scc1 L_role_wot')
    a('s_mul_i32 s6, s4, 27')
    a('s_lshr_b32 s6, s6, 1')
    a('s_add_u32 s6, s6, s5')
    role_b(a)
    a.label('L_role_r')
    a.reset_counters()
    a(f's_sub_u32 s6, s{sID}, 240')
    role_r(a)
    a.label('L_role_wot')
    a.reset_counters()
    a('s_lshr_b32 s6, s4, 1')
    role_wot(a)
    a.label('L_join')
    final_gemm(a)
    a.label('L_end')
    a('s_endpgm')
    if STAMPS:
        a.raw('; STAMPS ' + ' '.join(STAMP_NAMES))
    a.raw('.section .rodata,"a"')
    a.raw(f""".p2align 6
.amdhsa_kernel {K}
  .amdhsa_next_free_vgpr 256
  .amdhsa_next_free_sgpr 102
  .amdhsa_accum_offset 256
  .amdhsa_group_segment_fixed_size 0
  .amdhsa_kernarg_size 96
  .amdhsa_user_sgpr_count 2
  .amdhsa_user_sgpr_kernarg_segment_ptr 1
  .amdhsa_system_sgpr_workgroup_id_x 1
.end_amdhsa_kernel""")
    sys.stderr.write(f'maxv={a.maxv} maxa={a.maxa} maxs={a.maxs} nops={a.nops} lines={len(a.out)}\n')
    return a.text()


if __name__ == '__main__':
    out = sys.argv[1] if len(sys.argv) > 1 else os.path.join(os.path.dirname(__file__), '..', 'cdna_kernels', NAME + '.s')
    open(out, 'w').write(build())
```

```python
import sys, struct, os
sys.path.insert(0, os.path.dirname(__file__))
from asmdsl import Asm, Rec, V, A, S

NAME = 'parallel_sum__linear_kernel_hedgehog__mixer_token_mlp__prompt'
S_, D_, F_ = 2048, 640, 1728

HF_OFF = 0
HF_SZ = 8 * 64 * 5 * 1024
GF_OFF = HF_OFF + HF_SZ
GF_SZ = 8 * 74 * 5 * 1024
OF_OFF = GF_OFF + GF_SZ
OF_SZ = 32 * 20 * 4 * 1024
XF_OFF = OF_OFF + OF_SZ
XF_SZ = 128 * 20480
WF_OFF = XF_OFF + XF_SZ
WF_SZ = 480 * 5120 + 4096
KV_OFF = WF_OFF + WF_SZ
KV_SZ = 32 * 32 * 6144
KB_OFF = KV_OFF + KV_SZ + 4096
KB_SZ = 32 * 2048
FL_OFF = KB_OFF + KB_SZ + 4096
FSH = int(os.environ.get('FSH', '6'))
FH_OFF = FL_OFF
FK_OFF = FH_OFF + (1024 << FSH)
FR_OFF = FK_OFF + (1024 << FSH)
FG_OFF = FR_OFF + (128 << FSH)
FO_OFF = FG_OFF + (1024 << FSH)
FW_OFF = FO_OFF + (1024 << FSH)
FU_OFF = FW_OFF + (128 << FSH)
EP_OFF = FU_OFF + (512 << FSH)
WS_USED = EP_OFF + 512
STAMP_OFF = WS_USED
WS_USED += 512 * 256
STAMPS = bool(int(os.environ.get('STAMPS', '0')))
EXP = os.environ.get('EXP', '').split(',') + [e for e in ['map4', 'noticket', 'notlb', 'g2map8', 'nopf2', 'pfa', 'pf2now'] if e not in os.environ.get('OFF', '').split(',')]
OOB = 0x40000000

P_X, P_WQKV, P_WPHI, P_WO, P_BX, P_W1, P_B1, P_W2, P_B2, P_OUT, P_DBG, P_WS = range(16, 40, 2)
LOG2E = 1.4426950408889634

sW = 3
sW8, sWH = 90, 91
sWS, sX, sWQ, sW1, sW2, sAUX, sOUT = 40, 44, 48, 52, 56, 60, 64
sHG, sRB, sID, sROT, sKS, sT, sM0B, sTAG = 68, 69, 70, 71, 72, 73, 74, 75
sL, sNL = 76, 78
sBDB, sBCB, sFS, sGM0, sSPIN, sLIM = 80, 81, 82, 83, 84, 85
vL, vG, vI, vR, vC = 1, 2, 3, 4, 5
vTOK, vGR = 6, 7
vFS = 42
DB = 64
XN = lambda s: DB + 8 * s
UP = lambda k: DB + 8 * k + 4

LDS_BYTES = 163840
A_SLOTS = 4
L_WQ = 0
L_RING = 102400
L_ZERO = 122880
L_WPHI = 126976
L_CNT = 131072
B_P = 10
G2_P = 5
ILV = os.environ.get('ILV', 'burst')


def kb_pos(f, t):
    if f < 32:
        return (f >> 4) * 512 + (t * 16 + (f & 15)) * 8 if t < 4 else 1024 + ((f >> 4) * 32 + (t - 4) * 16 + (f & 15)) * 8
    return 1536 + (t * 8 + f - 32) * 8


def fbits(x):
    return '0x%08x' % struct.unpack('<I', struct.pack('<f', x))[0]


def srd(a, dst, ptr, nbytes):
    a(f's_mov_b32 s{dst}, s{ptr}')
    a(f's_and_b32 s{dst + 1}, s{ptr + 1}, 0xffff')
    a(f's_mov_b32 s{dst + 2}, {nbytes}')
    a(f's_mov_b32 s{dst + 3}, 0x20000')


STAMP_NAMES = []
vST = 41


def stamp(a, name):
    if not STAMPS:
        return
    name = str(name)
    if name not in STAMP_NAMES:
        STAMP_NAMES.append(name)
    idx = STAMP_NAMES.index(name)
    a('s_memrealtime s[98:99]')
    a.wait_lg0()
    if idx == 0:
        a(f'v_mov_b32 v{vST}, 0')
        a('s_getreg_b32 s97, hwreg(HW_REG_HW_ID)')
        a(f'v_writelane_b32 v{vST}, s97, 63')
    a(f'v_writelane_b32 v{vST}, s98, {idx}')


def stamp_flush(a, n):
    if not STAMPS:
        return
    a.wait_vm0()
    stamp(a, n)
    lab = a.newlabel('st')
    a(f's_cmp_lg_u32 s{sW}, 0')
    a(f's_cbranch_scc1 {lab}')
    a(f's_lshl_b32 s4, s{sWH}, 8')
    a(f's_add_u32 s4, s4, s{sID}')
    a('s_lshl_b32 s4, s4, 8')
    a(f's_add_u32 s4, s4, {STAMP_OFF}')
    a(f'v_lshl_add_u32 v8, v{vL}, 2, s4')
    a(f'buffer_store_dword v{vST}, v8, {S(sWS, 4)}, 0 offen')
    if 'dbg1' in EXP:
        srd(a, sAUX, P_DBG, 256)
        for wg, base, sel in ((136, 0, 'start,prep,go,B_0,Bend,pub,gok,G2_0,Gend,end'), (8, 10, 'start,x,prep,go,aend,G2_9')):
            l2 = a.newlabel('dbg')
            a(f's_lshl_b32 s4, s{sWH}, 8')
            a(f's_add_u32 s4, s4, s{sID}')
            a(f's_cmp_lg_u32 s4, {wg}')
            a(f's_cbranch_scc1 {l2}')
            for k, nm in enumerate(sel.split(',')):
                if nm not in STAMP_NAMES:
                    STAMP_NAMES.append(nm)
                a(f'v_readlane_b32 s4, v{vST}, {STAMP_NAMES.index(nm)}')
                a('v_mov_b32 v9, s4')
                a('v_mov_b32 v8, 0')
                a(f'buffer_store_dword v9, v8, {S(sAUX, 4)}, 0 offen offset:{4 * (base + k)}')
            a.label(l2)
    a.label(lab)


def reduce_g(a, r, t):
    a(f'v_mov_b32 v{t}, v{r}')
    a(f'v_permlane32_swap_b32 v{r}, v{t}')
    a(f'v_add_f32 v{r}, v{r}, v{t}')
    a(f'v_mov_b32 v{t}, v{r}')
    a(f'v_permlane16_swap_b32 v{r}, v{t}')
    a(f'v_add_f32 v{r}, v{r}, v{t}')


def dma160_voffs(a, dst, stride, permute, tmp):
    t0, t2, t3 = tmp, tmp + 1, tmp + 2
    for q in range(5):
        d = dst + q
        a(f'v_add_u32 v{t0}, {q * 64}, v{vL}')
        a(f'v_mul_u32_u24 v{t2}, 6554, v{t0}')
        a(f'v_lshrrev_b32 v{t2}, 16, v{t2}')
        a(f'v_mul_u32_u24 v{t3}, 10, v{t2}')
        a(f'v_sub_u32 v{t0}, v{t0}, v{t3}')
        if permute:
            a(f'v_bfe_u32 v{t3}, v{t2}, 2, 2')
            a(f'v_lshlrev_b32 v{t3}, 3, v{t3}')
            a(f'v_and_b32 v{d}, 3, v{t2}')
            a(f'v_add_u32 v{t3}, v{t3}, v{d}')
            a(f'v_lshrrev_b32 v{t2}, 4, v{t2}')
            a(f'v_lshl_add_u32 v{t2}, v{t2}, 2, v{t3}')
        a(f'v_mul_u32_u24 v{t2}, {stride}, v{t2}')
        a(f'v_lshl_add_u32 v{d}, v{t0}, 4, v{t2}')
        if 0 < q < 4:
            a(f'v_subrev_u32 v{d}, {q * 1024}, v{d}')


def dma160(a, vo, ssrd, soff, m0_s, m0_add, nt=''):
    a(f's_add_u32 m0, s{m0_s}, {m0_add}')
    for q in range(4):
        off = f' offset:{q * 1024}' if q else ''
        a(f'buffer_load_dwordx4 v{vo + q}, {S(ssrd, 4)}, s{soff} offen{off}{nt} lds')
    a(f's_add_u32 m0, s{m0_s}, {m0_add + 4096}')
    return a(f'buffer_load_dwordx4 v{vo + 4}, {S(ssrd, 4)}, s{soff} offen{nt} lds')


class Hooks:
    def __init__(self, items=()):
        self.items = list(items)

    def run(self, n=1):
        for _ in range(n):
            if self.items:
                self.items.pop(0)()

    def flush(self):
        self.run(len(self.items))


def softmax_pm(a, P, PH, EP, EN, tmp):
    p = [P[k // 4] + k % 4 for k in range(20)]
    ep = [EP[k // 4] + k % 4 for k in range(20)]
    en = [EN[k // 4] + k % 4 for k in range(20)]
    mx, mn, sp, sn = tmp, tmp + 2, tmp + 4, tmp + 6
    a(f'v_max3_f32 v{mx}, v{p[0]}, v{p[1]}, v{p[2]}')
    a(f'v_min3_f32 v{mn}, v{p[0]}, v{p[1]}, v{p[2]}')
    for k in range(3, 19, 2):
        a(f'v_max3_f32 v{mx}, v{mx}, v{p[k]}, v{p[k + 1]}')
        a(f'v_min3_f32 v{mn}, v{mn}, v{p[k]}, v{p[k + 1]}')
    a(f'v_max_f32 v{mx}, v{mx}, v{p[19]}')
    a(f'v_min_f32 v{mn}, v{mn}, v{p[19]}')
    a(f'v_mul_f32 v{mx}, s{sNL}, v{mx}')
    a(f'v_mul_f32 v{mn}, s{sL}, v{mn}')
    for k in range(0, 20, 2):
        a(f'v_pk_fma_f32 {V(ep[k], 2)}, {V(p[k], 2)}, {S(sL, 2)}, {V(mx, 2)} op_sel_hi:[1,0,0]')
        a(f'v_pk_fma_f32 {V(en[k], 2)}, {V(p[k], 2)}, {S(sNL, 2)}, {V(mn, 2)} op_sel_hi:[1,0,0]')
    for k in range(20):
        a(f'v_exp_f32 v{ep[k]}, v{ep[k]}')
        a(f'v_exp_f32 v{en[k]}, v{en[k]}')
    a(f'v_pk_add_f32 {V(sp, 2)}, {V(ep[0], 2)}, {V(ep[2], 2)}')
    a(f'v_pk_add_f32 {V(sn, 2)}, {V(en[0], 2)}, {V(en[2], 2)}')
    for k in range(4, 20, 2):
        a(f'v_pk_add_f32 {V(sp, 2)}, {V(sp, 2)}, {V(ep[k], 2)}')
        a(f'v_pk_add_f32 {V(sn, 2)}, {V(sn, 2)}, {V(en[k], 2)}')
    a(f'v_add_f32 v{sp}, v{sp}, v{sp + 1}')
    a(f'v_add_f32 v{sn}, v{sn}, v{sn + 1}')
    a(f'v_rcp_f32 v{sp}, v{sp}')
    a(f'v_rcp_f32 v{sn}, v{sn}')
    for k in range(0, 20, 2):
        a(f'v_pk_mul_f32 {V(ep[k], 2)}, {V(ep[k], 2)}, {V(sp, 2)} op_sel_hi:[1,0]')
        a(f'v_pk_mul_f32 {V(en[k], 2)}, {V(en[k], 2)}, {V(sn, 2)} op_sel_hi:[1,0]')
    allv = ep + en
    for k in range(20):
        a(f'v_cvt_pk_bf16_f32 v{PH[k // 4] + k % 4}, v{allv[2 * k]}, v{allv[2 * k + 1]}')


def flag_set(a, s_off):
    a(f'v_lshl_add_u32 v{vFS}, v{vL}, 2, s{s_off}')
    a(f'v_mov_b32 v{vFS + 1}, s{sTAG}')
    a(f's_mov_b64 exec, {hex((1 << (1 << (FSH - 2))) - 1)}')
    a(f'buffer_store_dword v{vFS + 1}, v{vFS}, {S(sWS, 4)}, 0 offen sc1')
    a('s_mov_b64 exec, -1')


def flag_issue(a, vaddr, vdst):
    return a(f'buffer_load_dword v{vdst}, v{vaddr}, {S(sWS, 4)}, 0 offen sc1')


def flag_check(a, tok, vaddr, vdst, sleep=2):
    ok = a.newlabel('ok')
    lp = a.newlabel('poll')
    a.wait(tok)
    a(f'v_cmp_ne_u32 vcc, s{sTAG}, v{vdst}')
    a(f's_cbranch_vccz {ok}')
    a(f's_mov_b32 s{sSPIN}, 0')
    a.label(lp)
    a(f's_sleep {sleep}')
    a.raw(f'\tbuffer_load_dword v{vdst}, v{vaddr}, {S(sWS, 4)}, 0 offen sc1')
    a('s_waitcnt vmcnt(0)')
    a(f'v_cmp_ne_u32 vcc, s{sTAG}, v{vdst}')
    a(f's_cbranch_vccz {ok}')
    a(f's_add_u32 s{sSPIN}, s{sSPIN}, 1')
    a(f's_cmp_lt_u32 s{sSPIN}, 0x8000')
    a(f's_cbranch_scc1 {lp}')
    a.label(ok)


def featmap(a, ACC5, PK, WPF, P5, EP5, EN5, tmp):
    for k in range(10):
        t, j = divmod(2 * k, 4)
        a(f'v_cvt_pk_bf16_f32 v{PK[k // 4] + k % 4}, v{ACC5[t] + j}, v{ACC5[t] + j + 1}')
    for ks in range(3):
        for t in range(5):
            d = V(P5[t], 4)
            if ks < 2:
                a(f'v_mfma_f32_16x16x32_bf16 {d}, {V(WPF(t, ks), 4)}, {V(PK[ks], 4)}, {"0" if ks == 0 else d}')
            else:
                a(f'v_mfma_f32_16x16x16_bf16 {d}, {V(WPF(t, ks), 2)}, {V(PK[ks], 2)}, {d}')
    softmax_pm(a, P5, P5, EP5, EN5, tmp)


def xcd_tile(a):
    a(f's_and_b32 s4, s{sID}, 7')
    a(f's_lshr_b32 s5, s{sID}, 3')
    if 'g2map8' in EXP:
        a(f's_and_b32 s{sHG}, s5, 7')
        a('s_lshl_b32 s6, s4, 2')
        a('s_lshr_b32 s7, s5, 3')
        a(f's_add_u32 s{sRB}, s6, s7')
    else:
        a('s_and_b32 s6, s4, 1')
        a('s_lshl_b32 s6, s6, 2')
        a('s_and_b32 s7, s5, 3')
        a(f's_add_u32 s{sHG}, s6, s7')
        a('s_lshr_b32 s6, s4, 1')
        a('s_lshl_b32 s6, s6, 3')
        a('s_lshr_b32 s7, s5, 2')
        a(f's_add_u32 s{sRB}, s6, s7')
    a(f's_lshl_b32 s4, s{sRB}, 6')
    a(f's_lshl_b32 s5, s{sW}, 4')
    a('s_add_u32 s4, s4, s5')
    a(f'v_add_u32 v{vTOK}, s4, v{vI}')


def ln_scales(a, vS, vRS, vNB):
    a(f'v_mul_f32 v{vS}, {fbits(1.0 / 640)}, v{vS}')
    a(f'v_mul_f32 v{vS + 2}, {fbits(1.0 / 640)}, v{vS + 2}')
    a(f'v_fma_f32 v{vS + 2}, -v{vS}, v{vS}, v{vS + 2}')
    a(f'v_max_f32 v{vS + 2}, 0, v{vS + 2}')
    a(f'v_add_f32 v{vS + 1}, {fbits(1e-5)}, v{vS + 2}')
    a(f'v_rsq_f32 v{vRS}, v{vS + 1}')
    a(f'v_mul_f32 v{vNB}, v{vS}, v{vRS}')
    a(f'v_sub_f32 v{vNB}, 0, v{vNB}')


vD, vF, vT, vT2, vFL, vFD, vOF, vXA, vBA = 8, 12, 14, 18, 22, 23, 28, 32, 33
ACC = lambda t, nt: 44 + (nt * 5 + t) * 4
TF = lambda j, nt: 124 + (j % 2) * 16 + 4 * nt
POOL = [156 + 4 * k for k in range(25)]


class GGemm:
    def __init__(self, a, kind):
        self.a, self.kind = a, kind
        if kind == 'B':
            self.stride, self.srdm, self.n, self.fr_off, self.fr_steps = F_ * 2, sW1, 16, HF_OFF, 64
            self.sdb, self.scb, self.ntot, self.P = sBDB, sBCB, 16, B_P
        else:
            self.stride, self.srdm, self.n, self.fr_off, self.fr_steps = S_ * 2, sW2, 14, GF_OFF, 74
            self.sdb, self.scb, self.ntot, self.P = sHG, sRB, 19, G2_P
        self.dtok, self.ftok, self.ttok = {}, {}, {}
        self.free = list(POOL)
        self.reg = {}
        self.pending = []
        order = [(j, 'a') for j in range(self.n)]
        if kind == 'G2':
            order += [(j, k) for j in range(14, 19) for k in 'ab']
        for j, k in order:
            self.pending += [(j, k, x) for x in range(5 if k == 'a' else 4)]
        self.gate = lambda: None
        self.gate2 = lambda: None
        self.nq = 2 if kind == 'B' else 4

    def setup(self):
        a, st = self.a, self.stride
        a(f'v_lshrrev_b32 v24, 3, v{vL}')
        if self.kind == 'B':
            a('v_lshrrev_b32 v25, 2, v24')
            a('v_and_b32 v24, 3, v24')
            a('v_lshl_add_u32 v24, v25, 3, v24')
        a(f'v_mul_u32_u24 v24, {st}, v24')
        a(f'v_and_b32 v25, 7, v{vL}')
        a(f'v_lshlrev_b32 v26, 1, v{vG}')
        a('v_xor_b32 v25, v25, v26')
        a('v_lshl_add_u32 v24, v25, 4, v24')
        a(f's_lshl_b32 s4, s{self.scb}, 7')
        a(f's_mul_i32 s5, s{sW}, {self.n * 32 * st}')
        a('s_add_u32 s5, s5, s4')
        if self.kind == 'B':
            a(f's_mul_i32 s6, s{sWH}, {4 * st}')
            a('s_add_u32 s5, s5, s6')
            a(f's_lshl_b32 s6, s{sWH}, 11')
            a(f's_add_u32 s{sM0B}, s{sGM0}, s6')
        else:
            a(f's_mov_b32 s{sM0B}, s{sGM0}')
        for q in range(self.nq):
            row = 8 * q if self.kind != 'B' else q * 16
            a(f's_add_u32 s6, s5, {row * st - 1024 * q}')
            a(f'v_add_u32 v{vD + q}, s6, v24')
        a(f's_mul_i32 s4, s{self.sdb}, {self.fr_steps}')
        a(f's_mul_i32 s5, s{sW}, {self.n}')
        a('s_add_u32 s4, s4, s5')
        a('s_mul_i32 s4, s4, 5120')
        a(f's_add_u32 s{sFS}, s4, {self.fr_off}')
        if self.kind == 'B':
            a(f's_lshl_b32 s4, s{sW}, {6 + FSH}')
            a(f's_add_u32 s4, s4, {FH_OFF}')
            a(f'v_lshl_add_u32 v{vFL}, v{vL}, {FSH}, s4')
        else:
            a(f's_lshl_b32 s4, s{self.sdb}, {7 + FSH}')
            a(f's_mul_i32 s5, s{sW}, {28 << FSH}')
            a('s_add_u32 s4, s4, s5')
            a(f's_add_u32 s4, s4, {FG_OFF}')
            a(f's_mul_i32 s5, s{self.sdb}, {74 * 5120}')
            a(f's_add_u32 s{sLIM}, s5, {GF_OFF + 53 * 5120}')
            a(f's_cmp_eq_u32 s{sW}, 3')
            a('s_cselect_b32 s5, 23, 27')
            a(f'v_min_u32 v24, s5, v{vL}')
            a(f'v_lshl_add_u32 v{vFL}, v24, {FSH}, s4')

    def dma_items(self, j):
        a = self.a

        def one(q):
            def f():
                if q == 0:
                    a(f's_add_u32 m0, s{sM0B}, {(j % self.P) * 16384}')
                off = f' offset:{q * 1024}' if q else ''
                nt = ' nt' if ('ntb' in EXP and self.kind == 'B' and j < self.P) else ''
                self.dtok[j] = a(f'buffer_load_dwordx4 v{vD + q}, {S(self.srdm, 4)}, 0 offen{off}{nt} lds')
                if not ('hotw' in EXP):
                    a(f'v_add_u32 v{vD + q}, {32 * self.stride}, v{vD + q}')
            return f
        return [one(q) for q in range(self.nq)]

    def frag_items(self, lim=99):
        a = self.a
        out = []
        while self.free and self.pending and len(out) < lim:
            key = self.pending.pop(0)
            r = self.free.pop(0)
            self.reg[key] = r

            def f(key=key, r=r):
                j, kind, x = key
                if key == (self.n, 'a', 0):
                    self.gate()
                if key == (self.n, 'b', 0):
                    self.gate2()
                if kind == 'a' and 'b_nof' in EXP and self.kind == 'B' and j >= 5 and x > 0:
                    pass
                elif kind == 'a':
                    vo, off = (vF, x * 1024) if x < 4 else (vF + 1, 0)
                    offs = f' offset:{off}' if off else ''
                    self.ftok[j] = a(f'buffer_load_dwordx4 {V(r, 4)}, v{vo}, {S(sWS, 4)}, s{sFS} offen{offs} sc1')
                    if x == 4 and 'hotf' not in EXP:
                        a(f's_add_u32 s{sFS}, s{sFS}, 5120')
                        if self.kind == 'G2' and j < 14:
                            a(f's_min_u32 s{sFS}, s{sFS}, s{sLIM}')
                else:
                    if j - self.n == 2:
                        a(f'v_lshlrev_b32 v24, 3, v{vL}')
                        a(f'v_sub_u32 v24, v{vOF + x}, v24')
                        a(f'buffer_load_dwordx2 {V(r, 2)}, v24, {S(sWS, 4)}, s11 offen sc1')
                        self.ftok[j] = a(f'buffer_load_dwordx2 {V(r + 2, 2)}, v24, {S(sWS, 4)}, s11 offen offset:512 sc1')
                    else:
                        self.ftok[j] = a(f'buffer_load_dwordx4 {V(r, 4)}, v{vOF + x}, {S(sWS, 4)}, s11 offen sc1')
                    if x == 3:
                        a('s_add_u32 s11, s11, 4096')
            out.append(f)
        return out

    def tr_items(self, j):
        a = self.a

        def one(nt):
            def f():
                off = (j % self.P) * 16384
                base = vT
                if off >= 65536:
                    if off % 65536 == 0:
                        a(f'v_add_u32 v{vT2 + nt}, {off}, v{vT + nt}')
                    off %= 65536
                    base = vT2
                if 'b_nods' in EXP and self.kind == 'B' and j > 1 and nt > 0:
                    return
                a(f'ds_read_b64_tr_b16 {V(TF(j, nt), 2)}, v{base + nt} offset:{off}')
                self.ttok[j] = a(f'ds_read_b64_tr_b16 {V(TF(j, nt) + 2, 2)}, v{base + nt} offset:{off + 2048}')
            return f
        return [one(nt) for nt in range(4)]

    def mainloop(self, extra):
        a, n = self.a, self.n
        a.wait(self.dtok[0])
        Hooks(self.tr_items(0)).flush()
        for j in range(self.ntot):
            items = []
            if j + 1 < n:
                a.wait(self.dtok[j + 1])
            a.wait(self.ftok[j], self.ttok.get(j))
            if self.kind == 'B' and 'b_nobar' not in EXP and j + 1 < n and (j + self.P < n or j + 1 >= int(os.environ.get('BPRE', '10'))):
                a('s_barrier')
            if j % 3 == 0:
                stamp(a, f'{self.kind}_{j}')
                if STAMPS and j in (3, 9):
                    a('s_memtime s[98:99]')
                    a.wait_lg0()
                    a(f'v_writelane_b32 v{vST}, s98, {56 + (j // 9) + (2 if self.kind == "G2" else 0)}')
            if j + 1 < n:
                items += self.tr_items(j + 1)
            if j + self.P < n:
                items += self.dma_items(j + self.P)
            items += extra(j)
            lim = int(os.environ.get('LIMB' if self.kind == 'B' else 'LIMG', '10'))
            items += self.frag_items(lim if (self.kind == 'B' or j < int(os.environ.get('LIMJ', '9'))) else 10)
            last = j == self.ntot - 1
            if self.kind == 'G2' and j == 16:
                a('s_barrier')
            if last:
                a(f's_mul_i32 s7, s{sWH}, 102400')
                for nt in range(1, 4):
                    a(f's_xor_b32 s4, s{sW}, {nt}')
                    a('s_mul_i32 s4, s4, 15360')
                    a(f's_add_u32 s4, s4, {(nt - 1) * 5120}')
                    a('s_add_u32 s4, s4, s7')
                    a(f'v_add_u32 v{24 + nt}, s4, v{vF}')
                wr = [(nt, t) for nt in (1, 2, 3) for t in range(5)]
            hk = Hooks(items)
            k = 0
            ILV = os.environ.get('ILVB', 'fine') if self.kind == 'B' else os.environ.get('ILVG', 'burst')
            for nt in (1, 2, 3, 0):
                for t in range(5):
                    acc = V(ACC(t, nt), 4)
                    c = '0' if j == 0 else acc
                    fr = V(self.reg[(j, 'a', t)], 4)
                    tf = V(TF(j, nt) if j < n else self.reg[(j, 'b', nt)], 4)
                    if self.kind == 'B':
                        a(f'v_mfma_f32_16x16x32_bf16 {acc}, {tf}, {fr}, {c}')
                    else:
                        a(f'v_mfma_f32_16x16x32_bf16 {acc}, {fr}, {tf}, {c}')
                    k += 1
                    if last and k > 5:
                        wn, wt = wr.pop(0)
                        a(f'ds_write_b128 v{24 + wn}, {V(ACC(wt, wn), 4)} offset:{wt * 1024}')
                    if ILV == 'fine':
                        if k % 4 != 0:
                            hk.run()
                    elif ILV == 'burst':
                        if k <= 4 and j + 1 < n:
                            hk.run()
                    elif ILV == 'two':
                        if k <= 4 and j + 1 < n:
                            hk.run()
                        if k == 10:
                            hk.run(4)
                    elif ILV == 'pre':
                        if k == 1:
                            hk.flush()
            hk.flush()
            self.free += [r for key, r in self.reg.items() if key[0] == j]
            if n - 2 <= j < n:
                self.free += [TF(j, nt) for nt in range(4)]

    def reduce(self):
        a = self.a
        a(f's_mul_i32 s4, s{sW}, 15360')
        a('s_add_u32 s4, s4, s7')
        a(f'v_add_u32 v24, s4, v{vF}')
        a.wait_lg0()
        a('s_barrier')
        rtok = {}
        for nt in range(1, 4):
            for t in range(5):
                rtok[(nt, t)] = a(f'ds_read_b128 {V(ACC(t, nt), 4)}, v24 offset:{(nt - 1) * 5120 + t * 1024}')
        for nt in range(1, 4):
            for t in range(5):
                a.wait(rtok[(nt, t)])
                for h in range(2):
                    d = V(ACC(t, 0) + 2 * h, 2)
                    a(f'v_pk_add_f32 {d}, {d}, {V(ACC(t, nt) + 2 * h, 2)}')


def frag10_addr(a, m, hi_add, step, base_s, vrd, vrd_base, vst):
    a(f's_add_u32 s4, s{sW}, {4 * m}')
    a('s_min_u32 s5, s4, 9')
    a('s_cmp_ge_u32 s5, 5')
    a(f's_cselect_b32 s6, {hi_add}, 0')
    a(f's_mul_i32 s5, s5, {step}')
    a('s_add_u32 s5, s5, s6')
    a(f'v_add_u32 v{vrd}, s5, v{vrd_base}')
    a('s_lshl_b32 s5, s4, 10')
    a(f's_add_u32 s5, s5, s{base_s}')
    a('s_cmp_ge_u32 s4, 10')
    a(f's_cselect_b32 s5, {OOB}, s5')
    a(f'v_lshl_add_u32 v{vst}, v{vL}, 4, s5')


NTP = ' nt' if 'ntp' in EXP else ''
FIRST = int(os.environ.get('FIRST', '25'))
vTH = 40


def g_common(a):
    a(f'v_lshlrev_b32 v{vF}, 4, v{vL}')
    a(f'v_add_u32 v{vF + 1}, 4096, v{vF}')
    a(f's_lshl_b32 s{sGM0}, s{sW}, 12')
    a(f'v_bfe_u32 v25, v{vGR}, 1, 2')
    a(f'v_xor_b32 v25, s{sW}, v25')
    a(f'v_lshlrev_b32 v26, 7, v{vGR}')
    a(f'v_lshl_add_u32 v26, v{vC}, 3, v26')
    a(f'v_add_u32 v26, s{sGM0}, v26')
    for nt in range(4):
        a(f'v_xor_b32 v27, {nt}, v25')
        a(f'v_lshl_add_u32 v{vT + nt}, v27, 5, v26')


def tag_ready(a):
    a('s_waitcnt lgkmcnt(0)')
    a(f's_add_u32 s{sTAG}, s{sTAG}, 1')


def role_a(a):
    a(f's_and_b32 s4, s{sID}, 7')
    a(f's_lshr_b32 s5, s{sID}, 3')
    a('s_and_b32 s6, s4, 1')
    a('s_lshl_b32 s6, s6, 2')
    a('s_and_b32 s7, s5, 3')
    a(f's_add_u32 s{sHG}, s6, s7')
    a('s_lshr_b32 s6, s4, 1')
    a('s_lshl_b32 s6, s6, 2')
    a('s_lshr_b32 s7, s5, 2')
    a('s_add_u32 s6, s6, s7')
    a(f's_mov_b32 s{sRB}, s6')
    a('s_lshl_b32 s6, s6, 3')
    a(f's_add_u32 s15, s6, s{sHG}')
    a('s_lshl_b32 s12, s15, 1')
    a(f's_add_u32 s12, s12, s{sWH}')
    X = 156
    a('s_lshl_b32 s4, s12, 2')
    a(f's_add_u32 s4, s4, s{sW}')
    a('s_mul_i32 s4, s4, 2560')
    a(f'v_mul_u32_u24 v24, 40, v{vL}')
    xt = []
    for k in range(5):
        xt.append(a(f'buffer_load_dwordx2 {V(X + 2 * k, 2)}, v24, {S(sX, 4)}, s4 offen offset:{8 * k}{NTP}'))
    srd(a, sWQ, P_WQKV, D_ * 3 * D_ * 2)
    vLN = 8
    a(f'v_lshlrev_b32 v{vLN}, 4, v{vL}')
    a(f'v_add_u32 v{vLN + 1}, 4096, v{vLN}')
    a(f's_mul_i32 s{sM0B}, s{sW8}, 5120')
    a('s_lshl_b32 s10, s15, 2')
    a(f's_add_u32 s10, s10, s{sW}')
    a('s_mul_i32 s4, s10, 1093')
    a('s_lshr_b32 s4, s4, 16')
    a('s_mul_i32 s5, s4, 60')
    a('s_sub_u32 s5, s10, s5')
    a('s_lshr_b32 s6, s5, 1')
    a('s_and_b32 s7, s5, 1')
    a('s_add_u32 s7, s7, 1')
    a('s_sub_u32 s8, s5, 40')
    a('s_cmp_ge_u32 s5, 40')
    a('s_cselect_b32 s6, s8, s6')
    a('s_cselect_b32 s7, 0, s7')
    a(f's_mul_i32 s6, s6, {32 * 3840}')
    a('s_mul_i32 s7, s7, 1280')
    a('s_mul_i32 s4, s4, 160')
    a('s_add_u32 s6, s6, s7')
    a('s_add_u32 s6, s6, s4')
    a(f's_cmp_eq_u32 s{sWH}, 0')
    a('s_cselect_b32 s10, 480, s10')
    dma160_voffs(a, 12, 3840, True, 18)
    a('s_cmp_ge_u32 s10, 480')
    a(f's_cselect_b32 s7, {OOB}, 0')
    for q in range(5):
        a(f'v_add_u32 v{12 + q}, s7, v{12 + q}')
    utok = dma160(a, 12, sWQ, 6, sM0B, 0, NTP)
    a(f's_mul_i32 s13, s{sWH}, 24576')
    a('s_add_u32 s13, s13, 65536')
    a('s_add_u32 s14, s13, 12288')
    srd(a, sAUX, P_WPHI, 32 * 800)
    a(f's_mul_i32 s6, s{sHG}, 3200')
    a(f's_lshl_b32 s7, s{sW}, 10')
    a('s_add_u32 s6, s6, s7')
    a(f'v_lshl_add_u32 v10, v{vL}, 4, s6')
    a(f's_add_u32 m0, s7, {L_WPHI}')
    a(f'buffer_load_dwordx4 v10, {S(sAUX, 4)}, 0 offen lds')
    for k in range(4):
        a(f'v_mov_b32 v{44 + k}, 0')
    a(f'v_lshlrev_b32 v18, 4, v{vTH}')
    a(f'v_add_u32 v18, {L_ZERO}, v18')
    a('ds_write_b128 v18, v[44:47]')
    a(f'v_mov_b32 v10, {L_CNT}')
    a('v_mov_b32 v11, 0')
    a('ds_write2_b32 v10, v11, v11 offset0:0 offset1:1')
    vONE, vS, vRS, vNB = 34, 36, 168, 170
    a(f'v_mov_b32 v{vONE}, 0x3f803f80')
    for k in range(4):
        a(f'v_mov_b32 v{vS + k}, 0')
    a('s_waitcnt lgkmcnt(0)')
    a(f's_add_u32 s{sTAG}, s{sTAG}, 1')
    a.wait(xt[4])
    stamp(a, 'x')
    for k in range(10):
        a(f'v_dot2c_f32_bf16 v{vS + (k & 1)}, v{X + k}, v{vONE}')
        a(f'v_dot2c_f32_bf16 v{vS + 2 + (k & 1)}, v{X + k}, v{X + k}')
    a(f'v_add_f32 v{vS}, v{vS}, v{vS + 1}')
    a(f'v_add_f32 v{vS + 2}, v{vS + 2}, v{vS + 3}')
    for sh in (8, 4, 2, 1):
        for r in (vS, vS + 2):
            a(f'v_add_f32_dpp v{r}, v{r}, v{r} row_ror:{sh} row_mask:0xf bank_mask:0xf')
    for r in (vS, vS + 2):
        a(f'v_mov_b32 v{r + 1}, v{r}')
        a(f'v_permlane16_swap_b32 v{r}, v{r + 1}')
        a(f'v_add_f32 v{r}, v{r}, v{r + 1}')
    ln_scales(a, vS, vRS, vNB)
    a(f'v_mul_f32 v{vS + 1}, v{vRS}, v{vRS}')
    a(f'v_mov_b32 v{vS + 3}, {fbits(1e-5)}')
    a(f'v_fmac_f32 v{vS + 3}, v{vS + 1}, v{vS + 2}')
    a(f'v_rsq_f32 v{vS + 2}, v{vS + 3}')
    U = 172
    for k in range(10):
        a(f'v_lshlrev_b32 v{U + 2 * k}, 16, v{X + k}')
        a(f'v_and_b32 v{U + 2 * k + 1}, 0xffff0000, v{X + k}')
    for k in range(10):
        a(f'v_pk_fma_f32 {V(U + 2 * k, 2)}, {V(U + 2 * k, 2)}, {V(vRS, 2)}, {V(vNB, 2)} op_sel_hi:[1,0,0]')
    XQ = 192
    for k in range(10):
        a(f'v_cvt_pk_bf16_f32 v{XQ + k}, v{U + 2 * k}, v{U + 2 * k + 1}')
    for k in range(10):
        a(f'v_pk_mul_f32 {V(U + 2 * k, 2)}, {V(U + 2 * k, 2)}, {V(vS + 2, 2)} op_sel_hi:[1,0]')
    for k in range(10):
        a(f'v_cvt_pk_bf16_f32 v{X + k}, v{U + 2 * k}, v{U + 2 * k + 1}')
    a(f's_mul_i32 s4, s{sW}, {2 * 1296}')
    a('s_add_u32 s4, s4, s13')
    a(f'v_mul_u32_u24 v24, 40, v{vL}')
    a(f'v_lshrrev_b32 v25, 5, v{vL}')
    a('v_lshl_add_u32 v24, v25, 4, v24')
    a('v_add_u32 v24, s4, v24')
    for k in range(5):
        a(f'ds_write_b64 v24, {V(XQ + 2 * k, 2)} offset:{8 * k}')
    a(f'v_and_b32 v25, 7, v{vTH}')
    a(f'v_lshrrev_b32 v26, 3, v{vTH}')
    a('v_mul_u32_u24 v28, 1296, v25')
    a('v_lshl_add_u32 v28, v26, 4, v28')
    a('v_add_u32 v28, s13, v28')
    a('v_lshlrev_b32 v29, 8, v26')
    a('v_lshl_add_u32 v29, v25, 4, v29')
    a(f's_lshr_b32 s4, s12, 1')
    a('s_mul_i32 s4, s4, 20480')
    a(f's_and_b32 s5, s12, 1')
    a('s_lshl_b32 s5, s5, 7')
    a('s_add_u32 s4, s4, s5')
    a(f's_add_u32 s4, s4, {XF_OFF}')
    a('v_add_u32 v29, s4, v29')
    a('v_add_u32 v30, 8192, v29')
    a(f's_cmp_ge_u32 s{sW}, 2')
    a(f's_cselect_b32 s4, {OOB}, 16384')
    a('v_add_u32 v31, s4, v29')
    a(f's_mul_i32 s4, s{sW}, 2560')
    a('s_add_u32 s4, s4, s14')
    a(f'v_mul_u32_u24 v24, 40, v{vL}')
    a('v_add_u32 v24, s4, v24')
    for k in range(5):
        a(f'ds_write_b64 v24, {V(X + 2 * k, 2)} offset:{8 * k}')
    a(f'v_mul_u32_u24 v24, 1280, v{vR}')
    a(f'v_mul_u32_u24 v25, 160, v{vG}')
    a('v_add_u32 v24, v24, v25')
    a(f'v_mul_u32_u24 v25, 40, v{vC}')
    a('v_add_u32 v24, v24, v25')
    a('v_add_u32 v24, s14, v24')
    a(f'v_mul_u32_u24 v25, {64 * 5120}, v{vG}')
    a(f'v_lshl_add_u32 v25, v{vI}, 4, v25')
    a(f's_lshr_b32 s4, s12, 2')
    a('s_mul_i32 s4, s4, 5120')
    a(f's_and_b32 s5, s12, 3')
    a('s_lshl_b32 s5, s5, 8')
    a('s_add_u32 s4, s4, s5')
    a(f's_add_u32 s8, s4, {HF_OFF}')
    a.wait_lg0()
    a('s_barrier')
    ht = []
    for m in range(3):
        ht.append(a(f'ds_read_b128 {V(XQ + 4 * m, 4)}, v28 offset:{512 * m}'))
    for m in range(3):
        a.wait(ht[m])
        a(f'buffer_store_dwordx4 {V(XQ + 4 * m, 4)}, v{29 + m}, {S(sWS, 4)}, 0 offen sc1')
    ht = []
    for m in range(3):
        a(f's_add_u32 s4, s{sW}, {4 * m}')
        a('s_min_u32 s5, s4, 9')
        a('s_cmp_ge_u32 s5, 5')
        a(f's_cselect_b32 s6, {640 - 40}, 0')
        a(f's_cselect_b32 s7, {4 * 64 * 5120 - 5120}, 0')
        a('s_lshl_b32 s5, s5, 3')
        a('s_add_u32 s5, s5, s6')
        a('v_add_u32 v26, s5, v24')
        a(f'ds_read_b64_tr_b16 {V(U + 4 * m, 2)}, v26')
        ht.append(a(f'ds_read_b64_tr_b16 {V(U + 4 * m + 2, 2)}, v26 offset:{4 * 1280}'))
        a('s_lshl_b32 s5, s4, 10')
        a('s_add_u32 s5, s5, s7')
        a('s_add_u32 s5, s5, s8')
        a('s_cmp_ge_u32 s4, 10')
        a(f's_cselect_b32 s5, {OOB}, s5')
        a(f'v_add_u32 v{34 + m}, s5, v25')
    for m in range(3):
        a.wait(ht[m])
        a(f'buffer_store_dwordx4 {V(U + 4 * m, 4)}, v{34 + m}, {S(sWS, 4)}, 0 offen sc1')
    hst = ('vm', a.vm_issued - 1)
    a(f'v_mul_u32_u24 v29, 160, v{vGR}')
    a(f'v_mul_u32_u24 v24, 40, v{vC}')
    a('v_add_u32 v29, v29, v24')
    a(f'v_add_u32 v29, s{sM0B}, v29')
    a('s_mul_i32 s4, s10, 5120')
    a(f's_add_u32 s4, s4, {WF_OFF}')
    a('s_cmp_ge_u32 s10, 480')
    a(f's_cselect_b32 s4, {OOB}, s4')
    a(f'v_add_u32 v24, s4, v{vLN}')
    a(f'v_add_u32 v25, s4, v{vLN + 1}')
    a(f's_lshl_b32 s5, s10, {FSH}')
    a(f's_add_u32 s5, s5, {FU_OFF}')
    a('s_cmp_ge_u32 s10, 480')
    a(f's_cselect_b32 s10, {OOB}, s5')
    a.wait(utok)
    ut = []
    for t in range(5):
        a(f'ds_read_b64_tr_b16 {V(UP(t), 2)}, v29 offset:{8 * t}')
        ut.append(a(f'ds_read_b64_tr_b16 {V(UP(t) + 2, 2)}, v29 offset:{8 * t + 2560}'))
    for t in range(5):
        a.wait(ut[t])
        vo, off = (24, t * 1024) if t < 4 else (25, 0)
        a(f'buffer_store_dwordx4 {V(UP(t), 4)}, v{vo}, {S(sWS, 4)}, 0 offen offset:{off} sc1')
    a(f's_lshl_b32 s4, s{sWH}, 2')
    a(f's_add_u32 s4, s4, {L_CNT}')
    a('v_mov_b32 v10, s4')
    a('v_mov_b32 v11, 1')
    a.wait(hst)
    a('s_mov_b64 exec, 1')
    a('ds_add_rtn_u32 v11, v10, v11')
    a('s_mov_b64 exec, -1')
    a.wait_lg0()
    a('v_readfirstlane_b32 s5, v11')
    a(f's_lshl_b32 s4, s12, {FSH}')
    a(f's_add_u32 s4, s4, {FH_OFF}')
    a('s_cmp_lg_u32 s5, 3')
    a('s_cbranch_scc1 L_nofh')
    flag_set(a, 4)
    a.label('L_nofh')
    a.wait_vm0()
    flag_set(a, 10)
    stamp(a, 'prep')
    a(f's_mov_b32 s{sL}, {fbits(LOG2E)}')
    a(f's_mov_b32 s{sL + 1}, {fbits(LOG2E)}')
    a(f's_mov_b32 s{sNL}, {fbits(-LOG2E)}')
    a(f's_mov_b32 s{sNL + 1}, {fbits(-LOG2E)}')
    a(f's_mul_i32 s10, s{sHG}, 60')
    a(f's_lshl_b32 s4, s10, {FSH}')
    a(f's_add_u32 s4, s4, {FU_OFF}')
    a(f'v_lshl_add_u32 v20, v{vL}, {FSH}, s4')
    a(f's_lshl_b32 s11, s{sRB}, 2')
    a(f's_add_u32 s11, s11, s{sW}')
    a(f's_lshl_b32 s4, s11, {FSH + 2}')
    a(f's_add_u32 s4, s4, {FH_OFF}')
    a(f'v_lshl_add_u32 v21, v{vC}, {FSH}, s4')
    a(f'v_cmp_gt_u32 vcc, 60, v{vL}')
    a('v_cndmask_b32 v20, v21, v20, vcc')
    a(f's_add_u32 s10, s10, s{sW}')
    a('s_mul_i32 s10, s10, 5120')
    a(f's_add_u32 s10, s10, {WF_OFF}')
    a(f's_add_u32 s9, s10, {40 * 5120}')
    a(f's_mul_i32 s{sM0B}, s{sW}, 5120')
    a('s_mul_i32 s11, s11, 40960')
    a(f's_add_u32 s11, s11, {XF_OFF}')
    a(f'v_add_u32 v10, 20480, v{vLN}')
    a(f'v_add_u32 v26, {L_RING}, v{vLN}')
    a(f'v_add_u32 v27, 61440, v{vLN}')

    def wphi_frags(WPF, wbase, zbase):
        a(f'v_mul_u32_u24 v22, 800, v{vG}')
        a(f'v_mul_u32_u24 v23, 40, v{vR}')
        a('v_add_u32 v22, v22, v23')
        a(f'v_add_u32 v22, {wbase}, v22')
        a(f'v_mov_b32 v23, {zbase}')
        a(f'v_cmp_eq_u32 vcc, v{vG}, v{vC}')
        a('v_cndmask_b32 v22, v23, v22, vcc')
        for t in range(5):
            for d4 in range(5):
                a(f'ds_read_b64_tr_b16 {V(WPF(t, d4 // 2) + 2 * (d4 % 2), 2)}, v22 offset:{4 * d4 * 40 + 8 * t}')

    Q = lambda k: 48 + 4 * k
    WPF = lambda t, ks: Q(2 * t + ks) if ks < 2 else Q(10 + t // 2) + 2 * (t % 2)
    a('s_barrier')
    wphi_frags(WPF, L_WPHI, L_ZERO)
    a.wait_lg0()
    a('s_barrier')
    flag_check(a, flag_issue(a, 20, 21), 20, 21)
    stamp(a, 'go')

    def xload(dst, ks, z):
        off = f' offset:{(ks % 4) * 1024}' if ks % 4 else ''
        t = a(f'buffer_load_dwordx4 {V(dst, 4)}, v{vLN if z == 0 else 10}, {S(sWS, 4)}, s11 offen{off} sc1')
        if ks % 4 == 3 and z == 1:
            a('s_add_u32 s11, s11, 4096')
        return t

    a(f's_cmp_lg_u32 s{sWH}, 0')
    a('s_cbranch_scc1 L_a_upper')
    at_split = a.save()
    a('s_setprio 2')
    AC = lambda k, z: Q(13 + 2 * k + z)
    XR = lambda ks, z: Q(33 + (ks % 6) * 2 + z)
    FW = lambda n: Q(45 + n % 7)
    xtok = {}
    for ks in range(5):
        for z in range(2):
            xtok[ks] = xload(XR(ks, z), ks, z)
    a('s_barrier')
    stamp(a, 'a0')
    WIN, NF = 6, 200
    ftok = {}

    def read_frag(n):
        d, r = divmod(n, 20)
        ftok[n] = a(f'ds_read_b128 {V(FW(n), 4)}, v26 offset:{(d % 3) * 20480 + r * 1024}')

    for n in range(WIN):
        read_frag(n)
    for n in range(NF):
        nn = n + WIN
        if nn < NF:
            if nn % 20 == 0:
                a.wait_lg0()
                a('s_barrier')
                if (nn // 20) % 3 == 0:
                    stamp(a, f'a{nn // 20}')
            read_frag(nn)
        ks, k = divmod(n, 10)
        a.wait(ftok[n], xtok[ks])
        for z in range(2):
            c = '0' if ks == 0 else V(AC(k, z), 4)
            a(f'v_mfma_f32_16x16x32_bf16 {V(AC(k, z), 4)}, {V(FW(n), 4)}, {V(XR(ks, z), 4)}, {c}')
        if k in (2, 6) and ks + 5 < 20:
            xtok[ks + 5] = xload(XR(ks + 5, k // 4), ks + 5, k // 4)
    a('s_barrier')
    stamp(a, 'aend')
    vSA, vKA, vKO = 8, 9, 12
    a(f's_lshl_b32 s4, s{sW}, 5')
    a(f'v_lshl_add_u32 v{vSA}, v{vG}, 7, v{vI}')
    a(f'v_add_u32 v{vSA}, s4, v{vSA}')
    a(f'v_mul_u32_u24 v{vSA}, 120, v{vSA}')
    a(f'v_add_u32 v{vSA}, {L_RING}, v{vSA}')
    for z in range(2):
        for t in range(5):
            r = AC(5 + t, z)
            a(f'v_cvt_pk_bf16_f32 v{r}, v{r}, v{r + 1}')
            a(f'v_cvt_pk_bf16_f32 v{r + 1}, v{r + 2}, v{r + 3}')
            a(f'ds_write_b64 v{vSA}, {V(r, 2)} offset:{z * 16 * 120 + 80 + 8 * t}')
    PK = [Q(33), Q(34), Q(35)]
    EN5 = [Q(36 + c) for c in range(5)]
    for z in range(2):
        E5 = [AC(t, z) for t in range(5)]
        P5 = [Q(41 + 5 * z + c) for c in range(5)]
        featmap(a, E5, PK, WPF, P5, E5, EN5, 32)
        for c in range(10):
            a(f'ds_write_b64 v{vSA}, {V(P5[c // 2] + 2 * (c % 2), 2)} offset:{z * 16 * 120 + 8 * c}')
    stamp(a, 'fm')
    a(f's_mul_i32 s4, s{sW}, {128 * 120}')
    a(f's_add_u32 s4, s4, {L_RING}')
    a(f'v_mul_u32_u24 v{vKA}, 120, v{vGR}')
    a(f'v_lshl_add_u32 v{vKA}, v{vC}, 3, v{vKA}')
    a(f'v_add_u32 v{vKA}, s4, v{vKA}')
    a(f's_lshl_b32 s4, s{sHG}, 2')
    a(f's_add_u32 s4, s4, s{sW}')
    a('s_lshl_b32 s4, s4, 4')
    a(f's_add_u32 s13, s4, s{sRB}')
    a('s_mul_i32 s4, s13, 6144')
    a(f's_add_u32 s4, s4, {KV_OFF}')
    a(f'v_lshl_add_u32 v{vKO}, v{vL}, 4, s4')
    a('s_movk_i32 s12, 0x1000')
    a(f'v_mov_b32 v11, {OOB}')
    a(f'v_cmp_gt_u32 vcc, 8, v{vI}')
    a(f'v_cndmask_b32 v{vKO + 1}, v11, v{vKO}, vcc')
    a(f'v_cmp_gt_u32 vcc, 2, v{vG}')
    a(f'v_cndmask_b32 v{vKO + 2}, v11, v{vKO}, vcc')
    a(f'v_cndmask_b32 v{vKO + 3}, v11, v{vKO + 1}, vcc')
    a(f's_lshl_b32 s13, s13, {FSH}')
    a(f's_add_u32 s10, s13, {FK_OFF}')
    a('v_mov_b32 v11, 0x3f803f80')
    a(f'v_cmp_eq_u32 vcc, 1, v{vR}')
    a.wait_lg0()
    a('s_barrier')
    ktok = {}
    OPQ = lambda kk, x: Q(13 + kk * 5 + x)
    KVA = [Q(k) for k in range(6)]

    def kv_read(kk):
        for x in range(5):
            col = 32 * x if x < 3 else 80 + 32 * (x - 3)
            a(f'ds_read_b64_tr_b16 {V(OPQ(kk, x), 2)}, v{vKA} offset:{kk * 32 * 120 + col}')
            ktok[kk] = a(f'ds_read_b64_tr_b16 {V(OPQ(kk, x) + 2, 2)}, v{vKA} offset:{kk * 32 * 120 + 16 * 120 + col}')

    kv_read(0)
    for kk in range(4):
        if kk + 1 < 4:
            kv_read(kk + 1)
        a.wait(ktok[kk])
        for j in range(4):
            a(f'v_cndmask_b32 v{OPQ(kk, 4) + j}, v{OPQ(kk, 4) + j}, v11, vcc')
        for et in range(2):
            for ft in range(3):
                d = V(KVA[ft * 2 + et], 4)
                a(f'v_mfma_f32_16x16x32_bf16 {d}, {V(OPQ(kk, 3 + et), 4)}, {V(OPQ(kk, ft), 4)}, {"0" if kk == 0 else d}')
    for ft in range(3):
        for et in range(2):
            vo = vKO + (1 if ft == 2 else 0) + (2 if et == 1 else 0)
            so = 's12' if ft == 2 else '0'
            a(f'buffer_store_dwordx4 {V(KVA[ft * 2 + et], 4)}, v{vo}, {S(sWS, 4)}, {so} offen offset:{(ft % 2) * 2048 + et * 1024} sc1')
    a.wait_vm0()
    flag_set(a, 10)
    a(f's_mov_b32 s10, {OOB}')
    if 'pfa' in EXP:
        a(f's_lshr_b32 s4, s{sID}, 3')
        a('s_lshl_b32 s4, s4, 2')
        a(f's_add_u32 s4, s4, s{sW}')
        a(f's_mul_i32 s5, s4, {27 * 4096}')
        a(f's_and_b32 s7, s{sID}, 7')
        a('s_lshl_b32 s7, s7, 9')
        a('s_add_u32 s5, s5, s7')
        a(f'v_lshrrev_b32 v24, 2, v{vL}')
        a('v_min_u32 v24, 13, v24')
        a('v_lshlrev_b32 v24, 12, v24')
        a(f'v_lshl_add_u32 v24, v{vC}, 7, v24')
        a('v_add_u32 v24, s5, v24')
        a(f'buffer_load_dword v37, v24, {S(sW2, 4)}, 0 offen')
        a(f'v_add_u32 v24, {13 * 4096}, v24')
        a(f'buffer_load_dword v37, v24, {S(sW2, 4)}, 0 offen')
    a('s_barrier')
    a('s_branch L_join')

    a.label('L_a_upper')
    a.restore(at_split)
    wtok = {}

    def dma5(so, lds):
        a(f's_add_u32 m0, s{sM0B}, {lds}')
        for q in range(4):
            off = f' offset:{q * 1024}' if q else ''
            a(f'buffer_load_dwordx4 v{vLN}, {S(sWS, 4)}, s{so} offen{off} sc1 lds')
        a(f's_add_u32 m0, s{sM0B}, {lds + 4096}')
        t = a(f'buffer_load_dwordx4 v{vLN + 1}, {S(sWS, 4)}, s{so} offen sc1 lds')
        a(f's_add_u32 s{so}, s{so}, 20480')
        return t

    NXR = 12
    XQ_ = lambda ks, z: Q(13 + (ks % NXR) * 2 + z)
    AQ = lambda t, z: Q(37 + 2 * t + z)
    FQ = lambda n: Q(47 + n % 5)
    xtok = {}
    for d in range(3):
        wtok[d] = dma5(10, L_RING + d * 20480)
    for d in range(10):
        a.wait(wtok[d])
        a('s_barrier')
        if 1 <= d and d + 2 < 10:
            wtok[d + 2] = dma5(10, L_RING + ((d + 2) % 3) * 20480)
        if d < 5:
            qtok = dma5(9, L_WQ + d * 20480)
        if 4 <= d < 10:
            for ks in (2 * (d - 4), 2 * (d - 4) + 1):
                for z in range(2):
                    xtok[ks] = xload(XQ_(ks, z), ks, z)
    a.wait(qtok)
    a('s_barrier')
    ftok = {}

    def read_q(n):
        off = n * 1024
        ftok[n] = a(f'ds_read_b128 {V(FQ(n), 4)}, v{vLN if off < 61440 else 27} offset:{off % 61440}')

    QBAR = int(os.environ.get('QBAR', '-1'))
    if QBAR < 0:
        a('s_barrier')
    for n in range(4):
        read_q(n)
    for n in range(100):
        if n + 4 < 100:
            read_q(n + 4)
        ks, t = divmod(n, 5)
        a.wait(ftok[n], xtok[ks])
        for z in range(2):
            c = '0' if ks == 0 else V(AQ(t, z), 4)
            a(f'v_mfma_f32_16x16x32_bf16 {V(AQ(t, z), 4)}, {V(FQ(n), 4)}, {V(XQ_(ks, z), 4)}, {c}')
        if t in (1, 3) and ks >= 1 and ks - 1 + NXR < 20:
            xtok[ks - 1 + NXR] = xload(XQ_(ks - 1 + NXR, t // 2), ks - 1 + NXR, t // 2)
        if n == QBAR:
            a('s_barrier')
    a('s_barrier')
    stamp(a, 'aend')
    PK = [Q(13), Q(14), Q(15)]
    EN5 = [Q(16 + c) for c in range(5)]
    PP = [[Q(21 + 5 * z + c) for c in range(5)] for z in range(2)]
    for z in range(2):
        E5 = [AQ(t, z) for t in range(5)]
        featmap(a, E5, PK, WPF, PP[z], E5, EN5, 32)
    stamp(a, 'fm')
    a('s_setprio 3')
    a(f's_mul_i32 s6, s{sW}, 10240')
    a(f's_add_u32 s6, s6, {L_RING}')
    a(f'v_lshlrev_b32 v31, 11, v{vG}')
    a(f'v_lshl_add_u32 v31, v{vR}, 3, v31')
    a('v_mov_b32 v21, 8192')
    a(f'v_cmp_eq_u32 vcc, v{vG}, v{vC}')
    a('v_cndmask_b32 v31, v21, v31, vcc')
    a('v_add_u32 v31, s6, v31')
    for k in range(4):
        a(f'v_mov_b32 v{44 + k}, 0')
    a(f'v_add_u32 v21, s6, v{vLN}')
    a('ds_write_b128 v21, v[44:47] offset:8192')
    a('ds_write_b128 v21, v[44:47] offset:9216')
    a(f's_lshl_b32 s4, s{sHG}, {4 + FSH}')
    a(f's_add_u32 s4, s4, {FR_OFF}')
    a(f'v_lshl_add_u32 v20, v{vI}, {FSH}, s4')
    a(f'v_lshlrev_b32 v8, 4, v{vL}')
    a('v_add_u32 v9, 4096, v8')
    a(f'v_lshlrev_b32 v10, 3, v{vL}')
    a(f's_lshl_b32 s5, s{sHG}, 13')
    a(f's_add_u32 s5, s5, {KB_OFF}')
    a(f's_lshl_b32 s7, s{sRB}, 1')
    a(f's_lshr_b32 s8, s{sW}, 1')
    a('s_add_u32 s7, s7, s8')
    a(f's_and_b32 s8, s{sW}, 1')
    a('s_lshl_b32 s8, s8, 1')
    a(f's_lshr_b32 s12, s{sHG}, 1')
    a('s_mul_i32 s12, s12, 5')
    a('s_mul_i32 s13, s7, 20')
    a('s_add_u32 s12, s12, s13')
    a('s_lshl_b32 s12, s12, 2')
    a('s_add_u32 s12, s12, s8')
    a('s_lshl_b32 s12, s12, 10')
    a(f's_add_u32 s12, s12, {OF_OFF}')
    a(f's_and_b32 s13, s{sHG}, 1')
    a(f's_mul_i32 s14, s13, {3 * 4096}')
    a('s_add_u32 s14, s14, s12')
    a('s_lshl_b32 s13, s13, 9')
    a('s_add_u32 s12, s12, s13')
    a(f's_add_u32 s12, s12, {2 * 4096}')
    a('s_lshl_b32 s13, s7, 3')
    a(f's_add_u32 s13, s13, s{sHG}')
    a('s_lshl_b32 s13, s13, 2')
    a('s_add_u32 s13, s13, s8')
    a(f's_lshl_b32 s13, s13, {FSH}')
    a(f's_add_u32 s13, s13, {FO_OFF}')
    flag_check(a, flag_issue(a, 20, 21), 20, 21, int(os.environ.get('RSLEEP', '8')))
    stamp(a, 'rok')
    for hh in range(2):
        a(f's_add_u32 m0, s6, {4096 * hh}')
        for q in range(4):
            off = f' offset:{q * 1024}' if q else ''
            a(f'buffer_load_dwordx4 v{8 + hh}, {S(sWS, 4)}, s5 offen{off} sc1 lds')
    a.wait_all()
    OA = [[Q(31 + k) for k in range(6)], [Q(37 + k) for k in range(6)]]
    KF = lambda ks, t: Q((ks % 2) * 6 + t)
    otok = {}

    def o_read(ks):
        for t in range(6):
            a(f'ds_read_b64_tr_b16 {V(KF(ks, t), 2)}, v31 offset:{kb_pos(8 * ks, t)}')
            otok[ks] = a(f'ds_read_b64_tr_b16 {V(KF(ks, t) + 2, 2)}, v31 offset:{kb_pos(8 * ks + 4, t)}')

    o_read(0)
    for ks in range(5):
        if ks + 1 < 5:
            o_read(ks + 1)
        a.wait(otok[ks])
        for z in range(2):
            for t in range(6):
                d = V(OA[z][t], 4)
                a(f'v_mfma_f32_16x16x32_bf16 {d}, {V(KF(ks, t), 4)}, {V(PP[z][ks], 4)}, {"0" if ks == 0 else d}')
    for z in range(2):
        O = OA[z]
        PO = PK if z == 0 else [Q(16), Q(17), Q(18)]
        a(f'v_add_f32 v{O[5]}, {fbits(1e-6)}, v{O[5]}')
        a(f'v_rcp_f32 v{O[5]}, v{O[5]}')
        for t in range(5):
            for h in range(2):
                a(f'v_pk_mul_f32 {V(O[t] + 2 * h, 2)}, {V(O[t] + 2 * h, 2)}, {V(O[5], 2)} op_sel_hi:[1,0]')
        for k in range(10):
            t, j = divmod(2 * k, 4)
            a(f'v_cvt_pk_bf16_f32 v{PO[k // 4] + k % 4}, v{O[t] + j}, v{O[t] + j + 1}')
        off = f' offset:{1024 * z}' if z else ''
        a(f'buffer_store_dwordx4 {V(PO[0], 4)}, v8, {S(sWS, 4)}, s14 offen{off} sc1')
        a(f'buffer_store_dwordx4 {V(PO[1], 4)}, v9, {S(sWS, 4)}, s14 offen{off} sc1')
        a(f'buffer_store_dwordx2 {V(PO[2], 2)}, v10, {S(sWS, 4)}, s12 offen{off} sc1')
    a.wait_vm0()
    flag_set(a, 13)
    a(f's_cmp_lg_u32 s{sID}, 0')
    a('s_cbranch_scc1 L_a_done')
    a(f's_cmp_lg_u32 s{sW}, 3')
    a('s_cbranch_scc1 L_a_done')
    a(f'v_and_b32 v20, 31, v{vL}')
    a('v_min_u32 v20, 26, v20')
    a(f'v_and_b32 v21, 32, v{vL}')
    a('v_add_u32 v20, v20, v21')
    a(f'v_lshlrev_b32 v20, {FSH + 2}, v20')
    for k in range(4):
        a(f'v_add_u32 v22, {FG_OFF + (k * 256 << FSH)}, v20')
        flag_check(a, flag_issue(a, 22, 21), 22, 21, 12)
    a(f'v_lshlrev_b32 v20, {FSH}, v{vL}')
    for base in (FR_OFF, FR_OFF + (64 << FSH)):
        a(f'v_add_u32 v22, {base}, v20')
        flag_check(a, flag_issue(a, 22, 21), 22, 21, 12)
    a(f'v_and_b32 v20, 31, v{vL}')
    a(f'v_lshlrev_b32 v20, {FSH}, v20')
    a(f'v_add_u32 v22, {FW_OFF}, v20')
    flag_check(a, flag_issue(a, 22, 21), 22, 21, 12)
    a(f's_mov_b32 s10, {EP_OFF}')
    flag_set(a, 10)
    a.label('L_a_done')
    stamp_flush(a, 'end')
    a('s_endpgm')


def role_b(a):
    if 'map4' in EXP:
        a(f's_lshr_b32 s{sBCB}, s6, 2')
        a('s_and_b32 s9, s6, 3')
        a('s_lshl_b32 s6, s9, 1')
    else:
        a('s_cmp_ge_u32 s6, 54')
        a('s_cselect_b32 s7, 54, 0')
        a('s_cselect_b32 s8, 4, 0')
        a('s_sub_u32 s6, s6, s7')
        a(f's_lshr_b32 s{sBCB}, s6, 1')
        a('s_and_b32 s9, s6, 1')
        a('s_lshl_b32 s6, s9, 1')
        a('s_add_u32 s6, s6, s8')
    PR = 24 if 'map4' in EXP else 48
    a(f's_add_u32 s{sBDB}, s6, s{sWH}')
    srd(a, sW1, P_W1, S_ * F_ * 2)
    g_common(a)
    gB = GGemm(a, 'B')
    gB.setup()
    BPRE = int(os.environ.get('BPRE', '10'))
    if 'g1lin' in EXP:
        a(f's_lshl_b32 s4, s{sBCB}, 2')
        a('s_add_u32 s4, s4, s9')
        a('s_lshl_b32 s4, s4, 3')
        a(f's_add_u32 s4, s4, s{sW8}')
        a('s_lshl_b32 s4, s4, 13')
        a(f'v_lshl_add_u32 v24, v{vL}, 7, s4')
        a(f'buffer_load_dword v37, v24, {S(sW1, 4)}, 0 offen')
        if 'g1wait' in EXP:
            a.wait_vm0()
    if 'g1first' in EXP:
        a('s_lshl_b32 s4, s9, 1')
        a(f's_add_u32 s4, s4, s{sWH}')
        a(f's_lshl_b32 s5, s{sW}, 9')
        a('s_add_u32 s4, s4, s5')
        a(f's_mul_i32 s4, s4, {F_ * 2}')
        a(f's_lshl_b32 s5, s{sBCB}, 7')
        a('s_add_u32 s4, s4, s5')
        a(f'v_mul_u32_u24 v24, {8 * F_ * 2}, v{vL}')
        a('v_add_u32 v24, s4, v24')
        a(f'buffer_load_dword v37, v24, {S(sW1, 4)}, 0 offen')
    for j in range(BPRE):
        Hooks(gB.dma_items(j)).flush()

    def b_extra(j):
        return []

    a('s_lshl_b32 s4, s9, 1')
    a(f's_add_u32 s4, s4, s{sWH}')
    a(f's_mul_i32 s4, s4, {PR}')
    a(f's_lshl_b32 s5, s{sW}, 9')
    a('s_add_u32 s4, s4, s5')
    a(f's_add_u32 s4, s4, {32 * B_P}')
    a(f's_mul_i32 s4, s4, {F_ * 2}')
    a(f's_lshl_b32 s5, s{sBCB}, 7')
    a('s_add_u32 s4, s4, s5')
    a(f'v_min_u32 v24, {PR - 1}, v{vL}')
    a(f'v_mul_u32_u24 v24, {F_ * 2}, v24')
    a('v_add_u32 v24, s4, v24')
    if 'g1first' not in EXP:
        a(f'buffer_load_dword v37, v24, {S(sW1, 4)}, 0 offen')
    srd(a, sAUX, P_B1, F_ * 2)
    a(f's_lshl_b32 s4, s{sBCB}, 7')
    a(f's_lshl_b32 s5, s{sW}, 5')
    a('s_add_u32 s4, s4, s5')
    a(f'v_lshl_add_u32 v24, v{vG}, 3, s4')
    a(f'buffer_load_dwordx2 v[38:39], v24, {S(sAUX, 4)}, 0 offen')
    tag_ready(a)
    a('s_barrier')
    stamp(a, 'prep')
    a(f's_cmp_lg_u32 s{sWH}, 0')
    a('s_cbranch_scc1 L_b_go')
    flag_check(a, flag_issue(a, vFL, vFD), vFL, vFD, 3)
    a.label('L_b_go')
    a.wait_vm0()
    a('s_barrier')
    stamp(a, 'go')
    Hooks(gB.frag_items(int(os.environ.get('FIRSTB', '25')))).flush()
    for j in range(BPRE, B_P):
        Hooks(gB.dma_items(j)).flush()

    gB.mainloop(b_extra)
    stamp(a, 'Bend')
    gB.reduce()
    R = lambda t, j: ACC(t, 0) + j
    T = lambda t, j: ACC(t, 1) + j
    a('v_lshlrev_b32 v34, 16, v38')
    a('v_and_b32 v35, 0xffff0000, v38')
    a('v_lshlrev_b32 v36, 16, v39')
    a('v_and_b32 v37, 0xffff0000, v39')
    c0 = 0.7978845608028654
    k1 = -2.0 * c0 * LOG2E
    k2 = k1 * 0.044715
    a(f's_mov_b32 s4, {fbits(k2)}')
    a(f's_mov_b32 s5, {fbits(k2)}')
    a(f'v_mov_b32 v24, {fbits(k1)}')
    a('v_mov_b32 v26, 1.0')
    th = [(t, h) for t in range(5) for h in range(2)]
    tj = [(t, j) for t in range(5) for j in range(4)]
    for t, h in th:
        a(f'v_pk_add_f32 {V(R(t, 2 * h), 2)}, {V(R(t, 2 * h), 2)}, {V(34 + 2 * h, 2)}')
    for t, h in th:
        a(f'v_pk_mul_f32 {V(T(t, 2 * h), 2)}, {V(R(t, 2 * h), 2)}, {V(R(t, 2 * h), 2)}')
    for t, h in th:
        a(f'v_pk_fma_f32 {V(T(t, 2 * h), 2)}, {V(T(t, 2 * h), 2)}, s[4:5], v[24:25] op_sel_hi:[1,0,0]')
    for t, h in th:
        a(f'v_pk_mul_f32 {V(T(t, 2 * h), 2)}, {V(T(t, 2 * h), 2)}, {V(R(t, 2 * h), 2)}')
    for t, j in tj:
        a(f'v_exp_f32 v{T(t, j)}, v{T(t, j)}')
    for t, h in th:
        a(f'v_pk_add_f32 {V(T(t, 2 * h), 2)}, {V(T(t, 2 * h), 2)}, v[26:27] op_sel_hi:[1,0]')
    for t, j in tj:
        a(f'v_rcp_f32 v{T(t, j)}, v{T(t, j)}')
    for t, h in th:
        a(f'v_pk_mul_f32 {V(T(t, 2 * h), 2)}, {V(T(t, 2 * h), 2)}, {V(R(t, 2 * h), 2)}')
    a(f's_mul_i32 s4, s{sW8}, 2560')
    a('s_add_u32 s4, s4, 81920')
    a(f'v_lshl_add_u32 v24, v{vL}, 3, s4')
    for t in range(5):
        a(f'v_cvt_pk_bf16_f32 v{R(t, 0)}, v{T(t, 0)}, v{T(t, 1)}')
        a(f'v_cvt_pk_bf16_f32 v{R(t, 1)}, v{T(t, 2)}, v{T(t, 3)}')
        a(f'ds_write_b64 v24, {V(R(t, 0), 2)} offset:{t * 512}')
    a(f's_mul_i32 s4, s{sBDB}, 74')
    a(f's_lshl_b32 s5, s{sBCB}, 1')
    a('s_add_u32 s4, s4, s5')
    a('s_mul_i32 s4, s4, 5120')
    a(f's_add_u32 s15, s4, {GF_OFF}')
    a(f's_mul_i32 s4, s{sWH}, 10240')
    a('s_add_u32 s4, s4, 81920')
    a(f'v_lshl_add_u32 v25, v{vL}, 3, s4')
    a.wait_lg0()
    a('s_barrier')
    gt = []
    for m in range(3):
        frag10_addr(a, m, 2 * 2560 - 5 * 512, 512, 15, 24, 25, 34 + m)
        a(f'ds_read_b64 {V(ACC(m, 2), 2)}, v24')
        gt.append(a(f'ds_read_b64 {V(ACC(m, 2) + 2, 2)}, v24 offset:2560'))
    for m in range(3):
        a.wait(gt[m])
        a(f'buffer_store_dwordx4 {V(ACC(m, 2), 4)}, v{34 + m}, {S(sWS, 4)}, 0 offen sc1')
    a(f's_lshl_b32 s4, s{sBDB}, 5')
    a(f's_add_u32 s4, s4, s{sBCB}')
    a('s_lshl_b32 s4, s4, 2')
    a(f's_add_u32 s4, s4, s{sW}')
    a(f's_lshl_b32 s4, s4, {FSH}')
    a(f's_add_u32 s10, s4, {FG_OFF}')
    a('s_branch L_join')


def role_r(a):
    a('s_lshl_b32 s11, s6, 1')
    a(f's_add_u32 s11, s11, s{sWH}')
    a('s_lshr_b32 s8, s6, 3')
    a('s_lshl_b32 s8, s8, 3')
    a(f's_add_u32 s8, s8, s{sW8}')
    a('s_getpc_b64 s[6:7]')
    a.raw('L_pc:')
    a(f's_sub_u32 s{sAUX}, s6, L_pc - L_start')
    a('s_subb_u32 s7, s7, 0')
    a(f's_and_b32 s{sAUX + 1}, s7, 0xffff')
    a(f's_mov_b32 s{sAUX + 2}, L_end - L_start')
    a(f's_mov_b32 s{sAUX + 3}, 0x20000')
    a('s_lshl_b32 s6, s8, 13')
    a(f'v_lshl_add_u32 v25, v{vL}, 7, s6')
    if 'nocpf' not in EXP:
        a(f'buffer_load_dword v37, v25, {S(sAUX, 4)}, 0 offen')
    if 'notlb' not in EXP:
        a(f's_lshl_b32 s5, s8, 6')
        a(f'v_add_u32 v26, s5, v{vL}')
        a(f'v_mul_u32_u24 v27, {(WS_USED // 1024 + 127) // 128 * 128}, v26')
        a(f'buffer_load_dword v37, v27, {S(sWS, 4)}, 0 offen sc1')
        a('v_lshlrev_b32 v27, 13, v26')
        a(f'buffer_load_dword v37, v27, {S(sW2, 4)}, 0 offen')
        srd(a, sOUT, P_OUT, S_ * D_ * 2)
        a('v_lshlrev_b32 v27, 12, v26')
        a(f'buffer_load_dword v37, v27, {S(sOUT, 4)}, 0 offen sc1')
        srd(a, sAUX, P_B2, S_ * 2)
        a(f'buffer_load_dword v37, v27, {S(sAUX, 4)}, 0 offen')
    if 'wqlin' in EXP:
        srd(a, sWQ, P_WQKV, D_ * 3 * D_ * 2)
        a(f's_sub_u32 s5, s{sID}, 240')
        a('s_lshl_b32 s5, s5, 3')
        a(f's_add_u32 s5, s5, s{sW8}')
        a('s_mul_i32 s5, s5, 24576')
        a(f'v_lshl_add_u32 v26, v{vL}, 7, s5')
        for k in range(3):
            a(f'buffer_load_dword v37, v26, {S(sWQ, 4)}, 0 offen')
            a('v_add_u32 v26, 8192, v26')
    if 'w2lin' in EXP:
        a(f's_sub_u32 s5, s{sID}, 240')
        a('s_lshl_b32 s5, s5, 3')
        a(f's_add_u32 s5, s5, s{sW8}')
        a('s_lshl_b32 s5, s5, 13')
        a(f'v_lshl_add_u32 v38, v{vL}, 7, s5')
    if 'g2map8' in EXP:
        a(f's_mul_i32 s5, s8, {108 * 4096}')
        a(f's_and_b32 s7, s{sID}, 7')
        a('s_lshl_b32 s7, s7, 9')
        a('s_add_u32 s5, s5, s7')
        a(f'v_lshrrev_b32 v24, 2, v{vL}')
        a('v_lshlrev_b32 v24, 12, v24')
        a(f'v_lshl_add_u32 v24, v{vC}, 7, v24')
        a('v_add_u32 v24, s5, v24')
    else:
        a('s_mul_i32 s5, s8, 54')
        a(f's_and_b32 s7, s{sID}, 1')
        a('s_mul_i32 s7, s7, 864')
        a('s_add_u32 s5, s5, s7')
        a('s_lshl_b32 s5, s5, 12')
        a(f's_and_b32 s7, s{sID}, 6')
        a('s_lshl_b32 s7, s7, 9')
        a('s_add_u32 s5, s5, s7')
        a(f'v_lshrrev_b32 v24, 3, v{vL}')
        a(f'v_and_b32 v25, 7, v{vL}')
        a('v_lshlrev_b32 v24, 12, v24')
        a('v_lshl_add_u32 v24, v25, 7, v24')
        a('v_add_u32 v24, s5, v24')
    tag_ready(a)
    a(f'v_mov_b32 v{vFL}, {FH_OFF}')
    if 'pf2now' not in EXP:
        flag_check(a, flag_issue(a, vFL, vFD), vFL, vFD, 16)
    PFA = int(os.environ.get('PFA', '0'))
    a('v_mov_b32 v36, v38' if 'w2lin' in EXP else 'v_mov_b32 v36, v24')
    for k in range(PFA):
        a(f'buffer_load_dword v37, v36, {S(sW2, 4)}, 0 offen')
        a(f'v_add_u32 v36, {(16 if "g2map8" in EXP else 8) * 4096}, v36')
        if k % 2 == 1 and 'pf2fast' not in EXP:
            a.wait_vm0()
    stamp(a, 'prep')
    a('s_setprio 3')
    a(f's_lshl_b32 s4, s11, {4 + FSH}')
    a(f's_add_u32 s4, s4, {FK_OFF}')
    a(f'v_lshl_add_u32 v{vFL}, v{vI}, {FSH}, s4')
    a(f's_lshl_b32 s5, s{sW}, 11')
    a(f'v_lshl_add_u32 v24, v{vL}, 4, s5')
    a(f'v_lshrrev_b32 v25, 5, v{vL}')
    a(f'v_and_b32 v26, 31, v{vL}')
    a('v_lshlrev_b32 v26, 4, v26')
    a('v_lshl_add_u32 v25, v25, 11, v26')
    a('v_add_u32 v25, 1024, v25')
    a(f's_cmp_eq_u32 s{sW}, 2')
    a('s_cselect_b64 vcc, -1, 0')
    a('v_cndmask_b32 v24, v24, v25, vcc')
    a(f'v_lshrrev_b32 v25, 3, v{vL}')
    a(f'v_and_b32 v26, 7, v{vL}')
    a('v_lshlrev_b32 v26, 4, v26')
    a('v_lshl_add_u32 v25, v25, 8, v26')
    a('v_add_u32 v25, 4096, v25')
    a(f's_cmp_eq_u32 s{sW}, 3')
    a('s_cselect_b64 vcc, -1, 0')
    a('v_cndmask_b32 v24, v24, v25, vcc')
    a(f's_mul_i32 s4, s11, {16 * 6144}')
    a(f's_add_u32 s4, s4, {KV_OFF}')
    flag_check(a, flag_issue(a, vFL, vFD), vFL, vFD, int(os.environ.get('KSLEEP', '4')))
    stamp(a, 'hok')
    stok = []
    for rb in range(16):
        stok.append(a(f'buffer_load_dwordx4 {V(128 + 4 * rb, 4)}, v24, {S(sWS, 4)}, s4 offen sc1'))
        a('s_add_u32 s4, s4, 6144')
    for rb in range(1, 16):
        a.wait(stok[rb])
        for h in range(2):
            a(f'v_pk_add_f32 {V(128 + 2 * h, 2)}, {V(128 + 2 * h, 2)}, {V(128 + 4 * rb + 2 * h, 2)}')
    stamp(a, 'rsum')
    a('v_cvt_pk_bf16_f32 v34, v128, v129')
    a('v_cvt_pk_bf16_f32 v35, v130, v131')
    a('s_lshl_b32 s4, s11, 11')
    a(f's_add_u32 s4, s4, {KB_OFF}')
    a(f'v_lshl_add_u32 v24, v{vTH}, 3, s4')
    a(f'buffer_store_dwordx2 v[34:35], v24, {S(sWS, 4)}, 0 offen sc1')
    a('s_lshl_b32 s4, s11, 2')
    a(f's_add_u32 s4, s4, s{sW}')
    a(f's_lshl_b32 s4, s4, {FSH}')
    a(f's_add_u32 s10, s4, {FR_OFF}')
    a.wait_vm0()
    flag_set(a, 10)
    a(f's_mov_b32 s10, {OOB}')
    stamp(a, 'rpub')
    a('s_barrier')
    for k in range(PFA, 0 if 'nopf2' in EXP else 7):
        a(f'buffer_load_dword v37, v36, {S(sW2, 4)}, 0 offen')
        a(f'v_add_u32 v36, {8 * 4096}, v36')
    a('s_branch L_join')


def role_wot(a):
    a('s_lshl_b32 s11, s6, 1')
    a(f's_add_u32 s11, s11, s{sWH}')
    srd(a, sAUX, P_WO, D_ * D_ * 2)
    a(f'v_lshlrev_b32 v{vF}, 4, v{vL}')
    a(f'v_add_u32 v{vF + 1}, 4096, v{vF}')
    tag_ready(a)
    if 'wotlate' in EXP:
        a(f'v_mov_b32 v{vFL}, {FH_OFF}')
        flag_check(a, flag_issue(a, vFL, vFD), vFL, vFD, 16)
    dma160_voffs(a, 34, 1280, False, 24)
    a('s_mul_i32 s4, s11, 160')
    a(f's_mul_i32 s5, s{sW}, {160 * 1280}')
    a('s_add_u32 s7, s4, s5')
    a(f's_mul_i32 s6, s{sW8}, 20480')
    a(f'v_mul_u32_u24 v24, 20, v{vG}')
    a(f'v_add_u32 v24, v24, v{vR}')
    a('v_mul_u32_u24 v24, 160, v24')
    a(f'v_mul_u32_u24 v25, 40, v{vC}')
    a('v_add_u32 v24, v24, v25')
    a('v_add_u32 v24, s6, v24')
    a('s_mul_i32 s4, s11, 74')
    a(f's_mul_i32 s5, s{sW}, 5')
    a('s_add_u32 s4, s4, s5')
    a('s_add_u32 s4, s4, 54')
    a('s_mul_i32 s4, s4, 5120')
    a(f's_add_u32 s4, s4, {GF_OFF}')
    rounds = [[(0, 0, 0), (0, 1, 4), (1, 0, 8), (1, 1, 12), (2, 0, 16)],
              [(2, 1, 16), (3, 0, 0), (3, 1, 4), (4, 0, 8), (4, 1, 12)]]
    for rd in range(2):
        for k in range(3):
            a(f's_add_u32 s8, s7, {(rd * 80 + k * 32) * 1280}')
            dma160(a, 34, sAUX, 8, 6, k * 5120)
        a.wait_vm0()
        for u, hf, row in rounds[rd]:
            for t in range(5):
                a(f'ds_read_b64_tr_b16 {V(156 + (u * 5 + t) * 4 + 2 * hf, 2)}, v24 offset:{row * 160 + 8 * t}')
            a.wait_lg0()
    for u in range(5):
        for t in range(5):
            vo, off = (vF, t * 1024) if t < 4 else (vF + 1, 0)
            a(f'buffer_store_dwordx4 {V(156 + (u * 5 + t) * 4, 4)}, v{vo}, {S(sWS, 4)}, s4 offen offset:{off} sc1')
        a('s_add_u32 s4, s4, 5120')
    a('s_lshl_b32 s4, s11, 2')
    a(f's_add_u32 s4, s4, s{sW}')
    a(f's_lshl_b32 s4, s4, {FSH}')
    a(f's_add_u32 s10, s4, {FW_OFF}')
    a('s_barrier')


def final_gemm(a):
    g2 = GGemm(a, 'G2')
    if 'early_setup' in EXP:
        xcd_tile(a)
        g_common(a)
        g2.setup()
    a.wait_all()
    flag_set(a, 10)
    stamp(a, 'pub')
    a('s_setprio 0')
    a(f's_cmp_lg_u32 s{sWH}, 0')
    a('s_cbranch_scc1 L_fin')
    if 'early_setup' not in EXP:
        xcd_tile(a)
        g_common(a)
        g2.setup()
    for j in range(G2_P):
        Hooks(g2.dma_items(j)).flush()
    srd(a, sOUT, P_OUT, S_ * D_ * 2)
    R = lambda t, j: ACC(t, 0) + j
    T = lambda t, j: ACC(t, 1) + j
    srd(a, sAUX, P_B2, S_ * 2)
    a(f's_lshl_b32 s4, s{sRB}, {5 + FSH}')
    a(f's_lshl_b32 s5, s{sW}, {3 + FSH}')
    a('s_add_u32 s4, s4, s5')
    a(f's_add_u32 s4, s4, {FO_OFF}')
    a(f'v_lshl_add_u32 v34, v{vC}, {FSH + 1}, s4')
    a(f's_lshl_b32 s4, s{sHG}, 2')
    a(f's_add_u32 s4, s4, s{sW}')
    a(f's_lshl_b32 s4, s4, {FSH}')
    a(f's_add_u32 s4, s4, {FW_OFF}')
    a('v_mov_b32 v35, s4')
    a(f'v_cmp_gt_u32 vcc, 63, v{vL}')
    a(f'v_cndmask_b32 v{vFL}, v35, v{vFL}, vcc')
    for nt in range(4):
        a(f's_xor_b32 s4, s{sW}, {nt}')
        a('s_lshl_b32 s4, s4, 10')
        a(f'v_add_u32 v{vOF + nt}, s4, v{vF}')
    a(f's_mul_i32 s4, s{sRB}, 20')
    a(f's_mul_i32 s5, s{sW}, 5')
    a('s_add_u32 s4, s4, s5')
    a('s_lshl_b32 s4, s4, 12')
    a(f's_add_u32 s11, s4, {OF_OFF}')
    a(f'v_mul_u32_u24 v{vXA}, 1280, v{vTOK}')
    a(f'v_mul_u32_u24 v{vBA}, 40, v{vG}')
    a(f'v_add_u32 v{vXA}, v{vXA}, v{vBA}')
    a(f's_mul_i32 s4, s{sHG}, 160')
    a(f'v_add_u32 v{vXA}, s4, v{vXA}')
    a(f'v_lshlrev_b32 v{vBA}, 1, v{vTOK}')
    flag_check(a, flag_issue(a, vFL, vFD), vFL, vFD, int(os.environ.get('GSLEEP', '2')))
    stamp(a, 'gok')
    fl = {}

    def gate():
        a(f's_mul_i32 s4, s{sHG}, 74')
        a(f's_mul_i32 s5, s{sW}, 5')
        a('s_add_u32 s4, s4, s5')
        a('s_add_u32 s4, s4, 54')
        a('s_mul_i32 s4, s4, 5120')
        a(f's_add_u32 s{sFS}, s4, {GF_OFF}')

    def gate2():
        stamp(a, 'oa')
        flag_check(a, fl['o'], 34, 35)
        stamp(a, 'ob')

    g2.gate = gate
    g2.gate2 = gate2
    XR = [8, 10, 14, 16, 18]

    def g2_extra(j):
        it = []
        if j == 9:
            def fo():
                fl['o'] = flag_issue(a, 34, 35)
            it.append(fo)
        if j == int(os.environ.get('JRES', '16')):
            def resid():
                a(f'buffer_load_ushort v36, v{vBA}, {S(sAUX, 4)}, 0 offen')
                for t in range(5):
                    fl['x'] = a(f'buffer_load_dwordx2 {V(XR[t], 2)}, v{vXA}, {S(sX, 4)}, 0 offen offset:{8 * t}')
            it.append(resid)
        return it

    Hooks(g2.frag_items(int(os.environ.get('FIRSTG', '25')))).flush()
    g2.mainloop(g2_extra)
    stamp(a, 'Gend')
    g2.reduce()
    a.wait(fl['x'])
    a('v_lshlrev_b32 v36, 16, v36')
    for t in range(5):
        for h in range(2):
            a(f'v_lshlrev_b32 v{T(t, 2 * h)}, 16, v{XR[t] + h}')
            a(f'v_and_b32 v{T(t, 2 * h + 1)}, 0xffff0000, v{XR[t] + h}')
            a(f'v_pk_add_f32 {V(R(t, 2 * h), 2)}, {V(R(t, 2 * h), 2)}, v[36:37] op_sel_hi:[1,0]')
            a(f'v_pk_add_f32 {V(R(t, 2 * h), 2)}, {V(R(t, 2 * h), 2)}, {V(T(t, 2 * h), 2)}')
        a(f'v_cvt_pk_bf16_f32 v{R(t, 0)}, v{R(t, 0)}, v{R(t, 1)}')
        a(f'v_cvt_pk_bf16_f32 v{R(t, 1)}, v{R(t, 2)}, v{R(t, 3)}')
        a(f'buffer_store_dwordx2 {V(R(t, 0), 2)}, v{vXA}, {S(sOUT, 4)}, 0 offen offset:{8 * t}')
    a.label('L_fin')
    stamp_flush(a, 'end')


def build():
    a = Asm()
    hdr = open(os.path.join(os.path.dirname(__file__), '..', 'cdna_kernels', NAME + '.s.ref')).read().split('\n')
    for line in hdr:
        if line.startswith(';') and '@launch' not in line:
            a.raw(line)
    a.raw(f'; @launch grid=(256,1,1) block=(512,1,1) lds={LDS_BYTES}')
    a.raw('.amdgcn_target "amdgcn-amd-amdhsa--gfx950"')
    a.raw('.text')
    K = NAME + '_kernel'
    a.raw(f'.globl {K}')
    a.raw('.p2align 8')
    a.raw(f'.type {K},@function')
    a.raw(f'{K}:')
    a.raw('L_start:')
    a('s_cmp_ge_u32 s2, 256')
    a('s_cbranch_scc1 L_end')
    a('s_load_dwordx16 s[16:31], s[0:1], 0')
    a('s_load_dwordx8 s[32:39], s[0:1], 64')
    a(f'v_and_b32 v{vL}, 63, v0')
    a('v_lshrrev_b32 v6, 6, v0')
    a(f'v_readfirstlane_b32 s{sW8}, v6')
    a(f'v_lshrrev_b32 v{vG}, 4, v{vL}')
    a(f'v_and_b32 v{vI}, 15, v{vL}')
    a(f'v_lshrrev_b32 v{vR}, 2, v{vI}')
    a(f'v_and_b32 v{vC}, 3, v{vL}')
    a(f'v_lshl_add_u32 v{vGR}, v{vG}, 2, v{vR}')
    a(f'v_and_b32 v{vTH}, 255, v0')
    a(f's_and_b32 s{sW}, s{sW8}, 3')
    a(f's_lshr_b32 s{sWH}, s{sW8}, 2')
    a(f's_mov_b32 s{sID}, s2')
    a('s_waitcnt lgkmcnt(0)')
    a(f's_add_u32 s4, s{P_WS}, {EP_OFF}')
    a(f's_addc_u32 s5, s{P_WS + 1}, 0')
    a(f's_load_dword s{sTAG}, s[4:5], 0')
    srd(a, sX, P_X, S_ * D_ * 2)
    srd(a, sWS, P_WS, WS_USED)
    srd(a, sW2, P_W2, F_ * S_ * 2)
    stamp(a, 'start')
    if 'noticket' not in EXP:
        srd(a, sAUX, P_DBG, 256)
        a(f'v_mov_b32 v8, {L_CNT + 16}')
        a(f's_cmp_lg_u32 s{sW8}, 0')
        a('s_cbranch_scc1 L_ticket_done')
        a('s_getreg_b32 s4, hwreg(HW_REG_XCC_ID)')
        a('s_mov_b32 s6, 0')
        a('s_mov_b64 exec, 1')
        a.label('L_ticket')
        a('s_and_b32 s4, s4, 7')
        a('s_lshl_b32 s5, s4, 5')
        a('v_mov_b32 v9, s5')
        a('v_mov_b32 v10, 1')
        a(f'buffer_atomic_add v10, v9, {S(sAUX, 4)}, 0 offen sc0 sc1')
        a.wait_vm0()
        a('v_readfirstlane_b32 s5, v10')
        a('s_cmp_lt_u32 s5, 32')
        a('s_cbranch_scc1 L_ticket_ok')
        a('s_add_u32 s4, s4, 1')
        a('s_add_u32 s6, s6, 1')
        a('s_cmp_lt_u32 s6, 8')
        a('s_cbranch_scc1 L_ticket')
        a.label('L_ticket_ok')
        a('s_lshl_b32 s5, s5, 3')
        a('s_add_u32 s5, s5, s4')
        a('v_mov_b32 v9, s5')
        a('ds_write_b32 v8, v9')
        a('s_mov_b64 exec, -1')
        a('s_waitcnt lgkmcnt(0)')
        a.label('L_ticket_done')
        a('s_barrier')
        a('ds_read_b32 v9, v8')
        a('s_waitcnt lgkmcnt(0)')
        a('s_barrier')
        a(f'v_readfirstlane_b32 s{sID}, v9')
        a(f's_and_b32 s{sID}, s{sID}, 255')
        a.reset_counters()
        stamp(a, 'tick')
    if os.environ.get('UPRIO', '1') != '0':
        a(f's_cmp_eq_u32 s{sWH}, 0')
        a('s_cbranch_scc1 L_prio')
        a(f's_setprio {os.environ.get("UPRIO", "1")}')
        a.label('L_prio')
    a(f's_cmp_ge_u32 s{sID}, 128')
    a('s_cbranch_scc1 L_not_a')
    role_a(a)
    a.label('L_not_a')
    a.reset_counters()
    a(f's_and_b32 s4, s{sID}, 7')
    a(f's_lshr_b32 s5, s{sID}, 3')
    a('s_sub_u32 s5, s5, 16')
    a('s_cmp_ge_u32 s5, 14')
    a('s_cbranch_scc1 L_role_r')
    a('s_and_b32 s7, s4, 1')
    a('s_add_u32 s7, s7, 13')
    a('s_cmp_ge_u32 s5, s7')
    a('s_cbranch_scc1 L_role_wot')
    a('s_mul_i32 s6, s4, 27')
    a('s_lshr_b32 s6, s6, 1')
    a('s_add_u32 s6, s6, s5')
    role_b(a)
    a.label('L_role_r')
    a.reset_counters()
    a(f's_sub_u32 s6, s{sID}, 240')
    role_r(a)
    a.label('L_role_wot')
    a.reset_counters()
    a('s_lshr_b32 s6, s4, 1')
    role_wot(a)
    a.label('L_join')
    final_gemm(a)
    a.label('L_end')
    a('s_endpgm')
    if STAMPS:
        a.raw('; STAMPS ' + ' '.join(STAMP_NAMES))
    a.raw('.section .rodata,"a"')
    a.raw(f""".p2align 6
.amdhsa_kernel {K}
  .amdhsa_next_free_vgpr 256
  .amdhsa_next_free_sgpr 102
  .amdhsa_accum_offset 256
  .amdhsa_group_segment_fixed_size 0
  .amdhsa_kernarg_size 96
  .amdhsa_user_sgpr_count 2
  .amdhsa_user_sgpr_kernarg_segment_ptr 1
  .amdhsa_system_sgpr_workgroup_id_x 1
.end_amdhsa_kernel""")
    sys.stderr.write(f'maxv={a.maxv} maxa={a.maxa} maxs={a.maxs} nops={a.nops} lines={len(a.out)}\n')
    return a.text()


if __name__ == '__main__':
    out = sys.argv[1] if len(sys.argv) > 1 else os.path.join(os.path.dirname(__file__), '..', 'cdna_kernels', NAME + '.s')
    open(out, 'w').write(build())
```

```python
import sys, struct, os
sys.path.insert(0, os.path.dirname(__file__))
from asmdsl import Asm, Rec, V, A, S

NAME = 'parallel_sum__linear_kernel_hedgehog__mixer_token_mlp__prompt'
S_, D_, F_ = 2048, 640, 1728

HF_OFF = 0
HF_SZ = 8 * 64 * 5 * 1024
GF_OFF = HF_OFF + HF_SZ
GF_SZ = 8 * 74 * 5 * 1024
OF_OFF = GF_OFF + GF_SZ
OF_SZ = 32 * 20 * 4 * 1024
XF_OFF = OF_OFF + OF_SZ
XF_SZ = 128 * 20480
WF_OFF = XF_OFF + XF_SZ
WF_SZ = 480 * 5120 + 4096
KV_OFF = WF_OFF + WF_SZ
KV_SZ = 32 * 32 * 6144
KB_OFF = KV_OFF + KV_SZ + 4096
KB_SZ = 32 * 2048
FL_OFF = KB_OFF + KB_SZ + 4096
FSH = int(os.environ.get('FSH', '6'))
FH_OFF = FL_OFF
FK_OFF = FH_OFF + (1024 << FSH)
FR_OFF = FK_OFF + (1024 << FSH)
FG_OFF = FR_OFF + (128 << FSH)
FO_OFF = FG_OFF + (1024 << FSH)
FW_OFF = FO_OFF + (1024 << FSH)
FU_OFF = FW_OFF + (128 << FSH)
EP_OFF = FU_OFF + (512 << FSH)
WS_USED = EP_OFF + 512
STAMP_OFF = WS_USED
WS_USED += 512 * 256
STAMPS = bool(int(os.environ.get('STAMPS', '0')))
EXP = os.environ.get('EXP', '').split(',') + [e for e in ['map4', 'noticket', 'notlb', 'g2map8', 'nopf2', 'pfa', 'pf2now'] if e not in os.environ.get('OFF', '').split(',')]
OOB = 0x40000000

P_X, P_WQKV, P_WPHI, P_WO, P_BX, P_W1, P_B1, P_W2, P_B2, P_OUT, P_DBG, P_WS = range(16, 40, 2)
LOG2E = 1.4426950408889634

sW = 3
sW8, sWH = 90, 91
sWS, sX, sWQ, sW1, sW2, sAUX, sOUT = 40, 44, 48, 52, 56, 60, 64
sHG, sRB, sID, sROT, sKS, sT, sM0B, sTAG = 68, 69, 70, 71, 72, 73, 74, 75
sL, sNL = 76, 78
sBDB, sBCB, sFS, sGM0, sSPIN, sLIM = 80, 81, 82, 83, 84, 85
vL, vG, vI, vR, vC = 1, 2, 3, 4, 5
vTOK, vGR = 6, 7
vFS = 42
DB = 64
XN = lambda s: DB + 8 * s
UP = lambda k: DB + 8 * k + 4

LDS_BYTES = 163840
A_SLOTS = 4
L_WQ = 0
L_RING = 102400
L_ZERO = 122880
L_WPHI = 126976
L_CNT = 131072
B_P = 10
G2_P = 5
ILV = os.environ.get('ILV', 'burst')


def kb_pos(f, t):
    if f < 32:
        return (f >> 4) * 512 + (t * 16 + (f & 15)) * 8 if t < 4 else 1024 + ((f >> 4) * 32 + (t - 4) * 16 + (f & 15)) * 8
    return 1536 + (t * 8 + f - 32) * 8


def fbits(x):
    return '0x%08x' % struct.unpack('<I', struct.pack('<f', x))[0]


def srd(a, dst, ptr, nbytes):
    a(f's_mov_b32 s{dst}, s{ptr}')
    a(f's_and_b32 s{dst + 1}, s{ptr + 1}, 0xffff')
    a(f's_mov_b32 s{dst + 2}, {nbytes}')
    a(f's_mov_b32 s{dst + 3}, 0x20000')


STAMP_NAMES = []
vST = 41


def stamp(a, name):
    if not STAMPS:
        return
    name = str(name)
    if name not in STAMP_NAMES:
        STAMP_NAMES.append(name)
    idx = STAMP_NAMES.index(name)
    a('s_memrealtime s[98:99]')
    a.wait_lg0()
    if idx == 0:
        a(f'v_mov_b32 v{vST}, 0')
        a('s_getreg_b32 s97, hwreg(HW_REG_HW_ID)')
        a(f'v_writelane_b32 v{vST}, s97, 63')
    a(f'v_writelane_b32 v{vST}, s98, {idx}')


def stamp_flush(a, n):
    if not STAMPS:
        return
    a.wait_vm0()
    stamp(a, n)
    lab = a.newlabel('st')
    a(f's_cmp_lg_u32 s{sW}, 0')
    a(f's_cbranch_scc1 {lab}')
    a(f's_lshl_b32 s4, s{sWH}, 8')
    a(f's_add_u32 s4, s4, s{sID}')
    a('s_lshl_b32 s4, s4, 8')
    a(f's_add_u32 s4, s4, {STAMP_OFF}')
    a(f'v_lshl_add_u32 v8, v{vL}, 2, s4')
    a(f'buffer_store_dword v{vST}, v8, {S(sWS, 4)}, 0 offen')
    if 'dbg1' in EXP:
        srd(a, sAUX, P_DBG, 256)
        for wg, base, sel in ((136, 0, 'start,prep,go,B_0,Bend,pub,gok,G2_0,Gend,end'), (8, 10, 'start,x,prep,go,aend,G2_9')):
            l2 = a.newlabel('dbg')
            a(f's_lshl_b32 s4, s{sWH}, 8')
            a(f's_add_u32 s4, s4, s{sID}')
            a(f's_cmp_lg_u32 s4, {wg}')
            a(f's_cbranch_scc1 {l2}')
            for k, nm in enumerate(sel.split(',')):
                if nm not in STAMP_NAMES:
                    STAMP_NAMES.append(nm)
                a(f'v_readlane_b32 s4, v{vST}, {STAMP_NAMES.index(nm)}')
                a('v_mov_b32 v9, s4')
                a('v_mov_b32 v8, 0')
                a(f'buffer_store_dword v9, v8, {S(sAUX, 4)}, 0 offen offset:{4 * (base + k)}')
            a.label(l2)
    a.label(lab)


def reduce_g(a, r, t):
    a(f'v_mov_b32 v{t}, v{r}')
    a(f'v_permlane32_swap_b32 v{r}, v{t}')
    a(f'v_add_f32 v{r}, v{r}, v{t}')
    a(f'v_mov_b32 v{t}, v{r}')
    a(f'v_permlane16_swap_b32 v{r}, v{t}')
    a(f'v_add_f32 v{r}, v{r}, v{t}')


def dma160_voffs(a, dst, stride, permute, tmp):
    t0, t2, t3 = tmp, tmp + 1, tmp + 2
    for q in range(5):
        d = dst + q
        a(f'v_add_u32 v{t0}, {q * 64}, v{vL}')
        a(f'v_mul_u32_u24 v{t2}, 6554, v{t0}')
        a(f'v_lshrrev_b32 v{t2}, 16, v{t2}')
        a(f'v_mul_u32_u24 v{t3}, 10, v{t2}')
        a(f'v_sub_u32 v{t0}, v{t0}, v{t3}')
        if permute:
            a(f'v_bfe_u32 v{t3}, v{t2}, 2, 2')
            a(f'v_lshlrev_b32 v{t3}, 3, v{t3}')
            a(f'v_and_b32 v{d}, 3, v{t2}')
            a(f'v_add_u32 v{t3}, v{t3}, v{d}')
            a(f'v_lshrrev_b32 v{t2}, 4, v{t2}')
            a(f'v_lshl_add_u32 v{t2}, v{t2}, 2, v{t3}')
        a(f'v_mul_u32_u24 v{t2}, {stride}, v{t2}')
        a(f'v_lshl_add_u32 v{d}, v{t0}, 4, v{t2}')
        if 0 < q < 4:
            a(f'v_subrev_u32 v{d}, {q * 1024}, v{d}')


def dma160(a, vo, ssrd, soff, m0_s, m0_add, nt=''):
    a(f's_add_u32 m0, s{m0_s}, {m0_add}')
    for q in range(4):
        off = f' offset:{q * 1024}' if q else ''
        a(f'buffer_load_dwordx4 v{vo + q}, {S(ssrd, 4)}, s{soff} offen{off}{nt} lds')
    a(f's_add_u32 m0, s{m0_s}, {m0_add + 4096}')
    return a(f'buffer_load_dwordx4 v{vo + 4}, {S(ssrd, 4)}, s{soff} offen{nt} lds')


class Hooks:
    def __init__(self, items=()):
        self.items = list(items)

    def run(self, n=1):
        for _ in range(n):
            if self.items:
                self.items.pop(0)()

    def flush(self):
        self.run(len(self.items))


def softmax_pm(a, P, PH, EP, EN, tmp):
    p = [P[k // 4] + k % 4 for k in range(20)]
    ep = [EP[k // 4] + k % 4 for k in range(20)]
    en = [EN[k // 4] + k % 4 for k in range(20)]
    mx, mn, sp, sn = tmp, tmp + 2, tmp + 4, tmp + 6
    a(f'v_max3_f32 v{mx}, v{p[0]}, v{p[1]}, v{p[2]}')
    a(f'v_min3_f32 v{mn}, v{p[0]}, v{p[1]}, v{p[2]}')
    for k in range(3, 19, 2):
        a(f'v_max3_f32 v{mx}, v{mx}, v{p[k]}, v{p[k + 1]}')
        a(f'v_min3_f32 v{mn}, v{mn}, v{p[k]}, v{p[k + 1]}')
    a(f'v_max_f32 v{mx}, v{mx}, v{p[19]}')
    a(f'v_min_f32 v{mn}, v{mn}, v{p[19]}')
    a(f'v_mul_f32 v{mx}, s{sNL}, v{mx}')
    a(f'v_mul_f32 v{mn}, s{sL}, v{mn}')
    for k in range(0, 20, 2):
        a(f'v_pk_fma_f32 {V(ep[k], 2)}, {V(p[k], 2)}, {S(sL, 2)}, {V(mx, 2)} op_sel_hi:[1,0,0]')
        a(f'v_pk_fma_f32 {V(en[k], 2)}, {V(p[k], 2)}, {S(sNL, 2)}, {V(mn, 2)} op_sel_hi:[1,0,0]')
    for k in range(20):
        a(f'v_exp_f32 v{ep[k]}, v{ep[k]}')
        a(f'v_exp_f32 v{en[k]}, v{en[k]}')
    a(f'v_pk_add_f32 {V(sp, 2)}, {V(ep[0], 2)}, {V(ep[2], 2)}')
    a(f'v_pk_add_f32 {V(sn, 2)}, {V(en[0], 2)}, {V(en[2], 2)}')
    for k in range(4, 20, 2):
        a(f'v_pk_add_f32 {V(sp, 2)}, {V(sp, 2)}, {V(ep[k], 2)}')
        a(f'v_pk_add_f32 {V(sn, 2)}, {V(sn, 2)}, {V(en[k], 2)}')
    a(f'v_add_f32 v{sp}, v{sp}, v{sp + 1}')
    a(f'v_add_f32 v{sn}, v{sn}, v{sn + 1}')
    a(f'v_rcp_f32 v{sp}, v{sp}')
    a(f'v_rcp_f32 v{sn}, v{sn}')
    for k in range(0, 20, 2):
        a(f'v_pk_mul_f32 {V(ep[k], 2)}, {V(ep[k], 2)}, {V(sp, 2)} op_sel_hi:[1,0]')
        a(f'v_pk_mul_f32 {V(en[k], 2)}, {V(en[k], 2)}, {V(sn, 2)} op_sel_hi:[1,0]')
    allv = ep + en
    for k in range(20):
        a(f'v_cvt_pk_bf16_f32 v{PH[k // 4] + k % 4}, v{allv[2 * k]}, v{allv[2 * k + 1]}')


def flag_set(a, s_off):
    a(f'v_lshl_add_u32 v{vFS}, v{vL}, 2, s{s_off}')
    a(f'v_mov_b32 v{vFS + 1}, s{sTAG}')
    a(f's_mov_b64 exec, {hex((1 << (1 << (FSH - 2))) - 1)}')
    a(f'buffer_store_dword v{vFS + 1}, v{vFS}, {S(sWS, 4)}, 0 offen sc1')
    a('s_mov_b64 exec, -1')


def flag_issue(a, vaddr, vdst):
    return a(f'buffer_load_dword v{vdst}, v{vaddr}, {S(sWS, 4)}, 0 offen sc1')


def flag_check(a, tok, vaddr, vdst, sleep=2):
    ok = a.newlabel('ok')
    lp = a.newlabel('poll')
    a.wait(tok)
    a(f'v_cmp_ne_u32 vcc, s{sTAG}, v{vdst}')
    a(f's_cbranch_vccz {ok}')
    a(f's_mov_b32 s{sSPIN}, 0')
    a.label(lp)
    a(f's_sleep {sleep}')
    a.raw(f'\tbuffer_load_dword v{vdst}, v{vaddr}, {S(sWS, 4)}, 0 offen sc1')
    a('s_waitcnt vmcnt(0)')
    a(f'v_cmp_ne_u32 vcc, s{sTAG}, v{vdst}')
    a(f's_cbranch_vccz {ok}')
    a(f's_add_u32 s{sSPIN}, s{sSPIN}, 1')
    a(f's_cmp_lt_u32 s{sSPIN}, 0x8000')
    a(f's_cbranch_scc1 {lp}')
    a.label(ok)


def featmap(a, ACC5, PK, WPF, P5, EP5, EN5, tmp):
    for k in range(10):
        t, j = divmod(2 * k, 4)
        a(f'v_cvt_pk_bf16_f32 v{PK[k // 4] + k % 4}, v{ACC5[t] + j}, v{ACC5[t] + j + 1}')
    for ks in range(3):
        for t in range(5):
            d = V(P5[t], 4)
            if ks < 2:
                a(f'v_mfma_f32_16x16x32_bf16 {d}, {V(WPF(t, ks), 4)}, {V(PK[ks], 4)}, {"0" if ks == 0 else d}')
            else:
                a(f'v_mfma_f32_16x16x16_bf16 {d}, {V(WPF(t, ks), 2)}, {V(PK[ks], 2)}, {d}')
    softmax_pm(a, P5, P5, EP5, EN5, tmp)


def xcd_tile(a):
    a(f's_and_b32 s4, s{sID}, 7')
    a(f's_lshr_b32 s5, s{sID}, 3')
    if 'g2map8' in EXP:
        a(f's_and_b32 s{sHG}, s5, 7')
        a('s_lshl_b32 s6, s4, 2')
        a('s_lshr_b32 s7, s5, 3')
        a(f's_add_u32 s{sRB}, s6, s7')
    else:
        a('s_and_b32 s6, s4, 1')
        a('s_lshl_b32 s6, s6, 2')
        a('s_and_b32 s7, s5, 3')
        a(f's_add_u32 s{sHG}, s6, s7')
        a('s_lshr_b32 s6, s4, 1')
        a('s_lshl_b32 s6, s6, 3')
        a('s_lshr_b32 s7, s5, 2')
        a(f's_add_u32 s{sRB}, s6, s7')
    a(f's_lshl_b32 s4, s{sRB}, 6')
    a(f's_lshl_b32 s5, s{sW}, 4')
    a('s_add_u32 s4, s4, s5')
    a(f'v_add_u32 v{vTOK}, s4, v{vI}')


def ln_scales(a, vS, vRS, vNB):
    a(f'v_mul_f32 v{vS}, {fbits(1.0 / 640)}, v{vS}')
    a(f'v_mul_f32 v{vS + 2}, {fbits(1.0 / 640)}, v{vS + 2}')
    a(f'v_fma_f32 v{vS + 2}, -v{vS}, v{vS}, v{vS + 2}')
    a(f'v_max_f32 v{vS + 2}, 0, v{vS + 2}')
    a(f'v_add_f32 v{vS + 1}, {fbits(1e-5)}, v{vS + 2}')
    a(f'v_rsq_f32 v{vRS}, v{vS + 1}')
    a(f'v_mul_f32 v{vNB}, v{vS}, v{vRS}')
    a(f'v_sub_f32 v{vNB}, 0, v{vNB}')


vD, vF, vT, vT2, vFL, vFD, vOF, vXA, vBA = 8, 12, 14, 18, 22, 23, 28, 32, 33
ACC = lambda t, nt: 44 + (nt * 5 + t) * 4
TF = lambda j, nt: 124 + (j % 2) * 16 + 4 * nt
POOL = [156 + 4 * k for k in range(25)]


class GGemm:
    def __init__(self, a, kind):
        self.a, self.kind = a, kind
        if kind == 'B':
            self.stride, self.srdm, self.n, self.fr_off, self.fr_steps = F_ * 2, sW1, 16, HF_OFF, 64
            self.sdb, self.scb, self.ntot, self.P = sBDB, sBCB, 16, B_P
        else:
            self.stride, self.srdm, self.n, self.fr_off, self.fr_steps = S_ * 2, sW2, 14, GF_OFF, 74
            self.sdb, self.scb, self.ntot, self.P = sHG, sRB, 19, G2_P
        self.dtok, self.ftok, self.ttok = {}, {}, {}
        self.free = list(POOL)
        self.reg = {}
        self.pending = []
        order = [(j, 'a') for j in range(self.n)]
        if kind == 'G2':
            order += [(j, k) for j in range(14, 19) for k in 'ab']
        for j, k in order:
            self.pending += [(j, k, x) for x in range(5 if k == 'a' else 4)]
        self.gate = lambda: None
        self.gate2 = lambda: None
        self.nq = 2 if kind == 'B' else 4

    def setup(self):
        a, st = self.a, self.stride
        a(f'v_lshrrev_b32 v24, 3, v{vL}')
        if self.kind == 'B':
            a('v_lshrrev_b32 v25, 2, v24')
            a('v_and_b32 v24, 3, v24')
            a('v_lshl_add_u32 v24, v25, 3, v24')
        a(f'v_mul_u32_u24 v24, {st}, v24')
        a(f'v_and_b32 v25, 7, v{vL}')
        a(f'v_lshlrev_b32 v26, 1, v{vG}')
        a('v_xor_b32 v25, v25, v26')
        a('v_lshl_add_u32 v24, v25, 4, v24')
        a(f's_lshl_b32 s4, s{self.scb}, 7')
        a(f's_mul_i32 s5, s{sW}, {self.n * 32 * st}')
        a('s_add_u32 s5, s5, s4')
        if self.kind == 'B':
            a(f's_mul_i32 s6, s{sWH}, {4 * st}')
            a('s_add_u32 s5, s5, s6')
            a(f's_lshl_b32 s6, s{sWH}, 11')
            a(f's_add_u32 s{sM0B}, s{sGM0}, s6')
        else:
            a(f's_mov_b32 s{sM0B}, s{sGM0}')
        for q in range(self.nq):
            row = 8 * q if self.kind != 'B' else q * 16
            a(f's_add_u32 s6, s5, {row * st - 1024 * q}')
            a(f'v_add_u32 v{vD + q}, s6, v24')
        a(f's_mul_i32 s4, s{self.sdb}, {self.fr_steps}')
        a(f's_mul_i32 s5, s{sW}, {self.n}')
        a('s_add_u32 s4, s4, s5')
        a('s_mul_i32 s4, s4, 5120')
        a(f's_add_u32 s{sFS}, s4, {self.fr_off}')
        if self.kind == 'B':
            a(f's_lshl_b32 s4, s{sW}, {6 + FSH}')
            a(f's_add_u32 s4, s4, {FH_OFF}')
            a(f'v_lshl_add_u32 v{vFL}, v{vL}, {FSH}, s4')
        else:
            a(f's_lshl_b32 s4, s{self.sdb}, {7 + FSH}')
            a(f's_mul_i32 s5, s{sW}, {28 << FSH}')
            a('s_add_u32 s4, s4, s5')
            a(f's_add_u32 s4, s4, {FG_OFF}')
            a(f's_mul_i32 s5, s{self.sdb}, {74 * 5120}')
            a(f's_add_u32 s{sLIM}, s5, {GF_OFF + 53 * 5120}')
            a(f's_cmp_eq_u32 s{sW}, 3')
            a('s_cselect_b32 s5, 23, 27')
            a(f'v_min_u32 v24, s5, v{vL}')
            a(f'v_lshl_add_u32 v{vFL}, v24, {FSH}, s4')

    def dma_items(self, j):
        a = self.a

        def one(q):
            def f():
                if q == 0:
                    a(f's_add_u32 m0, s{sM0B}, {(j % self.P) * 16384}')
                off = f' offset:{q * 1024}' if q else ''
                nt = ' nt' if ('ntb' in EXP and self.kind == 'B' and j < self.P) else ''
                self.dtok[j] = a(f'buffer_load_dwordx4 v{vD + q}, {S(self.srdm, 4)}, 0 offen{off}{nt} lds')
                if not ('hotw' in EXP):
                    a(f'v_add_u32 v{vD + q}, {32 * self.stride}, v{vD + q}')
            return f
        return [one(q) for q in range(self.nq)]

    def frag_items(self, lim=99):
        a = self.a
        out = []
        while self.free and self.pending and len(out) < lim:
            key = self.pending.pop(0)
            r = self.free.pop(0)
            self.reg[key] = r

            def f(key=key, r=r):
                j, kind, x = key
                if key == (self.n, 'a', 0):
                    self.gate()
                if key == (self.n, 'b', 0):
                    self.gate2()
                if kind == 'a' and 'b_nof' in EXP and self.kind == 'B' and j >= 5 and x > 0:
                    pass
                elif kind == 'a':
                    vo, off = (vF, x * 1024) if x < 4 else (vF + 1, 0)
                    offs = f' offset:{off}' if off else ''
                    self.ftok[j] = a(f'buffer_load_dwordx4 {V(r, 4)}, v{vo}, {S(sWS, 4)}, s{sFS} offen{offs} sc1')
                    if x == 4 and 'hotf' not in EXP:
                        a(f's_add_u32 s{sFS}, s{sFS}, 5120')
                        if self.kind == 'G2' and j < 14:
                            a(f's_min_u32 s{sFS}, s{sFS}, s{sLIM}')
                else:
                    if j - self.n == 2:
                        a(f'v_lshlrev_b32 v24, 3, v{vL}')
                        a(f'v_sub_u32 v24, v{vOF + x}, v24')
                        a(f'buffer_load_dwordx2 {V(r, 2)}, v24, {S(sWS, 4)}, s11 offen sc1')
                        self.ftok[j] = a(f'buffer_load_dwordx2 {V(r + 2, 2)}, v24, {S(sWS, 4)}, s11 offen offset:512 sc1')
                    else:
                        self.ftok[j] = a(f'buffer_load_dwordx4 {V(r, 4)}, v{vOF + x}, {S(sWS, 4)}, s11 offen sc1')
                    if x == 3:
                        a('s_add_u32 s11, s11, 4096')
            out.append(f)
        return out

    def tr_items(self, j):
        a = self.a

        def one(nt):
            def f():
                off = (j % self.P) * 16384
                base = vT
                if off >= 65536:
                    if off % 65536 == 0:
                        a(f'v_add_u32 v{vT2 + nt}, {off}, v{vT + nt}')
                    off %= 65536
                    base = vT2
                if 'b_nods' in EXP and self.kind == 'B' and j > 1 and nt > 0:
                    return
                a(f'ds_read_b64_tr_b16 {V(TF(j, nt), 2)}, v{base + nt} offset:{off}')
                self.ttok[j] = a(f'ds_read_b64_tr_b16 {V(TF(j, nt) + 2, 2)}, v{base + nt} offset:{off + 2048}')
            return f
        return [one(nt) for nt in range(4)]

    def mainloop(self, extra):
        a, n = self.a, self.n
        a.wait(self.dtok[0])
        Hooks(self.tr_items(0)).flush()
        for j in range(self.ntot):
            items = []
            if j + 1 < n:
                a.wait(self.dtok[j + 1])
            a.wait(self.ftok[j], self.ttok.get(j))
            if self.kind == 'B' and 'b_nobar' not in EXP and j + 1 < n and (j + self.P < n or j + 1 >= int(os.environ.get('BPRE', '10'))):
                a('s_barrier')
            if j % 3 == 0:
                stamp(a, f'{self.kind}_{j}')
                if STAMPS and j in (3, 9):
                    a('s_memtime s[98:99]')
                    a.wait_lg0()
                    a(f'v_writelane_b32 v{vST}, s98, {56 + (j // 9) + (2 if self.kind == "G2" else 0)}')
            if j + 1 < n:
                items += self.tr_items(j + 1)
            if j + self.P < n:
                items += self.dma_items(j + self.P)
            items += extra(j)
            lim = int(os.environ.get('LIMB' if self.kind == 'B' else 'LIMG', '10'))
            items += self.frag_items(lim if (self.kind == 'B' or j < int(os.environ.get('LIMJ', '9'))) else 10)
            last = j == self.ntot - 1
            if self.kind == 'G2' and j == 16:
                a('s_barrier')
            if last:
                a(f's_mul_i32 s7, s{sWH}, 102400')
                for nt in range(1, 4):
                    a(f's_xor_b32 s4, s{sW}, {nt}')
                    a('s_mul_i32 s4, s4, 15360')
                    a(f's_add_u32 s4, s4, {(nt - 1) * 5120}')
                    a('s_add_u32 s4, s4, s7')
                    a(f'v_add_u32 v{24 + nt}, s4, v{vF}')
                wr = [(nt, t) for nt in (1, 2, 3) for t in range(5)]
            hk = Hooks(items)
            k = 0
            ILV = os.environ.get('ILVB', 'fine') if self.kind == 'B' else os.environ.get('ILVG', 'burst')
            for nt in (1, 2, 3, 0):
                for t in range(5):
                    acc = V(ACC(t, nt), 4)
                    c = '0' if j == 0 else acc
                    fr = V(self.reg[(j, 'a', t)], 4)
                    tf = V(TF(j, nt) if j < n else self.reg[(j, 'b', nt)], 4)
                    if self.kind == 'B':
                        a(f'v_mfma_f32_16x16x32_bf16 {acc}, {tf}, {fr}, {c}')
                    else:
                        a(f'v_mfma_f32_16x16x32_bf16 {acc}, {fr}, {tf}, {c}')
                    k += 1
                    if last and k > 5:
                        wn, wt = wr.pop(0)
                        a(f'ds_write_b128 v{24 + wn}, {V(ACC(wt, wn), 4)} offset:{wt * 1024}')
                    if ILV == 'fine':
                        if k % 4 != 0:
                            hk.run()
                    elif ILV == 'burst':
                        if k <= 4 and j + 1 < n:
                            hk.run()
                    elif ILV == 'two':
                        if k <= 4 and j + 1 < n:
                            hk.run()
                        if k == 10:
                            hk.run(4)
                    elif ILV == 'pre':
                        if k == 1:
                            hk.flush()
            hk.flush()
            self.free += [r for key, r in self.reg.items() if key[0] == j]
            if n - 2 <= j < n:
                self.free += [TF(j, nt) for nt in range(4)]

    def reduce(self):
        a = self.a
        a(f's_mul_i32 s4, s{sW}, 15360')
        a('s_add_u32 s4, s4, s7')
        a(f'v_add_u32 v24, s4, v{vF}')
        a.wait_lg0()
        a('s_barrier')
        rtok = {}
        for nt in range(1, 4):
            for t in range(5):
                rtok[(nt, t)] = a(f'ds_read_b128 {V(ACC(t, nt), 4)}, v24 offset:{(nt - 1) * 5120 + t * 1024}')
        for nt in range(1, 4):
            for t in range(5):
                a.wait(rtok[(nt, t)])
                for h in range(2):
                    d = V(ACC(t, 0) + 2 * h, 2)
                    a(f'v_pk_add_f32 {d}, {d}, {V(ACC(t, nt) + 2 * h, 2)}')


def frag10_addr(a, m, hi_add, step, base_s, vrd, vrd_base, vst):
    a(f's_add_u32 s4, s{sW}, {4 * m}')
    a('s_min_u32 s5, s4, 9')
    a('s_cmp_ge_u32 s5, 5')
    a(f's_cselect_b32 s6, {hi_add}, 0')
    a(f's_mul_i32 s5, s5, {step}')
    a('s_add_u32 s5, s5, s6')
    a(f'v_add_u32 v{vrd}, s5, v{vrd_base}')
    a('s_lshl_b32 s5, s4, 10')
    a(f's_add_u32 s5, s5, s{base_s}')
    a('s_cmp_ge_u32 s4, 10')
    a(f's_cselect_b32 s5, {OOB}, s5')
    a(f'v_lshl_add_u32 v{vst}, v{vL}, 4, s5')


NTP = ' nt' if 'ntp' in EXP else ''
FIRST = int(os.environ.get('FIRST', '25'))
vTH = 40


def g_common(a):
    a(f'v_lshlrev_b32 v{vF}, 4, v{vL}')
    a(f'v_add_u32 v{vF + 1}, 4096, v{vF}')
    a(f's_lshl_b32 s{sGM0}, s{sW}, 12')
    a(f'v_bfe_u32 v25, v{vGR}, 1, 2')
    a(f'v_xor_b32 v25, s{sW}, v25')
    a(f'v_lshlrev_b32 v26, 7, v{vGR}')
    a(f'v_lshl_add_u32 v26, v{vC}, 3, v26')
    a(f'v_add_u32 v26, s{sGM0}, v26')
    for nt in range(4):
        a(f'v_xor_b32 v27, {nt}, v25')
        a(f'v_lshl_add_u32 v{vT + nt}, v27, 5, v26')


def tag_ready(a):
    a('s_waitcnt lgkmcnt(0)')
    a(f's_add_u32 s{sTAG}, s{sTAG}, 1')


def role_a(a):
    a(f's_and_b32 s4, s{sID}, 7')
    a(f's_lshr_b32 s5, s{sID}, 3')
    a('s_and_b32 s6, s4, 1')
    a('s_lshl_b32 s6, s6, 2')
    a('s_and_b32 s7, s5, 3')
    a(f's_add_u32 s{sHG}, s6, s7')
    a('s_lshr_b32 s6, s4, 1')
    a('s_lshl_b32 s6, s6, 2')
    a('s_lshr_b32 s7, s5, 2')
    a('s_add_u32 s6, s6, s7')
    a(f's_mov_b32 s{sRB}, s6')
    a('s_lshl_b32 s6, s6, 3')
    a(f's_add_u32 s15, s6, s{sHG}')
    a('s_lshl_b32 s12, s15, 1')
    a(f's_add_u32 s12, s12, s{sWH}')
    X = 156
    a('s_lshl_b32 s4, s12, 2')
    a(f's_add_u32 s4, s4, s{sW}')
    a('s_mul_i32 s4, s4, 2560')
    a(f'v_mul_u32_u24 v24, 40, v{vL}')
    xt = []
    for k in range(5):
        xt.append(a(f'buffer_load_dwordx2 {V(X + 2 * k, 2)}, v24, {S(sX, 4)}, s4 offen offset:{8 * k}{NTP}'))
    srd(a, sWQ, P_WQKV, D_ * 3 * D_ * 2)
    vLN = 8
    a(f'v_lshlrev_b32 v{vLN}, 4, v{vL}')
    a(f'v_add_u32 v{vLN + 1}, 4096, v{vLN}')
    a(f's_mul_i32 s{sM0B}, s{sW8}, 5120')
    a('s_lshl_b32 s10, s15, 2')
    a(f's_add_u32 s10, s10, s{sW}')
    a('s_mul_i32 s4, s10, 1093')
    a('s_lshr_b32 s4, s4, 16')
    a('s_mul_i32 s5, s4, 60')
    a('s_sub_u32 s5, s10, s5')
    a('s_lshr_b32 s6, s5, 1')
    a('s_and_b32 s7, s5, 1')
    a('s_add_u32 s7, s7, 1')
    a('s_sub_u32 s8, s5, 40')
    a('s_cmp_ge_u32 s5, 40')
    a('s_cselect_b32 s6, s8, s6')
    a('s_cselect_b32 s7, 0, s7')
    a(f's_mul_i32 s6, s6, {32 * 3840}')
    a('s_mul_i32 s7, s7, 1280')
    a('s_mul_i32 s4, s4, 160')
    a('s_add_u32 s6, s6, s7')
    a('s_add_u32 s6, s6, s4')
    a(f's_cmp_eq_u32 s{sWH}, 0')
    a('s_cselect_b32 s10, 480, s10')
    dma160_voffs(a, 12, 3840, True, 18)
    a('s_cmp_ge_u32 s10, 480')
    a(f's_cselect_b32 s7, {OOB}, 0')
    for q in range(5):
        a(f'v_add_u32 v{12 + q}, s7, v{12 + q}')
    utok = dma160(a, 12, sWQ, 6, sM0B, 0, NTP)
    a(f's_mul_i32 s13, s{sWH}, 24576')
    a('s_add_u32 s13, s13, 65536')
    a('s_add_u32 s14, s13, 12288')
    srd(a, sAUX, P_WPHI, 32 * 800)
    a(f's_mul_i32 s6, s{sHG}, 3200')
    a(f's_lshl_b32 s7, s{sW}, 10')
    a('s_add_u32 s6, s6, s7')
    a(f'v_lshl_add_u32 v10, v{vL}, 4, s6')
    a(f's_add_u32 m0, s7, {L_WPHI}')
    a(f'buffer_load_dwordx4 v10, {S(sAUX, 4)}, 0 offen lds')
    for k in range(4):
        a(f'v_mov_b32 v{44 + k}, 0')
    a(f'v_lshlrev_b32 v18, 4, v{vTH}')
    a(f'v_add_u32 v18, {L_ZERO}, v18')
    a('ds_write_b128 v18, v[44:47]')
    a(f'v_mov_b32 v10, {L_CNT}')
    a('v_mov_b32 v11, 0')
    a('ds_write2_b32 v10, v11, v11 offset0:0 offset1:1')
    vONE, vS, vRS, vNB = 34, 36, 168, 170
    a(f'v_mov_b32 v{vONE}, 0x3f803f80')
    for k in range(4):
        a(f'v_mov_b32 v{vS + k}, 0')
    a('s_waitcnt lgkmcnt(0)')
    a(f's_add_u32 s{sTAG}, s{sTAG}, 1')
    def unit_part():
        a(f'v_mul_u32_u24 v29, 160, v{vGR}')
        a(f'v_mul_u32_u24 v24, 40, v{vC}')
        a('v_add_u32 v29, v29, v24')
        a(f'v_add_u32 v29, s{sM0B}, v29')
        a('s_mul_i32 s4, s10, 5120')
        a(f's_add_u32 s4, s4, {WF_OFF}')
        a('s_cmp_ge_u32 s10, 480')
        a(f's_cselect_b32 s4, {OOB}, s4')
        a(f'v_add_u32 v24, s4, v{vLN}')
        a(f'v_add_u32 v25, s4, v{vLN + 1}')
        a(f's_lshl_b32 s5, s10, {FSH}')
        a(f's_add_u32 s5, s5, {FU_OFF}')
        a('s_cmp_ge_u32 s10, 480')
        a(f's_cselect_b32 s10, {OOB}, s5')
        a.wait(utok)
        ut = []
        for t in range(5):
            a(f'ds_read_b64_tr_b16 {V(UP(t), 2)}, v29 offset:{8 * t}')
            ut.append(a(f'ds_read_b64_tr_b16 {V(UP(t) + 2, 2)}, v29 offset:{8 * t + 2560}'))
        for t in range(5):
            a.wait(ut[t])
            vo, off = (24, t * 1024) if t < 4 else (25, 0)
            a(f'buffer_store_dwordx4 {V(UP(t), 4)}, v{vo}, {S(sWS, 4)}, 0 offen offset:{off} sc1')

    if 'unitfirst' in EXP:
        unit_part()
    a.wait(xt[4])
    stamp(a, 'x')
    for k in range(10):
        a(f'v_dot2c_f32_bf16 v{vS + (k & 1)}, v{X + k}, v{vONE}')
        a(f'v_dot2c_f32_bf16 v{vS + 2 + (k & 1)}, v{X + k}, v{X + k}')
    a(f'v_add_f32 v{vS}, v{vS}, v{vS + 1}')
    a(f'v_add_f32 v{vS + 2}, v{vS + 2}, v{vS + 3}')
    for sh in (8, 4, 2, 1):
        for r in (vS, vS + 2):
            a(f'v_add_f32_dpp v{r}, v{r}, v{r} row_ror:{sh} row_mask:0xf bank_mask:0xf')
    for r in (vS, vS + 2):
        a(f'v_mov_b32 v{r + 1}, v{r}')
        a(f'v_permlane16_swap_b32 v{r}, v{r + 1}')
        a(f'v_add_f32 v{r}, v{r}, v{r + 1}')
    ln_scales(a, vS, vRS, vNB)
    a(f'v_mul_f32 v{vS + 1}, v{vRS}, v{vRS}')
    a(f'v_mov_b32 v{vS + 3}, {fbits(1e-5)}')
    a(f'v_fmac_f32 v{vS + 3}, v{vS + 1}, v{vS + 2}')
    a(f'v_rsq_f32 v{vS + 2}, v{vS + 3}')
    U = 172
    for k in range(10):
        a(f'v_lshlrev_b32 v{U + 2 * k}, 16, v{X + k}')
        a(f'v_and_b32 v{U + 2 * k + 1}, 0xffff0000, v{X + k}')
    for k in range(10):
        a(f'v_pk_fma_f32 {V(U + 2 * k, 2)}, {V(U + 2 * k, 2)}, {V(vRS, 2)}, {V(vNB, 2)} op_sel_hi:[1,0,0]')
    XQ = 192
    for k in range(10):
        a(f'v_cvt_pk_bf16_f32 v{XQ + k}, v{U + 2 * k}, v{U + 2 * k + 1}')
    for k in range(10):
        a(f'v_pk_mul_f32 {V(U + 2 * k, 2)}, {V(U + 2 * k, 2)}, {V(vS + 2, 2)} op_sel_hi:[1,0]')
    for k in range(10):
        a(f'v_cvt_pk_bf16_f32 v{X + k}, v{U + 2 * k}, v{U + 2 * k + 1}')
    a(f's_mul_i32 s4, s{sW}, {2 * 1296}')
    a('s_add_u32 s4, s4, s13')
    a(f'v_mul_u32_u24 v24, 40, v{vL}')
    a(f'v_lshrrev_b32 v25, 5, v{vL}')
    a('v_lshl_add_u32 v24, v25, 4, v24')
    a('v_add_u32 v24, s4, v24')
    for k in range(5):
        a(f'ds_write_b64 v24, {V(XQ + 2 * k, 2)} offset:{8 * k}')
    a(f'v_and_b32 v25, 7, v{vTH}')
    a(f'v_lshrrev_b32 v26, 3, v{vTH}')
    a('v_mul_u32_u24 v28, 1296, v25')
    a('v_lshl_add_u32 v28, v26, 4, v28')
    a('v_add_u32 v28, s13, v28')
    a('v_lshlrev_b32 v29, 8, v26')
    a('v_lshl_add_u32 v29, v25, 4, v29')
    a(f's_lshr_b32 s4, s12, 1')
    a('s_mul_i32 s4, s4, 20480')
    a(f's_and_b32 s5, s12, 1')
    a('s_lshl_b32 s5, s5, 7')
    a('s_add_u32 s4, s4, s5')
    a(f's_add_u32 s4, s4, {XF_OFF}')
    a('v_add_u32 v29, s4, v29')
    a('v_add_u32 v30, 8192, v29')
    a(f's_cmp_ge_u32 s{sW}, 2')
    a(f's_cselect_b32 s4, {OOB}, 16384')
    a('v_add_u32 v31, s4, v29')
    a(f's_mul_i32 s4, s{sW}, 2560')
    a('s_add_u32 s4, s4, s14')
    a(f'v_mul_u32_u24 v24, 40, v{vL}')
    a('v_add_u32 v24, s4, v24')
    for k in range(5):
        a(f'ds_write_b64 v24, {V(X + 2 * k, 2)} offset:{8 * k}')
    a(f'v_mul_u32_u24 v24, 1280, v{vR}')
    a(f'v_mul_u32_u24 v25, 160, v{vG}')
    a('v_add_u32 v24, v24, v25')
    a(f'v_mul_u32_u24 v25, 40, v{vC}')
    a('v_add_u32 v24, v24, v25')
    a('v_add_u32 v24, s14, v24')
    a(f'v_mul_u32_u24 v25, {64 * 5120}, v{vG}')
    a(f'v_lshl_add_u32 v25, v{vI}, 4, v25')
    a(f's_lshr_b32 s4, s12, 2')
    a('s_mul_i32 s4, s4, 5120')
    a(f's_and_b32 s5, s12, 3')
    a('s_lshl_b32 s5, s5, 8')
    a('s_add_u32 s4, s4, s5')
    a(f's_add_u32 s8, s4, {HF_OFF}')
    a.wait_lg0()
    a('s_barrier')
    ht = []
    for m in range(3):
        ht.append(a(f'ds_read_b128 {V(XQ + 4 * m, 4)}, v28 offset:{512 * m}'))
    for m in range(3):
        a.wait(ht[m])
        a(f'buffer_store_dwordx4 {V(XQ + 4 * m, 4)}, v{29 + m}, {S(sWS, 4)}, 0 offen sc1')
    ht = []
    for m in range(3):
        a(f's_add_u32 s4, s{sW}, {4 * m}')
        a('s_min_u32 s5, s4, 9')
        a('s_cmp_ge_u32 s5, 5')
        a(f's_cselect_b32 s6, {640 - 40}, 0')
        a(f's_cselect_b32 s7, {4 * 64 * 5120 - 5120}, 0')
        a('s_lshl_b32 s5, s5, 3')
        a('s_add_u32 s5, s5, s6')
        a('v_add_u32 v26, s5, v24')
        a(f'ds_read_b64_tr_b16 {V(U + 4 * m, 2)}, v26')
        ht.append(a(f'ds_read_b64_tr_b16 {V(U + 4 * m + 2, 2)}, v26 offset:{4 * 1280}'))
        a('s_lshl_b32 s5, s4, 10')
        a('s_add_u32 s5, s5, s7')
        a('s_add_u32 s5, s5, s8')
        a('s_cmp_ge_u32 s4, 10')
        a(f's_cselect_b32 s5, {OOB}, s5')
        a(f'v_add_u32 v{34 + m}, s5, v25')
    for m in range(3):
        a.wait(ht[m])
        a(f'buffer_store_dwordx4 {V(U + 4 * m, 4)}, v{34 + m}, {S(sWS, 4)}, 0 offen sc1')
    hst = ('vm', a.vm_issued - 1)
    if 'unitfirst' not in EXP:
        unit_part()
    a(f's_lshl_b32 s4, s{sWH}, 2')
    a(f's_add_u32 s4, s4, {L_CNT}')
    a('v_mov_b32 v10, s4')
    a('v_mov_b32 v11, 1')
    a.wait(hst)
    a('s_mov_b64 exec, 1')
    a('ds_add_rtn_u32 v11, v10, v11')
    a('s_mov_b64 exec, -1')
    a.wait_lg0()
    a('v_readfirstlane_b32 s5, v11')
    a(f's_lshl_b32 s4, s12, {FSH}')
    a(f's_add_u32 s4, s4, {FH_OFF}')
    a('s_cmp_lg_u32 s5, 3')
    a('s_cbranch_scc1 L_nofh')
    flag_set(a, 4)
    a.label('L_nofh')
    a.wait_vm0()
    flag_set(a, 10)
    stamp(a, 'prep')
    a(f's_mov_b32 s{sL}, {fbits(LOG2E)}')
    a(f's_mov_b32 s{sL + 1}, {fbits(LOG2E)}')
    a(f's_mov_b32 s{sNL}, {fbits(-LOG2E)}')
    a(f's_mov_b32 s{sNL + 1}, {fbits(-LOG2E)}')
    a(f's_mul_i32 s10, s{sHG}, 60')
    a(f's_lshl_b32 s4, s10, {FSH}')
    a(f's_add_u32 s4, s4, {FU_OFF}')
    a(f'v_lshl_add_u32 v20, v{vL}, {FSH}, s4')
    a(f's_lshl_b32 s11, s{sRB}, 2')
    a(f's_add_u32 s11, s11, s{sW}')
    a(f's_lshl_b32 s4, s11, {FSH + 2}')
    a(f's_add_u32 s4, s4, {FH_OFF}')
    a(f'v_lshl_add_u32 v21, v{vC}, {FSH}, s4')
    a(f'v_cmp_gt_u32 vcc, 60, v{vL}')
    a('v_cndmask_b32 v20, v21, v20, vcc')
    a(f's_add_u32 s10, s10, s{sW}')
    a('s_mul_i32 s10, s10, 5120')
    a(f's_add_u32 s10, s10, {WF_OFF}')
    a(f's_add_u32 s9, s10, {40 * 5120}')
    a(f's_mul_i32 s{sM0B}, s{sW}, 5120')
    a('s_mul_i32 s11, s11, 40960')
    a(f's_add_u32 s11, s11, {XF_OFF}')
    a(f'v_add_u32 v10, 20480, v{vLN}')
    a(f'v_add_u32 v26, {L_RING}, v{vLN}')
    a(f'v_add_u32 v27, 61440, v{vLN}')

    def wphi_frags(WPF, wbase, zbase):
        a(f'v_mul_u32_u24 v22, 800, v{vG}')
        a(f'v_mul_u32_u24 v23, 40, v{vR}')
        a('v_add_u32 v22, v22, v23')
        a(f'v_add_u32 v22, {wbase}, v22')
        a(f'v_mov_b32 v23, {zbase}')
        a(f'v_cmp_eq_u32 vcc, v{vG}, v{vC}')
        a('v_cndmask_b32 v22, v23, v22, vcc')
        for t in range(5):
            for d4 in range(5):
                a(f'ds_read_b64_tr_b16 {V(WPF(t, d4 // 2) + 2 * (d4 % 2), 2)}, v22 offset:{4 * d4 * 40 + 8 * t}')

    Q = lambda k: 48 + 4 * k
    WPF = lambda t, ks: Q(2 * t + ks) if ks < 2 else Q(10 + t // 2) + 2 * (t % 2)
    a('s_barrier')
    wphi_frags(WPF, L_WPHI, L_ZERO)
    a.wait_lg0()
    a('s_barrier')
    flag_check(a, flag_issue(a, 20, 21), 20, 21)
    stamp(a, 'go')

    def xload(dst, ks, z):
        off = f' offset:{(ks % 4) * 1024}' if ks % 4 else ''
        t = a(f'buffer_load_dwordx4 {V(dst, 4)}, v{vLN if z == 0 else 10}, {S(sWS, 4)}, s11 offen{off} sc1')
        if ks % 4 == 3 and z == 1:
            a('s_add_u32 s11, s11, 4096')
        return t

    a(f's_cmp_lg_u32 s{sWH}, 0')
    a('s_cbranch_scc1 L_a_upper')
    at_split = a.save()
    a('s_setprio 2')
    AC = lambda k, z: Q(13 + 2 * k + z)
    XR = lambda ks, z: Q(33 + (ks % 6) * 2 + z)
    FW = lambda n: Q(45 + n % 7)
    xtok = {}
    for ks in range(5):
        for z in range(2):
            xtok[ks] = xload(XR(ks, z), ks, z)
    a('s_barrier')
    stamp(a, 'a0')
    WIN, NF = 6, 200
    ftok = {}

    def read_frag(n):
        d, r = divmod(n, 20)
        ftok[n] = a(f'ds_read_b128 {V(FW(n), 4)}, v26 offset:{(d % 3) * 20480 + r * 1024}')

    for n in range(WIN):
        read_frag(n)
    for n in range(NF):
        nn = n + WIN
        if nn < NF:
            if nn % 20 == 0:
                a.wait_lg0()
                a('s_barrier')
                if (nn // 20) % 3 == 0:
                    stamp(a, f'a{nn // 20}')
            read_frag(nn)
        ks, k = divmod(n, 10)
        a.wait(ftok[n], xtok[ks])
        for z in range(2):
            c = '0' if ks == 0 else V(AC(k, z), 4)
            a(f'v_mfma_f32_16x16x32_bf16 {V(AC(k, z), 4)}, {V(FW(n), 4)}, {V(XR(ks, z), 4)}, {c}')
        if k in (2, 6) and ks + 5 < 20:
            xtok[ks + 5] = xload(XR(ks + 5, k // 4), ks + 5, k // 4)
    a('s_barrier')
    stamp(a, 'aend')
    vSA, vKA, vKO = 8, 9, 12
    a(f's_lshl_b32 s4, s{sW}, 5')
    a(f'v_lshl_add_u32 v{vSA}, v{vG}, 7, v{vI}')
    a(f'v_add_u32 v{vSA}, s4, v{vSA}')
    a(f'v_mul_u32_u24 v{vSA}, 120, v{vSA}')
    a(f'v_add_u32 v{vSA}, {L_RING}, v{vSA}')
    for z in range(2):
        for t in range(5):
            r = AC(5 + t, z)
            a(f'v_cvt_pk_bf16_f32 v{r}, v{r}, v{r + 1}')
            a(f'v_cvt_pk_bf16_f32 v{r + 1}, v{r + 2}, v{r + 3}')
            a(f'ds_write_b64 v{vSA}, {V(r, 2)} offset:{z * 16 * 120 + 80 + 8 * t}')
    PK = [Q(33), Q(34), Q(35)]
    EN5 = [Q(36 + c) for c in range(5)]
    for z in range(2):
        E5 = [AC(t, z) for t in range(5)]
        P5 = [Q(41 + 5 * z + c) for c in range(5)]
        featmap(a, E5, PK, WPF, P5, E5, EN5, 32)
        for c in range(10):
            a(f'ds_write_b64 v{vSA}, {V(P5[c // 2] + 2 * (c % 2), 2)} offset:{z * 16 * 120 + 8 * c}')
    stamp(a, 'fm')
    a(f's_mul_i32 s4, s{sW}, {128 * 120}')
    a(f's_add_u32 s4, s4, {L_RING}')
    a(f'v_mul_u32_u24 v{vKA}, 120, v{vGR}')
    a(f'v_lshl_add_u32 v{vKA}, v{vC}, 3, v{vKA}')
    a(f'v_add_u32 v{vKA}, s4, v{vKA}')
    a(f's_lshl_b32 s4, s{sHG}, 2')
    a(f's_add_u32 s4, s4, s{sW}')
    a('s_lshl_b32 s4, s4, 4')
    a(f's_add_u32 s13, s4, s{sRB}')
    a('s_mul_i32 s4, s13, 6144')
    a(f's_add_u32 s4, s4, {KV_OFF}')
    a(f'v_lshl_add_u32 v{vKO}, v{vL}, 4, s4')
    a('s_movk_i32 s12, 0x1000')
    a(f'v_mov_b32 v11, {OOB}')
    a(f'v_cmp_gt_u32 vcc, 8, v{vI}')
    a(f'v_cndmask_b32 v{vKO + 1}, v11, v{vKO}, vcc')
    a(f'v_cmp_gt_u32 vcc, 2, v{vG}')
    a(f'v_cndmask_b32 v{vKO + 2}, v11, v{vKO}, vcc')
    a(f'v_cndmask_b32 v{vKO + 3}, v11, v{vKO + 1}, vcc')
    a(f's_lshl_b32 s13, s13, {FSH}')
    a(f's_add_u32 s10, s13, {FK_OFF}')
    a('v_mov_b32 v11, 0x3f803f80')
    a(f'v_cmp_eq_u32 vcc, 1, v{vR}')
    a.wait_lg0()
    a('s_barrier')
    ktok = {}
    OPQ = lambda kk, x: Q(13 + kk * 5 + x)
    KVA = [Q(k) for k in range(6)]

    def kv_read(kk):
        for x in range(5):
            col = 32 * x if x < 3 else 80 + 32 * (x - 3)
            a(f'ds_read_b64_tr_b16 {V(OPQ(kk, x), 2)}, v{vKA} offset:{kk * 32 * 120 + col}')
            ktok[kk] = a(f'ds_read_b64_tr_b16 {V(OPQ(kk, x) + 2, 2)}, v{vKA} offset:{kk * 32 * 120 + 16 * 120 + col}')

    kv_read(0)
    for kk in range(4):
        if kk + 1 < 4:
            kv_read(kk + 1)
        a.wait(ktok[kk])
        for j in range(4):
            a(f'v_cndmask_b32 v{OPQ(kk, 4) + j}, v{OPQ(kk, 4) + j}, v11, vcc')
        for et in range(2):
            for ft in range(3):
                d = V(KVA[ft * 2 + et], 4)
                a(f'v_mfma_f32_16x16x32_bf16 {d}, {V(OPQ(kk, 3 + et), 4)}, {V(OPQ(kk, ft), 4)}, {"0" if kk == 0 else d}')
    for ft in range(3):
        for et in range(2):
            vo = vKO + (1 if ft == 2 else 0) + (2 if et == 1 else 0)
            so = 's12' if ft == 2 else '0'
            a(f'buffer_store_dwordx4 {V(KVA[ft * 2 + et], 4)}, v{vo}, {S(sWS, 4)}, {so} offen offset:{(ft % 2) * 2048 + et * 1024} sc1')
    a.wait_vm0()
    flag_set(a, 10)
    a(f's_mov_b32 s10, {OOB}')
    if 'pfa' in EXP:
        a(f's_lshr_b32 s4, s{sID}, 3')
        a('s_lshl_b32 s4, s4, 2')
        a(f's_add_u32 s4, s4, s{sW}')
        a(f's_mul_i32 s5, s4, {27 * 4096}')
        a(f's_and_b32 s7, s{sID}, 7')
        a('s_lshl_b32 s7, s7, 9')
        a('s_add_u32 s5, s5, s7')
        a(f'v_lshrrev_b32 v24, 2, v{vL}')
        a('v_min_u32 v24, 13, v24')
        a('v_lshlrev_b32 v24, 12, v24')
        a(f'v_lshl_add_u32 v24, v{vC}, 7, v24')
        a('v_add_u32 v24, s5, v24')
        a(f'buffer_load_dword v37, v24, {S(sW2, 4)}, 0 offen')
        a(f'v_add_u32 v24, {13 * 4096}, v24')
        a(f'buffer_load_dword v37, v24, {S(sW2, 4)}, 0 offen')
    a('s_barrier')
    a('s_branch L_join')

    a.label('L_a_upper')
    a.restore(at_split)
    wtok = {}

    def dma5(so, lds):
        a(f's_add_u32 m0, s{sM0B}, {lds}')
        for q in range(4):
            off = f' offset:{q * 1024}' if q else ''
            a(f'buffer_load_dwordx4 v{vLN}, {S(sWS, 4)}, s{so} offen{off} sc1 lds')
        a(f's_add_u32 m0, s{sM0B}, {lds + 4096}')
        t = a(f'buffer_load_dwordx4 v{vLN + 1}, {S(sWS, 4)}, s{so} offen sc1 lds')
        a(f's_add_u32 s{so}, s{so}, 20480')
        return t

    NXR = 12
    XQ_ = lambda ks, z: Q(13 + (ks % NXR) * 2 + z)
    AQ = lambda t, z: Q(37 + 2 * t + z)
    FQ = lambda n: Q(47 + n % 5)
    xtok = {}
    for d in range(3):
        wtok[d] = dma5(10, L_RING + d * 20480)
    for d in range(10):
        a.wait(wtok[d])
        a('s_barrier')
        if 1 <= d and d + 2 < 10:
            wtok[d + 2] = dma5(10, L_RING + ((d + 2) % 3) * 20480)
        if d < 5:
            qtok = dma5(9, L_WQ + d * 20480)
        if 4 <= d < 10:
            for ks in (2 * (d - 4), 2 * (d - 4) + 1):
                for z in range(2):
                    xtok[ks] = xload(XQ_(ks, z), ks, z)
    a.wait(qtok)
    a('s_barrier')
    ftok = {}

    def read_q(n):
        off = n * 1024
        ftok[n] = a(f'ds_read_b128 {V(FQ(n), 4)}, v{vLN if off < 61440 else 27} offset:{off % 61440}')

    QBAR = int(os.environ.get('QBAR', '-1'))
    if QBAR < 0:
        a('s_barrier')
    for n in range(4):
        read_q(n)
    for n in range(100):
        if n + 4 < 100:
            read_q(n + 4)
        ks, t = divmod(n, 5)
        a.wait(ftok[n], xtok[ks])
        for z in range(2):
            c = '0' if ks == 0 else V(AQ(t, z), 4)
            a(f'v_mfma_f32_16x16x32_bf16 {V(AQ(t, z), 4)}, {V(FQ(n), 4)}, {V(XQ_(ks, z), 4)}, {c}')
        if t in (1, 3) and ks >= 1 and ks - 1 + NXR < 20:
            xtok[ks - 1 + NXR] = xload(XQ_(ks - 1 + NXR, t // 2), ks - 1 + NXR, t // 2)
        if n == QBAR:
            a('s_barrier')
    a('s_barrier')
    stamp(a, 'aend')
    PK = [Q(13), Q(14), Q(15)]
    EN5 = [Q(16 + c) for c in range(5)]
    PP = [[Q(21 + 5 * z + c) for c in range(5)] for z in range(2)]
    for z in range(2):
        E5 = [AQ(t, z) for t in range(5)]
        featmap(a, E5, PK, WPF, PP[z], E5, EN5, 32)
    stamp(a, 'fm')
    a('s_setprio 3')
    a(f's_mul_i32 s6, s{sW}, 10240')
    a(f's_add_u32 s6, s6, {L_RING}')
    a(f'v_lshlrev_b32 v31, 11, v{vG}')
    a(f'v_lshl_add_u32 v31, v{vR}, 3, v31')
    a('v_mov_b32 v21, 8192')
    a(f'v_cmp_eq_u32 vcc, v{vG}, v{vC}')
    a('v_cndmask_b32 v31, v21, v31, vcc')
    a('v_add_u32 v31, s6, v31')
    for k in range(4):
        a(f'v_mov_b32 v{44 + k}, 0')
    a(f'v_add_u32 v21, s6, v{vLN}')
    a('ds_write_b128 v21, v[44:47] offset:8192')
    a('ds_write_b128 v21, v[44:47] offset:9216')
    a(f's_lshl_b32 s4, s{sHG}, {4 + FSH}')
    a(f's_add_u32 s4, s4, {FR_OFF}')
    a(f'v_lshl_add_u32 v20, v{vI}, {FSH}, s4')
    a(f'v_lshlrev_b32 v8, 4, v{vL}')
    a('v_add_u32 v9, 4096, v8')
    a(f'v_lshlrev_b32 v10, 3, v{vL}')
    a(f's_lshl_b32 s5, s{sHG}, 13')
    a(f's_add_u32 s5, s5, {KB_OFF}')
    a(f's_lshl_b32 s7, s{sRB}, 1')
    a(f's_lshr_b32 s8, s{sW}, 1')
    a('s_add_u32 s7, s7, s8')
    a(f's_and_b32 s8, s{sW}, 1')
    a('s_lshl_b32 s8, s8, 1')
    a(f's_lshr_b32 s12, s{sHG}, 1')
    a('s_mul_i32 s12, s12, 5')
    a('s_mul_i32 s13, s7, 20')
    a('s_add_u32 s12, s12, s13')
    a('s_lshl_b32 s12, s12, 2')
    a('s_add_u32 s12, s12, s8')
    a('s_lshl_b32 s12, s12, 10')
    a(f's_add_u32 s12, s12, {OF_OFF}')
    a(f's_and_b32 s13, s{sHG}, 1')
    a(f's_mul_i32 s14, s13, {3 * 4096}')
    a('s_add_u32 s14, s14, s12')
    a('s_lshl_b32 s13, s13, 9')
    a('s_add_u32 s12, s12, s13')
    a(f's_add_u32 s12, s12, {2 * 4096}')
    a('s_lshl_b32 s13, s7, 3')
    a(f's_add_u32 s13, s13, s{sHG}')
    a('s_lshl_b32 s13, s13, 2')
    a('s_add_u32 s13, s13, s8')
    a(f's_lshl_b32 s13, s13, {FSH}')
    a(f's_add_u32 s13, s13, {FO_OFF}')
    flag_check(a, flag_issue(a, 20, 21), 20, 21, int(os.environ.get('RSLEEP', '8')))
    stamp(a, 'rok')
    for hh in range(2):
        a(f's_add_u32 m0, s6, {4096 * hh}')
        for q in range(4):
            off = f' offset:{q * 1024}' if q else ''
            a(f'buffer_load_dwordx4 v{8 + hh}, {S(sWS, 4)}, s5 offen{off} sc1 lds')
    a.wait_all()
    OA = [[Q(31 + k) for k in range(6)], [Q(37 + k) for k in range(6)]]
    KF = lambda ks, t: Q((ks % 2) * 6 + t)
    otok = {}

    def o_read(ks):
        for t in range(6):
            a(f'ds_read_b64_tr_b16 {V(KF(ks, t), 2)}, v31 offset:{kb_pos(8 * ks, t)}')
            otok[ks] = a(f'ds_read_b64_tr_b16 {V(KF(ks, t) + 2, 2)}, v31 offset:{kb_pos(8 * ks + 4, t)}')

    o_read(0)
    for ks in range(5):
        if ks + 1 < 5:
            o_read(ks + 1)
        a.wait(otok[ks])
        for z in range(2):
            for t in range(6):
                d = V(OA[z][t], 4)
                a(f'v_mfma_f32_16x16x32_bf16 {d}, {V(KF(ks, t), 4)}, {V(PP[z][ks], 4)}, {"0" if ks == 0 else d}')
    for z in range(2):
        O = OA[z]
        PO = PK if z == 0 else [Q(16), Q(17), Q(18)]
        a(f'v_add_f32 v{O[5]}, {fbits(1e-6)}, v{O[5]}')
        a(f'v_rcp_f32 v{O[5]}, v{O[5]}')
        for t in range(5):
            for h in range(2):
                a(f'v_pk_mul_f32 {V(O[t] + 2 * h, 2)}, {V(O[t] + 2 * h, 2)}, {V(O[5], 2)} op_sel_hi:[1,0]')
        for k in range(10):
            t, j = divmod(2 * k, 4)
            a(f'v_cvt_pk_bf16_f32 v{PO[k // 4] + k % 4}, v{O[t] + j}, v{O[t] + j + 1}')
        off = f' offset:{1024 * z}' if z else ''
        a(f'buffer_store_dwordx4 {V(PO[0], 4)}, v8, {S(sWS, 4)}, s14 offen{off} sc1')
        a(f'buffer_store_dwordx4 {V(PO[1], 4)}, v9, {S(sWS, 4)}, s14 offen{off} sc1')
        a(f'buffer_store_dwordx2 {V(PO[2], 2)}, v10, {S(sWS, 4)}, s12 offen{off} sc1')
    a.wait_vm0()
    flag_set(a, 13)
    a(f's_cmp_lg_u32 s{sID}, 0')
    a('s_cbranch_scc1 L_a_done')
    a(f's_cmp_lg_u32 s{sW}, 3')
    a('s_cbranch_scc1 L_a_done')
    a(f'v_and_b32 v20, 31, v{vL}')
    a('v_min_u32 v20, 26, v20')
    a(f'v_and_b32 v21, 32, v{vL}')
    a('v_add_u32 v20, v20, v21')
    a(f'v_lshlrev_b32 v20, {FSH + 2}, v20')
    for k in range(4):
        a(f'v_add_u32 v22, {FG_OFF + (k * 256 << FSH)}, v20')
        flag_check(a, flag_issue(a, 22, 21), 22, 21, 12)
    a(f'v_lshlrev_b32 v20, {FSH}, v{vL}')
    for base in (FR_OFF, FR_OFF + (64 << FSH)):
        a(f'v_add_u32 v22, {base}, v20')
        flag_check(a, flag_issue(a, 22, 21), 22, 21, 12)
    a(f'v_and_b32 v20, 31, v{vL}')
    a(f'v_lshlrev_b32 v20, {FSH}, v20')
    a(f'v_add_u32 v22, {FW_OFF}, v20')
    flag_check(a, flag_issue(a, 22, 21), 22, 21, 12)
    a(f's_mov_b32 s10, {EP_OFF}')
    flag_set(a, 10)
    a.label('L_a_done')
    stamp_flush(a, 'end')
    a('s_endpgm')


def role_b(a):
    if 'map4' in EXP:
        a(f's_lshr_b32 s{sBCB}, s6, 2')
        a('s_and_b32 s9, s6, 3')
        a('s_lshl_b32 s6, s9, 1')
    else:
        a('s_cmp_ge_u32 s6, 54')
        a('s_cselect_b32 s7, 54, 0')
        a('s_cselect_b32 s8, 4, 0')
        a('s_sub_u32 s6, s6, s7')
        a(f's_lshr_b32 s{sBCB}, s6, 1')
        a('s_and_b32 s9, s6, 1')
        a('s_lshl_b32 s6, s9, 1')
        a('s_add_u32 s6, s6, s8')
    PR = 24 if 'map4' in EXP else 48
    a(f's_add_u32 s{sBDB}, s6, s{sWH}')
    srd(a, sW1, P_W1, S_ * F_ * 2)
    g_common(a)
    gB = GGemm(a, 'B')
    gB.setup()
    BPRE = int(os.environ.get('BPRE', '10'))
    if 'g1lin' in EXP:
        a(f's_lshl_b32 s4, s{sBCB}, 2')
        a('s_add_u32 s4, s4, s9')
        a('s_lshl_b32 s4, s4, 3')
        a(f's_add_u32 s4, s4, s{sW8}')
        a('s_lshl_b32 s4, s4, 13')
        a(f'v_lshl_add_u32 v24, v{vL}, 7, s4')
        a(f'buffer_load_dword v37, v24, {S(sW1, 4)}, 0 offen')
        if 'g1wait' in EXP:
            a.wait_vm0()
    if 'g1first' in EXP:
        a('s_lshl_b32 s4, s9, 1')
        a(f's_add_u32 s4, s4, s{sWH}')
        a(f's_lshl_b32 s5, s{sW}, 9')
        a('s_add_u32 s4, s4, s5')
        a(f's_mul_i32 s4, s4, {F_ * 2}')
        a(f's_lshl_b32 s5, s{sBCB}, 7')
        a('s_add_u32 s4, s4, s5')
        a(f'v_mul_u32_u24 v24, {8 * F_ * 2}, v{vL}')
        a('v_add_u32 v24, s4, v24')
        a(f'buffer_load_dword v37, v24, {S(sW1, 4)}, 0 offen')
    for j in range(BPRE):
        Hooks(gB.dma_items(j)).flush()

    def b_extra(j):
        return []

    a('s_lshl_b32 s4, s9, 1')
    a(f's_add_u32 s4, s4, s{sWH}')
    a(f's_mul_i32 s4, s4, {PR}')
    a(f's_lshl_b32 s5, s{sW}, 9')
    a('s_add_u32 s4, s4, s5')
    a(f's_add_u32 s4, s4, {32 * B_P}')
    a(f's_mul_i32 s4, s4, {F_ * 2}')
    a(f's_lshl_b32 s5, s{sBCB}, 7')
    a('s_add_u32 s4, s4, s5')
    a(f'v_min_u32 v24, {PR - 1}, v{vL}')
    a(f'v_mul_u32_u24 v24, {F_ * 2}, v24')
    a('v_add_u32 v24, s4, v24')
    if 'g1first' not in EXP and 'nog1' not in EXP:
        a(f'buffer_load_dword v37, v24, {S(sW1, 4)}, 0 offen')
    srd(a, sAUX, P_B1, F_ * 2)
    a(f's_lshl_b32 s4, s{sBCB}, 7')
    a(f's_lshl_b32 s5, s{sW}, 5')
    a('s_add_u32 s4, s4, s5')
    a(f'v_lshl_add_u32 v24, v{vG}, 3, s4')
    a(f'buffer_load_dwordx2 v[38:39], v24, {S(sAUX, 4)}, 0 offen')
    tag_ready(a)
    a('s_barrier')
    stamp(a, 'prep')
    a(f's_cmp_lg_u32 s{sWH}, 0')
    a('s_cbranch_scc1 L_b_go')
    flag_check(a, flag_issue(a, vFL, vFD), vFL, vFD, 3)
    a.label('L_b_go')
    a.wait_vm0()
    a('s_barrier')
    stamp(a, 'go')
    Hooks(gB.frag_items(int(os.environ.get('FIRSTB', '25')))).flush()
    for j in range(BPRE, B_P):
        Hooks(gB.dma_items(j)).flush()

    gB.mainloop(b_extra)
    stamp(a, 'Bend')
    gB.reduce()
    R = lambda t, j: ACC(t, 0) + j
    T = lambda t, j: ACC(t, 1) + j
    a('v_lshlrev_b32 v34, 16, v38')
    a('v_and_b32 v35, 0xffff0000, v38')
    a('v_lshlrev_b32 v36, 16, v39')
    a('v_and_b32 v37, 0xffff0000, v39')
    c0 = 0.7978845608028654
    k1 = -2.0 * c0 * LOG2E
    k2 = k1 * 0.044715
    a(f's_mov_b32 s4, {fbits(k2)}')
    a(f's_mov_b32 s5, {fbits(k2)}')
    a(f'v_mov_b32 v24, {fbits(k1)}')
    a('v_mov_b32 v26, 1.0')
    th = [(t, h) for t in range(5) for h in range(2)]
    tj = [(t, j) for t in range(5) for j in range(4)]
    for t, h in th:
        a(f'v_pk_add_f32 {V(R(t, 2 * h), 2)}, {V(R(t, 2 * h), 2)}, {V(34 + 2 * h, 2)}')
    for t, h in th:
        a(f'v_pk_mul_f32 {V(T(t, 2 * h), 2)}, {V(R(t, 2 * h), 2)}, {V(R(t, 2 * h), 2)}')
    for t, h in th:
        a(f'v_pk_fma_f32 {V(T(t, 2 * h), 2)}, {V(T(t, 2 * h), 2)}, s[4:5], v[24:25] op_sel_hi:[1,0,0]')
    for t, h in th:
        a(f'v_pk_mul_f32 {V(T(t, 2 * h), 2)}, {V(T(t, 2 * h), 2)}, {V(R(t, 2 * h), 2)}')
    for t, j in tj:
        a(f'v_exp_f32 v{T(t, j)}, v{T(t, j)}')
    for t, h in th:
        a(f'v_pk_add_f32 {V(T(t, 2 * h), 2)}, {V(T(t, 2 * h), 2)}, v[26:27] op_sel_hi:[1,0]')
    for t, j in tj:
        a(f'v_rcp_f32 v{T(t, j)}, v{T(t, j)}')
    for t, h in th:
        a(f'v_pk_mul_f32 {V(T(t, 2 * h), 2)}, {V(T(t, 2 * h), 2)}, {V(R(t, 2 * h), 2)}')
    a(f's_mul_i32 s4, s{sW8}, 2560')
    a('s_add_u32 s4, s4, 81920')
    a(f'v_lshl_add_u32 v24, v{vL}, 3, s4')
    for t in range(5):
        a(f'v_cvt_pk_bf16_f32 v{R(t, 0)}, v{T(t, 0)}, v{T(t, 1)}')
        a(f'v_cvt_pk_bf16_f32 v{R(t, 1)}, v{T(t, 2)}, v{T(t, 3)}')
        a(f'ds_write_b64 v24, {V(R(t, 0), 2)} offset:{t * 512}')
    a(f's_mul_i32 s4, s{sBDB}, 74')
    a(f's_lshl_b32 s5, s{sBCB}, 1')
    a('s_add_u32 s4, s4, s5')
    a('s_mul_i32 s4, s4, 5120')
    a(f's_add_u32 s15, s4, {GF_OFF}')
    a(f's_mul_i32 s4, s{sWH}, 10240')
    a('s_add_u32 s4, s4, 81920')
    a(f'v_lshl_add_u32 v25, v{vL}, 3, s4')
    a.wait_lg0()
    a('s_barrier')
    gt = []
    for m in range(3):
        frag10_addr(a, m, 2 * 2560 - 5 * 512, 512, 15, 24, 25, 34 + m)
        a(f'ds_read_b64 {V(ACC(m, 2), 2)}, v24')
        gt.append(a(f'ds_read_b64 {V(ACC(m, 2) + 2, 2)}, v24 offset:2560'))
    for m in range(3):
        a.wait(gt[m])
        a(f'buffer_store_dwordx4 {V(ACC(m, 2), 4)}, v{34 + m}, {S(sWS, 4)}, 0 offen sc1')
    a(f's_lshl_b32 s4, s{sBDB}, 5')
    a(f's_add_u32 s4, s4, s{sBCB}')
    a('s_lshl_b32 s4, s4, 2')
    a(f's_add_u32 s4, s4, s{sW}')
    a(f's_lshl_b32 s4, s4, {FSH}')
    a(f's_add_u32 s10, s4, {FG_OFF}')
    a('s_branch L_join')


def role_r(a):
    a('s_lshl_b32 s11, s6, 1')
    a(f's_add_u32 s11, s11, s{sWH}')
    a('s_lshr_b32 s8, s6, 3')
    a('s_lshl_b32 s8, s8, 3')
    a(f's_add_u32 s8, s8, s{sW8}')
    a('s_getpc_b64 s[6:7]')
    a.raw('L_pc:')
    a(f's_sub_u32 s{sAUX}, s6, L_pc - L_start')
    a('s_subb_u32 s7, s7, 0')
    a(f's_and_b32 s{sAUX + 1}, s7, 0xffff')
    a(f's_mov_b32 s{sAUX + 2}, L_end - L_start')
    a(f's_mov_b32 s{sAUX + 3}, 0x20000')
    a('s_lshl_b32 s6, s8, 13')
    a(f'v_lshl_add_u32 v25, v{vL}, 7, s6')
    if 'nocpf' not in EXP:
        a(f'buffer_load_dword v37, v25, {S(sAUX, 4)}, 0 offen')
    if 'notlb' not in EXP:
        a(f's_lshl_b32 s5, s8, 6')
        a(f'v_add_u32 v26, s5, v{vL}')
        a(f'v_mul_u32_u24 v27, {(WS_USED // 1024 + 127) // 128 * 128}, v26')
        a(f'buffer_load_dword v37, v27, {S(sWS, 4)}, 0 offen sc1')
        a('v_lshlrev_b32 v27, 13, v26')
        a(f'buffer_load_dword v37, v27, {S(sW2, 4)}, 0 offen')
        srd(a, sOUT, P_OUT, S_ * D_ * 2)
        a('v_lshlrev_b32 v27, 12, v26')
        a(f'buffer_load_dword v37, v27, {S(sOUT, 4)}, 0 offen sc1')
        srd(a, sAUX, P_B2, S_ * 2)
        a(f'buffer_load_dword v37, v27, {S(sAUX, 4)}, 0 offen')
    if 'wqlin' in EXP:
        srd(a, sWQ, P_WQKV, D_ * 3 * D_ * 2)
        a(f's_sub_u32 s5, s{sID}, 240')
        a('s_lshl_b32 s5, s5, 3')
        a(f's_add_u32 s5, s5, s{sW8}')
        a('s_mul_i32 s5, s5, 24576')
        a(f'v_lshl_add_u32 v26, v{vL}, 7, s5')
        for k in range(3):
            a(f'buffer_load_dword v37, v26, {S(sWQ, 4)}, 0 offen')
            a('v_add_u32 v26, 8192, v26')
    if 'w2lin' in EXP:
        a(f's_sub_u32 s5, s{sID}, 240')
        a('s_lshl_b32 s5, s5, 3')
        a(f's_add_u32 s5, s5, s{sW8}')
        a('s_lshl_b32 s5, s5, 13')
        a(f'v_lshl_add_u32 v38, v{vL}, 7, s5')
    if 'g2map8' in EXP:
        a(f's_mul_i32 s5, s8, {108 * 4096}')
        a(f's_and_b32 s7, s{sID}, 7')
        a('s_lshl_b32 s7, s7, 9')
        a('s_add_u32 s5, s5, s7')
        a(f'v_lshrrev_b32 v24, 2, v{vL}')
        a('v_lshlrev_b32 v24, 12, v24')
        a(f'v_lshl_add_u32 v24, v{vC}, 7, v24')
        a('v_add_u32 v24, s5, v24')
    else:
        a('s_mul_i32 s5, s8, 54')
        a(f's_and_b32 s7, s{sID}, 1')
        a('s_mul_i32 s7, s7, 864')
        a('s_add_u32 s5, s5, s7')
        a('s_lshl_b32 s5, s5, 12')
        a(f's_and_b32 s7, s{sID}, 6')
        a('s_lshl_b32 s7, s7, 9')
        a('s_add_u32 s5, s5, s7')
        a(f'v_lshrrev_b32 v24, 3, v{vL}')
        a(f'v_and_b32 v25, 7, v{vL}')
        a('v_lshlrev_b32 v24, 12, v24')
        a('v_lshl_add_u32 v24, v25, 7, v24')
        a('v_add_u32 v24, s5, v24')
    tag_ready(a)
    a(f'v_mov_b32 v{vFL}, {FH_OFF}')
    if 'pf2now' not in EXP:
        flag_check(a, flag_issue(a, vFL, vFD), vFL, vFD, 16)
    PFA = int(os.environ.get('PFA', '0'))
    a('v_mov_b32 v36, v38' if 'w2lin' in EXP else 'v_mov_b32 v36, v24')
    for k in range(PFA):
        a(f'buffer_load_dword v37, v36, {S(sW2, 4)}, 0 offen')
        a(f'v_add_u32 v36, {(16 if "g2map8" in EXP else 8) * 4096}, v36')
        if k % 2 == 1 and 'pf2fast' not in EXP:
            a.wait_vm0()
    stamp(a, 'prep')
    a('s_setprio 3')
    a(f's_lshl_b32 s4, s11, {4 + FSH}')
    a(f's_add_u32 s4, s4, {FK_OFF}')
    a(f'v_lshl_add_u32 v{vFL}, v{vI}, {FSH}, s4')
    a(f's_lshl_b32 s5, s{sW}, 11')
    a(f'v_lshl_add_u32 v24, v{vL}, 4, s5')
    a(f'v_lshrrev_b32 v25, 5, v{vL}')
    a(f'v_and_b32 v26, 31, v{vL}')
    a('v_lshlrev_b32 v26, 4, v26')
    a('v_lshl_add_u32 v25, v25, 11, v26')
    a('v_add_u32 v25, 1024, v25')
    a(f's_cmp_eq_u32 s{sW}, 2')
    a('s_cselect_b64 vcc, -1, 0')
    a('v_cndmask_b32 v24, v24, v25, vcc')
    a(f'v_lshrrev_b32 v25, 3, v{vL}')
    a(f'v_and_b32 v26, 7, v{vL}')
    a('v_lshlrev_b32 v26, 4, v26')
    a('v_lshl_add_u32 v25, v25, 8, v26')
    a('v_add_u32 v25, 4096, v25')
    a(f's_cmp_eq_u32 s{sW}, 3')
    a('s_cselect_b64 vcc, -1, 0')
    a('v_cndmask_b32 v24, v24, v25, vcc')
    a(f's_mul_i32 s4, s11, {16 * 6144}')
    a(f's_add_u32 s4, s4, {KV_OFF}')
    flag_check(a, flag_issue(a, vFL, vFD), vFL, vFD, int(os.environ.get('KSLEEP', '4')))
    stamp(a, 'hok')
    stok = []
    for rb in range(16):
        stok.append(a(f'buffer_load_dwordx4 {V(128 + 4 * rb, 4)}, v24, {S(sWS, 4)}, s4 offen sc1'))
        a('s_add_u32 s4, s4, 6144')
    for rb in range(1, 16):
        a.wait(stok[rb])
        for h in range(2):
            a(f'v_pk_add_f32 {V(128 + 2 * h, 2)}, {V(128 + 2 * h, 2)}, {V(128 + 4 * rb + 2 * h, 2)}')
    stamp(a, 'rsum')
    a('v_cvt_pk_bf16_f32 v34, v128, v129')
    a('v_cvt_pk_bf16_f32 v35, v130, v131')
    a('s_lshl_b32 s4, s11, 11')
    a(f's_add_u32 s4, s4, {KB_OFF}')
    a(f'v_lshl_add_u32 v24, v{vTH}, 3, s4')
    a(f'buffer_store_dwordx2 v[34:35], v24, {S(sWS, 4)}, 0 offen sc1')
    a('s_lshl_b32 s4, s11, 2')
    a(f's_add_u32 s4, s4, s{sW}')
    a(f's_lshl_b32 s4, s4, {FSH}')
    a(f's_add_u32 s10, s4, {FR_OFF}')
    a.wait_vm0()
    flag_set(a, 10)
    a(f's_mov_b32 s10, {OOB}')
    stamp(a, 'rpub')
    a('s_barrier')
    for k in range(PFA, 0 if 'nopf2' in EXP else 7):
        a(f'buffer_load_dword v37, v36, {S(sW2, 4)}, 0 offen')
        a(f'v_add_u32 v36, {8 * 4096}, v36')
    a('s_branch L_join')


def role_wot(a):
    a('s_lshl_b32 s11, s6, 1')
    a(f's_add_u32 s11, s11, s{sWH}')
    srd(a, sAUX, P_WO, D_ * D_ * 2)
    a(f'v_lshlrev_b32 v{vF}, 4, v{vL}')
    a(f'v_add_u32 v{vF + 1}, 4096, v{vF}')
    tag_ready(a)
    if 'wotlate' in EXP:
        a(f'v_mov_b32 v{vFL}, {FH_OFF}')
        flag_check(a, flag_issue(a, vFL, vFD), vFL, vFD, 16)
    dma160_voffs(a, 34, 1280, False, 24)
    a('s_mul_i32 s4, s11, 160')
    a(f's_mul_i32 s5, s{sW}, {160 * 1280}')
    a('s_add_u32 s7, s4, s5')
    a(f's_mul_i32 s6, s{sW8}, 20480')
    a(f'v_mul_u32_u24 v24, 20, v{vG}')
    a(f'v_add_u32 v24, v24, v{vR}')
    a('v_mul_u32_u24 v24, 160, v24')
    a(f'v_mul_u32_u24 v25, 40, v{vC}')
    a('v_add_u32 v24, v24, v25')
    a('v_add_u32 v24, s6, v24')
    a('s_mul_i32 s4, s11, 74')
    a(f's_mul_i32 s5, s{sW}, 5')
    a('s_add_u32 s4, s4, s5')
    a('s_add_u32 s4, s4, 54')
    a('s_mul_i32 s4, s4, 5120')
    a(f's_add_u32 s4, s4, {GF_OFF}')
    rounds = [[(0, 0, 0), (0, 1, 4), (1, 0, 8), (1, 1, 12), (2, 0, 16)],
              [(2, 1, 16), (3, 0, 0), (3, 1, 4), (4, 0, 8), (4, 1, 12)]]
    for rd in range(2):
        for k in range(3):
            a(f's_add_u32 s8, s7, {(rd * 80 + k * 32) * 1280}')
            dma160(a, 34, sAUX, 8, 6, k * 5120)
        a.wait_vm0()
        for u, hf, row in rounds[rd]:
            for t in range(5):
                a(f'ds_read_b64_tr_b16 {V(156 + (u * 5 + t) * 4 + 2 * hf, 2)}, v24 offset:{row * 160 + 8 * t}')
            a.wait_lg0()
    for u in range(5):
        for t in range(5):
            vo, off = (vF, t * 1024) if t < 4 else (vF + 1, 0)
            a(f'buffer_store_dwordx4 {V(156 + (u * 5 + t) * 4, 4)}, v{vo}, {S(sWS, 4)}, s4 offen offset:{off} sc1')
        a('s_add_u32 s4, s4, 5120')
    a('s_lshl_b32 s4, s11, 2')
    a(f's_add_u32 s4, s4, s{sW}')
    a(f's_lshl_b32 s4, s4, {FSH}')
    a(f's_add_u32 s10, s4, {FW_OFF}')
    a('s_barrier')


def final_gemm(a):
    g2 = GGemm(a, 'G2')
    if 'early_setup' in EXP:
        xcd_tile(a)
        g_common(a)
        g2.setup()
    a.wait_all()
    flag_set(a, 10)
    stamp(a, 'pub')
    a('s_setprio 0')
    a(f's_cmp_lg_u32 s{sWH}, 0')
    a('s_cbranch_scc1 L_fin')
    if 'early_setup' not in EXP:
        xcd_tile(a)
        g_common(a)
        g2.setup()
    for j in range(G2_P):
        Hooks(g2.dma_items(j)).flush()
    srd(a, sOUT, P_OUT, S_ * D_ * 2)
    R = lambda t, j: ACC(t, 0) + j
    T = lambda t, j: ACC(t, 1) + j
    srd(a, sAUX, P_B2, S_ * 2)
    a(f's_lshl_b32 s4, s{sRB}, {5 + FSH}')
    a(f's_lshl_b32 s5, s{sW}, {3 + FSH}')
    a('s_add_u32 s4, s4, s5')
    a(f's_add_u32 s4, s4, {FO_OFF}')
    a(f'v_lshl_add_u32 v34, v{vC}, {FSH + 1}, s4')
    a(f's_lshl_b32 s4, s{sHG}, 2')
    a(f's_add_u32 s4, s4, s{sW}')
    a(f's_lshl_b32 s4, s4, {FSH}')
    a(f's_add_u32 s4, s4, {FW_OFF}')
    a('v_mov_b32 v35, s4')
    a(f'v_cmp_gt_u32 vcc, 63, v{vL}')
    a(f'v_cndmask_b32 v{vFL}, v35, v{vFL}, vcc')
    for nt in range(4):
        a(f's_xor_b32 s4, s{sW}, {nt}')
        a('s_lshl_b32 s4, s4, 10')
        a(f'v_add_u32 v{vOF + nt}, s4, v{vF}')
    a(f's_mul_i32 s4, s{sRB}, 20')
    a(f's_mul_i32 s5, s{sW}, 5')
    a('s_add_u32 s4, s4, s5')
    a('s_lshl_b32 s4, s4, 12')
    a(f's_add_u32 s11, s4, {OF_OFF}')
    a(f'v_mul_u32_u24 v{vXA}, 1280, v{vTOK}')
    a(f'v_mul_u32_u24 v{vBA}, 40, v{vG}')
    a(f'v_add_u32 v{vXA}, v{vXA}, v{vBA}')
    a(f's_mul_i32 s4, s{sHG}, 160')
    a(f'v_add_u32 v{vXA}, s4, v{vXA}')
    a(f'v_lshlrev_b32 v{vBA}, 1, v{vTOK}')
    flag_check(a, flag_issue(a, vFL, vFD), vFL, vFD, int(os.environ.get('GSLEEP', '2')))
    stamp(a, 'gok')
    fl = {}

    def gate():
        a(f's_mul_i32 s4, s{sHG}, 74')
        a(f's_mul_i32 s5, s{sW}, 5')
        a('s_add_u32 s4, s4, s5')
        a('s_add_u32 s4, s4, 54')
        a('s_mul_i32 s4, s4, 5120')
        a(f's_add_u32 s{sFS}, s4, {GF_OFF}')

    def gate2():
        stamp(a, 'oa')
        flag_check(a, fl['o'], 34, 35)
        stamp(a, 'ob')

    g2.gate = gate
    g2.gate2 = gate2
    XR = [8, 10, 14, 16, 18]

    def g2_extra(j):
        it = []
        if j == 9:
            def fo():
                fl['o'] = flag_issue(a, 34, 35)
            it.append(fo)
        if j == int(os.environ.get('JRES', '16')):
            def resid():
                a(f'buffer_load_ushort v36, v{vBA}, {S(sAUX, 4)}, 0 offen')
                for t in range(5):
                    fl['x'] = a(f'buffer_load_dwordx2 {V(XR[t], 2)}, v{vXA}, {S(sX, 4)}, 0 offen offset:{8 * t}')
            it.append(resid)
        return it

    Hooks(g2.frag_items(int(os.environ.get('FIRSTG', '25')))).flush()
    g2.mainloop(g2_extra)
    stamp(a, 'Gend')
    g2.reduce()
    a.wait(fl['x'])
    a('v_lshlrev_b32 v36, 16, v36')
    for t in range(5):
        for h in range(2):
            a(f'v_lshlrev_b32 v{T(t, 2 * h)}, 16, v{XR[t] + h}')
            a(f'v_and_b32 v{T(t, 2 * h + 1)}, 0xffff0000, v{XR[t] + h}')
            a(f'v_pk_add_f32 {V(R(t, 2 * h), 2)}, {V(R(t, 2 * h), 2)}, v[36:37] op_sel_hi:[1,0]')
            a(f'v_pk_add_f32 {V(R(t, 2 * h), 2)}, {V(R(t, 2 * h), 2)}, {V(T(t, 2 * h), 2)}')
        a(f'v_cvt_pk_bf16_f32 v{R(t, 0)}, v{R(t, 0)}, v{R(t, 1)}')
        a(f'v_cvt_pk_bf16_f32 v{R(t, 1)}, v{R(t, 2)}, v{R(t, 3)}')
        a(f'buffer_store_dwordx2 {V(R(t, 0), 2)}, v{vXA}, {S(sOUT, 4)}, 0 offen offset:{8 * t}')
    a.label('L_fin')
    stamp_flush(a, 'end')


def build():
    a = Asm()
    hdr = open(os.path.join(os.path.dirname(__file__), '..', 'cdna_kernels', NAME + '.s.ref')).read().split('\n')
    for line in hdr:
        if line.startswith(';') and '@launch' not in line:
            a.raw(line)
    a.raw(f'; @launch grid=(256,1,1) block=(512,1,1) lds={LDS_BYTES}')
    a.raw('.amdgcn_target "amdgcn-amd-amdhsa--gfx950"')
    a.raw('.text')
    K = NAME + '_kernel'
    a.raw(f'.globl {K}')
    a.raw('.p2align 8')
    a.raw(f'.type {K},@function')
    a.raw(f'{K}:')
    a.raw('L_start:')
    a('s_cmp_ge_u32 s2, 256')
    a('s_cbranch_scc1 L_end')
    a('s_load_dwordx16 s[16:31], s[0:1], 0')
    a('s_load_dwordx8 s[32:39], s[0:1], 64')
    a(f'v_and_b32 v{vL}, 63, v0')
    a('v_lshrrev_b32 v6, 6, v0')
    a(f'v_readfirstlane_b32 s{sW8}, v6')
    a(f'v_lshrrev_b32 v{vG}, 4, v{vL}')
    a(f'v_and_b32 v{vI}, 15, v{vL}')
    a(f'v_lshrrev_b32 v{vR}, 2, v{vI}')
    a(f'v_and_b32 v{vC}, 3, v{vL}')
    a(f'v_lshl_add_u32 v{vGR}, v{vG}, 2, v{vR}')
    a(f'v_and_b32 v{vTH}, 255, v0')
    a(f's_and_b32 s{sW}, s{sW8}, 3')
    a(f's_lshr_b32 s{sWH}, s{sW8}, 2')
    a(f's_mov_b32 s{sID}, s2')
    a('s_waitcnt lgkmcnt(0)')
    a(f's_add_u32 s4, s{P_WS}, {EP_OFF}')
    a(f's_addc_u32 s5, s{P_WS + 1}, 0')
    a(f's_load_dword s{sTAG}, s[4:5], 0')
    srd(a, sX, P_X, S_ * D_ * 2)
    srd(a, sWS, P_WS, WS_USED)
    srd(a, sW2, P_W2, F_ * S_ * 2)
    stamp(a, 'start')
    if 'noticket' not in EXP:
        srd(a, sAUX, P_DBG, 256)
        a(f'v_mov_b32 v8, {L_CNT + 16}')
        a(f's_cmp_lg_u32 s{sW8}, 0')
        a('s_cbranch_scc1 L_ticket_done')
        a('s_getreg_b32 s4, hwreg(HW_REG_XCC_ID)')
        a('s_mov_b32 s6, 0')
        a('s_mov_b64 exec, 1')
        a.label('L_ticket')
        a('s_and_b32 s4, s4, 7')
        a('s_lshl_b32 s5, s4, 5')
        a('v_mov_b32 v9, s5')
        a('v_mov_b32 v10, 1')
        a(f'buffer_atomic_add v10, v9, {S(sAUX, 4)}, 0 offen sc0 sc1')
        a.wait_vm0()
        a('v_readfirstlane_b32 s5, v10')
        a('s_cmp_lt_u32 s5, 32')
        a('s_cbranch_scc1 L_ticket_ok')
        a('s_add_u32 s4, s4, 1')
        a('s_add_u32 s6, s6, 1')
        a('s_cmp_lt_u32 s6, 8')
        a('s_cbranch_scc1 L_ticket')
        a.label('L_ticket_ok')
        a('s_lshl_b32 s5, s5, 3')
        a('s_add_u32 s5, s5, s4')
        a('v_mov_b32 v9, s5')
        a('ds_write_b32 v8, v9')
        a('s_mov_b64 exec, -1')
        a('s_waitcnt lgkmcnt(0)')
        a.label('L_ticket_done')
        a('s_barrier')
        a('ds_read_b32 v9, v8')
        a('s_waitcnt lgkmcnt(0)')
        a('s_barrier')
        a(f'v_readfirstlane_b32 s{sID}, v9')
        a(f's_and_b32 s{sID}, s{sID}, 255')
        a.reset_counters()
        stamp(a, 'tick')
    if os.environ.get('UPRIO', '1') != '0':
        a(f's_cmp_eq_u32 s{sWH}, 0')
        a('s_cbranch_scc1 L_prio')
        a(f's_setprio {os.environ.get("UPRIO", "1")}')
        a.label('L_prio')
    a(f's_cmp_ge_u32 s{sID}, 128')
    a('s_cbranch_scc1 L_not_a')
    role_a(a)
    a.label('L_not_a')
    a.reset_counters()
    a(f's_and_b32 s4, s{sID}, 7')
    a(f's_lshr_b32 s5, s{sID}, 3')
    a('s_sub_u32 s5, s5, 16')
    a('s_cmp_ge_u32 s5, 14')
    a('s_cbranch_scc1 L_role_r')
    a('s_and_b32 s7, s4, 1')
    a('s_add_u32 s7, s7, 13')
    a('s_cmp_ge_u32 s5, s7')
    a('s_cbranch_scc1 L_role_wot')
    a('s_mul_i32 s6, s4, 27')
    a('s_lshr_b32 s6, s6, 1')
    a('s_add_u32 s6, s6, s5')
    role_b(a)
    a.label('L_role_r')
    a.reset_counters()
    a(f's_sub_u32 s6, s{sID}, 240')
    role_r(a)
    a.label('L_role_wot')
    a.reset_counters()
    a('s_lshr_b32 s6, s4, 1')
    role_wot(a)
    a.label('L_join')
    final_gemm(a)
    a.label('L_end')
    a('s_endpgm')
    if STAMPS:
        a.raw('; STAMPS ' + ' '.join(STAMP_NAMES))
    a.raw('.section .rodata,"a"')
    a.raw(f""".p2align 6
.amdhsa_kernel {K}
  .amdhsa_next_free_vgpr 256
  .amdhsa_next_free_sgpr 102
  .amdhsa_accum_offset 256
  .amdhsa_group_segment_fixed_size 0
  .amdhsa_kernarg_size 96
  .amdhsa_user_sgpr_count 2
  .amdhsa_user_sgpr_kernarg_segment_ptr 1
  .amdhsa_system_sgpr_workgroup_id_x 1
.end_amdhsa_kernel""")
    sys.stderr.write(f'maxv={a.maxv} maxa={a.maxa} maxs={a.maxs} nops={a.nops} lines={len(a.out)}\n')
    return a.text()


if __name__ == '__main__':
    out = sys.argv[1] if len(sys.argv) > 1 else os.path.join(os.path.dirname(__file__), '..', 'cdna_kernels', NAME + '.s')
    open(out, 'w').write(build())
```

```python
import sys, struct, os
sys.path.insert(0, os.path.dirname(__file__))
from asmdsl import Asm, Rec, V, A, S

NAME = 'parallel_sum__linear_kernel_hedgehog__mixer_token_mlp__prompt'
S_, D_, F_ = 2048, 640, 1728

HF_OFF = 0
HF_SZ = 8 * 64 * 5 * 1024
GF_OFF = HF_OFF + HF_SZ
GF_SZ = 8 * 74 * 5 * 1024
OF_OFF = GF_OFF + GF_SZ
OF_SZ = 32 * 20 * 4 * 1024
XF_OFF = OF_OFF + OF_SZ
XF_SZ = 128 * 20480
WF_OFF = XF_OFF + XF_SZ
WF_SZ = 480 * 5120 + 4096
KV_OFF = WF_OFF + WF_SZ
KV_SZ = 32 * 32 * 6144
KB_OFF = KV_OFF + KV_SZ + 4096
KB_SZ = 32 * 2048
FL_OFF = KB_OFF + KB_SZ + 4096
FSH = int(os.environ.get('FSH', '6'))
FH_OFF = FL_OFF
FK_OFF = FH_OFF + (1024 << FSH)
FR_OFF = FK_OFF + (1024 << FSH)
FG_OFF = FR_OFF + (128 << FSH)
FO_OFF = FG_OFF + (1024 << FSH)
FW_OFF = FO_OFF + (1024 << FSH)
FU_OFF = FW_OFF + (128 << FSH)
EP_OFF = FU_OFF + (512 << FSH)
WS_USED = EP_OFF + 512
STAMP_OFF = WS_USED
WS_USED += 512 * 256
STAMPS = bool(int(os.environ.get('STAMPS', '0')))
EXP = os.environ.get('EXP', '').split(',') + [e for e in ['map4', 'noticket', 'notlb', 'g2map8', 'nopf2', 'pfa', 'pf2now'] if e not in os.environ.get('OFF', '').split(',')]
OOB = 0x40000000

P_X, P_WQKV, P_WPHI, P_WO, P_BX, P_W1, P_B1, P_W2, P_B2, P_OUT, P_DBG, P_WS = range(16, 40, 2)
LOG2E = 1.4426950408889634

sW = 3
sW8, sWH = 90, 91
sWS, sX, sWQ, sW1, sW2, sAUX, sOUT = 40, 44, 48, 52, 56, 60, 64
sHG, sRB, sID, sROT, sKS, sT, sM0B, sTAG = 68, 69, 70, 71, 72, 73, 74, 75
sL, sNL = 76, 78
sBDB, sBCB, sFS, sGM0, sSPIN, sLIM = 80, 81, 82, 83, 84, 85
vL, vG, vI, vR, vC = 1, 2, 3, 4, 5
vTOK, vGR = 6, 7
vFS = 42
DB = 64
XN = lambda s: DB + 8 * s
UP = lambda k: DB + 8 * k + 4

LDS_BYTES = 163840
A_SLOTS = 4
L_WQ = 0
L_RING = 102400
L_ZERO = 122880
L_WPHI = 126976
L_CNT = 131072
B_P = 10
G2_P = 5
ILV = os.environ.get('ILV', 'burst')


def kb_pos(f, t):
    if f < 32:
        return (f >> 4) * 512 + (t * 16 + (f & 15)) * 8 if t < 4 else 1024 + ((f >> 4) * 32 + (t - 4) * 16 + (f & 15)) * 8
    return 1536 + (t * 8 + f - 32) * 8


def fbits(x):
    return '0x%08x' % struct.unpack('<I', struct.pack('<f', x))[0]


def srd(a, dst, ptr, nbytes):
    a(f's_mov_b32 s{dst}, s{ptr}')
    a(f's_and_b32 s{dst + 1}, s{ptr + 1}, 0xffff')
    a(f's_mov_b32 s{dst + 2}, {nbytes}')
    a(f's_mov_b32 s{dst + 3}, 0x20000')


STAMP_NAMES = []
vST = 41


def stamp(a, name):
    if not STAMPS:
        return
    name = str(name)
    if name not in STAMP_NAMES:
        STAMP_NAMES.append(name)
    idx = STAMP_NAMES.index(name)
    a('s_memrealtime s[98:99]')
    a.wait_lg0()
    if idx == 0:
        a(f'v_mov_b32 v{vST}, 0')
        a('s_getreg_b32 s97, hwreg(HW_REG_HW_ID)')
        a(f'v_writelane_b32 v{vST}, s97, 63')
    a(f'v_writelane_b32 v{vST}, s98, {idx}')


def stamp_flush(a, n):
    if not STAMPS:
        return
    a.wait_vm0()
    stamp(a, n)
    lab = a.newlabel('st')
    a(f's_cmp_lg_u32 s{sW}, 0')
    a(f's_cbranch_scc1 {lab}')
    a(f's_lshl_b32 s4, s{sWH}, 8')
    a(f's_add_u32 s4, s4, s{sID}')
    a('s_lshl_b32 s4, s4, 8')
    a(f's_add_u32 s4, s4, {STAMP_OFF}')
    a(f'v_lshl_add_u32 v8, v{vL}, 2, s4')
    a(f'buffer_store_dword v{vST}, v8, {S(sWS, 4)}, 0 offen')
    if 'dbg1' in EXP:
        srd(a, sAUX, P_DBG, 256)
        for wg, base, sel in ((136, 0, 'start,prep,go,B_0,Bend,pub,gok,G2_0,Gend,end'), (8, 10, 'start,x,prep,go,aend,G2_9')):
            l2 = a.newlabel('dbg')
            a(f's_lshl_b32 s4, s{sWH}, 8')
            a(f's_add_u32 s4, s4, s{sID}')
            a(f's_cmp_lg_u32 s4, {wg}')
            a(f's_cbranch_scc1 {l2}')
            for k, nm in enumerate(sel.split(',')):
                if nm not in STAMP_NAMES:
                    STAMP_NAMES.append(nm)
                a(f'v_readlane_b32 s4, v{vST}, {STAMP_NAMES.index(nm)}')
                a('v_mov_b32 v9, s4')
                a('v_mov_b32 v8, 0')
                a(f'buffer_store_dword v9, v8, {S(sAUX, 4)}, 0 offen offset:{4 * (base + k)}')
            a.label(l2)
    a.label(lab)


def reduce_g(a, r, t):
    a(f'v_mov_b32 v{t}, v{r}')
    a(f'v_permlane32_swap_b32 v{r}, v{t}')
    a(f'v_add_f32 v{r}, v{r}, v{t}')
    a(f'v_mov_b32 v{t}, v{r}')
    a(f'v_permlane16_swap_b32 v{r}, v{t}')
    a(f'v_add_f32 v{r}, v{r}, v{t}')


def dma160_voffs(a, dst, stride, permute, tmp):
    t0, t2, t3 = tmp, tmp + 1, tmp + 2
    for q in range(5):
        d = dst + q
        a(f'v_add_u32 v{t0}, {q * 64}, v{vL}')
        a(f'v_mul_u32_u24 v{t2}, 6554, v{t0}')
        a(f'v_lshrrev_b32 v{t2}, 16, v{t2}')
        a(f'v_mul_u32_u24 v{t3}, 10, v{t2}')
        a(f'v_sub_u32 v{t0}, v{t0}, v{t3}')
        if permute:
            a(f'v_bfe_u32 v{t3}, v{t2}, 2, 2')
            a(f'v_lshlrev_b32 v{t3}, 3, v{t3}')
            a(f'v_and_b32 v{d}, 3, v{t2}')
            a(f'v_add_u32 v{t3}, v{t3}, v{d}')
            a(f'v_lshrrev_b32 v{t2}, 4, v{t2}')
            a(f'v_lshl_add_u32 v{t2}, v{t2}, 2, v{t3}')
        a(f'v_mul_u32_u24 v{t2}, {stride}, v{t2}')
        a(f'v_lshl_add_u32 v{d}, v{t0}, 4, v{t2}')
        if 0 < q < 4:
            a(f'v_subrev_u32 v{d}, {q * 1024}, v{d}')


def dma160(a, vo, ssrd, soff, m0_s, m0_add, nt=''):
    a(f's_add_u32 m0, s{m0_s}, {m0_add}')
    for q in range(4):
        off = f' offset:{q * 1024}' if q else ''
        a(f'buffer_load_dwordx4 v{vo + q}, {S(ssrd, 4)}, s{soff} offen{off}{nt} lds')
    a(f's_add_u32 m0, s{m0_s}, {m0_add + 4096}')
    return a(f'buffer_load_dwordx4 v{vo + 4}, {S(ssrd, 4)}, s{soff} offen{nt} lds')


class Hooks:
    def __init__(self, items=()):
        self.items = list(items)

    def run(self, n=1):
        for _ in range(n):
            if self.items:
                self.items.pop(0)()

    def flush(self):
        self.run(len(self.items))


def softmax_pm(a, P, PH, EP, EN, tmp):
    p = [P[k // 4] + k % 4 for k in range(20)]
    ep = [EP[k // 4] + k % 4 for k in range(20)]
    en = [EN[k // 4] + k % 4 for k in range(20)]
    mx, mn, sp, sn = tmp, tmp + 2, tmp + 4, tmp + 6
    a(f'v_max3_f32 v{mx}, v{p[0]}, v{p[1]}, v{p[2]}')
    a(f'v_min3_f32 v{mn}, v{p[0]}, v{p[1]}, v{p[2]}')
    for k in range(3, 19, 2):
        a(f'v_max3_f32 v{mx}, v{mx}, v{p[k]}, v{p[k + 1]}')
        a(f'v_min3_f32 v{mn}, v{mn}, v{p[k]}, v{p[k + 1]}')
    a(f'v_max_f32 v{mx}, v{mx}, v{p[19]}')
    a(f'v_min_f32 v{mn}, v{mn}, v{p[19]}')
    a(f'v_mul_f32 v{mx}, s{sNL}, v{mx}')
    a(f'v_mul_f32 v{mn}, s{sL}, v{mn}')
    for k in range(0, 20, 2):
        a(f'v_pk_fma_f32 {V(ep[k], 2)}, {V(p[k], 2)}, {S(sL, 2)}, {V(mx, 2)} op_sel_hi:[1,0,0]')
        a(f'v_pk_fma_f32 {V(en[k], 2)}, {V(p[k], 2)}, {S(sNL, 2)}, {V(mn, 2)} op_sel_hi:[1,0,0]')
    for k in range(20):
        a(f'v_exp_f32 v{ep[k]}, v{ep[k]}')
        a(f'v_exp_f32 v{en[k]}, v{en[k]}')
    a(f'v_pk_add_f32 {V(sp, 2)}, {V(ep[0], 2)}, {V(ep[2], 2)}')
    a(f'v_pk_add_f32 {V(sn, 2)}, {V(en[0], 2)}, {V(en[2], 2)}')
    for k in range(4, 20, 2):
        a(f'v_pk_add_f32 {V(sp, 2)}, {V(sp, 2)}, {V(ep[k], 2)}')
        a(f'v_pk_add_f32 {V(sn, 2)}, {V(sn, 2)}, {V(en[k], 2)}')
    a(f'v_add_f32 v{sp}, v{sp}, v{sp + 1}')
    a(f'v_add_f32 v{sn}, v{sn}, v{sn + 1}')
    a(f'v_rcp_f32 v{sp}, v{sp}')
    a(f'v_rcp_f32 v{sn}, v{sn}')
    for k in range(0, 20, 2):
        a(f'v_pk_mul_f32 {V(ep[k], 2)}, {V(ep[k], 2)}, {V(sp, 2)} op_sel_hi:[1,0]')
        a(f'v_pk_mul_f32 {V(en[k], 2)}, {V(en[k], 2)}, {V(sn, 2)} op_sel_hi:[1,0]')
    allv = ep + en
    for k in range(20):
        a(f'v_cvt_pk_bf16_f32 v{PH[k // 4] + k % 4}, v{allv[2 * k]}, v{allv[2 * k + 1]}')


def flag_set(a, s_off):
    a(f'v_lshl_add_u32 v{vFS}, v{vL}, 2, s{s_off}')
    a(f'v_mov_b32 v{vFS + 1}, s{sTAG}')
    a(f's_mov_b64 exec, {hex((1 << (1 << (FSH - 2))) - 1)}')
    a(f'buffer_store_dword v{vFS + 1}, v{vFS}, {S(sWS, 4)}, 0 offen sc1')
    a('s_mov_b64 exec, -1')


def flag_issue(a, vaddr, vdst):
    return a(f'buffer_load_dword v{vdst}, v{vaddr}, {S(sWS, 4)}, 0 offen sc1')


def flag_check(a, tok, vaddr, vdst, sleep=2):
    ok = a.newlabel('ok')
    lp = a.newlabel('poll')
    a.wait(tok)
    a(f'v_cmp_ne_u32 vcc, s{sTAG}, v{vdst}')
    a(f's_cbranch_vccz {ok}')
    a(f's_mov_b32 s{sSPIN}, 0')
    a.label(lp)
    a(f's_sleep {sleep}')
    a.raw(f'\tbuffer_load_dword v{vdst}, v{vaddr}, {S(sWS, 4)}, 0 offen sc1')
    a('s_waitcnt vmcnt(0)')
    a(f'v_cmp_ne_u32 vcc, s{sTAG}, v{vdst}')
    a(f's_cbranch_vccz {ok}')
    a(f's_add_u32 s{sSPIN}, s{sSPIN}, 1')
    a(f's_cmp_lt_u32 s{sSPIN}, 0x8000')
    a(f's_cbranch_scc1 {lp}')
    a.label(ok)


def featmap(a, ACC5, PK, WPF, P5, EP5, EN5, tmp):
    for k in range(10):
        t, j = divmod(2 * k, 4)
        a(f'v_cvt_pk_bf16_f32 v{PK[k // 4] + k % 4}, v{ACC5[t] + j}, v{ACC5[t] + j + 1}')
    for ks in range(3):
        for t in range(5):
            d = V(P5[t], 4)
            if ks < 2:
                a(f'v_mfma_f32_16x16x32_bf16 {d}, {V(WPF(t, ks), 4)}, {V(PK[ks], 4)}, {"0" if ks == 0 else d}')
            else:
                a(f'v_mfma_f32_16x16x16_bf16 {d}, {V(WPF(t, ks), 2)}, {V(PK[ks], 2)}, {d}')
    softmax_pm(a, P5, P5, EP5, EN5, tmp)


def xcd_tile(a):
    a(f's_and_b32 s4, s{sID}, 7')
    a(f's_lshr_b32 s5, s{sID}, 3')
    if 'g2map8' in EXP:
        a(f's_and_b32 s{sHG}, s5, 7')
        a('s_lshl_b32 s6, s4, 2')
        a('s_lshr_b32 s7, s5, 3')
        a(f's_add_u32 s{sRB}, s6, s7')
    else:
        a('s_and_b32 s6, s4, 1')
        a('s_lshl_b32 s6, s6, 2')
        a('s_and_b32 s7, s5, 3')
        a(f's_add_u32 s{sHG}, s6, s7')
        a('s_lshr_b32 s6, s4, 1')
        a('s_lshl_b32 s6, s6, 3')
        a('s_lshr_b32 s7, s5, 2')
        a(f's_add_u32 s{sRB}, s6, s7')
    a(f's_lshl_b32 s4, s{sRB}, 6')
    a(f's_lshl_b32 s5, s{sW}, 4')
    a('s_add_u32 s4, s4, s5')
    a(f'v_add_u32 v{vTOK}, s4, v{vI}')


def ln_scales(a, vS, vRS, vNB):
    a(f'v_mul_f32 v{vS}, {fbits(1.0 / 640)}, v{vS}')
    a(f'v_mul_f32 v{vS + 2}, {fbits(1.0 / 640)}, v{vS + 2}')
    a(f'v_fma_f32 v{vS + 2}, -v{vS}, v{vS}, v{vS + 2}')
    a(f'v_max_f32 v{vS + 2}, 0, v{vS + 2}')
    a(f'v_add_f32 v{vS + 1}, {fbits(1e-5)}, v{vS + 2}')
    a(f'v_rsq_f32 v{vRS}, v{vS + 1}')
    a(f'v_mul_f32 v{vNB}, v{vS}, v{vRS}')
    a(f'v_sub_f32 v{vNB}, 0, v{vNB}')


vD, vF, vT, vT2, vFL, vFD, vOF, vXA, vBA = 8, 12, 14, 18, 22, 23, 28, 32, 33
ACC = lambda t, nt: 44 + (nt * 5 + t) * 4
TF = lambda j, nt: 124 + (j % 2) * 16 + 4 * nt
POOL = [156 + 4 * k for k in range(25)]


class GGemm:
    def __init__(self, a, kind):
        self.a, self.kind = a, kind
        if kind == 'B':
            self.stride, self.srdm, self.n, self.fr_off, self.fr_steps = F_ * 2, sW1, 16, HF_OFF, 64
            self.sdb, self.scb, self.ntot, self.P = sBDB, sBCB, 16, B_P
        else:
            self.stride, self.srdm, self.n, self.fr_off, self.fr_steps = S_ * 2, sW2, 14, GF_OFF, 74
            self.sdb, self.scb, self.ntot, self.P = sHG, sRB, 19, G2_P
        self.dtok, self.ftok, self.ttok = {}, {}, {}
        self.free = list(POOL)
        self.reg = {}
        self.pending = []
        order = [(j, 'a') for j in range(self.n)]
        if kind == 'G2':
            order += [(j, k) for j in range(14, 19) for k in 'ab']
        for j, k in order:
            self.pending += [(j, k, x) for x in range(5 if k == 'a' else 4)]
        self.gate = lambda: None
        self.gate2 = lambda: None
        self.nq = 2 if kind == 'B' else 4

    def setup(self):
        a, st = self.a, self.stride
        a(f'v_lshrrev_b32 v24, 3, v{vL}')
        if self.kind == 'B':
            a('v_lshrrev_b32 v25, 2, v24')
            a('v_and_b32 v24, 3, v24')
            a('v_lshl_add_u32 v24, v25, 3, v24')
        a(f'v_mul_u32_u24 v24, {st}, v24')
        a(f'v_and_b32 v25, 7, v{vL}')
        a(f'v_lshlrev_b32 v26, 1, v{vG}')
        a('v_xor_b32 v25, v25, v26')
        a('v_lshl_add_u32 v24, v25, 4, v24')
        a(f's_lshl_b32 s4, s{self.scb}, 7')
        a(f's_mul_i32 s5, s{sW}, {self.n * 32 * st}')
        a('s_add_u32 s5, s5, s4')
        if self.kind == 'B':
            a(f's_mul_i32 s6, s{sWH}, {4 * st}')
            a('s_add_u32 s5, s5, s6')
            a(f's_lshl_b32 s6, s{sWH}, 11')
            a(f's_add_u32 s{sM0B}, s{sGM0}, s6')
        else:
            a(f's_mov_b32 s{sM0B}, s{sGM0}')
        for q in range(self.nq):
            row = 8 * q if self.kind != 'B' else q * 16
            a(f's_add_u32 s6, s5, {row * st - 1024 * q}')
            a(f'v_add_u32 v{vD + q}, s6, v24')
        a(f's_mul_i32 s4, s{self.sdb}, {self.fr_steps}')
        a(f's_mul_i32 s5, s{sW}, {self.n}')
        a('s_add_u32 s4, s4, s5')
        a('s_mul_i32 s4, s4, 5120')
        a(f's_add_u32 s{sFS}, s4, {self.fr_off}')
        if self.kind == 'B':
            a(f's_lshl_b32 s4, s{sW}, {6 + FSH}')
            a(f's_add_u32 s4, s4, {FH_OFF}')
            a(f'v_lshl_add_u32 v{vFL}, v{vL}, {FSH}, s4')
        else:
            a(f's_lshl_b32 s4, s{self.sdb}, {7 + FSH}')
            a(f's_mul_i32 s5, s{sW}, {28 << FSH}')
            a('s_add_u32 s4, s4, s5')
            a(f's_add_u32 s4, s4, {FG_OFF}')
            a(f's_mul_i32 s5, s{self.sdb}, {74 * 5120}')
            a(f's_add_u32 s{sLIM}, s5, {GF_OFF + 53 * 5120}')
            a(f's_cmp_eq_u32 s{sW}, 3')
            a('s_cselect_b32 s5, 23, 27')
            a(f'v_min_u32 v24, s5, v{vL}')
            a(f'v_lshl_add_u32 v{vFL}, v24, {FSH}, s4')

    def dma_items(self, j):
        a = self.a

        def one(q):
            def f():
                if q == 0:
                    a(f's_add_u32 m0, s{sM0B}, {(j % self.P) * 16384}')
                off = f' offset:{q * 1024}' if q else ''
                nt = ' nt' if ('ntb' in EXP and self.kind == 'B' and j < self.P) else ''
                self.dtok[j] = a(f'buffer_load_dwordx4 v{vD + q}, {S(self.srdm, 4)}, 0 offen{off}{nt} lds')
                if not ('hotw' in EXP):
                    a(f'v_add_u32 v{vD + q}, {32 * self.stride}, v{vD + q}')
            return f
        return [one(q) for q in range(self.nq)]

    def frag_items(self, lim=99):
        a = self.a
        out = []
        while self.free and self.pending and len(out) < lim:
            key = self.pending.pop(0)
            r = self.free.pop(0)
            self.reg[key] = r

            def f(key=key, r=r):
                j, kind, x = key
                if key == (self.n, 'a', 0):
                    self.gate()
                if key == (self.n, 'b', 0):
                    self.gate2()
                if kind == 'a' and 'b_nof' in EXP and self.kind == 'B' and j >= 5 and x > 0:
                    pass
                elif kind == 'a':
                    vo, off = (vF, x * 1024) if x < 4 else (vF + 1, 0)
                    offs = f' offset:{off}' if off else ''
                    self.ftok[j] = a(f'buffer_load_dwordx4 {V(r, 4)}, v{vo}, {S(sWS, 4)}, s{sFS} offen{offs} sc1')
                    if x == 4 and 'hotf' not in EXP:
                        a(f's_add_u32 s{sFS}, s{sFS}, 5120')
                        if self.kind == 'G2' and j < 14:
                            a(f's_min_u32 s{sFS}, s{sFS}, s{sLIM}')
                else:
                    if j - self.n == 2:
                        a(f'v_lshlrev_b32 v24, 3, v{vL}')
                        a(f'v_sub_u32 v24, v{vOF + x}, v24')
                        a(f'buffer_load_dwordx2 {V(r, 2)}, v24, {S(sWS, 4)}, s11 offen sc1')
                        self.ftok[j] = a(f'buffer_load_dwordx2 {V(r + 2, 2)}, v24, {S(sWS, 4)}, s11 offen offset:512 sc1')
                    else:
                        self.ftok[j] = a(f'buffer_load_dwordx4 {V(r, 4)}, v{vOF + x}, {S(sWS, 4)}, s11 offen sc1')
                    if x == 3:
                        a('s_add_u32 s11, s11, 4096')
            out.append(f)
        return out

    def tr_items(self, j):
        a = self.a

        def one(nt):
            def f():
                off = (j % self.P) * 16384
                base = vT
                if off >= 65536:
                    if off % 65536 == 0:
                        a(f'v_add_u32 v{vT2 + nt}, {off}, v{vT + nt}')
                    off %= 65536
                    base = vT2
                if 'b_nods' in EXP and self.kind == 'B' and j > 1 and nt > 0:
                    return
                a(f'ds_read_b64_tr_b16 {V(TF(j, nt), 2)}, v{base + nt} offset:{off}')
                self.ttok[j] = a(f'ds_read_b64_tr_b16 {V(TF(j, nt) + 2, 2)}, v{base + nt} offset:{off + 2048}')
            return f
        return [one(nt) for nt in range(4)]

    def mainloop(self, extra):
        a, n = self.a, self.n
        a.wait(self.dtok[0])
        Hooks(self.tr_items(0)).flush()
        for j in range(self.ntot):
            items = []
            if j + 1 < n:
                a.wait(self.dtok[j + 1])
            a.wait(self.ftok[j], self.ttok.get(j))
            if self.kind == 'B' and 'b_nobar' not in EXP and j + 1 < n and (j + self.P < n or j + 1 >= int(os.environ.get('BPRE', '10'))):
                a('s_barrier')
            if j % 3 == 0:
                stamp(a, f'{self.kind}_{j}')
                if STAMPS and j in (3, 9):
                    a('s_memtime s[98:99]')
                    a.wait_lg0()
                    a(f'v_writelane_b32 v{vST}, s98, {56 + (j // 9) + (2 if self.kind == "G2" else 0)}')
            if j + 1 < n:
                items += self.tr_items(j + 1)
            if j + self.P < n:
                items += self.dma_items(j + self.P)
            items += extra(j)
            lim = int(os.environ.get('LIMB' if self.kind == 'B' else 'LIMG', '10'))
            items += self.frag_items(lim if (self.kind == 'B' or j < int(os.environ.get('LIMJ', '9'))) else 10)
            last = j == self.ntot - 1
            if self.kind == 'G2' and j == 16:
                a('s_barrier')
            if last:
                a(f's_mul_i32 s7, s{sWH}, 102400')
                for nt in range(1, 4):
                    a(f's_xor_b32 s4, s{sW}, {nt}')
                    a('s_mul_i32 s4, s4, 15360')
                    a(f's_add_u32 s4, s4, {(nt - 1) * 5120}')
                    a('s_add_u32 s4, s4, s7')
                    a(f'v_add_u32 v{24 + nt}, s4, v{vF}')
                wr = [(nt, t) for nt in (1, 2, 3) for t in range(5)]
            hk = Hooks(items)
            k = 0
            ILV = os.environ.get('ILVB', 'fine') if self.kind == 'B' else os.environ.get('ILVG', 'burst')
            for nt in (1, 2, 3, 0):
                for t in range(5):
                    acc = V(ACC(t, nt), 4)
                    c = '0' if j == 0 else acc
                    fr = V(self.reg[(j, 'a', t)], 4)
                    tf = V(TF(j, nt) if j < n else self.reg[(j, 'b', nt)], 4)
                    if self.kind == 'B':
                        a(f'v_mfma_f32_16x16x32_bf16 {acc}, {tf}, {fr}, {c}')
                    else:
                        a(f'v_mfma_f32_16x16x32_bf16 {acc}, {fr}, {tf}, {c}')
                    k += 1
                    if last and k > 5:
                        wn, wt = wr.pop(0)
                        a(f'ds_write_b128 v{24 + wn}, {V(ACC(wt, wn), 4)} offset:{wt * 1024}')
                    if ILV == 'fine':
                        if k % 4 != 0:
                            hk.run()
                    elif ILV == 'burst':
                        if k <= 4 and j + 1 < n:
                            hk.run()
                    elif ILV == 'two':
                        if k <= 4 and j + 1 < n:
                            hk.run()
                        if k == 10:
                            hk.run(4)
                    elif ILV == 'pre':
                        if k == 1:
                            hk.flush()
            hk.flush()
            self.free += [r for key, r in self.reg.items() if key[0] == j]
            if n - 2 <= j < n:
                self.free += [TF(j, nt) for nt in range(4)]

    def reduce(self):
        a = self.a
        a(f's_mul_i32 s4, s{sW}, 15360')
        a('s_add_u32 s4, s4, s7')
        a(f'v_add_u32 v24, s4, v{vF}')
        a.wait_lg0()
        a('s_barrier')
        rtok = {}
        for nt in range(1, 4):
            for t in range(5):
                rtok[(nt, t)] = a(f'ds_read_b128 {V(ACC(t, nt), 4)}, v24 offset:{(nt - 1) * 5120 + t * 1024}')
        for nt in range(1, 4):
            for t in range(5):
                a.wait(rtok[(nt, t)])
                for h in range(2):
                    d = V(ACC(t, 0) + 2 * h, 2)
                    a(f'v_pk_add_f32 {d}, {d}, {V(ACC(t, nt) + 2 * h, 2)}')


def frag10_addr(a, m, hi_add, step, base_s, vrd, vrd_base, vst):
    a(f's_add_u32 s4, s{sW}, {4 * m}')
    a('s_min_u32 s5, s4, 9')
    a('s_cmp_ge_u32 s5, 5')
    a(f's_cselect_b32 s6, {hi_add}, 0')
    a(f's_mul_i32 s5, s5, {step}')
    a('s_add_u32 s5, s5, s6')
    a(f'v_add_u32 v{vrd}, s5, v{vrd_base}')
    a('s_lshl_b32 s5, s4, 10')
    a(f's_add_u32 s5, s5, s{base_s}')
    a('s_cmp_ge_u32 s4, 10')
    a(f's_cselect_b32 s5, {OOB}, s5')
    a(f'v_lshl_add_u32 v{vst}, v{vL}, 4, s5')


NTP = ' nt' if 'ntp' in EXP else ''
FIRST = int(os.environ.get('FIRST', '25'))
vTH = 40


def g_common(a):
    a(f'v_lshlrev_b32 v{vF}, 4, v{vL}')
    a(f'v_add_u32 v{vF + 1}, 4096, v{vF}')
    a(f's_lshl_b32 s{sGM0}, s{sW}, 12')
    a(f'v_bfe_u32 v25, v{vGR}, 1, 2')
    a(f'v_xor_b32 v25, s{sW}, v25')
    a(f'v_lshlrev_b32 v26, 7, v{vGR}')
    a(f'v_lshl_add_u32 v26, v{vC}, 3, v26')
    a(f'v_add_u32 v26, s{sGM0}, v26')
    for nt in range(4):
        a(f'v_xor_b32 v27, {nt}, v25')
        a(f'v_lshl_add_u32 v{vT + nt}, v27, 5, v26')


def tag_ready(a):
    a('s_waitcnt lgkmcnt(0)')
    a(f's_add_u32 s{sTAG}, s{sTAG}, 1')


def role_a(a):
    a(f's_and_b32 s4, s{sID}, 7')
    a(f's_lshr_b32 s5, s{sID}, 3')
    a('s_and_b32 s6, s4, 1')
    a('s_lshl_b32 s6, s6, 2')
    a('s_and_b32 s7, s5, 3')
    a(f's_add_u32 s{sHG}, s6, s7')
    a('s_lshr_b32 s6, s4, 1')
    a('s_lshl_b32 s6, s6, 2')
    a('s_lshr_b32 s7, s5, 2')
    a('s_add_u32 s6, s6, s7')
    a(f's_mov_b32 s{sRB}, s6')
    a('s_lshl_b32 s6, s6, 3')
    a(f's_add_u32 s15, s6, s{sHG}')
    a('s_lshl_b32 s12, s15, 1')
    a(f's_add_u32 s12, s12, s{sWH}')
    X = 156
    a('s_lshl_b32 s4, s12, 2')
    a(f's_add_u32 s4, s4, s{sW}')
    a('s_mul_i32 s4, s4, 2560')
    a(f'v_mul_u32_u24 v24, 40, v{vL}')
    xt = []
    for k in range(5):
        xt.append(a(f'buffer_load_dwordx2 {V(X + 2 * k, 2)}, v24, {S(sX, 4)}, s4 offen offset:{8 * k}{NTP}'))
    srd(a, sWQ, P_WQKV, D_ * 3 * D_ * 2)
    vLN = 8
    a(f'v_lshlrev_b32 v{vLN}, 4, v{vL}')
    a(f'v_add_u32 v{vLN + 1}, 4096, v{vLN}')
    a(f's_mul_i32 s{sM0B}, s{sW8}, 5120')
    a('s_lshl_b32 s10, s15, 2')
    a(f's_add_u32 s10, s10, s{sW}')
    a('s_mul_i32 s4, s10, 1093')
    a('s_lshr_b32 s4, s4, 16')
    a('s_mul_i32 s5, s4, 60')
    a('s_sub_u32 s5, s10, s5')
    a('s_lshr_b32 s6, s5, 1')
    a('s_and_b32 s7, s5, 1')
    a('s_add_u32 s7, s7, 1')
    a('s_sub_u32 s8, s5, 40')
    a('s_cmp_ge_u32 s5, 40')
    a('s_cselect_b32 s6, s8, s6')
    a('s_cselect_b32 s7, 0, s7')
    a(f's_mul_i32 s6, s6, {32 * 3840}')
    a('s_mul_i32 s7, s7, 1280')
    a('s_mul_i32 s4, s4, 160')
    a('s_add_u32 s6, s6, s7')
    a('s_add_u32 s6, s6, s4')
    a(f's_cmp_eq_u32 s{sWH}, 0')
    a('s_cselect_b32 s10, 480, s10')
    dma160_voffs(a, 12, 3840, True, 18)
    a('s_cmp_ge_u32 s10, 480')
    a(f's_cselect_b32 s7, {OOB}, 0')
    for q in range(5):
        a(f'v_add_u32 v{12 + q}, s7, v{12 + q}')
    utok = dma160(a, 12, sWQ, 6, sM0B, 0, NTP)
    a(f's_mul_i32 s13, s{sWH}, 24576')
    a('s_add_u32 s13, s13, 65536')
    a('s_add_u32 s14, s13, 12288')
    srd(a, sAUX, P_WPHI, 32 * 800)
    a(f's_mul_i32 s6, s{sHG}, 3200')
    a(f's_lshl_b32 s7, s{sW}, 10')
    a('s_add_u32 s6, s6, s7')
    a(f'v_lshl_add_u32 v10, v{vL}, 4, s6')
    a(f's_add_u32 m0, s7, {L_WPHI}')
    a(f'buffer_load_dwordx4 v10, {S(sAUX, 4)}, 0 offen lds')
    for k in range(4):
        a(f'v_mov_b32 v{44 + k}, 0')
    a(f'v_lshlrev_b32 v18, 4, v{vTH}')
    a(f'v_add_u32 v18, {L_ZERO}, v18')
    a('ds_write_b128 v18, v[44:47]')
    a(f'v_mov_b32 v10, {L_CNT}')
    a('v_mov_b32 v11, 0')
    a('ds_write2_b32 v10, v11, v11 offset0:0 offset1:1')
    vONE, vS, vRS, vNB = 34, 36, 168, 170
    a(f'v_mov_b32 v{vONE}, 0x3f803f80')
    for k in range(4):
        a(f'v_mov_b32 v{vS + k}, 0')
    a('s_waitcnt lgkmcnt(0)')
    a(f's_add_u32 s{sTAG}, s{sTAG}, 1')
    def unit_part():
        a(f'v_mul_u32_u24 v29, 160, v{vGR}')
        a(f'v_mul_u32_u24 v24, 40, v{vC}')
        a('v_add_u32 v29, v29, v24')
        a(f'v_add_u32 v29, s{sM0B}, v29')
        a('s_mul_i32 s4, s10, 5120')
        a(f's_add_u32 s4, s4, {WF_OFF}')
        a('s_cmp_ge_u32 s10, 480')
        a(f's_cselect_b32 s4, {OOB}, s4')
        a(f'v_add_u32 v24, s4, v{vLN}')
        a(f'v_add_u32 v25, s4, v{vLN + 1}')
        a(f's_lshl_b32 s5, s10, {FSH}')
        a(f's_add_u32 s5, s5, {FU_OFF}')
        a('s_cmp_ge_u32 s10, 480')
        a(f's_cselect_b32 s10, {OOB}, s5')
        a.wait(utok)
        ut = []
        for t in range(5):
            a(f'ds_read_b64_tr_b16 {V(UP(t), 2)}, v29 offset:{8 * t}')
            ut.append(a(f'ds_read_b64_tr_b16 {V(UP(t) + 2, 2)}, v29 offset:{8 * t + 2560}'))
        for t in range(5):
            a.wait(ut[t])
            vo, off = (24, t * 1024) if t < 4 else (25, 0)
            a(f'buffer_store_dwordx4 {V(UP(t), 4)}, v{vo}, {S(sWS, 4)}, 0 offen offset:{off} sc1')

    if 'unitfirst' in EXP:
        unit_part()
    a.wait(xt[4])
    stamp(a, 'x')
    for k in range(10):
        a(f'v_dot2c_f32_bf16 v{vS + (k & 1)}, v{X + k}, v{vONE}')
        a(f'v_dot2c_f32_bf16 v{vS + 2 + (k & 1)}, v{X + k}, v{X + k}')
    a(f'v_add_f32 v{vS}, v{vS}, v{vS + 1}')
    a(f'v_add_f32 v{vS + 2}, v{vS + 2}, v{vS + 3}')
    for sh in (8, 4, 2, 1):
        for r in (vS, vS + 2):
            a(f'v_add_f32_dpp v{r}, v{r}, v{r} row_ror:{sh} row_mask:0xf bank_mask:0xf')
    for r in (vS, vS + 2):
        a(f'v_mov_b32 v{r + 1}, v{r}')
        a(f'v_permlane16_swap_b32 v{r}, v{r + 1}')
        a(f'v_add_f32 v{r}, v{r}, v{r + 1}')
    ln_scales(a, vS, vRS, vNB)
    a(f'v_mul_f32 v{vS + 1}, v{vRS}, v{vRS}')
    a(f'v_mov_b32 v{vS + 3}, {fbits(1e-5)}')
    a(f'v_fmac_f32 v{vS + 3}, v{vS + 1}, v{vS + 2}')
    a(f'v_rsq_f32 v{vS + 2}, v{vS + 3}')
    U = 172
    for k in range(10):
        a(f'v_lshlrev_b32 v{U + 2 * k}, 16, v{X + k}')
        a(f'v_and_b32 v{U + 2 * k + 1}, 0xffff0000, v{X + k}')
    for k in range(10):
        a(f'v_pk_fma_f32 {V(U + 2 * k, 2)}, {V(U + 2 * k, 2)}, {V(vRS, 2)}, {V(vNB, 2)} op_sel_hi:[1,0,0]')
    XQ = 192
    for k in range(10):
        a(f'v_cvt_pk_bf16_f32 v{XQ + k}, v{U + 2 * k}, v{U + 2 * k + 1}')
    for k in range(10):
        a(f'v_pk_mul_f32 {V(U + 2 * k, 2)}, {V(U + 2 * k, 2)}, {V(vS + 2, 2)} op_sel_hi:[1,0]')
    for k in range(10):
        a(f'v_cvt_pk_bf16_f32 v{X + k}, v{U + 2 * k}, v{U + 2 * k + 1}')
    a(f's_mul_i32 s4, s{sW}, {2 * 1296}')
    a('s_add_u32 s4, s4, s13')
    a(f'v_mul_u32_u24 v24, 40, v{vL}')
    a(f'v_lshrrev_b32 v25, 5, v{vL}')
    a('v_lshl_add_u32 v24, v25, 4, v24')
    a('v_add_u32 v24, s4, v24')
    for k in range(5):
        a(f'ds_write_b64 v24, {V(XQ + 2 * k, 2)} offset:{8 * k}')
    a(f'v_and_b32 v25, 7, v{vTH}')
    a(f'v_lshrrev_b32 v26, 3, v{vTH}')
    a('v_mul_u32_u24 v28, 1296, v25')
    a('v_lshl_add_u32 v28, v26, 4, v28')
    a('v_add_u32 v28, s13, v28')
    a('v_lshlrev_b32 v29, 8, v26')
    a('v_lshl_add_u32 v29, v25, 4, v29')
    a(f's_lshr_b32 s4, s12, 1')
    a('s_mul_i32 s4, s4, 20480')
    a(f's_and_b32 s5, s12, 1')
    a('s_lshl_b32 s5, s5, 7')
    a('s_add_u32 s4, s4, s5')
    a(f's_add_u32 s4, s4, {XF_OFF}')
    a('v_add_u32 v29, s4, v29')
    a('v_add_u32 v30, 8192, v29')
    a(f's_cmp_ge_u32 s{sW}, 2')
    a(f's_cselect_b32 s4, {OOB}, 16384')
    a('v_add_u32 v31, s4, v29')
    a(f's_mul_i32 s4, s{sW}, 2560')
    a('s_add_u32 s4, s4, s14')
    a(f'v_mul_u32_u24 v24, 40, v{vL}')
    a('v_add_u32 v24, s4, v24')
    for k in range(5):
        a(f'ds_write_b64 v24, {V(X + 2 * k, 2)} offset:{8 * k}')
    a(f'v_mul_u32_u24 v24, 1280, v{vR}')
    a(f'v_mul_u32_u24 v25, 160, v{vG}')
    a('v_add_u32 v24, v24, v25')
    a(f'v_mul_u32_u24 v25, 40, v{vC}')
    a('v_add_u32 v24, v24, v25')
    a('v_add_u32 v24, s14, v24')
    a(f'v_mul_u32_u24 v25, {64 * 5120}, v{vG}')
    a(f'v_lshl_add_u32 v25, v{vI}, 4, v25')
    a(f's_lshr_b32 s4, s12, 2')
    a('s_mul_i32 s4, s4, 5120')
    a(f's_and_b32 s5, s12, 3')
    a('s_lshl_b32 s5, s5, 8')
    a('s_add_u32 s4, s4, s5')
    a(f's_add_u32 s8, s4, {HF_OFF}')
    a.wait_lg0()
    a('s_barrier')
    ht = []
    for m in range(3):
        ht.append(a(f'ds_read_b128 {V(XQ + 4 * m, 4)}, v28 offset:{512 * m}'))
    for m in range(3):
        a.wait(ht[m])
        a(f'buffer_store_dwordx4 {V(XQ + 4 * m, 4)}, v{29 + m}, {S(sWS, 4)}, 0 offen sc1')
    ht = []
    for m in range(3):
        a(f's_add_u32 s4, s{sW}, {4 * m}')
        a('s_min_u32 s5, s4, 9')
        a('s_cmp_ge_u32 s5, 5')
        a(f's_cselect_b32 s6, {640 - 40}, 0')
        a(f's_cselect_b32 s7, {4 * 64 * 5120 - 5120}, 0')
        a('s_lshl_b32 s5, s5, 3')
        a('s_add_u32 s5, s5, s6')
        a('v_add_u32 v26, s5, v24')
        a(f'ds_read_b64_tr_b16 {V(U + 4 * m, 2)}, v26')
        ht.append(a(f'ds_read_b64_tr_b16 {V(U + 4 * m + 2, 2)}, v26 offset:{4 * 1280}'))
        a('s_lshl_b32 s5, s4, 10')
        a('s_add_u32 s5, s5, s7')
        a('s_add_u32 s5, s5, s8')
        a('s_cmp_ge_u32 s4, 10')
        a(f's_cselect_b32 s5, {OOB}, s5')
        a(f'v_add_u32 v{34 + m}, s5, v25')
    for m in range(3):
        a.wait(ht[m])
        a(f'buffer_store_dwordx4 {V(U + 4 * m, 4)}, v{34 + m}, {S(sWS, 4)}, 0 offen sc1')
    hst = ('vm', a.vm_issued - 1)
    if 'unitfirst' not in EXP:
        unit_part()
    a(f's_lshl_b32 s4, s{sWH}, 2')
    a(f's_add_u32 s4, s4, {L_CNT}')
    a('v_mov_b32 v10, s4')
    a('v_mov_b32 v11, 1')
    a.wait(hst)
    a('s_mov_b64 exec, 1')
    a('ds_add_rtn_u32 v11, v10, v11')
    a('s_mov_b64 exec, -1')
    a.wait_lg0()
    a('v_readfirstlane_b32 s5, v11')
    a(f's_lshl_b32 s4, s12, {FSH}')
    a(f's_add_u32 s4, s4, {FH_OFF}')
    a('s_cmp_lg_u32 s5, 3')
    a('s_cbranch_scc1 L_nofh')
    flag_set(a, 4)
    a.label('L_nofh')
    a.wait_vm0()
    flag_set(a, 10)
    stamp(a, 'prep')
    a(f's_mov_b32 s{sL}, {fbits(LOG2E)}')
    a(f's_mov_b32 s{sL + 1}, {fbits(LOG2E)}')
    a(f's_mov_b32 s{sNL}, {fbits(-LOG2E)}')
    a(f's_mov_b32 s{sNL + 1}, {fbits(-LOG2E)}')
    a(f's_mul_i32 s10, s{sHG}, 60')
    a(f's_lshl_b32 s4, s10, {FSH}')
    a(f's_add_u32 s4, s4, {FU_OFF}')
    if 'fewpoll' in EXP:
        a(f'v_min_u32 v20, 14, v{vI}')
        a(f'v_lshl_add_u32 v20, v20, 2, s{sW}')
        a(f'v_lshl_add_u32 v20, v20, {FSH}, s4')
    else:
        a(f'v_lshl_add_u32 v20, v{vL}, {FSH}, s4')
    a(f's_lshl_b32 s11, s{sRB}, 2')
    a(f's_add_u32 s11, s11, s{sW}')
    a(f's_lshl_b32 s4, s11, {FSH + 2}')
    a(f's_add_u32 s4, s4, {FH_OFF}')
    a(f'v_lshl_add_u32 v21, v{vC}, {FSH}, s4')
    if 'fewpoll' in EXP:
        a(f's_cmp_lg_u32 s{sWH}, 0')
        a('s_cselect_b64 vcc, -1, 0')
    else:
        a(f'v_cmp_gt_u32 vcc, 60, v{vL}')
    a('v_cndmask_b32 v20, v21, v20, vcc')
    a(f's_add_u32 s10, s10, s{sW}')
    a('s_mul_i32 s10, s10, 5120')
    a(f's_add_u32 s10, s10, {WF_OFF}')
    a(f's_add_u32 s9, s10, {40 * 5120}')
    a(f's_mul_i32 s{sM0B}, s{sW}, 5120')
    a('s_mul_i32 s11, s11, 40960')
    a(f's_add_u32 s11, s11, {XF_OFF}')
    a(f'v_add_u32 v10, 20480, v{vLN}')
    a(f'v_add_u32 v26, {L_RING}, v{vLN}')
    a(f'v_add_u32 v27, 61440, v{vLN}')

    def wphi_frags(WPF, wbase, zbase):
        a(f'v_mul_u32_u24 v22, 800, v{vG}')
        a(f'v_mul_u32_u24 v23, 40, v{vR}')
        a('v_add_u32 v22, v22, v23')
        a(f'v_add_u32 v22, {wbase}, v22')
        a(f'v_mov_b32 v23, {zbase}')
        a(f'v_cmp_eq_u32 vcc, v{vG}, v{vC}')
        a('v_cndmask_b32 v22, v23, v22, vcc')
        for t in range(5):
            for d4 in range(5):
                a(f'ds_read_b64_tr_b16 {V(WPF(t, d4 // 2) + 2 * (d4 % 2), 2)}, v22 offset:{4 * d4 * 40 + 8 * t}')

    Q = lambda k: 48 + 4 * k
    WPF = lambda t, ks: Q(2 * t + ks) if ks < 2 else Q(10 + t // 2) + 2 * (t % 2)
    a('s_barrier')
    wphi_frags(WPF, L_WPHI, L_ZERO)
    a.wait_lg0()
    a('s_barrier')
    flag_check(a, flag_issue(a, 20, 21), 20, 21)
    stamp(a, 'go')

    def xload(dst, ks, z):
        off = f' offset:{(ks % 4) * 1024}' if ks % 4 else ''
        t = a(f'buffer_load_dwordx4 {V(dst, 4)}, v{vLN if z == 0 else 10}, {S(sWS, 4)}, s11 offen{off} sc1')
        if ks % 4 == 3 and z == 1:
            a('s_add_u32 s11, s11, 4096')
        return t

    a(f's_cmp_lg_u32 s{sWH}, 0')
    a('s_cbranch_scc1 L_a_upper')
    at_split = a.save()
    a('s_setprio 2')
    AC = lambda k, z: Q(13 + 2 * k + z)
    XR = lambda ks, z: Q(33 + (ks % 6) * 2 + z)
    FW = lambda n: Q(45 + n % 7)
    xtok = {}
    for ks in range(5):
        for z in range(2):
            xtok[ks] = xload(XR(ks, z), ks, z)
    a('s_barrier')
    stamp(a, 'a0')
    WIN, NF = 6, 200
    ftok = {}

    def read_frag(n):
        d, r = divmod(n, 20)
        ftok[n] = a(f'ds_read_b128 {V(FW(n), 4)}, v26 offset:{(d % 3) * 20480 + r * 1024}')

    for n in range(WIN):
        read_frag(n)
    for n in range(NF):
        nn = n + WIN
        if nn < NF:
            if nn % 20 == 0:
                a.wait_lg0()
                a('s_barrier')
                if (nn // 20) % 3 == 0:
                    stamp(a, f'a{nn // 20}')
            read_frag(nn)
        ks, k = divmod(n, 10)
        a.wait(ftok[n], xtok[ks])
        for z in range(2):
            c = '0' if ks == 0 else V(AC(k, z), 4)
            a(f'v_mfma_f32_16x16x32_bf16 {V(AC(k, z), 4)}, {V(FW(n), 4)}, {V(XR(ks, z), 4)}, {c}')
        if k in (2, 6) and ks + 5 < 20:
            xtok[ks + 5] = xload(XR(ks + 5, k // 4), ks + 5, k // 4)
    a('s_barrier')
    stamp(a, 'aend')
    vSA, vKA, vKO = 8, 9, 12
    a(f's_lshl_b32 s4, s{sW}, 5')
    a(f'v_lshl_add_u32 v{vSA}, v{vG}, 7, v{vI}')
    a(f'v_add_u32 v{vSA}, s4, v{vSA}')
    a(f'v_mul_u32_u24 v{vSA}, 120, v{vSA}')
    a(f'v_add_u32 v{vSA}, {L_RING}, v{vSA}')
    for z in range(2):
        for t in range(5):
            r = AC(5 + t, z)
            a(f'v_cvt_pk_bf16_f32 v{r}, v{r}, v{r + 1}')
            a(f'v_cvt_pk_bf16_f32 v{r + 1}, v{r + 2}, v{r + 3}')
            a(f'ds_write_b64 v{vSA}, {V(r, 2)} offset:{z * 16 * 120 + 80 + 8 * t}')
    PK = [Q(33), Q(34), Q(35)]
    EN5 = [Q(36 + c) for c in range(5)]
    for z in range(2):
        E5 = [AC(t, z) for t in range(5)]
        P5 = [Q(41 + 5 * z + c) for c in range(5)]
        featmap(a, E5, PK, WPF, P5, E5, EN5, 32)
        for c in range(10):
            a(f'ds_write_b64 v{vSA}, {V(P5[c // 2] + 2 * (c % 2), 2)} offset:{z * 16 * 120 + 8 * c}')
    stamp(a, 'fm')
    a(f's_mul_i32 s4, s{sW}, {128 * 120}')
    a(f's_add_u32 s4, s4, {L_RING}')
    a(f'v_mul_u32_u24 v{vKA}, 120, v{vGR}')
    a(f'v_lshl_add_u32 v{vKA}, v{vC}, 3, v{vKA}')
    a(f'v_add_u32 v{vKA}, s4, v{vKA}')
    a(f's_lshl_b32 s4, s{sHG}, 2')
    a(f's_add_u32 s4, s4, s{sW}')
    a('s_lshl_b32 s4, s4, 4')
    a(f's_add_u32 s13, s4, s{sRB}')
    a('s_mul_i32 s4, s13, 6144')
    a(f's_add_u32 s4, s4, {KV_OFF}')
    a(f'v_lshl_add_u32 v{vKO}, v{vL}, 4, s4')
    a('s_movk_i32 s12, 0x1000')
    a(f'v_mov_b32 v11, {OOB}')
    a(f'v_cmp_gt_u32 vcc, 8, v{vI}')
    a(f'v_cndmask_b32 v{vKO + 1}, v11, v{vKO}, vcc')
    a(f'v_cmp_gt_u32 vcc, 2, v{vG}')
    a(f'v_cndmask_b32 v{vKO + 2}, v11, v{vKO}, vcc')
    a(f'v_cndmask_b32 v{vKO + 3}, v11, v{vKO + 1}, vcc')
    a(f's_lshl_b32 s13, s13, {FSH}')
    a(f's_add_u32 s10, s13, {FK_OFF}')
    a('v_mov_b32 v11, 0x3f803f80')
    a(f'v_cmp_eq_u32 vcc, 1, v{vR}')
    a.wait_lg0()
    a('s_barrier')
    ktok = {}
    OPQ = lambda kk, x: Q(13 + kk * 5 + x)
    KVA = [Q(k) for k in range(6)]

    def kv_read(kk):
        for x in range(5):
            col = 32 * x if x < 3 else 80 + 32 * (x - 3)
            a(f'ds_read_b64_tr_b16 {V(OPQ(kk, x), 2)}, v{vKA} offset:{kk * 32 * 120 + col}')
            ktok[kk] = a(f'ds_read_b64_tr_b16 {V(OPQ(kk, x) + 2, 2)}, v{vKA} offset:{kk * 32 * 120 + 16 * 120 + col}')

    kv_read(0)
    for kk in range(4):
        if kk + 1 < 4:
            kv_read(kk + 1)
        a.wait(ktok[kk])
        for j in range(4):
            a(f'v_cndmask_b32 v{OPQ(kk, 4) + j}, v{OPQ(kk, 4) + j}, v11, vcc')
        for et in range(2):
            for ft in range(3):
                d = V(KVA[ft * 2 + et], 4)
                a(f'v_mfma_f32_16x16x32_bf16 {d}, {V(OPQ(kk, 3 + et), 4)}, {V(OPQ(kk, ft), 4)}, {"0" if kk == 0 else d}')
    for ft in range(3):
        for et in range(2):
            vo = vKO + (1 if ft == 2 else 0) + (2 if et == 1 else 0)
            so = 's12' if ft == 2 else '0'
            a(f'buffer_store_dwordx4 {V(KVA[ft * 2 + et], 4)}, v{vo}, {S(sWS, 4)}, {so} offen offset:{(ft % 2) * 2048 + et * 1024} sc1')
    a.wait_vm0()
    flag_set(a, 10)
    a(f's_mov_b32 s10, {OOB}')
    if 'pfa' in EXP:
        a(f's_lshr_b32 s4, s{sID}, 3')
        a('s_lshl_b32 s4, s4, 2')
        a(f's_add_u32 s4, s4, s{sW}')
        a(f's_mul_i32 s5, s4, {27 * 4096}')
        a(f's_and_b32 s7, s{sID}, 7')
        a('s_lshl_b32 s7, s7, 9')
        a('s_add_u32 s5, s5, s7')
        a(f'v_lshrrev_b32 v24, 2, v{vL}')
        a('v_min_u32 v24, 13, v24')
        a('v_lshlrev_b32 v24, 12, v24')
        a(f'v_lshl_add_u32 v24, v{vC}, 7, v24')
        a('v_add_u32 v24, s5, v24')
        a(f'buffer_load_dword v37, v24, {S(sW2, 4)}, 0 offen')
        a(f'v_add_u32 v24, {13 * 4096}, v24')
        a(f'buffer_load_dword v37, v24, {S(sW2, 4)}, 0 offen')
    a('s_barrier')
    a('s_branch L_join')

    a.label('L_a_upper')
    a.restore(at_split)
    wtok = {}

    def dma5(so, lds):
        a(f's_add_u32 m0, s{sM0B}, {lds}')
        for q in range(4):
            off = f' offset:{q * 1024}' if q else ''
            a(f'buffer_load_dwordx4 v{vLN}, {S(sWS, 4)}, s{so} offen{off} sc1 lds')
        a(f's_add_u32 m0, s{sM0B}, {lds + 4096}')
        t = a(f'buffer_load_dwordx4 v{vLN + 1}, {S(sWS, 4)}, s{so} offen sc1 lds')
        a(f's_add_u32 s{so}, s{so}, 20480')
        return t

    NXR = 12
    XQ_ = lambda ks, z: Q(13 + (ks % NXR) * 2 + z)
    AQ = lambda t, z: Q(37 + 2 * t + z)
    FQ = lambda n: Q(47 + n % 5)
    xtok = {}
    for d in range(3):
        wtok[d] = dma5(10, L_RING + d * 20480)
    for d in range(10):
        a.wait(wtok[d])
        a('s_barrier')
        if 1 <= d and d + 2 < 10:
            wtok[d + 2] = dma5(10, L_RING + ((d + 2) % 3) * 20480)
        if d < 5:
            qtok = dma5(9, L_WQ + d * 20480)
        if 4 <= d < 10:
            for ks in (2 * (d - 4), 2 * (d - 4) + 1):
                for z in range(2):
                    xtok[ks] = xload(XQ_(ks, z), ks, z)
    a.wait(qtok)
    a('s_barrier')
    ftok = {}

    def read_q(n):
        off = n * 1024
        ftok[n] = a(f'ds_read_b128 {V(FQ(n), 4)}, v{vLN if off < 61440 else 27} offset:{off % 61440}')

    QBAR = int(os.environ.get('QBAR', '-1'))
    if QBAR < 0:
        a('s_barrier')
    for n in range(4):
        read_q(n)
    for n in range(100):
        if n + 4 < 100:
            read_q(n + 4)
        ks, t = divmod(n, 5)
        a.wait(ftok[n], xtok[ks])
        for z in range(2):
            c = '0' if ks == 0 else V(AQ(t, z), 4)
            a(f'v_mfma_f32_16x16x32_bf16 {V(AQ(t, z), 4)}, {V(FQ(n), 4)}, {V(XQ_(ks, z), 4)}, {c}')
        if t in (1, 3) and ks >= 1 and ks - 1 + NXR < 20:
            xtok[ks - 1 + NXR] = xload(XQ_(ks - 1 + NXR, t // 2), ks - 1 + NXR, t // 2)
        if n == QBAR:
            a('s_barrier')
    a('s_barrier')
    stamp(a, 'aend')
    PK = [Q(13), Q(14), Q(15)]
    EN5 = [Q(16 + c) for c in range(5)]
    PP = [[Q(21 + 5 * z + c) for c in range(5)] for z in range(2)]
    for z in range(2):
        E5 = [AQ(t, z) for t in range(5)]
        featmap(a, E5, PK, WPF, PP[z], E5, EN5, 32)
    stamp(a, 'fm')
    a('s_setprio 3')
    a(f's_mul_i32 s6, s{sW}, 10240')
    a(f's_add_u32 s6, s6, {L_RING}')
    a(f'v_lshlrev_b32 v31, 11, v{vG}')
    a(f'v_lshl_add_u32 v31, v{vR}, 3, v31')
    a('v_mov_b32 v21, 8192')
    a(f'v_cmp_eq_u32 vcc, v{vG}, v{vC}')
    a('v_cndmask_b32 v31, v21, v31, vcc')
    a('v_add_u32 v31, s6, v31')
    for k in range(4):
        a(f'v_mov_b32 v{44 + k}, 0')
    a(f'v_add_u32 v21, s6, v{vLN}')
    a('ds_write_b128 v21, v[44:47] offset:8192')
    a('ds_write_b128 v21, v[44:47] offset:9216')
    a(f's_lshl_b32 s4, s{sHG}, {4 + FSH}')
    a(f's_add_u32 s4, s4, {FR_OFF}')
    a(f'v_lshl_add_u32 v20, v{vI}, {FSH}, s4')
    a(f'v_lshlrev_b32 v8, 4, v{vL}')
    a('v_add_u32 v9, 4096, v8')
    a(f'v_lshlrev_b32 v10, 3, v{vL}')
    a(f's_lshl_b32 s5, s{sHG}, 13')
    a(f's_add_u32 s5, s5, {KB_OFF}')
    a(f's_lshl_b32 s7, s{sRB}, 1')
    a(f's_lshr_b32 s8, s{sW}, 1')
    a('s_add_u32 s7, s7, s8')
    a(f's_and_b32 s8, s{sW}, 1')
    a('s_lshl_b32 s8, s8, 1')
    a(f's_lshr_b32 s12, s{sHG}, 1')
    a('s_mul_i32 s12, s12, 5')
    a('s_mul_i32 s13, s7, 20')
    a('s_add_u32 s12, s12, s13')
    a('s_lshl_b32 s12, s12, 2')
    a('s_add_u32 s12, s12, s8')
    a('s_lshl_b32 s12, s12, 10')
    a(f's_add_u32 s12, s12, {OF_OFF}')
    a(f's_and_b32 s13, s{sHG}, 1')
    a(f's_mul_i32 s14, s13, {3 * 4096}')
    a('s_add_u32 s14, s14, s12')
    a('s_lshl_b32 s13, s13, 9')
    a('s_add_u32 s12, s12, s13')
    a(f's_add_u32 s12, s12, {2 * 4096}')
    a('s_lshl_b32 s13, s7, 3')
    a(f's_add_u32 s13, s13, s{sHG}')
    a('s_lshl_b32 s13, s13, 2')
    a('s_add_u32 s13, s13, s8')
    a(f's_lshl_b32 s13, s13, {FSH}')
    a(f's_add_u32 s13, s13, {FO_OFF}')
    flag_check(a, flag_issue(a, 20, 21), 20, 21, int(os.environ.get('RSLEEP', '8')))
    stamp(a, 'rok')
    for hh in range(2):
        a(f's_add_u32 m0, s6, {4096 * hh}')
        for q in range(4):
            off = f' offset:{q * 1024}' if q else ''
            a(f'buffer_load_dwordx4 v{8 + hh}, {S(sWS, 4)}, s5 offen{off} sc1 lds')
    a.wait_all()
    OA = [[Q(31 + k) for k in range(6)], [Q(37 + k) for k in range(6)]]
    KF = lambda ks, t: Q((ks % 2) * 6 + t)
    otok = {}

    def o_read(ks):
        for t in range(6):
            a(f'ds_read_b64_tr_b16 {V(KF(ks, t), 2)}, v31 offset:{kb_pos(8 * ks, t)}')
            otok[ks] = a(f'ds_read_b64_tr_b16 {V(KF(ks, t) + 2, 2)}, v31 offset:{kb_pos(8 * ks + 4, t)}')

    o_read(0)
    for ks in range(5):
        if ks + 1 < 5:
            o_read(ks + 1)
        a.wait(otok[ks])
        for z in range(2):
            for t in range(6):
                d = V(OA[z][t], 4)
                a(f'v_mfma_f32_16x16x32_bf16 {d}, {V(KF(ks, t), 4)}, {V(PP[z][ks], 4)}, {"0" if ks == 0 else d}')
    for z in range(2):
        O = OA[z]
        PO = PK if z == 0 else [Q(16), Q(17), Q(18)]
        a(f'v_add_f32 v{O[5]}, {fbits(1e-6)}, v{O[5]}')
        a(f'v_rcp_f32 v{O[5]}, v{O[5]}')
        for t in range(5):
            for h in range(2):
                a(f'v_pk_mul_f32 {V(O[t] + 2 * h, 2)}, {V(O[t] + 2 * h, 2)}, {V(O[5], 2)} op_sel_hi:[1,0]')
        for k in range(10):
            t, j = divmod(2 * k, 4)
            a(f'v_cvt_pk_bf16_f32 v{PO[k // 4] + k % 4}, v{O[t] + j}, v{O[t] + j + 1}')
        off = f' offset:{1024 * z}' if z else ''
        a(f'buffer_store_dwordx4 {V(PO[0], 4)}, v8, {S(sWS, 4)}, s14 offen{off} sc1')
        a(f'buffer_store_dwordx4 {V(PO[1], 4)}, v9, {S(sWS, 4)}, s14 offen{off} sc1')
        a(f'buffer_store_dwordx2 {V(PO[2], 2)}, v10, {S(sWS, 4)}, s12 offen{off} sc1')
    a.wait_vm0()
    flag_set(a, 13)
    a(f's_cmp_lg_u32 s{sID}, 0')
    a('s_cbranch_scc1 L_a_done')
    a(f's_cmp_lg_u32 s{sW}, 3')
    a('s_cbranch_scc1 L_a_done')
    a(f'v_and_b32 v20, 31, v{vL}')
    a('v_min_u32 v20, 26, v20')
    a(f'v_and_b32 v21, 32, v{vL}')
    a('v_add_u32 v20, v20, v21')
    a(f'v_lshlrev_b32 v20, {FSH + 2}, v20')
    for k in range(4):
        a(f'v_add_u32 v22, {FG_OFF + (k * 256 << FSH)}, v20')
        flag_check(a, flag_issue(a, 22, 21), 22, 21, 12)
    a(f'v_lshlrev_b32 v20, {FSH}, v{vL}')
    for base in (FR_OFF, FR_OFF + (64 << FSH)):
        a(f'v_add_u32 v22, {base}, v20')
        flag_check(a, flag_issue(a, 22, 21), 22, 21, 12)
    a(f'v_and_b32 v20, 31, v{vL}')
    a(f'v_lshlrev_b32 v20, {FSH}, v20')
    a(f'v_add_u32 v22, {FW_OFF}, v20')
    flag_check(a, flag_issue(a, 22, 21), 22, 21, 12)
    a(f's_mov_b32 s10, {EP_OFF}')
    flag_set(a, 10)
    a.label('L_a_done')
    stamp_flush(a, 'end')
    a('s_endpgm')


def role_b(a):
    if 'map4' in EXP:
        a(f's_lshr_b32 s{sBCB}, s6, 2')
        a('s_and_b32 s9, s6, 3')
        a('s_lshl_b32 s6, s9, 1')
    else:
        a('s_cmp_ge_u32 s6, 54')
        a('s_cselect_b32 s7, 54, 0')
        a('s_cselect_b32 s8, 4, 0')
        a('s_sub_u32 s6, s6, s7')
        a(f's_lshr_b32 s{sBCB}, s6, 1')
        a('s_and_b32 s9, s6, 1')
        a('s_lshl_b32 s6, s9, 1')
        a('s_add_u32 s6, s6, s8')
    PR = 24 if 'map4' in EXP else 48
    a(f's_add_u32 s{sBDB}, s6, s{sWH}')
    srd(a, sW1, P_W1, S_ * F_ * 2)
    g_common(a)
    gB = GGemm(a, 'B')
    gB.setup()
    BPRE = int(os.environ.get('BPRE', '10'))
    if 'g1lin' in EXP:
        a(f's_lshl_b32 s4, s{sBCB}, 2')
        a('s_add_u32 s4, s4, s9')
        a('s_lshl_b32 s4, s4, 3')
        a(f's_add_u32 s4, s4, s{sW8}')
        a('s_lshl_b32 s4, s4, 13')
        a(f'v_lshl_add_u32 v24, v{vL}, 7, s4')
        a(f'buffer_load_dword v37, v24, {S(sW1, 4)}, 0 offen')
        if 'g1wait' in EXP:
            a.wait_vm0()
    if 'g1first' in EXP:
        a('s_lshl_b32 s4, s9, 1')
        a(f's_add_u32 s4, s4, s{sWH}')
        a(f's_lshl_b32 s5, s{sW}, 9')
        a('s_add_u32 s4, s4, s5')
        a(f's_mul_i32 s4, s4, {F_ * 2}')
        a(f's_lshl_b32 s5, s{sBCB}, 7')
        a('s_add_u32 s4, s4, s5')
        a(f'v_mul_u32_u24 v24, {8 * F_ * 2}, v{vL}')
        a('v_add_u32 v24, s4, v24')
        a(f'buffer_load_dword v37, v24, {S(sW1, 4)}, 0 offen')
    for j in range(BPRE):
        Hooks(gB.dma_items(j)).flush()

    def b_extra(j):
        return []

    a('s_lshl_b32 s4, s9, 1')
    a(f's_add_u32 s4, s4, s{sWH}')
    a(f's_mul_i32 s4, s4, {PR}')
    a(f's_lshl_b32 s5, s{sW}, 9')
    a('s_add_u32 s4, s4, s5')
    a(f's_add_u32 s4, s4, {32 * B_P}')
    a(f's_mul_i32 s4, s4, {F_ * 2}')
    a(f's_lshl_b32 s5, s{sBCB}, 7')
    a('s_add_u32 s4, s4, s5')
    a(f'v_min_u32 v24, {PR - 1}, v{vL}')
    a(f'v_mul_u32_u24 v24, {F_ * 2}, v24')
    a('v_add_u32 v24, s4, v24')
    if 'g1first' not in EXP and 'nog1' not in EXP:
        a(f'buffer_load_dword v37, v24, {S(sW1, 4)}, 0 offen')
    srd(a, sAUX, P_B1, F_ * 2)
    a(f's_lshl_b32 s4, s{sBCB}, 7')
    a(f's_lshl_b32 s5, s{sW}, 5')
    a('s_add_u32 s4, s4, s5')
    a(f'v_lshl_add_u32 v24, v{vG}, 3, s4')
    a(f'buffer_load_dwordx2 v[38:39], v24, {S(sAUX, 4)}, 0 offen')
    tag_ready(a)
    a('s_barrier')
    stamp(a, 'prep')
    a(f's_cmp_lg_u32 s{sWH}, 0')
    a('s_cbranch_scc1 L_b_go')
    flag_check(a, flag_issue(a, vFL, vFD), vFL, vFD, 3)
    a.label('L_b_go')
    a.wait_vm0()
    a('s_barrier')
    stamp(a, 'go')
    Hooks(gB.frag_items(int(os.environ.get('FIRSTB', '25')))).flush()
    for j in range(BPRE, B_P):
        Hooks(gB.dma_items(j)).flush()

    gB.mainloop(b_extra)
    stamp(a, 'Bend')
    gB.reduce()
    R = lambda t, j: ACC(t, 0) + j
    T = lambda t, j: ACC(t, 1) + j
    a('v_lshlrev_b32 v34, 16, v38')
    a('v_and_b32 v35, 0xffff0000, v38')
    a('v_lshlrev_b32 v36, 16, v39')
    a('v_and_b32 v37, 0xffff0000, v39')
    c0 = 0.7978845608028654
    k1 = -2.0 * c0 * LOG2E
    k2 = k1 * 0.044715
    a(f's_mov_b32 s4, {fbits(k2)}')
    a(f's_mov_b32 s5, {fbits(k2)}')
    a(f'v_mov_b32 v24, {fbits(k1)}')
    a('v_mov_b32 v26, 1.0')
    th = [(t, h) for t in range(5) for h in range(2)]
    tj = [(t, j) for t in range(5) for j in range(4)]
    for t, h in th:
        a(f'v_pk_add_f32 {V(R(t, 2 * h), 2)}, {V(R(t, 2 * h), 2)}, {V(34 + 2 * h, 2)}')
    for t, h in th:
        a(f'v_pk_mul_f32 {V(T(t, 2 * h), 2)}, {V(R(t, 2 * h), 2)}, {V(R(t, 2 * h), 2)}')
    for t, h in th:
        a(f'v_pk_fma_f32 {V(T(t, 2 * h), 2)}, {V(T(t, 2 * h), 2)}, s[4:5], v[24:25] op_sel_hi:[1,0,0]')
    for t, h in th:
        a(f'v_pk_mul_f32 {V(T(t, 2 * h), 2)}, {V(T(t, 2 * h), 2)}, {V(R(t, 2 * h), 2)}')
    for t, j in tj:
        a(f'v_exp_f32 v{T(t, j)}, v{T(t, j)}')
    for t, h in th:
        a(f'v_pk_add_f32 {V(T(t, 2 * h), 2)}, {V(T(t, 2 * h), 2)}, v[26:27] op_sel_hi:[1,0]')
    for t, j in tj:
        a(f'v_rcp_f32 v{T(t, j)}, v{T(t, j)}')
    for t, h in th:
        a(f'v_pk_mul_f32 {V(T(t, 2 * h), 2)}, {V(T(t, 2 * h), 2)}, {V(R(t, 2 * h), 2)}')
    a(f's_mul_i32 s4, s{sW8}, 2560')
    a('s_add_u32 s4, s4, 81920')
    a(f'v_lshl_add_u32 v24, v{vL}, 3, s4')
    for t in range(5):
        a(f'v_cvt_pk_bf16_f32 v{R(t, 0)}, v{T(t, 0)}, v{T(t, 1)}')
        a(f'v_cvt_pk_bf16_f32 v{R(t, 1)}, v{T(t, 2)}, v{T(t, 3)}')
        a(f'ds_write_b64 v24, {V(R(t, 0), 2)} offset:{t * 512}')
    a(f's_mul_i32 s4, s{sBDB}, 74')
    a(f's_lshl_b32 s5, s{sBCB}, 1')
    a('s_add_u32 s4, s4, s5')
    a('s_mul_i32 s4, s4, 5120')
    a(f's_add_u32 s15, s4, {GF_OFF}')
    a(f's_mul_i32 s4, s{sWH}, 10240')
    a('s_add_u32 s4, s4, 81920')
    a(f'v_lshl_add_u32 v25, v{vL}, 3, s4')
    a.wait_lg0()
    a('s_barrier')
    gt = []
    for m in range(3):
        frag10_addr(a, m, 2 * 2560 - 5 * 512, 512, 15, 24, 25, 34 + m)
        a(f'ds_read_b64 {V(ACC(m, 2), 2)}, v24')
        gt.append(a(f'ds_read_b64 {V(ACC(m, 2) + 2, 2)}, v24 offset:2560'))
    for m in range(3):
        a.wait(gt[m])
        a(f'buffer_store_dwordx4 {V(ACC(m, 2), 4)}, v{34 + m}, {S(sWS, 4)}, 0 offen sc1')
    a(f's_lshl_b32 s4, s{sBDB}, 5')
    a(f's_add_u32 s4, s4, s{sBCB}')
    a('s_lshl_b32 s4, s4, 2')
    a(f's_add_u32 s4, s4, s{sW}')
    a(f's_lshl_b32 s4, s4, {FSH}')
    a(f's_add_u32 s10, s4, {FG_OFF}')
    a('s_branch L_join')


def role_r(a):
    a('s_lshl_b32 s11, s6, 1')
    a(f's_add_u32 s11, s11, s{sWH}')
    a('s_lshr_b32 s8, s6, 3')
    a('s_lshl_b32 s8, s8, 3')
    a(f's_add_u32 s8, s8, s{sW8}')
    a('s_getpc_b64 s[6:7]')
    a.raw('L_pc:')
    a(f's_sub_u32 s{sAUX}, s6, L_pc - L_start')
    a('s_subb_u32 s7, s7, 0')
    a(f's_and_b32 s{sAUX + 1}, s7, 0xffff')
    a(f's_mov_b32 s{sAUX + 2}, L_end - L_start')
    a(f's_mov_b32 s{sAUX + 3}, 0x20000')
    a('s_lshl_b32 s6, s8, 13')
    a(f'v_lshl_add_u32 v25, v{vL}, 7, s6')
    if 'nocpf' not in EXP:
        a(f'buffer_load_dword v37, v25, {S(sAUX, 4)}, 0 offen')
    if 'notlb' not in EXP:
        a(f's_lshl_b32 s5, s8, 6')
        a(f'v_add_u32 v26, s5, v{vL}')
        a(f'v_mul_u32_u24 v27, {(WS_USED // 1024 + 127) // 128 * 128}, v26')
        a(f'buffer_load_dword v37, v27, {S(sWS, 4)}, 0 offen sc1')
        a('v_lshlrev_b32 v27, 13, v26')
        a(f'buffer_load_dword v37, v27, {S(sW2, 4)}, 0 offen')
        srd(a, sOUT, P_OUT, S_ * D_ * 2)
        a('v_lshlrev_b32 v27, 12, v26')
        a(f'buffer_load_dword v37, v27, {S(sOUT, 4)}, 0 offen sc1')
        srd(a, sAUX, P_B2, S_ * 2)
        a(f'buffer_load_dword v37, v27, {S(sAUX, 4)}, 0 offen')
    if 'wqlin' in EXP:
        srd(a, sWQ, P_WQKV, D_ * 3 * D_ * 2)
        a(f's_sub_u32 s5, s{sID}, 240')
        a('s_lshl_b32 s5, s5, 3')
        a(f's_add_u32 s5, s5, s{sW8}')
        a('s_mul_i32 s5, s5, 24576')
        a(f'v_lshl_add_u32 v26, v{vL}, 7, s5')
        for k in range(3):
            a(f'buffer_load_dword v37, v26, {S(sWQ, 4)}, 0 offen')
            a('v_add_u32 v26, 8192, v26')
    if 'w2lin' in EXP:
        a(f's_sub_u32 s5, s{sID}, 240')
        a('s_lshl_b32 s5, s5, 3')
        a(f's_add_u32 s5, s5, s{sW8}')
        a('s_lshl_b32 s5, s5, 13')
        a(f'v_lshl_add_u32 v38, v{vL}, 7, s5')
    if 'g2map8' in EXP:
        a(f's_mul_i32 s5, s8, {108 * 4096}')
        a(f's_and_b32 s7, s{sID}, 7')
        a('s_lshl_b32 s7, s7, 9')
        a('s_add_u32 s5, s5, s7')
        a(f'v_lshrrev_b32 v24, 2, v{vL}')
        a('v_lshlrev_b32 v24, 12, v24')
        a(f'v_lshl_add_u32 v24, v{vC}, 7, v24')
        a('v_add_u32 v24, s5, v24')
    else:
        a('s_mul_i32 s5, s8, 54')
        a(f's_and_b32 s7, s{sID}, 1')
        a('s_mul_i32 s7, s7, 864')
        a('s_add_u32 s5, s5, s7')
        a('s_lshl_b32 s5, s5, 12')
        a(f's_and_b32 s7, s{sID}, 6')
        a('s_lshl_b32 s7, s7, 9')
        a('s_add_u32 s5, s5, s7')
        a(f'v_lshrrev_b32 v24, 3, v{vL}')
        a(f'v_and_b32 v25, 7, v{vL}')
        a('v_lshlrev_b32 v24, 12, v24')
        a('v_lshl_add_u32 v24, v25, 7, v24')
        a('v_add_u32 v24, s5, v24')
    tag_ready(a)
    a(f'v_mov_b32 v{vFL}, {FH_OFF}')
    if 'pf2now' not in EXP:
        flag_check(a, flag_issue(a, vFL, vFD), vFL, vFD, 16)
    PFA = int(os.environ.get('PFA', '0'))
    a('v_mov_b32 v36, v38' if 'w2lin' in EXP else 'v_mov_b32 v36, v24')
    for k in range(PFA):
        a(f'buffer_load_dword v37, v36, {S(sW2, 4)}, 0 offen')
        a(f'v_add_u32 v36, {(16 if "g2map8" in EXP else 8) * 4096}, v36')
        if k % 2 == 1 and 'pf2fast' not in EXP:
            a.wait_vm0()
    stamp(a, 'prep')
    a('s_setprio 3')
    a(f's_lshl_b32 s4, s11, {4 + FSH}')
    a(f's_add_u32 s4, s4, {FK_OFF}')
    a(f'v_lshl_add_u32 v{vFL}, v{vI}, {FSH}, s4')
    a(f's_lshl_b32 s5, s{sW}, 11')
    a(f'v_lshl_add_u32 v24, v{vL}, 4, s5')
    a(f'v_lshrrev_b32 v25, 5, v{vL}')
    a(f'v_and_b32 v26, 31, v{vL}')
    a('v_lshlrev_b32 v26, 4, v26')
    a('v_lshl_add_u32 v25, v25, 11, v26')
    a('v_add_u32 v25, 1024, v25')
    a(f's_cmp_eq_u32 s{sW}, 2')
    a('s_cselect_b64 vcc, -1, 0')
    a('v_cndmask_b32 v24, v24, v25, vcc')
    a(f'v_lshrrev_b32 v25, 3, v{vL}')
    a(f'v_and_b32 v26, 7, v{vL}')
    a('v_lshlrev_b32 v26, 4, v26')
    a('v_lshl_add_u32 v25, v25, 8, v26')
    a('v_add_u32 v25, 4096, v25')
    a(f's_cmp_eq_u32 s{sW}, 3')
    a('s_cselect_b64 vcc, -1, 0')
    a('v_cndmask_b32 v24, v24, v25, vcc')
    a(f's_mul_i32 s4, s11, {16 * 6144}')
    a(f's_add_u32 s4, s4, {KV_OFF}')
    flag_check(a, flag_issue(a, vFL, vFD), vFL, vFD, int(os.environ.get('KSLEEP', '4')))
    stamp(a, 'hok')
    stok = []
    for rb in range(16):
        stok.append(a(f'buffer_load_dwordx4 {V(128 + 4 * rb, 4)}, v24, {S(sWS, 4)}, s4 offen sc1'))
        a('s_add_u32 s4, s4, 6144')
    for rb in range(1, 16):
        a.wait(stok[rb])
        for h in range(2):
            a(f'v_pk_add_f32 {V(128 + 2 * h, 2)}, {V(128 + 2 * h, 2)}, {V(128 + 4 * rb + 2 * h, 2)}')
    stamp(a, 'rsum')
    a('v_cvt_pk_bf16_f32 v34, v128, v129')
    a('v_cvt_pk_bf16_f32 v35, v130, v131')
    a('s_lshl_b32 s4, s11, 11')
    a(f's_add_u32 s4, s4, {KB_OFF}')
    a(f'v_lshl_add_u32 v24, v{vTH}, 3, s4')
    a(f'buffer_store_dwordx2 v[34:35], v24, {S(sWS, 4)}, 0 offen sc1')
    a('s_lshl_b32 s4, s11, 2')
    a(f's_add_u32 s4, s4, s{sW}')
    a(f's_lshl_b32 s4, s4, {FSH}')
    a(f's_add_u32 s10, s4, {FR_OFF}')
    a.wait_vm0()
    flag_set(a, 10)
    a(f's_mov_b32 s10, {OOB}')
    stamp(a, 'rpub')
    a('s_barrier')
    for k in range(PFA, 0 if 'nopf2' in EXP else 7):
        a(f'buffer_load_dword v37, v36, {S(sW2, 4)}, 0 offen')
        a(f'v_add_u32 v36, {8 * 4096}, v36')
    a('s_branch L_join')


def role_wot(a):
    a('s_lshl_b32 s11, s6, 1')
    a(f's_add_u32 s11, s11, s{sWH}')
    srd(a, sAUX, P_WO, D_ * D_ * 2)
    a(f'v_lshlrev_b32 v{vF}, 4, v{vL}')
    a(f'v_add_u32 v{vF + 1}, 4096, v{vF}')
    tag_ready(a)
    if 'wotlate' in EXP:
        a(f'v_mov_b32 v{vFL}, {FH_OFF}')
        flag_check(a, flag_issue(a, vFL, vFD), vFL, vFD, 16)
    dma160_voffs(a, 34, 1280, False, 24)
    a('s_mul_i32 s4, s11, 160')
    a(f's_mul_i32 s5, s{sW}, {160 * 1280}')
    a('s_add_u32 s7, s4, s5')
    a(f's_mul_i32 s6, s{sW8}, 20480')
    a(f'v_mul_u32_u24 v24, 20, v{vG}')
    a(f'v_add_u32 v24, v24, v{vR}')
    a('v_mul_u32_u24 v24, 160, v24')
    a(f'v_mul_u32_u24 v25, 40, v{vC}')
    a('v_add_u32 v24, v24, v25')
    a('v_add_u32 v24, s6, v24')
    a('s_mul_i32 s4, s11, 74')
    a(f's_mul_i32 s5, s{sW}, 5')
    a('s_add_u32 s4, s4, s5')
    a('s_add_u32 s4, s4, 54')
    a('s_mul_i32 s4, s4, 5120')
    a(f's_add_u32 s4, s4, {GF_OFF}')
    rounds = [[(0, 0, 0), (0, 1, 4), (1, 0, 8), (1, 1, 12), (2, 0, 16)],
              [(2, 1, 16), (3, 0, 0), (3, 1, 4), (4, 0, 8), (4, 1, 12)]]
    for rd in range(2):
        for k in range(3):
            a(f's_add_u32 s8, s7, {(rd * 80 + k * 32) * 1280}')
            dma160(a, 34, sAUX, 8, 6, k * 5120)
        a.wait_vm0()
        for u, hf, row in rounds[rd]:
            for t in range(5):
                a(f'ds_read_b64_tr_b16 {V(156 + (u * 5 + t) * 4 + 2 * hf, 2)}, v24 offset:{row * 160 + 8 * t}')
            a.wait_lg0()
    for u in range(5):
        for t in range(5):
            vo, off = (vF, t * 1024) if t < 4 else (vF + 1, 0)
            a(f'buffer_store_dwordx4 {V(156 + (u * 5 + t) * 4, 4)}, v{vo}, {S(sWS, 4)}, s4 offen offset:{off} sc1')
        a('s_add_u32 s4, s4, 5120')
    a('s_lshl_b32 s4, s11, 2')
    a(f's_add_u32 s4, s4, s{sW}')
    a(f's_lshl_b32 s4, s4, {FSH}')
    a(f's_add_u32 s10, s4, {FW_OFF}')
    a('s_barrier')


def final_gemm(a):
    g2 = GGemm(a, 'G2')
    if 'early_setup' in EXP:
        xcd_tile(a)
        g_common(a)
        g2.setup()
    a.wait_all()
    flag_set(a, 10)
    stamp(a, 'pub')
    a('s_setprio 0')
    a(f's_cmp_lg_u32 s{sWH}, 0')
    a('s_cbranch_scc1 L_fin')
    if 'early_setup' not in EXP:
        xcd_tile(a)
        g_common(a)
        g2.setup()
    for j in range(G2_P):
        Hooks(g2.dma_items(j)).flush()
    srd(a, sOUT, P_OUT, S_ * D_ * 2)
    R = lambda t, j: ACC(t, 0) + j
    T = lambda t, j: ACC(t, 1) + j
    srd(a, sAUX, P_B2, S_ * 2)
    a(f's_lshl_b32 s4, s{sRB}, {5 + FSH}')
    a(f's_lshl_b32 s5, s{sW}, {3 + FSH}')
    a('s_add_u32 s4, s4, s5')
    a(f's_add_u32 s4, s4, {FO_OFF}')
    a(f'v_lshl_add_u32 v34, v{vC}, {FSH + 1}, s4')
    a(f's_lshl_b32 s4, s{sHG}, 2')
    a(f's_add_u32 s4, s4, s{sW}')
    a(f's_lshl_b32 s4, s4, {FSH}')
    a(f's_add_u32 s4, s4, {FW_OFF}')
    a('v_mov_b32 v35, s4')
    a(f'v_cmp_gt_u32 vcc, 63, v{vL}')
    a(f'v_cndmask_b32 v{vFL}, v35, v{vFL}, vcc')
    for nt in range(4):
        a(f's_xor_b32 s4, s{sW}, {nt}')
        a('s_lshl_b32 s4, s4, 10')
        a(f'v_add_u32 v{vOF + nt}, s4, v{vF}')
    a(f's_mul_i32 s4, s{sRB}, 20')
    a(f's_mul_i32 s5, s{sW}, 5')
    a('s_add_u32 s4, s4, s5')
    a('s_lshl_b32 s4, s4, 12')
    a(f's_add_u32 s11, s4, {OF_OFF}')
    a(f'v_mul_u32_u24 v{vXA}, 1280, v{vTOK}')
    a(f'v_mul_u32_u24 v{vBA}, 40, v{vG}')
    a(f'v_add_u32 v{vXA}, v{vXA}, v{vBA}')
    a(f's_mul_i32 s4, s{sHG}, 160')
    a(f'v_add_u32 v{vXA}, s4, v{vXA}')
    a(f'v_lshlrev_b32 v{vBA}, 1, v{vTOK}')
    flag_check(a, flag_issue(a, vFL, vFD), vFL, vFD, int(os.environ.get('GSLEEP', '2')))
    stamp(a, 'gok')
    fl = {}

    def gate():
        a(f's_mul_i32 s4, s{sHG}, 74')
        a(f's_mul_i32 s5, s{sW}, 5')
        a('s_add_u32 s4, s4, s5')
        a('s_add_u32 s4, s4, 54')
        a('s_mul_i32 s4, s4, 5120')
        a(f's_add_u32 s{sFS}, s4, {GF_OFF}')

    def gate2():
        stamp(a, 'oa')
        flag_check(a, fl['o'], 34, 35)
        stamp(a, 'ob')

    g2.gate = gate
    g2.gate2 = gate2
    XR = [8, 10, 14, 16, 18]

    def g2_extra(j):
        it = []
        if j == 9:
            def fo():
                fl['o'] = flag_issue(a, 34, 35)
            it.append(fo)
        if j == int(os.environ.get('JRES', '16')):
            def resid():
                a(f'buffer_load_ushort v36, v{vBA}, {S(sAUX, 4)}, 0 offen')
                for t in range(5):
                    fl['x'] = a(f'buffer_load_dwordx2 {V(XR[t], 2)}, v{vXA}, {S(sX, 4)}, 0 offen offset:{8 * t}')
            it.append(resid)
        return it

    Hooks(g2.frag_items(int(os.environ.get('FIRSTG', '25')))).flush()
    g2.mainloop(g2_extra)
    stamp(a, 'Gend')
    g2.reduce()
    a.wait(fl['x'])
    a('v_lshlrev_b32 v36, 16, v36')
    for t in range(5):
        for h in range(2):
            a(f'v_lshlrev_b32 v{T(t, 2 * h)}, 16, v{XR[t] + h}')
            a(f'v_and_b32 v{T(t, 2 * h + 1)}, 0xffff0000, v{XR[t] + h}')
            a(f'v_pk_add_f32 {V(R(t, 2 * h), 2)}, {V(R(t, 2 * h), 2)}, v[36:37] op_sel_hi:[1,0]')
            a(f'v_pk_add_f32 {V(R(t, 2 * h), 2)}, {V(R(t, 2 * h), 2)}, {V(T(t, 2 * h), 2)}')
        a(f'v_cvt_pk_bf16_f32 v{R(t, 0)}, v{R(t, 0)}, v{R(t, 1)}')
        a(f'v_cvt_pk_bf16_f32 v{R(t, 1)}, v{R(t, 2)}, v{R(t, 3)}')
        a(f'buffer_store_dwordx2 {V(R(t, 0), 2)}, v{vXA}, {S(sOUT, 4)}, 0 offen offset:{8 * t}')
    a.label('L_fin')
    stamp_flush(a, 'end')


def build():
    a = Asm()
    hdr = open(os.path.join(os.path.dirname(__file__), '..', 'cdna_kernels', NAME + '.s.ref')).read().split('\n')
    for line in hdr:
        if line.startswith(';') and '@launch' not in line:
            a.raw(line)
    a.raw(f'; @launch grid=(256,1,1) block=(512,1,1) lds={LDS_BYTES}')
    a.raw('.amdgcn_target "amdgcn-amd-amdhsa--gfx950"')
    a.raw('.text')
    K = NAME + '_kernel'
    a.raw(f'.globl {K}')
    a.raw('.p2align 8')
    a.raw(f'.type {K},@function')
    a.raw(f'{K}:')
    a.raw('L_start:')
    a('s_cmp_ge_u32 s2, 256')
    a('s_cbranch_scc1 L_end')
    a('s_load_dwordx16 s[16:31], s[0:1], 0')
    a('s_load_dwordx8 s[32:39], s[0:1], 64')
    a(f'v_and_b32 v{vL}, 63, v0')
    a('v_lshrrev_b32 v6, 6, v0')
    a(f'v_readfirstlane_b32 s{sW8}, v6')
    a(f'v_lshrrev_b32 v{vG}, 4, v{vL}')
    a(f'v_and_b32 v{vI}, 15, v{vL}')
    a(f'v_lshrrev_b32 v{vR}, 2, v{vI}')
    a(f'v_and_b32 v{vC}, 3, v{vL}')
    a(f'v_lshl_add_u32 v{vGR}, v{vG}, 2, v{vR}')
    a(f'v_and_b32 v{vTH}, 255, v0')
    a(f's_and_b32 s{sW}, s{sW8}, 3')
    a(f's_lshr_b32 s{sWH}, s{sW8}, 2')
    a(f's_mov_b32 s{sID}, s2')
    a('s_waitcnt lgkmcnt(0)')
    a(f's_add_u32 s4, s{P_WS}, {EP_OFF}')
    a(f's_addc_u32 s5, s{P_WS + 1}, 0')
    a(f's_load_dword s{sTAG}, s[4:5], 0')
    srd(a, sX, P_X, S_ * D_ * 2)
    srd(a, sWS, P_WS, WS_USED)
    srd(a, sW2, P_W2, F_ * S_ * 2)
    stamp(a, 'start')
    if 'noticket' not in EXP:
        srd(a, sAUX, P_DBG, 256)
        a(f'v_mov_b32 v8, {L_CNT + 16}')
        a(f's_cmp_lg_u32 s{sW8}, 0')
        a('s_cbranch_scc1 L_ticket_done')
        a('s_getreg_b32 s4, hwreg(HW_REG_XCC_ID)')
        a('s_mov_b32 s6, 0')
        a('s_mov_b64 exec, 1')
        a.label('L_ticket')
        a('s_and_b32 s4, s4, 7')
        a('s_lshl_b32 s5, s4, 5')
        a('v_mov_b32 v9, s5')
        a('v_mov_b32 v10, 1')
        a(f'buffer_atomic_add v10, v9, {S(sAUX, 4)}, 0 offen sc0 sc1')
        a.wait_vm0()
        a('v_readfirstlane_b32 s5, v10')
        a('s_cmp_lt_u32 s5, 32')
        a('s_cbranch_scc1 L_ticket_ok')
        a('s_add_u32 s4, s4, 1')
        a('s_add_u32 s6, s6, 1')
        a('s_cmp_lt_u32 s6, 8')
        a('s_cbranch_scc1 L_ticket')
        a.label('L_ticket_ok')
        a('s_lshl_b32 s5, s5, 3')
        a('s_add_u32 s5, s5, s4')
        a('v_mov_b32 v9, s5')
        a('ds_write_b32 v8, v9')
        a('s_mov_b64 exec, -1')
        a('s_waitcnt lgkmcnt(0)')
        a.label('L_ticket_done')
        a('s_barrier')
        a('ds_read_b32 v9, v8')
        a('s_waitcnt lgkmcnt(0)')
        a('s_barrier')
        a(f'v_readfirstlane_b32 s{sID}, v9')
        a(f's_and_b32 s{sID}, s{sID}, 255')
        a.reset_counters()
        stamp(a, 'tick')
    if os.environ.get('UPRIO', '1') != '0':
        a(f's_cmp_eq_u32 s{sWH}, 0')
        a('s_cbranch_scc1 L_prio')
        a(f's_setprio {os.environ.get("UPRIO", "1")}')
        a.label('L_prio')
    a(f's_cmp_ge_u32 s{sID}, 128')
    a('s_cbranch_scc1 L_not_a')
    role_a(a)
    a.label('L_not_a')
    a.reset_counters()
    a(f's_and_b32 s4, s{sID}, 7')
    a(f's_lshr_b32 s5, s{sID}, 3')
    a('s_sub_u32 s5, s5, 16')
    a('s_cmp_ge_u32 s5, 14')
    a('s_cbranch_scc1 L_role_r')
    a('s_and_b32 s7, s4, 1')
    a('s_add_u32 s7, s7, 13')
    a('s_cmp_ge_u32 s5, s7')
    a('s_cbranch_scc1 L_role_wot')
    a('s_mul_i32 s6, s4, 27')
    a('s_lshr_b32 s6, s6, 1')
    a('s_add_u32 s6, s6, s5')
    role_b(a)
    a.label('L_role_r')
    a.reset_counters()
    a(f's_sub_u32 s6, s{sID}, 240')
    role_r(a)
    a.label('L_role_wot')
    a.reset_counters()
    a('s_lshr_b32 s6, s4, 1')
    role_wot(a)
    a.label('L_join')
    final_gemm(a)
    a.label('L_end')
    a('s_endpgm')
    if STAMPS:
        a.raw('; STAMPS ' + ' '.join(STAMP_NAMES))
    a.raw('.section .rodata,"a"')
    a.raw(f""".p2align 6
.amdhsa_kernel {K}
  .amdhsa_next_free_vgpr 256
  .amdhsa_next_free_sgpr 102
  .amdhsa_accum_offset 256
  .amdhsa_group_segment_fixed_size 0
  .amdhsa_kernarg_size 96
  .amdhsa_user_sgpr_count 2
  .amdhsa_user_sgpr_kernarg_segment_ptr 1
  .amdhsa_system_sgpr_workgroup_id_x 1
.end_amdhsa_kernel""")
    sys.stderr.write(f'maxv={a.maxv} maxa={a.maxa} maxs={a.maxs} nops={a.nops} lines={len(a.out)}\n')
    return a.text()


if __name__ == '__main__':
    out = sys.argv[1] if len(sys.argv) > 1 else os.path.join(os.path.dirname(__file__), '..', 'cdna_kernels', NAME + '.s')
    open(out, 'w').write(build())
```

```python
import sys, struct, os
sys.path.insert(0, os.path.dirname(__file__))
from asmdsl import Asm, Rec, V, A, S

NAME = 'parallel_sum__linear_kernel_hedgehog__mixer_token_mlp__prompt'
S_, D_, F_ = 2048, 640, 1728

HF_OFF = 0
HF_SZ = 8 * 64 * 5 * 1024
GF_OFF = HF_OFF + HF_SZ
GF_SZ = 8 * 74 * 5 * 1024
OF_OFF = GF_OFF + GF_SZ
OF_SZ = 32 * 20 * 4 * 1024
XF_OFF = OF_OFF + OF_SZ
XF_SZ = 128 * 20480
WF_OFF = XF_OFF + XF_SZ
WF_SZ = 480 * 5120 + 4096
KV_OFF = WF_OFF + WF_SZ
KV_SZ = 32 * 32 * 6144
KB_OFF = KV_OFF + KV_SZ + 4096
KB_SZ = 32 * 2048
FL_OFF = KB_OFF + KB_SZ + 4096
FSH = int(os.environ.get('FSH', '7'))
FH_OFF = FL_OFF
FK_OFF = FH_OFF + (1024 << FSH)
FR_OFF = FK_OFF + (1024 << FSH)
FG_OFF = FR_OFF + (128 << FSH)
FO_OFF = FG_OFF + (1024 << FSH)
FW_OFF = FO_OFF + (1024 << FSH)
FU_OFF = FW_OFF + (128 << FSH)
EP_OFF = FU_OFF + (512 << FSH)
WS_USED = EP_OFF + 512
STAMP_OFF = WS_USED
WS_USED += 512 * 256
STAMPS = bool(int(os.environ.get('STAMPS', '0')))
EXP = os.environ.get('EXP', '').split(',') + [e for e in ['map4', 'noticket', 'notlb', 'g2map8', 'nopf2', 'pfa', 'pf2now', 'fewpoll'] if e not in os.environ.get('OFF', '').split(',')]
OOB = 0x40000000

P_X, P_WQKV, P_WPHI, P_WO, P_BX, P_W1, P_B1, P_W2, P_B2, P_OUT, P_DBG, P_WS = range(16, 40, 2)
LOG2E = 1.4426950408889634

sW = 3
sW8, sWH = 90, 91
sWS, sX, sWQ, sW1, sW2, sAUX, sOUT = 40, 44, 48, 52, 56, 60, 64
sHG, sRB, sID, sROT, sKS, sT, sM0B, sTAG = 68, 69, 70, 71, 72, 73, 74, 75
sL, sNL = 76, 78
sBDB, sBCB, sFS, sGM0, sSPIN, sLIM = 80, 81, 82, 83, 84, 85
vL, vG, vI, vR, vC = 1, 2, 3, 4, 5
vTOK, vGR = 6, 7
vFS = 42
DB = 64
XN = lambda s: DB + 8 * s
UP = lambda k: DB + 8 * k + 4

LDS_BYTES = 163840
A_SLOTS = 4
L_WQ = 0
L_RING = 102400
L_ZERO = 122880
L_WPHI = 126976
L_CNT = 131072
B_P = 10
G2_P = 5
ILV = os.environ.get('ILV', 'burst')


def kb_pos(f, t):
    if f < 32:
        return (f >> 4) * 512 + (t * 16 + (f & 15)) * 8 if t < 4 else 1024 + ((f >> 4) * 32 + (t - 4) * 16 + (f & 15)) * 8
    return 1536 + (t * 8 + f - 32) * 8


def fbits(x):
    return '0x%08x' % struct.unpack('<I', struct.pack('<f', x))[0]


def srd(a, dst, ptr, nbytes):
    a(f's_mov_b32 s{dst}, s{ptr}')
    a(f's_and_b32 s{dst + 1}, s{ptr + 1}, 0xffff')
    a(f's_mov_b32 s{dst + 2}, {nbytes}')
    a(f's_mov_b32 s{dst + 3}, 0x20000')


STAMP_NAMES = []
vST = 41


def stamp(a, name):
    if not STAMPS:
        return
    name = str(name)
    if name not in STAMP_NAMES:
        STAMP_NAMES.append(name)
    idx = STAMP_NAMES.index(name)
    a('s_memrealtime s[98:99]')
    a.wait_lg0()
    if idx == 0:
        a(f'v_mov_b32 v{vST}, 0')
        a('s_getreg_b32 s97, hwreg(HW_REG_HW_ID)')
        a(f'v_writelane_b32 v{vST}, s97, 63')
    a(f'v_writelane_b32 v{vST}, s98, {idx}')


def stamp_flush(a, n):
    if not STAMPS:
        return
    a.wait_vm0()
    stamp(a, n)
    lab = a.newlabel('st')
    a(f's_cmp_lg_u32 s{sW}, 0')
    a(f's_cbranch_scc1 {lab}')
    a(f's_lshl_b32 s4, s{sWH}, 8')
    a(f's_add_u32 s4, s4, s{sID}')
    a('s_lshl_b32 s4, s4, 8')
    a(f's_add_u32 s4, s4, {STAMP_OFF}')
    a(f'v_lshl_add_u32 v8, v{vL}, 2, s4')
    a(f'buffer_store_dword v{vST}, v8, {S(sWS, 4)}, 0 offen')
    if 'dbg1' in EXP:
        srd(a, sAUX, P_DBG, 256)
        for wg, base, sel in ((136, 0, 'start,prep,go,B_0,Bend,pub,gok,G2_0,Gend,end'), (8, 10, 'start,x,prep,go,aend,G2_9')):
            l2 = a.newlabel('dbg')
            a(f's_lshl_b32 s4, s{sWH}, 8')
            a(f's_add_u32 s4, s4, s{sID}')
            a(f's_cmp_lg_u32 s4, {wg}')
            a(f's_cbranch_scc1 {l2}')
            for k, nm in enumerate(sel.split(',')):
                if nm not in STAMP_NAMES:
                    STAMP_NAMES.append(nm)
                a(f'v_readlane_b32 s4, v{vST}, {STAMP_NAMES.index(nm)}')
                a('v_mov_b32 v9, s4')
                a('v_mov_b32 v8, 0')
                a(f'buffer_store_dword v9, v8, {S(sAUX, 4)}, 0 offen offset:{4 * (base + k)}')
            a.label(l2)
    a.label(lab)


def reduce_g(a, r, t):
    a(f'v_mov_b32 v{t}, v{r}')
    a(f'v_permlane32_swap_b32 v{r}, v{t}')
    a(f'v_add_f32 v{r}, v{r}, v{t}')
    a(f'v_mov_b32 v{t}, v{r}')
    a(f'v_permlane16_swap_b32 v{r}, v{t}')
    a(f'v_add_f32 v{r}, v{r}, v{t}')


def dma160_voffs(a, dst, stride, permute, tmp):
    t0, t2, t3 = tmp, tmp + 1, tmp + 2
    for q in range(5):
        d = dst + q
        a(f'v_add_u32 v{t0}, {q * 64}, v{vL}')
        a(f'v_mul_u32_u24 v{t2}, 6554, v{t0}')
        a(f'v_lshrrev_b32 v{t2}, 16, v{t2}')
        a(f'v_mul_u32_u24 v{t3}, 10, v{t2}')
        a(f'v_sub_u32 v{t0}, v{t0}, v{t3}')
        if permute:
            a(f'v_bfe_u32 v{t3}, v{t2}, 2, 2')
            a(f'v_lshlrev_b32 v{t3}, 3, v{t3}')
            a(f'v_and_b32 v{d}, 3, v{t2}')
            a(f'v_add_u32 v{t3}, v{t3}, v{d}')
            a(f'v_lshrrev_b32 v{t2}, 4, v{t2}')
            a(f'v_lshl_add_u32 v{t2}, v{t2}, 2, v{t3}')
        a(f'v_mul_u32_u24 v{t2}, {stride}, v{t2}')
        a(f'v_lshl_add_u32 v{d}, v{t0}, 4, v{t2}')
        if 0 < q < 4:
            a(f'v_subrev_u32 v{d}, {q * 1024}, v{d}')


def dma160(a, vo, ssrd, soff, m0_s, m0_add, nt=''):
    a(f's_add_u32 m0, s{m0_s}, {m0_add}')
    for q in range(4):
        off = f' offset:{q * 1024}' if q else ''
        a(f'buffer_load_dwordx4 v{vo + q}, {S(ssrd, 4)}, s{soff} offen{off}{nt} lds')
    a(f's_add_u32 m0, s{m0_s}, {m0_add + 4096}')
    return a(f'buffer_load_dwordx4 v{vo + 4}, {S(ssrd, 4)}, s{soff} offen{nt} lds')


class Hooks:
    def __init__(self, items=()):
        self.items = list(items)

    def run(self, n=1):
        for _ in range(n):
            if self.items:
                self.items.pop(0)()

    def flush(self):
        self.run(len(self.items))


def softmax_pm(a, P, PH, EP, EN, tmp):
    p = [P[k // 4] + k % 4 for k in range(20)]
    ep = [EP[k // 4] + k % 4 for k in range(20)]
    en = [EN[k // 4] + k % 4 for k in range(20)]
    mx, mn, sp, sn = tmp, tmp + 2, tmp + 4, tmp + 6
    a(f'v_max3_f32 v{mx}, v{p[0]}, v{p[1]}, v{p[2]}')
    a(f'v_min3_f32 v{mn}, v{p[0]}, v{p[1]}, v{p[2]}')
    for k in range(3, 19, 2):
        a(f'v_max3_f32 v{mx}, v{mx}, v{p[k]}, v{p[k + 1]}')
        a(f'v_min3_f32 v{mn}, v{mn}, v{p[k]}, v{p[k + 1]}')
    a(f'v_max_f32 v{mx}, v{mx}, v{p[19]}')
    a(f'v_min_f32 v{mn}, v{mn}, v{p[19]}')
    a(f'v_mul_f32 v{mx}, s{sNL}, v{mx}')
    a(f'v_mul_f32 v{mn}, s{sL}, v{mn}')
    for k in range(0, 20, 2):
        a(f'v_pk_fma_f32 {V(ep[k], 2)}, {V(p[k], 2)}, {S(sL, 2)}, {V(mx, 2)} op_sel_hi:[1,0,0]')
        a(f'v_pk_fma_f32 {V(en[k], 2)}, {V(p[k], 2)}, {S(sNL, 2)}, {V(mn, 2)} op_sel_hi:[1,0,0]')
    for k in range(20):
        a(f'v_exp_f32 v{ep[k]}, v{ep[k]}')
        a(f'v_exp_f32 v{en[k]}, v{en[k]}')
    a(f'v_pk_add_f32 {V(sp, 2)}, {V(ep[0], 2)}, {V(ep[2], 2)}')
    a(f'v_pk_add_f32 {V(sn, 2)}, {V(en[0], 2)}, {V(en[2], 2)}')
    for k in range(4, 20, 2):
        a(f'v_pk_add_f32 {V(sp, 2)}, {V(sp, 2)}, {V(ep[k], 2)}')
        a(f'v_pk_add_f32 {V(sn, 2)}, {V(sn, 2)}, {V(en[k], 2)}')
    a(f'v_add_f32 v{sp}, v{sp}, v{sp + 1}')
    a(f'v_add_f32 v{sn}, v{sn}, v{sn + 1}')
    a(f'v_rcp_f32 v{sp}, v{sp}')
    a(f'v_rcp_f32 v{sn}, v{sn}')
    for k in range(0, 20, 2):
        a(f'v_pk_mul_f32 {V(ep[k], 2)}, {V(ep[k], 2)}, {V(sp, 2)} op_sel_hi:[1,0]')
        a(f'v_pk_mul_f32 {V(en[k], 2)}, {V(en[k], 2)}, {V(sn, 2)} op_sel_hi:[1,0]')
    allv = ep + en
    for k in range(20):
        a(f'v_cvt_pk_bf16_f32 v{PH[k // 4] + k % 4}, v{allv[2 * k]}, v{allv[2 * k + 1]}')


def flag_set(a, s_off):
    a(f'v_lshl_add_u32 v{vFS}, v{vL}, 2, s{s_off}')
    a(f'v_mov_b32 v{vFS + 1}, s{sTAG}')
    a(f's_mov_b64 exec, {hex((1 << (1 << (FSH - 2))) - 1)}')
    a(f'buffer_store_dword v{vFS + 1}, v{vFS}, {S(sWS, 4)}, 0 offen sc1')
    a('s_mov_b64 exec, -1')


def flag_issue(a, vaddr, vdst):
    return a(f'buffer_load_dword v{vdst}, v{vaddr}, {S(sWS, 4)}, 0 offen sc1')


def flag_check(a, tok, vaddr, vdst, sleep=2):
    ok = a.newlabel('ok')
    lp = a.newlabel('poll')
    a.wait(tok)
    a(f'v_cmp_ne_u32 vcc, s{sTAG}, v{vdst}')
    a(f's_cbranch_vccz {ok}')
    a(f's_mov_b32 s{sSPIN}, 0')
    a.label(lp)
    a(f's_sleep {sleep}')
    a.raw(f'\tbuffer_load_dword v{vdst}, v{vaddr}, {S(sWS, 4)}, 0 offen sc1')
    a('s_waitcnt vmcnt(0)')
    a(f'v_cmp_ne_u32 vcc, s{sTAG}, v{vdst}')
    a(f's_cbranch_vccz {ok}')
    a(f's_add_u32 s{sSPIN}, s{sSPIN}, 1')
    a(f's_cmp_lt_u32 s{sSPIN}, 0x8000')
    a(f's_cbranch_scc1 {lp}')
    a.label(ok)


def featmap(a, ACC5, PK, WPF, P5, EP5, EN5, tmp):
    for k in range(10):
        t, j = divmod(2 * k, 4)
        a(f'v_cvt_pk_bf16_f32 v{PK[k // 4] + k % 4}, v{ACC5[t] + j}, v{ACC5[t] + j + 1}')
    for ks in range(3):
        for t in range(5):
            d = V(P5[t], 4)
            if ks < 2:
                a(f'v_mfma_f32_16x16x32_bf16 {d}, {V(WPF(t, ks), 4)}, {V(PK[ks], 4)}, {"0" if ks == 0 else d}')
            else:
                a(f'v_mfma_f32_16x16x16_bf16 {d}, {V(WPF(t, ks), 2)}, {V(PK[ks], 2)}, {d}')
    softmax_pm(a, P5, P5, EP5, EN5, tmp)


def xcd_tile(a):
    a(f's_and_b32 s4, s{sID}, 7')
    a(f's_lshr_b32 s5, s{sID}, 3')
    if 'g2map8' in EXP:
        a(f's_and_b32 s{sHG}, s5, 7')
        a('s_lshl_b32 s6, s4, 2')
        a('s_lshr_b32 s7, s5, 3')
        a(f's_add_u32 s{sRB}, s6, s7')
    else:
        a('s_and_b32 s6, s4, 1')
        a('s_lshl_b32 s6, s6, 2')
        a('s_and_b32 s7, s5, 3')
        a(f's_add_u32 s{sHG}, s6, s7')
        a('s_lshr_b32 s6, s4, 1')
        a('s_lshl_b32 s6, s6, 3')
        a('s_lshr_b32 s7, s5, 2')
        a(f's_add_u32 s{sRB}, s6, s7')
    a(f's_lshl_b32 s4, s{sRB}, 6')
    a(f's_lshl_b32 s5, s{sW}, 4')
    a('s_add_u32 s4, s4, s5')
    a(f'v_add_u32 v{vTOK}, s4, v{vI}')


def ln_scales(a, vS, vRS, vNB):
    a(f'v_mul_f32 v{vS}, {fbits(1.0 / 640)}, v{vS}')
    a(f'v_mul_f32 v{vS + 2}, {fbits(1.0 / 640)}, v{vS + 2}')
    a(f'v_fma_f32 v{vS + 2}, -v{vS}, v{vS}, v{vS + 2}')
    a(f'v_max_f32 v{vS + 2}, 0, v{vS + 2}')
    a(f'v_add_f32 v{vS + 1}, {fbits(1e-5)}, v{vS + 2}')
    a(f'v_rsq_f32 v{vRS}, v{vS + 1}')
    a(f'v_mul_f32 v{vNB}, v{vS}, v{vRS}')
    a(f'v_sub_f32 v{vNB}, 0, v{vNB}')


vD, vF, vT, vT2, vFL, vFD, vOF, vXA, vBA = 8, 12, 14, 18, 22, 23, 28, 32, 33
ACC = lambda t, nt: 44 + (nt * 5 + t) * 4
TF = lambda j, nt: 124 + (j % 2) * 16 + 4 * nt
POOL = [156 + 4 * k for k in range(25)]


class GGemm:
    def __init__(self, a, kind):
        self.a, self.kind = a, kind
        if kind == 'B':
            self.stride, self.srdm, self.n, self.fr_off, self.fr_steps = F_ * 2, sW1, 16, HF_OFF, 64
            self.sdb, self.scb, self.ntot, self.P = sBDB, sBCB, 16, B_P
        else:
            self.stride, self.srdm, self.n, self.fr_off, self.fr_steps = S_ * 2, sW2, 14, GF_OFF, 74
            self.sdb, self.scb, self.ntot, self.P = sHG, sRB, 19, G2_P
        self.dtok, self.ftok, self.ttok = {}, {}, {}
        self.free = list(POOL)
        self.reg = {}
        self.pending = []
        order = [(j, 'a') for j in range(self.n)]
        if kind == 'G2':
            order += [(j, k) for j in range(14, 19) for k in 'ab']
        for j, k in order:
            self.pending += [(j, k, x) for x in range(5 if k == 'a' else 4)]
        self.gate = lambda: None
        self.gate2 = lambda: None
        self.nq = 2 if kind == 'B' else 4

    def setup(self):
        a, st = self.a, self.stride
        a(f'v_lshrrev_b32 v24, 3, v{vL}')
        if self.kind == 'B':
            a('v_lshrrev_b32 v25, 2, v24')
            a('v_and_b32 v24, 3, v24')
            a('v_lshl_add_u32 v24, v25, 3, v24')
        a(f'v_mul_u32_u24 v24, {st}, v24')
        a(f'v_and_b32 v25, 7, v{vL}')
        a(f'v_lshlrev_b32 v26, 1, v{vG}')
        a('v_xor_b32 v25, v25, v26')
        a('v_lshl_add_u32 v24, v25, 4, v24')
        a(f's_lshl_b32 s4, s{self.scb}, 7')
        a(f's_mul_i32 s5, s{sW}, {self.n * 32 * st}')
        a('s_add_u32 s5, s5, s4')
        if self.kind == 'B':
            a(f's_mul_i32 s6, s{sWH}, {4 * st}')
            a('s_add_u32 s5, s5, s6')
            a(f's_lshl_b32 s6, s{sWH}, 11')
            a(f's_add_u32 s{sM0B}, s{sGM0}, s6')
        else:
            a(f's_mov_b32 s{sM0B}, s{sGM0}')
        for q in range(self.nq):
            row = 8 * q if self.kind != 'B' else q * 16
            a(f's_add_u32 s6, s5, {row * st - 1024 * q}')
            a(f'v_add_u32 v{vD + q}, s6, v24')
        a(f's_mul_i32 s4, s{self.sdb}, {self.fr_steps}')
        a(f's_mul_i32 s5, s{sW}, {self.n}')
        a('s_add_u32 s4, s4, s5')
        a('s_mul_i32 s4, s4, 5120')
        a(f's_add_u32 s{sFS}, s4, {self.fr_off}')
        if self.kind == 'B':
            a(f's_lshl_b32 s4, s{sW}, {6 + FSH}')
            a(f's_add_u32 s4, s4, {FH_OFF}')
            a(f'v_lshl_add_u32 v{vFL}, v{vL}, {FSH}, s4')
        else:
            a(f's_lshl_b32 s4, s{self.sdb}, {7 + FSH}')
            a(f's_mul_i32 s5, s{sW}, {28 << FSH}')
            a('s_add_u32 s4, s4, s5')
            a(f's_add_u32 s4, s4, {FG_OFF}')
            a(f's_mul_i32 s5, s{self.sdb}, {74 * 5120}')
            a(f's_add_u32 s{sLIM}, s5, {GF_OFF + 53 * 5120}')
            a(f's_cmp_eq_u32 s{sW}, 3')
            a('s_cselect_b32 s5, 23, 27')
            a(f'v_min_u32 v24, s5, v{vL}')
            a(f'v_lshl_add_u32 v{vFL}, v24, {FSH}, s4')

    def dma_items(self, j):
        a = self.a

        def one(q):
            def f():
                if q == 0:
                    a(f's_add_u32 m0, s{sM0B}, {(j % self.P) * 16384}')
                off = f' offset:{q * 1024}' if q else ''
                nt = ' nt' if ('ntb' in EXP and self.kind == 'B' and j < self.P) else ''
                self.dtok[j] = a(f'buffer_load_dwordx4 v{vD + q}, {S(self.srdm, 4)}, 0 offen{off}{nt} lds')
                if not ('hotw' in EXP):
                    a(f'v_add_u32 v{vD + q}, {32 * self.stride}, v{vD + q}')
            return f
        return [one(q) for q in range(self.nq)]

    def frag_items(self, lim=99):
        a = self.a
        out = []
        while self.free and self.pending and len(out) < lim:
            key = self.pending.pop(0)
            r = self.free.pop(0)
            self.reg[key] = r

            def f(key=key, r=r):
                j, kind, x = key
                if key == (self.n, 'a', 0):
                    self.gate()
                if key == (self.n, 'b', 0):
                    self.gate2()
                if kind == 'a' and 'b_nof' in EXP and self.kind == 'B' and j >= 5 and x > 0:
                    pass
                elif kind == 'a':
                    vo, off = (vF, x * 1024) if x < 4 else (vF + 1, 0)
                    offs = f' offset:{off}' if off else ''
                    self.ftok[j] = a(f'buffer_load_dwordx4 {V(r, 4)}, v{vo}, {S(sWS, 4)}, s{sFS} offen{offs} sc1')
                    if x == 4 and 'hotf' not in EXP:
                        a(f's_add_u32 s{sFS}, s{sFS}, 5120')
                        if self.kind == 'G2' and j < 14:
                            a(f's_min_u32 s{sFS}, s{sFS}, s{sLIM}')
                else:
                    if j - self.n == 2:
                        a(f'v_lshlrev_b32 v24, 3, v{vL}')
                        a(f'v_sub_u32 v24, v{vOF + x}, v24')
                        a(f'buffer_load_dwordx2 {V(r, 2)}, v24, {S(sWS, 4)}, s11 offen sc1')
                        self.ftok[j] = a(f'buffer_load_dwordx2 {V(r + 2, 2)}, v24, {S(sWS, 4)}, s11 offen offset:512 sc1')
                    else:
                        self.ftok[j] = a(f'buffer_load_dwordx4 {V(r, 4)}, v{vOF + x}, {S(sWS, 4)}, s11 offen sc1')
                    if x == 3:
                        a('s_add_u32 s11, s11, 4096')
            out.append(f)
        return out

    def tr_items(self, j):
        a = self.a

        def one(nt):
            def f():
                off = (j % self.P) * 16384
                base = vT
                if off >= 65536:
                    if off % 65536 == 0:
                        a(f'v_add_u32 v{vT2 + nt}, {off}, v{vT + nt}')
                    off %= 65536
                    base = vT2
                if 'b_nods' in EXP and self.kind == 'B' and j > 1 and nt > 0:
                    return
                a(f'ds_read_b64_tr_b16 {V(TF(j, nt), 2)}, v{base + nt} offset:{off}')
                self.ttok[j] = a(f'ds_read_b64_tr_b16 {V(TF(j, nt) + 2, 2)}, v{base + nt} offset:{off + 2048}')
            return f
        return [one(nt) for nt in range(4)]

    def mainloop(self, extra):
        a, n = self.a, self.n
        a.wait(self.dtok[0])
        Hooks(self.tr_items(0)).flush()
        for j in range(self.ntot):
            items = []
            if j + 1 < n:
                a.wait(self.dtok[j + 1])
            a.wait(self.ftok[j], self.ttok.get(j))
            if self.kind == 'B' and 'b_nobar' not in EXP and j + 1 < n and (j + self.P < n or j + 1 >= int(os.environ.get('BPRE', '10'))):
                a('s_barrier')
            if j % 3 == 0:
                stamp(a, f'{self.kind}_{j}')
                if STAMPS and j in (3, 9):
                    a('s_memtime s[98:99]')
                    a.wait_lg0()
                    a(f'v_writelane_b32 v{vST}, s98, {56 + (j // 9) + (2 if self.kind == "G2" else 0)}')
            if j + 1 < n:
                items += self.tr_items(j + 1)
            if j + self.P < n:
                items += self.dma_items(j + self.P)
            items += extra(j)
            lim = int(os.environ.get('LIMB' if self.kind == 'B' else 'LIMG', '10'))
            items += self.frag_items(lim if (self.kind == 'B' or j < int(os.environ.get('LIMJ', '9'))) else 10)
            last = j == self.ntot - 1
            if self.kind == 'G2' and j == 16:
                a('s_barrier')
            if last:
                a(f's_mul_i32 s7, s{sWH}, 102400')
                for nt in range(1, 4):
                    a(f's_xor_b32 s4, s{sW}, {nt}')
                    a('s_mul_i32 s4, s4, 15360')
                    a(f's_add_u32 s4, s4, {(nt - 1) * 5120}')
                    a('s_add_u32 s4, s4, s7')
                    a(f'v_add_u32 v{24 + nt}, s4, v{vF}')
                wr = [(nt, t) for nt in (1, 2, 3) for t in range(5)]
            hk = Hooks(items)
            k = 0
            ILV = os.environ.get('ILVB', 'fine') if self.kind == 'B' else os.environ.get('ILVG', 'burst')
            for nt in (1, 2, 3, 0):
                for t in range(5):
                    acc = V(ACC(t, nt), 4)
                    c = '0' if j == 0 else acc
                    fr = V(self.reg[(j, 'a', t)], 4)
                    tf = V(TF(j, nt) if j < n else self.reg[(j, 'b', nt)], 4)
                    if self.kind == 'B':
                        a(f'v_mfma_f32_16x16x32_bf16 {acc}, {tf}, {fr}, {c}')
                    else:
                        a(f'v_mfma_f32_16x16x32_bf16 {acc}, {fr}, {tf}, {c}')
                    k += 1
                    if last and k > 5:
                        wn, wt = wr.pop(0)
                        a(f'ds_write_b128 v{24 + wn}, {V(ACC(wt, wn), 4)} offset:{wt * 1024}')
                    if ILV == 'fine':
                        if k % 4 != 0:
                            hk.run()
                    elif ILV == 'burst':
                        if k <= 4 and j + 1 < n:
                            hk.run()
                    elif ILV == 'two':
                        if k <= 4 and j + 1 < n:
                            hk.run()
                        if k == 10:
                            hk.run(4)
                    elif ILV == 'pre':
                        if k == 1:
                            hk.flush()
            hk.flush()
            self.free += [r for key, r in self.reg.items() if key[0] == j]
            if n - 2 <= j < n:
                self.free += [TF(j, nt) for nt in range(4)]

    def reduce(self):
        a = self.a
        a(f's_mul_i32 s4, s{sW}, 15360')
        a('s_add_u32 s4, s4, s7')
        a(f'v_add_u32 v24, s4, v{vF}')
        a.wait_lg0()
        a('s_barrier')
        rtok = {}
        for nt in range(1, 4):
            for t in range(5):
                rtok[(nt, t)] = a(f'ds_read_b128 {V(ACC(t, nt), 4)}, v24 offset:{(nt - 1) * 5120 + t * 1024}')
        for nt in range(1, 4):
            for t in range(5):
                a.wait(rtok[(nt, t)])
                for h in range(2):
                    d = V(ACC(t, 0) + 2 * h, 2)
                    a(f'v_pk_add_f32 {d}, {d}, {V(ACC(t, nt) + 2 * h, 2)}')


def frag10_addr(a, m, hi_add, step, base_s, vrd, vrd_base, vst):
    a(f's_add_u32 s4, s{sW}, {4 * m}')
    a('s_min_u32 s5, s4, 9')
    a('s_cmp_ge_u32 s5, 5')
    a(f's_cselect_b32 s6, {hi_add}, 0')
    a(f's_mul_i32 s5, s5, {step}')
    a('s_add_u32 s5, s5, s6')
    a(f'v_add_u32 v{vrd}, s5, v{vrd_base}')
    a('s_lshl_b32 s5, s4, 10')
    a(f's_add_u32 s5, s5, s{base_s}')
    a('s_cmp_ge_u32 s4, 10')
    a(f's_cselect_b32 s5, {OOB}, s5')
    a(f'v_lshl_add_u32 v{vst}, v{vL}, 4, s5')


NTP = ' nt' if 'ntp' in EXP else ''
FIRST = int(os.environ.get('FIRST', '25'))
vTH = 40


def g_common(a):
    a(f'v_lshlrev_b32 v{vF}, 4, v{vL}')
    a(f'v_add_u32 v{vF + 1}, 4096, v{vF}')
    a(f's_lshl_b32 s{sGM0}, s{sW}, 12')
    a(f'v_bfe_u32 v25, v{vGR}, 1, 2')
    a(f'v_xor_b32 v25, s{sW}, v25')
    a(f'v_lshlrev_b32 v26, 7, v{vGR}')
    a(f'v_lshl_add_u32 v26, v{vC}, 3, v26')
    a(f'v_add_u32 v26, s{sGM0}, v26')
    for nt in range(4):
        a(f'v_xor_b32 v27, {nt}, v25')
        a(f'v_lshl_add_u32 v{vT + nt}, v27, 5, v26')


def tag_ready(a):
    a('s_waitcnt lgkmcnt(0)')
    a(f's_add_u32 s{sTAG}, s{sTAG}, 1')


def role_a(a):
    a(f's_and_b32 s4, s{sID}, 7')
    a(f's_lshr_b32 s5, s{sID}, 3')
    a('s_and_b32 s6, s4, 1')
    a('s_lshl_b32 s6, s6, 2')
    a('s_and_b32 s7, s5, 3')
    a(f's_add_u32 s{sHG}, s6, s7')
    a('s_lshr_b32 s6, s4, 1')
    a('s_lshl_b32 s6, s6, 2')
    a('s_lshr_b32 s7, s5, 2')
    a('s_add_u32 s6, s6, s7')
    a(f's_mov_b32 s{sRB}, s6')
    a('s_lshl_b32 s6, s6, 3')
    a(f's_add_u32 s15, s6, s{sHG}')
    a('s_lshl_b32 s12, s15, 1')
    a(f's_add_u32 s12, s12, s{sWH}')
    X = 156
    a('s_lshl_b32 s4, s12, 2')
    a(f's_add_u32 s4, s4, s{sW}')
    a('s_mul_i32 s4, s4, 2560')
    a(f'v_mul_u32_u24 v24, 40, v{vL}')
    xt = []
    for k in range(5):
        xt.append(a(f'buffer_load_dwordx2 {V(X + 2 * k, 2)}, v24, {S(sX, 4)}, s4 offen offset:{8 * k}{NTP}'))
    srd(a, sWQ, P_WQKV, D_ * 3 * D_ * 2)
    vLN = 8
    a(f'v_lshlrev_b32 v{vLN}, 4, v{vL}')
    a(f'v_add_u32 v{vLN + 1}, 4096, v{vLN}')
    a(f's_mul_i32 s{sM0B}, s{sW8}, 5120')
    a('s_lshl_b32 s10, s15, 2')
    a(f's_add_u32 s10, s10, s{sW}')
    a('s_mul_i32 s4, s10, 1093')
    a('s_lshr_b32 s4, s4, 16')
    a('s_mul_i32 s5, s4, 60')
    a('s_sub_u32 s5, s10, s5')
    a('s_lshr_b32 s6, s5, 1')
    a('s_and_b32 s7, s5, 1')
    a('s_add_u32 s7, s7, 1')
    a('s_sub_u32 s8, s5, 40')
    a('s_cmp_ge_u32 s5, 40')
    a('s_cselect_b32 s6, s8, s6')
    a('s_cselect_b32 s7, 0, s7')
    a(f's_mul_i32 s6, s6, {32 * 3840}')
    a('s_mul_i32 s7, s7, 1280')
    a('s_mul_i32 s4, s4, 160')
    a('s_add_u32 s6, s6, s7')
    a('s_add_u32 s6, s6, s4')
    a(f's_cmp_eq_u32 s{sWH}, 0')
    a('s_cselect_b32 s10, 480, s10')
    dma160_voffs(a, 12, 3840, True, 18)
    a('s_cmp_ge_u32 s10, 480')
    a(f's_cselect_b32 s7, {OOB}, 0')
    for q in range(5):
        a(f'v_add_u32 v{12 + q}, s7, v{12 + q}')
    utok = dma160(a, 12, sWQ, 6, sM0B, 0, NTP)
    a(f's_mul_i32 s13, s{sWH}, 24576')
    a('s_add_u32 s13, s13, 65536')
    a('s_add_u32 s14, s13, 12288')
    srd(a, sAUX, P_WPHI, 32 * 800)
    a(f's_mul_i32 s6, s{sHG}, 3200')
    a(f's_lshl_b32 s7, s{sW}, 10')
    a('s_add_u32 s6, s6, s7')
    a(f'v_lshl_add_u32 v10, v{vL}, 4, s6')
    a(f's_add_u32 m0, s7, {L_WPHI}')
    a(f'buffer_load_dwordx4 v10, {S(sAUX, 4)}, 0 offen lds')
    for k in range(4):
        a(f'v_mov_b32 v{44 + k}, 0')
    a(f'v_lshlrev_b32 v18, 4, v{vTH}')
    a(f'v_add_u32 v18, {L_ZERO}, v18')
    a('ds_write_b128 v18, v[44:47]')
    a(f'v_mov_b32 v10, {L_CNT}')
    a('v_mov_b32 v11, 0')
    a('ds_write2_b32 v10, v11, v11 offset0:0 offset1:1')
    vONE, vS, vRS, vNB = 34, 36, 168, 170
    a(f'v_mov_b32 v{vONE}, 0x3f803f80')
    for k in range(4):
        a(f'v_mov_b32 v{vS + k}, 0')
    a('s_waitcnt lgkmcnt(0)')
    a(f's_add_u32 s{sTAG}, s{sTAG}, 1')
    def unit_part():
        a(f'v_mul_u32_u24 v29, 160, v{vGR}')
        a(f'v_mul_u32_u24 v24, 40, v{vC}')
        a('v_add_u32 v29, v29, v24')
        a(f'v_add_u32 v29, s{sM0B}, v29')
        a('s_mul_i32 s4, s10, 5120')
        a(f's_add_u32 s4, s4, {WF_OFF}')
        a('s_cmp_ge_u32 s10, 480')
        a(f's_cselect_b32 s4, {OOB}, s4')
        a(f'v_add_u32 v24, s4, v{vLN}')
        a(f'v_add_u32 v25, s4, v{vLN + 1}')
        a(f's_lshl_b32 s5, s10, {FSH}')
        a(f's_add_u32 s5, s5, {FU_OFF}')
        a('s_cmp_ge_u32 s10, 480')
        a(f's_cselect_b32 s10, {OOB}, s5')
        a.wait(utok)
        ut = []
        for t in range(5):
            a(f'ds_read_b64_tr_b16 {V(UP(t), 2)}, v29 offset:{8 * t}')
            ut.append(a(f'ds_read_b64_tr_b16 {V(UP(t) + 2, 2)}, v29 offset:{8 * t + 2560}'))
        for t in range(5):
            a.wait(ut[t])
            vo, off = (24, t * 1024) if t < 4 else (25, 0)
            a(f'buffer_store_dwordx4 {V(UP(t), 4)}, v{vo}, {S(sWS, 4)}, 0 offen offset:{off} sc1')

    if 'unitfirst' in EXP:
        unit_part()
    a.wait(xt[4])
    stamp(a, 'x')
    for k in range(10):
        a(f'v_dot2c_f32_bf16 v{vS + (k & 1)}, v{X + k}, v{vONE}')
        a(f'v_dot2c_f32_bf16 v{vS + 2 + (k & 1)}, v{X + k}, v{X + k}')
    a(f'v_add_f32 v{vS}, v{vS}, v{vS + 1}')
    a(f'v_add_f32 v{vS + 2}, v{vS + 2}, v{vS + 3}')
    for sh in (8, 4, 2, 1):
        for r in (vS, vS + 2):
            a(f'v_add_f32_dpp v{r}, v{r}, v{r} row_ror:{sh} row_mask:0xf bank_mask:0xf')
    for r in (vS, vS + 2):
        a(f'v_mov_b32 v{r + 1}, v{r}')
        a(f'v_permlane16_swap_b32 v{r}, v{r + 1}')
        a(f'v_add_f32 v{r}, v{r}, v{r + 1}')
    ln_scales(a, vS, vRS, vNB)
    a(f'v_mul_f32 v{vS + 1}, v{vRS}, v{vRS}')
    a(f'v_mov_b32 v{vS + 3}, {fbits(1e-5)}')
    a(f'v_fmac_f32 v{vS + 3}, v{vS + 1}, v{vS + 2}')
    a(f'v_rsq_f32 v{vS + 2}, v{vS + 3}')
    U = 172
    for k in range(10):
        a(f'v_lshlrev_b32 v{U + 2 * k}, 16, v{X + k}')
        a(f'v_and_b32 v{U + 2 * k + 1}, 0xffff0000, v{X + k}')
    for k in range(10):
        a(f'v_pk_fma_f32 {V(U + 2 * k, 2)}, {V(U + 2 * k, 2)}, {V(vRS, 2)}, {V(vNB, 2)} op_sel_hi:[1,0,0]')
    XQ = 192
    for k in range(10):
        a(f'v_cvt_pk_bf16_f32 v{XQ + k}, v{U + 2 * k}, v{U + 2 * k + 1}')
    for k in range(10):
        a(f'v_pk_mul_f32 {V(U + 2 * k, 2)}, {V(U + 2 * k, 2)}, {V(vS + 2, 2)} op_sel_hi:[1,0]')
    for k in range(10):
        a(f'v_cvt_pk_bf16_f32 v{X + k}, v{U + 2 * k}, v{U + 2 * k + 1}')
    a(f's_mul_i32 s4, s{sW}, {2 * 1296}')
    a('s_add_u32 s4, s4, s13')
    a(f'v_mul_u32_u24 v24, 40, v{vL}')
    a(f'v_lshrrev_b32 v25, 5, v{vL}')
    a('v_lshl_add_u32 v24, v25, 4, v24')
    a('v_add_u32 v24, s4, v24')
    for k in range(5):
        a(f'ds_write_b64 v24, {V(XQ + 2 * k, 2)} offset:{8 * k}')
    a(f'v_and_b32 v25, 7, v{vTH}')
    a(f'v_lshrrev_b32 v26, 3, v{vTH}')
    a('v_mul_u32_u24 v28, 1296, v25')
    a('v_lshl_add_u32 v28, v26, 4, v28')
    a('v_add_u32 v28, s13, v28')
    a('v_lshlrev_b32 v29, 8, v26')
    a('v_lshl_add_u32 v29, v25, 4, v29')
    a(f's_lshr_b32 s4, s12, 1')
    a('s_mul_i32 s4, s4, 20480')
    a(f's_and_b32 s5, s12, 1')
    a('s_lshl_b32 s5, s5, 7')
    a('s_add_u32 s4, s4, s5')
    a(f's_add_u32 s4, s4, {XF_OFF}')
    a('v_add_u32 v29, s4, v29')
    a('v_add_u32 v30, 8192, v29')
    a(f's_cmp_ge_u32 s{sW}, 2')
    a(f's_cselect_b32 s4, {OOB}, 16384')
    a('v_add_u32 v31, s4, v29')
    a(f's_mul_i32 s4, s{sW}, 2560')
    a('s_add_u32 s4, s4, s14')
    a(f'v_mul_u32_u24 v24, 40, v{vL}')
    a('v_add_u32 v24, s4, v24')
    for k in range(5):
        a(f'ds_write_b64 v24, {V(X + 2 * k, 2)} offset:{8 * k}')
    a(f'v_mul_u32_u24 v24, 1280, v{vR}')
    a(f'v_mul_u32_u24 v25, 160, v{vG}')
    a('v_add_u32 v24, v24, v25')
    a(f'v_mul_u32_u24 v25, 40, v{vC}')
    a('v_add_u32 v24, v24, v25')
    a('v_add_u32 v24, s14, v24')
    a(f'v_mul_u32_u24 v25, {64 * 5120}, v{vG}')
    a(f'v_lshl_add_u32 v25, v{vI}, 4, v25')
    a(f's_lshr_b32 s4, s12, 2')
    a('s_mul_i32 s4, s4, 5120')
    a(f's_and_b32 s5, s12, 3')
    a('s_lshl_b32 s5, s5, 8')
    a('s_add_u32 s4, s4, s5')
    a(f's_add_u32 s8, s4, {HF_OFF}')
    a.wait_lg0()
    a('s_barrier')
    ht = []
    for m in range(3):
        ht.append(a(f'ds_read_b128 {V(XQ + 4 * m, 4)}, v28 offset:{512 * m}'))
    for m in range(3):
        a.wait(ht[m])
        a(f'buffer_store_dwordx4 {V(XQ + 4 * m, 4)}, v{29 + m}, {S(sWS, 4)}, 0 offen sc1')
    ht = []
    for m in range(3):
        a(f's_add_u32 s4, s{sW}, {4 * m}')
        a('s_min_u32 s5, s4, 9')
        a('s_cmp_ge_u32 s5, 5')
        a(f's_cselect_b32 s6, {640 - 40}, 0')
        a(f's_cselect_b32 s7, {4 * 64 * 5120 - 5120}, 0')
        a('s_lshl_b32 s5, s5, 3')
        a('s_add_u32 s5, s5, s6')
        a('v_add_u32 v26, s5, v24')
        a(f'ds_read_b64_tr_b16 {V(U + 4 * m, 2)}, v26')
        ht.append(a(f'ds_read_b64_tr_b16 {V(U + 4 * m + 2, 2)}, v26 offset:{4 * 1280}'))
        a('s_lshl_b32 s5, s4, 10')
        a('s_add_u32 s5, s5, s7')
        a('s_add_u32 s5, s5, s8')
        a('s_cmp_ge_u32 s4, 10')
        a(f's_cselect_b32 s5, {OOB}, s5')
        a(f'v_add_u32 v{34 + m}, s5, v25')
    for m in range(3):
        a.wait(ht[m])
        a(f'buffer_store_dwordx4 {V(U + 4 * m, 4)}, v{34 + m}, {S(sWS, 4)}, 0 offen sc1')
    hst = ('vm', a.vm_issued - 1)
    if 'unitfirst' not in EXP:
        unit_part()
    a(f's_lshl_b32 s4, s{sWH}, 2')
    a(f's_add_u32 s4, s4, {L_CNT}')
    a('v_mov_b32 v10, s4')
    a('v_mov_b32 v11, 1')
    a.wait(hst)
    a('s_mov_b64 exec, 1')
    a('ds_add_rtn_u32 v11, v10, v11')
    a('s_mov_b64 exec, -1')
    a.wait_lg0()
    a('v_readfirstlane_b32 s5, v11')
    a(f's_lshl_b32 s4, s12, {FSH}')
    a(f's_add_u32 s4, s4, {FH_OFF}')
    a('s_cmp_lg_u32 s5, 3')
    a('s_cbranch_scc1 L_nofh')
    flag_set(a, 4)
    a.label('L_nofh')
    a.wait_vm0()
    flag_set(a, 10)
    stamp(a, 'prep')
    a(f's_mov_b32 s{sL}, {fbits(LOG2E)}')
    a(f's_mov_b32 s{sL + 1}, {fbits(LOG2E)}')
    a(f's_mov_b32 s{sNL}, {fbits(-LOG2E)}')
    a(f's_mov_b32 s{sNL + 1}, {fbits(-LOG2E)}')
    a(f's_mul_i32 s10, s{sHG}, 60')
    a(f's_lshl_b32 s4, s10, {FSH}')
    a(f's_add_u32 s4, s4, {FU_OFF}')
    if 'fewpoll' in EXP:
        a(f'v_min_u32 v20, 14, v{vI}')
        a(f'v_lshl_add_u32 v20, v20, 2, s{sW}')
        a(f'v_lshl_add_u32 v20, v20, {FSH}, s4')
    else:
        a(f'v_lshl_add_u32 v20, v{vL}, {FSH}, s4')
    a(f's_lshl_b32 s11, s{sRB}, 2')
    a(f's_add_u32 s11, s11, s{sW}')
    a(f's_lshl_b32 s4, s11, {FSH + 2}')
    a(f's_add_u32 s4, s4, {FH_OFF}')
    a(f'v_lshl_add_u32 v21, v{vC}, {FSH}, s4')
    if 'fewpoll' in EXP:
        a(f's_cmp_lg_u32 s{sWH}, 0')
        a('s_cselect_b64 vcc, -1, 0')
    else:
        a(f'v_cmp_gt_u32 vcc, 60, v{vL}')
    a('v_cndmask_b32 v20, v21, v20, vcc')
    a(f's_add_u32 s10, s10, s{sW}')
    a('s_mul_i32 s10, s10, 5120')
    a(f's_add_u32 s10, s10, {WF_OFF}')
    a(f's_add_u32 s9, s10, {40 * 5120}')
    a(f's_mul_i32 s{sM0B}, s{sW}, 5120')
    a('s_mul_i32 s11, s11, 40960')
    a(f's_add_u32 s11, s11, {XF_OFF}')
    a(f'v_add_u32 v10, 20480, v{vLN}')
    a(f'v_add_u32 v26, {L_RING}, v{vLN}')
    a(f'v_add_u32 v27, 61440, v{vLN}')

    def wphi_frags(WPF, wbase, zbase):
        a(f'v_mul_u32_u24 v22, 800, v{vG}')
        a(f'v_mul_u32_u24 v23, 40, v{vR}')
        a('v_add_u32 v22, v22, v23')
        a(f'v_add_u32 v22, {wbase}, v22')
        a(f'v_mov_b32 v23, {zbase}')
        a(f'v_cmp_eq_u32 vcc, v{vG}, v{vC}')
        a('v_cndmask_b32 v22, v23, v22, vcc')
        for t in range(5):
            for d4 in range(5):
                a(f'ds_read_b64_tr_b16 {V(WPF(t, d4 // 2) + 2 * (d4 % 2), 2)}, v22 offset:{4 * d4 * 40 + 8 * t}')

    Q = lambda k: 48 + 4 * k
    WPF = lambda t, ks: Q(2 * t + ks) if ks < 2 else Q(10 + t // 2) + 2 * (t % 2)
    a('s_barrier')
    wphi_frags(WPF, L_WPHI, L_ZERO)
    a.wait_lg0()
    a('s_barrier')
    flag_check(a, flag_issue(a, 20, 21), 20, 21)
    stamp(a, 'go')

    def xload(dst, ks, z):
        off = f' offset:{(ks % 4) * 1024}' if ks % 4 else ''
        t = a(f'buffer_load_dwordx4 {V(dst, 4)}, v{vLN if z == 0 else 10}, {S(sWS, 4)}, s11 offen{off} sc1')
        if ks % 4 == 3 and z == 1:
            a('s_add_u32 s11, s11, 4096')
        return t

    a(f's_cmp_lg_u32 s{sWH}, 0')
    a('s_cbranch_scc1 L_a_upper')
    at_split = a.save()
    a('s_setprio 2')
    AC = lambda k, z: Q(13 + 2 * k + z)
    XR = lambda ks, z: Q(33 + (ks % 6) * 2 + z)
    FW = lambda n: Q(45 + n % 7)
    xtok = {}
    for ks in range(5):
        for z in range(2):
            xtok[ks] = xload(XR(ks, z), ks, z)
    a('s_barrier')
    stamp(a, 'a0')
    WIN, NF = 6, 200
    ftok = {}

    def read_frag(n):
        d, r = divmod(n, 20)
        ftok[n] = a(f'ds_read_b128 {V(FW(n), 4)}, v26 offset:{(d % 3) * 20480 + r * 1024}')

    for n in range(WIN):
        read_frag(n)
    for n in range(NF):
        nn = n + WIN
        if nn < NF:
            if nn % 20 == 0:
                a.wait_lg0()
                a('s_barrier')
                if (nn // 20) % 3 == 0:
                    stamp(a, f'a{nn // 20}')
            read_frag(nn)
        ks, k = divmod(n, 10)
        a.wait(ftok[n], xtok[ks])
        for z in range(2):
            c = '0' if ks == 0 else V(AC(k, z), 4)
            a(f'v_mfma_f32_16x16x32_bf16 {V(AC(k, z), 4)}, {V(FW(n), 4)}, {V(XR(ks, z), 4)}, {c}')
        if k in (2, 6) and ks + 5 < 20:
            xtok[ks + 5] = xload(XR(ks + 5, k // 4), ks + 5, k // 4)
    a('s_barrier')
    stamp(a, 'aend')
    vSA, vKA, vKO = 8, 9, 12
    a(f's_lshl_b32 s4, s{sW}, 5')
    a(f'v_lshl_add_u32 v{vSA}, v{vG}, 7, v{vI}')
    a(f'v_add_u32 v{vSA}, s4, v{vSA}')
    a(f'v_mul_u32_u24 v{vSA}, 120, v{vSA}')
    a(f'v_add_u32 v{vSA}, {L_RING}, v{vSA}')
    for z in range(2):
        for t in range(5):
            r = AC(5 + t, z)
            a(f'v_cvt_pk_bf16_f32 v{r}, v{r}, v{r + 1}')
            a(f'v_cvt_pk_bf16_f32 v{r + 1}, v{r + 2}, v{r + 3}')
            a(f'ds_write_b64 v{vSA}, {V(r, 2)} offset:{z * 16 * 120 + 80 + 8 * t}')
    PK = [Q(33), Q(34), Q(35)]
    EN5 = [Q(36 + c) for c in range(5)]
    for z in range(2):
        E5 = [AC(t, z) for t in range(5)]
        P5 = [Q(41 + 5 * z + c) for c in range(5)]
        featmap(a, E5, PK, WPF, P5, E5, EN5, 32)
        for c in range(10):
            a(f'ds_write_b64 v{vSA}, {V(P5[c // 2] + 2 * (c % 2), 2)} offset:{z * 16 * 120 + 8 * c}')
    stamp(a, 'fm')
    a(f's_mul_i32 s4, s{sW}, {128 * 120}')
    a(f's_add_u32 s4, s4, {L_RING}')
    a(f'v_mul_u32_u24 v{vKA}, 120, v{vGR}')
    a(f'v_lshl_add_u32 v{vKA}, v{vC}, 3, v{vKA}')
    a(f'v_add_u32 v{vKA}, s4, v{vKA}')
    a(f's_lshl_b32 s4, s{sHG}, 2')
    a(f's_add_u32 s4, s4, s{sW}')
    a('s_lshl_b32 s4, s4, 4')
    a(f's_add_u32 s13, s4, s{sRB}')
    a('s_mul_i32 s4, s13, 6144')
    a(f's_add_u32 s4, s4, {KV_OFF}')
    a(f'v_lshl_add_u32 v{vKO}, v{vL}, 4, s4')
    a('s_movk_i32 s12, 0x1000')
    a(f'v_mov_b32 v11, {OOB}')
    a(f'v_cmp_gt_u32 vcc, 8, v{vI}')
    a(f'v_cndmask_b32 v{vKO + 1}, v11, v{vKO}, vcc')
    a(f'v_cmp_gt_u32 vcc, 2, v{vG}')
    a(f'v_cndmask_b32 v{vKO + 2}, v11, v{vKO}, vcc')
    a(f'v_cndmask_b32 v{vKO + 3}, v11, v{vKO + 1}, vcc')
    a(f's_lshl_b32 s13, s13, {FSH}')
    a(f's_add_u32 s10, s13, {FK_OFF}')
    a('v_mov_b32 v11, 0x3f803f80')
    a(f'v_cmp_eq_u32 vcc, 1, v{vR}')
    a.wait_lg0()
    a('s_barrier')
    ktok = {}
    OPQ = lambda kk, x: Q(13 + kk * 5 + x)
    KVA = [Q(k) for k in range(6)]

    def kv_read(kk):
        for x in range(5):
            col = 32 * x if x < 3 else 80 + 32 * (x - 3)
            a(f'ds_read_b64_tr_b16 {V(OPQ(kk, x), 2)}, v{vKA} offset:{kk * 32 * 120 + col}')
            ktok[kk] = a(f'ds_read_b64_tr_b16 {V(OPQ(kk, x) + 2, 2)}, v{vKA} offset:{kk * 32 * 120 + 16 * 120 + col}')

    kv_read(0)
    for kk in range(4):
        if kk + 1 < 4:
            kv_read(kk + 1)
        a.wait(ktok[kk])
        for j in range(4):
            a(f'v_cndmask_b32 v{OPQ(kk, 4) + j}, v{OPQ(kk, 4) + j}, v11, vcc')
        for et in range(2):
            for ft in range(3):
                d = V(KVA[ft * 2 + et], 4)
                a(f'v_mfma_f32_16x16x32_bf16 {d}, {V(OPQ(kk, 3 + et), 4)}, {V(OPQ(kk, ft), 4)}, {"0" if kk == 0 else d}')
    for ft in range(3):
        for et in range(2):
            vo = vKO + (1 if ft == 2 else 0) + (2 if et == 1 else 0)
            so = 's12' if ft == 2 else '0'
            a(f'buffer_store_dwordx4 {V(KVA[ft * 2 + et], 4)}, v{vo}, {S(sWS, 4)}, {so} offen offset:{(ft % 2) * 2048 + et * 1024} sc1')
    a.wait_vm0()
    flag_set(a, 10)
    a(f's_mov_b32 s10, {OOB}')
    if 'pfa' in EXP:
        a(f's_lshr_b32 s4, s{sID}, 3')
        a('s_lshl_b32 s4, s4, 2')
        a(f's_add_u32 s4, s4, s{sW}')
        a(f's_mul_i32 s5, s4, {27 * 4096}')
        a(f's_and_b32 s7, s{sID}, 7')
        a('s_lshl_b32 s7, s7, 9')
        a('s_add_u32 s5, s5, s7')
        a(f'v_lshrrev_b32 v24, 2, v{vL}')
        a('v_min_u32 v24, 13, v24')
        a('v_lshlrev_b32 v24, 12, v24')
        a(f'v_lshl_add_u32 v24, v{vC}, 7, v24')
        a('v_add_u32 v24, s5, v24')
        a(f'buffer_load_dword v37, v24, {S(sW2, 4)}, 0 offen')
        a(f'v_add_u32 v24, {13 * 4096}, v24')
        a(f'buffer_load_dword v37, v24, {S(sW2, 4)}, 0 offen')
    a('s_barrier')
    a('s_branch L_join')

    a.label('L_a_upper')
    a.restore(at_split)
    wtok = {}

    def dma5(so, lds):
        a(f's_add_u32 m0, s{sM0B}, {lds}')
        for q in range(4):
            off = f' offset:{q * 1024}' if q else ''
            a(f'buffer_load_dwordx4 v{vLN}, {S(sWS, 4)}, s{so} offen{off} sc1 lds')
        a(f's_add_u32 m0, s{sM0B}, {lds + 4096}')
        t = a(f'buffer_load_dwordx4 v{vLN + 1}, {S(sWS, 4)}, s{so} offen sc1 lds')
        a(f's_add_u32 s{so}, s{so}, 20480')
        return t

    NXR = 12
    XQ_ = lambda ks, z: Q(13 + (ks % NXR) * 2 + z)
    AQ = lambda t, z: Q(37 + 2 * t + z)
    FQ = lambda n: Q(47 + n % 5)
    xtok = {}
    for d in range(3):
        wtok[d] = dma5(10, L_RING + d * 20480)
    for d in range(10):
        a.wait(wtok[d])
        a('s_barrier')
        if 1 <= d and d + 2 < 10:
            wtok[d + 2] = dma5(10, L_RING + ((d + 2) % 3) * 20480)
        if d < 5:
            qtok = dma5(9, L_WQ + d * 20480)
        if 4 <= d < 10:
            for ks in (2 * (d - 4), 2 * (d - 4) + 1):
                for z in range(2):
                    xtok[ks] = xload(XQ_(ks, z), ks, z)
    a.wait(qtok)
    a('s_barrier')
    ftok = {}

    def read_q(n):
        off = n * 1024
        ftok[n] = a(f'ds_read_b128 {V(FQ(n), 4)}, v{vLN if off < 61440 else 27} offset:{off % 61440}')

    QBAR = int(os.environ.get('QBAR', '-1'))
    if QBAR < 0:
        a('s_barrier')
    for n in range(4):
        read_q(n)
    for n in range(100):
        if n + 4 < 100:
            read_q(n + 4)
        ks, t = divmod(n, 5)
        a.wait(ftok[n], xtok[ks])
        for z in range(2):
            c = '0' if ks == 0 else V(AQ(t, z), 4)
            a(f'v_mfma_f32_16x16x32_bf16 {V(AQ(t, z), 4)}, {V(FQ(n), 4)}, {V(XQ_(ks, z), 4)}, {c}')
        if t in (1, 3) and ks >= 1 and ks - 1 + NXR < 20:
            xtok[ks - 1 + NXR] = xload(XQ_(ks - 1 + NXR, t // 2), ks - 1 + NXR, t // 2)
        if n == QBAR:
            a('s_barrier')
    a('s_barrier')
    stamp(a, 'aend')
    PK = [Q(13), Q(14), Q(15)]
    EN5 = [Q(16 + c) for c in range(5)]
    PP = [[Q(21 + 5 * z + c) for c in range(5)] for z in range(2)]
    for z in range(2):
        E5 = [AQ(t, z) for t in range(5)]
        featmap(a, E5, PK, WPF, PP[z], E5, EN5, 32)
    stamp(a, 'fm')
    a('s_setprio 3')
    a(f's_mul_i32 s6, s{sW}, 10240')
    a(f's_add_u32 s6, s6, {L_RING}')
    a(f'v_lshlrev_b32 v31, 11, v{vG}')
    a(f'v_lshl_add_u32 v31, v{vR}, 3, v31')
    a('v_mov_b32 v21, 8192')
    a(f'v_cmp_eq_u32 vcc, v{vG}, v{vC}')
    a('v_cndmask_b32 v31, v21, v31, vcc')
    a('v_add_u32 v31, s6, v31')
    for k in range(4):
        a(f'v_mov_b32 v{44 + k}, 0')
    a(f'v_add_u32 v21, s6, v{vLN}')
    a('ds_write_b128 v21, v[44:47] offset:8192')
    a('ds_write_b128 v21, v[44:47] offset:9216')
    a(f's_lshl_b32 s4, s{sHG}, {4 + FSH}')
    a(f's_add_u32 s4, s4, {FR_OFF}')
    a(f'v_lshl_add_u32 v20, v{vI}, {FSH}, s4')
    a(f'v_lshlrev_b32 v8, 4, v{vL}')
    a('v_add_u32 v9, 4096, v8')
    a(f'v_lshlrev_b32 v10, 3, v{vL}')
    a(f's_lshl_b32 s5, s{sHG}, 13')
    a(f's_add_u32 s5, s5, {KB_OFF}')
    a(f's_lshl_b32 s7, s{sRB}, 1')
    a(f's_lshr_b32 s8, s{sW}, 1')
    a('s_add_u32 s7, s7, s8')
    a(f's_and_b32 s8, s{sW}, 1')
    a('s_lshl_b32 s8, s8, 1')
    a(f's_lshr_b32 s12, s{sHG}, 1')
    a('s_mul_i32 s12, s12, 5')
    a('s_mul_i32 s13, s7, 20')
    a('s_add_u32 s12, s12, s13')
    a('s_lshl_b32 s12, s12, 2')
    a('s_add_u32 s12, s12, s8')
    a('s_lshl_b32 s12, s12, 10')
    a(f's_add_u32 s12, s12, {OF_OFF}')
    a(f's_and_b32 s13, s{sHG}, 1')
    a(f's_mul_i32 s14, s13, {3 * 4096}')
    a('s_add_u32 s14, s14, s12')
    a('s_lshl_b32 s13, s13, 9')
    a('s_add_u32 s12, s12, s13')
    a(f's_add_u32 s12, s12, {2 * 4096}')
    a('s_lshl_b32 s13, s7, 3')
    a(f's_add_u32 s13, s13, s{sHG}')
    a('s_lshl_b32 s13, s13, 2')
    a('s_add_u32 s13, s13, s8')
    a(f's_lshl_b32 s13, s13, {FSH}')
    a(f's_add_u32 s13, s13, {FO_OFF}')
    flag_check(a, flag_issue(a, 20, 21), 20, 21, int(os.environ.get('RSLEEP', '8')))
    stamp(a, 'rok')
    for hh in range(2):
        a(f's_add_u32 m0, s6, {4096 * hh}')
        for q in range(4):
            off = f' offset:{q * 1024}' if q else ''
            a(f'buffer_load_dwordx4 v{8 + hh}, {S(sWS, 4)}, s5 offen{off} sc1 lds')
    a.wait_all()
    OA = [[Q(31 + k) for k in range(6)], [Q(37 + k) for k in range(6)]]
    KF = lambda ks, t: Q((ks % 2) * 6 + t)
    otok = {}

    def o_read(ks):
        for t in range(6):
            a(f'ds_read_b64_tr_b16 {V(KF(ks, t), 2)}, v31 offset:{kb_pos(8 * ks, t)}')
            otok[ks] = a(f'ds_read_b64_tr_b16 {V(KF(ks, t) + 2, 2)}, v31 offset:{kb_pos(8 * ks + 4, t)}')

    o_read(0)
    for ks in range(5):
        if ks + 1 < 5:
            o_read(ks + 1)
        a.wait(otok[ks])
        for z in range(2):
            for t in range(6):
                d = V(OA[z][t], 4)
                a(f'v_mfma_f32_16x16x32_bf16 {d}, {V(KF(ks, t), 4)}, {V(PP[z][ks], 4)}, {"0" if ks == 0 else d}')
    for z in range(2):
        O = OA[z]
        PO = PK if z == 0 else [Q(16), Q(17), Q(18)]
        a(f'v_add_f32 v{O[5]}, {fbits(1e-6)}, v{O[5]}')
        a(f'v_rcp_f32 v{O[5]}, v{O[5]}')
        for t in range(5):
            for h in range(2):
                a(f'v_pk_mul_f32 {V(O[t] + 2 * h, 2)}, {V(O[t] + 2 * h, 2)}, {V(O[5], 2)} op_sel_hi:[1,0]')
        for k in range(10):
            t, j = divmod(2 * k, 4)
            a(f'v_cvt_pk_bf16_f32 v{PO[k // 4] + k % 4}, v{O[t] + j}, v{O[t] + j + 1}')
        off = f' offset:{1024 * z}' if z else ''
        a(f'buffer_store_dwordx4 {V(PO[0], 4)}, v8, {S(sWS, 4)}, s14 offen{off} sc1')
        a(f'buffer_store_dwordx4 {V(PO[1], 4)}, v9, {S(sWS, 4)}, s14 offen{off} sc1')
        a(f'buffer_store_dwordx2 {V(PO[2], 2)}, v10, {S(sWS, 4)}, s12 offen{off} sc1')
    a.wait_vm0()
    flag_set(a, 13)
    a(f's_cmp_lg_u32 s{sID}, 0')
    a('s_cbranch_scc1 L_a_done')
    a(f's_cmp_lg_u32 s{sW}, 3')
    a('s_cbranch_scc1 L_a_done')
    a(f'v_and_b32 v20, 31, v{vL}')
    a('v_min_u32 v20, 26, v20')
    a(f'v_and_b32 v21, 32, v{vL}')
    a('v_add_u32 v20, v20, v21')
    a(f'v_lshlrev_b32 v20, {FSH + 2}, v20')
    for k in range(4):
        a(f'v_add_u32 v22, {FG_OFF + (k * 256 << FSH)}, v20')
        flag_check(a, flag_issue(a, 22, 21), 22, 21, 12)
    a(f'v_lshlrev_b32 v20, {FSH}, v{vL}')
    for base in (FR_OFF, FR_OFF + (64 << FSH)):
        a(f'v_add_u32 v22, {base}, v20')
        flag_check(a, flag_issue(a, 22, 21), 22, 21, 12)
    a(f'v_and_b32 v20, 31, v{vL}')
    a(f'v_lshlrev_b32 v20, {FSH}, v20')
    a(f'v_add_u32 v22, {FW_OFF}, v20')
    flag_check(a, flag_issue(a, 22, 21), 22, 21, 12)
    a(f's_mov_b32 s10, {EP_OFF}')
    flag_set(a, 10)
    a.label('L_a_done')
    stamp_flush(a, 'end')
    a('s_endpgm')


def role_b(a):
    if 'map4' in EXP:
        a(f's_lshr_b32 s{sBCB}, s6, 2')
        a('s_and_b32 s9, s6, 3')
        a('s_lshl_b32 s6, s9, 1')
    else:
        a('s_cmp_ge_u32 s6, 54')
        a('s_cselect_b32 s7, 54, 0')
        a('s_cselect_b32 s8, 4, 0')
        a('s_sub_u32 s6, s6, s7')
        a(f's_lshr_b32 s{sBCB}, s6, 1')
        a('s_and_b32 s9, s6, 1')
        a('s_lshl_b32 s6, s9, 1')
        a('s_add_u32 s6, s6, s8')
    PR = 24 if 'map4' in EXP else 48
    a(f's_add_u32 s{sBDB}, s6, s{sWH}')
    srd(a, sW1, P_W1, S_ * F_ * 2)
    g_common(a)
    gB = GGemm(a, 'B')
    gB.setup()
    BPRE = int(os.environ.get('BPRE', '10'))
    if 'g1lin' in EXP:
        a(f's_lshl_b32 s4, s{sBCB}, 2')
        a('s_add_u32 s4, s4, s9')
        a('s_lshl_b32 s4, s4, 3')
        a(f's_add_u32 s4, s4, s{sW8}')
        a('s_lshl_b32 s4, s4, 13')
        a(f'v_lshl_add_u32 v24, v{vL}, 7, s4')
        a(f'buffer_load_dword v37, v24, {S(sW1, 4)}, 0 offen')
        if 'g1wait' in EXP:
            a.wait_vm0()
    if 'g1first' in EXP:
        a('s_lshl_b32 s4, s9, 1')
        a(f's_add_u32 s4, s4, s{sWH}')
        a(f's_lshl_b32 s5, s{sW}, 9')
        a('s_add_u32 s4, s4, s5')
        a(f's_mul_i32 s4, s4, {F_ * 2}')
        a(f's_lshl_b32 s5, s{sBCB}, 7')
        a('s_add_u32 s4, s4, s5')
        a(f'v_mul_u32_u24 v24, {8 * F_ * 2}, v{vL}')
        a('v_add_u32 v24, s4, v24')
        a(f'buffer_load_dword v37, v24, {S(sW1, 4)}, 0 offen')
    for j in range(BPRE):
        Hooks(gB.dma_items(j)).flush()

    def b_extra(j):
        return []

    a('s_lshl_b32 s4, s9, 1')
    a(f's_add_u32 s4, s4, s{sWH}')
    a(f's_mul_i32 s4, s4, {PR}')
    a(f's_lshl_b32 s5, s{sW}, 9')
    a('s_add_u32 s4, s4, s5')
    a(f's_add_u32 s4, s4, {32 * B_P}')
    a(f's_mul_i32 s4, s4, {F_ * 2}')
    a(f's_lshl_b32 s5, s{sBCB}, 7')
    a('s_add_u32 s4, s4, s5')
    a(f'v_min_u32 v24, {PR - 1}, v{vL}')
    a(f'v_mul_u32_u24 v24, {F_ * 2}, v24')
    a('v_add_u32 v24, s4, v24')
    if 'g1first' not in EXP and 'nog1' not in EXP:
        a(f'buffer_load_dword v37, v24, {S(sW1, 4)}, 0 offen')
    srd(a, sAUX, P_B1, F_ * 2)
    a(f's_lshl_b32 s4, s{sBCB}, 7')
    a(f's_lshl_b32 s5, s{sW}, 5')
    a('s_add_u32 s4, s4, s5')
    a(f'v_lshl_add_u32 v24, v{vG}, 3, s4')
    a(f'buffer_load_dwordx2 v[38:39], v24, {S(sAUX, 4)}, 0 offen')
    tag_ready(a)
    a('s_barrier')
    stamp(a, 'prep')
    a(f's_cmp_lg_u32 s{sWH}, 0')
    a('s_cbranch_scc1 L_b_go')
    flag_check(a, flag_issue(a, vFL, vFD), vFL, vFD, 3)
    a.label('L_b_go')
    a.wait_vm0()
    a('s_barrier')
    stamp(a, 'go')
    Hooks(gB.frag_items(int(os.environ.get('FIRSTB', '25')))).flush()
    for j in range(BPRE, B_P):
        Hooks(gB.dma_items(j)).flush()

    gB.mainloop(b_extra)
    stamp(a, 'Bend')
    gB.reduce()
    R = lambda t, j: ACC(t, 0) + j
    T = lambda t, j: ACC(t, 1) + j
    a('v_lshlrev_b32 v34, 16, v38')
    a('v_and_b32 v35, 0xffff0000, v38')
    a('v_lshlrev_b32 v36, 16, v39')
    a('v_and_b32 v37, 0xffff0000, v39')
    c0 = 0.7978845608028654
    k1 = -2.0 * c0 * LOG2E
    k2 = k1 * 0.044715
    a(f's_mov_b32 s4, {fbits(k2)}')
    a(f's_mov_b32 s5, {fbits(k2)}')
    a(f'v_mov_b32 v24, {fbits(k1)}')
    a('v_mov_b32 v26, 1.0')
    th = [(t, h) for t in range(5) for h in range(2)]
    tj = [(t, j) for t in range(5) for j in range(4)]
    for t, h in th:
        a(f'v_pk_add_f32 {V(R(t, 2 * h), 2)}, {V(R(t, 2 * h), 2)}, {V(34 + 2 * h, 2)}')
    for t, h in th:
        a(f'v_pk_mul_f32 {V(T(t, 2 * h), 2)}, {V(R(t, 2 * h), 2)}, {V(R(t, 2 * h), 2)}')
    for t, h in th:
        a(f'v_pk_fma_f32 {V(T(t, 2 * h), 2)}, {V(T(t, 2 * h), 2)}, s[4:5], v[24:25] op_sel_hi:[1,0,0]')
    for t, h in th:
        a(f'v_pk_mul_f32 {V(T(t, 2 * h), 2)}, {V(T(t, 2 * h), 2)}, {V(R(t, 2 * h), 2)}')
    for t, j in tj:
        a(f'v_exp_f32 v{T(t, j)}, v{T(t, j)}')
    for t, h in th:
        a(f'v_pk_add_f32 {V(T(t, 2 * h), 2)}, {V(T(t, 2 * h), 2)}, v[26:27] op_sel_hi:[1,0]')
    for t, j in tj:
        a(f'v_rcp_f32 v{T(t, j)}, v{T(t, j)}')
    for t, h in th:
        a(f'v_pk_mul_f32 {V(T(t, 2 * h), 2)}, {V(T(t, 2 * h), 2)}, {V(R(t, 2 * h), 2)}')
    a(f's_mul_i32 s4, s{sW8}, 2560')
    a('s_add_u32 s4, s4, 81920')
    a(f'v_lshl_add_u32 v24, v{vL}, 3, s4')
    for t in range(5):
        a(f'v_cvt_pk_bf16_f32 v{R(t, 0)}, v{T(t, 0)}, v{T(t, 1)}')
        a(f'v_cvt_pk_bf16_f32 v{R(t, 1)}, v{T(t, 2)}, v{T(t, 3)}')
        a(f'ds_write_b64 v24, {V(R(t, 0), 2)} offset:{t * 512}')
    a(f's_mul_i32 s4, s{sBDB}, 74')
    a(f's_lshl_b32 s5, s{sBCB}, 1')
    a('s_add_u32 s4, s4, s5')
    a('s_mul_i32 s4, s4, 5120')
    a(f's_add_u32 s15, s4, {GF_OFF}')
    a(f's_mul_i32 s4, s{sWH}, 10240')
    a('s_add_u32 s4, s4, 81920')
    a(f'v_lshl_add_u32 v25, v{vL}, 3, s4')
    a.wait_lg0()
    a('s_barrier')
    gt = []
    for m in range(3):
        frag10_addr(a, m, 2 * 2560 - 5 * 512, 512, 15, 24, 25, 34 + m)
        a(f'ds_read_b64 {V(ACC(m, 2), 2)}, v24')
        gt.append(a(f'ds_read_b64 {V(ACC(m, 2) + 2, 2)}, v24 offset:2560'))
    for m in range(3):
        a.wait(gt[m])
        a(f'buffer_store_dwordx4 {V(ACC(m, 2), 4)}, v{34 + m}, {S(sWS, 4)}, 0 offen sc1')
    a(f's_lshl_b32 s4, s{sBDB}, 5')
    a(f's_add_u32 s4, s4, s{sBCB}')
    a('s_lshl_b32 s4, s4, 2')
    a(f's_add_u32 s4, s4, s{sW}')
    a(f's_lshl_b32 s4, s4, {FSH}')
    a(f's_add_u32 s10, s4, {FG_OFF}')
    a('s_branch L_join')


def role_r(a):
    a('s_lshl_b32 s11, s6, 1')
    a(f's_add_u32 s11, s11, s{sWH}')
    a('s_lshr_b32 s8, s6, 3')
    a('s_lshl_b32 s8, s8, 3')
    a(f's_add_u32 s8, s8, s{sW8}')
    a('s_getpc_b64 s[6:7]')
    a.raw('L_pc:')
    a(f's_sub_u32 s{sAUX}, s6, L_pc - L_start')
    a('s_subb_u32 s7, s7, 0')
    a(f's_and_b32 s{sAUX + 1}, s7, 0xffff')
    a(f's_mov_b32 s{sAUX + 2}, L_end - L_start')
    a(f's_mov_b32 s{sAUX + 3}, 0x20000')
    a('s_lshl_b32 s6, s8, 13')
    a(f'v_lshl_add_u32 v25, v{vL}, 7, s6')
    if 'nocpf' not in EXP:
        a(f'buffer_load_dword v37, v25, {S(sAUX, 4)}, 0 offen')
    if 'notlb' not in EXP:
        a(f's_lshl_b32 s5, s8, 6')
        a(f'v_add_u32 v26, s5, v{vL}')
        a(f'v_mul_u32_u24 v27, {(WS_USED // 1024 + 127) // 128 * 128}, v26')
        a(f'buffer_load_dword v37, v27, {S(sWS, 4)}, 0 offen sc1')
        a('v_lshlrev_b32 v27, 13, v26')
        a(f'buffer_load_dword v37, v27, {S(sW2, 4)}, 0 offen')
        srd(a, sOUT, P_OUT, S_ * D_ * 2)
        a('v_lshlrev_b32 v27, 12, v26')
        a(f'buffer_load_dword v37, v27, {S(sOUT, 4)}, 0 offen sc1')
        srd(a, sAUX, P_B2, S_ * 2)
        a(f'buffer_load_dword v37, v27, {S(sAUX, 4)}, 0 offen')
    if 'wqlin' in EXP:
        srd(a, sWQ, P_WQKV, D_ * 3 * D_ * 2)
        a(f's_sub_u32 s5, s{sID}, 240')
        a('s_lshl_b32 s5, s5, 3')
        a(f's_add_u32 s5, s5, s{sW8}')
        a('s_mul_i32 s5, s5, 24576')
        a(f'v_lshl_add_u32 v26, v{vL}, 7, s5')
        for k in range(3):
            a(f'buffer_load_dword v37, v26, {S(sWQ, 4)}, 0 offen')
            a('v_add_u32 v26, 8192, v26')
    if 'w2lin' in EXP:
        a(f's_sub_u32 s5, s{sID}, 240')
        a('s_lshl_b32 s5, s5, 3')
        a(f's_add_u32 s5, s5, s{sW8}')
        a('s_lshl_b32 s5, s5, 13')
        a(f'v_lshl_add_u32 v38, v{vL}, 7, s5')
    if 'g2map8' in EXP:
        a(f's_mul_i32 s5, s8, {108 * 4096}')
        a(f's_and_b32 s7, s{sID}, 7')
        a('s_lshl_b32 s7, s7, 9')
        a('s_add_u32 s5, s5, s7')
        a(f'v_lshrrev_b32 v24, 2, v{vL}')
        a('v_lshlrev_b32 v24, 12, v24')
        a(f'v_lshl_add_u32 v24, v{vC}, 7, v24')
        a('v_add_u32 v24, s5, v24')
    else:
        a('s_mul_i32 s5, s8, 54')
        a(f's_and_b32 s7, s{sID}, 1')
        a('s_mul_i32 s7, s7, 864')
        a('s_add_u32 s5, s5, s7')
        a('s_lshl_b32 s5, s5, 12')
        a(f's_and_b32 s7, s{sID}, 6')
        a('s_lshl_b32 s7, s7, 9')
        a('s_add_u32 s5, s5, s7')
        a(f'v_lshrrev_b32 v24, 3, v{vL}')
        a(f'v_and_b32 v25, 7, v{vL}')
        a('v_lshlrev_b32 v24, 12, v24')
        a('v_lshl_add_u32 v24, v25, 7, v24')
        a('v_add_u32 v24, s5, v24')
    tag_ready(a)
    a(f'v_mov_b32 v{vFL}, {FH_OFF}')
    if 'pf2now' not in EXP:
        flag_check(a, flag_issue(a, vFL, vFD), vFL, vFD, 16)
    PFA = int(os.environ.get('PFA', '0'))
    a('v_mov_b32 v36, v38' if 'w2lin' in EXP else 'v_mov_b32 v36, v24')
    for k in range(PFA):
        a(f'buffer_load_dword v37, v36, {S(sW2, 4)}, 0 offen')
        a(f'v_add_u32 v36, {(16 if "g2map8" in EXP else 8) * 4096}, v36')
        if k % 2 == 1 and 'pf2fast' not in EXP:
            a.wait_vm0()
    stamp(a, 'prep')
    a('s_setprio 3')
    a(f's_lshl_b32 s4, s11, {4 + FSH}')
    a(f's_add_u32 s4, s4, {FK_OFF}')
    a(f'v_lshl_add_u32 v{vFL}, v{vI}, {FSH}, s4')
    a(f's_lshl_b32 s5, s{sW}, 11')
    a(f'v_lshl_add_u32 v24, v{vL}, 4, s5')
    a(f'v_lshrrev_b32 v25, 5, v{vL}')
    a(f'v_and_b32 v26, 31, v{vL}')
    a('v_lshlrev_b32 v26, 4, v26')
    a('v_lshl_add_u32 v25, v25, 11, v26')
    a('v_add_u32 v25, 1024, v25')
    a(f's_cmp_eq_u32 s{sW}, 2')
    a('s_cselect_b64 vcc, -1, 0')
    a('v_cndmask_b32 v24, v24, v25, vcc')
    a(f'v_lshrrev_b32 v25, 3, v{vL}')
    a(f'v_and_b32 v26, 7, v{vL}')
    a('v_lshlrev_b32 v26, 4, v26')
    a('v_lshl_add_u32 v25, v25, 8, v26')
    a('v_add_u32 v25, 4096, v25')
    a(f's_cmp_eq_u32 s{sW}, 3')
    a('s_cselect_b64 vcc, -1, 0')
    a('v_cndmask_b32 v24, v24, v25, vcc')
    a(f's_mul_i32 s4, s11, {16 * 6144}')
    a(f's_add_u32 s4, s4, {KV_OFF}')
    flag_check(a, flag_issue(a, vFL, vFD), vFL, vFD, int(os.environ.get('KSLEEP', '4')))
    stamp(a, 'hok')
    stok = []
    for rb in range(16):
        stok.append(a(f'buffer_load_dwordx4 {V(128 + 4 * rb, 4)}, v24, {S(sWS, 4)}, s4 offen sc1'))
        a('s_add_u32 s4, s4, 6144')
    for rb in range(1, 16):
        a.wait(stok[rb])
        for h in range(2):
            a(f'v_pk_add_f32 {V(128 + 2 * h, 2)}, {V(128 + 2 * h, 2)}, {V(128 + 4 * rb + 2 * h, 2)}')
    stamp(a, 'rsum')
    a('v_cvt_pk_bf16_f32 v34, v128, v129')
    a('v_cvt_pk_bf16_f32 v35, v130, v131')
    a('s_lshl_b32 s4, s11, 11')
    a(f's_add_u32 s4, s4, {KB_OFF}')
    a(f'v_lshl_add_u32 v24, v{vTH}, 3, s4')
    a(f'buffer_store_dwordx2 v[34:35], v24, {S(sWS, 4)}, 0 offen sc1')
    a('s_lshl_b32 s4, s11, 2')
    a(f's_add_u32 s4, s4, s{sW}')
    a(f's_lshl_b32 s4, s4, {FSH}')
    a(f's_add_u32 s10, s4, {FR_OFF}')
    a.wait_vm0()
    flag_set(a, 10)
    a(f's_mov_b32 s10, {OOB}')
    stamp(a, 'rpub')
    a('s_barrier')
    for k in range(PFA, 0 if 'nopf2' in EXP else 7):
        a(f'buffer_load_dword v37, v36, {S(sW2, 4)}, 0 offen')
        a(f'v_add_u32 v36, {8 * 4096}, v36')
    a('s_branch L_join')


def role_wot(a):
    a('s_lshl_b32 s11, s6, 1')
    a(f's_add_u32 s11, s11, s{sWH}')
    srd(a, sAUX, P_WO, D_ * D_ * 2)
    a(f'v_lshlrev_b32 v{vF}, 4, v{vL}')
    a(f'v_add_u32 v{vF + 1}, 4096, v{vF}')
    tag_ready(a)
    if 'wotlate' in EXP:
        a(f'v_mov_b32 v{vFL}, {FH_OFF}')
        flag_check(a, flag_issue(a, vFL, vFD), vFL, vFD, 16)
    dma160_voffs(a, 34, 1280, False, 24)
    a('s_mul_i32 s4, s11, 160')
    a(f's_mul_i32 s5, s{sW}, {160 * 1280}')
    a('s_add_u32 s7, s4, s5')
    a(f's_mul_i32 s6, s{sW8}, 20480')
    a(f'v_mul_u32_u24 v24, 20, v{vG}')
    a(f'v_add_u32 v24, v24, v{vR}')
    a('v_mul_u32_u24 v24, 160, v24')
    a(f'v_mul_u32_u24 v25, 40, v{vC}')
    a('v_add_u32 v24, v24, v25')
    a('v_add_u32 v24, s6, v24')
    a('s_mul_i32 s4, s11, 74')
    a(f's_mul_i32 s5, s{sW}, 5')
    a('s_add_u32 s4, s4, s5')
    a('s_add_u32 s4, s4, 54')
    a('s_mul_i32 s4, s4, 5120')
    a(f's_add_u32 s4, s4, {GF_OFF}')
    rounds = [[(0, 0, 0), (0, 1, 4), (1, 0, 8), (1, 1, 12), (2, 0, 16)],
              [(2, 1, 16), (3, 0, 0), (3, 1, 4), (4, 0, 8), (4, 1, 12)]]
    for rd in range(2):
        for k in range(3):
            a(f's_add_u32 s8, s7, {(rd * 80 + k * 32) * 1280}')
            dma160(a, 34, sAUX, 8, 6, k * 5120)
        a.wait_vm0()
        for u, hf, row in rounds[rd]:
            for t in range(5):
                a(f'ds_read_b64_tr_b16 {V(156 + (u * 5 + t) * 4 + 2 * hf, 2)}, v24 offset:{row * 160 + 8 * t}')
            a.wait_lg0()
    for u in range(5):
        for t in range(5):
            vo, off = (vF, t * 1024) if t < 4 else (vF + 1, 0)
            a(f'buffer_store_dwordx4 {V(156 + (u * 5 + t) * 4, 4)}, v{vo}, {S(sWS, 4)}, s4 offen offset:{off} sc1')
        a('s_add_u32 s4, s4, 5120')
    a('s_lshl_b32 s4, s11, 2')
    a(f's_add_u32 s4, s4, s{sW}')
    a(f's_lshl_b32 s4, s4, {FSH}')
    a(f's_add_u32 s10, s4, {FW_OFF}')
    a('s_barrier')


def final_gemm(a):
    g2 = GGemm(a, 'G2')
    if 'early_setup' in EXP:
        xcd_tile(a)
        g_common(a)
        g2.setup()
    a.wait_all()
    flag_set(a, 10)
    stamp(a, 'pub')
    a('s_setprio 0')
    a(f's_cmp_lg_u32 s{sWH}, 0')
    a('s_cbranch_scc1 L_fin')
    if 'early_setup' not in EXP:
        xcd_tile(a)
        g_common(a)
        g2.setup()
    for j in range(G2_P):
        Hooks(g2.dma_items(j)).flush()
    srd(a, sOUT, P_OUT, S_ * D_ * 2)
    R = lambda t, j: ACC(t, 0) + j
    T = lambda t, j: ACC(t, 1) + j
    srd(a, sAUX, P_B2, S_ * 2)
    a(f's_lshl_b32 s4, s{sRB}, {5 + FSH}')
    a(f's_lshl_b32 s5, s{sW}, {3 + FSH}')
    a('s_add_u32 s4, s4, s5')
    a(f's_add_u32 s4, s4, {FO_OFF}')
    a(f'v_lshl_add_u32 v34, v{vC}, {FSH + 1}, s4')
    a(f's_lshl_b32 s4, s{sHG}, 2')
    a(f's_add_u32 s4, s4, s{sW}')
    a(f's_lshl_b32 s4, s4, {FSH}')
    a(f's_add_u32 s4, s4, {FW_OFF}')
    a('v_mov_b32 v35, s4')
    a(f'v_cmp_gt_u32 vcc, 63, v{vL}')
    a(f'v_cndmask_b32 v{vFL}, v35, v{vFL}, vcc')
    for nt in range(4):
        a(f's_xor_b32 s4, s{sW}, {nt}')
        a('s_lshl_b32 s4, s4, 10')
        a(f'v_add_u32 v{vOF + nt}, s4, v{vF}')
    a(f's_mul_i32 s4, s{sRB}, 20')
    a(f's_mul_i32 s5, s{sW}, 5')
    a('s_add_u32 s4, s4, s5')
    a('s_lshl_b32 s4, s4, 12')
    a(f's_add_u32 s11, s4, {OF_OFF}')
    a(f'v_mul_u32_u24 v{vXA}, 1280, v{vTOK}')
    a(f'v_mul_u32_u24 v{vBA}, 40, v{vG}')
    a(f'v_add_u32 v{vXA}, v{vXA}, v{vBA}')
    a(f's_mul_i32 s4, s{sHG}, 160')
    a(f'v_add_u32 v{vXA}, s4, v{vXA}')
    a(f'v_lshlrev_b32 v{vBA}, 1, v{vTOK}')
    flag_check(a, flag_issue(a, vFL, vFD), vFL, vFD, int(os.environ.get('GSLEEP', '2')))
    stamp(a, 'gok')
    fl = {}

    def gate():
        a(f's_mul_i32 s4, s{sHG}, 74')
        a(f's_mul_i32 s5, s{sW}, 5')
        a('s_add_u32 s4, s4, s5')
        a('s_add_u32 s4, s4, 54')
        a('s_mul_i32 s4, s4, 5120')
        a(f's_add_u32 s{sFS}, s4, {GF_OFF}')

    def gate2():
        stamp(a, 'oa')
        flag_check(a, fl['o'], 34, 35)
        stamp(a, 'ob')

    g2.gate = gate
    g2.gate2 = gate2
    XR = [8, 10, 14, 16, 18]

    def g2_extra(j):
        it = []
        if j == 9:
            def fo():
                fl['o'] = flag_issue(a, 34, 35)
            it.append(fo)
        if j == int(os.environ.get('JRES', '16')):
            def resid():
                a(f'buffer_load_ushort v36, v{vBA}, {S(sAUX, 4)}, 0 offen')
                for t in range(5):
                    fl['x'] = a(f'buffer_load_dwordx2 {V(XR[t], 2)}, v{vXA}, {S(sX, 4)}, 0 offen offset:{8 * t}')
            it.append(resid)
        return it

    Hooks(g2.frag_items(int(os.environ.get('FIRSTG', '25')))).flush()
    g2.mainloop(g2_extra)
    stamp(a, 'Gend')
    g2.reduce()
    a.wait(fl['x'])
    a('v_lshlrev_b32 v36, 16, v36')
    for t in range(5):
        for h in range(2):
            a(f'v_lshlrev_b32 v{T(t, 2 * h)}, 16, v{XR[t] + h}')
            a(f'v_and_b32 v{T(t, 2 * h + 1)}, 0xffff0000, v{XR[t] + h}')
            a(f'v_pk_add_f32 {V(R(t, 2 * h), 2)}, {V(R(t, 2 * h), 2)}, v[36:37] op_sel_hi:[1,0]')
            a(f'v_pk_add_f32 {V(R(t, 2 * h), 2)}, {V(R(t, 2 * h), 2)}, {V(T(t, 2 * h), 2)}')
        OF_ = os.environ.get('OUTF', '')
        if 'outx4' in EXP:
            d = ACC(0, 2) + 2 * t
            a(f'v_cvt_pk_bf16_f32 v{d}, v{R(t, 0)}, v{R(t, 1)}')
            a(f'v_cvt_pk_bf16_f32 v{d + 1}, v{R(t, 2)}, v{R(t, 3)}')
            if t in (1, 3):
                a(f'buffer_store_dwordx4 {V(d - 2, 4)}, v{vXA}, {S(sOUT, 4)}, 0 offen offset:{8 * (t - 1)}{OF_}')
            if t == 4:
                a(f'buffer_store_dwordx2 {V(d, 2)}, v{vXA}, {S(sOUT, 4)}, 0 offen offset:32{OF_}')
            continue
        a(f'v_cvt_pk_bf16_f32 v{R(t, 0)}, v{R(t, 0)}, v{R(t, 1)}')
        a(f'v_cvt_pk_bf16_f32 v{R(t, 1)}, v{R(t, 2)}, v{R(t, 3)}')
        a(f'buffer_store_dwordx2 {V(R(t, 0), 2)}, v{vXA}, {S(sOUT, 4)}, 0 offen offset:{8 * t}{OF_}')
    a.label('L_fin')
    stamp_flush(a, 'end')


def build():
    a = Asm()
    hdr = open(os.path.join(os.path.dirname(__file__), '..', 'cdna_kernels', NAME + '.s.ref')).read().split('\n')
    for line in hdr:
        if line.startswith(';') and '@launch' not in line:
            a.raw(line)
    a.raw(f'; @launch grid=(256,1,1) block=(512,1,1) lds={LDS_BYTES}')
    a.raw('.amdgcn_target "amdgcn-amd-amdhsa--gfx950"')
    a.raw('.text')
    K = NAME + '_kernel'
    a.raw(f'.globl {K}')
    a.raw('.p2align 8')
    a.raw(f'.type {K},@function')
    a.raw(f'{K}:')
    a.raw('L_start:')
    a('s_cmp_ge_u32 s2, 256')
    a('s_cbranch_scc1 L_end')
    a('s_load_dwordx16 s[16:31], s[0:1], 0')
    a('s_load_dwordx8 s[32:39], s[0:1], 64')
    a(f'v_and_b32 v{vL}, 63, v0')
    a('v_lshrrev_b32 v6, 6, v0')
    a(f'v_readfirstlane_b32 s{sW8}, v6')
    a(f'v_lshrrev_b32 v{vG}, 4, v{vL}')
    a(f'v_and_b32 v{vI}, 15, v{vL}')
    a(f'v_lshrrev_b32 v{vR}, 2, v{vI}')
    a(f'v_and_b32 v{vC}, 3, v{vL}')
    a(f'v_lshl_add_u32 v{vGR}, v{vG}, 2, v{vR}')
    a(f'v_and_b32 v{vTH}, 255, v0')
    a(f's_and_b32 s{sW}, s{sW8}, 3')
    a(f's_lshr_b32 s{sWH}, s{sW8}, 2')
    a(f's_mov_b32 s{sID}, s2')
    a('s_waitcnt lgkmcnt(0)')
    a(f's_add_u32 s4, s{P_WS}, {EP_OFF}')
    a(f's_addc_u32 s5, s{P_WS + 1}, 0')
    a(f's_load_dword s{sTAG}, s[4:5], 0')
    srd(a, sX, P_X, S_ * D_ * 2)
    srd(a, sWS, P_WS, WS_USED)
    srd(a, sW2, P_W2, F_ * S_ * 2)
    stamp(a, 'start')
    if 'noticket' not in EXP:
        srd(a, sAUX, P_DBG, 256)
        a(f'v_mov_b32 v8, {L_CNT + 16}')
        a(f's_cmp_lg_u32 s{sW8}, 0')
        a('s_cbranch_scc1 L_ticket_done')
        a('s_getreg_b32 s4, hwreg(HW_REG_XCC_ID)')
        a('s_mov_b32 s6, 0')
        a('s_mov_b64 exec, 1')
        a.label('L_ticket')
        a('s_and_b32 s4, s4, 7')
        a('s_lshl_b32 s5, s4, 5')
        a('v_mov_b32 v9, s5')
        a('v_mov_b32 v10, 1')
        a(f'buffer_atomic_add v10, v9, {S(sAUX, 4)}, 0 offen sc0 sc1')
        a.wait_vm0()
        a('v_readfirstlane_b32 s5, v10')
        a('s_cmp_lt_u32 s5, 32')
        a('s_cbranch_scc1 L_ticket_ok')
        a('s_add_u32 s4, s4, 1')
        a('s_add_u32 s6, s6, 1')
        a('s_cmp_lt_u32 s6, 8')
        a('s_cbranch_scc1 L_ticket')
        a.label('L_ticket_ok')
        a('s_lshl_b32 s5, s5, 3')
        a('s_add_u32 s5, s5, s4')
        a('v_mov_b32 v9, s5')
        a('ds_write_b32 v8, v9')
        a('s_mov_b64 exec, -1')
        a('s_waitcnt lgkmcnt(0)')
        a.label('L_ticket_done')
        a('s_barrier')
        a('ds_read_b32 v9, v8')
        a('s_waitcnt lgkmcnt(0)')
        a('s_barrier')
        a(f'v_readfirstlane_b32 s{sID}, v9')
        a(f's_and_b32 s{sID}, s{sID}, 255')
        a.reset_counters()
        stamp(a, 'tick')
    if os.environ.get('UPRIO', '1') != '0':
        a(f's_cmp_eq_u32 s{sWH}, 0')
        a('s_cbranch_scc1 L_prio')
        a(f's_setprio {os.environ.get("UPRIO", "1")}')
        a.label('L_prio')
    a(f's_cmp_ge_u32 s{sID}, 128')
    a('s_cbranch_scc1 L_not_a')
    role_a(a)
    a.label('L_not_a')
    a.reset_counters()
    a(f's_and_b32 s4, s{sID}, 7')
    a(f's_lshr_b32 s5, s{sID}, 3')
    a('s_sub_u32 s5, s5, 16')
    a('s_cmp_ge_u32 s5, 14')
    a('s_cbranch_scc1 L_role_r')
    a('s_and_b32 s7, s4, 1')
    a('s_add_u32 s7, s7, 13')
    a('s_cmp_ge_u32 s5, s7')
    a('s_cbranch_scc1 L_role_wot')
    a('s_mul_i32 s6, s4, 27')
    a('s_lshr_b32 s6, s6, 1')
    a('s_add_u32 s6, s6, s5')
    role_b(a)
    a.label('L_role_r')
    a.reset_counters()
    a(f's_sub_u32 s6, s{sID}, 240')
    role_r(a)
    a.label('L_role_wot')
    a.reset_counters()
    a('s_lshr_b32 s6, s4, 1')
    role_wot(a)
    a.label('L_join')
    final_gemm(a)
    a.label('L_end')
    a('s_endpgm')
    if STAMPS:
        a.raw('; STAMPS ' + ' '.join(STAMP_NAMES))
    a.raw('.section .rodata,"a"')
    a.raw(f""".p2align 6
.amdhsa_kernel {K}
  .amdhsa_next_free_vgpr 256
  .amdhsa_next_free_sgpr 102
  .amdhsa_accum_offset 256
  .amdhsa_group_segment_fixed_size 0
  .amdhsa_kernarg_size 96
  .amdhsa_user_sgpr_count 2
  .amdhsa_user_sgpr_kernarg_segment_ptr 1
  .amdhsa_system_sgpr_workgroup_id_x 1
.end_amdhsa_kernel""")
    sys.stderr.write(f'maxv={a.maxv} maxa={a.maxa} maxs={a.maxs} nops={a.nops} lines={len(a.out)}\n')
    return a.text()


if __name__ == '__main__':
    out = sys.argv[1] if len(sys.argv) > 1 else os.path.join(os.path.dirname(__file__), '..', 'cdna_kernels', NAME + '.s')
    open(out, 'w').write(build())
```

```python
import sys, struct, os
sys.path.insert(0, os.path.dirname(__file__))
from asmdsl import Asm, Rec, V, A, S

NAME = 'parallel_sum__linear_kernel_hedgehog__mixer_token_mlp__prompt'
S_, D_, F_ = 2048, 640, 1728

HF_OFF = 0
HF_SZ = 8 * 64 * 5 * 1024
GF_OFF = HF_OFF + HF_SZ
GF_SZ = 8 * 74 * 5 * 1024
OF_OFF = GF_OFF + GF_SZ
OF_SZ = 32 * 20 * 4 * 1024
XF_OFF = OF_OFF + OF_SZ
XF_SZ = 128 * 20480
WF_OFF = XF_OFF + XF_SZ
WF_SZ = 480 * 5120 + 4096
KV_OFF = WF_OFF + WF_SZ
KV_SZ = 32 * 32 * 6144
KB_OFF = KV_OFF + KV_SZ + 4096
KB_SZ = 32 * 2048
FL_OFF = KB_OFF + KB_SZ + 4096
FSH = int(os.environ.get('FSH', '7'))
FH_OFF = FL_OFF
FK_OFF = FH_OFF + (1024 << FSH)
FR_OFF = FK_OFF + (1024 << FSH)
FG_OFF = FR_OFF + (128 << FSH)
FO_OFF = FG_OFF + (1024 << FSH)
FW_OFF = FO_OFF + (1024 << FSH)
FU_OFF = FW_OFF + (128 << FSH)
EP_OFF = FU_OFF + (512 << FSH)
WS_USED = EP_OFF + 512
STAMP_OFF = WS_USED
WS_USED += 512 * 256
STAMPS = bool(int(os.environ.get('STAMPS', '0')))
EXP = os.environ.get('EXP', '').split(',') + [e for e in ['map4', 'noticket', 'notlb', 'g2map8', 'nopf2', 'pfa', 'pf2now', 'fewpoll'] if e not in os.environ.get('OFF', '').split(',')]
OOB = 0x40000000

P_X, P_WQKV, P_WPHI, P_WO, P_BX, P_W1, P_B1, P_W2, P_B2, P_OUT, P_DBG, P_WS = range(16, 40, 2)
LOG2E = 1.4426950408889634

sW = 3
sW8, sWH = 90, 91
sWS, sX, sWQ, sW1, sW2, sAUX, sOUT = 40, 44, 48, 52, 56, 60, 64
sHG, sRB, sID, sROT, sKS, sT, sM0B, sTAG = 68, 69, 70, 71, 72, 73, 74, 75
sL, sNL = 76, 78
sBDB, sBCB, sFS, sGM0, sSPIN, sLIM = 80, 81, 82, 83, 84, 85
vL, vG, vI, vR, vC = 1, 2, 3, 4, 5
vTOK, vGR = 6, 7
vFS = 42
DB = 64
XN = lambda s: DB + 8 * s
UP = lambda k: DB + 8 * k + 4

LDS_BYTES = 163840
A_SLOTS = 4
L_WQ = 0
L_RING = 102400
L_ZERO = 122880
L_WPHI = 126976
L_CNT = 131072
B_P = 10
G2_P = 5
ILV = os.environ.get('ILV', 'burst')


def kb_pos(f, t):
    if f < 32:
        return (f >> 4) * 512 + (t * 16 + (f & 15)) * 8 if t < 4 else 1024 + ((f >> 4) * 32 + (t - 4) * 16 + (f & 15)) * 8
    return 1536 + (t * 8 + f - 32) * 8


def fbits(x):
    return '0x%08x' % struct.unpack('<I', struct.pack('<f', x))[0]


def srd(a, dst, ptr, nbytes):
    a(f's_mov_b32 s{dst}, s{ptr}')
    a(f's_and_b32 s{dst + 1}, s{ptr + 1}, 0xffff')
    a(f's_mov_b32 s{dst + 2}, {nbytes}')
    a(f's_mov_b32 s{dst + 3}, 0x20000')


STAMP_NAMES = []
vST = 41


def stamp(a, name):
    if not STAMPS:
        return
    name = str(name)
    if name not in STAMP_NAMES:
        STAMP_NAMES.append(name)
    idx = STAMP_NAMES.index(name)
    a('s_memrealtime s[98:99]')
    a.wait_lg0()
    if idx == 0:
        a(f'v_mov_b32 v{vST}, 0')
        a('s_getreg_b32 s97, hwreg(HW_REG_HW_ID)')
        a(f'v_writelane_b32 v{vST}, s97, 63')
    a(f'v_writelane_b32 v{vST}, s98, {idx}')


def stamp_flush(a, n):
    if not STAMPS:
        return
    a.wait_vm0()
    stamp(a, n)
    lab = a.newlabel('st')
    a(f's_cmp_lg_u32 s{sW}, 0')
    a(f's_cbranch_scc1 {lab}')
    a(f's_lshl_b32 s4, s{sWH}, 8')
    a(f's_add_u32 s4, s4, s{sID}')
    a('s_lshl_b32 s4, s4, 8')
    a(f's_add_u32 s4, s4, {STAMP_OFF}')
    a(f'v_lshl_add_u32 v8, v{vL}, 2, s4')
    a(f'buffer_store_dword v{vST}, v8, {S(sWS, 4)}, 0 offen')
    if 'dbg1' in EXP:
        srd(a, sAUX, P_DBG, 256)
        for wg, base, sel in ((136, 0, 'start,prep,go,B_0,Bend,pub,gok,G2_0,Gend,end'), (8, 10, 'start,x,prep,go,aend,G2_9')):
            l2 = a.newlabel('dbg')
            a(f's_lshl_b32 s4, s{sWH}, 8')
            a(f's_add_u32 s4, s4, s{sID}')
            a(f's_cmp_lg_u32 s4, {wg}')
            a(f's_cbranch_scc1 {l2}')
            for k, nm in enumerate(sel.split(',')):
                if nm not in STAMP_NAMES:
                    STAMP_NAMES.append(nm)
                a(f'v_readlane_b32 s4, v{vST}, {STAMP_NAMES.index(nm)}')
                a('v_mov_b32 v9, s4')
                a('v_mov_b32 v8, 0')
                a(f'buffer_store_dword v9, v8, {S(sAUX, 4)}, 0 offen offset:{4 * (base + k)}')
            a.label(l2)
    a.label(lab)


def reduce_g(a, r, t):
    a(f'v_mov_b32 v{t}, v{r}')
    a(f'v_permlane32_swap_b32 v{r}, v{t}')
    a(f'v_add_f32 v{r}, v{r}, v{t}')
    a(f'v_mov_b32 v{t}, v{r}')
    a(f'v_permlane16_swap_b32 v{r}, v{t}')
    a(f'v_add_f32 v{r}, v{r}, v{t}')


def dma160_voffs(a, dst, stride, permute, tmp):
    t0, t2, t3 = tmp, tmp + 1, tmp + 2
    for q in range(5):
        d = dst + q
        a(f'v_add_u32 v{t0}, {q * 64}, v{vL}')
        a(f'v_mul_u32_u24 v{t2}, 6554, v{t0}')
        a(f'v_lshrrev_b32 v{t2}, 16, v{t2}')
        a(f'v_mul_u32_u24 v{t3}, 10, v{t2}')
        a(f'v_sub_u32 v{t0}, v{t0}, v{t3}')
        if permute:
            a(f'v_bfe_u32 v{t3}, v{t2}, 2, 2')
            a(f'v_lshlrev_b32 v{t3}, 3, v{t3}')
            a(f'v_and_b32 v{d}, 3, v{t2}')
            a(f'v_add_u32 v{t3}, v{t3}, v{d}')
            a(f'v_lshrrev_b32 v{t2}, 4, v{t2}')
            a(f'v_lshl_add_u32 v{t2}, v{t2}, 2, v{t3}')
        a(f'v_mul_u32_u24 v{t2}, {stride}, v{t2}')
        a(f'v_lshl_add_u32 v{d}, v{t0}, 4, v{t2}')
        if 0 < q < 4:
            a(f'v_subrev_u32 v{d}, {q * 1024}, v{d}')


def dma160(a, vo, ssrd, soff, m0_s, m0_add, nt=''):
    a(f's_add_u32 m0, s{m0_s}, {m0_add}')
    for q in range(4):
        off = f' offset:{q * 1024}' if q else ''
        a(f'buffer_load_dwordx4 v{vo + q}, {S(ssrd, 4)}, s{soff} offen{off}{nt} lds')
    a(f's_add_u32 m0, s{m0_s}, {m0_add + 4096}')
    return a(f'buffer_load_dwordx4 v{vo + 4}, {S(ssrd, 4)}, s{soff} offen{nt} lds')


class Hooks:
    def __init__(self, items=()):
        self.items = list(items)

    def run(self, n=1):
        for _ in range(n):
            if self.items:
                self.items.pop(0)()

    def flush(self):
        self.run(len(self.items))


def softmax_pm(a, P, PH, EP, EN, tmp):
    p = [P[k // 4] + k % 4 for k in range(20)]
    ep = [EP[k // 4] + k % 4 for k in range(20)]
    en = [EN[k // 4] + k % 4 for k in range(20)]
    mx, mn, sp, sn = tmp, tmp + 2, tmp + 4, tmp + 6
    a(f'v_max3_f32 v{mx}, v{p[0]}, v{p[1]}, v{p[2]}')
    a(f'v_min3_f32 v{mn}, v{p[0]}, v{p[1]}, v{p[2]}')
    for k in range(3, 19, 2):
        a(f'v_max3_f32 v{mx}, v{mx}, v{p[k]}, v{p[k + 1]}')
        a(f'v_min3_f32 v{mn}, v{mn}, v{p[k]}, v{p[k + 1]}')
    a(f'v_max_f32 v{mx}, v{mx}, v{p[19]}')
    a(f'v_min_f32 v{mn}, v{mn}, v{p[19]}')
    a(f'v_mul_f32 v{mx}, s{sNL}, v{mx}')
    a(f'v_mul_f32 v{mn}, s{sL}, v{mn}')
    for k in range(0, 20, 2):
        a(f'v_pk_fma_f32 {V(ep[k], 2)}, {V(p[k], 2)}, {S(sL, 2)}, {V(mx, 2)} op_sel_hi:[1,0,0]')
        a(f'v_pk_fma_f32 {V(en[k], 2)}, {V(p[k], 2)}, {S(sNL, 2)}, {V(mn, 2)} op_sel_hi:[1,0,0]')
    for k in range(20):
        a(f'v_exp_f32 v{ep[k]}, v{ep[k]}')
        a(f'v_exp_f32 v{en[k]}, v{en[k]}')
    a(f'v_pk_add_f32 {V(sp, 2)}, {V(ep[0], 2)}, {V(ep[2], 2)}')
    a(f'v_pk_add_f32 {V(sn, 2)}, {V(en[0], 2)}, {V(en[2], 2)}')
    for k in range(4, 20, 2):
        a(f'v_pk_add_f32 {V(sp, 2)}, {V(sp, 2)}, {V(ep[k], 2)}')
        a(f'v_pk_add_f32 {V(sn, 2)}, {V(sn, 2)}, {V(en[k], 2)}')
    a(f'v_add_f32 v{sp}, v{sp}, v{sp + 1}')
    a(f'v_add_f32 v{sn}, v{sn}, v{sn + 1}')
    a(f'v_rcp_f32 v{sp}, v{sp}')
    a(f'v_rcp_f32 v{sn}, v{sn}')
    for k in range(0, 20, 2):
        a(f'v_pk_mul_f32 {V(ep[k], 2)}, {V(ep[k], 2)}, {V(sp, 2)} op_sel_hi:[1,0]')
        a(f'v_pk_mul_f32 {V(en[k], 2)}, {V(en[k], 2)}, {V(sn, 2)} op_sel_hi:[1,0]')
    allv = ep + en
    for k in range(20):
        a(f'v_cvt_pk_bf16_f32 v{PH[k // 4] + k % 4}, v{allv[2 * k]}, v{allv[2 * k + 1]}')


def flag_set(a, s_off):
    a(f'v_lshl_add_u32 v{vFS}, v{vL}, 2, s{s_off}')
    a(f'v_mov_b32 v{vFS + 1}, s{sTAG}')
    a(f's_mov_b64 exec, {hex((1 << (1 << (FSH - 2))) - 1)}')
    a(f'buffer_store_dword v{vFS + 1}, v{vFS}, {S(sWS, 4)}, 0 offen sc1')
    a('s_mov_b64 exec, -1')


def flag_issue(a, vaddr, vdst):
    return a(f'buffer_load_dword v{vdst}, v{vaddr}, {S(sWS, 4)}, 0 offen sc1')


def flag_check(a, tok, vaddr, vdst, sleep=2):
    ok = a.newlabel('ok')
    lp = a.newlabel('poll')
    a.wait(tok)
    a(f'v_cmp_ne_u32 vcc, s{sTAG}, v{vdst}')
    a(f's_cbranch_vccz {ok}')
    a(f's_mov_b32 s{sSPIN}, 0')
    a.label(lp)
    a(f's_sleep {sleep}')
    a.raw(f'\tbuffer_load_dword v{vdst}, v{vaddr}, {S(sWS, 4)}, 0 offen sc1')
    a('s_waitcnt vmcnt(0)')
    a(f'v_cmp_ne_u32 vcc, s{sTAG}, v{vdst}')
    a(f's_cbranch_vccz {ok}')
    a(f's_add_u32 s{sSPIN}, s{sSPIN}, 1')
    a(f's_cmp_lt_u32 s{sSPIN}, 0x8000')
    a(f's_cbranch_scc1 {lp}')
    a.label(ok)


def featmap(a, ACC5, PK, WPF, P5, EP5, EN5, tmp):
    for k in range(10):
        t, j = divmod(2 * k, 4)
        a(f'v_cvt_pk_bf16_f32 v{PK[k // 4] + k % 4}, v{ACC5[t] + j}, v{ACC5[t] + j + 1}')
    for ks in range(3):
        for t in range(5):
            d = V(P5[t], 4)
            if ks < 2:
                a(f'v_mfma_f32_16x16x32_bf16 {d}, {V(WPF(t, ks), 4)}, {V(PK[ks], 4)}, {"0" if ks == 0 else d}')
            else:
                a(f'v_mfma_f32_16x16x16_bf16 {d}, {V(WPF(t, ks), 2)}, {V(PK[ks], 2)}, {d}')
    softmax_pm(a, P5, P5, EP5, EN5, tmp)


def xcd_tile(a):
    a(f's_and_b32 s4, s{sID}, 7')
    a(f's_lshr_b32 s5, s{sID}, 3')
    if 'g2map8' in EXP:
        a(f's_and_b32 s{sHG}, s5, 7')
        a('s_lshl_b32 s6, s4, 2')
        a('s_lshr_b32 s7, s5, 3')
        a(f's_add_u32 s{sRB}, s6, s7')
    else:
        a('s_and_b32 s6, s4, 1')
        a('s_lshl_b32 s6, s6, 2')
        a('s_and_b32 s7, s5, 3')
        a(f's_add_u32 s{sHG}, s6, s7')
        a('s_lshr_b32 s6, s4, 1')
        a('s_lshl_b32 s6, s6, 3')
        a('s_lshr_b32 s7, s5, 2')
        a(f's_add_u32 s{sRB}, s6, s7')
    a(f's_lshl_b32 s4, s{sRB}, 6')
    a(f's_lshl_b32 s5, s{sW}, 4')
    a('s_add_u32 s4, s4, s5')
    a(f'v_add_u32 v{vTOK}, s4, v{vI}')


def ln_scales(a, vS, vRS, vNB):
    a(f'v_mul_f32 v{vS}, {fbits(1.0 / 640)}, v{vS}')
    a(f'v_mul_f32 v{vS + 2}, {fbits(1.0 / 640)}, v{vS + 2}')
    a(f'v_fma_f32 v{vS + 2}, -v{vS}, v{vS}, v{vS + 2}')
    a(f'v_max_f32 v{vS + 2}, 0, v{vS + 2}')
    a(f'v_add_f32 v{vS + 1}, {fbits(1e-5)}, v{vS + 2}')
    a(f'v_rsq_f32 v{vRS}, v{vS + 1}')
    a(f'v_mul_f32 v{vNB}, v{vS}, v{vRS}')
    a(f'v_sub_f32 v{vNB}, 0, v{vNB}')


vD, vF, vT, vT2, vFL, vFD, vOF, vXA, vBA = 8, 12, 14, 18, 22, 23, 28, 32, 33
ACC = lambda t, nt: 44 + (nt * 5 + t) * 4
TF = lambda j, nt: 124 + (j % 2) * 16 + 4 * nt
POOL = [156 + 4 * k for k in range(25)]


class GGemm:
    def __init__(self, a, kind):
        self.a, self.kind = a, kind
        if kind == 'B':
            self.stride, self.srdm, self.n, self.fr_off, self.fr_steps = F_ * 2, sW1, 16, HF_OFF, 64
            self.sdb, self.scb, self.ntot, self.P = sBDB, sBCB, 16, B_P
        else:
            self.stride, self.srdm, self.n, self.fr_off, self.fr_steps = S_ * 2, sW2, 14, GF_OFF, 74
            self.sdb, self.scb, self.ntot, self.P = sHG, sRB, 19, G2_P
        self.dtok, self.ftok, self.ttok = {}, {}, {}
        self.free = list(POOL)
        self.reg = {}
        self.pending = []
        order = [(j, 'a') for j in range(self.n)]
        if kind == 'G2':
            order += [(j, k) for j in range(14, 19) for k in 'ab']
        for j, k in order:
            self.pending += [(j, k, x) for x in range(5 if k == 'a' else 4)]
        self.gate = lambda: None
        self.gate2 = lambda: None
        self.nq = 2 if kind == 'B' else 4

    def setup(self):
        a, st = self.a, self.stride
        a(f'v_lshrrev_b32 v24, 3, v{vL}')
        if self.kind == 'B':
            a('v_lshrrev_b32 v25, 2, v24')
            a('v_and_b32 v24, 3, v24')
            a('v_lshl_add_u32 v24, v25, 3, v24')
        a(f'v_mul_u32_u24 v24, {st}, v24')
        a(f'v_and_b32 v25, 7, v{vL}')
        a(f'v_lshlrev_b32 v26, 1, v{vG}')
        a('v_xor_b32 v25, v25, v26')
        a('v_lshl_add_u32 v24, v25, 4, v24')
        a(f's_lshl_b32 s4, s{self.scb}, 7')
        a(f's_mul_i32 s5, s{sW}, {self.n * 32 * st}')
        a('s_add_u32 s5, s5, s4')
        if self.kind == 'B':
            a(f's_mul_i32 s6, s{sWH}, {4 * st}')
            a('s_add_u32 s5, s5, s6')
            a(f's_lshl_b32 s6, s{sWH}, 11')
            a(f's_add_u32 s{sM0B}, s{sGM0}, s6')
        else:
            a(f's_mov_b32 s{sM0B}, s{sGM0}')
        for q in range(self.nq):
            row = 8 * q if self.kind != 'B' else q * 16
            a(f's_add_u32 s6, s5, {row * st - 1024 * q}')
            a(f'v_add_u32 v{vD + q}, s6, v24')
        a(f's_mul_i32 s4, s{self.sdb}, {self.fr_steps}')
        a(f's_mul_i32 s5, s{sW}, {self.n}')
        a('s_add_u32 s4, s4, s5')
        a('s_mul_i32 s4, s4, 5120')
        a(f's_add_u32 s{sFS}, s4, {self.fr_off}')
        if self.kind == 'B':
            a(f's_lshl_b32 s4, s{sW}, {6 + FSH}')
            a(f's_add_u32 s4, s4, {FH_OFF}')
            a(f'v_lshl_add_u32 v{vFL}, v{vL}, {FSH}, s4')
        else:
            a(f's_lshl_b32 s4, s{self.sdb}, {7 + FSH}')
            a(f's_mul_i32 s5, s{sW}, {28 << FSH}')
            a('s_add_u32 s4, s4, s5')
            a(f's_add_u32 s4, s4, {FG_OFF}')
            a(f's_mul_i32 s5, s{self.sdb}, {74 * 5120}')
            a(f's_add_u32 s{sLIM}, s5, {GF_OFF + 53 * 5120}')
            a(f's_cmp_eq_u32 s{sW}, 3')
            a('s_cselect_b32 s5, 23, 27')
            a(f'v_min_u32 v24, s5, v{vL}')
            a(f'v_lshl_add_u32 v{vFL}, v24, {FSH}, s4')

    def dma_items(self, j):
        a = self.a

        def one(q):
            def f():
                if q == 0:
                    a(f's_add_u32 m0, s{sM0B}, {(j % self.P) * 16384}')
                off = f' offset:{q * 1024}' if q else ''
                nt = ' nt' if ('ntb' in EXP and self.kind == 'B' and j < self.P) else ''
                self.dtok[j] = a(f'buffer_load_dwordx4 v{vD + q}, {S(self.srdm, 4)}, 0 offen{off}{nt} lds')
                if not ('hotw' in EXP):
                    a(f'v_add_u32 v{vD + q}, {32 * self.stride}, v{vD + q}')
            return f
        return [one(q) for q in range(self.nq)]

    def frag_items(self, lim=99):
        a = self.a
        out = []
        while self.free and self.pending and len(out) < lim:
            key = self.pending.pop(0)
            r = self.free.pop(0)
            self.reg[key] = r

            def f(key=key, r=r):
                j, kind, x = key
                if key == (self.n, 'a', 0):
                    self.gate()
                if key == (self.n, 'b', 0):
                    self.gate2()
                if kind == 'a' and 'b_nof' in EXP and self.kind == 'B' and j >= 5 and x > 0:
                    pass
                elif kind == 'a':
                    vo, off = (vF, x * 1024) if x < 4 else (vF + 1, 0)
                    offs = f' offset:{off}' if off else ''
                    self.ftok[j] = a(f'buffer_load_dwordx4 {V(r, 4)}, v{vo}, {S(sWS, 4)}, s{sFS} offen{offs} sc1')
                    if x == 4 and 'hotf' not in EXP:
                        a(f's_add_u32 s{sFS}, s{sFS}, 5120')
                        if self.kind == 'G2' and j < 14:
                            a(f's_min_u32 s{sFS}, s{sFS}, s{sLIM}')
                else:
                    if j - self.n == 2:
                        a(f'v_lshlrev_b32 v24, 3, v{vL}')
                        a(f'v_sub_u32 v24, v{vOF + x}, v24')
                        a(f'buffer_load_dwordx2 {V(r, 2)}, v24, {S(sWS, 4)}, s11 offen sc1')
                        self.ftok[j] = a(f'buffer_load_dwordx2 {V(r + 2, 2)}, v24, {S(sWS, 4)}, s11 offen offset:512 sc1')
                    else:
                        self.ftok[j] = a(f'buffer_load_dwordx4 {V(r, 4)}, v{vOF + x}, {S(sWS, 4)}, s11 offen sc1')
                    if x == 3:
                        a('s_add_u32 s11, s11, 4096')
            out.append(f)
        return out

    def tr_items(self, j):
        a = self.a

        def one(nt):
            def f():
                off = (j % self.P) * 16384
                base = vT
                if off >= 65536:
                    if off % 65536 == 0:
                        a(f'v_add_u32 v{vT2 + nt}, {off}, v{vT + nt}')
                    off %= 65536
                    base = vT2
                if 'b_nods' in EXP and self.kind == 'B' and j > 1 and nt > 0:
                    return
                a(f'ds_read_b64_tr_b16 {V(TF(j, nt), 2)}, v{base + nt} offset:{off}')
                self.ttok[j] = a(f'ds_read_b64_tr_b16 {V(TF(j, nt) + 2, 2)}, v{base + nt} offset:{off + 2048}')
            return f
        return [one(nt) for nt in range(4)]

    def mainloop(self, extra):
        a, n = self.a, self.n
        a.wait(self.dtok[0])
        Hooks(self.tr_items(0)).flush()
        for j in range(self.ntot):
            items = []
            if j + 1 < n:
                a.wait(self.dtok[j + 1])
            a.wait(self.ftok[j], self.ttok.get(j))
            if self.kind == 'B' and 'b_nobar' not in EXP and j + 1 < n and (j + self.P < n or j + 1 >= int(os.environ.get('BPRE', '10'))):
                a('s_barrier')
            if j % 3 == 0:
                stamp(a, f'{self.kind}_{j}')
                if STAMPS and j in (3, 9):
                    a('s_memtime s[98:99]')
                    a.wait_lg0()
                    a(f'v_writelane_b32 v{vST}, s98, {56 + (j // 9) + (2 if self.kind == "G2" else 0)}')
            if j + 1 < n:
                items += self.tr_items(j + 1)
            if j + self.P < n:
                items += self.dma_items(j + self.P)
            items += extra(j)
            lim = int(os.environ.get('LIMB' if self.kind == 'B' else 'LIMG', '10'))
            items += self.frag_items(lim if (self.kind == 'B' or j < int(os.environ.get('LIMJ', '9'))) else 10)
            last = j == self.ntot - 1
            if self.kind == 'G2' and j == 16:
                a('s_barrier')
            if last:
                a(f's_mul_i32 s7, s{sWH}, 102400')
                for nt in range(1, 4):
                    a(f's_xor_b32 s4, s{sW}, {nt}')
                    a('s_mul_i32 s4, s4, 15360')
                    a(f's_add_u32 s4, s4, {(nt - 1) * 5120}')
                    a('s_add_u32 s4, s4, s7')
                    a(f'v_add_u32 v{24 + nt}, s4, v{vF}')
                wr = [(nt, t) for nt in (1, 2, 3) for t in range(5)]
            hk = Hooks(items)
            k = 0
            ILV = os.environ.get('ILVB', 'fine') if self.kind == 'B' else os.environ.get('ILVG', 'burst')
            for nt in (1, 2, 3, 0):
                for t in range(5):
                    acc = V(ACC(t, nt), 4)
                    c = '0' if j == 0 else acc
                    fr = V(self.reg[(j, 'a', t)], 4)
                    tf = V(TF(j, nt) if j < n else self.reg[(j, 'b', nt)], 4)
                    if self.kind == 'B':
                        a(f'v_mfma_f32_16x16x32_bf16 {acc}, {tf}, {fr}, {c}')
                    else:
                        a(f'v_mfma_f32_16x16x32_bf16 {acc}, {fr}, {tf}, {c}')
                    k += 1
                    if last and k > 5:
                        wn, wt = wr.pop(0)
                        a(f'ds_write_b128 v{24 + wn}, {V(ACC(wt, wn), 4)} offset:{wt * 1024}')
                    if ILV == 'fine':
                        if k % 4 != 0:
                            hk.run()
                    elif ILV == 'burst':
                        if k <= 4 and j + 1 < n:
                            hk.run()
                    elif ILV == 'two':
                        if k <= 4 and j + 1 < n:
                            hk.run()
                        if k == 10:
                            hk.run(4)
                    elif ILV == 'pre':
                        if k == 1:
                            hk.flush()
            hk.flush()
            self.free += [r for key, r in self.reg.items() if key[0] == j]
            if n - 2 <= j < n:
                self.free += [TF(j, nt) for nt in range(4)]

    def reduce(self):
        a = self.a
        a(f's_mul_i32 s4, s{sW}, 15360')
        a('s_add_u32 s4, s4, s7')
        a(f'v_add_u32 v24, s4, v{vF}')
        a.wait_lg0()
        a('s_barrier')
        rtok = {}
        for nt in range(1, 4):
            for t in range(5):
                rtok[(nt, t)] = a(f'ds_read_b128 {V(ACC(t, nt), 4)}, v24 offset:{(nt - 1) * 5120 + t * 1024}')
        for nt in range(1, 4):
            for t in range(5):
                a.wait(rtok[(nt, t)])
                for h in range(2):
                    d = V(ACC(t, 0) + 2 * h, 2)
                    a(f'v_pk_add_f32 {d}, {d}, {V(ACC(t, nt) + 2 * h, 2)}')


def frag10_addr(a, m, hi_add, step, base_s, vrd, vrd_base, vst):
    a(f's_add_u32 s4, s{sW}, {4 * m}')
    a('s_min_u32 s5, s4, 9')
    a('s_cmp_ge_u32 s5, 5')
    a(f's_cselect_b32 s6, {hi_add}, 0')
    a(f's_mul_i32 s5, s5, {step}')
    a('s_add_u32 s5, s5, s6')
    a(f'v_add_u32 v{vrd}, s5, v{vrd_base}')
    a('s_lshl_b32 s5, s4, 10')
    a(f's_add_u32 s5, s5, s{base_s}')
    a('s_cmp_ge_u32 s4, 10')
    a(f's_cselect_b32 s5, {OOB}, s5')
    a(f'v_lshl_add_u32 v{vst}, v{vL}, 4, s5')


NTP = ' nt' if 'ntp' in EXP else ''
FIRST = int(os.environ.get('FIRST', '25'))
vTH = 40


def g_common(a):
    a(f'v_lshlrev_b32 v{vF}, 4, v{vL}')
    a(f'v_add_u32 v{vF + 1}, 4096, v{vF}')
    a(f's_lshl_b32 s{sGM0}, s{sW}, 12')
    a(f'v_bfe_u32 v25, v{vGR}, 1, 2')
    a(f'v_xor_b32 v25, s{sW}, v25')
    a(f'v_lshlrev_b32 v26, 7, v{vGR}')
    a(f'v_lshl_add_u32 v26, v{vC}, 3, v26')
    a(f'v_add_u32 v26, s{sGM0}, v26')
    for nt in range(4):
        a(f'v_xor_b32 v27, {nt}, v25')
        a(f'v_lshl_add_u32 v{vT + nt}, v27, 5, v26')


def tag_ready(a):
    a('s_waitcnt lgkmcnt(0)')
    a(f's_add_u32 s{sTAG}, s{sTAG}, 1')


def role_a(a):
    a(f's_and_b32 s4, s{sID}, 7')
    a(f's_lshr_b32 s5, s{sID}, 3')
    a('s_and_b32 s6, s4, 1')
    a('s_lshl_b32 s6, s6, 2')
    a('s_and_b32 s7, s5, 3')
    a(f's_add_u32 s{sHG}, s6, s7')
    a('s_lshr_b32 s6, s4, 1')
    a('s_lshl_b32 s6, s6, 2')
    a('s_lshr_b32 s7, s5, 2')
    a('s_add_u32 s6, s6, s7')
    a(f's_mov_b32 s{sRB}, s6')
    a('s_lshl_b32 s6, s6, 3')
    a(f's_add_u32 s15, s6, s{sHG}')
    a('s_lshl_b32 s12, s15, 1')
    a(f's_add_u32 s12, s12, s{sWH}')
    X = 156
    a('s_lshl_b32 s4, s12, 2')
    a(f's_add_u32 s4, s4, s{sW}')
    a('s_mul_i32 s4, s4, 2560')
    a(f'v_mul_u32_u24 v24, 40, v{vL}')
    xt = []
    if 'inx4' in EXP:
        a(f'buffer_load_dwordx4 {V(X, 4)}, v24, {S(sX, 4)}, s4 offen')
        a(f'buffer_load_dwordx4 {V(X + 4, 4)}, v24, {S(sX, 4)}, s4 offen offset:16')
        xt = [a(f'buffer_load_dwordx2 {V(X + 8, 2)}, v24, {S(sX, 4)}, s4 offen offset:32')] * 5
    else:
        for k in range(5):
            xt.append(a(f'buffer_load_dwordx2 {V(X + 2 * k, 2)}, v24, {S(sX, 4)}, s4 offen offset:{8 * k}{NTP}'))
    srd(a, sWQ, P_WQKV, D_ * 3 * D_ * 2)
    vLN = 8
    a(f'v_lshlrev_b32 v{vLN}, 4, v{vL}')
    a(f'v_add_u32 v{vLN + 1}, 4096, v{vLN}')
    a(f's_mul_i32 s{sM0B}, s{sW8}, 5120')
    a('s_lshl_b32 s10, s15, 2')
    a(f's_add_u32 s10, s10, s{sW}')
    a('s_mul_i32 s4, s10, 1093')
    a('s_lshr_b32 s4, s4, 16')
    a('s_mul_i32 s5, s4, 60')
    a('s_sub_u32 s5, s10, s5')
    a('s_lshr_b32 s6, s5, 1')
    a('s_and_b32 s7, s5, 1')
    a('s_add_u32 s7, s7, 1')
    a('s_sub_u32 s8, s5, 40')
    a('s_cmp_ge_u32 s5, 40')
    a('s_cselect_b32 s6, s8, s6')
    a('s_cselect_b32 s7, 0, s7')
    a(f's_mul_i32 s6, s6, {32 * 3840}')
    a('s_mul_i32 s7, s7, 1280')
    a('s_mul_i32 s4, s4, 160')
    a('s_add_u32 s6, s6, s7')
    a('s_add_u32 s6, s6, s4')
    a(f's_cmp_eq_u32 s{sWH}, 0')
    a('s_cselect_b32 s10, 480, s10')
    dma160_voffs(a, 12, 3840, True, 18)
    a('s_cmp_ge_u32 s10, 480')
    a(f's_cselect_b32 s7, {OOB}, 0')
    for q in range(5):
        a(f'v_add_u32 v{12 + q}, s7, v{12 + q}')
    utok = dma160(a, 12, sWQ, 6, sM0B, 0, NTP)
    a(f's_mul_i32 s13, s{sWH}, 24576')
    a('s_add_u32 s13, s13, 65536')
    a('s_add_u32 s14, s13, 12288')
    srd(a, sAUX, P_WPHI, 32 * 800)
    a(f's_mul_i32 s6, s{sHG}, 3200')
    a(f's_lshl_b32 s7, s{sW}, 10')
    a('s_add_u32 s6, s6, s7')
    a(f'v_lshl_add_u32 v10, v{vL}, 4, s6')
    a(f's_add_u32 m0, s7, {L_WPHI}')
    a(f'buffer_load_dwordx4 v10, {S(sAUX, 4)}, 0 offen lds')
    for k in range(4):
        a(f'v_mov_b32 v{44 + k}, 0')
    a(f'v_lshlrev_b32 v18, 4, v{vTH}')
    a(f'v_add_u32 v18, {L_ZERO}, v18')
    a('ds_write_b128 v18, v[44:47]')
    a(f'v_mov_b32 v10, {L_CNT}')
    a('v_mov_b32 v11, 0')
    a('ds_write2_b32 v10, v11, v11 offset0:0 offset1:1')
    vONE, vS, vRS, vNB = 34, 36, 168, 170
    a(f'v_mov_b32 v{vONE}, 0x3f803f80')
    for k in range(4):
        a(f'v_mov_b32 v{vS + k}, 0')
    a('s_waitcnt lgkmcnt(0)')
    a(f's_add_u32 s{sTAG}, s{sTAG}, 1')
    def unit_part():
        a(f'v_mul_u32_u24 v29, 160, v{vGR}')
        a(f'v_mul_u32_u24 v24, 40, v{vC}')
        a('v_add_u32 v29, v29, v24')
        a(f'v_add_u32 v29, s{sM0B}, v29')
        a('s_mul_i32 s4, s10, 5120')
        a(f's_add_u32 s4, s4, {WF_OFF}')
        a('s_cmp_ge_u32 s10, 480')
        a(f's_cselect_b32 s4, {OOB}, s4')
        a(f'v_add_u32 v24, s4, v{vLN}')
        a(f'v_add_u32 v25, s4, v{vLN + 1}')
        a(f's_lshl_b32 s5, s10, {FSH}')
        a(f's_add_u32 s5, s5, {FU_OFF}')
        a('s_cmp_ge_u32 s10, 480')
        a(f's_cselect_b32 s10, {OOB}, s5')
        a.wait(utok)
        ut = []
        for t in range(5):
            a(f'ds_read_b64_tr_b16 {V(UP(t), 2)}, v29 offset:{8 * t}')
            ut.append(a(f'ds_read_b64_tr_b16 {V(UP(t) + 2, 2)}, v29 offset:{8 * t + 2560}'))
        for t in range(5):
            a.wait(ut[t])
            vo, off = (24, t * 1024) if t < 4 else (25, 0)
            a(f'buffer_store_dwordx4 {V(UP(t), 4)}, v{vo}, {S(sWS, 4)}, 0 offen offset:{off} sc1')

    if 'unitfirst' in EXP:
        unit_part()
    a.wait(xt[4])
    stamp(a, 'x')
    for k in range(10):
        a(f'v_dot2c_f32_bf16 v{vS + (k & 1)}, v{X + k}, v{vONE}')
        a(f'v_dot2c_f32_bf16 v{vS + 2 + (k & 1)}, v{X + k}, v{X + k}')
    a(f'v_add_f32 v{vS}, v{vS}, v{vS + 1}')
    a(f'v_add_f32 v{vS + 2}, v{vS + 2}, v{vS + 3}')
    for sh in (8, 4, 2, 1):
        for r in (vS, vS + 2):
            a(f'v_add_f32_dpp v{r}, v{r}, v{r} row_ror:{sh} row_mask:0xf bank_mask:0xf')
    for r in (vS, vS + 2):
        a(f'v_mov_b32 v{r + 1}, v{r}')
        a(f'v_permlane16_swap_b32 v{r}, v{r + 1}')
        a(f'v_add_f32 v{r}, v{r}, v{r + 1}')
    ln_scales(a, vS, vRS, vNB)
    a(f'v_mul_f32 v{vS + 1}, v{vRS}, v{vRS}')
    a(f'v_mov_b32 v{vS + 3}, {fbits(1e-5)}')
    a(f'v_fmac_f32 v{vS + 3}, v{vS + 1}, v{vS + 2}')
    a(f'v_rsq_f32 v{vS + 2}, v{vS + 3}')
    U = 172
    for k in range(10):
        a(f'v_lshlrev_b32 v{U + 2 * k}, 16, v{X + k}')
        a(f'v_and_b32 v{U + 2 * k + 1}, 0xffff0000, v{X + k}')
    for k in range(10):
        a(f'v_pk_fma_f32 {V(U + 2 * k, 2)}, {V(U + 2 * k, 2)}, {V(vRS, 2)}, {V(vNB, 2)} op_sel_hi:[1,0,0]')
    XQ = 192
    for k in range(10):
        a(f'v_cvt_pk_bf16_f32 v{XQ + k}, v{U + 2 * k}, v{U + 2 * k + 1}')
    for k in range(10):
        a(f'v_pk_mul_f32 {V(U + 2 * k, 2)}, {V(U + 2 * k, 2)}, {V(vS + 2, 2)} op_sel_hi:[1,0]')
    for k in range(10):
        a(f'v_cvt_pk_bf16_f32 v{X + k}, v{U + 2 * k}, v{U + 2 * k + 1}')
    a(f's_mul_i32 s4, s{sW}, {2 * 1296}')
    a('s_add_u32 s4, s4, s13')
    a(f'v_mul_u32_u24 v24, 40, v{vL}')
    a(f'v_lshrrev_b32 v25, 5, v{vL}')
    a('v_lshl_add_u32 v24, v25, 4, v24')
    a('v_add_u32 v24, s4, v24')
    for k in range(5):
        a(f'ds_write_b64 v24, {V(XQ + 2 * k, 2)} offset:{8 * k}')
    a(f'v_and_b32 v25, 7, v{vTH}')
    a(f'v_lshrrev_b32 v26, 3, v{vTH}')
    a('v_mul_u32_u24 v28, 1296, v25')
    a('v_lshl_add_u32 v28, v26, 4, v28')
    a('v_add_u32 v28, s13, v28')
    a('v_lshlrev_b32 v29, 8, v26')
    a('v_lshl_add_u32 v29, v25, 4, v29')
    a(f's_lshr_b32 s4, s12, 1')
    a('s_mul_i32 s4, s4, 20480')
    a(f's_and_b32 s5, s12, 1')
    a('s_lshl_b32 s5, s5, 7')
    a('s_add_u32 s4, s4, s5')
    a(f's_add_u32 s4, s4, {XF_OFF}')
    a('v_add_u32 v29, s4, v29')
    a('v_add_u32 v30, 8192, v29')
    a(f's_cmp_ge_u32 s{sW}, 2')
    a(f's_cselect_b32 s4, {OOB}, 16384')
    a('v_add_u32 v31, s4, v29')
    a(f's_mul_i32 s4, s{sW}, 2560')
    a('s_add_u32 s4, s4, s14')
    a(f'v_mul_u32_u24 v24, 40, v{vL}')
    a('v_add_u32 v24, s4, v24')
    for k in range(5):
        a(f'ds_write_b64 v24, {V(X + 2 * k, 2)} offset:{8 * k}')
    a(f'v_mul_u32_u24 v24, 1280, v{vR}')
    a(f'v_mul_u32_u24 v25, 160, v{vG}')
    a('v_add_u32 v24, v24, v25')
    a(f'v_mul_u32_u24 v25, 40, v{vC}')
    a('v_add_u32 v24, v24, v25')
    a('v_add_u32 v24, s14, v24')
    a(f'v_mul_u32_u24 v25, {64 * 5120}, v{vG}')
    a(f'v_lshl_add_u32 v25, v{vI}, 4, v25')
    a(f's_lshr_b32 s4, s12, 2')
    a('s_mul_i32 s4, s4, 5120')
    a(f's_and_b32 s5, s12, 3')
    a('s_lshl_b32 s5, s5, 8')
    a('s_add_u32 s4, s4, s5')
    a(f's_add_u32 s8, s4, {HF_OFF}')
    a.wait_lg0()
    a('s_barrier')
    ht = []
    for m in range(3):
        ht.append(a(f'ds_read_b128 {V(XQ + 4 * m, 4)}, v28 offset:{512 * m}'))
    for m in range(3):
        a.wait(ht[m])
        a(f'buffer_store_dwordx4 {V(XQ + 4 * m, 4)}, v{29 + m}, {S(sWS, 4)}, 0 offen sc1')
    ht = []
    for m in range(3):
        a(f's_add_u32 s4, s{sW}, {4 * m}')
        a('s_min_u32 s5, s4, 9')
        a('s_cmp_ge_u32 s5, 5')
        a(f's_cselect_b32 s6, {640 - 40}, 0')
        a(f's_cselect_b32 s7, {4 * 64 * 5120 - 5120}, 0')
        a('s_lshl_b32 s5, s5, 3')
        a('s_add_u32 s5, s5, s6')
        a('v_add_u32 v26, s5, v24')
        a(f'ds_read_b64_tr_b16 {V(U + 4 * m, 2)}, v26')
        ht.append(a(f'ds_read_b64_tr_b16 {V(U + 4 * m + 2, 2)}, v26 offset:{4 * 1280}'))
        a('s_lshl_b32 s5, s4, 10')
        a('s_add_u32 s5, s5, s7')
        a('s_add_u32 s5, s5, s8')
        a('s_cmp_ge_u32 s4, 10')
        a(f's_cselect_b32 s5, {OOB}, s5')
        a(f'v_add_u32 v{34 + m}, s5, v25')
    for m in range(3):
        a.wait(ht[m])
        a(f'buffer_store_dwordx4 {V(U + 4 * m, 4)}, v{34 + m}, {S(sWS, 4)}, 0 offen sc1')
    hst = ('vm', a.vm_issued - 1)
    if 'unitfirst' not in EXP:
        unit_part()
    a(f's_lshl_b32 s4, s{sWH}, 2')
    a(f's_add_u32 s4, s4, {L_CNT}')
    a('v_mov_b32 v10, s4')
    a('v_mov_b32 v11, 1')
    a.wait(hst)
    a('s_mov_b64 exec, 1')
    a('ds_add_rtn_u32 v11, v10, v11')
    a('s_mov_b64 exec, -1')
    a.wait_lg0()
    a('v_readfirstlane_b32 s5, v11')
    a(f's_lshl_b32 s4, s12, {FSH}')
    a(f's_add_u32 s4, s4, {FH_OFF}')
    a('s_cmp_lg_u32 s5, 3')
    a('s_cbranch_scc1 L_nofh')
    flag_set(a, 4)
    a.label('L_nofh')
    a.wait_vm0()
    flag_set(a, 10)
    stamp(a, 'prep')
    a(f's_mov_b32 s{sL}, {fbits(LOG2E)}')
    a(f's_mov_b32 s{sL + 1}, {fbits(LOG2E)}')
    a(f's_mov_b32 s{sNL}, {fbits(-LOG2E)}')
    a(f's_mov_b32 s{sNL + 1}, {fbits(-LOG2E)}')
    a(f's_mul_i32 s10, s{sHG}, 60')
    a(f's_lshl_b32 s4, s10, {FSH}')
    a(f's_add_u32 s4, s4, {FU_OFF}')
    if 'fewpoll' in EXP:
        a(f'v_min_u32 v20, 14, v{vI}')
        a(f'v_lshl_add_u32 v20, v20, 2, s{sW}')
        a(f'v_lshl_add_u32 v20, v20, {FSH}, s4')
    else:
        a(f'v_lshl_add_u32 v20, v{vL}, {FSH}, s4')
    a(f's_lshl_b32 s11, s{sRB}, 2')
    a(f's_add_u32 s11, s11, s{sW}')
    a(f's_lshl_b32 s4, s11, {FSH + 2}')
    a(f's_add_u32 s4, s4, {FH_OFF}')
    a(f'v_lshl_add_u32 v21, v{vC}, {FSH}, s4')
    if 'fewpoll' in EXP:
        a(f's_cmp_lg_u32 s{sWH}, 0')
        a('s_cselect_b64 vcc, -1, 0')
    else:
        a(f'v_cmp_gt_u32 vcc, 60, v{vL}')
    a('v_cndmask_b32 v20, v21, v20, vcc')
    a(f's_add_u32 s10, s10, s{sW}')
    a('s_mul_i32 s10, s10, 5120')
    a(f's_add_u32 s10, s10, {WF_OFF}')
    a(f's_add_u32 s9, s10, {40 * 5120}')
    a(f's_mul_i32 s{sM0B}, s{sW}, 5120')
    a('s_mul_i32 s11, s11, 40960')
    a(f's_add_u32 s11, s11, {XF_OFF}')
    a(f'v_add_u32 v10, 20480, v{vLN}')
    a(f'v_add_u32 v26, {L_RING}, v{vLN}')
    a(f'v_add_u32 v27, 61440, v{vLN}')

    def wphi_frags(WPF, wbase, zbase):
        a(f'v_mul_u32_u24 v22, 800, v{vG}')
        a(f'v_mul_u32_u24 v23, 40, v{vR}')
        a('v_add_u32 v22, v22, v23')
        a(f'v_add_u32 v22, {wbase}, v22')
        a(f'v_mov_b32 v23, {zbase}')
        a(f'v_cmp_eq_u32 vcc, v{vG}, v{vC}')
        a('v_cndmask_b32 v22, v23, v22, vcc')
        for t in range(5):
            for d4 in range(5):
                a(f'ds_read_b64_tr_b16 {V(WPF(t, d4 // 2) + 2 * (d4 % 2), 2)}, v22 offset:{4 * d4 * 40 + 8 * t}')

    Q = lambda k: 48 + 4 * k
    WPF = lambda t, ks: Q(2 * t + ks) if ks < 2 else Q(10 + t // 2) + 2 * (t % 2)
    a('s_barrier')
    wphi_frags(WPF, L_WPHI, L_ZERO)
    a.wait_lg0()
    a('s_barrier')
    flag_check(a, flag_issue(a, 20, 21), 20, 21)
    stamp(a, 'go')

    def xload(dst, ks, z):
        off = f' offset:{(ks % 4) * 1024}' if ks % 4 else ''
        t = a(f'buffer_load_dwordx4 {V(dst, 4)}, v{vLN if z == 0 else 10}, {S(sWS, 4)}, s11 offen{off} sc1')
        if ks % 4 == 3 and z == 1:
            a('s_add_u32 s11, s11, 4096')
        return t

    a(f's_cmp_lg_u32 s{sWH}, 0')
    a('s_cbranch_scc1 L_a_upper')
    at_split = a.save()
    a('s_setprio 2')
    AC = lambda k, z: Q(13 + 2 * k + z)
    XR = lambda ks, z: Q(33 + (ks % 6) * 2 + z)
    FW = lambda n: Q(45 + n % 7)
    xtok = {}
    for ks in range(5):
        for z in range(2):
            xtok[ks] = xload(XR(ks, z), ks, z)
    a('s_barrier')
    stamp(a, 'a0')
    WIN, NF = 6, 200
    ftok = {}

    def read_frag(n):
        d, r = divmod(n, 20)
        ftok[n] = a(f'ds_read_b128 {V(FW(n), 4)}, v26 offset:{(d % 3) * 20480 + r * 1024}')

    for n in range(WIN):
        read_frag(n)
    for n in range(NF):
        nn = n + WIN
        if nn < NF:
            if nn % 20 == 0:
                a.wait_lg0()
                a('s_barrier')
                if (nn // 20) % 3 == 0:
                    stamp(a, f'a{nn // 20}')
            read_frag(nn)
        ks, k = divmod(n, 10)
        a.wait(ftok[n], xtok[ks])
        for z in range(2):
            c = '0' if ks == 0 else V(AC(k, z), 4)
            a(f'v_mfma_f32_16x16x32_bf16 {V(AC(k, z), 4)}, {V(FW(n), 4)}, {V(XR(ks, z), 4)}, {c}')
        if k in (2, 6) and ks + 5 < 20:
            xtok[ks + 5] = xload(XR(ks + 5, k // 4), ks + 5, k // 4)
    a('s_barrier')
    stamp(a, 'aend')
    vSA, vKA, vKO = 8, 9, 12
    a(f's_lshl_b32 s4, s{sW}, 5')
    a(f'v_lshl_add_u32 v{vSA}, v{vG}, 7, v{vI}')
    a(f'v_add_u32 v{vSA}, s4, v{vSA}')
    a(f'v_mul_u32_u24 v{vSA}, 120, v{vSA}')
    a(f'v_add_u32 v{vSA}, {L_RING}, v{vSA}')
    for z in range(2):
        for t in range(5):
            r = AC(5 + t, z)
            a(f'v_cvt_pk_bf16_f32 v{r}, v{r}, v{r + 1}')
            a(f'v_cvt_pk_bf16_f32 v{r + 1}, v{r + 2}, v{r + 3}')
            a(f'ds_write_b64 v{vSA}, {V(r, 2)} offset:{z * 16 * 120 + 80 + 8 * t}')
    PK = [Q(33), Q(34), Q(35)]
    EN5 = [Q(36 + c) for c in range(5)]
    for z in range(2):
        E5 = [AC(t, z) for t in range(5)]
        P5 = [Q(41 + 5 * z + c) for c in range(5)]
        featmap(a, E5, PK, WPF, P5, E5, EN5, 32)
        for c in range(10):
            a(f'ds_write_b64 v{vSA}, {V(P5[c // 2] + 2 * (c % 2), 2)} offset:{z * 16 * 120 + 8 * c}')
    stamp(a, 'fm')
    a(f's_mul_i32 s4, s{sW}, {128 * 120}')
    a(f's_add_u32 s4, s4, {L_RING}')
    a(f'v_mul_u32_u24 v{vKA}, 120, v{vGR}')
    a(f'v_lshl_add_u32 v{vKA}, v{vC}, 3, v{vKA}')
    a(f'v_add_u32 v{vKA}, s4, v{vKA}')
    a(f's_lshl_b32 s4, s{sHG}, 2')
    a(f's_add_u32 s4, s4, s{sW}')
    a('s_lshl_b32 s4, s4, 4')
    a(f's_add_u32 s13, s4, s{sRB}')
    a('s_mul_i32 s4, s13, 6144')
    a(f's_add_u32 s4, s4, {KV_OFF}')
    a(f'v_lshl_add_u32 v{vKO}, v{vL}, 4, s4')
    a('s_movk_i32 s12, 0x1000')
    a(f'v_mov_b32 v11, {OOB}')
    a(f'v_cmp_gt_u32 vcc, 8, v{vI}')
    a(f'v_cndmask_b32 v{vKO + 1}, v11, v{vKO}, vcc')
    a(f'v_cmp_gt_u32 vcc, 2, v{vG}')
    a(f'v_cndmask_b32 v{vKO + 2}, v11, v{vKO}, vcc')
    a(f'v_cndmask_b32 v{vKO + 3}, v11, v{vKO + 1}, vcc')
    a(f's_lshl_b32 s13, s13, {FSH}')
    a(f's_add_u32 s10, s13, {FK_OFF}')
    a('v_mov_b32 v11, 0x3f803f80')
    a(f'v_cmp_eq_u32 vcc, 1, v{vR}')
    a.wait_lg0()
    a('s_barrier')
    ktok = {}
    OPQ = lambda kk, x: Q(13 + kk * 5 + x)
    KVA = [Q(k) for k in range(6)]

    def kv_read(kk):
        for x in range(5):
            col = 32 * x if x < 3 else 80 + 32 * (x - 3)
            a(f'ds_read_b64_tr_b16 {V(OPQ(kk, x), 2)}, v{vKA} offset:{kk * 32 * 120 + col}')
            ktok[kk] = a(f'ds_read_b64_tr_b16 {V(OPQ(kk, x) + 2, 2)}, v{vKA} offset:{kk * 32 * 120 + 16 * 120 + col}')

    kv_read(0)
    for kk in range(4):
        if kk + 1 < 4:
            kv_read(kk + 1)
        a.wait(ktok[kk])
        for j in range(4):
            a(f'v_cndmask_b32 v{OPQ(kk, 4) + j}, v{OPQ(kk, 4) + j}, v11, vcc')
        for et in range(2):
            for ft in range(3):
                d = V(KVA[ft * 2 + et], 4)
                a(f'v_mfma_f32_16x16x32_bf16 {d}, {V(OPQ(kk, 3 + et), 4)}, {V(OPQ(kk, ft), 4)}, {"0" if kk == 0 else d}')
    for ft in range(3):
        for et in range(2):
            vo = vKO + (1 if ft == 2 else 0) + (2 if et == 1 else 0)
            so = 's12' if ft == 2 else '0'
            a(f'buffer_store_dwordx4 {V(KVA[ft * 2 + et], 4)}, v{vo}, {S(sWS, 4)}, {so} offen offset:{(ft % 2) * 2048 + et * 1024} sc1')
    a.wait_vm0()
    flag_set(a, 10)
    a(f's_mov_b32 s10, {OOB}')
    if 'pfa' in EXP:
        a(f's_lshr_b32 s4, s{sID}, 3')
        a('s_lshl_b32 s4, s4, 2')
        a(f's_add_u32 s4, s4, s{sW}')
        a(f's_mul_i32 s5, s4, {27 * 4096}')
        a(f's_and_b32 s7, s{sID}, 7')
        a('s_lshl_b32 s7, s7, 9')
        a('s_add_u32 s5, s5, s7')
        a(f'v_lshrrev_b32 v24, 2, v{vL}')
        a('v_min_u32 v24, 13, v24')
        a('v_lshlrev_b32 v24, 12, v24')
        a(f'v_lshl_add_u32 v24, v{vC}, 7, v24')
        a('v_add_u32 v24, s5, v24')
        a(f'buffer_load_dword v37, v24, {S(sW2, 4)}, 0 offen')
        a(f'v_add_u32 v24, {13 * 4096}, v24')
        a(f'buffer_load_dword v37, v24, {S(sW2, 4)}, 0 offen')
    a('s_barrier')
    a('s_branch L_join')

    a.label('L_a_upper')
    a.restore(at_split)
    wtok = {}

    def dma5(so, lds):
        a(f's_add_u32 m0, s{sM0B}, {lds}')
        for q in range(4):
            off = f' offset:{q * 1024}' if q else ''
            a(f'buffer_load_dwordx4 v{vLN}, {S(sWS, 4)}, s{so} offen{off} sc1 lds')
        a(f's_add_u32 m0, s{sM0B}, {lds + 4096}')
        t = a(f'buffer_load_dwordx4 v{vLN + 1}, {S(sWS, 4)}, s{so} offen sc1 lds')
        a(f's_add_u32 s{so}, s{so}, 20480')
        return t

    NXR = 12
    XQ_ = lambda ks, z: Q(13 + (ks % NXR) * 2 + z)
    AQ = lambda t, z: Q(37 + 2 * t + z)
    FQ = lambda n: Q(47 + n % 5)
    xtok = {}
    for d in range(3):
        wtok[d] = dma5(10, L_RING + d * 20480)
    for d in range(10):
        a.wait(wtok[d])
        a('s_barrier')
        if 1 <= d and d + 2 < 10:
            wtok[d + 2] = dma5(10, L_RING + ((d + 2) % 3) * 20480)
        if d < 5:
            qtok = dma5(9, L_WQ + d * 20480)
        if 4 <= d < 10:
            for ks in (2 * (d - 4), 2 * (d - 4) + 1):
                for z in range(2):
                    xtok[ks] = xload(XQ_(ks, z), ks, z)
    a.wait(qtok)
    a('s_barrier')
    ftok = {}

    def read_q(n):
        off = n * 1024
        ftok[n] = a(f'ds_read_b128 {V(FQ(n), 4)}, v{vLN if off < 61440 else 27} offset:{off % 61440}')

    QBAR = int(os.environ.get('QBAR', '-1'))
    if QBAR < 0:
        a('s_barrier')
    for n in range(4):
        read_q(n)
    for n in range(100):
        if n + 4 < 100:
            read_q(n + 4)
        ks, t = divmod(n, 5)
        a.wait(ftok[n], xtok[ks])
        for z in range(2):
            c = '0' if ks == 0 else V(AQ(t, z), 4)
            a(f'v_mfma_f32_16x16x32_bf16 {V(AQ(t, z), 4)}, {V(FQ(n), 4)}, {V(XQ_(ks, z), 4)}, {c}')
        if t in (1, 3) and ks >= 1 and ks - 1 + NXR < 20:
            xtok[ks - 1 + NXR] = xload(XQ_(ks - 1 + NXR, t // 2), ks - 1 + NXR, t // 2)
        if n == QBAR:
            a('s_barrier')
    a('s_barrier')
    stamp(a, 'aend')
    PK = [Q(13), Q(14), Q(15)]
    EN5 = [Q(16 + c) for c in range(5)]
    PP = [[Q(21 + 5 * z + c) for c in range(5)] for z in range(2)]
    for z in range(2):
        E5 = [AQ(t, z) for t in range(5)]
        featmap(a, E5, PK, WPF, PP[z], E5, EN5, 32)
    stamp(a, 'fm')
    a('s_setprio 3')
    a(f's_mul_i32 s6, s{sW}, 10240')
    a(f's_add_u32 s6, s6, {L_RING}')
    a(f'v_lshlrev_b32 v31, 11, v{vG}')
    a(f'v_lshl_add_u32 v31, v{vR}, 3, v31')
    a('v_mov_b32 v21, 8192')
    a(f'v_cmp_eq_u32 vcc, v{vG}, v{vC}')
    a('v_cndmask_b32 v31, v21, v31, vcc')
    a('v_add_u32 v31, s6, v31')
    for k in range(4):
        a(f'v_mov_b32 v{44 + k}, 0')
    a(f'v_add_u32 v21, s6, v{vLN}')
    a('ds_write_b128 v21, v[44:47] offset:8192')
    a('ds_write_b128 v21, v[44:47] offset:9216')
    a(f's_lshl_b32 s4, s{sHG}, {4 + FSH}')
    a(f's_add_u32 s4, s4, {FR_OFF}')
    a(f'v_lshl_add_u32 v20, v{vI}, {FSH}, s4')
    a(f'v_lshlrev_b32 v8, 4, v{vL}')
    a('v_add_u32 v9, 4096, v8')
    a(f'v_lshlrev_b32 v10, 3, v{vL}')
    a(f's_lshl_b32 s5, s{sHG}, 13')
    a(f's_add_u32 s5, s5, {KB_OFF}')
    a(f's_lshl_b32 s7, s{sRB}, 1')
    a(f's_lshr_b32 s8, s{sW}, 1')
    a('s_add_u32 s7, s7, s8')
    a(f's_and_b32 s8, s{sW}, 1')
    a('s_lshl_b32 s8, s8, 1')
    a(f's_lshr_b32 s12, s{sHG}, 1')
    a('s_mul_i32 s12, s12, 5')
    a('s_mul_i32 s13, s7, 20')
    a('s_add_u32 s12, s12, s13')
    a('s_lshl_b32 s12, s12, 2')
    a('s_add_u32 s12, s12, s8')
    a('s_lshl_b32 s12, s12, 10')
    a(f's_add_u32 s12, s12, {OF_OFF}')
    a(f's_and_b32 s13, s{sHG}, 1')
    a(f's_mul_i32 s14, s13, {3 * 4096}')
    a('s_add_u32 s14, s14, s12')
    a('s_lshl_b32 s13, s13, 9')
    a('s_add_u32 s12, s12, s13')
    a(f's_add_u32 s12, s12, {2 * 4096}')
    a('s_lshl_b32 s13, s7, 3')
    a(f's_add_u32 s13, s13, s{sHG}')
    a('s_lshl_b32 s13, s13, 2')
    a('s_add_u32 s13, s13, s8')
    a(f's_lshl_b32 s13, s13, {FSH}')
    a(f's_add_u32 s13, s13, {FO_OFF}')
    flag_check(a, flag_issue(a, 20, 21), 20, 21, int(os.environ.get('RSLEEP', '8')))
    stamp(a, 'rok')
    for hh in range(2):
        a(f's_add_u32 m0, s6, {4096 * hh}')
        for q in range(4):
            off = f' offset:{q * 1024}' if q else ''
            a(f'buffer_load_dwordx4 v{8 + hh}, {S(sWS, 4)}, s5 offen{off} sc1 lds')
    a.wait_all()
    OA = [[Q(31 + k) for k in range(6)], [Q(37 + k) for k in range(6)]]
    KF = lambda ks, t: Q((ks % 2) * 6 + t)
    otok = {}

    def o_read(ks):
        for t in range(6):
            a(f'ds_read_b64_tr_b16 {V(KF(ks, t), 2)}, v31 offset:{kb_pos(8 * ks, t)}')
            otok[ks] = a(f'ds_read_b64_tr_b16 {V(KF(ks, t) + 2, 2)}, v31 offset:{kb_pos(8 * ks + 4, t)}')

    o_read(0)
    for ks in range(5):
        if ks + 1 < 5:
            o_read(ks + 1)
        a.wait(otok[ks])
        for z in range(2):
            for t in range(6):
                d = V(OA[z][t], 4)
                a(f'v_mfma_f32_16x16x32_bf16 {d}, {V(KF(ks, t), 4)}, {V(PP[z][ks], 4)}, {"0" if ks == 0 else d}')
    for z in range(2):
        O = OA[z]
        PO = PK if z == 0 else [Q(16), Q(17), Q(18)]
        a(f'v_add_f32 v{O[5]}, {fbits(1e-6)}, v{O[5]}')
        a(f'v_rcp_f32 v{O[5]}, v{O[5]}')
        for t in range(5):
            for h in range(2):
                a(f'v_pk_mul_f32 {V(O[t] + 2 * h, 2)}, {V(O[t] + 2 * h, 2)}, {V(O[5], 2)} op_sel_hi:[1,0]')
        for k in range(10):
            t, j = divmod(2 * k, 4)
            a(f'v_cvt_pk_bf16_f32 v{PO[k // 4] + k % 4}, v{O[t] + j}, v{O[t] + j + 1}')
        off = f' offset:{1024 * z}' if z else ''
        a(f'buffer_store_dwordx4 {V(PO[0], 4)}, v8, {S(sWS, 4)}, s14 offen{off} sc1')
        a(f'buffer_store_dwordx4 {V(PO[1], 4)}, v9, {S(sWS, 4)}, s14 offen{off} sc1')
        a(f'buffer_store_dwordx2 {V(PO[2], 2)}, v10, {S(sWS, 4)}, s12 offen{off} sc1')
    a.wait_vm0()
    flag_set(a, 13)
    a(f's_cmp_lg_u32 s{sID}, 0')
    a('s_cbranch_scc1 L_a_done')
    a(f's_cmp_lg_u32 s{sW}, 3')
    a('s_cbranch_scc1 L_a_done')
    a(f'v_and_b32 v20, 31, v{vL}')
    a('v_min_u32 v20, 26, v20')
    a(f'v_and_b32 v21, 32, v{vL}')
    a('v_add_u32 v20, v20, v21')
    a(f'v_lshlrev_b32 v20, {FSH + 2}, v20')
    for k in range(4):
        a(f'v_add_u32 v22, {FG_OFF + (k * 256 << FSH)}, v20')
        flag_check(a, flag_issue(a, 22, 21), 22, 21, 12)
    a(f'v_lshlrev_b32 v20, {FSH}, v{vL}')
    for base in (FR_OFF, FR_OFF + (64 << FSH)):
        a(f'v_add_u32 v22, {base}, v20')
        flag_check(a, flag_issue(a, 22, 21), 22, 21, 12)
    a(f'v_and_b32 v20, 31, v{vL}')
    a(f'v_lshlrev_b32 v20, {FSH}, v20')
    a(f'v_add_u32 v22, {FW_OFF}, v20')
    flag_check(a, flag_issue(a, 22, 21), 22, 21, 12)
    a(f's_mov_b32 s10, {EP_OFF}')
    flag_set(a, 10)
    a.label('L_a_done')
    stamp_flush(a, 'end')
    a('s_endpgm')


def role_b(a):
    if 'map4' in EXP:
        a(f's_lshr_b32 s{sBCB}, s6, 2')
        a('s_and_b32 s9, s6, 3')
        a('s_lshl_b32 s6, s9, 1')
    else:
        a('s_cmp_ge_u32 s6, 54')
        a('s_cselect_b32 s7, 54, 0')
        a('s_cselect_b32 s8, 4, 0')
        a('s_sub_u32 s6, s6, s7')
        a(f's_lshr_b32 s{sBCB}, s6, 1')
        a('s_and_b32 s9, s6, 1')
        a('s_lshl_b32 s6, s9, 1')
        a('s_add_u32 s6, s6, s8')
    PR = 24 if 'map4' in EXP else 48
    a(f's_add_u32 s{sBDB}, s6, s{sWH}')
    srd(a, sW1, P_W1, S_ * F_ * 2)
    g_common(a)
    gB = GGemm(a, 'B')
    gB.setup()
    BPRE = int(os.environ.get('BPRE', '10'))
    if 'g1lin' in EXP:
        a(f's_lshl_b32 s4, s{sBCB}, 2')
        a('s_add_u32 s4, s4, s9')
        a('s_lshl_b32 s4, s4, 3')
        a(f's_add_u32 s4, s4, s{sW8}')
        a('s_lshl_b32 s4, s4, 13')
        a(f'v_lshl_add_u32 v24, v{vL}, 7, s4')
        a(f'buffer_load_dword v37, v24, {S(sW1, 4)}, 0 offen')
        if 'g1wait' in EXP:
            a.wait_vm0()
    if 'g1first' in EXP:
        a('s_lshl_b32 s4, s9, 1')
        a(f's_add_u32 s4, s4, s{sWH}')
        a(f's_lshl_b32 s5, s{sW}, 9')
        a('s_add_u32 s4, s4, s5')
        a(f's_mul_i32 s4, s4, {F_ * 2}')
        a(f's_lshl_b32 s5, s{sBCB}, 7')
        a('s_add_u32 s4, s4, s5')
        a(f'v_mul_u32_u24 v24, {8 * F_ * 2}, v{vL}')
        a('v_add_u32 v24, s4, v24')
        a(f'buffer_load_dword v37, v24, {S(sW1, 4)}, 0 offen')
    for j in range(BPRE):
        Hooks(gB.dma_items(j)).flush()

    def b_extra(j):
        return []

    a('s_lshl_b32 s4, s9, 1')
    a(f's_add_u32 s4, s4, s{sWH}')
    a(f's_mul_i32 s4, s4, {PR}')
    a(f's_lshl_b32 s5, s{sW}, 9')
    a('s_add_u32 s4, s4, s5')
    a(f's_add_u32 s4, s4, {32 * B_P}')
    a(f's_mul_i32 s4, s4, {F_ * 2}')
    a(f's_lshl_b32 s5, s{sBCB}, 7')
    a('s_add_u32 s4, s4, s5')
    a(f'v_min_u32 v24, {PR - 1}, v{vL}')
    a(f'v_mul_u32_u24 v24, {F_ * 2}, v24')
    a('v_add_u32 v24, s4, v24')
    if 'g1first' not in EXP and 'nog1' not in EXP:
        a(f'buffer_load_dword v37, v24, {S(sW1, 4)}, 0 offen')
    srd(a, sAUX, P_B1, F_ * 2)
    a(f's_lshl_b32 s4, s{sBCB}, 7')
    a(f's_lshl_b32 s5, s{sW}, 5')
    a('s_add_u32 s4, s4, s5')
    a(f'v_lshl_add_u32 v24, v{vG}, 3, s4')
    a(f'buffer_load_dwordx2 v[38:39], v24, {S(sAUX, 4)}, 0 offen')
    tag_ready(a)
    a('s_barrier')
    stamp(a, 'prep')
    a(f's_cmp_lg_u32 s{sWH}, 0')
    a('s_cbranch_scc1 L_b_go')
    flag_check(a, flag_issue(a, vFL, vFD), vFL, vFD, 3)
    a.label('L_b_go')
    a.wait_vm0()
    a('s_barrier')
    stamp(a, 'go')
    Hooks(gB.frag_items(int(os.environ.get('FIRSTB', '25')))).flush()
    for j in range(BPRE, B_P):
        Hooks(gB.dma_items(j)).flush()

    gB.mainloop(b_extra)
    stamp(a, 'Bend')
    gB.reduce()
    R = lambda t, j: ACC(t, 0) + j
    T = lambda t, j: ACC(t, 1) + j
    a('v_lshlrev_b32 v34, 16, v38')
    a('v_and_b32 v35, 0xffff0000, v38')
    a('v_lshlrev_b32 v36, 16, v39')
    a('v_and_b32 v37, 0xffff0000, v39')
    c0 = 0.7978845608028654
    k1 = -2.0 * c0 * LOG2E
    k2 = k1 * 0.044715
    a(f's_mov_b32 s4, {fbits(k2)}')
    a(f's_mov_b32 s5, {fbits(k2)}')
    a(f'v_mov_b32 v24, {fbits(k1)}')
    a('v_mov_b32 v26, 1.0')
    th = [(t, h) for t in range(5) for h in range(2)]
    tj = [(t, j) for t in range(5) for j in range(4)]
    for t, h in th:
        a(f'v_pk_add_f32 {V(R(t, 2 * h), 2)}, {V(R(t, 2 * h), 2)}, {V(34 + 2 * h, 2)}')
    for t, h in th:
        a(f'v_pk_mul_f32 {V(T(t, 2 * h), 2)}, {V(R(t, 2 * h), 2)}, {V(R(t, 2 * h), 2)}')
    for t, h in th:
        a(f'v_pk_fma_f32 {V(T(t, 2 * h), 2)}, {V(T(t, 2 * h), 2)}, s[4:5], v[24:25] op_sel_hi:[1,0,0]')
    for t, h in th:
        a(f'v_pk_mul_f32 {V(T(t, 2 * h), 2)}, {V(T(t, 2 * h), 2)}, {V(R(t, 2 * h), 2)}')
    for t, j in tj:
        a(f'v_exp_f32 v{T(t, j)}, v{T(t, j)}')
    for t, h in th:
        a(f'v_pk_add_f32 {V(T(t, 2 * h), 2)}, {V(T(t, 2 * h), 2)}, v[26:27] op_sel_hi:[1,0]')
    for t, j in tj:
        a(f'v_rcp_f32 v{T(t, j)}, v{T(t, j)}')
    for t, h in th:
        a(f'v_pk_mul_f32 {V(T(t, 2 * h), 2)}, {V(T(t, 2 * h), 2)}, {V(R(t, 2 * h), 2)}')
    a(f's_mul_i32 s4, s{sW8}, 2560')
    a('s_add_u32 s4, s4, 81920')
    a(f'v_lshl_add_u32 v24, v{vL}, 3, s4')
    for t in range(5):
        a(f'v_cvt_pk_bf16_f32 v{R(t, 0)}, v{T(t, 0)}, v{T(t, 1)}')
        a(f'v_cvt_pk_bf16_f32 v{R(t, 1)}, v{T(t, 2)}, v{T(t, 3)}')
        a(f'ds_write_b64 v24, {V(R(t, 0), 2)} offset:{t * 512}')
    a(f's_mul_i32 s4, s{sBDB}, 74')
    a(f's_lshl_b32 s5, s{sBCB}, 1')
    a('s_add_u32 s4, s4, s5')
    a('s_mul_i32 s4, s4, 5120')
    a(f's_add_u32 s15, s4, {GF_OFF}')
    a(f's_mul_i32 s4, s{sWH}, 10240')
    a('s_add_u32 s4, s4, 81920')
    a(f'v_lshl_add_u32 v25, v{vL}, 3, s4')
    a.wait_lg0()
    a('s_barrier')
    gt = []
    for m in range(3):
        frag10_addr(a, m, 2 * 2560 - 5 * 512, 512, 15, 24, 25, 34 + m)
        a(f'ds_read_b64 {V(ACC(m, 2), 2)}, v24')
        gt.append(a(f'ds_read_b64 {V(ACC(m, 2) + 2, 2)}, v24 offset:2560'))
    for m in range(3):
        a.wait(gt[m])
        a(f'buffer_store_dwordx4 {V(ACC(m, 2), 4)}, v{34 + m}, {S(sWS, 4)}, 0 offen sc1')
    a(f's_lshl_b32 s4, s{sBDB}, 5')
    a(f's_add_u32 s4, s4, s{sBCB}')
    a('s_lshl_b32 s4, s4, 2')
    a(f's_add_u32 s4, s4, s{sW}')
    a(f's_lshl_b32 s4, s4, {FSH}')
    a(f's_add_u32 s10, s4, {FG_OFF}')
    a('s_branch L_join')


def role_r(a):
    a('s_lshl_b32 s11, s6, 1')
    a(f's_add_u32 s11, s11, s{sWH}')
    a('s_lshr_b32 s8, s6, 3')
    a('s_lshl_b32 s8, s8, 3')
    a(f's_add_u32 s8, s8, s{sW8}')
    a('s_getpc_b64 s[6:7]')
    a.raw('L_pc:')
    a(f's_sub_u32 s{sAUX}, s6, L_pc - L_start')
    a('s_subb_u32 s7, s7, 0')
    a(f's_and_b32 s{sAUX + 1}, s7, 0xffff')
    a(f's_mov_b32 s{sAUX + 2}, L_end - L_start')
    a(f's_mov_b32 s{sAUX + 3}, 0x20000')
    a('s_lshl_b32 s6, s8, 13')
    a(f'v_lshl_add_u32 v25, v{vL}, 7, s6')
    if 'nocpf' not in EXP:
        a(f'buffer_load_dword v37, v25, {S(sAUX, 4)}, 0 offen')
    if 'notlb' not in EXP:
        a(f's_lshl_b32 s5, s8, 6')
        a(f'v_add_u32 v26, s5, v{vL}')
        a(f'v_mul_u32_u24 v27, {(WS_USED // 1024 + 127) // 128 * 128}, v26')
        a(f'buffer_load_dword v37, v27, {S(sWS, 4)}, 0 offen sc1')
        a('v_lshlrev_b32 v27, 13, v26')
        a(f'buffer_load_dword v37, v27, {S(sW2, 4)}, 0 offen')
        srd(a, sOUT, P_OUT, S_ * D_ * 2)
        a('v_lshlrev_b32 v27, 12, v26')
        a(f'buffer_load_dword v37, v27, {S(sOUT, 4)}, 0 offen sc1')
        srd(a, sAUX, P_B2, S_ * 2)
        a(f'buffer_load_dword v37, v27, {S(sAUX, 4)}, 0 offen')
    if 'wqlin' in EXP:
        srd(a, sWQ, P_WQKV, D_ * 3 * D_ * 2)
        a(f's_sub_u32 s5, s{sID}, 240')
        a('s_lshl_b32 s5, s5, 3')
        a(f's_add_u32 s5, s5, s{sW8}')
        a('s_mul_i32 s5, s5, 24576')
        a(f'v_lshl_add_u32 v26, v{vL}, 7, s5')
        for k in range(3):
            a(f'buffer_load_dword v37, v26, {S(sWQ, 4)}, 0 offen')
            a('v_add_u32 v26, 8192, v26')
    if 'w2lin' in EXP:
        a(f's_sub_u32 s5, s{sID}, 240')
        a('s_lshl_b32 s5, s5, 3')
        a(f's_add_u32 s5, s5, s{sW8}')
        a('s_lshl_b32 s5, s5, 13')
        a(f'v_lshl_add_u32 v38, v{vL}, 7, s5')
    if 'g2map8' in EXP:
        a(f's_mul_i32 s5, s8, {108 * 4096}')
        a(f's_and_b32 s7, s{sID}, 7')
        a('s_lshl_b32 s7, s7, 9')
        a('s_add_u32 s5, s5, s7')
        a(f'v_lshrrev_b32 v24, 2, v{vL}')
        a('v_lshlrev_b32 v24, 12, v24')
        a(f'v_lshl_add_u32 v24, v{vC}, 7, v24')
        a('v_add_u32 v24, s5, v24')
    else:
        a('s_mul_i32 s5, s8, 54')
        a(f's_and_b32 s7, s{sID}, 1')
        a('s_mul_i32 s7, s7, 864')
        a('s_add_u32 s5, s5, s7')
        a('s_lshl_b32 s5, s5, 12')
        a(f's_and_b32 s7, s{sID}, 6')
        a('s_lshl_b32 s7, s7, 9')
        a('s_add_u32 s5, s5, s7')
        a(f'v_lshrrev_b32 v24, 3, v{vL}')
        a(f'v_and_b32 v25, 7, v{vL}')
        a('v_lshlrev_b32 v24, 12, v24')
        a('v_lshl_add_u32 v24, v25, 7, v24')
        a('v_add_u32 v24, s5, v24')
    tag_ready(a)
    a(f'v_mov_b32 v{vFL}, {FH_OFF}')
    if 'pf2now' not in EXP:
        flag_check(a, flag_issue(a, vFL, vFD), vFL, vFD, 16)
    PFA = int(os.environ.get('PFA', '0'))
    a('v_mov_b32 v36, v38' if 'w2lin' in EXP else 'v_mov_b32 v36, v24')
    for k in range(PFA):
        a(f'buffer_load_dword v37, v36, {S(sW2, 4)}, 0 offen')
        a(f'v_add_u32 v36, {(16 if "g2map8" in EXP else 8) * 4096}, v36')
        if k % 2 == 1 and 'pf2fast' not in EXP:
            a.wait_vm0()
    stamp(a, 'prep')
    a('s_setprio 3')
    a(f's_lshl_b32 s4, s11, {4 + FSH}')
    a(f's_add_u32 s4, s4, {FK_OFF}')
    a(f'v_lshl_add_u32 v{vFL}, v{vI}, {FSH}, s4')
    a(f's_lshl_b32 s5, s{sW}, 11')
    a(f'v_lshl_add_u32 v24, v{vL}, 4, s5')
    a(f'v_lshrrev_b32 v25, 5, v{vL}')
    a(f'v_and_b32 v26, 31, v{vL}')
    a('v_lshlrev_b32 v26, 4, v26')
    a('v_lshl_add_u32 v25, v25, 11, v26')
    a('v_add_u32 v25, 1024, v25')
    a(f's_cmp_eq_u32 s{sW}, 2')
    a('s_cselect_b64 vcc, -1, 0')
    a('v_cndmask_b32 v24, v24, v25, vcc')
    a(f'v_lshrrev_b32 v25, 3, v{vL}')
    a(f'v_and_b32 v26, 7, v{vL}')
    a('v_lshlrev_b32 v26, 4, v26')
    a('v_lshl_add_u32 v25, v25, 8, v26')
    a('v_add_u32 v25, 4096, v25')
    a(f's_cmp_eq_u32 s{sW}, 3')
    a('s_cselect_b64 vcc, -1, 0')
    a('v_cndmask_b32 v24, v24, v25, vcc')
    a(f's_mul_i32 s4, s11, {16 * 6144}')
    a(f's_add_u32 s4, s4, {KV_OFF}')
    flag_check(a, flag_issue(a, vFL, vFD), vFL, vFD, int(os.environ.get('KSLEEP', '4')))
    stamp(a, 'hok')
    stok = []
    for rb in range(16):
        stok.append(a(f'buffer_load_dwordx4 {V(128 + 4 * rb, 4)}, v24, {S(sWS, 4)}, s4 offen sc1'))
        a('s_add_u32 s4, s4, 6144')
    for rb in range(1, 16):
        a.wait(stok[rb])
        for h in range(2):
            a(f'v_pk_add_f32 {V(128 + 2 * h, 2)}, {V(128 + 2 * h, 2)}, {V(128 + 4 * rb + 2 * h, 2)}')
    stamp(a, 'rsum')
    a('v_cvt_pk_bf16_f32 v34, v128, v129')
    a('v_cvt_pk_bf16_f32 v35, v130, v131')
    a('s_lshl_b32 s4, s11, 11')
    a(f's_add_u32 s4, s4, {KB_OFF}')
    a(f'v_lshl_add_u32 v24, v{vTH}, 3, s4')
    a(f'buffer_store_dwordx2 v[34:35], v24, {S(sWS, 4)}, 0 offen sc1')
    a('s_lshl_b32 s4, s11, 2')
    a(f's_add_u32 s4, s4, s{sW}')
    a(f's_lshl_b32 s4, s4, {FSH}')
    a(f's_add_u32 s10, s4, {FR_OFF}')
    a.wait_vm0()
    flag_set(a, 10)
    a(f's_mov_b32 s10, {OOB}')
    stamp(a, 'rpub')
    a('s_barrier')
    for k in range(PFA, 0 if 'nopf2' in EXP else 7):
        a(f'buffer_load_dword v37, v36, {S(sW2, 4)}, 0 offen')
        a(f'v_add_u32 v36, {8 * 4096}, v36')
    a('s_branch L_join')


def role_wot(a):
    a('s_lshl_b32 s11, s6, 1')
    a(f's_add_u32 s11, s11, s{sWH}')
    srd(a, sAUX, P_WO, D_ * D_ * 2)
    a(f'v_lshlrev_b32 v{vF}, 4, v{vL}')
    a(f'v_add_u32 v{vF + 1}, 4096, v{vF}')
    tag_ready(a)
    if 'wotlate' in EXP:
        a(f'v_mov_b32 v{vFL}, {FH_OFF}')
        flag_check(a, flag_issue(a, vFL, vFD), vFL, vFD, 16)
    dma160_voffs(a, 34, 1280, False, 24)
    a('s_mul_i32 s4, s11, 160')
    a(f's_mul_i32 s5, s{sW}, {160 * 1280}')
    a('s_add_u32 s7, s4, s5')
    a(f's_mul_i32 s6, s{sW8}, 20480')
    a(f'v_mul_u32_u24 v24, 20, v{vG}')
    a(f'v_add_u32 v24, v24, v{vR}')
    a('v_mul_u32_u24 v24, 160, v24')
    a(f'v_mul_u32_u24 v25, 40, v{vC}')
    a('v_add_u32 v24, v24, v25')
    a('v_add_u32 v24, s6, v24')
    a('s_mul_i32 s4, s11, 74')
    a(f's_mul_i32 s5, s{sW}, 5')
    a('s_add_u32 s4, s4, s5')
    a('s_add_u32 s4, s4, 54')
    a('s_mul_i32 s4, s4, 5120')
    a(f's_add_u32 s4, s4, {GF_OFF}')
    rounds = [[(0, 0, 0), (0, 1, 4), (1, 0, 8), (1, 1, 12), (2, 0, 16)],
              [(2, 1, 16), (3, 0, 0), (3, 1, 4), (4, 0, 8), (4, 1, 12)]]
    for rd in range(2):
        for k in range(3):
            a(f's_add_u32 s8, s7, {(rd * 80 + k * 32) * 1280}')
            dma160(a, 34, sAUX, 8, 6, k * 5120)
        a.wait_vm0()
        for u, hf, row in rounds[rd]:
            for t in range(5):
                a(f'ds_read_b64_tr_b16 {V(156 + (u * 5 + t) * 4 + 2 * hf, 2)}, v24 offset:{row * 160 + 8 * t}')
            a.wait_lg0()
    for u in range(5):
        for t in range(5):
            vo, off = (vF, t * 1024) if t < 4 else (vF + 1, 0)
            a(f'buffer_store_dwordx4 {V(156 + (u * 5 + t) * 4, 4)}, v{vo}, {S(sWS, 4)}, s4 offen offset:{off} sc1')
        a('s_add_u32 s4, s4, 5120')
    a('s_lshl_b32 s4, s11, 2')
    a(f's_add_u32 s4, s4, s{sW}')
    a(f's_lshl_b32 s4, s4, {FSH}')
    a(f's_add_u32 s10, s4, {FW_OFF}')
    a('s_barrier')


def final_gemm(a):
    g2 = GGemm(a, 'G2')
    if 'early_setup' in EXP:
        xcd_tile(a)
        g_common(a)
        g2.setup()
    a.wait_all()
    flag_set(a, 10)
    stamp(a, 'pub')
    a('s_setprio 0')
    a(f's_cmp_lg_u32 s{sWH}, 0')
    a('s_cbranch_scc1 L_fin')
    if 'early_setup' not in EXP:
        xcd_tile(a)
        g_common(a)
        g2.setup()
    for j in range(G2_P):
        Hooks(g2.dma_items(j)).flush()
    srd(a, sOUT, P_OUT, S_ * D_ * 2)
    R = lambda t, j: ACC(t, 0) + j
    T = lambda t, j: ACC(t, 1) + j
    srd(a, sAUX, P_B2, S_ * 2)
    a(f's_lshl_b32 s4, s{sRB}, {5 + FSH}')
    a(f's_lshl_b32 s5, s{sW}, {3 + FSH}')
    a('s_add_u32 s4, s4, s5')
    a(f's_add_u32 s4, s4, {FO_OFF}')
    a(f'v_lshl_add_u32 v34, v{vC}, {FSH + 1}, s4')
    a(f's_lshl_b32 s4, s{sHG}, 2')
    a(f's_add_u32 s4, s4, s{sW}')
    a(f's_lshl_b32 s4, s4, {FSH}')
    a(f's_add_u32 s4, s4, {FW_OFF}')
    a('v_mov_b32 v35, s4')
    a(f'v_cmp_gt_u32 vcc, 63, v{vL}')
    a(f'v_cndmask_b32 v{vFL}, v35, v{vFL}, vcc')
    for nt in range(4):
        a(f's_xor_b32 s4, s{sW}, {nt}')
        a('s_lshl_b32 s4, s4, 10')
        a(f'v_add_u32 v{vOF + nt}, s4, v{vF}')
    a(f's_mul_i32 s4, s{sRB}, 20')
    a(f's_mul_i32 s5, s{sW}, 5')
    a('s_add_u32 s4, s4, s5')
    a('s_lshl_b32 s4, s4, 12')
    a(f's_add_u32 s11, s4, {OF_OFF}')
    a(f'v_mul_u32_u24 v{vXA}, 1280, v{vTOK}')
    a(f'v_mul_u32_u24 v{vBA}, 40, v{vG}')
    a(f'v_add_u32 v{vXA}, v{vXA}, v{vBA}')
    a(f's_mul_i32 s4, s{sHG}, 160')
    a(f'v_add_u32 v{vXA}, s4, v{vXA}')
    a(f'v_lshlrev_b32 v{vBA}, 1, v{vTOK}')
    flag_check(a, flag_issue(a, vFL, vFD), vFL, vFD, int(os.environ.get('GSLEEP', '2')))
    stamp(a, 'gok')
    fl = {}

    def gate():
        a(f's_mul_i32 s4, s{sHG}, 74')
        a(f's_mul_i32 s5, s{sW}, 5')
        a('s_add_u32 s4, s4, s5')
        a('s_add_u32 s4, s4, 54')
        a('s_mul_i32 s4, s4, 5120')
        a(f's_add_u32 s{sFS}, s4, {GF_OFF}')

    def gate2():
        stamp(a, 'oa')
        flag_check(a, fl['o'], 34, 35)
        stamp(a, 'ob')

    g2.gate = gate
    g2.gate2 = gate2
    XR = [8, 10, 14, 16, 18]

    def g2_extra(j):
        it = []
        if j == 9:
            def fo():
                fl['o'] = flag_issue(a, 34, 35)
            it.append(fo)
        if j == int(os.environ.get('JRES', '16')):
            def resid():
                a(f'buffer_load_ushort v36, v{vBA}, {S(sAUX, 4)}, 0 offen')
                if 'inx4' in EXP:
                    a(f'buffer_load_dwordx4 v[8:11], v{vXA}, {S(sX, 4)}, 0 offen')
                    a(f'buffer_load_dwordx4 v[14:17], v{vXA}, {S(sX, 4)}, 0 offen offset:16')
                    fl['x'] = a(f'buffer_load_dwordx2 v[18:19], v{vXA}, {S(sX, 4)}, 0 offen offset:32')
                    return
                for t in range(5):
                    fl['x'] = a(f'buffer_load_dwordx2 {V(XR[t], 2)}, v{vXA}, {S(sX, 4)}, 0 offen offset:{8 * t}')
            it.append(resid)
        return it

    Hooks(g2.frag_items(int(os.environ.get('FIRSTG', '25')))).flush()
    g2.mainloop(g2_extra)
    stamp(a, 'Gend')
    g2.reduce()
    a.wait(fl['x'])
    a('v_lshlrev_b32 v36, 16, v36')
    for t in range(5):
        for h in range(2):
            a(f'v_lshlrev_b32 v{T(t, 2 * h)}, 16, v{XR[t] + h}')
            a(f'v_and_b32 v{T(t, 2 * h + 1)}, 0xffff0000, v{XR[t] + h}')
            a(f'v_pk_add_f32 {V(R(t, 2 * h), 2)}, {V(R(t, 2 * h), 2)}, v[36:37] op_sel_hi:[1,0]')
            a(f'v_pk_add_f32 {V(R(t, 2 * h), 2)}, {V(R(t, 2 * h), 2)}, {V(T(t, 2 * h), 2)}')
        OF_ = os.environ.get('OUTF', '')
        if 'outx4' in EXP:
            d = ACC(0, 2) + 2 * t
            a(f'v_cvt_pk_bf16_f32 v{d}, v{R(t, 0)}, v{R(t, 1)}')
            a(f'v_cvt_pk_bf16_f32 v{d + 1}, v{R(t, 2)}, v{R(t, 3)}')
            if t in (1, 3):
                a(f'buffer_store_dwordx4 {V(d - 2, 4)}, v{vXA}, {S(sOUT, 4)}, 0 offen offset:{8 * (t - 1)}{OF_}')
            if t == 4:
                a(f'buffer_store_dwordx2 {V(d, 2)}, v{vXA}, {S(sOUT, 4)}, 0 offen offset:32{OF_}')
            continue
        a(f'v_cvt_pk_bf16_f32 v{R(t, 0)}, v{R(t, 0)}, v{R(t, 1)}')
        a(f'v_cvt_pk_bf16_f32 v{R(t, 1)}, v{R(t, 2)}, v{R(t, 3)}')
        a(f'buffer_store_dwordx2 {V(R(t, 0), 2)}, v{vXA}, {S(sOUT, 4)}, 0 offen offset:{8 * t}{OF_}')
    a.label('L_fin')
    stamp_flush(a, 'end')


def build():
    a = Asm()
    hdr = open(os.path.join(os.path.dirname(__file__), '..', 'cdna_kernels', NAME + '.s.ref')).read().split('\n')
    for line in hdr:
        if line.startswith(';') and '@launch' not in line:
            a.raw(line)
    a.raw(f'; @launch grid=(256,1,1) block=(512,1,1) lds={LDS_BYTES}')
    a.raw('.amdgcn_target "amdgcn-amd-amdhsa--gfx950"')
    a.raw('.text')
    K = NAME + '_kernel'
    a.raw(f'.globl {K}')
    a.raw('.p2align 8')
    a.raw(f'.type {K},@function')
    a.raw(f'{K}:')
    a.raw('L_start:')
    a('s_cmp_ge_u32 s2, 256')
    a('s_cbranch_scc1 L_end')
    a('s_load_dwordx16 s[16:31], s[0:1], 0')
    a('s_load_dwordx8 s[32:39], s[0:1], 64')
    a(f'v_and_b32 v{vL}, 63, v0')
    a('v_lshrrev_b32 v6, 6, v0')
    a(f'v_readfirstlane_b32 s{sW8}, v6')
    a(f'v_lshrrev_b32 v{vG}, 4, v{vL}')
    a(f'v_and_b32 v{vI}, 15, v{vL}')
    a(f'v_lshrrev_b32 v{vR}, 2, v{vI}')
    a(f'v_and_b32 v{vC}, 3, v{vL}')
    a(f'v_lshl_add_u32 v{vGR}, v{vG}, 2, v{vR}')
    a(f'v_and_b32 v{vTH}, 255, v0')
    a(f's_and_b32 s{sW}, s{sW8}, 3')
    a(f's_lshr_b32 s{sWH}, s{sW8}, 2')
    a(f's_mov_b32 s{sID}, s2')
    a('s_waitcnt lgkmcnt(0)')
    a(f's_add_u32 s4, s{P_WS}, {EP_OFF}')
    a(f's_addc_u32 s5, s{P_WS + 1}, 0')
    a(f's_load_dword s{sTAG}, s[4:5], 0')
    srd(a, sX, P_X, S_ * D_ * 2)
    srd(a, sWS, P_WS, WS_USED)
    srd(a, sW2, P_W2, F_ * S_ * 2)
    stamp(a, 'start')
    if 'noticket' not in EXP:
        srd(a, sAUX, P_DBG, 256)
        a(f'v_mov_b32 v8, {L_CNT + 16}')
        a(f's_cmp_lg_u32 s{sW8}, 0')
        a('s_cbranch_scc1 L_ticket_done')
        a('s_getreg_b32 s4, hwreg(HW_REG_XCC_ID)')
        a('s_mov_b32 s6, 0')
        a('s_mov_b64 exec, 1')
        a.label('L_ticket')
        a('s_and_b32 s4, s4, 7')
        a('s_lshl_b32 s5, s4, 5')
        a('v_mov_b32 v9, s5')
        a('v_mov_b32 v10, 1')
        a(f'buffer_atomic_add v10, v9, {S(sAUX, 4)}, 0 offen sc0 sc1')
        a.wait_vm0()
        a('v_readfirstlane_b32 s5, v10')
        a('s_cmp_lt_u32 s5, 32')
        a('s_cbranch_scc1 L_ticket_ok')
        a('s_add_u32 s4, s4, 1')
        a('s_add_u32 s6, s6, 1')
        a('s_cmp_lt_u32 s6, 8')
        a('s_cbranch_scc1 L_ticket')
        a.label('L_ticket_ok')
        a('s_lshl_b32 s5, s5, 3')
        a('s_add_u32 s5, s5, s4')
        a('v_mov_b32 v9, s5')
        a('ds_write_b32 v8, v9')
        a('s_mov_b64 exec, -1')
        a('s_waitcnt lgkmcnt(0)')
        a.label('L_ticket_done')
        a('s_barrier')
        a('ds_read_b32 v9, v8')
        a('s_waitcnt lgkmcnt(0)')
        a('s_barrier')
        a(f'v_readfirstlane_b32 s{sID}, v9')
        a(f's_and_b32 s{sID}, s{sID}, 255')
        a.reset_counters()
        stamp(a, 'tick')
    if os.environ.get('UPRIO', '1') != '0':
        a(f's_cmp_eq_u32 s{sWH}, 0')
        a('s_cbranch_scc1 L_prio')
        a(f's_setprio {os.environ.get("UPRIO", "1")}')
        a.label('L_prio')
    a(f's_cmp_ge_u32 s{sID}, 128')
    a('s_cbranch_scc1 L_not_a')
    role_a(a)
    a.label('L_not_a')
    a.reset_counters()
    a(f's_and_b32 s4, s{sID}, 7')
    a(f's_lshr_b32 s5, s{sID}, 3')
    a('s_sub_u32 s5, s5, 16')
    a('s_cmp_ge_u32 s5, 14')
    a('s_cbranch_scc1 L_role_r')
    a('s_and_b32 s7, s4, 1')
    a('s_add_u32 s7, s7, 13')
    a('s_cmp_ge_u32 s5, s7')
    a('s_cbranch_scc1 L_role_wot')
    a('s_mul_i32 s6, s4, 27')
    a('s_lshr_b32 s6, s6, 1')
    a('s_add_u32 s6, s6, s5')
    role_b(a)
    a.label('L_role_r')
    a.reset_counters()
    a(f's_sub_u32 s6, s{sID}, 240')
    role_r(a)
    a.label('L_role_wot')
    a.reset_counters()
    a('s_lshr_b32 s6, s4, 1')
    role_wot(a)
    a.label('L_join')
    final_gemm(a)
    a.label('L_end')
    a('s_endpgm')
    if STAMPS:
        a.raw('; STAMPS ' + ' '.join(STAMP_NAMES))
    a.raw('.section .rodata,"a"')
    a.raw(f""".p2align 6
.amdhsa_kernel {K}
  .amdhsa_next_free_vgpr 256
  .amdhsa_next_free_sgpr 102
  .amdhsa_accum_offset 256
  .amdhsa_group_segment_fixed_size 0
  .amdhsa_kernarg_size 96
  .amdhsa_user_sgpr_count 2
  .amdhsa_user_sgpr_kernarg_segment_ptr 1
  .amdhsa_system_sgpr_workgroup_id_x 1
.end_amdhsa_kernel""")
    sys.stderr.write(f'maxv={a.maxv} maxa={a.maxa} maxs={a.maxs} nops={a.nops} lines={len(a.out)}\n')
    return a.text()


if __name__ == '__main__':
    out = sys.argv[1] if len(sys.argv) > 1 else os.path.join(os.path.dirname(__file__), '..', 'cdna_kernels', NAME + '.s')
    open(out, 'w').write(build())
```

```python
import sys, struct, os
sys.path.insert(0, os.path.dirname(__file__))
from asmdsl import Asm, Rec, V, A, S

NAME = 'parallel_sum__linear_kernel_hedgehog__mixer_token_mlp__prompt'
S_, D_, F_ = 2048, 640, 1728

HF_OFF = 0
HF_SZ = 8 * 64 * 5 * 1024
GF_OFF = HF_OFF + HF_SZ
GF_SZ = 8 * 74 * 5 * 1024
OF_OFF = GF_OFF + GF_SZ
OF_SZ = 32 * 20 * 4 * 1024
XF_OFF = OF_OFF + OF_SZ
XF_SZ = 128 * 20480
WF_OFF = XF_OFF + XF_SZ
WF_SZ = 480 * 5120 + 4096
KV_OFF = WF_OFF + WF_SZ
KV_SZ = 32 * 32 * 6144
KB_OFF = KV_OFF + KV_SZ + 4096
KB_SZ = 32 * 2048
FL_OFF = KB_OFF + KB_SZ + 4096
FSH = int(os.environ.get('FSH', '7'))
FH_OFF = FL_OFF
FK_OFF = FH_OFF + (1024 << FSH)
FR_OFF = FK_OFF + (1024 << FSH)
FG_OFF = FR_OFF + (128 << FSH)
FO_OFF = FG_OFF + (1024 << FSH)
FW_OFF = FO_OFF + (1024 << FSH)
FU_OFF = FW_OFF + (128 << FSH)
EP_OFF = FU_OFF + (512 << FSH)
WS_USED = EP_OFF + 512
STAMP_OFF = WS_USED
WS_USED += 512 * 256
STAMPS = bool(int(os.environ.get('STAMPS', '0')))
EXP = os.environ.get('EXP', '').split(',') + [e for e in ['map4', 'noticket', 'notlb', 'g2map8', 'nopf2', 'pfa', 'pf2now', 'fewpoll', 'outx4', 'inx4'] if e not in os.environ.get('OFF', '').split(',')]
OOB = 0x40000000

P_X, P_WQKV, P_WPHI, P_WO, P_BX, P_W1, P_B1, P_W2, P_B2, P_OUT, P_DBG, P_WS = range(16, 40, 2)
LOG2E = 1.4426950408889634

sW = 3
sW8, sWH = 90, 91
sWS, sX, sWQ, sW1, sW2, sAUX, sOUT = 40, 44, 48, 52, 56, 60, 64
sHG, sRB, sID, sROT, sKS, sT, sM0B, sTAG = 68, 69, 70, 71, 72, 73, 74, 75
sL, sNL = 76, 78
sBDB, sBCB, sFS, sGM0, sSPIN, sLIM = 80, 81, 82, 83, 84, 85
vL, vG, vI, vR, vC = 1, 2, 3, 4, 5
vTOK, vGR = 6, 7
vFS = 42
DB = 64
XN = lambda s: DB + 8 * s
UP = lambda k: DB + 8 * k + 4

LDS_BYTES = 163840
A_SLOTS = 4
L_WQ = 0
L_RING = 102400
L_ZERO = 122880
L_WPHI = 126976
L_CNT = 131072
B_P = 10
G2_P = 5
ILV = os.environ.get('ILV', 'burst')


def kb_pos(f, t):
    if f < 32:
        return (f >> 4) * 512 + (t * 16 + (f & 15)) * 8 if t < 4 else 1024 + ((f >> 4) * 32 + (t - 4) * 16 + (f & 15)) * 8
    return 1536 + (t * 8 + f - 32) * 8


def fbits(x):
    return '0x%08x' % struct.unpack('<I', struct.pack('<f', x))[0]


def srd(a, dst, ptr, nbytes):
    a(f's_mov_b32 s{dst}, s{ptr}')
    a(f's_and_b32 s{dst + 1}, s{ptr + 1}, 0xffff')
    a(f's_mov_b32 s{dst + 2}, {nbytes}')
    a(f's_mov_b32 s{dst + 3}, 0x20000')


STAMP_NAMES = []
vST = 41


def stamp(a, name):
    if not STAMPS:
        return
    name = str(name)
    if name not in STAMP_NAMES:
        STAMP_NAMES.append(name)
    idx = STAMP_NAMES.index(name)
    a('s_memrealtime s[98:99]')
    a.wait_lg0()
    if idx == 0:
        a(f'v_mov_b32 v{vST}, 0')
        a('s_getreg_b32 s97, hwreg(HW_REG_HW_ID)')
        a(f'v_writelane_b32 v{vST}, s97, 63')
    a(f'v_writelane_b32 v{vST}, s98, {idx}')


def stamp_flush(a, n):
    if not STAMPS:
        return
    a.wait_vm0()
    stamp(a, n)
    lab = a.newlabel('st')
    a(f's_cmp_lg_u32 s{sW}, 0')
    a(f's_cbranch_scc1 {lab}')
    a(f's_lshl_b32 s4, s{sWH}, 8')
    a(f's_add_u32 s4, s4, s{sID}')
    a('s_lshl_b32 s4, s4, 8')
    a(f's_add_u32 s4, s4, {STAMP_OFF}')
    a(f'v_lshl_add_u32 v8, v{vL}, 2, s4')
    a(f'buffer_store_dword v{vST}, v8, {S(sWS, 4)}, 0 offen')
    if 'dbg1' in EXP:
        srd(a, sAUX, P_DBG, 256)
        for wg, base, sel in ((136, 0, 'start,prep,go,B_0,Bend,pub,gok,G2_0,Gend,end'), (8, 10, 'start,x,prep,go,aend,G2_9')):
            l2 = a.newlabel('dbg')
            a(f's_lshl_b32 s4, s{sWH}, 8')
            a(f's_add_u32 s4, s4, s{sID}')
            a(f's_cmp_lg_u32 s4, {wg}')
            a(f's_cbranch_scc1 {l2}')
            for k, nm in enumerate(sel.split(',')):
                if nm not in STAMP_NAMES:
                    STAMP_NAMES.append(nm)
                a(f'v_readlane_b32 s4, v{vST}, {STAMP_NAMES.index(nm)}')
                a('v_mov_b32 v9, s4')
                a('v_mov_b32 v8, 0')
                a(f'buffer_store_dword v9, v8, {S(sAUX, 4)}, 0 offen offset:{4 * (base + k)}')
            a.label(l2)
    a.label(lab)


def reduce_g(a, r, t):
    a(f'v_mov_b32 v{t}, v{r}')
    a(f'v_permlane32_swap_b32 v{r}, v{t}')
    a(f'v_add_f32 v{r}, v{r}, v{t}')
    a(f'v_mov_b32 v{t}, v{r}')
    a(f'v_permlane16_swap_b32 v{r}, v{t}')
    a(f'v_add_f32 v{r}, v{r}, v{t}')


def dma160_voffs(a, dst, stride, permute, tmp):
    t0, t2, t3 = tmp, tmp + 1, tmp + 2
    for q in range(5):
        d = dst + q
        a(f'v_add_u32 v{t0}, {q * 64}, v{vL}')
        a(f'v_mul_u32_u24 v{t2}, 6554, v{t0}')
        a(f'v_lshrrev_b32 v{t2}, 16, v{t2}')
        a(f'v_mul_u32_u24 v{t3}, 10, v{t2}')
        a(f'v_sub_u32 v{t0}, v{t0}, v{t3}')
        if permute:
            a(f'v_bfe_u32 v{t3}, v{t2}, 2, 2')
            a(f'v_lshlrev_b32 v{t3}, 3, v{t3}')
            a(f'v_and_b32 v{d}, 3, v{t2}')
            a(f'v_add_u32 v{t3}, v{t3}, v{d}')
            a(f'v_lshrrev_b32 v{t2}, 4, v{t2}')
            a(f'v_lshl_add_u32 v{t2}, v{t2}, 2, v{t3}')
        a(f'v_mul_u32_u24 v{t2}, {stride}, v{t2}')
        a(f'v_lshl_add_u32 v{d}, v{t0}, 4, v{t2}')
        if 0 < q < 4:
            a(f'v_subrev_u32 v{d}, {q * 1024}, v{d}')


def dma160(a, vo, ssrd, soff, m0_s, m0_add, nt=''):
    a(f's_add_u32 m0, s{m0_s}, {m0_add}')
    for q in range(4):
        off = f' offset:{q * 1024}' if q else ''
        a(f'buffer_load_dwordx4 v{vo + q}, {S(ssrd, 4)}, s{soff} offen{off}{nt} lds')
    a(f's_add_u32 m0, s{m0_s}, {m0_add + 4096}')
    return a(f'buffer_load_dwordx4 v{vo + 4}, {S(ssrd, 4)}, s{soff} offen{nt} lds')


class Hooks:
    def __init__(self, items=()):
        self.items = list(items)

    def run(self, n=1):
        for _ in range(n):
            if self.items:
                self.items.pop(0)()

    def flush(self):
        self.run(len(self.items))


def softmax_pm(a, P, PH, EP, EN, tmp):
    p = [P[k // 4] + k % 4 for k in range(20)]
    ep = [EP[k // 4] + k % 4 for k in range(20)]
    en = [EN[k // 4] + k % 4 for k in range(20)]
    mx, mn, sp, sn = tmp, tmp + 2, tmp + 4, tmp + 6
    a(f'v_max3_f32 v{mx}, v{p[0]}, v{p[1]}, v{p[2]}')
    a(f'v_min3_f32 v{mn}, v{p[0]}, v{p[1]}, v{p[2]}')
    for k in range(3, 19, 2):
        a(f'v_max3_f32 v{mx}, v{mx}, v{p[k]}, v{p[k + 1]}')
        a(f'v_min3_f32 v{mn}, v{mn}, v{p[k]}, v{p[k + 1]}')
    a(f'v_max_f32 v{mx}, v{mx}, v{p[19]}')
    a(f'v_min_f32 v{mn}, v{mn}, v{p[19]}')
    a(f'v_mul_f32 v{mx}, s{sNL}, v{mx}')
    a(f'v_mul_f32 v{mn}, s{sL}, v{mn}')
    for k in range(0, 20, 2):
        a(f'v_pk_fma_f32 {V(ep[k], 2)}, {V(p[k], 2)}, {S(sL, 2)}, {V(mx, 2)} op_sel_hi:[1,0,0]')
        a(f'v_pk_fma_f32 {V(en[k], 2)}, {V(p[k], 2)}, {S(sNL, 2)}, {V(mn, 2)} op_sel_hi:[1,0,0]')
    for k in range(20):
        a(f'v_exp_f32 v{ep[k]}, v{ep[k]}')
        a(f'v_exp_f32 v{en[k]}, v{en[k]}')
    a(f'v_pk_add_f32 {V(sp, 2)}, {V(ep[0], 2)}, {V(ep[2], 2)}')
    a(f'v_pk_add_f32 {V(sn, 2)}, {V(en[0], 2)}, {V(en[2], 2)}')
    for k in range(4, 20, 2):
        a(f'v_pk_add_f32 {V(sp, 2)}, {V(sp, 2)}, {V(ep[k], 2)}')
        a(f'v_pk_add_f32 {V(sn, 2)}, {V(sn, 2)}, {V(en[k], 2)}')
    a(f'v_add_f32 v{sp}, v{sp}, v{sp + 1}')
    a(f'v_add_f32 v{sn}, v{sn}, v{sn + 1}')
    a(f'v_rcp_f32 v{sp}, v{sp}')
    a(f'v_rcp_f32 v{sn}, v{sn}')
    for k in range(0, 20, 2):
        a(f'v_pk_mul_f32 {V(ep[k], 2)}, {V(ep[k], 2)}, {V(sp, 2)} op_sel_hi:[1,0]')
        a(f'v_pk_mul_f32 {V(en[k], 2)}, {V(en[k], 2)}, {V(sn, 2)} op_sel_hi:[1,0]')
    allv = ep + en
    for k in range(20):
        a(f'v_cvt_pk_bf16_f32 v{PH[k // 4] + k % 4}, v{allv[2 * k]}, v{allv[2 * k + 1]}')


def flag_set(a, s_off):
    a(f'v_lshl_add_u32 v{vFS}, v{vL}, 2, s{s_off}')
    a(f'v_mov_b32 v{vFS + 1}, s{sTAG}')
    a(f's_mov_b64 exec, {hex((1 << (1 << (FSH - 2))) - 1)}')
    a(f'buffer_store_dword v{vFS + 1}, v{vFS}, {S(sWS, 4)}, 0 offen sc1')
    a('s_mov_b64 exec, -1')


def flag_issue(a, vaddr, vdst):
    return a(f'buffer_load_dword v{vdst}, v{vaddr}, {S(sWS, 4)}, 0 offen sc1')


def flag_check(a, tok, vaddr, vdst, sleep=2):
    ok = a.newlabel('ok')
    lp = a.newlabel('poll')
    a.wait(tok)
    a(f'v_cmp_ne_u32 vcc, s{sTAG}, v{vdst}')
    a(f's_cbranch_vccz {ok}')
    a(f's_mov_b32 s{sSPIN}, 0')
    a.label(lp)
    a(f's_sleep {sleep}')
    a.raw(f'\tbuffer_load_dword v{vdst}, v{vaddr}, {S(sWS, 4)}, 0 offen sc1')
    a('s_waitcnt vmcnt(0)')
    a(f'v_cmp_ne_u32 vcc, s{sTAG}, v{vdst}')
    a(f's_cbranch_vccz {ok}')
    a(f's_add_u32 s{sSPIN}, s{sSPIN}, 1')
    a(f's_cmp_lt_u32 s{sSPIN}, 0x8000')
    a(f's_cbranch_scc1 {lp}')
    a.label(ok)


def featmap(a, ACC5, PK, WPF, P5, EP5, EN5, tmp):
    for k in range(10):
        t, j = divmod(2 * k, 4)
        a(f'v_cvt_pk_bf16_f32 v{PK[k // 4] + k % 4}, v{ACC5[t] + j}, v{ACC5[t] + j + 1}')
    for ks in range(3):
        for t in range(5):
            d = V(P5[t], 4)
            if ks < 2:
                a(f'v_mfma_f32_16x16x32_bf16 {d}, {V(WPF(t, ks), 4)}, {V(PK[ks], 4)}, {"0" if ks == 0 else d}')
            else:
                a(f'v_mfma_f32_16x16x16_bf16 {d}, {V(WPF(t, ks), 2)}, {V(PK[ks], 2)}, {d}')
    softmax_pm(a, P5, P5, EP5, EN5, tmp)


def xcd_tile(a):
    a(f's_and_b32 s4, s{sID}, 7')
    a(f's_lshr_b32 s5, s{sID}, 3')
    if 'g2map8' in EXP:
        a(f's_and_b32 s{sHG}, s5, 7')
        a('s_lshl_b32 s6, s4, 2')
        a('s_lshr_b32 s7, s5, 3')
        a(f's_add_u32 s{sRB}, s6, s7')
    else:
        a('s_and_b32 s6, s4, 1')
        a('s_lshl_b32 s6, s6, 2')
        a('s_and_b32 s7, s5, 3')
        a(f's_add_u32 s{sHG}, s6, s7')
        a('s_lshr_b32 s6, s4, 1')
        a('s_lshl_b32 s6, s6, 3')
        a('s_lshr_b32 s7, s5, 2')
        a(f's_add_u32 s{sRB}, s6, s7')
    a(f's_lshl_b32 s4, s{sRB}, 6')
    a(f's_lshl_b32 s5, s{sW}, 4')
    a('s_add_u32 s4, s4, s5')
    a(f'v_add_u32 v{vTOK}, s4, v{vI}')


def ln_scales(a, vS, vRS, vNB):
    a(f'v_mul_f32 v{vS}, {fbits(1.0 / 640)}, v{vS}')
    a(f'v_mul_f32 v{vS + 2}, {fbits(1.0 / 640)}, v{vS + 2}')
    a(f'v_fma_f32 v{vS + 2}, -v{vS}, v{vS}, v{vS + 2}')
    a(f'v_max_f32 v{vS + 2}, 0, v{vS + 2}')
    a(f'v_add_f32 v{vS + 1}, {fbits(1e-5)}, v{vS + 2}')
    a(f'v_rsq_f32 v{vRS}, v{vS + 1}')
    a(f'v_mul_f32 v{vNB}, v{vS}, v{vRS}')
    a(f'v_sub_f32 v{vNB}, 0, v{vNB}')


vD, vF, vT, vT2, vFL, vFD, vOF, vXA, vBA = 8, 12, 14, 18, 22, 23, 28, 32, 33
ACC = lambda t, nt: 44 + (nt * 5 + t) * 4
TF = lambda j, nt: 124 + (j % 2) * 16 + 4 * nt
POOL = [156 + 4 * k for k in range(25)]


class GGemm:
    def __init__(self, a, kind):
        self.a, self.kind = a, kind
        if kind == 'B':
            self.stride, self.srdm, self.n, self.fr_off, self.fr_steps = F_ * 2, sW1, 16, HF_OFF, 64
            self.sdb, self.scb, self.ntot, self.P = sBDB, sBCB, 16, B_P
        else:
            self.stride, self.srdm, self.n, self.fr_off, self.fr_steps = S_ * 2, sW2, 14, GF_OFF, 74
            self.sdb, self.scb, self.ntot, self.P = sHG, sRB, 19, G2_P
        self.dtok, self.ftok, self.ttok = {}, {}, {}
        self.free = list(POOL)
        self.reg = {}
        self.pending = []
        order = [(j, 'a') for j in range(self.n)]
        if kind == 'G2':
            order += [(j, k) for j in range(14, 19) for k in 'ab']
        for j, k in order:
            self.pending += [(j, k, x) for x in range(5 if k == 'a' else 4)]
        self.gate = lambda: None
        self.gate2 = lambda: None
        self.nq = 2 if kind == 'B' else 4

    def setup(self):
        a, st = self.a, self.stride
        a(f'v_lshrrev_b32 v24, 3, v{vL}')
        if self.kind == 'B':
            a('v_lshrrev_b32 v25, 2, v24')
            a('v_and_b32 v24, 3, v24')
            a('v_lshl_add_u32 v24, v25, 3, v24')
        a(f'v_mul_u32_u24 v24, {st}, v24')
        a(f'v_and_b32 v25, 7, v{vL}')
        a(f'v_lshlrev_b32 v26, 1, v{vG}')
        a('v_xor_b32 v25, v25, v26')
        a('v_lshl_add_u32 v24, v25, 4, v24')
        a(f's_lshl_b32 s4, s{self.scb}, 7')
        a(f's_mul_i32 s5, s{sW}, {self.n * 32 * st}')
        a('s_add_u32 s5, s5, s4')
        if self.kind == 'B':
            a(f's_mul_i32 s6, s{sWH}, {4 * st}')
            a('s_add_u32 s5, s5, s6')
            a(f's_lshl_b32 s6, s{sWH}, 11')
            a(f's_add_u32 s{sM0B}, s{sGM0}, s6')
        else:
            a(f's_mov_b32 s{sM0B}, s{sGM0}')
        for q in range(self.nq):
            row = 8 * q if self.kind != 'B' else q * 16
            a(f's_add_u32 s6, s5, {row * st - 1024 * q}')
            a(f'v_add_u32 v{vD + q}, s6, v24')
        a(f's_mul_i32 s4, s{self.sdb}, {self.fr_steps}')
        a(f's_mul_i32 s5, s{sW}, {self.n}')
        a('s_add_u32 s4, s4, s5')
        a('s_mul_i32 s4, s4, 5120')
        a(f's_add_u32 s{sFS}, s4, {self.fr_off}')
        if self.kind == 'B':
            a(f's_lshl_b32 s4, s{sW}, {6 + FSH}')
            a(f's_add_u32 s4, s4, {FH_OFF}')
            a(f'v_lshl_add_u32 v{vFL}, v{vL}, {FSH}, s4')
        else:
            a(f's_lshl_b32 s4, s{self.sdb}, {7 + FSH}')
            a(f's_mul_i32 s5, s{sW}, {28 << FSH}')
            a('s_add_u32 s4, s4, s5')
            a(f's_add_u32 s4, s4, {FG_OFF}')
            a(f's_mul_i32 s5, s{self.sdb}, {74 * 5120}')
            a(f's_add_u32 s{sLIM}, s5, {GF_OFF + 53 * 5120}')
            a(f's_cmp_eq_u32 s{sW}, 3')
            a('s_cselect_b32 s5, 23, 27')
            a(f'v_min_u32 v24, s5, v{vL}')
            a(f'v_lshl_add_u32 v{vFL}, v24, {FSH}, s4')

    def dma_items(self, j):
        a = self.a

        def one(q):
            def f():
                if q == 0:
                    a(f's_add_u32 m0, s{sM0B}, {(j % self.P) * 16384}')
                off = f' offset:{q * 1024}' if q else ''
                nt = ' nt' if ('ntb' in EXP and self.kind == 'B' and j < self.P) else ''
                self.dtok[j] = a(f'buffer_load_dwordx4 v{vD + q}, {S(self.srdm, 4)}, 0 offen{off}{nt} lds')
                if not ('hotw' in EXP):
                    a(f'v_add_u32 v{vD + q}, {32 * self.stride}, v{vD + q}')
            return f
        return [one(q) for q in range(self.nq)]

    def frag_items(self, lim=99):
        a = self.a
        out = []
        while self.free and self.pending and len(out) < lim:
            key = self.pending.pop(0)
            r = self.free.pop(0)
            self.reg[key] = r

            def f(key=key, r=r):
                j, kind, x = key
                if key == (self.n, 'a', 0):
                    self.gate()
                if key == (self.n, 'b', 0):
                    self.gate2()
                if kind == 'a' and 'b_nof' in EXP and self.kind == 'B' and j >= 5 and x > 0:
                    pass
                elif kind == 'a':
                    vo, off = (vF, x * 1024) if x < 4 else (vF + 1, 0)
                    offs = f' offset:{off}' if off else ''
                    self.ftok[j] = a(f'buffer_load_dwordx4 {V(r, 4)}, v{vo}, {S(sWS, 4)}, s{sFS} offen{offs} sc1')
                    if x == 4 and 'hotf' not in EXP:
                        a(f's_add_u32 s{sFS}, s{sFS}, 5120')
                        if self.kind == 'G2' and j < 14:
                            a(f's_min_u32 s{sFS}, s{sFS}, s{sLIM}')
                else:
                    if j - self.n == 2:
                        a(f'v_lshlrev_b32 v24, 3, v{vL}')
                        a(f'v_sub_u32 v24, v{vOF + x}, v24')
                        a(f'buffer_load_dwordx2 {V(r, 2)}, v24, {S(sWS, 4)}, s11 offen sc1')
                        self.ftok[j] = a(f'buffer_load_dwordx2 {V(r + 2, 2)}, v24, {S(sWS, 4)}, s11 offen offset:512 sc1')
                    else:
                        self.ftok[j] = a(f'buffer_load_dwordx4 {V(r, 4)}, v{vOF + x}, {S(sWS, 4)}, s11 offen sc1')
                    if x == 3:
                        a('s_add_u32 s11, s11, 4096')
            out.append(f)
        return out

    def tr_items(self, j):
        a = self.a

        def one(nt):
            def f():
                off = (j % self.P) * 16384
                base = vT
                if off >= 65536:
                    if off % 65536 == 0:
                        a(f'v_add_u32 v{vT2 + nt}, {off}, v{vT + nt}')
                    off %= 65536
                    base = vT2
                if 'b_nods' in EXP and self.kind == 'B' and j > 1 and nt > 0:
                    return
                a(f'ds_read_b64_tr_b16 {V(TF(j, nt), 2)}, v{base + nt} offset:{off}')
                self.ttok[j] = a(f'ds_read_b64_tr_b16 {V(TF(j, nt) + 2, 2)}, v{base + nt} offset:{off + 2048}')
            return f
        return [one(nt) for nt in range(4)]

    def mainloop(self, extra):
        a, n = self.a, self.n
        a.wait(self.dtok[0])
        Hooks(self.tr_items(0)).flush()
        for j in range(self.ntot):
            items = []
            if j + 1 < n:
                a.wait(self.dtok[j + 1])
            a.wait(self.ftok[j], self.ttok.get(j))
            if self.kind == 'B' and 'b_nobar' not in EXP and j + 1 < n and (j + self.P < n or j + 1 >= int(os.environ.get('BPRE', '10'))):
                a('s_barrier')
            if j % 3 == 0:
                stamp(a, f'{self.kind}_{j}')
                if STAMPS and j in (3, 9):
                    a('s_memtime s[98:99]')
                    a.wait_lg0()
                    a(f'v_writelane_b32 v{vST}, s98, {56 + (j // 9) + (2 if self.kind == "G2" else 0)}')
            if j + 1 < n:
                items += self.tr_items(j + 1)
            if j + self.P < n:
                items += self.dma_items(j + self.P)
            items += extra(j)
            lim = int(os.environ.get('LIMB' if self.kind == 'B' else 'LIMG', '10'))
            items += self.frag_items(lim if (self.kind == 'B' or j < int(os.environ.get('LIMJ', '9'))) else 10)
            last = j == self.ntot - 1
            if self.kind == 'G2' and j == 16:
                a('s_barrier')
            if last:
                a(f's_mul_i32 s7, s{sWH}, 102400')
                for nt in range(1, 4):
                    a(f's_xor_b32 s4, s{sW}, {nt}')
                    a('s_mul_i32 s4, s4, 15360')
                    a(f's_add_u32 s4, s4, {(nt - 1) * 5120}')
                    a('s_add_u32 s4, s4, s7')
                    a(f'v_add_u32 v{24 + nt}, s4, v{vF}')
                wr = [(nt, t) for nt in (1, 2, 3) for t in range(5)]
            hk = Hooks(items)
            k = 0
            ILV = os.environ.get('ILVB', 'fine') if self.kind == 'B' else os.environ.get('ILVG', 'burst')
            for nt in (1, 2, 3, 0):
                for t in range(5):
                    acc = V(ACC(t, nt), 4)
                    c = '0' if j == 0 else acc
                    fr = V(self.reg[(j, 'a', t)], 4)
                    tf = V(TF(j, nt) if j < n else self.reg[(j, 'b', nt)], 4)
                    if self.kind == 'B':
                        a(f'v_mfma_f32_16x16x32_bf16 {acc}, {tf}, {fr}, {c}')
                    else:
                        a(f'v_mfma_f32_16x16x32_bf16 {acc}, {fr}, {tf}, {c}')
                    k += 1
                    if last and k > 5:
                        wn, wt = wr.pop(0)
                        a(f'ds_write_b128 v{24 + wn}, {V(ACC(wt, wn), 4)} offset:{wt * 1024}')
                    if ILV == 'fine':
                        if k % 4 != 0:
                            hk.run()
                    elif ILV == 'burst':
                        if k <= 4 and j + 1 < n:
                            hk.run()
                    elif ILV == 'two':
                        if k <= 4 and j + 1 < n:
                            hk.run()
                        if k == 10:
                            hk.run(4)
                    elif ILV == 'pre':
                        if k == 1:
                            hk.flush()
            hk.flush()
            self.free += [r for key, r in self.reg.items() if key[0] == j]
            if n - 2 <= j < n:
                self.free += [TF(j, nt) for nt in range(4)]

    def reduce(self):
        a = self.a
        a(f's_mul_i32 s4, s{sW}, 15360')
        a('s_add_u32 s4, s4, s7')
        a(f'v_add_u32 v24, s4, v{vF}')
        a.wait_lg0()
        a('s_barrier')
        rtok = {}
        for nt in range(1, 4):
            for t in range(5):
                rtok[(nt, t)] = a(f'ds_read_b128 {V(ACC(t, nt), 4)}, v24 offset:{(nt - 1) * 5120 + t * 1024}')
        for nt in range(1, 4):
            for t in range(5):
                a.wait(rtok[(nt, t)])
                for h in range(2):
                    d = V(ACC(t, 0) + 2 * h, 2)
                    a(f'v_pk_add_f32 {d}, {d}, {V(ACC(t, nt) + 2 * h, 2)}')


def frag10_addr(a, m, hi_add, step, base_s, vrd, vrd_base, vst):
    a(f's_add_u32 s4, s{sW}, {4 * m}')
    a('s_min_u32 s5, s4, 9')
    a('s_cmp_ge_u32 s5, 5')
    a(f's_cselect_b32 s6, {hi_add}, 0')
    a(f's_mul_i32 s5, s5, {step}')
    a('s_add_u32 s5, s5, s6')
    a(f'v_add_u32 v{vrd}, s5, v{vrd_base}')
    a('s_lshl_b32 s5, s4, 10')
    a(f's_add_u32 s5, s5, s{base_s}')
    a('s_cmp_ge_u32 s4, 10')
    a(f's_cselect_b32 s5, {OOB}, s5')
    a(f'v_lshl_add_u32 v{vst}, v{vL}, 4, s5')


NTP = ' nt' if 'ntp' in EXP else ''
FIRST = int(os.environ.get('FIRST', '25'))
vTH = 40


def g_common(a):
    a(f'v_lshlrev_b32 v{vF}, 4, v{vL}')
    a(f'v_add_u32 v{vF + 1}, 4096, v{vF}')
    a(f's_lshl_b32 s{sGM0}, s{sW}, 12')
    a(f'v_bfe_u32 v25, v{vGR}, 1, 2')
    a(f'v_xor_b32 v25, s{sW}, v25')
    a(f'v_lshlrev_b32 v26, 7, v{vGR}')
    a(f'v_lshl_add_u32 v26, v{vC}, 3, v26')
    a(f'v_add_u32 v26, s{sGM0}, v26')
    for nt in range(4):
        a(f'v_xor_b32 v27, {nt}, v25')
        a(f'v_lshl_add_u32 v{vT + nt}, v27, 5, v26')


def tag_ready(a):
    a('s_waitcnt lgkmcnt(0)')
    a(f's_add_u32 s{sTAG}, s{sTAG}, 1')


def role_a(a):
    a(f's_and_b32 s4, s{sID}, 7')
    a(f's_lshr_b32 s5, s{sID}, 3')
    a('s_and_b32 s6, s4, 1')
    a('s_lshl_b32 s6, s6, 2')
    a('s_and_b32 s7, s5, 3')
    a(f's_add_u32 s{sHG}, s6, s7')
    a('s_lshr_b32 s6, s4, 1')
    a('s_lshl_b32 s6, s6, 2')
    a('s_lshr_b32 s7, s5, 2')
    a('s_add_u32 s6, s6, s7')
    a(f's_mov_b32 s{sRB}, s6')
    a('s_lshl_b32 s6, s6, 3')
    a(f's_add_u32 s15, s6, s{sHG}')
    a('s_lshl_b32 s12, s15, 1')
    a(f's_add_u32 s12, s12, s{sWH}')
    X = 156
    a('s_lshl_b32 s4, s12, 2')
    a(f's_add_u32 s4, s4, s{sW}')
    a('s_mul_i32 s4, s4, 2560')
    a(f'v_mul_u32_u24 v24, 40, v{vL}')
    xt = []
    if 'inx4' in EXP:
        a(f'buffer_load_dwordx4 {V(X, 4)}, v24, {S(sX, 4)}, s4 offen')
        a(f'buffer_load_dwordx4 {V(X + 4, 4)}, v24, {S(sX, 4)}, s4 offen offset:16')
        xt = [a(f'buffer_load_dwordx2 {V(X + 8, 2)}, v24, {S(sX, 4)}, s4 offen offset:32')] * 5
    else:
        for k in range(5):
            xt.append(a(f'buffer_load_dwordx2 {V(X + 2 * k, 2)}, v24, {S(sX, 4)}, s4 offen offset:{8 * k}{NTP}'))
    srd(a, sWQ, P_WQKV, D_ * 3 * D_ * 2)
    vLN = 8
    a(f'v_lshlrev_b32 v{vLN}, 4, v{vL}')
    a(f'v_add_u32 v{vLN + 1}, 4096, v{vLN}')
    a(f's_mul_i32 s{sM0B}, s{sW8}, 5120')
    a('s_lshl_b32 s10, s15, 2')
    a(f's_add_u32 s10, s10, s{sW}')
    a('s_mul_i32 s4, s10, 1093')
    a('s_lshr_b32 s4, s4, 16')
    a('s_mul_i32 s5, s4, 60')
    a('s_sub_u32 s5, s10, s5')
    a('s_lshr_b32 s6, s5, 1')
    a('s_and_b32 s7, s5, 1')
    a('s_add_u32 s7, s7, 1')
    a('s_sub_u32 s8, s5, 40')
    a('s_cmp_ge_u32 s5, 40')
    a('s_cselect_b32 s6, s8, s6')
    a('s_cselect_b32 s7, 0, s7')
    a(f's_mul_i32 s6, s6, {32 * 3840}')
    a('s_mul_i32 s7, s7, 1280')
    a('s_mul_i32 s4, s4, 160')
    a('s_add_u32 s6, s6, s7')
    a('s_add_u32 s6, s6, s4')
    a(f's_cmp_eq_u32 s{sWH}, 0')
    a('s_cselect_b32 s10, 480, s10')
    dma160_voffs(a, 12, 3840, True, 18)
    a('s_cmp_ge_u32 s10, 480')
    a(f's_cselect_b32 s7, {OOB}, 0')
    for q in range(5):
        a(f'v_add_u32 v{12 + q}, s7, v{12 + q}')
    utok = dma160(a, 12, sWQ, 6, sM0B, 0, NTP)
    a(f's_mul_i32 s13, s{sWH}, 24576')
    a('s_add_u32 s13, s13, 65536')
    a('s_add_u32 s14, s13, 12288')
    srd(a, sAUX, P_WPHI, 32 * 800)
    a(f's_mul_i32 s6, s{sHG}, 3200')
    a(f's_lshl_b32 s7, s{sW}, 10')
    a('s_add_u32 s6, s6, s7')
    a(f'v_lshl_add_u32 v10, v{vL}, 4, s6')
    a(f's_add_u32 m0, s7, {L_WPHI}')
    a(f'buffer_load_dwordx4 v10, {S(sAUX, 4)}, 0 offen lds')
    for k in range(4):
        a(f'v_mov_b32 v{44 + k}, 0')
    a(f'v_lshlrev_b32 v18, 4, v{vTH}')
    a(f'v_add_u32 v18, {L_ZERO}, v18')
    a('ds_write_b128 v18, v[44:47]')
    a(f'v_mov_b32 v10, {L_CNT}')
    a('v_mov_b32 v11, 0')
    a('ds_write2_b32 v10, v11, v11 offset0:0 offset1:1')
    vONE, vS, vRS, vNB = 34, 36, 168, 170
    a(f'v_mov_b32 v{vONE}, 0x3f803f80')
    for k in range(4):
        a(f'v_mov_b32 v{vS + k}, 0')
    a('s_waitcnt lgkmcnt(0)')
    a(f's_add_u32 s{sTAG}, s{sTAG}, 1')
    def unit_part():
        a(f'v_mul_u32_u24 v29, 160, v{vGR}')
        a(f'v_mul_u32_u24 v24, 40, v{vC}')
        a('v_add_u32 v29, v29, v24')
        a(f'v_add_u32 v29, s{sM0B}, v29')
        a('s_mul_i32 s4, s10, 5120')
        a(f's_add_u32 s4, s4, {WF_OFF}')
        a('s_cmp_ge_u32 s10, 480')
        a(f's_cselect_b32 s4, {OOB}, s4')
        a(f'v_add_u32 v24, s4, v{vLN}')
        a(f'v_add_u32 v25, s4, v{vLN + 1}')
        a(f's_lshl_b32 s5, s10, {FSH}')
        a(f's_add_u32 s5, s5, {FU_OFF}')
        a('s_cmp_ge_u32 s10, 480')
        a(f's_cselect_b32 s10, {OOB}, s5')
        a.wait(utok)
        ut = []
        for t in range(5):
            a(f'ds_read_b64_tr_b16 {V(UP(t), 2)}, v29 offset:{8 * t}')
            ut.append(a(f'ds_read_b64_tr_b16 {V(UP(t) + 2, 2)}, v29 offset:{8 * t + 2560}'))
        for t in range(5):
            a.wait(ut[t])
            vo, off = (24, t * 1024) if t < 4 else (25, 0)
            a(f'buffer_store_dwordx4 {V(UP(t), 4)}, v{vo}, {S(sWS, 4)}, 0 offen offset:{off} sc1')

    if 'unitfirst' in EXP:
        unit_part()
    a.wait(xt[4])
    stamp(a, 'x')
    for k in range(10):
        a(f'v_dot2c_f32_bf16 v{vS + (k & 1)}, v{X + k}, v{vONE}')
        a(f'v_dot2c_f32_bf16 v{vS + 2 + (k & 1)}, v{X + k}, v{X + k}')
    a(f'v_add_f32 v{vS}, v{vS}, v{vS + 1}')
    a(f'v_add_f32 v{vS + 2}, v{vS + 2}, v{vS + 3}')
    for sh in (8, 4, 2, 1):
        for r in (vS, vS + 2):
            a(f'v_add_f32_dpp v{r}, v{r}, v{r} row_ror:{sh} row_mask:0xf bank_mask:0xf')
    for r in (vS, vS + 2):
        a(f'v_mov_b32 v{r + 1}, v{r}')
        a(f'v_permlane16_swap_b32 v{r}, v{r + 1}')
        a(f'v_add_f32 v{r}, v{r}, v{r + 1}')
    ln_scales(a, vS, vRS, vNB)
    a(f'v_mul_f32 v{vS + 1}, v{vRS}, v{vRS}')
    a(f'v_mov_b32 v{vS + 3}, {fbits(1e-5)}')
    a(f'v_fmac_f32 v{vS + 3}, v{vS + 1}, v{vS + 2}')
    a(f'v_rsq_f32 v{vS + 2}, v{vS + 3}')
    U = 172
    for k in range(10):
        a(f'v_lshlrev_b32 v{U + 2 * k}, 16, v{X + k}')
        a(f'v_and_b32 v{U + 2 * k + 1}, 0xffff0000, v{X + k}')
    for k in range(10):
        a(f'v_pk_fma_f32 {V(U + 2 * k, 2)}, {V(U + 2 * k, 2)}, {V(vRS, 2)}, {V(vNB, 2)} op_sel_hi:[1,0,0]')
    XQ = 192
    for k in range(10):
        a(f'v_cvt_pk_bf16_f32 v{XQ + k}, v{U + 2 * k}, v{U + 2 * k + 1}')
    for k in range(10):
        a(f'v_pk_mul_f32 {V(U + 2 * k, 2)}, {V(U + 2 * k, 2)}, {V(vS + 2, 2)} op_sel_hi:[1,0]')
    for k in range(10):
        a(f'v_cvt_pk_bf16_f32 v{X + k}, v{U + 2 * k}, v{U + 2 * k + 1}')
    a(f's_mul_i32 s4, s{sW}, {2 * 1296}')
    a('s_add_u32 s4, s4, s13')
    a(f'v_mul_u32_u24 v24, 40, v{vL}')
    a(f'v_lshrrev_b32 v25, 5, v{vL}')
    a('v_lshl_add_u32 v24, v25, 4, v24')
    a('v_add_u32 v24, s4, v24')
    for k in range(5):
        a(f'ds_write_b64 v24, {V(XQ + 2 * k, 2)} offset:{8 * k}')
    a(f'v_and_b32 v25, 7, v{vTH}')
    a(f'v_lshrrev_b32 v26, 3, v{vTH}')
    a('v_mul_u32_u24 v28, 1296, v25')
    a('v_lshl_add_u32 v28, v26, 4, v28')
    a('v_add_u32 v28, s13, v28')
    a('v_lshlrev_b32 v29, 8, v26')
    a('v_lshl_add_u32 v29, v25, 4, v29')
    a(f's_lshr_b32 s4, s12, 1')
    a('s_mul_i32 s4, s4, 20480')
    a(f's_and_b32 s5, s12, 1')
    a('s_lshl_b32 s5, s5, 7')
    a('s_add_u32 s4, s4, s5')
    a(f's_add_u32 s4, s4, {XF_OFF}')
    a('v_add_u32 v29, s4, v29')
    a('v_add_u32 v30, 8192, v29')
    a(f's_cmp_ge_u32 s{sW}, 2')
    a(f's_cselect_b32 s4, {OOB}, 16384')
    a('v_add_u32 v31, s4, v29')
    a(f's_mul_i32 s4, s{sW}, 2560')
    a('s_add_u32 s4, s4, s14')
    a(f'v_mul_u32_u24 v24, 40, v{vL}')
    a('v_add_u32 v24, s4, v24')
    for k in range(5):
        a(f'ds_write_b64 v24, {V(X + 2 * k, 2)} offset:{8 * k}')
    a(f'v_mul_u32_u24 v24, 1280, v{vR}')
    a(f'v_mul_u32_u24 v25, 160, v{vG}')
    a('v_add_u32 v24, v24, v25')
    a(f'v_mul_u32_u24 v25, 40, v{vC}')
    a('v_add_u32 v24, v24, v25')
    a('v_add_u32 v24, s14, v24')
    a(f'v_mul_u32_u24 v25, {64 * 5120}, v{vG}')
    a(f'v_lshl_add_u32 v25, v{vI}, 4, v25')
    a(f's_lshr_b32 s4, s12, 2')
    a('s_mul_i32 s4, s4, 5120')
    a(f's_and_b32 s5, s12, 3')
    a('s_lshl_b32 s5, s5, 8')
    a('s_add_u32 s4, s4, s5')
    a(f's_add_u32 s8, s4, {HF_OFF}')
    a.wait_lg0()
    a('s_barrier')
    ht = []
    for m in range(3):
        ht.append(a(f'ds_read_b128 {V(XQ + 4 * m, 4)}, v28 offset:{512 * m}'))
    for m in range(3):
        a.wait(ht[m])
        a(f'buffer_store_dwordx4 {V(XQ + 4 * m, 4)}, v{29 + m}, {S(sWS, 4)}, 0 offen sc1')
    ht = []
    for m in range(3):
        a(f's_add_u32 s4, s{sW}, {4 * m}')
        a('s_min_u32 s5, s4, 9')
        a('s_cmp_ge_u32 s5, 5')
        a(f's_cselect_b32 s6, {640 - 40}, 0')
        a(f's_cselect_b32 s7, {4 * 64 * 5120 - 5120}, 0')
        a('s_lshl_b32 s5, s5, 3')
        a('s_add_u32 s5, s5, s6')
        a('v_add_u32 v26, s5, v24')
        a(f'ds_read_b64_tr_b16 {V(U + 4 * m, 2)}, v26')
        ht.append(a(f'ds_read_b64_tr_b16 {V(U + 4 * m + 2, 2)}, v26 offset:{4 * 1280}'))
        a('s_lshl_b32 s5, s4, 10')
        a('s_add_u32 s5, s5, s7')
        a('s_add_u32 s5, s5, s8')
        a('s_cmp_ge_u32 s4, 10')
        a(f's_cselect_b32 s5, {OOB}, s5')
        a(f'v_add_u32 v{34 + m}, s5, v25')
    for m in range(3):
        a.wait(ht[m])
        a(f'buffer_store_dwordx4 {V(U + 4 * m, 4)}, v{34 + m}, {S(sWS, 4)}, 0 offen sc1')
    hst = ('vm', a.vm_issued - 1)
    if 'unitfirst' not in EXP:
        unit_part()
    a(f's_lshl_b32 s4, s{sWH}, 2')
    a(f's_add_u32 s4, s4, {L_CNT}')
    a('v_mov_b32 v10, s4')
    a('v_mov_b32 v11, 1')
    a.wait(hst)
    a('s_mov_b64 exec, 1')
    a('ds_add_rtn_u32 v11, v10, v11')
    a('s_mov_b64 exec, -1')
    a.wait_lg0()
    a('v_readfirstlane_b32 s5, v11')
    a(f's_lshl_b32 s4, s12, {FSH}')
    a(f's_add_u32 s4, s4, {FH_OFF}')
    a('s_cmp_lg_u32 s5, 3')
    a('s_cbranch_scc1 L_nofh')
    flag_set(a, 4)
    a.label('L_nofh')
    a.wait_vm0()
    flag_set(a, 10)
    stamp(a, 'prep')
    a(f's_mov_b32 s{sL}, {fbits(LOG2E)}')
    a(f's_mov_b32 s{sL + 1}, {fbits(LOG2E)}')
    a(f's_mov_b32 s{sNL}, {fbits(-LOG2E)}')
    a(f's_mov_b32 s{sNL + 1}, {fbits(-LOG2E)}')
    a(f's_mul_i32 s10, s{sHG}, 60')
    a(f's_lshl_b32 s4, s10, {FSH}')
    a(f's_add_u32 s4, s4, {FU_OFF}')
    if 'fewpoll' in EXP:
        a(f'v_min_u32 v20, 14, v{vI}')
        a(f'v_lshl_add_u32 v20, v20, 2, s{sW}')
        a(f'v_lshl_add_u32 v20, v20, {FSH}, s4')
    else:
        a(f'v_lshl_add_u32 v20, v{vL}, {FSH}, s4')
    a(f's_lshl_b32 s11, s{sRB}, 2')
    a(f's_add_u32 s11, s11, s{sW}')
    a(f's_lshl_b32 s4, s11, {FSH + 2}')
    a(f's_add_u32 s4, s4, {FH_OFF}')
    a(f'v_lshl_add_u32 v21, v{vC}, {FSH}, s4')
    if 'fewpoll' in EXP:
        a(f's_cmp_lg_u32 s{sWH}, 0')
        a('s_cselect_b64 vcc, -1, 0')
    else:
        a(f'v_cmp_gt_u32 vcc, 60, v{vL}')
    a('v_cndmask_b32 v20, v21, v20, vcc')
    a(f's_add_u32 s10, s10, s{sW}')
    a('s_mul_i32 s10, s10, 5120')
    a(f's_add_u32 s10, s10, {WF_OFF}')
    a(f's_add_u32 s9, s10, {40 * 5120}')
    a(f's_mul_i32 s{sM0B}, s{sW}, 5120')
    a('s_mul_i32 s11, s11, 40960')
    a(f's_add_u32 s11, s11, {XF_OFF}')
    a(f'v_add_u32 v10, 20480, v{vLN}')
    a(f'v_add_u32 v26, {L_RING}, v{vLN}')
    a(f'v_add_u32 v27, 61440, v{vLN}')

    def wphi_frags(WPF, wbase, zbase):
        a(f'v_mul_u32_u24 v22, 800, v{vG}')
        a(f'v_mul_u32_u24 v23, 40, v{vR}')
        a('v_add_u32 v22, v22, v23')
        a(f'v_add_u32 v22, {wbase}, v22')
        a(f'v_mov_b32 v23, {zbase}')
        a(f'v_cmp_eq_u32 vcc, v{vG}, v{vC}')
        a('v_cndmask_b32 v22, v23, v22, vcc')
        for t in range(5):
            for d4 in range(5):
                a(f'ds_read_b64_tr_b16 {V(WPF(t, d4 // 2) + 2 * (d4 % 2), 2)}, v22 offset:{4 * d4 * 40 + 8 * t}')

    Q = lambda k: 48 + 4 * k
    WPF = lambda t, ks: Q(2 * t + ks) if ks < 2 else Q(10 + t // 2) + 2 * (t % 2)
    a('s_barrier')
    wphi_frags(WPF, L_WPHI, L_ZERO)
    a.wait_lg0()
    a('s_barrier')
    flag_check(a, flag_issue(a, 20, 21), 20, 21)
    stamp(a, 'go')

    def xload(dst, ks, z):
        off = f' offset:{(ks % 4) * 1024}' if ks % 4 else ''
        t = a(f'buffer_load_dwordx4 {V(dst, 4)}, v{vLN if z == 0 else 10}, {S(sWS, 4)}, s11 offen{off} sc1')
        if ks % 4 == 3 and z == 1:
            a('s_add_u32 s11, s11, 4096')
        return t

    a(f's_cmp_lg_u32 s{sWH}, 0')
    a('s_cbranch_scc1 L_a_upper')
    at_split = a.save()
    a('s_setprio 2')
    AC = lambda k, z: Q(13 + 2 * k + z)
    XR = lambda ks, z: Q(33 + (ks % 6) * 2 + z)
    FW = lambda n: Q(45 + n % 7)
    xtok = {}
    for ks in range(5):
        for z in range(2):
            xtok[ks] = xload(XR(ks, z), ks, z)
    a('s_barrier')
    stamp(a, 'a0')
    WIN, NF = 6, 200
    ftok = {}

    def read_frag(n):
        d, r = divmod(n, 20)
        ftok[n] = a(f'ds_read_b128 {V(FW(n), 4)}, v26 offset:{(d % 3) * 20480 + r * 1024}')

    for n in range(WIN):
        read_frag(n)
    for n in range(NF):
        nn = n + WIN
        if nn < NF:
            if nn % 20 == 0:
                a.wait_lg0()
                a('s_barrier')
                if (nn // 20) % 3 == 0:
                    stamp(a, f'a{nn // 20}')
            read_frag(nn)
        ks, k = divmod(n, 10)
        a.wait(ftok[n], xtok[ks])
        for z in range(2):
            c = '0' if ks == 0 else V(AC(k, z), 4)
            a(f'v_mfma_f32_16x16x32_bf16 {V(AC(k, z), 4)}, {V(FW(n), 4)}, {V(XR(ks, z), 4)}, {c}')
        if k in (2, 6) and ks + 5 < 20:
            xtok[ks + 5] = xload(XR(ks + 5, k // 4), ks + 5, k // 4)
    a('s_barrier')
    stamp(a, 'aend')
    vSA, vKA, vKO = 8, 9, 12
    a(f's_lshl_b32 s4, s{sW}, 5')
    a(f'v_lshl_add_u32 v{vSA}, v{vG}, 7, v{vI}')
    a(f'v_add_u32 v{vSA}, s4, v{vSA}')
    a(f'v_mul_u32_u24 v{vSA}, 120, v{vSA}')
    a(f'v_add_u32 v{vSA}, {L_RING}, v{vSA}')
    for z in range(2):
        for t in range(5):
            r = AC(5 + t, z)
            a(f'v_cvt_pk_bf16_f32 v{r}, v{r}, v{r + 1}')
            a(f'v_cvt_pk_bf16_f32 v{r + 1}, v{r + 2}, v{r + 3}')
            a(f'ds_write_b64 v{vSA}, {V(r, 2)} offset:{z * 16 * 120 + 80 + 8 * t}')
    PK = [Q(33), Q(34), Q(35)]
    EN5 = [Q(36 + c) for c in range(5)]
    for z in range(2):
        E5 = [AC(t, z) for t in range(5)]
        P5 = [Q(41 + 5 * z + c) for c in range(5)]
        featmap(a, E5, PK, WPF, P5, E5, EN5, 32)
        for c in range(10):
            a(f'ds_write_b64 v{vSA}, {V(P5[c // 2] + 2 * (c % 2), 2)} offset:{z * 16 * 120 + 8 * c}')
    stamp(a, 'fm')
    a(f's_mul_i32 s4, s{sW}, {128 * 120}')
    a(f's_add_u32 s4, s4, {L_RING}')
    a(f'v_mul_u32_u24 v{vKA}, 120, v{vGR}')
    a(f'v_lshl_add_u32 v{vKA}, v{vC}, 3, v{vKA}')
    a(f'v_add_u32 v{vKA}, s4, v{vKA}')
    a(f's_lshl_b32 s4, s{sHG}, 2')
    a(f's_add_u32 s4, s4, s{sW}')
    a('s_lshl_b32 s4, s4, 4')
    a(f's_add_u32 s13, s4, s{sRB}')
    a('s_mul_i32 s4, s13, 6144')
    a(f's_add_u32 s4, s4, {KV_OFF}')
    a(f'v_lshl_add_u32 v{vKO}, v{vL}, 4, s4')
    a('s_movk_i32 s12, 0x1000')
    a(f'v_mov_b32 v11, {OOB}')
    a(f'v_cmp_gt_u32 vcc, 8, v{vI}')
    a(f'v_cndmask_b32 v{vKO + 1}, v11, v{vKO}, vcc')
    a(f'v_cmp_gt_u32 vcc, 2, v{vG}')
    a(f'v_cndmask_b32 v{vKO + 2}, v11, v{vKO}, vcc')
    a(f'v_cndmask_b32 v{vKO + 3}, v11, v{vKO + 1}, vcc')
    a(f's_lshl_b32 s13, s13, {FSH}')
    a(f's_add_u32 s10, s13, {FK_OFF}')
    a('v_mov_b32 v11, 0x3f803f80')
    a(f'v_cmp_eq_u32 vcc, 1, v{vR}')
    a.wait_lg0()
    a('s_barrier')
    ktok = {}
    OPQ = lambda kk, x: Q(13 + kk * 5 + x)
    KVA = [Q(k) for k in range(6)]

    def kv_read(kk):
        for x in range(5):
            col = 32 * x if x < 3 else 80 + 32 * (x - 3)
            a(f'ds_read_b64_tr_b16 {V(OPQ(kk, x), 2)}, v{vKA} offset:{kk * 32 * 120 + col}')
            ktok[kk] = a(f'ds_read_b64_tr_b16 {V(OPQ(kk, x) + 2, 2)}, v{vKA} offset:{kk * 32 * 120 + 16 * 120 + col}')

    kv_read(0)
    for kk in range(4):
        if kk + 1 < 4:
            kv_read(kk + 1)
        a.wait(ktok[kk])
        for j in range(4):
            a(f'v_cndmask_b32 v{OPQ(kk, 4) + j}, v{OPQ(kk, 4) + j}, v11, vcc')
        for et in range(2):
            for ft in range(3):
                d = V(KVA[ft * 2 + et], 4)
                a(f'v_mfma_f32_16x16x32_bf16 {d}, {V(OPQ(kk, 3 + et), 4)}, {V(OPQ(kk, ft), 4)}, {"0" if kk == 0 else d}')
    for ft in range(3):
        for et in range(2):
            vo = vKO + (1 if ft == 2 else 0) + (2 if et == 1 else 0)
            so = 's12' if ft == 2 else '0'
            a(f'buffer_store_dwordx4 {V(KVA[ft * 2 + et], 4)}, v{vo}, {S(sWS, 4)}, {so} offen offset:{(ft % 2) * 2048 + et * 1024} sc1')
    a.wait_vm0()
    flag_set(a, 10)
    a(f's_mov_b32 s10, {OOB}')
    if 'pfa' in EXP:
        a(f's_lshr_b32 s4, s{sID}, 3')
        a('s_lshl_b32 s4, s4, 2')
        a(f's_add_u32 s4, s4, s{sW}')
        a(f's_mul_i32 s5, s4, {27 * 4096}')
        a(f's_and_b32 s7, s{sID}, 7')
        a('s_lshl_b32 s7, s7, 9')
        a('s_add_u32 s5, s5, s7')
        a(f'v_lshrrev_b32 v24, 2, v{vL}')
        a('v_min_u32 v24, 13, v24')
        a('v_lshlrev_b32 v24, 12, v24')
        a(f'v_lshl_add_u32 v24, v{vC}, 7, v24')
        a('v_add_u32 v24, s5, v24')
        a(f'buffer_load_dword v37, v24, {S(sW2, 4)}, 0 offen')
        a(f'v_add_u32 v24, {13 * 4096}, v24')
        a(f'buffer_load_dword v37, v24, {S(sW2, 4)}, 0 offen')
    a('s_barrier')
    a('s_branch L_join')

    a.label('L_a_upper')
    a.restore(at_split)
    wtok = {}

    def dma5(so, lds):
        a(f's_add_u32 m0, s{sM0B}, {lds}')
        for q in range(4):
            off = f' offset:{q * 1024}' if q else ''
            a(f'buffer_load_dwordx4 v{vLN}, {S(sWS, 4)}, s{so} offen{off} sc1 lds')
        a(f's_add_u32 m0, s{sM0B}, {lds + 4096}')
        t = a(f'buffer_load_dwordx4 v{vLN + 1}, {S(sWS, 4)}, s{so} offen sc1 lds')
        a(f's_add_u32 s{so}, s{so}, 20480')
        return t

    NXR = 12
    XQ_ = lambda ks, z: Q(13 + (ks % NXR) * 2 + z)
    AQ = lambda t, z: Q(37 + 2 * t + z)
    FQ = lambda n: Q(47 + n % 5)
    xtok = {}
    for d in range(3):
        wtok[d] = dma5(10, L_RING + d * 20480)
    for d in range(10):
        a.wait(wtok[d])
        a('s_barrier')
        if 1 <= d and d + 2 < 10:
            wtok[d + 2] = dma5(10, L_RING + ((d + 2) % 3) * 20480)
        if d < 5:
            qtok = dma5(9, L_WQ + d * 20480)
        if 4 <= d < 10:
            for ks in (2 * (d - 4), 2 * (d - 4) + 1):
                for z in range(2):
                    xtok[ks] = xload(XQ_(ks, z), ks, z)
    a.wait(qtok)
    a('s_barrier')
    ftok = {}

    def read_q(n):
        off = n * 1024
        ftok[n] = a(f'ds_read_b128 {V(FQ(n), 4)}, v{vLN if off < 61440 else 27} offset:{off % 61440}')

    QBAR = int(os.environ.get('QBAR', '-1'))
    if QBAR < 0:
        a('s_barrier')
    for n in range(4):
        read_q(n)
    for n in range(100):
        if n + 4 < 100:
            read_q(n + 4)
        ks, t = divmod(n, 5)
        a.wait(ftok[n], xtok[ks])
        for z in range(2):
            c = '0' if ks == 0 else V(AQ(t, z), 4)
            a(f'v_mfma_f32_16x16x32_bf16 {V(AQ(t, z), 4)}, {V(FQ(n), 4)}, {V(XQ_(ks, z), 4)}, {c}')
        if t in (1, 3) and ks >= 1 and ks - 1 + NXR < 20:
            xtok[ks - 1 + NXR] = xload(XQ_(ks - 1 + NXR, t // 2), ks - 1 + NXR, t // 2)
        if n == QBAR:
            a('s_barrier')
    a('s_barrier')
    stamp(a, 'aend')
    PK = [Q(13), Q(14), Q(15)]
    EN5 = [Q(16 + c) for c in range(5)]
    PP = [[Q(21 + 5 * z + c) for c in range(5)] for z in range(2)]
    for z in range(2):
        E5 = [AQ(t, z) for t in range(5)]
        featmap(a, E5, PK, WPF, PP[z], E5, EN5, 32)
    stamp(a, 'fm')
    a('s_setprio 3')
    a(f's_mul_i32 s6, s{sW}, 10240')
    a(f's_add_u32 s6, s6, {L_RING}')
    a(f'v_lshlrev_b32 v31, 11, v{vG}')
    a(f'v_lshl_add_u32 v31, v{vR}, 3, v31')
    a('v_mov_b32 v21, 8192')
    a(f'v_cmp_eq_u32 vcc, v{vG}, v{vC}')
    a('v_cndmask_b32 v31, v21, v31, vcc')
    a('v_add_u32 v31, s6, v31')
    for k in range(4):
        a(f'v_mov_b32 v{44 + k}, 0')
    a(f'v_add_u32 v21, s6, v{vLN}')
    a('ds_write_b128 v21, v[44:47] offset:8192')
    a('ds_write_b128 v21, v[44:47] offset:9216')
    a(f's_lshl_b32 s4, s{sHG}, {4 + FSH}')
    a(f's_add_u32 s4, s4, {FR_OFF}')
    a(f'v_lshl_add_u32 v20, v{vI}, {FSH}, s4')
    a(f'v_lshlrev_b32 v8, 4, v{vL}')
    a('v_add_u32 v9, 4096, v8')
    a(f'v_lshlrev_b32 v10, 3, v{vL}')
    a(f's_lshl_b32 s5, s{sHG}, 13')
    a(f's_add_u32 s5, s5, {KB_OFF}')
    a(f's_lshl_b32 s7, s{sRB}, 1')
    a(f's_lshr_b32 s8, s{sW}, 1')
    a('s_add_u32 s7, s7, s8')
    a(f's_and_b32 s8, s{sW}, 1')
    a('s_lshl_b32 s8, s8, 1')
    a(f's_lshr_b32 s12, s{sHG}, 1')
    a('s_mul_i32 s12, s12, 5')
    a('s_mul_i32 s13, s7, 20')
    a('s_add_u32 s12, s12, s13')
    a('s_lshl_b32 s12, s12, 2')
    a('s_add_u32 s12, s12, s8')
    a('s_lshl_b32 s12, s12, 10')
    a(f's_add_u32 s12, s12, {OF_OFF}')
    a(f's_and_b32 s13, s{sHG}, 1')
    a(f's_mul_i32 s14, s13, {3 * 4096}')
    a('s_add_u32 s14, s14, s12')
    a('s_lshl_b32 s13, s13, 9')
    a('s_add_u32 s12, s12, s13')
    a(f's_add_u32 s12, s12, {2 * 4096}')
    a('s_lshl_b32 s13, s7, 3')
    a(f's_add_u32 s13, s13, s{sHG}')
    a('s_lshl_b32 s13, s13, 2')
    a('s_add_u32 s13, s13, s8')
    a(f's_lshl_b32 s13, s13, {FSH}')
    a(f's_add_u32 s13, s13, {FO_OFF}')
    flag_check(a, flag_issue(a, 20, 21), 20, 21, int(os.environ.get('RSLEEP', '8')))
    stamp(a, 'rok')
    for hh in range(2):
        a(f's_add_u32 m0, s6, {4096 * hh}')
        for q in range(4):
            off = f' offset:{q * 1024}' if q else ''
            a(f'buffer_load_dwordx4 v{8 + hh}, {S(sWS, 4)}, s5 offen{off} sc1 lds')
    a.wait_all()
    OA = [[Q(31 + k) for k in range(6)], [Q(37 + k) for k in range(6)]]
    KF = lambda ks, t: Q((ks % 2) * 6 + t)
    otok = {}

    def o_read(ks):
        for t in range(6):
            a(f'ds_read_b64_tr_b16 {V(KF(ks, t), 2)}, v31 offset:{kb_pos(8 * ks, t)}')
            otok[ks] = a(f'ds_read_b64_tr_b16 {V(KF(ks, t) + 2, 2)}, v31 offset:{kb_pos(8 * ks + 4, t)}')

    o_read(0)
    for ks in range(5):
        if ks + 1 < 5:
            o_read(ks + 1)
        a.wait(otok[ks])
        for z in range(2):
            for t in range(6):
                d = V(OA[z][t], 4)
                a(f'v_mfma_f32_16x16x32_bf16 {d}, {V(KF(ks, t), 4)}, {V(PP[z][ks], 4)}, {"0" if ks == 0 else d}')
    for z in range(2):
        O = OA[z]
        PO = PK if z == 0 else [Q(16), Q(17), Q(18)]
        a(f'v_add_f32 v{O[5]}, {fbits(1e-6)}, v{O[5]}')
        a(f'v_rcp_f32 v{O[5]}, v{O[5]}')
        for t in range(5):
            for h in range(2):
                a(f'v_pk_mul_f32 {V(O[t] + 2 * h, 2)}, {V(O[t] + 2 * h, 2)}, {V(O[5], 2)} op_sel_hi:[1,0]')
        for k in range(10):
            t, j = divmod(2 * k, 4)
            a(f'v_cvt_pk_bf16_f32 v{PO[k // 4] + k % 4}, v{O[t] + j}, v{O[t] + j + 1}')
        off = f' offset:{1024 * z}' if z else ''
        a(f'buffer_store_dwordx4 {V(PO[0], 4)}, v8, {S(sWS, 4)}, s14 offen{off} sc1')
        a(f'buffer_store_dwordx4 {V(PO[1], 4)}, v9, {S(sWS, 4)}, s14 offen{off} sc1')
        a(f'buffer_store_dwordx2 {V(PO[2], 2)}, v10, {S(sWS, 4)}, s12 offen{off} sc1')
    a.wait_vm0()
    flag_set(a, 13)
    a(f's_cmp_lg_u32 s{sID}, 0')
    a('s_cbranch_scc1 L_a_done')
    a(f's_cmp_lg_u32 s{sW}, 3')
    a('s_cbranch_scc1 L_a_done')
    a(f'v_and_b32 v20, 31, v{vL}')
    a('v_min_u32 v20, 26, v20')
    a(f'v_and_b32 v21, 32, v{vL}')
    a('v_add_u32 v20, v20, v21')
    a(f'v_lshlrev_b32 v20, {FSH + 2}, v20')
    for k in range(4):
        a(f'v_add_u32 v22, {FG_OFF + (k * 256 << FSH)}, v20')
        flag_check(a, flag_issue(a, 22, 21), 22, 21, 12)
    a(f'v_lshlrev_b32 v20, {FSH}, v{vL}')
    for base in (FR_OFF, FR_OFF + (64 << FSH)):
        a(f'v_add_u32 v22, {base}, v20')
        flag_check(a, flag_issue(a, 22, 21), 22, 21, 12)
    a(f'v_and_b32 v20, 31, v{vL}')
    a(f'v_lshlrev_b32 v20, {FSH}, v20')
    a(f'v_add_u32 v22, {FW_OFF}, v20')
    flag_check(a, flag_issue(a, 22, 21), 22, 21, 12)
    a(f's_mov_b32 s10, {EP_OFF}')
    flag_set(a, 10)
    a.label('L_a_done')
    stamp_flush(a, 'end')
    a('s_endpgm')


def role_b(a):
    if 'map4' in EXP:
        a(f's_lshr_b32 s{sBCB}, s6, 2')
        a('s_and_b32 s9, s6, 3')
        a('s_lshl_b32 s6, s9, 1')
    else:
        a('s_cmp_ge_u32 s6, 54')
        a('s_cselect_b32 s7, 54, 0')
        a('s_cselect_b32 s8, 4, 0')
        a('s_sub_u32 s6, s6, s7')
        a(f's_lshr_b32 s{sBCB}, s6, 1')
        a('s_and_b32 s9, s6, 1')
        a('s_lshl_b32 s6, s9, 1')
        a('s_add_u32 s6, s6, s8')
    PR = 24 if 'map4' in EXP else 48
    a(f's_add_u32 s{sBDB}, s6, s{sWH}')
    srd(a, sW1, P_W1, S_ * F_ * 2)
    g_common(a)
    gB = GGemm(a, 'B')
    gB.setup()
    BPRE = int(os.environ.get('BPRE', '10'))
    if 'g1lin' in EXP:
        a(f's_lshl_b32 s4, s{sBCB}, 2')
        a('s_add_u32 s4, s4, s9')
        a('s_lshl_b32 s4, s4, 3')
        a(f's_add_u32 s4, s4, s{sW8}')
        a('s_lshl_b32 s4, s4, 13')
        a(f'v_lshl_add_u32 v24, v{vL}, 7, s4')
        a(f'buffer_load_dword v37, v24, {S(sW1, 4)}, 0 offen')
        if 'g1wait' in EXP:
            a.wait_vm0()
    if 'g1first' in EXP:
        a('s_lshl_b32 s4, s9, 1')
        a(f's_add_u32 s4, s4, s{sWH}')
        a(f's_lshl_b32 s5, s{sW}, 9')
        a('s_add_u32 s4, s4, s5')
        a(f's_mul_i32 s4, s4, {F_ * 2}')
        a(f's_lshl_b32 s5, s{sBCB}, 7')
        a('s_add_u32 s4, s4, s5')
        a(f'v_mul_u32_u24 v24, {8 * F_ * 2}, v{vL}')
        a('v_add_u32 v24, s4, v24')
        a(f'buffer_load_dword v37, v24, {S(sW1, 4)}, 0 offen')
    for j in range(BPRE):
        Hooks(gB.dma_items(j)).flush()

    def b_extra(j):
        return []

    a('s_lshl_b32 s4, s9, 1')
    a(f's_add_u32 s4, s4, s{sWH}')
    a(f's_mul_i32 s4, s4, {PR}')
    a(f's_lshl_b32 s5, s{sW}, 9')
    a('s_add_u32 s4, s4, s5')
    a(f's_add_u32 s4, s4, {32 * B_P}')
    a(f's_mul_i32 s4, s4, {F_ * 2}')
    a(f's_lshl_b32 s5, s{sBCB}, 7')
    a('s_add_u32 s4, s4, s5')
    a(f'v_min_u32 v24, {PR - 1}, v{vL}')
    a(f'v_mul_u32_u24 v24, {F_ * 2}, v24')
    a('v_add_u32 v24, s4, v24')
    if 'g1first' not in EXP and 'nog1' not in EXP:
        a(f'buffer_load_dword v37, v24, {S(sW1, 4)}, 0 offen')
    srd(a, sAUX, P_B1, F_ * 2)
    a(f's_lshl_b32 s4, s{sBCB}, 7')
    a(f's_lshl_b32 s5, s{sW}, 5')
    a('s_add_u32 s4, s4, s5')
    a(f'v_lshl_add_u32 v24, v{vG}, 3, s4')
    a(f'buffer_load_dwordx2 v[38:39], v24, {S(sAUX, 4)}, 0 offen')
    tag_ready(a)
    a('s_barrier')
    stamp(a, 'prep')
    a(f's_cmp_lg_u32 s{sWH}, 0')
    a('s_cbranch_scc1 L_b_go')
    flag_check(a, flag_issue(a, vFL, vFD), vFL, vFD, 3)
    a.label('L_b_go')
    a.wait_vm0()
    a('s_barrier')
    stamp(a, 'go')
    Hooks(gB.frag_items(int(os.environ.get('FIRSTB', '25')))).flush()
    for j in range(BPRE, B_P):
        Hooks(gB.dma_items(j)).flush()

    gB.mainloop(b_extra)
    stamp(a, 'Bend')
    gB.reduce()
    R = lambda t, j: ACC(t, 0) + j
    T = lambda t, j: ACC(t, 1) + j
    a('v_lshlrev_b32 v34, 16, v38')
    a('v_and_b32 v35, 0xffff0000, v38')
    a('v_lshlrev_b32 v36, 16, v39')
    a('v_and_b32 v37, 0xffff0000, v39')
    c0 = 0.7978845608028654
    k1 = -2.0 * c0 * LOG2E
    k2 = k1 * 0.044715
    a(f's_mov_b32 s4, {fbits(k2)}')
    a(f's_mov_b32 s5, {fbits(k2)}')
    a(f'v_mov_b32 v24, {fbits(k1)}')
    a('v_mov_b32 v26, 1.0')
    th = [(t, h) for t in range(5) for h in range(2)]
    tj = [(t, j) for t in range(5) for j in range(4)]
    for t, h in th:
        a(f'v_pk_add_f32 {V(R(t, 2 * h), 2)}, {V(R(t, 2 * h), 2)}, {V(34 + 2 * h, 2)}')
    for t, h in th:
        a(f'v_pk_mul_f32 {V(T(t, 2 * h), 2)}, {V(R(t, 2 * h), 2)}, {V(R(t, 2 * h), 2)}')
    for t, h in th:
        a(f'v_pk_fma_f32 {V(T(t, 2 * h), 2)}, {V(T(t, 2 * h), 2)}, s[4:5], v[24:25] op_sel_hi:[1,0,0]')
    for t, h in th:
        a(f'v_pk_mul_f32 {V(T(t, 2 * h), 2)}, {V(T(t, 2 * h), 2)}, {V(R(t, 2 * h), 2)}')
    for t, j in tj:
        a(f'v_exp_f32 v{T(t, j)}, v{T(t, j)}')
    for t, h in th:
        a(f'v_pk_add_f32 {V(T(t, 2 * h), 2)}, {V(T(t, 2 * h), 2)}, v[26:27] op_sel_hi:[1,0]')
    for t, j in tj:
        a(f'v_rcp_f32 v{T(t, j)}, v{T(t, j)}')
    for t, h in th:
        a(f'v_pk_mul_f32 {V(T(t, 2 * h), 2)}, {V(T(t, 2 * h), 2)}, {V(R(t, 2 * h), 2)}')
    a(f's_mul_i32 s4, s{sW8}, 2560')
    a('s_add_u32 s4, s4, 81920')
    a(f'v_lshl_add_u32 v24, v{vL}, 3, s4')
    for t in range(5):
        a(f'v_cvt_pk_bf16_f32 v{R(t, 0)}, v{T(t, 0)}, v{T(t, 1)}')
        a(f'v_cvt_pk_bf16_f32 v{R(t, 1)}, v{T(t, 2)}, v{T(t, 3)}')
        a(f'ds_write_b64 v24, {V(R(t, 0), 2)} offset:{t * 512}')
    a(f's_mul_i32 s4, s{sBDB}, 74')
    a(f's_lshl_b32 s5, s{sBCB}, 1')
    a('s_add_u32 s4, s4, s5')
    a('s_mul_i32 s4, s4, 5120')
    a(f's_add_u32 s15, s4, {GF_OFF}')
    a(f's_mul_i32 s4, s{sWH}, 10240')
    a('s_add_u32 s4, s4, 81920')
    a(f'v_lshl_add_u32 v25, v{vL}, 3, s4')
    a.wait_lg0()
    a('s_barrier')
    gt = []
    for m in range(3):
        frag10_addr(a, m, 2 * 2560 - 5 * 512, 512, 15, 24, 25, 34 + m)
        a(f'ds_read_b64 {V(ACC(m, 2), 2)}, v24')
        gt.append(a(f'ds_read_b64 {V(ACC(m, 2) + 2, 2)}, v24 offset:2560'))
    for m in range(3):
        a.wait(gt[m])
        a(f'buffer_store_dwordx4 {V(ACC(m, 2), 4)}, v{34 + m}, {S(sWS, 4)}, 0 offen sc1')
    a(f's_lshl_b32 s4, s{sBDB}, 5')
    a(f's_add_u32 s4, s4, s{sBCB}')
    a('s_lshl_b32 s4, s4, 2')
    a(f's_add_u32 s4, s4, s{sW}')
    a(f's_lshl_b32 s4, s4, {FSH}')
    a(f's_add_u32 s10, s4, {FG_OFF}')
    a('s_branch L_join')


def role_r(a):
    a('s_lshl_b32 s11, s6, 1')
    a(f's_add_u32 s11, s11, s{sWH}')
    a('s_lshr_b32 s8, s6, 3')
    a('s_lshl_b32 s8, s8, 3')
    a(f's_add_u32 s8, s8, s{sW8}')
    a('s_getpc_b64 s[6:7]')
    a.raw('L_pc:')
    a(f's_sub_u32 s{sAUX}, s6, L_pc - L_start')
    a('s_subb_u32 s7, s7, 0')
    a(f's_and_b32 s{sAUX + 1}, s7, 0xffff')
    a(f's_mov_b32 s{sAUX + 2}, L_end - L_start')
    a(f's_mov_b32 s{sAUX + 3}, 0x20000')
    a('s_lshl_b32 s6, s8, 13')
    a(f'v_lshl_add_u32 v25, v{vL}, 7, s6')
    if 'nocpf' not in EXP:
        a(f'buffer_load_dword v37, v25, {S(sAUX, 4)}, 0 offen')
    if 'notlb' not in EXP:
        a(f's_lshl_b32 s5, s8, 6')
        a(f'v_add_u32 v26, s5, v{vL}')
        a(f'v_mul_u32_u24 v27, {(WS_USED // 1024 + 127) // 128 * 128}, v26')
        a(f'buffer_load_dword v37, v27, {S(sWS, 4)}, 0 offen sc1')
        a('v_lshlrev_b32 v27, 13, v26')
        a(f'buffer_load_dword v37, v27, {S(sW2, 4)}, 0 offen')
        srd(a, sOUT, P_OUT, S_ * D_ * 2)
        a('v_lshlrev_b32 v27, 12, v26')
        a(f'buffer_load_dword v37, v27, {S(sOUT, 4)}, 0 offen sc1')
        srd(a, sAUX, P_B2, S_ * 2)
        a(f'buffer_load_dword v37, v27, {S(sAUX, 4)}, 0 offen')
    if 'wqlin' in EXP:
        srd(a, sWQ, P_WQKV, D_ * 3 * D_ * 2)
        a(f's_sub_u32 s5, s{sID}, 240')
        a('s_lshl_b32 s5, s5, 3')
        a(f's_add_u32 s5, s5, s{sW8}')
        a('s_mul_i32 s5, s5, 24576')
        a(f'v_lshl_add_u32 v26, v{vL}, 7, s5')
        for k in range(3):
            a(f'buffer_load_dword v37, v26, {S(sWQ, 4)}, 0 offen')
            a('v_add_u32 v26, 8192, v26')
    if 'w2lin' in EXP:
        a(f's_sub_u32 s5, s{sID}, 240')
        a('s_lshl_b32 s5, s5, 3')
        a(f's_add_u32 s5, s5, s{sW8}')
        a('s_lshl_b32 s5, s5, 13')
        a(f'v_lshl_add_u32 v38, v{vL}, 7, s5')
    if 'g2map8' in EXP:
        a(f's_mul_i32 s5, s8, {108 * 4096}')
        a(f's_and_b32 s7, s{sID}, 7')
        a('s_lshl_b32 s7, s7, 9')
        a('s_add_u32 s5, s5, s7')
        a(f'v_lshrrev_b32 v24, 2, v{vL}')
        a('v_lshlrev_b32 v24, 12, v24')
        a(f'v_lshl_add_u32 v24, v{vC}, 7, v24')
        a('v_add_u32 v24, s5, v24')
    else:
        a('s_mul_i32 s5, s8, 54')
        a(f's_and_b32 s7, s{sID}, 1')
        a('s_mul_i32 s7, s7, 864')
        a('s_add_u32 s5, s5, s7')
        a('s_lshl_b32 s5, s5, 12')
        a(f's_and_b32 s7, s{sID}, 6')
        a('s_lshl_b32 s7, s7, 9')
        a('s_add_u32 s5, s5, s7')
        a(f'v_lshrrev_b32 v24, 3, v{vL}')
        a(f'v_and_b32 v25, 7, v{vL}')
        a('v_lshlrev_b32 v24, 12, v24')
        a('v_lshl_add_u32 v24, v25, 7, v24')
        a('v_add_u32 v24, s5, v24')
    tag_ready(a)
    a(f'v_mov_b32 v{vFL}, {FH_OFF}')
    if 'pf2now' not in EXP:
        flag_check(a, flag_issue(a, vFL, vFD), vFL, vFD, 16)
    PFA = int(os.environ.get('PFA', '0'))
    a('v_mov_b32 v36, v38' if 'w2lin' in EXP else 'v_mov_b32 v36, v24')
    for k in range(PFA):
        a(f'buffer_load_dword v37, v36, {S(sW2, 4)}, 0 offen')
        a(f'v_add_u32 v36, {(16 if "g2map8" in EXP else 8) * 4096}, v36')
        if k % 2 == 1 and 'pf2fast' not in EXP:
            a.wait_vm0()
    stamp(a, 'prep')
    a('s_setprio 3')
    a(f's_lshl_b32 s4, s11, {4 + FSH}')
    a(f's_add_u32 s4, s4, {FK_OFF}')
    a(f'v_lshl_add_u32 v{vFL}, v{vI}, {FSH}, s4')
    a(f's_lshl_b32 s5, s{sW}, 11')
    a(f'v_lshl_add_u32 v24, v{vL}, 4, s5')
    a(f'v_lshrrev_b32 v25, 5, v{vL}')
    a(f'v_and_b32 v26, 31, v{vL}')
    a('v_lshlrev_b32 v26, 4, v26')
    a('v_lshl_add_u32 v25, v25, 11, v26')
    a('v_add_u32 v25, 1024, v25')
    a(f's_cmp_eq_u32 s{sW}, 2')
    a('s_cselect_b64 vcc, -1, 0')
    a('v_cndmask_b32 v24, v24, v25, vcc')
    a(f'v_lshrrev_b32 v25, 3, v{vL}')
    a(f'v_and_b32 v26, 7, v{vL}')
    a('v_lshlrev_b32 v26, 4, v26')
    a('v_lshl_add_u32 v25, v25, 8, v26')
    a('v_add_u32 v25, 4096, v25')
    a(f's_cmp_eq_u32 s{sW}, 3')
    a('s_cselect_b64 vcc, -1, 0')
    a('v_cndmask_b32 v24, v24, v25, vcc')
    a(f's_mul_i32 s4, s11, {16 * 6144}')
    a(f's_add_u32 s4, s4, {KV_OFF}')
    flag_check(a, flag_issue(a, vFL, vFD), vFL, vFD, int(os.environ.get('KSLEEP', '4')))
    stamp(a, 'hok')
    stok = []
    for rb in range(16):
        stok.append(a(f'buffer_load_dwordx4 {V(128 + 4 * rb, 4)}, v24, {S(sWS, 4)}, s4 offen sc1'))
        a('s_add_u32 s4, s4, 6144')
    for rb in range(1, 16):
        a.wait(stok[rb])
        for h in range(2):
            a(f'v_pk_add_f32 {V(128 + 2 * h, 2)}, {V(128 + 2 * h, 2)}, {V(128 + 4 * rb + 2 * h, 2)}')
    stamp(a, 'rsum')
    a('v_cvt_pk_bf16_f32 v34, v128, v129')
    a('v_cvt_pk_bf16_f32 v35, v130, v131')
    a('s_lshl_b32 s4, s11, 11')
    a(f's_add_u32 s4, s4, {KB_OFF}')
    a(f'v_lshl_add_u32 v24, v{vTH}, 3, s4')
    a(f'buffer_store_dwordx2 v[34:35], v24, {S(sWS, 4)}, 0 offen sc1')
    a('s_lshl_b32 s4, s11, 2')
    a(f's_add_u32 s4, s4, s{sW}')
    a(f's_lshl_b32 s4, s4, {FSH}')
    a(f's_add_u32 s10, s4, {FR_OFF}')
    a.wait_vm0()
    flag_set(a, 10)
    a(f's_mov_b32 s10, {OOB}')
    stamp(a, 'rpub')
    a('s_barrier')
    for k in range(PFA, 0 if 'nopf2' in EXP else 7):
        a(f'buffer_load_dword v37, v36, {S(sW2, 4)}, 0 offen')
        a(f'v_add_u32 v36, {8 * 4096}, v36')
    a('s_branch L_join')


def role_wot(a):
    a('s_lshl_b32 s11, s6, 1')
    a(f's_add_u32 s11, s11, s{sWH}')
    srd(a, sAUX, P_WO, D_ * D_ * 2)
    a(f'v_lshlrev_b32 v{vF}, 4, v{vL}')
    a(f'v_add_u32 v{vF + 1}, 4096, v{vF}')
    tag_ready(a)
    if 'wotlate' in EXP:
        a(f'v_mov_b32 v{vFL}, {FH_OFF}')
        flag_check(a, flag_issue(a, vFL, vFD), vFL, vFD, 16)
    dma160_voffs(a, 34, 1280, False, 24)
    a('s_mul_i32 s4, s11, 160')
    a(f's_mul_i32 s5, s{sW}, {160 * 1280}')
    a('s_add_u32 s7, s4, s5')
    a(f's_mul_i32 s6, s{sW8}, 20480')
    a(f'v_mul_u32_u24 v24, 20, v{vG}')
    a(f'v_add_u32 v24, v24, v{vR}')
    a('v_mul_u32_u24 v24, 160, v24')
    a(f'v_mul_u32_u24 v25, 40, v{vC}')
    a('v_add_u32 v24, v24, v25')
    a('v_add_u32 v24, s6, v24')
    a('s_mul_i32 s4, s11, 74')
    a(f's_mul_i32 s5, s{sW}, 5')
    a('s_add_u32 s4, s4, s5')
    a('s_add_u32 s4, s4, 54')
    a('s_mul_i32 s4, s4, 5120')
    a(f's_add_u32 s4, s4, {GF_OFF}')
    rounds = [[(0, 0, 0), (0, 1, 4), (1, 0, 8), (1, 1, 12), (2, 0, 16)],
              [(2, 1, 16), (3, 0, 0), (3, 1, 4), (4, 0, 8), (4, 1, 12)]]
    for rd in range(2):
        for k in range(3):
            a(f's_add_u32 s8, s7, {(rd * 80 + k * 32) * 1280}')
            dma160(a, 34, sAUX, 8, 6, k * 5120)
        a.wait_vm0()
        for u, hf, row in rounds[rd]:
            for t in range(5):
                a(f'ds_read_b64_tr_b16 {V(156 + (u * 5 + t) * 4 + 2 * hf, 2)}, v24 offset:{row * 160 + 8 * t}')
            a.wait_lg0()
    for u in range(5):
        for t in range(5):
            vo, off = (vF, t * 1024) if t < 4 else (vF + 1, 0)
            a(f'buffer_store_dwordx4 {V(156 + (u * 5 + t) * 4, 4)}, v{vo}, {S(sWS, 4)}, s4 offen offset:{off} sc1')
        a('s_add_u32 s4, s4, 5120')
    a('s_lshl_b32 s4, s11, 2')
    a(f's_add_u32 s4, s4, s{sW}')
    a(f's_lshl_b32 s4, s4, {FSH}')
    a(f's_add_u32 s10, s4, {FW_OFF}')
    a('s_barrier')


def final_gemm(a):
    g2 = GGemm(a, 'G2')
    if 'early_setup' in EXP:
        xcd_tile(a)
        g_common(a)
        g2.setup()
    a.wait_all()
    flag_set(a, 10)
    stamp(a, 'pub')
    a('s_setprio 0')
    a(f's_cmp_lg_u32 s{sWH}, 0')
    a('s_cbranch_scc1 L_fin')
    if 'early_setup' not in EXP:
        xcd_tile(a)
        g_common(a)
        g2.setup()
    for j in range(G2_P):
        Hooks(g2.dma_items(j)).flush()
    srd(a, sOUT, P_OUT, S_ * D_ * 2)
    R = lambda t, j: ACC(t, 0) + j
    T = lambda t, j: ACC(t, 1) + j
    srd(a, sAUX, P_B2, S_ * 2)
    a(f's_lshl_b32 s4, s{sRB}, {5 + FSH}')
    a(f's_lshl_b32 s5, s{sW}, {3 + FSH}')
    a('s_add_u32 s4, s4, s5')
    a(f's_add_u32 s4, s4, {FO_OFF}')
    a(f'v_lshl_add_u32 v34, v{vC}, {FSH + 1}, s4')
    a(f's_lshl_b32 s4, s{sHG}, 2')
    a(f's_add_u32 s4, s4, s{sW}')
    a(f's_lshl_b32 s4, s4, {FSH}')
    a(f's_add_u32 s4, s4, {FW_OFF}')
    a('v_mov_b32 v35, s4')
    a(f'v_cmp_gt_u32 vcc, 63, v{vL}')
    a(f'v_cndmask_b32 v{vFL}, v35, v{vFL}, vcc')
    for nt in range(4):
        a(f's_xor_b32 s4, s{sW}, {nt}')
        a('s_lshl_b32 s4, s4, 10')
        a(f'v_add_u32 v{vOF + nt}, s4, v{vF}')
    a(f's_mul_i32 s4, s{sRB}, 20')
    a(f's_mul_i32 s5, s{sW}, 5')
    a('s_add_u32 s4, s4, s5')
    a('s_lshl_b32 s4, s4, 12')
    a(f's_add_u32 s11, s4, {OF_OFF}')
    a(f'v_mul_u32_u24 v{vXA}, 1280, v{vTOK}')
    a(f'v_mul_u32_u24 v{vBA}, 40, v{vG}')
    a(f'v_add_u32 v{vXA}, v{vXA}, v{vBA}')
    a(f's_mul_i32 s4, s{sHG}, 160')
    a(f'v_add_u32 v{vXA}, s4, v{vXA}')
    a(f'v_lshlrev_b32 v{vBA}, 1, v{vTOK}')
    if 'outlds' in EXP:
        a(f's_lshl_b32 s5, s{sRB}, 2')
        a(f's_add_u32 s5, s5, s{sW}')
        a(f's_mul_i32 s5, s5, {16 * 1280}')
        a('s_add_u32 s4, s4, s5')
        for m in range(3):
            a(f'v_add_u32 v24, {64 * m}, v{vL}')
            a('v_mul_u32_u24 v25, 6554, v24')
            a('v_lshrrev_b32 v25, 16, v25')
            a(f'v_mul_u32_u24 v25, {1280 - 160}, v25')
            a('v_lshl_add_u32 v25, v24, 4, v25')
            a(f'v_add_u32 v{37 + m}, s4, v25')
        a(f'v_mov_b32 v24, {OOB}')
        a(f'v_cmp_gt_u32 vcc, 32, v{vL}')
        a('v_cndmask_b32 v39, v24, v39, vcc')
    flag_check(a, flag_issue(a, vFL, vFD), vFL, vFD, int(os.environ.get('GSLEEP', '2')))
    stamp(a, 'gok')
    fl = {}

    def gate():
        a(f's_mul_i32 s4, s{sHG}, 74')
        a(f's_mul_i32 s5, s{sW}, 5')
        a('s_add_u32 s4, s4, s5')
        a('s_add_u32 s4, s4, 54')
        a('s_mul_i32 s4, s4, 5120')
        a(f's_add_u32 s{sFS}, s4, {GF_OFF}')

    def gate2():
        stamp(a, 'oa')
        flag_check(a, fl['o'], 34, 35)
        stamp(a, 'ob')

    g2.gate = gate
    g2.gate2 = gate2
    XR = [8, 10, 14, 16, 18]

    def g2_extra(j):
        it = []
        if j == 9:
            def fo():
                fl['o'] = flag_issue(a, 34, 35)
            it.append(fo)
        if j == int(os.environ.get('JRES', '12')):
            def resid():
                a(f'buffer_load_ushort v36, v{vBA}, {S(sAUX, 4)}, 0 offen')
                if 'inx4' in EXP:
                    a(f'buffer_load_dwordx4 v[8:11], v{vXA}, {S(sX, 4)}, 0 offen')
                    a(f'buffer_load_dwordx4 v[14:17], v{vXA}, {S(sX, 4)}, 0 offen offset:16')
                    fl['x'] = a(f'buffer_load_dwordx2 v[18:19], v{vXA}, {S(sX, 4)}, 0 offen offset:32')
                    return
                for t in range(5):
                    fl['x'] = a(f'buffer_load_dwordx2 {V(XR[t], 2)}, v{vXA}, {S(sX, 4)}, 0 offen offset:{8 * t}')
            it.append(resid)
        return it

    Hooks(g2.frag_items(int(os.environ.get('FIRSTG', '25')))).flush()
    g2.mainloop(g2_extra)
    stamp(a, 'Gend')
    g2.reduce()
    a.wait(fl['x'])
    a('v_lshlrev_b32 v36, 16, v36')
    if 'outlds' in EXP:
        a(f's_mul_i32 s4, s{sW}, 3072')
        a('s_add_u32 s4, s4, 61440')
        a(f'v_mul_u32_u24 v24, 160, v{vI}')
        a(f'v_mul_u32_u24 v25, 40, v{vG}')
        a('v_add3_u32 v24, v24, v25, s4')
        a(f'v_add_u32 v25, s4, v{vF}')
    for t in range(5):
        for h in range(2):
            a(f'v_lshlrev_b32 v{T(t, 2 * h)}, 16, v{XR[t] + h}')
            a(f'v_and_b32 v{T(t, 2 * h + 1)}, 0xffff0000, v{XR[t] + h}')
            a(f'v_pk_add_f32 {V(R(t, 2 * h), 2)}, {V(R(t, 2 * h), 2)}, v[36:37] op_sel_hi:[1,0]')
            a(f'v_pk_add_f32 {V(R(t, 2 * h), 2)}, {V(R(t, 2 * h), 2)}, {V(T(t, 2 * h), 2)}')
        OF_ = os.environ.get('OUTF', '')
        if 'outlds' in EXP:
            a(f'v_cvt_pk_bf16_f32 v{R(t, 0)}, v{R(t, 0)}, v{R(t, 1)}')
            a(f'v_cvt_pk_bf16_f32 v{R(t, 1)}, v{R(t, 2)}, v{R(t, 3)}')
            a(f'ds_write_b64 v24, {V(R(t, 0), 2)} offset:{8 * t}')
            if t == 4:
                rt = [a(f'ds_read_b128 {V(ACC(m, 2), 4)}, v25 offset:{1024 * m}') for m in range(3)]
                for m in range(3):
                    a.wait(rt[m])
                    a(f'buffer_store_dwordx4 {V(ACC(m, 2), 4)}, v{37 + m}, {S(sOUT, 4)}, 0 offen{OF_}')
            continue
        if 'outx4' in EXP:
            d = ACC(0, 2) + 2 * t
            a(f'v_cvt_pk_bf16_f32 v{d}, v{R(t, 0)}, v{R(t, 1)}')
            a(f'v_cvt_pk_bf16_f32 v{d + 1}, v{R(t, 2)}, v{R(t, 3)}')
            if t in (1, 3):
                a(f'buffer_store_dwordx4 {V(d - 2, 4)}, v{vXA}, {S(sOUT, 4)}, 0 offen offset:{8 * (t - 1)}{OF_}')
            if t == 4:
                a(f'buffer_store_dwordx2 {V(d, 2)}, v{vXA}, {S(sOUT, 4)}, 0 offen offset:32{OF_}')
            continue
        a(f'v_cvt_pk_bf16_f32 v{R(t, 0)}, v{R(t, 0)}, v{R(t, 1)}')
        a(f'v_cvt_pk_bf16_f32 v{R(t, 1)}, v{R(t, 2)}, v{R(t, 3)}')
        a(f'buffer_store_dwordx2 {V(R(t, 0), 2)}, v{vXA}, {S(sOUT, 4)}, 0 offen offset:{8 * t}{OF_}')
    a.label('L_fin')
    stamp_flush(a, 'end')


def build():
    a = Asm()
    hdr = open(os.path.join(os.path.dirname(__file__), '..', 'cdna_kernels', NAME + '.s.ref')).read().split('\n')
    for line in hdr:
        if line.startswith(';') and '@launch' not in line:
            a.raw(line)
    a.raw(f'; @launch grid=(256,1,1) block=(512,1,1) lds={LDS_BYTES}')
    a.raw('.amdgcn_target "amdgcn-amd-amdhsa--gfx950"')
    a.raw('.text')
    K = NAME + '_kernel'
    a.raw(f'.globl {K}')
    a.raw('.p2align 8')
    a.raw(f'.type {K},@function')
    a.raw(f'{K}:')
    a.raw('L_start:')
    a('s_cmp_ge_u32 s2, 256')
    a('s_cbranch_scc1 L_end')
    a('s_load_dwordx16 s[16:31], s[0:1], 0')
    a('s_load_dwordx8 s[32:39], s[0:1], 64')
    a(f'v_and_b32 v{vL}, 63, v0')
    a('v_lshrrev_b32 v6, 6, v0')
    a(f'v_readfirstlane_b32 s{sW8}, v6')
    a(f'v_lshrrev_b32 v{vG}, 4, v{vL}')
    a(f'v_and_b32 v{vI}, 15, v{vL}')
    a(f'v_lshrrev_b32 v{vR}, 2, v{vI}')
    a(f'v_and_b32 v{vC}, 3, v{vL}')
    a(f'v_lshl_add_u32 v{vGR}, v{vG}, 2, v{vR}')
    a(f'v_and_b32 v{vTH}, 255, v0')
    a(f's_and_b32 s{sW}, s{sW8}, 3')
    a(f's_lshr_b32 s{sWH}, s{sW8}, 2')
    a(f's_mov_b32 s{sID}, s2')
    a('s_waitcnt lgkmcnt(0)')
    a(f's_add_u32 s4, s{P_WS}, {EP_OFF}')
    a(f's_addc_u32 s5, s{P_WS + 1}, 0')
    a(f's_load_dword s{sTAG}, s[4:5], 0')
    srd(a, sX, P_X, S_ * D_ * 2)
    srd(a, sWS, P_WS, WS_USED)
    srd(a, sW2, P_W2, F_ * S_ * 2)
    stamp(a, 'start')
    if 'noticket' not in EXP:
        srd(a, sAUX, P_DBG, 256)
        a(f'v_mov_b32 v8, {L_CNT + 16}')
        a(f's_cmp_lg_u32 s{sW8}, 0')
        a('s_cbranch_scc1 L_ticket_done')
        a('s_getreg_b32 s4, hwreg(HW_REG_XCC_ID)')
        a('s_mov_b32 s6, 0')
        a('s_mov_b64 exec, 1')
        a.label('L_ticket')
        a('s_and_b32 s4, s4, 7')
        a('s_lshl_b32 s5, s4, 5')
        a('v_mov_b32 v9, s5')
        a('v_mov_b32 v10, 1')
        a(f'buffer_atomic_add v10, v9, {S(sAUX, 4)}, 0 offen sc0 sc1')
        a.wait_vm0()
        a('v_readfirstlane_b32 s5, v10')
        a('s_cmp_lt_u32 s5, 32')
        a('s_cbranch_scc1 L_ticket_ok')
        a('s_add_u32 s4, s4, 1')
        a('s_add_u32 s6, s6, 1')
        a('s_cmp_lt_u32 s6, 8')
        a('s_cbranch_scc1 L_ticket')
        a.label('L_ticket_ok')
        a('s_lshl_b32 s5, s5, 3')
        a('s_add_u32 s5, s5, s4')
        a('v_mov_b32 v9, s5')
        a('ds_write_b32 v8, v9')
        a('s_mov_b64 exec, -1')
        a('s_waitcnt lgkmcnt(0)')
        a.label('L_ticket_done')
        a('s_barrier')
        a('ds_read_b32 v9, v8')
        a('s_waitcnt lgkmcnt(0)')
        a('s_barrier')
        a(f'v_readfirstlane_b32 s{sID}, v9')
        a(f's_and_b32 s{sID}, s{sID}, 255')
        a.reset_counters()
        stamp(a, 'tick')
    if os.environ.get('UPRIO', '1') != '0':
        a(f's_cmp_eq_u32 s{sWH}, 0')
        a('s_cbranch_scc1 L_prio')
        a(f's_setprio {os.environ.get("UPRIO", "1")}')
        a.label('L_prio')
    a(f's_cmp_ge_u32 s{sID}, 128')
    a('s_cbranch_scc1 L_not_a')
    role_a(a)
    a.label('L_not_a')
    a.reset_counters()
    a(f's_and_b32 s4, s{sID}, 7')
    a(f's_lshr_b32 s5, s{sID}, 3')
    a('s_sub_u32 s5, s5, 16')
    a('s_cmp_ge_u32 s5, 14')
    a('s_cbranch_scc1 L_role_r')
    a('s_and_b32 s7, s4, 1')
    a('s_add_u32 s7, s7, 13')
    a('s_cmp_ge_u32 s5, s7')
    a('s_cbranch_scc1 L_role_wot')
    a('s_mul_i32 s6, s4, 27')
    a('s_lshr_b32 s6, s6, 1')
    a('s_add_u32 s6, s6, s5')
    role_b(a)
    a.label('L_role_r')
    a.reset_counters()
    a(f's_sub_u32 s6, s{sID}, 240')
    role_r(a)
    a.label('L_role_wot')
    a.reset_counters()
    a('s_lshr_b32 s6, s4, 1')
    role_wot(a)
    a.label('L_join')
    final_gemm(a)
    a.label('L_end')
    a('s_endpgm')
    if STAMPS:
        a.raw('; STAMPS ' + ' '.join(STAMP_NAMES))
    a.raw('.section .rodata,"a"')
    a.raw(f""".p2align 6
.amdhsa_kernel {K}
  .amdhsa_next_free_vgpr 256
  .amdhsa_next_free_sgpr 102
  .amdhsa_accum_offset 256
  .amdhsa_group_segment_fixed_size 0
  .amdhsa_kernarg_size 96
  .amdhsa_user_sgpr_count 2
  .amdhsa_user_sgpr_kernarg_segment_ptr 1
  .amdhsa_system_sgpr_workgroup_id_x 1
.end_amdhsa_kernel""")
    sys.stderr.write(f'maxv={a.maxv} maxa={a.maxa} maxs={a.maxs} nops={a.nops} lines={len(a.out)}\n')
    return a.text()


if __name__ == '__main__':
    out = sys.argv[1] if len(sys.argv) > 1 else os.path.join(os.path.dirname(__file__), '..', 'cdna_kernels', NAME + '.s')
    open(out, 'w').write(build())
```

```python
import sys, struct, os
sys.path.insert(0, os.path.dirname(__file__))
from asmdsl import Asm, Rec, V, A, S

NAME = 'parallel_sum__linear_kernel_hedgehog__mixer_token_mlp__prompt'
S_, D_, F_ = 2048, 640, 1728

HF_OFF = 0
HF_SZ = 8 * 64 * 5 * 1024
GF_OFF = HF_OFF + HF_SZ
GF_SZ = 8 * 74 * 5 * 1024
OF_OFF = GF_OFF + GF_SZ
OF_SZ = 32 * 20 * 4 * 1024
XF_OFF = OF_OFF + OF_SZ
XF_SZ = 128 * 20480
WF_OFF = XF_OFF + XF_SZ
WF_SZ = 480 * 5120 + 4096
KV_OFF = WF_OFF + WF_SZ
KV_SZ = 32 * 32 * 6144
KB_OFF = KV_OFF + KV_SZ + 4096
KB_SZ = 32 * 2048
FL_OFF = KB_OFF + KB_SZ + 4096
FSH = int(os.environ.get('FSH', '7'))
FH_OFF = FL_OFF
FK_OFF = FH_OFF + (1024 << FSH)
FR_OFF = FK_OFF + (1024 << FSH)
FG_OFF = FR_OFF + (128 << FSH)
FO_OFF = FG_OFF + (1024 << FSH)
FW_OFF = FO_OFF + (1024 << FSH)
FU_OFF = FW_OFF + (128 << FSH)
EP_OFF = FU_OFF + (512 << FSH)
WS_USED = EP_OFF + 512
STAMP_OFF = WS_USED
WS_USED += 512 * 256
STAMPS = bool(int(os.environ.get('STAMPS', '0')))
EXP = os.environ.get('EXP', '').split(',') + [e for e in ['map4', 'noticket', 'notlb', 'g2map8', 'nopf2', 'pfa', 'pf2now', 'fewpoll', 'outx4', 'inx4', 'outlds'] if e not in os.environ.get('OFF', '').split(',')]
OOB = 0x40000000

P_X, P_WQKV, P_WPHI, P_WO, P_BX, P_W1, P_B1, P_W2, P_B2, P_OUT, P_DBG, P_WS = range(16, 40, 2)
LOG2E = 1.4426950408889634

sW = 3
sW8, sWH = 90, 91
sWS, sX, sWQ, sW1, sW2, sAUX, sOUT = 40, 44, 48, 52, 56, 60, 64
sHG, sRB, sID, sROT, sKS, sT, sM0B, sTAG = 68, 69, 70, 71, 72, 73, 74, 75
sL, sNL = 76, 78
sBDB, sBCB, sFS, sGM0, sSPIN, sLIM = 80, 81, 82, 83, 84, 85
vL, vG, vI, vR, vC = 1, 2, 3, 4, 5
vTOK, vGR = 6, 7
vFS = 42
DB = 64
XN = lambda s: DB + 8 * s
UP = lambda k: DB + 8 * k + 4

LDS_BYTES = 163840
A_SLOTS = 4
L_WQ = 0
L_RING = 102400
L_ZERO = 122880
L_WPHI = 126976
L_CNT = 131072
B_P = 10
G2_P = 5
ILV = os.environ.get('ILV', 'burst')


def kb_pos(f, t):
    if f < 32:
        return (f >> 4) * 512 + (t * 16 + (f & 15)) * 8 if t < 4 else 1024 + ((f >> 4) * 32 + (t - 4) * 16 + (f & 15)) * 8
    return 1536 + (t * 8 + f - 32) * 8


def fbits(x):
    return '0x%08x' % struct.unpack('<I', struct.pack('<f', x))[0]


def srd(a, dst, ptr, nbytes):
    a(f's_mov_b32 s{dst}, s{ptr}')
    a(f's_and_b32 s{dst + 1}, s{ptr + 1}, 0xffff')
    a(f's_mov_b32 s{dst + 2}, {nbytes}')
    a(f's_mov_b32 s{dst + 3}, 0x20000')


STAMP_NAMES = []
vST = 41


def stamp(a, name):
    if not STAMPS:
        return
    name = str(name)
    if name not in STAMP_NAMES:
        STAMP_NAMES.append(name)
    idx = STAMP_NAMES.index(name)
    a('s_memrealtime s[98:99]')
    a.wait_lg0()
    if idx == 0:
        a(f'v_mov_b32 v{vST}, 0')
        a('s_getreg_b32 s97, hwreg(HW_REG_HW_ID)')
        a(f'v_writelane_b32 v{vST}, s97, 63')
    a(f'v_writelane_b32 v{vST}, s98, {idx}')


def stamp_flush(a, n):
    if not STAMPS:
        return
    a.wait_vm0()
    stamp(a, n)
    lab = a.newlabel('st')
    a(f's_cmp_lg_u32 s{sW}, 0')
    a(f's_cbranch_scc1 {lab}')
    a(f's_lshl_b32 s4, s{sWH}, 8')
    a(f's_add_u32 s4, s4, s{sID}')
    a('s_lshl_b32 s4, s4, 8')
    a(f's_add_u32 s4, s4, {STAMP_OFF}')
    a(f'v_lshl_add_u32 v8, v{vL}, 2, s4')
    a(f'buffer_store_dword v{vST}, v8, {S(sWS, 4)}, 0 offen')
    if 'dbg1' in EXP:
        srd(a, sAUX, P_DBG, 256)
        for wg, base, sel in ((136, 0, 'start,prep,go,B_0,Bend,pub,gok,G2_0,Gend,end'), (8, 10, 'start,x,prep,go,aend,G2_9')):
            l2 = a.newlabel('dbg')
            a(f's_lshl_b32 s4, s{sWH}, 8')
            a(f's_add_u32 s4, s4, s{sID}')
            a(f's_cmp_lg_u32 s4, {wg}')
            a(f's_cbranch_scc1 {l2}')
            for k, nm in enumerate(sel.split(',')):
                if nm not in STAMP_NAMES:
                    STAMP_NAMES.append(nm)
                a(f'v_readlane_b32 s4, v{vST}, {STAMP_NAMES.index(nm)}')
                a('v_mov_b32 v9, s4')
                a('v_mov_b32 v8, 0')
                a(f'buffer_store_dword v9, v8, {S(sAUX, 4)}, 0 offen offset:{4 * (base + k)}')
            a.label(l2)
    a.label(lab)


def reduce_g(a, r, t):
    a(f'v_mov_b32 v{t}, v{r}')
    a(f'v_permlane32_swap_b32 v{r}, v{t}')
    a(f'v_add_f32 v{r}, v{r}, v{t}')
    a(f'v_mov_b32 v{t}, v{r}')
    a(f'v_permlane16_swap_b32 v{r}, v{t}')
    a(f'v_add_f32 v{r}, v{r}, v{t}')


def dma160_voffs(a, dst, stride, permute, tmp):
    t0, t2, t3 = tmp, tmp + 1, tmp + 2
    for q in range(5):
        d = dst + q
        a(f'v_add_u32 v{t0}, {q * 64}, v{vL}')
        a(f'v_mul_u32_u24 v{t2}, 6554, v{t0}')
        a(f'v_lshrrev_b32 v{t2}, 16, v{t2}')
        a(f'v_mul_u32_u24 v{t3}, 10, v{t2}')
        a(f'v_sub_u32 v{t0}, v{t0}, v{t3}')
        if permute:
            a(f'v_bfe_u32 v{t3}, v{t2}, 2, 2')
            a(f'v_lshlrev_b32 v{t3}, 3, v{t3}')
            a(f'v_and_b32 v{d}, 3, v{t2}')
            a(f'v_add_u32 v{t3}, v{t3}, v{d}')
            a(f'v_lshrrev_b32 v{t2}, 4, v{t2}')
            a(f'v_lshl_add_u32 v{t2}, v{t2}, 2, v{t3}')
        a(f'v_mul_u32_u24 v{t2}, {stride}, v{t2}')
        a(f'v_lshl_add_u32 v{d}, v{t0}, 4, v{t2}')
        if 0 < q < 4:
            a(f'v_subrev_u32 v{d}, {q * 1024}, v{d}')


def dma160(a, vo, ssrd, soff, m0_s, m0_add, nt=''):
    a(f's_add_u32 m0, s{m0_s}, {m0_add}')
    for q in range(4):
        off = f' offset:{q * 1024}' if q else ''
        a(f'buffer_load_dwordx4 v{vo + q}, {S(ssrd, 4)}, s{soff} offen{off}{nt} lds')
    a(f's_add_u32 m0, s{m0_s}, {m0_add + 4096}')
    return a(f'buffer_load_dwordx4 v{vo + 4}, {S(ssrd, 4)}, s{soff} offen{nt} lds')


class Hooks:
    def __init__(self, items=()):
        self.items = list(items)

    def run(self, n=1):
        for _ in range(n):
            if self.items:
                self.items.pop(0)()

    def flush(self):
        self.run(len(self.items))


def softmax_pm(a, P, PH, EP, EN, tmp):
    p = [P[k // 4] + k % 4 for k in range(20)]
    ep = [EP[k // 4] + k % 4 for k in range(20)]
    en = [EN[k // 4] + k % 4 for k in range(20)]
    mx, mn, sp, sn = tmp, tmp + 2, tmp + 4, tmp + 6
    a(f'v_max3_f32 v{mx}, v{p[0]}, v{p[1]}, v{p[2]}')
    a(f'v_min3_f32 v{mn}, v{p[0]}, v{p[1]}, v{p[2]}')
    for k in range(3, 19, 2):
        a(f'v_max3_f32 v{mx}, v{mx}, v{p[k]}, v{p[k + 1]}')
        a(f'v_min3_f32 v{mn}, v{mn}, v{p[k]}, v{p[k + 1]}')
    a(f'v_max_f32 v{mx}, v{mx}, v{p[19]}')
    a(f'v_min_f32 v{mn}, v{mn}, v{p[19]}')
    a(f'v_mul_f32 v{mx}, s{sNL}, v{mx}')
    a(f'v_mul_f32 v{mn}, s{sL}, v{mn}')
    for k in range(0, 20, 2):
        a(f'v_pk_fma_f32 {V(ep[k], 2)}, {V(p[k], 2)}, {S(sL, 2)}, {V(mx, 2)} op_sel_hi:[1,0,0]')
        a(f'v_pk_fma_f32 {V(en[k], 2)}, {V(p[k], 2)}, {S(sNL, 2)}, {V(mn, 2)} op_sel_hi:[1,0,0]')
    for k in range(20):
        a(f'v_exp_f32 v{ep[k]}, v{ep[k]}')
        a(f'v_exp_f32 v{en[k]}, v{en[k]}')
    a(f'v_pk_add_f32 {V(sp, 2)}, {V(ep[0], 2)}, {V(ep[2], 2)}')
    a(f'v_pk_add_f32 {V(sn, 2)}, {V(en[0], 2)}, {V(en[2], 2)}')
    for k in range(4, 20, 2):
        a(f'v_pk_add_f32 {V(sp, 2)}, {V(sp, 2)}, {V(ep[k], 2)}')
        a(f'v_pk_add_f32 {V(sn, 2)}, {V(sn, 2)}, {V(en[k], 2)}')
    a(f'v_add_f32 v{sp}, v{sp}, v{sp + 1}')
    a(f'v_add_f32 v{sn}, v{sn}, v{sn + 1}')
    a(f'v_rcp_f32 v{sp}, v{sp}')
    a(f'v_rcp_f32 v{sn}, v{sn}')
    for k in range(0, 20, 2):
        a(f'v_pk_mul_f32 {V(ep[k], 2)}, {V(ep[k], 2)}, {V(sp, 2)} op_sel_hi:[1,0]')
        a(f'v_pk_mul_f32 {V(en[k], 2)}, {V(en[k], 2)}, {V(sn, 2)} op_sel_hi:[1,0]')
    allv = ep + en
    for k in range(20):
        a(f'v_cvt_pk_bf16_f32 v{PH[k // 4] + k % 4}, v{allv[2 * k]}, v{allv[2 * k + 1]}')


def flag_set(a, s_off):
    a(f'v_lshl_add_u32 v{vFS}, v{vL}, 2, s{s_off}')
    a(f'v_mov_b32 v{vFS + 1}, s{sTAG}')
    a(f's_mov_b64 exec, {hex((1 << (1 << (FSH - 2))) - 1)}')
    a(f'buffer_store_dword v{vFS + 1}, v{vFS}, {S(sWS, 4)}, 0 offen sc1')
    a('s_mov_b64 exec, -1')


def flag_issue(a, vaddr, vdst):
    return a(f'buffer_load_dword v{vdst}, v{vaddr}, {S(sWS, 4)}, 0 offen sc1')


def flag_check(a, tok, vaddr, vdst, sleep=2):
    ok = a.newlabel('ok')
    lp = a.newlabel('poll')
    a.wait(tok)
    a(f'v_cmp_ne_u32 vcc, s{sTAG}, v{vdst}')
    a(f's_cbranch_vccz {ok}')
    a(f's_mov_b32 s{sSPIN}, 0')
    a.label(lp)
    a(f's_sleep {sleep}')
    a.raw(f'\tbuffer_load_dword v{vdst}, v{vaddr}, {S(sWS, 4)}, 0 offen sc1')
    a('s_waitcnt vmcnt(0)')
    a(f'v_cmp_ne_u32 vcc, s{sTAG}, v{vdst}')
    a(f's_cbranch_vccz {ok}')
    a(f's_add_u32 s{sSPIN}, s{sSPIN}, 1')
    a(f's_cmp_lt_u32 s{sSPIN}, 0x8000')
    a(f's_cbranch_scc1 {lp}')
    a.label(ok)


def featmap(a, ACC5, PK, WPF, P5, EP5, EN5, tmp):
    for k in range(10):
        t, j = divmod(2 * k, 4)
        a(f'v_cvt_pk_bf16_f32 v{PK[k // 4] + k % 4}, v{ACC5[t] + j}, v{ACC5[t] + j + 1}')
    for ks in range(3):
        for t in range(5):
            d = V(P5[t], 4)
            if ks < 2:
                a(f'v_mfma_f32_16x16x32_bf16 {d}, {V(WPF(t, ks), 4)}, {V(PK[ks], 4)}, {"0" if ks == 0 else d}')
            else:
                a(f'v_mfma_f32_16x16x16_bf16 {d}, {V(WPF(t, ks), 2)}, {V(PK[ks], 2)}, {d}')
    softmax_pm(a, P5, P5, EP5, EN5, tmp)


def xcd_tile(a):
    a(f's_and_b32 s4, s{sID}, 7')
    a(f's_lshr_b32 s5, s{sID}, 3')
    if 'g2map8' in EXP:
        a(f's_and_b32 s{sHG}, s5, 7')
        a('s_lshl_b32 s6, s4, 2')
        a('s_lshr_b32 s7, s5, 3')
        a(f's_add_u32 s{sRB}, s6, s7')
    else:
        a('s_and_b32 s6, s4, 1')
        a('s_lshl_b32 s6, s6, 2')
        a('s_and_b32 s7, s5, 3')
        a(f's_add_u32 s{sHG}, s6, s7')
        a('s_lshr_b32 s6, s4, 1')
        a('s_lshl_b32 s6, s6, 3')
        a('s_lshr_b32 s7, s5, 2')
        a(f's_add_u32 s{sRB}, s6, s7')
    a(f's_lshl_b32 s4, s{sRB}, 6')
    a(f's_lshl_b32 s5, s{sW}, 4')
    a('s_add_u32 s4, s4, s5')
    a(f'v_add_u32 v{vTOK}, s4, v{vI}')


def ln_scales(a, vS, vRS, vNB):
    a(f'v_mul_f32 v{vS}, {fbits(1.0 / 640)}, v{vS}')
    a(f'v_mul_f32 v{vS + 2}, {fbits(1.0 / 640)}, v{vS + 2}')
    a(f'v_fma_f32 v{vS + 2}, -v{vS}, v{vS}, v{vS + 2}')
    a(f'v_max_f32 v{vS + 2}, 0, v{vS + 2}')
    a(f'v_add_f32 v{vS + 1}, {fbits(1e-5)}, v{vS + 2}')
    a(f'v_rsq_f32 v{vRS}, v{vS + 1}')
    a(f'v_mul_f32 v{vNB}, v{vS}, v{vRS}')
    a(f'v_sub_f32 v{vNB}, 0, v{vNB}')


vD, vF, vT, vT2, vFL, vFD, vOF, vXA, vBA = 8, 12, 14, 18, 22, 23, 28, 32, 33
ACC = lambda t, nt: 44 + (nt * 5 + t) * 4
TF = lambda j, nt: 124 + (j % 2) * 16 + 4 * nt
POOL = [156 + 4 * k for k in range(25)]


class GGemm:
    def __init__(self, a, kind):
        self.a, self.kind = a, kind
        if kind == 'B':
            self.stride, self.srdm, self.n, self.fr_off, self.fr_steps = F_ * 2, sW1, 16, HF_OFF, 64
            self.sdb, self.scb, self.ntot, self.P = sBDB, sBCB, 16, B_P
        else:
            self.stride, self.srdm, self.n, self.fr_off, self.fr_steps = S_ * 2, sW2, 14, GF_OFF, 74
            self.sdb, self.scb, self.ntot, self.P = sHG, sRB, 19, G2_P
        self.dtok, self.ftok, self.ttok = {}, {}, {}
        self.free = list(POOL)
        self.reg = {}
        self.pending = []
        order = [(j, 'a') for j in range(self.n)]
        if kind == 'G2':
            order += [(j, k) for j in range(14, 19) for k in 'ab']
        for j, k in order:
            self.pending += [(j, k, x) for x in range(5 if k == 'a' else 4)]
        self.gate = lambda: None
        self.gate2 = lambda: None
        self.nq = 2 if kind == 'B' else 4

    def setup(self):
        a, st = self.a, self.stride
        a(f'v_lshrrev_b32 v24, 3, v{vL}')
        if self.kind == 'B':
            a('v_lshrrev_b32 v25, 2, v24')
            a('v_and_b32 v24, 3, v24')
            a('v_lshl_add_u32 v24, v25, 3, v24')
        a(f'v_mul_u32_u24 v24, {st}, v24')
        a(f'v_and_b32 v25, 7, v{vL}')
        a(f'v_lshlrev_b32 v26, 1, v{vG}')
        a('v_xor_b32 v25, v25, v26')
        a('v_lshl_add_u32 v24, v25, 4, v24')
        a(f's_lshl_b32 s4, s{self.scb}, 7')
        a(f's_mul_i32 s5, s{sW}, {self.n * 32 * st}')
        a('s_add_u32 s5, s5, s4')
        if self.kind == 'B':
            a(f's_mul_i32 s6, s{sWH}, {4 * st}')
            a('s_add_u32 s5, s5, s6')
            a(f's_lshl_b32 s6, s{sWH}, 11')
            a(f's_add_u32 s{sM0B}, s{sGM0}, s6')
        else:
            a(f's_mov_b32 s{sM0B}, s{sGM0}')
        for q in range(self.nq):
            row = 8 * q if self.kind != 'B' else q * 16
            a(f's_add_u32 s6, s5, {row * st - 1024 * q}')
            a(f'v_add_u32 v{vD + q}, s6, v24')
        a(f's_mul_i32 s4, s{self.sdb}, {self.fr_steps}')
        a(f's_mul_i32 s5, s{sW}, {self.n}')
        a('s_add_u32 s4, s4, s5')
        a('s_mul_i32 s4, s4, 5120')
        a(f's_add_u32 s{sFS}, s4, {self.fr_off}')
        if self.kind == 'B':
            a(f's_lshl_b32 s4, s{sW}, {6 + FSH}')
            a(f's_add_u32 s4, s4, {FH_OFF}')
            a(f'v_lshl_add_u32 v{vFL}, v{vL}, {FSH}, s4')
        else:
            a(f's_lshl_b32 s4, s{self.sdb}, {7 + FSH}')
            a(f's_mul_i32 s5, s{sW}, {28 << FSH}')
            a('s_add_u32 s4, s4, s5')
            a(f's_add_u32 s4, s4, {FG_OFF}')
            a(f's_mul_i32 s5, s{self.sdb}, {74 * 5120}')
            a(f's_add_u32 s{sLIM}, s5, {GF_OFF + 53 * 5120}')
            a(f's_cmp_eq_u32 s{sW}, 3')
            a('s_cselect_b32 s5, 23, 27')
            a(f'v_min_u32 v24, s5, v{vL}')
            a(f'v_lshl_add_u32 v{vFL}, v24, {FSH}, s4')

    def dma_items(self, j):
        a = self.a

        def one(q):
            def f():
                if q == 0:
                    a(f's_add_u32 m0, s{sM0B}, {(j % self.P) * 16384}')
                off = f' offset:{q * 1024}' if q else ''
                nt = ' nt' if ('ntb' in EXP and self.kind == 'B' and j < self.P) else ''
                self.dtok[j] = a(f'buffer_load_dwordx4 v{vD + q}, {S(self.srdm, 4)}, 0 offen{off}{nt} lds')
                if not ('hotw' in EXP):
                    a(f'v_add_u32 v{vD + q}, {32 * self.stride}, v{vD + q}')
            return f
        return [one(q) for q in range(self.nq)]

    def frag_items(self, lim=99):
        a = self.a
        out = []
        while self.free and self.pending and len(out) < lim:
            key = self.pending.pop(0)
            r = self.free.pop(0)
            self.reg[key] = r

            def f(key=key, r=r):
                j, kind, x = key
                if key == (self.n, 'a', 0):
                    self.gate()
                if key == (self.n, 'b', 0):
                    self.gate2()
                if kind == 'a' and 'b_nof' in EXP and self.kind == 'B' and j >= 5 and x > 0:
                    pass
                elif kind == 'a':
                    vo, off = (vF, x * 1024) if x < 4 else (vF + 1, 0)
                    offs = f' offset:{off}' if off else ''
                    self.ftok[j] = a(f'buffer_load_dwordx4 {V(r, 4)}, v{vo}, {S(sWS, 4)}, s{sFS} offen{offs} sc1')
                    if x == 4 and 'hotf' not in EXP:
                        a(f's_add_u32 s{sFS}, s{sFS}, 5120')
                        if self.kind == 'G2' and j < 14:
                            a(f's_min_u32 s{sFS}, s{sFS}, s{sLIM}')
                else:
                    if j - self.n == 2:
                        a(f'v_lshlrev_b32 v24, 3, v{vL}')
                        a(f'v_sub_u32 v24, v{vOF + x}, v24')
                        a(f'buffer_load_dwordx2 {V(r, 2)}, v24, {S(sWS, 4)}, s11 offen sc1')
                        self.ftok[j] = a(f'buffer_load_dwordx2 {V(r + 2, 2)}, v24, {S(sWS, 4)}, s11 offen offset:512 sc1')
                    else:
                        self.ftok[j] = a(f'buffer_load_dwordx4 {V(r, 4)}, v{vOF + x}, {S(sWS, 4)}, s11 offen sc1')
                    if x == 3:
                        a('s_add_u32 s11, s11, 4096')
            out.append(f)
        return out

    def tr_items(self, j):
        a = self.a

        def one(nt):
            def f():
                off = (j % self.P) * 16384
                base = vT
                if off >= 65536:
                    if off % 65536 == 0:
                        a(f'v_add_u32 v{vT2 + nt}, {off}, v{vT + nt}')
                    off %= 65536
                    base = vT2
                if 'b_nods' in EXP and self.kind == 'B' and j > 1 and nt > 0:
                    return
                a(f'ds_read_b64_tr_b16 {V(TF(j, nt), 2)}, v{base + nt} offset:{off}')
                self.ttok[j] = a(f'ds_read_b64_tr_b16 {V(TF(j, nt) + 2, 2)}, v{base + nt} offset:{off + 2048}')
            return f
        return [one(nt) for nt in range(4)]

    def mainloop(self, extra):
        a, n = self.a, self.n
        a.wait(self.dtok[0])
        Hooks(self.tr_items(0)).flush()
        for j in range(self.ntot):
            items = []
            if j + 1 < n:
                a.wait(self.dtok[j + 1])
            a.wait(self.ftok[j], self.ttok.get(j))
            if self.kind == 'B' and 'b_nobar' not in EXP and j + 1 < n and (j + self.P < n or j + 1 >= int(os.environ.get('BPRE', '10'))):
                a('s_barrier')
            if j % 3 == 0:
                stamp(a, f'{self.kind}_{j}')
                if STAMPS and j in (3, 9):
                    a('s_memtime s[98:99]')
                    a.wait_lg0()
                    a(f'v_writelane_b32 v{vST}, s98, {56 + (j // 9) + (2 if self.kind == "G2" else 0)}')
            if j + 1 < n:
                items += self.tr_items(j + 1)
            if j + self.P < n:
                items += self.dma_items(j + self.P)
            items += extra(j)
            lim = int(os.environ.get('LIMB' if self.kind == 'B' else 'LIMG', '10'))
            items += self.frag_items(lim if (self.kind == 'B' or j < int(os.environ.get('LIMJ', '9'))) else 10)
            last = j == self.ntot - 1
            if self.kind == 'G2' and j == 16:
                a('s_barrier')
            if last:
                a(f's_mul_i32 s7, s{sWH}, 102400')
                for nt in range(1, 4):
                    a(f's_xor_b32 s4, s{sW}, {nt}')
                    a('s_mul_i32 s4, s4, 15360')
                    a(f's_add_u32 s4, s4, {(nt - 1) * 5120}')
                    a('s_add_u32 s4, s4, s7')
                    a(f'v_add_u32 v{24 + nt}, s4, v{vF}')
                wr = [(nt, t) for nt in (1, 2, 3) for t in range(5)]
            hk = Hooks(items)
            k = 0
            ILV = os.environ.get('ILVB', 'fine') if self.kind == 'B' else os.environ.get('ILVG', 'burst')
            for nt in (1, 2, 3, 0):
                for t in range(5):
                    acc = V(ACC(t, nt), 4)
                    c = '0' if (j == 0 and not ('cinit' in EXP and nt == 0)) else acc
                    fr = V(self.reg[(j, 'a', t)], 4)
                    tf = V(TF(j, nt) if j < n else self.reg[(j, 'b', nt)], 4)
                    if self.kind == 'B':
                        a(f'v_mfma_f32_16x16x32_bf16 {acc}, {tf}, {fr}, {c}')
                    else:
                        a(f'v_mfma_f32_16x16x32_bf16 {acc}, {fr}, {tf}, {c}')
                    k += 1
                    if last and k > 5:
                        wn, wt = wr.pop(0)
                        a(f'ds_write_b128 v{24 + wn}, {V(ACC(wt, wn), 4)} offset:{wt * 1024}')
                    if ILV == 'fine':
                        if k % 4 != 0:
                            hk.run()
                    elif ILV == 'burst':
                        if k <= 4 and j + 1 < n:
                            hk.run()
                    elif ILV == 'two':
                        if k <= 4 and j + 1 < n:
                            hk.run()
                        if k == 10:
                            hk.run(4)
                    elif ILV == 'pre':
                        if k == 1:
                            hk.flush()
            hk.flush()
            self.free += [r for key, r in self.reg.items() if key[0] == j]
            if n - 2 <= j < n:
                self.free += [TF(j, nt) for nt in range(4)]

    def reduce(self):
        a = self.a
        a(f's_mul_i32 s4, s{sW}, 15360')
        a('s_add_u32 s4, s4, s7')
        a(f'v_add_u32 v24, s4, v{vF}')
        a.wait_lg0()
        a('s_barrier')
        rtok = {}
        for nt in range(1, 4):
            for t in range(5):
                rtok[(nt, t)] = a(f'ds_read_b128 {V(ACC(t, nt), 4)}, v24 offset:{(nt - 1) * 5120 + t * 1024}')
        for nt in range(1, 4):
            for t in range(5):
                a.wait(rtok[(nt, t)])
                for h in range(2):
                    d = V(ACC(t, 0) + 2 * h, 2)
                    a(f'v_pk_add_f32 {d}, {d}, {V(ACC(t, nt) + 2 * h, 2)}')


def frag10_addr(a, m, hi_add, step, base_s, vrd, vrd_base, vst):
    a(f's_add_u32 s4, s{sW}, {4 * m}')
    a('s_min_u32 s5, s4, 9')
    a('s_cmp_ge_u32 s5, 5')
    a(f's_cselect_b32 s6, {hi_add}, 0')
    a(f's_mul_i32 s5, s5, {step}')
    a('s_add_u32 s5, s5, s6')
    a(f'v_add_u32 v{vrd}, s5, v{vrd_base}')
    a('s_lshl_b32 s5, s4, 10')
    a(f's_add_u32 s5, s5, s{base_s}')
    a('s_cmp_ge_u32 s4, 10')
    a(f's_cselect_b32 s5, {OOB}, s5')
    a(f'v_lshl_add_u32 v{vst}, v{vL}, 4, s5')


NTP = ' nt' if 'ntp' in EXP else ''
FIRST = int(os.environ.get('FIRST', '25'))
vTH = 40


def g_common(a):
    a(f'v_lshlrev_b32 v{vF}, 4, v{vL}')
    a(f'v_add_u32 v{vF + 1}, 4096, v{vF}')
    a(f's_lshl_b32 s{sGM0}, s{sW}, 12')
    a(f'v_bfe_u32 v25, v{vGR}, 1, 2')
    a(f'v_xor_b32 v25, s{sW}, v25')
    a(f'v_lshlrev_b32 v26, 7, v{vGR}')
    a(f'v_lshl_add_u32 v26, v{vC}, 3, v26')
    a(f'v_add_u32 v26, s{sGM0}, v26')
    for nt in range(4):
        a(f'v_xor_b32 v27, {nt}, v25')
        a(f'v_lshl_add_u32 v{vT + nt}, v27, 5, v26')


def tag_ready(a):
    a('s_waitcnt lgkmcnt(0)')
    a(f's_add_u32 s{sTAG}, s{sTAG}, 1')


def role_a(a):
    a(f's_and_b32 s4, s{sID}, 7')
    a(f's_lshr_b32 s5, s{sID}, 3')
    a('s_and_b32 s6, s4, 1')
    a('s_lshl_b32 s6, s6, 2')
    a('s_and_b32 s7, s5, 3')
    a(f's_add_u32 s{sHG}, s6, s7')
    a('s_lshr_b32 s6, s4, 1')
    a('s_lshl_b32 s6, s6, 2')
    a('s_lshr_b32 s7, s5, 2')
    a('s_add_u32 s6, s6, s7')
    a(f's_mov_b32 s{sRB}, s6')
    a('s_lshl_b32 s6, s6, 3')
    a(f's_add_u32 s15, s6, s{sHG}')
    a('s_lshl_b32 s12, s15, 1')
    a(f's_add_u32 s12, s12, s{sWH}')
    X = 156
    a('s_lshl_b32 s4, s12, 2')
    a(f's_add_u32 s4, s4, s{sW}')
    a('s_mul_i32 s4, s4, 2560')
    a(f'v_mul_u32_u24 v24, 40, v{vL}')
    xt = []
    if 'inx4' in EXP:
        a(f'buffer_load_dwordx4 {V(X, 4)}, v24, {S(sX, 4)}, s4 offen')
        a(f'buffer_load_dwordx4 {V(X + 4, 4)}, v24, {S(sX, 4)}, s4 offen offset:16')
        xt = [a(f'buffer_load_dwordx2 {V(X + 8, 2)}, v24, {S(sX, 4)}, s4 offen offset:32')] * 5
    else:
        for k in range(5):
            xt.append(a(f'buffer_load_dwordx2 {V(X + 2 * k, 2)}, v24, {S(sX, 4)}, s4 offen offset:{8 * k}{NTP}'))
    srd(a, sWQ, P_WQKV, D_ * 3 * D_ * 2)
    vLN = 8
    a(f'v_lshlrev_b32 v{vLN}, 4, v{vL}')
    a(f'v_add_u32 v{vLN + 1}, 4096, v{vLN}')
    a(f's_mul_i32 s{sM0B}, s{sW8}, 5120')
    a('s_lshl_b32 s10, s15, 2')
    a(f's_add_u32 s10, s10, s{sW}')
    a('s_mul_i32 s4, s10, 1093')
    a('s_lshr_b32 s4, s4, 16')
    a('s_mul_i32 s5, s4, 60')
    a('s_sub_u32 s5, s10, s5')
    a('s_lshr_b32 s6, s5, 1')
    a('s_and_b32 s7, s5, 1')
    a('s_add_u32 s7, s7, 1')
    a('s_sub_u32 s8, s5, 40')
    a('s_cmp_ge_u32 s5, 40')
    a('s_cselect_b32 s6, s8, s6')
    a('s_cselect_b32 s7, 0, s7')
    a(f's_mul_i32 s6, s6, {32 * 3840}')
    a('s_mul_i32 s7, s7, 1280')
    a('s_mul_i32 s4, s4, 160')
    a('s_add_u32 s6, s6, s7')
    a('s_add_u32 s6, s6, s4')
    a(f's_cmp_eq_u32 s{sWH}, 0')
    a('s_cselect_b32 s10, 480, s10')
    dma160_voffs(a, 12, 3840, True, 18)
    a('s_cmp_ge_u32 s10, 480')
    a(f's_cselect_b32 s7, {OOB}, 0')
    for q in range(5):
        a(f'v_add_u32 v{12 + q}, s7, v{12 + q}')
    utok = dma160(a, 12, sWQ, 6, sM0B, 0, NTP)
    a(f's_mul_i32 s13, s{sWH}, 24576')
    a('s_add_u32 s13, s13, 65536')
    a('s_add_u32 s14, s13, 12288')
    srd(a, sAUX, P_WPHI, 32 * 800)
    a(f's_mul_i32 s6, s{sHG}, 3200')
    a(f's_lshl_b32 s7, s{sW}, 10')
    a('s_add_u32 s6, s6, s7')
    a(f'v_lshl_add_u32 v10, v{vL}, 4, s6')
    a(f's_add_u32 m0, s7, {L_WPHI}')
    a(f'buffer_load_dwordx4 v10, {S(sAUX, 4)}, 0 offen lds')
    for k in range(4):
        a(f'v_mov_b32 v{44 + k}, 0')
    a(f'v_lshlrev_b32 v18, 4, v{vTH}')
    a(f'v_add_u32 v18, {L_ZERO}, v18')
    a('ds_write_b128 v18, v[44:47]')
    a(f'v_mov_b32 v10, {L_CNT}')
    a('v_mov_b32 v11, 0')
    a('ds_write2_b32 v10, v11, v11 offset0:0 offset1:1')
    vONE, vS, vRS, vNB = 34, 36, 168, 170
    a(f'v_mov_b32 v{vONE}, 0x3f803f80')
    for k in range(4):
        a(f'v_mov_b32 v{vS + k}, 0')
    a('s_waitcnt lgkmcnt(0)')
    a(f's_add_u32 s{sTAG}, s{sTAG}, 1')
    def unit_part():
        a(f'v_mul_u32_u24 v29, 160, v{vGR}')
        a(f'v_mul_u32_u24 v24, 40, v{vC}')
        a('v_add_u32 v29, v29, v24')
        a(f'v_add_u32 v29, s{sM0B}, v29')
        a('s_mul_i32 s4, s10, 5120')
        a(f's_add_u32 s4, s4, {WF_OFF}')
        a('s_cmp_ge_u32 s10, 480')
        a(f's_cselect_b32 s4, {OOB}, s4')
        a(f'v_add_u32 v24, s4, v{vLN}')
        a(f'v_add_u32 v25, s4, v{vLN + 1}')
        a(f's_lshl_b32 s5, s10, {FSH}')
        a(f's_add_u32 s5, s5, {FU_OFF}')
        a('s_cmp_ge_u32 s10, 480')
        a(f's_cselect_b32 s10, {OOB}, s5')
        a.wait(utok)
        ut = []
        for t in range(5):
            a(f'ds_read_b64_tr_b16 {V(UP(t), 2)}, v29 offset:{8 * t}')
            ut.append(a(f'ds_read_b64_tr_b16 {V(UP(t) + 2, 2)}, v29 offset:{8 * t + 2560}'))
        for t in range(5):
            a.wait(ut[t])
            vo, off = (24, t * 1024) if t < 4 else (25, 0)
            a(f'buffer_store_dwordx4 {V(UP(t), 4)}, v{vo}, {S(sWS, 4)}, 0 offen offset:{off} sc1')

    if 'unitfirst' in EXP:
        unit_part()
    a.wait(xt[4])
    stamp(a, 'x')
    for k in range(10):
        a(f'v_dot2c_f32_bf16 v{vS + (k & 1)}, v{X + k}, v{vONE}')
        a(f'v_dot2c_f32_bf16 v{vS + 2 + (k & 1)}, v{X + k}, v{X + k}')
    a(f'v_add_f32 v{vS}, v{vS}, v{vS + 1}')
    a(f'v_add_f32 v{vS + 2}, v{vS + 2}, v{vS + 3}')
    for sh in (8, 4, 2, 1):
        for r in (vS, vS + 2):
            a(f'v_add_f32_dpp v{r}, v{r}, v{r} row_ror:{sh} row_mask:0xf bank_mask:0xf')
    for r in (vS, vS + 2):
        a(f'v_mov_b32 v{r + 1}, v{r}')
        a(f'v_permlane16_swap_b32 v{r}, v{r + 1}')
        a(f'v_add_f32 v{r}, v{r}, v{r + 1}')
    ln_scales(a, vS, vRS, vNB)
    a(f'v_mul_f32 v{vS + 1}, v{vRS}, v{vRS}')
    a(f'v_mov_b32 v{vS + 3}, {fbits(1e-5)}')
    a(f'v_fmac_f32 v{vS + 3}, v{vS + 1}, v{vS + 2}')
    a(f'v_rsq_f32 v{vS + 2}, v{vS + 3}')
    U = 172
    for k in range(10):
        a(f'v_lshlrev_b32 v{U + 2 * k}, 16, v{X + k}')
        a(f'v_and_b32 v{U + 2 * k + 1}, 0xffff0000, v{X + k}')
    for k in range(10):
        a(f'v_pk_fma_f32 {V(U + 2 * k, 2)}, {V(U + 2 * k, 2)}, {V(vRS, 2)}, {V(vNB, 2)} op_sel_hi:[1,0,0]')
    XQ = 192
    for k in range(10):
        a(f'v_cvt_pk_bf16_f32 v{XQ + k}, v{U + 2 * k}, v{U + 2 * k + 1}')
    for k in range(10):
        a(f'v_pk_mul_f32 {V(U + 2 * k, 2)}, {V(U + 2 * k, 2)}, {V(vS + 2, 2)} op_sel_hi:[1,0]')
    for k in range(10):
        a(f'v_cvt_pk_bf16_f32 v{X + k}, v{U + 2 * k}, v{U + 2 * k + 1}')
    a(f's_mul_i32 s4, s{sW}, {2 * 1296}')
    a('s_add_u32 s4, s4, s13')
    a(f'v_mul_u32_u24 v24, 40, v{vL}')
    a(f'v_lshrrev_b32 v25, 5, v{vL}')
    a('v_lshl_add_u32 v24, v25, 4, v24')
    a('v_add_u32 v24, s4, v24')
    for k in range(5):
        a(f'ds_write_b64 v24, {V(XQ + 2 * k, 2)} offset:{8 * k}')
    a(f'v_and_b32 v25, 7, v{vTH}')
    a(f'v_lshrrev_b32 v26, 3, v{vTH}')
    a('v_mul_u32_u24 v28, 1296, v25')
    a('v_lshl_add_u32 v28, v26, 4, v28')
    a('v_add_u32 v28, s13, v28')
    a('v_lshlrev_b32 v29, 8, v26')
    a('v_lshl_add_u32 v29, v25, 4, v29')
    a(f's_lshr_b32 s4, s12, 1')
    a('s_mul_i32 s4, s4, 20480')
    a(f's_and_b32 s5, s12, 1')
    a('s_lshl_b32 s5, s5, 7')
    a('s_add_u32 s4, s4, s5')
    a(f's_add_u32 s4, s4, {XF_OFF}')
    a('v_add_u32 v29, s4, v29')
    a('v_add_u32 v30, 8192, v29')
    a(f's_cmp_ge_u32 s{sW}, 2')
    a(f's_cselect_b32 s4, {OOB}, 16384')
    a('v_add_u32 v31, s4, v29')
    a(f's_mul_i32 s4, s{sW}, 2560')
    a('s_add_u32 s4, s4, s14')
    a(f'v_mul_u32_u24 v24, 40, v{vL}')
    a('v_add_u32 v24, s4, v24')
    for k in range(5):
        a(f'ds_write_b64 v24, {V(X + 2 * k, 2)} offset:{8 * k}')
    a(f'v_mul_u32_u24 v24, 1280, v{vR}')
    a(f'v_mul_u32_u24 v25, 160, v{vG}')
    a('v_add_u32 v24, v24, v25')
    a(f'v_mul_u32_u24 v25, 40, v{vC}')
    a('v_add_u32 v24, v24, v25')
    a('v_add_u32 v24, s14, v24')
    a(f'v_mul_u32_u24 v25, {64 * 5120}, v{vG}')
    a(f'v_lshl_add_u32 v25, v{vI}, 4, v25')
    a(f's_lshr_b32 s4, s12, 2')
    a('s_mul_i32 s4, s4, 5120')
    a(f's_and_b32 s5, s12, 3')
    a('s_lshl_b32 s5, s5, 8')
    a('s_add_u32 s4, s4, s5')
    a(f's_add_u32 s8, s4, {HF_OFF}')
    a.wait_lg0()
    a('s_barrier')
    ht = []
    for m in range(3):
        ht.append(a(f'ds_read_b128 {V(XQ + 4 * m, 4)}, v28 offset:{512 * m}'))
    for m in range(3):
        a.wait(ht[m])
        a(f'buffer_store_dwordx4 {V(XQ + 4 * m, 4)}, v{29 + m}, {S(sWS, 4)}, 0 offen sc1')
    ht = []
    for m in range(3):
        a(f's_add_u32 s4, s{sW}, {4 * m}')
        a('s_min_u32 s5, s4, 9')
        a('s_cmp_ge_u32 s5, 5')
        a(f's_cselect_b32 s6, {640 - 40}, 0')
        a(f's_cselect_b32 s7, {4 * 64 * 5120 - 5120}, 0')
        a('s_lshl_b32 s5, s5, 3')
        a('s_add_u32 s5, s5, s6')
        a('v_add_u32 v26, s5, v24')
        a(f'ds_read_b64_tr_b16 {V(U + 4 * m, 2)}, v26')
        ht.append(a(f'ds_read_b64_tr_b16 {V(U + 4 * m + 2, 2)}, v26 offset:{4 * 1280}'))
        a('s_lshl_b32 s5, s4, 10')
        a('s_add_u32 s5, s5, s7')
        a('s_add_u32 s5, s5, s8')
        a('s_cmp_ge_u32 s4, 10')
        a(f's_cselect_b32 s5, {OOB}, s5')
        a(f'v_add_u32 v{34 + m}, s5, v25')
    for m in range(3):
        a.wait(ht[m])
        a(f'buffer_store_dwordx4 {V(U + 4 * m, 4)}, v{34 + m}, {S(sWS, 4)}, 0 offen sc1')
    hst = ('vm', a.vm_issued - 1)
    if 'unitfirst' not in EXP:
        unit_part()
    a(f's_lshl_b32 s4, s{sWH}, 2')
    a(f's_add_u32 s4, s4, {L_CNT}')
    a('v_mov_b32 v10, s4')
    a('v_mov_b32 v11, 1')
    a.wait(hst)
    a('s_mov_b64 exec, 1')
    a('ds_add_rtn_u32 v11, v10, v11')
    a('s_mov_b64 exec, -1')
    a.wait_lg0()
    a('v_readfirstlane_b32 s5, v11')
    a(f's_lshl_b32 s4, s12, {FSH}')
    a(f's_add_u32 s4, s4, {FH_OFF}')
    a('s_cmp_lg_u32 s5, 3')
    a('s_cbranch_scc1 L_nofh')
    flag_set(a, 4)
    a.label('L_nofh')
    a.wait_vm0()
    flag_set(a, 10)
    stamp(a, 'prep')
    a(f's_mov_b32 s{sL}, {fbits(LOG2E)}')
    a(f's_mov_b32 s{sL + 1}, {fbits(LOG2E)}')
    a(f's_mov_b32 s{sNL}, {fbits(-LOG2E)}')
    a(f's_mov_b32 s{sNL + 1}, {fbits(-LOG2E)}')
    a(f's_mul_i32 s10, s{sHG}, 60')
    a(f's_lshl_b32 s4, s10, {FSH}')
    a(f's_add_u32 s4, s4, {FU_OFF}')
    if 'fewpoll' in EXP:
        a(f'v_min_u32 v20, 14, v{vI}')
        a(f'v_lshl_add_u32 v20, v20, 2, s{sW}')
        a(f'v_lshl_add_u32 v20, v20, {FSH}, s4')
    else:
        a(f'v_lshl_add_u32 v20, v{vL}, {FSH}, s4')
    a(f's_lshl_b32 s11, s{sRB}, 2')
    a(f's_add_u32 s11, s11, s{sW}')
    a(f's_lshl_b32 s4, s11, {FSH + 2}')
    a(f's_add_u32 s4, s4, {FH_OFF}')
    a(f'v_lshl_add_u32 v21, v{vC}, {FSH}, s4')
    if 'fewpoll' in EXP:
        a(f's_cmp_lg_u32 s{sWH}, 0')
        a('s_cselect_b64 vcc, -1, 0')
    else:
        a(f'v_cmp_gt_u32 vcc, 60, v{vL}')
    a('v_cndmask_b32 v20, v21, v20, vcc')
    a(f's_add_u32 s10, s10, s{sW}')
    a('s_mul_i32 s10, s10, 5120')
    a(f's_add_u32 s10, s10, {WF_OFF}')
    a(f's_add_u32 s9, s10, {40 * 5120}')
    a(f's_mul_i32 s{sM0B}, s{sW}, 5120')
    a('s_mul_i32 s11, s11, 40960')
    a(f's_add_u32 s11, s11, {XF_OFF}')
    a(f'v_add_u32 v10, 20480, v{vLN}')
    a(f'v_add_u32 v26, {L_RING}, v{vLN}')
    a(f'v_add_u32 v27, 61440, v{vLN}')

    def wphi_frags(WPF, wbase, zbase):
        a(f'v_mul_u32_u24 v22, 800, v{vG}')
        a(f'v_mul_u32_u24 v23, 40, v{vR}')
        a('v_add_u32 v22, v22, v23')
        a(f'v_add_u32 v22, {wbase}, v22')
        a(f'v_mov_b32 v23, {zbase}')
        a(f'v_cmp_eq_u32 vcc, v{vG}, v{vC}')
        a('v_cndmask_b32 v22, v23, v22, vcc')
        for t in range(5):
            for d4 in range(5):
                a(f'ds_read_b64_tr_b16 {V(WPF(t, d4 // 2) + 2 * (d4 % 2), 2)}, v22 offset:{4 * d4 * 40 + 8 * t}')

    Q = lambda k: 48 + 4 * k
    WPF = lambda t, ks: Q(2 * t + ks) if ks < 2 else Q(10 + t // 2) + 2 * (t % 2)
    a('s_barrier')
    wphi_frags(WPF, L_WPHI, L_ZERO)
    a.wait_lg0()
    a('s_barrier')
    flag_check(a, flag_issue(a, 20, 21), 20, 21)
    stamp(a, 'go')

    def xload(dst, ks, z):
        off = f' offset:{(ks % 4) * 1024}' if ks % 4 else ''
        t = a(f'buffer_load_dwordx4 {V(dst, 4)}, v{vLN if z == 0 else 10}, {S(sWS, 4)}, s11 offen{off} sc1')
        if ks % 4 == 3 and z == 1:
            a('s_add_u32 s11, s11, 4096')
        return t

    a(f's_cmp_lg_u32 s{sWH}, 0')
    a('s_cbranch_scc1 L_a_upper')
    at_split = a.save()
    a('s_setprio 2')
    AC = lambda k, z: Q(13 + 2 * k + z)
    XR = lambda ks, z: Q(33 + (ks % 6) * 2 + z)
    FW = lambda n: Q(45 + n % 7)
    xtok = {}
    for ks in range(5):
        for z in range(2):
            xtok[ks] = xload(XR(ks, z), ks, z)
    a('s_barrier')
    stamp(a, 'a0')
    WIN, NF = 6, 200
    ftok = {}

    def read_frag(n):
        d, r = divmod(n, 20)
        ftok[n] = a(f'ds_read_b128 {V(FW(n), 4)}, v26 offset:{(d % 3) * 20480 + r * 1024}')

    for n in range(WIN):
        read_frag(n)
    for n in range(NF):
        nn = n + WIN
        if nn < NF:
            if nn % 20 == 0:
                a.wait_lg0()
                a('s_barrier')
                if (nn // 20) % 3 == 0:
                    stamp(a, f'a{nn // 20}')
            read_frag(nn)
        ks, k = divmod(n, 10)
        a.wait(ftok[n], xtok[ks])
        for z in range(2):
            c = '0' if ks == 0 else V(AC(k, z), 4)
            a(f'v_mfma_f32_16x16x32_bf16 {V(AC(k, z), 4)}, {V(FW(n), 4)}, {V(XR(ks, z), 4)}, {c}')
        if k in (2, 6) and ks + 5 < 20:
            xtok[ks + 5] = xload(XR(ks + 5, k // 4), ks + 5, k // 4)
    a('s_barrier')
    stamp(a, 'aend')
    vSA, vKA, vKO = 8, 9, 12
    a(f's_lshl_b32 s4, s{sW}, 5')
    a(f'v_lshl_add_u32 v{vSA}, v{vG}, 7, v{vI}')
    a(f'v_add_u32 v{vSA}, s4, v{vSA}')
    a(f'v_mul_u32_u24 v{vSA}, 120, v{vSA}')
    a(f'v_add_u32 v{vSA}, {L_RING}, v{vSA}')
    for z in range(2):
        for t in range(5):
            r = AC(5 + t, z)
            a(f'v_cvt_pk_bf16_f32 v{r}, v{r}, v{r + 1}')
            a(f'v_cvt_pk_bf16_f32 v{r + 1}, v{r + 2}, v{r + 3}')
            a(f'ds_write_b64 v{vSA}, {V(r, 2)} offset:{z * 16 * 120 + 80 + 8 * t}')
    PK = [Q(33), Q(34), Q(35)]
    EN5 = [Q(36 + c) for c in range(5)]
    for z in range(2):
        E5 = [AC(t, z) for t in range(5)]
        P5 = [Q(41 + 5 * z + c) for c in range(5)]
        featmap(a, E5, PK, WPF, P5, E5, EN5, 32)
        for c in range(10):
            a(f'ds_write_b64 v{vSA}, {V(P5[c // 2] + 2 * (c % 2), 2)} offset:{z * 16 * 120 + 8 * c}')
    stamp(a, 'fm')
    a(f's_mul_i32 s4, s{sW}, {128 * 120}')
    a(f's_add_u32 s4, s4, {L_RING}')
    a(f'v_mul_u32_u24 v{vKA}, 120, v{vGR}')
    a(f'v_lshl_add_u32 v{vKA}, v{vC}, 3, v{vKA}')
    a(f'v_add_u32 v{vKA}, s4, v{vKA}')
    a(f's_lshl_b32 s4, s{sHG}, 2')
    a(f's_add_u32 s4, s4, s{sW}')
    a('s_lshl_b32 s4, s4, 4')
    a(f's_add_u32 s13, s4, s{sRB}')
    a('s_mul_i32 s4, s13, 6144')
    a(f's_add_u32 s4, s4, {KV_OFF}')
    a(f'v_lshl_add_u32 v{vKO}, v{vL}, 4, s4')
    a('s_movk_i32 s12, 0x1000')
    a(f'v_mov_b32 v11, {OOB}')
    a(f'v_cmp_gt_u32 vcc, 8, v{vI}')
    a(f'v_cndmask_b32 v{vKO + 1}, v11, v{vKO}, vcc')
    a(f'v_cmp_gt_u32 vcc, 2, v{vG}')
    a(f'v_cndmask_b32 v{vKO + 2}, v11, v{vKO}, vcc')
    a(f'v_cndmask_b32 v{vKO + 3}, v11, v{vKO + 1}, vcc')
    a(f's_lshl_b32 s13, s13, {FSH}')
    a(f's_add_u32 s10, s13, {FK_OFF}')
    a('v_mov_b32 v11, 0x3f803f80')
    a(f'v_cmp_eq_u32 vcc, 1, v{vR}')
    a.wait_lg0()
    a('s_barrier')
    ktok = {}
    OPQ = lambda kk, x: Q(13 + kk * 5 + x)
    KVA = [Q(k) for k in range(6)]

    def kv_read(kk):
        for x in range(5):
            col = 32 * x if x < 3 else 80 + 32 * (x - 3)
            a(f'ds_read_b64_tr_b16 {V(OPQ(kk, x), 2)}, v{vKA} offset:{kk * 32 * 120 + col}')
            ktok[kk] = a(f'ds_read_b64_tr_b16 {V(OPQ(kk, x) + 2, 2)}, v{vKA} offset:{kk * 32 * 120 + 16 * 120 + col}')

    kv_read(0)
    for kk in range(4):
        if kk + 1 < 4:
            kv_read(kk + 1)
        a.wait(ktok[kk])
        for j in range(4):
            a(f'v_cndmask_b32 v{OPQ(kk, 4) + j}, v{OPQ(kk, 4) + j}, v11, vcc')
        for et in range(2):
            for ft in range(3):
                d = V(KVA[ft * 2 + et], 4)
                a(f'v_mfma_f32_16x16x32_bf16 {d}, {V(OPQ(kk, 3 + et), 4)}, {V(OPQ(kk, ft), 4)}, {"0" if kk == 0 else d}')
    for ft in range(3):
        for et in range(2):
            vo = vKO + (1 if ft == 2 else 0) + (2 if et == 1 else 0)
            so = 's12' if ft == 2 else '0'
            a(f'buffer_store_dwordx4 {V(KVA[ft * 2 + et], 4)}, v{vo}, {S(sWS, 4)}, {so} offen offset:{(ft % 2) * 2048 + et * 1024} sc1')
    a.wait_vm0()
    flag_set(a, 10)
    a(f's_mov_b32 s10, {OOB}')
    if 'pfa' in EXP:
        a(f's_lshr_b32 s4, s{sID}, 3')
        a('s_lshl_b32 s4, s4, 2')
        a(f's_add_u32 s4, s4, s{sW}')
        a(f's_mul_i32 s5, s4, {27 * 4096}')
        a(f's_and_b32 s7, s{sID}, 7')
        a('s_lshl_b32 s7, s7, 9')
        a('s_add_u32 s5, s5, s7')
        a(f'v_lshrrev_b32 v24, 2, v{vL}')
        a('v_min_u32 v24, 13, v24')
        a('v_lshlrev_b32 v24, 12, v24')
        a(f'v_lshl_add_u32 v24, v{vC}, 7, v24')
        a('v_add_u32 v24, s5, v24')
        a(f'buffer_load_dword v37, v24, {S(sW2, 4)}, 0 offen')
        a(f'v_add_u32 v24, {13 * 4096}, v24')
        a(f'buffer_load_dword v37, v24, {S(sW2, 4)}, 0 offen')
    a('s_barrier')
    a('s_branch L_join')

    a.label('L_a_upper')
    a.restore(at_split)
    wtok = {}

    def dma5(so, lds):
        a(f's_add_u32 m0, s{sM0B}, {lds}')
        for q in range(4):
            off = f' offset:{q * 1024}' if q else ''
            a(f'buffer_load_dwordx4 v{vLN}, {S(sWS, 4)}, s{so} offen{off} sc1 lds')
        a(f's_add_u32 m0, s{sM0B}, {lds + 4096}')
        t = a(f'buffer_load_dwordx4 v{vLN + 1}, {S(sWS, 4)}, s{so} offen sc1 lds')
        a(f's_add_u32 s{so}, s{so}, 20480')
        return t

    NXR = 12
    XQ_ = lambda ks, z: Q(13 + (ks % NXR) * 2 + z)
    AQ = lambda t, z: Q(37 + 2 * t + z)
    FQ = lambda n: Q(47 + n % 5)
    xtok = {}
    for d in range(3):
        wtok[d] = dma5(10, L_RING + d * 20480)
    for d in range(10):
        a.wait(wtok[d])
        a('s_barrier')
        if 1 <= d and d + 2 < 10:
            wtok[d + 2] = dma5(10, L_RING + ((d + 2) % 3) * 20480)
        if d < 5:
            qtok = dma5(9, L_WQ + d * 20480)
        if 4 <= d < 10:
            for ks in (2 * (d - 4), 2 * (d - 4) + 1):
                for z in range(2):
                    xtok[ks] = xload(XQ_(ks, z), ks, z)
    a.wait(qtok)
    a('s_barrier')
    ftok = {}

    def read_q(n):
        off = n * 1024
        ftok[n] = a(f'ds_read_b128 {V(FQ(n), 4)}, v{vLN if off < 61440 else 27} offset:{off % 61440}')

    QBAR = int(os.environ.get('QBAR', '-1'))
    if QBAR < 0:
        a('s_barrier')
    for n in range(4):
        read_q(n)
    for n in range(100):
        if n + 4 < 100:
            read_q(n + 4)
        ks, t = divmod(n, 5)
        a.wait(ftok[n], xtok[ks])
        for z in range(2):
            c = '0' if ks == 0 else V(AQ(t, z), 4)
            a(f'v_mfma_f32_16x16x32_bf16 {V(AQ(t, z), 4)}, {V(FQ(n), 4)}, {V(XQ_(ks, z), 4)}, {c}')
        if t in (1, 3) and ks >= 1 and ks - 1 + NXR < 20:
            xtok[ks - 1 + NXR] = xload(XQ_(ks - 1 + NXR, t // 2), ks - 1 + NXR, t // 2)
        if n == QBAR:
            a('s_barrier')
    a('s_barrier')
    stamp(a, 'aend')
    PK = [Q(13), Q(14), Q(15)]
    EN5 = [Q(16 + c) for c in range(5)]
    PP = [[Q(21 + 5 * z + c) for c in range(5)] for z in range(2)]
    for z in range(2):
        E5 = [AQ(t, z) for t in range(5)]
        featmap(a, E5, PK, WPF, PP[z], E5, EN5, 32)
    stamp(a, 'fm')
    a('s_setprio 3')
    a(f's_mul_i32 s6, s{sW}, 10240')
    a(f's_add_u32 s6, s6, {L_RING}')
    a(f'v_lshlrev_b32 v31, 11, v{vG}')
    a(f'v_lshl_add_u32 v31, v{vR}, 3, v31')
    a('v_mov_b32 v21, 8192')
    a(f'v_cmp_eq_u32 vcc, v{vG}, v{vC}')
    a('v_cndmask_b32 v31, v21, v31, vcc')
    a('v_add_u32 v31, s6, v31')
    for k in range(4):
        a(f'v_mov_b32 v{44 + k}, 0')
    a(f'v_add_u32 v21, s6, v{vLN}')
    a('ds_write_b128 v21, v[44:47] offset:8192')
    a('ds_write_b128 v21, v[44:47] offset:9216')
    a(f's_lshl_b32 s4, s{sHG}, {4 + FSH}')
    a(f's_add_u32 s4, s4, {FR_OFF}')
    a(f'v_lshl_add_u32 v20, v{vI}, {FSH}, s4')
    a(f'v_lshlrev_b32 v8, 4, v{vL}')
    a('v_add_u32 v9, 4096, v8')
    a(f'v_lshlrev_b32 v10, 3, v{vL}')
    a(f's_lshl_b32 s5, s{sHG}, 13')
    a(f's_add_u32 s5, s5, {KB_OFF}')
    a(f's_lshl_b32 s7, s{sRB}, 1')
    a(f's_lshr_b32 s8, s{sW}, 1')
    a('s_add_u32 s7, s7, s8')
    a(f's_and_b32 s8, s{sW}, 1')
    a('s_lshl_b32 s8, s8, 1')
    a(f's_lshr_b32 s12, s{sHG}, 1')
    a('s_mul_i32 s12, s12, 5')
    a('s_mul_i32 s13, s7, 20')
    a('s_add_u32 s12, s12, s13')
    a('s_lshl_b32 s12, s12, 2')
    a('s_add_u32 s12, s12, s8')
    a('s_lshl_b32 s12, s12, 10')
    a(f's_add_u32 s12, s12, {OF_OFF}')
    a(f's_and_b32 s13, s{sHG}, 1')
    a(f's_mul_i32 s14, s13, {3 * 4096}')
    a('s_add_u32 s14, s14, s12')
    a('s_lshl_b32 s13, s13, 9')
    a('s_add_u32 s12, s12, s13')
    a(f's_add_u32 s12, s12, {2 * 4096}')
    a('s_lshl_b32 s13, s7, 3')
    a(f's_add_u32 s13, s13, s{sHG}')
    a('s_lshl_b32 s13, s13, 2')
    a('s_add_u32 s13, s13, s8')
    a(f's_lshl_b32 s13, s13, {FSH}')
    a(f's_add_u32 s13, s13, {FO_OFF}')
    flag_check(a, flag_issue(a, 20, 21), 20, 21, int(os.environ.get('RSLEEP', '8')))
    stamp(a, 'rok')
    for hh in range(2):
        a(f's_add_u32 m0, s6, {4096 * hh}')
        for q in range(4):
            off = f' offset:{q * 1024}' if q else ''
            a(f'buffer_load_dwordx4 v{8 + hh}, {S(sWS, 4)}, s5 offen{off} sc1 lds')
    a.wait_all()
    OA = [[Q(31 + k) for k in range(6)], [Q(37 + k) for k in range(6)]]
    KF = lambda ks, t: Q((ks % 2) * 6 + t)
    otok = {}

    def o_read(ks):
        for t in range(6):
            a(f'ds_read_b64_tr_b16 {V(KF(ks, t), 2)}, v31 offset:{kb_pos(8 * ks, t)}')
            otok[ks] = a(f'ds_read_b64_tr_b16 {V(KF(ks, t) + 2, 2)}, v31 offset:{kb_pos(8 * ks + 4, t)}')

    o_read(0)
    for ks in range(5):
        if ks + 1 < 5:
            o_read(ks + 1)
        a.wait(otok[ks])
        for z in range(2):
            for t in range(6):
                d = V(OA[z][t], 4)
                a(f'v_mfma_f32_16x16x32_bf16 {d}, {V(KF(ks, t), 4)}, {V(PP[z][ks], 4)}, {"0" if ks == 0 else d}')
    for z in range(2):
        O = OA[z]
        PO = PK if z == 0 else [Q(16), Q(17), Q(18)]
        a(f'v_add_f32 v{O[5]}, {fbits(1e-6)}, v{O[5]}')
        a(f'v_rcp_f32 v{O[5]}, v{O[5]}')
        for t in range(5):
            for h in range(2):
                a(f'v_pk_mul_f32 {V(O[t] + 2 * h, 2)}, {V(O[t] + 2 * h, 2)}, {V(O[5], 2)} op_sel_hi:[1,0]')
        for k in range(10):
            t, j = divmod(2 * k, 4)
            a(f'v_cvt_pk_bf16_f32 v{PO[k // 4] + k % 4}, v{O[t] + j}, v{O[t] + j + 1}')
        off = f' offset:{1024 * z}' if z else ''
        a(f'buffer_store_dwordx4 {V(PO[0], 4)}, v8, {S(sWS, 4)}, s14 offen{off} sc1')
        a(f'buffer_store_dwordx4 {V(PO[1], 4)}, v9, {S(sWS, 4)}, s14 offen{off} sc1')
        a(f'buffer_store_dwordx2 {V(PO[2], 2)}, v10, {S(sWS, 4)}, s12 offen{off} sc1')
    a.wait_vm0()
    flag_set(a, 13)
    a(f's_cmp_lg_u32 s{sID}, 0')
    a('s_cbranch_scc1 L_a_done')
    a(f's_cmp_lg_u32 s{sW}, 3')
    a('s_cbranch_scc1 L_a_done')
    a(f'v_and_b32 v20, 31, v{vL}')
    a('v_min_u32 v20, 26, v20')
    a(f'v_and_b32 v21, 32, v{vL}')
    a('v_add_u32 v20, v20, v21')
    a(f'v_lshlrev_b32 v20, {FSH + 2}, v20')
    for k in range(4):
        a(f'v_add_u32 v22, {FG_OFF + (k * 256 << FSH)}, v20')
        flag_check(a, flag_issue(a, 22, 21), 22, 21, 12)
    a(f'v_lshlrev_b32 v20, {FSH}, v{vL}')
    for base in (FR_OFF, FR_OFF + (64 << FSH)):
        a(f'v_add_u32 v22, {base}, v20')
        flag_check(a, flag_issue(a, 22, 21), 22, 21, 12)
    a(f'v_and_b32 v20, 31, v{vL}')
    a(f'v_lshlrev_b32 v20, {FSH}, v20')
    a(f'v_add_u32 v22, {FW_OFF}, v20')
    flag_check(a, flag_issue(a, 22, 21), 22, 21, 12)
    a(f's_mov_b32 s10, {EP_OFF}')
    flag_set(a, 10)
    a.label('L_a_done')
    stamp_flush(a, 'end')
    a('s_endpgm')


def role_b(a):
    if 'map4' in EXP:
        a(f's_lshr_b32 s{sBCB}, s6, 2')
        a('s_and_b32 s9, s6, 3')
        a('s_lshl_b32 s6, s9, 1')
    else:
        a('s_cmp_ge_u32 s6, 54')
        a('s_cselect_b32 s7, 54, 0')
        a('s_cselect_b32 s8, 4, 0')
        a('s_sub_u32 s6, s6, s7')
        a(f's_lshr_b32 s{sBCB}, s6, 1')
        a('s_and_b32 s9, s6, 1')
        a('s_lshl_b32 s6, s9, 1')
        a('s_add_u32 s6, s6, s8')
    PR = 24 if 'map4' in EXP else 48
    a(f's_add_u32 s{sBDB}, s6, s{sWH}')
    srd(a, sW1, P_W1, S_ * F_ * 2)
    g_common(a)
    gB = GGemm(a, 'B')
    gB.setup()
    BPRE = int(os.environ.get('BPRE', '10'))
    if 'g1lin' in EXP:
        a(f's_lshl_b32 s4, s{sBCB}, 2')
        a('s_add_u32 s4, s4, s9')
        a('s_lshl_b32 s4, s4, 3')
        a(f's_add_u32 s4, s4, s{sW8}')
        a('s_lshl_b32 s4, s4, 13')
        a(f'v_lshl_add_u32 v24, v{vL}, 7, s4')
        a(f'buffer_load_dword v37, v24, {S(sW1, 4)}, 0 offen')
        if 'g1wait' in EXP:
            a.wait_vm0()
    if 'g1first' in EXP:
        a('s_lshl_b32 s4, s9, 1')
        a(f's_add_u32 s4, s4, s{sWH}')
        a(f's_lshl_b32 s5, s{sW}, 9')
        a('s_add_u32 s4, s4, s5')
        a(f's_mul_i32 s4, s4, {F_ * 2}')
        a(f's_lshl_b32 s5, s{sBCB}, 7')
        a('s_add_u32 s4, s4, s5')
        a(f'v_mul_u32_u24 v24, {8 * F_ * 2}, v{vL}')
        a('v_add_u32 v24, s4, v24')
        a(f'buffer_load_dword v37, v24, {S(sW1, 4)}, 0 offen')
    for j in range(BPRE):
        Hooks(gB.dma_items(j)).flush()

    def b_extra(j):
        return []

    a('s_lshl_b32 s4, s9, 1')
    a(f's_add_u32 s4, s4, s{sWH}')
    a(f's_mul_i32 s4, s4, {PR}')
    a(f's_lshl_b32 s5, s{sW}, 9')
    a('s_add_u32 s4, s4, s5')
    a(f's_add_u32 s4, s4, {32 * B_P}')
    a(f's_mul_i32 s4, s4, {F_ * 2}')
    a(f's_lshl_b32 s5, s{sBCB}, 7')
    a('s_add_u32 s4, s4, s5')
    a(f'v_min_u32 v24, {PR - 1}, v{vL}')
    a(f'v_mul_u32_u24 v24, {F_ * 2}, v24')
    a('v_add_u32 v24, s4, v24')
    if 'g1first' not in EXP and 'nog1' not in EXP:
        a(f'buffer_load_dword v37, v24, {S(sW1, 4)}, 0 offen')
    srd(a, sAUX, P_B1, F_ * 2)
    a(f's_lshl_b32 s4, s{sBCB}, 7')
    a(f's_lshl_b32 s5, s{sW}, 5')
    a('s_add_u32 s4, s4, s5')
    a(f'v_lshl_add_u32 v24, v{vG}, 3, s4')
    a(f'buffer_load_dwordx2 v[38:39], v24, {S(sAUX, 4)}, 0 offen')
    tag_ready(a)
    a('s_barrier')
    stamp(a, 'prep')
    a(f's_cmp_lg_u32 s{sWH}, 0')
    a('s_cbranch_scc1 L_b_go')
    flag_check(a, flag_issue(a, vFL, vFD), vFL, vFD, 3)
    a.label('L_b_go')
    a.wait_vm0()
    a('s_barrier')
    stamp(a, 'go')
    Hooks(gB.frag_items(int(os.environ.get('FIRSTB', '25')))).flush()
    for j in range(BPRE, B_P):
        Hooks(gB.dma_items(j)).flush()

    if 'cinit' in EXP:
        for t in range(5):
            a(f'v_lshlrev_b32 v{ACC(t, 0)}, 16, v38')
            a(f'v_and_b32 v{ACC(t, 0) + 1}, 0xffff0000, v38')
            a(f'v_lshlrev_b32 v{ACC(t, 0) + 2}, 16, v39')
            a(f'v_and_b32 v{ACC(t, 0) + 3}, 0xffff0000, v39')
    gB.mainloop(b_extra)
    stamp(a, 'Bend')
    gB.reduce()
    R = lambda t, j: ACC(t, 0) + j
    T = lambda t, j: ACC(t, 1) + j
    a('v_lshlrev_b32 v34, 16, v38')
    a('v_and_b32 v35, 0xffff0000, v38')
    a('v_lshlrev_b32 v36, 16, v39')
    a('v_and_b32 v37, 0xffff0000, v39')
    c0 = 0.7978845608028654
    k1 = -2.0 * c0 * LOG2E
    k2 = k1 * 0.044715
    a(f's_mov_b32 s4, {fbits(k2)}')
    a(f's_mov_b32 s5, {fbits(k2)}')
    a(f'v_mov_b32 v24, {fbits(k1)}')
    a('v_mov_b32 v26, 1.0')
    th = [(t, h) for t in range(5) for h in range(2)]
    tj = [(t, j) for t in range(5) for j in range(4)]
    for t, h in ([] if 'cinit' in EXP else th):
        a(f'v_pk_add_f32 {V(R(t, 2 * h), 2)}, {V(R(t, 2 * h), 2)}, {V(34 + 2 * h, 2)}')
    for t, h in th:
        a(f'v_pk_mul_f32 {V(T(t, 2 * h), 2)}, {V(R(t, 2 * h), 2)}, {V(R(t, 2 * h), 2)}')
    for t, h in th:
        a(f'v_pk_fma_f32 {V(T(t, 2 * h), 2)}, {V(T(t, 2 * h), 2)}, s[4:5], v[24:25] op_sel_hi:[1,0,0]')
    for t, h in th:
        a(f'v_pk_mul_f32 {V(T(t, 2 * h), 2)}, {V(T(t, 2 * h), 2)}, {V(R(t, 2 * h), 2)}')
    for t, j in tj:
        a(f'v_exp_f32 v{T(t, j)}, v{T(t, j)}')
    for t, h in th:
        a(f'v_pk_add_f32 {V(T(t, 2 * h), 2)}, {V(T(t, 2 * h), 2)}, v[26:27] op_sel_hi:[1,0]')
    for t, j in tj:
        a(f'v_rcp_f32 v{T(t, j)}, v{T(t, j)}')
    for t, h in th:
        a(f'v_pk_mul_f32 {V(T(t, 2 * h), 2)}, {V(T(t, 2 * h), 2)}, {V(R(t, 2 * h), 2)}')
    a(f's_mul_i32 s4, s{sW8}, 2560')
    a('s_add_u32 s4, s4, 81920')
    a(f'v_lshl_add_u32 v24, v{vL}, 3, s4')
    for t in range(5):
        a(f'v_cvt_pk_bf16_f32 v{R(t, 0)}, v{T(t, 0)}, v{T(t, 1)}')
        a(f'v_cvt_pk_bf16_f32 v{R(t, 1)}, v{T(t, 2)}, v{T(t, 3)}')
        a(f'ds_write_b64 v24, {V(R(t, 0), 2)} offset:{t * 512}')
    a(f's_mul_i32 s4, s{sBDB}, 74')
    a(f's_lshl_b32 s5, s{sBCB}, 1')
    a('s_add_u32 s4, s4, s5')
    a('s_mul_i32 s4, s4, 5120')
    a(f's_add_u32 s15, s4, {GF_OFF}')
    a(f's_mul_i32 s4, s{sWH}, 10240')
    a('s_add_u32 s4, s4, 81920')
    a(f'v_lshl_add_u32 v25, v{vL}, 3, s4')
    a.wait_lg0()
    a('s_barrier')
    gt = []
    for m in range(3):
        frag10_addr(a, m, 2 * 2560 - 5 * 512, 512, 15, 24, 25, 34 + m)
        a(f'ds_read_b64 {V(ACC(m, 2), 2)}, v24')
        gt.append(a(f'ds_read_b64 {V(ACC(m, 2) + 2, 2)}, v24 offset:2560'))
    for m in range(3):
        a.wait(gt[m])
        a(f'buffer_store_dwordx4 {V(ACC(m, 2), 4)}, v{34 + m}, {S(sWS, 4)}, 0 offen sc1')
    a(f's_lshl_b32 s4, s{sBDB}, 5')
    a(f's_add_u32 s4, s4, s{sBCB}')
    a('s_lshl_b32 s4, s4, 2')
    a(f's_add_u32 s4, s4, s{sW}')
    a(f's_lshl_b32 s4, s4, {FSH}')
    a(f's_add_u32 s10, s4, {FG_OFF}')
    a('s_branch L_join')


def role_r(a):
    a('s_lshl_b32 s11, s6, 1')
    a(f's_add_u32 s11, s11, s{sWH}')
    a('s_lshr_b32 s8, s6, 3')
    a('s_lshl_b32 s8, s8, 3')
    a(f's_add_u32 s8, s8, s{sW8}')
    a('s_getpc_b64 s[6:7]')
    a.raw('L_pc:')
    a(f's_sub_u32 s{sAUX}, s6, L_pc - L_start')
    a('s_subb_u32 s7, s7, 0')
    a(f's_and_b32 s{sAUX + 1}, s7, 0xffff')
    a(f's_mov_b32 s{sAUX + 2}, L_end - L_start')
    a(f's_mov_b32 s{sAUX + 3}, 0x20000')
    a('s_lshl_b32 s6, s8, 13')
    a(f'v_lshl_add_u32 v25, v{vL}, 7, s6')
    if 'nocpf' not in EXP:
        a(f'buffer_load_dword v37, v25, {S(sAUX, 4)}, 0 offen')
    if 'notlb' not in EXP:
        a(f's_lshl_b32 s5, s8, 6')
        a(f'v_add_u32 v26, s5, v{vL}')
        a(f'v_mul_u32_u24 v27, {(WS_USED // 1024 + 127) // 128 * 128}, v26')
        a(f'buffer_load_dword v37, v27, {S(sWS, 4)}, 0 offen sc1')
        a('v_lshlrev_b32 v27, 13, v26')
        a(f'buffer_load_dword v37, v27, {S(sW2, 4)}, 0 offen')
        srd(a, sOUT, P_OUT, S_ * D_ * 2)
        a('v_lshlrev_b32 v27, 12, v26')
        a(f'buffer_load_dword v37, v27, {S(sOUT, 4)}, 0 offen sc1')
        srd(a, sAUX, P_B2, S_ * 2)
        a(f'buffer_load_dword v37, v27, {S(sAUX, 4)}, 0 offen')
    if 'wqlin' in EXP:
        srd(a, sWQ, P_WQKV, D_ * 3 * D_ * 2)
        a(f's_sub_u32 s5, s{sID}, 240')
        a('s_lshl_b32 s5, s5, 3')
        a(f's_add_u32 s5, s5, s{sW8}')
        a('s_mul_i32 s5, s5, 24576')
        a(f'v_lshl_add_u32 v26, v{vL}, 7, s5')
        for k in range(3):
            a(f'buffer_load_dword v37, v26, {S(sWQ, 4)}, 0 offen')
            a('v_add_u32 v26, 8192, v26')
    if 'w2lin' in EXP:
        a(f's_sub_u32 s5, s{sID}, 240')
        a('s_lshl_b32 s5, s5, 3')
        a(f's_add_u32 s5, s5, s{sW8}')
        a('s_lshl_b32 s5, s5, 13')
        a(f'v_lshl_add_u32 v38, v{vL}, 7, s5')
    if 'g2map8' in EXP:
        a(f's_mul_i32 s5, s8, {108 * 4096}')
        a(f's_and_b32 s7, s{sID}, 7')
        a('s_lshl_b32 s7, s7, 9')
        a('s_add_u32 s5, s5, s7')
        a(f'v_lshrrev_b32 v24, 2, v{vL}')
        a('v_lshlrev_b32 v24, 12, v24')
        a(f'v_lshl_add_u32 v24, v{vC}, 7, v24')
        a('v_add_u32 v24, s5, v24')
    else:
        a('s_mul_i32 s5, s8, 54')
        a(f's_and_b32 s7, s{sID}, 1')
        a('s_mul_i32 s7, s7, 864')
        a('s_add_u32 s5, s5, s7')
        a('s_lshl_b32 s5, s5, 12')
        a(f's_and_b32 s7, s{sID}, 6')
        a('s_lshl_b32 s7, s7, 9')
        a('s_add_u32 s5, s5, s7')
        a(f'v_lshrrev_b32 v24, 3, v{vL}')
        a(f'v_and_b32 v25, 7, v{vL}')
        a('v_lshlrev_b32 v24, 12, v24')
        a('v_lshl_add_u32 v24, v25, 7, v24')
        a('v_add_u32 v24, s5, v24')
    tag_ready(a)
    a(f'v_mov_b32 v{vFL}, {FH_OFF}')
    if 'pf2now' not in EXP:
        flag_check(a, flag_issue(a, vFL, vFD), vFL, vFD, 16)
    PFA = int(os.environ.get('PFA', '0'))
    a('v_mov_b32 v36, v38' if 'w2lin' in EXP else 'v_mov_b32 v36, v24')
    for k in range(PFA):
        a(f'buffer_load_dword v37, v36, {S(sW2, 4)}, 0 offen')
        a(f'v_add_u32 v36, {(16 if "g2map8" in EXP else 8) * 4096}, v36')
        if k % 2 == 1 and 'pf2fast' not in EXP:
            a.wait_vm0()
    stamp(a, 'prep')
    a('s_setprio 3')
    a(f's_lshl_b32 s4, s11, {4 + FSH}')
    a(f's_add_u32 s4, s4, {FK_OFF}')
    a(f'v_lshl_add_u32 v{vFL}, v{vI}, {FSH}, s4')
    a(f's_lshl_b32 s5, s{sW}, 11')
    a(f'v_lshl_add_u32 v24, v{vL}, 4, s5')
    a(f'v_lshrrev_b32 v25, 5, v{vL}')
    a(f'v_and_b32 v26, 31, v{vL}')
    a('v_lshlrev_b32 v26, 4, v26')
    a('v_lshl_add_u32 v25, v25, 11, v26')
    a('v_add_u32 v25, 1024, v25')
    a(f's_cmp_eq_u32 s{sW}, 2')
    a('s_cselect_b64 vcc, -1, 0')
    a('v_cndmask_b32 v24, v24, v25, vcc')
    a(f'v_lshrrev_b32 v25, 3, v{vL}')
    a(f'v_and_b32 v26, 7, v{vL}')
    a('v_lshlrev_b32 v26, 4, v26')
    a('v_lshl_add_u32 v25, v25, 8, v26')
    a('v_add_u32 v25, 4096, v25')
    a(f's_cmp_eq_u32 s{sW}, 3')
    a('s_cselect_b64 vcc, -1, 0')
    a('v_cndmask_b32 v24, v24, v25, vcc')
    a(f's_mul_i32 s4, s11, {16 * 6144}')
    a(f's_add_u32 s4, s4, {KV_OFF}')
    flag_check(a, flag_issue(a, vFL, vFD), vFL, vFD, int(os.environ.get('KSLEEP', '4')))
    stamp(a, 'hok')
    stok = []
    for rb in range(16):
        stok.append(a(f'buffer_load_dwordx4 {V(128 + 4 * rb, 4)}, v24, {S(sWS, 4)}, s4 offen sc1'))
        a('s_add_u32 s4, s4, 6144')
    for rb in range(1, 16):
        a.wait(stok[rb])
        for h in range(2):
            a(f'v_pk_add_f32 {V(128 + 2 * h, 2)}, {V(128 + 2 * h, 2)}, {V(128 + 4 * rb + 2 * h, 2)}')
    stamp(a, 'rsum')
    a('v_cvt_pk_bf16_f32 v34, v128, v129')
    a('v_cvt_pk_bf16_f32 v35, v130, v131')
    a('s_lshl_b32 s4, s11, 11')
    a(f's_add_u32 s4, s4, {KB_OFF}')
    a(f'v_lshl_add_u32 v24, v{vTH}, 3, s4')
    a(f'buffer_store_dwordx2 v[34:35], v24, {S(sWS, 4)}, 0 offen sc1')
    a('s_lshl_b32 s4, s11, 2')
    a(f's_add_u32 s4, s4, s{sW}')
    a(f's_lshl_b32 s4, s4, {FSH}')
    a(f's_add_u32 s10, s4, {FR_OFF}')
    a.wait_vm0()
    flag_set(a, 10)
    a(f's_mov_b32 s10, {OOB}')
    stamp(a, 'rpub')
    a('s_barrier')
    for k in range(PFA, 0 if 'nopf2' in EXP else 7):
        a(f'buffer_load_dword v37, v36, {S(sW2, 4)}, 0 offen')
        a(f'v_add_u32 v36, {8 * 4096}, v36')
    a('s_branch L_join')


def role_wot(a):
    a('s_lshl_b32 s11, s6, 1')
    a(f's_add_u32 s11, s11, s{sWH}')
    srd(a, sAUX, P_WO, D_ * D_ * 2)
    a(f'v_lshlrev_b32 v{vF}, 4, v{vL}')
    a(f'v_add_u32 v{vF + 1}, 4096, v{vF}')
    tag_ready(a)
    if 'wotlate' in EXP:
        a(f'v_mov_b32 v{vFL}, {FH_OFF}')
        flag_check(a, flag_issue(a, vFL, vFD), vFL, vFD, 16)
    dma160_voffs(a, 34, 1280, False, 24)
    a('s_mul_i32 s4, s11, 160')
    a(f's_mul_i32 s5, s{sW}, {160 * 1280}')
    a('s_add_u32 s7, s4, s5')
    a(f's_mul_i32 s6, s{sW8}, 20480')
    a(f'v_mul_u32_u24 v24, 20, v{vG}')
    a(f'v_add_u32 v24, v24, v{vR}')
    a('v_mul_u32_u24 v24, 160, v24')
    a(f'v_mul_u32_u24 v25, 40, v{vC}')
    a('v_add_u32 v24, v24, v25')
    a('v_add_u32 v24, s6, v24')
    a('s_mul_i32 s4, s11, 74')
    a(f's_mul_i32 s5, s{sW}, 5')
    a('s_add_u32 s4, s4, s5')
    a('s_add_u32 s4, s4, 54')
    a('s_mul_i32 s4, s4, 5120')
    a(f's_add_u32 s4, s4, {GF_OFF}')
    rounds = [[(0, 0, 0), (0, 1, 4), (1, 0, 8), (1, 1, 12), (2, 0, 16)],
              [(2, 1, 16), (3, 0, 0), (3, 1, 4), (4, 0, 8), (4, 1, 12)]]
    for rd in range(2):
        for k in range(3):
            a(f's_add_u32 s8, s7, {(rd * 80 + k * 32) * 1280}')
            dma160(a, 34, sAUX, 8, 6, k * 5120)
        a.wait_vm0()
        for u, hf, row in rounds[rd]:
            for t in range(5):
                a(f'ds_read_b64_tr_b16 {V(156 + (u * 5 + t) * 4 + 2 * hf, 2)}, v24 offset:{row * 160 + 8 * t}')
            a.wait_lg0()
    for u in range(5):
        for t in range(5):
            vo, off = (vF, t * 1024) if t < 4 else (vF + 1, 0)
            a(f'buffer_store_dwordx4 {V(156 + (u * 5 + t) * 4, 4)}, v{vo}, {S(sWS, 4)}, s4 offen offset:{off} sc1')
        a('s_add_u32 s4, s4, 5120')
    a('s_lshl_b32 s4, s11, 2')
    a(f's_add_u32 s4, s4, s{sW}')
    a(f's_lshl_b32 s4, s4, {FSH}')
    a(f's_add_u32 s10, s4, {FW_OFF}')
    a('s_barrier')


def final_gemm(a):
    g2 = GGemm(a, 'G2')
    if 'early_setup' in EXP:
        xcd_tile(a)
        g_common(a)
        g2.setup()
    a.wait_all()
    flag_set(a, 10)
    stamp(a, 'pub')
    a('s_setprio 0')
    a(f's_cmp_lg_u32 s{sWH}, 0')
    a('s_cbranch_scc1 L_fin')
    if 'early_setup' not in EXP:
        xcd_tile(a)
        g_common(a)
        g2.setup()
    if 'cinit' in EXP:
        srd(a, sAUX, P_B2, S_ * 2)
        a(f'v_mul_u32_u24 v{vXA}, 1280, v{vTOK}')
        a(f'v_mul_u32_u24 v{vBA}, 40, v{vG}')
        a(f's_mul_i32 s4, s{sHG}, 160')
        a(f'v_add3_u32 v{vXA}, v{vXA}, v{vBA}, s4')
        a(f'v_lshlrev_b32 v{vBA}, 1, v{vTOK}')
        XI = ACC(0, 1)
        a(f'buffer_load_ushort v36, v{vBA}, {S(sAUX, 4)}, 0 offen')
        a(f'buffer_load_dwordx4 {V(XI, 4)}, v{vXA}, {S(sX, 4)}, 0 offen')
        a(f'buffer_load_dwordx4 {V(XI + 4, 4)}, v{vXA}, {S(sX, 4)}, 0 offen offset:16')
        xin = a(f'buffer_load_dwordx2 {V(XI + 8, 2)}, v{vXA}, {S(sX, 4)}, 0 offen offset:32')
    for j in range(G2_P):
        Hooks(g2.dma_items(j)).flush()
    srd(a, sOUT, P_OUT, S_ * D_ * 2)
    R = lambda t, j: ACC(t, 0) + j
    T = lambda t, j: ACC(t, 1) + j
    srd(a, sAUX, P_B2, S_ * 2)
    a(f's_lshl_b32 s4, s{sRB}, {5 + FSH}')
    a(f's_lshl_b32 s5, s{sW}, {3 + FSH}')
    a('s_add_u32 s4, s4, s5')
    a(f's_add_u32 s4, s4, {FO_OFF}')
    a(f'v_lshl_add_u32 v34, v{vC}, {FSH + 1}, s4')
    a(f's_lshl_b32 s4, s{sHG}, 2')
    a(f's_add_u32 s4, s4, s{sW}')
    a(f's_lshl_b32 s4, s4, {FSH}')
    a(f's_add_u32 s4, s4, {FW_OFF}')
    a('v_mov_b32 v35, s4')
    a(f'v_cmp_gt_u32 vcc, 63, v{vL}')
    a(f'v_cndmask_b32 v{vFL}, v35, v{vFL}, vcc')
    for nt in range(4):
        a(f's_xor_b32 s4, s{sW}, {nt}')
        a('s_lshl_b32 s4, s4, 10')
        a(f'v_add_u32 v{vOF + nt}, s4, v{vF}')
    a(f's_mul_i32 s4, s{sRB}, 20')
    a(f's_mul_i32 s5, s{sW}, 5')
    a('s_add_u32 s4, s4, s5')
    a('s_lshl_b32 s4, s4, 12')
    a(f's_add_u32 s11, s4, {OF_OFF}')
    a(f'v_mul_u32_u24 v{vXA}, 1280, v{vTOK}')
    a(f'v_mul_u32_u24 v{vBA}, 40, v{vG}')
    a(f'v_add_u32 v{vXA}, v{vXA}, v{vBA}')
    a(f's_mul_i32 s4, s{sHG}, 160')
    a(f'v_add_u32 v{vXA}, s4, v{vXA}')
    a(f'v_lshlrev_b32 v{vBA}, 1, v{vTOK}')
    if 'outlds' in EXP:
        a(f's_lshl_b32 s5, s{sRB}, 2')
        a(f's_add_u32 s5, s5, s{sW}')
        a(f's_mul_i32 s5, s5, {16 * 1280}')
        a('s_add_u32 s4, s4, s5')
        for m in range(3):
            a(f'v_add_u32 v24, {64 * m}, v{vL}')
            a('v_mul_u32_u24 v25, 6554, v24')
            a('v_lshrrev_b32 v25, 16, v25')
            a(f'v_mul_u32_u24 v25, {1280 - 160}, v25')
            a('v_lshl_add_u32 v25, v24, 4, v25')
            a(f'v_add_u32 v{37 + m}, s4, v25')
        a(f'v_mov_b32 v24, {OOB}')
        a(f'v_cmp_gt_u32 vcc, 32, v{vL}')
        a('v_cndmask_b32 v39, v24, v39, vcc')
    flag_check(a, flag_issue(a, vFL, vFD), vFL, vFD, int(os.environ.get('GSLEEP', '2')))
    stamp(a, 'gok')
    fl = {}

    def gate():
        a(f's_mul_i32 s4, s{sHG}, 74')
        a(f's_mul_i32 s5, s{sW}, 5')
        a('s_add_u32 s4, s4, s5')
        a('s_add_u32 s4, s4, 54')
        a('s_mul_i32 s4, s4, 5120')
        a(f's_add_u32 s{sFS}, s4, {GF_OFF}')

    def gate2():
        stamp(a, 'oa')
        flag_check(a, fl['o'], 34, 35)
        stamp(a, 'ob')

    g2.gate = gate
    g2.gate2 = gate2
    XR = [8, 10, 14, 16, 18]

    def g2_extra(j):
        it = []
        if j == 9:
            def fo():
                fl['o'] = flag_issue(a, 34, 35)
            it.append(fo)
        if j == int(os.environ.get('JRES', '12')) and 'cinit' not in EXP:
            def resid():
                a(f'buffer_load_ushort v36, v{vBA}, {S(sAUX, 4)}, 0 offen')
                if 'inx4' in EXP:
                    a(f'buffer_load_dwordx4 v[8:11], v{vXA}, {S(sX, 4)}, 0 offen')
                    a(f'buffer_load_dwordx4 v[14:17], v{vXA}, {S(sX, 4)}, 0 offen offset:16')
                    fl['x'] = a(f'buffer_load_dwordx2 v[18:19], v{vXA}, {S(sX, 4)}, 0 offen offset:32')
                    return
                for t in range(5):
                    fl['x'] = a(f'buffer_load_dwordx2 {V(XR[t], 2)}, v{vXA}, {S(sX, 4)}, 0 offen offset:{8 * t}')
            it.append(resid)
        return it

    Hooks(g2.frag_items(int(os.environ.get('FIRSTG', '25')))).flush()
    if 'cinit' in EXP:
        a.wait(xin)
        a('v_lshlrev_b32 v36, 16, v36')
        for k in range(10):
            r = ACC(0, 0) + 2 * k
            a(f'v_lshlrev_b32 v{r}, 16, v{XI + k}')
            a(f'v_and_b32 v{r + 1}, 0xffff0000, v{XI + k}')
            a(f'v_pk_add_f32 {V(r, 2)}, {V(r, 2)}, v[36:37] op_sel_hi:[1,0]')
    g2.mainloop(g2_extra)
    stamp(a, 'Gend')
    g2.reduce()
    if 'cinit' not in EXP:
        a.wait(fl['x'])
        a('v_lshlrev_b32 v36, 16, v36')
    if 'outlds' in EXP:
        a(f's_mul_i32 s4, s{sW}, 3072')
        a('s_add_u32 s4, s4, 61440')
        a(f'v_mul_u32_u24 v24, 160, v{vI}')
        a(f'v_mul_u32_u24 v25, 40, v{vG}')
        a('v_add3_u32 v24, v24, v25, s4')
        a(f'v_add_u32 v25, s4, v{vF}')
    for t in range(5):
        for h in range(0 if 'cinit' in EXP else 2):
            a(f'v_lshlrev_b32 v{T(t, 2 * h)}, 16, v{XR[t] + h}')
            a(f'v_and_b32 v{T(t, 2 * h + 1)}, 0xffff0000, v{XR[t] + h}')
            a(f'v_pk_add_f32 {V(R(t, 2 * h), 2)}, {V(R(t, 2 * h), 2)}, v[36:37] op_sel_hi:[1,0]')
            a(f'v_pk_add_f32 {V(R(t, 2 * h), 2)}, {V(R(t, 2 * h), 2)}, {V(T(t, 2 * h), 2)}')
        OF_ = os.environ.get('OUTF', '')
        if 'outlds' in EXP:
            a(f'v_cvt_pk_bf16_f32 v{R(t, 0)}, v{R(t, 0)}, v{R(t, 1)}')
            a(f'v_cvt_pk_bf16_f32 v{R(t, 1)}, v{R(t, 2)}, v{R(t, 3)}')
            a(f'ds_write_b64 v24, {V(R(t, 0), 2)} offset:{8 * t}')
            if t == 4:
                rt = [a(f'ds_read_b128 {V(ACC(m, 2), 4)}, v25 offset:{1024 * m}') for m in range(3)]
                for m in range(3):
                    a.wait(rt[m])
                    a(f'buffer_store_dwordx4 {V(ACC(m, 2), 4)}, v{37 + m}, {S(sOUT, 4)}, 0 offen{OF_}')
            continue
        if 'outx4' in EXP:
            d = ACC(0, 2) + 2 * t
            a(f'v_cvt_pk_bf16_f32 v{d}, v{R(t, 0)}, v{R(t, 1)}')
            a(f'v_cvt_pk_bf16_f32 v{d + 1}, v{R(t, 2)}, v{R(t, 3)}')
            if t in (1, 3):
                a(f'buffer_store_dwordx4 {V(d - 2, 4)}, v{vXA}, {S(sOUT, 4)}, 0 offen offset:{8 * (t - 1)}{OF_}')
            if t == 4:
                a(f'buffer_store_dwordx2 {V(d, 2)}, v{vXA}, {S(sOUT, 4)}, 0 offen offset:32{OF_}')
            continue
        a(f'v_cvt_pk_bf16_f32 v{R(t, 0)}, v{R(t, 0)}, v{R(t, 1)}')
        a(f'v_cvt_pk_bf16_f32 v{R(t, 1)}, v{R(t, 2)}, v{R(t, 3)}')
        a(f'buffer_store_dwordx2 {V(R(t, 0), 2)}, v{vXA}, {S(sOUT, 4)}, 0 offen offset:{8 * t}{OF_}')
    a.label('L_fin')
    stamp_flush(a, 'end')


def build():
    a = Asm()
    hdr = open(os.path.join(os.path.dirname(__file__), '..', 'cdna_kernels', NAME + '.s.ref')).read().split('\n')
    for line in hdr:
        if line.startswith(';') and '@launch' not in line:
            a.raw(line)
    a.raw(f'; @launch grid=(256,1,1) block=(512,1,1) lds={LDS_BYTES}')
    a.raw('.amdgcn_target "amdgcn-amd-amdhsa--gfx950"')
    a.raw('.text')
    K = NAME + '_kernel'
    a.raw(f'.globl {K}')
    a.raw('.p2align 8')
    a.raw(f'.type {K},@function')
    a.raw(f'{K}:')
    a.raw('L_start:')
    a('s_cmp_ge_u32 s2, 256')
    a('s_cbranch_scc1 L_end')
    a('s_load_dwordx16 s[16:31], s[0:1], 0')
    a('s_load_dwordx8 s[32:39], s[0:1], 64')
    a(f'v_and_b32 v{vL}, 63, v0')
    a('v_lshrrev_b32 v6, 6, v0')
    a(f'v_readfirstlane_b32 s{sW8}, v6')
    a(f'v_lshrrev_b32 v{vG}, 4, v{vL}')
    a(f'v_and_b32 v{vI}, 15, v{vL}')
    a(f'v_lshrrev_b32 v{vR}, 2, v{vI}')
    a(f'v_and_b32 v{vC}, 3, v{vL}')
    a(f'v_lshl_add_u32 v{vGR}, v{vG}, 2, v{vR}')
    a(f'v_and_b32 v{vTH}, 255, v0')
    a(f's_and_b32 s{sW}, s{sW8}, 3')
    a(f's_lshr_b32 s{sWH}, s{sW8}, 2')
    a(f's_mov_b32 s{sID}, s2')
    a('s_waitcnt lgkmcnt(0)')
    a(f's_add_u32 s4, s{P_WS}, {EP_OFF}')
    a(f's_addc_u32 s5, s{P_WS + 1}, 0')
    a(f's_load_dword s{sTAG}, s[4:5], 0')
    srd(a, sX, P_X, S_ * D_ * 2)
    srd(a, sWS, P_WS, WS_USED)
    srd(a, sW2, P_W2, F_ * S_ * 2)
    stamp(a, 'start')
    if 'noticket' not in EXP:
        srd(a, sAUX, P_DBG, 256)
        a(f'v_mov_b32 v8, {L_CNT + 16}')
        a(f's_cmp_lg_u32 s{sW8}, 0')
        a('s_cbranch_scc1 L_ticket_done')
        a('s_getreg_b32 s4, hwreg(HW_REG_XCC_ID)')
        a('s_mov_b32 s6, 0')
        a('s_mov_b64 exec, 1')
        a.label('L_ticket')
        a('s_and_b32 s4, s4, 7')
        a('s_lshl_b32 s5, s4, 5')
        a('v_mov_b32 v9, s5')
        a('v_mov_b32 v10, 1')
        a(f'buffer_atomic_add v10, v9, {S(sAUX, 4)}, 0 offen sc0 sc1')
        a.wait_vm0()
        a('v_readfirstlane_b32 s5, v10')
        a('s_cmp_lt_u32 s5, 32')
        a('s_cbranch_scc1 L_ticket_ok')
        a('s_add_u32 s4, s4, 1')
        a('s_add_u32 s6, s6, 1')
        a('s_cmp_lt_u32 s6, 8')
        a('s_cbranch_scc1 L_ticket')
        a.label('L_ticket_ok')
        a('s_lshl_b32 s5, s5, 3')
        a('s_add_u32 s5, s5, s4')
        a('v_mov_b32 v9, s5')
        a('ds_write_b32 v8, v9')
        a('s_mov_b64 exec, -1')
        a('s_waitcnt lgkmcnt(0)')
        a.label('L_ticket_done')
        a('s_barrier')
        a('ds_read_b32 v9, v8')
        a('s_waitcnt lgkmcnt(0)')
        a('s_barrier')
        a(f'v_readfirstlane_b32 s{sID}, v9')
        a(f's_and_b32 s{sID}, s{sID}, 255')
        a.reset_counters()
        stamp(a, 'tick')
    if os.environ.get('UPRIO', '1') != '0':
        a(f's_cmp_eq_u32 s{sWH}, 0')
        a('s_cbranch_scc1 L_prio')
        a(f's_setprio {os.environ.get("UPRIO", "1")}')
        a.label('L_prio')
    a(f's_cmp_ge_u32 s{sID}, 128')
    a('s_cbranch_scc1 L_not_a')
    role_a(a)
    a.label('L_not_a')
    a.reset_counters()
    a(f's_and_b32 s4, s{sID}, 7')
    a(f's_lshr_b32 s5, s{sID}, 3')
    a('s_sub_u32 s5, s5, 16')
    a('s_cmp_ge_u32 s5, 14')
    a('s_cbranch_scc1 L_role_r')
    a('s_and_b32 s7, s4, 1')
    a('s_add_u32 s7, s7, 13')
    a('s_cmp_ge_u32 s5, s7')
    a('s_cbranch_scc1 L_role_wot')
    a('s_mul_i32 s6, s4, 27')
    a('s_lshr_b32 s6, s6, 1')
    a('s_add_u32 s6, s6, s5')
    role_b(a)
    a.label('L_role_r')
    a.reset_counters()
    a(f's_sub_u32 s6, s{sID}, 240')
    role_r(a)
    a.label('L_role_wot')
    a.reset_counters()
    a('s_lshr_b32 s6, s4, 1')
    role_wot(a)
    a.label('L_join')
    final_gemm(a)
    a.label('L_end')
    a('s_endpgm')
    if STAMPS:
        a.raw('; STAMPS ' + ' '.join(STAMP_NAMES))
    a.raw('.section .rodata,"a"')
    a.raw(f""".p2align 6
.amdhsa_kernel {K}
  .amdhsa_next_free_vgpr 256
  .amdhsa_next_free_sgpr 102
  .amdhsa_accum_offset 256
  .amdhsa_group_segment_fixed_size 0
  .amdhsa_kernarg_size 96
  .amdhsa_user_sgpr_count 2
  .amdhsa_user_sgpr_kernarg_segment_ptr 1
  .amdhsa_system_sgpr_workgroup_id_x 1
.end_amdhsa_kernel""")
    sys.stderr.write(f'maxv={a.maxv} maxa={a.maxa} maxs={a.maxs} nops={a.nops} lines={len(a.out)}\n')
    return a.text()


if __name__ == '__main__':
    out = sys.argv[1] if len(sys.argv) > 1 else os.path.join(os.path.dirname(__file__), '..', 'cdna_kernels', NAME + '.s')
    open(out, 'w').write(build())
```

```python
import sys, struct, os
sys.path.insert(0, os.path.dirname(__file__))
from asmdsl import Asm, Rec, V, A, S

NAME = 'parallel_sum__linear_kernel_hedgehog__mixer_token_mlp__prompt'
S_, D_, F_ = 2048, 640, 1728

HF_OFF = 0
HF_SZ = 8 * 64 * 5 * 1024
GF_OFF = HF_OFF + HF_SZ
GF_SZ = 8 * 74 * 5 * 1024
OF_OFF = GF_OFF + GF_SZ
OF_SZ = 32 * 20 * 4 * 1024
XF_OFF = OF_OFF + OF_SZ
XF_SZ = 128 * 20480
WF_OFF = XF_OFF + XF_SZ
WF_SZ = 480 * 5120 + 4096
KV_OFF = WF_OFF + WF_SZ
KV_SZ = 32 * 32 * 6144
KB_OFF = KV_OFF + KV_SZ + 4096
KB_SZ = 32 * 2048
FL_OFF = KB_OFF + KB_SZ + 4096
FSH = int(os.environ.get('FSH', '7'))
FH_OFF = FL_OFF
FK_OFF = FH_OFF + (1024 << FSH)
FR_OFF = FK_OFF + (1024 << FSH)
FG_OFF = FR_OFF + (128 << FSH)
FO_OFF = FG_OFF + (1024 << FSH)
FW_OFF = FO_OFF + (1024 << FSH)
FU_OFF = FW_OFF + (128 << FSH)
EP_OFF = FU_OFF + (512 << FSH)
WS_USED = EP_OFF + 512
STAMP_OFF = WS_USED
WS_USED += 512 * 256
STAMPS = bool(int(os.environ.get('STAMPS', '0')))
EXP = os.environ.get('EXP', '').split(',') + [e for e in ['map4', 'noticket', 'notlb', 'g2map8', 'nopf2', 'pfa', 'pf2now', 'fewpoll', 'outx4', 'inx4', 'outlds', 'cinit'] if e not in os.environ.get('OFF', '').split(',')]
OOB = 0x40000000

P_X, P_WQKV, P_WPHI, P_WO, P_BX, P_W1, P_B1, P_W2, P_B2, P_OUT, P_DBG, P_WS = range(16, 40, 2)
LOG2E = 1.4426950408889634

sW = 3
sW8, sWH = 90, 91
sWS, sX, sWQ, sW1, sW2, sAUX, sOUT = 40, 44, 48, 52, 56, 60, 64
sHG, sRB, sID, sROT, sKS, sT, sM0B, sTAG = 68, 69, 70, 71, 72, 73, 74, 75
sL, sNL = 76, 78
sBDB, sBCB, sFS, sGM0, sSPIN, sLIM = 80, 81, 82, 83, 84, 85
vL, vG, vI, vR, vC = 1, 2, 3, 4, 5
vTOK, vGR = 6, 7
vFS = 42
DB = 64
XN = lambda s: DB + 8 * s
UP = lambda k: DB + 8 * k + 4

LDS_BYTES = 163840
A_SLOTS = 4
L_WQ = 0
L_RING = 102400
L_ZERO = 122880
L_WPHI = 126976
L_CNT = 131072
B_P = 10
G2_P = 5
ILV = os.environ.get('ILV', 'burst')


def kb_pos(f, t):
    if f < 32:
        return (f >> 4) * 512 + (t * 16 + (f & 15)) * 8 if t < 4 else 1024 + ((f >> 4) * 32 + (t - 4) * 16 + (f & 15)) * 8
    return 1536 + (t * 8 + f - 32) * 8


def fbits(x):
    return '0x%08x' % struct.unpack('<I', struct.pack('<f', x))[0]


def srd(a, dst, ptr, nbytes):
    a(f's_mov_b32 s{dst}, s{ptr}')
    a(f's_and_b32 s{dst + 1}, s{ptr + 1}, 0xffff')
    a(f's_mov_b32 s{dst + 2}, {nbytes}')
    a(f's_mov_b32 s{dst + 3}, 0x20000')


STAMP_NAMES = []
vST = 41


def stamp(a, name):
    if not STAMPS:
        return
    name = str(name)
    if name not in STAMP_NAMES:
        STAMP_NAMES.append(name)
    idx = STAMP_NAMES.index(name)
    a('s_memrealtime s[98:99]')
    a.wait_lg0()
    if idx == 0:
        a(f'v_mov_b32 v{vST}, 0')
        a('s_getreg_b32 s97, hwreg(HW_REG_HW_ID)')
        a(f'v_writelane_b32 v{vST}, s97, 63')
    a(f'v_writelane_b32 v{vST}, s98, {idx}')


def stamp_flush(a, n):
    if not STAMPS:
        return
    a.wait_vm0()
    stamp(a, n)
    lab = a.newlabel('st')
    a(f's_cmp_lg_u32 s{sW}, 0')
    a(f's_cbranch_scc1 {lab}')
    a(f's_lshl_b32 s4, s{sWH}, 8')
    a(f's_add_u32 s4, s4, s{sID}')
    a('s_lshl_b32 s4, s4, 8')
    a(f's_add_u32 s4, s4, {STAMP_OFF}')
    a(f'v_lshl_add_u32 v8, v{vL}, 2, s4')
    a(f'buffer_store_dword v{vST}, v8, {S(sWS, 4)}, 0 offen')
    if 'dbg1' in EXP:
        srd(a, sAUX, P_DBG, 256)
        for wg, base, sel in ((136, 0, 'start,prep,go,B_0,Bend,pub,gok,G2_0,Gend,end'), (8, 10, 'start,x,prep,go,aend,G2_9')):
            l2 = a.newlabel('dbg')
            a(f's_lshl_b32 s4, s{sWH}, 8')
            a(f's_add_u32 s4, s4, s{sID}')
            a(f's_cmp_lg_u32 s4, {wg}')
            a(f's_cbranch_scc1 {l2}')
            for k, nm in enumerate(sel.split(',')):
                if nm not in STAMP_NAMES:
                    STAMP_NAMES.append(nm)
                a(f'v_readlane_b32 s4, v{vST}, {STAMP_NAMES.index(nm)}')
                a('v_mov_b32 v9, s4')
                a('v_mov_b32 v8, 0')
                a(f'buffer_store_dword v9, v8, {S(sAUX, 4)}, 0 offen offset:{4 * (base + k)}')
            a.label(l2)
    a.label(lab)


def reduce_g(a, r, t):
    a(f'v_mov_b32 v{t}, v{r}')
    a(f'v_permlane32_swap_b32 v{r}, v{t}')
    a(f'v_add_f32 v{r}, v{r}, v{t}')
    a(f'v_mov_b32 v{t}, v{r}')
    a(f'v_permlane16_swap_b32 v{r}, v{t}')
    a(f'v_add_f32 v{r}, v{r}, v{t}')


def dma160_voffs(a, dst, stride, permute, tmp):
    t0, t2, t3 = tmp, tmp + 1, tmp + 2
    for q in range(5):
        d = dst + q
        a(f'v_add_u32 v{t0}, {q * 64}, v{vL}')
        a(f'v_mul_u32_u24 v{t2}, 6554, v{t0}')
        a(f'v_lshrrev_b32 v{t2}, 16, v{t2}')
        a(f'v_mul_u32_u24 v{t3}, 10, v{t2}')
        a(f'v_sub_u32 v{t0}, v{t0}, v{t3}')
        if permute:
            a(f'v_bfe_u32 v{t3}, v{t2}, 2, 2')
            a(f'v_lshlrev_b32 v{t3}, 3, v{t3}')
            a(f'v_and_b32 v{d}, 3, v{t2}')
            a(f'v_add_u32 v{t3}, v{t3}, v{d}')
            a(f'v_lshrrev_b32 v{t2}, 4, v{t2}')
            a(f'v_lshl_add_u32 v{t2}, v{t2}, 2, v{t3}')
        a(f'v_mul_u32_u24 v{t2}, {stride}, v{t2}')
        a(f'v_lshl_add_u32 v{d}, v{t0}, 4, v{t2}')
        if 0 < q < 4:
            a(f'v_subrev_u32 v{d}, {q * 1024}, v{d}')


def dma160(a, vo, ssrd, soff, m0_s, m0_add, nt=''):
    a(f's_add_u32 m0, s{m0_s}, {m0_add}')
    for q in range(4):
        off = f' offset:{q * 1024}' if q else ''
        a(f'buffer_load_dwordx4 v{vo + q}, {S(ssrd, 4)}, s{soff} offen{off}{nt} lds')
    a(f's_add_u32 m0, s{m0_s}, {m0_add + 4096}')
    return a(f'buffer_load_dwordx4 v{vo + 4}, {S(ssrd, 4)}, s{soff} offen{nt} lds')


class Hooks:
    def __init__(self, items=()):
        self.items = list(items)

    def run(self, n=1):
        for _ in range(n):
            if self.items:
                self.items.pop(0)()

    def flush(self):
        self.run(len(self.items))


def softmax_pm(a, P, PH, EP, EN, tmp):
    p = [P[k // 4] + k % 4 for k in range(20)]
    ep = [EP[k // 4] + k % 4 for k in range(20)]
    en = [EN[k // 4] + k % 4 for k in range(20)]
    mx, mn, sp, sn = tmp, tmp + 2, tmp + 4, tmp + 6
    a(f'v_max3_f32 v{mx}, v{p[0]}, v{p[1]}, v{p[2]}')
    a(f'v_min3_f32 v{mn}, v{p[0]}, v{p[1]}, v{p[2]}')
    for k in range(3, 19, 2):
        a(f'v_max3_f32 v{mx}, v{mx}, v{p[k]}, v{p[k + 1]}')
        a(f'v_min3_f32 v{mn}, v{mn}, v{p[k]}, v{p[k + 1]}')
    a(f'v_max_f32 v{mx}, v{mx}, v{p[19]}')
    a(f'v_min_f32 v{mn}, v{mn}, v{p[19]}')
    a(f'v_mul_f32 v{mx}, s{sNL}, v{mx}')
    a(f'v_mul_f32 v{mn}, s{sL}, v{mn}')
    for k in range(0, 20, 2):
        a(f'v_pk_fma_f32 {V(ep[k], 2)}, {V(p[k], 2)}, {S(sL, 2)}, {V(mx, 2)} op_sel_hi:[1,0,0]')
        a(f'v_pk_fma_f32 {V(en[k], 2)}, {V(p[k], 2)}, {S(sNL, 2)}, {V(mn, 2)} op_sel_hi:[1,0,0]')
    for k in range(20):
        a(f'v_exp_f32 v{ep[k]}, v{ep[k]}')
        a(f'v_exp_f32 v{en[k]}, v{en[k]}')
    a(f'v_pk_add_f32 {V(sp, 2)}, {V(ep[0], 2)}, {V(ep[2], 2)}')
    a(f'v_pk_add_f32 {V(sn, 2)}, {V(en[0], 2)}, {V(en[2], 2)}')
    for k in range(4, 20, 2):
        a(f'v_pk_add_f32 {V(sp, 2)}, {V(sp, 2)}, {V(ep[k], 2)}')
        a(f'v_pk_add_f32 {V(sn, 2)}, {V(sn, 2)}, {V(en[k], 2)}')
    a(f'v_add_f32 v{sp}, v{sp}, v{sp + 1}')
    a(f'v_add_f32 v{sn}, v{sn}, v{sn + 1}')
    a(f'v_rcp_f32 v{sp}, v{sp}')
    a(f'v_rcp_f32 v{sn}, v{sn}')
    for k in range(0, 20, 2):
        a(f'v_pk_mul_f32 {V(ep[k], 2)}, {V(ep[k], 2)}, {V(sp, 2)} op_sel_hi:[1,0]')
        a(f'v_pk_mul_f32 {V(en[k], 2)}, {V(en[k], 2)}, {V(sn, 2)} op_sel_hi:[1,0]')
    allv = ep + en
    for k in range(20):
        a(f'v_cvt_pk_bf16_f32 v{PH[k // 4] + k % 4}, v{allv[2 * k]}, v{allv[2 * k + 1]}')


def flag_set(a, s_off):
    a(f'v_lshl_add_u32 v{vFS}, v{vL}, 2, s{s_off}')
    a(f'v_mov_b32 v{vFS + 1}, s{sTAG}')
    a(f's_mov_b64 exec, {hex((1 << (1 << (FSH - 2))) - 1)}')
    a(f'buffer_store_dword v{vFS + 1}, v{vFS}, {S(sWS, 4)}, 0 offen sc1')
    a('s_mov_b64 exec, -1')


def flag_issue(a, vaddr, vdst):
    return a(f'buffer_load_dword v{vdst}, v{vaddr}, {S(sWS, 4)}, 0 offen sc1')


def flag_check(a, tok, vaddr, vdst, sleep=2):
    ok = a.newlabel('ok')
    lp = a.newlabel('poll')
    a.wait(tok)
    a(f'v_cmp_ne_u32 vcc, s{sTAG}, v{vdst}')
    a(f's_cbranch_vccz {ok}')
    a(f's_mov_b32 s{sSPIN}, 0')
    a.label(lp)
    a(f's_sleep {sleep}')
    a.raw(f'\tbuffer_load_dword v{vdst}, v{vaddr}, {S(sWS, 4)}, 0 offen sc1')
    a('s_waitcnt vmcnt(0)')
    a(f'v_cmp_ne_u32 vcc, s{sTAG}, v{vdst}')
    a(f's_cbranch_vccz {ok}')
    a(f's_add_u32 s{sSPIN}, s{sSPIN}, 1')
    a(f's_cmp_lt_u32 s{sSPIN}, 0x8000')
    a(f's_cbranch_scc1 {lp}')
    a.label(ok)


def featmap(a, ACC5, PK, WPF, P5, EP5, EN5, tmp):
    for k in range(10):
        t, j = divmod(2 * k, 4)
        a(f'v_cvt_pk_bf16_f32 v{PK[k // 4] + k % 4}, v{ACC5[t] + j}, v{ACC5[t] + j + 1}')
    for ks in range(3):
        for t in range(5):
            d = V(P5[t], 4)
            if ks < 2:
                a(f'v_mfma_f32_16x16x32_bf16 {d}, {V(WPF(t, ks), 4)}, {V(PK[ks], 4)}, {"0" if ks == 0 else d}')
            else:
                a(f'v_mfma_f32_16x16x16_bf16 {d}, {V(WPF(t, ks), 2)}, {V(PK[ks], 2)}, {d}')
    softmax_pm(a, P5, P5, EP5, EN5, tmp)


def xcd_tile(a):
    a(f's_and_b32 s4, s{sID}, 7')
    a(f's_lshr_b32 s5, s{sID}, 3')
    if 'g2map8' in EXP:
        a(f's_and_b32 s{sHG}, s5, 7')
        a('s_lshl_b32 s6, s4, 2')
        a('s_lshr_b32 s7, s5, 3')
        a(f's_add_u32 s{sRB}, s6, s7')
    else:
        a('s_and_b32 s6, s4, 1')
        a('s_lshl_b32 s6, s6, 2')
        a('s_and_b32 s7, s5, 3')
        a(f's_add_u32 s{sHG}, s6, s7')
        a('s_lshr_b32 s6, s4, 1')
        a('s_lshl_b32 s6, s6, 3')
        a('s_lshr_b32 s7, s5, 2')
        a(f's_add_u32 s{sRB}, s6, s7')
    a(f's_lshl_b32 s4, s{sRB}, 6')
    a(f's_lshl_b32 s5, s{sW}, 4')
    a('s_add_u32 s4, s4, s5')
    a(f'v_add_u32 v{vTOK}, s4, v{vI}')


def ln_scales(a, vS, vRS, vNB):
    a(f'v_mul_f32 v{vS}, {fbits(1.0 / 640)}, v{vS}')
    a(f'v_mul_f32 v{vS + 2}, {fbits(1.0 / 640)}, v{vS + 2}')
    a(f'v_fma_f32 v{vS + 2}, -v{vS}, v{vS}, v{vS + 2}')
    a(f'v_max_f32 v{vS + 2}, 0, v{vS + 2}')
    a(f'v_add_f32 v{vS + 1}, {fbits(1e-5)}, v{vS + 2}')
    a(f'v_rsq_f32 v{vRS}, v{vS + 1}')
    a(f'v_mul_f32 v{vNB}, v{vS}, v{vRS}')
    a(f'v_sub_f32 v{vNB}, 0, v{vNB}')


vD, vF, vT, vT2, vFL, vFD, vOF, vXA, vBA = 8, 12, 14, 18, 22, 23, 28, 32, 33
ACC = lambda t, nt: 44 + (nt * 5 + t) * 4
TF = lambda j, nt: 124 + (j % 2) * 16 + 4 * nt
POOL = [156 + 4 * k for k in range(25)]


class GGemm:
    def __init__(self, a, kind):
        self.a, self.kind = a, kind
        if kind == 'B':
            self.stride, self.srdm, self.n, self.fr_off, self.fr_steps = F_ * 2, sW1, 16, HF_OFF, 64
            self.sdb, self.scb, self.ntot, self.P = sBDB, sBCB, 16, B_P
        else:
            self.stride, self.srdm, self.n, self.fr_off, self.fr_steps = S_ * 2, sW2, 14, GF_OFF, 74
            self.sdb, self.scb, self.ntot, self.P = sHG, sRB, 19, G2_P
        self.dtok, self.ftok, self.ttok = {}, {}, {}
        self.free = list(POOL)
        self.reg = {}
        self.pending = []
        order = [(j, 'a') for j in range(self.n)]
        if kind == 'G2':
            order += [(j, k) for j in range(14, 19) for k in 'ab']
        for j, k in order:
            self.pending += [(j, k, x) for x in range(5 if k == 'a' else 4)]
        self.gate = lambda: None
        self.gate2 = lambda: None
        self.nq = 2 if kind == 'B' else 4

    def setup(self):
        a, st = self.a, self.stride
        a(f'v_lshrrev_b32 v24, 3, v{vL}')
        if self.kind == 'B':
            a('v_lshrrev_b32 v25, 2, v24')
            a('v_and_b32 v24, 3, v24')
            a('v_lshl_add_u32 v24, v25, 3, v24')
        a(f'v_mul_u32_u24 v24, {st}, v24')
        a(f'v_and_b32 v25, 7, v{vL}')
        a(f'v_lshlrev_b32 v26, 1, v{vG}')
        a('v_xor_b32 v25, v25, v26')
        a('v_lshl_add_u32 v24, v25, 4, v24')
        a(f's_lshl_b32 s4, s{self.scb}, 7')
        a(f's_mul_i32 s5, s{sW}, {self.n * 32 * st}')
        a('s_add_u32 s5, s5, s4')
        if self.kind == 'B':
            a(f's_mul_i32 s6, s{sWH}, {4 * st}')
            a('s_add_u32 s5, s5, s6')
            a(f's_lshl_b32 s6, s{sWH}, 11')
            a(f's_add_u32 s{sM0B}, s{sGM0}, s6')
        else:
            a(f's_mov_b32 s{sM0B}, s{sGM0}')
        for q in range(self.nq):
            row = 8 * q if self.kind != 'B' else q * 16
            a(f's_add_u32 s6, s5, {row * st - 1024 * q}')
            a(f'v_add_u32 v{vD + q}, s6, v24')
        a(f's_mul_i32 s4, s{self.sdb}, {self.fr_steps}')
        a(f's_mul_i32 s5, s{sW}, {self.n}')
        a('s_add_u32 s4, s4, s5')
        a('s_mul_i32 s4, s4, 5120')
        a(f's_add_u32 s{sFS}, s4, {self.fr_off}')
        if self.kind == 'B':
            a(f's_lshl_b32 s4, s{sW}, {6 + FSH}')
            a(f's_add_u32 s4, s4, {FH_OFF}')
            a(f'v_lshl_add_u32 v{vFL}, v{vL}, {FSH}, s4')
        else:
            a(f's_lshl_b32 s4, s{self.sdb}, {7 + FSH}')
            a(f's_mul_i32 s5, s{sW}, {28 << FSH}')
            a('s_add_u32 s4, s4, s5')
            a(f's_add_u32 s4, s4, {FG_OFF}')
            a(f's_mul_i32 s5, s{self.sdb}, {74 * 5120}')
            a(f's_add_u32 s{sLIM}, s5, {GF_OFF + 53 * 5120}')
            a(f's_cmp_eq_u32 s{sW}, 3')
            a('s_cselect_b32 s5, 23, 27')
            a(f'v_min_u32 v24, s5, v{vL}')
            a(f'v_lshl_add_u32 v{vFL}, v24, {FSH}, s4')

    def dma_items(self, j):
        a = self.a

        def one(q):
            def f():
                if q == 0:
                    a(f's_add_u32 m0, s{sM0B}, {(j % self.P) * 16384}')
                off = f' offset:{q * 1024}' if q else ''
                nt = ' nt' if ('ntb' in EXP and self.kind == 'B' and j < self.P) else ''
                self.dtok[j] = a(f'buffer_load_dwordx4 v{vD + q}, {S(self.srdm, 4)}, 0 offen{off}{nt} lds')
                if not ('hotw' in EXP):
                    a(f'v_add_u32 v{vD + q}, {32 * self.stride}, v{vD + q}')
            return f
        return [one(q) for q in range(self.nq)]

    def frag_items(self, lim=99):
        a = self.a
        out = []
        while self.free and self.pending and len(out) < lim:
            key = self.pending.pop(0)
            r = self.free.pop(0)
            self.reg[key] = r

            def f(key=key, r=r):
                j, kind, x = key
                if key == (self.n, 'a', 0):
                    self.gate()
                if key == (self.n, 'b', 0):
                    self.gate2()
                if kind == 'a' and 'b_nof' in EXP and self.kind == 'B' and j >= 5 and x > 0:
                    pass
                elif kind == 'a':
                    vo, off = (vF, x * 1024) if x < 4 else (vF + 1, 0)
                    offs = f' offset:{off}' if off else ''
                    self.ftok[j] = a(f'buffer_load_dwordx4 {V(r, 4)}, v{vo}, {S(sWS, 4)}, s{sFS} offen{offs} sc1')
                    if x == 4 and 'hotf' not in EXP:
                        a(f's_add_u32 s{sFS}, s{sFS}, 5120')
                        if self.kind == 'G2' and j < 14:
                            a(f's_min_u32 s{sFS}, s{sFS}, s{sLIM}')
                else:
                    if j - self.n == 2:
                        a(f'v_lshlrev_b32 v24, 3, v{vL}')
                        a(f'v_sub_u32 v24, v{vOF + x}, v24')
                        a(f'buffer_load_dwordx2 {V(r, 2)}, v24, {S(sWS, 4)}, s11 offen sc1')
                        self.ftok[j] = a(f'buffer_load_dwordx2 {V(r + 2, 2)}, v24, {S(sWS, 4)}, s11 offen offset:512 sc1')
                    else:
                        self.ftok[j] = a(f'buffer_load_dwordx4 {V(r, 4)}, v{vOF + x}, {S(sWS, 4)}, s11 offen sc1')
                    if x == 3:
                        a('s_add_u32 s11, s11, 4096')
            out.append(f)
        return out

    def tr_items(self, j):
        a = self.a

        def one(nt):
            def f():
                off = (j % self.P) * 16384
                base = vT
                if off >= 65536:
                    if off % 65536 == 0:
                        a(f'v_add_u32 v{vT2 + nt}, {off}, v{vT + nt}')
                    off %= 65536
                    base = vT2
                if 'b_nods' in EXP and self.kind == 'B' and j > 1 and nt > 0:
                    return
                a(f'ds_read_b64_tr_b16 {V(TF(j, nt), 2)}, v{base + nt} offset:{off}')
                self.ttok[j] = a(f'ds_read_b64_tr_b16 {V(TF(j, nt) + 2, 2)}, v{base + nt} offset:{off + 2048}')
            return f
        return [one(nt) for nt in range(4)]

    def mainloop(self, extra):
        a, n = self.a, self.n
        a.wait(self.dtok[0])
        Hooks(self.tr_items(0)).flush()
        for j in range(self.ntot):
            items = []
            if j + 1 < n:
                a.wait(self.dtok[j + 1])
            a.wait(self.ftok[j], self.ttok.get(j))
            if self.kind == 'B' and 'b_nobar' not in EXP and j + 1 < n and (j + self.P < n or j + 1 >= int(os.environ.get('BPRE', '10'))):
                a('s_barrier')
            if j % 3 == 0:
                stamp(a, f'{self.kind}_{j}')
                if STAMPS and j in (3, 9):
                    a('s_memtime s[98:99]')
                    a.wait_lg0()
                    a(f'v_writelane_b32 v{vST}, s98, {56 + (j // 9) + (2 if self.kind == "G2" else 0)}')
            if j + 1 < n:
                items += self.tr_items(j + 1)
            if j + self.P < n:
                items += self.dma_items(j + self.P)
            items += extra(j)
            lim = int(os.environ.get('LIMB' if self.kind == 'B' else 'LIMG', '10'))
            items += self.frag_items(lim if (self.kind == 'B' or j < int(os.environ.get('LIMJ', '9'))) else 13)
            last = j == self.ntot - 1
            if self.kind == 'G2' and j == int(os.environ.get('JBAR', '16')):
                a('s_barrier')
            if last:
                a(f's_mul_i32 s7, s{sWH}, 102400')
                for nt in range(1, 4):
                    a(f's_xor_b32 s4, s{sW}, {nt}')
                    a('s_mul_i32 s4, s4, 15360')
                    a(f's_add_u32 s4, s4, {(nt - 1) * 5120}')
                    a('s_add_u32 s4, s4, s7')
                    a(f'v_add_u32 v{24 + nt}, s4, v{vF}')
                wr = [(nt, t) for nt in (1, 2, 3) for t in range(5)]
            hk = Hooks(items)
            k = 0
            ILV = os.environ.get('ILVB', 'fine') if self.kind == 'B' else os.environ.get('ILVG', 'burst')
            for nt in (1, 2, 3, 0):
                for t in range(5):
                    acc = V(ACC(t, nt), 4)
                    c = '0' if (j == 0 and not ('cinit' in EXP and nt == 0)) else acc
                    fr = V(self.reg[(j, 'a', t)], 4)
                    tf = V(TF(j, nt) if j < n else self.reg[(j, 'b', nt)], 4)
                    if self.kind == 'B':
                        a(f'v_mfma_f32_16x16x32_bf16 {acc}, {tf}, {fr}, {c}')
                    else:
                        a(f'v_mfma_f32_16x16x32_bf16 {acc}, {fr}, {tf}, {c}')
                    k += 1
                    if last and k > 5:
                        wn, wt = wr.pop(0)
                        a(f'ds_write_b128 v{24 + wn}, {V(ACC(wt, wn), 4)} offset:{wt * 1024}')
                    if ILV == 'fine':
                        if k % 4 != 0:
                            hk.run()
                    elif ILV == 'burst':
                        if k <= 4 and j + 1 < n:
                            hk.run()
                    elif ILV == 'two':
                        if k <= 4 and j + 1 < n:
                            hk.run()
                        if k == 10:
                            hk.run(4)
                    elif ILV == 'pre':
                        if k == 1:
                            hk.flush()
            hk.flush()
            self.free += [r for key, r in self.reg.items() if key[0] == j]
            if self.kind == 'G2' and 'morepool' in EXP:
                self.free += {9: [vD], 12: [vT, vT2]}.get(j, [])
            if n - 2 <= j < n:
                self.free += [TF(j, nt) for nt in range(4)]

    def reduce(self):
        a = self.a
        a(f's_mul_i32 s4, s{sW}, 15360')
        a('s_add_u32 s4, s4, s7')
        a(f'v_add_u32 v24, s4, v{vF}')
        a.wait_lg0()
        a('s_barrier')
        rtok = {}
        for nt in range(1, 4):
            for t in range(5):
                rtok[(nt, t)] = a(f'ds_read_b128 {V(ACC(t, nt), 4)}, v24 offset:{(nt - 1) * 5120 + t * 1024}')
        for nt in range(1, 4):
            for t in range(5):
                a.wait(rtok[(nt, t)])
                for h in range(2):
                    d = V(ACC(t, 0) + 2 * h, 2)
                    a(f'v_pk_add_f32 {d}, {d}, {V(ACC(t, nt) + 2 * h, 2)}')


def frag10_addr(a, m, hi_add, step, base_s, vrd, vrd_base, vst):
    a(f's_add_u32 s4, s{sW}, {4 * m}')
    a('s_min_u32 s5, s4, 9')
    a('s_cmp_ge_u32 s5, 5')
    a(f's_cselect_b32 s6, {hi_add}, 0')
    a(f's_mul_i32 s5, s5, {step}')
    a('s_add_u32 s5, s5, s6')
    a(f'v_add_u32 v{vrd}, s5, v{vrd_base}')
    a('s_lshl_b32 s5, s4, 10')
    a(f's_add_u32 s5, s5, s{base_s}')
    a('s_cmp_ge_u32 s4, 10')
    a(f's_cselect_b32 s5, {OOB}, s5')
    a(f'v_lshl_add_u32 v{vst}, v{vL}, 4, s5')


NTP = ' nt' if 'ntp' in EXP else ''
FIRST = int(os.environ.get('FIRST', '25'))
vTH = 40


def g_common(a):
    a(f'v_lshlrev_b32 v{vF}, 4, v{vL}')
    a(f'v_add_u32 v{vF + 1}, 4096, v{vF}')
    a(f's_lshl_b32 s{sGM0}, s{sW}, 12')
    a(f'v_bfe_u32 v25, v{vGR}, 1, 2')
    a(f'v_xor_b32 v25, s{sW}, v25')
    a(f'v_lshlrev_b32 v26, 7, v{vGR}')
    a(f'v_lshl_add_u32 v26, v{vC}, 3, v26')
    a(f'v_add_u32 v26, s{sGM0}, v26')
    for nt in range(4):
        a(f'v_xor_b32 v27, {nt}, v25')
        a(f'v_lshl_add_u32 v{vT + nt}, v27, 5, v26')


def tag_ready(a):
    a('s_waitcnt lgkmcnt(0)')
    a(f's_add_u32 s{sTAG}, s{sTAG}, 1')


def role_a(a):
    a(f's_and_b32 s4, s{sID}, 7')
    a(f's_lshr_b32 s5, s{sID}, 3')
    a('s_and_b32 s6, s4, 1')
    a('s_lshl_b32 s6, s6, 2')
    a('s_and_b32 s7, s5, 3')
    a(f's_add_u32 s{sHG}, s6, s7')
    a('s_lshr_b32 s6, s4, 1')
    a('s_lshl_b32 s6, s6, 2')
    a('s_lshr_b32 s7, s5, 2')
    a('s_add_u32 s6, s6, s7')
    a(f's_mov_b32 s{sRB}, s6')
    a('s_lshl_b32 s6, s6, 3')
    a(f's_add_u32 s15, s6, s{sHG}')
    a('s_lshl_b32 s12, s15, 1')
    a(f's_add_u32 s12, s12, s{sWH}')
    X = 156
    a('s_lshl_b32 s4, s12, 2')
    a(f's_add_u32 s4, s4, s{sW}')
    a('s_mul_i32 s4, s4, 2560')
    a(f'v_mul_u32_u24 v24, 40, v{vL}')
    xt = []
    if 'inx4' in EXP:
        a(f'buffer_load_dwordx4 {V(X, 4)}, v24, {S(sX, 4)}, s4 offen')
        a(f'buffer_load_dwordx4 {V(X + 4, 4)}, v24, {S(sX, 4)}, s4 offen offset:16')
        xt = [a(f'buffer_load_dwordx2 {V(X + 8, 2)}, v24, {S(sX, 4)}, s4 offen offset:32')] * 5
    else:
        for k in range(5):
            xt.append(a(f'buffer_load_dwordx2 {V(X + 2 * k, 2)}, v24, {S(sX, 4)}, s4 offen offset:{8 * k}{NTP}'))
    srd(a, sWQ, P_WQKV, D_ * 3 * D_ * 2)
    vLN = 8
    a(f'v_lshlrev_b32 v{vLN}, 4, v{vL}')
    a(f'v_add_u32 v{vLN + 1}, 4096, v{vLN}')
    a(f's_mul_i32 s{sM0B}, s{sW8}, 5120')
    a('s_lshl_b32 s10, s15, 2')
    a(f's_add_u32 s10, s10, s{sW}')
    a('s_mul_i32 s4, s10, 1093')
    a('s_lshr_b32 s4, s4, 16')
    a('s_mul_i32 s5, s4, 60')
    a('s_sub_u32 s5, s10, s5')
    a('s_lshr_b32 s6, s5, 1')
    a('s_and_b32 s7, s5, 1')
    a('s_add_u32 s7, s7, 1')
    a('s_sub_u32 s8, s5, 40')
    a('s_cmp_ge_u32 s5, 40')
    a('s_cselect_b32 s6, s8, s6')
    a('s_cselect_b32 s7, 0, s7')
    a(f's_mul_i32 s6, s6, {32 * 3840}')
    a('s_mul_i32 s7, s7, 1280')
    a('s_mul_i32 s4, s4, 160')
    a('s_add_u32 s6, s6, s7')
    a('s_add_u32 s6, s6, s4')
    a(f's_cmp_eq_u32 s{sWH}, 0')
    a('s_cselect_b32 s10, 480, s10')
    dma160_voffs(a, 12, 3840, True, 18)
    a('s_cmp_ge_u32 s10, 480')
    a(f's_cselect_b32 s7, {OOB}, 0')
    for q in range(5):
        a(f'v_add_u32 v{12 + q}, s7, v{12 + q}')
    utok = dma160(a, 12, sWQ, 6, sM0B, 0, NTP)
    a(f's_mul_i32 s13, s{sWH}, 24576')
    a('s_add_u32 s13, s13, 65536')
    a('s_add_u32 s14, s13, 12288')
    srd(a, sAUX, P_WPHI, 32 * 800)
    a(f's_mul_i32 s6, s{sHG}, 3200')
    a(f's_lshl_b32 s7, s{sW}, 10')
    a('s_add_u32 s6, s6, s7')
    a(f'v_lshl_add_u32 v10, v{vL}, 4, s6')
    a(f's_add_u32 m0, s7, {L_WPHI}')
    a(f'buffer_load_dwordx4 v10, {S(sAUX, 4)}, 0 offen lds')
    for k in range(4):
        a(f'v_mov_b32 v{44 + k}, 0')
    a(f'v_lshlrev_b32 v18, 4, v{vTH}')
    a(f'v_add_u32 v18, {L_ZERO}, v18')
    a('ds_write_b128 v18, v[44:47]')
    a(f'v_mov_b32 v10, {L_CNT}')
    a('v_mov_b32 v11, 0')
    a('ds_write2_b32 v10, v11, v11 offset0:0 offset1:1')
    vONE, vS, vRS, vNB = 34, 36, 168, 170
    a(f'v_mov_b32 v{vONE}, 0x3f803f80')
    for k in range(4):
        a(f'v_mov_b32 v{vS + k}, 0')
    a('s_waitcnt lgkmcnt(0)')
    a(f's_add_u32 s{sTAG}, s{sTAG}, 1')
    def unit_part():
        a(f'v_mul_u32_u24 v29, 160, v{vGR}')
        a(f'v_mul_u32_u24 v24, 40, v{vC}')
        a('v_add_u32 v29, v29, v24')
        a(f'v_add_u32 v29, s{sM0B}, v29')
        a('s_mul_i32 s4, s10, 5120')
        a(f's_add_u32 s4, s4, {WF_OFF}')
        a('s_cmp_ge_u32 s10, 480')
        a(f's_cselect_b32 s4, {OOB}, s4')
        a(f'v_add_u32 v24, s4, v{vLN}')
        a(f'v_add_u32 v25, s4, v{vLN + 1}')
        a(f's_lshl_b32 s5, s10, {FSH}')
        a(f's_add_u32 s5, s5, {FU_OFF}')
        a('s_cmp_ge_u32 s10, 480')
        a(f's_cselect_b32 s10, {OOB}, s5')
        a.wait(utok)
        ut = []
        for t in range(5):
            a(f'ds_read_b64_tr_b16 {V(UP(t), 2)}, v29 offset:{8 * t}')
            ut.append(a(f'ds_read_b64_tr_b16 {V(UP(t) + 2, 2)}, v29 offset:{8 * t + 2560}'))
        for t in range(5):
            a.wait(ut[t])
            vo, off = (24, t * 1024) if t < 4 else (25, 0)
            a(f'buffer_store_dwordx4 {V(UP(t), 4)}, v{vo}, {S(sWS, 4)}, 0 offen offset:{off} sc1')

    if 'unitfirst' in EXP:
        unit_part()
    a.wait(xt[4])
    stamp(a, 'x')
    for k in range(10):
        a(f'v_dot2c_f32_bf16 v{vS + (k & 1)}, v{X + k}, v{vONE}')
        a(f'v_dot2c_f32_bf16 v{vS + 2 + (k & 1)}, v{X + k}, v{X + k}')
    a(f'v_add_f32 v{vS}, v{vS}, v{vS + 1}')
    a(f'v_add_f32 v{vS + 2}, v{vS + 2}, v{vS + 3}')
    for sh in (8, 4, 2, 1):
        for r in (vS, vS + 2):
            a(f'v_add_f32_dpp v{r}, v{r}, v{r} row_ror:{sh} row_mask:0xf bank_mask:0xf')
    for r in (vS, vS + 2):
        a(f'v_mov_b32 v{r + 1}, v{r}')
        a(f'v_permlane16_swap_b32 v{r}, v{r + 1}')
        a(f'v_add_f32 v{r}, v{r}, v{r + 1}')
    ln_scales(a, vS, vRS, vNB)
    a(f'v_mul_f32 v{vS + 1}, v{vRS}, v{vRS}')
    a(f'v_mov_b32 v{vS + 3}, {fbits(1e-5)}')
    a(f'v_fmac_f32 v{vS + 3}, v{vS + 1}, v{vS + 2}')
    a(f'v_rsq_f32 v{vS + 2}, v{vS + 3}')
    U = 172
    for k in range(10):
        a(f'v_lshlrev_b32 v{U + 2 * k}, 16, v{X + k}')
        a(f'v_and_b32 v{U + 2 * k + 1}, 0xffff0000, v{X + k}')
    for k in range(10):
        a(f'v_pk_fma_f32 {V(U + 2 * k, 2)}, {V(U + 2 * k, 2)}, {V(vRS, 2)}, {V(vNB, 2)} op_sel_hi:[1,0,0]')
    XQ = 192
    for k in range(10):
        a(f'v_cvt_pk_bf16_f32 v{XQ + k}, v{U + 2 * k}, v{U + 2 * k + 1}')
    for k in range(10):
        a(f'v_pk_mul_f32 {V(U + 2 * k, 2)}, {V(U + 2 * k, 2)}, {V(vS + 2, 2)} op_sel_hi:[1,0]')
    for k in range(10):
        a(f'v_cvt_pk_bf16_f32 v{X + k}, v{U + 2 * k}, v{U + 2 * k + 1}')
    a(f's_mul_i32 s4, s{sW}, {2 * 1296}')
    a('s_add_u32 s4, s4, s13')
    a(f'v_mul_u32_u24 v24, 40, v{vL}')
    a(f'v_lshrrev_b32 v25, 5, v{vL}')
    a('v_lshl_add_u32 v24, v25, 4, v24')
    a('v_add_u32 v24, s4, v24')
    for k in range(5):
        a(f'ds_write_b64 v24, {V(XQ + 2 * k, 2)} offset:{8 * k}')
    a(f'v_and_b32 v25, 7, v{vTH}')
    a(f'v_lshrrev_b32 v26, 3, v{vTH}')
    a('v_mul_u32_u24 v28, 1296, v25')
    a('v_lshl_add_u32 v28, v26, 4, v28')
    a('v_add_u32 v28, s13, v28')
    a('v_lshlrev_b32 v29, 8, v26')
    a('v_lshl_add_u32 v29, v25, 4, v29')
    a(f's_lshr_b32 s4, s12, 1')
    a('s_mul_i32 s4, s4, 20480')
    a(f's_and_b32 s5, s12, 1')
    a('s_lshl_b32 s5, s5, 7')
    a('s_add_u32 s4, s4, s5')
    a(f's_add_u32 s4, s4, {XF_OFF}')
    a('v_add_u32 v29, s4, v29')
    a('v_add_u32 v30, 8192, v29')
    a(f's_cmp_ge_u32 s{sW}, 2')
    a(f's_cselect_b32 s4, {OOB}, 16384')
    a('v_add_u32 v31, s4, v29')
    a(f's_mul_i32 s4, s{sW}, 2560')
    a('s_add_u32 s4, s4, s14')
    a(f'v_mul_u32_u24 v24, 40, v{vL}')
    a('v_add_u32 v24, s4, v24')
    for k in range(5):
        a(f'ds_write_b64 v24, {V(X + 2 * k, 2)} offset:{8 * k}')
    a(f'v_mul_u32_u24 v24, 1280, v{vR}')
    a(f'v_mul_u32_u24 v25, 160, v{vG}')
    a('v_add_u32 v24, v24, v25')
    a(f'v_mul_u32_u24 v25, 40, v{vC}')
    a('v_add_u32 v24, v24, v25')
    a('v_add_u32 v24, s14, v24')
    a(f'v_mul_u32_u24 v25, {64 * 5120}, v{vG}')
    a(f'v_lshl_add_u32 v25, v{vI}, 4, v25')
    a(f's_lshr_b32 s4, s12, 2')
    a('s_mul_i32 s4, s4, 5120')
    a(f's_and_b32 s5, s12, 3')
    a('s_lshl_b32 s5, s5, 8')
    a('s_add_u32 s4, s4, s5')
    a(f's_add_u32 s8, s4, {HF_OFF}')
    a.wait_lg0()
    a('s_barrier')
    ht = []
    for m in range(3):
        ht.append(a(f'ds_read_b128 {V(XQ + 4 * m, 4)}, v28 offset:{512 * m}'))
    for m in range(3):
        a.wait(ht[m])
        a(f'buffer_store_dwordx4 {V(XQ + 4 * m, 4)}, v{29 + m}, {S(sWS, 4)}, 0 offen sc1')
    ht = []
    for m in range(3):
        a(f's_add_u32 s4, s{sW}, {4 * m}')
        a('s_min_u32 s5, s4, 9')
        a('s_cmp_ge_u32 s5, 5')
        a(f's_cselect_b32 s6, {640 - 40}, 0')
        a(f's_cselect_b32 s7, {4 * 64 * 5120 - 5120}, 0')
        a('s_lshl_b32 s5, s5, 3')
        a('s_add_u32 s5, s5, s6')
        a('v_add_u32 v26, s5, v24')
        a(f'ds_read_b64_tr_b16 {V(U + 4 * m, 2)}, v26')
        ht.append(a(f'ds_read_b64_tr_b16 {V(U + 4 * m + 2, 2)}, v26 offset:{4 * 1280}'))
        a('s_lshl_b32 s5, s4, 10')
        a('s_add_u32 s5, s5, s7')
        a('s_add_u32 s5, s5, s8')
        a('s_cmp_ge_u32 s4, 10')
        a(f's_cselect_b32 s5, {OOB}, s5')
        a(f'v_add_u32 v{34 + m}, s5, v25')
    for m in range(3):
        a.wait(ht[m])
        a(f'buffer_store_dwordx4 {V(U + 4 * m, 4)}, v{34 + m}, {S(sWS, 4)}, 0 offen sc1')
    hst = ('vm', a.vm_issued - 1)
    if 'unitfirst' not in EXP:
        unit_part()
    a(f's_lshl_b32 s4, s{sWH}, 2')
    a(f's_add_u32 s4, s4, {L_CNT}')
    a('v_mov_b32 v10, s4')
    a('v_mov_b32 v11, 1')
    a.wait(hst)
    a('s_mov_b64 exec, 1')
    a('ds_add_rtn_u32 v11, v10, v11')
    a('s_mov_b64 exec, -1')
    a.wait_lg0()
    a('v_readfirstlane_b32 s5, v11')
    a(f's_lshl_b32 s4, s12, {FSH}')
    a(f's_add_u32 s4, s4, {FH_OFF}')
    a('s_cmp_lg_u32 s5, 3')
    a('s_cbranch_scc1 L_nofh')
    flag_set(a, 4)
    a.label('L_nofh')
    a.wait_vm0()
    flag_set(a, 10)
    stamp(a, 'prep')
    a(f's_mov_b32 s{sL}, {fbits(LOG2E)}')
    a(f's_mov_b32 s{sL + 1}, {fbits(LOG2E)}')
    a(f's_mov_b32 s{sNL}, {fbits(-LOG2E)}')
    a(f's_mov_b32 s{sNL + 1}, {fbits(-LOG2E)}')
    a(f's_mul_i32 s10, s{sHG}, 60')
    a(f's_lshl_b32 s4, s10, {FSH}')
    a(f's_add_u32 s4, s4, {FU_OFF}')
    if 'fewpoll' in EXP:
        a(f'v_min_u32 v20, 14, v{vI}')
        a(f'v_lshl_add_u32 v20, v20, 2, s{sW}')
        a(f'v_lshl_add_u32 v20, v20, {FSH}, s4')
    else:
        a(f'v_lshl_add_u32 v20, v{vL}, {FSH}, s4')
    a(f's_lshl_b32 s11, s{sRB}, 2')
    a(f's_add_u32 s11, s11, s{sW}')
    a(f's_lshl_b32 s4, s11, {FSH + 2}')
    a(f's_add_u32 s4, s4, {FH_OFF}')
    a(f'v_lshl_add_u32 v21, v{vC}, {FSH}, s4')
    if 'fewpoll' in EXP:
        a(f's_cmp_lg_u32 s{sWH}, 0')
        a('s_cselect_b64 vcc, -1, 0')
    else:
        a(f'v_cmp_gt_u32 vcc, 60, v{vL}')
    a('v_cndmask_b32 v20, v21, v20, vcc')
    a(f's_add_u32 s10, s10, s{sW}')
    a('s_mul_i32 s10, s10, 5120')
    a(f's_add_u32 s10, s10, {WF_OFF}')
    a(f's_add_u32 s9, s10, {40 * 5120}')
    a(f's_mul_i32 s{sM0B}, s{sW}, 5120')
    a('s_mul_i32 s11, s11, 40960')
    a(f's_add_u32 s11, s11, {XF_OFF}')
    a(f'v_add_u32 v10, 20480, v{vLN}')
    a(f'v_add_u32 v26, {L_RING}, v{vLN}')
    a(f'v_add_u32 v27, 61440, v{vLN}')

    def wphi_frags(WPF, wbase, zbase):
        a(f'v_mul_u32_u24 v22, 800, v{vG}')
        a(f'v_mul_u32_u24 v23, 40, v{vR}')
        a('v_add_u32 v22, v22, v23')
        a(f'v_add_u32 v22, {wbase}, v22')
        a(f'v_mov_b32 v23, {zbase}')
        a(f'v_cmp_eq_u32 vcc, v{vG}, v{vC}')
        a('v_cndmask_b32 v22, v23, v22, vcc')
        for t in range(5):
            for d4 in range(5):
                a(f'ds_read_b64_tr_b16 {V(WPF(t, d4 // 2) + 2 * (d4 % 2), 2)}, v22 offset:{4 * d4 * 40 + 8 * t}')

    Q = lambda k: 48 + 4 * k
    WPF = lambda t, ks: Q(2 * t + ks) if ks < 2 else Q(10 + t // 2) + 2 * (t % 2)
    a('s_barrier')
    wphi_frags(WPF, L_WPHI, L_ZERO)
    a.wait_lg0()
    a('s_barrier')
    flag_check(a, flag_issue(a, 20, 21), 20, 21)
    stamp(a, 'go')

    def xload(dst, ks, z):
        off = f' offset:{(ks % 4) * 1024}' if ks % 4 else ''
        t = a(f'buffer_load_dwordx4 {V(dst, 4)}, v{vLN if z == 0 else 10}, {S(sWS, 4)}, s11 offen{off} sc1')
        if ks % 4 == 3 and z == 1:
            a('s_add_u32 s11, s11, 4096')
        return t

    a(f's_cmp_lg_u32 s{sWH}, 0')
    a('s_cbranch_scc1 L_a_upper')
    at_split = a.save()
    a('s_setprio 2')
    AC = lambda k, z: Q(13 + 2 * k + z)
    XR = lambda ks, z: Q(33 + (ks % 6) * 2 + z)
    FW = lambda n: Q(45 + n % 7)
    xtok = {}
    for ks in range(5):
        for z in range(2):
            xtok[ks] = xload(XR(ks, z), ks, z)
    a('s_barrier')
    stamp(a, 'a0')
    WIN, NF = 6, 200
    ftok = {}

    def read_frag(n):
        d, r = divmod(n, 20)
        ftok[n] = a(f'ds_read_b128 {V(FW(n), 4)}, v26 offset:{(d % 3) * 20480 + r * 1024}')

    for n in range(WIN):
        read_frag(n)
    for n in range(NF):
        nn = n + WIN
        if nn < NF:
            if nn % 20 == 0:
                a.wait_lg0()
                a('s_barrier')
                if (nn // 20) % 3 == 0:
                    stamp(a, f'a{nn // 20}')
            read_frag(nn)
        ks, k = divmod(n, 10)
        a.wait(ftok[n], xtok[ks])
        for z in range(2):
            c = '0' if ks == 0 else V(AC(k, z), 4)
            a(f'v_mfma_f32_16x16x32_bf16 {V(AC(k, z), 4)}, {V(FW(n), 4)}, {V(XR(ks, z), 4)}, {c}')
        if k in (2, 6) and ks + 5 < 20:
            xtok[ks + 5] = xload(XR(ks + 5, k // 4), ks + 5, k // 4)
    a('s_barrier')
    stamp(a, 'aend')
    vSA, vKA, vKO = 8, 9, 12
    a(f's_lshl_b32 s4, s{sW}, 5')
    a(f'v_lshl_add_u32 v{vSA}, v{vG}, 7, v{vI}')
    a(f'v_add_u32 v{vSA}, s4, v{vSA}')
    a(f'v_mul_u32_u24 v{vSA}, 120, v{vSA}')
    a(f'v_add_u32 v{vSA}, {L_RING}, v{vSA}')
    for z in range(2):
        for t in range(5):
            r = AC(5 + t, z)
            a(f'v_cvt_pk_bf16_f32 v{r}, v{r}, v{r + 1}')
            a(f'v_cvt_pk_bf16_f32 v{r + 1}, v{r + 2}, v{r + 3}')
            a(f'ds_write_b64 v{vSA}, {V(r, 2)} offset:{z * 16 * 120 + 80 + 8 * t}')
    PK = [Q(33), Q(34), Q(35)]
    EN5 = [Q(36 + c) for c in range(5)]
    for z in range(2):
        E5 = [AC(t, z) for t in range(5)]
        P5 = [Q(41 + 5 * z + c) for c in range(5)]
        featmap(a, E5, PK, WPF, P5, E5, EN5, 32)
        for c in range(10):
            a(f'ds_write_b64 v{vSA}, {V(P5[c // 2] + 2 * (c % 2), 2)} offset:{z * 16 * 120 + 8 * c}')
    stamp(a, 'fm')
    a(f's_mul_i32 s4, s{sW}, {128 * 120}')
    a(f's_add_u32 s4, s4, {L_RING}')
    a(f'v_mul_u32_u24 v{vKA}, 120, v{vGR}')
    a(f'v_lshl_add_u32 v{vKA}, v{vC}, 3, v{vKA}')
    a(f'v_add_u32 v{vKA}, s4, v{vKA}')
    a(f's_lshl_b32 s4, s{sHG}, 2')
    a(f's_add_u32 s4, s4, s{sW}')
    a('s_lshl_b32 s4, s4, 4')
    a(f's_add_u32 s13, s4, s{sRB}')
    a('s_mul_i32 s4, s13, 6144')
    a(f's_add_u32 s4, s4, {KV_OFF}')
    a(f'v_lshl_add_u32 v{vKO}, v{vL}, 4, s4')
    a('s_movk_i32 s12, 0x1000')
    a(f'v_mov_b32 v11, {OOB}')
    a(f'v_cmp_gt_u32 vcc, 8, v{vI}')
    a(f'v_cndmask_b32 v{vKO + 1}, v11, v{vKO}, vcc')
    a(f'v_cmp_gt_u32 vcc, 2, v{vG}')
    a(f'v_cndmask_b32 v{vKO + 2}, v11, v{vKO}, vcc')
    a(f'v_cndmask_b32 v{vKO + 3}, v11, v{vKO + 1}, vcc')
    a(f's_lshl_b32 s13, s13, {FSH}')
    a(f's_add_u32 s10, s13, {FK_OFF}')
    a('v_mov_b32 v11, 0x3f803f80')
    a(f'v_cmp_eq_u32 vcc, 1, v{vR}')
    a.wait_lg0()
    a('s_barrier')
    ktok = {}
    OPQ = lambda kk, x: Q(13 + kk * 5 + x)
    KVA = [Q(k) for k in range(6)]

    def kv_read(kk):
        for x in range(5):
            col = 32 * x if x < 3 else 80 + 32 * (x - 3)
            a(f'ds_read_b64_tr_b16 {V(OPQ(kk, x), 2)}, v{vKA} offset:{kk * 32 * 120 + col}')
            ktok[kk] = a(f'ds_read_b64_tr_b16 {V(OPQ(kk, x) + 2, 2)}, v{vKA} offset:{kk * 32 * 120 + 16 * 120 + col}')

    kv_read(0)
    for kk in range(4):
        if kk + 1 < 4:
            kv_read(kk + 1)
        a.wait(ktok[kk])
        for j in range(4):
            a(f'v_cndmask_b32 v{OPQ(kk, 4) + j}, v{OPQ(kk, 4) + j}, v11, vcc')
        for et in range(2):
            for ft in range(3):
                d = V(KVA[ft * 2 + et], 4)
                a(f'v_mfma_f32_16x16x32_bf16 {d}, {V(OPQ(kk, 3 + et), 4)}, {V(OPQ(kk, ft), 4)}, {"0" if kk == 0 else d}')
    for ft in range(3):
        for et in range(2):
            vo = vKO + (1 if ft == 2 else 0) + (2 if et == 1 else 0)
            so = 's12' if ft == 2 else '0'
            a(f'buffer_store_dwordx4 {V(KVA[ft * 2 + et], 4)}, v{vo}, {S(sWS, 4)}, {so} offen offset:{(ft % 2) * 2048 + et * 1024} sc1')
    a.wait_vm0()
    flag_set(a, 10)
    a(f's_mov_b32 s10, {OOB}')
    if 'pfa' in EXP:
        a(f's_lshr_b32 s4, s{sID}, 3')
        a('s_lshl_b32 s4, s4, 2')
        a(f's_add_u32 s4, s4, s{sW}')
        a(f's_mul_i32 s5, s4, {27 * 4096}')
        a(f's_and_b32 s7, s{sID}, 7')
        a('s_lshl_b32 s7, s7, 9')
        a('s_add_u32 s5, s5, s7')
        a(f'v_lshrrev_b32 v24, 2, v{vL}')
        a('v_min_u32 v24, 13, v24')
        a('v_lshlrev_b32 v24, 12, v24')
        a(f'v_lshl_add_u32 v24, v{vC}, 7, v24')
        a('v_add_u32 v24, s5, v24')
        a(f'buffer_load_dword v37, v24, {S(sW2, 4)}, 0 offen')
        a(f'v_add_u32 v24, {13 * 4096}, v24')
        a(f'buffer_load_dword v37, v24, {S(sW2, 4)}, 0 offen')
    a('s_barrier')
    a('s_branch L_join')

    a.label('L_a_upper')
    a.restore(at_split)
    wtok = {}

    def dma5(so, lds):
        a(f's_add_u32 m0, s{sM0B}, {lds}')
        for q in range(4):
            off = f' offset:{q * 1024}' if q else ''
            a(f'buffer_load_dwordx4 v{vLN}, {S(sWS, 4)}, s{so} offen{off} sc1 lds')
        a(f's_add_u32 m0, s{sM0B}, {lds + 4096}')
        t = a(f'buffer_load_dwordx4 v{vLN + 1}, {S(sWS, 4)}, s{so} offen sc1 lds')
        a(f's_add_u32 s{so}, s{so}, 20480')
        return t

    NXR = 12
    XQ_ = lambda ks, z: Q(13 + (ks % NXR) * 2 + z)
    AQ = lambda t, z: Q(37 + 2 * t + z)
    FQ = lambda n: Q(47 + n % 5)
    xtok = {}
    for d in range(3):
        wtok[d] = dma5(10, L_RING + d * 20480)
    for d in range(10):
        a.wait(wtok[d])
        a('s_barrier')
        if 1 <= d and d + 2 < 10:
            wtok[d + 2] = dma5(10, L_RING + ((d + 2) % 3) * 20480)
        if d < 5:
            qtok = dma5(9, L_WQ + d * 20480)
        if 4 <= d < 10:
            for ks in (2 * (d - 4), 2 * (d - 4) + 1):
                for z in range(2):
                    xtok[ks] = xload(XQ_(ks, z), ks, z)
    a.wait(qtok)
    a('s_barrier')
    ftok = {}

    def read_q(n):
        off = n * 1024
        ftok[n] = a(f'ds_read_b128 {V(FQ(n), 4)}, v{vLN if off < 61440 else 27} offset:{off % 61440}')

    QBAR = int(os.environ.get('QBAR', '-1'))
    if QBAR < 0:
        a('s_barrier')
    for n in range(4):
        read_q(n)
    for n in range(100):
        if n + 4 < 100:
            read_q(n + 4)
        ks, t = divmod(n, 5)
        a.wait(ftok[n], xtok[ks])
        for z in range(2):
            c = '0' if ks == 0 else V(AQ(t, z), 4)
            a(f'v_mfma_f32_16x16x32_bf16 {V(AQ(t, z), 4)}, {V(FQ(n), 4)}, {V(XQ_(ks, z), 4)}, {c}')
        if t in (1, 3) and ks >= 1 and ks - 1 + NXR < 20:
            xtok[ks - 1 + NXR] = xload(XQ_(ks - 1 + NXR, t // 2), ks - 1 + NXR, t // 2)
        if n == QBAR:
            a('s_barrier')
    a('s_barrier')
    stamp(a, 'aend')
    PK = [Q(13), Q(14), Q(15)]
    EN5 = [Q(16 + c) for c in range(5)]
    PP = [[Q(21 + 5 * z + c) for c in range(5)] for z in range(2)]
    for z in range(2):
        E5 = [AQ(t, z) for t in range(5)]
        featmap(a, E5, PK, WPF, PP[z], E5, EN5, 32)
    stamp(a, 'fm')
    a('s_setprio 3')
    a(f's_mul_i32 s6, s{sW}, 10240')
    a(f's_add_u32 s6, s6, {L_RING}')
    a(f'v_lshlrev_b32 v31, 11, v{vG}')
    a(f'v_lshl_add_u32 v31, v{vR}, 3, v31')
    a('v_mov_b32 v21, 8192')
    a(f'v_cmp_eq_u32 vcc, v{vG}, v{vC}')
    a('v_cndmask_b32 v31, v21, v31, vcc')
    a('v_add_u32 v31, s6, v31')
    for k in range(4):
        a(f'v_mov_b32 v{44 + k}, 0')
    a(f'v_add_u32 v21, s6, v{vLN}')
    a('ds_write_b128 v21, v[44:47] offset:8192')
    a('ds_write_b128 v21, v[44:47] offset:9216')
    a(f's_lshl_b32 s4, s{sHG}, {4 + FSH}')
    a(f's_add_u32 s4, s4, {FR_OFF}')
    a(f'v_lshl_add_u32 v20, v{vI}, {FSH}, s4')
    a(f'v_lshlrev_b32 v8, 4, v{vL}')
    a('v_add_u32 v9, 4096, v8')
    a(f'v_lshlrev_b32 v10, 3, v{vL}')
    a(f's_lshl_b32 s5, s{sHG}, 13')
    a(f's_add_u32 s5, s5, {KB_OFF}')
    a(f's_lshl_b32 s7, s{sRB}, 1')
    a(f's_lshr_b32 s8, s{sW}, 1')
    a('s_add_u32 s7, s7, s8')
    a(f's_and_b32 s8, s{sW}, 1')
    a('s_lshl_b32 s8, s8, 1')
    a(f's_lshr_b32 s12, s{sHG}, 1')
    a('s_mul_i32 s12, s12, 5')
    a('s_mul_i32 s13, s7, 20')
    a('s_add_u32 s12, s12, s13')
    a('s_lshl_b32 s12, s12, 2')
    a('s_add_u32 s12, s12, s8')
    a('s_lshl_b32 s12, s12, 10')
    a(f's_add_u32 s12, s12, {OF_OFF}')
    a(f's_and_b32 s13, s{sHG}, 1')
    a(f's_mul_i32 s14, s13, {3 * 4096}')
    a('s_add_u32 s14, s14, s12')
    a('s_lshl_b32 s13, s13, 9')
    a('s_add_u32 s12, s12, s13')
    a(f's_add_u32 s12, s12, {2 * 4096}')
    a('s_lshl_b32 s13, s7, 3')
    a(f's_add_u32 s13, s13, s{sHG}')
    a('s_lshl_b32 s13, s13, 2')
    a('s_add_u32 s13, s13, s8')
    a(f's_lshl_b32 s13, s13, {FSH}')
    a(f's_add_u32 s13, s13, {FO_OFF}')
    flag_check(a, flag_issue(a, 20, 21), 20, 21, int(os.environ.get('RSLEEP', '8')))
    stamp(a, 'rok')
    for hh in range(2):
        a(f's_add_u32 m0, s6, {4096 * hh}')
        for q in range(4):
            off = f' offset:{q * 1024}' if q else ''
            a(f'buffer_load_dwordx4 v{8 + hh}, {S(sWS, 4)}, s5 offen{off} sc1 lds')
    a.wait_all()
    OA = [[Q(31 + k) for k in range(6)], [Q(37 + k) for k in range(6)]]
    KF = lambda ks, t: Q((ks % 2) * 6 + t)
    otok = {}

    def o_read(ks):
        for t in range(6):
            a(f'ds_read_b64_tr_b16 {V(KF(ks, t), 2)}, v31 offset:{kb_pos(8 * ks, t)}')
            otok[ks] = a(f'ds_read_b64_tr_b16 {V(KF(ks, t) + 2, 2)}, v31 offset:{kb_pos(8 * ks + 4, t)}')

    o_read(0)
    for ks in range(5):
        if ks + 1 < 5:
            o_read(ks + 1)
        a.wait(otok[ks])
        for z in range(2):
            for t in range(6):
                d = V(OA[z][t], 4)
                a(f'v_mfma_f32_16x16x32_bf16 {d}, {V(KF(ks, t), 4)}, {V(PP[z][ks], 4)}, {"0" if ks == 0 else d}')
    for z in range(2):
        O = OA[z]
        PO = PK if z == 0 else [Q(16), Q(17), Q(18)]
        a(f'v_add_f32 v{O[5]}, {fbits(1e-6)}, v{O[5]}')
        a(f'v_rcp_f32 v{O[5]}, v{O[5]}')
        for t in range(5):
            for h in range(2):
                a(f'v_pk_mul_f32 {V(O[t] + 2 * h, 2)}, {V(O[t] + 2 * h, 2)}, {V(O[5], 2)} op_sel_hi:[1,0]')
        for k in range(10):
            t, j = divmod(2 * k, 4)
            a(f'v_cvt_pk_bf16_f32 v{PO[k // 4] + k % 4}, v{O[t] + j}, v{O[t] + j + 1}')
        off = f' offset:{1024 * z}' if z else ''
        a(f'buffer_store_dwordx4 {V(PO[0], 4)}, v8, {S(sWS, 4)}, s14 offen{off} sc1')
        a(f'buffer_store_dwordx4 {V(PO[1], 4)}, v9, {S(sWS, 4)}, s14 offen{off} sc1')
        a(f'buffer_store_dwordx2 {V(PO[2], 2)}, v10, {S(sWS, 4)}, s12 offen{off} sc1')
    a.wait_vm0()
    flag_set(a, 13)
    a(f's_cmp_lg_u32 s{sID}, 0')
    a('s_cbranch_scc1 L_a_done')
    a(f's_cmp_lg_u32 s{sW}, 3')
    a('s_cbranch_scc1 L_a_done')
    a(f'v_and_b32 v20, 31, v{vL}')
    a('v_min_u32 v20, 26, v20')
    a(f'v_and_b32 v21, 32, v{vL}')
    a('v_add_u32 v20, v20, v21')
    a(f'v_lshlrev_b32 v20, {FSH + 2}, v20')
    for k in range(4):
        a(f'v_add_u32 v22, {FG_OFF + (k * 256 << FSH)}, v20')
        flag_check(a, flag_issue(a, 22, 21), 22, 21, 12)
    a(f'v_lshlrev_b32 v20, {FSH}, v{vL}')
    for base in (FR_OFF, FR_OFF + (64 << FSH)):
        a(f'v_add_u32 v22, {base}, v20')
        flag_check(a, flag_issue(a, 22, 21), 22, 21, 12)
    a(f'v_and_b32 v20, 31, v{vL}')
    a(f'v_lshlrev_b32 v20, {FSH}, v20')
    a(f'v_add_u32 v22, {FW_OFF}, v20')
    flag_check(a, flag_issue(a, 22, 21), 22, 21, 12)
    a(f's_mov_b32 s10, {EP_OFF}')
    flag_set(a, 10)
    a.label('L_a_done')
    stamp_flush(a, 'end')
    a('s_endpgm')


def role_b(a):
    if 'map4' in EXP:
        a(f's_lshr_b32 s{sBCB}, s6, 2')
        a('s_and_b32 s9, s6, 3')
        a('s_lshl_b32 s6, s9, 1')
    else:
        a('s_cmp_ge_u32 s6, 54')
        a('s_cselect_b32 s7, 54, 0')
        a('s_cselect_b32 s8, 4, 0')
        a('s_sub_u32 s6, s6, s7')
        a(f's_lshr_b32 s{sBCB}, s6, 1')
        a('s_and_b32 s9, s6, 1')
        a('s_lshl_b32 s6, s9, 1')
        a('s_add_u32 s6, s6, s8')
    PR = 24 if 'map4' in EXP else 48
    a(f's_add_u32 s{sBDB}, s6, s{sWH}')
    srd(a, sW1, P_W1, S_ * F_ * 2)
    g_common(a)
    gB = GGemm(a, 'B')
    gB.setup()
    BPRE = int(os.environ.get('BPRE', '10'))
    if 'g1lin' in EXP:
        a(f's_lshl_b32 s4, s{sBCB}, 2')
        a('s_add_u32 s4, s4, s9')
        a('s_lshl_b32 s4, s4, 3')
        a(f's_add_u32 s4, s4, s{sW8}')
        a('s_lshl_b32 s4, s4, 13')
        a(f'v_lshl_add_u32 v24, v{vL}, 7, s4')
        a(f'buffer_load_dword v37, v24, {S(sW1, 4)}, 0 offen')
        if 'g1wait' in EXP:
            a.wait_vm0()
    if 'g1first' in EXP:
        a('s_lshl_b32 s4, s9, 1')
        a(f's_add_u32 s4, s4, s{sWH}')
        a(f's_lshl_b32 s5, s{sW}, 9')
        a('s_add_u32 s4, s4, s5')
        a(f's_mul_i32 s4, s4, {F_ * 2}')
        a(f's_lshl_b32 s5, s{sBCB}, 7')
        a('s_add_u32 s4, s4, s5')
        a(f'v_mul_u32_u24 v24, {8 * F_ * 2}, v{vL}')
        a('v_add_u32 v24, s4, v24')
        a(f'buffer_load_dword v37, v24, {S(sW1, 4)}, 0 offen')
    for j in range(BPRE):
        Hooks(gB.dma_items(j)).flush()

    def b_extra(j):
        return []

    a('s_lshl_b32 s4, s9, 1')
    a(f's_add_u32 s4, s4, s{sWH}')
    a(f's_mul_i32 s4, s4, {PR}')
    a(f's_lshl_b32 s5, s{sW}, 9')
    a('s_add_u32 s4, s4, s5')
    a(f's_add_u32 s4, s4, {32 * B_P}')
    a(f's_mul_i32 s4, s4, {F_ * 2}')
    a(f's_lshl_b32 s5, s{sBCB}, 7')
    a('s_add_u32 s4, s4, s5')
    a(f'v_min_u32 v24, {PR - 1}, v{vL}')
    a(f'v_mul_u32_u24 v24, {F_ * 2}, v24')
    a('v_add_u32 v24, s4, v24')
    if 'g1first' not in EXP and 'nog1' not in EXP:
        a(f'buffer_load_dword v37, v24, {S(sW1, 4)}, 0 offen')
    srd(a, sAUX, P_B1, F_ * 2)
    a(f's_lshl_b32 s4, s{sBCB}, 7')
    a(f's_lshl_b32 s5, s{sW}, 5')
    a('s_add_u32 s4, s4, s5')
    a(f'v_lshl_add_u32 v24, v{vG}, 3, s4')
    a(f'buffer_load_dwordx2 v[38:39], v24, {S(sAUX, 4)}, 0 offen')
    tag_ready(a)
    a('s_barrier')
    stamp(a, 'prep')
    a(f's_cmp_lg_u32 s{sWH}, 0')
    a('s_cbranch_scc1 L_b_go')
    flag_check(a, flag_issue(a, vFL, vFD), vFL, vFD, 3)
    a.label('L_b_go')
    a.wait_vm0()
    a('s_barrier')
    stamp(a, 'go')
    Hooks(gB.frag_items(int(os.environ.get('FIRSTB', '25')))).flush()
    for j in range(BPRE, B_P):
        Hooks(gB.dma_items(j)).flush()

    if 'cinit' in EXP:
        for t in range(5):
            a(f'v_lshlrev_b32 v{ACC(t, 0)}, 16, v38')
            a(f'v_and_b32 v{ACC(t, 0) + 1}, 0xffff0000, v38')
            a(f'v_lshlrev_b32 v{ACC(t, 0) + 2}, 16, v39')
            a(f'v_and_b32 v{ACC(t, 0) + 3}, 0xffff0000, v39')
    gB.mainloop(b_extra)
    stamp(a, 'Bend')
    gB.reduce()
    R = lambda t, j: ACC(t, 0) + j
    T = lambda t, j: ACC(t, 1) + j
    a('v_lshlrev_b32 v34, 16, v38')
    a('v_and_b32 v35, 0xffff0000, v38')
    a('v_lshlrev_b32 v36, 16, v39')
    a('v_and_b32 v37, 0xffff0000, v39')
    c0 = 0.7978845608028654
    k1 = -2.0 * c0 * LOG2E
    k2 = k1 * 0.044715
    a(f's_mov_b32 s4, {fbits(k2)}')
    a(f's_mov_b32 s5, {fbits(k2)}')
    a(f'v_mov_b32 v24, {fbits(k1)}')
    a('v_mov_b32 v26, 1.0')
    th = [(t, h) for t in range(5) for h in range(2)]
    tj = [(t, j) for t in range(5) for j in range(4)]
    for t, h in ([] if 'cinit' in EXP else th):
        a(f'v_pk_add_f32 {V(R(t, 2 * h), 2)}, {V(R(t, 2 * h), 2)}, {V(34 + 2 * h, 2)}')
    for t, h in th:
        a(f'v_pk_mul_f32 {V(T(t, 2 * h), 2)}, {V(R(t, 2 * h), 2)}, {V(R(t, 2 * h), 2)}')
    for t, h in th:
        a(f'v_pk_fma_f32 {V(T(t, 2 * h), 2)}, {V(T(t, 2 * h), 2)}, s[4:5], v[24:25] op_sel_hi:[1,0,0]')
    for t, h in th:
        a(f'v_pk_mul_f32 {V(T(t, 2 * h), 2)}, {V(T(t, 2 * h), 2)}, {V(R(t, 2 * h), 2)}')
    for t, j in tj:
        a(f'v_exp_f32 v{T(t, j)}, v{T(t, j)}')
    for t, h in th:
        a(f'v_pk_add_f32 {V(T(t, 2 * h), 2)}, {V(T(t, 2 * h), 2)}, v[26:27] op_sel_hi:[1,0]')
    for t, j in tj:
        a(f'v_rcp_f32 v{T(t, j)}, v{T(t, j)}')
    for t, h in th:
        a(f'v_pk_mul_f32 {V(T(t, 2 * h), 2)}, {V(T(t, 2 * h), 2)}, {V(R(t, 2 * h), 2)}')
    a(f's_mul_i32 s4, s{sW8}, 2560')
    a('s_add_u32 s4, s4, 81920')
    a(f'v_lshl_add_u32 v24, v{vL}, 3, s4')
    for t in range(5):
        a(f'v_cvt_pk_bf16_f32 v{R(t, 0)}, v{T(t, 0)}, v{T(t, 1)}')
        a(f'v_cvt_pk_bf16_f32 v{R(t, 1)}, v{T(t, 2)}, v{T(t, 3)}')
        a(f'ds_write_b64 v24, {V(R(t, 0), 2)} offset:{t * 512}')
    a(f's_mul_i32 s4, s{sBDB}, 74')
    a(f's_lshl_b32 s5, s{sBCB}, 1')
    a('s_add_u32 s4, s4, s5')
    a('s_mul_i32 s4, s4, 5120')
    a(f's_add_u32 s15, s4, {GF_OFF}')
    a(f's_mul_i32 s4, s{sWH}, 10240')
    a('s_add_u32 s4, s4, 81920')
    a(f'v_lshl_add_u32 v25, v{vL}, 3, s4')
    a.wait_lg0()
    a('s_barrier')
    gt = []
    for m in range(3):
        frag10_addr(a, m, 2 * 2560 - 5 * 512, 512, 15, 24, 25, 34 + m)
        a(f'ds_read_b64 {V(ACC(m, 2), 2)}, v24')
        gt.append(a(f'ds_read_b64 {V(ACC(m, 2) + 2, 2)}, v24 offset:2560'))
    for m in range(3):
        a.wait(gt[m])
        a(f'buffer_store_dwordx4 {V(ACC(m, 2), 4)}, v{34 + m}, {S(sWS, 4)}, 0 offen sc1')
    a(f's_lshl_b32 s4, s{sBDB}, 5')
    a(f's_add_u32 s4, s4, s{sBCB}')
    a('s_lshl_b32 s4, s4, 2')
    a(f's_add_u32 s4, s4, s{sW}')
    a(f's_lshl_b32 s4, s4, {FSH}')
    a(f's_add_u32 s10, s4, {FG_OFF}')
    a('s_branch L_join')


def role_r(a):
    a('s_lshl_b32 s11, s6, 1')
    a(f's_add_u32 s11, s11, s{sWH}')
    a('s_lshr_b32 s8, s6, 3')
    a('s_lshl_b32 s8, s8, 3')
    a(f's_add_u32 s8, s8, s{sW8}')
    a('s_getpc_b64 s[6:7]')
    a.raw('L_pc:')
    a(f's_sub_u32 s{sAUX}, s6, L_pc - L_start')
    a('s_subb_u32 s7, s7, 0')
    a(f's_and_b32 s{sAUX + 1}, s7, 0xffff')
    a(f's_mov_b32 s{sAUX + 2}, L_end - L_start')
    a(f's_mov_b32 s{sAUX + 3}, 0x20000')
    a('s_lshl_b32 s6, s8, 13')
    a(f'v_lshl_add_u32 v25, v{vL}, 7, s6')
    if 'nocpf' not in EXP:
        a(f'buffer_load_dword v37, v25, {S(sAUX, 4)}, 0 offen')
    if 'notlb' not in EXP:
        a(f's_lshl_b32 s5, s8, 6')
        a(f'v_add_u32 v26, s5, v{vL}')
        a(f'v_mul_u32_u24 v27, {(WS_USED // 1024 + 127) // 128 * 128}, v26')
        a(f'buffer_load_dword v37, v27, {S(sWS, 4)}, 0 offen sc1')
        a('v_lshlrev_b32 v27, 13, v26')
        a(f'buffer_load_dword v37, v27, {S(sW2, 4)}, 0 offen')
        srd(a, sOUT, P_OUT, S_ * D_ * 2)
        a('v_lshlrev_b32 v27, 12, v26')
        a(f'buffer_load_dword v37, v27, {S(sOUT, 4)}, 0 offen sc1')
        srd(a, sAUX, P_B2, S_ * 2)
        a(f'buffer_load_dword v37, v27, {S(sAUX, 4)}, 0 offen')
    if 'wqlin' in EXP:
        srd(a, sWQ, P_WQKV, D_ * 3 * D_ * 2)
        a(f's_sub_u32 s5, s{sID}, 240')
        a('s_lshl_b32 s5, s5, 3')
        a(f's_add_u32 s5, s5, s{sW8}')
        a('s_mul_i32 s5, s5, 24576')
        a(f'v_lshl_add_u32 v26, v{vL}, 7, s5')
        for k in range(3):
            a(f'buffer_load_dword v37, v26, {S(sWQ, 4)}, 0 offen')
            a('v_add_u32 v26, 8192, v26')
    if 'w2lin' in EXP:
        a(f's_sub_u32 s5, s{sID}, 240')
        a('s_lshl_b32 s5, s5, 3')
        a(f's_add_u32 s5, s5, s{sW8}')
        a('s_lshl_b32 s5, s5, 13')
        a(f'v_lshl_add_u32 v38, v{vL}, 7, s5')
    if 'g2map8' in EXP:
        a(f's_mul_i32 s5, s8, {108 * 4096}')
        a(f's_and_b32 s7, s{sID}, 7')
        a('s_lshl_b32 s7, s7, 9')
        a('s_add_u32 s5, s5, s7')
        a(f'v_lshrrev_b32 v24, 2, v{vL}')
        a('v_lshlrev_b32 v24, 12, v24')
        a(f'v_lshl_add_u32 v24, v{vC}, 7, v24')
        a('v_add_u32 v24, s5, v24')
    else:
        a('s_mul_i32 s5, s8, 54')
        a(f's_and_b32 s7, s{sID}, 1')
        a('s_mul_i32 s7, s7, 864')
        a('s_add_u32 s5, s5, s7')
        a('s_lshl_b32 s5, s5, 12')
        a(f's_and_b32 s7, s{sID}, 6')
        a('s_lshl_b32 s7, s7, 9')
        a('s_add_u32 s5, s5, s7')
        a(f'v_lshrrev_b32 v24, 3, v{vL}')
        a(f'v_and_b32 v25, 7, v{vL}')
        a('v_lshlrev_b32 v24, 12, v24')
        a('v_lshl_add_u32 v24, v25, 7, v24')
        a('v_add_u32 v24, s5, v24')
    tag_ready(a)
    a(f'v_mov_b32 v{vFL}, {FH_OFF}')
    if 'pf2now' not in EXP:
        flag_check(a, flag_issue(a, vFL, vFD), vFL, vFD, 16)
    PFA = int(os.environ.get('PFA', '0'))
    a('v_mov_b32 v36, v38' if 'w2lin' in EXP else 'v_mov_b32 v36, v24')
    for k in range(PFA):
        a(f'buffer_load_dword v37, v36, {S(sW2, 4)}, 0 offen')
        a(f'v_add_u32 v36, {(16 if "g2map8" in EXP else 8) * 4096}, v36')
        if k % 2 == 1 and 'pf2fast' not in EXP:
            a.wait_vm0()
    stamp(a, 'prep')
    a('s_setprio 3')
    a(f's_lshl_b32 s4, s11, {4 + FSH}')
    a(f's_add_u32 s4, s4, {FK_OFF}')
    a(f'v_lshl_add_u32 v{vFL}, v{vI}, {FSH}, s4')
    a(f's_lshl_b32 s5, s{sW}, 11')
    a(f'v_lshl_add_u32 v24, v{vL}, 4, s5')
    a(f'v_lshrrev_b32 v25, 5, v{vL}')
    a(f'v_and_b32 v26, 31, v{vL}')
    a('v_lshlrev_b32 v26, 4, v26')
    a('v_lshl_add_u32 v25, v25, 11, v26')
    a('v_add_u32 v25, 1024, v25')
    a(f's_cmp_eq_u32 s{sW}, 2')
    a('s_cselect_b64 vcc, -1, 0')
    a('v_cndmask_b32 v24, v24, v25, vcc')
    a(f'v_lshrrev_b32 v25, 3, v{vL}')
    a(f'v_and_b32 v26, 7, v{vL}')
    a('v_lshlrev_b32 v26, 4, v26')
    a('v_lshl_add_u32 v25, v25, 8, v26')
    a('v_add_u32 v25, 4096, v25')
    a(f's_cmp_eq_u32 s{sW}, 3')
    a('s_cselect_b64 vcc, -1, 0')
    a('v_cndmask_b32 v24, v24, v25, vcc')
    a(f's_mul_i32 s4, s11, {16 * 6144}')
    a(f's_add_u32 s4, s4, {KV_OFF}')
    flag_check(a, flag_issue(a, vFL, vFD), vFL, vFD, int(os.environ.get('KSLEEP', '4')))
    stamp(a, 'hok')
    stok = []
    for rb in range(16):
        stok.append(a(f'buffer_load_dwordx4 {V(128 + 4 * rb, 4)}, v24, {S(sWS, 4)}, s4 offen sc1'))
        a('s_add_u32 s4, s4, 6144')
    for rb in range(1, 16):
        a.wait(stok[rb])
        for h in range(2):
            a(f'v_pk_add_f32 {V(128 + 2 * h, 2)}, {V(128 + 2 * h, 2)}, {V(128 + 4 * rb + 2 * h, 2)}')
    stamp(a, 'rsum')
    a('v_cvt_pk_bf16_f32 v34, v128, v129')
    a('v_cvt_pk_bf16_f32 v35, v130, v131')
    a('s_lshl_b32 s4, s11, 11')
    a(f's_add_u32 s4, s4, {KB_OFF}')
    a(f'v_lshl_add_u32 v24, v{vTH}, 3, s4')
    a(f'buffer_store_dwordx2 v[34:35], v24, {S(sWS, 4)}, 0 offen sc1')
    a('s_lshl_b32 s4, s11, 2')
    a(f's_add_u32 s4, s4, s{sW}')
    a(f's_lshl_b32 s4, s4, {FSH}')
    a(f's_add_u32 s10, s4, {FR_OFF}')
    a.wait_vm0()
    flag_set(a, 10)
    a(f's_mov_b32 s10, {OOB}')
    stamp(a, 'rpub')
    a('s_barrier')
    for k in range(PFA, 0 if 'nopf2' in EXP else 7):
        a(f'buffer_load_dword v37, v36, {S(sW2, 4)}, 0 offen')
        a(f'v_add_u32 v36, {8 * 4096}, v36')
    a('s_branch L_join')


def role_wot(a):
    a('s_lshl_b32 s11, s6, 1')
    a(f's_add_u32 s11, s11, s{sWH}')
    srd(a, sAUX, P_WO, D_ * D_ * 2)
    a(f'v_lshlrev_b32 v{vF}, 4, v{vL}')
    a(f'v_add_u32 v{vF + 1}, 4096, v{vF}')
    tag_ready(a)
    if 'wotlate' in EXP:
        a(f'v_mov_b32 v{vFL}, {FH_OFF}')
        flag_check(a, flag_issue(a, vFL, vFD), vFL, vFD, 16)
    dma160_voffs(a, 34, 1280, False, 24)
    a('s_mul_i32 s4, s11, 160')
    a(f's_mul_i32 s5, s{sW}, {160 * 1280}')
    a('s_add_u32 s7, s4, s5')
    a(f's_mul_i32 s6, s{sW8}, 20480')
    a(f'v_mul_u32_u24 v24, 20, v{vG}')
    a(f'v_add_u32 v24, v24, v{vR}')
    a('v_mul_u32_u24 v24, 160, v24')
    a(f'v_mul_u32_u24 v25, 40, v{vC}')
    a('v_add_u32 v24, v24, v25')
    a('v_add_u32 v24, s6, v24')
    a('s_mul_i32 s4, s11, 74')
    a(f's_mul_i32 s5, s{sW}, 5')
    a('s_add_u32 s4, s4, s5')
    a('s_add_u32 s4, s4, 54')
    a('s_mul_i32 s4, s4, 5120')
    a(f's_add_u32 s4, s4, {GF_OFF}')
    rounds = [[(0, 0, 0), (0, 1, 4), (1, 0, 8), (1, 1, 12), (2, 0, 16)],
              [(2, 1, 16), (3, 0, 0), (3, 1, 4), (4, 0, 8), (4, 1, 12)]]
    for rd in range(2):
        for k in range(3):
            a(f's_add_u32 s8, s7, {(rd * 80 + k * 32) * 1280}')
            dma160(a, 34, sAUX, 8, 6, k * 5120)
        a.wait_vm0()
        for u, hf, row in rounds[rd]:
            for t in range(5):
                a(f'ds_read_b64_tr_b16 {V(156 + (u * 5 + t) * 4 + 2 * hf, 2)}, v24 offset:{row * 160 + 8 * t}')
            a.wait_lg0()
    for u in range(5):
        for t in range(5):
            vo, off = (vF, t * 1024) if t < 4 else (vF + 1, 0)
            a(f'buffer_store_dwordx4 {V(156 + (u * 5 + t) * 4, 4)}, v{vo}, {S(sWS, 4)}, s4 offen offset:{off} sc1')
        a('s_add_u32 s4, s4, 5120')
    a('s_lshl_b32 s4, s11, 2')
    a(f's_add_u32 s4, s4, s{sW}')
    a(f's_lshl_b32 s4, s4, {FSH}')
    a(f's_add_u32 s10, s4, {FW_OFF}')
    a('s_barrier')


def final_gemm(a):
    g2 = GGemm(a, 'G2')
    if 'early_setup' in EXP:
        xcd_tile(a)
        g_common(a)
        g2.setup()
    a.wait_all()
    flag_set(a, 10)
    stamp(a, 'pub')
    a('s_setprio 0')
    a(f's_cmp_lg_u32 s{sWH}, 0')
    a('s_cbranch_scc1 L_fin')
    if 'early_setup' not in EXP:
        xcd_tile(a)
        g_common(a)
        g2.setup()
    if 'cinit' in EXP:
        srd(a, sAUX, P_B2, S_ * 2)
        a(f'v_mul_u32_u24 v{vXA}, 1280, v{vTOK}')
        a(f'v_mul_u32_u24 v{vBA}, 40, v{vG}')
        a(f's_mul_i32 s4, s{sHG}, 160')
        a(f'v_add3_u32 v{vXA}, v{vXA}, v{vBA}, s4')
        a(f'v_lshlrev_b32 v{vBA}, 1, v{vTOK}')
        XI = ACC(0, 1)
        a(f'buffer_load_ushort v36, v{vBA}, {S(sAUX, 4)}, 0 offen')
        a(f'buffer_load_dwordx4 {V(XI, 4)}, v{vXA}, {S(sX, 4)}, 0 offen')
        a(f'buffer_load_dwordx4 {V(XI + 4, 4)}, v{vXA}, {S(sX, 4)}, 0 offen offset:16')
        xin = a(f'buffer_load_dwordx2 {V(XI + 8, 2)}, v{vXA}, {S(sX, 4)}, 0 offen offset:32')
    for j in range(G2_P):
        Hooks(g2.dma_items(j)).flush()
    srd(a, sOUT, P_OUT, S_ * D_ * 2)
    R = lambda t, j: ACC(t, 0) + j
    T = lambda t, j: ACC(t, 1) + j
    srd(a, sAUX, P_B2, S_ * 2)
    a(f's_lshl_b32 s4, s{sRB}, {5 + FSH}')
    a(f's_lshl_b32 s5, s{sW}, {3 + FSH}')
    a('s_add_u32 s4, s4, s5')
    a(f's_add_u32 s4, s4, {FO_OFF}')
    a(f'v_lshl_add_u32 v34, v{vC}, {FSH + 1}, s4')
    a(f's_lshl_b32 s4, s{sHG}, 2')
    a(f's_add_u32 s4, s4, s{sW}')
    a(f's_lshl_b32 s4, s4, {FSH}')
    a(f's_add_u32 s4, s4, {FW_OFF}')
    a('v_mov_b32 v35, s4')
    a(f'v_cmp_gt_u32 vcc, 63, v{vL}')
    a(f'v_cndmask_b32 v{vFL}, v35, v{vFL}, vcc')
    for nt in range(4):
        a(f's_xor_b32 s4, s{sW}, {nt}')
        a('s_lshl_b32 s4, s4, 10')
        a(f'v_add_u32 v{vOF + nt}, s4, v{vF}')
    a(f's_mul_i32 s4, s{sRB}, 20')
    a(f's_mul_i32 s5, s{sW}, 5')
    a('s_add_u32 s4, s4, s5')
    a('s_lshl_b32 s4, s4, 12')
    a(f's_add_u32 s11, s4, {OF_OFF}')
    a(f'v_mul_u32_u24 v{vXA}, 1280, v{vTOK}')
    a(f'v_mul_u32_u24 v{vBA}, 40, v{vG}')
    a(f'v_add_u32 v{vXA}, v{vXA}, v{vBA}')
    a(f's_mul_i32 s4, s{sHG}, 160')
    a(f'v_add_u32 v{vXA}, s4, v{vXA}')
    a(f'v_lshlrev_b32 v{vBA}, 1, v{vTOK}')
    if 'outlds' in EXP:
        a(f's_lshl_b32 s5, s{sRB}, 2')
        a(f's_add_u32 s5, s5, s{sW}')
        a(f's_mul_i32 s5, s5, {16 * 1280}')
        a('s_add_u32 s4, s4, s5')
        for m in range(3):
            a(f'v_add_u32 v24, {64 * m}, v{vL}')
            a('v_mul_u32_u24 v25, 6554, v24')
            a('v_lshrrev_b32 v25, 16, v25')
            a(f'v_mul_u32_u24 v25, {1280 - 160}, v25')
            a('v_lshl_add_u32 v25, v24, 4, v25')
            a(f'v_add_u32 v{37 + m}, s4, v25')
        a(f'v_mov_b32 v24, {OOB}')
        a(f'v_cmp_gt_u32 vcc, 32, v{vL}')
        a('v_cndmask_b32 v39, v24, v39, vcc')
    flag_check(a, flag_issue(a, vFL, vFD), vFL, vFD, int(os.environ.get('GSLEEP', '2')))
    stamp(a, 'gok')
    fl = {}

    def gate():
        a(f's_mul_i32 s4, s{sHG}, 74')
        a(f's_mul_i32 s5, s{sW}, 5')
        a('s_add_u32 s4, s4, s5')
        a('s_add_u32 s4, s4, 54')
        a('s_mul_i32 s4, s4, 5120')
        a(f's_add_u32 s{sFS}, s4, {GF_OFF}')

    def gate2():
        stamp(a, 'oa')
        flag_check(a, fl['o'], 34, 35)
        stamp(a, 'ob')

    g2.gate = gate
    g2.gate2 = gate2
    XR = [8, 10, 14, 16, 18]

    def g2_extra(j):
        it = []
        if j == 9:
            def fo():
                fl['o'] = flag_issue(a, 34, 35)
            it.append(fo)
        if j == int(os.environ.get('JRES', '12')) and 'cinit' not in EXP:
            def resid():
                a(f'buffer_load_ushort v36, v{vBA}, {S(sAUX, 4)}, 0 offen')
                if 'inx4' in EXP:
                    a(f'buffer_load_dwordx4 v[8:11], v{vXA}, {S(sX, 4)}, 0 offen')
                    a(f'buffer_load_dwordx4 v[14:17], v{vXA}, {S(sX, 4)}, 0 offen offset:16')
                    fl['x'] = a(f'buffer_load_dwordx2 v[18:19], v{vXA}, {S(sX, 4)}, 0 offen offset:32')
                    return
                for t in range(5):
                    fl['x'] = a(f'buffer_load_dwordx2 {V(XR[t], 2)}, v{vXA}, {S(sX, 4)}, 0 offen offset:{8 * t}')
            it.append(resid)
        return it

    Hooks(g2.frag_items(int(os.environ.get('FIRSTG', '25')))).flush()
    if 'cinit' in EXP:
        a.wait(xin)
        a('v_lshlrev_b32 v36, 16, v36')
        for k in range(10):
            r = ACC(0, 0) + 2 * k
            a(f'v_lshlrev_b32 v{r}, 16, v{XI + k}')
            a(f'v_and_b32 v{r + 1}, 0xffff0000, v{XI + k}')
            a(f'v_pk_add_f32 {V(r, 2)}, {V(r, 2)}, v[36:37] op_sel_hi:[1,0]')
    g2.mainloop(g2_extra)
    stamp(a, 'Gend')
    g2.reduce()
    if 'cinit' not in EXP:
        a.wait(fl['x'])
        a('v_lshlrev_b32 v36, 16, v36')
    if 'outlds' in EXP:
        a(f's_mul_i32 s4, s{sW}, 3072')
        a('s_add_u32 s4, s4, 61440')
        a(f'v_mul_u32_u24 v24, 160, v{vI}')
        a(f'v_mul_u32_u24 v25, 40, v{vG}')
        a('v_add3_u32 v24, v24, v25, s4')
        a(f'v_add_u32 v25, s4, v{vF}')
    for t in range(5):
        for h in range(0 if 'cinit' in EXP else 2):
            a(f'v_lshlrev_b32 v{T(t, 2 * h)}, 16, v{XR[t] + h}')
            a(f'v_and_b32 v{T(t, 2 * h + 1)}, 0xffff0000, v{XR[t] + h}')
            a(f'v_pk_add_f32 {V(R(t, 2 * h), 2)}, {V(R(t, 2 * h), 2)}, v[36:37] op_sel_hi:[1,0]')
            a(f'v_pk_add_f32 {V(R(t, 2 * h), 2)}, {V(R(t, 2 * h), 2)}, {V(T(t, 2 * h), 2)}')
        OF_ = os.environ.get('OUTF', '')
        if 'outlds' in EXP:
            a(f'v_cvt_pk_bf16_f32 v{R(t, 0)}, v{R(t, 0)}, v{R(t, 1)}')
            a(f'v_cvt_pk_bf16_f32 v{R(t, 1)}, v{R(t, 2)}, v{R(t, 3)}')
            a(f'ds_write_b64 v24, {V(R(t, 0), 2)} offset:{8 * t}')
            if t == 4:
                rt = [a(f'ds_read_b128 {V(ACC(m, 2), 4)}, v25 offset:{1024 * m}') for m in range(3)]
                for m in range(3):
                    a.wait(rt[m])
                    a(f'buffer_store_dwordx4 {V(ACC(m, 2), 4)}, v{37 + m}, {S(sOUT, 4)}, 0 offen{OF_}')
            continue
        if 'outx4' in EXP:
            d = ACC(0, 2) + 2 * t
            a(f'v_cvt_pk_bf16_f32 v{d}, v{R(t, 0)}, v{R(t, 1)}')
            a(f'v_cvt_pk_bf16_f32 v{d + 1}, v{R(t, 2)}, v{R(t, 3)}')
            if t in (1, 3):
                a(f'buffer_store_dwordx4 {V(d - 2, 4)}, v{vXA}, {S(sOUT, 4)}, 0 offen offset:{8 * (t - 1)}{OF_}')
            if t == 4:
                a(f'buffer_store_dwordx2 {V(d, 2)}, v{vXA}, {S(sOUT, 4)}, 0 offen offset:32{OF_}')
            continue
        a(f'v_cvt_pk_bf16_f32 v{R(t, 0)}, v{R(t, 0)}, v{R(t, 1)}')
        a(f'v_cvt_pk_bf16_f32 v{R(t, 1)}, v{R(t, 2)}, v{R(t, 3)}')
        a(f'buffer_store_dwordx2 {V(R(t, 0), 2)}, v{vXA}, {S(sOUT, 4)}, 0 offen offset:{8 * t}{OF_}')
    a.label('L_fin')
    stamp_flush(a, 'end')


def build():
    a = Asm()
    hdr = open(os.path.join(os.path.dirname(__file__), '..', 'cdna_kernels', NAME + '.s.ref')).read().split('\n')
    for line in hdr:
        if line.startswith(';') and '@launch' not in line:
            a.raw(line)
    a.raw(f'; @launch grid=(256,1,1) block=(512,1,1) lds={LDS_BYTES}')
    a.raw('.amdgcn_target "amdgcn-amd-amdhsa--gfx950"')
    a.raw('.text')
    K = NAME + '_kernel'
    a.raw(f'.globl {K}')
    a.raw('.p2align 8')
    a.raw(f'.type {K},@function')
    a.raw(f'{K}:')
    a.raw('L_start:')
    a('s_cmp_ge_u32 s2, 256')
    a('s_cbranch_scc1 L_end')
    a('s_load_dwordx16 s[16:31], s[0:1], 0')
    a('s_load_dwordx8 s[32:39], s[0:1], 64')
    a(f'v_and_b32 v{vL}, 63, v0')
    a('v_lshrrev_b32 v6, 6, v0')
    a(f'v_readfirstlane_b32 s{sW8}, v6')
    a(f'v_lshrrev_b32 v{vG}, 4, v{vL}')
    a(f'v_and_b32 v{vI}, 15, v{vL}')
    a(f'v_lshrrev_b32 v{vR}, 2, v{vI}')
    a(f'v_and_b32 v{vC}, 3, v{vL}')
    a(f'v_lshl_add_u32 v{vGR}, v{vG}, 2, v{vR}')
    a(f'v_and_b32 v{vTH}, 255, v0')
    a(f's_and_b32 s{sW}, s{sW8}, 3')
    a(f's_lshr_b32 s{sWH}, s{sW8}, 2')
    a(f's_mov_b32 s{sID}, s2')
    a('s_waitcnt lgkmcnt(0)')
    a(f's_add_u32 s4, s{P_WS}, {EP_OFF}')
    a(f's_addc_u32 s5, s{P_WS + 1}, 0')
    a(f's_load_dword s{sTAG}, s[4:5], 0')
    srd(a, sX, P_X, S_ * D_ * 2)
    srd(a, sWS, P_WS, WS_USED)
    srd(a, sW2, P_W2, F_ * S_ * 2)
    stamp(a, 'start')
    if 'noticket' not in EXP:
        srd(a, sAUX, P_DBG, 256)
        a(f'v_mov_b32 v8, {L_CNT + 16}')
        a(f's_cmp_lg_u32 s{sW8}, 0')
        a('s_cbranch_scc1 L_ticket_done')
        a('s_getreg_b32 s4, hwreg(HW_REG_XCC_ID)')
        a('s_mov_b32 s6, 0')
        a('s_mov_b64 exec, 1')
        a.label('L_ticket')
        a('s_and_b32 s4, s4, 7')
        a('s_lshl_b32 s5, s4, 5')
        a('v_mov_b32 v9, s5')
        a('v_mov_b32 v10, 1')
        a(f'buffer_atomic_add v10, v9, {S(sAUX, 4)}, 0 offen sc0 sc1')
        a.wait_vm0()
        a('v_readfirstlane_b32 s5, v10')
        a('s_cmp_lt_u32 s5, 32')
        a('s_cbranch_scc1 L_ticket_ok')
        a('s_add_u32 s4, s4, 1')
        a('s_add_u32 s6, s6, 1')
        a('s_cmp_lt_u32 s6, 8')
        a('s_cbranch_scc1 L_ticket')
        a.label('L_ticket_ok')
        a('s_lshl_b32 s5, s5, 3')
        a('s_add_u32 s5, s5, s4')
        a('v_mov_b32 v9, s5')
        a('ds_write_b32 v8, v9')
        a('s_mov_b64 exec, -1')
        a('s_waitcnt lgkmcnt(0)')
        a.label('L_ticket_done')
        a('s_barrier')
        a('ds_read_b32 v9, v8')
        a('s_waitcnt lgkmcnt(0)')
        a('s_barrier')
        a(f'v_readfirstlane_b32 s{sID}, v9')
        a(f's_and_b32 s{sID}, s{sID}, 255')
        a.reset_counters()
        stamp(a, 'tick')
    if os.environ.get('UPRIO', '1') != '0':
        a(f's_cmp_eq_u32 s{sWH}, 0')
        a('s_cbranch_scc1 L_prio')
        a(f's_setprio {os.environ.get("UPRIO", "1")}')
        a.label('L_prio')
    a(f's_cmp_ge_u32 s{sID}, 128')
    a('s_cbranch_scc1 L_not_a')
    role_a(a)
    a.label('L_not_a')
    a.reset_counters()
    a(f's_and_b32 s4, s{sID}, 7')
    a(f's_lshr_b32 s5, s{sID}, 3')
    a('s_sub_u32 s5, s5, 16')
    a('s_cmp_ge_u32 s5, 14')
    a('s_cbranch_scc1 L_role_r')
    a('s_and_b32 s7, s4, 1')
    a('s_add_u32 s7, s7, 13')
    a('s_cmp_ge_u32 s5, s7')
    a('s_cbranch_scc1 L_role_wot')
    a('s_mul_i32 s6, s4, 27')
    a('s_lshr_b32 s6, s6, 1')
    a('s_add_u32 s6, s6, s5')
    role_b(a)
    a.label('L_role_r')
    a.reset_counters()
    a(f's_sub_u32 s6, s{sID}, 240')
    role_r(a)
    a.label('L_role_wot')
    a.reset_counters()
    a('s_lshr_b32 s6, s4, 1')
    role_wot(a)
    a.label('L_join')
    final_gemm(a)
    a.label('L_end')
    a('s_endpgm')
    if STAMPS:
        a.raw('; STAMPS ' + ' '.join(STAMP_NAMES))
    a.raw('.section .rodata,"a"')
    a.raw(f""".p2align 6
.amdhsa_kernel {K}
  .amdhsa_next_free_vgpr 256
  .amdhsa_next_free_sgpr 102
  .amdhsa_accum_offset 256
  .amdhsa_group_segment_fixed_size 0
  .amdhsa_kernarg_size 96
  .amdhsa_user_sgpr_count 2
  .amdhsa_user_sgpr_kernarg_segment_ptr 1
  .amdhsa_system_sgpr_workgroup_id_x 1
.end_amdhsa_kernel""")
    sys.stderr.write(f'maxv={a.maxv} maxa={a.maxa} maxs={a.maxs} nops={a.nops} lines={len(a.out)}\n')
    return a.text()


if __name__ == '__main__':
    out = sys.argv[1] if len(sys.argv) > 1 else os.path.join(os.path.dirname(__file__), '..', 'cdna_kernels', NAME + '.s')
    open(out, 'w').write(build())
```

```python
import sys, struct, os
sys.path.insert(0, os.path.dirname(__file__))
from asmdsl import Asm, Rec, V, A, S

NAME = 'parallel_sum__linear_kernel_hedgehog__mixer_token_mlp__prompt'
S_, D_, F_ = 2048, 640, 1728

HF_OFF = 0
HF_SZ = 8 * 64 * 5 * 1024
GF_OFF = HF_OFF + HF_SZ
GF_SZ = 8 * 74 * 5 * 1024
OF_OFF = GF_OFF + GF_SZ
OF_SZ = 32 * 20 * 4 * 1024
XF_OFF = OF_OFF + OF_SZ
XF_SZ = 128 * 20480
WF_OFF = XF_OFF + XF_SZ
WF_SZ = 480 * 5120 + 4096
KV_OFF = WF_OFF + WF_SZ
KV_SZ = 32 * 32 * 6144
KB_OFF = KV_OFF + KV_SZ + 4096
KB_SZ = 32 * 2048
FL_OFF = KB_OFF + KB_SZ + 4096
FSH = int(os.environ.get('FSH', '7'))
FH_OFF = FL_OFF
FK_OFF = FH_OFF + (1024 << FSH)
FR_OFF = FK_OFF + (1024 << FSH)
FG_OFF = FR_OFF + (128 << FSH)
FO_OFF = FG_OFF + (1024 << FSH)
FW_OFF = FO_OFF + (1024 << FSH)
FU_OFF = FW_OFF + (128 << FSH)
EP_OFF = FU_OFF + (512 << FSH)
WS_USED = EP_OFF + 512
STAMP_OFF = WS_USED
WS_USED += 512 * 256
STAMPS = bool(int(os.environ.get('STAMPS', '0')))
EXP = os.environ.get('EXP', '').split(',') + [e for e in ['map4', 'noticket', 'notlb', 'g2map8', 'nopf2', 'pfa', 'pf2now', 'fewpoll', 'outx4', 'inx4', 'outlds', 'cinit'] if e not in os.environ.get('OFF', '').split(',')]
OOB = 0x40000000

P_X, P_WQKV, P_WPHI, P_WO, P_BX, P_W1, P_B1, P_W2, P_B2, P_OUT, P_DBG, P_WS = range(16, 40, 2)
LOG2E = 1.4426950408889634

sW = 3
sW8, sWH = 90, 91
sWS, sX, sWQ, sW1, sW2, sAUX, sOUT = 40, 44, 48, 52, 56, 60, 64
sHG, sRB, sID, sROT, sKS, sT, sM0B, sTAG = 68, 69, 70, 71, 72, 73, 74, 75
sL, sNL = 76, 78
sBDB, sBCB, sFS, sGM0, sSPIN, sLIM = 80, 81, 82, 83, 84, 85
vL, vG, vI, vR, vC = 1, 2, 3, 4, 5
vTOK, vGR = 6, 7
vFS = 42
DB = 64
XN = lambda s: DB + 8 * s
UP = lambda k: DB + 8 * k + 4

LDS_BYTES = 163840
A_SLOTS = 4
L_WQ = 0
L_RING = 102400
L_ZERO = 122880
L_WPHI = 126976
L_CNT = 131072
B_P = 10
G2_P = 5
ILV = os.environ.get('ILV', 'burst')


def kb_pos(f, t):
    if f < 32:
        return (f >> 4) * 512 + (t * 16 + (f & 15)) * 8 if t < 4 else 1024 + ((f >> 4) * 32 + (t - 4) * 16 + (f & 15)) * 8
    return 1536 + (t * 8 + f - 32) * 8


def fbits(x):
    return '0x%08x' % struct.unpack('<I', struct.pack('<f', x))[0]


def srd(a, dst, ptr, nbytes):
    a(f's_mov_b32 s{dst}, s{ptr}')
    a(f's_and_b32 s{dst + 1}, s{ptr + 1}, 0xffff')
    a(f's_mov_b32 s{dst + 2}, {nbytes}')
    a(f's_mov_b32 s{dst + 3}, 0x20000')


STAMP_NAMES = []
vST = 41


def stamp(a, name):
    if not STAMPS:
        return
    name = str(name)
    if name not in STAMP_NAMES:
        STAMP_NAMES.append(name)
    idx = STAMP_NAMES.index(name)
    a('s_memrealtime s[98:99]')
    a.wait_lg0()
    if idx == 0:
        a(f'v_mov_b32 v{vST}, 0')
        a('s_getreg_b32 s97, hwreg(HW_REG_HW_ID)')
        a(f'v_writelane_b32 v{vST}, s97, 63')
    a(f'v_writelane_b32 v{vST}, s98, {idx}')


def stamp_flush(a, n):
    if not STAMPS:
        return
    a.wait_vm0()
    stamp(a, n)
    lab = a.newlabel('st')
    a(f's_cmp_lg_u32 s{sW}, 0')
    a(f's_cbranch_scc1 {lab}')
    a(f's_lshl_b32 s4, s{sWH}, 8')
    a(f's_add_u32 s4, s4, s{sID}')
    a('s_lshl_b32 s4, s4, 8')
    a(f's_add_u32 s4, s4, {STAMP_OFF}')
    a(f'v_lshl_add_u32 v8, v{vL}, 2, s4')
    a(f'buffer_store_dword v{vST}, v8, {S(sWS, 4)}, 0 offen')
    if 'dbg1' in EXP:
        srd(a, sAUX, P_DBG, 256)
        for wg, base, sel in ((136, 0, 'start,prep,go,B_0,Bend,pub,gok,G2_0,Gend,end'), (8, 10, 'start,x,prep,go,aend,G2_9')):
            l2 = a.newlabel('dbg')
            a(f's_lshl_b32 s4, s{sWH}, 8')
            a(f's_add_u32 s4, s4, s{sID}')
            a(f's_cmp_lg_u32 s4, {wg}')
            a(f's_cbranch_scc1 {l2}')
            for k, nm in enumerate(sel.split(',')):
                if nm not in STAMP_NAMES:
                    STAMP_NAMES.append(nm)
                a(f'v_readlane_b32 s4, v{vST}, {STAMP_NAMES.index(nm)}')
                a('v_mov_b32 v9, s4')
                a('v_mov_b32 v8, 0')
                a(f'buffer_store_dword v9, v8, {S(sAUX, 4)}, 0 offen offset:{4 * (base + k)}')
            a.label(l2)
    a.label(lab)


def reduce_g(a, r, t):
    a(f'v_mov_b32 v{t}, v{r}')
    a(f'v_permlane32_swap_b32 v{r}, v{t}')
    a(f'v_add_f32 v{r}, v{r}, v{t}')
    a(f'v_mov_b32 v{t}, v{r}')
    a(f'v_permlane16_swap_b32 v{r}, v{t}')
    a(f'v_add_f32 v{r}, v{r}, v{t}')


def dma160_voffs(a, dst, stride, permute, tmp):
    t0, t2, t3 = tmp, tmp + 1, tmp + 2
    for q in range(5):
        d = dst + q
        a(f'v_add_u32 v{t0}, {q * 64}, v{vL}')
        a(f'v_mul_u32_u24 v{t2}, 6554, v{t0}')
        a(f'v_lshrrev_b32 v{t2}, 16, v{t2}')
        a(f'v_mul_u32_u24 v{t3}, 10, v{t2}')
        a(f'v_sub_u32 v{t0}, v{t0}, v{t3}')
        if permute:
            a(f'v_bfe_u32 v{t3}, v{t2}, 2, 2')
            a(f'v_lshlrev_b32 v{t3}, 3, v{t3}')
            a(f'v_and_b32 v{d}, 3, v{t2}')
            a(f'v_add_u32 v{t3}, v{t3}, v{d}')
            a(f'v_lshrrev_b32 v{t2}, 4, v{t2}')
            a(f'v_lshl_add_u32 v{t2}, v{t2}, 2, v{t3}')
        a(f'v_mul_u32_u24 v{t2}, {stride}, v{t2}')
        a(f'v_lshl_add_u32 v{d}, v{t0}, 4, v{t2}')
        if 0 < q < 4:
            a(f'v_subrev_u32 v{d}, {q * 1024}, v{d}')


def dma160(a, vo, ssrd, soff, m0_s, m0_add, nt=''):
    a(f's_add_u32 m0, s{m0_s}, {m0_add}')
    for q in range(4):
        off = f' offset:{q * 1024}' if q else ''
        a(f'buffer_load_dwordx4 v{vo + q}, {S(ssrd, 4)}, s{soff} offen{off}{nt} lds')
    a(f's_add_u32 m0, s{m0_s}, {m0_add + 4096}')
    return a(f'buffer_load_dwordx4 v{vo + 4}, {S(ssrd, 4)}, s{soff} offen{nt} lds')


class Hooks:
    def __init__(self, items=()):
        self.items = list(items)

    def run(self, n=1):
        for _ in range(n):
            if self.items:
                self.items.pop(0)()

    def flush(self):
        self.run(len(self.items))


def softmax_pm(a, P, PH, EP, EN, tmp):
    p = [P[k // 4] + k % 4 for k in range(20)]
    ep = [EP[k // 4] + k % 4 for k in range(20)]
    en = [EN[k // 4] + k % 4 for k in range(20)]
    mx, mn, sp, sn = tmp, tmp + 2, tmp + 4, tmp + 6
    a(f'v_max3_f32 v{mx}, v{p[0]}, v{p[1]}, v{p[2]}')
    a(f'v_min3_f32 v{mn}, v{p[0]}, v{p[1]}, v{p[2]}')
    for k in range(3, 19, 2):
        a(f'v_max3_f32 v{mx}, v{mx}, v{p[k]}, v{p[k + 1]}')
        a(f'v_min3_f32 v{mn}, v{mn}, v{p[k]}, v{p[k + 1]}')
    a(f'v_max_f32 v{mx}, v{mx}, v{p[19]}')
    a(f'v_min_f32 v{mn}, v{mn}, v{p[19]}')
    a(f'v_mul_f32 v{mx}, s{sNL}, v{mx}')
    a(f'v_mul_f32 v{mn}, s{sL}, v{mn}')
    for k in range(0, 20, 2):
        a(f'v_pk_fma_f32 {V(ep[k], 2)}, {V(p[k], 2)}, {S(sL, 2)}, {V(mx, 2)} op_sel_hi:[1,0,0]')
        a(f'v_pk_fma_f32 {V(en[k], 2)}, {V(p[k], 2)}, {S(sNL, 2)}, {V(mn, 2)} op_sel_hi:[1,0,0]')
    for k in range(20):
        a(f'v_exp_f32 v{ep[k]}, v{ep[k]}')
        a(f'v_exp_f32 v{en[k]}, v{en[k]}')
    a(f'v_pk_add_f32 {V(sp, 2)}, {V(ep[0], 2)}, {V(ep[2], 2)}')
    a(f'v_pk_add_f32 {V(sn, 2)}, {V(en[0], 2)}, {V(en[2], 2)}')
    for k in range(4, 20, 2):
        a(f'v_pk_add_f32 {V(sp, 2)}, {V(sp, 2)}, {V(ep[k], 2)}')
        a(f'v_pk_add_f32 {V(sn, 2)}, {V(sn, 2)}, {V(en[k], 2)}')
    a(f'v_add_f32 v{sp}, v{sp}, v{sp + 1}')
    a(f'v_add_f32 v{sn}, v{sn}, v{sn + 1}')
    a(f'v_rcp_f32 v{sp}, v{sp}')
    a(f'v_rcp_f32 v{sn}, v{sn}')
    for k in range(0, 20, 2):
        a(f'v_pk_mul_f32 {V(ep[k], 2)}, {V(ep[k], 2)}, {V(sp, 2)} op_sel_hi:[1,0]')
        a(f'v_pk_mul_f32 {V(en[k], 2)}, {V(en[k], 2)}, {V(sn, 2)} op_sel_hi:[1,0]')
    allv = ep + en
    for k in range(20):
        a(f'v_cvt_pk_bf16_f32 v{PH[k // 4] + k % 4}, v{allv[2 * k]}, v{allv[2 * k + 1]}')


def flag_set(a, s_off):
    a(f'v_lshl_add_u32 v{vFS}, v{vL}, 2, s{s_off}')
    a(f'v_mov_b32 v{vFS + 1}, s{sTAG}')
    a(f's_mov_b64 exec, {hex((1 << (1 << (FSH - 2))) - 1)}')
    a(f'buffer_store_dword v{vFS + 1}, v{vFS}, {S(sWS, 4)}, 0 offen sc1')
    a('s_mov_b64 exec, -1')


def flag_issue(a, vaddr, vdst):
    return a(f'buffer_load_dword v{vdst}, v{vaddr}, {S(sWS, 4)}, 0 offen sc1')


def flag_check(a, tok, vaddr, vdst, sleep=2):
    ok = a.newlabel('ok')
    lp = a.newlabel('poll')
    a.wait(tok)
    a(f'v_cmp_ne_u32 vcc, s{sTAG}, v{vdst}')
    a(f's_cbranch_vccz {ok}')
    a(f's_mov_b32 s{sSPIN}, 0')
    a.label(lp)
    a(f's_sleep {sleep}')
    a.raw(f'\tbuffer_load_dword v{vdst}, v{vaddr}, {S(sWS, 4)}, 0 offen sc1')
    a('s_waitcnt vmcnt(0)')
    a(f'v_cmp_ne_u32 vcc, s{sTAG}, v{vdst}')
    a(f's_cbranch_vccz {ok}')
    a(f's_add_u32 s{sSPIN}, s{sSPIN}, 1')
    a(f's_cmp_lt_u32 s{sSPIN}, 0x8000')
    a(f's_cbranch_scc1 {lp}')
    a.label(ok)


def featmap(a, ACC5, PK, WPF, P5, EP5, EN5, tmp):
    for k in range(10):
        t, j = divmod(2 * k, 4)
        a(f'v_cvt_pk_bf16_f32 v{PK[k // 4] + k % 4}, v{ACC5[t] + j}, v{ACC5[t] + j + 1}')
    for ks in range(3):
        for t in range(5):
            d = V(P5[t], 4)
            if ks < 2:
                a(f'v_mfma_f32_16x16x32_bf16 {d}, {V(WPF(t, ks), 4)}, {V(PK[ks], 4)}, {"0" if ks == 0 else d}')
            else:
                a(f'v_mfma_f32_16x16x16_bf16 {d}, {V(WPF(t, ks), 2)}, {V(PK[ks], 2)}, {d}')
    softmax_pm(a, P5, P5, EP5, EN5, tmp)


def xcd_tile(a):
    a(f's_and_b32 s4, s{sID}, 7')
    a(f's_lshr_b32 s5, s{sID}, 3')
    if 'g2map8' in EXP:
        a(f's_and_b32 s{sHG}, s5, 7')
        a('s_lshl_b32 s6, s4, 2')
        a('s_lshr_b32 s7, s5, 3')
        a(f's_add_u32 s{sRB}, s6, s7')
    else:
        a('s_and_b32 s6, s4, 1')
        a('s_lshl_b32 s6, s6, 2')
        a('s_and_b32 s7, s5, 3')
        a(f's_add_u32 s{sHG}, s6, s7')
        a('s_lshr_b32 s6, s4, 1')
        a('s_lshl_b32 s6, s6, 3')
        a('s_lshr_b32 s7, s5, 2')
        a(f's_add_u32 s{sRB}, s6, s7')
    a(f's_lshl_b32 s4, s{sRB}, 6')
    a(f's_lshl_b32 s5, s{sW}, 4')
    a('s_add_u32 s4, s4, s5')
    a(f'v_add_u32 v{vTOK}, s4, v{vI}')


def ln_scales(a, vS, vRS, vNB):
    a(f'v_mul_f32 v{vS}, {fbits(1.0 / 640)}, v{vS}')
    a(f'v_mul_f32 v{vS + 2}, {fbits(1.0 / 640)}, v{vS + 2}')
    a(f'v_fma_f32 v{vS + 2}, -v{vS}, v{vS}, v{vS + 2}')
    a(f'v_max_f32 v{vS + 2}, 0, v{vS + 2}')
    a(f'v_add_f32 v{vS + 1}, {fbits(1e-5)}, v{vS + 2}')
    a(f'v_rsq_f32 v{vRS}, v{vS + 1}')
    a(f'v_mul_f32 v{vNB}, v{vS}, v{vRS}')
    a(f'v_sub_f32 v{vNB}, 0, v{vNB}')


vD, vF, vT, vT2, vFL, vFD, vOF, vXA, vBA = 8, 12, 14, 18, 22, 23, 28, 32, 33
ACC = lambda t, nt: 44 + (nt * 5 + t) * 4
TF = lambda j, nt: 124 + (j % 2) * 16 + 4 * nt
POOL = [156 + 4 * k for k in range(25)]


class GGemm:
    def __init__(self, a, kind):
        self.a, self.kind = a, kind
        if kind == 'B':
            self.stride, self.srdm, self.n, self.fr_off, self.fr_steps = F_ * 2, sW1, 16, HF_OFF, 64
            self.sdb, self.scb, self.ntot, self.P = sBDB, sBCB, 16, B_P
        else:
            self.stride, self.srdm, self.n, self.fr_off, self.fr_steps = S_ * 2, sW2, 14, GF_OFF, 74
            self.sdb, self.scb, self.ntot, self.P = sHG, sRB, 19, G2_P
        self.dtok, self.ftok, self.ttok = {}, {}, {}
        self.free = list(POOL)
        self.reg = {}
        self.pending = []
        order = [(j, 'a') for j in range(self.n)]
        if kind == 'G2':
            order += [(j, k) for j in range(14, 19) for k in 'ab']
        for j, k in order:
            self.pending += [(j, k, x) for x in range(5 if k == 'a' else 4)]
        self.gate = lambda: None
        self.gate2 = lambda: None
        self.nq = 2 if kind == 'B' else 4

    def setup(self):
        a, st = self.a, self.stride
        a(f'v_lshrrev_b32 v24, 3, v{vL}')
        if self.kind == 'B':
            a('v_lshrrev_b32 v25, 2, v24')
            a('v_and_b32 v24, 3, v24')
            a('v_lshl_add_u32 v24, v25, 3, v24')
        a(f'v_mul_u32_u24 v24, {st}, v24')
        a(f'v_and_b32 v25, 7, v{vL}')
        a(f'v_lshlrev_b32 v26, 1, v{vG}')
        a('v_xor_b32 v25, v25, v26')
        a('v_lshl_add_u32 v24, v25, 4, v24')
        a(f's_lshl_b32 s4, s{self.scb}, 7')
        a(f's_mul_i32 s5, s{sW}, {self.n * 32 * st}')
        a('s_add_u32 s5, s5, s4')
        if self.kind == 'B':
            a(f's_mul_i32 s6, s{sWH}, {4 * st}')
            a('s_add_u32 s5, s5, s6')
            a(f's_lshl_b32 s6, s{sWH}, 11')
            a(f's_add_u32 s{sM0B}, s{sGM0}, s6')
        else:
            a(f's_mov_b32 s{sM0B}, s{sGM0}')
        for q in range(self.nq):
            row = 8 * q if self.kind != 'B' else q * 16
            a(f's_add_u32 s6, s5, {row * st - 1024 * q}')
            a(f'v_add_u32 v{vD + q}, s6, v24')
        a(f's_mul_i32 s4, s{self.sdb}, {self.fr_steps}')
        a(f's_mul_i32 s5, s{sW}, {self.n}')
        a('s_add_u32 s4, s4, s5')
        a('s_mul_i32 s4, s4, 5120')
        a(f's_add_u32 s{sFS}, s4, {self.fr_off}')
        if self.kind == 'B':
            a(f's_lshl_b32 s4, s{sW}, {6 + FSH}')
            a(f's_add_u32 s4, s4, {FH_OFF}')
            a(f'v_lshl_add_u32 v{vFL}, v{vL}, {FSH}, s4')
        else:
            a(f's_lshl_b32 s4, s{self.sdb}, {7 + FSH}')
            a(f's_mul_i32 s5, s{sW}, {28 << FSH}')
            a('s_add_u32 s4, s4, s5')
            a(f's_add_u32 s4, s4, {FG_OFF}')
            a(f's_mul_i32 s5, s{self.sdb}, {74 * 5120}')
            a(f's_add_u32 s{sLIM}, s5, {GF_OFF + 53 * 5120}')
            a(f's_cmp_eq_u32 s{sW}, 3')
            a('s_cselect_b32 s5, 23, 27')
            a(f'v_min_u32 v24, s5, v{vL}')
            a(f'v_lshl_add_u32 v{vFL}, v24, {FSH}, s4')

    def dma_items(self, j):
        a = self.a

        def one(q):
            def f():
                if q == 0:
                    a(f's_add_u32 m0, s{sM0B}, {(j % self.P) * 16384}')
                off = f' offset:{q * 1024}' if q else ''
                nt = ' nt' if ('ntb' in EXP and self.kind == 'B' and j < self.P) else ''
                self.dtok[j] = a(f'buffer_load_dwordx4 v{vD + q}, {S(self.srdm, 4)}, 0 offen{off}{nt} lds')
                if not ('hotw' in EXP):
                    a(f'v_add_u32 v{vD + q}, {32 * self.stride}, v{vD + q}')
            return f
        return [one(q) for q in range(self.nq)]

    def frag_items(self, lim=99):
        a = self.a
        out = []
        while self.free and self.pending and len(out) < lim:
            key = self.pending.pop(0)
            r = self.free.pop(0)
            self.reg[key] = r

            def f(key=key, r=r):
                j, kind, x = key
                if key == (self.n, 'a', 0):
                    self.gate()
                if key == (self.n, 'b', 0):
                    self.gate2()
                if kind == 'a' and 'b_nof' in EXP and self.kind == 'B' and j >= 5 and x > 0:
                    pass
                elif kind == 'a':
                    vo, off = (vF, x * 1024) if x < 4 else (vF + 1, 0)
                    offs = f' offset:{off}' if off else ''
                    self.ftok[j] = a(f'buffer_load_dwordx4 {V(r, 4)}, v{vo}, {S(sWS, 4)}, s{sFS} offen{offs} sc1')
                    if x == 4 and 'hotf' not in EXP:
                        a(f's_add_u32 s{sFS}, s{sFS}, 5120')
                        if self.kind == 'G2' and j < 14:
                            a(f's_min_u32 s{sFS}, s{sFS}, s{sLIM}')
                else:
                    if j - self.n == 2:
                        a(f'v_lshlrev_b32 v24, 3, v{vL}')
                        a(f'v_sub_u32 v24, v{vOF + x}, v24')
                        a(f'buffer_load_dwordx2 {V(r, 2)}, v24, {S(sWS, 4)}, s11 offen sc1')
                        self.ftok[j] = a(f'buffer_load_dwordx2 {V(r + 2, 2)}, v24, {S(sWS, 4)}, s11 offen offset:512 sc1')
                    else:
                        self.ftok[j] = a(f'buffer_load_dwordx4 {V(r, 4)}, v{vOF + x}, {S(sWS, 4)}, s11 offen sc1')
                    if x == 3:
                        a('s_add_u32 s11, s11, 4096')
            out.append(f)
        return out

    def tr_items(self, j):
        a = self.a

        def one(nt):
            def f():
                off = (j % self.P) * 16384
                base = vT
                if off >= 65536:
                    if off % 65536 == 0:
                        a(f'v_add_u32 v{vT2 + nt}, {off}, v{vT + nt}')
                    off %= 65536
                    base = vT2
                if 'b_nods' in EXP and self.kind == 'B' and j > 1 and nt > 0:
                    return
                a(f'ds_read_b64_tr_b16 {V(TF(j, nt), 2)}, v{base + nt} offset:{off}')
                self.ttok[j] = a(f'ds_read_b64_tr_b16 {V(TF(j, nt) + 2, 2)}, v{base + nt} offset:{off + 2048}')
            return f
        return [one(nt) for nt in range(4)]

    def mainloop(self, extra):
        a, n = self.a, self.n
        a.wait(self.dtok[0])
        Hooks(self.tr_items(0)).flush()
        for j in range(self.ntot):
            items = []
            if j + 1 < n:
                a.wait(self.dtok[j + 1])
            a.wait(self.ftok[j], self.ttok.get(j))
            if self.kind == 'B' and 'b_nobar' not in EXP and j + 1 < n and (j + self.P < n or j + 1 >= int(os.environ.get('BPRE', '10'))):
                a('s_barrier')
            if j % 3 == 0:
                stamp(a, f'{self.kind}_{j}')
                if STAMPS and j in (3, 9):
                    a('s_memtime s[98:99]')
                    a.wait_lg0()
                    a(f'v_writelane_b32 v{vST}, s98, {56 + (j // 9) + (2 if self.kind == "G2" else 0)}')
            if j + 1 < n:
                items += self.tr_items(j + 1)
            if j + self.P < n:
                items += self.dma_items(j + self.P)
            items += extra(j)
            lim = int(os.environ.get('LIMB' if self.kind == 'B' else 'LIMG', '10'))
            items += self.frag_items(lim if (self.kind == 'B' or j < int(os.environ.get('LIMJ', '9'))) else 13)
            last = j == self.ntot - 1
            if self.kind == 'G2' and j == int(os.environ.get('JBAR', '16')):
                a('s_barrier')
            if last:
                a(f's_mul_i32 s7, s{sWH}, 102400')
                for nt in range(1, 4):
                    a(f's_xor_b32 s4, s{sW}, {nt}')
                    a('s_mul_i32 s4, s4, 15360')
                    a(f's_add_u32 s4, s4, {(nt - 1) * 5120}')
                    a('s_add_u32 s4, s4, s7')
                    a(f'v_add_u32 v{24 + nt}, s4, v{vF}')
                wr = [(nt, t) for nt in (1, 2, 3) for t in range(5)]
            hk = Hooks(items)
            k = 0
            ILV = os.environ.get('ILVB', 'fine') if self.kind == 'B' else os.environ.get('ILVG', 'burst')
            for nt in (1, 2, 3, 0):
                for t in range(5):
                    acc = V(ACC(t, nt), 4)
                    c = '0' if (j == 0 and not ('cinit' in EXP and nt == 0)) else acc
                    fr = V(self.reg[(j, 'a', t)], 4)
                    tf = V(TF(j, nt) if j < n else self.reg[(j, 'b', nt)], 4)
                    if self.kind == 'B':
                        a(f'v_mfma_f32_16x16x32_bf16 {acc}, {tf}, {fr}, {c}')
                    else:
                        a(f'v_mfma_f32_16x16x32_bf16 {acc}, {fr}, {tf}, {c}')
                    k += 1
                    if last and k > 5:
                        wn, wt = wr.pop(0)
                        a(f'ds_write_b128 v{24 + wn}, {V(ACC(wt, wn), 4)} offset:{wt * 1024}')
                    if ILV == 'fine':
                        if k % 4 != 0:
                            hk.run()
                    elif ILV == 'burst':
                        if k <= 4 and j + 1 < n:
                            hk.run()
                    elif ILV == 'two':
                        if k <= 4 and j + 1 < n:
                            hk.run()
                        if k == 10:
                            hk.run(4)
                    elif ILV == 'pre':
                        if k == 1:
                            hk.flush()
            hk.flush()
            self.free += [r for key, r in self.reg.items() if key[0] == j]
            if self.kind == 'G2' and 'morepool' in EXP:
                self.free += {9: [vD], 12: [vT, vT2]}.get(j, [])
            if n - 2 <= j < n:
                self.free += [TF(j, nt) for nt in range(4)]

    def reduce(self):
        a = self.a
        a(f's_mul_i32 s4, s{sW}, 15360')
        a('s_add_u32 s4, s4, s7')
        a(f'v_add_u32 v24, s4, v{vF}')
        a.wait_lg0()
        a('s_barrier')
        rtok = {}
        for nt in range(1, 4):
            for t in range(5):
                rtok[(nt, t)] = a(f'ds_read_b128 {V(ACC(t, nt), 4)}, v24 offset:{(nt - 1) * 5120 + t * 1024}')
        for nt in range(1, 4):
            for t in range(5):
                a.wait(rtok[(nt, t)])
                for h in range(2):
                    d = V(ACC(t, 0) + 2 * h, 2)
                    a(f'v_pk_add_f32 {d}, {d}, {V(ACC(t, nt) + 2 * h, 2)}')


def frag10_addr(a, m, hi_add, step, base_s, vrd, vrd_base, vst):
    a(f's_add_u32 s4, s{sW}, {4 * m}')
    a('s_min_u32 s5, s4, 9')
    a('s_cmp_ge_u32 s5, 5')
    a(f's_cselect_b32 s6, {hi_add}, 0')
    a(f's_mul_i32 s5, s5, {step}')
    a('s_add_u32 s5, s5, s6')
    a(f'v_add_u32 v{vrd}, s5, v{vrd_base}')
    a('s_lshl_b32 s5, s4, 10')
    a(f's_add_u32 s5, s5, s{base_s}')
    a('s_cmp_ge_u32 s4, 10')
    a(f's_cselect_b32 s5, {OOB}, s5')
    a(f'v_lshl_add_u32 v{vst}, v{vL}, 4, s5')


NTP = ' nt' if 'ntp' in EXP else ''
FIRST = int(os.environ.get('FIRST', '25'))
vTH = 40


def g_common(a):
    a(f'v_lshlrev_b32 v{vF}, 4, v{vL}')
    a(f'v_add_u32 v{vF + 1}, 4096, v{vF}')
    a(f's_lshl_b32 s{sGM0}, s{sW}, 12')
    a(f'v_bfe_u32 v25, v{vGR}, 1, 2')
    a(f'v_xor_b32 v25, s{sW}, v25')
    a(f'v_lshlrev_b32 v26, 7, v{vGR}')
    a(f'v_lshl_add_u32 v26, v{vC}, 3, v26')
    a(f'v_add_u32 v26, s{sGM0}, v26')
    for nt in range(4):
        a(f'v_xor_b32 v27, {nt}, v25')
        a(f'v_lshl_add_u32 v{vT + nt}, v27, 5, v26')


def tag_ready(a):
    a('s_waitcnt lgkmcnt(0)')
    a(f's_add_u32 s{sTAG}, s{sTAG}, 1')


def role_a(a):
    a(f's_and_b32 s4, s{sID}, 7')
    a(f's_lshr_b32 s5, s{sID}, 3')
    a('s_and_b32 s6, s4, 1')
    a('s_lshl_b32 s6, s6, 2')
    a('s_and_b32 s7, s5, 3')
    a(f's_add_u32 s{sHG}, s6, s7')
    a('s_lshr_b32 s6, s4, 1')
    a('s_lshl_b32 s6, s6, 2')
    a('s_lshr_b32 s7, s5, 2')
    a('s_add_u32 s6, s6, s7')
    a(f's_mov_b32 s{sRB}, s6')
    a('s_lshl_b32 s6, s6, 3')
    a(f's_add_u32 s15, s6, s{sHG}')
    a('s_lshl_b32 s12, s15, 1')
    a(f's_add_u32 s12, s12, s{sWH}')
    X = 156
    a('s_lshl_b32 s4, s12, 2')
    a(f's_add_u32 s4, s4, s{sW}')
    a('s_mul_i32 s4, s4, 2560')
    a(f'v_mul_u32_u24 v24, 40, v{vL}')
    xt = []
    if 'inx4' in EXP:
        a(f'buffer_load_dwordx4 {V(X, 4)}, v24, {S(sX, 4)}, s4 offen')
        a(f'buffer_load_dwordx4 {V(X + 4, 4)}, v24, {S(sX, 4)}, s4 offen offset:16')
        xt = [a(f'buffer_load_dwordx2 {V(X + 8, 2)}, v24, {S(sX, 4)}, s4 offen offset:32')] * 5
    else:
        for k in range(5):
            xt.append(a(f'buffer_load_dwordx2 {V(X + 2 * k, 2)}, v24, {S(sX, 4)}, s4 offen offset:{8 * k}{NTP}'))
    srd(a, sWQ, P_WQKV, D_ * 3 * D_ * 2)
    vLN = 8
    a(f'v_lshlrev_b32 v{vLN}, 4, v{vL}')
    a(f'v_add_u32 v{vLN + 1}, 4096, v{vLN}')
    a(f's_mul_i32 s{sM0B}, s{sW8}, 5120')
    a('s_lshl_b32 s10, s15, 2')
    a(f's_add_u32 s10, s10, s{sW}')
    a('s_mul_i32 s4, s10, 1093')
    a('s_lshr_b32 s4, s4, 16')
    a('s_mul_i32 s5, s4, 60')
    a('s_sub_u32 s5, s10, s5')
    a('s_lshr_b32 s6, s5, 1')
    a('s_and_b32 s7, s5, 1')
    a('s_add_u32 s7, s7, 1')
    a('s_sub_u32 s8, s5, 40')
    a('s_cmp_ge_u32 s5, 40')
    a('s_cselect_b32 s6, s8, s6')
    a('s_cselect_b32 s7, 0, s7')
    a(f's_mul_i32 s6, s6, {32 * 3840}')
    a('s_mul_i32 s7, s7, 1280')
    a('s_mul_i32 s4, s4, 160')
    a('s_add_u32 s6, s6, s7')
    a('s_add_u32 s6, s6, s4')
    a(f's_cmp_eq_u32 s{sWH}, 0')
    a('s_cselect_b32 s10, 480, s10')
    dma160_voffs(a, 12, 3840, True, 18)
    a('s_cmp_ge_u32 s10, 480')
    a(f's_cselect_b32 s7, {OOB}, 0')
    for q in range(5):
        a(f'v_add_u32 v{12 + q}, s7, v{12 + q}')
    utok = dma160(a, 12, sWQ, 6, sM0B, 0, NTP)
    a(f's_mul_i32 s13, s{sWH}, 24576')
    a('s_add_u32 s13, s13, 65536')
    a('s_add_u32 s14, s13, 12288')
    srd(a, sAUX, P_WPHI, 32 * 800)
    a(f's_mul_i32 s6, s{sHG}, 3200')
    a(f's_lshl_b32 s7, s{sW}, 10')
    a('s_add_u32 s6, s6, s7')
    a(f'v_lshl_add_u32 v10, v{vL}, 4, s6')
    a(f's_add_u32 m0, s7, {L_WPHI}')
    a(f'buffer_load_dwordx4 v10, {S(sAUX, 4)}, 0 offen lds')
    for k in range(4):
        a(f'v_mov_b32 v{44 + k}, 0')
    a(f'v_lshlrev_b32 v18, 4, v{vTH}')
    a(f'v_add_u32 v18, {L_ZERO}, v18')
    a('ds_write_b128 v18, v[44:47]')
    a(f'v_mov_b32 v10, {L_CNT}')
    a('v_mov_b32 v11, 0')
    a('ds_write2_b32 v10, v11, v11 offset0:0 offset1:1')
    vONE, vS, vRS, vNB = 34, 36, 168, 170
    a(f'v_mov_b32 v{vONE}, 0x3f803f80')
    for k in range(4):
        a(f'v_mov_b32 v{vS + k}, 0')
    a('s_waitcnt lgkmcnt(0)')
    a(f's_add_u32 s{sTAG}, s{sTAG}, 1')
    def unit_part():
        a(f'v_mul_u32_u24 v29, 160, v{vGR}')
        a(f'v_mul_u32_u24 v24, 40, v{vC}')
        a('v_add_u32 v29, v29, v24')
        a(f'v_add_u32 v29, s{sM0B}, v29')
        a('s_mul_i32 s4, s10, 5120')
        a(f's_add_u32 s4, s4, {WF_OFF}')
        a('s_cmp_ge_u32 s10, 480')
        a(f's_cselect_b32 s4, {OOB}, s4')
        a(f'v_add_u32 v24, s4, v{vLN}')
        a(f'v_add_u32 v25, s4, v{vLN + 1}')
        a(f's_lshl_b32 s5, s10, {FSH}')
        a(f's_add_u32 s5, s5, {FU_OFF}')
        a('s_cmp_ge_u32 s10, 480')
        a(f's_cselect_b32 s10, {OOB}, s5')
        a.wait(utok)
        ut = []
        for t in range(5):
            a(f'ds_read_b64_tr_b16 {V(UP(t), 2)}, v29 offset:{8 * t}')
            ut.append(a(f'ds_read_b64_tr_b16 {V(UP(t) + 2, 2)}, v29 offset:{8 * t + 2560}'))
        for t in range(5):
            a.wait(ut[t])
            vo, off = (24, t * 1024) if t < 4 else (25, 0)
            a(f'buffer_store_dwordx4 {V(UP(t), 4)}, v{vo}, {S(sWS, 4)}, 0 offen offset:{off} sc1')

    if 'unitfirst' in EXP:
        unit_part()
    a.wait(xt[4])
    stamp(a, 'x')
    for k in range(10):
        a(f'v_dot2c_f32_bf16 v{vS + (k & 1)}, v{X + k}, v{vONE}')
        a(f'v_dot2c_f32_bf16 v{vS + 2 + (k & 1)}, v{X + k}, v{X + k}')
    a(f'v_add_f32 v{vS}, v{vS}, v{vS + 1}')
    a(f'v_add_f32 v{vS + 2}, v{vS + 2}, v{vS + 3}')
    for sh in (8, 4, 2, 1):
        for r in (vS, vS + 2):
            a(f'v_add_f32_dpp v{r}, v{r}, v{r} row_ror:{sh} row_mask:0xf bank_mask:0xf')
    for r in (vS, vS + 2):
        a(f'v_mov_b32 v{r + 1}, v{r}')
        a(f'v_permlane16_swap_b32 v{r}, v{r + 1}')
        a(f'v_add_f32 v{r}, v{r}, v{r + 1}')
    ln_scales(a, vS, vRS, vNB)
    a(f'v_mul_f32 v{vS + 1}, v{vRS}, v{vRS}')
    a(f'v_mov_b32 v{vS + 3}, {fbits(1e-5)}')
    a(f'v_fmac_f32 v{vS + 3}, v{vS + 1}, v{vS + 2}')
    a(f'v_rsq_f32 v{vS + 2}, v{vS + 3}')
    U = 172
    for k in range(10):
        a(f'v_lshlrev_b32 v{U + 2 * k}, 16, v{X + k}')
        a(f'v_and_b32 v{U + 2 * k + 1}, 0xffff0000, v{X + k}')
    for k in range(10):
        a(f'v_pk_fma_f32 {V(U + 2 * k, 2)}, {V(U + 2 * k, 2)}, {V(vRS, 2)}, {V(vNB, 2)} op_sel_hi:[1,0,0]')
    XQ = 192
    for k in range(10):
        a(f'v_cvt_pk_bf16_f32 v{XQ + k}, v{U + 2 * k}, v{U + 2 * k + 1}')
    for k in range(10):
        a(f'v_pk_mul_f32 {V(U + 2 * k, 2)}, {V(U + 2 * k, 2)}, {V(vS + 2, 2)} op_sel_hi:[1,0]')
    for k in range(10):
        a(f'v_cvt_pk_bf16_f32 v{X + k}, v{U + 2 * k}, v{U + 2 * k + 1}')
    a(f's_mul_i32 s4, s{sW}, {2 * 1296}')
    a('s_add_u32 s4, s4, s13')
    a(f'v_mul_u32_u24 v24, 40, v{vL}')
    a(f'v_lshrrev_b32 v25, 5, v{vL}')
    a('v_lshl_add_u32 v24, v25, 4, v24')
    a('v_add_u32 v24, s4, v24')
    for k in range(5):
        a(f'ds_write_b64 v24, {V(XQ + 2 * k, 2)} offset:{8 * k}')
    a(f'v_and_b32 v25, 7, v{vTH}')
    a(f'v_lshrrev_b32 v26, 3, v{vTH}')
    a('v_mul_u32_u24 v28, 1296, v25')
    a('v_lshl_add_u32 v28, v26, 4, v28')
    a('v_add_u32 v28, s13, v28')
    a('v_lshlrev_b32 v29, 8, v26')
    a('v_lshl_add_u32 v29, v25, 4, v29')
    a(f's_lshr_b32 s4, s12, 1')
    a('s_mul_i32 s4, s4, 20480')
    a(f's_and_b32 s5, s12, 1')
    a('s_lshl_b32 s5, s5, 7')
    a('s_add_u32 s4, s4, s5')
    a(f's_add_u32 s4, s4, {XF_OFF}')
    a('v_add_u32 v29, s4, v29')
    a('v_add_u32 v30, 8192, v29')
    a(f's_cmp_ge_u32 s{sW}, 2')
    a(f's_cselect_b32 s4, {OOB}, 16384')
    a('v_add_u32 v31, s4, v29')
    a(f's_mul_i32 s4, s{sW}, 2560')
    a('s_add_u32 s4, s4, s14')
    a(f'v_mul_u32_u24 v24, 40, v{vL}')
    a('v_add_u32 v24, s4, v24')
    for k in range(5):
        a(f'ds_write_b64 v24, {V(X + 2 * k, 2)} offset:{8 * k}')
    a(f'v_mul_u32_u24 v24, 1280, v{vR}')
    a(f'v_mul_u32_u24 v25, 160, v{vG}')
    a('v_add_u32 v24, v24, v25')
    a(f'v_mul_u32_u24 v25, 40, v{vC}')
    a('v_add_u32 v24, v24, v25')
    a('v_add_u32 v24, s14, v24')
    a(f'v_mul_u32_u24 v25, {64 * 5120}, v{vG}')
    a(f'v_lshl_add_u32 v25, v{vI}, 4, v25')
    a(f's_lshr_b32 s4, s12, 2')
    a('s_mul_i32 s4, s4, 5120')
    a(f's_and_b32 s5, s12, 3')
    a('s_lshl_b32 s5, s5, 8')
    a('s_add_u32 s4, s4, s5')
    a(f's_add_u32 s8, s4, {HF_OFF}')
    a.wait_lg0()
    a('s_barrier')
    ht = []
    for m in range(3):
        ht.append(a(f'ds_read_b128 {V(XQ + 4 * m, 4)}, v28 offset:{512 * m}'))
    for m in range(3):
        a.wait(ht[m])
        a(f'buffer_store_dwordx4 {V(XQ + 4 * m, 4)}, v{29 + m}, {S(sWS, 4)}, 0 offen sc1')
    ht = []
    for m in range(3):
        a(f's_add_u32 s4, s{sW}, {4 * m}')
        a('s_min_u32 s5, s4, 9')
        a('s_cmp_ge_u32 s5, 5')
        a(f's_cselect_b32 s6, {640 - 40}, 0')
        a(f's_cselect_b32 s7, {4 * 64 * 5120 - 5120}, 0')
        a('s_lshl_b32 s5, s5, 3')
        a('s_add_u32 s5, s5, s6')
        a('v_add_u32 v26, s5, v24')
        a(f'ds_read_b64_tr_b16 {V(U + 4 * m, 2)}, v26')
        ht.append(a(f'ds_read_b64_tr_b16 {V(U + 4 * m + 2, 2)}, v26 offset:{4 * 1280}'))
        a('s_lshl_b32 s5, s4, 10')
        a('s_add_u32 s5, s5, s7')
        a('s_add_u32 s5, s5, s8')
        a('s_cmp_ge_u32 s4, 10')
        a(f's_cselect_b32 s5, {OOB}, s5')
        a(f'v_add_u32 v{34 + m}, s5, v25')
    for m in range(3):
        a.wait(ht[m])
        a(f'buffer_store_dwordx4 {V(U + 4 * m, 4)}, v{34 + m}, {S(sWS, 4)}, 0 offen sc1')
    hst = ('vm', a.vm_issued - 1)
    if 'unitfirst' not in EXP:
        unit_part()
    a(f's_lshl_b32 s4, s{sWH}, 2')
    a(f's_add_u32 s4, s4, {L_CNT}')
    a('v_mov_b32 v10, s4')
    a('v_mov_b32 v11, 1')
    a.wait(hst)
    a('s_mov_b64 exec, 1')
    a('ds_add_rtn_u32 v11, v10, v11')
    a('s_mov_b64 exec, -1')
    a.wait_lg0()
    a('v_readfirstlane_b32 s5, v11')
    a(f's_lshl_b32 s4, s12, {FSH}')
    a(f's_add_u32 s4, s4, {FH_OFF}')
    a('s_cmp_lg_u32 s5, 3')
    a('s_cbranch_scc1 L_nofh')
    flag_set(a, 4)
    a.label('L_nofh')
    a.wait_vm0()
    flag_set(a, 10)
    stamp(a, 'prep')
    a(f's_mov_b32 s{sL}, {fbits(LOG2E)}')
    a(f's_mov_b32 s{sL + 1}, {fbits(LOG2E)}')
    a(f's_mov_b32 s{sNL}, {fbits(-LOG2E)}')
    a(f's_mov_b32 s{sNL + 1}, {fbits(-LOG2E)}')
    a(f's_mul_i32 s10, s{sHG}, 60')
    a(f's_lshl_b32 s4, s10, {FSH}')
    a(f's_add_u32 s4, s4, {FU_OFF}')
    if 'fewpoll' in EXP:
        a(f'v_min_u32 v20, 14, v{vI}')
        a(f'v_lshl_add_u32 v20, v20, 2, s{sW}')
        a(f'v_lshl_add_u32 v20, v20, {FSH}, s4')
    else:
        a(f'v_lshl_add_u32 v20, v{vL}, {FSH}, s4')
    a(f's_lshl_b32 s11, s{sRB}, 2')
    a(f's_add_u32 s11, s11, s{sW}')
    a(f's_lshl_b32 s4, s11, {FSH + 2}')
    a(f's_add_u32 s4, s4, {FH_OFF}')
    a(f'v_lshl_add_u32 v21, v{vC}, {FSH}, s4')
    if 'fewpoll' in EXP:
        a(f's_cmp_lg_u32 s{sWH}, 0')
        a('s_cselect_b64 vcc, -1, 0')
    else:
        a(f'v_cmp_gt_u32 vcc, 60, v{vL}')
    a('v_cndmask_b32 v20, v21, v20, vcc')
    a(f's_add_u32 s10, s10, s{sW}')
    a('s_mul_i32 s10, s10, 5120')
    a(f's_add_u32 s10, s10, {WF_OFF}')
    a(f's_add_u32 s9, s10, {40 * 5120}')
    a(f's_mul_i32 s{sM0B}, s{sW}, 5120')
    a('s_mul_i32 s11, s11, 40960')
    a(f's_add_u32 s11, s11, {XF_OFF}')
    a(f'v_add_u32 v10, 20480, v{vLN}')
    a(f'v_add_u32 v26, {L_RING}, v{vLN}')
    a(f'v_add_u32 v27, 61440, v{vLN}')

    def wphi_frags(WPF, wbase, zbase):
        a(f'v_mul_u32_u24 v22, 800, v{vG}')
        a(f'v_mul_u32_u24 v23, 40, v{vR}')
        a('v_add_u32 v22, v22, v23')
        a(f'v_add_u32 v22, {wbase}, v22')
        a(f'v_mov_b32 v23, {zbase}')
        a(f'v_cmp_eq_u32 vcc, v{vG}, v{vC}')
        a('v_cndmask_b32 v22, v23, v22, vcc')
        for t in range(5):
            for d4 in range(5):
                a(f'ds_read_b64_tr_b16 {V(WPF(t, d4 // 2) + 2 * (d4 % 2), 2)}, v22 offset:{4 * d4 * 40 + 8 * t}')

    Q = lambda k: 48 + 4 * k
    WPF = lambda t, ks: Q(2 * t + ks) if ks < 2 else Q(10 + t // 2) + 2 * (t % 2)
    a('s_barrier')
    wphi_frags(WPF, L_WPHI, L_ZERO)
    a.wait_lg0()
    a('s_barrier')
    flag_check(a, flag_issue(a, 20, 21), 20, 21)
    stamp(a, 'go')

    def xload(dst, ks, z):
        off = f' offset:{(ks % 4) * 1024}' if ks % 4 else ''
        t = a(f'buffer_load_dwordx4 {V(dst, 4)}, v{vLN if z == 0 else 10}, {S(sWS, 4)}, s11 offen{off} sc1')
        if ks % 4 == 3 and z == 1:
            a('s_add_u32 s11, s11, 4096')
        return t

    a(f's_cmp_lg_u32 s{sWH}, 0')
    a('s_cbranch_scc1 L_a_upper')
    at_split = a.save()
    a('s_setprio 2')
    AC = lambda k, z: Q(13 + 2 * k + z)
    XR = lambda ks, z: Q(33 + (ks % 6) * 2 + z)
    FW = lambda n: Q(45 + n % 7)
    xtok = {}
    for ks in range(5):
        for z in range(2):
            xtok[ks] = xload(XR(ks, z), ks, z)
    a('s_barrier')
    stamp(a, 'a0')
    WIN, NF = 6, 200
    ftok = {}

    def read_frag(n):
        d, r = divmod(n, 20)
        ftok[n] = a(f'ds_read_b128 {V(FW(n), 4)}, v26 offset:{(d % 3) * 20480 + r * 1024}')

    for n in range(WIN):
        read_frag(n)
    for n in range(NF):
        nn = n + WIN
        if nn < NF:
            if nn % 20 == 0:
                a.wait_lg0()
                a('s_barrier')
                if (nn // 20) % 3 == 0:
                    stamp(a, f'a{nn // 20}')
            read_frag(nn)
        ks, k = divmod(n, 10)
        a.wait(ftok[n], xtok[ks])
        for z in range(2):
            c = '0' if ks == 0 else V(AC(k, z), 4)
            a(f'v_mfma_f32_16x16x32_bf16 {V(AC(k, z), 4)}, {V(FW(n), 4)}, {V(XR(ks, z), 4)}, {c}')
        if k in (2, 6) and ks + 5 < 20:
            xtok[ks + 5] = xload(XR(ks + 5, k // 4), ks + 5, k // 4)
    a('s_barrier')
    stamp(a, 'aend')
    vSA, vKA, vKO = 8, 9, 12
    a(f's_lshl_b32 s4, s{sW}, 5')
    a(f'v_lshl_add_u32 v{vSA}, v{vG}, 7, v{vI}')
    a(f'v_add_u32 v{vSA}, s4, v{vSA}')
    a(f'v_mul_u32_u24 v{vSA}, 120, v{vSA}')
    a(f'v_add_u32 v{vSA}, {L_RING}, v{vSA}')
    for z in range(2):
        for t in range(5):
            r = AC(5 + t, z)
            a(f'v_cvt_pk_bf16_f32 v{r}, v{r}, v{r + 1}')
            a(f'v_cvt_pk_bf16_f32 v{r + 1}, v{r + 2}, v{r + 3}')
            a(f'ds_write_b64 v{vSA}, {V(r, 2)} offset:{z * 16 * 120 + 80 + 8 * t}')
    PK = [Q(33), Q(34), Q(35)]
    EN5 = [Q(36 + c) for c in range(5)]
    for z in range(2):
        E5 = [AC(t, z) for t in range(5)]
        P5 = [Q(41 + 5 * z + c) for c in range(5)]
        featmap(a, E5, PK, WPF, P5, E5, EN5, 32)
        for c in range(10):
            a(f'ds_write_b64 v{vSA}, {V(P5[c // 2] + 2 * (c % 2), 2)} offset:{z * 16 * 120 + 8 * c}')
    stamp(a, 'fm')
    a(f's_mul_i32 s4, s{sW}, {128 * 120}')
    a(f's_add_u32 s4, s4, {L_RING}')
    a(f'v_mul_u32_u24 v{vKA}, 120, v{vGR}')
    a(f'v_lshl_add_u32 v{vKA}, v{vC}, 3, v{vKA}')
    a(f'v_add_u32 v{vKA}, s4, v{vKA}')
    a(f's_lshl_b32 s4, s{sHG}, 2')
    a(f's_add_u32 s4, s4, s{sW}')
    a('s_lshl_b32 s4, s4, 4')
    a(f's_add_u32 s13, s4, s{sRB}')
    a('s_mul_i32 s4, s13, 6144')
    a(f's_add_u32 s4, s4, {KV_OFF}')
    a(f'v_lshl_add_u32 v{vKO}, v{vL}, 4, s4')
    a('s_movk_i32 s12, 0x1000')
    a(f'v_mov_b32 v11, {OOB}')
    a(f'v_cmp_gt_u32 vcc, 8, v{vI}')
    a(f'v_cndmask_b32 v{vKO + 1}, v11, v{vKO}, vcc')
    a(f'v_cmp_gt_u32 vcc, 2, v{vG}')
    a(f'v_cndmask_b32 v{vKO + 2}, v11, v{vKO}, vcc')
    a(f'v_cndmask_b32 v{vKO + 3}, v11, v{vKO + 1}, vcc')
    a(f's_lshl_b32 s13, s13, {FSH}')
    a(f's_add_u32 s10, s13, {FK_OFF}')
    a('v_mov_b32 v11, 0x3f803f80')
    a(f'v_cmp_eq_u32 vcc, 1, v{vR}')
    a.wait_lg0()
    a('s_barrier')
    ktok = {}
    OPQ = lambda kk, x: Q(13 + kk * 5 + x)
    KVA = [Q(k) for k in range(6)]

    def kv_read(kk):
        for x in range(5):
            col = 32 * x if x < 3 else 80 + 32 * (x - 3)
            a(f'ds_read_b64_tr_b16 {V(OPQ(kk, x), 2)}, v{vKA} offset:{kk * 32 * 120 + col}')
            ktok[kk] = a(f'ds_read_b64_tr_b16 {V(OPQ(kk, x) + 2, 2)}, v{vKA} offset:{kk * 32 * 120 + 16 * 120 + col}')

    kv_read(0)
    for kk in range(4):
        if kk + 1 < 4:
            kv_read(kk + 1)
        a.wait(ktok[kk])
        for j in range(4):
            a(f'v_cndmask_b32 v{OPQ(kk, 4) + j}, v{OPQ(kk, 4) + j}, v11, vcc')
        for et in range(2):
            for ft in range(3):
                d = V(KVA[ft * 2 + et], 4)
                a(f'v_mfma_f32_16x16x32_bf16 {d}, {V(OPQ(kk, 3 + et), 4)}, {V(OPQ(kk, ft), 4)}, {"0" if kk == 0 else d}')
    for ft in range(3):
        for et in range(2):
            vo = vKO + (1 if ft == 2 else 0) + (2 if et == 1 else 0)
            so = 's12' if ft == 2 else '0'
            a(f'buffer_store_dwordx4 {V(KVA[ft * 2 + et], 4)}, v{vo}, {S(sWS, 4)}, {so} offen offset:{(ft % 2) * 2048 + et * 1024} sc1')
    a.wait_vm0()
    flag_set(a, 10)
    a(f's_mov_b32 s10, {OOB}')
    if 'pfa' in EXP:
        a(f's_lshr_b32 s4, s{sID}, 3')
        a('s_lshl_b32 s4, s4, 2')
        a(f's_add_u32 s4, s4, s{sW}')
        a(f's_mul_i32 s5, s4, {27 * 4096}')
        a(f's_and_b32 s7, s{sID}, 7')
        a('s_lshl_b32 s7, s7, 9')
        a('s_add_u32 s5, s5, s7')
        a(f'v_lshrrev_b32 v24, 2, v{vL}')
        a('v_min_u32 v24, 13, v24')
        a('v_lshlrev_b32 v24, 12, v24')
        a(f'v_lshl_add_u32 v24, v{vC}, 7, v24')
        a('v_add_u32 v24, s5, v24')
        a(f'buffer_load_dword v37, v24, {S(sW2, 4)}, 0 offen')
        a(f'v_add_u32 v24, {13 * 4096}, v24')
        a(f'buffer_load_dword v37, v24, {S(sW2, 4)}, 0 offen')
    a('s_barrier')
    a('s_branch L_join')

    a.label('L_a_upper')
    a.restore(at_split)
    wtok = {}

    def dma5(so, lds):
        a(f's_add_u32 m0, s{sM0B}, {lds}')
        for q in range(4):
            off = f' offset:{q * 1024}' if q else ''
            a(f'buffer_load_dwordx4 v{vLN}, {S(sWS, 4)}, s{so} offen{off} sc1 lds')
        a(f's_add_u32 m0, s{sM0B}, {lds + 4096}')
        t = a(f'buffer_load_dwordx4 v{vLN + 1}, {S(sWS, 4)}, s{so} offen sc1 lds')
        a(f's_add_u32 s{so}, s{so}, 20480')
        return t

    NXR = 12
    XQ_ = lambda ks, z: Q(13 + (ks % NXR) * 2 + z)
    AQ = lambda t, z: Q(37 + 2 * t + z)
    FQ = lambda n: Q(47 + n % 5)
    xtok = {}
    for d in range(3):
        wtok[d] = dma5(10, L_RING + d * 20480)
    for d in range(10):
        a.wait(wtok[d])
        a('s_barrier')
        if 1 <= d and d + 2 < 10:
            wtok[d + 2] = dma5(10, L_RING + ((d + 2) % 3) * 20480)
        if d < 5:
            qtok = dma5(9, L_WQ + d * 20480)
        if 4 <= d < 10:
            for ks in (2 * (d - 4), 2 * (d - 4) + 1):
                for z in range(2):
                    xtok[ks] = xload(XQ_(ks, z), ks, z)
    a.wait(qtok)
    a('s_barrier')
    ftok = {}

    def read_q(n):
        off = n * 1024
        ftok[n] = a(f'ds_read_b128 {V(FQ(n), 4)}, v{vLN if off < 61440 else 27} offset:{off % 61440}')

    QBAR = int(os.environ.get('QBAR', '-1'))
    if QBAR < 0:
        a('s_barrier')
    for n in range(4):
        read_q(n)
    for n in range(100):
        if n + 4 < 100:
            read_q(n + 4)
        ks, t = divmod(n, 5)
        a.wait(ftok[n], xtok[ks])
        for z in range(2):
            c = '0' if ks == 0 else V(AQ(t, z), 4)
            a(f'v_mfma_f32_16x16x32_bf16 {V(AQ(t, z), 4)}, {V(FQ(n), 4)}, {V(XQ_(ks, z), 4)}, {c}')
        if t in (1, 3) and ks >= 1 and ks - 1 + NXR < 20:
            xtok[ks - 1 + NXR] = xload(XQ_(ks - 1 + NXR, t // 2), ks - 1 + NXR, t // 2)
        if n == QBAR:
            a('s_barrier')
    a('s_barrier')
    stamp(a, 'aend')
    PK = [Q(13), Q(14), Q(15)]
    EN5 = [Q(16 + c) for c in range(5)]
    PP = [[Q(21 + 5 * z + c) for c in range(5)] for z in range(2)]
    for z in range(2):
        E5 = [AQ(t, z) for t in range(5)]
        featmap(a, E5, PK, WPF, PP[z], E5, EN5, 32)
    stamp(a, 'fm')
    a('s_setprio 3')
    a(f's_mul_i32 s6, s{sW}, 10240')
    a(f's_add_u32 s6, s6, {L_RING}')
    a(f'v_lshlrev_b32 v31, 11, v{vG}')
    a(f'v_lshl_add_u32 v31, v{vR}, 3, v31')
    a('v_mov_b32 v21, 8192')
    a(f'v_cmp_eq_u32 vcc, v{vG}, v{vC}')
    a('v_cndmask_b32 v31, v21, v31, vcc')
    a('v_add_u32 v31, s6, v31')
    for k in range(4):
        a(f'v_mov_b32 v{44 + k}, 0')
    a(f'v_add_u32 v21, s6, v{vLN}')
    a('ds_write_b128 v21, v[44:47] offset:8192')
    a('ds_write_b128 v21, v[44:47] offset:9216')
    a(f's_lshl_b32 s4, s{sHG}, {4 + FSH}')
    a(f's_add_u32 s4, s4, {FR_OFF}')
    a(f'v_lshl_add_u32 v20, v{vI}, {FSH}, s4')
    a(f'v_lshlrev_b32 v8, 4, v{vL}')
    a('v_add_u32 v9, 4096, v8')
    a(f'v_lshlrev_b32 v10, 3, v{vL}')
    a(f's_lshl_b32 s5, s{sHG}, 13')
    a(f's_add_u32 s5, s5, {KB_OFF}')
    a(f's_lshl_b32 s7, s{sRB}, 1')
    a(f's_lshr_b32 s8, s{sW}, 1')
    a('s_add_u32 s7, s7, s8')
    a(f's_and_b32 s8, s{sW}, 1')
    a('s_lshl_b32 s8, s8, 1')
    a(f's_lshr_b32 s12, s{sHG}, 1')
    a('s_mul_i32 s12, s12, 5')
    a('s_mul_i32 s13, s7, 20')
    a('s_add_u32 s12, s12, s13')
    a('s_lshl_b32 s12, s12, 2')
    a('s_add_u32 s12, s12, s8')
    a('s_lshl_b32 s12, s12, 10')
    a(f's_add_u32 s12, s12, {OF_OFF}')
    a(f's_and_b32 s13, s{sHG}, 1')
    a(f's_mul_i32 s14, s13, {3 * 4096}')
    a('s_add_u32 s14, s14, s12')
    a('s_lshl_b32 s13, s13, 9')
    a('s_add_u32 s12, s12, s13')
    a(f's_add_u32 s12, s12, {2 * 4096}')
    a('s_lshl_b32 s13, s7, 3')
    a(f's_add_u32 s13, s13, s{sHG}')
    a('s_lshl_b32 s13, s13, 2')
    a('s_add_u32 s13, s13, s8')
    a(f's_lshl_b32 s13, s13, {FSH}')
    a(f's_add_u32 s13, s13, {FO_OFF}')
    flag_check(a, flag_issue(a, 20, 21), 20, 21, int(os.environ.get('RSLEEP', '8')))
    stamp(a, 'rok')
    for hh in range(2):
        a(f's_add_u32 m0, s6, {4096 * hh}')
        for q in range(4):
            off = f' offset:{q * 1024}' if q else ''
            a(f'buffer_load_dwordx4 v{8 + hh}, {S(sWS, 4)}, s5 offen{off} sc1 lds')
    a.wait_all()
    OA = [[Q(31 + k) for k in range(6)], [Q(37 + k) for k in range(6)]]
    KF = lambda ks, t: Q((ks % 2) * 6 + t)
    otok = {}

    def o_read(ks):
        for t in range(6):
            a(f'ds_read_b64_tr_b16 {V(KF(ks, t), 2)}, v31 offset:{kb_pos(8 * ks, t)}')
            otok[ks] = a(f'ds_read_b64_tr_b16 {V(KF(ks, t) + 2, 2)}, v31 offset:{kb_pos(8 * ks + 4, t)}')

    o_read(0)
    for ks in range(5):
        if ks + 1 < 5:
            o_read(ks + 1)
        a.wait(otok[ks])
        for z in range(2):
            for t in range(6):
                d = V(OA[z][t], 4)
                a(f'v_mfma_f32_16x16x32_bf16 {d}, {V(KF(ks, t), 4)}, {V(PP[z][ks], 4)}, {"0" if ks == 0 else d}')
    for z in range(2):
        O = OA[z]
        PO = PK if z == 0 else [Q(16), Q(17), Q(18)]
        a(f'v_add_f32 v{O[5]}, {fbits(1e-6)}, v{O[5]}')
        a(f'v_rcp_f32 v{O[5]}, v{O[5]}')
        for t in range(5):
            for h in range(2):
                a(f'v_pk_mul_f32 {V(O[t] + 2 * h, 2)}, {V(O[t] + 2 * h, 2)}, {V(O[5], 2)} op_sel_hi:[1,0]')
        for k in range(10):
            t, j = divmod(2 * k, 4)
            a(f'v_cvt_pk_bf16_f32 v{PO[k // 4] + k % 4}, v{O[t] + j}, v{O[t] + j + 1}')
        off = f' offset:{1024 * z}' if z else ''
        a(f'buffer_store_dwordx4 {V(PO[0], 4)}, v8, {S(sWS, 4)}, s14 offen{off} sc1')
        a(f'buffer_store_dwordx4 {V(PO[1], 4)}, v9, {S(sWS, 4)}, s14 offen{off} sc1')
        a(f'buffer_store_dwordx2 {V(PO[2], 2)}, v10, {S(sWS, 4)}, s12 offen{off} sc1')
    a.wait_vm0()
    flag_set(a, 13)
    a(f's_cmp_lg_u32 s{sID}, 0')
    a('s_cbranch_scc1 L_a_done')
    a(f's_cmp_lg_u32 s{sW}, 3')
    a('s_cbranch_scc1 L_a_done')
    a(f'v_and_b32 v20, 31, v{vL}')
    a('v_min_u32 v20, 26, v20')
    a(f'v_and_b32 v21, 32, v{vL}')
    a('v_add_u32 v20, v20, v21')
    a(f'v_lshlrev_b32 v20, {FSH + 2}, v20')
    for k in range(4):
        a(f'v_add_u32 v22, {FG_OFF + (k * 256 << FSH)}, v20')
        flag_check(a, flag_issue(a, 22, 21), 22, 21, 12)
    a(f'v_lshlrev_b32 v20, {FSH}, v{vL}')
    for base in (FR_OFF, FR_OFF + (64 << FSH)):
        a(f'v_add_u32 v22, {base}, v20')
        flag_check(a, flag_issue(a, 22, 21), 22, 21, 12)
    a(f'v_and_b32 v20, 31, v{vL}')
    a(f'v_lshlrev_b32 v20, {FSH}, v20')
    a(f'v_add_u32 v22, {FW_OFF}, v20')
    flag_check(a, flag_issue(a, 22, 21), 22, 21, 12)
    a(f's_mov_b32 s10, {EP_OFF}')
    flag_set(a, 10)
    a.label('L_a_done')
    stamp_flush(a, 'end')
    a('s_endpgm')


def role_b(a):
    if 'map4' in EXP:
        a(f's_lshr_b32 s{sBCB}, s6, 2')
        a('s_and_b32 s9, s6, 3')
        a('s_lshl_b32 s6, s9, 1')
    else:
        a('s_cmp_ge_u32 s6, 54')
        a('s_cselect_b32 s7, 54, 0')
        a('s_cselect_b32 s8, 4, 0')
        a('s_sub_u32 s6, s6, s7')
        a(f's_lshr_b32 s{sBCB}, s6, 1')
        a('s_and_b32 s9, s6, 1')
        a('s_lshl_b32 s6, s9, 1')
        a('s_add_u32 s6, s6, s8')
    PR = 24 if 'map4' in EXP else 48
    a(f's_add_u32 s{sBDB}, s6, s{sWH}')
    srd(a, sW1, P_W1, S_ * F_ * 2)
    g_common(a)
    gB = GGemm(a, 'B')
    gB.setup()
    BPRE = int(os.environ.get('BPRE', '10'))
    if 'g1lin' in EXP:
        a(f's_lshl_b32 s4, s{sBCB}, 2')
        a('s_add_u32 s4, s4, s9')
        a('s_lshl_b32 s4, s4, 3')
        a(f's_add_u32 s4, s4, s{sW8}')
        a('s_lshl_b32 s4, s4, 13')
        a(f'v_lshl_add_u32 v24, v{vL}, 7, s4')
        a(f'buffer_load_dword v37, v24, {S(sW1, 4)}, 0 offen')
        if 'g1wait' in EXP:
            a.wait_vm0()
    if 'g1first' in EXP:
        a('s_lshl_b32 s4, s9, 1')
        a(f's_add_u32 s4, s4, s{sWH}')
        a(f's_lshl_b32 s5, s{sW}, 9')
        a('s_add_u32 s4, s4, s5')
        a(f's_mul_i32 s4, s4, {F_ * 2}')
        a(f's_lshl_b32 s5, s{sBCB}, 7')
        a('s_add_u32 s4, s4, s5')
        a(f'v_mul_u32_u24 v24, {8 * F_ * 2}, v{vL}')
        a('v_add_u32 v24, s4, v24')
        a(f'buffer_load_dword v37, v24, {S(sW1, 4)}, 0 offen')
    for j in range(BPRE):
        Hooks(gB.dma_items(j)).flush()

    def b_extra(j):
        return []

    a('s_lshl_b32 s4, s9, 1')
    a(f's_add_u32 s4, s4, s{sWH}')
    a(f's_mul_i32 s4, s4, {PR}')
    a(f's_lshl_b32 s5, s{sW}, 9')
    a('s_add_u32 s4, s4, s5')
    a(f's_add_u32 s4, s4, {32 * B_P}')
    a(f's_mul_i32 s4, s4, {F_ * 2}')
    a(f's_lshl_b32 s5, s{sBCB}, 7')
    a('s_add_u32 s4, s4, s5')
    a(f'v_min_u32 v24, {PR - 1}, v{vL}')
    a(f'v_mul_u32_u24 v24, {F_ * 2}, v24')
    a('v_add_u32 v24, s4, v24')
    if 'g1first' not in EXP and 'nog1' not in EXP:
        a(f'buffer_load_dword v37, v24, {S(sW1, 4)}, 0 offen')
    srd(a, sAUX, P_B1, F_ * 2)
    a(f's_lshl_b32 s4, s{sBCB}, 7')
    a(f's_lshl_b32 s5, s{sW}, 5')
    a('s_add_u32 s4, s4, s5')
    a(f'v_lshl_add_u32 v24, v{vG}, 3, s4')
    a(f'buffer_load_dwordx2 v[38:39], v24, {S(sAUX, 4)}, 0 offen')
    tag_ready(a)
    a('s_barrier')
    stamp(a, 'prep')
    a(f's_cmp_lg_u32 s{sWH}, 0')
    a('s_cbranch_scc1 L_b_go')
    flag_check(a, flag_issue(a, vFL, vFD), vFL, vFD, 3)
    a.label('L_b_go')
    a.wait_vm0()
    a('s_barrier')
    stamp(a, 'go')
    Hooks(gB.frag_items(int(os.environ.get('FIRSTB', '25')))).flush()
    for j in range(BPRE, B_P):
        Hooks(gB.dma_items(j)).flush()

    if 'cinit' in EXP:
        for t in range(5):
            a(f'v_lshlrev_b32 v{ACC(t, 0)}, 16, v38')
            a(f'v_and_b32 v{ACC(t, 0) + 1}, 0xffff0000, v38')
            a(f'v_lshlrev_b32 v{ACC(t, 0) + 2}, 16, v39')
            a(f'v_and_b32 v{ACC(t, 0) + 3}, 0xffff0000, v39')
    gB.mainloop(b_extra)
    stamp(a, 'Bend')
    gB.reduce()
    R = lambda t, j: ACC(t, 0) + j
    T = lambda t, j: ACC(t, 1) + j
    a('v_lshlrev_b32 v34, 16, v38')
    a('v_and_b32 v35, 0xffff0000, v38')
    a('v_lshlrev_b32 v36, 16, v39')
    a('v_and_b32 v37, 0xffff0000, v39')
    c0 = 0.7978845608028654
    k1 = -2.0 * c0 * LOG2E
    k2 = k1 * 0.044715
    a(f's_mov_b32 s4, {fbits(k2)}')
    a(f's_mov_b32 s5, {fbits(k2)}')
    a(f'v_mov_b32 v24, {fbits(k1)}')
    a('v_mov_b32 v26, 1.0')
    th = [(t, h) for t in range(5) for h in range(2)]
    tj = [(t, j) for t in range(5) for j in range(4)]
    for t, h in ([] if 'cinit' in EXP else th):
        a(f'v_pk_add_f32 {V(R(t, 2 * h), 2)}, {V(R(t, 2 * h), 2)}, {V(34 + 2 * h, 2)}')
    for t, h in th:
        a(f'v_pk_mul_f32 {V(T(t, 2 * h), 2)}, {V(R(t, 2 * h), 2)}, {V(R(t, 2 * h), 2)}')
    for t, h in th:
        a(f'v_pk_fma_f32 {V(T(t, 2 * h), 2)}, {V(T(t, 2 * h), 2)}, s[4:5], v[24:25] op_sel_hi:[1,0,0]')
    for t, h in th:
        a(f'v_pk_mul_f32 {V(T(t, 2 * h), 2)}, {V(T(t, 2 * h), 2)}, {V(R(t, 2 * h), 2)}')
    for t, j in tj:
        a(f'v_exp_f32 v{T(t, j)}, v{T(t, j)}')
    for t, h in th:
        a(f'v_pk_add_f32 {V(T(t, 2 * h), 2)}, {V(T(t, 2 * h), 2)}, v[26:27] op_sel_hi:[1,0]')
    for t, j in tj:
        a(f'v_rcp_f32 v{T(t, j)}, v{T(t, j)}')
    for t, h in th:
        a(f'v_pk_mul_f32 {V(T(t, 2 * h), 2)}, {V(T(t, 2 * h), 2)}, {V(R(t, 2 * h), 2)}')
    a(f's_mul_i32 s4, s{sW8}, 2560')
    a('s_add_u32 s4, s4, 81920')
    a(f'v_lshl_add_u32 v24, v{vL}, 3, s4')
    for t in range(5):
        a(f'v_cvt_pk_bf16_f32 v{R(t, 0)}, v{T(t, 0)}, v{T(t, 1)}')
        a(f'v_cvt_pk_bf16_f32 v{R(t, 1)}, v{T(t, 2)}, v{T(t, 3)}')
        a(f'ds_write_b64 v24, {V(R(t, 0), 2)} offset:{t * 512}')
    a(f's_mul_i32 s4, s{sBDB}, 74')
    a(f's_lshl_b32 s5, s{sBCB}, 1')
    a('s_add_u32 s4, s4, s5')
    a('s_mul_i32 s4, s4, 5120')
    a(f's_add_u32 s15, s4, {GF_OFF}')
    a(f's_mul_i32 s4, s{sWH}, 10240')
    a('s_add_u32 s4, s4, 81920')
    a(f'v_lshl_add_u32 v25, v{vL}, 3, s4')
    a.wait_lg0()
    a('s_barrier')
    gt = []
    for m in range(3):
        frag10_addr(a, m, 2 * 2560 - 5 * 512, 512, 15, 24, 25, 34 + m)
        a(f'ds_read_b64 {V(ACC(m, 2), 2)}, v24')
        gt.append(a(f'ds_read_b64 {V(ACC(m, 2) + 2, 2)}, v24 offset:2560'))
    for m in range(3):
        a.wait(gt[m])
        a(f'buffer_store_dwordx4 {V(ACC(m, 2), 4)}, v{34 + m}, {S(sWS, 4)}, 0 offen sc1')
    a(f's_lshl_b32 s4, s{sBDB}, 5')
    a(f's_add_u32 s4, s4, s{sBCB}')
    a('s_lshl_b32 s4, s4, 2')
    a(f's_add_u32 s4, s4, s{sW}')
    a(f's_lshl_b32 s4, s4, {FSH}')
    a(f's_add_u32 s10, s4, {FG_OFF}')
    a('s_branch L_join')


def role_r(a):
    a('s_lshl_b32 s11, s6, 1')
    a(f's_add_u32 s11, s11, s{sWH}')
    tag_ready(a)
    PFA = 0
    stamp(a, 'prep')
    a('s_setprio 3')
    a(f's_lshl_b32 s4, s11, {4 + FSH}')
    a(f's_add_u32 s4, s4, {FK_OFF}')
    a(f'v_lshl_add_u32 v{vFL}, v{vI}, {FSH}, s4')
    a(f's_lshl_b32 s5, s{sW}, 11')
    a(f'v_lshl_add_u32 v24, v{vL}, 4, s5')
    a(f'v_lshrrev_b32 v25, 5, v{vL}')
    a(f'v_and_b32 v26, 31, v{vL}')
    a('v_lshlrev_b32 v26, 4, v26')
    a('v_lshl_add_u32 v25, v25, 11, v26')
    a('v_add_u32 v25, 1024, v25')
    a(f's_cmp_eq_u32 s{sW}, 2')
    a('s_cselect_b64 vcc, -1, 0')
    a('v_cndmask_b32 v24, v24, v25, vcc')
    a(f'v_lshrrev_b32 v25, 3, v{vL}')
    a(f'v_and_b32 v26, 7, v{vL}')
    a('v_lshlrev_b32 v26, 4, v26')
    a('v_lshl_add_u32 v25, v25, 8, v26')
    a('v_add_u32 v25, 4096, v25')
    a(f's_cmp_eq_u32 s{sW}, 3')
    a('s_cselect_b64 vcc, -1, 0')
    a('v_cndmask_b32 v24, v24, v25, vcc')
    a(f's_mul_i32 s4, s11, {16 * 6144}')
    a(f's_add_u32 s4, s4, {KV_OFF}')
    flag_check(a, flag_issue(a, vFL, vFD), vFL, vFD, int(os.environ.get('KSLEEP', '4')))
    stamp(a, 'hok')
    stok = []
    for rb in range(16):
        stok.append(a(f'buffer_load_dwordx4 {V(128 + 4 * rb, 4)}, v24, {S(sWS, 4)}, s4 offen sc1'))
        a('s_add_u32 s4, s4, 6144')
    for rb in range(1, 16):
        a.wait(stok[rb])
        for h in range(2):
            a(f'v_pk_add_f32 {V(128 + 2 * h, 2)}, {V(128 + 2 * h, 2)}, {V(128 + 4 * rb + 2 * h, 2)}')
    stamp(a, 'rsum')
    a('v_cvt_pk_bf16_f32 v34, v128, v129')
    a('v_cvt_pk_bf16_f32 v35, v130, v131')
    a('s_lshl_b32 s4, s11, 11')
    a(f's_add_u32 s4, s4, {KB_OFF}')
    a(f'v_lshl_add_u32 v24, v{vTH}, 3, s4')
    a(f'buffer_store_dwordx2 v[34:35], v24, {S(sWS, 4)}, 0 offen sc1')
    a('s_lshl_b32 s4, s11, 2')
    a(f's_add_u32 s4, s4, s{sW}')
    a(f's_lshl_b32 s4, s4, {FSH}')
    a(f's_add_u32 s10, s4, {FR_OFF}')
    a.wait_vm0()
    flag_set(a, 10)
    a(f's_mov_b32 s10, {OOB}')
    stamp(a, 'rpub')
    a('s_barrier')
    for k in range(PFA, 0 if 'nopf2' in EXP else 7):
        a(f'buffer_load_dword v37, v36, {S(sW2, 4)}, 0 offen')
        a(f'v_add_u32 v36, {8 * 4096}, v36')
    a('s_branch L_join')


def role_wot(a):
    a('s_lshl_b32 s11, s6, 1')
    a(f's_add_u32 s11, s11, s{sWH}')
    srd(a, sAUX, P_WO, D_ * D_ * 2)
    a(f'v_lshlrev_b32 v{vF}, 4, v{vL}')
    a(f'v_add_u32 v{vF + 1}, 4096, v{vF}')
    tag_ready(a)
    if 'wotlate' in EXP:
        a(f'v_mov_b32 v{vFL}, {FH_OFF}')
        flag_check(a, flag_issue(a, vFL, vFD), vFL, vFD, 16)
    dma160_voffs(a, 34, 1280, False, 24)
    a('s_mul_i32 s4, s11, 160')
    a(f's_mul_i32 s5, s{sW}, {160 * 1280}')
    a('s_add_u32 s7, s4, s5')
    a(f's_mul_i32 s6, s{sW8}, 20480')
    a(f'v_mul_u32_u24 v24, 20, v{vG}')
    a(f'v_add_u32 v24, v24, v{vR}')
    a('v_mul_u32_u24 v24, 160, v24')
    a(f'v_mul_u32_u24 v25, 40, v{vC}')
    a('v_add_u32 v24, v24, v25')
    a('v_add_u32 v24, s6, v24')
    a('s_mul_i32 s4, s11, 74')
    a(f's_mul_i32 s5, s{sW}, 5')
    a('s_add_u32 s4, s4, s5')
    a('s_add_u32 s4, s4, 54')
    a('s_mul_i32 s4, s4, 5120')
    a(f's_add_u32 s4, s4, {GF_OFF}')
    rounds = [[(0, 0, 0), (0, 1, 4), (1, 0, 8), (1, 1, 12), (2, 0, 16)],
              [(2, 1, 16), (3, 0, 0), (3, 1, 4), (4, 0, 8), (4, 1, 12)]]
    for rd in range(2):
        for k in range(3):
            a(f's_add_u32 s8, s7, {(rd * 80 + k * 32) * 1280}')
            dma160(a, 34, sAUX, 8, 6, k * 5120)
        a.wait_vm0()
        for u, hf, row in rounds[rd]:
            for t in range(5):
                a(f'ds_read_b64_tr_b16 {V(156 + (u * 5 + t) * 4 + 2 * hf, 2)}, v24 offset:{row * 160 + 8 * t}')
            a.wait_lg0()
    for u in range(5):
        for t in range(5):
            vo, off = (vF, t * 1024) if t < 4 else (vF + 1, 0)
            a(f'buffer_store_dwordx4 {V(156 + (u * 5 + t) * 4, 4)}, v{vo}, {S(sWS, 4)}, s4 offen offset:{off} sc1')
        a('s_add_u32 s4, s4, 5120')
    a('s_lshl_b32 s4, s11, 2')
    a(f's_add_u32 s4, s4, s{sW}')
    a(f's_lshl_b32 s4, s4, {FSH}')
    a(f's_add_u32 s10, s4, {FW_OFF}')
    a('s_barrier')


def final_gemm(a):
    g2 = GGemm(a, 'G2')
    if 'early_setup' in EXP:
        xcd_tile(a)
        g_common(a)
        g2.setup()
    a.wait_all()
    flag_set(a, 10)
    stamp(a, 'pub')
    a('s_setprio 0')
    a(f's_cmp_lg_u32 s{sWH}, 0')
    a('s_cbranch_scc1 L_fin')
    if 'early_setup' not in EXP:
        xcd_tile(a)
        g_common(a)
        g2.setup()
    if 'cinit' in EXP:
        srd(a, sAUX, P_B2, S_ * 2)
        a(f'v_mul_u32_u24 v{vXA}, 1280, v{vTOK}')
        a(f'v_mul_u32_u24 v{vBA}, 40, v{vG}')
        a(f's_mul_i32 s4, s{sHG}, 160')
        a(f'v_add3_u32 v{vXA}, v{vXA}, v{vBA}, s4')
        a(f'v_lshlrev_b32 v{vBA}, 1, v{vTOK}')
        XI = ACC(0, 1)
        a(f'buffer_load_ushort v36, v{vBA}, {S(sAUX, 4)}, 0 offen')
        a(f'buffer_load_dwordx4 {V(XI, 4)}, v{vXA}, {S(sX, 4)}, 0 offen')
        a(f'buffer_load_dwordx4 {V(XI + 4, 4)}, v{vXA}, {S(sX, 4)}, 0 offen offset:16')
        xin = a(f'buffer_load_dwordx2 {V(XI + 8, 2)}, v{vXA}, {S(sX, 4)}, 0 offen offset:32')
    for j in range(G2_P):
        Hooks(g2.dma_items(j)).flush()
    srd(a, sOUT, P_OUT, S_ * D_ * 2)
    R = lambda t, j: ACC(t, 0) + j
    T = lambda t, j: ACC(t, 1) + j
    srd(a, sAUX, P_B2, S_ * 2)
    a(f's_lshl_b32 s4, s{sRB}, {5 + FSH}')
    a(f's_lshl_b32 s5, s{sW}, {3 + FSH}')
    a('s_add_u32 s4, s4, s5')
    a(f's_add_u32 s4, s4, {FO_OFF}')
    a(f'v_lshl_add_u32 v34, v{vC}, {FSH + 1}, s4')
    a(f's_lshl_b32 s4, s{sHG}, 2')
    a(f's_add_u32 s4, s4, s{sW}')
    a(f's_lshl_b32 s4, s4, {FSH}')
    a(f's_add_u32 s4, s4, {FW_OFF}')
    a('v_mov_b32 v35, s4')
    a(f'v_cmp_gt_u32 vcc, 63, v{vL}')
    a(f'v_cndmask_b32 v{vFL}, v35, v{vFL}, vcc')
    for nt in range(4):
        a(f's_xor_b32 s4, s{sW}, {nt}')
        a('s_lshl_b32 s4, s4, 10')
        a(f'v_add_u32 v{vOF + nt}, s4, v{vF}')
    a(f's_mul_i32 s4, s{sRB}, 20')
    a(f's_mul_i32 s5, s{sW}, 5')
    a('s_add_u32 s4, s4, s5')
    a('s_lshl_b32 s4, s4, 12')
    a(f's_add_u32 s11, s4, {OF_OFF}')
    a(f'v_mul_u32_u24 v{vXA}, 1280, v{vTOK}')
    a(f'v_mul_u32_u24 v{vBA}, 40, v{vG}')
    a(f'v_add_u32 v{vXA}, v{vXA}, v{vBA}')
    a(f's_mul_i32 s4, s{sHG}, 160')
    a(f'v_add_u32 v{vXA}, s4, v{vXA}')
    a(f'v_lshlrev_b32 v{vBA}, 1, v{vTOK}')
    if 'outlds' in EXP:
        a(f's_lshl_b32 s5, s{sRB}, 2')
        a(f's_add_u32 s5, s5, s{sW}')
        a(f's_mul_i32 s5, s5, {16 * 1280}')
        a('s_add_u32 s4, s4, s5')
        for m in range(3):
            a(f'v_add_u32 v24, {64 * m}, v{vL}')
            a('v_mul_u32_u24 v25, 6554, v24')
            a('v_lshrrev_b32 v25, 16, v25')
            a(f'v_mul_u32_u24 v25, {1280 - 160}, v25')
            a('v_lshl_add_u32 v25, v24, 4, v25')
            a(f'v_add_u32 v{37 + m}, s4, v25')
        a(f'v_mov_b32 v24, {OOB}')
        a(f'v_cmp_gt_u32 vcc, 32, v{vL}')
        a('v_cndmask_b32 v39, v24, v39, vcc')
    flag_check(a, flag_issue(a, vFL, vFD), vFL, vFD, int(os.environ.get('GSLEEP', '2')))
    stamp(a, 'gok')
    fl = {}

    def gate():
        a(f's_mul_i32 s4, s{sHG}, 74')
        a(f's_mul_i32 s5, s{sW}, 5')
        a('s_add_u32 s4, s4, s5')
        a('s_add_u32 s4, s4, 54')
        a('s_mul_i32 s4, s4, 5120')
        a(f's_add_u32 s{sFS}, s4, {GF_OFF}')

    def gate2():
        stamp(a, 'oa')
        flag_check(a, fl['o'], 34, 35)
        stamp(a, 'ob')

    g2.gate = gate
    g2.gate2 = gate2
    XR = [8, 10, 14, 16, 18]

    def g2_extra(j):
        it = []
        if j == 9:
            def fo():
                fl['o'] = flag_issue(a, 34, 35)
            it.append(fo)
        if j == int(os.environ.get('JRES', '12')) and 'cinit' not in EXP:
            def resid():
                a(f'buffer_load_ushort v36, v{vBA}, {S(sAUX, 4)}, 0 offen')
                if 'inx4' in EXP:
                    a(f'buffer_load_dwordx4 v[8:11], v{vXA}, {S(sX, 4)}, 0 offen')
                    a(f'buffer_load_dwordx4 v[14:17], v{vXA}, {S(sX, 4)}, 0 offen offset:16')
                    fl['x'] = a(f'buffer_load_dwordx2 v[18:19], v{vXA}, {S(sX, 4)}, 0 offen offset:32')
                    return
                for t in range(5):
                    fl['x'] = a(f'buffer_load_dwordx2 {V(XR[t], 2)}, v{vXA}, {S(sX, 4)}, 0 offen offset:{8 * t}')
            it.append(resid)
        return it

    Hooks(g2.frag_items(int(os.environ.get('FIRSTG', '25')))).flush()
    if 'cinit' in EXP:
        a.wait(xin)
        a('v_lshlrev_b32 v36, 16, v36')
        for k in range(10):
            r = ACC(0, 0) + 2 * k
            a(f'v_lshlrev_b32 v{r}, 16, v{XI + k}')
            a(f'v_and_b32 v{r + 1}, 0xffff0000, v{XI + k}')
            a(f'v_pk_add_f32 {V(r, 2)}, {V(r, 2)}, v[36:37] op_sel_hi:[1,0]')
    g2.mainloop(g2_extra)
    stamp(a, 'Gend')
    g2.reduce()
    if 'cinit' not in EXP:
        a.wait(fl['x'])
        a('v_lshlrev_b32 v36, 16, v36')
    if 'outlds' in EXP:
        a(f's_mul_i32 s4, s{sW}, 3072')
        a('s_add_u32 s4, s4, 61440')
        a(f'v_mul_u32_u24 v24, 160, v{vI}')
        a(f'v_mul_u32_u24 v25, 40, v{vG}')
        a('v_add3_u32 v24, v24, v25, s4')
        a(f'v_add_u32 v25, s4, v{vF}')
    for t in range(5):
        for h in range(0 if 'cinit' in EXP else 2):
            a(f'v_lshlrev_b32 v{T(t, 2 * h)}, 16, v{XR[t] + h}')
            a(f'v_and_b32 v{T(t, 2 * h + 1)}, 0xffff0000, v{XR[t] + h}')
            a(f'v_pk_add_f32 {V(R(t, 2 * h), 2)}, {V(R(t, 2 * h), 2)}, v[36:37] op_sel_hi:[1,0]')
            a(f'v_pk_add_f32 {V(R(t, 2 * h), 2)}, {V(R(t, 2 * h), 2)}, {V(T(t, 2 * h), 2)}')
        OF_ = os.environ.get('OUTF', '')
        if 'outlds' in EXP:
            a(f'v_cvt_pk_bf16_f32 v{R(t, 0)}, v{R(t, 0)}, v{R(t, 1)}')
            a(f'v_cvt_pk_bf16_f32 v{R(t, 1)}, v{R(t, 2)}, v{R(t, 3)}')
            a(f'ds_write_b64 v24, {V(R(t, 0), 2)} offset:{8 * t}')
            if t == 4:
                rt = [a(f'ds_read_b128 {V(ACC(m, 2), 4)}, v25 offset:{1024 * m}') for m in range(3)]
                for m in range(3):
                    a.wait(rt[m])
                    a(f'buffer_store_dwordx4 {V(ACC(m, 2), 4)}, v{37 + m}, {S(sOUT, 4)}, 0 offen{OF_}')
            continue
        if 'outx4' in EXP:
            d = ACC(0, 2) + 2 * t
            a(f'v_cvt_pk_bf16_f32 v{d}, v{R(t, 0)}, v{R(t, 1)}')
            a(f'v_cvt_pk_bf16_f32 v{d + 1}, v{R(t, 2)}, v{R(t, 3)}')
            if t in (1, 3):
                a(f'buffer_store_dwordx4 {V(d - 2, 4)}, v{vXA}, {S(sOUT, 4)}, 0 offen offset:{8 * (t - 1)}{OF_}')
            if t == 4:
                a(f'buffer_store_dwordx2 {V(d, 2)}, v{vXA}, {S(sOUT, 4)}, 0 offen offset:32{OF_}')
            continue
        a(f'v_cvt_pk_bf16_f32 v{R(t, 0)}, v{R(t, 0)}, v{R(t, 1)}')
        a(f'v_cvt_pk_bf16_f32 v{R(t, 1)}, v{R(t, 2)}, v{R(t, 3)}')
        a(f'buffer_store_dwordx2 {V(R(t, 0), 2)}, v{vXA}, {S(sOUT, 4)}, 0 offen offset:{8 * t}{OF_}')
    a.label('L_fin')
    stamp_flush(a, 'end')


DOC = """
One persistent launch, 256 workgroups of 8 waves (one per CU), generated by a script of the author's own.
Roles by workgroup id (id & 7 is used for L2 locality only):
  A (128): LayerNorm of 16 tokens -> xn / h fragments, re-layout of wqkv tiles; then for 128 tokens x 4 heads:
           k,v projection (lower waves, upper waves load), phi_k = [softmax(k w_phi) | softmax(-k w_phi)] with
           true max / min subtraction, kv / z partials; upper waves: q projection, phi_q, o = num / (den + 1e-6).
  B (108): u = h^T w1 + b1 (160 x 64 tile), g = gelu_tanh(u) written as MFMA fragments.
  R (16): sums the kv / z partials of two heads.   W (4): wo^T fragments.
  All: out tile (64 tokens x 80) = x + b2 + g . w2 + o . wo.
h = LN(LN(x)): LN(x) has mean 0 and variance var*r^2 exactly, so the second LayerNorm is the factor
rsqrt(var*r^2 + eps) on (x - mean)*r.
Hand-offs between workgroups: write-through (sc1) stores, vmcnt wait, then a flag line holding tag = epoch + 1;
consumers poll (bounded) and read with sc1 loads. The epoch word in d_ws only separates this launch's flags from
older ones; it is advanced once every wave of the grid has read it.
"""


def build():
    a = Asm()
    hdr = open(os.path.join(os.path.dirname(__file__), '..', 'cdna_kernels', NAME + '.s.ref')).read().split('\n')
    for line in hdr:
        if line.startswith(';') and '@launch' not in line:
            a.raw(line)
    a.raw(f'; @launch grid=(256,1,1) block=(512,1,1) lds={LDS_BYTES}')
    a.raw('.amdgcn_target "amdgcn-amd-amdhsa--gfx950"')
    a.raw('.text')
    for line in DOC.strip().split('\n'):
        a.raw('; ' + line)
    K = NAME + '_kernel'
    a.raw(f'.globl {K}')
    a.raw('.p2align 8')
    a.raw(f'.type {K},@function')
    a.raw(f'{K}:')
    a.raw('L_start:')
    a('s_cmp_ge_u32 s2, 256')
    a('s_cbranch_scc1 L_end')
    a('s_load_dwordx16 s[16:31], s[0:1], 0')
    a('s_load_dwordx8 s[32:39], s[0:1], 64')
    a(f'v_and_b32 v{vL}, 63, v0')
    a('v_lshrrev_b32 v6, 6, v0')
    a(f'v_readfirstlane_b32 s{sW8}, v6')
    a(f'v_lshrrev_b32 v{vG}, 4, v{vL}')
    a(f'v_and_b32 v{vI}, 15, v{vL}')
    a(f'v_lshrrev_b32 v{vR}, 2, v{vI}')
    a(f'v_and_b32 v{vC}, 3, v{vL}')
    a(f'v_lshl_add_u32 v{vGR}, v{vG}, 2, v{vR}')
    a(f'v_and_b32 v{vTH}, 255, v0')
    a(f's_and_b32 s{sW}, s{sW8}, 3')
    a(f's_lshr_b32 s{sWH}, s{sW8}, 2')
    a(f's_mov_b32 s{sID}, s2')
    a('s_waitcnt lgkmcnt(0)')
    a(f's_add_u32 s4, s{P_WS}, {EP_OFF}')
    a(f's_addc_u32 s5, s{P_WS + 1}, 0')
    a(f's_load_dword s{sTAG}, s[4:5], 0')
    srd(a, sX, P_X, S_ * D_ * 2)
    srd(a, sWS, P_WS, WS_USED)
    srd(a, sW2, P_W2, F_ * S_ * 2)
    stamp(a, 'start')
    if 'noticket' not in EXP:
        srd(a, sAUX, P_DBG, 256)
        a(f'v_mov_b32 v8, {L_CNT + 16}')
        a(f's_cmp_lg_u32 s{sW8}, 0')
        a('s_cbranch_scc1 L_ticket_done')
        a('s_getreg_b32 s4, hwreg(HW_REG_XCC_ID)')
        a('s_mov_b32 s6, 0')
        a('s_mov_b64 exec, 1')
        a.label('L_ticket')
        a('s_and_b32 s4, s4, 7')
        a('s_lshl_b32 s5, s4, 5')
        a('v_mov_b32 v9, s5')
        a('v_mov_b32 v10, 1')
        a(f'buffer_atomic_add v10, v9, {S(sAUX, 4)}, 0 offen sc0 sc1')
        a.wait_vm0()
        a('v_readfirstlane_b32 s5, v10')
        a('s_cmp_lt_u32 s5, 32')
        a('s_cbranch_scc1 L_ticket_ok')
        a('s_add_u32 s4, s4, 1')
        a('s_add_u32 s6, s6, 1')
        a('s_cmp_lt_u32 s6, 8')
        a('s_cbranch_scc1 L_ticket')
        a.label('L_ticket_ok')
        a('s_lshl_b32 s5, s5, 3')
        a('s_add_u32 s5, s5, s4')
        a('v_mov_b32 v9, s5')
        a('ds_write_b32 v8, v9')
        a('s_mov_b64 exec, -1')
        a('s_waitcnt lgkmcnt(0)')
        a.label('L_ticket_done')
        a('s_barrier')
        a('ds_read_b32 v9, v8')
        a('s_waitcnt lgkmcnt(0)')
        a('s_barrier')
        a(f'v_readfirstlane_b32 s{sID}, v9')
        a(f's_and_b32 s{sID}, s{sID}, 255')
        a.reset_counters()
        stamp(a, 'tick')
    if os.environ.get('UPRIO', '1') != '0':
        a(f's_cmp_eq_u32 s{sWH}, 0')
        a('s_cbranch_scc1 L_prio')
        a(f's_setprio {os.environ.get("UPRIO", "1")}')
        a.label('L_prio')
    a(f's_cmp_ge_u32 s{sID}, 128')
    a('s_cbranch_scc1 L_not_a')
    role_a(a)
    a.label('L_not_a')
    a.reset_counters()
    a(f's_and_b32 s4, s{sID}, 7')
    a(f's_lshr_b32 s5, s{sID}, 3')
    a('s_sub_u32 s5, s5, 16')
    a('s_cmp_ge_u32 s5, 14')
    a('s_cbranch_scc1 L_role_r')
    a('s_and_b32 s7, s4, 1')
    a('s_add_u32 s7, s7, 13')
    a('s_cmp_ge_u32 s5, s7')
    a('s_cbranch_scc1 L_role_wot')
    a('s_mul_i32 s6, s4, 27')
    a('s_lshr_b32 s6, s6, 1')
    a('s_add_u32 s6, s6, s5')
    role_b(a)
    a.label('L_role_r')
    a.reset_counters()
    a(f's_sub_u32 s6, s{sID}, 240')
    role_r(a)
    a.label('L_role_wot')
    a.reset_counters()
    a('s_lshr_b32 s6, s4, 1')
    role_wot(a)
    a.label('L_join')
    final_gemm(a)
    a.label('L_end')
    a('s_endpgm')
    if STAMPS:
        a.raw('; STAMPS ' + ' '.join(STAMP_NAMES))
    a.raw('.section .rodata,"a"')
    a.raw(f""".p2align 6
.amdhsa_kernel {K}
  .amdhsa_next_free_vgpr 256
  .amdhsa_next_free_sgpr 102
  .amdhsa_accum_offset 256
  .amdhsa_group_segment_fixed_size 0
  .amdhsa_kernarg_size 96
  .amdhsa_user_sgpr_count 2
  .amdhsa_user_sgpr_kernarg_segment_ptr 1
  .amdhsa_system_sgpr_workgroup_id_x 1
.end_amdhsa_kernel""")
    sys.stderr.write(f'maxv={a.maxv} maxa={a.maxa} maxs={a.maxs} nops={a.nops} lines={len(a.out)}\n')
    return a.text()


if __name__ == '__main__':
    out = sys.argv[1] if len(sys.argv) > 1 else os.path.join(os.path.dirname(__file__), '..', 'cdna_kernels', NAME + '.s')
    open(out, 'w').write(build())
```
